```python
import torch

def _softmax(x, axis=-1):
    return torch.softmax(x, dim=axis)
def _gelu(x):
    return torch.nn.functional.gelu(x, approximate="tanh")
def _silu(x):
    return torch.nn.functional.silu(x)
def _sigmoid(x):
    return torch.sigmoid(x)
def _layernorm(x, axis=-1, eps=1e-5):
    m = x.mean(dim=axis, keepdim=True)
    v = x.var(dim=axis, keepdim=True, unbiased=False)
    return (x - m) / torch.sqrt(v + eps)
def _scatter_add(tgt, idx, src, axis=0):
    return tgt.clone().index_add_(axis, idx, src)
def _segment_sum(src, seg, n):
    out = torch.zeros((n,) + src.shape[1:], dtype=src.dtype)
    return out.index_add_(0, seg, src)
def _pad(x, pw):
    flat = tuple(v for pair in reversed(pw) for v in pair)
    return torch.nn.functional.pad(x, flat)

kernel_name = 'interleave_layers__sliding_block__linear_kernel_hedgehog__prompt'

def setup_inputs():

    _w = (lambda a: (lambda t: t.to(torch.bfloat16) if t.is_floating_point() else t)(torch.as_tensor(a)))
    def _A_setup():
        B, S, D = 1, 2048, 512
        return {
            "x": _w((lambda *s: torch.randn(*s, dtype=torch.bfloat16) * 0.05)(B, S, D)),
            "wqkv": _w((lambda *s: torch.randn(*s, dtype=torch.bfloat16) * 0.05)(D, 3 * D)),
            "wo": _w((lambda *s: torch.randn(*s, dtype=torch.bfloat16) * 0.05)(D, D)),
        }
    _A_in = _A_setup()

    def _B_setup():
        B, S, D, H = 1, 2048, 512, 32
        Dh = D // H
        return {
            "x": _w((lambda *s: torch.randn(*s, dtype=torch.bfloat16) * 0.05)(B, S, D)),
            "wqkv": _w((lambda *s: torch.randn(*s, dtype=torch.bfloat16) * 0.4)(D, 3 * D)),
            "w_phi": _w((lambda *s: torch.randn(*s, dtype=torch.bfloat16) * 0.4)(H, Dh, Dh) * (Dh ** -0.5)),
            "wo": _w((lambda *s: torch.randn(*s, dtype=torch.bfloat16) * 0.05)(D, D)),
        }
    _B_in = _B_setup()

    return {
        "A_x": _A_in["x"],
        "A_wqkv": _A_in["wqkv"],
        "A_wo": _A_in["wo"],
        "B_x": _B_in["x"],
        "B_wqkv": _B_in["wqkv"],
        "B_w_phi": _B_in["w_phi"],
        "B_wo": _B_in["wo"],
    }

def reference(A_x, A_wqkv, A_wo, B_x, B_wqkv, B_w_phi, B_wo):
    def _A_ref(x, wqkv, wo):
        B, S, D = x.shape
        H = 32; Dh = D // H; W = 256
        qkv = (lambda x, *d: x.permute(*d))((x @ wqkv).reshape(B, S, 3, H, Dh), 2, 0, 3, 1, 4)
        q, k, v = qkv[0], qkv[1], qkv[2]
        scores = torch.einsum("bhqd,bhkd->bhqk", q, k) * (Dh ** -0.5)
        idx = torch.arange(S)
        mask = (idx[:, None] - idx[None, :] >= 0) & (idx[:, None] - idx[None, :] < W)
        scores = torch.where(mask[None, None], scores, -1e9)
        p = _softmax(scores, axis=-1)
        o = torch.einsum("bhqk,bhkd->bhqd", p, v)
        return (lambda x, *d: x.permute(*d))(o, 0, 2, 1, 3).reshape(B, S, D) @ wo

    def _B_ref(x, wqkv, w_phi, wo):
        B, S, D = x.shape
        H = 32; Dh = D // H
        qkv = (lambda x, *d: x.permute(*d))((x @ wqkv).reshape(B, S, 3, H, Dh), 2, 0, 3, 1, 4)
        q, k, v = qkv[0], qkv[1], qkv[2]
        pq = torch.einsum("bhsd,hdf->bhsf", q, w_phi)
        pk = torch.einsum("bhsd,hdf->bhsf", k, w_phi)
        phi_q = torch.concatenate([_softmax(pq, axis=-1), _softmax(-pq, axis=-1)], axis=-1)
        phi_k = torch.concatenate([_softmax(pk, axis=-1), _softmax(-pk, axis=-1)], axis=-1)
        kv = torch.einsum("bhsf,bhsd->bhfd", phi_k, v)
        z  = torch.einsum("bhsf->bhf", phi_k)
        num = torch.einsum("bhqf,bhfd->bhqd", phi_q, kv)
        den = torch.einsum("bhqf,bhf->bhq", phi_q, z)[..., None] + 1e-6
        o = num / den
        return (lambda x, *d: x.permute(*d))(o, 0, 2, 1, 3).reshape(B, S, D) @ wo

    x = A_x
    x = x + _A_ref(_layernorm(x, axis=-1), A_wqkv, A_wo)
    x = x + _B_ref(_layernorm(x, axis=-1), B_wqkv, B_w_phi, B_wo)
    x = x + _A_ref(_layernorm(x, axis=-1), A_wqkv, A_wo)
    x = x + _B_ref(_layernorm(x, axis=-1), B_wqkv, B_w_phi, B_wo)
    return x
```

```python
import re

def vr(a, n=1): return f'v{a}' if n == 1 else f'v[{a}:{a+n-1}]'
def sr(a, n=1): return f's{a}' if n == 1 else f's[{a}:{a+n-1}]'

_REG = re.compile(r'^(-|\|)?(abs\()?(v|s|a)(\d+|\[(\d+):(\d+)\])\)?\|?$')
def regs_of(tok):
    tok = tok.strip()
    if tok in ('vcc',): return {('s', 106), ('s', 107)}
    if tok == 'vcc_lo': return {('s', 106)}
    if tok == 'vcc_hi': return {('s', 107)}
    if tok == 'exec': return {('s', 126), ('s', 127)}
    if tok == 'm0': return {('s', 124)}
    m = _REG.match(tok)
    if not m: return set()
    f = m.group(3)
    if m.group(5) is not None: return {(f, i) for i in range(int(m.group(5)), int(m.group(6)) + 1)}
    return {(f, int(m.group(4)))}

TRANS = ('v_exp_f32', 'v_log_f32', 'v_rcp_f32', 'v_rsq_f32', 'v_sqrt_f32', 'v_sin_f32', 'v_cos_f32')

class Ins:
    def __init__(self, text):
        self.text = text
        t = text.split(';')[0].strip()
        self.label = None
        if t.endswith(':'):
            self.label = t[:-1]; self.op = None; self.kind = 'label'; self.d = set(); self.s = set(); return
        if t.startswith('.') or not t:
            self.op = None; self.kind = 'dir'; self.d = set(); self.s = set(); return
        p = t.split(None, 1); op = p[0]; rest = p[1] if len(p) > 1 else ''
        self.op = op
        ops = []; cur = ''; depth = 0
        for ch in rest:
            if ch in '[(': depth += 1
            if ch in '])': depth -= 1
            if ch == ',' and depth == 0: ops.append(cur.strip()); cur = ''
            else: cur += ch
        if cur.strip(): ops.append(cur.strip())
        mods = ''
        if ops:
            last = ops[-1].split(None, 1)
            ops[-1] = last[0]; mods = last[1] if len(last) > 1 else ''
        self.ops = ops; self.mods = mods
        R = [regs_of(o) for o in ops]
        allr = lambda lst: set().union(*lst) if lst else set()
        d = set(); s = set(); kind = 'other'
        self.states = 1
        if op.startswith('v_mfma'):
            kind = 'mfma'; d = R[0]; s = allr(R[1:]); self.A = R[1]; self.B = R[2]; self.C = R[3]
            self.passes = 8 if '32x32' in op else 4
        elif op.startswith('v_'):
            kind = 'valu'
            if op.startswith('v_permlane') and 'swap' in op: d = R[0] | R[1]; s = R[0] | R[1]
            elif op.startswith('v_cmpx'): raise Exception('no cmpx')
            elif op.startswith(('v_add_co', 'v_sub_co', 'v_addc_co', 'v_subb_co')): d = R[0] | R[1]; s = allr(R[2:])
            else:
                d = R[0]; s = allr(R[1:])
                if op.startswith(('v_fmac', 'v_dot2c', 'v_writelane', 'v_mac')) or '_dpp' in op: s = s | R[0]
        elif op.startswith(('buffer_', 'global_')):
            kind = 'vmem'
            if op in ('buffer_wbl2', 'buffer_inv'): pass
            elif 'load' in op and ' lds' in (' ' + mods): s = allr(R) | {('s', 124)}; self.ldsdma = True
            elif 'load' in op: d = R[0]; s = allr(R[1:])
            else:
                s = allr(R)
                self.data = R[0] if op.startswith('buffer_') else R[1]
                if 'atomic' in op and 'sc0' in mods: d = R[0]
        elif op.startswith('ds_'):
            kind = 'ds'
            if op.startswith(('ds_read', 'ds_bpermute', 'ds_permute', 'ds_swizzle')): d = R[0]; s = allr(R[1:])
            else: s = allr(R)
        elif op.startswith(('s_load', 's_memtime', 's_memrealtime', 's_buffer_load')):
            kind = 'smem'; d = R[0]; s = allr(R[1:])
        elif op.startswith('s_'):
            kind = 'salu'
            if op == 's_nop': self.states = int(ops[0], 0) + 1
            elif op.startswith(('s_cmp', 's_cbranch', 's_branch', 's_waitcnt', 's_barrier', 's_sleep', 's_setprio', 's_endpgm', 's_bitcmp')): s = allr(R)
            elif 'saveexec' in op: d = R[0] | {('s', 126), ('s', 127)}; s = allr(R[1:])
            else: d = R[0] if R else set(); s = allr(R[1:])
        self.kind = kind; self.d = d; self.s = s
    def is_branch(self): return self.op is not None and (self.op.startswith('s_cbranch') or self.op == 's_branch')
    def target(self): return self.ops[0]

def need(p, c):
    n = 0
    vd = {r for r in p.d if r[0] == 'v'}; sd = {r for r in p.d if r[0] == 's'}
    if p.kind == 'valu':
        if c.kind == 'mfma' and vd & c.s: n = max(n, 2)
        if c.kind == 'valu':
            if p.op.startswith(TRANS) and not c.op.startswith(TRANS) and vd & c.s: n = max(n, 1)
            if (c.op.startswith('v_permlane') or '_dpp' in c.op) and vd & c.s: n = max(n, 2)
            if c.op.startswith(('v_readlane', 'v_readfirstlane')) and vd & c.s: n = max(n, 1)
            if sd & c.s: n = max(n, 4 if c.op.startswith(('v_readlane', 'v_writelane')) else 2)
            if ('op_sel' in p.mods or 'sdwa' in p.op) and vd & (c.s | c.d): n = max(n, 1)
        if c.kind == 'vmem' and sd & c.s: n = max(n, 5)
        if c.kind == 'salu' and sd & c.s and not c.op.startswith('s_cbranch'): n = max(n, 1)
    if p.kind == 'mfma':
        big = 12 if p.passes == 8 else 8
        if c.kind in ('valu', 'vmem', 'ds') and p.d & (c.s | c.d): n = max(n, big)
        if c.kind == 'mfma':
            if p.d & (c.A | c.B): n = max(n, big)
            if p.d & c.C and not (p.d == c.C and p.passes == c.passes): n = max(n, big - 2)
            if p.d & c.d and not (p.d == c.C) : n = max(n, big - 2) if p.passes != c.passes or p.d != c.d else n
        if c.kind == 'valu' and p.C & c.d: n = max(n, 7 if p.passes == 8 else 3)
    if p.kind == 'vmem' and hasattr(p, 'data') and ('x4' in p.op or 'x3' in p.op):
        if p.data & c.d: n = max(n, 2)
    if p.kind == 'salu' and ('s', 124) in p.d and getattr(c, 'ldsdma', False): n = max(n, 1)
    return n

class Prog:
    def __init__(self): self.L = []; self.uid = 0
    def __call__(self, text):
        for ln in text.split('\n'):
            if ln.strip(): self.L.append(Ins(ln.strip()))
    def label(self, name): self.L.append(Ins(name + ':'))
    def newlabel(self, base='L'): self.uid += 1; return f'{base}_{self.uid}'
    def comment(self, t): self.L.append(Ins('; ' + t)) if False else None

    def fix_hazards(self):
        total = 0
        L = self.L
        def maps():
            labels = {x.label: i for i, x in enumerate(L) if x.label}
            brs = {}
            for i, x in enumerate(L):
                if x.is_branch(): brs.setdefault(labels[x.target()], []).append(i)
            return brs
        brs = maps()
        def preds(i):
            r = []
            if i > 0 and not (L[i-1].op in ('s_branch', 's_endpgm')): r.append(i-1)
            if L[i].label: r += brs.get(i, [])
            return r
        i = 0
        while i < len(L):
            c = L[i]
            if c.op is None or c.kind in ('smem',):
                i += 1; continue
            worst = 0
            stack = [(j, 0) for j in preds(i)]; seen = {}
            while stack:
                j, dist = stack.pop()
                if dist > 12: continue
                if j in seen and seen[j] <= dist: continue
                seen[j] = dist
                p = L[j]
                if p.op is not None:
                    n = need(p, c)
                    if n > dist: worst = max(worst, n - dist)
                    nd = dist + p.states
                else: nd = dist
                for k in preds(j): stack.append((k, nd))
            if worst > 0:
                L.insert(i, Ins(f's_nop {worst-1}'))
                total += 1
                brs = maps()
                i += 1
            i += 1
        return total

    def check_waits(self):
        vm = []; lg = []; errs = []
        for i, x in enumerate(self.L):
            if x.op is None:
                continue
            if x.op in ('s_branch', 's_endpgm'): vm = []; lg = []; continue
            if x.op == 's_waitcnt':
                t = x.text
                m = re.search(r'vmcnt\((\d+)\)', t)
                if m:
                    n = int(m.group(1)); vm = vm[len(vm)-n:] if n < len(vm) and n > 0 else ([] if n == 0 else vm)
                m = re.search(r'lgkmcnt\((\d+)\)', t)
                if m:
                    n = int(m.group(1))
                    if n > 0 and any(k == 'smem' for k, _ in lg): errs.append((i, x.text, 'counted lgkmcnt with smem outstanding'))
                    lg = lg[len(lg)-n:] if n < len(lg) and n > 0 else ([] if n == 0 else lg)
                continue
            touched = x.s | x.d
            for k, d in vm + lg:
                if d & touched and not (x.kind == k and x.kind in ('vmem', 'ds') and not (d & x.s)):
                    errs.append((i, x.text, f'touches outstanding {k} dest {sorted(d & touched)[:3]}'))
            if x.kind == 'vmem': vm.append(('vmem', x.d))
            if x.kind in ('ds', 'smem'): lg.append((x.kind, x.d))
            if len(vm) > 63: errs.append((i, x.text, 'vmcnt overflow'))
        return errs

    def text(self):
        out = []
        for x in self.L:
            out.append(x.text if (x.label or x.kind == 'dir') else '    ' + x.text)
        return '\n'.join(out) + '\n'
```

```python
import sys, struct
sys.path.insert(0, 'dev')
from asmlib import *

NAME = 'interleave_layers__sliding_block__linear_kernel_hedgehog__prompt'
def f2u(x): return struct.unpack('<I', struct.pack('<f', x))[0]
LOG2E = 1.4426950408889634

OFF_XFLAG = 0x1000
OFF_OFLAG = 0x9000
OFF_KVFLAG = 0x11000
OFF_KPFLAG = 0x21000
OFF_STAMP = 0x30000
OFF_ST = 0x100000
OFF_X = 0x200000
OFF_O = 0xA00000
OFF_KV = 0x1200000
OFF_KP = 0x1A00000
KP_REC = 4352; KP_CH = 1088
WS_USED = 0x2000000
OOB = 0x40000000
TAGC = 0x9E3779B0

LDS_WK = 0; LDS_WV = 32768; LDS_WQ = 65536; LDS_T = 65536; LDS_OWN = 98304; LDS_WO = 114688
LDS_Q = 147456; LDS_WEXT = 155648; LDS_RSTD = 158720; LDS_KVT = 159232; LDS_ZT = LDS_KVT + 2048
LDS_FAST = LDS_ZT + 128; LDS_TOTAL = LDS_FAST + 64
LDS_PHI = LDS_WK; PHI_ROW = 80; PHI_HS = 128 * PHI_ROW

sWS, sX0, sWA, sWoA, sWB, sWoB, sPhi, sOut = 4, 8, 12, 16, 20, 24, 28, 32
sR, sC, sW, sMT, sHS, sRT, sQT, sTAG, sFAST, sBUD = 36, 37, 38, 39, 40, 41, 42, 43, 44, 45
sT0, sT1, sT2, sT3 = 46, 47, 48, 49
sLO = 50
sOWNF = 52; sCNT = 53; sSTEP = 54; sLOG2E = 55; sST = 56
sPERM = 58; sTM = 60
vT0, vLANE, vL16, vL4, vTR0, vTR1, vTR2, vSTAMP = 0, 1, 2, 3, 4, 5, 6, 7
XRES, WPHI = 8, 16
vRSTD, vKA, vVA, vPD, vPA, vRA, vRB, vFD = 20, 21, 22, 23, 24, 25, 26, 27
XEXT = 28; ACC0 = 32; ACC1 = 48; RING = 64; WEXTQ = 84; WEXTK = 88; WEXTV = 92; VV = 88
STAT = 96; CDIAG = 96; PKV = 112; CFIRST = 112; XF = 128
aS, aE, aP, aK, aQ, aH = 128, 144, 160, 168, 172, 192
MFMA = 'v_mfma_f32_32x32x16_bf16'


class Gen:
    def __init__(self, stamps=False, nlayers=4, force_safe=False):
        self.P = Prog(); self.stamps = stamps; self.nl = nlayers; self.force_safe = force_safe
        self.stamp_names = {}

    def stamp(self, idx, name=''):
        if not self.stamps: return
        self.stamp_names[idx] = name
        P = self.P
        P(f's_memrealtime {sr(sST,2)}\ns_waitcnt lgkmcnt(0)\nv_writelane_b32 {vr(vSTAMP)}, {sr(sST)}, {idx}')

    def mfma(self, d, a, b, c):
        cs = '0' if c is None else vr(c, 16)
        self.P(f'{MFMA} {vr(d,16)}, {vr(a,4)}, {vr(b,4)}, {cs}')

    def srd(self, s, ptr, nbytes):
        self.P(f's_mov_b32 {sr(s)}, {sr(ptr)}\ns_and_b32 {sr(s+1)}, {sr(ptr+1)}, 0xffff\ns_mov_b32 {sr(s+2)}, {nbytes}\ns_mov_b32 {sr(s+3)}, 0x20000')

    def poll(self, soff, masked=False, sleep=1):
        P = self.P; lp = P.newlabel('Lpoll'); dn = P.newlabel('Lpolld')
        P.label(lp)
        P(f'buffer_load_dword {vr(vPD)}, {vr(vPA)}, {sr(sWS,4)}, {sr(soff)} offen sc1\ns_waitcnt vmcnt(0)')
        if masked:
            P(f'v_and_b32 {vr(vT0)}, -16, {vr(vPD)}\nv_cmp_ne_u32 vcc, {sr(sTAG)}, {vr(vT0)}')
        else:
            P(f'v_cmp_ne_u32 vcc, {sr(sTAG)}, {vr(vPD)}')
        P(f's_cbranch_vccz {dn}')
        if sleep: P(f's_sleep {sleep}')
        P(f's_sub_u32 {sr(sBUD)}, {sr(sBUD)}, 1\ns_cbranch_scc0 {lp}\ns_mov_b32 {sr(sBUD)}, 0')
        P.label(dn)

    def flag(self, soff, sval, sc1):
        P = self.P
        P(f'v_mov_b32 {vr(vPD)}, {sr(sval)}\ns_mov_b64 exec, 1')
        P(f'buffer_store_dword {vr(vPD)}, off, {sr(sWS,4)}, {sr(soff)}' + (' sc1' if sc1 else ''))
        P('s_mov_b64 exec, -1')

    def two_way(self, emit, always_safe=False):
        P = self.P
        if always_safe or self.force_safe:
            emit(True); return
        ls = P.newlabel('Lsafe'); le = P.newlabel('Lpub')
        P(f's_cmp_eq_u32 {sr(sFAST)}, 0\ns_cbranch_scc1 {ls}')
        emit(False)
        P(f's_branch {le}'); P.label(ls)
        emit(True)
        P.label(le)

    def prologue(self):
        P = self.P
        P(f'''s_cmp_ge_u32 s2, 256
s_cbranch_scc1 L_end
s_load_dwordx16 s[64:79], s[0:1], 0
s_load_dwordx4 s[80:83], s[0:1], 64
v_lshrrev_b32 v1, 6, v0
s_and_b32 {sr(sT0)}, s2, 7
v_readfirstlane_b32 {sr(sW)}, v1
s_lshr_b32 {sr(sT1)}, s2, 3
s_and_b32 {sr(sC)}, {sr(sT1)}, 15
s_lshr_b32 {sr(sT1)}, {sr(sT1)}, 4
s_lshl_b32 {sr(sR)}, {sr(sT0)}, 1
s_add_u32 {sr(sR)}, {sr(sR)}, {sr(sT1)}
s_and_b32 {sr(sMT)}, {sr(sW)}, 3
s_lshr_b32 {sr(sHS)}, {sr(sW)}, 2
s_lshl_b32 {sr(sRT)}, {sr(sR)}, 2
s_add_u32 {sr(sRT)}, {sr(sRT)}, {sr(sMT)}
s_mul_i32 {sr(sT0)}, {sr(sHS)}, 3
s_xor_b32 {sr(sQT)}, {sr(sMT)}, {sr(sT0)}
s_mov_b32 {sr(sBUD)}, 0x100000
s_mov_b32 {sr(sLO)}, 0xffff
s_mov_b32 {sr(sLO+1)}, 0xffff
s_mov_b32 {sr(sFAST)}, 0
s_mov_b32 {sr(sLOG2E)}, {f2u(LOG2E):#x}
s_getreg_b32 {sr(sOWNF)}, hwreg(HW_REG_XCC_ID, 0, 4)
v_and_b32 {vr(vLANE)}, 63, v0
v_lshlrev_b32 {vr(vL16)}, 4, {vr(vLANE)}
v_lshlrev_b32 {vr(vL4)}, 2, {vr(vLANE)}
v_mov_b32 {vr(vSTAMP)}, 0
s_waitcnt lgkmcnt(0)
s_load_dword {sr(sTAG)}, s[82:83], 0''')
        self.srd(sWS, 82, WS_USED); self.srd(sX0, 64, 2097152); self.srd(sWA, 66, 1572864); self.srd(sWoA, 68, 524288)
        self.srd(sWB, 72, 1572864); self.srd(sPhi, 74, 16384); self.srd(sWoB, 76, 524288); self.srd(sOut, 78, 2097152)
        P(f'''v_lshrrev_b32 v30, 5, {vr(vLANE)}
v_bfe_u32 v31, {vr(vLANE)}, 2, 2
v_lshl_add_u32 v31, v30, 2, v31
v_lshlrev_b32 {vr(vTR0)}, 6, v31
v_bfe_u32 v31, {vr(vLANE)}, 4, 1
v_lshl_add_u32 {vr(vTR0)}, v31, 5, {vr(vTR0)}
v_and_b32 v31, 3, {vr(vLANE)}
v_lshl_add_u32 {vr(vTR0)}, v31, 3, {vr(vTR0)}
v_add_u32 {vr(vTR1)}, {LDS_WQ}, {vr(vTR0)}
v_add_u32 {vr(vTR2)}, {LDS_WO}, {vr(vTR0)}''')
        P(f'''v_and_b32 v31, 31, {vr(vLANE)}
s_lshl_b32 {sr(sT0)}, {sr(sMT)}, 7
s_add_u32 {sr(sT0)}, {sr(sT0)}, {LDS_RSTD}
v_lshl_add_u32 {vr(vRA)}, v31, 2, {sr(sT0)}
v_lshl_add_u32 {vr(vRB)}, v30, 4, {sr(sT0)}
v_lshlrev_b32 v29, 2, v30
v_sub_u32 v29, v31, v29
v_cvt_f32_i32 v29, v29
v_mul_f32 {vr(vFD)}, {f2u(2.0**100):#x}, v29''')
        P(f'''s_lshl_b32 {sr(sT0)}, {sr(sC)}, 1
s_add_u32 {sr(sT0)}, {sr(sT0)}, {sr(sHS)}
s_lshl_b32 {sr(sT0)}, {sr(sT0)}, 9
v_and_b32 v29, 15, {vr(vLANE)}
v_lshlrev_b32 v29, 1, v29
v_lshl_add_u32 v29, v30, 7, v29''')
        for j in range(8):
            d = (j if j < 4 else 8 + j - 4)
            P(f'buffer_load_ushort {vr(64+j)}, v29, {sr(sPhi,4)}, {sr(sT0)} offen offset:{d*32}')
        P(f's_waitcnt lgkmcnt(0)\ns_and_b32 {sr(sTAG)}, {sr(sTAG)}, -16\ns_add_u32 {sr(sTAG)}, {sr(sTAG)}, {TAGC:#x}\ns_or_b32 {sr(sOWNF)}, {sr(sOWNF)}, {sr(sTAG)}')
        self.stamp(0, 'start')
        P(f's_cmp_lg_u32 {sr(sHS)}, 0\ns_cbranch_scc1 L_aux_pro')
        P(f'''v_lshlrev_b32 v28, 10, v31
v_lshl_add_u32 v28, v30, 4, v28
s_lshl_b32 {sr(sT0)}, {sr(sRT)}, 15
s_lshl_b32 {sr(sT1)}, {sr(sC)}, 6
s_add_u32 {sr(sT0)}, {sr(sT0)}, {sr(sT1)}
buffer_load_dwordx4 {vr(XRES,4)}, v28, {sr(sX0,4)}, {sr(sT0)} offen
buffer_load_dwordx4 {vr(XRES+4,4)}, v28, {sr(sX0,4)}, {sr(sT0)} offen offset:32''')
        self.wphi_pack(2)
        P('s_waitcnt vmcnt(0)')
        self.stamp(1, 'x0 landed')
        for a, b in ((0, 2), (1, 3), (4, 6), (5, 7)): P(f'v_permlane32_swap_b32 {vr(XRES+a)}, {vr(XRES+b)}')
        self.unpack_res()
        self.publish_x(0)
        P('s_branch L_main_0')
        P.label('L_aux_pro')
        self.wphi_pack(0)
        self.dma_addr()
        lq = P.newlabel('Lx'); lj = P.newlabel('Lx')
        P(f's_cmp_eq_u32 {sr(sMT)}, 3\ns_cbranch_scc1 {lq}')
        self.dma_w(0)
        P('s_waitcnt vmcnt(0)')
        self.stamp(1, 'W landed')
        self.colsum(0)
        P(f's_branch {lj}'); P.label(lq)
        self.dma_wo(0)
        P.label(lj)
        P('s_branch L_aux_0')

    def wphi_pack(self, nyounger):
        P = self.P
        P(f's_waitcnt vmcnt({nyounger})')
        for p in range(4): P(f'v_lshl_or_b32 {vr(WPHI+p)}, {vr(64+2*p+1)}, 16, {vr(64+2*p)}')
        P(f'v_and_b32 v72, 16, {vr(vLANE)}\nv_cmp_ne_u32 vcc, 0, v72\nv_mov_b32 v72, 0\nv_mov_b32 v73, 0x80008000\nv_cndmask_b32 v72, v72, v73, vcc')
        for p in range(4): P(f'v_xor_b32 {vr(WPHI+p)}, v72, {vr(WPHI+p)}')

    def dma_addr(self):
        P = self.P
        P(f'''v_lshrrev_b32 v30, 2, {vr(vLANE)}
v_and_b32 v31, 3, {vr(vLANE)}
v_lshlrev_b32 v31, 4, v31
s_lshl_b32 {sr(sT0)}, {sr(sC)}, 6
v_add_u32 v31, {sr(sT0)}, v31
v_mul_u32_u24 v8, 3072, v30
v_add_u32 v8, v8, v31
v_lshl_add_u32 v9, v30, 10, v31
s_add_u32 {sr(sT0)}, {sr(sMT)}, 2
s_cmp_ge_u32 {sr(sT0)}, 3
s_cselect_b32 {sr(sT1)}, 3, 0
s_sub_u32 {sr(sT0)}, {sr(sT0)}, {sr(sT1)}
s_lshl_b32 {sr(sPERM)}, {sr(sT0)}, 15
v_add_u32 v10, {sr(sPERM)}, {vr(vTR0)}''')
        for i in range(4): P(f'v_mov_b32 {vr(12+i)}, 0x3f803f80')

    def dma_loop(self, vaddr, srd, step):
        P = self.P; lp = P.newlabel('Ldma')
        P(f's_mov_b32 {sr(sCNT)}, 8'); P.label(lp)
        for u in range(4):
            P(f'buffer_load_dwordx4 {vr(vaddr)}, {sr(srd,4)}, {sr(sT0)} offen lds\ns_add_u32 m0, m0, 1024\ns_add_u32 {sr(sT0)}, {sr(sT0)}, {step}')
        P(f's_sub_u32 {sr(sCNT)}, {sr(sCNT)}, 1\ns_cmp_lg_u32 {sr(sCNT)}, 0\ns_cbranch_scc1 {lp}')

    def dma_w(self, L):
        self.P(f's_mov_b32 m0, {sr(sPERM)}\ns_lshl_b32 {sr(sT0)}, {sr(sMT)}, 10')
        self.dma_loop(8, sWA if L % 2 == 0 else sWB, 16 * 3072)

    def dma_wo(self, L):
        self.P(f's_mov_b32 m0, {LDS_WO}\ns_mov_b32 {sr(sT0)}, 0')
        self.dma_loop(9, sWoA if L % 2 == 0 else sWoB, 16 * 1024)

    def colsum(self, typ):
        P = self.P; lp = P.newlabel('Lcs')
        for i in range(16): P(f'v_mov_b32 {vr(ACC0+i)}, 0')
        P(f'v_mov_b32 v11, v10\ns_mov_b32 {sr(sCNT)}, 8'); P.label(lp)
        for u in range(4):
            P(f'ds_read_b64_tr_b16 {vr(128+4*u,2)}, v11 offset:{u*1024}\nds_read_b64_tr_b16 {vr(130+4*u,2)}, v11 offset:{u*1024+512}')
        P('v_add_u32 v11, 4096, v11')
        for u in range(4):
            P(f's_waitcnt lgkmcnt({6-2*u})'); self.mfma(ACC0, 12, 128 + 4*u, ACC0)
        P(f's_sub_u32 {sr(sCNT)}, {sr(sCNT)}, 1\ns_cmp_lg_u32 {sr(sCNT)}, 0\ns_cbranch_scc1 {lp}')
        P(f'''v_and_b32 v128, 0xffff0000, {vr(ACC0)}
v_sub_f32 v129, {vr(ACC0)}, v128
v_cvt_pk_bf16_f32 v130, v128, v129
v_cvt_pk_bf16_f32 v131, v128, 0
v_cmp_gt_u32 vcc, 32, {vr(vLANE)}
v_mov_b32 v132, 0
v_cndmask_b32 v130, v132, v130, vcc
v_cndmask_b32 v131, v132, v131, vcc
s_lshl_b32 {sr(sT0)}, {sr(sMT)}, 9
s_add_u32 {sr(sT0)}, {sr(sT0)}, {LDS_WEXT + typ*1536}
v_lshl_add_u32 v132, {vr(vLANE)}, 3, {sr(sT0)}
ds_write_b64 v132, v[130:131]
s_waitcnt lgkmcnt(0)''')

    def unpack_res(self):
        P = self.P
        for p in range(8):
            P(f'v_lshlrev_b32 {vr(ACC0+2*p)}, 16, {vr(XRES+p)}\nv_and_b32 {vr(ACC0+2*p+1)}, 0xffff0000, {vr(XRES+p)}')

    def publish_x(self, L):
        P = self.P
        for p in range(8): P(f'v_cvt_pk_bf16_f32 {vr(XRES+p)}, {vr(ACC0+2*p)}, {vr(ACC0+2*p+1)}')
        if L == self.nl:
            P(f'''v_and_b32 v64, 31, {vr(vLANE)}
v_lshlrev_b32 v64, 10, v64
v_lshrrev_b32 v65, 5, {vr(vLANE)}
v_lshl_add_u32 v64, v65, 4, v64
s_lshl_b32 {sr(sT0)}, {sr(sRT)}, 15
s_lshl_b32 {sr(sT1)}, {sr(sC)}, 6
s_add_u32 {sr(sT0)}, {sr(sT0)}, {sr(sT1)}''')
            for a, b in ((0, 2), (1, 3), (4, 6), (5, 7)): P(f'v_permlane32_swap_b32 {vr(XRES+a)}, {vr(XRES+b)}')
            P(f'buffer_store_dwordx4 {vr(XRES,4)}, v64, {sr(sOut,4)}, {sr(sT0)} offen\nbuffer_store_dwordx4 {vr(XRES+4,4)}, v64, {sr(sOut,4)}, {sr(sT0)} offen offset:32')
            return
        P(f'''s_lshl_b32 {sr(sT0)}, {sr(sRT)}, 15
s_lshl_b32 {sr(sT1)}, {sr(sC)}, 11
s_add_u32 {sr(sT0)}, {sr(sT0)}, {sr(sT1)}
s_add_u32 {sr(sT0)}, {sr(sT0)}, {OFF_X + L*0x200000}
s_lshl_b32 {sr(sT1)}, {sr(sRT)}, 12
s_lshl_b32 {sr(sT2)}, {sr(sC)}, 8
s_add_u32 {sr(sT1)}, {sr(sT1)}, {sr(sT2)}
s_add_u32 {sr(sT1)}, {sr(sT1)}, {OFF_ST + L*0x40000}
s_lshl_b32 {sr(sT2)}, {sr(sRT)}, 7
s_lshl_b32 {sr(sT3)}, {sr(sC)}, 2
s_add_u32 {sr(sT2)}, {sr(sT2)}, {sr(sT3)}
s_add_u32 {sr(sT2)}, {sr(sT2)}, {OFF_XFLAG + L*0x2000}''')
        def emit(sc1):
            m = ' sc1' if sc1 else ''
            P(f'buffer_store_dwordx4 {vr(XRES,4)}, {vr(vL16)}, {sr(sWS,4)}, {sr(sT0)} offen{m}')
            P(f'buffer_store_dwordx4 {vr(XRES+4,4)}, {vr(vL16)}, {sr(sWS,4)}, {sr(sT0)} offen offset:1024{m}')
            P(f'v_add_f32 v64, {vr(ACC0)}, {vr(ACC0+1)}\nv_add_f32 v65, {vr(ACC0+2)}, {vr(ACC0+3)}\nv_mul_f32 v66, {vr(ACC0)}, {vr(ACC0)}\nv_mul_f32 v67, {vr(ACC0+1)}, {vr(ACC0+1)}')
            for i in range(2, 16):
                if i >= 4: P(f'v_add_f32 {vr(64+(i&1))}, {vr(64+(i&1))}, {vr(ACC0+i)}')
                P(f'v_fmac_f32 {vr(66+(i&1))}, {vr(ACC0+i)}, {vr(ACC0+i)}')
            P('v_add_f32 v64, v64, v65\nv_add_f32 v66, v66, v67\nv_permlane32_swap_b32 v64, v66\nv_add_f32 v64, v64, v66')
            P(f'buffer_store_dword v64, {vr(vL4)}, {sr(sWS,4)}, {sr(sT1)} offen{m}\ns_waitcnt vmcnt(0)')
            self.flag(sT2, sOWNF if L == 0 else sTAG, sc1)
        self.two_way(emit, always_safe=(L == 0))

    def load_frags(self, base_off):
        P = self.P
        P(f's_lshl_b32 {sr(sT0)}, {sr(sRT)}, 15\ns_add_u32 {sr(sT0)}, {sr(sT0)}, {base_off}')
        for ks in range(32):
            P(f'buffer_load_dwordx4 {vr(XF+4*ks,4)}, {vr(vL16)}, {sr(sWS,4)}, {sr(sT0)} offen offset:{(ks&3)*1024} sc1')
            if ks & 3 == 3 and ks < 31: P(f's_add_u32 {sr(sT0)}, {sr(sT0)}, 4096')

    def mask_ops(self):
        ops = []
        for i in range(16):
            ci = 8*(i//4) + i % 4
            ops.append(f'v_subrev_f32 {vr(CDIAG+i)}, {f2u(ci*2.0**100):#x}, {vr(vFD)}')
            ops.append(f'v_min_f32 {vr(CDIAG+i)}, 0, {vr(CDIAG+i)}')
            ops.append(f'v_sub_f32 {vr(CFIRST+i)}, {f2u((ci-1)*2.0**100):#x}, {vr(vFD)}')
            ops.append(f'v_min_f32 {vr(CFIRST+i)}, 0, {vr(CFIRST+i)}')
        for i in range(16): ops.append(f'v_mov_b32 {vr(ACC0+i)}, 0')
        for i in range(8): ops.append(f'v_mov_b32 {vr(VV+i)}, 0x3f803f80')
        return ops

    def main_qkv_kv(self, L):
        P = self.P; typ = L % 2
        P(f'''v_and_b32 {vr(vPA)}, 60, {vr(vL4)}
s_lshl_b32 {sr(sT2)}, {sr(sRT)}, 7
s_add_u32 {sr(sT2)}, {sr(sT2)}, {OFF_XFLAG + L*0x2000}
s_lshl_b32 {sr(sT1)}, {sr(sRT)}, 12
s_add_u32 {sr(sT1)}, {sr(sT1)}, {OFF_ST + L*0x40000}''')
        for i in (2, 3): P(f'v_mov_b32 {vr(XEXT+i)}, 0\nv_mov_b32 {vr(WEXTK+i)}, 0\nv_mov_b32 {vr(WEXTV+i)}, 0')
        self.poll(sT2, masked=(L == 0))
        self.stamp(2 + L*14, f'L{L} xflags')
        for i in range(16): P(f'buffer_load_dword {vr(STAT+i)}, {vr(vL4)}, {sr(sWS,4)}, {sr(sT1)} offen offset:{i*256} sc1')
        self.load_frags(OFF_X + L*0x200000)
        if L == 0 and not self.force_safe:
            P(f'''v_cmp_ne_u32 vcc, {sr(sOWNF)}, {vr(vPD)}
s_cmp_eq_u64 vcc, 0
s_cselect_b32 {sr(sFAST)}, 1, 0
v_mov_b32 {vr(vT0)}, {sr(sFAST)}
v_mov_b32 {vr(vPA)}, {LDS_FAST}
ds_write_b32 {vr(vPA)}, {vr(vT0)}
s_waitcnt lgkmcnt(0)''')
        P('s_barrier')
        def rd(ks):
            b = RING + 8*(ks % 3)
            P(f'ds_read_b64_tr_b16 {vr(b,2)}, {vr(vTR0)} offset:{LDS_WK+ks*1024}\nds_read_b64_tr_b16 {vr(b+2,2)}, {vr(vTR0)} offset:{LDS_WK+ks*1024+512}')
            P(f'ds_read_b64_tr_b16 {vr(b+4,2)}, {vr(vTR0)} offset:{LDS_WV+ks*1024}\nds_read_b64_tr_b16 {vr(b+6,2)}, {vr(vTR0)} offset:{LDS_WV+ks*1024+512}')
        P(f'v_lshlrev_b32 {vr(vT0)}, 3, {vr(vLANE)}\nv_add_u32 {vr(vT0)}, {LDS_WEXT + typ*1536}, {vr(vT0)}')
        P(f'ds_read_b64 {vr(WEXTK,2)}, {vr(vT0)} offset:512\nds_read_b64 {vr(WEXTV,2)}, {vr(vT0)} offset:1024')
        rd(0); rd(1)
        P('s_waitcnt vmcnt(32)')
        for step in (8, 4, 2, 1):
            for i in range(step): P(f'v_add_f32 {vr(STAT+i)}, {vr(STAT+i)}, {vr(STAT+i+step)}')
        a, b = STAT, STAT + 1
        P(f'''v_mov_b32 {vr(b)}, {vr(a)}
v_permlane32_swap_b32 {vr(a)}, {vr(b)}
v_mul_f32 {vr(a)}, {f2u(1/512):#x}, {vr(a)}
v_mul_f32 {vr(b)}, {f2u(1/512):#x}, {vr(b)}
v_fma_f32 {vr(b)}, -{vr(a)}, {vr(a)}, {vr(b)}
v_max_f32 {vr(b)}, 0, {vr(b)}
v_add_f32 {vr(b)}, {f2u(1e-5):#x}, {vr(b)}
v_rsq_f32 {vr(vRSTD)}, {vr(b)}
v_and_b32 {vr(a+2)}, 0xffff0000, {vr(a)}
v_sub_f32 {vr(a+3)}, {vr(a)}, {vr(a+2)}
v_cvt_pk_bf16_f32 {vr(XEXT)}, -{vr(a+2)}, -{vr(a+2)}
v_cvt_pk_bf16_f32 {vr(XEXT+1)}, -{vr(a+3)}, 0
ds_write_b32 {vr(vRA)}, {vr(vRSTD)}''')
        for q in range(4): P(f'ds_read_b128 {vr(STAT+4*q,4)}, {vr(vRB)} offset:{q*32}')
        for ks in range(32):
            if ks + 2 < 32: rd(ks + 2)
            lg = 8 if ks + 2 < 32 else (4 if ks + 1 < 32 else 0)
            if ks == 0: lg = min(15, 4 + 5 + 4)
            if ks == 1: lg = min(15, 5 + 4 + 4)
            P(f's_waitcnt vmcnt({31-ks}) lgkmcnt({lg})')
            b = RING + 8*(ks % 3)
            self.mfma(ACC0, b, XF + 4*ks, None if ks == 0 else ACC0)
            self.mfma(ACC1, XF + 4*ks, b + 4, None if ks == 0 else ACC1)
        self.mfma(ACC0, WEXTK, XEXT, ACC0)
        self.mfma(ACC1, XEXT, WEXTV, ACC1)
        self.stamp(3 + L*14, f'L{L} kvpass')
        for i in range(16): P(f'v_mul_f32 {vr(ACC0+i)}, {vr(vRSTD)}, {vr(ACC0+i)}')
        for p in range(8): P(f'v_cvt_pk_bf16_f32 {vr(PKV+p)}, {vr(ACC0+2*p)}, {vr(ACC0+2*p+1)}')
        if typ == 0:
            P(f'''s_lshl_b32 {sr(sT0)}, {sr(sRT)}, 16
s_lshl_b32 {sr(sT1)}, {sr(sC)}, 12
s_add_u32 {sr(sT0)}, {sr(sT0)}, {sr(sT1)}
s_add_u32 {sr(sT0)}, {sr(sT0)}, {OFF_KV + (L//2)*0x400000}''')
            for f in range(2): P(f'buffer_store_dwordx4 {vr(PKV+4*f,4)}, {vr(vL16)}, {sr(sWS,4)}, {sr(sT0)} offen offset:{f*1024} sc1')
        for i in range(16): P(f'v_mul_f32 {vr(ACC1+i)}, {vr(STAT+i)}, {vr(ACC1+i)}')
        for p in range(8): P(f'v_cvt_pk_bf16_f32 {vr(PKV+8+p)}, {vr(ACC1+2*p)}, {vr(ACC1+2*p+1)}')
        if typ == 0:
            for f in range(2, 4): P(f'buffer_store_dwordx4 {vr(PKV+4*f,4)}, {vr(vL16)}, {sr(sWS,4)}, {sr(sT0)} offen offset:{f*1024} sc1')
        P(f's_lshl_b32 {sr(sT1)}, {sr(sMT)}, 12\ns_add_u32 {sr(sT1)}, {sr(sT1)}, {LDS_OWN}\nv_add_u32 {vr(vT0)}, {sr(sT1)}, {vr(vL16)}')
        for f in range(4): P(f'ds_write_b128 {vr(vT0)}, {vr(PKV+4*f,4)} offset:{f*1024}')
        P('s_waitcnt lgkmcnt(0)\ns_barrier')

    def main_qpass(self, L, fill=(), mid=None, mid_at=31):
        P = self.P; typ = L % 2; fill = list(fill)
        NS = 5
        def rd(ks):
            b = RING + 4*(ks % NS)
            P(f'ds_read_b64_tr_b16 {vr(b,2)}, {vr(vTR1)} offset:{ks*1024}\nds_read_b64_tr_b16 {vr(b+2,2)}, {vr(vTR1)} offset:{ks*1024+512}')
        P(f'v_lshlrev_b32 {vr(vT0)}, 3, {vr(vLANE)}\nv_add_u32 {vr(vT0)}, {LDS_WEXT + typ*1536}, {vr(vT0)}')
        P(f'ds_read_b64 {vr(WEXTQ,2)}, {vr(vT0)}\nv_mov_b32 {vr(WEXTQ+2)}, 0\nv_mov_b32 {vr(WEXTQ+3)}, 0')
        for ks in range(NS - 1): rd(ks)
        per = (len(fill) + 31) // 32
        for ks in range(32):
            if ks + NS - 1 < 32: rd(ks + NS - 1)
            P(f's_waitcnt lgkmcnt({2*min(NS-1, 31-ks)})')
            self.mfma(ACC1, RING + 4*(ks % NS), XF + 4*ks, None if ks == 0 else ACC1)
            for _ in range(per):
                if fill: P(fill.pop(0))
            if mid and ks == mid_at: mid()
        self.mfma(ACC1, WEXTQ, XEXT, ACC1)
        if typ == 0: P(f'v_mul_f32 {vr(vRSTD)}, {f2u(0.25*LOG2E):#x}, {vr(vRSTD)}')
        P(f's_lshl_b32 {sr(sT1)}, {sr(sMT)}, 11\ns_add_u32 {sr(sT1)}, {sr(sT1)}, {LDS_Q}\nv_add_u32 {vr(vT0)}, {sr(sT1)}, {vr(vL16)}')
        for i in range(16): P(f'v_mul_f32 {vr(ACC1+i)}, {vr(vRSTD)}, {vr(ACC1+i)}')
        for p in range(8): P(f'v_cvt_pk_bf16_f32 {vr(RING+p)}, {vr(ACC1+2*p)}, {vr(ACC1+2*p+1)}')
        P(f'ds_write_b128 {vr(vT0)}, {vr(RING,4)}\nds_write_b128 {vr(vT0)}, {vr(RING+4,4)} offset:1024\ns_waitcnt lgkmcnt(0)')

    def read_q(self, dst):
        self.P(f'''s_lshl_b32 {sr(sT0)}, {sr(sQT)}, 1
s_add_u32 {sr(sT0)}, {sr(sT0)}, {sr(sHS)}
s_lshl_b32 {sr(sT0)}, {sr(sT0)}, 10
s_add_u32 {sr(sT0)}, {sr(sT0)}, {LDS_Q}
v_add_u32 {vr(vT0)}, {sr(sT0)}, {vr(vL16)}
ds_read_b128 {vr(dst,4)}, {vr(vT0)}''')

    def tile_addr(self, stile):
        self.P(f'''s_lshl_b32 {sr(sT0)}, {sr(stile)}, 12
s_add_u32 {sr(sT0)}, {sr(sT0)}, {LDS_T}
s_lshl_b32 {sr(sT1)}, {sr(sHS)}, 10
s_add_u32 {sr(sT1)}, {sr(sT1)}, {sr(sT0)}
v_add_u32 {vr(vKA)}, {sr(sT1)}, {vr(vL16)}
s_lshl_b32 {sr(sT1)}, {sr(sHS)}, 8
v_xor_b32 {vr(vVA)}, {sr(sT1)}, {vr(vL16)}
v_add_u32 {vr(vVA)}, {sr(sT0)}, {vr(vVA)}''')

    def attn_loop(self, cfirst):
        P = self.P; lp = P.newlabel('Latt')
        rdv = f's_mov_b64 exec, {sr(sLO,2)}\nds_read_b128 {vr(VV,4)}, {vr(vVA)} offset:2048\nds_read_b128 {vr(VV+4,4)}, {vr(vVA)} offset:3072\ns_mov_b64 exec, -1'
        P(f'ds_read_b128 {vr(aK,4)}, {vr(vKA)}'); P(rdv)
        P(f'v_add_u32 {vr(vKA)}, {sr(sSTEP)}, {vr(vKA)}\nv_add_u32 {vr(vVA)}, {sr(sSTEP)}, {vr(vVA)}\ns_waitcnt lgkmcnt(2)')
        cfirst()
        P(f'ds_read_b128 {vr(aK,4)}, {vr(vKA)}\nv_add_u32 {vr(vKA)}, {sr(sSTEP)}, {vr(vKA)}\ns_nop 9')
        P.label(lp)
        for i in range(8): P(f'v_exp_f32 {vr(aE+i)}, {vr(aS+i)}')
        for p in range(4): P(f'v_cvt_pk_bf16_f32 {vr(aP+p)}, {vr(aE+2*p)}, {vr(aE+2*p+1)}')
        for i in range(8, 10): P(f'v_exp_f32 {vr(aE+i)}, {vr(aS+i)}')
        P('s_waitcnt lgkmcnt(0)')
        self.mfma(ACC0, VV, aP, ACC0)
        for i in range(10, 16): P(f'v_exp_f32 {vr(aE+i)}, {vr(aS+i)}')
        self.mfma(aS, aK, aQ, None)
        P(f'ds_read_b128 {vr(aK,4)}, {vr(vKA)}')
        for p in range(4, 8): P(f'v_cvt_pk_bf16_f32 {vr(aP+p)}, {vr(aE+2*p)}, {vr(aE+2*p+1)}')
        P(f'v_add_u32 {vr(vKA)}, {sr(sSTEP)}, {vr(vKA)}\ns_sub_u32 {sr(sCNT)}, {sr(sCNT)}, 1')
        self.mfma(ACC0, VV + 4, aP + 4, ACC0)
        P(rdv)
        P(f'v_add_u32 {vr(vVA)}, {sr(sSTEP)}, {vr(vVA)}\ns_cmp_lg_u32 {sr(sCNT)}, 0\ns_cbranch_scc1 {lp}')
        P('s_waitcnt lgkmcnt(0)')

    def publish_o(self, L, eps):
        P = self.P
        P(f'''s_lshl_b32 {sr(sT0)}, {sr(sR)}, 2
s_add_u32 {sr(sT0)}, {sr(sT0)}, {sr(sQT)}
s_lshl_b32 {sr(sT1)}, {sr(sC)}, 1
s_add_u32 {sr(sT1)}, {sr(sT1)}, {sr(sHS)}
s_lshl_b32 {sr(sT2)}, {sr(sT0)}, 5
s_add_u32 {sr(sT2)}, {sr(sT2)}, {sr(sT1)}
s_lshl_b32 {sr(sT0)}, {sr(sT2)}, 10
s_add_u32 {sr(sT0)}, {sr(sT0)}, {OFF_O + L*0x200000}
s_lshl_b32 {sr(sT2)}, {sr(sT2)}, 2
s_add_u32 {sr(sT2)}, {sr(sT2)}, {OFF_OFLAG + L*0x2000}''')
        if eps: P(f'v_add_f32 {vr(ACC0+8)}, {f2u(eps):#x}, {vr(ACC0+8)}')
        P(f'v_rcp_f32 {vr(ACC0+8)}, {vr(ACC0+8)}')
        for i in range(8): P(f'v_mul_f32 {vr(ACC0+i)}, {vr(ACC0+8)}, {vr(ACC0+i)}')
        for p in range(4): P(f'v_cvt_pk_bf16_f32 {vr(aP+p)}, {vr(ACC0+2*p)}, {vr(ACC0+2*p+1)}')
        def emit(sc1):
            P(f'buffer_store_dwordx4 {vr(aP,4)}, {vr(vL16)}, {sr(sWS,4)}, {sr(sT0)} offen' + (' sc1' if sc1 else '') + '\ns_waitcnt vmcnt(0)')
            self.flag(sT2, sTAG, sc1)
        self.two_way(emit)

    def main_outproj(self, L):
        P = self.P
        self.unpack_res()
        P(f'''v_and_b32 {vr(vPA)}, 124, {vr(vL4)}
s_lshl_b32 {sr(sT2)}, {sr(sRT)}, 7
s_add_u32 {sr(sT2)}, {sr(sT2)}, {OFF_OFLAG + L*0x2000}''')
        NS = 6
        def rd(ks):
            b = RING + 4*(ks % NS)
            P(f'ds_read_b64_tr_b16 {vr(b,2)}, {vr(vTR2)} offset:{ks*1024}\nds_read_b64_tr_b16 {vr(b+2,2)}, {vr(vTR2)} offset:{ks*1024+512}')
        for ks in range(NS - 1): rd(ks)
        self.poll(sT2)
        self.stamp(11 + L*14, f'L{L} oflags')
        self.load_frags(OFF_O + L*0x200000)
        for ks in range(32):
            if ks + NS - 1 < 32: rd(ks + NS - 1)
            P(f's_waitcnt vmcnt({31-ks}) lgkmcnt({2*min(NS-1, 31-ks)})')
            self.mfma(ACC0, RING + 4*(ks % NS), XF + 4*ks, ACC0)
        self.stamp(12 + L*14, f'L{L} outproj')
        self.publish_x(L + 1)
        self.stamp(13 + L*14, f'L{L} xpub')

    def aux_read_fast(self):
        if self.force_safe: return
        self.P(f'v_mov_b32 {vr(vPA)}, {LDS_FAST}\nds_read_b32 {vr(vPD)}, {vr(vPA)}\ns_waitcnt lgkmcnt(0)\nv_readfirstlane_b32 {sr(sFAST)}, {vr(vPD)}')

    def aux_dma_kv_wo(self, L):
        P = self.P; l3 = P.newlabel('Lx'); le = P.newlabel('Lx')
        P(f's_cmp_eq_u32 {sr(sMT)}, 3\ns_cbranch_scc1 {l3}')
        if L + 1 < self.nl:
            P(f's_cmp_eq_u32 {sr(sMT)}, 0\ns_cbranch_scc1 {le}')
            self.dma_w(L + 1)
        P(f's_branch {le}'); P.label(l3)
        if L > 0: self.dma_wo(L)
        P.label(le)

    def aux_tail(self, L):
        P = self.P
        if L + 1 >= self.nl: return
        le = P.newlabel('Lx'); l2 = P.newlabel('Lx')
        P(f's_cmp_lg_u32 {sr(sMT)}, 0\ns_cbranch_scc1 {l2}')
        self.dma_w(L + 1)
        P.label(l2)
        P('s_waitcnt vmcnt(0)')
        if L == 0:
            P(f's_cmp_eq_u32 {sr(sMT)}, 3\ns_cbranch_scc1 {le}')
            self.colsum(1)
            P.label(le)

    def layerA(self, L):
        P = self.P; La = L // 2; sb = L * 14
        j1 = f'L_j1_{L}'; j2 = f'L_j2_{L}'; ax3 = f'L_ax3_{L}'
        P.label(f'L_main_{L}')
        self.main_qkv_kv(L)
        def kvflag():
            P(f'''s_lshl_b32 {sr(sT2)}, {sr(sC)}, 4
s_add_u32 {sr(sT2)}, {sr(sT2)}, {sr(sR)}
s_lshl_b32 {sr(sT2)}, {sr(sT2)}, 5
s_add_u32 {sr(sT2)}, {sr(sT2)}, {sr(sMT)}
s_lshl_b32 {sr(sT2)}, {sr(sT2)}, 2
s_add_u32 {sr(sT2)}, {sr(sT2)}, {OFF_KVFLAG + La*0x8000}
s_waitcnt vmcnt(0)''')
            self.flag(sT2, sTAG, True)
        self.stamp(4 + sb, f'L{L} B1a')
        self.main_qpass(L, fill=self.mask_ops(), mid=kvflag, mid_at=31)
        P(f's_branch {j1}')
        P.label(f'L_aux_{L}')
        P('s_barrier')
        if L == 0: self.aux_read_fast()
        for o in self.mask_ops(): P(o)
        P('s_barrier')
        self.aux_dma_kv_wo(L)
        P.label(j1)
        self.stamp(5 + sb, f'L{L} preB1')
        P('s_barrier')
        self.read_q(aQ)
        P(f's_add_u32 {sr(sT2)}, {sr(sQT)}, 8')
        self.tile_addr(sT2)
        P(f's_add_u32 {sr(sCNT)}, {sr(sQT)}, 1\ns_mov_b32 {sr(sSTEP)}, -4096')
        self.attn_loop(lambda: self.mfma(aS, aK, aQ, CDIAG))
        self.stamp(6 + sb, f'L{L} own attn')
        P(f'''s_cmp_lg_u32 {sr(sHS)}, 0
s_cbranch_scc1 {j2}
s_lshr_b32 {sr(sT0)}, {sr(sMT)}, 1
s_add_u32 {sr(sT0)}, {sr(sT0)}, {sr(sR)}
s_cmp_lt_u32 {sr(sT0)}, 2
s_cbranch_scc1 {j2}
s_sub_u32 {sr(sT0)}, {sr(sT0)}, 2
s_lshl_b32 {sr(sT2)}, {sr(sC)}, 4
s_add_u32 {sr(sT2)}, {sr(sT2)}, {sr(sT0)}
s_lshl_b32 {sr(sT2)}, {sr(sT2)}, 7
s_and_b32 {sr(sT1)}, {sr(sMT)}, 1
s_lshl_b32 {sr(sT3)}, {sr(sT1)}, 3
s_add_u32 {sr(sT2)}, {sr(sT2)}, {sr(sT3)}
s_add_u32 {sr(sT2)}, {sr(sT2)}, {OFF_KVFLAG + La*0x8000}
v_and_b32 {vr(vPA)}, 4, {vr(vL4)}
s_lshl_b32 {sr(sT0)}, {sr(sT0)}, 1
s_add_u32 {sr(sT0)}, {sr(sT0)}, {sr(sT1)}
s_lshl_b32 {sr(sT0)}, {sr(sT0)}, 17
s_lshl_b32 {sr(sT1)}, {sr(sC)}, 12
s_add_u32 {sr(sT0)}, {sr(sT0)}, {sr(sT1)}
s_add_u32 {sr(sT0)}, {sr(sT0)}, {OFF_KV + La*0x400000}
s_add_u32 {sr(sT1)}, {sr(sT0)}, 0x10000
s_lshl_b32 {sr(sT3)}, {sr(sMT)}, 13
s_add_u32 {sr(sT3)}, {sr(sT3)}, {LDS_T}
v_add_u32 {vr(vT0)}, {sr(sT3)}, {vr(vL16)}''')
        self.poll(sT2)
        self.stamp(7 + sb, f'L{L} kvflags')
        for f in range(8):
            P(f'buffer_load_dwordx4 {vr(aH+4*f,4)}, {vr(vL16)}, {sr(sWS,4)}, {sr(sT0 if f < 4 else sT1)} offen offset:{(f&3)*1024} sc1')
        for f in range(8):
            P(f's_waitcnt vmcnt({7-f})\nds_write_b128 {vr(vT0)}, {vr(aH+4*f,4)} offset:{f*1024}')
        P('s_waitcnt lgkmcnt(0)')
        P.label(j2)
        P('s_barrier')
        self.stamp(8 + sb, f'L{L} B2')
        lskip = P.newlabel('Lnohalo'); l1 = P.newlabel('Lr1'); l2 = P.newlabel('Lr2')
        P(f'''s_cmp_eq_u32 {sr(sR)}, 0
s_cbranch_scc1 {lskip}
s_cmp_eq_u32 {sr(sR)}, 1
s_cselect_b32 {sr(sT2)}, 4, {sr(sQT)}
s_sub_u32 {sr(sCNT)}, 8, {sr(sT2)}
s_mov_b32 {sr(sSTEP)}, 4096''')
        self.tile_addr(sT2)
        def first():
            P(f's_cmp_eq_u32 {sr(sR)}, 1\ns_cbranch_scc1 {l1}')
            self.mfma(aS, aK, aQ, CFIRST)
            P(f's_branch {l2}'); P.label(l1)
            self.mfma(aS, aK, aQ, None)
            P.label(l2)
        self.attn_loop(first)
        P.label(lskip)
        self.stamp(9 + sb, f'L{L} attn')
        self.publish_o(L, 0)
        self.stamp(10 + sb, f'L{L} opub')
        P('s_barrier')
        P(f's_cmp_lg_u32 {sr(sHS)}, 0\ns_cbranch_scc1 {ax3}')
        self.main_outproj(L)
        P(f's_branch L_main_{L+1}')
        P.label(ax3)
        self.aux_tail(L)
        P(f's_branch L_aux_{L+1}')

    def feature_map(self, src, dst, t):
        P = self.P; A = ACC0
        self.mfma(A, WPHI, src, None)
        for k, o in ((0, 0), (1, 8)):
            P(f'v_max3_f32 {vr(t+k)}, {vr(A+o)}, {vr(A+o+1)}, {vr(A+o+2)}')
        for k, o in ((0, 0), (1, 8)):
            P(f'v_max3_f32 {vr(t+k)}, {vr(t+k)}, {vr(A+o+3)}, {vr(A+o+4)}')
        for k, o in ((0, 0), (1, 8)):
            P(f'v_max3_f32 {vr(t+k)}, {vr(t+k)}, {vr(A+o+5)}, {vr(A+o+6)}')
        for k, o in ((0, 0), (1, 8)):
            P(f'v_max_f32 {vr(t+k)}, {vr(t+k)}, {vr(A+o+7)}')
        P(f'''v_permlane32_swap_b32 {vr(t)}, {vr(t+1)}
v_max_f32 {vr(t)}, {vr(t)}, {vr(t+1)}
v_mul_f32 {vr(t)}, {f2u(-LOG2E):#x}, {vr(t)}
v_mov_b32 {vr(t+1)}, {vr(t)}
v_permlane32_swap_b32 {vr(t)}, {vr(t+1)}''')
        for i in range(16): P(f'v_fma_f32 {vr(A+i)}, {vr(A+i)}, {sr(sLOG2E)}, {vr(t + (i >> 3))}')
        for i in range(16): P(f'v_exp_f32 {vr(A+i)}, {vr(A+i)}')
        for k, o in ((0, 0), (1, 8)):
            P(f'v_add_f32 {vr(t+k)}, {vr(A+o)}, {vr(A+o+1)}\nv_add_f32 {vr(t+2+k)}, {vr(A+o+2)}, {vr(A+o+3)}')
        for j in (4, 6):
            for k, o in ((0, 0), (1, 8)):
                P(f'v_add_f32 {vr(t+k)}, {vr(t+k)}, {vr(A+o+j)}\nv_add_f32 {vr(t+2+k)}, {vr(t+2+k)}, {vr(A+o+j+1)}')
        P(f'''v_add_f32 {vr(t)}, {vr(t)}, {vr(t+2)}
v_add_f32 {vr(t+1)}, {vr(t+1)}, {vr(t+3)}
v_permlane32_swap_b32 {vr(t)}, {vr(t+1)}
v_add_f32 {vr(t)}, {vr(t)}, {vr(t+1)}
v_rcp_f32 {vr(t)}, {vr(t)}
v_mov_b32 {vr(t+1)}, {vr(t)}
v_permlane32_swap_b32 {vr(t)}, {vr(t+1)}''')
        for i in range(16): P(f'v_mul_f32 {vr(A+i)}, {vr(t + (i >> 3))}, {vr(A+i)}')
        for p in range(8): P(f'v_cvt_pk_bf16_f32 {vr(dst+p)}, {vr(A+2*p)}, {vr(A+2*p+1)}')

    def layerB(self, L):
        P = self.P; Lb = L // 2; sb = L * 14
        j0 = f'L_j0_{L}'; j1 = f'L_j1_{L}'; j2 = f'L_j2_{L}'; ax1 = f'L_ax1_{L}'; ax2 = f'L_ax2_{L}'; ax3 = f'L_ax3_{L}'
        P.label(f'L_main_{L}')
        self.main_qkv_kv(L)
        P(f's_branch {j0}')
        P.label(f'L_aux_{L}')
        P('s_barrier')
        for i in range(32): P(f'v_mov_b32 {vr(160+i)}, 0x3f803f80')
        P('s_barrier')
        P.label(j0)
        self.stamp(4 + sb, f'L{L} B1a')
        P(f's_add_u32 {sr(sT2)}, {sr(sQT)}, 8')
        self.tile_addr(sT2)
        P(f'''ds_read_b128 {vr(RING+8,4)}, {vr(vKA)}
v_and_b32 {vr(RING+16)}, 31, {vr(vLANE)}
v_mul_u32_u24 {vr(RING+16)}, {PHI_ROW}, {vr(RING+16)}
v_and_b32 {vr(RING+17)}, 32, {vr(vLANE)}
s_mul_i32 {sr(sT0)}, {sr(sHS)}, {PHI_HS}
s_mul_i32 {sr(sT1)}, {sr(sQT)}, {32*PHI_ROW}
s_add_u32 {sr(sT0)}, {sr(sT0)}, {sr(sT1)}
s_add_u32 {sr(sT0)}, {sr(sT0)}, {LDS_PHI}
v_add3_u32 {vr(RING+16)}, {vr(RING+16)}, {vr(RING+17)}, {sr(sT0)}
s_waitcnt lgkmcnt(0)''')
        self.feature_map(RING + 8, RING, RING + 12)
        P(f'ds_write_b128 {vr(RING+16)}, {vr(RING,4)}\nds_write_b128 {vr(RING+16)}, {vr(RING+4,4)} offset:16\ns_waitcnt lgkmcnt(0)\ns_barrier')
        self.stamp(5 + sb, f'L{L} B1b')
        P(f's_cmp_lg_u32 {sr(sHS)}, 0\ns_cbranch_scc1 {ax1}')
        self.main_qpass(L)
        P(f's_branch {j1}')
        P.label(ax1)
        P(f's_cmp_ge_u32 {sr(sMT)}, 2\ns_cbranch_scc1 {j1}')
        P(f'''v_lshrrev_b32 v64, 5, {vr(vLANE)}
v_bfe_u32 v65, {vr(vLANE)}, 2, 2
v_lshl_add_u32 v65, v64, 2, v65
v_mul_u32_u24 v65, {PHI_ROW}, v65
v_and_b32 v66, 1, {vr(vLANE)}
v_lshl_add_u32 v65, v66, 5, v65
v_and_b32 v66, 16, {vr(vLANE)}
v_add_u32 v65, v66, v65
v_bfe_u32 v66, {vr(vLANE)}, 1, 1
v_lshl_add_u32 v65, v66, 3, v65
s_mul_i32 {sr(sT0)}, {sr(sMT)}, {PHI_HS}
s_add_u32 {sr(sT0)}, {sr(sT0)}, {LDS_PHI}
v_add_u32 v65, {sr(sT0)}, v65
s_lshl_b32 {sr(sT1)}, {sr(sMT)}, 8
v_xor_b32 v66, {sr(sT1)}, {vr(vL16)}
v_add_u32 v66, {LDS_OWN}, v66''')
        for st in range(8):
            P(f'ds_read_b64_tr_b16 {vr(128+4*st,2)}, v65 offset:{16*st*PHI_ROW}\nds_read_b64_tr_b16 {vr(130+4*st,2)}, v65 offset:{(16*st+8)*PHI_ROW}')
            P(f's_mov_b64 exec, {sr(sLO,2)}\nds_read_b128 {vr(160+4*st,4)}, v66 offset:{(st>>1)*4096 + 2048 + (st&1)*1024}\ns_mov_b64 exec, -1')
            if st >= 3:
                P('s_waitcnt lgkmcnt(9)'); self.mfma(ACC0, 128 + 4*(st-3), 160 + 4*(st-3), None if st == 3 else ACC0)
        for st in range(5, 8):
            P(f's_waitcnt lgkmcnt({3*(7-st)})'); self.mfma(ACC0, 128 + 4*st, 160 + 4*st, ACC0)
        P(f'''v_xor_b32 v67, {sr(sT1)}, {vr(vL16)}
s_lshl_b32 {sr(sT0)}, {sr(sMT)}, 5
s_add_u32 {sr(sT0)}, {sr(sT0)}, 1024
v_lshl_add_u32 v68, v64, 4, {sr(sT0)}
v_and_b32 v69, 31, {vr(vLANE)}
v_mov_b32 v70, {OOB:#x}
v_cmp_eq_u32 vcc, 16, v69
v_cndmask_b32 v68, v70, v68, vcc
v_cmp_gt_u32 vcc, 16, v69
v_cndmask_b32 v67, v68, v67, vcc
s_lshl_b32 {sr(sT0)}, {sr(sC)}, 4
s_add_u32 {sr(sT0)}, {sr(sT0)}, {sr(sR)}
s_mul_i32 {sr(sT0)}, {sr(sT0)}, {KP_REC}
s_add_u32 {sr(sT0)}, {sr(sT0)}, {OFF_KP + Lb*256*KP_REC}
s_lshl_b32 {sr(sT2)}, {sr(sC)}, 7
s_lshl_b32 {sr(sT3)}, {sr(sR)}, 3
s_add_u32 {sr(sT2)}, {sr(sT2)}, {sr(sT3)}
s_lshl_b32 {sr(sT3)}, {sr(sMT)}, 2
s_add_u32 {sr(sT2)}, {sr(sT2)}, {sr(sT3)}
s_add_u32 {sr(sT2)}, {sr(sT2)}, {OFF_KPFLAG + Lb*0x800}''')
        for q in range(4): P(f'buffer_store_dwordx4 {vr(ACC0+4*q,4)}, v67, {sr(sWS,4)}, {sr(sT0)} offen offset:{q*KP_CH} sc1')
        self.stamp(6 + sb, f'L{L} kp stored')
        P('s_waitcnt vmcnt(0)')
        self.flag(sT2, sTAG, True)
        P.label(j1)
        P('s_barrier')
        self.read_q(aQ)
        P('s_waitcnt lgkmcnt(0)')
        PHQ = 176
        self.feature_map(aQ, PHQ, RING + 12)
        P(f's_cmp_lg_u32 {sr(sHS)}, 0\ns_cbranch_scc1 {ax2}')
        P(f'''v_and_b32 {vr(vPA)}, 124, {vr(vL4)}
s_lshl_b32 {sr(sT2)}, {sr(sC)}, 7
s_add_u32 {sr(sT2)}, {sr(sT2)}, {OFF_KPFLAG + Lb*0x800}
s_mul_i32 {sr(sT0)}, {sr(sC)}, {16*KP_REC}
s_mul_i32 {sr(sT1)}, {sr(sMT)}, {KP_CH}
s_add_u32 {sr(sT0)}, {sr(sT0)}, {sr(sT1)}
s_add_u32 {sr(sT0)}, {sr(sT0)}, {OFF_KP + Lb*256*KP_REC}
v_lshrrev_b32 v64, 2, {vr(vLANE)}
v_mul_u32_u24 v64, {KP_REC}, v64
v_and_b32 v65, 3, {vr(vLANE)}
v_lshl_add_u32 v64, v65, 4, v64
v_lshrrev_b32 v66, 4, {vr(vLANE)}
v_and_b32 v67, 1, v66
v_lshrrev_b32 v66, 1, v66
v_lshl_add_u32 v66, v67, 1, v66
v_lshlrev_b32 v66, 1, v66
v_lshl_add_u32 v66, v65, 5, v66
s_lshl_b32 {sr(sT1)}, {sr(sMT)}, 3
s_add_u32 {sr(sT3)}, {sr(sT1)}, {LDS_ZT}
v_add_u32 v66, {sr(sT3)}, v66
s_add_u32 {sr(sT3)}, {sr(sT1)}, {LDS_KVT}
v_lshl_add_u32 v67, {vr(vLANE)}, 5, {sr(sT3)}''')
        self.stamp(6 + sb, f'L{L} phiq')
        self.poll(sT2)
        self.stamp(7 + sb, f'L{L} kpflags')
        P(f'buffer_load_dwordx4 v[68:71], v64, {sr(sWS,4)}, {sr(sT0)} offen offset:1024 sc1')
        KPR = 192
        for p in range(16):
            P(f'buffer_load_dwordx4 {vr(KPR+4*p,4)}, {vr(vL16)}, {sr(sWS,4)}, {sr(sT0)} offen sc1')
            if p < 15: P(f's_add_u32 {sr(sT0)}, {sr(sT0)}, {KP_REC}')
        P(f'''s_waitcnt vmcnt(16)
v_permlane32_swap_b32 v68, v69
v_permlane32_swap_b32 v70, v71
v_add_f32 v68, v68, v69
v_add_f32 v70, v70, v71
v_permlane16_swap_b32 v68, v70
v_add_f32 v68, v68, v70
v_add_f32_dpp v68, v68, v68 row_ror:4 row_mask:0xf bank_mask:0xf
v_add_f32_dpp v68, v68, v68 row_ror:8 row_mask:0xf bank_mask:0xf
v_cvt_pk_bf16_f32 v68, v68, v68
ds_write_b16 v66, v68''')
        for p in range(1, 16):
            P(f's_waitcnt vmcnt({15-p})')
            for i in range(4): P(f'v_add_f32 {vr(KPR+i)}, {vr(KPR+i)}, {vr(KPR+4*p+i)}')
        P(f'v_cvt_pk_bf16_f32 v68, {vr(KPR)}, {vr(KPR+1)}\nv_cvt_pk_bf16_f32 v69, {vr(KPR+2)}, {vr(KPR+3)}\nds_write_b64 v67, v[68:69]\ns_waitcnt lgkmcnt(0)')
        P(f's_branch {j2}')
        P.label(ax2)
        self.aux_dma_kv_wo(L)
        P.label(j2)
        P(f'''s_lshl_b32 {sr(sT0)}, {sr(sHS)}, 4
v_xor_b32 v64, {sr(sT0)}, {vr(vLANE)}
v_lshlrev_b32 v64, 5, v64
v_add_u32 v64, {LDS_KVT}, v64
v_and_b32 v65, 32, {vr(vLANE)}
s_lshl_b32 {sr(sT0)}, {sr(sHS)}, 6
s_add_u32 {sr(sT0)}, {sr(sT0)}, {LDS_ZT}
v_add_u32 v65, {sr(sT0)}, v65
v_cndmask_b32 v64, v65, v64, {sr(sLO,2)}
s_barrier''')
        self.stamp(8 + sb, f'L{L} B2')
        P('ds_read_b128 v[68:71], v64\nds_read_b128 v[72:75], v64 offset:16\ns_waitcnt lgkmcnt(1)')
        self.mfma(ACC0, 68, PHQ, None)
        P('s_waitcnt lgkmcnt(0)')
        self.mfma(ACC0, 72, PHQ + 4, ACC0)
        self.publish_o(L, 1e-6)
        self.stamp(10 + sb, f'L{L} opub')
        P('s_barrier')
        P(f's_cmp_lg_u32 {sr(sHS)}, 0\ns_cbranch_scc1 {ax3}')
        self.main_outproj(L)
        P(f's_branch L_main_{L+1}')
        P.label(ax3)
        self.aux_tail(L)
        P(f's_branch L_aux_{L+1}')

    def epilogue(self):
        P = self.P; nl = self.nl
        P.label(f'L_main_{nl}')
        P(f's_or_b32 {sr(sT0)}, s2, {sr(sW)}\ns_cmp_lg_u32 {sr(sT0)}, 0\ns_cbranch_scc1 L_aux_{nl}\ns_mov_b32 {sr(sT2)}, 0')
        self.flag(sT2, sTAG, False)
        P.label(f'L_aux_{nl}')
        if self.stamps:
            P('s_waitcnt vmcnt(0)')
            self.stamp(62, 'end')
            P(f'''v_writelane_b32 {vr(vSTAMP)}, {sr(sBUD)}, 63
v_writelane_b32 {vr(vSTAMP)}, {sr(sFAST)}, 61
s_lshl_b32 {sr(sT0)}, s2, 3
s_add_u32 {sr(sT0)}, {sr(sT0)}, {sr(sW)}
s_lshl_b32 {sr(sT0)}, {sr(sT0)}, 8
s_add_u32 {sr(sT0)}, {sr(sT0)}, {OFF_STAMP}
buffer_store_dword {vr(vSTAMP)}, {vr(vL4)}, {sr(sWS,4)}, {sr(sT0)} offen''')
        P.label('L_end')
        P('s_endpgm')

    def build(self):
        self.prologue()
        for L in range(self.nl):
            (self.layerA if L % 2 == 0 else self.layerB)(L)
        self.epilogue()
        n = self.P.fix_hazards()
        errs = self.P.check_waits()
        head = open(f'cdna_kernels/{NAME}.s.ref').read().split('; @launch')[0]
        s = head + f'; @launch grid=(256,1,1) block=(512,1,1) lds={LDS_TOTAL}\n'
        s += f'.amdgcn_target "amdgcn-amd-amdhsa--gfx950"\n.text\n.globl {NAME}_kernel\n.p2align 8\n.type {NAME}_kernel,@function\n{NAME}_kernel:\n'
        s += self.P.text()
        s += f'''.section .rodata,"a"
.p2align 6
.amdhsa_kernel {NAME}_kernel
  .amdhsa_next_free_vgpr 256
  .amdhsa_next_free_sgpr 102
  .amdhsa_accum_offset 256
  .amdhsa_group_segment_fixed_size 0
  .amdhsa_kernarg_size 80
  .amdhsa_user_sgpr_count 2
  .amdhsa_user_sgpr_kernarg_segment_ptr 1
  .amdhsa_system_sgpr_workgroup_id_x 1
.end_amdhsa_kernel
'''
        return s, n, errs


if __name__ == '__main__':
    import argparse, json
    ap = argparse.ArgumentParser()
    ap.add_argument('-o', default=f'cdna_kernels/{NAME}.s')
    ap.add_argument('--stamps', action='store_true')
    ap.add_argument('--safe', action='store_true')
    ap.add_argument('--nl', type=int, default=4)
    a = ap.parse_args()
    g = Gen(stamps=a.stamps, nlayers=a.nl, force_safe=a.safe)
    s, n, errs = g.build()
    open(a.o, 'w').write(s)
    if a.stamps: json.dump(g.stamp_names, open(a.o + '.stamps.json', 'w'))
    print('instructions', sum(1 for x in g.P.L if x.op), 'nops inserted', n, 'lds', LDS_TOTAL)
    for e in errs: print('WAITCHECK', e)
```

```python
import re

def vr(a, n=1): return f'v{a}' if n == 1 else f'v[{a}:{a+n-1}]'
def sr(a, n=1): return f's{a}' if n == 1 else f's[{a}:{a+n-1}]'

_REG = re.compile(r'^(-|\|)?(abs\()?(v|s|a)(\d+|\[(\d+):(\d+)\])\)?\|?$')
def regs_of(tok):
    tok = tok.strip()
    if tok in ('vcc',): return {('s', 106), ('s', 107)}
    if tok == 'vcc_lo': return {('s', 106)}
    if tok == 'vcc_hi': return {('s', 107)}
    if tok == 'exec': return {('s', 126), ('s', 127)}
    if tok == 'm0': return {('s', 124)}
    m = _REG.match(tok)
    if not m: return set()
    f = m.group(3)
    if m.group(5) is not None: return {(f, i) for i in range(int(m.group(5)), int(m.group(6)) + 1)}
    return {(f, int(m.group(4)))}

TRANS = ('v_exp_f32', 'v_log_f32', 'v_rcp_f32', 'v_rsq_f32', 'v_sqrt_f32', 'v_sin_f32', 'v_cos_f32')

class Ins:
    def __init__(self, text):
        self.text = text
        t = text.split(';')[0].strip()
        self.label = None
        if t.endswith(':'):
            self.label = t[:-1]; self.op = None; self.kind = 'label'; self.d = set(); self.s = set(); return
        if t.startswith('.') or not t:
            self.op = None; self.kind = 'dir'; self.d = set(); self.s = set(); return
        p = t.split(None, 1); op = p[0]; rest = p[1] if len(p) > 1 else ''
        self.op = op
        ops = []; cur = ''; depth = 0
        for ch in rest:
            if ch in '[(': depth += 1
            if ch in '])': depth -= 1
            if ch == ',' and depth == 0: ops.append(cur.strip()); cur = ''
            else: cur += ch
        if cur.strip(): ops.append(cur.strip())
        mods = ''
        if ops:
            last = ops[-1].split(None, 1)
            ops[-1] = last[0]; mods = last[1] if len(last) > 1 else ''
        self.ops = ops; self.mods = mods
        R = [regs_of(o) for o in ops]
        allr = lambda lst: set().union(*lst) if lst else set()
        d = set(); s = set(); kind = 'other'
        self.states = 1
        if op.startswith('v_mfma'):
            kind = 'mfma'; d = R[0]; s = allr(R[1:]); self.A = R[1]; self.B = R[2]; self.C = R[3]
            self.passes = 8 if '32x32' in op else 4
        elif op.startswith('v_'):
            kind = 'valu'
            if op.startswith('v_permlane') and 'swap' in op: d = R[0] | R[1]; s = R[0] | R[1]
            elif op.startswith('v_cmpx'): raise Exception('no cmpx')
            elif op.startswith(('v_add_co', 'v_sub_co', 'v_addc_co', 'v_subb_co')): d = R[0] | R[1]; s = allr(R[2:])
            else:
                d = R[0]; s = allr(R[1:])
                if op.startswith(('v_fmac', 'v_dot2c', 'v_writelane', 'v_mac')) or '_dpp' in op: s = s | R[0]
        elif op.startswith(('buffer_', 'global_')):
            kind = 'vmem'
            if op in ('buffer_wbl2', 'buffer_inv'): pass
            elif 'load' in op and ' lds' in (' ' + mods): s = allr(R) | {('s', 124)}; self.ldsdma = True
            elif 'load' in op: d = R[0]; s = allr(R[1:])
            else:
                s = allr(R)
                self.data = R[0] if op.startswith('buffer_') else R[1]
                if 'atomic' in op and 'sc0' in mods: d = R[0]
        elif op.startswith('ds_'):
            kind = 'ds'
            if op.startswith(('ds_read', 'ds_bpermute', 'ds_permute', 'ds_swizzle')): d = R[0]; s = allr(R[1:])
            else: s = allr(R)
        elif op.startswith(('s_load', 's_memtime', 's_memrealtime', 's_buffer_load')):
            kind = 'smem'; d = R[0]; s = allr(R[1:])
        elif op.startswith('s_'):
            kind = 'salu'
            if op == 's_nop': self.states = int(ops[0], 0) + 1
            elif op.startswith(('s_cmp', 's_cbranch', 's_branch', 's_waitcnt', 's_barrier', 's_sleep', 's_setprio', 's_endpgm', 's_bitcmp')): s = allr(R)
            elif 'saveexec' in op: d = R[0] | {('s', 126), ('s', 127)}; s = allr(R[1:])
            else: d = R[0] if R else set(); s = allr(R[1:])
        self.kind = kind; self.d = d; self.s = s
    def is_branch(self): return self.op is not None and (self.op.startswith('s_cbranch') or self.op == 's_branch')
    def target(self): return self.ops[0]

def need(p, c):
    n = 0
    vd = {r for r in p.d if r[0] == 'v'}; sd = {r for r in p.d if r[0] == 's'}
    if p.kind == 'valu':
        if c.kind == 'mfma' and vd & c.s: n = max(n, 2)
        if c.kind == 'valu':
            if p.op.startswith(TRANS) and not c.op.startswith(TRANS) and vd & c.s: n = max(n, 1)
            if (c.op.startswith('v_permlane') or '_dpp' in c.op) and vd & c.s: n = max(n, 2)
            if c.op.startswith(('v_readlane', 'v_readfirstlane')) and vd & c.s: n = max(n, 1)
            if sd & c.s: n = max(n, 4 if c.op.startswith(('v_readlane', 'v_writelane')) else 2)
            if ('op_sel' in p.mods or 'sdwa' in p.op) and vd & (c.s | c.d): n = max(n, 1)
        if c.kind == 'vmem' and sd & c.s: n = max(n, 5)
        if c.kind == 'salu' and sd & c.s and not c.op.startswith('s_cbranch'): n = max(n, 1)
    if p.kind == 'valu' and p.op.startswith('v_dot'):
        if c.op == p.op:
            ab = regs_of(c.ops[1]) | regs_of(c.ops[2])
            if vd & ab: n = max(n, 3)
        elif vd & (c.s | c.d): n = max(n, 3)
    if p.kind == 'mfma':
        big = 12 if p.passes == 8 else 8
        if c.kind in ('valu', 'vmem', 'ds') and p.d & (c.s | c.d): n = max(n, big)
        if c.kind == 'mfma':
            if p.d & (c.A | c.B): n = max(n, big)
            if p.d & c.C and not (p.d == c.C and p.passes == c.passes): n = max(n, big - 2)
            if p.d & c.d and not (p.d == c.C) : n = max(n, big - 2) if p.passes != c.passes or p.d != c.d else n
        if c.kind == 'valu' and p.C & c.d: n = max(n, 7 if p.passes == 8 else 3)
    if p.kind == 'vmem' and hasattr(p, 'data') and ('x4' in p.op or 'x3' in p.op):
        if p.data & c.d: n = max(n, 2)
    if p.kind == 'salu' and ('s', 124) in p.d and getattr(c, 'ldsdma', False): n = max(n, 1)
    return n

class Prog:
    def __init__(self): self.L = []; self.uid = 0
    def __call__(self, text):
        for ln in text.split('\n'):
            if ln.strip(): self.L.append(Ins(ln.strip()))
    def label(self, name): self.L.append(Ins(name + ':'))
    def newlabel(self, base='L'): self.uid += 1; return f'{base}_{self.uid}'
    def comment(self, t): self.L.append(Ins('; ' + t)) if False else None

    def fix_hazards(self):
        total = 0
        L = self.L
        def maps():
            labels = {x.label: i for i, x in enumerate(L) if x.label}
            brs = {}
            for i, x in enumerate(L):
                if x.is_branch(): brs.setdefault(labels[x.target()], []).append(i)
            return brs
        brs = maps()
        def preds(i):
            r = []
            if i > 0 and not (L[i-1].op in ('s_branch', 's_endpgm')): r.append(i-1)
            if L[i].label: r += brs.get(i, [])
            return r
        i = 0
        while i < len(L):
            c = L[i]
            if c.op is None or c.kind in ('smem',):
                i += 1; continue
            worst = 0
            stack = [(j, 0) for j in preds(i)]; seen = {}
            while stack:
                j, dist = stack.pop()
                if dist > 12: continue
                if j in seen and seen[j] <= dist: continue
                seen[j] = dist
                p = L[j]
                if p.op is not None:
                    n = need(p, c)
                    if n > dist: worst = max(worst, n - dist)
                    nd = dist + p.states
                else: nd = dist
                for k in preds(j): stack.append((k, nd))
            if worst > 0:
                L.insert(i, Ins(f's_nop {worst-1}'))
                total += 1
                brs = maps()
                i += 1
            i += 1
        return total

    def check_waits(self):
        vm = []; lg = []; errs = []
        for i, x in enumerate(self.L):
            if x.op is None:
                continue
            if x.op in ('s_branch', 's_endpgm'): vm = []; lg = []; continue
            if x.op == 's_waitcnt':
                t = x.text
                m = re.search(r'vmcnt\((\d+)\)', t)
                if m:
                    n = int(m.group(1)); vm = vm[len(vm)-n:] if n < len(vm) and n > 0 else ([] if n == 0 else vm)
                m = re.search(r'lgkmcnt\((\d+)\)', t)
                if m:
                    n = int(m.group(1))
                    if n > 0 and any(k == 'smem' for k, _ in lg): errs.append((i, x.text, 'counted lgkmcnt with smem outstanding'))
                    lg = lg[len(lg)-n:] if n < len(lg) and n > 0 else ([] if n == 0 else lg)
                continue
            touched = x.s | x.d
            for k, d in vm + lg:
                if d & touched and not (x.kind == k and x.kind in ('vmem', 'ds') and not (d & x.s)):
                    errs.append((i, x.text, f'touches outstanding {k} dest {sorted(d & touched)[:3]}'))
            if x.kind == 'vmem': vm.append(('vmem', x.d))
            if x.kind in ('ds', 'smem'): lg.append((x.kind, x.d))
            if len(vm) > 63: errs.append((i, x.text, 'vmcnt overflow'))
        return errs

    def text(self):
        out = []
        for x in self.L:
            out.append(x.text if (x.label or x.kind == 'dir') else '    ' + x.text)
        return '\n'.join(out) + '\n'


class Tracker:
    def __init__(self, maxn): self.q = []; self.maxn = maxn
    def issue(self, tag, n=1): self.q += [tag] * n
    def need(self, tag):
        if tag not in self.q: return None
        last = len(self.q) - 1 - self.q[::-1].index(tag)
        n = min(len(self.q) - 1 - last, self.maxn)
        self.q = self.q[len(self.q) - n:] if n > 0 else []
        return n
    def reset(self): self.q = []

def waitstr(vm=None, lg=None):
    parts = []
    if vm is not None: parts.append(f'vmcnt({vm})')
    if lg is not None: parts.append(f'lgkmcnt({lg})')
    return ('s_waitcnt ' + ' '.join(parts)) if parts else ''
```

```python
import sys, struct
sys.path.insert(0, 'dev')
from asmlib import *

NAME = 'interleave_layers__sliding_block__linear_kernel_hedgehog__prompt'
def f2u(x): return struct.unpack('<I', struct.pack('<f', x))[0]
LOG2E = 1.4426950408889634

OFF_XFLAG = 0x1000
OFF_OFLAG = 0x9000
OFF_STAMP = 0x30000
OFF_ST = 0x100000
OFF_X = 0x200000
OFF_O = 0xA00000
OFF_KV = 0x1200000
KV_REC = 4352; KV_L = 1024*KV_REC
OFF_KP = 0x1B00000
KP_REC = 2560; KP_D1 = 1088; KP_CS = 2176; KP_L = 256*KP_REC
WS_USED = 0x2000000
OOB = 0x40000000
TAGC = 0x9E3779B0

LDS_WK = 0; LDS_WV = 32768; LDS_WQ = 65536; LDS_T = 65536; LDS_WO = 98304
LDS_OWN = 131072; OWN_ST = 6144
LDS_CSP = LDS_OWN + 4*OWN_ST
LDS_RSTD = LDS_CSP + 3072; LDS_KVT = LDS_RSTD + 512; LDS_ZT = LDS_KVT + 2048
LDS_FAST = LDS_ZT + 128; LDS_CNT = LDS_FAST + 16; LDS_TOTAL = LDS_FAST + 64
NT_LDS = {0: LDS_WQ, 1: LDS_WK, 2: LDS_WV, 'o': LDS_WO}
C_ST, C_XDONE, C_WGO, C_CS, C_Q, C_ATT, C_CSQ = 0, 4, 5, 6, 7, 8, 9

sWS, sX0, sWA, sWoA, sWB, sWoB, sPhi, sOut = 4, 8, 12, 16, 20, 24, 28, 32
sR, sC, sW, sMT, sHS, sRT, sQT, sTAG, sFAST, sBUD = 36, 37, 38, 39, 40, 41, 42, 43, 44, 45
sT0, sT1, sT2, sT3 = 46, 47, 48, 49
sLO = 50
sOWNF = 52; sCNT = 53; sSTEP = 54; sLOG2E = 55; sST = 56
sROT = 58; sDM = 59; sH0 = 60
sG0 = 62; sPERM = 63
sM = 64
sOW, sOF, sHB, sHAS, sP2, sC2, sOWN, sKVW, sXW, sSW, sXF, sRB = 72, 73, 74, 75, 76, 77, 78, 79, 80, 81, 82, 83
sLA = 86; sDG = 87; sDL = 88; sLB = 89; sLR = 90; sK0 = 91; sK1 = 92; sK2 = 93; sSEL0 = 94; sSEL1 = 95; sH1 = 96; sH2 = 97
vT0, vLANE, vL16, vL4, vCNT, vTR1, vTR2, vSTAMP = 0, 1, 2, 3, 4, 5, 6, 7
XRES, WPHI = 8, 16
vDW, vDO, vCH, vCS, ONES = 8, 9, 10, 11, 12
vRSTD, vKA, vVA, vPD, vPA, vRA, vRB, vFD = 20, 21, 22, 23, 24, 25, 26, 27
XEXT = 28; ACC0 = 32; ACC1 = 48; RING = 64; WEXTQ = 84; WEXTK = 88; WEXTV = 92; VV = 88
STAT = 96; CDIAG = 96; PKV = 112; CFIRST = 112; XF = 128
aS, aO, aE, aQ, aK, aP, aH = 32, 48, 64, 72, 76, 80, 128
PHQ = 112
PARK = {1: 128, 2: 160, 0: 192, 'o': 224}
MFMA = 'v_mfma_f32_32x32x16_bf16'
def cho(u): return (u >> 1)*8192 + (u & 1)*1024
SW4 = ((0, 2), (1, 3), (4, 6), (5, 7))


class Gen:
    def __init__(self, stamps=False, nlayers=4, force_safe=False, cyc=False, alias=True, opt=None):
        self.cyc = cyc; self.alias = alias
        self.o = dict(halo_at=31, prio=1, trunc=1, wgo=2, wgon=2, xd=8, od=10, x0d=3, psleep=1, kp_at=0)
        self.o.update(opt or {})
        self.P = Prog(); self.stamps = stamps; self.nl = nlayers; self.force_safe = force_safe
        self.stamp_names = {}
        self.vm = Tracker(63); self.lg = Tracker(15)

    def stamp(self, idx, name=''):
        if not self.stamps: return
        self.stamp_names[idx] = name
        self.P(f'{"s_memtime" if self.cyc else "s_memrealtime"} {sr(sST,2)}\ns_waitcnt lgkmcnt(0)\nv_writelane_b32 {vr(vSTAMP)}, {sr(sST)}, {idx}')

    def al(self, L): return 0 if self.alias else L

    def mfma(self, d, a, b, c):
        cs = '0' if c is None else vr(c, 16)
        self.P(f'{MFMA} {vr(d,16)}, {vr(a,4)}, {vr(b,4)}, {cs}')

    def srd(self, s, ptr, nbytes):
        self.P(f's_mov_b32 {sr(s)}, {sr(ptr)}\ns_and_b32 {sr(s+1)}, {sr(ptr+1)}, 0xffff\ns_mov_b32 {sr(s+2)}, {nbytes}\ns_mov_b32 {sr(s+3)}, 0x20000')

    def poll(self, soff, masked=False):
        P = self.P; lp = P.newlabel('Lpoll'); dn = P.newlabel('Lpolld')
        P.label(lp)
        P(f'buffer_load_dword {vr(vPD)}, {vr(vPA)}, {sr(sWS,4)}, {sr(soff)} offen sc1\ns_waitcnt vmcnt(0)')
        if masked:
            P(f'v_and_b32 {vr(vT0)}, -16, {vr(vPD)}\nv_cmp_ne_u32 vcc, {sr(sTAG)}, {vr(vT0)}')
        else:
            P(f'v_cmp_ne_u32 vcc, {sr(sTAG)}, {vr(vPD)}')
        P(f's_cbranch_vccz {dn}')
        if self.o['psleep']: P(f's_sleep {self.o["psleep"]}')
        P(f's_sub_u32 {sr(sBUD)}, {sr(sBUD)}, 1\ns_cbranch_scc0 {lp}\ns_mov_b32 {sr(sBUD)}, 0')
        P.label(dn)

    def flag(self, soff, sval, sc1, wait=None):
        P = self.P
        P(f'v_mov_b32 {vr(vPD)}, {sr(sval)}\ns_mov_b64 exec, 1')
        if wait: P(wait)
        P(f'buffer_store_dword {vr(vPD)}, off, {sr(sWS,4)}, {sr(soff)}' + (' sc1' if sc1 else ''))
        P('s_mov_b64 exec, -1')

    def prio_if(self, cmp):
        P = self.P; l = P.newlabel('Lpr')
        P(f's_setprio 0\n{cmp}\ns_cbranch_scc0 {l}\ns_setprio 1'); P.label(l)

    def lds_signal(self, idx):
        self.P(f'v_mov_b32 {vr(vPD)}, 1\ns_mov_b64 exec, 1\ns_waitcnt lgkmcnt(0)\nds_add_u32 {vr(vCNT)}, {vr(vPD)} offset:{4*idx}\ns_mov_b64 exec, -1')

    def lds_wait(self, idx, val):
        P = self.P; lp = P.newlabel('Llw')
        P.label(lp)
        P(f'ds_read_b32 {vr(vPD)}, {vr(vCNT)} offset:{4*idx}\ns_waitcnt lgkmcnt(0)\nv_cmp_gt_u32 vcc, {val}, {vr(vPD)}\ns_cbranch_vccnz {lp}')

    def lds_peek(self, idx):
        return [('ds', ('cnt', idx), f'ds_read_b32 {vr(vPD)}, {vr(vCNT)} offset:{4*idx}')]

    def lds_check(self, idx, val):
        P = self.P; ok = P.newlabel('Llc')
        P(waitstr(lg=self.lg.need(('cnt', idx))))
        P(f'v_cmp_gt_u32 vcc, {val}, {vr(vPD)}\ns_cbranch_vccz {ok}')
        self.lds_wait(idx, val)
        P.label(ok)

    def two_way(self, emit):
        P = self.P
        if self.force_safe:
            emit(True); return
        ls = P.newlabel('Lsafe'); le = P.newlabel('Lpub')
        P(f's_cmp_eq_u32 {sr(sFAST)}, 0\ns_cbranch_scc1 {ls}')
        emit(False)
        P(f's_branch {le}'); P.label(ls)
        emit(True)
        P.label(le)

    def item(self, it):
        P = self.P
        if isinstance(it, str): P(it)
        elif it[0] == 'wvm': P(waitstr(vm=self.vm.need(it[1])))
        elif it[0] == 'wlg': P(waitstr(lg=self.lg.need(it[1])))
        elif it[0] == 'ds': P(it[2]); self.lg.issue(it[1])
        elif it[0] == 'fn': it[1]()

    def checksum(self, dst, src, n):
        ops = [f'v_add3_u32 {vr(dst)}, {sr(sTAG)}, {vr(src)}, {vr(src+1)}']
        for i in range(2, n, 2): ops.append(f'v_add3_u32 {vr(dst)}, {vr(dst)}, {vr(src+i)}, {vr(src+i+1)}')
        return ops

    def retry_tail(self, lp, dn):
        if self.stamps: self.P('s_add_u32 s99, s99, 1')
        self.P(f's_sub_u32 {sr(sBUD)}, {sr(sBUD)}, 1\ns_cbranch_scc0 {lp}\ns_mov_b32 {sr(sBUD)}, 0')
        self.P.label(dn)
        if self.stamps: self.P('s_lshl_b32 s99, s99, 6')

    def prologue(self):
        P = self.P; o = self.o
        vH, vT = 64, 65
        if self.stamps: P('s_memrealtime s[98:99]\ns_memtime s[100:101]')
        P(f"""s_cmp_ge_u32 s2, 256
s_cbranch_scc1 L_end
s_load_dwordx16 s[64:79], s[0:1], 0
s_load_dwordx4 s[80:83], s[0:1], 64
s_getpc_b64 s[84:85]
v_lshrrev_b32 v1, 6, v0
s_lshr_b32 {sr(sT1)}, s2, 3
v_readfirstlane_b32 {sr(sW)}, v1
v_and_b32 {vr(vLANE)}, 63, v0
v_lshlrev_b32 {vr(vL16)}, 4, {vr(vLANE)}""")
        lc = P.newlabel('Lx')
        P(f"""s_cmp_lt_u32 {sr(sW)}, 6
s_cbranch_scc1 {lc}
s_and_b32 {sr(sT0)}, {sr(sW)}, 1
s_lshl_b32 {sr(sT0)}, {sr(sT0)}, 5
s_add_u32 {sr(sT0)}, {sr(sT0)}, {sr(sT1)}
s_lshl_b32 {sr(sT0)}, {sr(sT0)}, 10
s_cmp_ge_u32 {sr(sT0)}, CODE_BYTES
s_cbranch_scc1 {lc}
v_add_u32 v255, {sr(sT0)}, {vr(vL16)}
global_load_dword v255, v255, s[84:85]""")
        P.label(lc)
        P(f"""s_and_b32 {sr(sT0)}, s2, 7
s_and_b32 {sr(sC)}, {sr(sT1)}, 15
s_lshr_b32 {sr(sT1)}, {sr(sT1)}, 4
s_lshl_b32 {sr(sR)}, {sr(sT0)}, 1
s_add_u32 {sr(sR)}, {sr(sR)}, {sr(sT1)}
s_and_b32 {sr(sMT)}, {sr(sW)}, 3
s_lshr_b32 {sr(sHS)}, {sr(sW)}, 2
s_lshl_b32 {sr(sRT)}, {sr(sR)}, 2
s_add_u32 {sr(sRT)}, {sr(sRT)}, {sr(sMT)}
s_lshr_b32 {sr(sROT)}, {sr(sC)}, 1
s_add_u32 {sr(sROT)}, {sr(sROT)}, {sr(sT0)}
s_lshl_b32 {sr(sT1)}, {sr(sT1)}, 1
s_add_u32 {sr(sROT)}, {sr(sROT)}, {sr(sT1)}
s_lshl_b32 {sr(sT1)}, {sr(sC)}, 2
s_add_u32 {sr(sROT)}, {sr(sROT)}, {sr(sT1)}
s_and_b32 {sr(sROT)}, {sr(sROT)}, 7
v_mov_b32 v8, 0
v_mov_b32 v9, 0
v_mov_b32 v10, 0
v_mov_b32 v11, 0
v_mov_b32 v90, 0
v_mov_b32 v91, 0
v_mov_b32 {vr(vCNT)}, {LDS_CNT}
ds_write_b128 {vr(vCNT)}, v[8:11]
ds_write_b128 {vr(vCNT)}, v[8:11] offset:16
ds_write_b128 {vr(vCNT)}, v[8:11] offset:32
v_lshrrev_b32 v28, 3, {vr(vLANE)}
v_lshlrev_b32 v28, 10, v28
v_lshrrev_b32 v29, 4, {vr(vLANE)}
v_xor_b32 v29, v29, {vr(vLANE)}
v_and_b32 v29, 7, v29
v_lshl_add_u32 v28, v29, 4, v28
v_xor_b32 v29, 64, v28
v_add_u32 v30, {2*7168}, v28
v_add_u32 v31, {3*7168}, v29
v_add_u32 v29, 7168, v29
s_lshl_b32 {sr(sLB)}, {sr(sRT)}, 15
s_lshl_b32 {sr(sLR)}, {sr(sROT)}, 7
s_lshl_b32 {sr(sLA)}, {sr(sMT)}, 14
s_add_u32 {sr(sLA)}, {sr(sLA)}, {LDS_WQ}
s_waitcnt lgkmcnt(0)
s_load_dword {sr(sTAG)}, s[82:83], 0""")
        self.srd(sX0, 64, 2097152)
        P(f's_cmp_lg_u32 {sr(sHS)}, 0\ns_cbranch_scc1 L_pro2')
        for g in range(2): self.x0_load(g)
        P.label('L_pro2')
        P('s_barrier')
        self.srd(sWS, 82, WS_USED); self.srd(sWA, 66, 1572864); self.srd(sWoA, 68, 524288)
        self.srd(sWB, 72, 1572864); self.srd(sPhi, 74, 16384); self.srd(sWoB, 76, 524288); self.srd(sOut, 78, 2097152)
        P(f"""s_mul_i32 {sr(sT0)}, {sr(sHS)}, 3
s_xor_b32 {sr(sQT)}, {sr(sMT)}, {sr(sT0)}
s_mov_b32 {sr(sBUD)}, 0x100000
s_mov_b32 {sr(sLO)}, 0xffff
s_mov_b32 {sr(sLO+1)}, 0xffff
s_mov_b32 {sr(sH0)}, -1
s_mov_b32 {sr(sH0+1)}, 0
s_mov_b32 {sr(sFAST)}, 0
s_mov_b32 {sr(sDM)}, 0
s_mov_b32 {sr(sLOG2E)}, {f2u(LOG2E):#x}
s_mov_b32 {sr(sPERM)}, 0x07060302
s_getreg_b32 {sr(sOWNF)}, hwreg(HW_REG_XCC_ID, 0, 4)
v_lshrrev_b32 {vr(vH)}, 5, {vr(vLANE)}
v_and_b32 {vr(vT)}, 31, {vr(vLANE)}
v_lshlrev_b32 {vr(vL4)}, 2, {vr(vLANE)}
v_mov_b32 {vr(vSTAMP)}, 0
v_add_u32 {vr(vTR1)}, {LDS_WQ}, {vr(vL16)}
v_add_u32 {vr(vTR2)}, {LDS_WO}, {vr(vL16)}
s_lshl_b32 {sr(sT0)}, {sr(sMT)}, 7
s_add_u32 {sr(sT0)}, {sr(sT0)}, {LDS_RSTD}
v_lshl_add_u32 {vr(vRA)}, {vr(vT)}, 2, {sr(sT0)}
v_lshl_add_u32 {vr(vRB)}, {vr(vH)}, 4, {sr(sT0)}
v_lshlrev_b32 {vr(vFD)}, 2, {vr(vH)}
v_sub_u32 {vr(vFD)}, {vr(vT)}, {vr(vFD)}
v_cvt_f32_i32 {vr(vFD)}, {vr(vFD)}
v_mul_f32 {vr(vFD)}, {f2u(2.0**100):#x}, {vr(vFD)}
s_waitcnt lgkmcnt(0)
s_and_b32 {sr(sTAG)}, {sr(sTAG)}, -16
s_add_u32 {sr(sTAG)}, {sr(sTAG)}, {TAGC:#x}
s_or_b32 {sr(sOWNF)}, {sr(sOWNF)}, {sr(sTAG)}
s_lshl_b32 {sr(sT0)}, {sr(sR)}, 2
s_add_u32 {sr(sT0)}, {sr(sT0)}, {sr(sQT)}
s_lshl_b32 {sr(sT0)}, {sr(sT0)}, 5
s_lshl_b32 {sr(sT1)}, {sr(sC)}, 1
s_add_u32 {sr(sT0)}, {sr(sT0)}, {sr(sT1)}
s_add_u32 {sr(sT0)}, {sr(sT0)}, {sr(sHS)}
s_lshl_b32 {sr(sOW)}, {sr(sT0)}, 10
s_lshl_b32 {sr(sOF)}, {sr(sT0)}, 2
s_lshr_b32 {sr(sT0)}, {sr(sMT)}, 1
s_add_u32 {sr(sT0)}, {sr(sT0)}, {sr(sR)}
s_sub_u32 {sr(sT0)}, {sr(sT0)}, 2
s_cselect_b32 {sr(sHAS)}, 0, 1
s_lshl_b32 {sr(sT0)}, {sr(sT0)}, 1
s_and_b32 {sr(sT1)}, {sr(sMT)}, 1
s_add_u32 {sr(sT0)}, {sr(sT0)}, {sr(sT1)}
s_lshl_b32 {sr(sT0)}, {sr(sT0)}, 5
s_add_u32 {sr(sT0)}, {sr(sT0)}, {sr(sC)}
s_mul_i32 {sr(sHB)}, {sr(sT0)}, {KV_REC}
s_cmp_eq_u32 {sr(sR)}, 1
s_cselect_b32 {sr(sT0)}, 4, {sr(sQT)}
s_sub_u32 {sr(sC2)}, 8, {sr(sT0)}
s_lshl_b32 {sr(sP2)}, {sr(sT0)}, 12
s_add_u32 {sr(sP2)}, {sr(sP2)}, {LDS_T}
s_mul_i32 {sr(sOWN)}, {sr(sQT)}, {OWN_ST}
s_add_u32 {sr(sOWN)}, {sr(sOWN)}, {LDS_OWN}
s_lshl_b32 {sr(sT0)}, {sr(sRT)}, 4
s_add_u32 {sr(sT0)}, {sr(sT0)}, {sr(sC)}
s_mul_i32 {sr(sKVW)}, {sr(sT0)}, {KV_REC}
s_lshl_b32 {sr(sXW)}, {sr(sT0)}, 11
s_lshl_b32 {sr(sSW)}, {sr(sT0)}, 8
s_lshl_b32 {sr(sXF)}, {sr(sRT)}, 7
s_lshl_b32 {sr(sRB)}, {sr(sRT)}, 15""")
        self.stamp(0, 'start')
        if self.stamps:
            self.stamp_names[60] = 'entry'; P(f'v_writelane_b32 {vr(vSTAMP)}, s98, 60\ns_mov_b32 s99, 0')
        P(f's_cmp_eq_u32 {sr(sHS)}, 0\ns_cbranch_scc1 L_main_0')
        lh = P.newlabel('Lx'); lt = P.newlabel('Lx')
        P(f"""s_lshl_b32 {sr(sT2)}, {sr(sR)}, 7
s_lshl_b32 {sr(sT3)}, {sr(sC)}, 2
s_add_u32 {sr(sT2)}, {sr(sT2)}, {sr(sT3)}
s_add_u32 {sr(sT2)}, {sr(sT2)}, {OFF_XFLAG}
s_cmp_lg_u32 {sr(sMT)}, 0
s_cbranch_scc1 {lh}""")
        self.flag(sT2, sOWNF, True)
        P.label(lh)
        P(f"""v_lshrrev_b32 v28, 2, {vr(vLANE)}
v_and_b32 v29, 3, {vr(vLANE)}
v_lshlrev_b32 v29, 4, v29
s_lshl_b32 {sr(sT0)}, {sr(sC)}, 6
v_add_u32 v29, {sr(sT0)}, v29
v_mul_u32_u24 {vr(vDW)}, 3072, v28
v_add_u32 {vr(vDW)}, {vr(vDW)}, v29
v_lshl_add_u32 {vr(vDO)}, v28, 10, v29
s_lshl_b32 {sr(sLA)}, {sr(sMT)}, 11
s_lshr_b32 {sr(sT0)}, {sr(sMT)}, 1
s_add_u32 {sr(sT0)}, {sr(sT0)}, {sr(sROT)}
s_and_b32 {sr(sT0)}, {sr(sT0)}, 7
s_lshl_b32 {sr(sG0)}, {sr(sT0)}, 16
s_and_b32 {sr(sT0)}, {sr(sMT)}, 1
s_lshl_b32 {sr(sT0)}, {sr(sT0)}, 15
s_add_u32 {sr(sG0)}, {sr(sG0)}, {sr(sT0)}
v_add_u32 {vr(vCH)}, {sr(sLA)}, {vr(vL16)}
v_bfe_u32 v29, {vr(vLANE)}, 2, 2
v_lshl_add_u32 v29, {vr(vH)}, 2, v29
v_lshlrev_b32 {vr(vCS)}, 6, v29
v_bfe_u32 v29, {vr(vLANE)}, 4, 1
v_lshl_add_u32 {vr(vCS)}, v29, 5, {vr(vCS)}
v_and_b32 v29, 3, {vr(vLANE)}
v_lshl_add_u32 {vr(vCS)}, v29, 3, {vr(vCS)}
v_add_u32 {vr(vCS)}, {sr(sLA)}, {vr(vCS)}
v_lshl_add_u32 v31, {vr(vH)}, 8, {vr(vCS)}""")
        for i in range(4): P(f'v_mov_b32 {vr(ONES+i)}, 0x3f803f80')
        self.csp_waddr(0)
        P(f'v_lshl_add_u32 v30, {vr(vH)}, 9, v28')
        for op in self.mask_ops(0) + self.mask_ops(1): P(op)
        avm = Tracker(63)
        if o['wgo']: self.lds_wait(C_WGO, o['wgon'])
        self.stamp(2, 'x g0 / W go')
        for st in range(2): self.dma_w(0, (1, 2), (st,)); avm.issue(st, 4)
        for i in range(4): P(f'v_mov_b32 {vr(64+i)}, 0')
        for st in range(4):
            if st < 2: self.dma_w(0, (1, 2), (st + 2,)); avm.issue(st + 2, 4)
            else:
                if st == 2: self.lds_wait(C_XDONE, 4)
                self.dma_w(0, (0,), (2*st - 4, 2*st - 3)); avm.issue('q', 4)
            P(waitstr(vm=avm.need(st)))
            self.stamp((15, 23, 29, 1)[st], ('x g3 / W st0', 'x g5 / W st1', 'S0 / W st2', 'x0 / W st3')[st])
            ch = [(nt, 2*st + e) for nt in (1, 2) for e in range(2)]
            for nt, u in ch:
                r_ = PARK[nt] + 4*u; of = NT_LDS[nt] + cho(u)
                P(f'ds_read_b64_tr_b16 {vr(r_,2)}, v31 offset:{of}\nds_read_b64_tr_b16 {vr(r_+2,2)}, v31 offset:{of+256}')
            for k, (nt, u) in enumerate(ch):
                P(f's_waitcnt lgkmcnt({6-k})\nds_write_b128 {vr(vCH)}, {vr(PARK[nt]+4*u,4)} offset:{NT_LDS[nt] + cho(u)}')
            self.lds_signal(C_ST + st)
            for nt, u in ch: self.valu_sum(PARK[nt] + 4*u, 64 + 2*(nt - 1))
        P('v_add_f32 v64, v64, v65\nv_add_f32 v66, v66, v67\nv_permlane32_swap_b32 v64, v66\nv_add_f32 v64, v64, v66\nds_write_b32 v30, v64 offset:512')
        self.lds_signal(C_CS)
        self.stamp(14, 'S3 / W done')
        self.dma_w(0, ('o',))
        P(f'v_add_u32 v31, {LDS_WQ}, v31\nv_add_u32 v30, {LDS_WQ}, {vr(vCH)}\nv_mov_b32 v64, 0\nv_mov_b32 v65, 0\ns_waitcnt vmcnt(8)')
        for u0 in (0, 4):
            for u in range(u0, u0 + 4):
                r_ = PARK[0] + 4*u
                P(f'ds_read_b64_tr_b16 {vr(r_,2)}, v31 offset:{cho(u)}\nds_read_b64_tr_b16 {vr(r_+2,2)}, v31 offset:{cho(u)+256}')
            for k, u in enumerate(range(u0, u0 + 4)):
                P(f's_waitcnt lgkmcnt({6-k})\nds_write_b128 v30, {vr(PARK[0]+4*u,4)} offset:{cho(u)}')
        self.lds_signal(C_Q)
        for u in range(8): self.valu_sum(PARK[0] + 4*u, 64)
        P('v_add_f32 v64, v64, v65\nv_mov_b32 v66, v64\nv_permlane32_swap_b32 v64, v66\nv_add_f32 v64, v64, v66\nds_write_b32 v28, v64')
        self.lds_signal(C_CSQ)
        P(f"""s_cmp_lg_u32 {sr(sMT)}, 2
s_cbranch_scc1 {lt}
v_lshlrev_b32 v6, 7, {vr(vLANE)}
s_mul_i32 {sr(sT0)}, s2, {48*128}
buffer_load_dword v26, v6, {sr(sWB,4)}, {sr(sT0)} offen
v_and_b32 v6, 0x780, v6
s_lshl_b32 {sr(sT0)}, s2, 11
buffer_load_dword v26, v6, {sr(sWoB,4)}, {sr(sT0)} offen""")
        P.label(lt)
        P('s_branch L_aux_0')

    def valu_sum(self, frag, acc):
        for i in range(4):
            self.P(f'v_lshlrev_b32 v68, 16, {vr(frag+i)}\nv_and_b32 v69, 0xffff0000, {vr(frag+i)}\nv_add_f32 {vr(acc)}, {vr(acc)}, v68\nv_add_f32 {vr(acc+1)}, {vr(acc+1)}, v69')

    def x0_load(self, g):
        P = self.P
        P(f's_add_u32 m0, {sr(sLA)}, {(g%4)*4096}\ns_add_u32 {sr(sT3)}, {sr(sLB)}, {sr(sLR)}')
        for j in range(4): P(f'buffer_load_dwordx4 {vr(28+j)}, {sr(sX0,4)}, {sr(sT3)} offen offset:{j*1024} lds')
        P(f's_add_u32 {sr(sLR)}, {sr(sLR)}, 128\ns_and_b32 {sr(sLR)}, {sr(sLR)}, 0x3ff')
        self.vm.issue(('x', g), 4)

    def code_prefetch(self, label):
        P = self.P; lc = P.newlabel('Lx')
        P(f"""s_cmp_lg_u32 {sr(sMT)}, 3
s_cbranch_scc1 {lc}
s_lshl_b32 {sr(sT0)}, {sr(sC)}, 10
s_add_u32 {sr(sT0)}, {sr(sT0)}, ({label} - {NAME}_kernel)
s_cmp_ge_u32 {sr(sT0)}, CODE_BYTES
s_cbranch_scc1 {lc}
v_add_u32 v26, {sr(sT0)}, {vr(vL16)}
global_load_dword v26, v26, s[84:85]""")
        P.label(lc)

    def wphi_load(self):
        P = self.P
        P(f"""s_lshl_b32 {sr(sT0)}, {sr(sC)}, 1
s_add_u32 {sr(sT0)}, {sr(sT0)}, {sr(sHS)}
s_lshl_b32 {sr(sT0)}, {sr(sT0)}, 9
v_bfe_u32 v104, {vr(vLANE)}, 3, 2
v_and_b32 v105, 3, {vr(vLANE)}
v_lshl_add_u32 v104, v104, 2, v105
v_lshlrev_b32 v104, 1, v104
v_lshrrev_b32 v105, 5, {vr(vLANE)}
v_lshl_add_u32 v104, v105, 7, v104""")
        for j in range(8):
            d = (j if j < 4 else 8 + j - 4)
            P(f'buffer_load_ushort {vr(96+j)}, v104, {sr(sPhi,4)}, {sr(sT0)} offen offset:{d*32}')

    def wphi_pack(self):
        P = self.P
        for p in range(4): P(f'v_lshl_or_b32 {vr(WPHI+p)}, {vr(96+2*p+1)}, 16, {vr(96+2*p)}')
        P(f'v_bfe_i32 v96, {vr(vLANE)}, 2, 1\nv_and_b32 v96, 0x80008000, v96')
        for p in range(4): P(f'v_xor_b32 {vr(WPHI+p)}, v96, {vr(WPHI+p)}')

    def dma_w(self, typ, nts, stages=range(4)):
        P = self.P; wo = nts == ('o',)
        srd = (sWoA, sWoB)[typ] if wo else (sWA, sWB)[typ]
        for st in stages:
            P(f's_add_u32 {sr(sT0)}, {sr(sG0)}, {st*0x20000}\ns_and_b32 {sr(sT0)}, {sr(sT0)}, 0x7ffff')
            if not wo: P(f's_mul_i32 {sr(sT0)}, {sr(sT0)}, 3')
            for e in range(2):
                for nt in nts:
                    P(f's_add_u32 m0, {sr(sLA)}, {NT_LDS[nt] + cho(2*st + e)}')
                    P(f's_add_u32 {sr(sT1)}, {sr(sT0)}, {e*16384 if wo else e*49152 + nt*1024}')
                    P(f'buffer_load_dwordx4 {vr(vDO if wo else vDW)}, {sr(srd,4)}, {sr(sT1)} offen lds')

    def csp_waddr(self, typ):
        self.P(f"""s_lshl_b32 {sr(sT0)}, {sr(sMT)}, 2
s_add_u32 {sr(sT0)}, {sr(sT0)}, {LDS_CSP + typ*1536}
v_and_b32 v28, 31, {vr(vLANE)}
v_lshl_add_u32 v28, v28, 4, {sr(sT0)}""")

    def chunk_addr(self, region):
        if region < 65536: return vCH, region
        self.P(f'v_add_u32 {vr(vT0)}, {region}, {vr(vCH)}'); return vT0, 0

    def lds_to_regs(self, region, dst):
        a, o = self.chunk_addr(region)
        for u in range(8): self.P(f'ds_read_b128 {vr(dst+4*u,4)}, {vr(a)} offset:{o+cho(u)}')

    def regs_to_lds(self, region, src):
        a, o = self.chunk_addr(region)
        for u in range(8): self.P(f'ds_write_b128 {vr(a)}, {vr(src+4*u,4)} offset:{o+cho(u)}')

    def relayout(self, typ, nts, tmp=64, ntmp=8):
        P = self.P
        if nts != ('o',): self.csp_waddr(typ)
        for k, nt in enumerate(nts):
            region = NT_LDS[nt]
            P(f'v_add_u32 v29, {region}, {vr(vCS)}\nv_add_u32 v30, {region}, {vr(vCH)}')
            acc = ACC0 if k % 2 == 0 else ACC1
            lg = Tracker(15)
            reg = lambda u: tmp + 4*(u % ntmp)
            for u0 in range(0, 8, 4):
                for u in range(u0, u0 + 4):
                    P(f'ds_read_b64_tr_b16 {vr(reg(u),2)}, v29 offset:{cho(u)}\nds_read_b64_tr_b16 {vr(reg(u)+2,2)}, v29 offset:{cho(u)+512}'); lg.issue(u, 2)
                for u in range(u0, u0 + 4):
                    P(waitstr(lg=lg.need(u)))
                    if nt != 'o': self.mfma(acc, ONES, reg(u), None if u == 0 else acc)
                    P(f'ds_write_b128 v30, {vr(reg(u),4)} offset:{cho(u)}'); lg.issue('w')
        for k, nt in enumerate(nts):
            if nt != 'o': P(f'ds_write_b32 v28, {vr(ACC0 if k % 2 == 0 else ACC1)} offset:{nt*512}')
        P('s_waitcnt lgkmcnt(0)')

    def swap_region(self, nt, save):
        P = self.P
        if save:
            self.lds_to_regs(NT_LDS[nt], 32); P('s_waitcnt lgkmcnt(0)')
        self.regs_to_lds(NT_LDS[nt], PARK[nt]); P('s_waitcnt lgkmcnt(0)')
        if save:
            for i in range(32): P(f'v_mov_b32 {vr(PARK[nt]+i)}, {vr(32+i)}')

    def unpack_res(self):
        for p in range(8):
            self.P(f'v_lshlrev_b32 {vr(ACC0+2*p)}, 16, {vr(XRES+p)}\nv_and_b32 {vr(ACC0+2*p+1)}, 0xffff0000, {vr(XRES+p)}')

    def rowmajor_addr(self, dst, tmp, sdst):
        self.P(f"""v_and_b32 {vr(dst)}, 31, {vr(vLANE)}
v_lshlrev_b32 {vr(dst)}, 10, {vr(dst)}
v_lshrrev_b32 {vr(tmp)}, 5, {vr(vLANE)}
v_lshl_add_u32 {vr(dst)}, {vr(tmp)}, 4, {vr(dst)}
s_lshl_b32 {sr(sdst)}, {sr(sC)}, 6
s_add_u32 {sr(sdst)}, {sr(sdst)}, {sr(sRB)}""")

    def publish_x_addr(self, L):
        if L == self.nl: return self.rowmajor_addr(vKA, vVA, sK0)
        self.P(f"""s_add_u32 {sr(sK0)}, {sr(sXW)}, {OFF_X + self.al(L)*0x200000}
s_add_u32 {sr(sK1)}, {sr(sSW)}, {OFF_ST + self.al(L)*0x40000}
s_lshl_b32 {sr(sK2)}, {sr(sC)}, 2
s_add_u32 {sr(sK2)}, {sr(sK2)}, {sr(sXF)}
s_add_u32 {sr(sK2)}, {sr(sK2)}, {OFF_XFLAG + L*0x2000}""")

    def publish_x(self, L):
        P = self.P
        natural = (L % 2 == 0)
        for p in range(8): P(f'v_cvt_pk_bf16_f32 {vr(XRES+p)}, {vr(ACC0+2*p)}, {vr(ACC0+2*p+1)}')
        if natural:
            for a, b in SW4: P(f'v_permlane32_swap_b32 {vr(XRES+a)}, {vr(XRES+b)}')
        if L == self.nl:
            P(f'buffer_store_dwordx4 {vr(XRES,4)}, {vr(vKA)}, {sr(sOut,4)}, {sr(sK0)} offen\nbuffer_store_dwordx4 {vr(XRES+4,4)}, {vr(vKA)}, {sr(sOut,4)}, {sr(sK0)} offen offset:32')
            return
        def emit(sc1):
            m = ' sc1' if sc1 else ''
            P(f'buffer_store_dwordx4 {vr(XRES,4)}, {vr(vL16)}, {sr(sWS,4)}, {sr(sK0)} offen{m}')
            P(f'buffer_store_dwordx4 {vr(XRES+4,4)}, {vr(vL16)}, {sr(sWS,4)}, {sr(sK0)} offen offset:1024{m}')
            for k in range(4):
                P(f'v_pk_add_f32 {vr(64+2*k,2)}, {vr(ACC0+4*k,2)}, {vr(ACC0+4*k+2,2)}')
            P(f'v_pk_mul_f32 v[72:73], {vr(ACC0,2)}, {vr(ACC0,2)}\nv_pk_mul_f32 v[74:75], {vr(ACC0+2,2)}, {vr(ACC0+2,2)}')
            P('v_pk_add_f32 v[64:65], v[64:65], v[66:67]\nv_pk_add_f32 v[68:69], v[68:69], v[70:71]')
            for k in range(2, 8): P(f'v_pk_fma_f32 {vr(72+2*(k&1),2)}, {vr(ACC0+2*k,2)}, {vr(ACC0+2*k,2)}, {vr(72+2*(k&1),2)}')
            P('v_pk_add_f32 v[64:65], v[64:65], v[68:69]\nv_pk_add_f32 v[72:73], v[72:73], v[74:75]')
            P('v_add_f32 v64, v64, v65\nv_add_f32 v66, v72, v73\nv_permlane32_swap_b32 v64, v66\nv_add_f32 v64, v64, v66')
            P(f'buffer_store_dword v64, {vr(vL4)}, {sr(sWS,4)}, {sr(sK1)} offen{m}')
            self.flag(sK2, sTAG, sc1, wait='s_waitcnt vmcnt(0)')
        self.two_way(emit)
        if natural:
            for a, b in SW4: P(f'v_permlane32_swap_b32 {vr(XRES+a)}, {vr(XRES+b)}')

    def frag_setup(self, base_off):
        self.P(f's_add_u32 {sr(sLB)}, {sr(sRB)}, {base_off}\ns_lshl_b32 {sr(sLR)}, {sr(sROT)}, 12\ns_add_u32 {sr(sT3)}, {sr(sLB)}, {sr(sLR)}')

    def frag_load(self, ks):
        P = self.P
        P(f'buffer_load_dwordx4 {vr(XF+4*ks,4)}, {vr(vL16)}, {sr(sWS,4)}, {sr(sT3)} offen offset:{(ks&3)*1024} sc1')
        if ks < 28:
            if ks & 3 == 0: P(f's_add_u32 {sr(sLR)}, {sr(sLR)}, 4096')
            if ks & 3 == 1: P(f's_and_b32 {sr(sLR)}, {sr(sLR)}, 0x7fff')
            if ks & 3 == 3: P(f's_add_u32 {sr(sT3)}, {sr(sLB)}, {sr(sLR)}')
        self.vm.issue(('x', ks))

    def mask_ops(self, part):
        ops = []
        if part == 0:
            ops.append(f'v_mov_b32 {vr(VV)}, 0x3f803f80')
            for i in range(1, 8): ops.append(f'v_mov_b32 {vr(VV+i)}, {vr(VV)}')
        for i in range(16):
            ci = 8*(i//4) + i % 4
            if part == 0: ops.append(f'v_subrev_f32 {vr(CDIAG+i)}, {f2u(ci*2.0**100):#x}, {vr(vFD)}')
            else: ops.append(f'v_sub_f32 {vr(CFIRST+i)}, {f2u((ci-1)*2.0**100):#x}, {vr(vFD)}')
        for i in range(16):
            c_ = (CDIAG if part == 0 else CFIRST) + i
            ops.append(f'v_min_f32 {vr(c_)}, 0, {vr(c_)}')
        if part == 0:
            for i in range(16): ops.append(f'v_mov_b32 {vr(aO+i)}, 0')
        return ops

    def stats_final(self, typ):
        a, b = STAT, STAT + 1
        it = f"""v_mov_b32 {vr(b)}, {vr(a)}
v_mov_b32 {vr(XEXT+2)}, 0
v_mov_b32 {vr(XEXT+3)}, 0
v_permlane32_swap_b32 {vr(a)}, {vr(b)}
v_mul_f32 {vr(a)}, {f2u(1/512):#x}, {vr(a)}
v_mul_f32 {vr(b)}, {f2u(1/512):#x}, {vr(b)}
v_fma_f32 {vr(b)}, -{vr(a)}, {vr(a)}, {vr(b)}
v_max_f32 {vr(b)}, 0, {vr(b)}
v_add_f32 {vr(b)}, {f2u(1e-5):#x}, {vr(b)}
v_rsq_f32 {vr(vRSTD)}, {vr(b)}
v_cndmask_b32 {vr(a)}, 0, {vr(a)}, {sr(sH0,2)}
v_and_b32 {vr(a+2)}, 0xffff0000, {vr(a)}
v_sub_f32 {vr(a+3)}, {vr(a)}, {vr(a+2)}
v_cvt_pk_bf16_f32 {vr(XEXT)}, -{vr(a+2)}, -{vr(a+2)}
v_cvt_pk_bf16_f32 {vr(XEXT+1)}, -{vr(a+3)}, 0""".split('\n')
        it.append(('ds', 'rw', f'ds_write_b32 {vr(vRA)}, {vr(vRSTD)}'))
        for q in range(4): it.append(('ds', 'rt', f'ds_read_b128 {vr(STAT+4*q,4)}, {vr(vRB)} offset:{q*32}'))
        if typ == 1: it.append(f'v_mul_f32 {vr(vRSTD)}, {sr(sLOG2E)}, {vr(vRSTD)}')
        return it

    def wext_items(self, w, tag):
        return [('wlg', tag)] + f"""v_add_f32 {vr(w)}, {vr(w)}, {vr(w+1)}
v_add_f32 {vr(w+2)}, {vr(w+2)}, {vr(w+3)}
v_add_f32 {vr(w)}, {vr(w)}, {vr(w+2)}
v_and_b32 {vr(w+2)}, 0xffff0000, {vr(w)}
v_sub_f32 {vr(w+3)}, {vr(w)}, {vr(w+2)}
v_cvt_pk_bf16_f32 {vr(w)}, {vr(w+2)}, {vr(w+3)}
v_cvt_pk_bf16_f32 {vr(w+1)}, {vr(w+2)}, 0
v_mov_b32 {vr(w+2)}, 0
v_mov_b32 {vr(w+3)}, 0""".split('\n')

    def csp_addr(self, typ):
        self.P(f'v_and_b32 {vr(vT0)}, 0x1f0, {vr(vL16)}\nv_add_u32 {vr(vT0)}, {LDS_CSP + typ*1536}, {vr(vT0)}')

    def phi_addr(self):
        return f"""v_sub_u32 {vr(vVA)}, {vr(vKA)}, {vr(vL16)}
v_and_b32 {vr(vPD)}, 31, {vr(vLANE)}
v_lshl_add_u32 {vr(vVA)}, {vr(vPD)}, 5, {vr(vVA)}
v_lshrrev_b32 {vr(vPD)}, 5, {vr(vLANE)}
v_lshl_add_u32 {vr(vVA)}, {vr(vPD)}, 4, {vr(vVA)}""".split('\n')

    def main_kv(self, L):
        P = self.P; typ = L % 2; o = self.o; XD = o['xd']
        vm, lg = self.vm, self.lg
        NR = 3
        def rdk(ks):
            P(f'ds_read_b128 {vr(RING + 8*(ks % NR),4)}, {vr(vL16)} offset:{LDS_WK+ks*1024}'); lg.issue(('k', ks))
        def rdv(ks):
            P(f'ds_read_b128 {vr(RING + 8*(ks % NR) + 4,4)}, {vr(vL16)} offset:{LDS_WV+ks*1024}'); lg.issue(('v', ks))
        csrd = [('ds', 'cs', f'ds_read_b128 {vr(WEXTK,4)}, {vr(vT0)} offset:512'), ('ds', 'cs', f'ds_read_b128 {vr(WEXTV,4)}, {vr(vT0)} offset:1024')]
        wext = self.wext_items(WEXTK, 'cs') + self.wext_items(WEXTV, 'cs')
        addr = [f'v_add_u32 {vr(vKA)}, {sr(sOWN)}, {vr(vL16)}']
        if typ == 0:
            La = L // 2
            addr += [f's_add_u32 {sr(sK0)}, {sr(sKVW)}, {OFF_KV + La*KV_L}', f's_add_u32 {sr(sK2)}, {sr(sK0)}, 4096',
                     f's_add_u32 {sr(sH1)}, {sr(sHB)}, {OFF_KV + La*KV_L}', f's_add_u32 {sr(sH2)}, {sr(sH1)}, {16*KV_REC}']
        else: addr += self.phi_addr()
        extras = []
        def pop(n):
            for _ in range(n):
                if extras: self.item(extras.pop(0))
        def kstep(ks, pre=None):
            b = RING + 8*(ks % NR)
            P(waitstr(vm=vm.need(('x', ks)) if L > 0 else None, lg=lg.need(('k', ks))))
            self.mfma(ACC0, b, XF + 4*ks, None if ks == 0 else ACC0)
            if pre: pre()
            if ks + NR < 32: rdk(ks + NR)
            if L > 0 and ks + XD < 32: self.frag_load(ks + XD); pop(1)
            else: pop(3)
            P(waitstr(lg=lg.need(('v', ks))))
            self.mfma(ACC1, XF + 4*ks, b + 4, None if ks == 0 else ACC1)
            if ks + NR < 32: rdv(ks + NR)
            if L > 0 and 1 <= ks < 9:
                for i in range(2*(ks-1), 2*(ks-1) + 2):
                    P(f'buffer_load_dword {vr(STAT+i)}, {vr(vL4)}, {sr(sWS,4)}, {sr(sT1)} offen offset:{i*256} sc1'); vm.issue('st')
            pop(3)
        self.csp_addr(typ)
        if L == 0:
            AD = WEXTV; X0D = o['x0d']
            P(f"""v_bfe_u32 {vr(AD)}, {vr(vLANE)}, 1, 3
v_xor_b32 {vr(AD)}, {vr(AD)}, v64
v_lshlrev_b32 {vr(AD)}, 4, {vr(AD)}
v_lshl_add_u32 {vr(AD)}, v65, 7, {vr(AD)}
v_add_u32 {vr(AD)}, {sr(sLA)}, {vr(AD)}
v_xor_b32 {vr(AD+1)}, 32, {vr(AD)}
v_xor_b32 {vr(AD+2)}, 64, {vr(AD)}
v_xor_b32 {vr(AD+3)}, 96, {vr(AD)}
s_mov_b32 {sr(sSEL0)}, 0x3f803f80""")
            for i in range(4): P(f'v_mov_b32 {vr(STAT+i)}, 0')
            for it in addr: self.item(it)
            for g in range(2, X0D): self.x0_load(g)
            def dots(g):
                for i in range(16):
                    r_ = XF + 16*g + i
                    P(f'v_dot2_f32_bf16 {vr(STAT+(i&1))}, {vr(r_)}, {sr(sSEL0)}, {vr(STAT+(i&1))}\nv_dot2_f32_bf16 {vr(STAT+2+(i&1))}, {vr(r_)}, {vr(r_)}, {vr(STAT+2+(i&1))}')
            for g in range(8):
                P(waitstr(vm=vm.need(('x', g))))
                for s_ in range(4): P(f'ds_read_b128 {vr(XF+16*g+4*s_,4)}, {vr(AD+s_)} offset:{(g%4)*4096}')
                if g: P('s_waitcnt lgkmcnt(4)')
                if g + X0D < 8: self.x0_load(g + X0D)
                if g: dots(g - 1)
                if g == o['wgo'] - 1: self.lds_signal(C_WGO)
                if g in (0, 3, 5): self.stamp({0: 2, 3: 15, 5: 23}[g], {0: 'x g0 / W go', 3: 'x g3 / W st0', 5: 'x g5 / W st1'}[g])
            self.lds_signal(C_XDONE)
            lg.reset()
            for it in self.lds_peek(C_ST): self.item(it)
            dots(7)
            self.stamp(1, 'x0 / W st3')
            self.lds_check(C_ST, 4)
            self.stamp(29, 'S0 / W st2')
            for ks in range(NR): rdk(ks); rdv(ks)
            P(f'v_add_f32 {vr(STAT)}, {vr(STAT)}, {vr(STAT+1)}\nv_add_f32 {vr(STAT+2)}, {vr(STAT+2)}, {vr(STAT+3)}')
            P(f'v_permlane32_swap_b32 {vr(STAT)}, {vr(STAT+2)}\nv_add_f32 {vr(STAT)}, {vr(STAT)}, {vr(STAT+2)}')
            extras += self.stats_final(typ)
            pop(10)
            for ks in range(32):
                pre = None
                st = ks // 8 + 1
                if ks % 8 == 2: extras[0:0] = self.lds_peek(C_ST + st if st < 4 else C_CS)
                if ks % 8 == 5 and st < 4: pre = lambda: self.lds_check(C_ST + st, 4)
                if ks == 28:
                    pre = lambda: self.lds_check(C_CS, 4)
                    extras += csrd + self.lds_peek(C_Q) + ['s_nop 0']*3 + wext
                kstep(ks, pre)
            pop(100)
        else:
            vm.reset(); lg.reset()
            P(f"""v_and_b32 {vr(vPA)}, 60, {vr(vL4)}
s_add_u32 {sr(sT2)}, {sr(sXF)}, {OFF_XFLAG + L*0x2000}
s_lshr_b32 {sr(sT1)}, {sr(sRB)}, 3
s_add_u32 {sr(sT1)}, {sr(sT1)}, {OFF_ST + self.al(L)*0x40000}""")
            self.frag_setup(OFF_X + self.al(L)*0x200000)
            P('s_barrier')
            self.stamp(14 + L*14 if L < 3 else 57, f'L{L} B0')
            for it in csrd: self.item(it)
            for ks in range(NR): rdk(ks); rdv(ks)
            for it in addr + wext: self.item(it)
            self.poll(sT2)
            self.stamp(2 + L*14, f'L{L} xflags')
            for ks in range(XD): self.frag_load(ks)
            late = [('wvm', 'st')]
            for step in (8, 4, 2, 1):
                for i in range(step): late.append(f'v_add_f32 {vr(STAT+i)}, {vr(STAT+i)}, {vr(STAT+i+step)}')
            late += self.stats_final(typ)
            for ks in range(32):
                if ks == 9 + XD: extras += late
                kstep(ks)
            pop(100)
        self.mfma(ACC0, WEXTK, XEXT, ACC0)
        self.mfma(ACC1, XEXT, WEXTV, ACC1)

    def q_prefetch(self, NS=5):
        for ks in range(NS): self.q_rd(ks)

    def q_rd(self, ks, NS=5):
        self.P(f'ds_read_b128 {vr(RING + 4*(ks % NS),4)}, {vr(vTR1)} offset:{ks*1024}'); self.lg.issue(('w', ks))

    def main_qpass(self, L, acc, fill, at=None, pre_write=None, rate=4):
        P = self.P; typ = L % 2; lg = self.lg; NS = 5
        fill = list(fill)
        for ks in range(32):
            P(waitstr(lg=lg.need(('w', ks))))
            self.mfma(acc, RING + 4*(ks % NS), XF + 4*ks, None if ks == 0 else acc)
            if ks + NS < 32: self.q_rd(ks + NS)
            n = 0
            while fill and n < rate:
                it = fill.pop(0); self.item(it)
                if isinstance(it, str) or it[0] == 'ds': n += 1
            if at and ks in at: at[ks]()
        for it in fill: self.item(it)
        self.mfma(acc, WEXTQ, XEXT, acc)
        if at and 32 in at: at[32]()
        order = (4, 5, 6, 7, 0, 1, 2, 3)
        for p in order:
            if typ == 0: P(f'v_mul_f32 {vr(acc+2*p)}, {vr(vRSTD)}, {vr(acc+2*p)}\nv_mul_f32 {vr(acc+2*p+1)}, {vr(vRSTD)}, {vr(acc+2*p+1)}')
            P(f'v_cvt_pk_bf16_f32 {vr(aQ+p)}, {vr(acc+2*p)}, {vr(acc+2*p+1)}')
            if p == 7:
                if pre_write: pre_write()
                P(f'ds_write_b128 {vr(vKA)}, {vr(aQ+4,4)} offset:5120')

    def tile_addr(self, sbase):
        return f"""s_lshl_b32 {sr(sT1)}, {sr(sHS)}, 10
s_add_u32 {sr(sT1)}, {sr(sT1)}, {sr(sbase)}
v_add_u32 {vr(vKA)}, {sr(sT1)}, {vr(vL16)}
s_lshl_b32 {sr(sT1)}, {sr(sHS)}, 8
v_xor_b32 {vr(vVA)}, {sr(sT1)}, {vr(vL16)}
v_add_u32 {vr(vVA)}, {sr(sbase)}, {vr(vVA)}"""

    def trickle_setup(self):
        self.P(f's_mov_b32 {sr(sDM)}, 4\ns_mov_b32 {sr(sDG)}, {sr(sG0)}\ns_mov_b32 {sr(sDL)}, {sr(sLA)}')

    def trickle(self):
        P = self.P; sk = P.newlabel('Lsk')
        P(f's_cmp_eq_u32 {sr(sDM)}, 0\ns_cbranch_scc1 {sk}\ns_mul_i32 {sr(sT0)}, {sr(sDG)}, 3')
        for e in range(2):
            for nt in (1, 2):
                P(f's_add_u32 m0, {sr(sDL)}, {NT_LDS[nt] + e*1024}\ns_add_u32 {sr(sT1)}, {sr(sT0)}, {e*49152 + nt*1024}')
                P(f'buffer_load_dwordx4 {vr(vDW)}, {sr(sWB,4)}, {sr(sT1)} offen lds')
        P(f"""s_add_u32 {sr(sDL)}, {sr(sDL)}, 8192
s_add_u32 {sr(sDG)}, {sr(sDG)}, 0x20000
s_and_b32 {sr(sDG)}, {sr(sDG)}, 0x7ffff
s_sub_u32 {sr(sDM)}, {sr(sDM)}, 1""")
        P.label(sk)

    def attn_loop(self, cfirst, trickle=False):
        P = self.P; lp = P.newlabel('Latt')
        if self.o['trunc']: pk = lambda d, e: f'v_perm_b32 {vr(d)}, {vr(e+1)}, {vr(e)}, {sr(sPERM)}'
        else: pk = lambda d, e: f'v_cvt_pk_bf16_f32 {vr(d)}, {vr(e)}, {vr(e+1)}'
        rdv = f's_mov_b64 exec, {sr(sLO,2)}\nds_read_b128 {vr(VV,4)}, {vr(vVA)} offset:2048\nds_read_b128 {vr(VV+4,4)}, {vr(vVA)} offset:3072\ns_mov_b64 exec, -1'
        P(f'ds_read_b128 {vr(aK,4)}, {vr(vKA)}'); P(rdv)
        P(f'v_add_u32 {vr(vKA)}, {sr(sSTEP)}, {vr(vKA)}\nv_add_u32 {vr(vVA)}, {sr(sSTEP)}, {vr(vVA)}\ns_waitcnt lgkmcnt(2)')
        cfirst()
        P(f'ds_read_b128 {vr(aK,4)}, {vr(vKA)}\nv_add_u32 {vr(vKA)}, {sr(sSTEP)}, {vr(vKA)}\ns_nop 9')
        P.label(lp)
        for i in range(8): P(f'v_exp_f32 {vr(aE+i)}, {vr(aS+i)}')
        for p in range(4): P(pk(aP + p, aE + 2*p))
        for i in range(8, 10): P(f'v_exp_f32 {vr(aE+i-8)}, {vr(aS+i)}')
        P('s_waitcnt lgkmcnt(0)')
        self.mfma(aO, VV, aP, aO)
        for i in range(10, 16): P(f'v_exp_f32 {vr(aE+i-8)}, {vr(aS+i)}')
        self.mfma(aS, aK, aQ, None)
        P(f'ds_read_b128 {vr(aK,4)}, {vr(vKA)}')
        for p in range(4): P(pk(aP + 4 + p, aE + 2*p))
        P(f'v_add_u32 {vr(vKA)}, {sr(sSTEP)}, {vr(vKA)}\ns_sub_u32 {sr(sCNT)}, {sr(sCNT)}, 1')
        self.mfma(aO, VV + 4, aP + 4, aO)
        P(rdv)
        if trickle: self.trickle()
        P(f'v_add_u32 {vr(vVA)}, {sr(sSTEP)}, {vr(vVA)}\ns_cmp_lg_u32 {sr(sCNT)}, 0\ns_cbranch_scc1 {lp}')

    def publish_o_addr(self, L):
        return [f's_add_u32 {sr(sK0)}, {sr(sOW)}, {OFF_O + self.al(L)*0x200000}', f's_add_u32 {sr(sK1)}, {sr(sOF)}, {OFF_OFLAG + L*0x2000}']

    def publish_o(self, L, O, eps):
        P = self.P
        if eps: P(f'v_add_f32 {vr(O+8)}, {f2u(eps):#x}, {vr(O+8)}')
        P(f'v_rcp_f32 {vr(O+8)}, {vr(O+8)}')
        for p in range(4): P(f'v_pk_mul_f32 {vr(O+2*p,2)}, {vr(O+2*p,2)}, {vr(O+8,2)} op_sel_hi:[1,0]')
        for p in range(4): P(f'v_cvt_pk_bf16_f32 {vr(aP+p)}, {vr(O+2*p)}, {vr(O+2*p+1)}')
        def emit(sc1):
            P(f'buffer_store_dwordx4 {vr(aP,4)}, {vr(vL16)}, {sr(sWS,4)}, {sr(sK0)} offen' + (' sc1' if sc1 else ''))
            self.flag(sK1, sTAG, sc1, wait='s_waitcnt vmcnt(0)')
        self.two_way(emit)

    def main_outproj(self, L):
        P = self.P; vm, lg = self.vm, self.lg; OD = self.o['od']
        vm.reset(); lg.reset()
        if L == 0:
            self.rowmajor_addr(vVA, vKA, sT0)
            P(f'buffer_load_dwordx4 {vr(XRES,4)}, {vr(vVA)}, {sr(sX0,4)}, {sr(sT0)} offen\nbuffer_load_dwordx4 {vr(XRES+4,4)}, {vr(vVA)}, {sr(sX0,4)}, {sr(sT0)} offen offset:32')
            self.wphi_load()
        NS = 6
        def rd(ks):
            P(f'ds_read_b128 {vr(RING + 4*(ks % NS),4)}, {vr(vTR2)} offset:{ks*1024}'); lg.issue(('w', ks))
        for ks in range(NS): rd(ks)
        P(f'v_and_b32 {vr(vPA)}, 124, {vr(vL4)}\ns_add_u32 {sr(sT2)}, {sr(sXF)}, {OFF_OFLAG + L*0x2000}')
        self.frag_setup(OFF_O + self.al(L)*0x200000)
        self.publish_x_addr(L + 1)
        if L == 0:
            P('s_waitcnt vmcnt(0)')
            for a, b in SW4: P(f'v_permlane32_swap_b32 {vr(XRES+a)}, {vr(XRES+b)}')
            self.wphi_pack()
        self.unpack_res()
        self.poll(sT2)
        self.stamp(11 + L*14, f'L{L} oflags')
        for ks in range(OD): self.frag_load(ks)
        for ks in range(32):
            P(waitstr(vm=vm.need(('x', ks)), lg=lg.need(('w', ks))))
            self.mfma(ACC0, RING + 4*(ks % NS), XF + 4*ks, ACC0)
            if ks + OD < 32: self.frag_load(ks + OD)
            if ks + NS < 32: rd(ks + NS)
        self.stamp(12 + L*14, f'L{L} outproj')
        self.publish_x(L + 1)
        self.stamp(13 + L*14, f'L{L} xpub')

    def aux_head(self, L):
        P = self.P
        if L + 1 < self.nl: self.code_prefetch(f'L_main_{L+1}')
        if L == 1:
            self.lds_to_regs(LDS_WO, PARK['o']); P('s_waitcnt lgkmcnt(0)')
        else: self.swap_region('o', L + 1 < self.nl)

    def aux_tail(self, L):
        P = self.P
        if L + 1 >= self.nl: return
        if L % 2 == 0: wait_att = lambda: self.lds_wait(C_ATT, 8*(L//2 + 1))
        else: wait_att = lambda: None
        if L == 0:
            lp = P.newlabel('Lx'); P.label(lp)
            self.trickle()
            P(f's_cmp_lg_u32 {sr(sDM)}, 0\ns_cbranch_scc1 {lp}')
            self.wphi_load()
            wait_att()
            self.dma_w(1, (0,))
            P('s_waitcnt vmcnt(8)')
            self.wphi_pack()
            self.relayout(1, (1, 2))
            P('s_waitcnt vmcnt(0)')
            self.relayout(1, (0,))
            return
        save = L + 2 < self.nl
        self.swap_region(1, save); self.swap_region(2, save)
        wait_att()
        self.swap_region(0, save)

    def layerA(self, L):
        P = self.P; sb = L * 14; o = self.o; lg = self.lg
        j1 = f'L_j1_{L}'; j2 = f'L_j2_{L}'; ax2 = f'L_ax2_{L}'; ax3 = f'L_ax3_{L}'
        P.label(f'L_main_{L}')
        self.main_kv(L)
        self.stamp(3 + sb, f'L{L} kvpass')
        if L == 0: self.lds_check(C_Q, 4)
        self.q_prefetch()
        P(waitstr(lg=lg.need('rt')))
        for p in range(8):
            P(f'v_pk_mul_f32 {vr(ACC0+2*p,2)}, {vr(ACC0+2*p,2)}, {vr(vRSTD,2)} op_sel_hi:[1,0]')
        for p in range(8): P(f'v_cvt_pk_bf16_f32 {vr(PKV+p)}, {vr(ACC0+2*p)}, {vr(ACC0+2*p+1)}')
        st = lambda f: f'buffer_store_dwordx4 {vr(PKV+4*f,4)}, {vr(vL16)}, {sr(sWS,4)}, {sr(sK0)} offen offset:{f*1024} sc1'
        fill = [st(0), st(1)]
        for hf in range(2):
            fill += [f'v_mul_f32 {vr(ACC1+i)}, {vr(STAT+i)}, {vr(ACC1+i)}' for i in range(8*hf, 8*hf + 8)]
            fill += [f'v_cvt_pk_bf16_f32 {vr(PKV+8+p)}, {vr(ACC1+2*p)}, {vr(ACC1+2*p+1)}' for p in range(4*hf, 4*hf + 4)]
            fill.append(st(2 + hf))
        fill += self.checksum(vPA, PKV, 16) + [f'buffer_store_dword {vr(vPA)}, {vr(vL4)}, {sr(sWS,4)}, {sr(sK2)} offen sc1']
        fill += [('ds', 'own', f'ds_write_b128 {vr(vKA)}, {vr(PKV+4*f,4)} offset:{f*1024}') for f in range(4)]
        m0 = self.mask_ops(0)
        if L == 0: fill += m0[:30] + self.lds_peek(C_CSQ) + m0[30:44] + [('fn', lambda: self.lds_check(C_CSQ, 4))]
        else: fill += m0[:44]
        fill += [('ds', 'cs', f'ds_read_b128 {vr(WEXTQ,4)}, {vr(vT0)}')] + m0[44:]
        fill += [f'v_mul_f32 {vr(vRSTD)}, {f2u(0.25*LOG2E):#x}, {vr(vRSTD)}'] + self.wext_items(WEXTQ, 'cs')
        def halo_loads():
            P(f'v_add_u32 v162, 4096, {vr(vL4)}')
            for t_, sh in ((0, sH1), (1, sH2)):
                for f in range(4): P(f'buffer_load_dwordx4 {vr(aH+16*t_+4*f,4)}, {vr(vL16)}, {sr(sWS,4)}, {sr(sh)} offen offset:{f*1024} sc1')
                P(f'buffer_load_dword {vr(160+t_)}, v162, {sr(sWS,4)}, {sr(sh)} offen sc1')
        def halo_first():
            l = P.newlabel('Lx')
            P(f's_cmp_eq_u32 {sr(sHAS)}, 0\ns_cbranch_scc1 {l}')
            halo_loads()
            P.label(l)
        common = self.publish_o_addr(L) + [f's_add_u32 {sr(sCNT)}, {sr(sQT)}, 1', f's_mov_b32 {sr(sSTEP)}, {-OWN_ST}']
        def gap32():
            for it in common + [f'v_mov_b32 {vr(vVA)}, {vr(vKA)}']: P(it)
            if o['halo_at'] == 32: halo_first()
        at = {32: gap32}
        if o['halo_at'] < 32: at[o['halo_at']] = halo_first
        self.main_qpass(L, ACC0, fill, at=at)
        if o['halo_at'] == 33: halo_first()
        if o['prio']: self.prio_if(f's_cmp_ge_u32 {sr(sQT)}, 2')
        self.stamp(5 + sb, f'L{L} preB1')
        P(f's_waitcnt lgkmcnt(0)\ns_barrier\ns_branch {j1}')
        P.label(f'L_aux_{L}')
        if L > 0:
            P('s_barrier')
            self.aux_head(L)
            for op in self.mask_ops(0) + self.mask_ops(1): P(op)
        else: self.trickle_setup()
        P(self.tile_addr(sOWN))
        for it in common: P(it)
        if o['prio']: self.prio_if(f's_cmp_ge_u32 {sr(sQT)}, 2')
        self.stamp(5 + sb, f'L{L} preB1')
        P('s_barrier')
        P(f'ds_read_b128 {vr(aQ,4)}, {vr(vKA)} offset:4096')
        P.label(j1)
        self.attn_loop(lambda: self.mfma(aS, aK, aQ, CDIAG))
        P(self.tile_addr(sP2))
        P(f's_mov_b32 {sr(sCNT)}, {sr(sC2)}\ns_mov_b32 {sr(sSTEP)}, 4096')
        if o['prio']: self.prio_if(f's_cmp_lt_u32 {sr(sQT)}, 2')
        self.stamp(6 + sb, f'L{L} own attn')
        lp = P.newlabel('Lhalo'); ck = P.newlabel('Lhchk'); dn = P.newlabel('Lhdone')
        P(f's_cmp_lg_u32 {sr(sHS)}, 0\ns_cbranch_scc1 {ax2 if L == 0 else j2}')
        if o['halo_at'] > 33: halo_first()
        for op in self.mask_ops(1): P(op)
        P(f"""s_cmp_eq_u32 {sr(sHAS)}, 0
s_cbranch_scc1 {j2}
s_lshl_b32 {sr(sT3)}, {sr(sMT)}, 13
s_add_u32 {sr(sT3)}, {sr(sT3)}, {LDS_T}
v_add_u32 {vr(vT0)}, {sr(sT3)}, {vr(vL16)}
s_branch {ck}""")
        P.label(lp)
        halo_loads()
        P.label(ck)
        for t_ in range(2):
            cs = self.checksum(163 + t_, aH + 16*t_, 16)
            for f in range(4):
                P(f's_waitcnt vmcnt({9-5*t_-f})\nds_write_b128 {vr(vT0)}, {vr(aH+16*t_+4*f,4)} offset:{(4*t_+f)*1024}')
                P(cs[2*f]); P(cs[2*f + 1])
            P(f's_waitcnt vmcnt({5-5*t_})\nv_cmp_ne_u32 {sr(sM+2*t_,2)}, {vr(160+t_)}, {vr(163+t_)}')
        P(f's_or_b64 {sr(sM,2)}, {sr(sM,2)}, {sr(sM+2,2)}\ns_cbranch_scc0 {dn}')
        self.retry_tail(lp, dn)
        self.stamp(7 + sb, f'L{L} halo ok')
        if L == 0:
            P(f's_branch {j2}'); P.label(ax2)
            P('s_waitcnt vmcnt(0) lgkmcnt(0)')
            lt = P.newlabel('Lx')
            P(f"""s_cmp_lg_u32 {sr(sMT)}, 1
s_cbranch_scc1 {lt}
v_lshrrev_b32 v25, 4, {vr(vLANE)}
v_and_b32 v5, 15, {vr(vLANE)}
v_lshlrev_b32 v5, 7, v5
v_lshl_add_u32 v5, v25, 15, v5
s_lshl_b32 {sr(sT0)}, {sr(sR)}, 17
s_lshl_b32 {sr(sT1)}, {sr(sC)}, 11
s_add_u32 {sr(sT0)}, {sr(sT0)}, {sr(sT1)}
s_add_u32 {sr(sT1)}, {sr(sT0)}, {OFF_O}
buffer_load_dword v26, v5, {sr(sWS,4)}, {sr(sT1)} offen sc1
s_add_u32 {sr(sT1)}, {sr(sT0)}, {OFF_X + self.al(1)*0x200000}
buffer_load_dword v26, v5, {sr(sWS,4)}, {sr(sT1)} offen sc1
v_and_b32 v5, 128, v5
v_lshl_add_u32 v5, v25, 12, v5
s_lshr_b32 {sr(sT0)}, {sr(sT0)}, 3
s_add_u32 {sr(sT1)}, {sr(sT0)}, {OFF_ST + self.al(1)*0x40000}
buffer_load_dword v26, v5, {sr(sWS,4)}, {sr(sT1)} offen sc1""")
            P.label(lt)
            self.relayout(0, ('o',), tmp=aS, ntmp=4)
            if not self.force_safe:
                P(f"""s_cmp_lg_u32 {sr(sMT)}, 0
s_cbranch_scc1 {j2}
v_and_b32 {vr(vPA)}, 60, {vr(vL4)}
s_lshl_b32 {sr(sT2)}, {sr(sR)}, 7
s_add_u32 {sr(sT2)}, {sr(sT2)}, {OFF_XFLAG}""")
                self.poll(sT2, masked=True)
                P(f"""v_cmp_ne_u32 vcc, {sr(sOWNF)}, {vr(vPD)}
s_cmp_eq_u64 vcc, 0
s_cselect_b32 {sr(sFAST)}, 1, 0
v_mov_b32 {vr(vT0)}, {sr(sFAST)}
ds_write_b32 {vr(vCNT)}, {vr(vT0)} offset:44""")
        P.label(j2)
        lskip = P.newlabel('Lnohalo'); l1 = P.newlabel('Lr1'); l2 = P.newlabel('Lr2')
        P('s_waitcnt lgkmcnt(0)\ns_barrier')
        if L == 0 and not self.force_safe: P(f'ds_read_b32 {vr(vPD)}, {vr(vCNT)} offset:44')
        self.stamp(8 + sb, f'L{L} B2')
        P(f's_cmp_eq_u32 {sr(sR)}, 0\ns_cbranch_scc1 {lskip}')
        def first():
            P(f's_cmp_eq_u32 {sr(sR)}, 1\ns_cbranch_scc1 {l1}')
            self.mfma(aS, aK, aQ, CFIRST)
            P(f's_branch {l2}'); P.label(l1)
            self.mfma(aS, aK, aQ, None)
            P.label(l2)
        self.attn_loop(first, trickle=(L == 0))
        P.label(lskip)
        if L == 0 and not self.force_safe: P(f's_waitcnt lgkmcnt(0)\nv_readfirstlane_b32 {sr(sFAST)}, {vr(vPD)}')
        self.stamp(9 + sb, f'L{L} attn')
        self.publish_o(L, aO, 0)
        if o['prio']: P('s_setprio 0')
        self.lds_signal(C_ATT)
        self.stamp(10 + sb, f'L{L} opub')
        P(f's_cmp_lg_u32 {sr(sHS)}, 0\ns_cbranch_scc1 {ax3}')
        self.main_outproj(L)
        P(f's_branch L_main_{L+1}')
        P.label(ax3)
        self.aux_tail(L)
        self.stamp(13 + sb, f'L{L} xpub')
        P(f's_branch L_aux_{L+1}')

    def softmax16(self, dst, t):
        P = self.P; A = ACC0
        P(f'v_max3_f32 {vr(t)}, {vr(A)}, {vr(A+1)}, {vr(A+2)}\nv_max3_f32 {vr(t+1)}, {vr(A+3)}, {vr(A+4)}, {vr(A+5)}')
        P(f'v_max3_f32 {vr(t+2)}, {vr(A+6)}, {vr(A+7)}, {vr(A+8)}\nv_max3_f32 {vr(t+3)}, {vr(A+9)}, {vr(A+10)}, {vr(A+11)}')
        P(f'v_max3_f32 {vr(t)}, {vr(t)}, {vr(A+12)}, {vr(A+13)}\nv_max3_f32 {vr(t+1)}, {vr(t+1)}, {vr(A+14)}, {vr(A+15)}')
        P(f'v_max3_f32 {vr(t)}, {vr(t)}, {vr(t+2)}, {vr(t+3)}\nv_max_f32 {vr(t)}, {vr(t)}, {vr(t+1)}')
        P(f'v_mul_f32 {vr(t)}, {vr(vRSTD)}, {vr(t)}')
        for i in range(4): P(f'v_fma_f32 {vr(A+i)}, {vr(A+i)}, {vr(vRSTD)}, -{vr(t)}')
        for i in range(16):
            P(f'v_exp_f32 {vr(A+i)}, {vr(A+i)}')
            if i + 4 < 16: P(f'v_fma_f32 {vr(A+i+4)}, {vr(A+i+4)}, {vr(vRSTD)}, -{vr(t)}')
            if i == 2: P(f'v_add_f32 {vr(t+1)}, {vr(A)}, {vr(A+1)}')
            if i >= 3: P(f'v_add_f32 {vr(t+1)}, {vr(t+1)}, {vr(A+i-1)}')
        P(f'v_add_f32 {vr(t+1)}, {vr(t+1)}, {vr(A+15)}\nv_rcp_f32 {vr(t)}, {vr(t+1)}')
        for p in range(8):
            P(f'v_mul_f32 {vr(A+2*p)}, {vr(t)}, {vr(A+2*p)}\nv_mul_f32 {vr(A+2*p+1)}, {vr(t)}, {vr(A+2*p+1)}')
        for p in range(8): P(f'v_cvt_pk_bf16_f32 {vr(dst+p)}, {vr(A+2*p)}, {vr(A+2*p+1)}')

    def layerB(self, L):
        P = self.P; Lb = L // 2; sb = L * 14; o = self.o; lg = self.lg
        j0 = f'L_j0_{L}'; j1 = f'L_j1_{L}'; j2 = f'L_j2_{L}'; ax1 = f'L_ax1_{L}'; ax1b = f'L_ax1b_{L}'; ax3 = f'L_ax3_{L}'; axz = f'L_axz_{L}'
        KA, KV_ = 48, 96
        vA16, vA4, vAW, vAO = 96, 97, 98, 99
        P.label(f'L_main_{L}')
        self.main_kv(L)
        self.stamp(3 + sb, f'L{L} kvpass')
        P(waitstr(lg=lg.need('rt')))
        for p in (4, 5, 6, 7): P(f'v_cvt_pk_bf16_f32 {vr(PKV+p)}, {vr(ACC0+2*p)}, {vr(ACC0+2*p+1)}')
        P(f'ds_write_b128 {vr(vKA)}, {vr(PKV+4,4)} offset:1024')
        for p in (0, 1, 2, 3): P(f'v_cvt_pk_bf16_f32 {vr(PKV+p)}, {vr(ACC0+2*p)}, {vr(ACC0+2*p+1)}')
        vmul = lambda p: f'v_pk_mul_f32 {vr(ACC1+2*p,2)}, {vr(ACC1+2*p,2)}, {vr(STAT+2*p,2)}'
        P(vmul(0)); P(vmul(1))
        self.mfma(ACC0, WPHI, PKV, None)
        for p in range(2, 8): P(vmul(p))
        P('s_waitcnt lgkmcnt(0)\ns_barrier')
        for p in range(8): P(f'v_cvt_pk_bf16_f32 {vr(PKV+8+p)}, {vr(ACC1+2*p)}, {vr(ACC1+2*p+1)}')
        for f in range(2, 4): P(f'ds_write_b128 {vr(vKA)}, {vr(PKV+4*f,4)} offset:{f*1024}')
        P(f's_branch {j0}')
        P.label(f'L_aux_{L}')
        P('s_barrier')
        self.aux_head(L)
        for i in range(32): P(f'v_mov_b32 {vr(KV_+i)}, {vr(ONES)}')
        P(f"""v_lshrrev_b32 v91, 5, {vr(vLANE)}
v_bfe_u32 v88, {vr(vLANE)}, 2, 2
v_lshl_add_u32 v88, v91, 2, v88
v_lshlrev_b32 v88, 5, v88
v_and_b32 v89, 1, {vr(vLANE)}
v_lshl_add_u32 v88, v89, 4, v88
v_bfe_u32 v89, {vr(vLANE)}, 4, 1
v_lshl_add_u32 v88, v89, 12, v88
v_bfe_u32 v89, {vr(vLANE)}, 1, 1
v_lshl_add_u32 v88, v89, 3, v88
s_lshl_b32 {sr(sT0)}, {sr(sMT)}, 10
s_add_u32 {sr(sT0)}, {sr(sT0)}, {LDS_OWN}
v_add_u32 v88, {sr(sT0)}, v88
s_lshl_b32 {sr(sT1)}, {sr(sMT)}, 8
v_xor_b32 v90, {sr(sT1)}, {vr(vL16)}
v_add_u32 v89, {LDS_OWN}, v90
s_lshl_b32 {sr(sT0)}, {sr(sMT)}, 5
s_add_u32 {sr(sT0)}, {sr(sT0)}, 1024
v_lshl_add_u32 v91, v91, 4, {sr(sT0)}
v_and_b32 v92, 31, {vr(vLANE)}
v_mov_b32 v93, {OOB:#x}
v_cmp_eq_u32 vcc, 16, v92
v_cndmask_b32 v91, v93, v91, vcc
v_cndmask_b32 v90, v91, v90, {sr(sLO,2)}
v_lshrrev_b32 v91, 2, v90
s_lshl_b32 {sr(sK2)}, {sr(sC)}, 4
s_add_u32 {sr(sK2)}, {sr(sK2)}, {sr(sR)}
s_mul_i32 {sr(sK2)}, {sr(sK2)}, {KP_REC}
s_add_u32 {sr(sK2)}, {sr(sK2)}, {OFF_KP + Lb*KP_L}""")
        P(self.tile_addr(sOWN))
        for op in self.phi_addr(): P(op)
        P(f's_lshl_b32 {sr(sT0)}, {sr(sQT)}, 7\ns_add_u32 {sr(sT0)}, {sr(sT0)}, {LDS_RSTD}\nv_and_b32 v25, 124, {vr(vL4)}\nv_add_u32 v25, {sr(sT0)}, v25')
        self.stamp(3 + sb, f'L{L} kvpass')
        P('s_barrier')
        P(f'ds_read_b128 {vr(RING+8,4)}, {vr(vKA)}\nds_read_b32 {vr(vRSTD)}, v25\ns_waitcnt lgkmcnt(1)')
        self.mfma(ACC0, WPHI, RING + 8, None)
        P(f's_waitcnt lgkmcnt(0)\nv_mul_f32 {vr(vRSTD)}, {sr(sLOG2E)}, {vr(vRSTD)}\ns_nop 9')
        P.label(j0)
        self.stamp(4 + sb, f'L{L} B1a')
        self.softmax16(RING, RING + 12)
        P(f'ds_write_b128 {vr(vVA)}, {vr(RING,4)}\nds_write_b128 {vr(vVA)}, {vr(RING+4,4)} offset:4096\ns_waitcnt lgkmcnt(0)\ns_barrier')
        self.stamp(5 + sb, f'L{L} B1b')
        common = self.publish_o_addr(L) + f"""s_mul_i32 {sr(sH1)}, {sr(sC)}, {16*KP_REC}
s_add_u32 {sr(sH1)}, {sr(sH1)}, {OFF_KP + Lb*KP_L}
s_mov_b32 {sr(sSEL0)}, 0x3f80
s_mov_b32 {sr(sSEL1)}, 0x3f800000
s_lshl_b32 {sr(sT0)}, {sr(sHS)}, 4
v_xor_b32 {vr(vAO)}, {sr(sT0)}, {vr(vLANE)}
v_lshlrev_b32 {vr(vAO)}, 5, {vr(vAO)}
v_add_u32 {vr(vAO)}, {LDS_KVT}, {vr(vAO)}
v_and_b32 v100, 32, {vr(vLANE)}
s_lshl_b32 {sr(sT0)}, {sr(sHS)}, 6
s_add_u32 {sr(sT0)}, {sr(sT0)}, {LDS_ZT}
v_add_u32 v100, {sr(sT0)}, v100
v_cndmask_b32 {vr(vAO)}, v100, {vr(vAO)}, {sr(sLO,2)}""".split('\n')
        def entry_addr(ent, part):
            return ent + part + f"""v_mul_u32_u24 {vr(vA16)}, {KP_REC}, {vr(vA16)}
v_lshl_add_u32 {vr(vA4)}, v100, 2, {vr(vA16)}
v_lshl_add_u32 {vr(vA16)}, v100, 4, {vr(vA16)}
v_lshrrev_b32 {vr(vAW)}, 4, {vr(vLANE)}
v_lshlrev_b32 {vr(vAW)}, 3, {vr(vAW)}
v_lshl_add_u32 {vr(vAW)}, v100, 5, {vr(vAW)}
v_add_u32 {vr(vAW)}, {LDS_KVT}, {vr(vAW)}""".split('\n')
        A = ACC1; KD = 128
        def loads_main():
            P(f's_mov_b32 {sr(sT0)}, {sr(sH1)}')
            for it in range(4):
                D = KD + 12*it
                P(f'buffer_load_dwordx4 {vr(D,4)}, {vr(vA16)}, {sr(sWS,4)}, {sr(sT0)} offen sc1\nbuffer_load_dwordx4 {vr(D+4,4)}, {vr(vA16)}, {sr(sWS,4)}, {sr(sT0)} offen offset:{KP_D1} sc1')
                P(f'buffer_load_dword {vr(D+8)}, {vr(vA4)}, {sr(sWS,4)}, {sr(sT0)} offen offset:{KP_CS} sc1')
                if it < 3: P(f's_add_u32 {sr(sT0)}, {sr(sT0)}, {4*KP_REC}')
        P(f's_cmp_lg_u32 {sr(sHS)}, 0\ns_cbranch_scc1 {ax1}')
        lg.reset()
        self.q_prefetch()
        fill = [('ds', 'cs', f'ds_read_b128 {vr(WEXTQ,4)}, {vr(vT0)}')] + common
        fill += entry_addr([f'v_and_b32 v100, 15, {vr(vLANE)}', f's_lshl_b32 {sr(sT0)}, {sr(sMT)}, 4', f'v_add_u32 v100, {sr(sT0)}, v100'], [f'v_lshrrev_b32 {vr(vA16)}, 4, {vr(vLANE)}'])
        fill += self.wext_items(WEXTQ, 'cs')
        self.main_qpass(L, ACC1, fill, pre_write=lambda: P('s_barrier'), rate=2)
        self.mfma(ACC0, WPHI, aQ, None)
        P('s_waitcnt lgkmcnt(0)\ns_barrier')
        if o['kp_at'] == 1: loads_main()
        P(f's_branch {j1}')
        P.label(ax1)
        P(f's_cmp_ge_u32 {sr(sMT)}, 2\ns_cbranch_scc1 {ax1b}\ns_setprio 3')
        for st in range(8):
            of = (st >> 1)*OWN_ST + (st & 1)*512
            P(f'ds_read_b64_tr_b16 {vr(KA+4*st,2)}, v88 offset:{of}\nds_read_b64_tr_b16 {vr(KA+2+4*st,2)}, v88 offset:{of+256}')
            P(f's_mov_b64 exec, {sr(sLO,2)}\nds_read_b128 {vr(KV_+4*st,4)}, v89 offset:{(st>>1)*OWN_ST + 2048 + (st&1)*1024}\ns_mov_b64 exec, -1')
            if st >= 3:
                P('s_waitcnt lgkmcnt(9)'); self.mfma(ACC0, KA + 4*(st-3), KV_ + 4*(st-3), None if st == 3 else ACC0)
        for st in range(5, 8):
            P(f's_waitcnt lgkmcnt({3*(7-st)})'); self.mfma(ACC0, KA + 4*st, KV_ + 4*st, ACC0)
        for p in range(8): P(f'v_cvt_pk_bf16_f32 {vr(80+p)}, {vr(ACC0+2*p)}, {vr(ACC0+2*p+1)}')
        P(f'buffer_store_dwordx4 v[80:83], v90, {sr(sWS,4)}, {sr(sK2)} offen sc1\nbuffer_store_dwordx4 v[84:87], v90, {sr(sWS,4)}, {sr(sK2)} offen offset:{KP_D1} sc1')
        for op in self.checksum(92, 80, 8): P(op)
        P(f'buffer_store_dword v92, v91, {sr(sWS,4)}, {sr(sK2)} offen offset:{KP_CS} sc1')
        self.stamp(6 + sb, f'L{L} phiq / kp stored')
        P('s_setprio 0')
        P.label(ax1b)
        if L == 1: self.dma_w(1, ('o',))
        for it in common + entry_addr([f'v_and_b32 v100, 3, {vr(vLANE)}', 'v_add_u32 v100, 64, v100'], [f'v_lshrrev_b32 {vr(vA16)}, 2, {vr(vLANE)}']): P(it)
        P('s_barrier\ns_barrier')
        P(f'ds_read_b128 {vr(aQ,4)}, {vr(vKA)} offset:4096\ns_waitcnt lgkmcnt(0)')
        self.mfma(ACC0, WPHI, aQ, None)
        P('s_nop 11')
        P.label(j1)
        self.softmax16(PHQ, RING + 12)
        P(f's_cmp_lg_u32 {sr(sHS)}, 0\ns_cbranch_scc1 {axz}')
        def fold():
            for j in range(8): P(f'v_permlane32_swap_b32 {vr(A+j)}, {vr(A+j+8)}')
            for j in range(4): P(f'v_pk_add_f32 {vr(A+2*j,2)}, {vr(A+2*j,2)}, {vr(A+2*j+8,2)}')
            for j in range(4): P(f'v_permlane16_swap_b32 {vr(A+j)}, {vr(A+j+4)}')
            for j in range(2): P(f'v_pk_add_f32 {vr(A+2*j,2)}, {vr(A+2*j,2)}, {vr(A+2*j+4,2)}')
        def unpack(D):
            for k in range(8): P(f'v_lshlrev_b32 {vr(A+2*k)}, 16, {vr(D+k)}\nv_and_b32 {vr(A+2*k+1)}, 0xffff0000, {vr(D+k)}')
        fin = f'v_cvt_pk_bf16_f32 v68, {vr(A)}, {vr(A+1)}\nv_cvt_pk_bf16_f32 v69, {vr(A+2)}, {vr(A+3)}\nds_write_b64 {vr(vAW)}, v[68:69]'
        self.stamp(6 + sb, f'L{L} phiq / kp stored')
        lp = P.newlabel('Lkp'); ck = P.newlabel('Lkpc'); dn = P.newlabel('Lkpd')
        if o['kp_at'] == 1: P(f's_branch {ck}')
        P.label(lp)
        loads_main()
        P.label(ck)
        for it in range(4):
            D = KD + 12*it
            P(f's_waitcnt vmcnt({9-3*it})')
            for op in self.checksum(D + 9, D, 8): P(op)
            P(f'v_cmp_ne_u32 {sr(sM+2*it,2)}, {vr(D+8)}, {vr(D+9)}')
            if it == 0: unpack(D)
            elif it < 3:
                for k in range(8):
                    P(f'v_dot2_f32_bf16 {vr(A+2*k)}, {vr(D+k)}, {sr(sSEL0)}, {vr(A+2*k)}\nv_dot2_f32_bf16 {vr(A+2*k+1)}, {vr(D+k)}, {sr(sSEL1)}, {vr(A+2*k+1)}')
        P(f's_or_b64 {sr(sM,2)}, {sr(sM,2)}, {sr(sM+2,2)}\ns_or_b64 {sr(sM+4,2)}, {sr(sM+4,2)}, {sr(sM+6,2)}\ns_or_b64 {sr(sM,2)}, {sr(sM,2)}, {sr(sM+4,2)}\ns_cbranch_scc0 {dn}')
        self.retry_tail(lp, dn)
        self.stamp(7 + sb, f'L{L} kp ok')
        D = KD + 36
        for k in range(8):
            P(f'v_dot2_f32_bf16 {vr(A+2*k)}, {vr(D+k)}, {sr(sSEL0)}, {vr(A+2*k)}\nv_dot2_f32_bf16 {vr(A+2*k+1)}, {vr(D+k)}, {sr(sSEL1)}, {vr(A+2*k+1)}')
        fold()
        P(fin)
        P(f's_branch {j2}')
        P.label(axz)
        if L == 1:
            P('s_waitcnt vmcnt(0)')
            self.relayout(1, ('o',), tmp=32)
        P(f's_cmp_lg_u32 {sr(sMT)}, 2\ns_cbranch_scc1 {j2}')
        lp = P.newlabel('Lkz'); dn = P.newlabel('Lkzd'); D = 32
        P.label(lp)
        P(f'buffer_load_dwordx4 {vr(D,4)}, {vr(vA16)}, {sr(sWS,4)}, {sr(sH1)} offen sc1\nbuffer_load_dwordx4 {vr(D+4,4)}, {vr(vA16)}, {sr(sWS,4)}, {sr(sH1)} offen offset:{KP_D1} sc1')
        P(f'buffer_load_dword {vr(D+8)}, {vr(vA4)}, {sr(sWS,4)}, {sr(sH1)} offen offset:{KP_CS} sc1\ns_waitcnt vmcnt(0)')
        for op in self.checksum(D + 9, D, 8): P(op)
        P(f'v_cmp_ne_u32 vcc, {vr(D+8)}, {vr(D+9)}\ns_cbranch_vccz {dn}')
        self.retry_tail(lp, dn)
        unpack(D)
        fold()
        for rot in (4, 8):
            for j in range(4): P(f'v_add_f32_dpp {vr(A+j)}, {vr(A+j)}, {vr(A+j)} row_ror:{rot} row_mask:0xf bank_mask:0xf')
        P(fin)
        P.label(j2)
        P('s_waitcnt lgkmcnt(0)\ns_barrier')
        self.stamp(8 + sb, f'L{L} B2')
        P(f'ds_read_b128 v[68:71], {vr(vAO)}\nds_read_b128 v[72:75], {vr(vAO)} offset:16\ns_waitcnt lgkmcnt(1)')
        self.mfma(ACC0, 68, PHQ, None)
        P('s_waitcnt lgkmcnt(0)')
        self.mfma(ACC0, 72, PHQ + 4, ACC0)
        self.publish_o(L, ACC0, 1e-6)
        self.stamp(10 + sb, f'L{L} opub')
        P(f's_cmp_lg_u32 {sr(sHS)}, 0\ns_cbranch_scc1 {ax3}')
        self.main_outproj(L)
        P(f's_branch L_main_{L+1}')
        P.label(ax3)
        self.aux_tail(L)
        self.stamp(13 + sb, f'L{L} xpub')
        P(f's_branch L_aux_{L+1}')

    def epilogue(self):
        P = self.P; nl = self.nl
        P.label(f'L_main_{nl}')
        P(f's_or_b32 {sr(sT0)}, s2, {sr(sW)}\ns_cmp_lg_u32 {sr(sT0)}, 0\ns_cbranch_scc1 L_aux_{nl}\ns_mov_b32 {sr(sT2)}, 0')
        self.flag(sT2, sTAG, False)
        P.label(f'L_aux_{nl}')
        if self.stamps:
            P('s_waitcnt vmcnt(0)')
            self.stamp(62, 'end')
            P(f's_memtime {sr(sST,2)}\ns_waitcnt lgkmcnt(0)\ns_sub_u32 {sr(sST)}, {sr(sST)}, s100\nv_writelane_b32 {vr(vSTAMP)}, {sr(sST)}, 59')
            P(f'''v_writelane_b32 {vr(vSTAMP)}, {sr(sBUD)}, 63
v_writelane_b32 {vr(vSTAMP)}, {sr(sFAST)}, 61
v_writelane_b32 {vr(vSTAMP)}, s99, 58
s_lshl_b32 {sr(sT0)}, s2, 3
s_add_u32 {sr(sT0)}, {sr(sT0)}, {sr(sW)}
s_lshl_b32 {sr(sT0)}, {sr(sT0)}, 8
s_add_u32 {sr(sT0)}, {sr(sT0)}, {OFF_STAMP}
buffer_store_dword {vr(vSTAMP)}, {vr(vL4)}, {sr(sWS,4)}, {sr(sT0)} offen''')
        P.label('L_end')
        P('s_endpgm')

    def build(self):
        self.prologue()
        for L in range(self.nl):
            (self.layerA if L % 2 == 0 else self.layerB)(L)
        self.epilogue()
        n = self.P.fix_hazards()
        errs = self.P.check_waits()
        head = open(f'cdna_kernels/{NAME}.s.ref').read().split('; @launch')[0]
        s = head + f'; @launch grid=(256,1,1) block=(512,1,1) lds={LDS_TOTAL}\n'
        s += f'.amdgcn_target "amdgcn-amd-amdhsa--gfx950"\n.text\n.globl {NAME}_kernel\n.p2align 8\n.type {NAME}_kernel,@function\n{NAME}_kernel:\n'
        s += self.P.text().replace('CODE_BYTES', '(L_end - %s_kernel - 1088)' % NAME)
        s += f'''.section .rodata,"a"
.p2align 6
.amdhsa_kernel {NAME}_kernel
  .amdhsa_next_free_vgpr 256
  .amdhsa_next_free_sgpr 102
  .amdhsa_accum_offset 256
  .amdhsa_group_segment_fixed_size 0
  .amdhsa_kernarg_size 80
  .amdhsa_user_sgpr_count 2
  .amdhsa_user_sgpr_kernarg_segment_ptr 1
  .amdhsa_system_sgpr_workgroup_id_x 1
.end_amdhsa_kernel
'''
        return s, n, errs


if __name__ == '__main__':
    import argparse, json
    ap = argparse.ArgumentParser()
    ap.add_argument('-o', default=f'cdna_kernels/{NAME}.s')
    ap.add_argument('--stamps', action='store_true')
    ap.add_argument('--safe', action='store_true')
    ap.add_argument('--cyc', action='store_true')
    ap.add_argument('--opt', nargs='*', default=[])
    ap.add_argument('--noalias', action='store_true')
    ap.add_argument('--nl', type=int, default=4)
    a = ap.parse_args()
    g = Gen(stamps=a.stamps, nlayers=a.nl, force_safe=a.safe, cyc=a.cyc, alias=not a.noalias, opt={k: int(v) for k, v in (x.split('=') for x in a.opt)})
    s, n, errs = g.build()
    open(a.o, 'w').write(s)
    if a.stamps: json.dump(g.stamp_names, open(a.o + '.stamps.json', 'w'))
    print('instructions', sum(1 for x in g.P.L if x.op), 'nops inserted', n, 'lds', LDS_TOTAL)
    for e in errs[:8]: print('WAITCHECK', e)
```

```python
import sys, struct
sys.path.insert(0, 'dev')
from asmlib import *

NAME = 'interleave_layers__sliding_block__linear_kernel_hedgehog__prompt'
def f2u(x): return struct.unpack('<I', struct.pack('<f', x))[0]
LOG2E = 1.4426950408889634

OFF_XFLAG = 0x1000
OFF_OFLAG = 0x9000
OFF_STAMP = 0x30000
OFF_ST = 0x100000
OFF_X = 0x200000
OFF_O = 0xA00000
OFF_KV = 0x1200000
KV_REC = 4352; KV_L = 1024*KV_REC
OFF_KP = 0x1B00000
KP_REC = 2560; KP_D1 = 1088; KP_CS = 2176; KP_L = 256*KP_REC
WS_USED = 0x2000000
OOB = 0x40000000
TAGC = 0x9E3779B0
SAFE_EXP = 30

LDS_WK = 0; LDS_WV = 32768; LDS_WQ = 65536; LDS_T = 65536; LDS_WO = 98304
LDS_OWN = 131072; OWN_ST = 6144
LDS_CSP = LDS_OWN + 4*OWN_ST
LDS_RSTD = LDS_CSP + 3072; LDS_KVT = LDS_RSTD + 512; LDS_ZT = LDS_KVT + 2048
LDS_FAST = LDS_ZT + 128; LDS_CNT = LDS_FAST + 16; LDS_TOTAL = LDS_FAST + 64
NT_LDS = {0: LDS_WQ, 1: LDS_WK, 2: LDS_WV, 'o': LDS_WO}
C_ST, C_XDONE, C_WGO, C_CS, C_Q, C_ATT, C_CSQ = 0, 4, 5, 6, 7, 8, 9

sWS, sX0, sWA, sWoA, sWB, sWoB, sPhi, sOut = 4, 8, 12, 16, 20, 24, 28, 32
sR, sC, sW, sMT, sHS, sRT, sQT, sTAG, sFAST, sBUD = 36, 37, 38, 39, 40, 41, 42, 43, 44, 45
sT0, sT1, sT2, sT3 = 46, 47, 48, 49
sLO = 50
sOWNF = 52; sCNT = 53; sSTEP = 54; sLOG2E = 55; sST = 56
sROT = 58; sDM = 59; sH0 = 60
sG0 = 62; sPERM = 63
sM = 64
sOW, sOF, sHB, sHAS, sP2, sC2, sOWN, sKVW, sXW, sSW, sXF, sRB = 72, 73, 74, 75, 76, 77, 78, 79, 80, 81, 82, 83
sLA = 86; sDG = 87; sDL = 88; sLB = 89; sLR = 90; sK0 = 91; sK1 = 92; sK2 = 93; sSEL0 = 94; sSEL1 = 95; sH1 = 96; sH2 = 97
vT0, vLANE, vL16, vL4, vCNT, vTR1, vTR2, vSTAMP = 0, 1, 2, 3, 4, 5, 6, 7
XRES, WPHI = 8, 16
vDW, vDO, vCH, vCS, ONES = 8, 9, 10, 11, 12
vRSTD, vKA, vVA, vPD, vPA, vRA, vRB, vFD = 20, 21, 22, 23, 24, 25, 26, 27
XEXT = 28; ACC0 = 32; ACC1 = 48; RING = 64; WEXTQ = 84; WEXTK = 88; WEXTV = 92; VV = 88
STAT = 96; CDIAG = 96; PKV = 112; CFIRST = 112; XF = 128
aS, aO, aE, aQ, aK, aP, aH = 32, 48, 64, 72, 76, 80, 128
PHQ = 112
PARK = {1: 128, 2: 160, 0: 192, 'o': 224}
MFMA = 'v_mfma_f32_32x32x16_bf16'
def cho(u): return (u >> 1)*8192 + (u & 1)*1024
SW4 = ((0, 2), (1, 3), (4, 6), (5, 7))


class Gen:
    def __init__(self, stamps=False, nlayers=4, force_safe=False, cyc=False, alias=True, opt=None):
        self.cyc = cyc; self.alias = alias
        self.o = dict(halo_at=31, prio=1, trunc=1, wgo=2, wgon=2, xd=8, od=10, x0d=3, psleep=1, kp_at=0)
        self.o.update(opt or {})
        self.P = Prog(); self.stamps = stamps; self.nl = nlayers; self.force_safe = force_safe
        self.stamp_names = {}
        self.vm = Tracker(63); self.lg = Tracker(15)

    def stamp(self, idx, name=''):
        if not self.stamps: return
        self.stamp_names[idx] = name
        self.P(f'{"s_memtime" if self.cyc else "s_memrealtime"} {sr(sST,2)}\ns_waitcnt lgkmcnt(0)\nv_writelane_b32 {vr(vSTAMP)}, {sr(sST)}, {idx}')

    def al(self, L): return 0 if self.alias else L

    def mfma(self, d, a, b, c):
        cs = '0' if c is None else vr(c, 16)
        self.P(f'{MFMA} {vr(d,16)}, {vr(a,4)}, {vr(b,4)}, {cs}')

    def srd(self, s, ptr, nbytes):
        self.P(f's_mov_b32 {sr(s)}, {sr(ptr)}\ns_and_b32 {sr(s+1)}, {sr(ptr+1)}, 0xffff\ns_mov_b32 {sr(s+2)}, {nbytes}\ns_mov_b32 {sr(s+3)}, 0x20000')

    def poll(self, soff, masked=False):
        P = self.P; lp = P.newlabel('Lpoll'); dn = P.newlabel('Lpolld')
        P.label(lp)
        P(f'buffer_load_dword {vr(vPD)}, {vr(vPA)}, {sr(sWS,4)}, {sr(soff)} offen sc1\ns_waitcnt vmcnt(0)')
        if masked:
            P(f'v_and_b32 {vr(vT0)}, -16, {vr(vPD)}\nv_cmp_ne_u32 vcc, {sr(sTAG)}, {vr(vT0)}')
        else:
            P(f'v_cmp_ne_u32 vcc, {sr(sTAG)}, {vr(vPD)}')
        P(f's_cbranch_vccz {dn}')
        if self.o['psleep']: P(f's_sleep {self.o["psleep"]}')
        P(f's_sub_u32 {sr(sBUD)}, {sr(sBUD)}, 1\ns_cbranch_scc0 {lp}\ns_mov_b32 {sr(sBUD)}, 0')
        P.label(dn)

    def flag(self, soff, sval, sc1, wait=None):
        P = self.P
        P(f'v_mov_b32 {vr(vPD)}, {sr(sval)}\ns_mov_b64 exec, 1')
        if wait: P(wait)
        P(f'buffer_store_dword {vr(vPD)}, off, {sr(sWS,4)}, {sr(soff)}' + (' sc1' if sc1 else ''))
        P('s_mov_b64 exec, -1')

    def prio_if(self, cmp):
        P = self.P; l = P.newlabel('Lpr')
        P(f's_setprio 0\n{cmp}\ns_cbranch_scc0 {l}\ns_setprio 1'); P.label(l)

    def lds_signal(self, idx):
        self.P(f'v_mov_b32 {vr(vPD)}, 1\ns_mov_b64 exec, 1\ns_waitcnt lgkmcnt(0)\nds_add_u32 {vr(vCNT)}, {vr(vPD)} offset:{4*idx}\ns_mov_b64 exec, -1')

    def lds_wait(self, idx, val):
        P = self.P; lp = P.newlabel('Llw')
        P.label(lp)
        P(f'ds_read_b32 {vr(vPD)}, {vr(vCNT)} offset:{4*idx}\ns_waitcnt lgkmcnt(0)\nv_cmp_gt_u32 vcc, {val}, {vr(vPD)}\ns_cbranch_vccnz {lp}')

    def lds_peek(self, idx):
        return [('ds', ('cnt', idx), f'ds_read_b32 {vr(vPD)}, {vr(vCNT)} offset:{4*idx}')]

    def lds_check(self, idx, val):
        P = self.P; ok = P.newlabel('Llc')
        P(waitstr(lg=self.lg.need(('cnt', idx))))
        P(f'v_cmp_gt_u32 vcc, {val}, {vr(vPD)}\ns_cbranch_vccz {ok}')
        self.lds_wait(idx, val)
        P.label(ok)

    def two_way(self, emit):
        P = self.P
        if self.force_safe:
            emit(True); return
        ls = P.newlabel('Lsafe'); le = P.newlabel('Lpub')
        P(f's_cmp_eq_u32 {sr(sFAST)}, 0\ns_cbranch_scc1 {ls}')
        emit(False)
        P(f's_branch {le}'); P.label(ls)
        emit(True)
        P.label(le)

    def item(self, it):
        P = self.P
        if isinstance(it, str): P(it)
        elif it[0] == 'wvm': P(waitstr(vm=self.vm.need(it[1])))
        elif it[0] == 'wlg': P(waitstr(lg=self.lg.need(it[1])))
        elif it[0] == 'ds': P(it[2]); self.lg.issue(it[1])
        elif it[0] == 'fn': it[1]()

    def checksum(self, dst, src, n):
        ops = [f'v_add3_u32 {vr(dst)}, {sr(sTAG)}, {vr(src)}, {vr(src+1)}']
        for i in range(2, n, 2): ops.append(f'v_add3_u32 {vr(dst)}, {vr(dst)}, {vr(src+i)}, {vr(src+i+1)}')
        return ops

    def retry_tail(self, lp, dn):
        if self.stamps: self.P('s_add_u32 s99, s99, 1')
        self.P(f's_sub_u32 {sr(sBUD)}, {sr(sBUD)}, 1\ns_cbranch_scc0 {lp}\ns_mov_b32 {sr(sBUD)}, 0')
        self.P.label(dn)
        if self.stamps: self.P('s_lshl_b32 s99, s99, 6')

    def prologue(self):
        P = self.P; o = self.o
        vH, vT = 64, 65
        if self.stamps: P('s_memrealtime s[98:99]\ns_memtime s[100:101]')
        P(f"""s_cmp_ge_u32 s2, 256
s_cbranch_scc1 L_end
s_load_dwordx16 s[64:79], s[0:1], 0
s_load_dwordx4 s[80:83], s[0:1], 64
s_getpc_b64 s[84:85]
v_lshrrev_b32 v1, 6, v0
s_lshr_b32 {sr(sT1)}, s2, 3
v_readfirstlane_b32 {sr(sW)}, v1
v_and_b32 {vr(vLANE)}, 63, v0
v_lshlrev_b32 {vr(vL16)}, 4, {vr(vLANE)}""")
        lc = P.newlabel('Lx')
        P(f"""s_cmp_lt_u32 {sr(sW)}, 6
s_cbranch_scc1 {lc}
s_and_b32 {sr(sT0)}, {sr(sW)}, 1
s_lshl_b32 {sr(sT0)}, {sr(sT0)}, 5
s_add_u32 {sr(sT0)}, {sr(sT0)}, {sr(sT1)}
s_lshl_b32 {sr(sT0)}, {sr(sT0)}, 10
s_cmp_ge_u32 {sr(sT0)}, CODE_BYTES
s_cbranch_scc1 {lc}
v_add_u32 v255, {sr(sT0)}, {vr(vL16)}
global_load_dword v255, v255, s[84:85]""")
        P.label(lc)
        P(f"""s_and_b32 {sr(sT0)}, s2, 7
s_and_b32 {sr(sC)}, {sr(sT1)}, 15
s_lshr_b32 {sr(sT1)}, {sr(sT1)}, 4
s_lshl_b32 {sr(sR)}, {sr(sT0)}, 1
s_add_u32 {sr(sR)}, {sr(sR)}, {sr(sT1)}
s_and_b32 {sr(sMT)}, {sr(sW)}, 3
s_lshr_b32 {sr(sHS)}, {sr(sW)}, 2
s_lshl_b32 {sr(sRT)}, {sr(sR)}, 2
s_add_u32 {sr(sRT)}, {sr(sRT)}, {sr(sMT)}
s_lshr_b32 {sr(sROT)}, {sr(sC)}, 1
s_add_u32 {sr(sROT)}, {sr(sROT)}, {sr(sT0)}
s_lshl_b32 {sr(sT1)}, {sr(sT1)}, 1
s_add_u32 {sr(sROT)}, {sr(sROT)}, {sr(sT1)}
s_lshl_b32 {sr(sT1)}, {sr(sC)}, 2
s_add_u32 {sr(sROT)}, {sr(sROT)}, {sr(sT1)}
s_and_b32 {sr(sROT)}, {sr(sROT)}, 7
v_mov_b32 v8, 0
v_mov_b32 v9, 0
v_mov_b32 v10, 0
v_mov_b32 v11, 0
v_mov_b32 v90, 0
v_mov_b32 v91, 0
v_mov_b32 {vr(vCNT)}, {LDS_CNT}
ds_write_b128 {vr(vCNT)}, v[8:11]
ds_write_b128 {vr(vCNT)}, v[8:11] offset:16
ds_write_b128 {vr(vCNT)}, v[8:11] offset:32
v_lshrrev_b32 v28, 3, {vr(vLANE)}
v_lshlrev_b32 v28, 10, v28
v_lshrrev_b32 v29, 4, {vr(vLANE)}
v_xor_b32 v29, v29, {vr(vLANE)}
v_and_b32 v29, 7, v29
v_lshl_add_u32 v28, v29, 4, v28
v_xor_b32 v29, 64, v28
v_add_u32 v30, {2*7168}, v28
v_add_u32 v31, {3*7168}, v29
v_add_u32 v29, 7168, v29
s_lshl_b32 {sr(sLB)}, {sr(sRT)}, 15
s_lshl_b32 {sr(sLR)}, {sr(sROT)}, 7
s_lshl_b32 {sr(sLA)}, {sr(sMT)}, 14
s_add_u32 {sr(sLA)}, {sr(sLA)}, {LDS_WQ}
s_waitcnt lgkmcnt(0)
s_load_dword {sr(sTAG)}, s[82:83], 0""")
        self.srd(sX0, 64, 2097152)
        P(f's_cmp_lg_u32 {sr(sHS)}, 0\ns_cbranch_scc1 L_pro2')
        for g in range(2): self.x0_load(g)
        P.label('L_pro2')
        P('s_barrier')
        self.srd(sWS, 82, WS_USED); self.srd(sWA, 66, 1572864); self.srd(sWoA, 68, 524288)
        self.srd(sWB, 72, 1572864); self.srd(sPhi, 74, 16384); self.srd(sWoB, 76, 524288); self.srd(sOut, 78, 2097152)
        P(f"""s_mul_i32 {sr(sT0)}, {sr(sHS)}, 3
s_xor_b32 {sr(sQT)}, {sr(sMT)}, {sr(sT0)}
s_mov_b32 {sr(sBUD)}, 0x100000
s_mov_b32 {sr(sLO)}, 0xffff
s_mov_b32 {sr(sLO+1)}, 0xffff
s_mov_b32 {sr(sH0)}, -1
s_mov_b32 {sr(sH0+1)}, 0
s_mov_b32 {sr(sFAST)}, 0
s_mov_b32 {sr(sDM)}, 0
s_mov_b32 {sr(sLOG2E)}, {f2u(LOG2E):#x}
s_mov_b32 {sr(sPERM)}, 0x07060302
s_getreg_b32 {sr(sOWNF)}, hwreg(HW_REG_XCC_ID, 0, 4)
v_lshrrev_b32 {vr(vH)}, 5, {vr(vLANE)}
v_and_b32 {vr(vT)}, 31, {vr(vLANE)}
v_lshlrev_b32 {vr(vL4)}, 2, {vr(vLANE)}
v_mov_b32 {vr(vSTAMP)}, 0
v_add_u32 {vr(vTR1)}, {LDS_WQ}, {vr(vL16)}
v_add_u32 {vr(vTR2)}, {LDS_WO}, {vr(vL16)}
s_lshl_b32 {sr(sT0)}, {sr(sMT)}, 7
s_add_u32 {sr(sT0)}, {sr(sT0)}, {LDS_RSTD}
v_lshl_add_u32 {vr(vRA)}, {vr(vT)}, 2, {sr(sT0)}
v_lshl_add_u32 {vr(vRB)}, {vr(vH)}, 4, {sr(sT0)}
v_lshlrev_b32 {vr(vFD)}, 2, {vr(vH)}
v_sub_u32 {vr(vFD)}, {vr(vT)}, {vr(vFD)}
v_cvt_f32_i32 {vr(vFD)}, {vr(vFD)}
v_mul_f32 {vr(vFD)}, {f2u(2.0**100):#x}, {vr(vFD)}
s_waitcnt lgkmcnt(0)
s_and_b32 {sr(sTAG)}, {sr(sTAG)}, -16
s_add_u32 {sr(sTAG)}, {sr(sTAG)}, {TAGC:#x}
s_or_b32 {sr(sOWNF)}, {sr(sOWNF)}, {sr(sTAG)}
s_lshl_b32 {sr(sT0)}, {sr(sR)}, 2
s_add_u32 {sr(sT0)}, {sr(sT0)}, {sr(sQT)}
s_lshl_b32 {sr(sT0)}, {sr(sT0)}, 5
s_lshl_b32 {sr(sT1)}, {sr(sC)}, 1
s_add_u32 {sr(sT0)}, {sr(sT0)}, {sr(sT1)}
s_add_u32 {sr(sT0)}, {sr(sT0)}, {sr(sHS)}
s_lshl_b32 {sr(sOW)}, {sr(sT0)}, 10
s_lshl_b32 {sr(sOF)}, {sr(sT0)}, 2
s_lshr_b32 {sr(sT0)}, {sr(sMT)}, 1
s_add_u32 {sr(sT0)}, {sr(sT0)}, {sr(sR)}
s_sub_u32 {sr(sT0)}, {sr(sT0)}, 2
s_cselect_b32 {sr(sHAS)}, 0, 1
s_lshl_b32 {sr(sT0)}, {sr(sT0)}, 1
s_and_b32 {sr(sT1)}, {sr(sMT)}, 1
s_add_u32 {sr(sT0)}, {sr(sT0)}, {sr(sT1)}
s_lshl_b32 {sr(sT0)}, {sr(sT0)}, 5
s_add_u32 {sr(sT0)}, {sr(sT0)}, {sr(sC)}
s_mul_i32 {sr(sHB)}, {sr(sT0)}, {KV_REC}
s_cmp_eq_u32 {sr(sR)}, 1
s_cselect_b32 {sr(sT0)}, 4, {sr(sQT)}
s_sub_u32 {sr(sC2)}, 8, {sr(sT0)}
s_lshl_b32 {sr(sP2)}, {sr(sT0)}, 12
s_add_u32 {sr(sP2)}, {sr(sP2)}, {LDS_T}
s_mul_i32 {sr(sOWN)}, {sr(sQT)}, {OWN_ST}
s_add_u32 {sr(sOWN)}, {sr(sOWN)}, {LDS_OWN}
s_lshl_b32 {sr(sT0)}, {sr(sRT)}, 4
s_add_u32 {sr(sT0)}, {sr(sT0)}, {sr(sC)}
s_mul_i32 {sr(sKVW)}, {sr(sT0)}, {KV_REC}
s_lshl_b32 {sr(sXW)}, {sr(sT0)}, 11
s_lshl_b32 {sr(sSW)}, {sr(sT0)}, 8
s_lshl_b32 {sr(sXF)}, {sr(sRT)}, 7
s_lshl_b32 {sr(sRB)}, {sr(sRT)}, 15""")
        self.stamp(0, 'start')
        if self.stamps:
            self.stamp_names[60] = 'entry'; P(f'v_writelane_b32 {vr(vSTAMP)}, s98, 60\ns_mov_b32 s99, 0')
        P(f's_cmp_eq_u32 {sr(sHS)}, 0\ns_cbranch_scc1 L_main_0')
        lh = P.newlabel('Lx'); lt = P.newlabel('Lx')
        P(f"""s_lshl_b32 {sr(sT2)}, {sr(sR)}, 7
s_lshl_b32 {sr(sT3)}, {sr(sC)}, 2
s_add_u32 {sr(sT2)}, {sr(sT2)}, {sr(sT3)}
s_add_u32 {sr(sT2)}, {sr(sT2)}, {OFF_XFLAG}
s_cmp_lg_u32 {sr(sMT)}, 0
s_cbranch_scc1 {lh}""")
        self.flag(sT2, sOWNF, True)
        P.label(lh)
        P(f"""v_lshrrev_b32 v28, 2, {vr(vLANE)}
v_and_b32 v29, 3, {vr(vLANE)}
v_lshlrev_b32 v29, 4, v29
s_lshl_b32 {sr(sT0)}, {sr(sC)}, 6
v_add_u32 v29, {sr(sT0)}, v29
v_mul_u32_u24 {vr(vDW)}, 3072, v28
v_add_u32 {vr(vDW)}, {vr(vDW)}, v29
v_lshl_add_u32 {vr(vDO)}, v28, 10, v29
s_lshl_b32 {sr(sLA)}, {sr(sMT)}, 11
s_lshr_b32 {sr(sT0)}, {sr(sMT)}, 1
s_add_u32 {sr(sT0)}, {sr(sT0)}, {sr(sROT)}
s_and_b32 {sr(sT0)}, {sr(sT0)}, 7
s_lshl_b32 {sr(sG0)}, {sr(sT0)}, 16
s_and_b32 {sr(sT0)}, {sr(sMT)}, 1
s_lshl_b32 {sr(sT0)}, {sr(sT0)}, 15
s_add_u32 {sr(sG0)}, {sr(sG0)}, {sr(sT0)}
v_add_u32 {vr(vCH)}, {sr(sLA)}, {vr(vL16)}
v_bfe_u32 v29, {vr(vLANE)}, 2, 2
v_lshl_add_u32 v29, {vr(vH)}, 2, v29
v_lshlrev_b32 {vr(vCS)}, 6, v29
v_bfe_u32 v29, {vr(vLANE)}, 4, 1
v_lshl_add_u32 {vr(vCS)}, v29, 5, {vr(vCS)}
v_and_b32 v29, 3, {vr(vLANE)}
v_lshl_add_u32 {vr(vCS)}, v29, 3, {vr(vCS)}
v_add_u32 {vr(vCS)}, {sr(sLA)}, {vr(vCS)}
v_lshl_add_u32 v31, {vr(vH)}, 8, {vr(vCS)}""")
        for i in range(4): P(f'v_mov_b32 {vr(ONES+i)}, 0x3f803f80')
        self.csp_waddr(0)
        P(f'v_lshl_add_u32 v30, {vr(vH)}, 9, v28')
        for op in self.mask_ops(0) + self.mask_ops(1): P(op)
        avm = Tracker(63)
        if o['wgo']: self.lds_wait(C_WGO, o['wgon'])
        self.stamp(2, 'x g0 / W go')
        for st in range(2): self.dma_w(0, (1, 2), (st,)); avm.issue(st, 4)
        for i in range(4): P(f'v_mov_b32 {vr(64+i)}, 0')
        for st in range(4):
            if st < 2: self.dma_w(0, (1, 2), (st + 2,)); avm.issue(st + 2, 4)
            else:
                if st == 2: self.lds_wait(C_XDONE, 4)
                self.dma_w(0, (0,), (2*st - 4, 2*st - 3)); avm.issue('q', 4)
            P(waitstr(vm=avm.need(st)))
            self.stamp((15, 23, 29, 1)[st], ('x g3 / W st0', 'x g5 / W st1', 'S0 / W st2', 'x0 / W st3')[st])
            ch = [(nt, 2*st + e) for nt in (1, 2) for e in range(2)]
            for nt, u in ch:
                r_ = PARK[nt] + 4*u; of = NT_LDS[nt] + cho(u)
                P(f'ds_read_b64_tr_b16 {vr(r_,2)}, v31 offset:{of}\nds_read_b64_tr_b16 {vr(r_+2,2)}, v31 offset:{of+256}')
            for k, (nt, u) in enumerate(ch):
                P(f's_waitcnt lgkmcnt({6-k})\nds_write_b128 {vr(vCH)}, {vr(PARK[nt]+4*u,4)} offset:{NT_LDS[nt] + cho(u)}')
            self.lds_signal(C_ST + st)
            for nt, u in ch: self.valu_sum(PARK[nt] + 4*u, 64 + 2*(nt - 1))
        P('v_add_f32 v64, v64, v65\nv_add_f32 v66, v66, v67\nv_permlane32_swap_b32 v64, v66\nv_add_f32 v64, v64, v66\nds_write_b32 v30, v64 offset:512')
        self.lds_signal(C_CS)
        self.stamp(14, 'S3 / W done')
        self.dma_w(0, ('o',))
        P(f'v_add_u32 v31, {LDS_WQ}, v31\nv_add_u32 v30, {LDS_WQ}, {vr(vCH)}\nv_mov_b32 v64, 0\nv_mov_b32 v65, 0\ns_waitcnt vmcnt(8)')
        for u0 in (0, 4):
            for u in range(u0, u0 + 4):
                r_ = PARK[0] + 4*u
                P(f'ds_read_b64_tr_b16 {vr(r_,2)}, v31 offset:{cho(u)}\nds_read_b64_tr_b16 {vr(r_+2,2)}, v31 offset:{cho(u)+256}')
            for k, u in enumerate(range(u0, u0 + 4)):
                P(f's_waitcnt lgkmcnt({6-k})\nds_write_b128 v30, {vr(PARK[0]+4*u,4)} offset:{cho(u)}')
        self.lds_signal(C_Q)
        for u in range(8): self.valu_sum(PARK[0] + 4*u, 64)
        P('v_add_f32 v64, v64, v65\nv_mov_b32 v66, v64\nv_permlane32_swap_b32 v64, v66\nv_add_f32 v64, v64, v66\nds_write_b32 v28, v64')
        self.lds_signal(C_CSQ)
        P(f"""s_cmp_lg_u32 {sr(sMT)}, 2
s_cbranch_scc1 {lt}
v_lshlrev_b32 v6, 7, {vr(vLANE)}
s_mul_i32 {sr(sT0)}, s2, {48*128}
buffer_load_dword v26, v6, {sr(sWB,4)}, {sr(sT0)} offen
v_and_b32 v6, 0x780, v6
s_lshl_b32 {sr(sT0)}, s2, 11
buffer_load_dword v26, v6, {sr(sWoB,4)}, {sr(sT0)} offen""")
        P.label(lt)
        P('s_branch L_aux_0')

    def valu_sum(self, frag, acc):
        for i in range(4):
            self.P(f'v_lshlrev_b32 v68, 16, {vr(frag+i)}\nv_and_b32 v69, 0xffff0000, {vr(frag+i)}\nv_add_f32 {vr(acc)}, {vr(acc)}, v68\nv_add_f32 {vr(acc+1)}, {vr(acc+1)}, v69')

    def x0_load(self, g):
        P = self.P
        P(f's_add_u32 m0, {sr(sLA)}, {(g%4)*4096}\ns_add_u32 {sr(sT3)}, {sr(sLB)}, {sr(sLR)}')
        for j in range(4): P(f'buffer_load_dwordx4 {vr(28+j)}, {sr(sX0,4)}, {sr(sT3)} offen offset:{j*1024} lds')
        P(f's_add_u32 {sr(sLR)}, {sr(sLR)}, 128\ns_and_b32 {sr(sLR)}, {sr(sLR)}, 0x3ff')
        self.vm.issue(('x', g), 4)

    def code_prefetch(self, label):
        P = self.P; lc = P.newlabel('Lx')
        P(f"""s_cmp_lg_u32 {sr(sMT)}, 3
s_cbranch_scc1 {lc}
s_lshl_b32 {sr(sT0)}, {sr(sC)}, 10
s_add_u32 {sr(sT0)}, {sr(sT0)}, ({label} - {NAME}_kernel)
s_cmp_ge_u32 {sr(sT0)}, CODE_BYTES
s_cbranch_scc1 {lc}
v_add_u32 v26, {sr(sT0)}, {vr(vL16)}
global_load_dword v26, v26, s[84:85]""")
        P.label(lc)

    def wphi_load(self):
        P = self.P
        P(f"""s_lshl_b32 {sr(sT0)}, {sr(sC)}, 1
s_add_u32 {sr(sT0)}, {sr(sT0)}, {sr(sHS)}
s_lshl_b32 {sr(sT0)}, {sr(sT0)}, 9
v_bfe_u32 v104, {vr(vLANE)}, 3, 2
v_and_b32 v105, 3, {vr(vLANE)}
v_lshl_add_u32 v104, v104, 2, v105
v_lshlrev_b32 v104, 1, v104
v_lshrrev_b32 v105, 5, {vr(vLANE)}
v_lshl_add_u32 v104, v105, 7, v104""")
        for j in range(8):
            d = (j if j < 4 else 8 + j - 4)
            P(f'buffer_load_ushort {vr(96+j)}, v104, {sr(sPhi,4)}, {sr(sT0)} offen offset:{d*32}')

    def wphi_pack(self):
        P = self.P
        for p in range(4): P(f'v_lshl_or_b32 {vr(WPHI+p)}, {vr(96+2*p+1)}, 16, {vr(96+2*p)}')
        P(f'v_bfe_i32 v96, {vr(vLANE)}, 2, 1\nv_and_b32 v96, 0x80008000, v96')
        for p in range(4): P(f'v_xor_b32 {vr(WPHI+p)}, v96, {vr(WPHI+p)}')

    def dma_w(self, typ, nts, stages=range(4)):
        P = self.P; wo = nts == ('o',)
        srd = (sWoA, sWoB)[typ] if wo else (sWA, sWB)[typ]
        for st in stages:
            P(f's_add_u32 {sr(sT0)}, {sr(sG0)}, {st*0x20000}\ns_and_b32 {sr(sT0)}, {sr(sT0)}, 0x7ffff')
            if not wo: P(f's_mul_i32 {sr(sT0)}, {sr(sT0)}, 3')
            for e in range(2):
                for nt in nts:
                    P(f's_add_u32 m0, {sr(sLA)}, {NT_LDS[nt] + cho(2*st + e)}')
                    P(f's_add_u32 {sr(sT1)}, {sr(sT0)}, {e*16384 if wo else e*49152 + nt*1024}')
                    P(f'buffer_load_dwordx4 {vr(vDO if wo else vDW)}, {sr(srd,4)}, {sr(sT1)} offen lds')

    def csp_waddr(self, typ):
        self.P(f"""s_lshl_b32 {sr(sT0)}, {sr(sMT)}, 2
s_add_u32 {sr(sT0)}, {sr(sT0)}, {LDS_CSP + typ*1536}
v_and_b32 v28, 31, {vr(vLANE)}
v_lshl_add_u32 v28, v28, 4, {sr(sT0)}""")

    def chunk_addr(self, region):
        if region < 65536: return vCH, region
        self.P(f'v_add_u32 {vr(vT0)}, {region}, {vr(vCH)}'); return vT0, 0

    def lds_to_regs(self, region, dst):
        a, o = self.chunk_addr(region)
        for u in range(8): self.P(f'ds_read_b128 {vr(dst+4*u,4)}, {vr(a)} offset:{o+cho(u)}')

    def regs_to_lds(self, region, src):
        a, o = self.chunk_addr(region)
        for u in range(8): self.P(f'ds_write_b128 {vr(a)}, {vr(src+4*u,4)} offset:{o+cho(u)}')

    def relayout(self, typ, nts, tmp=64, ntmp=8):
        P = self.P
        if nts != ('o',): self.csp_waddr(typ)
        for k, nt in enumerate(nts):
            region = NT_LDS[nt]
            P(f'v_add_u32 v29, {region}, {vr(vCS)}\nv_add_u32 v30, {region}, {vr(vCH)}')
            acc = ACC0 if k % 2 == 0 else ACC1
            lg = Tracker(15)
            reg = lambda u: tmp + 4*(u % ntmp)
            for u0 in range(0, 8, 4):
                for u in range(u0, u0 + 4):
                    P(f'ds_read_b64_tr_b16 {vr(reg(u),2)}, v29 offset:{cho(u)}\nds_read_b64_tr_b16 {vr(reg(u)+2,2)}, v29 offset:{cho(u)+512}'); lg.issue(u, 2)
                for u in range(u0, u0 + 4):
                    P(waitstr(lg=lg.need(u)))
                    if nt != 'o': self.mfma(acc, ONES, reg(u), None if u == 0 else acc)
                    P(f'ds_write_b128 v30, {vr(reg(u),4)} offset:{cho(u)}'); lg.issue('w')
        for k, nt in enumerate(nts):
            if nt != 'o': P(f'ds_write_b32 v28, {vr(ACC0 if k % 2 == 0 else ACC1)} offset:{nt*512}')
        P('s_waitcnt lgkmcnt(0)')

    def swap_region(self, nt, save):
        P = self.P
        if save:
            self.lds_to_regs(NT_LDS[nt], 32); P('s_waitcnt lgkmcnt(0)')
        self.regs_to_lds(NT_LDS[nt], PARK[nt]); P('s_waitcnt lgkmcnt(0)')
        if save:
            for i in range(32): P(f'v_mov_b32 {vr(PARK[nt]+i)}, {vr(32+i)}')

    def unpack_res(self):
        for p in range(8):
            self.P(f'v_lshlrev_b32 {vr(ACC0+2*p)}, 16, {vr(XRES+p)}\nv_and_b32 {vr(ACC0+2*p+1)}, 0xffff0000, {vr(XRES+p)}')

    def rowmajor_addr(self, dst, tmp, sdst):
        self.P(f"""v_and_b32 {vr(dst)}, 31, {vr(vLANE)}
v_lshlrev_b32 {vr(dst)}, 10, {vr(dst)}
v_lshrrev_b32 {vr(tmp)}, 5, {vr(vLANE)}
v_lshl_add_u32 {vr(dst)}, {vr(tmp)}, 4, {vr(dst)}
s_lshl_b32 {sr(sdst)}, {sr(sC)}, 6
s_add_u32 {sr(sdst)}, {sr(sdst)}, {sr(sRB)}""")

    def publish_x_addr(self, L):
        if L == self.nl: return self.rowmajor_addr(vKA, vVA, sK0)
        self.P(f"""s_add_u32 {sr(sK0)}, {sr(sXW)}, {OFF_X + self.al(L)*0x200000}
s_add_u32 {sr(sK1)}, {sr(sSW)}, {OFF_ST + self.al(L)*0x40000}
s_lshl_b32 {sr(sK2)}, {sr(sC)}, 2
s_add_u32 {sr(sK2)}, {sr(sK2)}, {sr(sXF)}
s_add_u32 {sr(sK2)}, {sr(sK2)}, {OFF_XFLAG + L*0x2000}""")

    def publish_x(self, L):
        P = self.P
        natural = (L % 2 == 0)
        for p in range(8): P(f'v_cvt_pk_bf16_f32 {vr(XRES+p)}, {vr(ACC0+2*p)}, {vr(ACC0+2*p+1)}')
        if natural:
            for a, b in SW4: P(f'v_permlane32_swap_b32 {vr(XRES+a)}, {vr(XRES+b)}')
        if L == self.nl:
            P(f'buffer_store_dwordx4 {vr(XRES,4)}, {vr(vKA)}, {sr(sOut,4)}, {sr(sK0)} offen\nbuffer_store_dwordx4 {vr(XRES+4,4)}, {vr(vKA)}, {sr(sOut,4)}, {sr(sK0)} offen offset:32')
            return
        def emit(sc1):
            m = ' sc1' if sc1 else ''
            P(f'buffer_store_dwordx4 {vr(XRES,4)}, {vr(vL16)}, {sr(sWS,4)}, {sr(sK0)} offen{m}')
            P(f'buffer_store_dwordx4 {vr(XRES+4,4)}, {vr(vL16)}, {sr(sWS,4)}, {sr(sK0)} offen offset:1024{m}')
            for k in range(4):
                P(f'v_pk_add_f32 {vr(64+2*k,2)}, {vr(ACC0+4*k,2)}, {vr(ACC0+4*k+2,2)}')
            P(f'v_pk_mul_f32 v[72:73], {vr(ACC0,2)}, {vr(ACC0,2)}\nv_pk_mul_f32 v[74:75], {vr(ACC0+2,2)}, {vr(ACC0+2,2)}')
            P('v_pk_add_f32 v[64:65], v[64:65], v[66:67]\nv_pk_add_f32 v[68:69], v[68:69], v[70:71]')
            for k in range(2, 8): P(f'v_pk_fma_f32 {vr(72+2*(k&1),2)}, {vr(ACC0+2*k,2)}, {vr(ACC0+2*k,2)}, {vr(72+2*(k&1),2)}')
            P('v_pk_add_f32 v[64:65], v[64:65], v[68:69]\nv_pk_add_f32 v[72:73], v[72:73], v[74:75]')
            P('v_add_f32 v64, v64, v65\nv_add_f32 v66, v72, v73\nv_permlane32_swap_b32 v64, v66\nv_add_f32 v64, v64, v66')
            P(f'buffer_store_dword v64, {vr(vL4)}, {sr(sWS,4)}, {sr(sK1)} offen{m}')
            self.flag(sK2, sTAG, sc1, wait='s_waitcnt vmcnt(0)')
        self.two_way(emit)
        if natural:
            for a, b in SW4: P(f'v_permlane32_swap_b32 {vr(XRES+a)}, {vr(XRES+b)}')

    def frag_setup(self, base_off):
        self.P(f's_add_u32 {sr(sLB)}, {sr(sRB)}, {base_off}\ns_lshl_b32 {sr(sLR)}, {sr(sROT)}, 12\ns_add_u32 {sr(sT3)}, {sr(sLB)}, {sr(sLR)}')

    def frag_load(self, ks):
        P = self.P
        P(f'buffer_load_dwordx4 {vr(XF+4*ks,4)}, {vr(vL16)}, {sr(sWS,4)}, {sr(sT3)} offen offset:{(ks&3)*1024} sc1')
        if ks < 28:
            if ks & 3 == 0: P(f's_add_u32 {sr(sLR)}, {sr(sLR)}, 4096')
            if ks & 3 == 1: P(f's_and_b32 {sr(sLR)}, {sr(sLR)}, 0x7fff')
            if ks & 3 == 3: P(f's_add_u32 {sr(sT3)}, {sr(sLB)}, {sr(sLR)}')
        self.vm.issue(('x', ks))

    def mask_ops(self, part):
        ops = []
        if part == 0:
            ops.append(f'v_mov_b32 {vr(VV)}, 0x3f803f80')
            for i in range(1, 8): ops.append(f'v_mov_b32 {vr(VV+i)}, {vr(VV)}')
        for i in range(16):
            ci = 8*(i//4) + i % 4
            if part == 0: ops.append(f'v_subrev_f32 {vr(CDIAG+i)}, {f2u(ci*2.0**100):#x}, {vr(vFD)}')
            else: ops.append(f'v_sub_f32 {vr(CFIRST+i)}, {f2u((ci-1)*2.0**100):#x}, {vr(vFD)}')
        for i in range(16):
            c_ = (CDIAG if part == 0 else CFIRST) + i
            ops.append(f'v_min_f32 {vr(c_)}, 0, {vr(c_)}')
        if part == 0:
            for i in range(16): ops.append(f'v_mov_b32 {vr(aO+i)}, 0')
        return ops

    def stats_final(self, typ):
        a, b = STAT, STAT + 1
        it = f"""v_mov_b32 {vr(b)}, {vr(a)}
v_mov_b32 {vr(XEXT+2)}, 0
v_mov_b32 {vr(XEXT+3)}, 0
v_permlane32_swap_b32 {vr(a)}, {vr(b)}
v_mul_f32 {vr(a)}, {f2u(1/512):#x}, {vr(a)}
v_mul_f32 {vr(b)}, {f2u(1/512):#x}, {vr(b)}
v_fma_f32 {vr(b)}, -{vr(a)}, {vr(a)}, {vr(b)}
v_max_f32 {vr(b)}, 0, {vr(b)}
v_add_f32 {vr(b)}, {f2u(1e-5):#x}, {vr(b)}
v_rsq_f32 {vr(vRSTD)}, {vr(b)}
v_cndmask_b32 {vr(a)}, 0, {vr(a)}, {sr(sH0,2)}
v_and_b32 {vr(a+2)}, 0xffff0000, {vr(a)}
v_sub_f32 {vr(a+3)}, {vr(a)}, {vr(a+2)}
v_cvt_pk_bf16_f32 {vr(XEXT)}, -{vr(a+2)}, -{vr(a+2)}
v_cvt_pk_bf16_f32 {vr(XEXT+1)}, -{vr(a+3)}, 0""".split('\n')
        it.append(('ds', 'rw', f'ds_write_b32 {vr(vRA)}, {vr(vRSTD)}'))
        for q in range(4): it.append(('ds', 'rt', f'ds_read_b128 {vr(STAT+4*q,4)}, {vr(vRB)} offset:{q*32}'))
        if typ == 1: it.append(f'v_mul_f32 {vr(vRSTD)}, {sr(sLOG2E)}, {vr(vRSTD)}')
        return it

    def wext_items(self, w, tag):
        return [('wlg', tag)] + f"""v_add_f32 {vr(w)}, {vr(w)}, {vr(w+1)}
v_add_f32 {vr(w+2)}, {vr(w+2)}, {vr(w+3)}
v_add_f32 {vr(w)}, {vr(w)}, {vr(w+2)}
v_and_b32 {vr(w+2)}, 0xffff0000, {vr(w)}
v_sub_f32 {vr(w+3)}, {vr(w)}, {vr(w+2)}
v_cvt_pk_bf16_f32 {vr(w)}, {vr(w+2)}, {vr(w+3)}
v_cvt_pk_bf16_f32 {vr(w+1)}, {vr(w+2)}, 0
v_mov_b32 {vr(w+2)}, 0
v_mov_b32 {vr(w+3)}, 0""".split('\n')

    def csp_addr(self, typ):
        self.P(f'v_and_b32 {vr(vT0)}, 0x1f0, {vr(vL16)}\nv_add_u32 {vr(vT0)}, {LDS_CSP + typ*1536}, {vr(vT0)}')

    def phi_addr(self):
        return f"""v_sub_u32 {vr(vVA)}, {vr(vKA)}, {vr(vL16)}
v_and_b32 {vr(vPD)}, 31, {vr(vLANE)}
v_lshl_add_u32 {vr(vVA)}, {vr(vPD)}, 5, {vr(vVA)}
v_lshrrev_b32 {vr(vPD)}, 5, {vr(vLANE)}
v_lshl_add_u32 {vr(vVA)}, {vr(vPD)}, 4, {vr(vVA)}""".split('\n')

    def main_kv(self, L):
        P = self.P; typ = L % 2; o = self.o; XD = o['xd']
        vm, lg = self.vm, self.lg
        NR = 3
        def rdk(ks):
            P(f'ds_read_b128 {vr(RING + 8*(ks % NR),4)}, {vr(vL16)} offset:{LDS_WK+ks*1024}'); lg.issue(('k', ks))
        def rdv(ks):
            P(f'ds_read_b128 {vr(RING + 8*(ks % NR) + 4,4)}, {vr(vL16)} offset:{LDS_WV+ks*1024}'); lg.issue(('v', ks))
        csrd = [('ds', 'cs', f'ds_read_b128 {vr(WEXTK,4)}, {vr(vT0)} offset:512'), ('ds', 'cs', f'ds_read_b128 {vr(WEXTV,4)}, {vr(vT0)} offset:1024')]
        wext = self.wext_items(WEXTK, 'cs') + self.wext_items(WEXTV, 'cs')
        addr = [f'v_add_u32 {vr(vKA)}, {sr(sOWN)}, {vr(vL16)}']
        if typ == 0:
            La = L // 2
            addr += [f's_add_u32 {sr(sK0)}, {sr(sKVW)}, {OFF_KV + La*KV_L}', f's_add_u32 {sr(sK2)}, {sr(sK0)}, 4096',
                     f's_add_u32 {sr(sH1)}, {sr(sHB)}, {OFF_KV + La*KV_L}', f's_add_u32 {sr(sH2)}, {sr(sH1)}, {16*KV_REC}']
        else: addr += self.phi_addr()
        extras = []
        def pop(n):
            for _ in range(n):
                if extras: self.item(extras.pop(0))
        def kstep(ks, pre=None):
            b = RING + 8*(ks % NR)
            P(waitstr(vm=vm.need(('x', ks)) if L > 0 else None, lg=lg.need(('k', ks))))
            self.mfma(ACC0, b, XF + 4*ks, None if ks == 0 else ACC0)
            if pre: pre()
            if ks + NR < 32: rdk(ks + NR)
            if L > 0 and ks + XD < 32: self.frag_load(ks + XD); pop(1)
            else: pop(3)
            P(waitstr(lg=lg.need(('v', ks))))
            self.mfma(ACC1, XF + 4*ks, b + 4, None if ks == 0 else ACC1)
            if ks + NR < 32: rdv(ks + NR)
            if L > 0 and 1 <= ks < 9:
                for i in range(2*(ks-1), 2*(ks-1) + 2):
                    P(f'buffer_load_dword {vr(STAT+i)}, {vr(vL4)}, {sr(sWS,4)}, {sr(sT1)} offen offset:{i*256} sc1'); vm.issue('st')
            pop(3)
        self.csp_addr(typ)
        if L == 0:
            AD = WEXTV; X0D = o['x0d']
            P(f"""v_bfe_u32 {vr(AD)}, {vr(vLANE)}, 1, 3
v_xor_b32 {vr(AD)}, {vr(AD)}, v64
v_lshlrev_b32 {vr(AD)}, 4, {vr(AD)}
v_lshl_add_u32 {vr(AD)}, v65, 7, {vr(AD)}
v_add_u32 {vr(AD)}, {sr(sLA)}, {vr(AD)}
v_xor_b32 {vr(AD+1)}, 32, {vr(AD)}
v_xor_b32 {vr(AD+2)}, 64, {vr(AD)}
v_xor_b32 {vr(AD+3)}, 96, {vr(AD)}
s_mov_b32 {sr(sSEL0)}, 0x3f803f80""")
            for i in range(4): P(f'v_mov_b32 {vr(STAT+i)}, 0')
            for it in addr: self.item(it)
            for g in range(2, X0D): self.x0_load(g)
            def dots(g):
                for i in range(16):
                    r_ = XF + 16*g + i
                    P(f'v_dot2_f32_bf16 {vr(STAT+(i&1))}, {vr(r_)}, {sr(sSEL0)}, {vr(STAT+(i&1))}\nv_dot2_f32_bf16 {vr(STAT+2+(i&1))}, {vr(r_)}, {vr(r_)}, {vr(STAT+2+(i&1))}')
            for g in range(8):
                P(waitstr(vm=vm.need(('x', g))))
                for s_ in range(4): P(f'ds_read_b128 {vr(XF+16*g+4*s_,4)}, {vr(AD+s_)} offset:{(g%4)*4096}')
                if g: P('s_waitcnt lgkmcnt(4)')
                if g + X0D < 8: self.x0_load(g + X0D)
                if g: dots(g - 1)
                if g == o['wgo'] - 1: self.lds_signal(C_WGO)
                if g in (0, 3, 5): self.stamp({0: 2, 3: 15, 5: 23}[g], {0: 'x g0 / W go', 3: 'x g3 / W st0', 5: 'x g5 / W st1'}[g])
            self.lds_signal(C_XDONE)
            lg.reset()
            for it in self.lds_peek(C_ST): self.item(it)
            dots(7)
            self.stamp(1, 'x0 / W st3')
            self.lds_check(C_ST, 4)
            self.stamp(29, 'S0 / W st2')
            for ks in range(NR): rdk(ks); rdv(ks)
            P(f'v_add_f32 {vr(STAT)}, {vr(STAT)}, {vr(STAT+1)}\nv_add_f32 {vr(STAT+2)}, {vr(STAT+2)}, {vr(STAT+3)}')
            P(f'v_permlane32_swap_b32 {vr(STAT)}, {vr(STAT+2)}\nv_add_f32 {vr(STAT)}, {vr(STAT)}, {vr(STAT+2)}')
            extras += self.stats_final(typ)
            pop(10)
            for ks in range(32):
                pre = None
                st = ks // 8 + 1
                if ks % 8 == 2: extras[0:0] = self.lds_peek(C_ST + st if st < 4 else C_CS)
                if ks % 8 == 5 and st < 4: pre = lambda: self.lds_check(C_ST + st, 4)
                if ks == 28:
                    pre = lambda: self.lds_check(C_CS, 4)
                    extras += csrd + self.lds_peek(C_Q) + ['s_nop 0']*3 + wext
                kstep(ks, pre)
            pop(100)
        else:
            vm.reset(); lg.reset()
            P(f"""v_and_b32 {vr(vPA)}, 60, {vr(vL4)}
s_add_u32 {sr(sT2)}, {sr(sXF)}, {OFF_XFLAG + L*0x2000}
s_lshr_b32 {sr(sT1)}, {sr(sRB)}, 3
s_add_u32 {sr(sT1)}, {sr(sT1)}, {OFF_ST + self.al(L)*0x40000}""")
            self.frag_setup(OFF_X + self.al(L)*0x200000)
            P('s_barrier')
            self.stamp(14 + L*14 if L < 3 else 57, f'L{L} B0')
            for it in csrd: self.item(it)
            for ks in range(NR): rdk(ks); rdv(ks)
            for it in addr + wext: self.item(it)
            self.poll(sT2)
            self.stamp(2 + L*14, f'L{L} xflags')
            for ks in range(XD): self.frag_load(ks)
            late = [('wvm', 'st')]
            for step in (8, 4, 2, 1):
                for i in range(step): late.append(f'v_add_f32 {vr(STAT+i)}, {vr(STAT+i)}, {vr(STAT+i+step)}')
            late += self.stats_final(typ)
            for ks in range(32):
                if ks == 9 + XD: extras += late
                kstep(ks)
            pop(100)
        self.mfma(ACC0, WEXTK, XEXT, ACC0)
        self.mfma(ACC1, XEXT, WEXTV, ACC1)

    def q_prefetch(self, NS=5):
        for ks in range(NS): self.q_rd(ks)

    def q_rd(self, ks, NS=5):
        self.P(f'ds_read_b128 {vr(RING + 4*(ks % NS),4)}, {vr(vTR1)} offset:{ks*1024}'); self.lg.issue(('w', ks))

    def main_qpass(self, L, acc, fill, at=None, pre_write=None, rate=4):
        P = self.P; typ = L % 2; lg = self.lg; NS = 5
        fill = list(fill)
        for ks in range(32):
            P(waitstr(lg=lg.need(('w', ks))))
            self.mfma(acc, RING + 4*(ks % NS), XF + 4*ks, None if ks == 0 else acc)
            if ks + NS < 32: self.q_rd(ks + NS)
            n = 0
            while fill and n < rate:
                it = fill.pop(0); self.item(it)
                if isinstance(it, str) or it[0] == 'ds': n += 1
            if at and ks in at: at[ks]()
        for it in fill: self.item(it)
        self.mfma(acc, WEXTQ, XEXT, acc)
        if at and 32 in at: at[32]()
        order = (4, 5, 6, 7, 0, 1, 2, 3)
        for p in order:
            if typ == 0: P(f'v_mul_f32 {vr(acc+2*p)}, {vr(vRSTD)}, {vr(acc+2*p)}\nv_mul_f32 {vr(acc+2*p+1)}, {vr(vRSTD)}, {vr(acc+2*p+1)}')
            P(f'v_cvt_pk_bf16_f32 {vr(aQ+p)}, {vr(acc+2*p)}, {vr(acc+2*p+1)}')
            if p == 7:
                if pre_write: pre_write()
                P(f'ds_write_b128 {vr(vKA)}, {vr(aQ+4,4)} offset:5120')

    def tile_addr(self, sbase):
        return f"""s_lshl_b32 {sr(sT1)}, {sr(sHS)}, 10
s_add_u32 {sr(sT1)}, {sr(sT1)}, {sr(sbase)}
v_add_u32 {vr(vKA)}, {sr(sT1)}, {vr(vL16)}
s_lshl_b32 {sr(sT1)}, {sr(sHS)}, 8
v_xor_b32 {vr(vVA)}, {sr(sT1)}, {vr(vL16)}
v_add_u32 {vr(vVA)}, {sr(sbase)}, {vr(vVA)}"""

    def trickle_setup(self):
        self.P(f's_mov_b32 {sr(sDM)}, 4\ns_mov_b32 {sr(sDG)}, {sr(sG0)}\ns_mov_b32 {sr(sDL)}, {sr(sLA)}')

    def trickle(self):
        P = self.P; sk = P.newlabel('Lsk')
        P(f's_cmp_eq_u32 {sr(sDM)}, 0\ns_cbranch_scc1 {sk}\ns_mul_i32 {sr(sT0)}, {sr(sDG)}, 3')
        for e in range(2):
            for nt in (1, 2):
                P(f's_add_u32 m0, {sr(sDL)}, {NT_LDS[nt] + e*1024}\ns_add_u32 {sr(sT1)}, {sr(sT0)}, {e*49152 + nt*1024}')
                P(f'buffer_load_dwordx4 {vr(vDW)}, {sr(sWB,4)}, {sr(sT1)} offen lds')
        P(f"""s_add_u32 {sr(sDL)}, {sr(sDL)}, 8192
s_add_u32 {sr(sDG)}, {sr(sDG)}, 0x20000
s_and_b32 {sr(sDG)}, {sr(sDG)}, 0x7ffff
s_sub_u32 {sr(sDM)}, {sr(sDM)}, 1""")
        P.label(sk)

    def attn_loop(self, cfirst, trickle=False):
        P = self.P; lp = P.newlabel('Latt')
        if self.o['trunc']: pk = lambda d, e: f'v_perm_b32 {vr(d)}, {vr(e+1)}, {vr(e)}, {sr(sPERM)}'
        else: pk = lambda d, e: f'v_cvt_pk_bf16_f32 {vr(d)}, {vr(e)}, {vr(e+1)}'
        rdv = f's_mov_b64 exec, {sr(sLO,2)}\nds_read_b128 {vr(VV,4)}, {vr(vVA)} offset:2048\nds_read_b128 {vr(VV+4,4)}, {vr(vVA)} offset:3072\ns_mov_b64 exec, -1'
        P(f'ds_read_b128 {vr(aK,4)}, {vr(vKA)}'); P(rdv)
        P(f'v_add_u32 {vr(vKA)}, {sr(sSTEP)}, {vr(vKA)}\nv_add_u32 {vr(vVA)}, {sr(sSTEP)}, {vr(vVA)}\ns_waitcnt lgkmcnt(2)')
        cfirst()
        P(f'ds_read_b128 {vr(aK,4)}, {vr(vKA)}\nv_add_u32 {vr(vKA)}, {sr(sSTEP)}, {vr(vKA)}\ns_nop 9')
        P.label(lp)
        for i in range(8): P(f'v_exp_f32 {vr(aE+i)}, {vr(aS+i)}')
        for p in range(4): P(pk(aP + p, aE + 2*p))
        for i in range(8, 10): P(f'v_exp_f32 {vr(aE+i-8)}, {vr(aS+i)}')
        P('s_waitcnt lgkmcnt(0)')
        self.mfma(aO, VV, aP, aO)
        for i in range(10, 16): P(f'v_exp_f32 {vr(aE+i-8)}, {vr(aS+i)}')
        self.mfma(aS, aK, aQ, None)
        P(f'ds_read_b128 {vr(aK,4)}, {vr(vKA)}')
        for p in range(4): P(pk(aP + 4 + p, aE + 2*p))
        P(f'v_add_u32 {vr(vKA)}, {sr(sSTEP)}, {vr(vKA)}\ns_sub_u32 {sr(sCNT)}, {sr(sCNT)}, 1')
        self.mfma(aO, VV + 4, aP + 4, aO)
        P(rdv)
        if trickle: self.trickle()
        P(f'v_add_u32 {vr(vVA)}, {sr(sSTEP)}, {vr(vVA)}\ns_cmp_lg_u32 {sr(sCNT)}, 0\ns_cbranch_scc1 {lp}')

    def publish_o_addr(self, L):
        return [f's_add_u32 {sr(sK0)}, {sr(sOW)}, {OFF_O + self.al(L)*0x200000}', f's_add_u32 {sr(sK1)}, {sr(sOF)}, {OFF_OFLAG + L*0x2000}']

    def publish_o(self, L, O, eps):
        P = self.P
        if eps: P(f'v_add_f32 {vr(O+8)}, {f2u(eps):#x}, {vr(O+8)}')
        P(f'v_rcp_f32 {vr(O+8)}, {vr(O+8)}')
        for p in range(4): P(f'v_pk_mul_f32 {vr(O+2*p,2)}, {vr(O+2*p,2)}, {vr(O+8,2)} op_sel_hi:[1,0]')
        for p in range(4): P(f'v_cvt_pk_bf16_f32 {vr(aP+p)}, {vr(O+2*p)}, {vr(O+2*p+1)}')
        def emit(sc1):
            P(f'buffer_store_dwordx4 {vr(aP,4)}, {vr(vL16)}, {sr(sWS,4)}, {sr(sK0)} offen' + (' sc1' if sc1 else ''))
            self.flag(sK1, sTAG, sc1, wait='s_waitcnt vmcnt(0)')
        self.two_way(emit)

    def main_outproj(self, L):
        P = self.P; vm, lg = self.vm, self.lg; OD = self.o['od']
        vm.reset(); lg.reset()
        if L == 0:
            self.rowmajor_addr(vVA, vKA, sT0)
            P(f'buffer_load_dwordx4 {vr(XRES,4)}, {vr(vVA)}, {sr(sX0,4)}, {sr(sT0)} offen\nbuffer_load_dwordx4 {vr(XRES+4,4)}, {vr(vVA)}, {sr(sX0,4)}, {sr(sT0)} offen offset:32')
            self.wphi_load()
        NS = 6
        def rd(ks):
            P(f'ds_read_b128 {vr(RING + 4*(ks % NS),4)}, {vr(vTR2)} offset:{ks*1024}'); lg.issue(('w', ks))
        for ks in range(NS): rd(ks)
        P(f'v_and_b32 {vr(vPA)}, 124, {vr(vL4)}\ns_add_u32 {sr(sT2)}, {sr(sXF)}, {OFF_OFLAG + L*0x2000}')
        self.frag_setup(OFF_O + self.al(L)*0x200000)
        self.publish_x_addr(L + 1)
        if L == 0:
            P('s_waitcnt vmcnt(0)')
            for a, b in SW4: P(f'v_permlane32_swap_b32 {vr(XRES+a)}, {vr(XRES+b)}')
            self.wphi_pack()
        self.unpack_res()
        self.poll(sT2)
        self.stamp(11 + L*14, f'L{L} oflags')
        for ks in range(OD): self.frag_load(ks)
        for ks in range(32):
            P(waitstr(vm=vm.need(('x', ks)), lg=lg.need(('w', ks))))
            self.mfma(ACC0, RING + 4*(ks % NS), XF + 4*ks, ACC0)
            if ks + OD < 32: self.frag_load(ks + OD)
            if ks + NS < 32: rd(ks + NS)
        self.stamp(12 + L*14, f'L{L} outproj')
        self.publish_x(L + 1)
        self.stamp(13 + L*14, f'L{L} xpub')

    def aux_head(self, L):
        P = self.P
        if L + 1 < self.nl: self.code_prefetch(f'L_main_{L+1}')
        if L == 1:
            self.lds_to_regs(LDS_WO, PARK['o']); P('s_waitcnt lgkmcnt(0)')
        else: self.swap_region('o', L + 1 < self.nl)

    def aux_tail(self, L):
        P = self.P
        if L + 1 >= self.nl: return
        if L % 2 == 0: wait_att = lambda: self.lds_wait(C_ATT, 8*(L//2 + 1))
        else: wait_att = lambda: None
        if L == 0:
            lp = P.newlabel('Lx'); P.label(lp)
            self.trickle()
            P(f's_cmp_lg_u32 {sr(sDM)}, 0\ns_cbranch_scc1 {lp}')
            self.wphi_load()
            wait_att()
            self.dma_w(1, (0,))
            P('s_waitcnt vmcnt(8)')
            self.wphi_pack()
            self.relayout(1, (1, 2))
            P('s_waitcnt vmcnt(0)')
            self.relayout(1, (0,))
            return
        save = L + 2 < self.nl
        self.swap_region(1, save); self.swap_region(2, save)
        wait_att()
        self.swap_region(0, save)

    def layerA(self, L):
        P = self.P; sb = L * 14; o = self.o; lg = self.lg
        j1 = f'L_j1_{L}'; j2 = f'L_j2_{L}'; ax2 = f'L_ax2_{L}'; ax3 = f'L_ax3_{L}'
        P.label(f'L_main_{L}')
        self.main_kv(L)
        self.stamp(3 + sb, f'L{L} kvpass')
        if L == 0: self.lds_check(C_Q, 4)
        self.q_prefetch()
        P(waitstr(lg=lg.need('rt')))
        for p in range(8):
            P(f'v_pk_mul_f32 {vr(ACC0+2*p,2)}, {vr(ACC0+2*p,2)}, {vr(vRSTD,2)} op_sel_hi:[1,0]')
        for p in range(8): P(f'v_cvt_pk_bf16_f32 {vr(PKV+p)}, {vr(ACC0+2*p)}, {vr(ACC0+2*p+1)}')
        st = lambda f: f'buffer_store_dwordx4 {vr(PKV+4*f,4)}, {vr(vL16)}, {sr(sWS,4)}, {sr(sK0)} offen offset:{f*1024} sc1'
        fill = [st(0), st(1)]
        for hf in range(2):
            fill += [f'v_mul_f32 {vr(ACC1+i)}, {vr(STAT+i)}, {vr(ACC1+i)}' for i in range(8*hf, 8*hf + 8)]
            fill += [f'v_cvt_pk_bf16_f32 {vr(PKV+8+p)}, {vr(ACC1+2*p)}, {vr(ACC1+2*p+1)}' for p in range(4*hf, 4*hf + 4)]
            fill.append(st(2 + hf))
        fill += self.checksum(vPA, PKV, 16) + [f'buffer_store_dword {vr(vPA)}, {vr(vL4)}, {sr(sWS,4)}, {sr(sK2)} offen sc1']
        fill += [('ds', 'own', f'ds_write_b128 {vr(vKA)}, {vr(PKV+4*f,4)} offset:{f*1024}') for f in range(4)]
        m0 = self.mask_ops(0)
        if L == 0: fill += m0[:30] + self.lds_peek(C_CSQ) + m0[30:44] + [('fn', lambda: self.lds_check(C_CSQ, 4))]
        else: fill += m0[:44]
        fill += [('ds', 'cs', f'ds_read_b128 {vr(WEXTQ,4)}, {vr(vT0)}')] + m0[44:]
        fill += [f'v_mul_f32 {vr(vRSTD)}, {f2u(0.25*LOG2E):#x}, {vr(vRSTD)}'] + self.wext_items(WEXTQ, 'cs')
        def halo_loads():
            P(f'v_add_u32 v162, 4096, {vr(vL4)}')
            for t_, sh in ((0, sH1), (1, sH2)):
                for f in range(4): P(f'buffer_load_dwordx4 {vr(aH+16*t_+4*f,4)}, {vr(vL16)}, {sr(sWS,4)}, {sr(sh)} offen offset:{f*1024} sc1')
                P(f'buffer_load_dword {vr(160+t_)}, v162, {sr(sWS,4)}, {sr(sh)} offen sc1')
        def halo_first():
            l = P.newlabel('Lx')
            P(f's_cmp_eq_u32 {sr(sHAS)}, 0\ns_cbranch_scc1 {l}')
            halo_loads()
            P.label(l)
        common = self.publish_o_addr(L) + [f's_add_u32 {sr(sCNT)}, {sr(sQT)}, 1', f's_mov_b32 {sr(sSTEP)}, {-OWN_ST}']
        def gap32():
            for it in common + [f'v_mov_b32 {vr(vVA)}, {vr(vKA)}']: P(it)
            if o['halo_at'] == 32: halo_first()
        at = {32: gap32}
        if o['halo_at'] < 32: at[o['halo_at']] = halo_first
        self.main_qpass(L, ACC0, fill, at=at)
        if o['halo_at'] == 33: halo_first()
        if o['prio']: self.prio_if(f's_cmp_ge_u32 {sr(sQT)}, 2')
        self.stamp(5 + sb, f'L{L} preB1')
        P(f's_waitcnt lgkmcnt(0)\ns_barrier\ns_branch {j1}')
        P.label(f'L_aux_{L}')
        if L > 0:
            P('s_barrier')
            self.aux_head(L)
            for op in self.mask_ops(0) + self.mask_ops(1): P(op)
        else: self.trickle_setup()
        P(self.tile_addr(sOWN))
        for it in common: P(it)
        if o['prio']: self.prio_if(f's_cmp_ge_u32 {sr(sQT)}, 2')
        self.stamp(5 + sb, f'L{L} preB1')
        P('s_barrier')
        P(f'ds_read_b128 {vr(aQ,4)}, {vr(vKA)} offset:4096')
        P.label(j1)
        self.attn_loop(lambda: self.mfma(aS, aK, aQ, CDIAG))
        P(self.tile_addr(sP2))
        P(f's_mov_b32 {sr(sCNT)}, {sr(sC2)}\ns_mov_b32 {sr(sSTEP)}, 4096')
        if o['prio']: self.prio_if(f's_cmp_lt_u32 {sr(sQT)}, 2')
        self.stamp(6 + sb, f'L{L} own attn')
        lp = P.newlabel('Lhalo'); ck = P.newlabel('Lhchk'); dn = P.newlabel('Lhdone')
        P(f's_cmp_lg_u32 {sr(sHS)}, 0\ns_cbranch_scc1 {ax2 if L == 0 else j2}')
        if o['halo_at'] > 33: halo_first()
        for op in self.mask_ops(1): P(op)
        P(f"""s_cmp_eq_u32 {sr(sHAS)}, 0
s_cbranch_scc1 {j2}
s_lshl_b32 {sr(sT3)}, {sr(sMT)}, 13
s_add_u32 {sr(sT3)}, {sr(sT3)}, {LDS_T}
v_add_u32 {vr(vT0)}, {sr(sT3)}, {vr(vL16)}
s_branch {ck}""")
        P.label(lp)
        halo_loads()
        P.label(ck)
        for t_ in range(2):
            cs = self.checksum(163 + t_, aH + 16*t_, 16)
            for f in range(4):
                P(f's_waitcnt vmcnt({9-5*t_-f})\nds_write_b128 {vr(vT0)}, {vr(aH+16*t_+4*f,4)} offset:{(4*t_+f)*1024}')
                P(cs[2*f]); P(cs[2*f + 1])
            P(f's_waitcnt vmcnt({5-5*t_})\nv_cmp_ne_u32 {sr(sM+2*t_,2)}, {vr(160+t_)}, {vr(163+t_)}')
        P(f's_or_b64 {sr(sM,2)}, {sr(sM,2)}, {sr(sM+2,2)}\ns_cbranch_scc0 {dn}')
        self.retry_tail(lp, dn)
        self.stamp(7 + sb, f'L{L} halo ok')
        if L == 0:
            P(f's_branch {j2}'); P.label(ax2)
            P('s_waitcnt vmcnt(0) lgkmcnt(0)')
            lt = P.newlabel('Lx')
            P(f"""s_cmp_lg_u32 {sr(sMT)}, 1
s_cbranch_scc1 {lt}
v_lshrrev_b32 v25, 4, {vr(vLANE)}
v_and_b32 v5, 15, {vr(vLANE)}
v_lshlrev_b32 v5, 7, v5
v_lshl_add_u32 v5, v25, 15, v5
s_lshl_b32 {sr(sT0)}, {sr(sR)}, 17
s_lshl_b32 {sr(sT1)}, {sr(sC)}, 11
s_add_u32 {sr(sT0)}, {sr(sT0)}, {sr(sT1)}
s_add_u32 {sr(sT1)}, {sr(sT0)}, {OFF_O}
buffer_load_dword v26, v5, {sr(sWS,4)}, {sr(sT1)} offen sc1
s_add_u32 {sr(sT1)}, {sr(sT0)}, {OFF_X + self.al(1)*0x200000}
buffer_load_dword v26, v5, {sr(sWS,4)}, {sr(sT1)} offen sc1
v_and_b32 v5, 128, v5
v_lshl_add_u32 v5, v25, 12, v5
s_lshr_b32 {sr(sT0)}, {sr(sT0)}, 3
s_add_u32 {sr(sT1)}, {sr(sT0)}, {OFF_ST + self.al(1)*0x40000}
buffer_load_dword v26, v5, {sr(sWS,4)}, {sr(sT1)} offen sc1""")
            P.label(lt)
            self.relayout(0, ('o',), tmp=aS, ntmp=4)
            if not self.force_safe:
                P(f"""s_cmp_lg_u32 {sr(sMT)}, 0
s_cbranch_scc1 {j2}
v_and_b32 {vr(vPA)}, 60, {vr(vL4)}
s_lshl_b32 {sr(sT2)}, {sr(sR)}, 7
s_add_u32 {sr(sT2)}, {sr(sT2)}, {OFF_XFLAG}""")
                self.poll(sT2, masked=True)
                P(f"""v_cmp_ne_u32 vcc, {sr(sOWNF)}, {vr(vPD)}
s_cmp_eq_u64 vcc, 0
s_cselect_b32 {sr(sFAST)}, 1, 0
v_mov_b32 {vr(vT0)}, {sr(sFAST)}
ds_write_b32 {vr(vCNT)}, {vr(vT0)} offset:44""")
        P.label(j2)
        lskip = P.newlabel('Lnohalo'); l1 = P.newlabel('Lr1'); l2 = P.newlabel('Lr2')
        P('s_waitcnt lgkmcnt(0)\ns_barrier')
        if L == 0 and not self.force_safe: P(f'ds_read_b32 {vr(vPD)}, {vr(vCNT)} offset:44')
        self.stamp(8 + sb, f'L{L} B2')
        P(f's_cmp_eq_u32 {sr(sR)}, 0\ns_cbranch_scc1 {lskip}')
        def first():
            P(f's_cmp_eq_u32 {sr(sR)}, 1\ns_cbranch_scc1 {l1}')
            self.mfma(aS, aK, aQ, CFIRST)
            P(f's_branch {l2}'); P.label(l1)
            self.mfma(aS, aK, aQ, None)
            P.label(l2)
        self.attn_loop(first, trickle=(L == 0))
        P.label(lskip)
        if L == 0 and not self.force_safe: P(f's_waitcnt lgkmcnt(0)\nv_readfirstlane_b32 {sr(sFAST)}, {vr(vPD)}')
        self.stamp(9 + sb, f'L{L} attn')
        P(f'v_subrev_u32 {vr(vT0)}, {f2u(2.0**-SAFE_EXP):#x}, {vr(aO+8)}\nv_cmp_le_u32 vcc, {f2u(2.0**SAFE_EXP) - f2u(2.0**-SAFE_EXP):#x}, {vr(vT0)}\ns_cbranch_vccnz L_fb_{L}')
        P.label(f'L_fbr_{L}')
        self.publish_o(L, aO, 0)
        if o['prio']: P('s_setprio 0')
        self.lds_signal(C_ATT)
        self.stamp(10 + sb, f'L{L} opub')
        P(f's_cmp_lg_u32 {sr(sHS)}, 0\ns_cbranch_scc1 {ax3}')
        self.main_outproj(L)
        P(f's_branch L_main_{L+1}')
        P.label(ax3)
        self.aux_tail(L)
        self.stamp(13 + sb, f'L{L} xpub')
        P(f's_branch L_aux_{L+1}')

    def attn_fallback(self, L):
        P = self.P; M = vT0
        pk = lambda d, e: f'v_cvt_pk_bf16_f32 {vr(d)}, {vr(e)}, {vr(e+1)}'
        P.label(f'L_fb_{L}')
        P(f's_waitcnt lgkmcnt(0)\nv_mov_b32 {vr(M)}, 0xff800000')
        for i in range(16): P(f'v_mov_b32 {vr(aO+i)}, 0')
        for ps in range(2):
            for seg in range(2):
                lp = P.newlabel('Lfb'); nx = P.newlabel('Lfbn'); nm = P.newlabel('Lfbm')
                if seg == 0:
                    P(self.tile_addr(sOWN))
                    P(f's_add_u32 {sr(sCNT)}, {sr(sQT)}, 1\ns_mov_b32 {sr(sSTEP)}, {-OWN_ST}')
                    for i in range(16): P(f'v_mov_b32 {vr(aS+i)}, {vr(CDIAG+i)}')
                else:
                    P(f's_cmp_eq_u32 {sr(sR)}, 0\ns_cbranch_scc1 {nx}')
                    P(self.tile_addr(sP2))
                    P(f's_mov_b32 {sr(sCNT)}, {sr(sC2)}\ns_mov_b32 {sr(sSTEP)}, 4096\ns_cmp_eq_u32 {sr(sR)}, 1\ns_cbranch_scc1 {lp}')
                    for i in range(16): P(f'v_mov_b32 {vr(aS+i)}, {vr(CFIRST+i)}')
                P.label(lp)
                P(f'ds_read_b128 {vr(aK,4)}, {vr(vKA)}')
                if ps:
                    P(f's_mov_b64 exec, {sr(sLO,2)}\nds_read_b128 {vr(VV,4)}, {vr(vVA)} offset:2048\nds_read_b128 {vr(VV+4,4)}, {vr(vVA)} offset:3072\ns_mov_b64 exec, -1')
                P('s_waitcnt lgkmcnt(0)')
                self.mfma(aS, aK, aQ, aS)
                if ps == 0:
                    for i in range(0, 16, 2): P(f'v_max3_f32 {vr(M)}, {vr(M)}, {vr(aS+i)}, {vr(aS+i+1)}')
                else:
                    for i in range(16): P(f'v_sub_f32 {vr(aS+i)}, {vr(aS+i)}, {vr(M)}')
                    for i in range(16): P(f'v_exp_f32 {vr(aS+i)}, {vr(aS+i)}')
                    for p in range(8): P(pk(aP + p, aS + 2*p))
                    self.mfma(aO, VV, aP, aO)
                    self.mfma(aO, VV + 4, aP + 4, aO)
                for i in range(16): P(f'v_mov_b32 {vr(aS+i)}, 0')
                P(f'v_add_u32 {vr(vKA)}, {sr(sSTEP)}, {vr(vKA)}\nv_add_u32 {vr(vVA)}, {sr(sSTEP)}, {vr(vVA)}')
                P(f's_sub_u32 {sr(sCNT)}, {sr(sCNT)}, 1\ns_cmp_lg_u32 {sr(sCNT)}, 0\ns_cbranch_scc1 {lp}')
                P.label(nx)
            if ps == 0:
                P(f'v_mov_b32 {vr(vPD)}, {vr(M)}\nv_permlane32_swap_b32 {vr(vPD)}, {vr(M)}\nv_max_f32 {vr(M)}, {vr(M)}, {vr(vPD)}')
        P(f's_branch L_fbr_{L}')

    def softmax16(self, dst, t):
        P = self.P; A = ACC0
        P(f'v_max3_f32 {vr(t)}, {vr(A)}, {vr(A+1)}, {vr(A+2)}\nv_max3_f32 {vr(t+1)}, {vr(A+3)}, {vr(A+4)}, {vr(A+5)}')
        P(f'v_max3_f32 {vr(t+2)}, {vr(A+6)}, {vr(A+7)}, {vr(A+8)}\nv_max3_f32 {vr(t+3)}, {vr(A+9)}, {vr(A+10)}, {vr(A+11)}')
        P(f'v_max3_f32 {vr(t)}, {vr(t)}, {vr(A+12)}, {vr(A+13)}\nv_max3_f32 {vr(t+1)}, {vr(t+1)}, {vr(A+14)}, {vr(A+15)}')
        P(f'v_max3_f32 {vr(t)}, {vr(t)}, {vr(t+2)}, {vr(t+3)}\nv_max_f32 {vr(t)}, {vr(t)}, {vr(t+1)}')
        P(f'v_mul_f32 {vr(t)}, {vr(vRSTD)}, {vr(t)}')
        for i in range(4): P(f'v_fma_f32 {vr(A+i)}, {vr(A+i)}, {vr(vRSTD)}, -{vr(t)}')
        for i in range(16):
            P(f'v_exp_f32 {vr(A+i)}, {vr(A+i)}')
            if i + 4 < 16: P(f'v_fma_f32 {vr(A+i+4)}, {vr(A+i+4)}, {vr(vRSTD)}, -{vr(t)}')
            if i == 2: P(f'v_add_f32 {vr(t+1)}, {vr(A)}, {vr(A+1)}')
            if i >= 3: P(f'v_add_f32 {vr(t+1)}, {vr(t+1)}, {vr(A+i-1)}')
        P(f'v_add_f32 {vr(t+1)}, {vr(t+1)}, {vr(A+15)}\nv_rcp_f32 {vr(t)}, {vr(t+1)}')
        for p in range(8):
            P(f'v_mul_f32 {vr(A+2*p)}, {vr(t)}, {vr(A+2*p)}\nv_mul_f32 {vr(A+2*p+1)}, {vr(t)}, {vr(A+2*p+1)}')
        for p in range(8): P(f'v_cvt_pk_bf16_f32 {vr(dst+p)}, {vr(A+2*p)}, {vr(A+2*p+1)}')

    def layerB(self, L):
        P = self.P; Lb = L // 2; sb = L * 14; o = self.o; lg = self.lg
        j0 = f'L_j0_{L}'; j1 = f'L_j1_{L}'; j2 = f'L_j2_{L}'; ax1 = f'L_ax1_{L}'; ax1b = f'L_ax1b_{L}'; ax3 = f'L_ax3_{L}'; axz = f'L_axz_{L}'
        KA, KV_ = 48, 96
        vA16, vA4, vAW, vAO = 96, 97, 98, 99
        P.label(f'L_main_{L}')
        self.main_kv(L)
        self.stamp(3 + sb, f'L{L} kvpass')
        P(waitstr(lg=lg.need('rt')))
        for p in (4, 5, 6, 7): P(f'v_cvt_pk_bf16_f32 {vr(PKV+p)}, {vr(ACC0+2*p)}, {vr(ACC0+2*p+1)}')
        P(f'ds_write_b128 {vr(vKA)}, {vr(PKV+4,4)} offset:1024')
        for p in (0, 1, 2, 3): P(f'v_cvt_pk_bf16_f32 {vr(PKV+p)}, {vr(ACC0+2*p)}, {vr(ACC0+2*p+1)}')
        vmul = lambda p: f'v_pk_mul_f32 {vr(ACC1+2*p,2)}, {vr(ACC1+2*p,2)}, {vr(STAT+2*p,2)}'
        P(vmul(0)); P(vmul(1))
        self.mfma(ACC0, WPHI, PKV, None)
        for p in range(2, 8): P(vmul(p))
        P('s_waitcnt lgkmcnt(0)\ns_barrier')
        for p in range(8): P(f'v_cvt_pk_bf16_f32 {vr(PKV+8+p)}, {vr(ACC1+2*p)}, {vr(ACC1+2*p+1)}')
        for f in range(2, 4): P(f'ds_write_b128 {vr(vKA)}, {vr(PKV+4*f,4)} offset:{f*1024}')
        P(f's_branch {j0}')
        P.label(f'L_aux_{L}')
        P('s_barrier')
        self.aux_head(L)
        for i in range(32): P(f'v_mov_b32 {vr(KV_+i)}, {vr(ONES)}')
        P(f"""v_lshrrev_b32 v91, 5, {vr(vLANE)}
v_bfe_u32 v88, {vr(vLANE)}, 2, 2
v_lshl_add_u32 v88, v91, 2, v88
v_lshlrev_b32 v88, 5, v88
v_and_b32 v89, 1, {vr(vLANE)}
v_lshl_add_u32 v88, v89, 4, v88
v_bfe_u32 v89, {vr(vLANE)}, 4, 1
v_lshl_add_u32 v88, v89, 12, v88
v_bfe_u32 v89, {vr(vLANE)}, 1, 1
v_lshl_add_u32 v88, v89, 3, v88
s_lshl_b32 {sr(sT0)}, {sr(sMT)}, 10
s_add_u32 {sr(sT0)}, {sr(sT0)}, {LDS_OWN}
v_add_u32 v88, {sr(sT0)}, v88
s_lshl_b32 {sr(sT1)}, {sr(sMT)}, 8
v_xor_b32 v90, {sr(sT1)}, {vr(vL16)}
v_add_u32 v89, {LDS_OWN}, v90
s_lshl_b32 {sr(sT0)}, {sr(sMT)}, 5
s_add_u32 {sr(sT0)}, {sr(sT0)}, 1024
v_lshl_add_u32 v91, v91, 4, {sr(sT0)}
v_and_b32 v92, 31, {vr(vLANE)}
v_mov_b32 v93, {OOB:#x}
v_cmp_eq_u32 vcc, 16, v92
v_cndmask_b32 v91, v93, v91, vcc
v_cndmask_b32 v90, v91, v90, {sr(sLO,2)}
v_lshrrev_b32 v91, 2, v90
s_lshl_b32 {sr(sK2)}, {sr(sC)}, 4
s_add_u32 {sr(sK2)}, {sr(sK2)}, {sr(sR)}
s_mul_i32 {sr(sK2)}, {sr(sK2)}, {KP_REC}
s_add_u32 {sr(sK2)}, {sr(sK2)}, {OFF_KP + Lb*KP_L}""")
        P(self.tile_addr(sOWN))
        for op in self.phi_addr(): P(op)
        P(f's_lshl_b32 {sr(sT0)}, {sr(sQT)}, 7\ns_add_u32 {sr(sT0)}, {sr(sT0)}, {LDS_RSTD}\nv_and_b32 v25, 124, {vr(vL4)}\nv_add_u32 v25, {sr(sT0)}, v25')
        self.stamp(3 + sb, f'L{L} kvpass')
        P('s_barrier')
        P(f'ds_read_b128 {vr(RING+8,4)}, {vr(vKA)}\nds_read_b32 {vr(vRSTD)}, v25\ns_waitcnt lgkmcnt(1)')
        self.mfma(ACC0, WPHI, RING + 8, None)
        P(f's_waitcnt lgkmcnt(0)\nv_mul_f32 {vr(vRSTD)}, {sr(sLOG2E)}, {vr(vRSTD)}\ns_nop 9')
        P.label(j0)
        self.stamp(4 + sb, f'L{L} B1a')
        self.softmax16(RING, RING + 12)
        P(f'ds_write_b128 {vr(vVA)}, {vr(RING,4)}\nds_write_b128 {vr(vVA)}, {vr(RING+4,4)} offset:4096\ns_waitcnt lgkmcnt(0)\ns_barrier')
        self.stamp(5 + sb, f'L{L} B1b')
        common = self.publish_o_addr(L) + f"""s_mul_i32 {sr(sH1)}, {sr(sC)}, {16*KP_REC}
s_add_u32 {sr(sH1)}, {sr(sH1)}, {OFF_KP + Lb*KP_L}
s_mov_b32 {sr(sSEL0)}, 0x3f80
s_mov_b32 {sr(sSEL1)}, 0x3f800000
s_lshl_b32 {sr(sT0)}, {sr(sHS)}, 4
v_xor_b32 {vr(vAO)}, {sr(sT0)}, {vr(vLANE)}
v_lshlrev_b32 {vr(vAO)}, 5, {vr(vAO)}
v_add_u32 {vr(vAO)}, {LDS_KVT}, {vr(vAO)}
v_and_b32 v100, 32, {vr(vLANE)}
s_lshl_b32 {sr(sT0)}, {sr(sHS)}, 6
s_add_u32 {sr(sT0)}, {sr(sT0)}, {LDS_ZT}
v_add_u32 v100, {sr(sT0)}, v100
v_cndmask_b32 {vr(vAO)}, v100, {vr(vAO)}, {sr(sLO,2)}""".split('\n')
        def entry_addr(ent, part):
            return ent + part + f"""v_mul_u32_u24 {vr(vA16)}, {KP_REC}, {vr(vA16)}
v_lshl_add_u32 {vr(vA4)}, v100, 2, {vr(vA16)}
v_lshl_add_u32 {vr(vA16)}, v100, 4, {vr(vA16)}
v_lshrrev_b32 {vr(vAW)}, 4, {vr(vLANE)}
v_lshlrev_b32 {vr(vAW)}, 3, {vr(vAW)}
v_lshl_add_u32 {vr(vAW)}, v100, 5, {vr(vAW)}
v_add_u32 {vr(vAW)}, {LDS_KVT}, {vr(vAW)}""".split('\n')
        A = ACC1; KD = 128
        def loads_main():
            P(f's_mov_b32 {sr(sT0)}, {sr(sH1)}')
            for it in range(4):
                D = KD + 12*it
                P(f'buffer_load_dwordx4 {vr(D,4)}, {vr(vA16)}, {sr(sWS,4)}, {sr(sT0)} offen sc1\nbuffer_load_dwordx4 {vr(D+4,4)}, {vr(vA16)}, {sr(sWS,4)}, {sr(sT0)} offen offset:{KP_D1} sc1')
                P(f'buffer_load_dword {vr(D+8)}, {vr(vA4)}, {sr(sWS,4)}, {sr(sT0)} offen offset:{KP_CS} sc1')
                if it < 3: P(f's_add_u32 {sr(sT0)}, {sr(sT0)}, {4*KP_REC}')
        P(f's_cmp_lg_u32 {sr(sHS)}, 0\ns_cbranch_scc1 {ax1}')
        lg.reset()
        self.q_prefetch()
        fill = [('ds', 'cs', f'ds_read_b128 {vr(WEXTQ,4)}, {vr(vT0)}')] + common
        fill += entry_addr([f'v_and_b32 v100, 15, {vr(vLANE)}', f's_lshl_b32 {sr(sT0)}, {sr(sMT)}, 4', f'v_add_u32 v100, {sr(sT0)}, v100'], [f'v_lshrrev_b32 {vr(vA16)}, 4, {vr(vLANE)}'])
        fill += self.wext_items(WEXTQ, 'cs')
        self.main_qpass(L, ACC1, fill, pre_write=lambda: P('s_barrier'), rate=2)
        self.mfma(ACC0, WPHI, aQ, None)
        P('s_waitcnt lgkmcnt(0)\ns_barrier')
        if o['kp_at'] == 1: loads_main()
        P(f's_branch {j1}')
        P.label(ax1)
        P(f's_cmp_ge_u32 {sr(sMT)}, 2\ns_cbranch_scc1 {ax1b}\ns_setprio 3')
        for st in range(8):
            of = (st >> 1)*OWN_ST + (st & 1)*512
            P(f'ds_read_b64_tr_b16 {vr(KA+4*st,2)}, v88 offset:{of}\nds_read_b64_tr_b16 {vr(KA+2+4*st,2)}, v88 offset:{of+256}')
            P(f's_mov_b64 exec, {sr(sLO,2)}\nds_read_b128 {vr(KV_+4*st,4)}, v89 offset:{(st>>1)*OWN_ST + 2048 + (st&1)*1024}\ns_mov_b64 exec, -1')
            if st >= 3:
                P('s_waitcnt lgkmcnt(9)'); self.mfma(ACC0, KA + 4*(st-3), KV_ + 4*(st-3), None if st == 3 else ACC0)
        for st in range(5, 8):
            P(f's_waitcnt lgkmcnt({3*(7-st)})'); self.mfma(ACC0, KA + 4*st, KV_ + 4*st, ACC0)
        for p in range(8): P(f'v_cvt_pk_bf16_f32 {vr(80+p)}, {vr(ACC0+2*p)}, {vr(ACC0+2*p+1)}')
        P(f'buffer_store_dwordx4 v[80:83], v90, {sr(sWS,4)}, {sr(sK2)} offen sc1\nbuffer_store_dwordx4 v[84:87], v90, {sr(sWS,4)}, {sr(sK2)} offen offset:{KP_D1} sc1')
        for op in self.checksum(92, 80, 8): P(op)
        P(f'buffer_store_dword v92, v91, {sr(sWS,4)}, {sr(sK2)} offen offset:{KP_CS} sc1')
        self.stamp(6 + sb, f'L{L} phiq / kp stored')
        P('s_setprio 0')
        P.label(ax1b)
        if L == 1: self.dma_w(1, ('o',))
        for it in common + entry_addr([f'v_and_b32 v100, 3, {vr(vLANE)}', 'v_add_u32 v100, 64, v100'], [f'v_lshrrev_b32 {vr(vA16)}, 2, {vr(vLANE)}']): P(it)
        P('s_barrier\ns_barrier')
        P(f'ds_read_b128 {vr(aQ,4)}, {vr(vKA)} offset:4096\ns_waitcnt lgkmcnt(0)')
        self.mfma(ACC0, WPHI, aQ, None)
        P('s_nop 11')
        P.label(j1)
        self.softmax16(PHQ, RING + 12)
        P(f's_cmp_lg_u32 {sr(sHS)}, 0\ns_cbranch_scc1 {axz}')
        def fold():
            for j in range(8): P(f'v_permlane32_swap_b32 {vr(A+j)}, {vr(A+j+8)}')
            for j in range(4): P(f'v_pk_add_f32 {vr(A+2*j,2)}, {vr(A+2*j,2)}, {vr(A+2*j+8,2)}')
            for j in range(4): P(f'v_permlane16_swap_b32 {vr(A+j)}, {vr(A+j+4)}')
            for j in range(2): P(f'v_pk_add_f32 {vr(A+2*j,2)}, {vr(A+2*j,2)}, {vr(A+2*j+4,2)}')
        def unpack(D):
            for k in range(8): P(f'v_lshlrev_b32 {vr(A+2*k)}, 16, {vr(D+k)}\nv_and_b32 {vr(A+2*k+1)}, 0xffff0000, {vr(D+k)}')
        fin = f'v_cvt_pk_bf16_f32 v68, {vr(A)}, {vr(A+1)}\nv_cvt_pk_bf16_f32 v69, {vr(A+2)}, {vr(A+3)}\nds_write_b64 {vr(vAW)}, v[68:69]'
        self.stamp(6 + sb, f'L{L} phiq / kp stored')
        lp = P.newlabel('Lkp'); ck = P.newlabel('Lkpc'); dn = P.newlabel('Lkpd')
        if o['kp_at'] == 1: P(f's_branch {ck}')
        P.label(lp)
        loads_main()
        P.label(ck)
        for it in range(4):
            D = KD + 12*it
            P(f's_waitcnt vmcnt({9-3*it})')
            for op in self.checksum(D + 9, D, 8): P(op)
            P(f'v_cmp_ne_u32 {sr(sM+2*it,2)}, {vr(D+8)}, {vr(D+9)}')
            if it == 0: unpack(D)
            elif it < 3:
                for k in range(8):
                    P(f'v_dot2_f32_bf16 {vr(A+2*k)}, {vr(D+k)}, {sr(sSEL0)}, {vr(A+2*k)}\nv_dot2_f32_bf16 {vr(A+2*k+1)}, {vr(D+k)}, {sr(sSEL1)}, {vr(A+2*k+1)}')
        P(f's_or_b64 {sr(sM,2)}, {sr(sM,2)}, {sr(sM+2,2)}\ns_or_b64 {sr(sM+4,2)}, {sr(sM+4,2)}, {sr(sM+6,2)}\ns_or_b64 {sr(sM,2)}, {sr(sM,2)}, {sr(sM+4,2)}\ns_cbranch_scc0 {dn}')
        self.retry_tail(lp, dn)
        self.stamp(7 + sb, f'L{L} kp ok')
        D = KD + 36
        for k in range(8):
            P(f'v_dot2_f32_bf16 {vr(A+2*k)}, {vr(D+k)}, {sr(sSEL0)}, {vr(A+2*k)}\nv_dot2_f32_bf16 {vr(A+2*k+1)}, {vr(D+k)}, {sr(sSEL1)}, {vr(A+2*k+1)}')
        fold()
        P(fin)
        P(f's_branch {j2}')
        P.label(axz)
        if L == 1:
            P('s_waitcnt vmcnt(0)')
            self.relayout(1, ('o',), tmp=32)
        P(f's_cmp_lg_u32 {sr(sMT)}, 2\ns_cbranch_scc1 {j2}')
        lp = P.newlabel('Lkz'); dn = P.newlabel('Lkzd'); D = 32
        P.label(lp)
        P(f'buffer_load_dwordx4 {vr(D,4)}, {vr(vA16)}, {sr(sWS,4)}, {sr(sH1)} offen sc1\nbuffer_load_dwordx4 {vr(D+4,4)}, {vr(vA16)}, {sr(sWS,4)}, {sr(sH1)} offen offset:{KP_D1} sc1')
        P(f'buffer_load_dword {vr(D+8)}, {vr(vA4)}, {sr(sWS,4)}, {sr(sH1)} offen offset:{KP_CS} sc1\ns_waitcnt vmcnt(0)')
        for op in self.checksum(D + 9, D, 8): P(op)
        P(f'v_cmp_ne_u32 vcc, {vr(D+8)}, {vr(D+9)}\ns_cbranch_vccz {dn}')
        self.retry_tail(lp, dn)
        unpack(D)
        fold()
        for rot in (4, 8):
            for j in range(4): P(f'v_add_f32_dpp {vr(A+j)}, {vr(A+j)}, {vr(A+j)} row_ror:{rot} row_mask:0xf bank_mask:0xf')
        P(fin)
        P.label(j2)
        P('s_waitcnt lgkmcnt(0)\ns_barrier')
        self.stamp(8 + sb, f'L{L} B2')
        P(f'ds_read_b128 v[68:71], {vr(vAO)}\nds_read_b128 v[72:75], {vr(vAO)} offset:16\ns_waitcnt lgkmcnt(1)')
        self.mfma(ACC0, 68, PHQ, None)
        P('s_waitcnt lgkmcnt(0)')
        self.mfma(ACC0, 72, PHQ + 4, ACC0)
        self.publish_o(L, ACC0, 1e-6)
        self.stamp(10 + sb, f'L{L} opub')
        P(f's_cmp_lg_u32 {sr(sHS)}, 0\ns_cbranch_scc1 {ax3}')
        self.main_outproj(L)
        P(f's_branch L_main_{L+1}')
        P.label(ax3)
        self.aux_tail(L)
        self.stamp(13 + sb, f'L{L} xpub')
        P(f's_branch L_aux_{L+1}')

    def epilogue(self):
        P = self.P; nl = self.nl
        P.label(f'L_main_{nl}')
        P(f's_or_b32 {sr(sT0)}, s2, {sr(sW)}\ns_cmp_lg_u32 {sr(sT0)}, 0\ns_cbranch_scc1 L_aux_{nl}\ns_mov_b32 {sr(sT2)}, 0')
        self.flag(sT2, sTAG, False)
        P.label(f'L_aux_{nl}')
        if self.stamps:
            P('s_waitcnt vmcnt(0)')
            self.stamp(62, 'end')
            P(f's_memtime {sr(sST,2)}\ns_waitcnt lgkmcnt(0)\ns_sub_u32 {sr(sST)}, {sr(sST)}, s100\nv_writelane_b32 {vr(vSTAMP)}, {sr(sST)}, 59')
            P(f'''v_writelane_b32 {vr(vSTAMP)}, {sr(sBUD)}, 63
v_writelane_b32 {vr(vSTAMP)}, {sr(sFAST)}, 61
v_writelane_b32 {vr(vSTAMP)}, s99, 58
s_lshl_b32 {sr(sT0)}, s2, 3
s_add_u32 {sr(sT0)}, {sr(sT0)}, {sr(sW)}
s_lshl_b32 {sr(sT0)}, {sr(sT0)}, 8
s_add_u32 {sr(sT0)}, {sr(sT0)}, {OFF_STAMP}
buffer_store_dword {vr(vSTAMP)}, {vr(vL4)}, {sr(sWS,4)}, {sr(sT0)} offen''')
            if self.o.get('dbgst'):
                P(f's_cmp_lg_u32 {sr(sHS)}, 0\ns_cbranch_scc1 L_end\ns_load_dwordx2 s[64:65], s[0:1], 64\nv_mov_b32 v30, 0')
                for j, (idx, neg) in enumerate([(60, 1), (60, 0), (0, 0), (2, 0), (1, 0), (3, 0), (8, 0), (10, 0), (13, 0), (27, 0), (41, 0), (62, 0), (59, 0), (3, 1), (13, 1), (62, 1)]):
                    P(f'v_readlane_b32 s66, {vr(vSTAMP)}, {idx}')
                    if neg: P('s_not_b32 s66, s66')
                    P(f'v_writelane_b32 v30, s66, {j}')
                P('s_waitcnt lgkmcnt(0)')
                self.srd(68, 64, 256)
                P(f's_mov_b64 exec, 0xffff\nbuffer_atomic_umax v30, {vr(vL4)}, s[68:71], 0 offen\ns_waitcnt vmcnt(0)')
        P.label('L_end')
        P('s_endpgm')

    def build(self):
        self.prologue()
        for L in range(self.nl):
            (self.layerA if L % 2 == 0 else self.layerB)(L)
        self.epilogue()
        for L in range(0, self.nl, 2): self.attn_fallback(L)
        n = self.P.fix_hazards()
        errs = self.P.check_waits()
        head = open(f'cdna_kernels/{NAME}.s.ref').read().split('; @launch')[0]
        s = head + f'; @launch grid=(256,1,1) block=(512,1,1) lds={LDS_TOTAL}\n'
        s += f'.amdgcn_target "amdgcn-amd-amdhsa--gfx950"\n.text\n.globl {NAME}_kernel\n.p2align 8\n.type {NAME}_kernel,@function\n{NAME}_kernel:\n'
        s += self.P.text().replace('CODE_BYTES', '(L_end - %s_kernel - 1088)' % NAME)
        s += f'''.section .rodata,"a"
.p2align 6
.amdhsa_kernel {NAME}_kernel
  .amdhsa_next_free_vgpr 256
  .amdhsa_next_free_sgpr 102
  .amdhsa_accum_offset 256
  .amdhsa_group_segment_fixed_size 0
  .amdhsa_kernarg_size 80
  .amdhsa_user_sgpr_count 2
  .amdhsa_user_sgpr_kernarg_segment_ptr 1
  .amdhsa_system_sgpr_workgroup_id_x 1
.end_amdhsa_kernel
'''
        return s, n, errs


if __name__ == '__main__':
    import argparse, json
    ap = argparse.ArgumentParser()
    ap.add_argument('-o', default=f'cdna_kernels/{NAME}.s')
    ap.add_argument('--stamps', action='store_true')
    ap.add_argument('--safe', action='store_true')
    ap.add_argument('--cyc', action='store_true')
    ap.add_argument('--opt', nargs='*', default=[])
    ap.add_argument('--noalias', action='store_true')
    ap.add_argument('--nl', type=int, default=4)
    a = ap.parse_args()
    g = Gen(stamps=a.stamps, nlayers=a.nl, force_safe=a.safe, cyc=a.cyc, alias=not a.noalias, opt={k: int(v) for k, v in (x.split('=') for x in a.opt)})
    s, n, errs = g.build()
    open(a.o, 'w').write(s)
    if a.stamps: json.dump(g.stamp_names, open(a.o + '.stamps.json', 'w'))
    print('instructions', sum(1 for x in g.P.L if x.op), 'nops inserted', n, 'lds', LDS_TOTAL)
    for e in errs[:8]: print('WAITCHECK', e)
```

```python
import sys, struct
sys.path.insert(0, 'dev')
from asmlib import *

NAME = 'interleave_layers__sliding_block__linear_kernel_hedgehog__prompt'
def f2u(x): return struct.unpack('<I', struct.pack('<f', x))[0]
LOG2E = 1.4426950408889634

OFF_XFLAG = 0x1000
OFF_OFLAG = 0x9000
OFF_STAMP = 0x30000
OFF_ST = 0x100000
OFF_X = 0x200000
OFF_O = 0xA00000
OFF_KV = 0x1200000
KV_REC = 4352; KV_L = 1024*KV_REC
OFF_KP = 0x1B00000
KP_REC = 2560; KP_D1 = 1088; KP_CS = 2176; KP_L = 256*KP_REC
WS_USED = 0x2000000
OOB = 0x40000000
TAGC = 0x9E3779B0
SAFE_EXP = 30

LDS_WK = 0; LDS_WV = 32768; LDS_WQ = 65536; LDS_T = 65536; LDS_WO = 98304
LDS_OWN = 131072; OWN_ST = 6144
LDS_CSP = LDS_OWN + 4*OWN_ST
LDS_RSTD = LDS_CSP + 3072; LDS_KVT = LDS_RSTD + 512; LDS_ZT = LDS_KVT + 2048
LDS_FAST = LDS_ZT + 128; LDS_CNT = LDS_FAST + 16; LDS_TOTAL = LDS_FAST + 64
NT_LDS = {0: LDS_WQ, 1: LDS_WK, 2: LDS_WV, 'o': LDS_WO}
C_ST, C_XDONE, C_WGO, C_CS, C_Q, C_ATT, C_CSQ = 0, 4, 5, 6, 7, 8, 9

sWS, sX0, sWA, sWoA, sWB, sWoB, sPhi, sOut = 4, 8, 12, 16, 20, 24, 28, 32
sR, sC, sW, sMT, sHS, sRT, sQT, sTAG, sFAST, sBUD = 36, 37, 38, 39, 40, 41, 42, 43, 44, 45
sT0, sT1, sT2, sT3 = 46, 47, 48, 49
sLO = 50
sOWNF = 52; sCNT = 53; sSTEP = 54; sLOG2E = 55; sST = 56
sROT = 58; sDM = 59; sH0 = 60
sG0 = 62; sPERM = 63
sM = 64
sOW, sOF, sHB, sHAS, sP2, sC2, sOWN, sKVW, sXW, sSW, sXF, sRB = 72, 73, 74, 75, 76, 77, 78, 79, 80, 81, 82, 83
sLA = 86; sDG = 87; sDL = 88; sLB = 89; sLR = 90; sK0 = 91; sK1 = 92; sK2 = 93; sSEL0 = 94; sSEL1 = 95; sH1 = 96; sH2 = 97
vT0, vLANE, vL16, vL4, vCNT, vTR1, vTR2, vSTAMP = 0, 1, 2, 3, 4, 5, 6, 7
XRES, WPHI = 8, 16
vDW, vDO, vCH, vCS, ONES = 8, 9, 10, 11, 12
vRSTD, vKA, vVA, vPD, vPA, vRA, vRB, vFD = 20, 21, 22, 23, 24, 25, 26, 27
XEXT = 28; ACC0 = 32; ACC1 = 48; RING = 64; WEXTQ = 84; WEXTK = 88; WEXTV = 92; VV = 88
STAT = 96; CDIAG = 96; PKV = 112; CFIRST = 112; XF = 128
aS, aO, aE, aQ, aK, aP, aH = 32, 48, 64, 72, 76, 80, 128
PHQ = 112
PARK = {1: 128, 2: 160, 0: 192, 'o': 224}
MFMA = 'v_mfma_f32_32x32x16_bf16'
def cho(u): return (u >> 1)*8192 + (u & 1)*1024
SW4 = ((0, 2), (1, 3), (4, 6), (5, 7))


class Gen:
    def __init__(self, stamps=False, nlayers=4, force_safe=False, cyc=False, alias=True, opt=None):
        self.cyc = cyc; self.alias = alias
        self.o = dict(halo_at=31, prio=1, trunc=1, wgo=2, wgon=2, xd=8, od=10, x0d=3, psleep=1, kp_at=0)
        self.o.update(opt or {})
        self.P = Prog(); self.stamps = stamps; self.nl = nlayers; self.force_safe = force_safe
        self.stamp_names = {}
        self.vm = Tracker(63); self.lg = Tracker(15)

    def stamp(self, idx, name=''):
        if not self.stamps: return
        self.stamp_names[idx] = name
        self.P(f'{"s_memtime" if self.cyc else "s_memrealtime"} {sr(sST,2)}\ns_waitcnt lgkmcnt(0)\nv_writelane_b32 {vr(vSTAMP)}, {sr(sST)}, {idx}')

    def al(self, L): return 0 if self.alias else L

    def mfma(self, d, a, b, c):
        cs = '0' if c is None else vr(c, 16)
        self.P(f'{MFMA} {vr(d,16)}, {vr(a,4)}, {vr(b,4)}, {cs}')

    def srd(self, s, ptr, nbytes):
        self.P(f's_mov_b32 {sr(s)}, {sr(ptr)}\ns_and_b32 {sr(s+1)}, {sr(ptr+1)}, 0xffff\ns_mov_b32 {sr(s+2)}, {nbytes}\ns_mov_b32 {sr(s+3)}, 0x20000')

    def poll(self, soff, masked=False):
        P = self.P; lp = P.newlabel('Lpoll'); dn = P.newlabel('Lpolld')
        P.label(lp)
        P(f'buffer_load_dword {vr(vPD)}, {vr(vPA)}, {sr(sWS,4)}, {sr(soff)} offen sc1\ns_waitcnt vmcnt(0)')
        if masked:
            P(f'v_and_b32 {vr(vT0)}, -16, {vr(vPD)}\nv_cmp_ne_u32 vcc, {sr(sTAG)}, {vr(vT0)}')
        else:
            P(f'v_cmp_ne_u32 vcc, {sr(sTAG)}, {vr(vPD)}')
        P(f's_cbranch_vccz {dn}')
        if self.o['psleep']: P(f's_sleep {self.o["psleep"]}')
        P(f's_sub_u32 {sr(sBUD)}, {sr(sBUD)}, 1\ns_cbranch_scc0 {lp}\ns_mov_b32 {sr(sBUD)}, 0')
        P.label(dn)

    def flag(self, soff, sval, sc1, wait=None):
        P = self.P
        P(f'v_mov_b32 {vr(vPD)}, {sr(sval)}\ns_mov_b64 exec, 1')
        if wait: P(wait)
        P(f'buffer_store_dword {vr(vPD)}, off, {sr(sWS,4)}, {sr(soff)}' + (' sc1' if sc1 else ''))
        P('s_mov_b64 exec, -1')

    def prio_if(self, cmp):
        P = self.P; l = P.newlabel('Lpr')
        P(f's_setprio 0\n{cmp}\ns_cbranch_scc0 {l}\ns_setprio 1'); P.label(l)

    def lds_signal(self, idx):
        self.P(f'v_mov_b32 {vr(vPD)}, 1\ns_mov_b64 exec, 1\ns_waitcnt lgkmcnt(0)\nds_add_u32 {vr(vCNT)}, {vr(vPD)} offset:{4*idx}\ns_mov_b64 exec, -1')

    def lds_wait(self, idx, val):
        P = self.P; lp = P.newlabel('Llw')
        P.label(lp)
        P(f'ds_read_b32 {vr(vPD)}, {vr(vCNT)} offset:{4*idx}\ns_waitcnt lgkmcnt(0)\nv_cmp_gt_u32 vcc, {val}, {vr(vPD)}\ns_cbranch_vccnz {lp}')

    def lds_peek(self, idx):
        return [('ds', ('cnt', idx), f'ds_read_b32 {vr(vPD)}, {vr(vCNT)} offset:{4*idx}')]

    def lds_check(self, idx, val):
        P = self.P; ok = P.newlabel('Llc')
        P(waitstr(lg=self.lg.need(('cnt', idx))))
        P(f'v_cmp_gt_u32 vcc, {val}, {vr(vPD)}\ns_cbranch_vccz {ok}')
        self.lds_wait(idx, val)
        P.label(ok)

    def two_way(self, emit):
        P = self.P
        if self.force_safe:
            emit(True); return
        ls = P.newlabel('Lsafe'); le = P.newlabel('Lpub')
        P(f's_cmp_eq_u32 {sr(sFAST)}, 0\ns_cbranch_scc1 {ls}')
        emit(False)
        P(f's_branch {le}'); P.label(ls)
        emit(True)
        P.label(le)

    def item(self, it):
        P = self.P
        if isinstance(it, str): P(it)
        elif it[0] == 'wvm': P(waitstr(vm=self.vm.need(it[1])))
        elif it[0] == 'wlg': P(waitstr(lg=self.lg.need(it[1])))
        elif it[0] == 'ds': P(it[2]); self.lg.issue(it[1])
        elif it[0] == 'fn': it[1]()

    def checksum(self, dst, src, n):
        ops = [f'v_add3_u32 {vr(dst)}, {sr(sTAG)}, {vr(src)}, {vr(src+1)}']
        for i in range(2, n, 2): ops.append(f'v_add3_u32 {vr(dst)}, {vr(dst)}, {vr(src+i)}, {vr(src+i+1)}')
        return ops

    def retry_tail(self, lp, dn):
        if self.stamps: self.P('s_add_u32 s99, s99, 1')
        self.P(f's_sub_u32 {sr(sBUD)}, {sr(sBUD)}, 1\ns_cbranch_scc0 {lp}\ns_mov_b32 {sr(sBUD)}, 0')
        self.P.label(dn)
        if self.stamps: self.P('s_lshl_b32 s99, s99, 6')

    def prologue(self):
        P = self.P; o = self.o
        vH, vT = 64, 65
        if self.stamps: P('s_memrealtime s[98:99]\ns_memtime s[100:101]')
        elif o.get('spin'): P('s_memrealtime s[98:99]')
        P(f"""s_cmp_ge_u32 s2, 256
s_cbranch_scc1 L_end
s_load_dwordx16 s[64:79], s[0:1], 0
s_load_dwordx4 s[80:83], s[0:1], 64
s_getpc_b64 s[84:85]
v_lshrrev_b32 v1, 6, v0
s_lshr_b32 {sr(sT1)}, s2, 3
v_readfirstlane_b32 {sr(sW)}, v1
v_and_b32 {vr(vLANE)}, 63, v0
v_lshlrev_b32 {vr(vL16)}, 4, {vr(vLANE)}""")
        lc = P.newlabel('Lx')
        P(f"""s_cmp_lt_u32 {sr(sW)}, 6
s_cbranch_scc1 {lc}
s_and_b32 {sr(sT0)}, {sr(sW)}, 1
s_lshl_b32 {sr(sT0)}, {sr(sT0)}, 5
s_add_u32 {sr(sT0)}, {sr(sT0)}, {sr(sT1)}
s_lshl_b32 {sr(sT0)}, {sr(sT0)}, 10
s_cmp_ge_u32 {sr(sT0)}, CODE_BYTES
s_cbranch_scc1 {lc}
v_add_u32 v255, {sr(sT0)}, {vr(vL16)}
global_load_dword v255, v255, s[84:85]""")
        P.label(lc)
        P(f"""s_and_b32 {sr(sT0)}, s2, 7
s_and_b32 {sr(sC)}, {sr(sT1)}, 15
s_lshr_b32 {sr(sT1)}, {sr(sT1)}, 4
s_lshl_b32 {sr(sR)}, {sr(sT0)}, 1
s_add_u32 {sr(sR)}, {sr(sR)}, {sr(sT1)}
s_and_b32 {sr(sMT)}, {sr(sW)}, 3
s_lshr_b32 {sr(sHS)}, {sr(sW)}, 2
s_lshl_b32 {sr(sRT)}, {sr(sR)}, 2
s_add_u32 {sr(sRT)}, {sr(sRT)}, {sr(sMT)}
s_lshr_b32 {sr(sROT)}, {sr(sC)}, 1
s_add_u32 {sr(sROT)}, {sr(sROT)}, {sr(sT0)}
s_lshl_b32 {sr(sT1)}, {sr(sT1)}, 1
s_add_u32 {sr(sROT)}, {sr(sROT)}, {sr(sT1)}
s_lshl_b32 {sr(sT1)}, {sr(sC)}, 2
s_add_u32 {sr(sROT)}, {sr(sROT)}, {sr(sT1)}
s_and_b32 {sr(sROT)}, {sr(sROT)}, 7
v_mov_b32 v8, 0
v_mov_b32 v9, 0
v_mov_b32 v10, 0
v_mov_b32 v11, 0
v_mov_b32 v90, 0
v_mov_b32 v91, 0
v_mov_b32 {vr(vCNT)}, {LDS_CNT}
ds_write_b128 {vr(vCNT)}, v[8:11]
ds_write_b128 {vr(vCNT)}, v[8:11] offset:16
ds_write_b128 {vr(vCNT)}, v[8:11] offset:32
v_lshrrev_b32 v28, 3, {vr(vLANE)}
v_lshlrev_b32 v28, 10, v28
v_lshrrev_b32 v29, 4, {vr(vLANE)}
v_xor_b32 v29, v29, {vr(vLANE)}
v_and_b32 v29, 7, v29
v_lshl_add_u32 v28, v29, 4, v28
v_xor_b32 v29, 64, v28
v_add_u32 v30, {2*7168}, v28
v_add_u32 v31, {3*7168}, v29
v_add_u32 v29, 7168, v29
s_lshl_b32 {sr(sLB)}, {sr(sRT)}, 15
s_lshl_b32 {sr(sLR)}, {sr(sROT)}, 7
s_lshl_b32 {sr(sLA)}, {sr(sMT)}, 14
s_add_u32 {sr(sLA)}, {sr(sLA)}, {LDS_WQ}
s_waitcnt lgkmcnt(0)
s_load_dword {sr(sTAG)}, s[82:83], 0""")
        self.srd(sX0, 64, 2097152)
        P(f's_cmp_lg_u32 {sr(sHS)}, 0\ns_cbranch_scc1 L_pro2')
        for g in range(2): self.x0_load(g)
        P.label('L_pro2')
        P('s_barrier')
        self.srd(sWS, 82, WS_USED); self.srd(sWA, 66, 1572864); self.srd(sWoA, 68, 524288)
        self.srd(sWB, 72, 1572864); self.srd(sPhi, 74, 16384); self.srd(sWoB, 76, 524288); self.srd(sOut, 78, 2097152)
        P(f"""s_mul_i32 {sr(sT0)}, {sr(sHS)}, 3
s_xor_b32 {sr(sQT)}, {sr(sMT)}, {sr(sT0)}
s_mov_b32 {sr(sBUD)}, 0x100000
s_mov_b32 {sr(sLO)}, 0xffff
s_mov_b32 {sr(sLO+1)}, 0xffff
s_mov_b32 {sr(sH0)}, -1
s_mov_b32 {sr(sH0+1)}, 0
s_mov_b32 {sr(sFAST)}, 0
s_mov_b32 {sr(sDM)}, 0
s_mov_b32 {sr(sLOG2E)}, {f2u(LOG2E):#x}
s_mov_b32 {sr(sPERM)}, 0x07060302
s_getreg_b32 {sr(sOWNF)}, hwreg(HW_REG_XCC_ID, 0, 4)
v_lshrrev_b32 {vr(vH)}, 5, {vr(vLANE)}
v_and_b32 {vr(vT)}, 31, {vr(vLANE)}
v_lshlrev_b32 {vr(vL4)}, 2, {vr(vLANE)}
v_mov_b32 {vr(vSTAMP)}, 0
v_add_u32 {vr(vTR1)}, {LDS_WQ}, {vr(vL16)}
v_add_u32 {vr(vTR2)}, {LDS_WO}, {vr(vL16)}
s_lshl_b32 {sr(sT0)}, {sr(sMT)}, 7
s_add_u32 {sr(sT0)}, {sr(sT0)}, {LDS_RSTD}
v_lshl_add_u32 {vr(vRA)}, {vr(vT)}, 2, {sr(sT0)}
v_lshl_add_u32 {vr(vRB)}, {vr(vH)}, 4, {sr(sT0)}
v_lshlrev_b32 {vr(vFD)}, 2, {vr(vH)}
v_sub_u32 {vr(vFD)}, {vr(vT)}, {vr(vFD)}
v_cvt_f32_i32 {vr(vFD)}, {vr(vFD)}
v_mul_f32 {vr(vFD)}, {f2u(2.0**100):#x}, {vr(vFD)}
s_waitcnt lgkmcnt(0)
s_and_b32 {sr(sTAG)}, {sr(sTAG)}, -16
s_add_u32 {sr(sTAG)}, {sr(sTAG)}, {TAGC:#x}
s_or_b32 {sr(sOWNF)}, {sr(sOWNF)}, {sr(sTAG)}
s_lshl_b32 {sr(sT0)}, {sr(sR)}, 2
s_add_u32 {sr(sT0)}, {sr(sT0)}, {sr(sQT)}
s_lshl_b32 {sr(sT0)}, {sr(sT0)}, 5
s_lshl_b32 {sr(sT1)}, {sr(sC)}, 1
s_add_u32 {sr(sT0)}, {sr(sT0)}, {sr(sT1)}
s_add_u32 {sr(sT0)}, {sr(sT0)}, {sr(sHS)}
s_lshl_b32 {sr(sOW)}, {sr(sT0)}, 10
s_lshl_b32 {sr(sOF)}, {sr(sT0)}, 2
s_lshr_b32 {sr(sT0)}, {sr(sMT)}, 1
s_add_u32 {sr(sT0)}, {sr(sT0)}, {sr(sR)}
s_sub_u32 {sr(sT0)}, {sr(sT0)}, 2
s_cselect_b32 {sr(sHAS)}, 0, 1
s_lshl_b32 {sr(sT0)}, {sr(sT0)}, 1
s_and_b32 {sr(sT1)}, {sr(sMT)}, 1
s_add_u32 {sr(sT0)}, {sr(sT0)}, {sr(sT1)}
s_lshl_b32 {sr(sT0)}, {sr(sT0)}, 5
s_add_u32 {sr(sT0)}, {sr(sT0)}, {sr(sC)}
s_mul_i32 {sr(sHB)}, {sr(sT0)}, {KV_REC}
s_cmp_eq_u32 {sr(sR)}, 1
s_cselect_b32 {sr(sT0)}, 4, {sr(sQT)}
s_sub_u32 {sr(sC2)}, 8, {sr(sT0)}
s_lshl_b32 {sr(sP2)}, {sr(sT0)}, 12
s_add_u32 {sr(sP2)}, {sr(sP2)}, {LDS_T}
s_mul_i32 {sr(sOWN)}, {sr(sQT)}, {OWN_ST}
s_add_u32 {sr(sOWN)}, {sr(sOWN)}, {LDS_OWN}
s_lshl_b32 {sr(sT0)}, {sr(sRT)}, 4
s_add_u32 {sr(sT0)}, {sr(sT0)}, {sr(sC)}
s_mul_i32 {sr(sKVW)}, {sr(sT0)}, {KV_REC}
s_lshl_b32 {sr(sXW)}, {sr(sT0)}, 11
s_lshl_b32 {sr(sSW)}, {sr(sT0)}, 8
s_lshl_b32 {sr(sXF)}, {sr(sRT)}, 7
s_lshl_b32 {sr(sRB)}, {sr(sRT)}, 15""")
        self.stamp(0, 'start')
        if self.stamps:
            self.stamp_names[60] = 'entry'; P(f'v_writelane_b32 {vr(vSTAMP)}, s98, 60\ns_mov_b32 s99, 0')
        P(f's_cmp_eq_u32 {sr(sHS)}, 0\ns_cbranch_scc1 L_main_0')
        lh = P.newlabel('Lx'); lt = P.newlabel('Lx')
        P(f"""s_lshl_b32 {sr(sT2)}, {sr(sR)}, 7
s_lshl_b32 {sr(sT3)}, {sr(sC)}, 2
s_add_u32 {sr(sT2)}, {sr(sT2)}, {sr(sT3)}
s_add_u32 {sr(sT2)}, {sr(sT2)}, {OFF_XFLAG}
s_cmp_lg_u32 {sr(sMT)}, 0
s_cbranch_scc1 {lh}""")
        self.flag(sT2, sOWNF, True)
        P.label(lh)
        P(f"""v_lshrrev_b32 v28, 2, {vr(vLANE)}
v_and_b32 v29, 3, {vr(vLANE)}
v_lshlrev_b32 v29, 4, v29
s_lshl_b32 {sr(sT0)}, {sr(sC)}, 6
v_add_u32 v29, {sr(sT0)}, v29
v_mul_u32_u24 {vr(vDW)}, 3072, v28
v_add_u32 {vr(vDW)}, {vr(vDW)}, v29
v_lshl_add_u32 {vr(vDO)}, v28, 10, v29
s_lshl_b32 {sr(sLA)}, {sr(sMT)}, 11
s_lshr_b32 {sr(sT0)}, {sr(sMT)}, 1
s_add_u32 {sr(sT0)}, {sr(sT0)}, {sr(sROT)}
s_and_b32 {sr(sT0)}, {sr(sT0)}, 7
s_lshl_b32 {sr(sG0)}, {sr(sT0)}, 16
s_and_b32 {sr(sT0)}, {sr(sMT)}, 1
s_lshl_b32 {sr(sT0)}, {sr(sT0)}, 15
s_add_u32 {sr(sG0)}, {sr(sG0)}, {sr(sT0)}
v_add_u32 {vr(vCH)}, {sr(sLA)}, {vr(vL16)}
v_bfe_u32 v29, {vr(vLANE)}, 2, 2
v_lshl_add_u32 v29, {vr(vH)}, 2, v29
v_lshlrev_b32 {vr(vCS)}, 6, v29
v_bfe_u32 v29, {vr(vLANE)}, 4, 1
v_lshl_add_u32 {vr(vCS)}, v29, 5, {vr(vCS)}
v_and_b32 v29, 3, {vr(vLANE)}
v_lshl_add_u32 {vr(vCS)}, v29, 3, {vr(vCS)}
v_add_u32 {vr(vCS)}, {sr(sLA)}, {vr(vCS)}
v_lshl_add_u32 v31, {vr(vH)}, 8, {vr(vCS)}""")
        for i in range(4): P(f'v_mov_b32 {vr(ONES+i)}, 0x3f803f80')
        self.csp_waddr(0)
        P(f'v_lshl_add_u32 v30, {vr(vH)}, 9, v28')
        for op in self.mask_ops(0) + self.mask_ops(1): P(op)
        avm = Tracker(63)
        if o['wgo']: self.lds_wait(C_WGO, o['wgon'])
        self.stamp(2, 'x g0 / W go')
        for st in range(2): self.dma_w(0, (1, 2), (st,)); avm.issue(st, 4)
        for i in range(4): P(f'v_mov_b32 {vr(64+i)}, 0')
        for st in range(4):
            if st < 2: self.dma_w(0, (1, 2), (st + 2,)); avm.issue(st + 2, 4)
            else:
                if st == 2: self.lds_wait(C_XDONE, 4)
                self.dma_w(0, (0,), (2*st - 4, 2*st - 3)); avm.issue('q', 4)
            P(waitstr(vm=avm.need(st)))
            self.stamp((15, 23, 29, 1)[st], ('x g3 / W st0', 'x g5 / W st1', 'S0 / W st2', 'x0 / W st3')[st])
            ch = [(nt, 2*st + e) for nt in (1, 2) for e in range(2)]
            for nt, u in ch:
                r_ = PARK[nt] + 4*u; of = NT_LDS[nt] + cho(u)
                P(f'ds_read_b64_tr_b16 {vr(r_,2)}, v31 offset:{of}\nds_read_b64_tr_b16 {vr(r_+2,2)}, v31 offset:{of+256}')
            for k, (nt, u) in enumerate(ch):
                P(f's_waitcnt lgkmcnt({6-k})\nds_write_b128 {vr(vCH)}, {vr(PARK[nt]+4*u,4)} offset:{NT_LDS[nt] + cho(u)}')
            self.lds_signal(C_ST + st)
            for nt, u in ch: self.valu_sum(PARK[nt] + 4*u, 64 + 2*(nt - 1))
        P('v_add_f32 v64, v64, v65\nv_add_f32 v66, v66, v67\nv_permlane32_swap_b32 v64, v66\nv_add_f32 v64, v64, v66\nds_write_b32 v30, v64 offset:512')
        self.lds_signal(C_CS)
        self.stamp(14, 'S3 / W done')
        self.dma_w(0, ('o',))
        P(f'v_add_u32 v31, {LDS_WQ}, v31\nv_add_u32 v30, {LDS_WQ}, {vr(vCH)}\nv_mov_b32 v64, 0\nv_mov_b32 v65, 0\ns_waitcnt vmcnt(8)')
        for u0 in (0, 4):
            for u in range(u0, u0 + 4):
                r_ = PARK[0] + 4*u
                P(f'ds_read_b64_tr_b16 {vr(r_,2)}, v31 offset:{cho(u)}\nds_read_b64_tr_b16 {vr(r_+2,2)}, v31 offset:{cho(u)+256}')
            for k, u in enumerate(range(u0, u0 + 4)):
                P(f's_waitcnt lgkmcnt({6-k})\nds_write_b128 v30, {vr(PARK[0]+4*u,4)} offset:{cho(u)}')
        self.lds_signal(C_Q)
        for u in range(8): self.valu_sum(PARK[0] + 4*u, 64)
        P('v_add_f32 v64, v64, v65\nv_mov_b32 v66, v64\nv_permlane32_swap_b32 v64, v66\nv_add_f32 v64, v64, v66\nds_write_b32 v28, v64')
        self.lds_signal(C_CSQ)
        P(f"""s_cmp_lg_u32 {sr(sMT)}, 2
s_cbranch_scc1 {lt}
v_lshlrev_b32 v6, 7, {vr(vLANE)}
s_mul_i32 {sr(sT0)}, s2, {48*128}
buffer_load_dword v26, v6, {sr(sWB,4)}, {sr(sT0)} offen
v_and_b32 v6, 0x780, v6
s_lshl_b32 {sr(sT0)}, s2, 11
buffer_load_dword v26, v6, {sr(sWoB,4)}, {sr(sT0)} offen""")
        P.label(lt)
        P('s_branch L_aux_0')

    def valu_sum(self, frag, acc):
        for i in range(4):
            self.P(f'v_lshlrev_b32 v68, 16, {vr(frag+i)}\nv_and_b32 v69, 0xffff0000, {vr(frag+i)}\nv_add_f32 {vr(acc)}, {vr(acc)}, v68\nv_add_f32 {vr(acc+1)}, {vr(acc+1)}, v69')

    def x0_load(self, g):
        P = self.P
        P(f's_add_u32 m0, {sr(sLA)}, {(g%4)*4096}\ns_add_u32 {sr(sT3)}, {sr(sLB)}, {sr(sLR)}')
        for j in range(4): P(f'buffer_load_dwordx4 {vr(28+j)}, {sr(sX0,4)}, {sr(sT3)} offen offset:{j*1024} lds')
        P(f's_add_u32 {sr(sLR)}, {sr(sLR)}, 128\ns_and_b32 {sr(sLR)}, {sr(sLR)}, 0x3ff')
        self.vm.issue(('x', g), 4)

    def code_prefetch(self, label):
        P = self.P; lc = P.newlabel('Lx')
        P(f"""s_cmp_lg_u32 {sr(sMT)}, 3
s_cbranch_scc1 {lc}
s_lshl_b32 {sr(sT0)}, {sr(sC)}, 10
s_add_u32 {sr(sT0)}, {sr(sT0)}, ({label} - {NAME}_kernel)
s_cmp_ge_u32 {sr(sT0)}, CODE_BYTES
s_cbranch_scc1 {lc}
v_add_u32 v26, {sr(sT0)}, {vr(vL16)}
global_load_dword v26, v26, s[84:85]""")
        P.label(lc)

    def wphi_load(self):
        P = self.P
        P(f"""s_lshl_b32 {sr(sT0)}, {sr(sC)}, 1
s_add_u32 {sr(sT0)}, {sr(sT0)}, {sr(sHS)}
s_lshl_b32 {sr(sT0)}, {sr(sT0)}, 9
v_bfe_u32 v104, {vr(vLANE)}, 3, 2
v_and_b32 v105, 3, {vr(vLANE)}
v_lshl_add_u32 v104, v104, 2, v105
v_lshlrev_b32 v104, 1, v104
v_lshrrev_b32 v105, 5, {vr(vLANE)}
v_lshl_add_u32 v104, v105, 7, v104""")
        for j in range(8):
            d = (j if j < 4 else 8 + j - 4)
            P(f'buffer_load_ushort {vr(96+j)}, v104, {sr(sPhi,4)}, {sr(sT0)} offen offset:{d*32}')

    def wphi_pack(self):
        P = self.P
        for p in range(4): P(f'v_lshl_or_b32 {vr(WPHI+p)}, {vr(96+2*p+1)}, 16, {vr(96+2*p)}')
        P(f'v_bfe_i32 v96, {vr(vLANE)}, 2, 1\nv_and_b32 v96, 0x80008000, v96')
        for p in range(4): P(f'v_xor_b32 {vr(WPHI+p)}, v96, {vr(WPHI+p)}')

    def dma_w(self, typ, nts, stages=range(4)):
        P = self.P; wo = nts == ('o',)
        srd = (sWoA, sWoB)[typ] if wo else (sWA, sWB)[typ]
        for st in stages:
            P(f's_add_u32 {sr(sT0)}, {sr(sG0)}, {st*0x20000}\ns_and_b32 {sr(sT0)}, {sr(sT0)}, 0x7ffff')
            if not wo: P(f's_mul_i32 {sr(sT0)}, {sr(sT0)}, 3')
            for e in range(2):
                for nt in nts:
                    P(f's_add_u32 m0, {sr(sLA)}, {NT_LDS[nt] + cho(2*st + e)}')
                    P(f's_add_u32 {sr(sT1)}, {sr(sT0)}, {e*16384 if wo else e*49152 + nt*1024}')
                    P(f'buffer_load_dwordx4 {vr(vDO if wo else vDW)}, {sr(srd,4)}, {sr(sT1)} offen lds')

    def csp_waddr(self, typ):
        self.P(f"""s_lshl_b32 {sr(sT0)}, {sr(sMT)}, 2
s_add_u32 {sr(sT0)}, {sr(sT0)}, {LDS_CSP + typ*1536}
v_and_b32 v28, 31, {vr(vLANE)}
v_lshl_add_u32 v28, v28, 4, {sr(sT0)}""")

    def chunk_addr(self, region):
        if region < 65536: return vCH, region
        self.P(f'v_add_u32 {vr(vT0)}, {region}, {vr(vCH)}'); return vT0, 0

    def lds_to_regs(self, region, dst):
        a, o = self.chunk_addr(region)
        for u in range(8): self.P(f'ds_read_b128 {vr(dst+4*u,4)}, {vr(a)} offset:{o+cho(u)}')

    def regs_to_lds(self, region, src):
        a, o = self.chunk_addr(region)
        for u in range(8): self.P(f'ds_write_b128 {vr(a)}, {vr(src+4*u,4)} offset:{o+cho(u)}')

    def relayout(self, typ, nts, tmp=64, ntmp=8):
        P = self.P
        if nts != ('o',): self.csp_waddr(typ)
        for k, nt in enumerate(nts):
            region = NT_LDS[nt]
            P(f'v_add_u32 v29, {region}, {vr(vCS)}\nv_add_u32 v30, {region}, {vr(vCH)}')
            acc = ACC0 if k % 2 == 0 else ACC1
            lg = Tracker(15)
            reg = lambda u: tmp + 4*(u % ntmp)
            for u0 in range(0, 8, 4):
                for u in range(u0, u0 + 4):
                    P(f'ds_read_b64_tr_b16 {vr(reg(u),2)}, v29 offset:{cho(u)}\nds_read_b64_tr_b16 {vr(reg(u)+2,2)}, v29 offset:{cho(u)+512}'); lg.issue(u, 2)
                for u in range(u0, u0 + 4):
                    P(waitstr(lg=lg.need(u)))
                    if nt != 'o': self.mfma(acc, ONES, reg(u), None if u == 0 else acc)
                    P(f'ds_write_b128 v30, {vr(reg(u),4)} offset:{cho(u)}'); lg.issue('w')
        for k, nt in enumerate(nts):
            if nt != 'o': P(f'ds_write_b32 v28, {vr(ACC0 if k % 2 == 0 else ACC1)} offset:{nt*512}')
        P('s_waitcnt lgkmcnt(0)')

    def swap_region(self, nt, save):
        P = self.P
        if save:
            self.lds_to_regs(NT_LDS[nt], 32); P('s_waitcnt lgkmcnt(0)')
        self.regs_to_lds(NT_LDS[nt], PARK[nt]); P('s_waitcnt lgkmcnt(0)')
        if save:
            for i in range(32): P(f'v_mov_b32 {vr(PARK[nt]+i)}, {vr(32+i)}')

    def unpack_res(self):
        for p in range(8):
            self.P(f'v_lshlrev_b32 {vr(ACC0+2*p)}, 16, {vr(XRES+p)}\nv_and_b32 {vr(ACC0+2*p+1)}, 0xffff0000, {vr(XRES+p)}')

    def rowmajor_addr(self, dst, tmp, sdst):
        self.P(f"""v_and_b32 {vr(dst)}, 31, {vr(vLANE)}
v_lshlrev_b32 {vr(dst)}, 10, {vr(dst)}
v_lshrrev_b32 {vr(tmp)}, 5, {vr(vLANE)}
v_lshl_add_u32 {vr(dst)}, {vr(tmp)}, 4, {vr(dst)}
s_lshl_b32 {sr(sdst)}, {sr(sC)}, 6
s_add_u32 {sr(sdst)}, {sr(sdst)}, {sr(sRB)}""")

    def publish_x_addr(self, L):
        if L == self.nl: return self.rowmajor_addr(vKA, vVA, sK0)
        self.P(f"""s_add_u32 {sr(sK0)}, {sr(sXW)}, {OFF_X + self.al(L)*0x200000}
s_add_u32 {sr(sK1)}, {sr(sSW)}, {OFF_ST + self.al(L)*0x40000}
s_lshl_b32 {sr(sK2)}, {sr(sC)}, 2
s_add_u32 {sr(sK2)}, {sr(sK2)}, {sr(sXF)}
s_add_u32 {sr(sK2)}, {sr(sK2)}, {OFF_XFLAG + L*0x2000}""")

    def publish_x(self, L):
        P = self.P
        natural = (L % 2 == 0)
        for p in range(8): P(f'v_cvt_pk_bf16_f32 {vr(XRES+p)}, {vr(ACC0+2*p)}, {vr(ACC0+2*p+1)}')
        if natural:
            for a, b in SW4: P(f'v_permlane32_swap_b32 {vr(XRES+a)}, {vr(XRES+b)}')
        if L == self.nl:
            m = ['', ' sc1', ' sc0 sc1', ' nt', ' sc0 sc1 nt'][self.o.get('outm', 0)]
            P(f'buffer_store_dwordx4 {vr(XRES,4)}, {vr(vKA)}, {sr(sOut,4)}, {sr(sK0)} offen{m}\nbuffer_store_dwordx4 {vr(XRES+4,4)}, {vr(vKA)}, {sr(sOut,4)}, {sr(sK0)} offen offset:32{m}')
            return
        def emit(sc1):
            m = ' sc1' if sc1 else ''
            P(f'buffer_store_dwordx4 {vr(XRES,4)}, {vr(vL16)}, {sr(sWS,4)}, {sr(sK0)} offen{m}')
            P(f'buffer_store_dwordx4 {vr(XRES+4,4)}, {vr(vL16)}, {sr(sWS,4)}, {sr(sK0)} offen offset:1024{m}')
            for k in range(4):
                P(f'v_pk_add_f32 {vr(64+2*k,2)}, {vr(ACC0+4*k,2)}, {vr(ACC0+4*k+2,2)}')
            P(f'v_pk_mul_f32 v[72:73], {vr(ACC0,2)}, {vr(ACC0,2)}\nv_pk_mul_f32 v[74:75], {vr(ACC0+2,2)}, {vr(ACC0+2,2)}')
            P('v_pk_add_f32 v[64:65], v[64:65], v[66:67]\nv_pk_add_f32 v[68:69], v[68:69], v[70:71]')
            for k in range(2, 8): P(f'v_pk_fma_f32 {vr(72+2*(k&1),2)}, {vr(ACC0+2*k,2)}, {vr(ACC0+2*k,2)}, {vr(72+2*(k&1),2)}')
            P('v_pk_add_f32 v[64:65], v[64:65], v[68:69]\nv_pk_add_f32 v[72:73], v[72:73], v[74:75]')
            P('v_add_f32 v64, v64, v65\nv_add_f32 v66, v72, v73\nv_permlane32_swap_b32 v64, v66\nv_add_f32 v64, v64, v66')
            P(f'buffer_store_dword v64, {vr(vL4)}, {sr(sWS,4)}, {sr(sK1)} offen{m}')
            self.flag(sK2, sTAG, sc1, wait='s_waitcnt vmcnt(0)')
        self.two_way(emit)
        if natural:
            for a, b in SW4: P(f'v_permlane32_swap_b32 {vr(XRES+a)}, {vr(XRES+b)}')

    def frag_setup(self, base_off):
        self.P(f's_add_u32 {sr(sLB)}, {sr(sRB)}, {base_off}\ns_lshl_b32 {sr(sLR)}, {sr(sROT)}, 12\ns_add_u32 {sr(sT3)}, {sr(sLB)}, {sr(sLR)}')

    def frag_load(self, ks):
        P = self.P
        P(f'buffer_load_dwordx4 {vr(XF+4*ks,4)}, {vr(vL16)}, {sr(sWS,4)}, {sr(sT3)} offen offset:{(ks&3)*1024} sc1')
        if ks < 28:
            if ks & 3 == 0: P(f's_add_u32 {sr(sLR)}, {sr(sLR)}, 4096')
            if ks & 3 == 1: P(f's_and_b32 {sr(sLR)}, {sr(sLR)}, 0x7fff')
            if ks & 3 == 3: P(f's_add_u32 {sr(sT3)}, {sr(sLB)}, {sr(sLR)}')
        self.vm.issue(('x', ks))

    def mask_ops(self, part):
        ops = []
        if part == 0:
            ops.append(f'v_mov_b32 {vr(VV)}, 0x3f803f80')
            for i in range(1, 8): ops.append(f'v_mov_b32 {vr(VV+i)}, {vr(VV)}')
        for i in range(16):
            ci = 8*(i//4) + i % 4
            if part == 0: ops.append(f'v_subrev_f32 {vr(CDIAG+i)}, {f2u(ci*2.0**100):#x}, {vr(vFD)}')
            else: ops.append(f'v_sub_f32 {vr(CFIRST+i)}, {f2u((ci-1)*2.0**100):#x}, {vr(vFD)}')
        for i in range(16):
            c_ = (CDIAG if part == 0 else CFIRST) + i
            ops.append(f'v_min_f32 {vr(c_)}, 0, {vr(c_)}')
        if part == 0:
            for i in range(16): ops.append(f'v_mov_b32 {vr(aO+i)}, 0')
        return ops

    def stats_final(self, typ):
        a, b = STAT, STAT + 1
        it = f"""v_mov_b32 {vr(b)}, {vr(a)}
v_mov_b32 {vr(XEXT+2)}, 0
v_mov_b32 {vr(XEXT+3)}, 0
v_permlane32_swap_b32 {vr(a)}, {vr(b)}
v_mul_f32 {vr(a)}, {f2u(1/512):#x}, {vr(a)}
v_mul_f32 {vr(b)}, {f2u(1/512):#x}, {vr(b)}
v_fma_f32 {vr(b)}, -{vr(a)}, {vr(a)}, {vr(b)}
v_max_f32 {vr(b)}, 0, {vr(b)}
v_add_f32 {vr(b)}, {f2u(1e-5):#x}, {vr(b)}
v_rsq_f32 {vr(vRSTD)}, {vr(b)}
v_cndmask_b32 {vr(a)}, 0, {vr(a)}, {sr(sH0,2)}
v_and_b32 {vr(a+2)}, 0xffff0000, {vr(a)}
v_sub_f32 {vr(a+3)}, {vr(a)}, {vr(a+2)}
v_cvt_pk_bf16_f32 {vr(XEXT)}, -{vr(a+2)}, -{vr(a+2)}
v_cvt_pk_bf16_f32 {vr(XEXT+1)}, -{vr(a+3)}, 0""".split('\n')
        it.append(('ds', 'rw', f'ds_write_b32 {vr(vRA)}, {vr(vRSTD)}'))
        for q in range(4): it.append(('ds', 'rt', f'ds_read_b128 {vr(STAT+4*q,4)}, {vr(vRB)} offset:{q*32}'))
        if typ == 1: it.append(f'v_mul_f32 {vr(vRSTD)}, {sr(sLOG2E)}, {vr(vRSTD)}')
        return it

    def wext_items(self, w, tag):
        return [('wlg', tag)] + f"""v_add_f32 {vr(w)}, {vr(w)}, {vr(w+1)}
v_add_f32 {vr(w+2)}, {vr(w+2)}, {vr(w+3)}
v_add_f32 {vr(w)}, {vr(w)}, {vr(w+2)}
v_and_b32 {vr(w+2)}, 0xffff0000, {vr(w)}
v_sub_f32 {vr(w+3)}, {vr(w)}, {vr(w+2)}
v_cvt_pk_bf16_f32 {vr(w)}, {vr(w+2)}, {vr(w+3)}
v_cvt_pk_bf16_f32 {vr(w+1)}, {vr(w+2)}, 0
v_mov_b32 {vr(w+2)}, 0
v_mov_b32 {vr(w+3)}, 0""".split('\n')

    def csp_addr(self, typ):
        self.P(f'v_and_b32 {vr(vT0)}, 0x1f0, {vr(vL16)}\nv_add_u32 {vr(vT0)}, {LDS_CSP + typ*1536}, {vr(vT0)}')

    def phi_addr(self):
        return f"""v_sub_u32 {vr(vVA)}, {vr(vKA)}, {vr(vL16)}
v_and_b32 {vr(vPD)}, 31, {vr(vLANE)}
v_lshl_add_u32 {vr(vVA)}, {vr(vPD)}, 5, {vr(vVA)}
v_lshrrev_b32 {vr(vPD)}, 5, {vr(vLANE)}
v_lshl_add_u32 {vr(vVA)}, {vr(vPD)}, 4, {vr(vVA)}""".split('\n')

    def main_kv(self, L):
        P = self.P; typ = L % 2; o = self.o; XD = o['xd']
        vm, lg = self.vm, self.lg
        NR = 3
        def rdk(ks):
            P(f'ds_read_b128 {vr(RING + 8*(ks % NR),4)}, {vr(vL16)} offset:{LDS_WK+ks*1024}'); lg.issue(('k', ks))
        def rdv(ks):
            P(f'ds_read_b128 {vr(RING + 8*(ks % NR) + 4,4)}, {vr(vL16)} offset:{LDS_WV+ks*1024}'); lg.issue(('v', ks))
        csrd = [('ds', 'cs', f'ds_read_b128 {vr(WEXTK,4)}, {vr(vT0)} offset:512'), ('ds', 'cs', f'ds_read_b128 {vr(WEXTV,4)}, {vr(vT0)} offset:1024')]
        wext = self.wext_items(WEXTK, 'cs') + self.wext_items(WEXTV, 'cs')
        addr = [f'v_add_u32 {vr(vKA)}, {sr(sOWN)}, {vr(vL16)}']
        if typ == 0:
            La = L // 2
            addr += [f's_add_u32 {sr(sK0)}, {sr(sKVW)}, {OFF_KV + La*KV_L}', f's_add_u32 {sr(sK2)}, {sr(sK0)}, 4096',
                     f's_add_u32 {sr(sH1)}, {sr(sHB)}, {OFF_KV + La*KV_L}', f's_add_u32 {sr(sH2)}, {sr(sH1)}, {16*KV_REC}']
        else: addr += self.phi_addr()
        extras = []
        def pop(n):
            for _ in range(n):
                if extras: self.item(extras.pop(0))
        def kstep(ks, pre=None):
            b = RING + 8*(ks % NR)
            P(waitstr(vm=vm.need(('x', ks)) if L > 0 else None, lg=lg.need(('k', ks))))
            self.mfma(ACC0, b, XF + 4*ks, None if ks == 0 else ACC0)
            if pre: pre()
            if ks + NR < 32: rdk(ks + NR)
            if L > 0 and ks + XD < 32: self.frag_load(ks + XD); pop(1)
            else: pop(3)
            P(waitstr(lg=lg.need(('v', ks))))
            self.mfma(ACC1, XF + 4*ks, b + 4, None if ks == 0 else ACC1)
            if ks + NR < 32: rdv(ks + NR)
            if L > 0 and 1 <= ks < 9:
                for i in range(2*(ks-1), 2*(ks-1) + 2):
                    P(f'buffer_load_dword {vr(STAT+i)}, {vr(vL4)}, {sr(sWS,4)}, {sr(sT1)} offen offset:{i*256} sc1'); vm.issue('st')
            pop(3)
        self.csp_addr(typ)
        if L == 0:
            AD = WEXTV; X0D = o['x0d']
            P(f"""v_bfe_u32 {vr(AD)}, {vr(vLANE)}, 1, 3
v_xor_b32 {vr(AD)}, {vr(AD)}, v64
v_lshlrev_b32 {vr(AD)}, 4, {vr(AD)}
v_lshl_add_u32 {vr(AD)}, v65, 7, {vr(AD)}
v_add_u32 {vr(AD)}, {sr(sLA)}, {vr(AD)}
v_xor_b32 {vr(AD+1)}, 32, {vr(AD)}
v_xor_b32 {vr(AD+2)}, 64, {vr(AD)}
v_xor_b32 {vr(AD+3)}, 96, {vr(AD)}
s_mov_b32 {sr(sSEL0)}, 0x3f803f80""")
            for i in range(4): P(f'v_mov_b32 {vr(STAT+i)}, 0')
            for it in addr: self.item(it)
            for g in range(2, X0D): self.x0_load(g)
            def dots(g):
                for i in range(16):
                    r_ = XF + 16*g + i
                    P(f'v_dot2_f32_bf16 {vr(STAT+(i&1))}, {vr(r_)}, {sr(sSEL0)}, {vr(STAT+(i&1))}\nv_dot2_f32_bf16 {vr(STAT+2+(i&1))}, {vr(r_)}, {vr(r_)}, {vr(STAT+2+(i&1))}')
            for g in range(8):
                P(waitstr(vm=vm.need(('x', g))))
                for s_ in range(4): P(f'ds_read_b128 {vr(XF+16*g+4*s_,4)}, {vr(AD+s_)} offset:{(g%4)*4096}')
                if g: P('s_waitcnt lgkmcnt(4)')
                if g + X0D < 8: self.x0_load(g + X0D)
                if g: dots(g - 1)
                if g == o['wgo'] - 1: self.lds_signal(C_WGO)
                if g in (0, 3, 5): self.stamp({0: 2, 3: 15, 5: 23}[g], {0: 'x g0 / W go', 3: 'x g3 / W st0', 5: 'x g5 / W st1'}[g])
            self.lds_signal(C_XDONE)
            lg.reset()
            for it in self.lds_peek(C_ST): self.item(it)
            dots(7)
            self.stamp(1, 'x0 / W st3')
            self.lds_check(C_ST, 4)
            self.stamp(29, 'S0 / W st2')
            for ks in range(NR): rdk(ks); rdv(ks)
            P(f'v_add_f32 {vr(STAT)}, {vr(STAT)}, {vr(STAT+1)}\nv_add_f32 {vr(STAT+2)}, {vr(STAT+2)}, {vr(STAT+3)}')
            P(f'v_permlane32_swap_b32 {vr(STAT)}, {vr(STAT+2)}\nv_add_f32 {vr(STAT)}, {vr(STAT)}, {vr(STAT+2)}')
            extras += self.stats_final(typ)
            pop(10)
            for ks in range(32):
                pre = None
                st = ks // 8 + 1
                if ks % 8 == 2: extras[0:0] = self.lds_peek(C_ST + st if st < 4 else C_CS)
                if ks % 8 == 5 and st < 4: pre = lambda: self.lds_check(C_ST + st, 4)
                if ks == 28:
                    pre = lambda: self.lds_check(C_CS, 4)
                    extras += csrd + self.lds_peek(C_Q) + ['s_nop 0']*3 + wext
                kstep(ks, pre)
            pop(100)
        else:
            vm.reset(); lg.reset()
            P(f"""v_and_b32 {vr(vPA)}, 60, {vr(vL4)}
s_add_u32 {sr(sT2)}, {sr(sXF)}, {OFF_XFLAG + L*0x2000}
s_lshr_b32 {sr(sT1)}, {sr(sRB)}, 3
s_add_u32 {sr(sT1)}, {sr(sT1)}, {OFF_ST + self.al(L)*0x40000}""")
            self.frag_setup(OFF_X + self.al(L)*0x200000)
            P('s_barrier')
            self.stamp(14 + L*14 if L < 3 else 57, f'L{L} B0')
            for it in csrd: self.item(it)
            for ks in range(NR): rdk(ks); rdv(ks)
            for it in addr + wext: self.item(it)
            self.poll(sT2)
            self.stamp(2 + L*14, f'L{L} xflags')
            for ks in range(XD): self.frag_load(ks)
            late = [('wvm', 'st')]
            for step in (8, 4, 2, 1):
                for i in range(step): late.append(f'v_add_f32 {vr(STAT+i)}, {vr(STAT+i)}, {vr(STAT+i+step)}')
            late += self.stats_final(typ)
            for ks in range(32):
                if ks == 9 + XD: extras += late
                kstep(ks)
            pop(100)
        self.mfma(ACC0, WEXTK, XEXT, ACC0)
        self.mfma(ACC1, XEXT, WEXTV, ACC1)

    def q_prefetch(self, NS=5):
        for ks in range(NS): self.q_rd(ks)

    def q_rd(self, ks, NS=5):
        self.P(f'ds_read_b128 {vr(RING + 4*(ks % NS),4)}, {vr(vTR1)} offset:{ks*1024}'); self.lg.issue(('w', ks))

    def main_qpass(self, L, acc, fill, at=None, pre_write=None, rate=4):
        P = self.P; typ = L % 2; lg = self.lg; NS = 5
        fill = list(fill)
        for ks in range(32):
            P(waitstr(lg=lg.need(('w', ks))))
            self.mfma(acc, RING + 4*(ks % NS), XF + 4*ks, None if ks == 0 else acc)
            if ks + NS < 32: self.q_rd(ks + NS)
            n = 0
            while fill and n < rate:
                it = fill.pop(0); self.item(it)
                if isinstance(it, str) or it[0] == 'ds': n += 1
            if at and ks in at: at[ks]()
        for it in fill: self.item(it)
        self.mfma(acc, WEXTQ, XEXT, acc)
        if at and 32 in at: at[32]()
        order = (4, 5, 6, 7, 0, 1, 2, 3)
        for p in order:
            if typ == 0: P(f'v_mul_f32 {vr(acc+2*p)}, {vr(vRSTD)}, {vr(acc+2*p)}\nv_mul_f32 {vr(acc+2*p+1)}, {vr(vRSTD)}, {vr(acc+2*p+1)}')
            P(f'v_cvt_pk_bf16_f32 {vr(aQ+p)}, {vr(acc+2*p)}, {vr(acc+2*p+1)}')
            if p == 7:
                if pre_write: pre_write()
                P(f'ds_write_b128 {vr(vKA)}, {vr(aQ+4,4)} offset:5120')

    def tile_addr(self, sbase):
        return f"""s_lshl_b32 {sr(sT1)}, {sr(sHS)}, 10
s_add_u32 {sr(sT1)}, {sr(sT1)}, {sr(sbase)}
v_add_u32 {vr(vKA)}, {sr(sT1)}, {vr(vL16)}
s_lshl_b32 {sr(sT1)}, {sr(sHS)}, 8
v_xor_b32 {vr(vVA)}, {sr(sT1)}, {vr(vL16)}
v_add_u32 {vr(vVA)}, {sr(sbase)}, {vr(vVA)}"""

    def trickle_setup(self):
        self.P(f's_mov_b32 {sr(sDM)}, 4\ns_mov_b32 {sr(sDG)}, {sr(sG0)}\ns_mov_b32 {sr(sDL)}, {sr(sLA)}')

    def trickle(self):
        P = self.P; sk = P.newlabel('Lsk')
        P(f's_cmp_eq_u32 {sr(sDM)}, 0\ns_cbranch_scc1 {sk}\ns_mul_i32 {sr(sT0)}, {sr(sDG)}, 3')
        for e in range(2):
            for nt in (1, 2):
                P(f's_add_u32 m0, {sr(sDL)}, {NT_LDS[nt] + e*1024}\ns_add_u32 {sr(sT1)}, {sr(sT0)}, {e*49152 + nt*1024}')
                P(f'buffer_load_dwordx4 {vr(vDW)}, {sr(sWB,4)}, {sr(sT1)} offen lds')
        P(f"""s_add_u32 {sr(sDL)}, {sr(sDL)}, 8192
s_add_u32 {sr(sDG)}, {sr(sDG)}, 0x20000
s_and_b32 {sr(sDG)}, {sr(sDG)}, 0x7ffff
s_sub_u32 {sr(sDM)}, {sr(sDM)}, 1""")
        P.label(sk)

    def attn_loop(self, cfirst, trickle=False):
        P = self.P; lp = P.newlabel('Latt')
        if self.o['trunc']: pk = lambda d, e: f'v_perm_b32 {vr(d)}, {vr(e+1)}, {vr(e)}, {sr(sPERM)}'
        else: pk = lambda d, e: f'v_cvt_pk_bf16_f32 {vr(d)}, {vr(e)}, {vr(e+1)}'
        rdv = f's_mov_b64 exec, {sr(sLO,2)}\nds_read_b128 {vr(VV,4)}, {vr(vVA)} offset:2048\nds_read_b128 {vr(VV+4,4)}, {vr(vVA)} offset:3072\ns_mov_b64 exec, -1'
        P(f'ds_read_b128 {vr(aK,4)}, {vr(vKA)}'); P(rdv)
        P(f'v_add_u32 {vr(vKA)}, {sr(sSTEP)}, {vr(vKA)}\nv_add_u32 {vr(vVA)}, {sr(sSTEP)}, {vr(vVA)}\ns_waitcnt lgkmcnt(2)')
        cfirst()
        P(f'ds_read_b128 {vr(aK,4)}, {vr(vKA)}\nv_add_u32 {vr(vKA)}, {sr(sSTEP)}, {vr(vKA)}\ns_nop 9')
        P.label(lp)
        for i in range(8): P(f'v_exp_f32 {vr(aE+i)}, {vr(aS+i)}')
        for p in range(4): P(pk(aP + p, aE + 2*p))
        for i in range(8, 10): P(f'v_exp_f32 {vr(aE+i-8)}, {vr(aS+i)}')
        P('s_waitcnt lgkmcnt(0)')
        self.mfma(aO, VV, aP, aO)
        for i in range(10, 16): P(f'v_exp_f32 {vr(aE+i-8)}, {vr(aS+i)}')
        self.mfma(aS, aK, aQ, None)
        P(f'ds_read_b128 {vr(aK,4)}, {vr(vKA)}')
        for p in range(4): P(pk(aP + 4 + p, aE + 2*p))
        P(f'v_add_u32 {vr(vKA)}, {sr(sSTEP)}, {vr(vKA)}\ns_sub_u32 {sr(sCNT)}, {sr(sCNT)}, 1')
        self.mfma(aO, VV + 4, aP + 4, aO)
        P(rdv)
        if trickle: self.trickle()
        P(f'v_add_u32 {vr(vVA)}, {sr(sSTEP)}, {vr(vVA)}\ns_cmp_lg_u32 {sr(sCNT)}, 0\ns_cbranch_scc1 {lp}')

    def publish_o_addr(self, L):
        return [f's_add_u32 {sr(sK0)}, {sr(sOW)}, {OFF_O + self.al(L)*0x200000}', f's_add_u32 {sr(sK1)}, {sr(sOF)}, {OFF_OFLAG + L*0x2000}']

    def publish_o(self, L, O, eps):
        P = self.P
        if eps: P(f'v_add_f32 {vr(O+8)}, {f2u(eps):#x}, {vr(O+8)}')
        P(f'v_rcp_f32 {vr(O+8)}, {vr(O+8)}')
        for p in range(4): P(f'v_pk_mul_f32 {vr(O+2*p,2)}, {vr(O+2*p,2)}, {vr(O+8,2)} op_sel_hi:[1,0]')
        for p in range(4): P(f'v_cvt_pk_bf16_f32 {vr(aP+p)}, {vr(O+2*p)}, {vr(O+2*p+1)}')
        def emit(sc1):
            P(f'buffer_store_dwordx4 {vr(aP,4)}, {vr(vL16)}, {sr(sWS,4)}, {sr(sK0)} offen' + (' sc1' if sc1 else ''))
            self.flag(sK1, sTAG, sc1, wait='s_waitcnt vmcnt(0)')
        self.two_way(emit)

    def main_outproj(self, L):
        P = self.P; vm, lg = self.vm, self.lg; OD = self.o['od']
        vm.reset(); lg.reset()
        if L == 0:
            self.rowmajor_addr(vVA, vKA, sT0)
            P(f'buffer_load_dwordx4 {vr(XRES,4)}, {vr(vVA)}, {sr(sX0,4)}, {sr(sT0)} offen\nbuffer_load_dwordx4 {vr(XRES+4,4)}, {vr(vVA)}, {sr(sX0,4)}, {sr(sT0)} offen offset:32')
            self.wphi_load()
        NS = 6
        def rd(ks):
            P(f'ds_read_b128 {vr(RING + 4*(ks % NS),4)}, {vr(vTR2)} offset:{ks*1024}'); lg.issue(('w', ks))
        for ks in range(NS): rd(ks)
        P(f'v_and_b32 {vr(vPA)}, 124, {vr(vL4)}\ns_add_u32 {sr(sT2)}, {sr(sXF)}, {OFF_OFLAG + L*0x2000}')
        self.frag_setup(OFF_O + self.al(L)*0x200000)
        self.publish_x_addr(L + 1)
        if L == 0:
            P('s_waitcnt vmcnt(0)')
            for a, b in SW4: P(f'v_permlane32_swap_b32 {vr(XRES+a)}, {vr(XRES+b)}')
            self.wphi_pack()
        self.unpack_res()
        self.poll(sT2)
        self.stamp(11 + L*14, f'L{L} oflags')
        for ks in range(OD): self.frag_load(ks)
        for ks in range(32):
            P(waitstr(vm=vm.need(('x', ks)), lg=lg.need(('w', ks))))
            self.mfma(ACC0, RING + 4*(ks % NS), XF + 4*ks, ACC0)
            if ks + OD < 32: self.frag_load(ks + OD)
            if ks + NS < 32: rd(ks + NS)
        self.stamp(12 + L*14, f'L{L} outproj')
        self.publish_x(L + 1)
        self.stamp(13 + L*14, f'L{L} xpub')

    def aux_head(self, L):
        P = self.P
        if L + 1 < self.nl: self.code_prefetch(f'L_main_{L+1}')
        if L == 1:
            self.lds_to_regs(LDS_WO, PARK['o']); P('s_waitcnt lgkmcnt(0)')
        else: self.swap_region('o', L + 1 < self.nl)

    def aux_tail(self, L):
        P = self.P
        if L + 1 >= self.nl: return
        if L % 2 == 0: wait_att = lambda: self.lds_wait(C_ATT, 8*(L//2 + 1))
        else: wait_att = lambda: None
        if L == 0:
            lp = P.newlabel('Lx'); P.label(lp)
            self.trickle()
            P(f's_cmp_lg_u32 {sr(sDM)}, 0\ns_cbranch_scc1 {lp}')
            self.wphi_load()
            wait_att()
            self.dma_w(1, (0,))
            P('s_waitcnt vmcnt(8)')
            self.wphi_pack()
            self.relayout(1, (1, 2))
            P('s_waitcnt vmcnt(0)')
            self.relayout(1, (0,))
            return
        save = L + 2 < self.nl
        self.swap_region(1, save); self.swap_region(2, save)
        wait_att()
        self.swap_region(0, save)

    def layerA(self, L):
        P = self.P; sb = L * 14; o = self.o; lg = self.lg
        j1 = f'L_j1_{L}'; j2 = f'L_j2_{L}'; ax2 = f'L_ax2_{L}'; ax3 = f'L_ax3_{L}'
        P.label(f'L_main_{L}')
        self.main_kv(L)
        self.stamp(3 + sb, f'L{L} kvpass')
        if L == 0: self.lds_check(C_Q, 4)
        self.q_prefetch()
        P(waitstr(lg=lg.need('rt')))
        for p in range(8):
            P(f'v_pk_mul_f32 {vr(ACC0+2*p,2)}, {vr(ACC0+2*p,2)}, {vr(vRSTD,2)} op_sel_hi:[1,0]')
        for p in range(8): P(f'v_cvt_pk_bf16_f32 {vr(PKV+p)}, {vr(ACC0+2*p)}, {vr(ACC0+2*p+1)}')
        st = lambda f: f'buffer_store_dwordx4 {vr(PKV+4*f,4)}, {vr(vL16)}, {sr(sWS,4)}, {sr(sK0)} offen offset:{f*1024} sc1'
        fill = [st(0), st(1)]
        for hf in range(2):
            fill += [f'v_mul_f32 {vr(ACC1+i)}, {vr(STAT+i)}, {vr(ACC1+i)}' for i in range(8*hf, 8*hf + 8)]
            fill += [f'v_cvt_pk_bf16_f32 {vr(PKV+8+p)}, {vr(ACC1+2*p)}, {vr(ACC1+2*p+1)}' for p in range(4*hf, 4*hf + 4)]
            fill.append(st(2 + hf))
        fill += self.checksum(vPA, PKV, 16) + [f'buffer_store_dword {vr(vPA)}, {vr(vL4)}, {sr(sWS,4)}, {sr(sK2)} offen sc1']
        fill += [('ds', 'own', f'ds_write_b128 {vr(vKA)}, {vr(PKV+4*f,4)} offset:{f*1024}') for f in range(4)]
        m0 = self.mask_ops(0)
        if L == 0: fill += m0[:30] + self.lds_peek(C_CSQ) + m0[30:44] + [('fn', lambda: self.lds_check(C_CSQ, 4))]
        else: fill += m0[:44]
        fill += [('ds', 'cs', f'ds_read_b128 {vr(WEXTQ,4)}, {vr(vT0)}')] + m0[44:]
        fill += [f'v_mul_f32 {vr(vRSTD)}, {f2u(0.25*LOG2E):#x}, {vr(vRSTD)}'] + self.wext_items(WEXTQ, 'cs')
        def halo_loads():
            P(f'v_add_u32 v162, 4096, {vr(vL4)}')
            for t_, sh in ((0, sH1), (1, sH2)):
                for f in range(4): P(f'buffer_load_dwordx4 {vr(aH+16*t_+4*f,4)}, {vr(vL16)}, {sr(sWS,4)}, {sr(sh)} offen offset:{f*1024} sc1')
                P(f'buffer_load_dword {vr(160+t_)}, v162, {sr(sWS,4)}, {sr(sh)} offen sc1')
        def halo_first():
            l = P.newlabel('Lx')
            P(f's_cmp_eq_u32 {sr(sHAS)}, 0\ns_cbranch_scc1 {l}')
            halo_loads()
            P.label(l)
        common = self.publish_o_addr(L) + [f's_add_u32 {sr(sCNT)}, {sr(sQT)}, 1', f's_mov_b32 {sr(sSTEP)}, {-OWN_ST}']
        def gap32():
            for it in common + [f'v_mov_b32 {vr(vVA)}, {vr(vKA)}']: P(it)
            if o['halo_at'] == 32: halo_first()
        at = {32: gap32}
        if o['halo_at'] < 32: at[o['halo_at']] = halo_first
        self.main_qpass(L, ACC0, fill, at=at)
        if o['halo_at'] == 33: halo_first()
        if o['prio']: self.prio_if(f's_cmp_ge_u32 {sr(sQT)}, 2')
        self.stamp(5 + sb, f'L{L} preB1')
        P(f's_waitcnt lgkmcnt(0)\ns_barrier\ns_branch {j1}')
        P.label(f'L_aux_{L}')
        if L > 0:
            P('s_barrier')
            self.aux_head(L)
            for op in self.mask_ops(0) + self.mask_ops(1): P(op)
        else: self.trickle_setup()
        P(self.tile_addr(sOWN))
        for it in common: P(it)
        if o['prio']: self.prio_if(f's_cmp_ge_u32 {sr(sQT)}, 2')
        self.stamp(5 + sb, f'L{L} preB1')
        P('s_barrier')
        P(f'ds_read_b128 {vr(aQ,4)}, {vr(vKA)} offset:4096')
        P.label(j1)
        self.attn_loop(lambda: self.mfma(aS, aK, aQ, CDIAG))
        P(self.tile_addr(sP2))
        P(f's_mov_b32 {sr(sCNT)}, {sr(sC2)}\ns_mov_b32 {sr(sSTEP)}, 4096')
        if o['prio']: self.prio_if(f's_cmp_lt_u32 {sr(sQT)}, 2')
        self.stamp(6 + sb, f'L{L} own attn')
        lp = P.newlabel('Lhalo'); ck = P.newlabel('Lhchk'); dn = P.newlabel('Lhdone')
        P(f's_cmp_lg_u32 {sr(sHS)}, 0\ns_cbranch_scc1 {ax2 if L == 0 else j2}')
        if o['halo_at'] > 33: halo_first()
        for op in self.mask_ops(1): P(op)
        P(f"""s_cmp_eq_u32 {sr(sHAS)}, 0
s_cbranch_scc1 {j2}
s_lshl_b32 {sr(sT3)}, {sr(sMT)}, 13
s_add_u32 {sr(sT3)}, {sr(sT3)}, {LDS_T}
v_add_u32 {vr(vT0)}, {sr(sT3)}, {vr(vL16)}
s_branch {ck}""")
        P.label(lp)
        halo_loads()
        P.label(ck)
        for t_ in range(2):
            cs = self.checksum(163 + t_, aH + 16*t_, 16)
            for f in range(4):
                P(f's_waitcnt vmcnt({9-5*t_-f})\nds_write_b128 {vr(vT0)}, {vr(aH+16*t_+4*f,4)} offset:{(4*t_+f)*1024}')
                P(cs[2*f]); P(cs[2*f + 1])
            P(f's_waitcnt vmcnt({5-5*t_})\nv_cmp_ne_u32 {sr(sM+2*t_,2)}, {vr(160+t_)}, {vr(163+t_)}')
        P(f's_or_b64 {sr(sM,2)}, {sr(sM,2)}, {sr(sM+2,2)}\ns_cbranch_scc0 {dn}')
        self.retry_tail(lp, dn)
        self.stamp(7 + sb, f'L{L} halo ok')
        if L == 0:
            P(f's_branch {j2}'); P.label(ax2)
            P('s_waitcnt vmcnt(0) lgkmcnt(0)')
            lt = P.newlabel('Lx')
            P(f"""s_cmp_lg_u32 {sr(sMT)}, 1
s_cbranch_scc1 {lt}
v_lshrrev_b32 v25, 4, {vr(vLANE)}
v_and_b32 v5, 15, {vr(vLANE)}
v_lshlrev_b32 v5, 7, v5
v_lshl_add_u32 v5, v25, 15, v5
s_lshl_b32 {sr(sT0)}, {sr(sR)}, 17
s_lshl_b32 {sr(sT1)}, {sr(sC)}, 11
s_add_u32 {sr(sT0)}, {sr(sT0)}, {sr(sT1)}
s_add_u32 {sr(sT1)}, {sr(sT0)}, {OFF_O}
buffer_load_dword v26, v5, {sr(sWS,4)}, {sr(sT1)} offen sc1
s_add_u32 {sr(sT1)}, {sr(sT0)}, {OFF_X + self.al(1)*0x200000}
buffer_load_dword v26, v5, {sr(sWS,4)}, {sr(sT1)} offen sc1
v_and_b32 v5, 128, v5
v_lshl_add_u32 v5, v25, 12, v5
s_lshr_b32 {sr(sT0)}, {sr(sT0)}, 3
s_add_u32 {sr(sT1)}, {sr(sT0)}, {OFF_ST + self.al(1)*0x40000}
buffer_load_dword v26, v5, {sr(sWS,4)}, {sr(sT1)} offen sc1""")
            P.label(lt)
            self.relayout(0, ('o',), tmp=aS, ntmp=4)
            if not self.force_safe:
                P(f"""s_cmp_lg_u32 {sr(sMT)}, 0
s_cbranch_scc1 {j2}
v_and_b32 {vr(vPA)}, 60, {vr(vL4)}
s_lshl_b32 {sr(sT2)}, {sr(sR)}, 7
s_add_u32 {sr(sT2)}, {sr(sT2)}, {OFF_XFLAG}""")
                self.poll(sT2, masked=True)
                P(f"""v_cmp_ne_u32 vcc, {sr(sOWNF)}, {vr(vPD)}
s_cmp_eq_u64 vcc, 0
s_cselect_b32 {sr(sFAST)}, 1, 0
v_mov_b32 {vr(vT0)}, {sr(sFAST)}
ds_write_b32 {vr(vCNT)}, {vr(vT0)} offset:44""")
        P.label(j2)
        lskip = P.newlabel('Lnohalo'); l1 = P.newlabel('Lr1'); l2 = P.newlabel('Lr2')
        P('s_waitcnt lgkmcnt(0)\ns_barrier')
        if L == 0 and not self.force_safe: P(f'ds_read_b32 {vr(vPD)}, {vr(vCNT)} offset:44')
        self.stamp(8 + sb, f'L{L} B2')
        P(f's_cmp_eq_u32 {sr(sR)}, 0\ns_cbranch_scc1 {lskip}')
        def first():
            P(f's_cmp_eq_u32 {sr(sR)}, 1\ns_cbranch_scc1 {l1}')
            self.mfma(aS, aK, aQ, CFIRST)
            P(f's_branch {l2}'); P.label(l1)
            self.mfma(aS, aK, aQ, None)
            P.label(l2)
        self.attn_loop(first, trickle=(L == 0))
        P.label(lskip)
        if L == 0 and not self.force_safe: P(f's_waitcnt lgkmcnt(0)\nv_readfirstlane_b32 {sr(sFAST)}, {vr(vPD)}')
        self.stamp(9 + sb, f'L{L} attn')
        P(f'v_subrev_u32 {vr(vT0)}, {f2u(2.0**-SAFE_EXP):#x}, {vr(aO+8)}\nv_cmp_le_u32 vcc, {f2u(2.0**SAFE_EXP) - f2u(2.0**-SAFE_EXP):#x}, {vr(vT0)}\ns_cbranch_vccnz L_fb_{L}')
        P.label(f'L_fbr_{L}')
        self.publish_o(L, aO, 0)
        if o['prio']: P('s_setprio 0')
        self.lds_signal(C_ATT)
        self.stamp(10 + sb, f'L{L} opub')
        P(f's_cmp_lg_u32 {sr(sHS)}, 0\ns_cbranch_scc1 {ax3}')
        self.main_outproj(L)
        P(f's_branch L_main_{L+1}')
        P.label(ax3)
        self.aux_tail(L)
        self.stamp(13 + sb, f'L{L} xpub')
        P(f's_branch L_aux_{L+1}')

    def attn_fallback(self, L):
        P = self.P; M = vT0
        pk = lambda d, e: f'v_cvt_pk_bf16_f32 {vr(d)}, {vr(e)}, {vr(e+1)}'
        P.label(f'L_fb_{L}')
        P(f's_waitcnt lgkmcnt(0)\nv_mov_b32 {vr(M)}, 0xff800000')
        for i in range(16): P(f'v_mov_b32 {vr(aO+i)}, 0')
        for ps in range(2):
            for seg in range(2):
                lp = P.newlabel('Lfb'); nx = P.newlabel('Lfbn'); nm = P.newlabel('Lfbm')
                if seg == 0:
                    P(self.tile_addr(sOWN))
                    P(f's_add_u32 {sr(sCNT)}, {sr(sQT)}, 1\ns_mov_b32 {sr(sSTEP)}, {-OWN_ST}')
                    for i in range(16): P(f'v_mov_b32 {vr(aS+i)}, {vr(CDIAG+i)}')
                else:
                    P(f's_cmp_eq_u32 {sr(sR)}, 0\ns_cbranch_scc1 {nx}')
                    P(self.tile_addr(sP2))
                    P(f's_mov_b32 {sr(sCNT)}, {sr(sC2)}\ns_mov_b32 {sr(sSTEP)}, 4096\ns_cmp_eq_u32 {sr(sR)}, 1\ns_cbranch_scc1 {lp}')
                    for i in range(16): P(f'v_mov_b32 {vr(aS+i)}, {vr(CFIRST+i)}')
                P.label(lp)
                P(f'ds_read_b128 {vr(aK,4)}, {vr(vKA)}')
                if ps:
                    P(f's_mov_b64 exec, {sr(sLO,2)}\nds_read_b128 {vr(VV,4)}, {vr(vVA)} offset:2048\nds_read_b128 {vr(VV+4,4)}, {vr(vVA)} offset:3072\ns_mov_b64 exec, -1')
                P('s_waitcnt lgkmcnt(0)')
                self.mfma(aS, aK, aQ, aS)
                if ps == 0:
                    for i in range(0, 16, 2): P(f'v_max3_f32 {vr(M)}, {vr(M)}, {vr(aS+i)}, {vr(aS+i+1)}')
                else:
                    for i in range(16): P(f'v_sub_f32 {vr(aS+i)}, {vr(aS+i)}, {vr(M)}')
                    for i in range(16): P(f'v_exp_f32 {vr(aS+i)}, {vr(aS+i)}')
                    for p in range(8): P(pk(aP + p, aS + 2*p))
                    self.mfma(aO, VV, aP, aO)
                    self.mfma(aO, VV + 4, aP + 4, aO)
                for i in range(16): P(f'v_mov_b32 {vr(aS+i)}, 0')
                P(f'v_add_u32 {vr(vKA)}, {sr(sSTEP)}, {vr(vKA)}\nv_add_u32 {vr(vVA)}, {sr(sSTEP)}, {vr(vVA)}')
                P(f's_sub_u32 {sr(sCNT)}, {sr(sCNT)}, 1\ns_cmp_lg_u32 {sr(sCNT)}, 0\ns_cbranch_scc1 {lp}')
                P.label(nx)
            if ps == 0:
                P(f'v_mov_b32 {vr(vPD)}, {vr(M)}\nv_permlane32_swap_b32 {vr(vPD)}, {vr(M)}\nv_max_f32 {vr(M)}, {vr(M)}, {vr(vPD)}')
        P(f's_branch L_fbr_{L}')

    def softmax16(self, dst, t):
        P = self.P; A = ACC0
        P(f'v_max3_f32 {vr(t)}, {vr(A)}, {vr(A+1)}, {vr(A+2)}\nv_max3_f32 {vr(t+1)}, {vr(A+3)}, {vr(A+4)}, {vr(A+5)}')
        P(f'v_max3_f32 {vr(t+2)}, {vr(A+6)}, {vr(A+7)}, {vr(A+8)}\nv_max3_f32 {vr(t+3)}, {vr(A+9)}, {vr(A+10)}, {vr(A+11)}')
        P(f'v_max3_f32 {vr(t)}, {vr(t)}, {vr(A+12)}, {vr(A+13)}\nv_max3_f32 {vr(t+1)}, {vr(t+1)}, {vr(A+14)}, {vr(A+15)}')
        P(f'v_max3_f32 {vr(t)}, {vr(t)}, {vr(t+2)}, {vr(t+3)}\nv_max_f32 {vr(t)}, {vr(t)}, {vr(t+1)}')
        P(f'v_mul_f32 {vr(t)}, {vr(vRSTD)}, {vr(t)}')
        for i in range(4): P(f'v_fma_f32 {vr(A+i)}, {vr(A+i)}, {vr(vRSTD)}, -{vr(t)}')
        for i in range(16):
            P(f'v_exp_f32 {vr(A+i)}, {vr(A+i)}')
            if i + 4 < 16: P(f'v_fma_f32 {vr(A+i+4)}, {vr(A+i+4)}, {vr(vRSTD)}, -{vr(t)}')
            if i == 2: P(f'v_add_f32 {vr(t+1)}, {vr(A)}, {vr(A+1)}')
            if i >= 3: P(f'v_add_f32 {vr(t+1)}, {vr(t+1)}, {vr(A+i-1)}')
        P(f'v_add_f32 {vr(t+1)}, {vr(t+1)}, {vr(A+15)}\nv_rcp_f32 {vr(t)}, {vr(t+1)}')
        for p in range(8):
            P(f'v_mul_f32 {vr(A+2*p)}, {vr(t)}, {vr(A+2*p)}\nv_mul_f32 {vr(A+2*p+1)}, {vr(t)}, {vr(A+2*p+1)}')
        for p in range(8): P(f'v_cvt_pk_bf16_f32 {vr(dst+p)}, {vr(A+2*p)}, {vr(A+2*p+1)}')

    def layerB(self, L):
        P = self.P; Lb = L // 2; sb = L * 14; o = self.o; lg = self.lg
        j0 = f'L_j0_{L}'; j1 = f'L_j1_{L}'; j2 = f'L_j2_{L}'; ax1 = f'L_ax1_{L}'; ax1b = f'L_ax1b_{L}'; ax3 = f'L_ax3_{L}'; axz = f'L_axz_{L}'
        KA, KV_ = 48, 96
        vA16, vA4, vAW, vAO = 96, 97, 98, 99
        P.label(f'L_main_{L}')
        self.main_kv(L)
        self.stamp(3 + sb, f'L{L} kvpass')
        P(waitstr(lg=lg.need('rt')))
        for p in (4, 5, 6, 7): P(f'v_cvt_pk_bf16_f32 {vr(PKV+p)}, {vr(ACC0+2*p)}, {vr(ACC0+2*p+1)}')
        P(f'ds_write_b128 {vr(vKA)}, {vr(PKV+4,4)} offset:1024')
        for p in (0, 1, 2, 3): P(f'v_cvt_pk_bf16_f32 {vr(PKV+p)}, {vr(ACC0+2*p)}, {vr(ACC0+2*p+1)}')
        vmul = lambda p: f'v_pk_mul_f32 {vr(ACC1+2*p,2)}, {vr(ACC1+2*p,2)}, {vr(STAT+2*p,2)}'
        P(vmul(0)); P(vmul(1))
        self.mfma(ACC0, WPHI, PKV, None)
        for p in range(2, 8): P(vmul(p))
        P('s_waitcnt lgkmcnt(0)\ns_barrier')
        for p in range(8): P(f'v_cvt_pk_bf16_f32 {vr(PKV+8+p)}, {vr(ACC1+2*p)}, {vr(ACC1+2*p+1)}')
        for f in range(2, 4): P(f'ds_write_b128 {vr(vKA)}, {vr(PKV+4*f,4)} offset:{f*1024}')
        P(f's_branch {j0}')
        P.label(f'L_aux_{L}')
        P('s_barrier')
        self.aux_head(L)
        for i in range(32): P(f'v_mov_b32 {vr(KV_+i)}, {vr(ONES)}')
        P(f"""v_lshrrev_b32 v91, 5, {vr(vLANE)}
v_bfe_u32 v88, {vr(vLANE)}, 2, 2
v_lshl_add_u32 v88, v91, 2, v88
v_lshlrev_b32 v88, 5, v88
v_and_b32 v89, 1, {vr(vLANE)}
v_lshl_add_u32 v88, v89, 4, v88
v_bfe_u32 v89, {vr(vLANE)}, 4, 1
v_lshl_add_u32 v88, v89, 12, v88
v_bfe_u32 v89, {vr(vLANE)}, 1, 1
v_lshl_add_u32 v88, v89, 3, v88
s_lshl_b32 {sr(sT0)}, {sr(sMT)}, 10
s_add_u32 {sr(sT0)}, {sr(sT0)}, {LDS_OWN}
v_add_u32 v88, {sr(sT0)}, v88
s_lshl_b32 {sr(sT1)}, {sr(sMT)}, 8
v_xor_b32 v90, {sr(sT1)}, {vr(vL16)}
v_add_u32 v89, {LDS_OWN}, v90
s_lshl_b32 {sr(sT0)}, {sr(sMT)}, 5
s_add_u32 {sr(sT0)}, {sr(sT0)}, 1024
v_lshl_add_u32 v91, v91, 4, {sr(sT0)}
v_and_b32 v92, 31, {vr(vLANE)}
v_mov_b32 v93, {OOB:#x}
v_cmp_eq_u32 vcc, 16, v92
v_cndmask_b32 v91, v93, v91, vcc
v_cndmask_b32 v90, v91, v90, {sr(sLO,2)}
v_lshrrev_b32 v91, 2, v90
s_lshl_b32 {sr(sK2)}, {sr(sC)}, 4
s_add_u32 {sr(sK2)}, {sr(sK2)}, {sr(sR)}
s_mul_i32 {sr(sK2)}, {sr(sK2)}, {KP_REC}
s_add_u32 {sr(sK2)}, {sr(sK2)}, {OFF_KP + Lb*KP_L}""")
        P(self.tile_addr(sOWN))
        for op in self.phi_addr(): P(op)
        P(f's_lshl_b32 {sr(sT0)}, {sr(sQT)}, 7\ns_add_u32 {sr(sT0)}, {sr(sT0)}, {LDS_RSTD}\nv_and_b32 v25, 124, {vr(vL4)}\nv_add_u32 v25, {sr(sT0)}, v25')
        self.stamp(3 + sb, f'L{L} kvpass')
        P('s_barrier')
        P(f'ds_read_b128 {vr(RING+8,4)}, {vr(vKA)}\nds_read_b32 {vr(vRSTD)}, v25\ns_waitcnt lgkmcnt(1)')
        self.mfma(ACC0, WPHI, RING + 8, None)
        P(f's_waitcnt lgkmcnt(0)\nv_mul_f32 {vr(vRSTD)}, {sr(sLOG2E)}, {vr(vRSTD)}\ns_nop 9')
        P.label(j0)
        self.stamp(4 + sb, f'L{L} B1a')
        self.softmax16(RING, RING + 12)
        P(f'ds_write_b128 {vr(vVA)}, {vr(RING,4)}\nds_write_b128 {vr(vVA)}, {vr(RING+4,4)} offset:4096\ns_waitcnt lgkmcnt(0)\ns_barrier')
        self.stamp(5 + sb, f'L{L} B1b')
        common = self.publish_o_addr(L) + f"""s_mul_i32 {sr(sH1)}, {sr(sC)}, {16*KP_REC}
s_add_u32 {sr(sH1)}, {sr(sH1)}, {OFF_KP + Lb*KP_L}
s_mov_b32 {sr(sSEL0)}, 0x3f80
s_mov_b32 {sr(sSEL1)}, 0x3f800000
s_lshl_b32 {sr(sT0)}, {sr(sHS)}, 4
v_xor_b32 {vr(vAO)}, {sr(sT0)}, {vr(vLANE)}
v_lshlrev_b32 {vr(vAO)}, 5, {vr(vAO)}
v_add_u32 {vr(vAO)}, {LDS_KVT}, {vr(vAO)}
v_and_b32 v100, 32, {vr(vLANE)}
s_lshl_b32 {sr(sT0)}, {sr(sHS)}, 6
s_add_u32 {sr(sT0)}, {sr(sT0)}, {LDS_ZT}
v_add_u32 v100, {sr(sT0)}, v100
v_cndmask_b32 {vr(vAO)}, v100, {vr(vAO)}, {sr(sLO,2)}""".split('\n')
        def entry_addr(ent, part):
            return ent + part + f"""v_mul_u32_u24 {vr(vA16)}, {KP_REC}, {vr(vA16)}
v_lshl_add_u32 {vr(vA4)}, v100, 2, {vr(vA16)}
v_lshl_add_u32 {vr(vA16)}, v100, 4, {vr(vA16)}
v_lshrrev_b32 {vr(vAW)}, 4, {vr(vLANE)}
v_lshlrev_b32 {vr(vAW)}, 3, {vr(vAW)}
v_lshl_add_u32 {vr(vAW)}, v100, 5, {vr(vAW)}
v_add_u32 {vr(vAW)}, {LDS_KVT}, {vr(vAW)}""".split('\n')
        A = ACC1; KD = 128
        def loads_main():
            P(f's_mov_b32 {sr(sT0)}, {sr(sH1)}')
            for it in range(4):
                D = KD + 12*it
                P(f'buffer_load_dwordx4 {vr(D,4)}, {vr(vA16)}, {sr(sWS,4)}, {sr(sT0)} offen sc1\nbuffer_load_dwordx4 {vr(D+4,4)}, {vr(vA16)}, {sr(sWS,4)}, {sr(sT0)} offen offset:{KP_D1} sc1')
                P(f'buffer_load_dword {vr(D+8)}, {vr(vA4)}, {sr(sWS,4)}, {sr(sT0)} offen offset:{KP_CS} sc1')
                if it < 3: P(f's_add_u32 {sr(sT0)}, {sr(sT0)}, {4*KP_REC}')
        P(f's_cmp_lg_u32 {sr(sHS)}, 0\ns_cbranch_scc1 {ax1}')
        lg.reset()
        self.q_prefetch()
        fill = [('ds', 'cs', f'ds_read_b128 {vr(WEXTQ,4)}, {vr(vT0)}')] + common
        fill += entry_addr([f'v_and_b32 v100, 15, {vr(vLANE)}', f's_lshl_b32 {sr(sT0)}, {sr(sMT)}, 4', f'v_add_u32 v100, {sr(sT0)}, v100'], [f'v_lshrrev_b32 {vr(vA16)}, 4, {vr(vLANE)}'])
        fill += self.wext_items(WEXTQ, 'cs')
        self.main_qpass(L, ACC1, fill, pre_write=lambda: P('s_barrier'), rate=2)
        self.mfma(ACC0, WPHI, aQ, None)
        P('s_waitcnt lgkmcnt(0)\ns_barrier')
        if o['kp_at'] == 1: loads_main()
        P(f's_branch {j1}')
        P.label(ax1)
        P(f's_cmp_ge_u32 {sr(sMT)}, 2\ns_cbranch_scc1 {ax1b}\ns_setprio 3')
        for st in range(8):
            of = (st >> 1)*OWN_ST + (st & 1)*512
            P(f'ds_read_b64_tr_b16 {vr(KA+4*st,2)}, v88 offset:{of}\nds_read_b64_tr_b16 {vr(KA+2+4*st,2)}, v88 offset:{of+256}')
            P(f's_mov_b64 exec, {sr(sLO,2)}\nds_read_b128 {vr(KV_+4*st,4)}, v89 offset:{(st>>1)*OWN_ST + 2048 + (st&1)*1024}\ns_mov_b64 exec, -1')
            if st >= 3:
                P('s_waitcnt lgkmcnt(9)'); self.mfma(ACC0, KA + 4*(st-3), KV_ + 4*(st-3), None if st == 3 else ACC0)
        for st in range(5, 8):
            P(f's_waitcnt lgkmcnt({3*(7-st)})'); self.mfma(ACC0, KA + 4*st, KV_ + 4*st, ACC0)
        for p in range(8): P(f'v_cvt_pk_bf16_f32 {vr(80+p)}, {vr(ACC0+2*p)}, {vr(ACC0+2*p+1)}')
        P(f'buffer_store_dwordx4 v[80:83], v90, {sr(sWS,4)}, {sr(sK2)} offen sc1\nbuffer_store_dwordx4 v[84:87], v90, {sr(sWS,4)}, {sr(sK2)} offen offset:{KP_D1} sc1')
        for op in self.checksum(92, 80, 8): P(op)
        P(f'buffer_store_dword v92, v91, {sr(sWS,4)}, {sr(sK2)} offen offset:{KP_CS} sc1')
        self.stamp(6 + sb, f'L{L} phiq / kp stored')
        P('s_setprio 0')
        P.label(ax1b)
        if L == 1: self.dma_w(1, ('o',))
        for it in common + entry_addr([f'v_and_b32 v100, 3, {vr(vLANE)}', 'v_add_u32 v100, 64, v100'], [f'v_lshrrev_b32 {vr(vA16)}, 2, {vr(vLANE)}']): P(it)
        P('s_barrier\ns_barrier')
        P(f'ds_read_b128 {vr(aQ,4)}, {vr(vKA)} offset:4096\ns_waitcnt lgkmcnt(0)')
        self.mfma(ACC0, WPHI, aQ, None)
        P('s_nop 11')
        P.label(j1)
        self.softmax16(PHQ, RING + 12)
        P(f's_cmp_lg_u32 {sr(sHS)}, 0\ns_cbranch_scc1 {axz}')
        def fold():
            for j in range(8): P(f'v_permlane32_swap_b32 {vr(A+j)}, {vr(A+j+8)}')
            for j in range(4): P(f'v_pk_add_f32 {vr(A+2*j,2)}, {vr(A+2*j,2)}, {vr(A+2*j+8,2)}')
            for j in range(4): P(f'v_permlane16_swap_b32 {vr(A+j)}, {vr(A+j+4)}')
            for j in range(2): P(f'v_pk_add_f32 {vr(A+2*j,2)}, {vr(A+2*j,2)}, {vr(A+2*j+4,2)}')
        def unpack(D):
            for k in range(8): P(f'v_lshlrev_b32 {vr(A+2*k)}, 16, {vr(D+k)}\nv_and_b32 {vr(A+2*k+1)}, 0xffff0000, {vr(D+k)}')
        fin = f'v_cvt_pk_bf16_f32 v68, {vr(A)}, {vr(A+1)}\nv_cvt_pk_bf16_f32 v69, {vr(A+2)}, {vr(A+3)}\nds_write_b64 {vr(vAW)}, v[68:69]'
        self.stamp(6 + sb, f'L{L} phiq / kp stored')
        lp = P.newlabel('Lkp'); ck = P.newlabel('Lkpc'); dn = P.newlabel('Lkpd')
        if o['kp_at'] == 1: P(f's_branch {ck}')
        P.label(lp)
        loads_main()
        P.label(ck)
        for it in range(4):
            D = KD + 12*it
            P(f's_waitcnt vmcnt({9-3*it})')
            for op in self.checksum(D + 9, D, 8): P(op)
            P(f'v_cmp_ne_u32 {sr(sM+2*it,2)}, {vr(D+8)}, {vr(D+9)}')
            if it == 0: unpack(D)
            elif it < 3:
                for k in range(8):
                    P(f'v_dot2_f32_bf16 {vr(A+2*k)}, {vr(D+k)}, {sr(sSEL0)}, {vr(A+2*k)}\nv_dot2_f32_bf16 {vr(A+2*k+1)}, {vr(D+k)}, {sr(sSEL1)}, {vr(A+2*k+1)}')
        P(f's_or_b64 {sr(sM,2)}, {sr(sM,2)}, {sr(sM+2,2)}\ns_or_b64 {sr(sM+4,2)}, {sr(sM+4,2)}, {sr(sM+6,2)}\ns_or_b64 {sr(sM,2)}, {sr(sM,2)}, {sr(sM+4,2)}\ns_cbranch_scc0 {dn}')
        self.retry_tail(lp, dn)
        self.stamp(7 + sb, f'L{L} kp ok')
        D = KD + 36
        for k in range(8):
            P(f'v_dot2_f32_bf16 {vr(A+2*k)}, {vr(D+k)}, {sr(sSEL0)}, {vr(A+2*k)}\nv_dot2_f32_bf16 {vr(A+2*k+1)}, {vr(D+k)}, {sr(sSEL1)}, {vr(A+2*k+1)}')
        fold()
        P(fin)
        P(f's_branch {j2}')
        P.label(axz)
        if L == 1:
            P('s_waitcnt vmcnt(0)')
            self.relayout(1, ('o',), tmp=32)
        P(f's_cmp_lg_u32 {sr(sMT)}, 2\ns_cbranch_scc1 {j2}')
        lp = P.newlabel('Lkz'); dn = P.newlabel('Lkzd'); D = 32
        P.label(lp)
        P(f'buffer_load_dwordx4 {vr(D,4)}, {vr(vA16)}, {sr(sWS,4)}, {sr(sH1)} offen sc1\nbuffer_load_dwordx4 {vr(D+4,4)}, {vr(vA16)}, {sr(sWS,4)}, {sr(sH1)} offen offset:{KP_D1} sc1')
        P(f'buffer_load_dword {vr(D+8)}, {vr(vA4)}, {sr(sWS,4)}, {sr(sH1)} offen offset:{KP_CS} sc1\ns_waitcnt vmcnt(0)')
        for op in self.checksum(D + 9, D, 8): P(op)
        P(f'v_cmp_ne_u32 vcc, {vr(D+8)}, {vr(D+9)}\ns_cbranch_vccz {dn}')
        self.retry_tail(lp, dn)
        unpack(D)
        fold()
        for rot in (4, 8):
            for j in range(4): P(f'v_add_f32_dpp {vr(A+j)}, {vr(A+j)}, {vr(A+j)} row_ror:{rot} row_mask:0xf bank_mask:0xf')
        P(fin)
        P.label(j2)
        P('s_waitcnt lgkmcnt(0)\ns_barrier')
        self.stamp(8 + sb, f'L{L} B2')
        P(f'ds_read_b128 v[68:71], {vr(vAO)}\nds_read_b128 v[72:75], {vr(vAO)} offset:16\ns_waitcnt lgkmcnt(1)')
        self.mfma(ACC0, 68, PHQ, None)
        P('s_waitcnt lgkmcnt(0)')
        self.mfma(ACC0, 72, PHQ + 4, ACC0)
        self.publish_o(L, ACC0, 1e-6)
        self.stamp(10 + sb, f'L{L} opub')
        P(f's_cmp_lg_u32 {sr(sHS)}, 0\ns_cbranch_scc1 {ax3}')
        self.main_outproj(L)
        P(f's_branch L_main_{L+1}')
        P.label(ax3)
        self.aux_tail(L)
        self.stamp(13 + sb, f'L{L} xpub')
        P(f's_branch L_aux_{L+1}')

    def epilogue(self):
        P = self.P; nl = self.nl
        P.label(f'L_main_{nl}')
        P(f's_or_b32 {sr(sT0)}, s2, {sr(sW)}\ns_cmp_lg_u32 {sr(sT0)}, 0\ns_cbranch_scc1 L_aux_{nl}\ns_mov_b32 {sr(sT2)}, 0')
        self.flag(sT2, sTAG, False)
        P.label(f'L_aux_{nl}')
        if self.stamps:
            P('s_waitcnt vmcnt(0)')
            self.stamp(62, 'end')
            P(f's_memtime {sr(sST,2)}\ns_waitcnt lgkmcnt(0)\ns_sub_u32 {sr(sST)}, {sr(sST)}, s100\nv_writelane_b32 {vr(vSTAMP)}, {sr(sST)}, 59')
            P(f'''v_writelane_b32 {vr(vSTAMP)}, {sr(sBUD)}, 63
v_writelane_b32 {vr(vSTAMP)}, {sr(sFAST)}, 61
v_writelane_b32 {vr(vSTAMP)}, s99, 58
s_lshl_b32 {sr(sT0)}, s2, 3
s_add_u32 {sr(sT0)}, {sr(sT0)}, {sr(sW)}
s_lshl_b32 {sr(sT0)}, {sr(sT0)}, 8
s_add_u32 {sr(sT0)}, {sr(sT0)}, {OFF_STAMP}
buffer_store_dword {vr(vSTAMP)}, {vr(vL4)}, {sr(sWS,4)}, {sr(sT0)} offen''')
            if self.o.get('dbgst'):
                P(f's_cmp_lg_u32 {sr(sHS)}, 0\ns_cbranch_scc1 L_end\ns_load_dwordx2 s[64:65], s[0:1], 64\nv_mov_b32 v30, 0')
                for j, (idx, neg) in enumerate([(60, 1), (60, 0), (0, 0), (2, 0), (1, 0), (3, 0), (8, 0), (10, 0), (13, 0), (27, 0), (41, 0), (62, 0), (59, 0), (3, 1), (13, 1), (62, 1)]):
                    P(f'v_readlane_b32 s66, {vr(vSTAMP)}, {idx}')
                    if neg: P('s_not_b32 s66, s66')
                    P(f'v_writelane_b32 v30, s66, {j}')
                P('s_waitcnt lgkmcnt(0)')
                self.srd(68, 64, 256)
                P(f's_mov_b64 exec, 0xffff\nbuffer_atomic_umax v30, {vr(vL4)}, s[68:71], 0 offen\ns_waitcnt vmcnt(0)')
        if self.o.get('spin'):
            lp = P.newlabel('Lspin'); P.label(lp)
            P(f's_memrealtime s[66:67]\ns_waitcnt lgkmcnt(0)\ns_sub_u32 s66, s66, s98\ns_cmp_lt_u32 s66, {self.o["spin"]}\ns_cbranch_scc1 {lp}')
        P.label('L_end')
        P('s_endpgm')

    def build(self):
        self.prologue()
        for L in range(self.nl):
            (self.layerA if L % 2 == 0 else self.layerB)(L)
        self.epilogue()
        for L in range(0, self.nl, 2): self.attn_fallback(L)
        n = self.P.fix_hazards()
        errs = self.P.check_waits()
        head = open(f'cdna_kernels/{NAME}.s.ref').read().split('; @launch')[0]
        s = head + f'; @launch grid=(256,1,1) block=(512,1,1) lds={LDS_TOTAL}\n'
        s += f'.amdgcn_target "amdgcn-amd-amdhsa--gfx950"\n.text\n.globl {NAME}_kernel\n.p2align 8\n.type {NAME}_kernel,@function\n{NAME}_kernel:\n'
        s += self.P.text().replace('CODE_BYTES', '(L_end - %s_kernel - 1088)' % NAME)
        s += f'''.section .rodata,"a"
.p2align 6
.amdhsa_kernel {NAME}_kernel
  .amdhsa_next_free_vgpr 256
  .amdhsa_next_free_sgpr 102
  .amdhsa_accum_offset 256
  .amdhsa_group_segment_fixed_size 0
  .amdhsa_kernarg_size 80
  .amdhsa_user_sgpr_count 2
  .amdhsa_user_sgpr_kernarg_segment_ptr 1
  .amdhsa_system_sgpr_workgroup_id_x 1
.end_amdhsa_kernel
'''
        return s, n, errs


if __name__ == '__main__':
    import argparse, json
    ap = argparse.ArgumentParser()
    ap.add_argument('-o', default=f'cdna_kernels/{NAME}.s')
    ap.add_argument('--stamps', action='store_true')
    ap.add_argument('--safe', action='store_true')
    ap.add_argument('--cyc', action='store_true')
    ap.add_argument('--opt', nargs='*', default=[])
    ap.add_argument('--noalias', action='store_true')
    ap.add_argument('--nl', type=int, default=4)
    a = ap.parse_args()
    g = Gen(stamps=a.stamps, nlayers=a.nl, force_safe=a.safe, cyc=a.cyc, alias=not a.noalias, opt={k: int(v) for k, v in (x.split('=') for x in a.opt)})
    s, n, errs = g.build()
    open(a.o, 'w').write(s)
    if a.stamps: json.dump(g.stamp_names, open(a.o + '.stamps.json', 'w'))
    print('instructions', sum(1 for x in g.P.L if x.op), 'nops inserted', n, 'lds', LDS_TOTAL)
    for e in errs[:8]: print('WAITCHECK', e)
```

```python
import sys, struct
sys.path.insert(0, 'dev')
from asmlib import *

NAME = 'interleave_layers__sliding_block__linear_kernel_hedgehog__prompt'
def f2u(x): return struct.unpack('<I', struct.pack('<f', x))[0]
LOG2E = 1.4426950408889634

OFF_XFLAG = 0x1000
OFF_OFLAG = 0x9000
OFF_STAMP = 0x30000
OFF_ST = 0x100000
OFF_X = 0x200000
OFF_O = 0xA00000
OFF_KV = 0x1200000
KV_REC = 4480; KV_L = 1024*KV_REC
OFF_KP = 0x1B00000
KP_REC = 2688; KP_D1 = 1088; KP_CS = 2176; KP_L = 256*KP_REC
WS_USED = 0x2000000
OOB = 0x40000000
TAGC = 0x9E3779B0
SAFE_EXP = 30

LDS_WK = 0; LDS_WV = 32768; LDS_WQ = 65536; LDS_T = 65536; LDS_WO = 98304
LDS_OWN = 131072; OWN_ST = 6144
LDS_CSP = LDS_OWN + 4*OWN_ST
LDS_RSTD = LDS_CSP + 3072; LDS_KVT = LDS_RSTD + 512; LDS_ZT = LDS_KVT + 2048
LDS_FAST = LDS_ZT + 128; LDS_CNT = LDS_FAST + 16; LDS_TOTAL = LDS_FAST + 64
NT_LDS = {0: LDS_WQ, 1: LDS_WK, 2: LDS_WV, 'o': LDS_WO}
C_ST, C_XDONE, C_WGO, C_CS, C_Q, C_ATT, C_CSQ, C_WR = 0, 4, 5, 6, 7, 8, 9, 10

sWS, sX0, sWA, sWoA, sWB, sWoB, sPhi, sOut = 4, 8, 12, 16, 20, 24, 28, 32
sR, sC, sW, sMT, sHS, sRT, sQT, sTAG, sFAST, sBUD = 36, 37, 38, 39, 40, 41, 42, 43, 44, 45
sT0, sT1, sT2, sT3 = 46, 47, 48, 49
sLO = 50
sOWNF = 52; sCNT = 53; sSTEP = 54; sLOG2E = 55; sST = 56
sROT = 58; sDM = 59; sH0 = 60
sG0 = 62; sPERM = 63
sM = 64
sOW, sOF, sHB, sHAS, sP2, sC2, sOWN, sKVW, sXW, sSW, sXF, sRB = 72, 73, 74, 75, 76, 77, 78, 79, 80, 81, 82, 83
sLA = 86; sDG = 87; sDL = 88; sLB = 89; sLR = 90; sK0 = 91; sK1 = 92; sK2 = 93; sSEL0 = 94; sSEL1 = 95; sH1 = 96; sH2 = 97; sC1008 = 3
vT0, vLANE, vL16, vL4, vCNT, vTR1, vTR2, vSTAMP = 0, 1, 2, 3, 4, 5, 6, 7
XRES, WPHI = 8, 16
vDW, vDO, vCH, vCS, ONES = 8, 9, 10, 11, 12
vRSTD, vKA, vVA, vPD, vPA, vRA, vRB, vFD = 20, 21, 22, 23, 24, 25, 26, 27
vCK = vPD; XEXT = 28; ACC0 = 32; ACC1 = 48; RING = 64; WEXTQ = 84; WEXTK = 88; WEXTV = 92; VV = 88
STAT = 96; CDIAG = 96; PKV = 112; CFIRST = 112; XF = 128
aS, aO, aE, aQ, aK, aP, aH = 32, 48, 64, 72, 76, 80, 128
PHQ = 112
PARK = {1: 128, 2: 160, 0: 192, 'o': 224}
MFMA = 'v_mfma_f32_32x32x16_bf16'
def cho(u): return (u >> 1)*8192 + (u & 1)*1024
SW4 = ((0, 2), (1, 3), (4, 6), (5, 7))


class Gen:
    def __init__(self, stamps=False, nlayers=4, force_safe=False, cyc=False, alias=True, opt=None):
        self.cyc = cyc; self.alias = alias
        self.o = dict(halo_at=35, prio=1, trunc=1, wgo=2, wgon=2, xd=8, od=10, x0d=3, psleep=1, kp_at=0, spec=0, pw=16, tlb=0, touch=1, b0=0, mcs=1, pre=2, pst=1, trk=3, ool=1)
        self.o.update(opt or {})
        self.P = Prog(); self.stamps = stamps; self.nl = nlayers; self.force_safe = force_safe
        self.stamp_names = {}
        self.vm = Tracker(63); self.lg = Tracker(15); self.stubs = []; self.ool = []

    def stamp(self, idx, name=''):
        if not self.stamps: return
        self.stamp_names[idx] = name
        self.P(f'{"s_memtime" if self.cyc else "s_memrealtime"} {sr(sST,2)}\ns_waitcnt lgkmcnt(0)\nv_writelane_b32 {vr(vSTAMP)}, {sr(sST)}, {idx}')

    def al(self, L): return 0 if self.alias else L

    def mfma(self, d, a, b, c):
        cs = '0' if c is None else vr(c, 16)
        self.P(f'{MFMA} {vr(d,16)}, {vr(a,4)}, {vr(b,4)}, {cs}')

    def srd(self, s, ptr, nbytes):
        self.P(f's_mov_b32 {sr(s)}, {sr(ptr)}\ns_and_b32 {sr(s+1)}, {sr(ptr+1)}, 0xffff\ns_mov_b32 {sr(s+2)}, {nbytes}\ns_mov_b32 {sr(s+3)}, 0x20000')

    def poll(self, soff, masked=False):
        P = self.P; lp = P.newlabel('Lpoll'); dn = P.newlabel('Lpolld')
        P.label(lp)
        P(f'buffer_load_dword {vr(vPD)}, {vr(vPA)}, {sr(sWS,4)}, {sr(soff)} offen sc1\ns_waitcnt vmcnt(0)')
        if masked:
            P(f'v_and_b32 {vr(vT0)}, -16, {vr(vPD)}\nv_cmp_ne_u32 vcc, {sr(sTAG)}, {vr(vT0)}')
        else:
            P(f'v_cmp_ne_u32 vcc, {sr(sTAG)}, {vr(vPD)}')
        P(f's_cbranch_vccz {dn}')
        if self.o['psleep']: P(f's_sleep {self.o["psleep"]}')
        P(f's_sub_u32 {sr(sBUD)}, {sr(sBUD)}, 1\ns_cbranch_scc0 {lp}\ns_mov_b32 {sr(sBUD)}, 0')
        P.label(dn)

    def flag(self, soff, sval, sc1, wait=None):
        P = self.P
        P(f'v_mov_b32 {vr(vPD)}, {sr(sval)}\ns_mov_b64 exec, 1')
        if wait: P(wait)
        P(f'buffer_store_dword {vr(vPD)}, off, {sr(sWS,4)}, {sr(soff)}' + (' sc1' if sc1 else ''))
        P('s_mov_b64 exec, -1')

    def prio_if(self, cmp):
        P = self.P; l = P.newlabel('Lpr')
        P(f's_setprio 0\n{cmp}\ns_cbranch_scc0 {l}\ns_setprio 1'); P.label(l)

    def lds_signal(self, idx):
        self.P(f'v_mov_b32 {vr(vPD)}, 1\ns_mov_b64 exec, 1\ns_waitcnt lgkmcnt(0)\nds_add_u32 {vr(vCNT)}, {vr(vPD)} offset:{4*idx}\ns_mov_b64 exec, -1')

    def lds_wait(self, idx, val):
        P = self.P; lp = P.newlabel('Llw')
        P.label(lp)
        P(f'ds_read_b32 {vr(vPD)}, {vr(vCNT)} offset:{4*idx}\ns_waitcnt lgkmcnt(0)\nv_cmp_gt_u32 vcc, {val}, {vr(vPD)}\ns_cbranch_vccnz {lp}')

    def lds_peek(self, idx):
        return [('ds', ('cnt', idx), f'ds_read_b32 {vr(vPD)}, {vr(vCNT)} offset:{4*idx}')]

    def lds_check(self, idx, val):
        P = self.P; ok = P.newlabel('Llc')
        P(waitstr(lg=self.lg.need(('cnt', idx))))
        P(f'v_cmp_gt_u32 vcc, {val}, {vr(vPD)}\ns_cbranch_vccz {ok}')
        self.lds_wait(idx, val)
        P.label(ok)

    def two_way(self, emit):
        P = self.P
        if self.force_safe:
            emit(True); return
        ls = P.newlabel('Lsafe'); le = P.newlabel('Lpub')
        P(f's_cmp_eq_u32 {sr(sFAST)}, 0\ns_cbranch_scc1 {ls}')
        emit(False)
        if self.o['ool']:
            self.ool.append((ls, emit, le))
        else:
            P(f's_branch {le}'); P.label(ls)
            emit(True)
        P.label(le)

    def item(self, it):
        P = self.P
        if isinstance(it, str): P(it)
        elif it[0] == 'wvm': P(waitstr(vm=self.vm.need(it[1])))
        elif it[0] == 'wlg': P(waitstr(lg=self.lg.need(it[1])))
        elif it[0] == 'ds': P(it[2]); self.lg.issue(it[1])
        elif it[0] == 'fn': it[1]()

    def checksum(self, dst, src, n):
        ops = [f'v_add3_u32 {vr(dst)}, {sr(sTAG)}, {vr(src)}, {vr(src+1)}']
        for i in range(2, n, 2): ops.append(f'v_add3_u32 {vr(dst)}, {vr(dst)}, {vr(src+i)}, {vr(src+i+1)}')
        return ops

    def retry_tail(self, lp, dn):
        if self.stamps: self.P('s_add_u32 s99, s99, 1')
        self.P(f's_sub_u32 {sr(sBUD)}, {sr(sBUD)}, 1\ns_cbranch_scc0 {lp}\ns_mov_b32 {sr(sBUD)}, 0')
        self.P.label(dn)
        if self.stamps: self.P('s_lshl_b32 s99, s99, 6')

    def prologue(self):
        P = self.P; o = self.o
        vH, vT = 64, 65
        if self.stamps: P('s_memrealtime s[98:99]\ns_memtime s[100:101]')
        elif o.get('spin'): P('s_memrealtime s[98:99]')
        P(f"""s_cmp_ge_u32 s2, 256
s_cbranch_scc1 L_end
s_load_dwordx16 s[64:79], s[0:1], 0
s_load_dwordx4 s[80:83], s[0:1], 64
s_getpc_b64 s[84:85]
v_lshrrev_b32 v1, 6, v0
s_lshr_b32 {sr(sT1)}, s2, 3
v_readfirstlane_b32 {sr(sW)}, v1
v_and_b32 {vr(vLANE)}, 63, v0
v_lshlrev_b32 {vr(vL16)}, 4, {vr(vLANE)}""")
        lc = P.newlabel('Lx')
        P(f"""s_cmp_lt_u32 {sr(sW)}, 6
s_cbranch_scc1 {lc}
s_and_b32 {sr(sT0)}, {sr(sW)}, 1
s_lshl_b32 {sr(sT0)}, {sr(sT0)}, 5
s_add_u32 {sr(sT0)}, {sr(sT0)}, {sr(sT1)}
s_lshl_b32 {sr(sT0)}, {sr(sT0)}, 10
s_cmp_ge_u32 {sr(sT0)}, CODE_BYTES
s_cbranch_scc1 {lc}
v_add_u32 v255, {sr(sT0)}, {vr(vL16)}
global_load_dword v255, v255, s[84:85]""")
        P.label(lc)
        P(f"""s_and_b32 {sr(sT0)}, s2, 7
s_and_b32 {sr(sC)}, {sr(sT1)}, 15
s_lshr_b32 {sr(sT1)}, {sr(sT1)}, 4
s_lshl_b32 {sr(sR)}, {sr(sT0)}, 1
s_add_u32 {sr(sR)}, {sr(sR)}, {sr(sT1)}
s_and_b32 {sr(sMT)}, {sr(sW)}, 3
s_lshr_b32 {sr(sHS)}, {sr(sW)}, 2
s_lshl_b32 {sr(sRT)}, {sr(sR)}, 2
s_add_u32 {sr(sRT)}, {sr(sRT)}, {sr(sMT)}
s_lshr_b32 {sr(sROT)}, {sr(sC)}, 1
s_add_u32 {sr(sROT)}, {sr(sROT)}, {sr(sT0)}
s_lshl_b32 {sr(sT1)}, {sr(sT1)}, 1
s_add_u32 {sr(sROT)}, {sr(sROT)}, {sr(sT1)}
s_lshl_b32 {sr(sT1)}, {sr(sC)}, 2
s_add_u32 {sr(sROT)}, {sr(sROT)}, {sr(sT1)}
s_and_b32 {sr(sROT)}, {sr(sROT)}, 7
v_mov_b32 v8, 0
v_mov_b32 v9, 0
v_mov_b32 v10, 0
v_mov_b32 v11, 0
v_mov_b32 v90, 0
v_mov_b32 {vr(vPA)}, 0
v_mov_b32 v91, 0
v_mov_b32 {vr(vCNT)}, {LDS_CNT}
ds_write_b128 {vr(vCNT)}, v[8:11]
ds_write_b128 {vr(vCNT)}, v[8:11] offset:16
ds_write_b128 {vr(vCNT)}, v[8:11] offset:32
v_lshrrev_b32 v28, 3, {vr(vLANE)}
v_lshlrev_b32 v28, 10, v28
v_lshrrev_b32 v29, 4, {vr(vLANE)}
v_xor_b32 v29, v29, {vr(vLANE)}
v_and_b32 v29, 7, v29
v_lshl_add_u32 v28, v29, 4, v28
v_xor_b32 v29, 64, v28
v_add_u32 v30, {2*7168}, v28
v_add_u32 v31, {3*7168}, v29
v_add_u32 v29, 7168, v29
s_lshl_b32 {sr(sLB)}, {sr(sRT)}, 15
s_lshl_b32 {sr(sLR)}, {sr(sROT)}, 7
s_lshl_b32 {sr(sLA)}, {sr(sMT)}, 14
s_add_u32 {sr(sLA)}, {sr(sLA)}, {LDS_WQ}
s_waitcnt lgkmcnt(0)
s_load_dword {sr(sTAG)}, s[82:83], 0""")
        self.srd(sX0, 64, 2097152)
        P(f's_cmp_lg_u32 {sr(sHS)}, 0\ns_cbranch_scc1 L_pro2')
        for g in range(2): self.x0_load(g)
        P.label('L_pro2')
        P('s_barrier')
        self.srd(sWS, 82, WS_USED); self.srd(sWA, 66, 1572864); self.srd(sWoA, 68, 524288)
        self.srd(sWB, 72, 1572864); self.srd(sPhi, 74, 16384); self.srd(sWoB, 76, 524288); self.srd(sOut, 78, 2097152)
        P(f"""s_mul_i32 {sr(sT0)}, {sr(sHS)}, 3
s_xor_b32 {sr(sQT)}, {sr(sMT)}, {sr(sT0)}
s_mov_b32 {sr(sBUD)}, 0x100000
s_mov_b32 {sr(sLO)}, 0xffff
s_mov_b32 {sr(sLO+1)}, 0xffff
s_mov_b32 {sr(sH0)}, -1
s_mov_b32 {sr(sH0+1)}, 0
s_mov_b32 {sr(sFAST)}, 0
s_mov_b32 {sr(sDM)}, 0
s_mov_b32 {sr(sLOG2E)}, {f2u(LOG2E):#x}
s_mov_b32 {sr(sPERM)}, 0x07060302
s_mov_b32 {sr(sC1008)}, 1008
s_getreg_b32 {sr(sOWNF)}, hwreg(HW_REG_XCC_ID, 0, 4)
v_lshrrev_b32 {vr(vH)}, 5, {vr(vLANE)}
v_and_b32 {vr(vT)}, 31, {vr(vLANE)}
v_lshlrev_b32 {vr(vL4)}, 2, {vr(vLANE)}
v_mov_b32 {vr(vSTAMP)}, 0
v_add_u32 {vr(vTR1)}, {LDS_WQ}, {vr(vL16)}
v_add_u32 {vr(vTR2)}, {LDS_WO}, {vr(vL16)}
s_lshl_b32 {sr(sT0)}, {sr(sMT)}, 7
s_add_u32 {sr(sT0)}, {sr(sT0)}, {LDS_RSTD}
v_lshl_add_u32 {vr(vRA)}, {vr(vT)}, 2, {sr(sT0)}
v_lshl_add_u32 {vr(vRB)}, {vr(vH)}, 4, {sr(sT0)}
v_lshlrev_b32 {vr(vFD)}, 2, {vr(vH)}
v_sub_u32 {vr(vFD)}, {vr(vT)}, {vr(vFD)}
v_cvt_f32_i32 {vr(vFD)}, {vr(vFD)}
v_mul_f32 {vr(vFD)}, {f2u(2.0**100):#x}, {vr(vFD)}
s_waitcnt lgkmcnt(0)
s_and_b32 {sr(sTAG)}, {sr(sTAG)}, -16
s_add_u32 {sr(sTAG)}, {sr(sTAG)}, {TAGC:#x}
s_or_b32 {sr(sOWNF)}, {sr(sOWNF)}, {sr(sTAG)}
s_lshl_b32 {sr(sT0)}, {sr(sR)}, 2
s_add_u32 {sr(sT0)}, {sr(sT0)}, {sr(sQT)}
s_lshl_b32 {sr(sT0)}, {sr(sT0)}, 5
s_lshl_b32 {sr(sT1)}, {sr(sC)}, 1
s_add_u32 {sr(sT0)}, {sr(sT0)}, {sr(sT1)}
s_add_u32 {sr(sT0)}, {sr(sT0)}, {sr(sHS)}
s_lshl_b32 {sr(sOW)}, {sr(sT0)}, 10
s_lshl_b32 {sr(sOF)}, {sr(sT0)}, 2
s_lshr_b32 {sr(sT0)}, {sr(sMT)}, 1
s_add_u32 {sr(sT0)}, {sr(sT0)}, {sr(sR)}
s_sub_u32 {sr(sT0)}, {sr(sT0)}, 2
s_cselect_b32 {sr(sHAS)}, 0, 1
s_lshl_b32 {sr(sT0)}, {sr(sT0)}, 1
s_and_b32 {sr(sT1)}, {sr(sMT)}, 1
s_add_u32 {sr(sT0)}, {sr(sT0)}, {sr(sT1)}
s_lshl_b32 {sr(sT0)}, {sr(sT0)}, 5
s_add_u32 {sr(sT0)}, {sr(sT0)}, {sr(sC)}
s_mul_i32 {sr(sHB)}, {sr(sT0)}, {KV_REC}
s_cmp_eq_u32 {sr(sR)}, 1
s_cselect_b32 {sr(sT0)}, 4, {sr(sQT)}
s_sub_u32 {sr(sC2)}, 8, {sr(sT0)}
s_lshl_b32 {sr(sP2)}, {sr(sT0)}, 12
s_add_u32 {sr(sP2)}, {sr(sP2)}, {LDS_T}
s_mul_i32 {sr(sOWN)}, {sr(sQT)}, {OWN_ST}
s_add_u32 {sr(sOWN)}, {sr(sOWN)}, {LDS_OWN}
s_lshl_b32 {sr(sT0)}, {sr(sRT)}, 4
s_add_u32 {sr(sT0)}, {sr(sT0)}, {sr(sC)}
s_mul_i32 {sr(sKVW)}, {sr(sT0)}, {KV_REC}
s_lshl_b32 {sr(sXW)}, {sr(sT0)}, 11
s_lshl_b32 {sr(sSW)}, {sr(sT0)}, 8
s_lshl_b32 {sr(sXF)}, {sr(sRT)}, 7
s_lshl_b32 {sr(sRB)}, {sr(sRT)}, 15""")
        self.stamp(0, 'start')
        if self.stamps:
            self.stamp_names[60] = 'entry'; P(f'v_writelane_b32 {vr(vSTAMP)}, s98, 60\ns_mov_b32 s99, 0\ns_mov_b32 s101, 0')
        P(f's_cmp_eq_u32 {sr(sHS)}, 0\ns_cbranch_scc1 L_main_0')
        lh = P.newlabel('Lx'); lt = P.newlabel('Lx')
        P(f"""s_lshl_b32 {sr(sT2)}, {sr(sR)}, 7
s_lshl_b32 {sr(sT3)}, {sr(sC)}, 2
s_add_u32 {sr(sT2)}, {sr(sT2)}, {sr(sT3)}
s_add_u32 {sr(sT2)}, {sr(sT2)}, {OFF_XFLAG}
s_cmp_lg_u32 {sr(sMT)}, 0
s_cbranch_scc1 {lh}""")
        self.flag(sT2, sOWNF, True)
        P.label(lh)
        P(f"""v_lshrrev_b32 v28, 2, {vr(vLANE)}
v_and_b32 v29, 3, {vr(vLANE)}
v_lshlrev_b32 v29, 4, v29
s_lshl_b32 {sr(sT0)}, {sr(sC)}, 6
v_add_u32 v29, {sr(sT0)}, v29
v_mul_u32_u24 {vr(vDW)}, 3072, v28
v_add_u32 {vr(vDW)}, {vr(vDW)}, v29
v_lshl_add_u32 {vr(vDO)}, v28, 10, v29
s_lshl_b32 {sr(sLA)}, {sr(sMT)}, 11
s_lshr_b32 {sr(sT0)}, {sr(sMT)}, 1
s_add_u32 {sr(sT0)}, {sr(sT0)}, {sr(sROT)}
s_and_b32 {sr(sT0)}, {sr(sT0)}, 7
s_lshl_b32 {sr(sG0)}, {sr(sT0)}, 16
s_and_b32 {sr(sT0)}, {sr(sMT)}, 1
s_lshl_b32 {sr(sT0)}, {sr(sT0)}, 15
s_add_u32 {sr(sG0)}, {sr(sG0)}, {sr(sT0)}
v_add_u32 {vr(vCH)}, {sr(sLA)}, {vr(vL16)}
v_bfe_u32 v29, {vr(vLANE)}, 2, 2
v_lshl_add_u32 v29, {vr(vH)}, 2, v29
v_lshlrev_b32 {vr(vCS)}, 6, v29
v_bfe_u32 v29, {vr(vLANE)}, 4, 1
v_lshl_add_u32 {vr(vCS)}, v29, 5, {vr(vCS)}
v_and_b32 v29, 3, {vr(vLANE)}
v_lshl_add_u32 {vr(vCS)}, v29, 3, {vr(vCS)}
v_add_u32 {vr(vCS)}, {sr(sLA)}, {vr(vCS)}
v_lshl_add_u32 v31, {vr(vH)}, 8, {vr(vCS)}""")
        for i in range(4): P(f'v_mov_b32 {vr(ONES+i)}, 0x3f803f80')
        self.csp_waddr(0)
        P(f'v_lshl_add_u32 v30, {vr(vH)}, 9, v28')
        for op in self.mask_ops(0) + self.mask_ops(1): P(op)
        avm = Tracker(63)
        if o['tlb']:
            lw = P.newlabel('Lx')
            P(f"""s_cmp_lg_u32 {sr(sMT)}, 1
s_cbranch_scc1 {lw}
v_and_b32 v68, 15, {vr(vLANE)}
v_bfe_u32 v69, {vr(vLANE)}, 4, 1
s_lshl_b32 {sr(sT0)}, {sr(sR)}, 2
s_sub_u32 {sr(sT0)}, {sr(sT0)}, 8
v_min_u32 v70, 11, v68
v_add_u32 v70, {sr(sT0)}, v70
v_max_i32 v70, 0, v70
v_lshl_add_u32 v70, v70, 4, {sr(sC)}
v_lshl_add_u32 v70, v69, 10, v70
v_mul_u32_u24 v70, {KV_REC}, v70
v_add_u32 v70, {OFF_KV + KV_REC - 128}, v70
s_lshl_b32 {sr(sT0)}, {sr(sC)}, 4
v_add_u32 v68, {sr(sT0)}, v68
v_lshl_add_u32 v68, v69, 8, v68
v_mul_u32_u24 v68, {KP_REC}, v68
v_add_u32 v68, {OFF_KP + KP_REC - 128}, v68
v_cndmask_b32 v68, v68, v70, {sr(sH0,2)}
buffer_load_dword v26, v68, {sr(sWS,4)}, 0 offen""")
            P.label(lw)
        if o['wgo']: self.lds_wait(C_WGO, o['wgon'])
        self.stamp(2, 'x g0 / W go')
        PRE = o['pre']; MCS = o['mcs']; CA = {1: 32, 2: 64, 0: 32}
        for st in range(PRE): self.dma_w(0, (1, 2), (st,)); avm.issue(st, 4)
        if not MCS:
            for i in range(4): P(f'v_mov_b32 {vr(64+i)}, 0')
        qs = [[0, 1], [2, 3]] if PRE == 2 else ([[0, 1], [2, 3], []] if PRE == 3 else [[], [0, 1], [2, 3], []])
        first_q = True
        for st in range(4):
            if st + PRE < 4: self.dma_w(0, (1, 2), (st + PRE,)); avm.issue(st + PRE, 4)
            else:
                q = qs.pop(0)
                if q:
                    if first_q: self.lds_wait(C_XDONE, 4); first_q = False
                    self.dma_w(0, (0,), q); avm.issue('q', 4)
            P(waitstr(vm=avm.need(st)))
            self.stamp((15, 23, 29, 1)[st], ('x g3 / W st0', 'x g5 / W st1', 'S0 / W st2', 'x0 / W st3')[st])
            ch = [(nt, 2*st + e) for nt in (1, 2) for e in range(2)]
            for nt, u in ch:
                r_ = PARK[nt] + 4*u; of = NT_LDS[nt] + cho(u)
                P(f'ds_read_b64_tr_b16 {vr(r_,2)}, v31 offset:{of}\nds_read_b64_tr_b16 {vr(r_+2,2)}, v31 offset:{of+256}')
            for k, (nt, u) in enumerate(ch):
                P(f's_waitcnt lgkmcnt({6-k})\nds_write_b128 {vr(vCH)}, {vr(PARK[nt]+4*u,4)} offset:{NT_LDS[nt] + cho(u)}')
                if MCS: self.mfma(CA[nt], ONES, PARK[nt] + 4*u, None if u == 0 else CA[nt])
            self.lds_signal(C_ST + st)
            if not MCS:
                for nt, u in ch: self.valu_sum(PARK[nt] + 4*u, 64 + 2*(nt - 1))
        if MCS: P(f'ds_write_b32 v28, {vr(CA[1])} offset:512\nds_write_b32 v28, {vr(CA[2])} offset:1024')
        else: P('v_add_f32 v64, v64, v65\nv_add_f32 v66, v66, v67\nv_permlane32_swap_b32 v64, v66\nv_add_f32 v64, v64, v66\nds_write_b32 v30, v64 offset:512')
        self.lds_signal(C_CS)
        self.stamp(14, 'S3 / W done')
        self.dma_w(0, ('o',))
        P(f'v_add_u32 v31, {LDS_WQ}, v31\nv_add_u32 v30, {LDS_WQ}, {vr(vCH)}\nv_mov_b32 v64, 0\nv_mov_b32 v65, 0\ns_waitcnt vmcnt(8)')
        for u0 in (0, 4):
            for u in range(u0, u0 + 4):
                r_ = PARK[0] + 4*u
                P(f'ds_read_b64_tr_b16 {vr(r_,2)}, v31 offset:{cho(u)}\nds_read_b64_tr_b16 {vr(r_+2,2)}, v31 offset:{cho(u)+256}')
            for k, u in enumerate(range(u0, u0 + 4)):
                P(f's_waitcnt lgkmcnt({6-k})\nds_write_b128 v30, {vr(PARK[0]+4*u,4)} offset:{cho(u)}')
                if MCS: self.mfma(CA[0], ONES, PARK[0] + 4*u, None if u == 0 else CA[0])
        self.lds_signal(C_Q)
        self.stamp(4, 'Q done')
        if MCS: P(f'ds_write_b32 v28, {vr(CA[0])}')
        else:
            for u in range(8): self.valu_sum(PARK[0] + 4*u, 64)
            P('v_add_f32 v64, v64, v65\nv_mov_b32 v66, v64\nv_permlane32_swap_b32 v64, v66\nv_add_f32 v64, v64, v66\nds_write_b32 v28, v64')
        self.lds_signal(C_CSQ)
        P(f"""s_cmp_lg_u32 {sr(sMT)}, 2
s_cbranch_scc1 {lt}
v_lshlrev_b32 v6, 7, {vr(vLANE)}
s_mul_i32 {sr(sT0)}, s2, {48*128}
buffer_load_dword v26, v6, {sr(sWB,4)}, {sr(sT0)} offen
v_and_b32 v6, 0x780, v6
s_lshl_b32 {sr(sT0)}, s2, 11
buffer_load_dword v26, v6, {sr(sWoB,4)}, {sr(sT0)} offen""")
        P.label(lt)
        P('s_branch L_aux_0')

    def valu_sum(self, frag, acc):
        for i in range(4):
            self.P(f'v_lshlrev_b32 v68, 16, {vr(frag+i)}\nv_and_b32 v69, 0xffff0000, {vr(frag+i)}\nv_add_f32 {vr(acc)}, {vr(acc)}, v68\nv_add_f32 {vr(acc+1)}, {vr(acc+1)}, v69')

    def x0_load(self, g):
        P = self.P
        P(f's_add_u32 m0, {sr(sLA)}, {(g%4)*4096}\ns_add_u32 {sr(sT3)}, {sr(sLB)}, {sr(sLR)}')
        for j in range(4): P(f'buffer_load_dwordx4 {vr(28+j)}, {sr(sX0,4)}, {sr(sT3)} offen offset:{j*1024} lds')
        P(f's_add_u32 {sr(sLR)}, {sr(sLR)}, 128\ns_and_b32 {sr(sLR)}, {sr(sLR)}, 0x3ff')
        self.vm.issue(('x', g), 4)

    def code_prefetch(self, label):
        P = self.P; lc = P.newlabel('Lx')
        P(f"""s_cmp_lg_u32 {sr(sMT)}, 3
s_cbranch_scc1 {lc}
s_lshl_b32 {sr(sT0)}, {sr(sC)}, 10
s_add_u32 {sr(sT0)}, {sr(sT0)}, ({label} - {NAME}_kernel)
s_cmp_ge_u32 {sr(sT0)}, CODE_BYTES
s_cbranch_scc1 {lc}
v_add_u32 v26, {sr(sT0)}, {vr(vL16)}
global_load_dword v26, v26, s[84:85]""")
        P.label(lc)

    def wphi_load(self, B=96):
        P = self.P; a, t = vr(B + 8), vr(B + 9)
        P(f"""s_lshl_b32 {sr(sT0)}, {sr(sC)}, 1
s_add_u32 {sr(sT0)}, {sr(sT0)}, {sr(sHS)}
s_lshl_b32 {sr(sT0)}, {sr(sT0)}, 9
v_bfe_u32 {a}, {vr(vLANE)}, 3, 2
v_and_b32 {t}, 3, {vr(vLANE)}
v_lshl_add_u32 {a}, {a}, 2, {t}
v_lshlrev_b32 {a}, 1, {a}
v_lshrrev_b32 {t}, 5, {vr(vLANE)}
v_lshl_add_u32 {a}, {t}, 7, {a}""")
        for j in range(8):
            d = (j if j < 4 else 8 + j - 4)
            P(f'buffer_load_ushort {vr(B+j)}, {a}, {sr(sPhi,4)}, {sr(sT0)} offen offset:{d*32}')

    def wphi_pack(self, B=96):
        ops = [f'v_lshl_or_b32 {vr(WPHI+p)}, {vr(B+2*p+1)}, 16, {vr(B+2*p)}' for p in range(4)]
        ops += [f'v_bfe_i32 {vr(B)}, {vr(vLANE)}, 2, 1', f'v_and_b32 {vr(B)}, 0x80008000, {vr(B)}']
        return ops + [f'v_xor_b32 {vr(WPHI+p)}, {vr(B)}, {vr(WPHI+p)}' for p in range(4)]

    def dma_w(self, typ, nts, stages=range(4)):
        P = self.P; wo = nts == ('o',)
        srd = (sWoA, sWoB)[typ] if wo else (sWA, sWB)[typ]
        for st in stages:
            P(f's_add_u32 {sr(sT0)}, {sr(sG0)}, {st*0x20000}\ns_and_b32 {sr(sT0)}, {sr(sT0)}, 0x7ffff')
            if not wo: P(f's_mul_i32 {sr(sT0)}, {sr(sT0)}, 3')
            for e in range(2):
                for nt in nts:
                    P(f's_add_u32 m0, {sr(sLA)}, {NT_LDS[nt] + cho(2*st + e)}')
                    P(f's_add_u32 {sr(sT1)}, {sr(sT0)}, {e*16384 if wo else e*49152 + nt*1024}')
                    P(f'buffer_load_dwordx4 {vr(vDO if wo else vDW)}, {sr(srd,4)}, {sr(sT1)} offen lds')

    def csp_waddr(self, typ):
        self.P(f"""s_lshl_b32 {sr(sT0)}, {sr(sMT)}, 2
s_add_u32 {sr(sT0)}, {sr(sT0)}, {LDS_CSP + typ*1536}
v_and_b32 v28, 31, {vr(vLANE)}
v_lshl_add_u32 v28, v28, 4, {sr(sT0)}""")

    def chunk_addr(self, region):
        if region < 65536: return vCH, region
        self.P(f'v_add_u32 {vr(vT0)}, {region}, {vr(vCH)}'); return vT0, 0

    def lds_to_regs(self, region, dst):
        a, o = self.chunk_addr(region)
        for u in range(8): self.P(f'ds_read_b128 {vr(dst+4*u,4)}, {vr(a)} offset:{o+cho(u)}')

    def regs_to_lds(self, region, src):
        a, o = self.chunk_addr(region)
        for u in range(8): self.P(f'ds_write_b128 {vr(a)}, {vr(src+4*u,4)} offset:{o+cho(u)}')

    def relayout(self, typ, nts, tmp=64, ntmp=8):
        P = self.P
        if nts != ('o',): self.csp_waddr(typ)
        for k, nt in enumerate(nts):
            region = NT_LDS[nt]
            P(f'v_add_u32 v29, {region}, {vr(vCS)}\nv_add_u32 v30, {region}, {vr(vCH)}')
            acc = ACC0 if k % 2 == 0 else ACC1
            lg = Tracker(15)
            reg = lambda u: tmp + 4*(u % ntmp)
            for u0 in range(0, 8, 4):
                for u in range(u0, u0 + 4):
                    P(f'ds_read_b64_tr_b16 {vr(reg(u),2)}, v29 offset:{cho(u)}\nds_read_b64_tr_b16 {vr(reg(u)+2,2)}, v29 offset:{cho(u)+512}'); lg.issue(u, 2)
                for u in range(u0, u0 + 4):
                    P(waitstr(lg=lg.need(u)))
                    if nt != 'o': self.mfma(acc, ONES, reg(u), None if u == 0 else acc)
                    P(f'ds_write_b128 v30, {vr(reg(u),4)} offset:{cho(u)}'); lg.issue('w')
        for k, nt in enumerate(nts):
            if nt != 'o': P(f'ds_write_b32 v28, {vr(ACC0 if k % 2 == 0 else ACC1)} offset:{nt*512}')
        P('s_waitcnt lgkmcnt(0)')

    def swap_region(self, nt, save):
        P = self.P
        if save:
            self.lds_to_regs(NT_LDS[nt], 32); P('s_waitcnt lgkmcnt(0)')
        self.regs_to_lds(NT_LDS[nt], PARK[nt]); P('s_waitcnt lgkmcnt(0)')
        if save:
            for i in range(32): P(f'v_mov_b32 {vr(PARK[nt]+i)}, {vr(32+i)}')

    def unpack_res(self):
        for p in range(8):
            self.P(f'v_lshlrev_b32 {vr(ACC0+2*p)}, 16, {vr(XRES+p)}\nv_and_b32 {vr(ACC0+2*p+1)}, 0xffff0000, {vr(XRES+p)}')

    def rowmajor_addr(self, dst, tmp, sdst):
        self.P(f"""v_and_b32 {vr(dst)}, 31, {vr(vLANE)}
v_lshlrev_b32 {vr(dst)}, 10, {vr(dst)}
v_lshrrev_b32 {vr(tmp)}, 5, {vr(vLANE)}
v_lshl_add_u32 {vr(dst)}, {vr(tmp)}, 4, {vr(dst)}
s_lshl_b32 {sr(sdst)}, {sr(sC)}, 6
s_add_u32 {sr(sdst)}, {sr(sdst)}, {sr(sRB)}""")

    def publish_x_addr(self, L):
        if L == self.nl: return self.rowmajor_addr(vKA, vVA, sK0)
        self.P(f's_add_u32 {sr(sK1)}, {sr(sSW)}, {OFF_ST}')
        if L == 1: self.P(f's_lshl_b32 {sr(sK2)}, {sr(sC)}, 2\ns_add_u32 {sr(sK2)}, {sr(sK2)}, {sr(sXF)}\ns_add_u32 {sr(sK2)}, {sr(sK2)}, {OFF_XFLAG + 0x2000}')

    def set_par(self, reg, par):
        return f'v_or_b32 {vr(reg)}, 1, {vr(reg)}' if par else f'v_and_b32 {vr(reg)}, -2, {vr(reg)}'

    def acc_par(self, a, b, par):
        return f'v_bitop3_b32 {vr(vPD)}, {vr(vPD)}, {vr(a)}, {vr(b)} bitop3:0x80' if par else f'v_or3_b32 {vr(vPD)}, {vr(vPD)}, {vr(a)}, {vr(b)}'

    def test_par(self, par):
        return f'v_and_b32 {vr(vCK)}, 1, {vr(vPD)}\nv_cmp_ne_u32 vcc, {par}, {vr(vCK)}'

    def first_hop(self, base_off, foff, mask):
        self.P(f'v_and_b32 {vr(vPA)}, {mask}, {vr(vL4)}\ns_add_u32 {sr(sT2)}, {sr(sXF)}, {foff}')
        self.frag_setup(base_off)
        self.poll(sT2)
        return 0

    def probe(self, srd, base_off, par, nwin):
        P = self.P; lp = P.newlabel('Lprobe'); dn = P.newlabel('Lprobed'); S = min(self.o['spec'], nwin)
        self.frag_setup(base_off)
        if self.o['pst'] and srd == sOut: P(f'v_lshrrev_b32 {vr(STAT+15)}, 2, {vr(vLANE)}\nv_lshlrev_b32 {vr(STAT+15)}, 8, {vr(STAT+15)}')
        P.label(lp)
        if self.o['pst'] and srd == sOut:
            P(f'buffer_load_dword {vr(vPD)}, {vr(STAT+15)}, {sr(sWS,4)}, {sr(sT1)} offen offset:252 sc1')
        elif self.o['pw'] == 16 and srd == sOut:
            P(f'v_or_b32 {vr(vPD)}, 1024, {vr(vPA)}\nbuffer_load_dword {vr(vPD)}, {vr(vPD)}, {sr(srd,4)}, {sr(sLB)} offen sc1')
        else: P(f'buffer_load_dword {vr(vPD)}, {vr(vPA)}, {sr(srd,4)}, {sr(sLB)} offen sc1')
        for ks in range(S): self.frag_load(srd, ks)
        P(f's_waitcnt vmcnt({S})')
        P(self.test_par(par))
        P(f's_cbranch_vccz {dn}')
        if self.o['psleep']: P(f's_sleep {self.o["psleep"]}')
        if S: self.frag_setup(None)
        P(f's_sub_u32 {sr(sBUD)}, {sr(sBUD)}, 1\ns_cbranch_scc0 {lp}\ns_mov_b32 {sr(sBUD)}, 0')
        P.label(dn)
        return S

    def verify(self, par, redo):
        P = self.P; st = P.newlabel('Lver'); ct = P.newlabel('Lverc')
        P(self.test_par(par)); P(f's_cbranch_vccnz {st}')
        P.label(ct)
        self.stubs.append((st, redo, ct))

    def emit_stubs(self):
        P = self.P
        for ls, emit, le in self.ool:
            P.label(ls); emit(True); P(f's_branch {le}')
        for st, redo, ct in self.stubs:
            P.label(st)
            if self.stamps: P('s_add_u32 s101, s101, 1')
            P(f's_waitcnt vmcnt(0) lgkmcnt(0)\ns_sub_u32 {sr(sBUD)}, {sr(sBUD)}, 1\ns_cbranch_scc0 {redo}\ns_mov_b32 {sr(sBUD)}, 0\ns_branch {ct}')

    def probe_addr(self):
        if self.o['pw'] == 64:
            return f"""v_lshrrev_b32 {vr(vPA)}, 1, {vr(vLANE)}
v_lshlrev_b32 {vr(vPA)}, 10, {vr(vPA)}
v_and_b32 {vr(vCK)}, 1, {vr(vLANE)}
v_mad_u32_u24 {vr(vPA)}, {vr(vCK)}, {sr(sC1008)}, {vr(vPA)}"""
        return f'v_lshrrev_b32 {vr(vPA)}, 1, {vr(vLANE)}\nv_lshl_add_u32 {vr(vPA)}, {vr(vPA)}, 10, {sr(sC1008)}'

    def publish_x(self, L):
        P = self.P
        natural = (L % 2 == 0); T = 76; par = L & 1
        for p in range(8): P(f'v_cvt_pk_bf16_f32 {vr(T+p)}, {vr(ACC0+2*p)}, {vr(ACC0+2*p+1)}')
        if natural:
            for a, b in SW4: P(f'v_permlane32_swap_b32 {vr(T+a)}, {vr(T+b)}')
        if L == self.nl:
            P(f'buffer_store_dwordx4 {vr(T,4)}, {vr(vKA)}, {sr(sOut,4)}, {sr(sK0)} offen\nbuffer_store_dwordx4 {vr(T+4,4)}, {vr(vKA)}, {sr(sOut,4)}, {sr(sK0)} offen offset:32')
            return
        P(self.set_par(T, par)); P(self.set_par(T + 4, par))
        def emit(sc1):
            m = ' sc1' if sc1 else ''
            P(f'buffer_store_dwordx4 {vr(T,4)}, {vr(vL16)}, {sr(sOut,4)}, {sr(sXW)} offen{m}')
            P(f'buffer_store_dwordx4 {vr(T+4,4)}, {vr(vL16)}, {sr(sOut,4)}, {sr(sXW)} offen offset:1024{m}')
            for k in range(4):
                P(f'v_pk_add_f32 {vr(64+2*k,2)}, {vr(ACC0+4*k,2)}, {vr(ACC0+4*k+2,2)}')
            P(f'v_pk_mul_f32 v[72:73], {vr(ACC0,2)}, {vr(ACC0,2)}\nv_pk_mul_f32 v[74:75], {vr(ACC0+2,2)}, {vr(ACC0+2,2)}')
            P('v_pk_add_f32 v[64:65], v[64:65], v[66:67]\nv_pk_add_f32 v[68:69], v[68:69], v[70:71]')
            for k in range(2, 8): P(f'v_pk_fma_f32 {vr(72+2*(k&1),2)}, {vr(ACC0+2*k,2)}, {vr(ACC0+2*k,2)}, {vr(72+2*(k&1),2)}')
            P('v_pk_add_f32 v[64:65], v[64:65], v[68:69]\nv_pk_add_f32 v[72:73], v[72:73], v[74:75]')
            P('v_add_f32 v64, v64, v65\nv_add_f32 v66, v72, v73\nv_permlane32_swap_b32 v64, v66\nv_add_f32 v64, v64, v66')
            P(self.set_par(64, par))
            P(f'buffer_store_dword v64, {vr(vL4)}, {sr(sWS,4)}, {sr(sK1)} offen{m}')
            if L == 1: self.flag(sK2, sTAG, sc1, wait='s_waitcnt vmcnt(0)')
        self.two_way(emit)
        for p in range(8): P(f'v_cvt_pk_bf16_f32 {vr(XRES+p)}, {vr(ACC0+2*p)}, {vr(ACC0+2*p+1)}')

    def frag_setup(self, base_off):
        if base_off is not None: self.P(f's_add_u32 {sr(sLB)}, {sr(sRB)}, {base_off}')
        self.P(f's_lshl_b32 {sr(sLR)}, {sr(sROT)}, 12\ns_add_u32 {sr(sT3)}, {sr(sLB)}, {sr(sLR)}')

    def frag_load(self, srd, ks):
        P = self.P
        P(f'buffer_load_dwordx4 {vr(XF+4*ks,4)}, {vr(vL16)}, {sr(srd,4)}, {sr(sT3)} offen offset:{(ks&3)*1024} sc1')
        if ks < 28:
            if ks & 3 == 0: P(f's_add_u32 {sr(sLR)}, {sr(sLR)}, 4096')
            if ks & 3 == 1: P(f's_and_b32 {sr(sLR)}, {sr(sLR)}, 0x7fff')
            if ks & 3 == 3: P(f's_add_u32 {sr(sT3)}, {sr(sLB)}, {sr(sLR)}')
        self.vm.issue(('x', ks))

    def mask_ops(self, part):
        ops = []
        if part == 0:
            ops.append(f'v_mov_b32 {vr(VV)}, 0x3f803f80')
            for i in range(1, 8): ops.append(f'v_mov_b32 {vr(VV+i)}, {vr(VV)}')
        for i in range(16):
            ci = 8*(i//4) + i % 4
            if part == 0: ops.append(f'v_subrev_f32 {vr(CDIAG+i)}, {f2u(ci*2.0**100):#x}, {vr(vFD)}')
            else: ops.append(f'v_sub_f32 {vr(CFIRST+i)}, {f2u((ci-1)*2.0**100):#x}, {vr(vFD)}')
        for i in range(16):
            c_ = (CDIAG if part == 0 else CFIRST) + i
            ops.append(f'v_min_f32 {vr(c_)}, 0, {vr(c_)}')
        if part == 0:
            for i in range(16): ops.append(f'v_mov_b32 {vr(aO+i)}, 0')
        return ops

    def stats_final(self, typ):
        a, b = STAT, STAT + 1
        it = f"""v_mov_b32 {vr(b)}, {vr(a)}
v_mov_b32 {vr(XEXT+2)}, 0
v_mov_b32 {vr(XEXT+3)}, 0
v_permlane32_swap_b32 {vr(a)}, {vr(b)}
v_mul_f32 {vr(a)}, {f2u(1/512):#x}, {vr(a)}
v_mul_f32 {vr(b)}, {f2u(1/512):#x}, {vr(b)}
v_fma_f32 {vr(b)}, -{vr(a)}, {vr(a)}, {vr(b)}
v_max_f32 {vr(b)}, 0, {vr(b)}
v_add_f32 {vr(b)}, {f2u(1e-5):#x}, {vr(b)}
v_rsq_f32 {vr(vRSTD)}, {vr(b)}
v_cndmask_b32 {vr(a)}, 0, {vr(a)}, {sr(sH0,2)}
v_and_b32 {vr(a+2)}, 0xffff0000, {vr(a)}
v_sub_f32 {vr(a+3)}, {vr(a)}, {vr(a+2)}
v_cvt_pk_bf16_f32 {vr(XEXT)}, -{vr(a+2)}, -{vr(a+2)}
v_cvt_pk_bf16_f32 {vr(XEXT+1)}, -{vr(a+3)}, 0""".split('\n')
        it.append(('ds', 'rw', f'ds_write_b32 {vr(vRA)}, {vr(vRSTD)}'))
        for q in range(4): it.append(('ds', 'rt', f'ds_read_b128 {vr(STAT+4*q,4)}, {vr(vRB)} offset:{q*32}'))
        if typ == 1: it.append(f'v_mul_f32 {vr(vRSTD)}, {sr(sLOG2E)}, {vr(vRSTD)}')
        return it

    def wext_items(self, w, tag):
        return [('wlg', tag)] + f"""v_add_f32 {vr(w)}, {vr(w)}, {vr(w+1)}
v_add_f32 {vr(w+2)}, {vr(w+2)}, {vr(w+3)}
v_add_f32 {vr(w)}, {vr(w)}, {vr(w+2)}
v_and_b32 {vr(w+2)}, 0xffff0000, {vr(w)}
v_sub_f32 {vr(w+3)}, {vr(w)}, {vr(w+2)}
v_cvt_pk_bf16_f32 {vr(w)}, {vr(w+2)}, {vr(w+3)}
v_cvt_pk_bf16_f32 {vr(w+1)}, {vr(w+2)}, 0
v_mov_b32 {vr(w+2)}, 0
v_mov_b32 {vr(w+3)}, 0""".split('\n')

    def csp_addr(self, typ):
        self.P(f'v_and_b32 {vr(vT0)}, 0x1f0, {vr(vL16)}\nv_add_u32 {vr(vT0)}, {LDS_CSP + typ*1536}, {vr(vT0)}')

    def phi_addr(self):
        return f"""v_sub_u32 {vr(vVA)}, {vr(vKA)}, {vr(vL16)}
v_and_b32 {vr(vPD)}, 31, {vr(vLANE)}
v_lshl_add_u32 {vr(vVA)}, {vr(vPD)}, 5, {vr(vVA)}
v_lshrrev_b32 {vr(vPD)}, 5, {vr(vLANE)}
v_lshl_add_u32 {vr(vVA)}, {vr(vPD)}, 4, {vr(vVA)}""".split('\n')

    def main_kv(self, L):
        P = self.P; typ = L % 2; o = self.o; XD = o['xd']
        vm, lg = self.vm, self.lg
        NR = 3
        def rdk(ks):
            P(f'ds_read_b128 {vr(RING + 8*(ks % NR),4)}, {vr(vL16)} offset:{LDS_WK+ks*1024}'); lg.issue(('k', ks))
        def rdv(ks):
            P(f'ds_read_b128 {vr(RING + 8*(ks % NR) + 4,4)}, {vr(vL16)} offset:{LDS_WV+ks*1024}'); lg.issue(('v', ks))
        csrd = [('ds', 'cs', f'ds_read_b128 {vr(WEXTK,4)}, {vr(vT0)} offset:512'), ('ds', 'cs', f'ds_read_b128 {vr(WEXTV,4)}, {vr(vT0)} offset:1024')]
        wext = self.wext_items(WEXTK, 'cs') + self.wext_items(WEXTV, 'cs')
        addr = [f'v_add_u32 {vr(vKA)}, {sr(sOWN)}, {vr(vL16)}']
        if typ == 0:
            La = L // 2
            addr += [f's_add_u32 {sr(sK0)}, {sr(sKVW)}, {OFF_KV + La*KV_L}', f's_add_u32 {sr(sK2)}, {sr(sK0)}, 4096',
                     f's_add_u32 {sr(sH1)}, {sr(sHB)}, {OFF_KV + La*KV_L}', f's_add_u32 {sr(sH2)}, {sr(sH1)}, {16*KV_REC}']
        else: addr += self.phi_addr()
        extras = []
        def pop(n):
            for _ in range(n):
                if extras: self.item(extras.pop(0))
        def kstep(ks, pre=None):
            b = RING + 8*(ks % NR)
            P(waitstr(vm=vm.need(('x', ks)) if L > 0 else None, lg=lg.need(('k', ks))))
            self.mfma(ACC0, b, XF + 4*ks, None if ks == 0 else ACC0)
            if pre: pre()
            if ks + NR < 32: rdk(ks + NR)
            if L > 1 and ks & 1: P(self.acc_par(XF + 4*ks - 4, XF + 4*ks, L & 1))
            if L > 0 and ks + XD < 32: self.frag_load(sOut, ks + XD); pop(1)
            else: pop(3)
            P(waitstr(lg=lg.need(('v', ks))))
            self.mfma(ACC1, XF + 4*ks, b + 4, None if ks == 0 else ACC1)
            if ks + NR < 32: rdv(ks + NR)
            if L > 0 and 1 <= ks < 9:
                for i in range(2*(ks-1), 2*(ks-1) + 2):
                    P(f'buffer_load_dword {vr(STAT+i)}, {vr(vL4)}, {sr(sWS,4)}, {sr(sT1)} offen offset:{i*256} sc1'); vm.issue('st')
            pop(3)
        if L > 0 and not o['b0']:
            ok = P.newlabel('Lwr')
            P(f'v_cmp_gt_u32 vcc, {4*L}, {vr(vT0)}\ns_cbranch_vccz {ok}')
            self.lds_wait(C_WR, 4*L)
            P.label(ok)
        self.csp_addr(typ)
        if L == 0:
            AD = WEXTV; X0D = o['x0d']
            P(f"""v_bfe_u32 {vr(AD)}, {vr(vLANE)}, 1, 3
v_xor_b32 {vr(AD)}, {vr(AD)}, v64
v_lshlrev_b32 {vr(AD)}, 4, {vr(AD)}
v_lshl_add_u32 {vr(AD)}, v65, 7, {vr(AD)}
v_add_u32 {vr(AD)}, {sr(sLA)}, {vr(AD)}
v_xor_b32 {vr(AD+1)}, 32, {vr(AD)}
v_xor_b32 {vr(AD+2)}, 64, {vr(AD)}
v_xor_b32 {vr(AD+3)}, 96, {vr(AD)}
s_mov_b32 {sr(sSEL0)}, 0x3f803f80""")
            for i in range(4): P(f'v_mov_b32 {vr(STAT+i)}, 0')
            for it in addr: self.item(it)
            for g in range(2, X0D): self.x0_load(g)
            def dots(g):
                for i in range(16):
                    r_ = XF + 16*g + i
                    P(f'v_dot2_f32_bf16 {vr(STAT+(i&1))}, {vr(r_)}, {sr(sSEL0)}, {vr(STAT+(i&1))}\nv_dot2_f32_bf16 {vr(STAT+2+(i&1))}, {vr(r_)}, {vr(r_)}, {vr(STAT+2+(i&1))}')
            for g in range(8):
                P(waitstr(vm=vm.need(('x', g))))
                for s_ in range(4): P(f'ds_read_b128 {vr(XF+16*g+4*s_,4)}, {vr(AD+s_)} offset:{(g%4)*4096}')
                if g: P('s_waitcnt lgkmcnt(4)')
                if g + X0D < 8: self.x0_load(g + X0D)
                if g: dots(g - 1)
                if g == o['wgo'] - 1: self.lds_signal(C_WGO)
                if g in (0, 3, 5): self.stamp({0: 2, 3: 15, 5: 23}[g], {0: 'x g0 / W go', 3: 'x g3 / W st0', 5: 'x g5 / W st1'}[g])
            self.lds_signal(C_XDONE)
            lg.reset()
            for it in self.lds_peek(C_ST): self.item(it)
            dots(7)
            self.stamp(1, 'x0 / W st3')
            self.lds_check(C_ST, 4)
            self.stamp(29, 'S0 / W st2')
            for ks in range(NR): rdk(ks); rdv(ks)
            P(f'v_add_f32 {vr(STAT)}, {vr(STAT)}, {vr(STAT+1)}\nv_add_f32 {vr(STAT+2)}, {vr(STAT+2)}, {vr(STAT+3)}')
            P(f'v_permlane32_swap_b32 {vr(STAT)}, {vr(STAT+2)}\nv_add_f32 {vr(STAT)}, {vr(STAT)}, {vr(STAT+2)}')
            extras += self.stats_final(typ)
            pop(10)
            for ks in range(32):
                pre = None
                st = ks // 8 + 1
                if ks % 8 == 2: extras[0:0] = self.lds_peek(C_ST + st if st < 4 else C_CS)
                if ks % 8 == 5 and st < 4: pre = lambda: self.lds_check(C_ST + st, 4)
                if ks == 28:
                    pre = lambda: self.lds_check(C_CS, 4)
                    extras += csrd + self.lds_peek(C_Q) + ['s_nop 0']*3 + wext
                kstep(ks, pre)
            pop(100)
        else:
            vm.reset(); lg.reset()
            redo = P.newlabel('Lkvredo')
            P(f's_lshr_b32 {sr(sT1)}, {sr(sRB)}, 3\ns_add_u32 {sr(sT1)}, {sr(sT1)}, {OFF_ST}')
            for it in addr: self.item(it)
            if o['b0']: P('s_barrier')
            self.stamp(14 + L*14 if L < 3 else 57, f'L{L} B0')
            P.label(redo)
            for it in csrd: self.item(it)
            for ks in range(NR): rdk(ks); rdv(ks)
            extras += wext
            S = self.probe(sOut, 0, L & 1, XD) if L > 1 else self.first_hop(0, OFF_XFLAG + 0x2000, 60)
            if L == 1: extras += self.probe_addr().split('\n')
            self.stamp(2 + L*14, f'L{L} xflags')
            for ks in range(S, XD): self.frag_load(sOut, ks)
            late = [('wvm', 'st')] + [self.acc_par(STAT + 2*i, STAT + 2*i + 1, L & 1) for i in range(8) if L > 1]
            for step in (8, 4, 2, 1):
                for i in range(step): late.append(f'v_add_f32 {vr(STAT+i)}, {vr(STAT+i)}, {vr(STAT+i+step)}')
            late += self.stats_final(typ)
            for ks in range(32):
                if ks == 9 + XD: extras += late
                kstep(ks)
            pop(100)
            if L > 1: self.verify(L & 1, redo)
        self.mfma(ACC0, WEXTK, XEXT, ACC0)
        self.mfma(ACC1, XEXT, WEXTV, ACC1)

    def q_prefetch(self, NS=5):
        for ks in range(NS): self.q_rd(ks)

    def q_rd(self, ks, NS=5):
        self.P(f'ds_read_b128 {vr(RING + 4*(ks % NS),4)}, {vr(vTR1)} offset:{ks*1024}'); self.lg.issue(('w', ks))

    def main_qpass(self, L, acc, fill, at=None, pre_write=None, rate=4):
        P = self.P; typ = L % 2; lg = self.lg; NS = 5
        fill = list(fill)
        for ks in range(32):
            P(waitstr(lg=lg.need(('w', ks))))
            self.mfma(acc, RING + 4*(ks % NS), XF + 4*ks, None if ks == 0 else acc)
            if ks + NS < 32: self.q_rd(ks + NS)
            n = 0
            while fill and n < rate:
                it = fill.pop(0); self.item(it)
                if isinstance(it, str) or it[0] == 'ds': n += 1
            if at and ks in at: at[ks]()
        for it in fill: self.item(it)
        self.mfma(acc, WEXTQ, XEXT, acc)
        if at and 32 in at: at[32]()
        order = (4, 5, 6, 7, 0, 1, 2, 3)
        for p in order:
            if typ == 0: P(f'v_mul_f32 {vr(acc+2*p)}, {vr(vRSTD)}, {vr(acc+2*p)}\nv_mul_f32 {vr(acc+2*p+1)}, {vr(vRSTD)}, {vr(acc+2*p+1)}')
            P(f'v_cvt_pk_bf16_f32 {vr(aQ+p)}, {vr(acc+2*p)}, {vr(acc+2*p+1)}')
            if p == 7:
                if pre_write: pre_write()
                P(f'ds_write_b128 {vr(vKA)}, {vr(aQ+4,4)} offset:5120')

    def tile_addr(self, sbase):
        return f"""s_lshl_b32 {sr(sT1)}, {sr(sHS)}, 10
s_add_u32 {sr(sT1)}, {sr(sT1)}, {sr(sbase)}
v_add_u32 {vr(vKA)}, {sr(sT1)}, {vr(vL16)}
s_lshl_b32 {sr(sT1)}, {sr(sHS)}, 8
v_xor_b32 {vr(vVA)}, {sr(sT1)}, {vr(vL16)}
v_add_u32 {vr(vVA)}, {sr(sbase)}, {vr(vVA)}"""

    def trickle_setup(self):
        self.P(f's_mov_b32 {sr(sDM)}, 4\ns_mov_b32 {sr(sDG)}, {sr(sG0)}\ns_mov_b32 {sr(sDL)}, {sr(sLA)}')

    def trickle(self, keep=0):
        P = self.P; sk = P.newlabel('Lsk')
        P(f's_cmp_le_u32 {sr(sDM)}, {keep}\ns_cbranch_scc1 {sk}\ns_mul_i32 {sr(sT0)}, {sr(sDG)}, 3')
        for e in range(2):
            for nt in (1, 2):
                P(f's_add_u32 m0, {sr(sDL)}, {NT_LDS[nt] + e*1024}\ns_add_u32 {sr(sT1)}, {sr(sT0)}, {e*49152 + nt*1024}')
                P(f'buffer_load_dwordx4 {vr(vDW)}, {sr(sWB,4)}, {sr(sT1)} offen lds')
        P(f"""s_add_u32 {sr(sDL)}, {sr(sDL)}, 8192
s_add_u32 {sr(sDG)}, {sr(sDG)}, 0x20000
s_and_b32 {sr(sDG)}, {sr(sDG)}, 0x7ffff
s_sub_u32 {sr(sDM)}, {sr(sDM)}, 1""")
        P.label(sk)

    def attn_loop(self, cfirst, trickle=False):
        P = self.P; lp = P.newlabel('Latt')
        if self.o['trunc']: pk = lambda d, e: f'v_perm_b32 {vr(d)}, {vr(e+1)}, {vr(e)}, {sr(sPERM)}'
        else: pk = lambda d, e: f'v_cvt_pk_bf16_f32 {vr(d)}, {vr(e)}, {vr(e+1)}'
        rdv = f's_mov_b64 exec, {sr(sLO,2)}\nds_read_b128 {vr(VV,4)}, {vr(vVA)} offset:2048\nds_read_b128 {vr(VV+4,4)}, {vr(vVA)} offset:3072\ns_mov_b64 exec, -1'
        P(f'ds_read_b128 {vr(aK,4)}, {vr(vKA)}'); P(rdv)
        P(f'v_add_u32 {vr(vKA)}, {sr(sSTEP)}, {vr(vKA)}\nv_add_u32 {vr(vVA)}, {sr(sSTEP)}, {vr(vVA)}\ns_waitcnt lgkmcnt(2)')
        cfirst()
        P(f'ds_read_b128 {vr(aK,4)}, {vr(vKA)}\nv_add_u32 {vr(vKA)}, {sr(sSTEP)}, {vr(vKA)}\ns_nop 9')
        P.label(lp)
        for i in range(8): P(f'v_exp_f32 {vr(aE+i)}, {vr(aS+i)}')
        for p in range(4): P(pk(aP + p, aE + 2*p))
        for i in range(8, 10): P(f'v_exp_f32 {vr(aE+i-8)}, {vr(aS+i)}')
        P('s_waitcnt lgkmcnt(0)')
        self.mfma(aO, VV, aP, aO)
        for i in range(10, 16): P(f'v_exp_f32 {vr(aE+i-8)}, {vr(aS+i)}')
        self.mfma(aS, aK, aQ, None)
        P(f'ds_read_b128 {vr(aK,4)}, {vr(vKA)}')
        for p in range(4): P(pk(aP + 4 + p, aE + 2*p))
        P(f'v_add_u32 {vr(vKA)}, {sr(sSTEP)}, {vr(vKA)}\ns_sub_u32 {sr(sCNT)}, {sr(sCNT)}, 1')
        self.mfma(aO, VV + 4, aP + 4, aO)
        P(rdv)
        if trickle and self.o['trk']: self.trickle(4 - self.o['trk'])
        P(f'v_add_u32 {vr(vVA)}, {sr(sSTEP)}, {vr(vVA)}\ns_cmp_lg_u32 {sr(sCNT)}, 0\ns_cbranch_scc1 {lp}')

    def publish_o_addr(self, L):
        return [f's_add_u32 {sr(sK0)}, {sr(sOW)}, {OFF_O}'] + ([f's_add_u32 {sr(sK1)}, {sr(sOF)}, {OFF_OFLAG}'] if L == 0 else [])

    def publish_o(self, L, O, eps):
        P = self.P
        if eps: P(f'v_add_f32 {vr(O+8)}, {f2u(eps):#x}, {vr(O+8)}')
        P(f'v_rcp_f32 {vr(O+8)}, {vr(O+8)}')
        for p in range(4): P(f'v_pk_mul_f32 {vr(O+2*p,2)}, {vr(O+2*p,2)}, {vr(O+8,2)} op_sel_hi:[1,0]')
        for p in range(4): P(f'v_cvt_pk_bf16_f32 {vr(aP+p)}, {vr(O+2*p)}, {vr(O+2*p+1)}')
        P(self.set_par(aP, 1 - (L & 1)))
        def emit(sc1):
            P(f'buffer_store_dwordx4 {vr(aP,4)}, {vr(vL16)}, {sr(sWS,4)}, {sr(sK0)} offen' + (' sc1' if sc1 else ''))
            if L == 0: self.flag(sK1, sTAG, sc1, wait='s_waitcnt vmcnt(0)')
        self.two_way(emit)

    def main_outproj(self, L):
        P = self.P; vm, lg = self.vm, self.lg; OD = self.o['od']; par = 1 - (L & 1)
        vm.reset(); lg.reset()
        redo = P.newlabel('Lopredo')
        if L == 0:
            for op in ['s_waitcnt vmcnt(1)'] + [f'v_permlane32_swap_b32 {vr(XRES+a)}, {vr(XRES+b)}' for a, b in SW4] + self.wphi_pack(170): P(op)
        NS = 6
        def rd(ks):
            P(f'ds_read_b128 {vr(RING + 4*(ks % NS),4)}, {vr(vTR2)} offset:{ks*1024}'); lg.issue(('w', ks))
        self.publish_x_addr(L + 1)
        P.label(redo)
        for ks in range(NS): rd(ks)
        self.unpack_res()
        S = self.probe(sWS, OFF_O, par, OD) if L > 0 else self.first_hop(OFF_O, OFF_OFLAG, 124)
        self.stamp(11 + L*14, f'L{L} oflags')
        for ks in range(S, OD): self.frag_load(sWS, ks)
        for ks in range(32):
            P(waitstr(vm=vm.need(('x', ks)), lg=lg.need(('w', ks))))
            self.mfma(ACC0, RING + 4*(ks % NS), XF + 4*ks, ACC0)
            if ks + OD < 32: self.frag_load(sWS, ks + OD)
            if ks + NS < 32: rd(ks + NS)
            if L and ks & 1: P(self.acc_par(XF + 4*ks - 4, XF + 4*ks, par))
        if L: self.verify(par, redo)
        self.stamp(12 + L*14, f'L{L} outproj')
        nxt = L + 1 < self.nl and not self.o['b0']
        if nxt: P(f'ds_read_b32 {vr(vT0)}, {vr(vCNT)} offset:{4*C_WR}')
        self.publish_x(L + 1)
        if nxt: self.lds_signal(C_XDONE)
        self.stamp(13 + L*14, f'L{L} xpub')

    def aux_head(self, L):
        P = self.P
        if self.o['b0']: P('s_barrier')
        else: self.lds_signal(C_WR)
        if L + 1 < self.nl: self.code_prefetch(f'L_main_{L+1}')
        if L > 1 and not self.o['b0']: self.lds_wait(C_XDONE, 4 + 4*L)
        if L == 1:
            self.lds_to_regs(LDS_WO, PARK['o']); P('s_waitcnt lgkmcnt(0)')
        else: self.swap_region('o', L + 1 < self.nl)

    def aux_tail(self, L):
        P = self.P
        if L + 1 >= self.nl: return
        if L % 2 == 0: wait_att = lambda: self.lds_wait(C_ATT, 8*(L//2 + 1))
        else: wait_att = lambda: None
        if L == 0:
            lp = P.newlabel('Lx'); P.label(lp)
            self.trickle()
            P(f's_cmp_lg_u32 {sr(sDM)}, 0\ns_cbranch_scc1 {lp}')
            self.wphi_load()
            wait_att()
            self.dma_w(1, (0,))
            P('s_waitcnt vmcnt(8)')
            for op in self.wphi_pack(): P(op)
            self.relayout(1, (1, 2))
            P('s_waitcnt vmcnt(0)')
            self.relayout(1, (0,))
            return
        save = L + 2 < self.nl
        self.swap_region(1, save); self.swap_region(2, save)
        wait_att()
        self.swap_region(0, save)

    def layerA(self, L):
        P = self.P; sb = L * 14; o = self.o; lg = self.lg
        j1 = f'L_j1_{L}'; j2 = f'L_j2_{L}'; ax2 = f'L_ax2_{L}'; ax3 = f'L_ax3_{L}'
        P.label(f'L_main_{L}')
        self.main_kv(L)
        self.stamp(3 + sb, f'L{L} kvpass')
        if L == 0: self.lds_check(C_Q, 4)
        self.q_prefetch()
        P(waitstr(lg=lg.need('rt')))
        for p in range(8):
            P(f'v_pk_mul_f32 {vr(ACC0+2*p,2)}, {vr(ACC0+2*p,2)}, {vr(vRSTD,2)} op_sel_hi:[1,0]')
        for p in range(8): P(f'v_cvt_pk_bf16_f32 {vr(PKV+p)}, {vr(ACC0+2*p)}, {vr(ACC0+2*p+1)}')
        st = lambda f: f'buffer_store_dwordx4 {vr(PKV+4*f,4)}, {vr(vL16)}, {sr(sWS,4)}, {sr(sK0)} offen offset:{f*1024} sc1'
        fill = [st(0), st(1)]
        for hf in range(2):
            fill += [f'v_mul_f32 {vr(ACC1+i)}, {vr(STAT+i)}, {vr(ACC1+i)}' for i in range(8*hf, 8*hf + 8)]
            fill += [f'v_cvt_pk_bf16_f32 {vr(PKV+8+p)}, {vr(ACC1+2*p)}, {vr(ACC1+2*p+1)}' for p in range(4*hf, 4*hf + 4)]
            fill.append(st(2 + hf))
        fill += self.checksum(vPD, PKV, 16) + [f'buffer_store_dword {vr(vPD)}, {vr(vL4)}, {sr(sWS,4)}, {sr(sK2)} offen sc1']
        fill += [('ds', 'own', f'ds_write_b128 {vr(vKA)}, {vr(PKV+4*f,4)} offset:{f*1024}') for f in range(4)]
        m0 = self.mask_ops(0)
        if L == 0: fill += m0[:30] + self.lds_peek(C_CSQ) + m0[30:44] + [('fn', lambda: self.lds_check(C_CSQ, 4))]
        else: fill += m0[:44]
        fill += [('ds', 'cs', f'ds_read_b128 {vr(WEXTQ,4)}, {vr(vT0)}')] + m0[44:]
        fill += [f'v_mul_f32 {vr(vRSTD)}, {f2u(0.25*LOG2E):#x}, {vr(vRSTD)}'] + self.wext_items(WEXTQ, 'cs')
        def halo_loads():
            P(f'v_add_u32 v162, 4096, {vr(vL4)}')
            for t_, sh in ((0, sH1), (1, sH2)):
                for f in range(4): P(f'buffer_load_dwordx4 {vr(aH+16*t_+4*f,4)}, {vr(vL16)}, {sr(sWS,4)}, {sr(sh)} offen offset:{f*1024} sc1')
                P(f'buffer_load_dword {vr(160+t_)}, v162, {sr(sWS,4)}, {sr(sh)} offen sc1')
        def halo_first():
            l = P.newlabel('Lx')
            P(f's_cmp_eq_u32 {sr(sHAS)}, 0\ns_cbranch_scc1 {l}')
            halo_loads()
            P.label(l)
        common = self.publish_o_addr(L) + [f's_add_u32 {sr(sCNT)}, {sr(sQT)}, 1', f's_mov_b32 {sr(sSTEP)}, {-OWN_ST}']
        def gap32():
            for it in common + [f'v_mov_b32 {vr(vVA)}, {vr(vKA)}']: P(it)
            if o['halo_at'] == 32: halo_first()
        at = {32: gap32}
        if o['halo_at'] < 32: at[o['halo_at']] = halo_first
        self.main_qpass(L, ACC0, fill, at=at)
        if o['halo_at'] == 33: halo_first()
        if o['prio']: self.prio_if(f's_cmp_ge_u32 {sr(sQT)}, 2')
        self.stamp(5 + sb, f'L{L} preB1')
        P(f's_waitcnt lgkmcnt(0)\ns_barrier')
        if o['halo_at'] == 35: halo_first()
        P(f's_branch {j1}')
        P.label(f'L_aux_{L}')
        if L > 0:
            self.aux_head(L)
            for op in self.mask_ops(0) + self.mask_ops(1): P(op)
        else:
            self.trickle_setup()
            P(f'v_and_b32 {vr(vPA)}, 60, {vr(vL4)}\ns_lshl_b32 {sr(sH1)}, {sr(sR)}, 7\ns_add_u32 {sr(sH1)}, {sr(sH1)}, {OFF_XFLAG}\nbuffer_load_dword v25, {vr(vPA)}, {sr(sWS,4)}, {sr(sH1)} offen sc1')
        P(self.tile_addr(sOWN))
        for it in common: P(it)
        if o['prio']: self.prio_if(f's_cmp_ge_u32 {sr(sQT)}, 2')
        self.stamp(5 + sb, f'L{L} preB1')
        P('s_barrier')
        P(f'ds_read_b128 {vr(aQ,4)}, {vr(vKA)} offset:4096')
        P.label(j1)
        self.attn_loop(lambda: self.mfma(aS, aK, aQ, CDIAG))
        P(self.tile_addr(sP2))
        P(f's_mov_b32 {sr(sCNT)}, {sr(sC2)}\ns_mov_b32 {sr(sSTEP)}, 4096')
        if o['prio']: self.prio_if(f's_cmp_lt_u32 {sr(sQT)}, 2')
        self.stamp(6 + sb, f'L{L} own attn')
        lp = P.newlabel('Lhalo'); ck = P.newlabel('Lhchk'); dn = P.newlabel('Lhdone')
        P(f's_cmp_lg_u32 {sr(sHS)}, 0\ns_cbranch_scc1 {ax2 if L == 0 else j2}')
        if o['halo_at'] == 34: halo_first()
        for op in self.mask_ops(1): P(op)
        P(f"""s_cmp_eq_u32 {sr(sHAS)}, 0
s_cbranch_scc1 {j2 if L else 'L_res0'}
s_lshl_b32 {sr(sT3)}, {sr(sMT)}, 13
s_add_u32 {sr(sT3)}, {sr(sT3)}, {LDS_T}
v_add_u32 {vr(vT0)}, {sr(sT3)}, {vr(vL16)}
s_branch {ck}""")
        P.label(lp)
        halo_loads()
        P.label(ck)
        for t_ in range(2):
            cs = self.checksum(163 + t_, aH + 16*t_, 16)
            for f in range(4):
                P(f's_waitcnt vmcnt({9-5*t_-f})\nds_write_b128 {vr(vT0)}, {vr(aH+16*t_+4*f,4)} offset:{(4*t_+f)*1024}')
                P(cs[2*f]); P(cs[2*f + 1])
            P(f's_waitcnt vmcnt({5-5*t_})\nv_cmp_ne_u32 {sr(sM+2*t_,2)}, {vr(160+t_)}, {vr(163+t_)}')
        P(f's_or_b64 {sr(sM,2)}, {sr(sM,2)}, {sr(sM+2,2)}\ns_cbranch_scc0 {dn}')
        self.retry_tail(lp, dn)
        self.stamp(7 + sb, f'L{L} halo ok')
        if L == 0:
            P.label('L_res0')
            self.rowmajor_addr(182, 183, sT0)
            P(f'buffer_load_dwordx4 {vr(XRES,4)}, v182, {sr(sX0,4)}, {sr(sT0)} offen\nbuffer_load_dwordx4 {vr(XRES+4,4)}, v182, {sr(sX0,4)}, {sr(sT0)} offen offset:32')
            self.wphi_load(170)
            P(f's_branch {j2}'); P.label(ax2)
            okl = P.newlabel('Lx')
            P(f's_waitcnt vmcnt(0) lgkmcnt(0)\nv_mov_b32 {vr(vPD)}, v25\nv_and_b32 {vr(vT0)}, -16, v25\nv_cmp_ne_u32 vcc, {sr(sTAG)}, {vr(vT0)}\ns_cbranch_vccz {okl}')
            self.poll(sH1, masked=True)
            P.label(okl)
            if not self.force_safe:
                P(f"""v_cmp_ne_u32 vcc, {sr(sOWNF)}, {vr(vPD)}
s_cmp_eq_u64 vcc, 0
s_cselect_b32 {sr(sFAST)}, 1, 0
v_mov_b32 {vr(vT0)}, {sr(sFAST)}
ds_write_b32 {vr(vCNT)}, {vr(vT0)} offset:44""")
            if o['touch']:
                P(f"""v_lshlrev_b32 v5, 3, {vr(vL16)}
v_and_b32 v5, 0x780, v5
s_add_u32 {sr(sT0)}, {sr(sXW)}, {OFF_O}
s_add_u32 {sr(sT1)}, {sr(sSW)}, {OFF_ST}
s_mov_b64 exec, 0xffff
buffer_load_dword v26, v5, {sr(sWS,4)}, {sr(sT0)} offen sc1
buffer_load_dword v26, v5, {sr(sOut,4)}, {sr(sXW)} offen sc1
s_mov_b64 exec, 3
buffer_load_dword v26, v5, {sr(sWS,4)}, {sr(sT1)} offen sc1
s_mov_b64 exec, -1""")
            self.relayout(0, ('o',), tmp=aS, ntmp=4)
        P.label(j2)
        lskip = P.newlabel('Lnohalo'); l1 = P.newlabel('Lr1'); l2 = P.newlabel('Lr2')
        P('s_waitcnt lgkmcnt(0)\ns_barrier')
        if L == 0 and not self.force_safe: P(f'ds_read_b32 {vr(vPD)}, {vr(vCNT)} offset:44')
        self.stamp(8 + sb, f'L{L} B2')
        P(f's_cmp_eq_u32 {sr(sR)}, 0\ns_cbranch_scc1 {lskip}')
        def first():
            P(f's_cmp_eq_u32 {sr(sR)}, 1\ns_cbranch_scc1 {l1}')
            self.mfma(aS, aK, aQ, CFIRST)
            P(f's_branch {l2}'); P.label(l1)
            self.mfma(aS, aK, aQ, None)
            P.label(l2)
        self.attn_loop(first, trickle=(L == 0))
        P.label(lskip)
        if L == 0 and not self.force_safe: P(f's_waitcnt lgkmcnt(0)\nv_readfirstlane_b32 {sr(sFAST)}, {vr(vPD)}')
        self.stamp(9 + sb, f'L{L} attn')
        P(f'v_subrev_u32 {vr(vT0)}, {f2u(2.0**-SAFE_EXP):#x}, {vr(aO+8)}\nv_cmp_le_u32 vcc, {f2u(2.0**SAFE_EXP) - f2u(2.0**-SAFE_EXP):#x}, {vr(vT0)}\ns_cbranch_vccnz L_fb_{L}')
        P.label(f'L_fbr_{L}')
        self.publish_o(L, aO, 0)
        if o['prio']: P('s_setprio 0')
        self.lds_signal(C_ATT)
        self.stamp(10 + sb, f'L{L} opub')
        P(f's_cmp_lg_u32 {sr(sHS)}, 0\ns_cbranch_scc1 {ax3}')
        self.main_outproj(L)
        P(f's_branch L_main_{L+1}')
        P.label(ax3)
        self.aux_tail(L)
        self.stamp(13 + sb, f'L{L} xpub')
        P(f's_branch L_aux_{L+1}')

    def attn_fallback(self, L):
        P = self.P; M = vT0
        pk = lambda d, e: f'v_cvt_pk_bf16_f32 {vr(d)}, {vr(e)}, {vr(e+1)}'
        P.label(f'L_fb_{L}')
        P(f's_waitcnt lgkmcnt(0)\nv_mov_b32 {vr(M)}, 0xff800000')
        for i in range(16): P(f'v_mov_b32 {vr(aO+i)}, 0')
        for ps in range(2):
            for seg in range(2):
                lp = P.newlabel('Lfb'); nx = P.newlabel('Lfbn'); nm = P.newlabel('Lfbm')
                if seg == 0:
                    P(self.tile_addr(sOWN))
                    P(f's_add_u32 {sr(sCNT)}, {sr(sQT)}, 1\ns_mov_b32 {sr(sSTEP)}, {-OWN_ST}')
                    for i in range(16): P(f'v_mov_b32 {vr(aS+i)}, {vr(CDIAG+i)}')
                else:
                    P(f's_cmp_eq_u32 {sr(sR)}, 0\ns_cbranch_scc1 {nx}')
                    P(self.tile_addr(sP2))
                    P(f's_mov_b32 {sr(sCNT)}, {sr(sC2)}\ns_mov_b32 {sr(sSTEP)}, 4096\ns_cmp_eq_u32 {sr(sR)}, 1\ns_cbranch_scc1 {lp}')
                    for i in range(16): P(f'v_mov_b32 {vr(aS+i)}, {vr(CFIRST+i)}')
                P.label(lp)
                P(f'ds_read_b128 {vr(aK,4)}, {vr(vKA)}')
                if ps:
                    P(f's_mov_b64 exec, {sr(sLO,2)}\nds_read_b128 {vr(VV,4)}, {vr(vVA)} offset:2048\nds_read_b128 {vr(VV+4,4)}, {vr(vVA)} offset:3072\ns_mov_b64 exec, -1')
                P('s_waitcnt lgkmcnt(0)')
                self.mfma(aS, aK, aQ, aS)
                if ps == 0:
                    for i in range(0, 16, 2): P(f'v_max3_f32 {vr(M)}, {vr(M)}, {vr(aS+i)}, {vr(aS+i+1)}')
                else:
                    for i in range(16): P(f'v_sub_f32 {vr(aS+i)}, {vr(aS+i)}, {vr(M)}')
                    for i in range(16): P(f'v_exp_f32 {vr(aS+i)}, {vr(aS+i)}')
                    for p in range(8): P(pk(aP + p, aS + 2*p))
                    self.mfma(aO, VV, aP, aO)
                    self.mfma(aO, VV + 4, aP + 4, aO)
                for i in range(16): P(f'v_mov_b32 {vr(aS+i)}, 0')
                P(f'v_add_u32 {vr(vKA)}, {sr(sSTEP)}, {vr(vKA)}\nv_add_u32 {vr(vVA)}, {sr(sSTEP)}, {vr(vVA)}')
                P(f's_sub_u32 {sr(sCNT)}, {sr(sCNT)}, 1\ns_cmp_lg_u32 {sr(sCNT)}, 0\ns_cbranch_scc1 {lp}')
                P.label(nx)
            if ps == 0:
                P(f'v_mov_b32 {vr(vPD)}, {vr(M)}\nv_permlane32_swap_b32 {vr(vPD)}, {vr(M)}\nv_max_f32 {vr(M)}, {vr(M)}, {vr(vPD)}')
        P(f's_branch L_fbr_{L}')

    def softmax16(self, dst, t):
        P = self.P; A = ACC0
        P(f'v_max3_f32 {vr(t)}, {vr(A)}, {vr(A+1)}, {vr(A+2)}\nv_max3_f32 {vr(t+1)}, {vr(A+3)}, {vr(A+4)}, {vr(A+5)}')
        P(f'v_max3_f32 {vr(t+2)}, {vr(A+6)}, {vr(A+7)}, {vr(A+8)}\nv_max3_f32 {vr(t+3)}, {vr(A+9)}, {vr(A+10)}, {vr(A+11)}')
        P(f'v_max3_f32 {vr(t)}, {vr(t)}, {vr(A+12)}, {vr(A+13)}\nv_max3_f32 {vr(t+1)}, {vr(t+1)}, {vr(A+14)}, {vr(A+15)}')
        P(f'v_max3_f32 {vr(t)}, {vr(t)}, {vr(t+2)}, {vr(t+3)}\nv_max_f32 {vr(t)}, {vr(t)}, {vr(t+1)}')
        P(f'v_mul_f32 {vr(t)}, {vr(vRSTD)}, {vr(t)}')
        for i in range(4): P(f'v_fma_f32 {vr(A+i)}, {vr(A+i)}, {vr(vRSTD)}, -{vr(t)}')
        for i in range(16):
            P(f'v_exp_f32 {vr(A+i)}, {vr(A+i)}')
            if i + 4 < 16: P(f'v_fma_f32 {vr(A+i+4)}, {vr(A+i+4)}, {vr(vRSTD)}, -{vr(t)}')
            if i == 2: P(f'v_add_f32 {vr(t+1)}, {vr(A)}, {vr(A+1)}')
            if i >= 3: P(f'v_add_f32 {vr(t+1)}, {vr(t+1)}, {vr(A+i-1)}')
        P(f'v_add_f32 {vr(t+1)}, {vr(t+1)}, {vr(A+15)}\nv_rcp_f32 {vr(t)}, {vr(t+1)}')
        for p in range(8):
            P(f'v_mul_f32 {vr(A+2*p)}, {vr(t)}, {vr(A+2*p)}\nv_mul_f32 {vr(A+2*p+1)}, {vr(t)}, {vr(A+2*p+1)}')
        for p in range(8): P(f'v_cvt_pk_bf16_f32 {vr(dst+p)}, {vr(A+2*p)}, {vr(A+2*p+1)}')

    def layerB(self, L):
        P = self.P; Lb = L // 2; sb = L * 14; o = self.o; lg = self.lg
        j0 = f'L_j0_{L}'; j1 = f'L_j1_{L}'; j2 = f'L_j2_{L}'; ax1 = f'L_ax1_{L}'; ax1b = f'L_ax1b_{L}'; ax3 = f'L_ax3_{L}'; axz = f'L_axz_{L}'
        KA, KV_ = 48, 96
        vA16, vA4, vAW, vAO = 96, 97, 98, 99
        P.label(f'L_main_{L}')
        self.main_kv(L)
        self.stamp(3 + sb, f'L{L} kvpass')
        P(waitstr(lg=lg.need('rt')))
        for p in (4, 5, 6, 7): P(f'v_cvt_pk_bf16_f32 {vr(PKV+p)}, {vr(ACC0+2*p)}, {vr(ACC0+2*p+1)}')
        P(f'ds_write_b128 {vr(vKA)}, {vr(PKV+4,4)} offset:1024')
        for p in (0, 1, 2, 3): P(f'v_cvt_pk_bf16_f32 {vr(PKV+p)}, {vr(ACC0+2*p)}, {vr(ACC0+2*p+1)}')
        vmul = lambda p: f'v_pk_mul_f32 {vr(ACC1+2*p,2)}, {vr(ACC1+2*p,2)}, {vr(STAT+2*p,2)}'
        P(vmul(0)); P(vmul(1))
        self.mfma(ACC0, WPHI, PKV, None)
        for p in range(2, 8): P(vmul(p))
        P('s_waitcnt lgkmcnt(0)\ns_barrier')
        for p in range(8): P(f'v_cvt_pk_bf16_f32 {vr(PKV+8+p)}, {vr(ACC1+2*p)}, {vr(ACC1+2*p+1)}')
        for f in range(2, 4): P(f'ds_write_b128 {vr(vKA)}, {vr(PKV+4*f,4)} offset:{f*1024}')
        P(f's_branch {j0}')
        P.label(f'L_aux_{L}')
        self.aux_head(L)
        for i in range(32): P(f'v_mov_b32 {vr(KV_+i)}, {vr(ONES)}')
        P(f"""v_lshrrev_b32 v91, 5, {vr(vLANE)}
v_bfe_u32 v88, {vr(vLANE)}, 2, 2
v_lshl_add_u32 v88, v91, 2, v88
v_lshlrev_b32 v88, 5, v88
v_and_b32 v89, 1, {vr(vLANE)}
v_lshl_add_u32 v88, v89, 4, v88
v_bfe_u32 v89, {vr(vLANE)}, 4, 1
v_lshl_add_u32 v88, v89, 12, v88
v_bfe_u32 v89, {vr(vLANE)}, 1, 1
v_lshl_add_u32 v88, v89, 3, v88
s_lshl_b32 {sr(sT0)}, {sr(sMT)}, 10
s_add_u32 {sr(sT0)}, {sr(sT0)}, {LDS_OWN}
v_add_u32 v88, {sr(sT0)}, v88
s_lshl_b32 {sr(sT1)}, {sr(sMT)}, 8
v_xor_b32 v90, {sr(sT1)}, {vr(vL16)}
v_add_u32 v89, {LDS_OWN}, v90
s_lshl_b32 {sr(sT0)}, {sr(sMT)}, 5
s_add_u32 {sr(sT0)}, {sr(sT0)}, 1024
v_lshl_add_u32 v91, v91, 4, {sr(sT0)}
v_and_b32 v92, 31, {vr(vLANE)}
v_mov_b32 v93, {OOB:#x}
v_cmp_eq_u32 vcc, 16, v92
v_cndmask_b32 v91, v93, v91, vcc
v_cndmask_b32 v90, v91, v90, {sr(sLO,2)}
v_lshrrev_b32 v91, 2, v90
s_lshl_b32 {sr(sK2)}, {sr(sC)}, 4
s_add_u32 {sr(sK2)}, {sr(sK2)}, {sr(sR)}
s_mul_i32 {sr(sK2)}, {sr(sK2)}, {KP_REC}
s_add_u32 {sr(sK2)}, {sr(sK2)}, {OFF_KP + Lb*KP_L}""")
        P(self.tile_addr(sOWN))
        for op in self.phi_addr(): P(op)
        P(f's_lshl_b32 {sr(sT0)}, {sr(sQT)}, 7\ns_add_u32 {sr(sT0)}, {sr(sT0)}, {LDS_RSTD}\nv_and_b32 v25, 124, {vr(vL4)}\nv_add_u32 v25, {sr(sT0)}, v25')
        self.stamp(3 + sb, f'L{L} kvpass')
        P('s_barrier')
        P(f'ds_read_b128 {vr(RING+8,4)}, {vr(vKA)}\nds_read_b32 {vr(vRSTD)}, v25\ns_waitcnt lgkmcnt(1)')
        self.mfma(ACC0, WPHI, RING + 8, None)
        P(f's_waitcnt lgkmcnt(0)\nv_mul_f32 {vr(vRSTD)}, {sr(sLOG2E)}, {vr(vRSTD)}\ns_nop 9')
        P.label(j0)
        self.stamp(4 + sb, f'L{L} B1a')
        self.softmax16(RING, RING + 12)
        P(f'ds_write_b128 {vr(vVA)}, {vr(RING,4)}\nds_write_b128 {vr(vVA)}, {vr(RING+4,4)} offset:4096\ns_waitcnt lgkmcnt(0)\ns_barrier')
        self.stamp(5 + sb, f'L{L} B1b')
        common = self.publish_o_addr(L) + f"""s_mul_i32 {sr(sH1)}, {sr(sC)}, {16*KP_REC}
s_add_u32 {sr(sH1)}, {sr(sH1)}, {OFF_KP + Lb*KP_L}
s_mov_b32 {sr(sSEL0)}, 0x3f80
s_mov_b32 {sr(sSEL1)}, 0x3f800000
s_lshl_b32 {sr(sT0)}, {sr(sHS)}, 4
v_xor_b32 {vr(vAO)}, {sr(sT0)}, {vr(vLANE)}
v_lshlrev_b32 {vr(vAO)}, 5, {vr(vAO)}
v_add_u32 {vr(vAO)}, {LDS_KVT}, {vr(vAO)}
v_and_b32 v100, 32, {vr(vLANE)}
s_lshl_b32 {sr(sT0)}, {sr(sHS)}, 6
s_add_u32 {sr(sT0)}, {sr(sT0)}, {LDS_ZT}
v_add_u32 v100, {sr(sT0)}, v100
v_cndmask_b32 {vr(vAO)}, v100, {vr(vAO)}, {sr(sLO,2)}""".split('\n')
        def entry_addr(ent, part):
            return ent + part + f"""v_mul_u32_u24 {vr(vA16)}, {KP_REC}, {vr(vA16)}
v_lshl_add_u32 {vr(vA4)}, v100, 2, {vr(vA16)}
v_lshl_add_u32 {vr(vA16)}, v100, 4, {vr(vA16)}
v_lshrrev_b32 {vr(vAW)}, 4, {vr(vLANE)}
v_lshlrev_b32 {vr(vAW)}, 3, {vr(vAW)}
v_lshl_add_u32 {vr(vAW)}, v100, 5, {vr(vAW)}
v_add_u32 {vr(vAW)}, {LDS_KVT}, {vr(vAW)}""".split('\n')
        A = ACC1; KD = 128
        def loads_main():
            P(f's_mov_b32 {sr(sT0)}, {sr(sH1)}')
            for it in range(4):
                D = KD + 12*it
                P(f'buffer_load_dwordx4 {vr(D,4)}, {vr(vA16)}, {sr(sWS,4)}, {sr(sT0)} offen sc1\nbuffer_load_dwordx4 {vr(D+4,4)}, {vr(vA16)}, {sr(sWS,4)}, {sr(sT0)} offen offset:{KP_D1} sc1')
                P(f'buffer_load_dword {vr(D+8)}, {vr(vA4)}, {sr(sWS,4)}, {sr(sT0)} offen offset:{KP_CS} sc1')
                if it < 3: P(f's_add_u32 {sr(sT0)}, {sr(sT0)}, {4*KP_REC}')
        P(f's_cmp_lg_u32 {sr(sHS)}, 0\ns_cbranch_scc1 {ax1}')
        lg.reset()
        self.q_prefetch()
        fill = [('ds', 'cs', f'ds_read_b128 {vr(WEXTQ,4)}, {vr(vT0)}')] + common
        fill += entry_addr([f'v_and_b32 v100, 15, {vr(vLANE)}', f's_lshl_b32 {sr(sT0)}, {sr(sMT)}, 4', f'v_add_u32 v100, {sr(sT0)}, v100'], [f'v_lshrrev_b32 {vr(vA16)}, 4, {vr(vLANE)}'])
        fill += self.wext_items(WEXTQ, 'cs')
        self.main_qpass(L, ACC1, fill, pre_write=lambda: P('s_barrier'), rate=2)
        self.mfma(ACC0, WPHI, aQ, None)
        P('s_waitcnt lgkmcnt(0)\ns_barrier')
        if o['kp_at'] == 1: loads_main()
        P(f's_branch {j1}')
        P.label(ax1)
        P(f's_cmp_ge_u32 {sr(sMT)}, 2\ns_cbranch_scc1 {ax1b}\ns_setprio 3')
        for st in range(8):
            of = (st >> 1)*OWN_ST + (st & 1)*512
            P(f'ds_read_b64_tr_b16 {vr(KA+4*st,2)}, v88 offset:{of}\nds_read_b64_tr_b16 {vr(KA+2+4*st,2)}, v88 offset:{of+256}')
            P(f's_mov_b64 exec, {sr(sLO,2)}\nds_read_b128 {vr(KV_+4*st,4)}, v89 offset:{(st>>1)*OWN_ST + 2048 + (st&1)*1024}\ns_mov_b64 exec, -1')
            if st >= 3:
                P('s_waitcnt lgkmcnt(9)'); self.mfma(ACC0, KA + 4*(st-3), KV_ + 4*(st-3), None if st == 3 else ACC0)
        for st in range(5, 8):
            P(f's_waitcnt lgkmcnt({3*(7-st)})'); self.mfma(ACC0, KA + 4*st, KV_ + 4*st, ACC0)
        for p in range(8): P(f'v_cvt_pk_bf16_f32 {vr(80+p)}, {vr(ACC0+2*p)}, {vr(ACC0+2*p+1)}')
        P(f'buffer_store_dwordx4 v[80:83], v90, {sr(sWS,4)}, {sr(sK2)} offen sc1\nbuffer_store_dwordx4 v[84:87], v90, {sr(sWS,4)}, {sr(sK2)} offen offset:{KP_D1} sc1')
        for op in self.checksum(92, 80, 8): P(op)
        P(f'buffer_store_dword v92, v91, {sr(sWS,4)}, {sr(sK2)} offen offset:{KP_CS} sc1')
        self.stamp(6 + sb, f'L{L} phiq / kp stored')
        P('s_setprio 0')
        P.label(ax1b)
        if L == 1: self.dma_w(1, ('o',))
        for it in common + entry_addr([f'v_and_b32 v100, 3, {vr(vLANE)}', 'v_add_u32 v100, 64, v100'], [f'v_lshrrev_b32 {vr(vA16)}, 2, {vr(vLANE)}']): P(it)
        P('s_barrier\ns_barrier')
        P(f'ds_read_b128 {vr(aQ,4)}, {vr(vKA)} offset:4096\ns_waitcnt lgkmcnt(0)')
        self.mfma(ACC0, WPHI, aQ, None)
        P('s_nop 11')
        P.label(j1)
        self.softmax16(PHQ, RING + 12)
        P(f's_cmp_lg_u32 {sr(sHS)}, 0\ns_cbranch_scc1 {axz}')
        def fold():
            for j in range(8): P(f'v_permlane32_swap_b32 {vr(A+j)}, {vr(A+j+8)}')
            for j in range(4): P(f'v_pk_add_f32 {vr(A+2*j,2)}, {vr(A+2*j,2)}, {vr(A+2*j+8,2)}')
            for j in range(4): P(f'v_permlane16_swap_b32 {vr(A+j)}, {vr(A+j+4)}')
            for j in range(2): P(f'v_pk_add_f32 {vr(A+2*j,2)}, {vr(A+2*j,2)}, {vr(A+2*j+4,2)}')
        def unpack(D):
            for k in range(8): P(f'v_lshlrev_b32 {vr(A+2*k)}, 16, {vr(D+k)}\nv_and_b32 {vr(A+2*k+1)}, 0xffff0000, {vr(D+k)}')
        fin = f'v_cvt_pk_bf16_f32 v68, {vr(A)}, {vr(A+1)}\nv_cvt_pk_bf16_f32 v69, {vr(A+2)}, {vr(A+3)}\nds_write_b64 {vr(vAW)}, v[68:69]'
        self.stamp(6 + sb, f'L{L} phiq / kp stored')
        lp = P.newlabel('Lkp'); ck = P.newlabel('Lkpc'); dn = P.newlabel('Lkpd')
        if o['kp_at'] == 1: P(f's_branch {ck}')
        P.label(lp)
        loads_main()
        P.label(ck)
        for it in range(4):
            D = KD + 12*it
            P(f's_waitcnt vmcnt({9-3*it})')
            for op in self.checksum(D + 9, D, 8): P(op)
            P(f'v_cmp_ne_u32 {sr(sM+2*it,2)}, {vr(D+8)}, {vr(D+9)}')
            if it == 0: unpack(D)
            elif it < 3:
                for k in range(8):
                    P(f'v_dot2_f32_bf16 {vr(A+2*k)}, {vr(D+k)}, {sr(sSEL0)}, {vr(A+2*k)}\nv_dot2_f32_bf16 {vr(A+2*k+1)}, {vr(D+k)}, {sr(sSEL1)}, {vr(A+2*k+1)}')
        P(f's_or_b64 {sr(sM,2)}, {sr(sM,2)}, {sr(sM+2,2)}\ns_or_b64 {sr(sM+4,2)}, {sr(sM+4,2)}, {sr(sM+6,2)}\ns_or_b64 {sr(sM,2)}, {sr(sM,2)}, {sr(sM+4,2)}\ns_cbranch_scc0 {dn}')
        self.retry_tail(lp, dn)
        self.stamp(7 + sb, f'L{L} kp ok')
        D = KD + 36
        for k in range(8):
            P(f'v_dot2_f32_bf16 {vr(A+2*k)}, {vr(D+k)}, {sr(sSEL0)}, {vr(A+2*k)}\nv_dot2_f32_bf16 {vr(A+2*k+1)}, {vr(D+k)}, {sr(sSEL1)}, {vr(A+2*k+1)}')
        fold()
        P(fin)
        P(f's_branch {j2}')
        P.label(axz)
        if L == 1:
            P('s_waitcnt vmcnt(0)')
            self.relayout(1, ('o',), tmp=32)
        P(f's_cmp_lg_u32 {sr(sMT)}, 2\ns_cbranch_scc1 {j2}')
        lp = P.newlabel('Lkz'); dn = P.newlabel('Lkzd'); D = 32
        P.label(lp)
        P(f'buffer_load_dwordx4 {vr(D,4)}, {vr(vA16)}, {sr(sWS,4)}, {sr(sH1)} offen sc1\nbuffer_load_dwordx4 {vr(D+4,4)}, {vr(vA16)}, {sr(sWS,4)}, {sr(sH1)} offen offset:{KP_D1} sc1')
        P(f'buffer_load_dword {vr(D+8)}, {vr(vA4)}, {sr(sWS,4)}, {sr(sH1)} offen offset:{KP_CS} sc1\ns_waitcnt vmcnt(0)')
        for op in self.checksum(D + 9, D, 8): P(op)
        P(f'v_cmp_ne_u32 vcc, {vr(D+8)}, {vr(D+9)}\ns_cbranch_vccz {dn}')
        self.retry_tail(lp, dn)
        unpack(D)
        fold()
        for rot in (4, 8):
            for j in range(4): P(f'v_add_f32_dpp {vr(A+j)}, {vr(A+j)}, {vr(A+j)} row_ror:{rot} row_mask:0xf bank_mask:0xf')
        P(fin)
        P.label(j2)
        P('s_waitcnt lgkmcnt(0)\ns_barrier')
        self.stamp(8 + sb, f'L{L} B2')
        P(f'ds_read_b128 v[68:71], {vr(vAO)}\nds_read_b128 v[72:75], {vr(vAO)} offset:16\ns_waitcnt lgkmcnt(1)')
        self.mfma(ACC0, 68, PHQ, None)
        P('s_waitcnt lgkmcnt(0)')
        self.mfma(ACC0, 72, PHQ + 4, ACC0)
        self.publish_o(L, ACC0, 1e-6)
        self.stamp(10 + sb, f'L{L} opub')
        P(f's_cmp_lg_u32 {sr(sHS)}, 0\ns_cbranch_scc1 {ax3}')
        self.main_outproj(L)
        P(f's_branch L_main_{L+1}')
        P.label(ax3)
        self.aux_tail(L)
        self.stamp(13 + sb, f'L{L} xpub')
        P(f's_branch L_aux_{L+1}')

    def epilogue(self):
        P = self.P; nl = self.nl
        P.label(f'L_main_{nl}')
        P(f's_or_b32 {sr(sT0)}, s2, {sr(sW)}\ns_cmp_lg_u32 {sr(sT0)}, 0\ns_cbranch_scc1 L_aux_{nl}\ns_mov_b32 {sr(sT2)}, 0')
        self.flag(sT2, sTAG, False)
        P.label(f'L_aux_{nl}')
        if self.stamps:
            P('s_waitcnt vmcnt(0)')
            self.stamp(62, 'end')
            P(f's_memtime {sr(sST,2)}\ns_waitcnt lgkmcnt(0)\ns_sub_u32 {sr(sST)}, {sr(sST)}, s100\nv_writelane_b32 {vr(vSTAMP)}, {sr(sST)}, 59')
            P(f'''v_writelane_b32 {vr(vSTAMP)}, {sr(sBUD)}, 63
v_writelane_b32 {vr(vSTAMP)}, {sr(sFAST)}, 61
v_writelane_b32 {vr(vSTAMP)}, s99, 58
v_writelane_b32 {vr(vSTAMP)}, s101, 56
s_lshl_b32 {sr(sT0)}, s2, 3
s_add_u32 {sr(sT0)}, {sr(sT0)}, {sr(sW)}
s_lshl_b32 {sr(sT0)}, {sr(sT0)}, 8
s_add_u32 {sr(sT0)}, {sr(sT0)}, {OFF_STAMP}
buffer_store_dword {vr(vSTAMP)}, {vr(vL4)}, {sr(sWS,4)}, {sr(sT0)} offen''')
            if self.o.get('dbgst'):
                P(f's_cmp_lg_u32 {sr(sHS)}, 0\ns_cbranch_scc1 L_end\ns_load_dwordx2 s[64:65], s[0:1], 64\nv_mov_b32 v30, 0')
                for j, (idx, neg) in enumerate([(60, 1), (60, 0), (0, 0), (2, 0), (1, 0), (3, 0), (8, 0), (10, 0), (13, 0), (27, 0), (41, 0), (62, 0), (59, 0), (3, 1), (13, 1), (62, 1)]):
                    P(f'v_readlane_b32 s66, {vr(vSTAMP)}, {idx}')
                    if neg: P('s_not_b32 s66, s66')
                    P(f'v_writelane_b32 v30, s66, {j}')
                P('s_waitcnt lgkmcnt(0)')
                self.srd(68, 64, 256)
                P(f's_mov_b64 exec, 0xffff\nbuffer_atomic_umax v30, {vr(vL4)}, s[68:71], 0 offen\ns_waitcnt vmcnt(0)')
        if self.o.get('spin'):
            lp = P.newlabel('Lspin'); P.label(lp)
            P(f's_memrealtime s[66:67]\ns_waitcnt lgkmcnt(0)\ns_sub_u32 s66, s66, s98\ns_cmp_lt_u32 s66, {self.o["spin"]}\ns_cbranch_scc1 {lp}')
        P.label('L_end')
        P('s_endpgm')

    def build(self):
        self.prologue()
        for L in range(self.nl):
            (self.layerA if L % 2 == 0 else self.layerB)(L)
        self.epilogue()
        self.emit_stubs()
        for L in range(0, self.nl, 2): self.attn_fallback(L)
        n = self.P.fix_hazards()
        errs = self.P.check_waits()
        head = open(f'cdna_kernels/{NAME}.s.ref').read().split('; @launch')[0]
        s = head + f'; @launch grid=(256,1,1) block=(512,1,1) lds={LDS_TOTAL}\n'
        s += f'.amdgcn_target "amdgcn-amd-amdhsa--gfx950"\n.text\n.globl {NAME}_kernel\n.p2align 8\n.type {NAME}_kernel,@function\n{NAME}_kernel:\n'
        s += self.P.text().replace('CODE_BYTES', '(L_end - %s_kernel - 1088)' % NAME)
        s += f'''.section .rodata,"a"
.p2align 6
.amdhsa_kernel {NAME}_kernel
  .amdhsa_next_free_vgpr 256
  .amdhsa_next_free_sgpr 102
  .amdhsa_accum_offset 256
  .amdhsa_group_segment_fixed_size 0
  .amdhsa_kernarg_size 80
  .amdhsa_user_sgpr_count 2
  .amdhsa_user_sgpr_kernarg_segment_ptr 1
  .amdhsa_system_sgpr_workgroup_id_x 1
.end_amdhsa_kernel
'''
        return s, n, errs


if __name__ == '__main__':
    import argparse, json
    ap = argparse.ArgumentParser()
    ap.add_argument('-o', default=f'cdna_kernels/{NAME}.s')
    ap.add_argument('--stamps', action='store_true')
    ap.add_argument('--safe', action='store_true')
    ap.add_argument('--cyc', action='store_true')
    ap.add_argument('--opt', nargs='*', default=[])
    ap.add_argument('--noalias', action='store_true')
    ap.add_argument('--nl', type=int, default=4)
    a = ap.parse_args()
    g = Gen(stamps=a.stamps, nlayers=a.nl, force_safe=a.safe, cyc=a.cyc, alias=not a.noalias, opt={k: int(v) for k, v in (x.split('=') for x in a.opt)})
    s, n, errs = g.build()
    open(a.o, 'w').write(s)
    if a.stamps: json.dump(g.stamp_names, open(a.o + '.stamps.json', 'w'))
    print('instructions', sum(1 for x in g.P.L if x.op), 'nops inserted', n, 'lds', LDS_TOTAL)
    for e in errs[:8]: print('WAITCHECK', e)
```

```python
import sys, struct
sys.path.insert(0, 'dev')
from asmlib import *

NAME = 'interleave_layers__sliding_block__linear_kernel_hedgehog__prompt'
def f2u(x): return struct.unpack('<I', struct.pack('<f', x))[0]
LOG2E = 1.4426950408889634

OFF_XFLAG = 0x1000
OFF_OFLAG = 0x9000
OFF_STAMP = 0x30000
OFF_ST = 0x100000
OFF_X = 0x200000
OFF_O = 0xA00000
OFF_KV = 0x1200000
KV_REC = 4480; KV_L = 1024*KV_REC
OFF_KP = 0x1B00000
KP_REC = 2688; KP_D1 = 1088; KP_CS = 2176; KP_L = 256*KP_REC
WS_USED = 0x2000000
OOB = 0x40000000
TAGC = 0x9E3779B0
SAFE_EXP = 30

LDS_WK = 0; LDS_WV = 32768; LDS_WQ = 65536; LDS_T = 65536; LDS_WO = 98304
LDS_OWN = 131072; OWN_ST = 6144
LDS_CSP = LDS_OWN + 4*OWN_ST
LDS_RSTD = LDS_CSP + 3072; LDS_KVT = LDS_RSTD + 512; LDS_ZT = LDS_KVT + 2048
LDS_FAST = LDS_ZT + 128; LDS_CNT = LDS_FAST + 16; LDS_ONES = LDS_FAST + 64; LDS_TOTAL = LDS_ONES + 1040
NT_LDS = {0: LDS_WQ, 1: LDS_WK, 2: LDS_WV, 'o': LDS_WO}
C_ST, C_XDONE, C_WGO, C_CS, C_Q, C_ATT, C_CSQ, C_WR = 0, 4, 5, 6, 7, 8, 9, 10

sWS, sX0, sWA, sWoA, sWB, sWoB, sPhi, sOut = 4, 8, 12, 16, 20, 24, 28, 32
sR, sC, sW, sMT, sHS, sRT, sQT, sTAG, sFAST, sBUD = 36, 37, 38, 39, 40, 41, 42, 43, 44, 45
sT0, sT1, sT2, sT3 = 46, 47, 48, 49
sLO = 50
sOWNF = 52; sCNT = 53; sSTEP = 54; sLOG2E = 55; sST = 56
sROT = 58; sDM = 59; sH0 = 60
sG0 = 62; sPERM = 63
sM = 64
sOW, sOF, sHB, sHAS, sP2, sC2, sOWN, sKVW, sXW, sSW, sXF, sRB = 72, 73, 74, 75, 76, 77, 78, 79, 80, 81, 82, 83
sLA = 86; sDG = 87; sDL = 88; sLB = 89; sLR = 90; sK0 = 91; sK1 = 92; sK2 = 93; sSEL0 = 94; sSEL1 = 95; sH1 = 96; sH2 = 97; sC1008 = 3
vT0, vLANE, vL16, vL4, vCNT, vTR1, vTR2, vSTAMP = 0, 1, 2, 3, 4, 5, 6, 7
XRES, WPHI = 8, 16
vDW, vDO, vCH, vCS, ONES = 8, 9, 10, 11, 12
vRSTD, vKA, vVA, vPD, vPA, vRA, vRB, vFD = 20, 21, 22, 23, 24, 25, 26, 27
vCK = vPD; XEXT = 28; ACC0 = 32; ACC1 = 48; RING = 64; WEXTQ = 84; WEXTK = 88; WEXTV = 92; VV = 88
STAT = 96; CDIAG = 96; PKV = 112; CFIRST = 112; XF = 128
aS, aO, aE, aQ, aK, aP, aH = 32, 48, 64, 72, 76, 80, 128
vSTV = 64
PHQ = 112
PARK = {1: 128, 2: 160, 0: 192, 'o': 224}
MFMA = 'v_mfma_f32_32x32x16_bf16'
def cho(u): return (u >> 1)*8192 + (u & 1)*1024
SW4 = ((0, 2), (1, 3), (4, 6), (5, 7))


class Gen:
    def __init__(self, stamps=False, nlayers=4, force_safe=False, cyc=False, alias=True, opt=None):
        self.cyc = cyc; self.alias = alias
        self.o = dict(halo_at=35, prio=2, trunc=1, wgo=2, wgon=2, xd=8, od=10, x0d=3, psleep=1, kp_at=0, spec=0, pw=16, tlb=0, touch=1, b0=0, mcs=1, pre=2, pst=0, trk=3, ool=1, at2=1, qrate=4, omul=1, specx=0, lsleep=2, ev=99, st0=3, wo_at=0, pf=1, pfb=0, psp=0, xst=1, bq=0, early=0)
        self.o.update(opt or {})
        self.P = Prog(); self.stamps = stamps; self.nl = nlayers; self.force_safe = force_safe
        self.stamp_names = {}
        self.vm = Tracker(63); self.lg = Tracker(15); self.stubs = []; self.ool = []

    def stamp(self, idx, name=''):
        if not self.stamps: return
        self.stamp_names[idx] = name
        self.P(f'{"s_memtime" if self.cyc else "s_memrealtime"} {sr(sST,2)}\ns_waitcnt lgkmcnt(0)\nv_writelane_b32 {vr(vSTAMP)}, {sr(sST)}, {idx}')

    def al(self, L): return 0 if self.alias else L

    def mfma(self, d, a, b, c):
        cs = '0' if c is None else vr(c, 16)
        self.P(f'{MFMA} {vr(d,16)}, {vr(a,4)}, {vr(b,4)}, {cs}')

    def srd(self, s, ptr, nbytes):
        self.P(f's_mov_b32 {sr(s)}, {sr(ptr)}\ns_and_b32 {sr(s+1)}, {sr(ptr+1)}, 0xffff\ns_mov_b32 {sr(s+2)}, {nbytes}\ns_mov_b32 {sr(s+3)}, 0x20000')

    def poll(self, soff, masked=False):
        P = self.P; lp = P.newlabel('Lpoll'); dn = P.newlabel('Lpolld')
        P.label(lp)
        P(f'buffer_load_dword {vr(vPD)}, {vr(vPA)}, {sr(sWS,4)}, {sr(soff)} offen sc1\ns_waitcnt vmcnt(0)')
        if masked:
            P(f'v_and_b32 {vr(vT0)}, -16, {vr(vPD)}\nv_cmp_ne_u32 vcc, {sr(sTAG)}, {vr(vT0)}')
        else:
            P(f'v_cmp_ne_u32 vcc, {sr(sTAG)}, {vr(vPD)}')
        P(f's_cbranch_vccz {dn}')
        if self.o['psleep']: P(f's_sleep {self.o["psleep"]}')
        P(f's_sub_u32 {sr(sBUD)}, {sr(sBUD)}, 1\ns_cbranch_scc0 {lp}\ns_mov_b32 {sr(sBUD)}, 0')
        P.label(dn)

    def flag(self, soff, sval, sc1, wait=None):
        P = self.P
        P(f'v_mov_b32 {vr(vPD)}, {sr(sval)}\ns_mov_b64 exec, 1')
        if wait: P(wait)
        P(f'buffer_store_dword {vr(vPD)}, off, {sr(sWS,4)}, {sr(soff)}' + (' sc1' if sc1 else ''))
        P('s_mov_b64 exec, -1')

    def prio_if(self, cmp):
        P = self.P; l = P.newlabel('Lpr')
        b = self.o['prio'] - 1
        P(f's_setprio {b}\n{cmp}\ns_cbranch_scc0 {l}\ns_setprio {b+1}'); P.label(l)

    def lds_signal(self, idx):
        self.P(f'v_mov_b32 {vr(vPD)}, 1\ns_mov_b64 exec, 1\ns_waitcnt lgkmcnt(0)\nds_add_u32 {vr(vCNT)}, {vr(vPD)} offset:{4*idx}\ns_mov_b64 exec, -1')

    def lds_wait(self, idx, val, sleep=0):
        P = self.P; lp = P.newlabel('Llw')
        P.label(lp)
        if sleep: P(f's_sleep {sleep}')
        P(f'ds_read_b32 {vr(vPD)}, {vr(vCNT)} offset:{4*idx}\ns_waitcnt lgkmcnt(0)\nv_cmp_gt_u32 vcc, {val}, {vr(vPD)}\ns_cbranch_vccnz {lp}')

    def lds_peek(self, idx):
        return [('ds', ('cnt', idx), f'ds_read_b32 {vr(vPD)}, {vr(vCNT)} offset:{4*idx}')]

    def lds_check(self, idx, val):
        P = self.P; ok = P.newlabel('Llc')
        P(waitstr(lg=self.lg.need(('cnt', idx))))
        P(f'v_cmp_gt_u32 vcc, {val}, {vr(vPD)}\ns_cbranch_vccz {ok}')
        self.lds_wait(idx, val)
        P.label(ok)

    def two_way(self, emit):
        P = self.P
        if self.force_safe:
            emit(True); return
        ls = P.newlabel('Lsafe'); le = P.newlabel('Lpub')
        P(f's_cmp_eq_u32 {sr(sFAST)}, 0\ns_cbranch_scc1 {ls}')
        emit(False)
        if self.o['ool']:
            self.ool.append((ls, emit, le))
        else:
            P(f's_branch {le}'); P.label(ls)
            emit(True)
        P.label(le)

    def item(self, it):
        P = self.P
        if isinstance(it, str): P(it)
        elif it[0] == 'wvm': P(waitstr(vm=self.vm.need(it[1])))
        elif it[0] == 'wlg': P(waitstr(lg=self.lg.need(it[1])))
        elif it[0] == 'ds': P(it[2]); self.lg.issue(it[1])
        elif it[0] == 'fn': it[1]()

    def checksum(self, dst, src, n):
        ops = [f'v_add3_u32 {vr(dst)}, {sr(sTAG)}, {vr(src)}, {vr(src+1)}']
        for i in range(2, n, 2): ops.append(f'v_add3_u32 {vr(dst)}, {vr(dst)}, {vr(src+i)}, {vr(src+i+1)}')
        return ops

    def retry_tail(self, lp, dn):
        if self.stamps: self.P('s_add_u32 s99, s99, 1')
        self.P(f's_sub_u32 {sr(sBUD)}, {sr(sBUD)}, 1\ns_cbranch_scc0 {lp}\ns_mov_b32 {sr(sBUD)}, 0')
        self.P.label(dn)
        if self.stamps: self.P('s_lshl_b32 s99, s99, 6')

    def prologue(self):
        P = self.P; o = self.o
        vH, vT = 64, 65
        if self.stamps: P('s_memrealtime s[98:99]\ns_memtime s[100:101]')
        elif o.get('spin'): P('s_memrealtime s[98:99]')
        P(f"""s_cmp_ge_u32 s2, 256
s_cbranch_scc1 L_end
s_load_dwordx16 s[64:79], s[0:1], 0
s_load_dwordx4 s[80:83], s[0:1], 64
s_getpc_b64 s[84:85]
v_lshrrev_b32 v1, 6, v0
s_lshr_b32 {sr(sT1)}, s2, 3
v_readfirstlane_b32 {sr(sW)}, v1
v_and_b32 {vr(vLANE)}, 63, v0
v_lshlrev_b32 {vr(vL16)}, 4, {vr(vLANE)}""")
        lc = P.newlabel('Lx')
        P(f"""s_cmp_lt_u32 {sr(sW)}, 6
s_cbranch_scc1 {lc}
s_and_b32 {sr(sT0)}, {sr(sW)}, 1
s_lshl_b32 {sr(sT0)}, {sr(sT0)}, 5
s_add_u32 {sr(sT0)}, {sr(sT0)}, {sr(sT1)}
s_lshl_b32 {sr(sT0)}, {sr(sT0)}, 10
s_cmp_ge_u32 {sr(sT0)}, CODE_BYTES
s_cbranch_scc1 {lc}
v_add_u32 v255, {sr(sT0)}, {vr(vL16)}
global_load_dword v255, v255, s[84:85]""")
        P.label(lc)
        P(f"""s_and_b32 {sr(sT0)}, s2, 7
s_add_u32 {sr(sC)}, {sr(sT1)}, {o.get('cadd', 0)}
s_and_b32 {sr(sC)}, {sr(sC)}, 15
s_lshr_b32 {sr(sT1)}, {sr(sT1)}, 4
s_lshl_b32 {sr(sR)}, {sr(sT0)}, 1
s_add_u32 {sr(sR)}, {sr(sR)}, {sr(sT1)}
s_and_b32 {sr(sMT)}, {sr(sW)}, 3
s_lshr_b32 {sr(sHS)}, {sr(sW)}, 2
s_lshl_b32 {sr(sRT)}, {sr(sR)}, 2
s_add_u32 {sr(sRT)}, {sr(sRT)}, {sr(sMT)}
s_lshr_b32 {sr(sROT)}, {sr(sC)}, 1
s_add_u32 {sr(sROT)}, {sr(sROT)}, {sr(sT0)}
s_lshl_b32 {sr(sT1)}, {sr(sT1)}, 1
s_add_u32 {sr(sROT)}, {sr(sROT)}, {sr(sT1)}
s_lshl_b32 {sr(sT1)}, {sr(sC)}, 2
s_add_u32 {sr(sROT)}, {sr(sROT)}, {sr(sT1)}
s_and_b32 {sr(sROT)}, {sr(sROT)}, 7
v_mov_b32 v8, 0
v_mov_b32 v9, 0
v_mov_b32 v10, 0
v_mov_b32 v11, 0
v_mov_b32 v90, 0
v_mov_b32 {vr(vPA)}, 0
v_mov_b32 v91, 0
v_mov_b32 {vr(vCNT)}, {LDS_CNT}
ds_write_b128 {vr(vCNT)}, v[8:11]
ds_write_b128 {vr(vCNT)}, v[8:11] offset:16
ds_write_b128 {vr(vCNT)}, v[8:11] offset:32
v_lshrrev_b32 v28, 3, {vr(vLANE)}
v_lshlrev_b32 v28, 10, v28
v_lshrrev_b32 v29, 4, {vr(vLANE)}
v_xor_b32 v29, v29, {vr(vLANE)}
v_and_b32 v29, 7, v29
v_lshl_add_u32 v28, v29, 4, v28
v_xor_b32 v29, 64, v28
v_add_u32 v30, {2*7168}, v28
v_add_u32 v31, {3*7168}, v29
v_add_u32 v29, 7168, v29
s_lshl_b32 {sr(sLB)}, {sr(sRT)}, 15
s_lshl_b32 {sr(sLR)}, {sr(sROT)}, 7
s_lshl_b32 {sr(sLA)}, {sr(sMT)}, 14
s_add_u32 {sr(sLA)}, {sr(sLA)}, {LDS_WQ}
s_waitcnt lgkmcnt(0)
s_load_dword {sr(sTAG)}, s[82:83], 0""")
        self.srd(sX0, 64, 2097152)
        if o['pf'] >= 3:
            lq = P.newlabel('Lx')
            P(f"""s_cmp_lg_u32 {sr(sW)}, {o['pf'] + 1}
s_cbranch_scc1 {lq}
s_lshr_b32 {sr(sT0)}, s2, 3
s_sub_u32 {sr(sT1)}, {sr(sT0)}, 24
s_cselect_b32 {sr(sT0)}, {sr(sT0)}, {sr(sT1)}
s_cselect_b64 {sr(sT2,2)}, s[66:67], s[68:69]
s_lshl_b32 {sr(sT0)}, {sr(sT0)}, 16
v_lshl_add_u32 v26, {vr(vLANE)}, 10, {sr(sT0)}
global_load_dword v25, v26, {sr(sT2,2)} offset:384""")
            P.label(lq)
        P(f's_cmp_lg_u32 {sr(sHS)}, 0\ns_cbranch_scc1 L_pro2')
        for g in range(2): self.x0_load(g)
        P.label('L_pro2')
        P('s_barrier')
        self.srd(sWS, 82, WS_USED); self.srd(sWA, 66, 1572864); self.srd(sWoA, 68, 524288)
        self.srd(sWB, 72, 1572864); self.srd(sPhi, 74, 16384); self.srd(sWoB, 76, 524288); self.srd(sOut, 78, 2097152)
        P(f"""s_mul_i32 {sr(sT0)}, {sr(sHS)}, 3
s_xor_b32 {sr(sQT)}, {sr(sMT)}, {sr(sT0)}
s_mov_b32 {sr(sBUD)}, 0x100000
s_mov_b32 {sr(sLO)}, 0xffff
s_mov_b32 {sr(sLO+1)}, 0xffff
s_mov_b32 {sr(sH0)}, -1
s_mov_b32 {sr(sH0+1)}, 0
s_mov_b32 {sr(sFAST)}, 0
s_mov_b32 {sr(sDM)}, 0
s_mov_b32 {sr(sLOG2E)}, {f2u(LOG2E):#x}
s_mov_b32 {sr(sPERM)}, 0x07060302
s_mov_b32 {sr(sC1008)}, 1008
s_getreg_b32 {sr(sOWNF)}, hwreg(HW_REG_XCC_ID, 0, 4)
v_lshrrev_b32 {vr(vH)}, 5, {vr(vLANE)}
v_and_b32 {vr(vT)}, 31, {vr(vLANE)}
v_lshlrev_b32 {vr(vL4)}, 2, {vr(vLANE)}
v_mov_b32 {vr(vSTAMP)}, 0
v_bfe_u32 {vr(vTR1)}, {vr(vLANE)}, 2, 2
v_lshl_add_u32 {vr(vTR1)}, {vr(vH)}, 2, {vr(vTR1)}
v_lshlrev_b32 {vr(vTR2)}, 6, {vr(vTR1)}
v_bfe_u32 {vr(vTR1)}, {vr(vLANE)}, 4, 1
v_lshl_add_u32 {vr(vTR2)}, {vr(vTR1)}, 5, {vr(vTR2)}
v_and_b32 {vr(vTR1)}, 3, {vr(vLANE)}
v_lshl_add_u32 {vr(vTR2)}, {vr(vTR1)}, 3, {vr(vTR2)}
v_lshl_add_u32 {vr(vTR1)}, {vr(vH)}, 8, {vr(vTR2)}
v_add_u32 {vr(vTR1)}, {LDS_WQ}, {vr(vTR1)}
v_add_u32 {vr(vTR2)}, {LDS_WO}, {vr(vTR2)}
s_lshl_b32 {sr(sT0)}, {sr(sMT)}, 7
s_add_u32 {sr(sT0)}, {sr(sT0)}, {LDS_RSTD}
v_lshl_add_u32 {vr(vRA)}, {vr(vT)}, 2, {sr(sT0)}
v_lshl_add_u32 {vr(vRB)}, {vr(vH)}, 4, {sr(sT0)}
v_lshlrev_b32 {vr(vFD)}, 2, {vr(vH)}
v_sub_u32 {vr(vFD)}, {vr(vT)}, {vr(vFD)}
v_cvt_f32_i32 {vr(vFD)}, {vr(vFD)}
v_mul_f32 {vr(vFD)}, {f2u(2.0**100):#x}, {vr(vFD)}
s_waitcnt lgkmcnt(0)
s_and_b32 {sr(sTAG)}, {sr(sTAG)}, -16
s_add_u32 {sr(sTAG)}, {sr(sTAG)}, {TAGC:#x}
s_or_b32 {sr(sOWNF)}, {sr(sOWNF)}, {sr(sTAG)}
s_lshl_b32 {sr(sT0)}, {sr(sR)}, 2
s_add_u32 {sr(sT0)}, {sr(sT0)}, {sr(sQT)}
s_lshl_b32 {sr(sT0)}, {sr(sT0)}, 5
s_lshl_b32 {sr(sT1)}, {sr(sC)}, 1
s_add_u32 {sr(sT0)}, {sr(sT0)}, {sr(sT1)}
s_add_u32 {sr(sT0)}, {sr(sT0)}, {sr(sHS)}
s_lshl_b32 {sr(sOW)}, {sr(sT0)}, 10
s_lshl_b32 {sr(sOF)}, {sr(sT0)}, 2
s_lshr_b32 {sr(sT0)}, {sr(sMT)}, 1
s_add_u32 {sr(sT0)}, {sr(sT0)}, {sr(sR)}
s_sub_u32 {sr(sT0)}, {sr(sT0)}, 2
s_cselect_b32 {sr(sHAS)}, 0, 1
s_lshl_b32 {sr(sT0)}, {sr(sT0)}, 1
s_and_b32 {sr(sT1)}, {sr(sMT)}, 1
s_add_u32 {sr(sT0)}, {sr(sT0)}, {sr(sT1)}
s_lshl_b32 {sr(sT0)}, {sr(sT0)}, 5
s_add_u32 {sr(sT0)}, {sr(sT0)}, {sr(sC)}
s_mul_i32 {sr(sHB)}, {sr(sT0)}, {KV_REC}
s_cmp_eq_u32 {sr(sR)}, 1
s_cselect_b32 {sr(sT0)}, 4, {sr(sQT)}
s_sub_u32 {sr(sC2)}, 8, {sr(sT0)}
s_lshl_b32 {sr(sP2)}, {sr(sT0)}, 12
s_add_u32 {sr(sP2)}, {sr(sP2)}, {LDS_T}
s_mul_i32 {sr(sOWN)}, {sr(sQT)}, {OWN_ST}
s_add_u32 {sr(sOWN)}, {sr(sOWN)}, {LDS_OWN}
s_lshl_b32 {sr(sT0)}, {sr(sRT)}, 4
s_add_u32 {sr(sT0)}, {sr(sT0)}, {sr(sC)}
s_mul_i32 {sr(sKVW)}, {sr(sT0)}, {KV_REC}
s_lshl_b32 {sr(sXW)}, {sr(sT0)}, 11
s_lshl_b32 {sr(sSW)}, {sr(sT0)}, 8
s_lshl_b32 {sr(sXF)}, {sr(sRT)}, 7
s_lshl_b32 {sr(sRB)}, {sr(sRT)}, 15""")
        self.stamp(0, 'start')
        if self.stamps:
            self.stamp_names[60] = 'entry'; P(f'v_writelane_b32 {vr(vSTAMP)}, s98, 60\ns_mov_b32 s99, 0\ns_mov_b32 s101, 0')
        P(f's_cmp_eq_u32 {sr(sHS)}, 0\ns_cbranch_scc1 L_main_0')
        lh = P.newlabel('Lx'); lt = P.newlabel('Lx')
        P(f"""s_lshl_b32 {sr(sT2)}, {sr(sR)}, 7
s_lshl_b32 {sr(sT3)}, {sr(sC)}, 2
s_add_u32 {sr(sT2)}, {sr(sT2)}, {sr(sT3)}
s_add_u32 {sr(sT2)}, {sr(sT2)}, {OFF_XFLAG}
s_cmp_lg_u32 {sr(sMT)}, 0
s_cbranch_scc1 {lh}""")
        self.flag(sT2, sOWNF, True)
        P.label(lh)
        if o['pf'] in (1, 2): self.coop_prefetch(0, o['pf'])
        P(f"""v_lshrrev_b32 v28, 2, {vr(vLANE)}
v_and_b32 v29, 3, {vr(vLANE)}
v_lshlrev_b32 v29, 4, v29
s_lshl_b32 {sr(sT0)}, {sr(sC)}, 6
v_add_u32 v29, {sr(sT0)}, v29
v_mul_u32_u24 {vr(vDW)}, 3072, v28
v_add_u32 {vr(vDW)}, {vr(vDW)}, v29
v_lshl_add_u32 {vr(vDO)}, v28, 10, v29
s_lshl_b32 {sr(sLA)}, {sr(sMT)}, 11
s_lshr_b32 {sr(sT0)}, {sr(sMT)}, 1
s_add_u32 {sr(sT0)}, {sr(sT0)}, {sr(sROT)}
s_and_b32 {sr(sT0)}, {sr(sT0)}, 7
s_lshl_b32 {sr(sG0)}, {sr(sT0)}, 16
s_and_b32 {sr(sT0)}, {sr(sMT)}, 1
s_lshl_b32 {sr(sT0)}, {sr(sT0)}, 15
s_add_u32 {sr(sG0)}, {sr(sG0)}, {sr(sT0)}
v_add_u32 {vr(vCH)}, {sr(sLA)}, {vr(vL16)}
v_subrev_u32 {vr(vCS)}, {LDS_WO}, {vr(vTR2)}
v_add_u32 {vr(vCS)}, {sr(sLA)}, {vr(vCS)}
v_lshl_add_u32 v31, {vr(vH)}, 8, {vr(vCS)}""")
        for i in range(4): P(f'v_mov_b32 {vr(ONES+i)}, 0x3f803f80')
        P(f'v_lshlrev_b32 v30, 10, {vr(vH)}\nv_add_u32 v30, {LDS_ONES}, v30\nds_write_b128 v30, {vr(ONES,4)}')
        self.csp_waddr(0)
        P(f'v_lshl_add_u32 v30, {vr(vH)}, 9, v28')
        for op in self.mask_ops(0) + self.mask_ops(1): P(op)
        avm = Tracker(63)
        if o['tlb']:
            lw = P.newlabel('Lx')
            P(f"""s_cmp_lg_u32 {sr(sMT)}, 1
s_cbranch_scc1 {lw}
v_and_b32 v68, 15, {vr(vLANE)}
v_bfe_u32 v69, {vr(vLANE)}, 4, 1
s_lshl_b32 {sr(sT0)}, {sr(sR)}, 2
s_sub_u32 {sr(sT0)}, {sr(sT0)}, 8
v_min_u32 v70, 11, v68
v_add_u32 v70, {sr(sT0)}, v70
v_max_i32 v70, 0, v70
v_lshl_add_u32 v70, v70, 4, {sr(sC)}
v_lshl_add_u32 v70, v69, 10, v70
v_mul_u32_u24 v70, {KV_REC}, v70
v_add_u32 v70, {OFF_KV + KV_REC - 128}, v70
s_lshl_b32 {sr(sT0)}, {sr(sC)}, 4
v_add_u32 v68, {sr(sT0)}, v68
v_lshl_add_u32 v68, v69, 8, v68
v_mul_u32_u24 v68, {KP_REC}, v68
v_add_u32 v68, {OFF_KP + KP_REC - 128}, v68
v_cndmask_b32 v68, v68, v70, {sr(sH0,2)}
buffer_load_dword v26, v68, {sr(sWS,4)}, 0 offen""")
            P.label(lw)
        if o['wgo']: self.lds_wait(C_WGO, o['wgon'])
        self.stamp(2, 'x g0 / W go')
        PRE = o['pre']; MCS = o['mcs']; CA = {1: 32, 2: 64, 0: 32}
        for st in range(PRE): self.dma_w(0, (1, 2), (st,)); avm.issue(st, 4)
        qs = [[0, 1], [2, 3]] if PRE == 2 else ([[0, 1], [2, 3], []] if PRE == 3 else [[], [0, 1], [2, 3], []])
        first_q = True
        for st in range(4):
            if st + PRE < 4: self.dma_w(0, (1, 2), (st + PRE,)); avm.issue(st + PRE, 4)
            else:
                q = qs.pop(0)
                if q:
                    if first_q: self.lds_wait(C_XDONE, 4); first_q = False
                    self.dma_w(0, (0,), q); avm.issue('q', 4)
            P(waitstr(vm=avm.need(st)))
            self.stamp((15, 23, 29, 1)[st], ('x g3 / W st0', 'x g5 / W st1', 'S0 / W st2', 'x0 / W st3')[st])
            self.lds_signal(C_ST + st)
            ch = [(nt, 2*st + e) for nt in (1, 2) for e in range(2)]
            for nt, u in ch:
                r_ = PARK[nt] + 4*u; of = NT_LDS[nt] + cho(u)
                P(f'ds_read_b64_tr_b16 {vr(r_,2)}, v31 offset:{of}\nds_read_b64_tr_b16 {vr(r_+2,2)}, v31 offset:{of+256}')
            for k, (nt, u) in enumerate(ch):
                P(f's_waitcnt lgkmcnt({6-2*k})')
                self.mfma(CA[nt], ONES, PARK[nt] + 4*u, None if u == 0 else CA[nt])
        P(f'ds_write_b32 v28, {vr(CA[1])} offset:512\nds_write_b32 v28, {vr(CA[2])} offset:1024')
        self.lds_signal(C_CS)
        self.stamp(14, 'S3 / W done')
        if o['wo_at'] == 0: self.dma_w(0, ('o',))
        P(f'v_add_u32 v31, {LDS_WQ}, v31\ns_waitcnt vmcnt({8 if o["wo_at"] == 0 else 0})')
        self.lds_signal(C_Q)
        self.stamp(4, 'Q done')
        if o['wo_at'] == 1: self.dma_w(0, ('o',))
        for u0 in (0, 4):
            for u in range(u0, u0 + 4):
                r_ = PARK[0] + 4*u
                P(f'ds_read_b64_tr_b16 {vr(r_,2)}, v31 offset:{cho(u)}\nds_read_b64_tr_b16 {vr(r_+2,2)}, v31 offset:{cho(u)+256}')
            for k, u in enumerate(range(u0, u0 + 4)):
                P(f's_waitcnt lgkmcnt({6-2*k})')
                self.mfma(CA[0], ONES, PARK[0] + 4*u, None if u == 0 else CA[0])
        P(f'ds_write_b32 v28, {vr(CA[0])}')
        self.lds_signal(C_CSQ)
        P(f"""s_cmp_lg_u32 {sr(sMT)}, 2
s_cbranch_scc1 {lt}
v_lshlrev_b32 v6, 7, {vr(vLANE)}
s_mul_i32 {sr(sT0)}, s2, {48*128}
buffer_load_dword v26, v6, {sr(sWB,4)}, {sr(sT0)} offen
v_and_b32 v6, 0x780, v6
s_lshl_b32 {sr(sT0)}, s2, 11
buffer_load_dword v26, v6, {sr(sWoB,4)}, {sr(sT0)} offen""")
        P.label(lt)
        if o['pfb'] == 1: self.coop_prefetch(1, 1)
        P('s_branch L_aux_0')

    def coop_prefetch(self, typ, mode):
        P = self.P; l1 = P.newlabel('Lx'); l2 = P.newlabel('Lx')
        if mode == 1: P(f's_cmp_lg_u32 {sr(sMT)}, 1\ns_cbranch_scc1 {l2}')
        offs = (128,) if mode == 1 else (128, 0)
        P(f"""v_lshlrev_b32 v5, 10, {vr(vLANE)}
s_lshr_b32 {sr(sT0)}, s2, 3
s_lshl_b32 {sr(sT0)}, {sr(sT0)}, 16
s_lshl_b32 {sr(sT1)}, {sr(sMT)}, 8
s_add_u32 {sr(sT0)}, {sr(sT0)}, {sr(sT1)}
s_cmp_ge_u32 s2, 192
s_cbranch_scc1 {l1}""")
        for of in offs: P(f'buffer_load_dword v26, v5, {sr((sWA, sWB)[typ],4)}, {sr(sT0)} offen offset:{of}')
        P(f's_branch {l2}'); P.label(l1)
        P(f's_sub_u32 {sr(sT0)}, {sr(sT0)}, {24 << 16}')
        for of in offs: P(f'buffer_load_dword v26, v5, {sr((sWoA, sWoB)[typ],4)}, {sr(sT0)} offen offset:{of}')
        P.label(l2)

    def valu_sum(self, frag, acc):
        for i in range(4):
            self.P(f'v_lshlrev_b32 v68, 16, {vr(frag+i)}\nv_and_b32 v69, 0xffff0000, {vr(frag+i)}\nv_add_f32 {vr(acc)}, {vr(acc)}, v68\nv_add_f32 {vr(acc+1)}, {vr(acc+1)}, v69')

    def x0_load(self, g):
        P = self.P
        P(f's_add_u32 m0, {sr(sLA)}, {(g%4)*4096}\ns_add_u32 {sr(sT3)}, {sr(sLB)}, {sr(sLR)}')
        for j in range(4): P(f'buffer_load_dwordx4 {vr(28+j)}, {sr(sX0,4)}, {sr(sT3)} offen offset:{j*1024} lds')
        P(f's_add_u32 {sr(sLR)}, {sr(sLR)}, 128\ns_and_b32 {sr(sLR)}, {sr(sLR)}, 0x3ff')
        self.vm.issue(('x', g), 4)

    def code_prefetch(self, label):
        P = self.P; lc = P.newlabel('Lx')
        P(f"""s_cmp_lg_u32 {sr(sMT)}, 3
s_cbranch_scc1 {lc}
s_lshl_b32 {sr(sT0)}, {sr(sC)}, 10
s_add_u32 {sr(sT0)}, {sr(sT0)}, ({label} - {NAME}_kernel)
s_cmp_ge_u32 {sr(sT0)}, CODE_BYTES
s_cbranch_scc1 {lc}
v_add_u32 v26, {sr(sT0)}, {vr(vL16)}
global_load_dword v26, v26, s[84:85]""")
        P.label(lc)

    def wphi_load(self, B=96):
        P = self.P; a, t = vr(B + 8), vr(B + 9)
        P(f"""s_lshl_b32 {sr(sT0)}, {sr(sC)}, 1
s_add_u32 {sr(sT0)}, {sr(sT0)}, {sr(sHS)}
s_lshl_b32 {sr(sT0)}, {sr(sT0)}, 9
v_bfe_u32 {a}, {vr(vLANE)}, 3, 2
v_and_b32 {t}, 3, {vr(vLANE)}
v_lshl_add_u32 {a}, {a}, 2, {t}
v_lshlrev_b32 {a}, 1, {a}
v_lshrrev_b32 {t}, 5, {vr(vLANE)}
v_lshl_add_u32 {a}, {t}, 7, {a}""")
        for j in range(8):
            d = (j if j < 4 else 8 + j - 4)
            P(f'buffer_load_ushort {vr(B+j)}, {a}, {sr(sPhi,4)}, {sr(sT0)} offen offset:{d*32}')

    def wphi_pack(self, B=96):
        ops = [f'v_lshl_or_b32 {vr(WPHI+p)}, {vr(B+2*p+1)}, 16, {vr(B+2*p)}' for p in range(4)]
        ops += [f'v_bfe_i32 {vr(B)}, {vr(vLANE)}, 2, 1', f'v_and_b32 {vr(B)}, 0x80008000, {vr(B)}']
        return ops + [f'v_xor_b32 {vr(WPHI+p)}, {vr(B)}, {vr(WPHI+p)}' for p in range(4)]

    def dma_w(self, typ, nts, stages=range(4)):
        P = self.P; wo = nts == ('o',)
        srd = (sWoA, sWoB)[typ] if wo else (sWA, sWB)[typ]
        for st in stages:
            P(f's_add_u32 {sr(sT0)}, {sr(sG0)}, {st*0x20000}\ns_and_b32 {sr(sT0)}, {sr(sT0)}, 0x7ffff')
            if not wo: P(f's_mul_i32 {sr(sT0)}, {sr(sT0)}, 3')
            for e in range(2):
                for nt in nts:
                    P(f's_add_u32 m0, {sr(sLA)}, {NT_LDS[nt] + cho(2*st + e)}')
                    P(f's_add_u32 {sr(sT1)}, {sr(sT0)}, {e*16384 if wo else e*49152 + nt*1024}')
                    P(f'buffer_load_dwordx4 {vr(vDO if wo else vDW)}, {sr(srd,4)}, {sr(sT1)} offen lds')

    def csp_waddr(self, typ):
        self.P(f"""s_lshl_b32 {sr(sT0)}, {sr(sMT)}, 2
s_add_u32 {sr(sT0)}, {sr(sT0)}, {LDS_CSP + typ*1536}
v_and_b32 v28, 31, {vr(vLANE)}
v_lshl_add_u32 v28, v28, 4, {sr(sT0)}""")

    def chunk_addr(self, region):
        if region < 65536: return vCH, region
        self.P(f'v_add_u32 {vr(vT0)}, {region}, {vr(vCH)}'); return vT0, 0

    def lds_to_regs(self, region, dst, tr=False):
        if tr:
            self.P(f'v_add_u32 v29, {region}, {vr(vCS)}')
            for u in range(8): self.P(f'ds_read_b64_tr_b16 {vr(dst+4*u,2)}, v29 offset:{cho(u)}\nds_read_b64_tr_b16 {vr(dst+4*u+2,2)}, v29 offset:{cho(u)+512}')
            return
        a, o = self.chunk_addr(region)
        for u in range(8): self.P(f'ds_read_b128 {vr(dst+4*u,4)}, {vr(a)} offset:{o+cho(u)}')

    def regs_to_lds(self, region, src):
        a, o = self.chunk_addr(region)
        for u in range(8): self.P(f'ds_write_b128 {vr(a)}, {vr(src+4*u,4)} offset:{o+cho(u)}')

    def relayout(self, typ, nts, tmp=64, ntmp=8):
        P = self.P
        if nts != ('o',): self.csp_waddr(typ)
        for k, nt in enumerate(nts):
            region = NT_LDS[nt]
            P(f'v_add_u32 v29, {region}, {vr(vCS)}')
            acc = ACC0 if k % 2 == 0 else ACC1
            lg = Tracker(15)
            reg = lambda u: tmp + 4*(u % ntmp)
            for u0 in range(0, 8, 4):
                for u in range(u0, u0 + 4):
                    P(f'ds_read_b64_tr_b16 {vr(reg(u),2)}, v29 offset:{cho(u)}\nds_read_b64_tr_b16 {vr(reg(u)+2,2)}, v29 offset:{cho(u)+512}'); lg.issue(u, 2)
                for u in range(u0, u0 + 4):
                    P(waitstr(lg=lg.need(u)))
                    if nt != 'o': self.mfma(acc, ONES, reg(u), None if u == 0 else acc)
        for k, nt in enumerate(nts):
            if nt != 'o': P(f'ds_write_b32 v28, {vr(ACC0 if k % 2 == 0 else ACC1)} offset:{nt*512}')
        P('s_waitcnt lgkmcnt(0)')

    def swap_region(self, nt, save, tr=False):
        P = self.P
        if save:
            self.lds_to_regs(NT_LDS[nt], 32, tr); P('s_waitcnt lgkmcnt(0)')
        self.regs_to_lds(NT_LDS[nt], PARK[nt]); P('s_waitcnt lgkmcnt(0)')
        if save:
            for i in range(32): P(f'v_mov_b32 {vr(PARK[nt]+i)}, {vr(32+i)}')

    def unpack_res(self):
        for p in range(8):
            self.P(f'v_lshlrev_b32 {vr(ACC0+2*p)}, 16, {vr(XRES+p)}\nv_and_b32 {vr(ACC0+2*p+1)}, 0xffff0000, {vr(XRES+p)}')

    def rowmajor_addr(self, dst, tmp, sdst):
        self.P(f"""v_and_b32 {vr(dst)}, 31, {vr(vLANE)}
v_lshlrev_b32 {vr(dst)}, 10, {vr(dst)}
v_lshrrev_b32 {vr(tmp)}, 5, {vr(vLANE)}
v_lshl_add_u32 {vr(dst)}, {vr(tmp)}, 4, {vr(dst)}
s_lshl_b32 {sr(sdst)}, {sr(sC)}, 6
s_add_u32 {sr(sdst)}, {sr(sdst)}, {sr(sRB)}""")

    def publish_x_addr(self, L):
        if L == self.nl: return self.rowmajor_addr(vKA, vVA, sK0)
        self.P(f's_add_u32 {sr(sK1)}, {sr(sSW)}, {OFF_ST}')
        if L == 1: self.P(f's_lshl_b32 {sr(sK2)}, {sr(sC)}, 2\ns_add_u32 {sr(sK2)}, {sr(sK2)}, {sr(sXF)}\ns_add_u32 {sr(sK2)}, {sr(sK2)}, {OFF_XFLAG + 0x2000}')

    def set_par(self, reg, par):
        return f'v_or_b32 {vr(reg)}, 1, {vr(reg)}' if par else f'v_and_b32 {vr(reg)}, -2, {vr(reg)}'

    def acc_par(self, a, b, par):
        return f'v_bitop3_b32 {vr(vPD)}, {vr(vPD)}, {vr(a)}, {vr(b)} bitop3:0x80' if par else f'v_or3_b32 {vr(vPD)}, {vr(vPD)}, {vr(a)}, {vr(b)}'

    def test_par(self, par):
        return f'v_and_b32 {vr(vCK)}, 1, {vr(vPD)}\nv_cmp_ne_u32 vcc, {par}, {vr(vCK)}'

    def first_hop(self, base_off, foff, mask):
        self.P(f'v_and_b32 {vr(vPA)}, {mask}, {vr(vL4)}\ns_add_u32 {sr(sT2)}, {sr(sXF)}, {foff}')
        self.frag_setup(base_off)
        self.poll(sT2)
        return 0

    def probe(self, srd, base_off, par, nwin):
        P = self.P; lp = P.newlabel('Lprobe'); dn = P.newlabel('Lprobed'); S = min(self.o['specx' if srd == sOut else 'spec'], nwin)
        self.frag_setup(base_off)
        if self.o['pst'] and srd == sOut: P(f'v_lshrrev_b32 {vr(STAT+15)}, 2, {vr(vLANE)}\nv_lshlrev_b32 {vr(STAT+15)}, 8, {vr(STAT+15)}')
        P.label(lp)
        if self.o['pst'] and srd == sOut:
            P(f'buffer_load_dword {vr(vPD)}, {vr(STAT+15)}, {sr(sWS,4)}, {sr(sT1)} offen offset:252 sc1')
        elif self.o['pw'] == 16 and srd == sOut:
            P(f'v_or_b32 {vr(vPD)}, 1024, {vr(vPA)}\nbuffer_load_dword {vr(vPD)}, {vr(vPD)}, {sr(srd,4)}, {sr(sLB)} offen sc1')
        else: P(f'buffer_load_dword {vr(vPD)}, {vr(vPA)}, {sr(srd,4)}, {sr(sLB)} offen sc1')
        for ks in range(S): self.frag_load(srd, ks)
        P(f's_waitcnt vmcnt({S})')
        P(self.test_par(par))
        P(f's_cbranch_vccz {dn}')
        if self.o['psleep']: P(f's_sleep {self.o["psleep"]}')
        if S: self.frag_setup(None)
        P(f's_sub_u32 {sr(sBUD)}, {sr(sBUD)}, 1\ns_cbranch_scc0 {lp}\ns_mov_b32 {sr(sBUD)}, 0')
        P.label(dn)
        return S

    def verify(self, par, redo):
        P = self.P; st = P.newlabel('Lver'); ct = P.newlabel('Lverc')
        P(self.test_par(par)); P(f's_cbranch_vccnz {st}')
        P.label(ct)
        self.stubs.append((st, redo, ct))

    def emit_stubs(self):
        P = self.P
        for ls, emit, le in self.ool:
            P.label(ls); emit(True); P(f's_branch {le}')
        for k, (st, redo, ct) in enumerate(self.stubs):
            P.label(st)
            if self.stamps: P(f's_add_u32 s101, s101, {1 << (3*k)}')
            P(f's_waitcnt vmcnt(0) lgkmcnt(0)\ns_sub_u32 {sr(sBUD)}, {sr(sBUD)}, 1\ns_cbranch_scc0 {redo}\ns_mov_b32 {sr(sBUD)}, 0\ns_branch {ct}')

    def probe_addr(self):
        if self.o['pw'] == 64:
            return f"""v_lshrrev_b32 {vr(vPA)}, 1, {vr(vLANE)}
v_lshlrev_b32 {vr(vPA)}, 10, {vr(vPA)}
v_and_b32 {vr(vCK)}, 1, {vr(vLANE)}
v_mad_u32_u24 {vr(vPA)}, {vr(vCK)}, {sr(sC1008)}, {vr(vPA)}"""
        if self.o['psp']:
            return f"""v_lshrrev_b32 {vr(vPA)}, 2, {vr(vLANE)}
v_add_u32 {vr(vPA)}, {sr(sC)}, {vr(vPA)}
v_and_b32 {vr(vPA)}, 7, {vr(vPA)}
v_lshlrev_b32 {vr(vPA)}, 7, {vr(vPA)}
v_lshrrev_b32 {vr(vCK)}, 1, {vr(vLANE)}
v_lshl_add_u32 {vr(vPA)}, {vr(vCK)}, 10, {vr(vPA)}"""
        return f'v_lshrrev_b32 {vr(vPA)}, 1, {vr(vLANE)}\nv_lshl_add_u32 {vr(vPA)}, {vr(vPA)}, 10, {sr(sC1008)}'

    def publish_x(self, L):
        P = self.P
        natural = (L % 2 == 0); T = 76; par = L & 1
        for p in range(8): P(f'v_cvt_pk_bf16_f32 {vr(T+p)}, {vr(ACC0+2*p)}, {vr(ACC0+2*p+1)}')
        if natural:
            for a, b in SW4: P(f'v_permlane32_swap_b32 {vr(T+a)}, {vr(T+b)}')
        if L == self.nl:
            P(f'buffer_store_dwordx4 {vr(T,4)}, {vr(vKA)}, {sr(sOut,4)}, {sr(sK0)} offen\nbuffer_store_dwordx4 {vr(T+4,4)}, {vr(vKA)}, {sr(sOut,4)}, {sr(sK0)} offen offset:32')
            return
        P(self.set_par(T, par)); P(self.set_par(T + 4, par))
        def emit(sc1):
            m = ' sc1' if sc1 else ''
            P(f'buffer_store_dwordx4 {vr(T,4)}, {vr(vL16)}, {sr(sOut,4)}, {sr(sXW)} offen{m}')
            P(f'buffer_store_dwordx4 {vr(T+4,4)}, {vr(vL16)}, {sr(sOut,4)}, {sr(sXW)} offen offset:1024{m}')
            for k in range(4):
                P(f'v_pk_add_f32 {vr(64+2*k,2)}, {vr(ACC0+4*k,2)}, {vr(ACC0+4*k+2,2)}')
            P(f'v_pk_mul_f32 v[72:73], {vr(ACC0,2)}, {vr(ACC0,2)}\nv_pk_mul_f32 v[74:75], {vr(ACC0+2,2)}, {vr(ACC0+2,2)}')
            P('v_pk_add_f32 v[64:65], v[64:65], v[66:67]\nv_pk_add_f32 v[68:69], v[68:69], v[70:71]')
            for k in range(2, 8): P(f'v_pk_fma_f32 {vr(72+2*(k&1),2)}, {vr(ACC0+2*k,2)}, {vr(ACC0+2*k,2)}, {vr(72+2*(k&1),2)}')
            P('v_pk_add_f32 v[64:65], v[64:65], v[68:69]\nv_pk_add_f32 v[72:73], v[72:73], v[74:75]')
            P('v_add_f32 v64, v64, v65\nv_add_f32 v66, v72, v73\nv_permlane32_swap_b32 v64, v66\nv_add_f32 v64, v64, v66')
            P(self.set_par(64, par))
            P(f'buffer_store_dword v64, {vr(vL4)}, {sr(sWS,4)}, {sr(sK1)} offen{m}')
            if L == 1: self.flag(sK2, sTAG, sc1, wait='s_waitcnt vmcnt(0)')
        self.two_way(emit)
        for p in range(8): P(f'v_cvt_pk_bf16_f32 {vr(XRES+p)}, {vr(ACC0+2*p)}, {vr(ACC0+2*p+1)}')

    def frag_setup(self, base_off):
        if base_off is not None: self.P(f's_add_u32 {sr(sLB)}, {sr(sRB)}, {base_off}')
        self.P(f's_lshl_b32 {sr(sLR)}, {sr(sROT)}, 12\ns_add_u32 {sr(sT3)}, {sr(sLB)}, {sr(sLR)}')

    def frag_load(self, srd, ks, ring=32):
        P = self.P
        P(f'buffer_load_dwordx4 {vr(XF+4*(ks % ring),4)}, {vr(vL16)}, {sr(srd,4)}, {sr(sT3)} offen offset:{(ks&3)*1024} sc1')
        if ks < 28:
            if ks & 3 == 0: P(f's_add_u32 {sr(sLR)}, {sr(sLR)}, 4096')
            if ks & 3 == 1: P(f's_and_b32 {sr(sLR)}, {sr(sLR)}, 0x7fff')
            if ks & 3 == 3: P(f's_add_u32 {sr(sT3)}, {sr(sLB)}, {sr(sLR)}')
        self.vm.issue(('x', ks))

    def mask_ops(self, part, lean=False):
        ops = []; C = CDIAG if part == 0 else CFIRST; sg = -1.0 if part == 0 else 1.0
        if part == 0 and not lean:
            ops.append(f'v_mov_b32 {vr(VV)}, 0x3f803f80')
            for i in range(1, 8): ops.append(f'v_mov_b32 {vr(VV+i)}, {vr(VV)}')
        for i in range(16):
            ci = 8*(i//4) + i % 4
            if part == 0: ops.append(f'v_subrev_f32 {vr(C+i)}, {f2u(ci*2.0**100):#x}, {vr(vFD)}')
            else: ops.append(f'v_sub_f32 {vr(C+i)}, {f2u((ci-1)*2.0**100):#x}, {vr(vFD)}')
        for i in range(16): ops.append(f'v_min_f32 {vr(C+i)}, 0, {vr(C+i)}')
        if part == 0 and not lean:
            for i in range(16): ops.append(f'v_mov_b32 {vr(aO+i)}, 0')
        return ops

    def stats_final(self, typ):
        a, b = STAT, STAT + 1
        it = f"""v_mov_b32 {vr(b)}, {vr(a)}
v_mov_b32 {vr(XEXT+2)}, 0
v_mov_b32 {vr(XEXT+3)}, 0
v_permlane32_swap_b32 {vr(a)}, {vr(b)}
v_mul_f32 {vr(a)}, {f2u(1/512):#x}, {vr(a)}
v_mul_f32 {vr(b)}, {f2u(1/512):#x}, {vr(b)}
v_fma_f32 {vr(b)}, -{vr(a)}, {vr(a)}, {vr(b)}
v_max_f32 {vr(b)}, 0, {vr(b)}
v_add_f32 {vr(b)}, {f2u(1e-5):#x}, {vr(b)}
v_rsq_f32 {vr(vRSTD)}, {vr(b)}
v_cndmask_b32 {vr(a)}, 0, {vr(a)}, {sr(sH0,2)}
v_and_b32 {vr(a+2)}, 0xffff0000, {vr(a)}
v_sub_f32 {vr(a+3)}, {vr(a)}, {vr(a+2)}
v_cvt_pk_bf16_f32 {vr(XEXT)}, -{vr(a+2)}, -{vr(a+2)}
v_cvt_pk_bf16_f32 {vr(XEXT+1)}, -{vr(a+3)}, 0""".split('\n')
        it.append(('ds', 'rw', f'ds_write_b32 {vr(vRA)}, {vr(vRSTD)}'))
        for q in range(4): it.append(('ds', 'rt', f'ds_read_b128 {vr(STAT+4*q,4)}, {vr(vRB)} offset:{q*32}'))
        if typ == 1: it.append(f'v_mul_f32 {vr(vRSTD)}, {sr(sLOG2E)}, {vr(vRSTD)}')
        return it

    def wext_items(self, w, tag):
        return [('wlg', tag)] + f"""v_add_f32 {vr(w)}, {vr(w)}, {vr(w+1)}
v_add_f32 {vr(w+2)}, {vr(w+2)}, {vr(w+3)}
v_add_f32 {vr(w)}, {vr(w)}, {vr(w+2)}
v_and_b32 {vr(w+2)}, 0xffff0000, {vr(w)}
v_sub_f32 {vr(w+3)}, {vr(w)}, {vr(w+2)}
v_cvt_pk_bf16_f32 {vr(w)}, {vr(w+2)}, {vr(w+3)}
v_cvt_pk_bf16_f32 {vr(w+1)}, {vr(w+2)}, 0
v_mov_b32 {vr(w+2)}, 0
v_mov_b32 {vr(w+3)}, 0""".split('\n')

    def csp_addr(self, typ):
        self.P(f'v_and_b32 {vr(vT0)}, 0x1f0, {vr(vL16)}\nv_add_u32 {vr(vT0)}, {LDS_CSP + typ*1536}, {vr(vT0)}')

    def phi_addr(self):
        return f"""v_sub_u32 {vr(vVA)}, {vr(vKA)}, {vr(vL16)}
v_and_b32 {vr(vPD)}, 31, {vr(vLANE)}
v_lshl_add_u32 {vr(vVA)}, {vr(vPD)}, 5, {vr(vVA)}
v_lshrrev_b32 {vr(vPD)}, 5, {vr(vLANE)}
v_lshl_add_u32 {vr(vVA)}, {vr(vPD)}, 4, {vr(vVA)}""".split('\n')

    def main_kv(self, L):
        P = self.P; typ = L % 2; o = self.o; XD = o['xd']
        vm, lg = self.vm, self.lg
        NR = 3; KVB = vL16 if L > 1 else PKV + 15
        if L == 1: P(f'v_subrev_u32 {vr(vTR1)}, {LDS_WO - LDS_WQ}, {vr(vTR2)}')
        if L == 2: P(f'v_add_u32 {vr(vTR1)}, {LDS_WQ}, {vr(vL16)}\nv_add_u32 {vr(vTR2)}, {LDS_WO}, {vr(vL16)}')
        if L < 2: P(f'v_subrev_u32 {vr(KVB)}, {LDS_WQ}, {vr(vTR1)}')
        def rdk(ks):
            self.w_read(RING + 8*(ks % NR), KVB, LDS_WK + ks*1024, L, ('k', ks))
        def rdv(ks):
            self.w_read(RING + 8*(ks % NR) + 4, KVB, LDS_WV + ks*1024, L, ('v', ks))
        csrd = [('ds', 'cs', f'ds_read_b128 {vr(WEXTK,4)}, {vr(vT0)} offset:512'), ('ds', 'cs', f'ds_read_b128 {vr(WEXTV,4)}, {vr(vT0)} offset:1024')]
        wext = self.wext_items(WEXTK, 'cs') + self.wext_items(WEXTV, 'cs')
        addr = [f'v_add_u32 {vr(vKA)}, {sr(sOWN)}, {vr(vL16)}']
        if typ == 0:
            La = L // 2
            addr += [f's_add_u32 {sr(sK0)}, {sr(sKVW)}, {OFF_KV + La*KV_L}', f's_add_u32 {sr(sK2)}, {sr(sK0)}, 4096',
                     f's_add_u32 {sr(sH1)}, {sr(sHB)}, {OFF_KV + La*KV_L}', f's_add_u32 {sr(sH2)}, {sr(sH1)}, {16*KV_REC}']
        else: addr += self.phi_addr()
        extras = []
        def pop(n):
            for _ in range(n):
                if extras: self.item(extras.pop(0))
        def kstep(ks, pre=None):
            b = RING + 8*(ks % NR)
            P(waitstr(vm=vm.need(('x', ks)) if L > 0 else None, lg=lg.need(('k', ks))))
            self.mfma(ACC0, b, XF + 4*ks, None if ks == 0 else ACC0)
            if pre: pre()
            if ks + NR < 32: rdk(ks + NR)
            if L > 1 and ks & 1: P(self.acc_par(XF + 4*ks - 4, XF + 4*ks, L & 1))
            if L > 0 and ks + XD < 32: self.frag_load(sOut, ks + XD); pop(1)
            else: pop(3)
            P(waitstr(lg=lg.need(('v', ks))))
            self.mfma(ACC1, XF + 4*ks, b + 4, None if ks == 0 else ACC1)
            if ks + NR < 32: rdv(ks + NR)
            if L > 0 and o['st0'] <= ks < o['st0'] + 8:
                for i in range(2*(ks-o['st0']), 2*(ks-o['st0']) + 2):
                    P(f'buffer_load_dword {vr(STAT+i)}, {vr(vL4)}, {sr(sWS,4)}, {sr(sT1)} offen offset:{i*256} sc1'); vm.issue('st')
            pop(3)
        if L > 0 and not o['b0']:
            ok = P.newlabel('Lwr')
            P(f'v_cmp_gt_u32 vcc, {4*L}, {vr(vT0)}\ns_cbranch_vccz {ok}')
            self.lds_wait(C_WR, 4*L)
            P.label(ok)
            if L == 1 and o['bq']:
                P(f's_lshl_b32 {sr(sT0)}, {sr(sMT)}, 11\ns_add_u32 {sr(sT0)}, {sr(sT0)}, {LDS_WQ}\nv_add_u32 {vr(PKV)}, {sr(sT0)}, {vr(vL16)}')
                bqw = [('ds', 'bq', f'ds_write_b128 {vr(PKV)}, {vr(224+4*u,4)} offset:{cho(u)}') for u in range(8)]
                bqw.append(('ds', 'bq', f'v_mov_b32 {vr(vPD)}, 1\ns_mov_b64 exec, 1\nds_add_u32 {vr(vCNT)}, {vr(vPD)} offset:{4*C_Q}\ns_mov_b64 exec, -1'))
        self.csp_addr(typ)
        if L == 0:
            AD = WEXTV; X0D = o['x0d']
            P(f"""v_bfe_u32 {vr(AD)}, {vr(vLANE)}, 1, 3
v_xor_b32 {vr(AD)}, {vr(AD)}, v64
v_lshlrev_b32 {vr(AD)}, 4, {vr(AD)}
v_lshl_add_u32 {vr(AD)}, v65, 7, {vr(AD)}
v_add_u32 {vr(AD)}, {sr(sLA)}, {vr(AD)}
v_xor_b32 {vr(AD+1)}, 32, {vr(AD)}
v_xor_b32 {vr(AD+2)}, 64, {vr(AD)}
v_xor_b32 {vr(AD+3)}, 96, {vr(AD)}
s_mov_b32 {sr(sSEL0)}, 0x3f803f80""")
            for i in range(4): P(f'v_mov_b32 {vr(STAT+i)}, 0')
            for it in addr: self.item(it)
            for g in range(2, X0D): self.x0_load(g)
            if o['xst']:
                P(f"""s_and_b32 {sr(sT0)}, {sr(sC)}, 1
s_lshl_b32 {sr(sT0)}, {sr(sT0)}, 6
v_xor_b32 {vr(PKV)}, {sr(sT0)}, {vr(AD)}
v_xor_b32 {vr(PKV+1)}, 32, {vr(PKV)}
s_lshr_b32 {sr(sT2)}, {sr(sC)}, 1
s_sub_u32 {sr(sT2)}, {sr(sT2)}, {sr(sROT)}
s_and_b32 {sr(sT2)}, {sr(sT2)}, 7""")
            def dots(g):
                for i in range(16):
                    r_ = XF + 16*g + i
                    P(f'v_dot2_f32_bf16 {vr(STAT+(i&1))}, {vr(r_)}, {sr(sSEL0)}, {vr(STAT+(i&1))}\nv_dot2_f32_bf16 {vr(STAT+2+(i&1))}, {vr(r_)}, {vr(r_)}, {vr(STAT+2+(i&1))}')
            for g in range(8):
                if o['xst']: P(f's_cmp_lg_u32 {sr(sT2)}, {g}')
                P(waitstr(vm=vm.need(('x', g))))
                if o['xst']:
                    lx = P.newlabel('Lx')
                    P(f's_cbranch_scc1 {lx}\nds_read_b128 {vr(XRES,4)}, {vr(PKV)} offset:{(g%4)*4096}\nds_read_b128 {vr(XRES+4,4)}, {vr(PKV+1)} offset:{(g%4)*4096}')
                    P.label(lx)
                for s_ in range(4): P(f'ds_read_b128 {vr(XF+16*g+4*s_,4)}, {vr(AD+s_)} offset:{(g%4)*4096}')
                if g: P('s_waitcnt lgkmcnt(4)')
                if g + X0D < 8: self.x0_load(g + X0D)
                if g: dots(g - 1)
                if g == o['wgo'] - 1: self.lds_signal(C_WGO)
                if g in (0, 3, 5): self.stamp({0: 2, 3: 15, 5: 23}[g], {0: 'x g0 / W go', 3: 'x g3 / W st0', 5: 'x g5 / W st1'}[g])
            self.lds_signal(C_XDONE)
            lg.reset()
            for it in self.lds_peek(C_ST): self.item(it)
            dots(7)
            self.stamp(1, 'x0 / W st3')
            self.lds_check(C_ST, 4)
            self.stamp(29, 'S0 / W st2')
            for ks in range(NR): rdk(ks); rdv(ks)
            P(f'v_add_f32 {vr(STAT)}, {vr(STAT)}, {vr(STAT+1)}\nv_add_f32 {vr(STAT+2)}, {vr(STAT+2)}, {vr(STAT+3)}')
            P(f'v_permlane32_swap_b32 {vr(STAT)}, {vr(STAT+2)}\nv_add_f32 {vr(STAT)}, {vr(STAT)}, {vr(STAT+2)}')
            extras += self.stats_final(typ)
            pop(10)
            for ks in range(32):
                pre = None
                st = ks // 8 + 1
                if ks % 8 == 2: extras[0:0] = self.lds_peek(C_ST + st if st < 4 else C_CS)
                if ks % 8 == 5 and st < 4: pre = lambda: self.lds_check(C_ST + st, 4)
                if ks == 28:
                    pre = lambda: self.lds_check(C_CS, 4)
                    extras += csrd + self.lds_peek(C_Q) + ['s_nop 0']*3 + wext
                kstep(ks, pre)
            pop(100)
        else:
            vm.reset(); lg.reset()
            redo = P.newlabel('Lkvredo')
            P(f's_lshr_b32 {sr(sT1)}, {sr(sRB)}, 3\ns_add_u32 {sr(sT1)}, {sr(sT1)}, {OFF_ST}')
            for it in addr: self.item(it)
            if o['b0']: P('s_barrier')
            self.stamp(14 + L*14 if L < 3 else 57, f'L{L} B0')
            P.label(redo)
            for it in csrd: self.item(it)
            for ks in range(NR): rdk(ks); rdv(ks)
            extras += wext
            S = self.probe(sOut, 0, L & 1, XD) if L > 1 else self.first_hop(0, OFF_XFLAG + 0x2000, 60)
            if L == 1: extras += self.probe_addr().split('\n')
            self.stamp(2 + L*14, f'L{L} xflags')
            for ks in range(S, XD): self.frag_load(sOut, ks)
            if L == 1 and o['bq']:
                for it in bqw: self.item(it)
            late = [('wvm', 'st')] + [self.acc_par(STAT + 2*i, STAT + 2*i + 1, L & 1) for i in range(8) if L > 1]
            for step in (8, 4, 2, 1):
                for i in range(step): late.append(f'v_add_f32 {vr(STAT+i)}, {vr(STAT+i)}, {vr(STAT+i+step)}')
            late += self.stats_final(typ)
            for ks in range(32):
                if ks == 8 + o['st0'] + XD: extras += late
                kstep(ks)
                if L > 1 and ks == o['ev']: self.verify(L & 1, redo)
            pop(100)
            if L > 1: self.verify(L & 1, redo)
        self.mfma(ACC0, WEXTK, XEXT, ACC0)
        self.mfma(ACC1, XEXT, WEXTV, ACC1)

    def w_read(self, dst, base, off, L, tag, qkv=True):
        if L > 1:
            self.P(f'ds_read_b128 {vr(dst,4)}, {vr(base)} offset:{off}'); self.lg.issue(tag)
        else:
            d = 256 if (L == 0 and qkv) else 512
            self.P(f'ds_read_b64_tr_b16 {vr(dst,2)}, {vr(base)} offset:{off}\nds_read_b64_tr_b16 {vr(dst+2,2)}, {vr(base)} offset:{off+d}'); self.lg.issue(tag, 2)

    def q_prefetch(self, L, NS=5):
        for ks in range(NS): self.q_rd(L, ks)

    def q_rd(self, L, ks, NS=5):
        self.w_read(RING + 4*(ks % NS), vTR1, ks*1024, L, ('w', ks))

    def main_qpass(self, L, acc, fill, at=None, pre_write=None, rate=4):
        P = self.P; typ = L % 2; lg = self.lg; NS = 5
        fill = list(fill)
        for ks in range(32):
            P(waitstr(lg=lg.need(('w', ks))))
            self.mfma(acc, RING + 4*(ks % NS), XF + 4*ks, None if ks == 0 else acc)
            if ks + NS < 32: self.q_rd(L, ks + NS)
            n = 0
            while fill and n < rate:
                it = fill.pop(0); self.item(it)
                if isinstance(it, str) or it[0] == 'ds': n += 1
            if at and ks in at: at[ks]()
        for it in fill: self.item(it)
        self.mfma(acc, WEXTQ, XEXT, acc)
        if at and 32 in at: at[32]()
        order = (4, 5, 6, 7, 0, 1, 2, 3)
        for p in order:
            if typ == 0 and p % 4 == 0:
                for q in range(p, p + 4): P(f'v_pk_mul_f32 {vr(acc+2*q,2)}, {vr(acc+2*q,2)}, {vr(vRSTD,2)} op_sel_hi:[1,0]')
            P(f'v_cvt_pk_bf16_f32 {vr(aQ+p)}, {vr(acc+2*p)}, {vr(acc+2*p+1)}')
            if p == 7:
                if pre_write: pre_write()
                P(f'ds_write_b128 {vr(vKA)}, {vr(aQ+4,4)} offset:5120')

    def tile_addr(self, sbase):
        return f"""s_lshl_b32 {sr(sT1)}, {sr(sHS)}, 10
s_add_u32 {sr(sT1)}, {sr(sT1)}, {sr(sbase)}
v_add_u32 {vr(vKA)}, {sr(sT1)}, {vr(vL16)}
s_lshl_b32 {sr(sT1)}, {sr(sHS)}, 8
v_xor_b32 {vr(vVA)}, {sr(sT1)}, {vr(vL16)}
v_add_u32 {vr(vVA)}, {sr(sbase)}, {vr(vVA)}"""

    def trickle_setup(self):
        self.P(f's_mov_b32 {sr(sDM)}, 4\ns_mov_b32 {sr(sDG)}, {sr(sG0)}\ns_mov_b32 {sr(sDL)}, {sr(sLA)}')

    def trickle(self, keep=0):
        P = self.P; sk = P.newlabel('Lsk')
        P(f's_cmp_le_u32 {sr(sDM)}, {keep}\ns_cbranch_scc1 {sk}\ns_mul_i32 {sr(sT0)}, {sr(sDG)}, 3')
        for e in range(2):
            for nt in (1, 2):
                P(f's_add_u32 m0, {sr(sDL)}, {NT_LDS[nt] + e*1024}\ns_add_u32 {sr(sT1)}, {sr(sT0)}, {e*49152 + nt*1024}')
                P(f'buffer_load_dwordx4 {vr(vDW)}, {sr(sWB,4)}, {sr(sT1)} offen lds')
        P(f"""s_add_u32 {sr(sDL)}, {sr(sDL)}, 8192
s_add_u32 {sr(sDG)}, {sr(sDG)}, 0x20000
s_and_b32 {sr(sDG)}, {sr(sDG)}, 0x7ffff
s_sub_u32 {sr(sDM)}, {sr(sDM)}, 1""")
        P.label(sk)

    def attn_loop(self, cfirst, trickle=False):
        P = self.P; lp = P.newlabel('Latt')
        if self.o['trunc']: pk = lambda d, e: f'v_perm_b32 {vr(d)}, {vr(e+1)}, {vr(e)}, {sr(sPERM)}'
        else: pk = lambda d, e: f'v_cvt_pk_bf16_f32 {vr(d)}, {vr(e)}, {vr(e+1)}'
        rdv = f's_mov_b64 exec, {sr(sLO,2)}\nds_read_b128 {vr(VV,4)}, {vr(vVA)} offset:2048\nds_read_b128 {vr(VV+4,4)}, {vr(vVA)} offset:3072\ns_mov_b64 exec, -1'
        P(f'ds_read_b128 {vr(aK,4)}, {vr(vKA)}'); P(rdv)
        P(f'v_add_u32 {vr(vKA)}, {sr(sSTEP)}, {vr(vKA)}\nv_add_u32 {vr(vVA)}, {sr(sSTEP)}, {vr(vVA)}\ns_waitcnt lgkmcnt(2)')
        cfirst()
        P(f'ds_read_b128 {vr(aK,4)}, {vr(vKA)}\nv_add_u32 {vr(vKA)}, {sr(sSTEP)}, {vr(vKA)}\ns_nop 9')
        P.label(lp)
        for i in range(8): P(f'v_exp_f32 {vr(aE+i)}, {vr(aS+i)}')
        for p in range(4): P(pk(aP + p, aE + 2*p))
        for i in range(8, 10): P(f'v_exp_f32 {vr(aE+i-8)}, {vr(aS+i)}')
        P('s_waitcnt lgkmcnt(0)')
        self.mfma(aO, VV, aP, aO)
        for i in range(10, 16): P(f'v_exp_f32 {vr(aE+i-8)}, {vr(aS+i)}')
        self.mfma(aS, aK, aQ, None)
        P(f'ds_read_b128 {vr(aK,4)}, {vr(vKA)}')
        for p in range(4): P(pk(aP + 4 + p, aE + 2*p))
        P(f'v_add_u32 {vr(vKA)}, {sr(sSTEP)}, {vr(vKA)}\ns_sub_u32 {sr(sCNT)}, {sr(sCNT)}, 1')
        self.mfma(aO, VV + 4, aP + 4, aO)
        P(rdv)
        if trickle and self.o['trk']: self.trickle(4 - self.o['trk'])
        P(f'v_add_u32 {vr(vVA)}, {sr(sSTEP)}, {vr(vVA)}\ns_cmp_lg_u32 {sr(sCNT)}, 0\ns_cbranch_scc1 {lp}')

    def v_lanes(self):
        return [f'v_mov_b32 {vr(vSTV)}, {LDS_ONES - 2048}', f'v_cndmask_b32 {vr(vVA)}, {vr(vSTV)}, {vr(vVA)}, {sr(sLO,2)}',
                f'v_mov_b32 {vr(vSTV)}, {sr(sSTEP)}', f'v_cndmask_b32 {vr(vSTV)}, 0, {vr(vSTV)}, {sr(sLO,2)}']

    def attn2(self, M, first, trickle=False):
        P = self.P; lp = P.newlabel('Latt'); dn = P.newlabel('Lattd')
        pk = lambda d, e: f'v_perm_b32 {vr(d)}, {vr(e+1)}, {vr(e)}, {sr(sPERM)}'
        ex = lambda S, a, b: P('\n'.join(f'v_exp_f32 {vr(S+i)}, {vr(S+i)}' for i in range(a, b)))
        rdk = f'ds_read_b128 {vr(aK,4)}, {vr(vKA)}\nv_add_u32 {vr(vKA)}, {sr(sSTEP)}, {vr(vKA)}'
        P(rdk.replace(vr(aK,4), vr(aP,4))); P(rdk); P(f'ds_read_b128 {vr(VV,4)}, {vr(vVA)} offset:2048\ns_waitcnt lgkmcnt(2)')
        first()
        P('s_waitcnt lgkmcnt(1)\ns_nop 6')
        P.label(lp)
        for half, (S, N) in enumerate(((M, aS), (aS, M))):
            P('s_waitcnt lgkmcnt(2)')
            self.mfma(N, aK, aQ, None)
            P(rdk)
            ex(S, 0, 4)
            P('s_waitcnt lgkmcnt(2)')
            self.mfma(aO, VV + 4, aP + 4, aO)
            P(f'ds_read_b128 {vr(VV+4,4)}, {vr(vVA)} offset:3072\nv_add_u32 {vr(vVA)}, {vr(vSTV)}, {vr(vVA)}')
            ex(S, 4, 10)
            for p in range(4): P(pk(aP + p, S + 2*p))
            ex(S, 10, 12)
            P('s_waitcnt lgkmcnt(2)')
            self.mfma(aO, VV, aP, aO)
            P(f'ds_read_b128 {vr(VV,4)}, {vr(vVA)} offset:2048')
            if trickle and self.o['trk']: self.trickle(4 - self.o['trk'])
            ex(S, 12, 16)
            P(f's_sub_u32 {sr(sCNT)}, {sr(sCNT)}, 1')
            for p in range(4): P(pk(aP + 4 + p, S + 8 + 2*p))
            P(f's_cbranch_scc1 {dn}' if half == 0 else f's_cbranch_scc0 {lp}')
        P.label(dn)

    def publish_o_addr(self, L):
        return [f's_add_u32 {sr(sK0)}, {sr(sOW)}, {OFF_O}'] + ([f's_add_u32 {sr(sK1)}, {sr(sOF)}, {OFF_OFLAG}'] if L == 0 else [])

    def publish_o(self, L, O, eps):
        P = self.P
        if eps: P(f'v_add_f32 {vr(O+8)}, {f2u(eps):#x}, {vr(O+8)}')
        P(f'v_rcp_f32 {vr(O+8)}, {vr(O+8)}')
        if L % 2 == 0 and self.o['omul']:
            for i in range(8): P(f'v_mul_f32 {vr(O+i)}, {vr(O+8)}, {vr(O+i)}')
        else:
            for p in range(4): P(f'v_pk_mul_f32 {vr(O+2*p,2)}, {vr(O+2*p,2)}, {vr(O+8,2)} op_sel_hi:[1,0]')
        for p in range(4): P(f'v_cvt_pk_bf16_f32 {vr(aP+p)}, {vr(O+2*p)}, {vr(O+2*p+1)}')
        P(self.set_par(aP, 1 - (L & 1)))
        def emit(sc1):
            P(f'buffer_store_dwordx4 {vr(aP,4)}, {vr(vL16)}, {sr(sWS,4)}, {sr(sK0)} offen' + (' sc1' if sc1 else ''))
            if L == 0: self.flag(sK1, sTAG, sc1, wait='s_waitcnt vmcnt(0)')
        self.two_way(emit)

    def main_outproj(self, L):
        P = self.P; vm, lg = self.vm, self.lg; OD = self.o['od']; par = 1 - (L & 1)
        vm.reset(); lg.reset()
        redo = P.newlabel('Lopredo')
        if L == 0:
            for op in ['s_waitcnt vmcnt(1)'] + [f'v_permlane32_swap_b32 {vr(XRES+a)}, {vr(XRES+b)}' for a, b in SW4] + self.wphi_pack(170): P(op)
        NS = 6; RG = 24 if L == 0 else 32
        def rd(ks):
            self.w_read(RING + 4*(ks % NS), vTR2, ks*1024, L, ('w', ks), qkv=False)
        self.publish_x_addr(L + 1)
        P.label(redo)
        for ks in range(NS): rd(ks)
        self.unpack_res()
        S = self.probe(sWS, OFF_O, par, OD) if L > 0 else self.first_hop(OFF_O, OFF_OFLAG, 124)
        self.stamp(11 + L*14, f'L{L} oflags')
        for ks in range(S, OD): self.frag_load(sWS, ks)
        for ks in range(32):
            P(waitstr(vm=vm.need(('x', ks)), lg=lg.need(('w', ks))))
            self.mfma(ACC0, RING + 4*(ks % NS), XF + 4*(ks % RG), ACC0)
            if ks + OD < 32: self.frag_load(sWS, ks + OD, RG)
            if ks + NS < 32: rd(ks + NS)
            if L and ks & 1: P(self.acc_par(XF + 4*ks - 4, XF + 4*ks, par))
            if L and ks == self.o['ev']: self.verify(par, redo)
        if L: self.verify(par, redo)
        self.stamp(12 + L*14, f'L{L} outproj')
        nxt = L + 1 < self.nl and not self.o['b0']
        if nxt: P(f'ds_read_b32 {vr(vT0)}, {vr(vCNT)} offset:{4*C_WR}')
        self.publish_x(L + 1)
        if nxt: self.lds_signal(C_XDONE)
        self.stamp(13 + L*14, f'L{L} xpub')

    def aux_head(self, L):
        P = self.P
        if self.o['b0']: P('s_barrier')
        else: self.lds_signal(C_WR)
        if L + 1 < self.nl: self.code_prefetch(f'L_main_{L+1}')
        if L > 1 and not self.o['b0']: self.lds_wait(C_XDONE, 4 + 4*L, self.o['lsleep'])
        if L == 1:
            self.lds_to_regs(LDS_WO, PARK['o'], True); P('s_waitcnt vmcnt(0) lgkmcnt(0)')
            if self.o['bq']: self.lds_wait(C_Q, 8, self.o['lsleep'])
            self.relayout(1, (0,))
        else: self.swap_region('o', L + 1 < self.nl, L == 2)

    def aux_tail(self, L):
        P = self.P
        if L + 1 >= self.nl: return
        if L % 2 == 0: wait_att = lambda: self.lds_wait(C_ATT, 8*(L//2 + 1), self.o['lsleep'])
        else: wait_att = lambda: None
        if L == 0:
            lp = P.newlabel('Lx'); P.label(lp)
            self.trickle()
            P(f's_cmp_lg_u32 {sr(sDM)}, 0\ns_cbranch_scc1 {lp}')
            self.wphi_load()
            if self.o['bq']: P('s_waitcnt vmcnt(0)')
            else:
                wait_att()
                self.dma_w(1, (0,))
                P('s_waitcnt vmcnt(8)')
            for op in self.wphi_pack(): P(op)
            self.relayout(1, (1, 2))
            if self.o['bq']: wait_att()
            return
        save = L + 2 < self.nl
        self.swap_region(1, save, L == 1); self.swap_region(2, save, L == 1)
        wait_att()
        self.swap_region(0, save, L == 1)

    def layerA(self, L):
        P = self.P; sb = L * 14; o = self.o; lg = self.lg
        j1 = f'L_j1_{L}'; j2 = f'L_j2_{L}'; ax2 = f'L_ax2_{L}'; ax3 = f'L_ax3_{L}'
        P.label(f'L_main_{L}')
        self.main_kv(L)
        self.stamp(3 + sb, f'L{L} kvpass')
        if L == 0: self.lds_check(C_Q, 4)
        self.q_prefetch(L)
        P(waitstr(lg=lg.need('rt')))
        for p in range(8):
            P(f'v_pk_mul_f32 {vr(ACC0+2*p,2)}, {vr(ACC0+2*p,2)}, {vr(vRSTD,2)} op_sel_hi:[1,0]')
        for p in range(8): P(f'v_cvt_pk_bf16_f32 {vr(PKV+p)}, {vr(ACC0+2*p)}, {vr(ACC0+2*p+1)}')
        st = lambda f: f'buffer_store_dwordx4 {vr(PKV+4*f,4)}, {vr(vL16)}, {sr(sWS,4)}, {sr(sK0)} offen offset:{f*1024} sc1'
        fill = [st(0), st(1)]
        for hf in range(2):
            fill += [f'v_mul_f32 {vr(ACC1+i)}, {vr(STAT+i)}, {vr(ACC1+i)}' for i in range(8*hf, 8*hf + 8)]
            fill += [f'v_cvt_pk_bf16_f32 {vr(PKV+8+p)}, {vr(ACC1+2*p)}, {vr(ACC1+2*p+1)}' for p in range(4*hf, 4*hf + 4)]
            fill.append(st(2 + hf))
        fill += self.checksum(vPD, PKV, 16) + [f'buffer_store_dword {vr(vPD)}, {vr(vL4)}, {sr(sWS,4)}, {sr(sK2)} offen sc1']
        fill += [('ds', 'own', f'ds_write_b128 {vr(vKA)}, {vr(PKV+4*f,4)} offset:{f*1024}') for f in range(4)]
        if L == 0 and o['early']:
            fill.append(('ds', 'kd', f'v_mov_b32 {vr(vPD)}, 1\ns_mov_b64 exec, 1\nds_add_u32 {vr(vCNT)}, {vr(vPD)} offset:{4*C_CS}\ns_mov_b64 exec, -1'))
        m0 = self.mask_ops(0, lean=True)
        if L == 0: fill += m0[:4] + self.lds_peek(C_CSQ) + m0[4:16] + [('fn', lambda: self.lds_check(C_CSQ, 4))]
        else: fill += m0[:16]
        fill += [('ds', 'cs', f'ds_read_b128 {vr(WEXTQ,4)}, {vr(vT0)}')] + m0[16:]
        fill += [f'v_mul_f32 {vr(vRSTD)}, {f2u(0.25*LOG2E):#x}, {vr(vRSTD)}'] + self.wext_items(WEXTQ, 'cs')
        def halo_loads():
            P(f'v_add_u32 v162, 4096, {vr(vL4)}')
            for t_, sh in ((0, sH1), (1, sH2)):
                for f in range(4): P(f'buffer_load_dwordx4 {vr(aH+16*t_+4*f,4)}, {vr(vL16)}, {sr(sWS,4)}, {sr(sh)} offen offset:{f*1024} sc1')
                P(f'buffer_load_dword {vr(160+t_)}, v162, {sr(sWS,4)}, {sr(sh)} offen sc1')
        def halo_first():
            l = P.newlabel('Lx')
            P(f's_cmp_eq_u32 {sr(sHAS)}, 0\ns_cbranch_scc1 {l}')
            halo_loads()
            P.label(l)
        AT2 = o['at2']
        common = self.publish_o_addr(L) + [f's_add_u32 {sr(sCNT)}, {sr(sQT)}, {1 - AT2}', f's_mov_b32 {sr(sSTEP)}, {-OWN_ST}']
        pre2 = (self.v_lanes() + [f'v_mov_b32 {vr(aP+4+i)}, 0' for i in range(4)]) if AT2 else []
        def gap32():
            for it in common + [f'v_mov_b32 {vr(vVA)}, {vr(vKA)}'] + pre2: P(it)
            self.mfma(aO, aP + 4, aP + 4, None)
            if o['halo_at'] == 32: halo_first()
        at = {32: gap32}
        if L == 2 and o.get('fine'):
            self.stamp(32, 'L2 Kepi'); lg.reset()
            at[12] = lambda: (self.stamp(43, 'L2 q12'), lg.reset()); at[31] = lambda: (self.stamp(51, 'L2 q31'), lg.reset())
        if o['halo_at'] < 32: at[o['halo_at']] = halo_first
        self.main_qpass(L, ACC0, fill, at=at, rate=o['qrate'])
        if o['halo_at'] == 33: halo_first()
        if o['prio']: self.prio_if(f's_cmp_ge_u32 {sr(sQT)}, 2')
        self.stamp(5 + sb, f'L{L} preB1')
        P(f's_waitcnt lgkmcnt(0)\ns_barrier')
        if o['halo_at'] == 35: halo_first()
        P(f's_branch {j1}')
        P.label(f'L_aux_{L}')
        if L > 0:
            self.aux_head(L)
            for op in self.mask_ops(0) + self.mask_ops(1): P(op)
        else:
            self.trickle_setup()
            if o['early']:
                self.lds_wait(C_CS, 8, 1)
                for _ in range(o['early']): self.trickle()
            P(f'v_and_b32 {vr(vPA)}, 60, {vr(vL4)}\ns_lshl_b32 {sr(sH1)}, {sr(sR)}, 7\ns_add_u32 {sr(sH1)}, {sr(sH1)}, {OFF_XFLAG}\nbuffer_load_dword v25, {vr(vPA)}, {sr(sWS,4)}, {sr(sH1)} offen sc1')
        P(self.tile_addr(sOWN))
        for it in common + pre2: P(it)
        if o['prio']: self.prio_if(f's_cmp_ge_u32 {sr(sQT)}, 2')
        self.stamp(5 + sb, f'L{L} preB1')
        P('s_barrier')
        P(f'ds_read_b128 {vr(aQ,4)}, {vr(vKA)} offset:4096')
        P.label(j1)
        if AT2: self.attn2(CDIAG, lambda: self.mfma(CDIAG, aP, aQ, CDIAG))
        else: self.attn_loop(lambda: self.mfma(aS, aK, aQ, CDIAG))
        P(self.tile_addr(sP2))
        P(f's_sub_u32 {sr(sCNT)}, {sr(sC2)}, {AT2}\ns_mov_b32 {sr(sSTEP)}, 4096')
        if AT2:
            for it in self.v_lanes(): P(it)
        if o['prio']: self.prio_if(f's_cmp_lt_u32 {sr(sQT)}, 2')
        self.stamp(6 + sb, f'L{L} own attn')
        lp = P.newlabel('Lhalo'); ck = P.newlabel('Lhchk'); dn = P.newlabel('Lhdone')
        P(f's_cmp_lg_u32 {sr(sHS)}, 0\ns_cbranch_scc1 {ax2 if L == 0 else j2}')
        if o['halo_at'] == 34: halo_first()
        for op in self.mask_ops(1): P(op)
        P(f"""s_cmp_eq_u32 {sr(sHAS)}, 0
s_cbranch_scc1 {j2 if L else 'L_res0'}
s_lshl_b32 {sr(sT3)}, {sr(sMT)}, 13
s_add_u32 {sr(sT3)}, {sr(sT3)}, {LDS_T}
v_add_u32 {vr(vT0)}, {sr(sT3)}, {vr(vL16)}
s_branch {ck}""")
        P.label(lp)
        halo_loads()
        P.label(ck)
        for t_ in range(2):
            cs = self.checksum(163 + t_, aH + 16*t_, 16)
            for f in range(4):
                P(f's_waitcnt vmcnt({9-5*t_-f})\nds_write_b128 {vr(vT0)}, {vr(aH+16*t_+4*f,4)} offset:{(4*t_+f)*1024}')
                P(cs[2*f]); P(cs[2*f + 1])
            P(f's_waitcnt vmcnt({5-5*t_})\nv_cmp_ne_u32 {sr(sM+2*t_,2)}, {vr(160+t_)}, {vr(163+t_)}')
        P(f's_or_b64 {sr(sM,2)}, {sr(sM,2)}, {sr(sM+2,2)}\ns_cbranch_scc0 {dn}')
        self.retry_tail(lp, dn)
        self.stamp(7 + sb, f'L{L} halo ok')
        if L == 0:
            P.label('L_res0')
            if not o['xst']:
                self.rowmajor_addr(182, 183, sT0)
                P(f'buffer_load_dwordx4 {vr(XRES,4)}, v182, {sr(sX0,4)}, {sr(sT0)} offen\nbuffer_load_dwordx4 {vr(XRES+4,4)}, v182, {sr(sX0,4)}, {sr(sT0)} offen offset:32')
            self.wphi_load(170)
            P(f's_branch {j2}'); P.label(ax2)
            okl = P.newlabel('Lx')
            P(f's_waitcnt vmcnt(0) lgkmcnt(0)\nv_mov_b32 {vr(vPD)}, v25\nv_and_b32 {vr(vT0)}, -16, v25\nv_cmp_ne_u32 vcc, {sr(sTAG)}, {vr(vT0)}\ns_cbranch_vccz {okl}')
            self.poll(sH1, masked=True)
            P.label(okl)
            if not self.force_safe:
                P(f"""v_cmp_ne_u32 vcc, {sr(sOWNF)}, {vr(vPD)}
s_cmp_eq_u64 vcc, 0
s_cselect_b32 {sr(sFAST)}, 1, 0
v_mov_b32 {vr(vT0)}, {sr(sFAST)}
ds_write_b32 {vr(vCNT)}, {vr(vT0)} offset:44""")
            if o['pfb'] == 2: self.coop_prefetch(1, 1)
            if o['touch']:
                P(f"""v_lshlrev_b32 v5, 3, {vr(vL16)}
v_and_b32 v5, 0x780, v5
s_add_u32 {sr(sT0)}, {sr(sXW)}, {OFF_O}
s_add_u32 {sr(sT1)}, {sr(sSW)}, {OFF_ST}
s_mov_b64 exec, 0xffff
buffer_load_dword v26, v5, {sr(sWS,4)}, {sr(sT0)} offen sc1
buffer_load_dword v26, v5, {sr(sOut,4)}, {sr(sXW)} offen sc1
s_mov_b64 exec, 3
buffer_load_dword v26, v5, {sr(sWS,4)}, {sr(sT1)} offen sc1
s_mov_b64 exec, -1""")
        P.label(j2)
        lskip = P.newlabel('Lnohalo'); l1 = P.newlabel('Lr1'); l2 = P.newlabel('Lr2')
        P('s_waitcnt lgkmcnt(0)\ns_barrier')
        if L == 0 and not self.force_safe: P(f'ds_read_b32 {vr(vPD)}, {vr(vCNT)} offset:44')
        self.stamp(8 + sb, f'L{L} B2')
        if L == 0 and o['bq']:
            lb = P.newlabel('Lx')
            P(f's_cmp_lg_u32 {sr(sHS)}, 0\ns_cbranch_scc1 {lb}')
            if 1:
                P(f"""v_lshrrev_b32 v184, 2, {vr(vLANE)}
v_mul_u32_u24 v184, 3072, v184
v_and_b32 v185, 48, {vr(vL16)}
s_lshl_b32 {sr(sT0)}, {sr(sC)}, 6
v_add3_u32 v184, v184, v185, {sr(sT0)}
s_lshl_b32 {sr(sT2)}, {sr(sROT)}, 1
s_add_u32 {sr(sT2)}, {sr(sT2)}, {sr(sMT)}
s_lshl_b32 {sr(sT2)}, {sr(sT2)}, 15""")
                for st in range(4):
                    P(f's_and_b32 {sr(sT2)}, {sr(sT2)}, 0x7ffff\ns_mul_i32 {sr(sT0)}, {sr(sT2)}, 3\ns_add_u32 {sr(sT3)}, {sr(sT0)}, 49152')
                    P(f'buffer_load_dwordx4 {vr(224+8*st,4)}, v184, {sr(sWB,4)}, {sr(sT0)} offen\nbuffer_load_dwordx4 {vr(228+8*st,4)}, v184, {sr(sWB,4)}, {sr(sT3)} offen')
                    if st < 3: P(f's_add_u32 {sr(sT2)}, {sr(sT2)}, 0x20000')
            P.label(lb)
        P(f's_cmp_eq_u32 {sr(sR)}, 0\ns_cbranch_scc1 {lskip}')
        def first():
            P(f's_cmp_eq_u32 {sr(sR)}, 1\ns_cbranch_scc1 {l1}')
            self.mfma(CFIRST if AT2 else aS, aP if AT2 else aK, aQ, CFIRST)
            P(f's_branch {l2}'); P.label(l1)
            self.mfma(CFIRST if AT2 else aS, aP if AT2 else aK, aQ, None)
            P.label(l2)
        if AT2: self.attn2(CFIRST, first, trickle=(L == 0))
        else: self.attn_loop(first, trickle=(L == 0))
        P.label(lskip)
        if AT2:
            P('s_waitcnt lgkmcnt(1)'); self.mfma(aO, VV + 4, aP + 4, aO)
        if L == 0 and not self.force_safe: P(f's_waitcnt lgkmcnt(0)\nv_readfirstlane_b32 {sr(sFAST)}, {vr(vPD)}')
        self.stamp(9 + sb, f'L{L} attn')
        P(f'v_subrev_u32 {vr(vT0)}, {f2u(2.0**-SAFE_EXP):#x}, {vr(aO+8)}\nv_cmp_le_u32 vcc, {f2u(2.0**SAFE_EXP) - f2u(2.0**-SAFE_EXP):#x}, {vr(vT0)}\ns_cbranch_vccnz L_fb_{L}')
        P.label(f'L_fbr_{L}')
        self.publish_o(L, aO, 0)
        if o['prio']: P('s_setprio 0')
        self.lds_signal(C_ATT)
        self.stamp(10 + sb, f'L{L} opub')
        P(f's_cmp_lg_u32 {sr(sHS)}, 0\ns_cbranch_scc1 {ax3}')
        self.main_outproj(L)
        P(f's_branch L_main_{L+1}')
        P.label(ax3)
        self.aux_tail(L)
        self.stamp(13 + sb, f'L{L} xpub')
        P(f's_branch L_aux_{L+1}')

    def attn_fallback(self, L):
        P = self.P; M = vT0
        pk = lambda d, e: f'v_cvt_pk_bf16_f32 {vr(d)}, {vr(e)}, {vr(e+1)}'
        P.label(f'L_fb_{L}')
        P(f's_waitcnt lgkmcnt(0)\nv_mov_b32 {vr(M)}, 0xff800000')
        for op in self.mask_ops(0) + self.mask_ops(1): P(op)
        for ps in range(2):
            for seg in range(2):
                lp = P.newlabel('Lfb'); nx = P.newlabel('Lfbn'); nm = P.newlabel('Lfbm')
                if seg == 0:
                    P(self.tile_addr(sOWN))
                    P(f's_add_u32 {sr(sCNT)}, {sr(sQT)}, 1\ns_mov_b32 {sr(sSTEP)}, {-OWN_ST}')
                    for i in range(16): P(f'v_mov_b32 {vr(aS+i)}, {vr(CDIAG+i)}')
                else:
                    P(f's_cmp_eq_u32 {sr(sR)}, 0\ns_cbranch_scc1 {nx}')
                    P(self.tile_addr(sP2))
                    P(f's_mov_b32 {sr(sCNT)}, {sr(sC2)}\ns_mov_b32 {sr(sSTEP)}, 4096\ns_cmp_eq_u32 {sr(sR)}, 1\ns_cbranch_scc1 {lp}')
                    for i in range(16): P(f'v_mov_b32 {vr(aS+i)}, {vr(CFIRST+i)}')
                P.label(lp)
                P(f'ds_read_b128 {vr(aK,4)}, {vr(vKA)}')
                if ps:
                    P(f's_mov_b64 exec, {sr(sLO,2)}\nds_read_b128 {vr(VV,4)}, {vr(vVA)} offset:2048\nds_read_b128 {vr(VV+4,4)}, {vr(vVA)} offset:3072\ns_mov_b64 exec, -1')
                P('s_waitcnt lgkmcnt(0)')
                self.mfma(aS, aK, aQ, aS)
                if ps == 0:
                    for i in range(0, 16, 2): P(f'v_max3_f32 {vr(M)}, {vr(M)}, {vr(aS+i)}, {vr(aS+i+1)}')
                else:
                    for i in range(16): P(f'v_sub_f32 {vr(aS+i)}, {vr(aS+i)}, {vr(M)}')
                    for i in range(16): P(f'v_exp_f32 {vr(aS+i)}, {vr(aS+i)}')
                    for p in range(8): P(pk(aP + p, aS + 2*p))
                    self.mfma(aO, VV, aP, aO)
                    self.mfma(aO, VV + 4, aP + 4, aO)
                for i in range(16): P(f'v_mov_b32 {vr(aS+i)}, 0')
                P(f'v_add_u32 {vr(vKA)}, {sr(sSTEP)}, {vr(vKA)}\nv_add_u32 {vr(vVA)}, {sr(sSTEP)}, {vr(vVA)}')
                P(f's_sub_u32 {sr(sCNT)}, {sr(sCNT)}, 1\ns_cmp_lg_u32 {sr(sCNT)}, 0\ns_cbranch_scc1 {lp}')
                P.label(nx)
            if ps == 0:
                P(f'v_mov_b32 {vr(vPD)}, {vr(M)}\nv_permlane32_swap_b32 {vr(vPD)}, {vr(M)}\nv_max_f32 {vr(M)}, {vr(M)}, {vr(vPD)}')
        P(f's_branch L_fbr_{L}')

    def softmax16(self, dst, t):
        P = self.P; A = ACC0
        P(f'v_max3_f32 {vr(t)}, {vr(A)}, {vr(A+1)}, {vr(A+2)}\nv_max3_f32 {vr(t+1)}, {vr(A+3)}, {vr(A+4)}, {vr(A+5)}')
        P(f'v_max3_f32 {vr(t+2)}, {vr(A+6)}, {vr(A+7)}, {vr(A+8)}\nv_max3_f32 {vr(t+3)}, {vr(A+9)}, {vr(A+10)}, {vr(A+11)}')
        P(f'v_max3_f32 {vr(t)}, {vr(t)}, {vr(A+12)}, {vr(A+13)}\nv_max3_f32 {vr(t+1)}, {vr(t+1)}, {vr(A+14)}, {vr(A+15)}')
        P(f'v_max3_f32 {vr(t)}, {vr(t)}, {vr(t+2)}, {vr(t+3)}\nv_max_f32 {vr(t)}, {vr(t)}, {vr(t+1)}')
        P(f'v_mul_f32 {vr(t)}, {vr(vRSTD)}, {vr(t)}')
        fm = lambda p: f'v_pk_fma_f32 {vr(A+2*p,2)}, {vr(A+2*p,2)}, {vr(vRSTD,2)}, {vr(t,2)} op_sel_hi:[1,0,0] neg_lo:[0,0,1] neg_hi:[0,0,1]'
        P(fm(0)); P(fm(1))
        for p in range(8):
            P(f'v_exp_f32 {vr(A+2*p)}, {vr(A+2*p)}')
            if p + 2 < 8: P(fm(p + 2))
            P(f'v_exp_f32 {vr(A+2*p+1)}, {vr(A+2*p+1)}')
            if p == 2: P(f'v_pk_add_f32 {vr(t+2,2)}, {vr(A,2)}, {vr(A+2,2)}')
            if p >= 3: P(f'v_pk_add_f32 {vr(t+2,2)}, {vr(t+2,2)}, {vr(A+2*p-2,2)}')
        P(f'v_pk_add_f32 {vr(t+2,2)}, {vr(t+2,2)}, {vr(A+14,2)}\nv_add_f32 {vr(t+2)}, {vr(t+2)}, {vr(t+3)}\nv_rcp_f32 {vr(t)}, {vr(t+2)}')
        for p in range(8): P(f'v_pk_mul_f32 {vr(A+2*p,2)}, {vr(A+2*p,2)}, {vr(t,2)} op_sel_hi:[1,0]')
        for p in range(8): P(f'v_cvt_pk_bf16_f32 {vr(dst+p)}, {vr(A+2*p)}, {vr(A+2*p+1)}')

    def layerB(self, L):
        P = self.P; Lb = L // 2; sb = L * 14; o = self.o; lg = self.lg
        j0 = f'L_j0_{L}'; j1 = f'L_j1_{L}'; j2 = f'L_j2_{L}'; ax1 = f'L_ax1_{L}'; ax1b = f'L_ax1b_{L}'; ax3 = f'L_ax3_{L}'; axz = f'L_axz_{L}'
        KA, KV_ = 48, 96
        vA16, vA4, vAW, vAO = 96, 97, 98, 99
        P.label(f'L_main_{L}')
        self.main_kv(L)
        self.stamp(3 + sb, f'L{L} kvpass')
        P(waitstr(lg=lg.need('rt')))
        for p in (4, 5, 6, 7): P(f'v_cvt_pk_bf16_f32 {vr(PKV+p)}, {vr(ACC0+2*p)}, {vr(ACC0+2*p+1)}')
        P(f'ds_write_b128 {vr(vKA)}, {vr(PKV+4,4)} offset:1024')
        for p in (0, 1, 2, 3): P(f'v_cvt_pk_bf16_f32 {vr(PKV+p)}, {vr(ACC0+2*p)}, {vr(ACC0+2*p+1)}')
        vmul = lambda p: f'v_pk_mul_f32 {vr(ACC1+2*p,2)}, {vr(ACC1+2*p,2)}, {vr(STAT+2*p,2)}'
        P(vmul(0)); P(vmul(1))
        self.mfma(ACC0, WPHI, PKV, None)
        for p in range(2, 8): P(vmul(p))
        P('s_waitcnt lgkmcnt(0)\ns_barrier')
        for p in range(8): P(f'v_cvt_pk_bf16_f32 {vr(PKV+8+p)}, {vr(ACC1+2*p)}, {vr(ACC1+2*p+1)}')
        for f in range(2, 4): P(f'ds_write_b128 {vr(vKA)}, {vr(PKV+4*f,4)} offset:{f*1024}')
        P(f's_branch {j0}')
        P.label(f'L_aux_{L}')
        self.aux_head(L)
        for i in range(32): P(f'v_mov_b32 {vr(KV_+i)}, {vr(ONES)}')
        P(f"""v_lshrrev_b32 v91, 5, {vr(vLANE)}
v_bfe_u32 v88, {vr(vLANE)}, 2, 2
v_lshl_add_u32 v88, v91, 2, v88
v_lshlrev_b32 v88, 5, v88
v_and_b32 v89, 1, {vr(vLANE)}
v_lshl_add_u32 v88, v89, 4, v88
v_bfe_u32 v89, {vr(vLANE)}, 4, 1
v_lshl_add_u32 v88, v89, 12, v88
v_bfe_u32 v89, {vr(vLANE)}, 1, 1
v_lshl_add_u32 v88, v89, 3, v88
s_lshl_b32 {sr(sT0)}, {sr(sMT)}, 10
s_add_u32 {sr(sT0)}, {sr(sT0)}, {LDS_OWN}
v_add_u32 v88, {sr(sT0)}, v88
s_lshl_b32 {sr(sT1)}, {sr(sMT)}, 8
v_xor_b32 v90, {sr(sT1)}, {vr(vL16)}
v_add_u32 v89, {LDS_OWN}, v90
s_lshl_b32 {sr(sT0)}, {sr(sMT)}, 5
s_add_u32 {sr(sT0)}, {sr(sT0)}, 1024
v_lshl_add_u32 v91, v91, 4, {sr(sT0)}
v_and_b32 v92, 31, {vr(vLANE)}
v_mov_b32 v93, {OOB:#x}
v_cmp_eq_u32 vcc, 16, v92
v_cndmask_b32 v91, v93, v91, vcc
v_cndmask_b32 v90, v91, v90, {sr(sLO,2)}
v_lshrrev_b32 v91, 2, v90
s_lshl_b32 {sr(sK2)}, {sr(sC)}, 4
s_add_u32 {sr(sK2)}, {sr(sK2)}, {sr(sR)}
s_mul_i32 {sr(sK2)}, {sr(sK2)}, {KP_REC}
s_add_u32 {sr(sK2)}, {sr(sK2)}, {OFF_KP + Lb*KP_L}""")
        P(self.tile_addr(sOWN))
        for op in self.phi_addr(): P(op)
        P(f's_lshl_b32 {sr(sT0)}, {sr(sQT)}, 7\ns_add_u32 {sr(sT0)}, {sr(sT0)}, {LDS_RSTD}\nv_and_b32 v25, 124, {vr(vL4)}\nv_add_u32 v25, {sr(sT0)}, v25')
        self.stamp(3 + sb, f'L{L} kvpass')
        P('s_barrier')
        P(f'ds_read_b128 {vr(RING+8,4)}, {vr(vKA)}\nds_read_b32 {vr(vRSTD)}, v25\ns_waitcnt lgkmcnt(1)')
        self.mfma(ACC0, WPHI, RING + 8, None)
        P(f's_waitcnt lgkmcnt(0)\nv_mul_f32 {vr(vRSTD)}, {sr(sLOG2E)}, {vr(vRSTD)}\ns_nop 9')
        P.label(j0)
        self.stamp(4 + sb, f'L{L} B1a')
        self.softmax16(RING, RING + 12)
        P(f'ds_write_b128 {vr(vVA)}, {vr(RING,4)}\nds_write_b128 {vr(vVA)}, {vr(RING+4,4)} offset:4096\ns_waitcnt lgkmcnt(0)\ns_barrier')
        self.stamp(5 + sb, f'L{L} B1b')
        common = self.publish_o_addr(L) + f"""s_mul_i32 {sr(sH1)}, {sr(sC)}, {16*KP_REC}
s_add_u32 {sr(sH1)}, {sr(sH1)}, {OFF_KP + Lb*KP_L}
s_mov_b32 {sr(sSEL0)}, 0x3f80
s_mov_b32 {sr(sSEL1)}, 0x3f800000
s_lshl_b32 {sr(sT0)}, {sr(sHS)}, 4
v_xor_b32 {vr(vAO)}, {sr(sT0)}, {vr(vLANE)}
v_lshlrev_b32 {vr(vAO)}, 5, {vr(vAO)}
v_add_u32 {vr(vAO)}, {LDS_KVT}, {vr(vAO)}
v_and_b32 v100, 32, {vr(vLANE)}
s_lshl_b32 {sr(sT0)}, {sr(sHS)}, 6
s_add_u32 {sr(sT0)}, {sr(sT0)}, {LDS_ZT}
v_add_u32 v100, {sr(sT0)}, v100
v_cndmask_b32 {vr(vAO)}, v100, {vr(vAO)}, {sr(sLO,2)}""".split('\n')
        def entry_addr(ent, part):
            return ent + part + f"""v_mul_u32_u24 {vr(vA16)}, {KP_REC}, {vr(vA16)}
v_lshl_add_u32 {vr(vA4)}, v100, 2, {vr(vA16)}
v_lshl_add_u32 {vr(vA16)}, v100, 4, {vr(vA16)}
v_lshrrev_b32 {vr(vAW)}, 4, {vr(vLANE)}
v_lshlrev_b32 {vr(vAW)}, 3, {vr(vAW)}
v_lshl_add_u32 {vr(vAW)}, v100, 5, {vr(vAW)}
v_add_u32 {vr(vAW)}, {LDS_KVT}, {vr(vAW)}""".split('\n')
        A = ACC1; KD = 128
        def loads_main():
            P(f's_mov_b32 {sr(sT0)}, {sr(sH1)}')
            for it in range(4):
                D = KD + 12*it
                P(f'buffer_load_dwordx4 {vr(D,4)}, {vr(vA16)}, {sr(sWS,4)}, {sr(sT0)} offen sc1\nbuffer_load_dwordx4 {vr(D+4,4)}, {vr(vA16)}, {sr(sWS,4)}, {sr(sT0)} offen offset:{KP_D1} sc1')
                P(f'buffer_load_dword {vr(D+8)}, {vr(vA4)}, {sr(sWS,4)}, {sr(sT0)} offen offset:{KP_CS} sc1')
                if it < 3: P(f's_add_u32 {sr(sT0)}, {sr(sT0)}, {4*KP_REC}')
        P(f's_cmp_lg_u32 {sr(sHS)}, 0\ns_cbranch_scc1 {ax1}')
        lg.reset()
        self.q_prefetch(L)
        fill = [('ds', 'cs', f'ds_read_b128 {vr(WEXTQ,4)}, {vr(vT0)}')] + common
        fill += entry_addr([f'v_and_b32 v100, 15, {vr(vLANE)}', f's_lshl_b32 {sr(sT0)}, {sr(sMT)}, 4', f'v_add_u32 v100, {sr(sT0)}, v100'], [f'v_lshrrev_b32 {vr(vA16)}, 4, {vr(vLANE)}'])
        fill += self.wext_items(WEXTQ, 'cs')
        self.main_qpass(L, ACC1, fill, pre_write=lambda: P('s_barrier'), rate=2)
        self.mfma(ACC0, WPHI, aQ, None)
        P('s_waitcnt lgkmcnt(0)\ns_barrier')
        if o['kp_at'] == 1: loads_main()
        P(f's_branch {j1}')
        P.label(ax1)
        P(f's_cmp_ge_u32 {sr(sMT)}, 2\ns_cbranch_scc1 {ax1b}\ns_setprio 3')
        for st in range(8):
            of = (st >> 1)*OWN_ST + (st & 1)*512
            P(f'ds_read_b64_tr_b16 {vr(KA+4*st,2)}, v88 offset:{of}\nds_read_b64_tr_b16 {vr(KA+2+4*st,2)}, v88 offset:{of+256}')
            P(f's_mov_b64 exec, {sr(sLO,2)}\nds_read_b128 {vr(KV_+4*st,4)}, v89 offset:{(st>>1)*OWN_ST + 2048 + (st&1)*1024}\ns_mov_b64 exec, -1')
            if st >= 3:
                P('s_waitcnt lgkmcnt(9)'); self.mfma(ACC0, KA + 4*(st-3), KV_ + 4*(st-3), None if st == 3 else ACC0)
        for st in range(5, 8):
            P(f's_waitcnt lgkmcnt({3*(7-st)})'); self.mfma(ACC0, KA + 4*st, KV_ + 4*st, ACC0)
        for p in range(8): P(f'v_cvt_pk_bf16_f32 {vr(80+p)}, {vr(ACC0+2*p)}, {vr(ACC0+2*p+1)}')
        P(f'buffer_store_dwordx4 v[80:83], v90, {sr(sWS,4)}, {sr(sK2)} offen sc1\nbuffer_store_dwordx4 v[84:87], v90, {sr(sWS,4)}, {sr(sK2)} offen offset:{KP_D1} sc1')
        for op in self.checksum(92, 80, 8): P(op)
        P(f'buffer_store_dword v92, v91, {sr(sWS,4)}, {sr(sK2)} offen offset:{KP_CS} sc1')
        self.stamp(6 + sb, f'L{L} phiq / kp stored')
        P('s_setprio 0')
        P.label(ax1b)
        if L == 1: self.dma_w(1, ('o',))
        for it in common + entry_addr([f'v_and_b32 v100, 3, {vr(vLANE)}', 'v_add_u32 v100, 64, v100'], [f'v_lshrrev_b32 {vr(vA16)}, 2, {vr(vLANE)}']): P(it)
        P('s_barrier\ns_barrier')
        P(f'ds_read_b128 {vr(aQ,4)}, {vr(vKA)} offset:4096\ns_waitcnt lgkmcnt(0)')
        self.mfma(ACC0, WPHI, aQ, None)
        P('s_nop 11')
        P.label(j1)
        self.softmax16(PHQ, RING + 12)
        P(f's_cmp_lg_u32 {sr(sHS)}, 0\ns_cbranch_scc1 {axz}')
        def fold():
            for j in range(8): P(f'v_permlane32_swap_b32 {vr(A+j)}, {vr(A+j+8)}')
            for j in range(4): P(f'v_pk_add_f32 {vr(A+2*j,2)}, {vr(A+2*j,2)}, {vr(A+2*j+8,2)}')
            for j in range(4): P(f'v_permlane16_swap_b32 {vr(A+j)}, {vr(A+j+4)}')
            for j in range(2): P(f'v_pk_add_f32 {vr(A+2*j,2)}, {vr(A+2*j,2)}, {vr(A+2*j+4,2)}')
        def unpack(D):
            for k in range(8): P(f'v_lshlrev_b32 {vr(A+2*k)}, 16, {vr(D+k)}\nv_and_b32 {vr(A+2*k+1)}, 0xffff0000, {vr(D+k)}')
        fin = f'v_cvt_pk_bf16_f32 v68, {vr(A)}, {vr(A+1)}\nv_cvt_pk_bf16_f32 v69, {vr(A+2)}, {vr(A+3)}\nds_write_b64 {vr(vAW)}, v[68:69]'
        self.stamp(6 + sb, f'L{L} phiq / kp stored')
        lp = P.newlabel('Lkp'); ck = P.newlabel('Lkpc'); dn = P.newlabel('Lkpd')
        if o['kp_at'] == 1: P(f's_branch {ck}')
        P.label(lp)
        loads_main()
        P.label(ck)
        for it in range(4):
            D = KD + 12*it
            P(f's_waitcnt vmcnt({9-3*it})')
            for op in self.checksum(D + 9, D, 8): P(op)
            P(f'v_cmp_ne_u32 {sr(sM+2*it,2)}, {vr(D+8)}, {vr(D+9)}')
            if it == 0: unpack(D)
            elif it < 3:
                for k in range(8):
                    P(f'v_dot2_f32_bf16 {vr(A+2*k)}, {vr(D+k)}, {sr(sSEL0)}, {vr(A+2*k)}\nv_dot2_f32_bf16 {vr(A+2*k+1)}, {vr(D+k)}, {sr(sSEL1)}, {vr(A+2*k+1)}')
        P(f's_or_b64 {sr(sM,2)}, {sr(sM,2)}, {sr(sM+2,2)}\ns_or_b64 {sr(sM+4,2)}, {sr(sM+4,2)}, {sr(sM+6,2)}\ns_or_b64 {sr(sM,2)}, {sr(sM,2)}, {sr(sM+4,2)}\ns_cbranch_scc0 {dn}')
        self.retry_tail(lp, dn)
        self.stamp(7 + sb, f'L{L} kp ok')
        D = KD + 36
        for k in range(8):
            P(f'v_dot2_f32_bf16 {vr(A+2*k)}, {vr(D+k)}, {sr(sSEL0)}, {vr(A+2*k)}\nv_dot2_f32_bf16 {vr(A+2*k+1)}, {vr(D+k)}, {sr(sSEL1)}, {vr(A+2*k+1)}')
        fold()
        P(fin)
        P(f's_branch {j2}')
        P.label(axz)
        if L == 1:
            P('s_waitcnt vmcnt(0)')
        P(f's_cmp_lg_u32 {sr(sMT)}, 2\ns_cbranch_scc1 {j2}')
        lp = P.newlabel('Lkz'); dn = P.newlabel('Lkzd'); D = 32
        P.label(lp)
        P(f'buffer_load_dwordx4 {vr(D,4)}, {vr(vA16)}, {sr(sWS,4)}, {sr(sH1)} offen sc1\nbuffer_load_dwordx4 {vr(D+4,4)}, {vr(vA16)}, {sr(sWS,4)}, {sr(sH1)} offen offset:{KP_D1} sc1')
        P(f'buffer_load_dword {vr(D+8)}, {vr(vA4)}, {sr(sWS,4)}, {sr(sH1)} offen offset:{KP_CS} sc1\ns_waitcnt vmcnt(0)')
        for op in self.checksum(D + 9, D, 8): P(op)
        P(f'v_cmp_ne_u32 vcc, {vr(D+8)}, {vr(D+9)}\ns_cbranch_vccz {dn}')
        self.retry_tail(lp, dn)
        unpack(D)
        fold()
        for rot in (4, 8):
            for j in range(4): P(f'v_add_f32_dpp {vr(A+j)}, {vr(A+j)}, {vr(A+j)} row_ror:{rot} row_mask:0xf bank_mask:0xf')
        P(fin)
        P.label(j2)
        P('s_waitcnt lgkmcnt(0)\ns_barrier')
        self.stamp(8 + sb, f'L{L} B2')
        P(f'ds_read_b128 v[68:71], {vr(vAO)}\nds_read_b128 v[72:75], {vr(vAO)} offset:16\ns_waitcnt lgkmcnt(1)')
        self.mfma(ACC0, 68, PHQ, None)
        P('s_waitcnt lgkmcnt(0)')
        self.mfma(ACC0, 72, PHQ + 4, ACC0)
        self.publish_o(L, ACC0, 1e-6)
        self.stamp(10 + sb, f'L{L} opub')
        P(f's_cmp_lg_u32 {sr(sHS)}, 0\ns_cbranch_scc1 {ax3}')
        self.main_outproj(L)
        P(f's_branch L_main_{L+1}')
        P.label(ax3)
        self.aux_tail(L)
        self.stamp(13 + sb, f'L{L} xpub')
        P(f's_branch L_aux_{L+1}')

    def epilogue(self):
        P = self.P; nl = self.nl
        P.label(f'L_main_{nl}')
        P(f's_or_b32 {sr(sT0)}, s2, {sr(sW)}\ns_cmp_lg_u32 {sr(sT0)}, 0\ns_cbranch_scc1 L_aux_{nl}\ns_mov_b32 {sr(sT2)}, 0')
        self.flag(sT2, sTAG, False)
        P.label(f'L_aux_{nl}')
        if self.stamps:
            P('s_waitcnt vmcnt(0)')
            self.stamp(62, 'end')
            P(f's_memtime {sr(sST,2)}\ns_waitcnt lgkmcnt(0)\ns_sub_u32 {sr(sST)}, {sr(sST)}, s100\nv_writelane_b32 {vr(vSTAMP)}, {sr(sST)}, 59')
            P(f'''v_writelane_b32 {vr(vSTAMP)}, {sr(sBUD)}, 63
v_writelane_b32 {vr(vSTAMP)}, {sr(sFAST)}, 61
v_writelane_b32 {vr(vSTAMP)}, s99, 58
v_writelane_b32 {vr(vSTAMP)}, s101, 56
s_lshl_b32 {sr(sT0)}, s2, 3
s_add_u32 {sr(sT0)}, {sr(sT0)}, {sr(sW)}
s_lshl_b32 {sr(sT0)}, {sr(sT0)}, 8
s_add_u32 {sr(sT0)}, {sr(sT0)}, {OFF_STAMP}
buffer_store_dword {vr(vSTAMP)}, {vr(vL4)}, {sr(sWS,4)}, {sr(sT0)} offen''')
            if self.o.get('dbgst'):
                P(f's_cmp_lg_u32 {sr(sHS)}, 0\ns_cbranch_scc1 L_end\ns_load_dwordx2 s[64:65], s[0:1], 64\nv_mov_b32 v30, 0')
                for j, (idx, neg) in enumerate([(60, 1), (60, 0), (0, 0), (2, 0), (1, 0), (3, 0), (8, 0), (10, 0), (13, 0), (27, 0), (41, 0), (62, 0), (59, 0), (3, 1), (13, 1), (62, 1)]):
                    P(f'v_readlane_b32 s66, {vr(vSTAMP)}, {idx}')
                    if neg: P('s_not_b32 s66, s66')
                    P(f'v_writelane_b32 v30, s66, {j}')
                P('s_waitcnt lgkmcnt(0)')
                self.srd(68, 64, 256)
                P(f's_mov_b64 exec, 0xffff\nbuffer_atomic_umax v30, {vr(vL4)}, s[68:71], 0 offen\ns_waitcnt vmcnt(0)')
        if self.o.get('spin'):
            lp = P.newlabel('Lspin'); P.label(lp)
            P(f's_memrealtime s[66:67]\ns_waitcnt lgkmcnt(0)\ns_sub_u32 s66, s66, s98\ns_cmp_lt_u32 s66, {self.o["spin"]}\ns_cbranch_scc1 {lp}')
        P.label('L_end')
        P('s_endpgm')

    def build(self):
        self.prologue()
        for L in range(self.nl):
            (self.layerA if L % 2 == 0 else self.layerB)(L)
        self.epilogue()
        self.emit_stubs()
        for L in range(0, self.nl, 2): self.attn_fallback(L)
        n = self.P.fix_hazards()
        errs = self.P.check_waits()
        head = open(f'cdna_kernels/{NAME}.s.ref').read().split('; @launch')[0]
        s = head + f'; @launch grid=(256,1,1) block=(512,1,1) lds={LDS_TOTAL}\n'
        s += f'.amdgcn_target "amdgcn-amd-amdhsa--gfx950"\n.text\n.globl {NAME}_kernel\n.p2align 8\n.type {NAME}_kernel,@function\n{NAME}_kernel:\n'
        s += self.P.text().replace('CODE_BYTES', '(L_end - %s_kernel - 1088)' % NAME)
        s += f'''.section .rodata,"a"
.p2align 6
.amdhsa_kernel {NAME}_kernel
  .amdhsa_next_free_vgpr 256
  .amdhsa_next_free_sgpr 102
  .amdhsa_accum_offset 256
  .amdhsa_group_segment_fixed_size 0
  .amdhsa_kernarg_size 80
  .amdhsa_user_sgpr_count 2
  .amdhsa_user_sgpr_kernarg_segment_ptr 1
  .amdhsa_system_sgpr_workgroup_id_x 1
.end_amdhsa_kernel
'''
        return s, n, errs


if __name__ == '__main__':
    import argparse, json
    ap = argparse.ArgumentParser()
    ap.add_argument('-o', default=f'cdna_kernels/{NAME}.s')
    ap.add_argument('--stamps', action='store_true')
    ap.add_argument('--safe', action='store_true')
    ap.add_argument('--cyc', action='store_true')
    ap.add_argument('--opt', nargs='*', default=[])
    ap.add_argument('--noalias', action='store_true')
    ap.add_argument('--nl', type=int, default=4)
    a = ap.parse_args()
    g = Gen(stamps=a.stamps, nlayers=a.nl, force_safe=a.safe, cyc=a.cyc, alias=not a.noalias, opt={k: int(v) for k, v in (x.split('=') for x in a.opt)})
    s, n, errs = g.build()
    open(a.o, 'w').write(s)
    if a.stamps: json.dump(g.stamp_names, open(a.o + '.stamps.json', 'w'))
    print('instructions', sum(1 for x in g.P.L if x.op), 'nops inserted', n, 'lds', LDS_TOTAL)
    for e in errs[:8]: print('WAITCHECK', e)
```

```python
import sys, struct
sys.path.insert(0, 'dev')
from asmlib import *

NAME = 'interleave_layers__sliding_block__linear_kernel_hedgehog__prompt'
def f2u(x): return struct.unpack('<I', struct.pack('<f', x))[0]
LOG2E = 1.4426950408889634

OFF_XFLAG = 0x1000
OFF_OFLAG = 0x9000
OFF_STAMP = 0x30000
OFF_ST = 0x100000
OFF_X = 0x200000
OFF_O = 0xA00000
OFF_KV = 0x1200000
KV_REC = 4480; KV_L = 1024*KV_REC
OFF_KP = 0x1B00000
KP_REC = 2688; KP_Q = 640; KP_Z = 2560; KP_L = 256*KP_REC
WS_USED = 0x2000000
OOB = 0x40000000
TAGC = 0x9E3779B0
SAFE_EXP = 30

LDS_WK = 0; LDS_WV = 32768; LDS_WQ = 65536; LDS_T = 65536; LDS_WO = 98304
LDS_OWN = 131072; OWN_ST = 6144
LDS_CSP = LDS_OWN + 4*OWN_ST
LDS_RSTD = LDS_CSP + 3072; LDS_KVT = LDS_RSTD + 512; LDS_ZT = LDS_KVT + 2048
LDS_FAST = LDS_ZT + 128; LDS_CNT = LDS_FAST + 16; LDS_ONES = LDS_FAST + 64; LDS_TOTAL = LDS_ONES + 1040
NT_LDS = {0: LDS_WQ, 1: LDS_WK, 2: LDS_WV, 'o': LDS_WO}
C_ST, C_XDONE, C_WGO, C_CS, C_Q, C_ATT, C_CSQ, C_WR = 0, 4, 5, 6, 7, 8, 9, 10

sWS, sX0, sWA, sWoA, sWB, sWoB, sPhi, sOut = 4, 8, 12, 16, 20, 24, 28, 32
sR, sC, sW, sMT, sHS, sRT, sQT, sTAG, sFAST, sBUD = 36, 37, 38, 39, 40, 41, 42, 43, 44, 45
sT0, sT1, sT2, sT3 = 46, 47, 48, 49
sLO = 50
sOWNF = 52; sCNT = 53; sSTEP = 54; sLOG2E = 55; sST = 56
sROT = 58; sDM = 59; sH0 = 60
sG0 = 62; sPERM = 63
sM = 64
sOW, sOF, sHB, sHAS, sP2, sC2, sOWN, sKVW, sXW, sSW, sXF, sRB = 72, 73, 74, 75, 76, 77, 78, 79, 80, 81, 82, 83
sLA = 86; sDG = 87; sDL = 88; sLB = 89; sLR = 90; sK0 = 91; sK1 = 92; sK2 = 93; sSEL0 = 94; sSEL1 = 95; sH1 = 96; sH2 = 97; sC1008 = 3
vT0, vLANE, vL16, vL4, vCNT, vTR1, vTR2, vSTAMP = 0, 1, 2, 3, 4, 5, 6, 7
XRES, WPHI = 8, 16
vDW, vDO, vCH, vCS, ONES = 8, 9, 10, 11, 12
vRSTD, vKA, vVA, vPD, vPA, vRA, vRB, vFD = 20, 21, 22, 23, 24, 25, 26, 27
vCK = vPD; XEXT = 28; ACC0 = 32; ACC1 = 48; RING = 64; WEXTQ = 84; WEXTK = 88; WEXTV = 92; VV = 88
STAT = 96; CDIAG = 96; PKV = 112; CFIRST = 112; XF = 128
aS, aO, aE, aQ, aK, aP, aH = 32, 48, 64, 72, 76, 80, 128
vSTV = 64
PHQ = 112
PARK = {1: 128, 2: 160, 0: 192, 'o': 224}
MFMA = 'v_mfma_f32_32x32x16_bf16'
def cho(u): return (u >> 1)*8192 + (u & 1)*1024
SW4 = ((0, 2), (1, 3), (4, 6), (5, 7))


class Gen:
    def __init__(self, stamps=False, nlayers=4, force_safe=False, cyc=False, alias=True, opt=None):
        self.cyc = cyc; self.alias = alias
        self.o = dict(halo_at=35, prio=2, trunc=1, wgo=2, wgon=2, xd=8, od=10, x0d=3, psleep=1, kp_at=0, spec=0, pw=16, tlb=0, touch=1, b0=0, mcs=1, pre=2, pst=0, trk=3, ool=1, at2=1, qrate=4, omul=1, specx=0, lsleep=2, ev=99, st0=3, wo_at=0, pf=1, pfb=0, psp=0, xst=1, bq=0, early=0, p1=0, o3=1, outm=1, kp_step=2, vpre=1)
        self.o.update(opt or {})
        self.P = Prog(); self.stamps = stamps; self.nl = nlayers; self.force_safe = force_safe
        self.stamp_names = {}
        self.vm = Tracker(63); self.lg = Tracker(15); self.stubs = []; self.ool = []

    def stamp(self, idx, name=''):
        if not self.stamps: return
        self.stamp_names[idx] = name
        self.P(f'{"s_memtime" if self.cyc else "s_memrealtime"} {sr(sST,2)}\ns_waitcnt lgkmcnt(0)\nv_writelane_b32 {vr(vSTAMP)}, {sr(sST)}, {idx}')

    def al(self, L): return 0 if self.alias else L

    def mfma(self, d, a, b, c):
        cs = '0' if c is None else vr(c, 16)
        self.P(f'{MFMA} {vr(d,16)}, {vr(a,4)}, {vr(b,4)}, {cs}')

    def srd(self, s, ptr, nbytes):
        self.P(f's_mov_b32 {sr(s)}, {sr(ptr)}\ns_and_b32 {sr(s+1)}, {sr(ptr+1)}, 0xffff\ns_mov_b32 {sr(s+2)}, {nbytes}\ns_mov_b32 {sr(s+3)}, 0x20000')

    def poll(self, soff, masked=False):
        P = self.P; lp = P.newlabel('Lpoll'); dn = P.newlabel('Lpolld')
        P.label(lp)
        P(f'buffer_load_dword {vr(vPD)}, {vr(vPA)}, {sr(sWS,4)}, {sr(soff)} offen sc1\ns_waitcnt vmcnt(0)')
        if masked:
            P(f'v_and_b32 {vr(vT0)}, -16, {vr(vPD)}\nv_cmp_ne_u32 vcc, {sr(sTAG)}, {vr(vT0)}')
        else:
            P(f'v_cmp_ne_u32 vcc, {sr(sTAG)}, {vr(vPD)}')
        P(f's_cbranch_vccz {dn}')
        if self.o['psleep']: P(f's_sleep {self.o["psleep"]}')
        P(f's_sub_u32 {sr(sBUD)}, {sr(sBUD)}, 1\ns_cbranch_scc0 {lp}\ns_mov_b32 {sr(sBUD)}, 0')
        P.label(dn)

    def flag(self, soff, sval, sc1, wait=None):
        P = self.P
        P(f'v_mov_b32 {vr(vPD)}, {sr(sval)}\ns_mov_b64 exec, 1')
        if wait: P(wait)
        P(f'buffer_store_dword {vr(vPD)}, off, {sr(sWS,4)}, {sr(soff)}' + (' sc1' if sc1 else ''))
        P('s_mov_b64 exec, -1')

    def prio_if(self, cmp):
        P = self.P; l = P.newlabel('Lpr')
        b = self.o['prio'] - 1
        P(f's_setprio {b}\n{cmp}\ns_cbranch_scc0 {l}\ns_setprio {b+1}'); P.label(l)

    def lds_signal(self, idx):
        self.P(f'v_mov_b32 {vr(vPD)}, 1\ns_mov_b64 exec, 1\ns_waitcnt lgkmcnt(0)\nds_add_u32 {vr(vCNT)}, {vr(vPD)} offset:{4*idx}\ns_mov_b64 exec, -1')

    def lds_wait(self, idx, val, sleep=0):
        P = self.P; lp = P.newlabel('Llw')
        P.label(lp)
        if sleep: P(f's_sleep {sleep}')
        P(f'ds_read_b32 {vr(vPD)}, {vr(vCNT)} offset:{4*idx}\ns_waitcnt lgkmcnt(0)\nv_cmp_gt_u32 vcc, {val}, {vr(vPD)}\ns_cbranch_vccnz {lp}')

    def lds_peek(self, idx):
        return [('ds', ('cnt', idx), f'ds_read_b32 {vr(vPD)}, {vr(vCNT)} offset:{4*idx}')]

    def lds_check(self, idx, val):
        P = self.P; ok = P.newlabel('Llc')
        P(waitstr(lg=self.lg.need(('cnt', idx))))
        P(f'v_cmp_gt_u32 vcc, {val}, {vr(vPD)}\ns_cbranch_vccz {ok}')
        self.lds_wait(idx, val)
        P.label(ok)

    def two_way(self, emit):
        P = self.P
        if self.force_safe:
            emit(True); return
        ls = P.newlabel('Lsafe'); le = P.newlabel('Lpub')
        P(f's_cmp_eq_u32 {sr(sFAST)}, 0\ns_cbranch_scc1 {ls}')
        emit(False)
        if self.o['ool']:
            self.ool.append((ls, emit, le))
        else:
            P(f's_branch {le}'); P.label(ls)
            emit(True)
        P.label(le)

    def item(self, it):
        P = self.P
        if isinstance(it, str): P(it)
        elif it[0] == 'wvm': P(waitstr(vm=self.vm.need(it[1])))
        elif it[0] == 'wlg': P(waitstr(lg=self.lg.need(it[1])))
        elif it[0] == 'ds': P(it[2]); self.lg.issue(it[1])
        elif it[0] == 'fn': it[1]()

    def checksum(self, dst, src, n):
        ops = [f'v_add3_u32 {vr(dst)}, {sr(sTAG)}, {vr(src)}, {vr(src+1)}']
        for i in range(2, n, 2): ops.append(f'v_add3_u32 {vr(dst)}, {vr(dst)}, {vr(src+i)}, {vr(src+i+1)}')
        return ops

    def retry_tail(self, lp, dn):
        if self.stamps: self.P('s_add_u32 s99, s99, 1')
        self.P(f's_sub_u32 {sr(sBUD)}, {sr(sBUD)}, 1\ns_cbranch_scc0 {lp}\ns_mov_b32 {sr(sBUD)}, 0')
        self.P.label(dn)
        if self.stamps: self.P('s_lshl_b32 s99, s99, 6')

    def prologue(self):
        P = self.P; o = self.o
        vH, vT = 64, 65
        if self.stamps: P('s_memrealtime s[98:99]\ns_memtime s[100:101]')
        elif o.get('spin'): P('s_memrealtime s[98:99]')
        P(f"""s_cmp_ge_u32 s2, 256
s_cbranch_scc1 L_end
s_load_dwordx16 s[64:79], s[0:1], 0
s_load_dwordx4 s[80:83], s[0:1], 64
s_getpc_b64 s[84:85]
v_lshrrev_b32 v1, 6, v0
s_lshr_b32 {sr(sT1)}, s2, 3
v_readfirstlane_b32 {sr(sW)}, v1
v_and_b32 {vr(vLANE)}, 63, v0
v_lshlrev_b32 {vr(vL16)}, 4, {vr(vLANE)}""")
        lc = P.newlabel('Lx')
        P(f"""s_cmp_lt_u32 {sr(sW)}, 6
s_cbranch_scc1 {lc}
s_and_b32 {sr(sT0)}, {sr(sW)}, 1
s_lshl_b32 {sr(sT0)}, {sr(sT0)}, 5
s_add_u32 {sr(sT0)}, {sr(sT0)}, {sr(sT1)}
s_lshl_b32 {sr(sT0)}, {sr(sT0)}, 10
s_cmp_ge_u32 {sr(sT0)}, CODE_BYTES
s_cbranch_scc1 {lc}
v_add_u32 v255, {sr(sT0)}, {vr(vL16)}
global_load_dword v255, v255, s[84:85]""")
        P.label(lc)
        P(f"""s_and_b32 {sr(sT0)}, s2, 7
s_add_u32 {sr(sC)}, {sr(sT1)}, {o.get('cadd', 0)}
s_and_b32 {sr(sC)}, {sr(sC)}, 15
s_lshr_b32 {sr(sT1)}, {sr(sT1)}, 4
s_lshl_b32 {sr(sR)}, {sr(sT0)}, 1
s_add_u32 {sr(sR)}, {sr(sR)}, {sr(sT1)}
s_and_b32 {sr(sMT)}, {sr(sW)}, 3
s_lshr_b32 {sr(sHS)}, {sr(sW)}, 2
s_lshl_b32 {sr(sRT)}, {sr(sR)}, 2
s_add_u32 {sr(sRT)}, {sr(sRT)}, {sr(sMT)}
s_lshr_b32 {sr(sROT)}, {sr(sC)}, 1
s_add_u32 {sr(sROT)}, {sr(sROT)}, {sr(sT0)}
s_lshl_b32 {sr(sT1)}, {sr(sT1)}, 1
s_add_u32 {sr(sROT)}, {sr(sROT)}, {sr(sT1)}
s_lshl_b32 {sr(sT1)}, {sr(sC)}, 2
s_add_u32 {sr(sROT)}, {sr(sROT)}, {sr(sT1)}
s_and_b32 {sr(sROT)}, {sr(sROT)}, 7
v_mov_b32 v8, 0
v_mov_b32 v9, 0
v_mov_b32 v10, 0
v_mov_b32 v11, 0
v_mov_b32 v90, 0
v_mov_b32 {vr(vPA)}, 0
v_mov_b32 v91, 0
v_mov_b32 v93, 0
v_mov_b32 {vr(vCNT)}, {LDS_CNT}
ds_write_b128 {vr(vCNT)}, v[8:11]
ds_write_b128 {vr(vCNT)}, v[8:11] offset:16
ds_write_b128 {vr(vCNT)}, v[8:11] offset:32
v_lshrrev_b32 v28, 3, {vr(vLANE)}
v_lshlrev_b32 v28, 10, v28
v_lshrrev_b32 v29, 4, {vr(vLANE)}
v_xor_b32 v29, v29, {vr(vLANE)}
v_and_b32 v29, 7, v29
v_lshl_add_u32 v28, v29, 4, v28
v_xor_b32 v29, 64, v28
v_add_u32 v30, {2*7168}, v28
v_add_u32 v31, {3*7168}, v29
v_add_u32 v29, 7168, v29
s_lshl_b32 {sr(sLB)}, {sr(sRT)}, 15
s_lshl_b32 {sr(sLR)}, {sr(sROT)}, 7
s_lshl_b32 {sr(sLA)}, {sr(sMT)}, 14
s_add_u32 {sr(sLA)}, {sr(sLA)}, {LDS_WQ}
s_waitcnt lgkmcnt(0)
s_load_dword {sr(sTAG)}, s[82:83], 0""")
        self.srd(sX0, 64, 2097152)
        if o['pf'] >= 3:
            lq = P.newlabel('Lx')
            P(f"""s_cmp_lg_u32 {sr(sW)}, {o['pf'] + 1}
s_cbranch_scc1 {lq}
s_lshr_b32 {sr(sT0)}, s2, 3
s_sub_u32 {sr(sT1)}, {sr(sT0)}, 24
s_cselect_b32 {sr(sT0)}, {sr(sT0)}, {sr(sT1)}
s_cselect_b64 {sr(sT2,2)}, s[66:67], s[68:69]
s_lshl_b32 {sr(sT0)}, {sr(sT0)}, 16
v_lshl_add_u32 v26, {vr(vLANE)}, 10, {sr(sT0)}
global_load_dword v25, v26, {sr(sT2,2)} offset:384""")
            P.label(lq)
        P(f's_cmp_lg_u32 {sr(sHS)}, 0\ns_cbranch_scc1 L_pro2')
        for g in range(2): self.x0_load(g)
        P.label('L_pro2')
        P('s_barrier')
        self.srd(sWS, 82, WS_USED); self.srd(sWA, 66, 1572864); self.srd(sWoA, 68, 524288)
        self.srd(sWB, 72, 1572864); self.srd(sPhi, 74, 16384); self.srd(sWoB, 76, 524288); self.srd(sOut, 78, 2097152)
        P(f"""s_mul_i32 {sr(sT0)}, {sr(sHS)}, 3
s_xor_b32 {sr(sQT)}, {sr(sMT)}, {sr(sT0)}
s_mov_b32 {sr(sBUD)}, 0x100000
s_mov_b32 {sr(sLO)}, 0xffff
s_mov_b32 {sr(sLO+1)}, 0xffff
s_mov_b32 {sr(sH0)}, -1
s_mov_b32 {sr(sH0+1)}, 0
s_mov_b32 {sr(sFAST)}, 0
s_mov_b32 {sr(sDM)}, 0
s_mov_b32 {sr(sLOG2E)}, {f2u(LOG2E):#x}
s_mov_b32 {sr(sPERM)}, 0x07060302
s_mov_b32 {sr(sC1008)}, 1008
s_getreg_b32 {sr(sOWNF)}, hwreg(HW_REG_XCC_ID, 0, 4)
v_lshrrev_b32 {vr(vH)}, 5, {vr(vLANE)}
v_and_b32 {vr(vT)}, 31, {vr(vLANE)}
v_lshlrev_b32 {vr(vL4)}, 2, {vr(vLANE)}
v_mov_b32 {vr(vSTAMP)}, 0
v_bfe_u32 {vr(vTR1)}, {vr(vLANE)}, 2, 2
v_lshl_add_u32 {vr(vTR1)}, {vr(vH)}, 2, {vr(vTR1)}
v_lshlrev_b32 {vr(vTR2)}, 6, {vr(vTR1)}
v_bfe_u32 {vr(vTR1)}, {vr(vLANE)}, 4, 1
v_lshl_add_u32 {vr(vTR2)}, {vr(vTR1)}, 5, {vr(vTR2)}
v_and_b32 {vr(vTR1)}, 3, {vr(vLANE)}
v_lshl_add_u32 {vr(vTR2)}, {vr(vTR1)}, 3, {vr(vTR2)}
v_lshl_add_u32 {vr(vTR1)}, {vr(vH)}, 8, {vr(vTR2)}
v_add_u32 {vr(vTR1)}, {LDS_WQ}, {vr(vTR1)}
v_add_u32 {vr(vTR2)}, {LDS_WO}, {vr(vTR2)}
s_lshl_b32 {sr(sT0)}, {sr(sMT)}, 7
s_add_u32 {sr(sT0)}, {sr(sT0)}, {LDS_RSTD}
v_lshl_add_u32 {vr(vRA)}, {vr(vT)}, 2, {sr(sT0)}
v_lshl_add_u32 {vr(vRB)}, {vr(vH)}, 4, {sr(sT0)}
v_lshlrev_b32 {vr(vFD)}, 2, {vr(vH)}
v_sub_u32 {vr(vFD)}, {vr(vT)}, {vr(vFD)}
v_cvt_f32_i32 {vr(vFD)}, {vr(vFD)}
v_mul_f32 {vr(vFD)}, {f2u(2.0**100):#x}, {vr(vFD)}
s_waitcnt lgkmcnt(0)
s_and_b32 {sr(sTAG)}, {sr(sTAG)}, -16
s_add_u32 {sr(sTAG)}, {sr(sTAG)}, {TAGC:#x}
s_or_b32 {sr(sOWNF)}, {sr(sOWNF)}, {sr(sTAG)}
s_lshl_b32 {sr(sT0)}, {sr(sR)}, 2
s_add_u32 {sr(sT0)}, {sr(sT0)}, {sr(sQT)}
s_lshl_b32 {sr(sT0)}, {sr(sT0)}, 5
s_lshl_b32 {sr(sT1)}, {sr(sC)}, 1
s_add_u32 {sr(sT0)}, {sr(sT0)}, {sr(sT1)}
s_add_u32 {sr(sT0)}, {sr(sT0)}, {sr(sHS)}
s_lshl_b32 {sr(sOW)}, {sr(sT0)}, 10
s_lshl_b32 {sr(sOF)}, {sr(sT0)}, 2
s_lshr_b32 {sr(sT0)}, {sr(sMT)}, 1
s_add_u32 {sr(sT0)}, {sr(sT0)}, {sr(sR)}
s_sub_u32 {sr(sT0)}, {sr(sT0)}, 2
s_cselect_b32 {sr(sHAS)}, 0, 1
s_lshl_b32 {sr(sT0)}, {sr(sT0)}, 1
s_and_b32 {sr(sT1)}, {sr(sMT)}, 1
s_add_u32 {sr(sT0)}, {sr(sT0)}, {sr(sT1)}
s_lshl_b32 {sr(sT0)}, {sr(sT0)}, 5
s_add_u32 {sr(sT0)}, {sr(sT0)}, {sr(sC)}
s_mul_i32 {sr(sHB)}, {sr(sT0)}, {KV_REC}
s_cmp_lt_u32 {sr(sQT)}, 2
s_cselect_b32 {sr(sHAS)}, {sr(sHAS)}, 0
s_cmp_eq_u32 {sr(sR)}, 1
s_cselect_b32 {sr(sT0)}, 4, {sr(sQT)}
s_sub_u32 {sr(sC2)}, 8, {sr(sT0)}
s_lshl_b32 {sr(sP2)}, {sr(sT0)}, 12
s_add_u32 {sr(sP2)}, {sr(sP2)}, {LDS_T}
s_mul_i32 {sr(sOWN)}, {sr(sQT)}, {OWN_ST}
s_add_u32 {sr(sOWN)}, {sr(sOWN)}, {LDS_OWN}
s_lshl_b32 {sr(sT0)}, {sr(sRT)}, 4
s_add_u32 {sr(sT0)}, {sr(sT0)}, {sr(sC)}
s_mul_i32 {sr(sKVW)}, {sr(sT0)}, {KV_REC}
s_lshl_b32 {sr(sXW)}, {sr(sT0)}, 11
s_lshl_b32 {sr(sSW)}, {sr(sT0)}, 8
s_lshl_b32 {sr(sXF)}, {sr(sRT)}, 7
s_lshl_b32 {sr(sRB)}, {sr(sRT)}, 15""")
        self.stamp(0, 'start')
        if self.stamps:
            self.stamp_names[60] = 'entry'; P(f'v_writelane_b32 {vr(vSTAMP)}, s98, 60\ns_mov_b32 s99, 0\ns_mov_b32 s101, 0')
        P(f's_cmp_eq_u32 {sr(sHS)}, 0\ns_cbranch_scc1 L_main_0')
        lh = P.newlabel('Lx'); lt = P.newlabel('Lx')
        P(f"""s_lshl_b32 {sr(sT2)}, {sr(sR)}, 7
s_lshl_b32 {sr(sT3)}, {sr(sC)}, 2
s_add_u32 {sr(sT2)}, {sr(sT2)}, {sr(sT3)}
s_add_u32 {sr(sT2)}, {sr(sT2)}, {OFF_XFLAG}
s_cmp_lg_u32 {sr(sMT)}, 0
s_cbranch_scc1 {lh}""")
        self.flag(sT2, sOWNF, True)
        P.label(lh)
        if o['pf'] in (1, 2): self.coop_prefetch(0, o['pf'])
        P(f"""v_lshrrev_b32 v28, 2, {vr(vLANE)}
v_and_b32 v29, 3, {vr(vLANE)}
v_lshlrev_b32 v29, 4, v29
s_lshl_b32 {sr(sT0)}, {sr(sC)}, 6
v_add_u32 v29, {sr(sT0)}, v29
v_mul_u32_u24 {vr(vDW)}, 3072, v28
v_add_u32 {vr(vDW)}, {vr(vDW)}, v29
v_lshl_add_u32 {vr(vDO)}, v28, 10, v29
s_lshl_b32 {sr(sLA)}, {sr(sMT)}, 11
s_lshr_b32 {sr(sT0)}, {sr(sMT)}, 1
s_add_u32 {sr(sT0)}, {sr(sT0)}, {sr(sROT)}
s_and_b32 {sr(sT0)}, {sr(sT0)}, 7
s_lshl_b32 {sr(sG0)}, {sr(sT0)}, 16
s_and_b32 {sr(sT0)}, {sr(sMT)}, 1
s_lshl_b32 {sr(sT0)}, {sr(sT0)}, 15
s_add_u32 {sr(sG0)}, {sr(sG0)}, {sr(sT0)}
v_add_u32 {vr(vCH)}, {sr(sLA)}, {vr(vL16)}
v_subrev_u32 {vr(vCS)}, {LDS_WO}, {vr(vTR2)}
v_add_u32 {vr(vCS)}, {sr(sLA)}, {vr(vCS)}
v_lshl_add_u32 v31, {vr(vH)}, 8, {vr(vCS)}""")
        for i in range(4): P(f'v_mov_b32 {vr(ONES+i)}, 0x3f803f80')
        P(f'v_lshlrev_b32 v30, 10, {vr(vH)}\nv_add_u32 v30, {LDS_ONES}, v30\nds_write_b128 v30, {vr(ONES,4)}')
        self.csp_waddr(0)
        P(f'v_lshl_add_u32 v30, {vr(vH)}, 9, v28')
        for op in self.mask_ops(0) + self.mask_ops(1): P(op)
        avm = Tracker(63)
        if o['tlb']:
            lw = P.newlabel('Lx')
            P(f"""s_cmp_lg_u32 {sr(sMT)}, 1
s_cbranch_scc1 {lw}
v_and_b32 v68, 15, {vr(vLANE)}
v_bfe_u32 v69, {vr(vLANE)}, 4, 1
s_lshl_b32 {sr(sT0)}, {sr(sR)}, 2
s_sub_u32 {sr(sT0)}, {sr(sT0)}, 8
v_min_u32 v70, 11, v68
v_add_u32 v70, {sr(sT0)}, v70
v_max_i32 v70, 0, v70
v_lshl_add_u32 v70, v70, 4, {sr(sC)}
v_lshl_add_u32 v70, v69, 10, v70
v_mul_u32_u24 v70, {KV_REC}, v70
v_add_u32 v70, {OFF_KV + KV_REC - 128}, v70
s_lshl_b32 {sr(sT0)}, {sr(sC)}, 4
v_add_u32 v68, {sr(sT0)}, v68
v_lshl_add_u32 v68, v69, 8, v68
v_mul_u32_u24 v68, {KP_REC}, v68
v_add_u32 v68, {OFF_KP + KP_REC - 128}, v68
v_cndmask_b32 v68, v68, v70, {sr(sH0,2)}
buffer_load_dword v26, v68, {sr(sWS,4)}, 0 offen""")
            P.label(lw)
        if o['wgo']: self.lds_wait(C_WGO, o['wgon'])
        self.stamp(2, 'x g0 / W go')
        PRE = o['pre']; MCS = o['mcs']; CA = {1: 32, 2: 64, 0: 32}
        for st in range(PRE): self.dma_w(0, (1, 2), (st,)); avm.issue(st, 4)
        qs = [[0, 1], [2, 3]] if PRE == 2 else ([[0, 1], [2, 3], []] if PRE == 3 else [[], [0, 1], [2, 3], []])
        first_q = True
        for st in range(4):
            if st + PRE < 4: self.dma_w(0, (1, 2), (st + PRE,)); avm.issue(st + PRE, 4)
            else:
                q = qs.pop(0)
                if q:
                    if first_q: self.lds_wait(C_XDONE, 4); first_q = False
                    self.dma_w(0, (0,), q); avm.issue('q', 4)
            P(waitstr(vm=avm.need(st)))
            self.stamp((15, 23, 29, 1)[st], ('x g3 / W st0', 'x g5 / W st1', 'S0 / W st2', 'x0 / W st3')[st])
            self.lds_signal(C_ST + st)
            ch = [(nt, 2*st + e) for nt in (1, 2) for e in range(2)]
            for nt, u in ch:
                r_ = PARK[nt] + 4*u; of = NT_LDS[nt] + cho(u)
                P(f'ds_read_b64_tr_b16 {vr(r_,2)}, v31 offset:{of}\nds_read_b64_tr_b16 {vr(r_+2,2)}, v31 offset:{of+256}')
            for k, (nt, u) in enumerate(ch):
                P(f's_waitcnt lgkmcnt({6-2*k})')
                self.mfma(CA[nt], ONES, PARK[nt] + 4*u, None if u == 0 else CA[nt])
        P(f'ds_write_b32 v28, {vr(CA[1])} offset:512\nds_write_b32 v28, {vr(CA[2])} offset:1024')
        self.lds_signal(C_CS)
        self.stamp(14, 'S3 / W done')
        if o['wo_at'] == 0: self.dma_w(0, ('o',))
        P(f'v_add_u32 v31, {LDS_WQ}, v31\ns_waitcnt vmcnt({8 if o["wo_at"] == 0 else 0})')
        self.lds_signal(C_Q)
        self.stamp(4, 'Q done')
        if o['wo_at'] == 1: self.dma_w(0, ('o',))
        for u0 in (0, 4):
            for u in range(u0, u0 + 4):
                r_ = PARK[0] + 4*u
                P(f'ds_read_b64_tr_b16 {vr(r_,2)}, v31 offset:{cho(u)}\nds_read_b64_tr_b16 {vr(r_+2,2)}, v31 offset:{cho(u)+256}')
            for k, u in enumerate(range(u0, u0 + 4)):
                P(f's_waitcnt lgkmcnt({6-2*k})')
                self.mfma(CA[0], ONES, PARK[0] + 4*u, None if u == 0 else CA[0])
        P(f'ds_write_b32 v28, {vr(CA[0])}')
        self.lds_signal(C_CSQ)
        P(f"""s_cmp_lg_u32 {sr(sMT)}, 2
s_cbranch_scc1 {lt}
v_lshlrev_b32 v6, 7, {vr(vLANE)}
s_mul_i32 {sr(sT0)}, s2, {48*128}
buffer_load_dword v26, v6, {sr(sWB,4)}, {sr(sT0)} offen
v_and_b32 v6, 0x780, v6
s_lshl_b32 {sr(sT0)}, s2, 11
buffer_load_dword v26, v6, {sr(sWoB,4)}, {sr(sT0)} offen""")
        P.label(lt)
        if o['pfb'] == 1: self.coop_prefetch(1, 1)
        P('s_branch L_aux_0')

    def coop_prefetch(self, typ, mode):
        P = self.P; l1 = P.newlabel('Lx'); l2 = P.newlabel('Lx')
        if mode == 1: P(f's_cmp_lg_u32 {sr(sMT)}, 1\ns_cbranch_scc1 {l2}')
        offs = (128,) if mode == 1 else (128, 0)
        P(f"""v_lshlrev_b32 v5, 10, {vr(vLANE)}
s_lshr_b32 {sr(sT0)}, s2, 3
s_lshl_b32 {sr(sT0)}, {sr(sT0)}, 16
s_lshl_b32 {sr(sT1)}, {sr(sMT)}, 8
s_add_u32 {sr(sT0)}, {sr(sT0)}, {sr(sT1)}
s_cmp_ge_u32 s2, 192
s_cbranch_scc1 {l1}""")
        for of in offs: P(f'buffer_load_dword v26, v5, {sr((sWA, sWB)[typ],4)}, {sr(sT0)} offen offset:{of}')
        P(f's_branch {l2}'); P.label(l1)
        P(f's_sub_u32 {sr(sT0)}, {sr(sT0)}, {24 << 16}')
        for of in offs: P(f'buffer_load_dword v26, v5, {sr((sWoA, sWoB)[typ],4)}, {sr(sT0)} offen offset:{of}')
        P.label(l2)

    def valu_sum(self, frag, acc):
        for i in range(4):
            self.P(f'v_lshlrev_b32 v68, 16, {vr(frag+i)}\nv_and_b32 v69, 0xffff0000, {vr(frag+i)}\nv_add_f32 {vr(acc)}, {vr(acc)}, v68\nv_add_f32 {vr(acc+1)}, {vr(acc+1)}, v69')

    def x0_load(self, g):
        P = self.P
        P(f's_add_u32 m0, {sr(sLA)}, {(g%4)*4096}\ns_add_u32 {sr(sT3)}, {sr(sLB)}, {sr(sLR)}')
        for j in range(4): P(f'buffer_load_dwordx4 {vr(28+j)}, {sr(sX0,4)}, {sr(sT3)} offen offset:{j*1024} lds')
        P(f's_add_u32 {sr(sLR)}, {sr(sLR)}, 128\ns_and_b32 {sr(sLR)}, {sr(sLR)}, 0x3ff')
        self.vm.issue(('x', g), 4)

    def code_prefetch(self, label):
        P = self.P; lc = P.newlabel('Lx')
        P(f"""s_cmp_lg_u32 {sr(sMT)}, 3
s_cbranch_scc1 {lc}
s_lshl_b32 {sr(sT0)}, {sr(sC)}, 10
s_add_u32 {sr(sT0)}, {sr(sT0)}, ({label} - {NAME}_kernel)
s_cmp_ge_u32 {sr(sT0)}, CODE_BYTES
s_cbranch_scc1 {lc}
v_add_u32 v26, {sr(sT0)}, {vr(vL16)}
global_load_dword v26, v26, s[84:85]""")
        P.label(lc)

    def wphi_load(self, B=96):
        P = self.P; a, t = vr(B + 8), vr(B + 9)
        P(f"""s_lshl_b32 {sr(sT0)}, {sr(sC)}, 1
s_add_u32 {sr(sT0)}, {sr(sT0)}, {sr(sHS)}
s_lshl_b32 {sr(sT0)}, {sr(sT0)}, 9
v_bfe_u32 {a}, {vr(vLANE)}, 3, 2
v_and_b32 {t}, 3, {vr(vLANE)}
v_lshl_add_u32 {a}, {a}, 2, {t}
v_lshlrev_b32 {a}, 1, {a}
v_lshrrev_b32 {t}, 5, {vr(vLANE)}
v_lshl_add_u32 {a}, {t}, 7, {a}""")
        for j in range(8):
            d = (j if j < 4 else 8 + j - 4)
            P(f'buffer_load_ushort {vr(B+j)}, {a}, {sr(sPhi,4)}, {sr(sT0)} offen offset:{d*32}')

    def wphi_pack(self, B=96):
        ops = [f'v_lshl_or_b32 {vr(WPHI+p)}, {vr(B+2*p+1)}, 16, {vr(B+2*p)}' for p in range(4)]
        ops += [f'v_bfe_i32 {vr(B)}, {vr(vLANE)}, 2, 1', f'v_and_b32 {vr(B)}, 0x80008000, {vr(B)}']
        return ops + [f'v_xor_b32 {vr(WPHI+p)}, {vr(B)}, {vr(WPHI+p)}' for p in range(4)]

    def dma_w(self, typ, nts, stages=range(4)):
        P = self.P; wo = nts == ('o',)
        srd = (sWoA, sWoB)[typ] if wo else (sWA, sWB)[typ]
        for st in stages:
            P(f's_add_u32 {sr(sT0)}, {sr(sG0)}, {st*0x20000}\ns_and_b32 {sr(sT0)}, {sr(sT0)}, 0x7ffff')
            if not wo: P(f's_mul_i32 {sr(sT0)}, {sr(sT0)}, 3')
            for e in range(2):
                for nt in nts:
                    P(f's_add_u32 m0, {sr(sLA)}, {NT_LDS[nt] + cho(2*st + e)}')
                    P(f's_add_u32 {sr(sT1)}, {sr(sT0)}, {e*16384 if wo else e*49152 + nt*1024}')
                    P(f'buffer_load_dwordx4 {vr(vDO if wo else vDW)}, {sr(srd,4)}, {sr(sT1)} offen lds')

    def csp_waddr(self, typ):
        self.P(f"""s_lshl_b32 {sr(sT0)}, {sr(sMT)}, 2
s_add_u32 {sr(sT0)}, {sr(sT0)}, {LDS_CSP + typ*1536}
v_and_b32 v28, 31, {vr(vLANE)}
v_lshl_add_u32 v28, v28, 4, {sr(sT0)}""")

    def chunk_addr(self, region):
        if region < 65536: return vCH, region
        self.P(f'v_add_u32 {vr(vT0)}, {region}, {vr(vCH)}'); return vT0, 0

    def lds_to_regs(self, region, dst, tr=False):
        if tr:
            self.P(f'v_add_u32 v29, {region}, {vr(vCS)}')
            for u in range(8): self.P(f'ds_read_b64_tr_b16 {vr(dst+4*u,2)}, v29 offset:{cho(u)}\nds_read_b64_tr_b16 {vr(dst+4*u+2,2)}, v29 offset:{cho(u)+512}')
            return
        a, o = self.chunk_addr(region)
        for u in range(8): self.P(f'ds_read_b128 {vr(dst+4*u,4)}, {vr(a)} offset:{o+cho(u)}')

    def regs_to_lds(self, region, src):
        a, o = self.chunk_addr(region)
        for u in range(8): self.P(f'ds_write_b128 {vr(a)}, {vr(src+4*u,4)} offset:{o+cho(u)}')

    def relayout(self, typ, nts, tmp=64, ntmp=8):
        P = self.P
        if nts != ('o',): self.csp_waddr(typ)
        for k, nt in enumerate(nts):
            region = NT_LDS[nt]
            P(f'v_add_u32 v29, {region}, {vr(vCS)}')
            acc = ACC0 if k % 2 == 0 else ACC1
            lg = Tracker(15)
            reg = lambda u: tmp + 4*(u % ntmp)
            for u0 in range(0, 8, 4):
                for u in range(u0, u0 + 4):
                    P(f'ds_read_b64_tr_b16 {vr(reg(u),2)}, v29 offset:{cho(u)}\nds_read_b64_tr_b16 {vr(reg(u)+2,2)}, v29 offset:{cho(u)+512}'); lg.issue(u, 2)
                for u in range(u0, u0 + 4):
                    P(waitstr(lg=lg.need(u)))
                    if nt != 'o': self.mfma(acc, ONES, reg(u), None if u == 0 else acc)
        for k, nt in enumerate(nts):
            if nt != 'o': P(f'ds_write_b32 v28, {vr(ACC0 if k % 2 == 0 else ACC1)} offset:{nt*512}')
        P('s_waitcnt lgkmcnt(0)')

    def swap_region(self, nt, save, tr=False):
        P = self.P
        if save:
            self.lds_to_regs(NT_LDS[nt], 32, tr); P('s_waitcnt lgkmcnt(0)')
        self.regs_to_lds(NT_LDS[nt], PARK[nt]); P('s_waitcnt lgkmcnt(0)')
        if save:
            for i in range(32): P(f'v_mov_b32 {vr(PARK[nt]+i)}, {vr(32+i)}')

    def unpack_res(self):
        for p in range(8):
            self.P(f'v_lshlrev_b32 {vr(ACC0+2*p)}, 16, {vr(XRES+p)}\nv_and_b32 {vr(ACC0+2*p+1)}, 0xffff0000, {vr(XRES+p)}')

    def rowmajor_addr(self, dst, tmp, sdst):
        self.P(f"""v_and_b32 {vr(dst)}, 31, {vr(vLANE)}
v_lshlrev_b32 {vr(dst)}, 10, {vr(dst)}
v_lshrrev_b32 {vr(tmp)}, 5, {vr(vLANE)}
v_lshl_add_u32 {vr(dst)}, {vr(tmp)}, 4, {vr(dst)}
s_lshl_b32 {sr(sdst)}, {sr(sC)}, 6
s_add_u32 {sr(sdst)}, {sr(sdst)}, {sr(sRB)}""")

    def publish_x_addr(self, L):
        if L == self.nl: return self.rowmajor_addr(vKA, vVA, sK0)
        self.P(f's_add_u32 {sr(sK1)}, {sr(sSW)}, {OFF_ST}')
        if L == 1: self.P(f's_lshl_b32 {sr(sK2)}, {sr(sC)}, 2\ns_add_u32 {sr(sK2)}, {sr(sK2)}, {sr(sXF)}\ns_add_u32 {sr(sK2)}, {sr(sK2)}, {OFF_XFLAG + 0x2000}')

    def set_par(self, reg, par):
        return f'v_or_b32 {vr(reg)}, 1, {vr(reg)}' if par else f'v_and_b32 {vr(reg)}, -2, {vr(reg)}'

    def acc_par(self, a, b, par):
        return f'v_bitop3_b32 {vr(vPD)}, {vr(vPD)}, {vr(a)}, {vr(b)} bitop3:0x80' if par else f'v_or3_b32 {vr(vPD)}, {vr(vPD)}, {vr(a)}, {vr(b)}'

    def test_par(self, par):
        return f'v_and_b32 {vr(vCK)}, 1, {vr(vPD)}\nv_cmp_ne_u32 vcc, {par}, {vr(vCK)}'

    def first_hop(self, base_off, foff, mask):
        self.P(f'v_and_b32 {vr(vPA)}, {mask}, {vr(vL4)}\ns_add_u32 {sr(sT2)}, {sr(sXF)}, {foff}')
        self.frag_setup(base_off)
        self.poll(sT2)
        return 0

    def probe(self, srd, base_off, par, nwin):
        P = self.P; lp = P.newlabel('Lprobe'); dn = P.newlabel('Lprobed'); S = min(self.o['specx' if srd == sOut else 'spec'], nwin)
        self.frag_setup(base_off)
        if self.o['pst'] and srd == sOut: P(f'v_lshrrev_b32 {vr(STAT+15)}, 2, {vr(vLANE)}\nv_lshlrev_b32 {vr(STAT+15)}, 8, {vr(STAT+15)}')
        P.label(lp)
        if self.o['pst'] and srd == sOut:
            P(f'buffer_load_dword {vr(vPD)}, {vr(STAT+15)}, {sr(sWS,4)}, {sr(sT1)} offen offset:252 sc1')
        elif self.o['pw'] == 16 and srd == sOut:
            P(f'v_or_b32 {vr(vPD)}, 1024, {vr(vPA)}\nbuffer_load_dword {vr(vPD)}, {vr(vPD)}, {sr(srd,4)}, {sr(sLB)} offen sc1')
        else: P(f'buffer_load_dword {vr(vPD)}, {vr(vPA)}, {sr(srd,4)}, {sr(sLB)} offen sc1')
        for ks in range(S): self.frag_load(srd, ks)
        P(f's_waitcnt vmcnt({S})')
        P(self.test_par(par))
        P(f's_cbranch_vccz {dn}')
        if self.o['psleep']: P(f's_sleep {self.o["psleep"]}')
        if S: self.frag_setup(None)
        P(f's_sub_u32 {sr(sBUD)}, {sr(sBUD)}, 1\ns_cbranch_scc0 {lp}\ns_mov_b32 {sr(sBUD)}, 0')
        P.label(dn)
        return S

    def verify(self, par, redo):
        P = self.P; st = P.newlabel('Lver'); ct = P.newlabel('Lverc')
        P(self.test_par(par)); P(f's_cbranch_vccnz {st}')
        P.label(ct)
        self.stubs.append((st, redo, ct))

    def emit_stubs(self):
        P = self.P
        for ls, emit, le in self.ool:
            P.label(ls); emit(True); P(f's_branch {le}')
        for k, (st, redo, ct) in enumerate(self.stubs):
            P.label(st)
            if self.stamps: P(f's_add_u32 s101, s101, {1 << (3*k)}')
            P(f's_waitcnt vmcnt(0) lgkmcnt(0)\ns_sub_u32 {sr(sBUD)}, {sr(sBUD)}, 1\ns_cbranch_scc0 {redo}\ns_mov_b32 {sr(sBUD)}, 0\ns_branch {ct}')

    def probe_addr(self):
        if self.o['pw'] == 64:
            return f"""v_lshrrev_b32 {vr(vPA)}, 1, {vr(vLANE)}
v_lshlrev_b32 {vr(vPA)}, 10, {vr(vPA)}
v_and_b32 {vr(vCK)}, 1, {vr(vLANE)}
v_mad_u32_u24 {vr(vPA)}, {vr(vCK)}, {sr(sC1008)}, {vr(vPA)}"""
        if self.o['psp']:
            return f"""v_lshrrev_b32 {vr(vPA)}, 2, {vr(vLANE)}
v_add_u32 {vr(vPA)}, {sr(sC)}, {vr(vPA)}
v_and_b32 {vr(vPA)}, 7, {vr(vPA)}
v_lshlrev_b32 {vr(vPA)}, 7, {vr(vPA)}
v_lshrrev_b32 {vr(vCK)}, 1, {vr(vLANE)}
v_lshl_add_u32 {vr(vPA)}, {vr(vCK)}, 10, {vr(vPA)}"""
        return f'v_lshrrev_b32 {vr(vPA)}, 1, {vr(vLANE)}\nv_lshl_add_u32 {vr(vPA)}, {vr(vPA)}, 10, {sr(sC1008)}'

    def publish_x(self, L):
        P = self.P
        natural = (L % 2 == 0); T = 76; par = L & 1
        for p in range(8): P(f'v_cvt_pk_bf16_f32 {vr(T+p)}, {vr(ACC0+2*p)}, {vr(ACC0+2*p+1)}')
        if natural:
            for a, b in SW4: P(f'v_permlane32_swap_b32 {vr(T+a)}, {vr(T+b)}')
        if L == self.nl:
            m = ['', ' nt', ' sc1'][self.o.get('outm', 0)]
            P(f'buffer_store_dwordx4 {vr(T,4)}, {vr(vKA)}, {sr(sOut,4)}, {sr(sK0)} offen{m}\nbuffer_store_dwordx4 {vr(T+4,4)}, {vr(vKA)}, {sr(sOut,4)}, {sr(sK0)} offen offset:32{m}')
            return
        P(self.set_par(T, par)); P(self.set_par(T + 4, par))
        def emit(sc1):
            m = ' sc1' if sc1 else (' nt' if self.o.get('nta') else '')
            P(f'buffer_store_dwordx4 {vr(T,4)}, {vr(vL16)}, {sr(sOut,4)}, {sr(sXW)} offen{m}')
            P(f'buffer_store_dwordx4 {vr(T+4,4)}, {vr(vL16)}, {sr(sOut,4)}, {sr(sXW)} offen offset:1024{m}')
            for k in range(4):
                P(f'v_pk_add_f32 {vr(64+2*k,2)}, {vr(ACC0+4*k,2)}, {vr(ACC0+4*k+2,2)}')
            P(f'v_pk_mul_f32 v[72:73], {vr(ACC0,2)}, {vr(ACC0,2)}\nv_pk_mul_f32 v[74:75], {vr(ACC0+2,2)}, {vr(ACC0+2,2)}')
            P('v_pk_add_f32 v[64:65], v[64:65], v[66:67]\nv_pk_add_f32 v[68:69], v[68:69], v[70:71]')
            for k in range(2, 8): P(f'v_pk_fma_f32 {vr(72+2*(k&1),2)}, {vr(ACC0+2*k,2)}, {vr(ACC0+2*k,2)}, {vr(72+2*(k&1),2)}')
            P('v_pk_add_f32 v[64:65], v[64:65], v[68:69]\nv_pk_add_f32 v[72:73], v[72:73], v[74:75]')
            P('v_add_f32 v64, v64, v65\nv_add_f32 v66, v72, v73\nv_permlane32_swap_b32 v64, v66\nv_add_f32 v64, v64, v66')
            P(self.set_par(64, par))
            P(f'buffer_store_dword v64, {vr(vL4)}, {sr(sWS,4)}, {sr(sK1)} offen{m}')
            if L == 1: self.flag(sK2, sTAG, sc1, wait='s_waitcnt vmcnt(0)')
        self.two_way(emit)
        for p in range(8): P(f'v_cvt_pk_bf16_f32 {vr(XRES+p)}, {vr(ACC0+2*p)}, {vr(ACC0+2*p+1)}')

    def frag_setup(self, base_off):
        if base_off is not None: self.P(f's_add_u32 {sr(sLB)}, {sr(sRB)}, {base_off}')
        self.P(f's_lshl_b32 {sr(sLR)}, {sr(sROT)}, 12\ns_add_u32 {sr(sT3)}, {sr(sLB)}, {sr(sLR)}')

    def frag_load(self, srd, ks, ring=32):
        P = self.P
        P(f'buffer_load_dwordx4 {vr(XF+4*(ks % ring),4)}, {vr(vL16)}, {sr(srd,4)}, {sr(sT3)} offen offset:{(ks&3)*1024} sc1')
        if ks < 28:
            if ks & 3 == 0: P(f's_add_u32 {sr(sLR)}, {sr(sLR)}, 4096')
            if ks & 3 == 1: P(f's_and_b32 {sr(sLR)}, {sr(sLR)}, 0x7fff')
            if ks & 3 == 3: P(f's_add_u32 {sr(sT3)}, {sr(sLB)}, {sr(sLR)}')
        self.vm.issue(('x', ks))

    def mask_ops(self, part, lean=False):
        ops = []; C = CDIAG if part == 0 else CFIRST; sg = -1.0 if part == 0 else 1.0
        if part == 0 and not lean:
            ops.append(f'v_mov_b32 {vr(VV)}, 0x3f803f80')
            for i in range(1, 8): ops.append(f'v_mov_b32 {vr(VV+i)}, {vr(VV)}')
        for i in range(16):
            ci = 8*(i//4) + i % 4
            if part == 0: ops.append(f'v_subrev_f32 {vr(C+i)}, {f2u(ci*2.0**100):#x}, {vr(vFD)}')
            else: ops.append(f'v_sub_f32 {vr(C+i)}, {f2u((ci-1)*2.0**100):#x}, {vr(vFD)}')
        for i in range(16): ops.append(f'v_min_f32 {vr(C+i)}, 0, {vr(C+i)}')
        if part == 0 and not lean:
            for i in range(16): ops.append(f'v_mov_b32 {vr(aO+i)}, 0')
        return ops

    def stats_final(self, typ):
        a, b = STAT, STAT + 1
        it = f"""v_mov_b32 {vr(b)}, {vr(a)}
v_mov_b32 {vr(XEXT+2)}, 0
v_mov_b32 {vr(XEXT+3)}, 0
v_permlane32_swap_b32 {vr(a)}, {vr(b)}
v_mul_f32 {vr(a)}, {f2u(1/512):#x}, {vr(a)}
v_mul_f32 {vr(b)}, {f2u(1/512):#x}, {vr(b)}
v_fma_f32 {vr(b)}, -{vr(a)}, {vr(a)}, {vr(b)}
v_max_f32 {vr(b)}, 0, {vr(b)}
v_add_f32 {vr(b)}, {f2u(1e-5):#x}, {vr(b)}
v_rsq_f32 {vr(vRSTD)}, {vr(b)}
v_cndmask_b32 {vr(a)}, 0, {vr(a)}, {sr(sH0,2)}
v_and_b32 {vr(a+2)}, 0xffff0000, {vr(a)}
v_sub_f32 {vr(a+3)}, {vr(a)}, {vr(a+2)}
v_cvt_pk_bf16_f32 {vr(XEXT)}, -{vr(a+2)}, -{vr(a+2)}
v_cvt_pk_bf16_f32 {vr(XEXT+1)}, -{vr(a+3)}, 0""".split('\n')
        it.append(('ds', 'rw', f'ds_write_b32 {vr(vRA)}, {vr(vRSTD)}'))
        for q in range(4): it.append(('ds', 'rt', f'ds_read_b128 {vr(STAT+4*q,4)}, {vr(vRB)} offset:{q*32}'))
        if typ == 1: it.append(f'v_mul_f32 {vr(vRSTD)}, {sr(sLOG2E)}, {vr(vRSTD)}')
        return it

    def wext_items(self, w, tag):
        return [('wlg', tag)] + f"""v_add_f32 {vr(w)}, {vr(w)}, {vr(w+1)}
v_add_f32 {vr(w+2)}, {vr(w+2)}, {vr(w+3)}
v_add_f32 {vr(w)}, {vr(w)}, {vr(w+2)}
v_and_b32 {vr(w+2)}, 0xffff0000, {vr(w)}
v_sub_f32 {vr(w+3)}, {vr(w)}, {vr(w+2)}
v_cvt_pk_bf16_f32 {vr(w)}, {vr(w+2)}, {vr(w+3)}
v_cvt_pk_bf16_f32 {vr(w+1)}, {vr(w+2)}, 0
v_mov_b32 {vr(w+2)}, 0
v_mov_b32 {vr(w+3)}, 0""".split('\n')

    def csp_addr(self, typ):
        self.P(f'v_and_b32 {vr(vT0)}, 0x1f0, {vr(vL16)}\nv_add_u32 {vr(vT0)}, {LDS_CSP + typ*1536}, {vr(vT0)}')

    def phi_addr(self):
        return f"""v_sub_u32 {vr(vVA)}, {vr(vKA)}, {vr(vL16)}
v_and_b32 {vr(vPD)}, 31, {vr(vLANE)}
v_lshl_add_u32 {vr(vVA)}, {vr(vPD)}, 5, {vr(vVA)}
v_lshrrev_b32 {vr(vPD)}, 5, {vr(vLANE)}
v_lshl_add_u32 {vr(vVA)}, {vr(vPD)}, 4, {vr(vVA)}""".split('\n')

    def main_kv(self, L):
        P = self.P; typ = L % 2; o = self.o; XD = o['xd']
        vm, lg = self.vm, self.lg
        NR = 3; KVB = vL16 if L > 1 else PKV + 15
        if L == 1: P(f'v_subrev_u32 {vr(vTR1)}, {LDS_WO - LDS_WQ}, {vr(vTR2)}')
        if L == 2: P(f'v_add_u32 {vr(vTR1)}, {LDS_WQ}, {vr(vL16)}\nv_add_u32 {vr(vTR2)}, {LDS_WO}, {vr(vL16)}')
        if L < 2: P(f'v_subrev_u32 {vr(KVB)}, {LDS_WQ}, {vr(vTR1)}')
        def rdk(ks):
            self.w_read(RING + 8*(ks % NR), KVB, LDS_WK + ks*1024, L, ('k', ks))
        def rdv(ks):
            self.w_read(RING + 8*(ks % NR) + 4, KVB, LDS_WV + ks*1024, L, ('v', ks))
        csrd = [('ds', 'cs', f'ds_read_b128 {vr(WEXTK,4)}, {vr(vT0)} offset:512'), ('ds', 'cs', f'ds_read_b128 {vr(WEXTV,4)}, {vr(vT0)} offset:1024')]
        wext = self.wext_items(WEXTK, 'cs') + self.wext_items(WEXTV, 'cs')
        addr = [f'v_add_u32 {vr(vKA)}, {sr(sOWN)}, {vr(vL16)}']
        if typ == 0:
            La = L // 2
            addr += [f's_add_u32 {sr(sK0)}, {sr(sKVW)}, {OFF_KV + La*KV_L}', f's_add_u32 {sr(sK2)}, {sr(sK0)}, 4096']
        else: addr += self.phi_addr()
        extras = []
        def pop(n):
            for _ in range(n):
                if extras: self.item(extras.pop(0))
        def kstep(ks, pre=None):
            b = RING + 8*(ks % NR)
            P(waitstr(vm=vm.need(('x', ks)) if L > 0 else None, lg=lg.need(('k', ks))))
            self.mfma(ACC0, b, XF + 4*ks, None if ks == 0 else ACC0)
            if pre: pre()
            if ks + NR < 32: rdk(ks + NR)
            if L > 1 and ks & 1: P(self.acc_par(XF + 4*ks - 4, XF + 4*ks, L & 1))
            if L > 0 and ks + XD < 32: self.frag_load(sOut, ks + XD); pop(1)
            else: pop(3)
            P(waitstr(lg=lg.need(('v', ks))))
            self.mfma(ACC1, XF + 4*ks, b + 4, None if ks == 0 else ACC1)
            if ks + NR < 32: rdv(ks + NR)
            if L > 0 and o['st0'] <= ks < o['st0'] + 8:
                for i in range(2*(ks-o['st0']), 2*(ks-o['st0']) + 2):
                    P(f'buffer_load_dword {vr(STAT+i)}, {vr(vL4)}, {sr(sWS,4)}, {sr(sT1)} offen offset:{i*256} sc1'); vm.issue('st')
            pop(3)
        if L > 0 and not o['b0']:
            ok = P.newlabel('Lwr')
            P(f'v_cmp_gt_u32 vcc, {4*L}, {vr(vT0)}\ns_cbranch_vccz {ok}')
            self.lds_wait(C_WR, 4*L)
            P.label(ok)
            if L == 1 and o['bq']:
                P(f's_lshl_b32 {sr(sT0)}, {sr(sMT)}, 11\ns_add_u32 {sr(sT0)}, {sr(sT0)}, {LDS_WQ}\nv_add_u32 {vr(PKV)}, {sr(sT0)}, {vr(vL16)}')
                bqw = [('ds', 'bq', f'ds_write_b128 {vr(PKV)}, {vr(224+4*u,4)} offset:{cho(u)}') for u in range(8)]
                bqw.append(('ds', 'bq', f'v_mov_b32 {vr(vPD)}, 1\ns_mov_b64 exec, 1\nds_add_u32 {vr(vCNT)}, {vr(vPD)} offset:{4*C_Q}\ns_mov_b64 exec, -1'))
        self.csp_addr(typ)
        if L == 0:
            AD = WEXTV; X0D = o['x0d']
            P(f"""v_bfe_u32 {vr(AD)}, {vr(vLANE)}, 1, 3
v_xor_b32 {vr(AD)}, {vr(AD)}, v64
v_lshlrev_b32 {vr(AD)}, 4, {vr(AD)}
v_lshl_add_u32 {vr(AD)}, v65, 7, {vr(AD)}
v_add_u32 {vr(AD)}, {sr(sLA)}, {vr(AD)}
v_xor_b32 {vr(AD+1)}, 32, {vr(AD)}
v_xor_b32 {vr(AD+2)}, 64, {vr(AD)}
v_xor_b32 {vr(AD+3)}, 96, {vr(AD)}
s_mov_b32 {sr(sSEL0)}, 0x3f803f80""")
            for i in range(4): P(f'v_mov_b32 {vr(STAT+i)}, 0')
            for it in addr: self.item(it)
            for g in range(2, X0D): self.x0_load(g)
            if o['xst']:
                P(f"""s_and_b32 {sr(sT0)}, {sr(sC)}, 1
s_lshl_b32 {sr(sT0)}, {sr(sT0)}, 6
v_xor_b32 {vr(PKV)}, {sr(sT0)}, {vr(AD)}
v_xor_b32 {vr(PKV+1)}, 32, {vr(PKV)}
s_lshr_b32 {sr(sT2)}, {sr(sC)}, 1
s_sub_u32 {sr(sT2)}, {sr(sT2)}, {sr(sROT)}
s_and_b32 {sr(sT2)}, {sr(sT2)}, 7""")
            def dots(g):
                for i in range(16):
                    r_ = XF + 16*g + i
                    P(f'v_dot2_f32_bf16 {vr(STAT+(i&1))}, {vr(r_)}, {sr(sSEL0)}, {vr(STAT+(i&1))}\nv_dot2_f32_bf16 {vr(STAT+2+(i&1))}, {vr(r_)}, {vr(r_)}, {vr(STAT+2+(i&1))}')
            for g in range(8):
                if o['xst']: P(f's_cmp_lg_u32 {sr(sT2)}, {g}')
                P(waitstr(vm=vm.need(('x', g))))
                if o['xst']:
                    lx = P.newlabel('Lx')
                    P(f's_cbranch_scc1 {lx}\nds_read_b128 {vr(XRES,4)}, {vr(PKV)} offset:{(g%4)*4096}\nds_read_b128 {vr(XRES+4,4)}, {vr(PKV+1)} offset:{(g%4)*4096}')
                    P.label(lx)
                for s_ in range(4): P(f'ds_read_b128 {vr(XF+16*g+4*s_,4)}, {vr(AD+s_)} offset:{(g%4)*4096}')
                if g: P('s_waitcnt lgkmcnt(4)')
                if g + X0D < 8: self.x0_load(g + X0D)
                if g: dots(g - 1)
                if g == o['wgo'] - 1: self.lds_signal(C_WGO)
                if g in (0, 3, 5): self.stamp({0: 2, 3: 15, 5: 23}[g], {0: 'x g0 / W go', 3: 'x g3 / W st0', 5: 'x g5 / W st1'}[g])
            self.lds_signal(C_XDONE)
            lg.reset()
            for it in self.lds_peek(C_ST): self.item(it)
            dots(7)
            self.stamp(1, 'x0 / W st3')
            self.lds_check(C_ST, 4)
            self.stamp(29, 'S0 / W st2')
            for ks in range(NR): rdk(ks); rdv(ks)
            P(f'v_add_f32 {vr(STAT)}, {vr(STAT)}, {vr(STAT+1)}\nv_add_f32 {vr(STAT+2)}, {vr(STAT+2)}, {vr(STAT+3)}')
            P(f'v_permlane32_swap_b32 {vr(STAT)}, {vr(STAT+2)}\nv_add_f32 {vr(STAT)}, {vr(STAT)}, {vr(STAT+2)}')
            extras += self.stats_final(typ)
            pop(10)
            for ks in range(32):
                pre = None
                st = ks // 8 + 1
                if ks % 8 == 2: extras[0:0] = self.lds_peek(C_ST + st if st < 4 else C_CS)
                if ks % 8 == 5 and st < 4: pre = lambda: self.lds_check(C_ST + st, 4)
                if ks == 28:
                    pre = lambda: self.lds_check(C_CS, 4)
                    extras += csrd + self.lds_peek(C_Q) + ['s_nop 0']*3 + wext
                kstep(ks, pre)
            pop(100)
        else:
            vm.reset(); lg.reset()
            redo = P.newlabel('Lkvredo')
            P(f's_lshr_b32 {sr(sT1)}, {sr(sRB)}, 3\ns_add_u32 {sr(sT1)}, {sr(sT1)}, {OFF_ST}')
            for it in addr: self.item(it)
            if o['b0']: P('s_barrier')
            self.stamp(14 + L*14 if L < 3 else 57, f'L{L} B0')
            P.label(redo)
            for it in csrd: self.item(it)
            for ks in range(NR): rdk(ks); rdv(ks)
            extras += wext
            S = self.probe(sOut, 0, L & 1, XD) if L > 1 else self.first_hop(0, OFF_XFLAG + 0x2000, 60)
            if L == 1: extras += self.probe_addr().split('\n')
            self.stamp(2 + L*14, f'L{L} xflags')
            for ks in range(S, XD): self.frag_load(sOut, ks)
            if L == 1 and o['bq']:
                for it in bqw: self.item(it)
            late = [('wvm', 'st')] + [self.acc_par(STAT + 2*i, STAT + 2*i + 1, L & 1) for i in range(8) if L > 1]
            for step in (8, 4, 2, 1):
                for i in range(step): late.append(f'v_add_f32 {vr(STAT+i)}, {vr(STAT+i)}, {vr(STAT+i+step)}')
            late += self.stats_final(typ)
            for ks in range(32):
                if ks == 8 + o['st0'] + XD: extras += late
                kstep(ks)
                if L > 1 and ks == o['ev']: self.verify(L & 1, redo)
            pop(100)
            if L > 1: self.verify(L & 1, redo)
        self.mfma(ACC0, WEXTK, XEXT, ACC0)
        self.mfma(ACC1, XEXT, WEXTV, ACC1)

    def w_read(self, dst, base, off, L, tag, qkv=True):
        if L > 1:
            self.P(f'ds_read_b128 {vr(dst,4)}, {vr(base)} offset:{off}'); self.lg.issue(tag)
        else:
            d = 256 if (L == 0 and qkv) else 512
            self.P(f'ds_read_b64_tr_b16 {vr(dst,2)}, {vr(base)} offset:{off}\nds_read_b64_tr_b16 {vr(dst+2,2)}, {vr(base)} offset:{off+d}'); self.lg.issue(tag, 2)

    def q_prefetch(self, L, NS=5):
        for ks in range(NS): self.q_rd(L, ks)

    def q_rd(self, L, ks, NS=5):
        self.w_read(RING + 4*(ks % NS), vTR1, ks*1024, L, ('w', ks))

    def main_qpass(self, L, acc, fill, at=None, pre_write=None, rate=4):
        P = self.P; typ = L % 2; lg = self.lg; NS = 5
        fill = list(fill)
        for ks in range(32):
            P(waitstr(lg=lg.need(('w', ks))))
            self.mfma(acc, RING + 4*(ks % NS), XF + 4*ks, None if ks == 0 else acc)
            if ks + NS < 32: self.q_rd(L, ks + NS)
            n = 0
            while fill and n < rate:
                it = fill.pop(0); self.item(it)
                if isinstance(it, str) or it[0] == 'ds': n += 1
            if at and ks in at: at[ks]()
        for it in fill: self.item(it)
        self.mfma(acc, WEXTQ, XEXT, acc)
        if at and 32 in at: at[32]()
        order = (4, 5, 6, 7, 0, 1, 2, 3)
        for p in order:
            if typ == 0 and p % 4 == 0:
                for q in range(p, p + 4): P(f'v_pk_mul_f32 {vr(acc+2*q,2)}, {vr(acc+2*q,2)}, {vr(vRSTD,2)} op_sel_hi:[1,0]')
            P(f'v_cvt_pk_bf16_f32 {vr(aQ+p)}, {vr(acc+2*p)}, {vr(acc+2*p+1)}')
            if p == 7:
                if pre_write: pre_write()
                P(f'ds_write_b128 {vr(vKA)}, {vr(aQ+4,4)} offset:5120')

    def tile_addr(self, sbase):
        return f"""s_lshl_b32 {sr(sT1)}, {sr(sHS)}, 10
s_add_u32 {sr(sT1)}, {sr(sT1)}, {sr(sbase)}
v_add_u32 {vr(vKA)}, {sr(sT1)}, {vr(vL16)}
s_lshl_b32 {sr(sT1)}, {sr(sHS)}, 8
v_xor_b32 {vr(vVA)}, {sr(sT1)}, {vr(vL16)}
v_add_u32 {vr(vVA)}, {sr(sbase)}, {vr(vVA)}"""

    def trickle_setup(self):
        self.P(f's_mov_b32 {sr(sDM)}, 4\ns_mov_b32 {sr(sDG)}, {sr(sG0)}\ns_mov_b32 {sr(sDL)}, {sr(sLA)}')

    def trickle(self, keep=0):
        P = self.P; sk = P.newlabel('Lsk')
        P(f's_cmp_le_u32 {sr(sDM)}, {keep}\ns_cbranch_scc1 {sk}\ns_mul_i32 {sr(sT0)}, {sr(sDG)}, 3')
        for e in range(2):
            for nt in (1, 2):
                P(f's_add_u32 m0, {sr(sDL)}, {NT_LDS[nt] + e*1024}\ns_add_u32 {sr(sT1)}, {sr(sT0)}, {e*49152 + nt*1024}')
                P(f'buffer_load_dwordx4 {vr(vDW)}, {sr(sWB,4)}, {sr(sT1)} offen lds')
        P(f"""s_add_u32 {sr(sDL)}, {sr(sDL)}, 8192
s_add_u32 {sr(sDG)}, {sr(sDG)}, 0x20000
s_and_b32 {sr(sDG)}, {sr(sDG)}, 0x7ffff
s_sub_u32 {sr(sDM)}, {sr(sDM)}, 1""")
        P.label(sk)

    def attn_loop(self, cfirst, trickle=False):
        P = self.P; lp = P.newlabel('Latt')
        if self.o['trunc']: pk = lambda d, e: f'v_perm_b32 {vr(d)}, {vr(e+1)}, {vr(e)}, {sr(sPERM)}'
        else: pk = lambda d, e: f'v_cvt_pk_bf16_f32 {vr(d)}, {vr(e)}, {vr(e+1)}'
        rdv = f's_mov_b64 exec, {sr(sLO,2)}\nds_read_b128 {vr(VV,4)}, {vr(vVA)} offset:2048\nds_read_b128 {vr(VV+4,4)}, {vr(vVA)} offset:3072\ns_mov_b64 exec, -1'
        P(f'ds_read_b128 {vr(aK,4)}, {vr(vKA)}'); P(rdv)
        P(f'v_add_u32 {vr(vKA)}, {sr(sSTEP)}, {vr(vKA)}\nv_add_u32 {vr(vVA)}, {sr(sSTEP)}, {vr(vVA)}\ns_waitcnt lgkmcnt(2)')
        cfirst()
        P(f'ds_read_b128 {vr(aK,4)}, {vr(vKA)}\nv_add_u32 {vr(vKA)}, {sr(sSTEP)}, {vr(vKA)}\ns_nop 9')
        P.label(lp)
        for i in range(8): P(f'v_exp_f32 {vr(aE+i)}, {vr(aS+i)}')
        for p in range(4): P(pk(aP + p, aE + 2*p))
        for i in range(8, 10): P(f'v_exp_f32 {vr(aE+i-8)}, {vr(aS+i)}')
        P('s_waitcnt lgkmcnt(0)')
        self.mfma(aO, VV, aP, aO)
        for i in range(10, 16): P(f'v_exp_f32 {vr(aE+i-8)}, {vr(aS+i)}')
        self.mfma(aS, aK, aQ, None)
        P(f'ds_read_b128 {vr(aK,4)}, {vr(vKA)}')
        for p in range(4): P(pk(aP + 4 + p, aE + 2*p))
        P(f'v_add_u32 {vr(vKA)}, {sr(sSTEP)}, {vr(vKA)}\ns_sub_u32 {sr(sCNT)}, {sr(sCNT)}, 1')
        self.mfma(aO, VV + 4, aP + 4, aO)
        P(rdv)
        if trickle and self.o['trk']: self.trickle(4 - self.o['trk'])
        P(f'v_add_u32 {vr(vVA)}, {sr(sSTEP)}, {vr(vVA)}\ns_cmp_lg_u32 {sr(sCNT)}, 0\ns_cbranch_scc1 {lp}')

    def v_lanes(self):
        return [f'v_mov_b32 {vr(vSTV)}, {LDS_ONES - 2048}', f'v_cndmask_b32 {vr(vVA)}, {vr(vSTV)}, {vr(vVA)}, {sr(sLO,2)}',
                f'v_mov_b32 {vr(vSTV)}, {sr(sSTEP)}', f'v_cndmask_b32 {vr(vSTV)}, 0, {vr(vSTV)}, {sr(sLO,2)}']

    def attn2(self, M, first, trickle=False):
        P = self.P; lp = P.newlabel('Latt'); dn = P.newlabel('Lattd')
        pk = lambda d, e: f'v_perm_b32 {vr(d)}, {vr(e+1)}, {vr(e)}, {sr(sPERM)}'
        ex = lambda S, a, b: P('\n'.join(f'v_exp_f32 {vr(S+i)}, {vr(S+i)}' for i in range(a, b)))
        rdk = f'ds_read_b128 {vr(aK,4)}, {vr(vKA)}\nv_add_u32 {vr(vKA)}, {sr(sSTEP)}, {vr(vKA)}'
        P(rdk.replace(vr(aK,4), vr(aP,4))); P(rdk); P(f'ds_read_b128 {vr(VV,4)}, {vr(vVA)} offset:2048\ns_waitcnt lgkmcnt(2)')
        first()
        P('s_waitcnt lgkmcnt(1)\ns_nop 6')
        P.label(lp)
        for half, (S, N) in enumerate(((M, aS), (aS, M))):
            P('s_waitcnt lgkmcnt(2)')
            self.mfma(N, aK, aQ, None)
            P(rdk)
            ex(S, 0, 4)
            P('s_waitcnt lgkmcnt(2)')
            self.mfma(aO, VV + 4, aP + 4, aO)
            P(f'ds_read_b128 {vr(VV+4,4)}, {vr(vVA)} offset:3072\nv_add_u32 {vr(vVA)}, {vr(vSTV)}, {vr(vVA)}')
            ex(S, 4, 10)
            for p in range(4): P(pk(aP + p, S + 2*p))
            ex(S, 10, 12)
            P('s_waitcnt lgkmcnt(2)')
            self.mfma(aO, VV, aP, aO)
            P(f'ds_read_b128 {vr(VV,4)}, {vr(vVA)} offset:2048')
            if trickle and self.o['trk']: self.trickle(4 - self.o['trk'])
            ex(S, 12, 16)
            P(f's_sub_u32 {sr(sCNT)}, {sr(sCNT)}, 1')
            for p in range(4): P(pk(aP + 4 + p, S + 8 + 2*p))
            P(f's_cbranch_scc1 {dn}' if half == 0 else f's_cbranch_scc0 {lp}')
        P.label(dn)

    def publish_o_addr(self, L):
        return [f's_add_u32 {sr(sK0)}, {sr(sOW)}, {OFF_O}'] + ([f's_add_u32 {sr(sK1)}, {sr(sOF)}, {OFF_OFLAG}'] if L == 0 else [])

    def publish_o(self, L, O, eps):
        P = self.P
        if eps: P(f'v_add_f32 {vr(O+8)}, {f2u(eps):#x}, {vr(O+8)}')
        P(f'v_rcp_f32 {vr(O+8)}, {vr(O+8)}')
        if L % 2 == 0 and self.o['omul']:
            for i in range(8): P(f'v_mul_f32 {vr(O+i)}, {vr(O+8)}, {vr(O+i)}')
        else:
            for p in range(4): P(f'v_pk_mul_f32 {vr(O+2*p,2)}, {vr(O+2*p,2)}, {vr(O+8,2)} op_sel_hi:[1,0]')
        for p in range(4): P(f'v_cvt_pk_bf16_f32 {vr(aP+p)}, {vr(O+2*p)}, {vr(O+2*p+1)}')
        P(self.set_par(aP, 1 - (L & 1)))
        def emit(sc1):
            P(f'buffer_store_dwordx4 {vr(aP,4)}, {vr(vL16)}, {sr(sWS,4)}, {sr(sK0)} offen' + (' sc1' if sc1 else (['', ' nt', ' sc1', ' sc0'][self.o.get('o3', 0)] if L == 3 or self.o.get('nta') else '')))
            if L == 0: self.flag(sK1, sTAG, sc1, wait='s_waitcnt vmcnt(0)')
        self.two_way(emit)

    def main_outproj(self, L):
        P = self.P; vm, lg = self.vm, self.lg; OD = self.o['od']; par = 1 - (L & 1)
        vm.reset(); lg.reset()
        redo = P.newlabel('Lopredo')
        if L == 0:
            for op in ['s_waitcnt vmcnt(1)'] + [f'v_permlane32_swap_b32 {vr(XRES+a)}, {vr(XRES+b)}' for a, b in SW4] + self.wphi_pack(170): P(op)
        NS = 6; RG = 24 if L == 0 else 32
        def rd(ks):
            self.w_read(RING + 4*(ks % NS), vTR2, ks*1024, L, ('w', ks), qkv=False)
        self.publish_x_addr(L + 1)
        P.label(redo)
        for ks in range(NS): rd(ks)
        self.unpack_res()
        S = self.probe(sWS, OFF_O, par, OD) if L > 0 else self.first_hop(OFF_O, OFF_OFLAG, 124)
        self.stamp(11 + L*14, f'L{L} oflags')
        for ks in range(S, OD): self.frag_load(sWS, ks)
        for ks in range(32):
            P(waitstr(vm=vm.need(('x', ks)), lg=lg.need(('w', ks))))
            self.mfma(ACC0, RING + 4*(ks % NS), XF + 4*(ks % RG), ACC0)
            if ks + OD < 32: self.frag_load(sWS, ks + OD, RG)
            if ks + NS < 32: rd(ks + NS)
            if L and ks & 1: P(self.acc_par(XF + 4*ks - 4, XF + 4*ks, par))
            if L and ks == self.o['ev']: self.verify(par, redo)
        if L: self.verify(par, redo)
        self.stamp(12 + L*14, f'L{L} outproj')
        nxt = L + 1 < self.nl and not self.o['b0']
        if nxt: P(f'ds_read_b32 {vr(vT0)}, {vr(vCNT)} offset:{4*C_WR}')
        self.publish_x(L + 1)
        if nxt: self.lds_signal(C_XDONE)
        self.stamp(13 + L*14, f'L{L} xpub')

    def aux_head(self, L):
        P = self.P
        if self.o['b0']: P('s_barrier')
        else: self.lds_signal(C_WR)
        if L + 1 < self.nl: self.code_prefetch(f'L_main_{L+1}')
        if L > 1 and not self.o['b0']: self.lds_wait(C_XDONE, 4 + 4*L, self.o['lsleep'])
        if L == 1:
            self.lds_to_regs(LDS_WO, PARK['o'], True); P('s_waitcnt vmcnt(0) lgkmcnt(0)')
            if self.o['bq']: self.lds_wait(C_Q, 8, self.o['lsleep'])
            self.relayout(1, (0,))
        else: self.swap_region('o', L + 1 < self.nl, L == 2)

    def aux_tail(self, L):
        P = self.P
        if L + 1 >= self.nl:
            if self.o.get('wb'):
                lw = P.newlabel('Lx')
                P(f's_lshr_b32 {sr(sT0)}, s2, {3 if self.o["wb"] == 1 else 8}\ns_or_b32 {sr(sT0)}, {sr(sT0)}, {sr(sMT)}\ns_cmp_lg_u32 {sr(sT0)}, 0\ns_cbranch_scc1 {lw}')
                P('s_waitcnt vmcnt(0)\ns_sleep 8\nbuffer_wbl2 sc1\ns_waitcnt vmcnt(0)')
                P.label(lw)
            return
        if L % 2 == 0: wait_att = lambda: self.lds_wait(C_ATT, 8*(L//2 + 1), self.o['lsleep'])
        else: wait_att = lambda: None
        if L == 0:
            lp = P.newlabel('Lx'); P.label(lp)
            self.trickle()
            P(f's_cmp_lg_u32 {sr(sDM)}, 0\ns_cbranch_scc1 {lp}')
            self.wphi_load()
            if self.o['bq']: P('s_waitcnt vmcnt(0)')
            else:
                wait_att()
                self.dma_w(1, (0,))
                P('s_waitcnt vmcnt(8)')
            for op in self.wphi_pack(): P(op)
            self.relayout(1, (1, 2))
            if self.o['bq']: wait_att()
            return
        save = L + 2 < self.nl
        self.swap_region(1, save, L == 1); self.swap_region(2, save, L == 1)
        wait_att()
        self.swap_region(0, save, L == 1)

    def layerA(self, L):
        P = self.P; sb = L * 14; o = self.o; lg = self.lg
        j1 = f'L_j1_{L}'; j2 = f'L_j2_{L}'; ax2 = f'L_ax2_{L}'; ax3 = f'L_ax3_{L}'
        P.label(f'L_main_{L}')
        self.main_kv(L)
        self.stamp(3 + sb, f'L{L} kvpass')
        if L == 0: self.lds_check(C_Q, 4)
        self.q_prefetch(L)
        P(waitstr(lg=lg.need('rt')))
        for p in range(8):
            P(f'v_pk_mul_f32 {vr(ACC0+2*p,2)}, {vr(ACC0+2*p,2)}, {vr(vRSTD,2)} op_sel_hi:[1,0]')
        for p in range(8): P(f'v_cvt_pk_bf16_f32 {vr(PKV+p)}, {vr(ACC0+2*p)}, {vr(ACC0+2*p+1)}')
        st = lambda f: f'buffer_store_dwordx4 {vr(PKV+4*f,4)}, {vr(vL16)}, {sr(sWS,4)}, {sr(sK0)} offen offset:{f*1024} sc1'
        fill = [st(0), st(1)]
        for hf in range(2):
            fill += [f'v_mul_f32 {vr(ACC1+i)}, {vr(STAT+i)}, {vr(ACC1+i)}' for i in range(8*hf, 8*hf + 8)]
            fill += [f'v_cvt_pk_bf16_f32 {vr(PKV+8+p)}, {vr(ACC1+2*p)}, {vr(ACC1+2*p+1)}' for p in range(4*hf, 4*hf + 4)]
            fill.append(st(2 + hf))
        fill += self.checksum(vPD, PKV, 16) + [f'buffer_store_dword {vr(vPD)}, {vr(vL4)}, {sr(sWS,4)}, {sr(sK2)} offen sc1']
        fill += [('ds', 'own', f'ds_write_b128 {vr(vKA)}, {vr(PKV+4*f,4)} offset:{f*1024}') for f in range(4)]
        if L == 0 and o['early']:
            fill.append(('ds', 'kd', f'v_mov_b32 {vr(vPD)}, 1\ns_mov_b64 exec, 1\nds_add_u32 {vr(vCNT)}, {vr(vPD)} offset:{4*C_CS}\ns_mov_b64 exec, -1'))
        m0 = self.mask_ops(0, lean=True)
        if L == 0: fill += m0[:4] + self.lds_peek(C_CSQ) + m0[4:16] + [('fn', lambda: self.lds_check(C_CSQ, 4))]
        else: fill += m0[:16]
        fill += [('ds', 'cs', f'ds_read_b128 {vr(WEXTQ,4)}, {vr(vT0)}')] + m0[16:]
        fill += [f'v_mul_f32 {vr(vRSTD)}, {f2u(0.25*LOG2E):#x}, {vr(vRSTD)}'] + self.wext_items(WEXTQ, 'cs')
        def halo_loads():
            for t_, sh in ((0, sH1), (1, sH2)):
                P(f's_add_u32 m0, {sr(sHL)}, {t_*4096}')
                for f in range(4): P(f'buffer_load_dwordx4 {vr(vL16)}, {sr(sWS,4)}, {sr(sh)} offen offset:{f*1024} sc1 lds')
                P(f'buffer_load_dword {vr(65+t_)}, v67, {sr(sWS,4)}, {sr(sh)} offen sc1')
        La = L // 2; sHL = sM + 6
        fill += self.mask_ops(1)
        AT2 = o['at2']
        common = self.publish_o_addr(L) + [f's_add_u32 {sr(sCNT)}, {sr(sQT)}, {1 - AT2}', f's_mov_b32 {sr(sSTEP)}, {-OWN_ST}']
        common += [f's_add_u32 {sr(sH1)}, {sr(sHB)}, {OFF_KV + La*KV_L}', f's_add_u32 {sr(sH2)}, {sr(sH1)}, {16*KV_REC}',
                   f's_lshl_b32 {sr(sHL)}, {sr(sMT)}, 13', f's_add_u32 {sr(sHL)}, {sr(sHL)}, {LDS_T}', f'v_add_u32 v67, 4096, {vr(vL4)}']
        p1 = f's_cmp_lt_u32 {sr(sQT)}, 2' if o['p1'] else f's_cmp_ge_u32 {sr(sQT)}, 2'
        pre2 = (self.v_lanes() + [f'v_mov_b32 {vr(aP+4+i)}, 0' for i in range(4)]) if AT2 else []
        def gap32():
            for it in common + [f'v_mov_b32 {vr(vVA)}, {vr(vKA)}'] + pre2: P(it)
            self.mfma(aO, aP + 4, aP + 4, None)
        at = {32: gap32}
        if L == 2 and o.get('fine'):
            self.stamp(32, 'L2 Kepi'); lg.reset()
            at[12] = lambda: (self.stamp(43, 'L2 q12'), lg.reset()); at[31] = lambda: (self.stamp(51, 'L2 q31'), lg.reset())
        self.main_qpass(L, ACC0, fill, at=at, rate=o['qrate'])
        if o['prio']: self.prio_if(p1)
        self.stamp(5 + sb, f'L{L} preB1')
        P(f's_waitcnt lgkmcnt(0)\ns_barrier')
        P(f's_branch {j1}')
        P.label(f'L_aux_{L}')
        if L > 0:
            self.aux_head(L)
            for op in self.mask_ops(0) + self.mask_ops(1): P(op)
        else:
            self.trickle_setup()
            if o['early']:
                self.lds_wait(C_CS, 8, 1)
                for _ in range(o['early']): self.trickle()
            P(f'v_and_b32 {vr(vPA)}, 60, {vr(vL4)}\ns_lshl_b32 {sr(sK2)}, {sr(sR)}, 7\ns_add_u32 {sr(sK2)}, {sr(sK2)}, {OFF_XFLAG}\nbuffer_load_dword v25, {vr(vPA)}, {sr(sWS,4)}, {sr(sK2)} offen sc1')
        P(self.tile_addr(sOWN))
        for it in common + pre2: P(it)
        if o['prio']: self.prio_if(p1)
        self.stamp(5 + sb, f'L{L} preB1')
        P('s_barrier')
        P(f'ds_read_b128 {vr(aQ,4)}, {vr(vKA)} offset:4096')
        P.label(j1)
        l = P.newlabel('Lx')
        P(f's_cmp_eq_u32 {sr(sHAS)}, 0\ns_cbranch_scc1 {l}')
        halo_loads()
        P.label(l)
        if AT2: self.attn2(CDIAG, lambda: self.mfma(CDIAG, aP, aQ, CDIAG))
        else: self.attn_loop(lambda: self.mfma(aS, aK, aQ, CDIAG))
        P(self.tile_addr(sP2))
        P(f's_sub_u32 {sr(sCNT)}, {sr(sC2)}, {AT2}\ns_mov_b32 {sr(sSTEP)}, 4096')
        if AT2:
            for it in self.v_lanes(): P(it)
        if o['prio'] and not o['p1']: self.prio_if(f's_cmp_lt_u32 {sr(sQT)}, 2')
        self.stamp(6 + sb, f'L{L} own attn')
        lp = P.newlabel('Lhalo'); ck = P.newlabel('Lhchk'); dn = P.newlabel('Lhdone')
        nh = P.newlabel('Lnh')
        P(f's_cmp_eq_u32 {sr(sHAS)}, 0\ns_cbranch_scc1 {nh}\nv_add_u32 {vr(vT0)}, {sr(sHL)}, {vr(vL16)}\ns_branch {ck}')
        P.label(lp)
        halo_loads()
        P.label(ck)
        for t_, R in ((0, aS), (1, CDIAG)):
            P(f's_waitcnt vmcnt({5-5*t_})')
            for f in range(4): P(f'ds_read_b128 {vr(R+4*f,4)}, {vr(vT0)} offset:{(4*t_+f)*1024}')
        for t_, R in ((0, aS), (1, CDIAG)):
            cs = self.checksum(68 + t_, R, 16)
            for f in range(4):
                P(f's_waitcnt lgkmcnt({7-4*t_-f})'); P(cs[2*f]); P(cs[2*f + 1])
            P(f'v_cmp_ne_u32 {sr(sM+2*t_,2)}, {vr(65+t_)}, {vr(68+t_)}')
        P(f's_or_b64 {sr(sM,2)}, {sr(sM,2)}, {sr(sM+2,2)}\ns_cbranch_scc0 {dn}')
        self.retry_tail(lp, dn)
        self.stamp(7 + sb, f'L{L} halo ok')
        P.label(nh)
        if L == 0: P(f's_cmp_lg_u32 {sr(sHS)}, 0\ns_cbranch_scc1 {ax2}')
        if L == 0:
            if not o['xst']:
                self.rowmajor_addr(182, 183, sT0)
                P(f'buffer_load_dwordx4 {vr(XRES,4)}, v182, {sr(sX0,4)}, {sr(sT0)} offen\nbuffer_load_dwordx4 {vr(XRES+4,4)}, v182, {sr(sX0,4)}, {sr(sT0)} offen offset:32')
            self.wphi_load(170)
            P(f's_branch {j2}'); P.label(ax2)
            okl = P.newlabel('Lx')
            P(f's_waitcnt vmcnt(0) lgkmcnt(0)\nv_mov_b32 {vr(vPD)}, v25\nv_and_b32 {vr(vT0)}, -16, v25\nv_cmp_ne_u32 vcc, {sr(sTAG)}, {vr(vT0)}\ns_cbranch_vccz {okl}')
            self.poll(sK2, masked=True)
            P.label(okl)
            if not self.force_safe:
                P(f"""v_cmp_ne_u32 vcc, {sr(sOWNF)}, {vr(vPD)}
s_cmp_eq_u64 vcc, 0
s_cselect_b32 {sr(sFAST)}, 1, 0
v_mov_b32 {vr(vT0)}, {sr(sFAST)}
ds_write_b32 {vr(vCNT)}, {vr(vT0)} offset:44""")
            if o['pfb'] == 2: self.coop_prefetch(1, 1)
            if o['touch']:
                P(f"""v_lshlrev_b32 v5, 3, {vr(vL16)}
v_and_b32 v5, 0x780, v5
s_add_u32 {sr(sT0)}, {sr(sXW)}, {OFF_O}
s_add_u32 {sr(sT1)}, {sr(sSW)}, {OFF_ST}
s_mov_b64 exec, 0xffff
buffer_load_dword v26, v5, {sr(sWS,4)}, {sr(sT0)} offen sc1
buffer_load_dword v26, v5, {sr(sOut,4)}, {sr(sXW)} offen sc1
s_mov_b64 exec, 3
buffer_load_dword v26, v5, {sr(sWS,4)}, {sr(sT1)} offen sc1
s_mov_b64 exec, -1""")
        P.label(j2)
        lskip = P.newlabel('Lnohalo'); l1 = P.newlabel('Lr1'); l2 = P.newlabel('Lr2')
        P('s_waitcnt lgkmcnt(0)\ns_barrier')
        if L == 0 and not self.force_safe: P(f'ds_read_b32 {vr(vPD)}, {vr(vCNT)} offset:44')
        self.stamp(8 + sb, f'L{L} B2')
        if L == 0 and o['bq']:
            lb = P.newlabel('Lx')
            P(f's_cmp_lg_u32 {sr(sHS)}, 0\ns_cbranch_scc1 {lb}')
            if 1:
                P(f"""v_lshrrev_b32 v184, 2, {vr(vLANE)}
v_mul_u32_u24 v184, 3072, v184
v_and_b32 v185, 48, {vr(vL16)}
s_lshl_b32 {sr(sT0)}, {sr(sC)}, 6
v_add3_u32 v184, v184, v185, {sr(sT0)}
s_lshl_b32 {sr(sT2)}, {sr(sROT)}, 1
s_add_u32 {sr(sT2)}, {sr(sT2)}, {sr(sMT)}
s_lshl_b32 {sr(sT2)}, {sr(sT2)}, 15""")
                for st in range(4):
                    P(f's_and_b32 {sr(sT2)}, {sr(sT2)}, 0x7ffff\ns_mul_i32 {sr(sT0)}, {sr(sT2)}, 3\ns_add_u32 {sr(sT3)}, {sr(sT0)}, 49152')
                    P(f'buffer_load_dwordx4 {vr(224+8*st,4)}, v184, {sr(sWB,4)}, {sr(sT0)} offen\nbuffer_load_dwordx4 {vr(228+8*st,4)}, v184, {sr(sWB,4)}, {sr(sT3)} offen')
                    if st < 3: P(f's_add_u32 {sr(sT2)}, {sr(sT2)}, 0x20000')
            P.label(lb)
        P(f's_cmp_eq_u32 {sr(sR)}, 0\ns_cbranch_scc1 {lskip}')
        def first():
            P(f's_cmp_eq_u32 {sr(sR)}, 1\ns_cbranch_scc1 {l1}')
            self.mfma(CFIRST if AT2 else aS, aP if AT2 else aK, aQ, CFIRST)
            P(f's_branch {l2}'); P.label(l1)
            self.mfma(CFIRST if AT2 else aS, aP if AT2 else aK, aQ, None)
            P.label(l2)
        if AT2: self.attn2(CFIRST, first, trickle=(L == 0))
        else: self.attn_loop(first, trickle=(L == 0))
        P.label(lskip)
        if AT2:
            P('s_waitcnt lgkmcnt(1)'); self.mfma(aO, VV + 4, aP + 4, aO)
        if L == 0 and not self.force_safe: P(f's_waitcnt lgkmcnt(0)\nv_readfirstlane_b32 {sr(sFAST)}, {vr(vPD)}')
        self.stamp(9 + sb, f'L{L} attn')
        P(f'v_subrev_u32 {vr(vT0)}, {f2u(2.0**-SAFE_EXP):#x}, {vr(aO+8)}\nv_cmp_le_u32 vcc, {f2u(2.0**SAFE_EXP) - f2u(2.0**-SAFE_EXP):#x}, {vr(vT0)}\ns_cbranch_vccnz L_fb_{L}')
        P.label(f'L_fbr_{L}')
        self.publish_o(L, aO, 0)
        if o['prio']: P('s_setprio 0')
        self.lds_signal(C_ATT)
        self.stamp(10 + sb, f'L{L} opub')
        P(f's_cmp_lg_u32 {sr(sHS)}, 0\ns_cbranch_scc1 {ax3}')
        self.main_outproj(L)
        P(f's_branch L_main_{L+1}')
        P.label(ax3)
        self.aux_tail(L)
        self.stamp(13 + sb, f'L{L} xpub')
        P(f's_branch L_aux_{L+1}')

    def attn_fallback(self, L):
        P = self.P; M = vT0
        pk = lambda d, e: f'v_cvt_pk_bf16_f32 {vr(d)}, {vr(e)}, {vr(e+1)}'
        P.label(f'L_fb_{L}')
        P(f's_waitcnt lgkmcnt(0)\nv_mov_b32 {vr(M)}, 0xff800000')
        for op in self.mask_ops(0) + self.mask_ops(1): P(op)
        for ps in range(2):
            for seg in range(2):
                lp = P.newlabel('Lfb'); nx = P.newlabel('Lfbn'); nm = P.newlabel('Lfbm')
                if seg == 0:
                    P(self.tile_addr(sOWN))
                    P(f's_add_u32 {sr(sCNT)}, {sr(sQT)}, 1\ns_mov_b32 {sr(sSTEP)}, {-OWN_ST}')
                    for i in range(16): P(f'v_mov_b32 {vr(aS+i)}, {vr(CDIAG+i)}')
                else:
                    P(f's_cmp_eq_u32 {sr(sR)}, 0\ns_cbranch_scc1 {nx}')
                    P(self.tile_addr(sP2))
                    P(f's_mov_b32 {sr(sCNT)}, {sr(sC2)}\ns_mov_b32 {sr(sSTEP)}, 4096\ns_cmp_eq_u32 {sr(sR)}, 1\ns_cbranch_scc1 {lp}')
                    for i in range(16): P(f'v_mov_b32 {vr(aS+i)}, {vr(CFIRST+i)}')
                P.label(lp)
                P(f'ds_read_b128 {vr(aK,4)}, {vr(vKA)}')
                if ps:
                    P(f's_mov_b64 exec, {sr(sLO,2)}\nds_read_b128 {vr(VV,4)}, {vr(vVA)} offset:2048\nds_read_b128 {vr(VV+4,4)}, {vr(vVA)} offset:3072\ns_mov_b64 exec, -1')
                P('s_waitcnt lgkmcnt(0)')
                self.mfma(aS, aK, aQ, aS)
                if ps == 0:
                    for i in range(0, 16, 2): P(f'v_max3_f32 {vr(M)}, {vr(M)}, {vr(aS+i)}, {vr(aS+i+1)}')
                else:
                    for i in range(16): P(f'v_sub_f32 {vr(aS+i)}, {vr(aS+i)}, {vr(M)}')
                    for i in range(16): P(f'v_exp_f32 {vr(aS+i)}, {vr(aS+i)}')
                    for p in range(8): P(pk(aP + p, aS + 2*p))
                    self.mfma(aO, VV, aP, aO)
                    self.mfma(aO, VV + 4, aP + 4, aO)
                for i in range(16): P(f'v_mov_b32 {vr(aS+i)}, 0')
                P(f'v_add_u32 {vr(vKA)}, {sr(sSTEP)}, {vr(vKA)}\nv_add_u32 {vr(vVA)}, {sr(sSTEP)}, {vr(vVA)}')
                P(f's_sub_u32 {sr(sCNT)}, {sr(sCNT)}, 1\ns_cmp_lg_u32 {sr(sCNT)}, 0\ns_cbranch_scc1 {lp}')
                P.label(nx)
            if ps == 0:
                P(f'v_mov_b32 {vr(vPD)}, {vr(M)}\nv_permlane32_swap_b32 {vr(vPD)}, {vr(M)}\nv_max_f32 {vr(M)}, {vr(M)}, {vr(vPD)}')
        P(f's_branch L_fbr_{L}')

    def softmax16(self, dst, t, inject=None, start=0, step=1):
        if inject is None: return self.softmax16_(dst, t, self.P)
        ops = []
        self.softmax16_(dst, t, lambda x: ops.extend(x.split('\n')))
        inject = list(inject)
        for i, op in enumerate(ops):
            if i >= start and (i - start) % step == 0 and inject: self.P(inject.pop(0))
            self.P(op)
        for x in inject: self.P(x)

    def softmax16_(self, dst, t, P):
        A = ACC0
        P(f'v_max3_f32 {vr(t)}, {vr(A)}, {vr(A+1)}, {vr(A+2)}\nv_max3_f32 {vr(t+1)}, {vr(A+3)}, {vr(A+4)}, {vr(A+5)}')
        P(f'v_max3_f32 {vr(t+2)}, {vr(A+6)}, {vr(A+7)}, {vr(A+8)}\nv_max3_f32 {vr(t+3)}, {vr(A+9)}, {vr(A+10)}, {vr(A+11)}')
        P(f'v_max3_f32 {vr(t)}, {vr(t)}, {vr(A+12)}, {vr(A+13)}\nv_max3_f32 {vr(t+1)}, {vr(t+1)}, {vr(A+14)}, {vr(A+15)}')
        P(f'v_max3_f32 {vr(t)}, {vr(t)}, {vr(t+2)}, {vr(t+3)}\nv_max_f32 {vr(t)}, {vr(t)}, {vr(t+1)}')
        P(f'v_mul_f32 {vr(t)}, {vr(vRSTD)}, {vr(t)}')
        fm = lambda p: f'v_pk_fma_f32 {vr(A+2*p,2)}, {vr(A+2*p,2)}, {vr(vRSTD,2)}, {vr(t,2)} op_sel_hi:[1,0,0] neg_lo:[0,0,1] neg_hi:[0,0,1]'
        P(fm(0)); P(fm(1))
        for p in range(8):
            P(f'v_exp_f32 {vr(A+2*p)}, {vr(A+2*p)}')
            if p + 2 < 8: P(fm(p + 2))
            P(f'v_exp_f32 {vr(A+2*p+1)}, {vr(A+2*p+1)}')
            if p == 2: P(f'v_pk_add_f32 {vr(t+2,2)}, {vr(A,2)}, {vr(A+2,2)}')
            if p >= 3: P(f'v_pk_add_f32 {vr(t+2,2)}, {vr(t+2,2)}, {vr(A+2*p-2,2)}')
        P(f'v_pk_add_f32 {vr(t+2,2)}, {vr(t+2,2)}, {vr(A+14,2)}\nv_add_f32 {vr(t+2)}, {vr(t+2)}, {vr(t+3)}\nv_rcp_f32 {vr(t)}, {vr(t+2)}')
        for p in range(8): P(f'v_pk_mul_f32 {vr(A+2*p,2)}, {vr(A+2*p,2)}, {vr(t,2)} op_sel_hi:[1,0]')
        for p in range(8): P(f'v_cvt_pk_bf16_f32 {vr(dst+p)}, {vr(A+2*p)}, {vr(A+2*p+1)}')

    def layerB(self, L):
        P = self.P; Lb = L // 2; sb = L * 14; o = self.o; lg = self.lg
        j0 = f'L_j0_{L}'; j1 = f'L_j1_{L}'; j2 = f'L_j2_{L}'; ax1 = f'L_ax1_{L}'; ax1b = f'L_ax1b_{L}'; ax3 = f'L_ax3_{L}'; axz = f'L_axz_{L}'
        KA, KV_ = 48, 96
        vA16, vA4, vAW, vAO = 96, 97, 98, 99
        P.label(f'L_main_{L}')
        self.main_kv(L)
        self.stamp(3 + sb, f'L{L} kvpass')
        P(waitstr(lg=lg.need('rt')))
        for p in (4, 5, 6, 7): P(f'v_cvt_pk_bf16_f32 {vr(PKV+p)}, {vr(ACC0+2*p)}, {vr(ACC0+2*p+1)}')
        P(f'ds_write_b128 {vr(vKA)}, {vr(PKV+4,4)} offset:1024')
        for p in (0, 1, 2, 3): P(f'v_cvt_pk_bf16_f32 {vr(PKV+p)}, {vr(ACC0+2*p)}, {vr(ACC0+2*p+1)}')
        vmul = lambda p: f'v_pk_mul_f32 {vr(ACC1+2*p,2)}, {vr(ACC1+2*p,2)}, {vr(STAT+2*p,2)}'
        P(vmul(0)); P(vmul(1))
        self.mfma(ACC0, WPHI, PKV, None)
        for p in range(2, 8): P(vmul(p))
        if o['vpre'] != 1: P('s_waitcnt lgkmcnt(0)\ns_barrier')
        for f in range(2, 4):
            for p in range(4*f - 8, 4*f - 4): P(f'v_cvt_pk_bf16_f32 {vr(PKV+8+p)}, {vr(ACC1+2*p)}, {vr(ACC1+2*p+1)}')
            P(f'ds_write_b128 {vr(vKA)}, {vr(PKV+4*f,4)} offset:{f*1024}')
        if o['vpre'] == 1: P('s_waitcnt lgkmcnt(0)\ns_barrier')
        P(f's_branch {j0}')
        P.label(f'L_aux_{L}')
        self.aux_head(L)
        for i in range(32): P(f'v_mov_b32 {vr(KV_+i)}, {vr(ONES)}')
        P(f"""v_lshrrev_b32 v91, 5, {vr(vLANE)}
v_bfe_u32 v88, {vr(vLANE)}, 2, 2
v_lshl_add_u32 v88, v91, 2, v88
v_lshlrev_b32 v88, 5, v88
v_and_b32 v89, 1, {vr(vLANE)}
v_lshl_add_u32 v88, v89, 4, v88
v_bfe_u32 v89, {vr(vLANE)}, 4, 1
v_lshl_add_u32 v88, v89, 12, v88
v_bfe_u32 v89, {vr(vLANE)}, 1, 1
v_lshl_add_u32 v88, v89, 3, v88
s_lshl_b32 {sr(sT0)}, {sr(sMT)}, 10
s_add_u32 {sr(sT0)}, {sr(sT0)}, {LDS_OWN}
v_add_u32 v88, {sr(sT0)}, v88
s_lshl_b32 {sr(sT1)}, {sr(sMT)}, 8
v_xor_b32 v90, {sr(sT1)}, {vr(vL16)}
v_add_u32 v89, {LDS_OWN}, v90
s_lshl_b32 {sr(sT0)}, {sr(sMT)}, 1
v_add_u32 v91, {sr(sT0)}, v91
v_and_b32 v92, 31, {vr(vLANE)}
v_mov_b32 v93, {OOB >> 4:#x}
v_cmp_eq_u32 vcc, 16, v92
v_cndmask_b32 v91, v93, v91, vcc
v_lshrrev_b32 v92, 8, v90
v_mul_u32_u24 v92, {KP_Q}, v92
v_and_b32 v93, 15, {vr(vLANE)}
v_lshl_add_u32 v90, v93, 4, v92
v_lshl_add_u32 v92, v93, 2, v92
v_lshlrev_b32 v93, 4, v91
v_add_u32 v93, {KP_Z}, v93
v_lshlrev_b32 v91, 4, v91
v_add_u32 v91, 64, v91
v_cndmask_b32 v91, v91, v92, {sr(sLO,2)}
v_cndmask_b32 v90, v93, v90, {sr(sLO,2)}
v_add_u32 v93, 64, v93
v_add_u32 v92, 256, v90
v_cndmask_b32 v93, v93, v92, {sr(sLO,2)}
s_lshl_b32 {sr(sK2)}, {sr(sC)}, 4
s_add_u32 {sr(sK2)}, {sr(sK2)}, {sr(sR)}
s_mul_i32 {sr(sK2)}, {sr(sK2)}, {KP_REC}
s_add_u32 {sr(sK2)}, {sr(sK2)}, {OFF_KP + Lb*KP_L}""")
        P(self.tile_addr(sOWN))
        for op in self.phi_addr(): P(op)
        P(f's_lshl_b32 {sr(sT0)}, {sr(sQT)}, 7\ns_add_u32 {sr(sT0)}, {sr(sT0)}, {LDS_RSTD}\nv_and_b32 v25, 124, {vr(vL4)}\nv_add_u32 v25, {sr(sT0)}, v25')
        self.stamp(3 + sb, f'L{L} kvpass')
        P('s_barrier')
        P(f'ds_read_b128 {vr(RING+8,4)}, {vr(vKA)}\nds_read_b32 {vr(vRSTD)}, v25\ns_waitcnt lgkmcnt(1)')
        self.mfma(ACC0, WPHI, RING + 8, None)
        P(f's_waitcnt lgkmcnt(0)\nv_mul_f32 {vr(vRSTD)}, {sr(sLOG2E)}, {vr(vRSTD)}')
        vrd = [f'ds_read_b128 {vr(KV_+4*st,4)}, v89 offset:{(st>>1)*OWN_ST + 2048 + (st&1)*1024}' for st in range(8)]
        if o['vpre'] == 1:
            P(f's_mov_b64 exec, {sr(sLO,2)}')
            for x in vrd: P(x)
            P('s_mov_b64 exec, -1')
        else: P('s_nop 9')
        P.label(j0)
        self.stamp(4 + sb, f'L{L} B1a')
        self.softmax16(RING, RING + 12)
        P(f'ds_write_b128 {vr(vVA)}, {vr(RING,4)}\nds_write_b128 {vr(vVA)}, {vr(RING+4,4)} offset:4096\ns_waitcnt lgkmcnt(0)\ns_barrier')
        self.stamp(5 + sb, f'L{L} B1b')
        common = self.publish_o_addr(L) + f"""s_mul_i32 {sr(sH1)}, {sr(sC)}, {16*KP_REC}
s_add_u32 {sr(sH1)}, {sr(sH1)}, {OFF_KP + Lb*KP_L}
s_mov_b32 {sr(sSEL0)}, 0x3f80
s_mov_b32 {sr(sSEL1)}, 0x3f800000
s_lshl_b32 {sr(sT0)}, {sr(sHS)}, 4
v_xor_b32 {vr(vAO)}, {sr(sT0)}, {vr(vLANE)}
v_lshlrev_b32 {vr(vAO)}, 5, {vr(vAO)}
v_add_u32 {vr(vAO)}, {LDS_KVT}, {vr(vAO)}
v_and_b32 v100, 32, {vr(vLANE)}
s_lshl_b32 {sr(sT0)}, {sr(sHS)}, 6
s_add_u32 {sr(sT0)}, {sr(sT0)}, {LDS_ZT}
v_add_u32 v100, {sr(sT0)}, v100
v_cndmask_b32 {vr(vAO)}, v100, {vr(vAO)}, {sr(sLO,2)}""".split('\n')
        SEL = 104
        addr_main = f"""s_mul_i32 {sr(sH2)}, {sr(sMT)}, {KP_Q}
s_add_u32 {sr(sH2)}, {sr(sH2)}, {sr(sH1)}
v_lshrrev_b32 v100, 4, {vr(vLANE)}
v_and_b32 v101, 15, {vr(vLANE)}
v_mul_u32_u24 {vr(vA16)}, {KP_REC}, v100
v_lshl_add_u32 {vr(vA4)}, v101, 2, {vr(vA16)}
v_lshl_add_u32 {vr(vA16)}, v101, 4, {vr(vA16)}
s_lshl_b32 {sr(sT0)}, {sr(sMT)}, 9
s_add_u32 {sr(sT0)}, {sr(sT0)}, {LDS_KVT}
v_lshl_add_u32 {vr(vAW)}, v101, 5, {sr(sT0)}
v_lshl_add_u32 {vr(vAW)}, v100, 3, {vr(vAW)}
v_lshlrev_b32 v100, 4, {vr(vLANE)}
v_lshlrev_b32 v100, v100, {sr(sSEL0)}
v_lshrrev_b32 v101, 1, v101""".split('\n')
        for r_ in range(8): addr_main += [f'v_cmp_eq_u32 vcc, {r_}, v101\nv_cndmask_b32 {vr(SEL+r_)}, 0, v100, vcc']
        addr_z = f"""v_lshrrev_b32 v102, 4, {vr(vLANE)}
v_mul_u32_u24 {vr(vA16)}, {KP_REC}, v102
v_bfe_u32 v100, {vr(vLANE)}, 3, 1
v_and_b32 v101, 1, {vr(vLANE)}
v_lshl_add_u32 v100, v100, 1, v101
v_bfe_u32 v101, {vr(vLANE)}, 1, 2
v_mul_u32_u24 {vr(vA4)}, {4*KP_REC}, v100
v_add_u32 {vr(vA4)}, {vr(vA4)}, {vr(vA16)}
v_lshl_add_u32 {vr(vA4)}, v101, 4, {vr(vA4)}
v_lshlrev_b32 {vr(vAW)}, 5, v101
v_lshl_add_u32 {vr(vAW)}, v100, 3, {vr(vAW)}
v_lshl_add_u32 {vr(vAW)}, v102, 1, {vr(vAW)}
v_add_u32 {vr(vAW)}, {LDS_ZT}, {vr(vAW)}
v_and_b32 v100, 15, {vr(vLANE)}
v_lshl_add_u32 {vr(vA16)}, v100, 3, {vr(vA16)}""".split('\n')
        A = ACC1; KD = 128; T = A + 4
        def loads_main(P=P):
            P(f's_mov_b32 {sr(sT0)}, {sr(sH2)}')
            for it in range(4):
                D = KD + 12*it
                P(f'buffer_load_dwordx4 {vr(D,4)}, {vr(vA16)}, {sr(sWS,4)}, {sr(sT0)} offen sc1\nbuffer_load_dwordx4 {vr(D+4,4)}, {vr(vA16)}, {sr(sWS,4)}, {sr(sT0)} offen offset:256 sc1')
                P(f'buffer_load_dword {vr(D+8)}, {vr(vA4)}, {sr(sWS,4)}, {sr(sT0)} offen offset:512 sc1')
                if it < 3: P(f's_add_u32 {sr(sT0)}, {sr(sT0)}, {4*KP_REC}')
        def accum(D, first, t0):
            P(f'v_add3_u32 {vr(T)}, {t0 if first else vr(T)}, {vr(D)}, {vr(D+1)}')
            for k in range(2):
                if first: P(f'v_lshlrev_b32 {vr(A+2*k)}, 16, {vr(D+k)}\nv_and_b32 {vr(A+2*k+1)}, 0xffff0000, {vr(D+k)}')
                else: P(f'v_dot2_f32_bf16 {vr(A+2*k)}, {vr(D+k)}, {sr(sSEL0)}, {vr(A+2*k)}\nv_dot2_f32_bf16 {vr(A+2*k+1)}, {vr(D+k)}, {sr(sSEL1)}, {vr(A+2*k+1)}')
        dpp = lambda c: f'v_add_u32_dpp {vr(T)}, {vr(T)}, {vr(T)} {c} row_mask:0xf bank_mask:0xf'
        P(f's_cmp_lg_u32 {sr(sHS)}, 0\ns_cbranch_scc1 {ax1}')
        lg.reset()
        self.q_prefetch(L)
        fill = [('ds', 'cs', f'ds_read_b128 {vr(WEXTQ,4)}, {vr(vT0)}')] + common
        fill += addr_main
        fill += self.wext_items(WEXTQ, 'cs')
        self.main_qpass(L, ACC1, fill, pre_write=lambda: P('s_barrier'), rate=2)
        self.mfma(ACC0, WPHI, aQ, None)
        P('s_waitcnt lgkmcnt(0)\ns_barrier')
        if o['kp_at'] == 1: loads_main()
        if o['kp_at'] >= 2:
            inj = []; loads_main(lambda x: inj.extend(x.split('\n')))
            self.softmax16(PHQ, RING + 12, inj, o['kp_at'], o['kp_step'])
            self.stamp(6 + sb, f'L{L} phiq / kp stored')
            P(f's_branch L_kpc_{L}')
        else: P(f's_branch {j1}')
        P.label(ax1)
        P(f's_cmp_ge_u32 {sr(sMT)}, 2\ns_cbranch_scc1 {ax1b}\ns_setprio 3')
        if o['vpre'] == 2:
            P(f's_mov_b64 exec, {sr(sLO,2)}')
            for x in vrd: P(x)
            P('s_mov_b64 exec, -1')
        n_ = 2 if o['vpre'] else 3
        for st in range(8):
            of = (st >> 1)*OWN_ST + (st & 1)*512
            P(f'ds_read_b64_tr_b16 {vr(KA+4*st,2)}, v88 offset:{of}\nds_read_b64_tr_b16 {vr(KA+2+4*st,2)}, v88 offset:{of+256}')
            if not o['vpre']: P(f's_mov_b64 exec, {sr(sLO,2)}\n{vrd[st]}\ns_mov_b64 exec, -1')
            if st >= 3:
                P(f's_waitcnt lgkmcnt({3*n_})'); self.mfma(ACC0, KA + 4*(st-3), KV_ + 4*(st-3), None if st == 3 else ACC0)
        for st in range(5, 8):
            P(f's_waitcnt lgkmcnt({n_*(7-st)})'); self.mfma(ACC0, KA + 4*st, KV_ + 4*st, ACC0)
        for p in range(8): P(f'v_cvt_pk_bf16_f32 {vr(80+p)}, {vr(ACC0+2*p)}, {vr(ACC0+2*p+1)}')
        P(f'buffer_store_dwordx4 v[80:83], v90, {sr(sWS,4)}, {sr(sK2)} offen sc1\nbuffer_store_dwordx4 v[84:87], v93, {sr(sWS,4)}, {sr(sK2)} offen sc1')
        for op in self.checksum(92, 80, 8): P(op)
        P(f'buffer_store_dword v92, v91, {sr(sWS,4)}, {sr(sK2)} offen offset:512 sc1')
        self.stamp(6 + sb, f'L{L} phiq / kp stored')
        P('s_setprio 0')
        P.label(ax1b)
        if L == 1: self.dma_w(1, ('o',))
        for it in common + addr_z: P(it)
        P('s_barrier\ns_barrier')
        P(f'ds_read_b128 {vr(aQ,4)}, {vr(vKA)} offset:4096\ns_waitcnt lgkmcnt(0)')
        self.mfma(ACC0, WPHI, aQ, None)
        P('s_nop 11')
        P.label(j1)
        self.softmax16(PHQ, RING + 12)
        if o['kp_at'] >= 2: P(f's_branch {axz}')
        else:
            P(f's_cmp_lg_u32 {sr(sHS)}, 0\ns_cbranch_scc1 {axz}')
            self.stamp(6 + sb, f'L{L} phiq / kp stored')
        lp = P.newlabel('Lkp'); ck = f'L_kpc_{L}'; dn = P.newlabel('Lkpd')
        if o['kp_at'] == 1: P(f's_branch {ck}')
        P.label(lp)
        loads_main()
        P.label(ck)
        for it in range(4):
            D = KD + 12*it; cs = self.checksum(D + 9, D, 8)
            P(f's_waitcnt vmcnt({10 - 3*it})')
            for hf in range(2):
                P(f'v_mfma_f32_16x16x32_bf16 {vr(A,4)}, {vr(SEL+4*hf,4)}, {vr(D+4*hf,4)}, {"0" if it + hf == 0 else vr(A,4)}')
            for op in cs: P(op)
            P(f's_waitcnt vmcnt({9 - 3*it})\nv_cmp_ne_u32 {sr(sM+2*it,2)}, {vr(D+8)}, {vr(D+9)}')
            if it == 2: P(f's_or_b64 {sr(sM,2)}, {sr(sM,2)}, {sr(sM+2,2)}')
            if it == 3: P(f's_or_b64 {sr(sM,2)}, {sr(sM,2)}, {sr(sM+4,2)}')
        P(f'v_cvt_pk_bf16_f32 v68, {vr(A)}, {vr(A+1)}\nv_cvt_pk_bf16_f32 v69, {vr(A+2)}, {vr(A+3)}\nds_write_b64 {vr(vAW)}, v[68:69]')
        P(f's_or_b64 {sr(sM,2)}, {sr(sM,2)}, {sr(sM+6,2)}\ns_cbranch_scc0 {dn}')
        self.retry_tail(lp, dn)
        self.stamp(7 + sb, f'L{L} kp ok')
        P(f's_branch {j2}')
        P.label(axz)
        if L == 1:
            P('s_waitcnt vmcnt(0)')
        P(f's_cmp_lg_u32 {sr(sMT)}, 2\ns_cbranch_scc1 {j2}')
        lp = P.newlabel('Lkz'); dn = P.newlabel('Lkzd'); D = 32
        P.label(lp)
        P(f's_mov_b32 {sr(sT0)}, {sr(sH1)}\nbuffer_load_dword {vr(D+8)}, {vr(vA4)}, {sr(sWS,4)}, {sr(sT0)} offen offset:576 sc1')
        for it in range(4):
            P(f'buffer_load_dwordx2 {vr(D+2*it,2)}, {vr(vA16)}, {sr(sWS,4)}, {sr(sT0)} offen offset:{KP_Z} sc1')
            if it < 3: P(f's_add_u32 {sr(sT0)}, {sr(sT0)}, {4*KP_REC}')
        for it in range(4):
            P(f's_waitcnt vmcnt({3 - it})')
            accum(D + 2*it, it == 0, sr(sTAG))
            if it == 0: P(f'v_sub_u32 {vr(T)}, {vr(T)}, {vr(D+8)}')
        P(dpp('quad_perm:[1,0,3,2]'))
        P(f'v_permlane32_swap_b32 {vr(A)}, {vr(A+2)}\nv_permlane32_swap_b32 {vr(A+1)}, {vr(A+3)}')
        P(dpp('row_ror:8'))
        P(f'v_add_f32 {vr(A)}, {vr(A)}, {vr(A+2)}\nv_add_f32 {vr(A+1)}, {vr(A+1)}, {vr(A+3)}\nv_cmp_ne_u32 vcc, 0, {vr(T)}')
        P(f'v_permlane16_swap_b32 {vr(A)}, {vr(A+1)}\nv_add_f32 {vr(A)}, {vr(A)}, {vr(A+1)}\nv_cvt_pk_bf16_f32 v68, {vr(A)}, {vr(A)}\nds_write_b16 {vr(vAW)}, v68')
        P(f's_cbranch_vccz {dn}')
        self.retry_tail(lp, dn)
        P.label(j2)
        P('s_waitcnt lgkmcnt(0)\ns_barrier')
        self.stamp(8 + sb, f'L{L} B2')
        P(f'ds_read_b128 v[68:71], {vr(vAO)}\nds_read_b128 v[72:75], {vr(vAO)} offset:16\ns_waitcnt lgkmcnt(1)')
        self.mfma(ACC0, 68, PHQ, None)
        P('s_waitcnt lgkmcnt(0)')
        self.mfma(ACC0, 72, PHQ + 4, ACC0)
        self.publish_o(L, ACC0, 1e-6)
        self.stamp(10 + sb, f'L{L} opub')
        P(f's_cmp_lg_u32 {sr(sHS)}, 0\ns_cbranch_scc1 {ax3}')
        self.main_outproj(L)
        P(f's_branch L_main_{L+1}')
        P.label(ax3)
        self.aux_tail(L)
        self.stamp(13 + sb, f'L{L} xpub')
        P(f's_branch L_aux_{L+1}')

    def epilogue(self):
        P = self.P; nl = self.nl
        P.label(f'L_main_{nl}')
        P(f's_or_b32 {sr(sT0)}, s2, {sr(sW)}\ns_cmp_lg_u32 {sr(sT0)}, 0\ns_cbranch_scc1 L_aux_{nl}\ns_mov_b32 {sr(sT2)}, 0')
        self.flag(sT2, sTAG, False)
        P.label(f'L_aux_{nl}')
        if self.stamps:
            P('s_waitcnt vmcnt(0)')
            self.stamp(62, 'end')
            P(f's_memtime {sr(sST,2)}\ns_waitcnt lgkmcnt(0)\ns_sub_u32 {sr(sST)}, {sr(sST)}, s100\nv_writelane_b32 {vr(vSTAMP)}, {sr(sST)}, 59')
            P(f'''v_writelane_b32 {vr(vSTAMP)}, {sr(sBUD)}, 63
v_writelane_b32 {vr(vSTAMP)}, {sr(sFAST)}, 61
v_writelane_b32 {vr(vSTAMP)}, s99, 58
v_writelane_b32 {vr(vSTAMP)}, s101, 56
s_lshl_b32 {sr(sT0)}, s2, 3
s_add_u32 {sr(sT0)}, {sr(sT0)}, {sr(sW)}
s_lshl_b32 {sr(sT0)}, {sr(sT0)}, 8
s_add_u32 {sr(sT0)}, {sr(sT0)}, {OFF_STAMP}
buffer_store_dword {vr(vSTAMP)}, {vr(vL4)}, {sr(sWS,4)}, {sr(sT0)} offen''')
            if self.o.get('dbgst'):
                P(f's_cmp_lg_u32 {sr(sHS)}, 0\ns_cbranch_scc1 L_end\ns_load_dwordx2 s[64:65], s[0:1], 64\nv_mov_b32 v30, 0')
                for j, (idx, neg) in enumerate([(60, 1), (60, 0), (0, 0), (2, 0), (1, 0), (3, 0), (8, 0), (10, 0), (13, 0), (27, 0), (41, 0), (62, 0), (59, 0), (3, 1), (13, 1), (62, 1)]):
                    P(f'v_readlane_b32 s66, {vr(vSTAMP)}, {idx}')
                    if neg: P('s_not_b32 s66, s66')
                    P(f'v_writelane_b32 v30, s66, {j}')
                P('s_waitcnt lgkmcnt(0)')
                self.srd(68, 64, 256)
                P(f's_mov_b64 exec, 0xffff\nbuffer_atomic_umax v30, {vr(vL4)}, s[68:71], 0 offen\ns_waitcnt vmcnt(0)')
        if self.o.get('spin'):
            lp = P.newlabel('Lspin'); P.label(lp)
            P(f's_memrealtime s[66:67]\ns_waitcnt lgkmcnt(0)\ns_sub_u32 s66, s66, s98\ns_cmp_lt_u32 s66, {self.o["spin"]}\ns_cbranch_scc1 {lp}')
        P.label('L_end')
        P('s_endpgm')

    def build(self):
        self.prologue()
        for L in range(self.nl):
            (self.layerA if L % 2 == 0 else self.layerB)(L)
        self.epilogue()
        self.emit_stubs()
        for L in range(0, self.nl, 2): self.attn_fallback(L)
        n = self.P.fix_hazards()
        errs = self.P.check_waits()
        head = open(f'cdna_kernels/{NAME}.s.ref').read().split('; @launch')[0]
        s = head + f'; @launch grid=(256,1,1) block=(512,1,1) lds={LDS_TOTAL}\n'
        s += f'.amdgcn_target "amdgcn-amd-amdhsa--gfx950"\n.text\n.globl {NAME}_kernel\n.p2align 8\n.type {NAME}_kernel,@function\n{NAME}_kernel:\n'
        s += self.P.text().replace('CODE_BYTES', '(L_end - %s_kernel - 1088)' % NAME)
        s += f'''.section .rodata,"a"
.p2align 6
.amdhsa_kernel {NAME}_kernel
  .amdhsa_next_free_vgpr 256
  .amdhsa_next_free_sgpr 102
  .amdhsa_accum_offset 256
  .amdhsa_group_segment_fixed_size 0
  .amdhsa_kernarg_size 80
  .amdhsa_user_sgpr_count 2
  .amdhsa_user_sgpr_kernarg_segment_ptr 1
  .amdhsa_system_sgpr_workgroup_id_x 1
.end_amdhsa_kernel
'''
        return s, n, errs


if __name__ == '__main__':
    import argparse, json
    ap = argparse.ArgumentParser()
    ap.add_argument('-o', default=f'cdna_kernels/{NAME}.s')
    ap.add_argument('--stamps', action='store_true')
    ap.add_argument('--safe', action='store_true')
    ap.add_argument('--cyc', action='store_true')
    ap.add_argument('--opt', nargs='*', default=[])
    ap.add_argument('--noalias', action='store_true')
    ap.add_argument('--nl', type=int, default=4)
    a = ap.parse_args()
    g = Gen(stamps=a.stamps, nlayers=a.nl, force_safe=a.safe, cyc=a.cyc, alias=not a.noalias, opt={k: int(v) for k, v in (x.split('=') for x in a.opt)})
    s, n, errs = g.build()
    open(a.o, 'w').write(s)
    if a.stamps: json.dump(g.stamp_names, open(a.o + '.stamps.json', 'w'))
    print('instructions', sum(1 for x in g.P.L if x.op), 'nops inserted', n, 'lds', LDS_TOTAL)
    for e in errs[:8]: print('WAITCHECK', e)
```

```python
import sys, struct
sys.path.insert(0, 'dev')
from asmlib import *

NAME = 'interleave_layers__sliding_block__linear_kernel_hedgehog__prompt'
def f2u(x): return struct.unpack('<I', struct.pack('<f', x))[0]
LOG2E = 1.4426950408889634

OFF_XFLAG = 0x1000
OFF_OFLAG = 0x9000
OFF_STAMP = 0x30000
OFF_ST = 0x100000
OFF_X = 0x200000
OFF_O = 0xA00000
OFF_KV = 0x1200000
KV_REC = 4480; KV_L = 1024*KV_REC
OFF_KP = 0x1B00000
KP_REC = 2688; KP_Q = 640; KP_Z = 2560; KP_L = 256*KP_REC
WS_USED = 0x2000000
OOB = 0x40000000
TAGC = 0x9E3779B0
SAFE_EXP = 30

LDS_WK = 0; LDS_WV = 32768; LDS_WQ = 65536; LDS_T = 65536; LDS_WO = 98304
LDS_OWN = 131072; OWN_ST = 6144
LDS_CSP = LDS_OWN + 4*OWN_ST
LDS_RSTD = LDS_CSP + 3072; LDS_KVT = LDS_RSTD + 512; LDS_ZT = LDS_KVT + 2048
LDS_FAST = LDS_ZT + 128; LDS_CNT = LDS_FAST + 16; LDS_ONES = LDS_FAST + 64; LDS_TOTAL = LDS_ONES + 1040
NT_LDS = {0: LDS_WQ, 1: LDS_WK, 2: LDS_WV, 'o': LDS_WO}
C_ST, C_XDONE, C_WGO, C_CS, C_Q, C_ATT, C_CSQ, C_WR = 0, 4, 5, 6, 7, 8, 9, 10

sWS, sX0, sWA, sWoA, sWB, sWoB, sPhi, sOut = 4, 8, 12, 16, 20, 24, 28, 32
sR, sC, sW, sMT, sHS, sRT, sQT, sTAG, sFAST, sBUD = 36, 37, 38, 39, 40, 41, 42, 43, 44, 45
sT0, sT1, sT2, sT3 = 46, 47, 48, 49
sLO = 50
sOWNF = 52; sCNT = 53; sSTEP = 54; sLOG2E = 55; sST = 56
sROT = 58; sDM = 59; sH0 = 60
sG0 = 62; sPERM = 63
sM = 64
sOW, sOF, sHB, sHAS, sP2, sC2, sOWN, sKVW, sXW, sSW, sXF, sRB = 72, 73, 74, 75, 76, 77, 78, 79, 80, 81, 82, 83
sLA = 86; sDG = 87; sDL = 88; sLB = 89; sLR = 90; sK0 = 91; sK1 = 92; sK2 = 93; sSEL0 = 94; sSEL1 = 95; sH1 = 96; sH2 = 97; sC1008 = 3
vT0, vLANE, vL16, vL4, vCNT, vTR1, vTR2, vSTAMP = 0, 1, 2, 3, 4, 5, 6, 7
XRES, WPHI = 8, 16
vDW, vDO, vCH, vCS, ONES = 8, 9, 10, 11, 12
vRSTD, vKA, vVA, vPD, vPA, vRA, vRB, vFD = 20, 21, 22, 23, 24, 25, 26, 27
vCK = vPD; XEXT = 28; ACC0 = 32; ACC1 = 48; RING = 64; WEXTQ = 84; WEXTK = 88; WEXTV = 92; VV = 88
STAT = 96; CDIAG = 96; PKV = 112; CFIRST = 112; XF = 128
aS, aO, aE, aQ, aK, aP, aH = 32, 48, 64, 72, 76, 80, 128
vSTV = 64
PHQ = 112
PARK = {1: 128, 2: 160, 0: 192, 'o': 224}
MFMA = 'v_mfma_f32_32x32x16_bf16'
MODS = ['', ' sc1', ' sc0', ' nt', ' sc0 sc1', ' sc1 nt', ' sc0 sc1 nt']
def cho(u): return (u >> 1)*8192 + (u & 1)*1024
SW4 = ((0, 2), (1, 3), (4, 6), (5, 7))


class Gen:
    def __init__(self, stamps=False, nlayers=4, force_safe=False, cyc=False, alias=True, opt=None):
        self.cyc = cyc; self.alias = alias
        self.o = dict(halo_at=35, prio=2, trunc=1, wgo=2, wgon=2, xd=8, od=10, x0d=3, psleep=1, kp_at=0, spec=0, pw=16, tlb=0, touch=1, b0=0, mcs=1, pre=2, pst=0, trk=3, ool=1, at2=1, qrate=4, omul=1, specx=0, lsleep=2, ev=7, st0=3, wo_at=0, pf=1, pfb=0, psp=0, xst=1, bq=0, early=0, p1=0, o3=1, outm=1, kp_step=2, vpre=1, hm=1, km=1, sm=1, pw1=2, pws=2, il=0, qgo=5, csk=22, wearly=0, apr=1, fpr=0, epr=0, mpr=0, sg=0, od1=10, pp=0, em=0, hx=1, ho=1, hp=1, hs=2, ex=0, ea=0, eb=0)
        self.o.update(opt or {})
        self.P = Prog(); self.stamps = stamps; self.nl = nlayers; self.force_safe = force_safe
        self.stamp_names = {}
        self.vm = Tracker(63); self.lg = Tracker(15); self.stubs = []; self.ool = []

    def stamp(self, idx, name=''):
        if not self.stamps: return
        self.stamp_names[idx] = name
        self.P(f'{"s_memtime" if self.cyc else "s_memrealtime"} {sr(sST,2)}\ns_waitcnt lgkmcnt(0)\nv_writelane_b32 {vr(vSTAMP)}, {sr(sST)}, {idx}')

    def al(self, L): return 0 if self.alias else L

    def mfma(self, d, a, b, c):
        cs = '0' if c is None else vr(c, 16)
        self.P(f'{MFMA} {vr(d,16)}, {vr(a,4)}, {vr(b,4)}, {cs}')

    def srd(self, s, ptr, nbytes):
        self.P(f's_mov_b32 {sr(s)}, {sr(ptr)}\ns_and_b32 {sr(s+1)}, {sr(ptr+1)}, 0xffff\ns_mov_b32 {sr(s+2)}, {nbytes}\ns_mov_b32 {sr(s+3)}, 0x20000')

    def poll(self, soff, masked=False, areg=vPA, val=sTAG):
        P = self.P; lp = P.newlabel('Lpoll'); dn = P.newlabel('Lpolld')
        P.label(lp)
        P(f'buffer_load_dword {vr(vPD)}, {vr(areg)}, {sr(sWS,4)}, {sr(soff)} offen sc1\ns_waitcnt vmcnt(0)')
        if masked:
            P(f'v_and_b32 {vr(vT0)}, -16, {vr(vPD)}\nv_cmp_ne_u32 vcc, {sr(sTAG)}, {vr(vT0)}')
        else:
            P(f'v_cmp_ne_u32 vcc, {sr(val)}, {vr(vPD)}')
        P(f's_cbranch_vccz {dn}')
        if self.o['psleep']: P(f's_sleep {self.o["psleep"]}')
        P(f's_sub_u32 {sr(sBUD)}, {sr(sBUD)}, 1\ns_cbranch_scc0 {lp}\ns_mov_b32 {sr(sBUD)}, 0')
        P.label(dn)

    def flag(self, soff, sval, sc1, wait=None, add=0):
        P = self.P
        P((f'v_add_u32 {vr(vPD)}, {sr(sval)}, {add}' if add else f'v_mov_b32 {vr(vPD)}, {sr(sval)}') + '\ns_mov_b64 exec, 1')
        if wait: P(wait)
        P(f'buffer_store_dword {vr(vPD)}, off, {sr(sWS,4)}, {sr(soff)}' + (' sc1' if sc1 else ''))
        P('s_mov_b64 exec, -1')

    def prio_if(self, cmp):
        P = self.P; l = P.newlabel('Lpr')
        b = self.o['prio'] - 1
        P(f's_setprio {b}\n{cmp}\ns_cbranch_scc0 {l}\ns_setprio {b+1}'); P.label(l)

    def lds_signal(self, idx, wait=True):
        w = 's_waitcnt lgkmcnt(0)\n' if wait else ''
        self.P(f'v_mov_b32 {vr(vPD)}, 1\ns_mov_b64 exec, 1\n{w}ds_add_u32 {vr(vCNT)}, {vr(vPD)} offset:{4*idx}\ns_mov_b64 exec, -1')

    def lds_wait(self, idx, val, sleep=0):
        P = self.P; lp = P.newlabel('Llw')
        P.label(lp)
        if sleep: P(f's_sleep {sleep}')
        P(f'ds_read_b32 {vr(vPD)}, {vr(vCNT)} offset:{4*idx}\ns_waitcnt lgkmcnt(0)\nv_cmp_gt_u32 vcc, {val}, {vr(vPD)}\ns_cbranch_vccnz {lp}')

    def lds_peek(self, idx):
        return [('ds', ('cnt', idx), f'ds_read_b32 {vr(vPD)}, {vr(vCNT)} offset:{4*idx}')]

    def lds_check(self, idx, val):
        P = self.P; ok = P.newlabel('Llc')
        P(waitstr(lg=self.lg.need(('cnt', idx))))
        P(f'v_cmp_gt_u32 vcc, {val}, {vr(vPD)}\ns_cbranch_vccz {ok}')
        self.lds_wait(idx, val)
        P.label(ok)

    def two_way(self, emit):
        P = self.P
        if self.force_safe:
            emit(True); return
        ls = P.newlabel('Lsafe'); le = P.newlabel('Lpub')
        P(f's_cmp_eq_u32 {sr(sFAST)}, 0\ns_cbranch_scc1 {ls}')
        emit(False)
        if self.o['ool']:
            self.ool.append((ls, emit, le))
        else:
            P(f's_branch {le}'); P.label(ls)
            emit(True)
        P.label(le)

    def item(self, it):
        P = self.P
        if isinstance(it, str): P(it)
        elif it[0] == 'wvm': P(waitstr(vm=self.vm.need(it[1])))
        elif it[0] == 'wlg': P(waitstr(lg=self.lg.need(it[1])))
        elif it[0] == 'ds': P(it[2]); self.lg.issue(it[1])
        elif it[0] == 'fn': it[1]()

    def checksum(self, dst, src, n):
        ops = [f'v_add3_u32 {vr(dst)}, {sr(sTAG)}, {vr(src)}, {vr(src+1)}']
        for i in range(2, n, 2): ops.append(f'v_add3_u32 {vr(dst)}, {vr(dst)}, {vr(src+i)}, {vr(src+i+1)}')
        return ops

    def retry_tail(self, lp, dn):
        if self.stamps: self.P('s_add_u32 s99, s99, 1')
        self.P(f's_sub_u32 {sr(sBUD)}, {sr(sBUD)}, 1\ns_cbranch_scc0 {lp}\ns_mov_b32 {sr(sBUD)}, 0')
        self.P.label(dn)
        if self.stamps: self.P('s_lshl_b32 s99, s99, 6')

    def prologue(self):
        P = self.P; o = self.o
        vH, vT = 64, 65
        if self.stamps: P('s_memrealtime s[98:99]\ns_memtime s[100:101]')
        elif o.get('spin'): P('s_memrealtime s[98:99]')
        P(f"""s_cmp_ge_u32 s2, 256
s_cbranch_scc1 L_end
s_load_dwordx16 s[64:79], s[0:1], 0
s_load_dwordx4 s[80:83], s[0:1], 64
s_getpc_b64 s[84:85]
v_lshrrev_b32 v1, 6, v0
s_lshr_b32 {sr(sT1)}, s2, 3
v_readfirstlane_b32 {sr(sW)}, v1
v_and_b32 {vr(vLANE)}, 63, v0
v_lshlrev_b32 {vr(vL16)}, 4, {vr(vLANE)}""")
        lc = P.newlabel('Lx')
        P(f"""s_cmp_lt_u32 {sr(sW)}, 6
s_cbranch_scc1 {lc}
s_and_b32 {sr(sT0)}, {sr(sW)}, 1
s_lshl_b32 {sr(sT0)}, {sr(sT0)}, 5
s_add_u32 {sr(sT0)}, {sr(sT0)}, {sr(sT1)}
s_lshl_b32 {sr(sT0)}, {sr(sT0)}, 10
s_cmp_ge_u32 {sr(sT0)}, CODE_BYTES
s_cbranch_scc1 {lc}
v_add_u32 v255, {sr(sT0)}, {vr(vL16)}
global_load_dword v255, v255, s[84:85]""")
        P.label(lc)
        P(f"""s_and_b32 {sr(sT0)}, s2, 7
s_add_u32 {sr(sC)}, {sr(sT1)}, {o.get('cadd', 0)}
s_and_b32 {sr(sC)}, {sr(sC)}, 15
s_lshr_b32 {sr(sT1)}, {sr(sT1)}, 4
s_lshl_b32 {sr(sR)}, {sr(sT0)}, 1
s_add_u32 {sr(sR)}, {sr(sR)}, {sr(sT1)}
s_and_b32 {sr(sMT)}, {sr(sW)}, 3
s_lshr_b32 {sr(sHS)}, {sr(sW)}, 2
s_lshl_b32 {sr(sRT)}, {sr(sR)}, 2
s_add_u32 {sr(sRT)}, {sr(sRT)}, {sr(sMT)}
s_lshr_b32 {sr(sROT)}, {sr(sC)}, 1
s_add_u32 {sr(sROT)}, {sr(sROT)}, {sr(sT0)}
s_lshl_b32 {sr(sT1)}, {sr(sT1)}, 1
s_add_u32 {sr(sROT)}, {sr(sROT)}, {sr(sT1)}
s_lshl_b32 {sr(sT1)}, {sr(sC)}, 2
s_add_u32 {sr(sROT)}, {sr(sROT)}, {sr(sT1)}
s_and_b32 {sr(sROT)}, {sr(sROT)}, 7
v_mov_b32 v8, 0
v_mov_b32 v9, 0
v_mov_b32 v10, 0
v_mov_b32 v11, 0
v_mov_b32 v90, 0
v_mov_b32 {vr(vPA)}, 0
v_mov_b32 v91, 0
v_mov_b32 v93, 0
v_mov_b32 {vr(vCNT)}, {LDS_CNT}
ds_write_b128 {vr(vCNT)}, v[8:11]
ds_write_b128 {vr(vCNT)}, v[8:11] offset:16
ds_write_b128 {vr(vCNT)}, v[8:11] offset:32
v_lshrrev_b32 v28, 3, {vr(vLANE)}
v_lshlrev_b32 v28, 10, v28
v_lshrrev_b32 v29, 4, {vr(vLANE)}
v_xor_b32 v29, v29, {vr(vLANE)}
v_and_b32 v29, 7, v29
v_lshl_add_u32 v28, v29, 4, v28
v_xor_b32 v29, 64, v28
v_add_u32 v30, {2*7168}, v28
v_add_u32 v31, {3*7168}, v29
v_add_u32 v29, 7168, v29
s_lshl_b32 {sr(sLB)}, {sr(sRT)}, 15
s_lshl_b32 {sr(sLR)}, {sr(sROT)}, 7
s_mul_i32 {sr(sLA)}, {sr(sMT)}, {12288 if o['il'] else 16384}
s_add_u32 {sr(sLA)}, {sr(sLA)}, {LDS_WO if o['il'] else LDS_WQ}
s_waitcnt lgkmcnt(0)
s_load_dword {sr(sTAG)}, s[82:83], 0""")
        self.srd(sX0, 64, 2097152)
        if o['pf'] >= 3:
            lq = P.newlabel('Lx')
            P(f"""s_cmp_lg_u32 {sr(sW)}, {o['pf'] + 1}
s_cbranch_scc1 {lq}
s_lshr_b32 {sr(sT0)}, s2, 3
s_sub_u32 {sr(sT1)}, {sr(sT0)}, 24
s_cselect_b32 {sr(sT0)}, {sr(sT0)}, {sr(sT1)}
s_cselect_b64 {sr(sT2,2)}, s[66:67], s[68:69]
s_lshl_b32 {sr(sT0)}, {sr(sT0)}, 16
v_lshl_add_u32 v26, {vr(vLANE)}, 10, {sr(sT0)}
global_load_dword v25, v26, {sr(sT2,2)} offset:384""")
            P.label(lq)
        def dma_addr():
            P(f"""v_lshrrev_b32 v28, 2, {vr(vLANE)}
v_and_b32 v29, 3, {vr(vLANE)}
v_lshlrev_b32 v29, 4, v29
s_lshl_b32 {sr(sT0)}, {sr(sC)}, 6
v_add_u32 v29, {sr(sT0)}, v29
v_mul_u32_u24 {vr(vDW)}, 3072, v28
v_add_u32 {vr(vDW)}, {vr(vDW)}, v29
v_lshl_add_u32 {vr(vDO)}, v28, 10, v29
s_lshl_b32 {sr(sLA)}, {sr(sMT)}, 11
s_lshr_b32 {sr(sT0)}, {sr(sMT)}, 1
s_add_u32 {sr(sT0)}, {sr(sT0)}, {sr(sROT)}
s_and_b32 {sr(sT0)}, {sr(sT0)}, 7
s_lshl_b32 {sr(sG0)}, {sr(sT0)}, 16
s_and_b32 {sr(sT0)}, {sr(sMT)}, 1
s_lshl_b32 {sr(sT0)}, {sr(sT0)}, 15
s_add_u32 {sr(sG0)}, {sr(sG0)}, {sr(sT0)}""")
        avm = Tracker(63)
        P(f's_cmp_lg_u32 {sr(sHS)}, 0\ns_cbranch_scc1 L_pro1')
        for g in range(2): self.x0_load(g)
        if o['wearly']: P('s_branch L_pro2')
        P.label('L_pro1')
        if o['wearly']:
            self.srd(sWA, 66, 1572864)
            dma_addr()
            for st in range(o['wearly']): self.dma_w(0, (1, 2), (st,)); avm.issue(st, 4)
        P.label('L_pro2')
        P('s_barrier')
        self.srd(sWS, 82, WS_USED); self.srd(sWA, 66, 1572864); self.srd(sWoA, 68, 524288)
        self.srd(sWB, 72, 1572864); self.srd(sPhi, 74, 16384); self.srd(sWoB, 76, 524288); self.srd(sOut, 78, 2097152)
        P(f"""s_mul_i32 {sr(sT0)}, {sr(sHS)}, 3
s_xor_b32 {sr(sQT)}, {sr(sMT)}, {sr(sT0)}
s_mov_b32 {sr(sBUD)}, 0x100000
s_mov_b32 {sr(sLO)}, 0xffff
s_mov_b32 {sr(sLO+1)}, 0xffff
s_mov_b32 {sr(sH0)}, -1
s_mov_b32 {sr(sH0+1)}, 0
s_mov_b32 {sr(sFAST)}, 0
s_mov_b32 {sr(sDM)}, 0
s_mov_b32 {sr(sLOG2E)}, {f2u(LOG2E):#x}
s_mov_b32 {sr(sPERM)}, 0x07060302
s_mov_b32 {sr(sC1008)}, 1008
s_getreg_b32 {sr(sOWNF)}, hwreg(HW_REG_XCC_ID, 0, 4)
v_lshrrev_b32 {vr(vH)}, 5, {vr(vLANE)}
v_and_b32 {vr(vT)}, 31, {vr(vLANE)}
v_lshlrev_b32 {vr(vL4)}, 2, {vr(vLANE)}
v_mov_b32 {vr(vSTAMP)}, 0
v_bfe_u32 {vr(vTR1)}, {vr(vLANE)}, 2, 2
v_lshl_add_u32 {vr(vTR1)}, {vr(vH)}, 2, {vr(vTR1)}
v_lshlrev_b32 {vr(vTR2)}, 6, {vr(vTR1)}
v_bfe_u32 {vr(vTR1)}, {vr(vLANE)}, 4, 1
v_lshl_add_u32 {vr(vTR2)}, {vr(vTR1)}, 5, {vr(vTR2)}
v_and_b32 {vr(vTR1)}, 3, {vr(vLANE)}
v_lshl_add_u32 {vr(vTR2)}, {vr(vTR1)}, 3, {vr(vTR2)}
v_lshl_add_u32 {vr(vTR1)}, {vr(vH)}, 8, {vr(vTR2)}
v_add_u32 {vr(vTR1)}, {LDS_WQ}, {vr(vTR1)}
v_add_u32 {vr(vTR2)}, {LDS_WO}, {vr(vTR2)}
s_lshl_b32 {sr(sT0)}, {sr(sMT)}, 7
s_add_u32 {sr(sT0)}, {sr(sT0)}, {LDS_RSTD}
v_lshl_add_u32 {vr(vRA)}, {vr(vT)}, 2, {sr(sT0)}
v_lshl_add_u32 {vr(vRB)}, {vr(vH)}, 4, {sr(sT0)}
v_lshlrev_b32 {vr(vFD)}, 2, {vr(vH)}
v_sub_u32 {vr(vFD)}, {vr(vT)}, {vr(vFD)}
v_cvt_f32_i32 {vr(vFD)}, {vr(vFD)}
v_mul_f32 {vr(vFD)}, {f2u(2.0**100):#x}, {vr(vFD)}
s_waitcnt lgkmcnt(0)
s_and_b32 {sr(sTAG)}, {sr(sTAG)}, -16
s_add_u32 {sr(sTAG)}, {sr(sTAG)}, {TAGC:#x}
s_or_b32 {sr(sOWNF)}, {sr(sOWNF)}, {sr(sTAG)}
s_lshl_b32 {sr(sT0)}, {sr(sR)}, 2
s_add_u32 {sr(sT0)}, {sr(sT0)}, {sr(sQT)}
s_lshl_b32 {sr(sT0)}, {sr(sT0)}, 5
s_lshl_b32 {sr(sT1)}, {sr(sC)}, 1
s_add_u32 {sr(sT0)}, {sr(sT0)}, {sr(sT1)}
s_add_u32 {sr(sT0)}, {sr(sT0)}, {sr(sHS)}
s_lshl_b32 {sr(sOW)}, {sr(sT0)}, 10
s_lshl_b32 {sr(sOF)}, {sr(sT0)}, 2
s_lshr_b32 {sr(sT0)}, {sr(sMT)}, 1
s_add_u32 {sr(sT0)}, {sr(sT0)}, {sr(sR)}
s_sub_u32 {sr(sT0)}, {sr(sT0)}, 2
s_cselect_b32 {sr(sHAS)}, 0, 1
s_lshl_b32 {sr(sT0)}, {sr(sT0)}, 1
s_and_b32 {sr(sT1)}, {sr(sMT)}, 1
s_add_u32 {sr(sT0)}, {sr(sT0)}, {sr(sT1)}
s_lshl_b32 {sr(sT0)}, {sr(sT0)}, 5
s_add_u32 {sr(sT0)}, {sr(sT0)}, {sr(sC)}
s_mul_i32 {sr(sHB)}, {sr(sT0)}, {KV_REC}
s_cmp_lt_u32 {sr(sQT)}, 2
s_cselect_b32 {sr(sHAS)}, {sr(sHAS)}, 0
s_cmp_eq_u32 {sr(sR)}, 1
s_cselect_b32 {sr(sT0)}, 4, {sr(sQT)}
s_sub_u32 {sr(sC2)}, 8, {sr(sT0)}
s_lshl_b32 {sr(sP2)}, {sr(sT0)}, 12
s_add_u32 {sr(sP2)}, {sr(sP2)}, {LDS_T}
s_mul_i32 {sr(sOWN)}, {sr(sQT)}, {OWN_ST}
s_add_u32 {sr(sOWN)}, {sr(sOWN)}, {LDS_OWN}
s_lshl_b32 {sr(sT0)}, {sr(sRT)}, 4
s_add_u32 {sr(sT0)}, {sr(sT0)}, {sr(sC)}
s_mul_i32 {sr(sKVW)}, {sr(sT0)}, {KV_REC}
s_lshl_b32 {sr(sXW)}, {sr(sT0)}, 11
s_lshl_b32 {sr(sSW)}, {sr(sT0)}, 8
s_lshl_b32 {sr(sXF)}, {sr(sRT)}, 7
s_lshl_b32 {sr(sRB)}, {sr(sRT)}, 15""")
        self.stamp(0, 'start')
        if self.stamps:
            self.stamp_names[60] = 'entry'; P(f'v_writelane_b32 {vr(vSTAMP)}, s98, 60\ns_mov_b32 s99, 0\ns_mov_b32 s101, 0')
        P(f's_cmp_eq_u32 {sr(sHS)}, 0\ns_cbranch_scc1 L_main_0')
        lh = P.newlabel('Lx'); lt = P.newlabel('Lx')
        P(f"""s_lshl_b32 {sr(sT2)}, {sr(sR)}, 7
s_lshl_b32 {sr(sT3)}, {sr(sC)}, 2
s_add_u32 {sr(sT2)}, {sr(sT2)}, {sr(sT3)}
s_add_u32 {sr(sT2)}, {sr(sT2)}, {OFF_XFLAG}
s_cmp_lg_u32 {sr(sMT)}, 0
s_cbranch_scc1 {lh}""")
        self.flag(sT2, sOWNF, True)
        P.label(lh)
        if o['pf'] in (1, 2): self.coop_prefetch(0, o['pf'])
        if not o['wearly']: dma_addr()
        P(f"""v_add_u32 {vr(vCH)}, {sr(sLA)}, {vr(vL16)}
v_subrev_u32 {vr(vCS)}, {LDS_WO}, {vr(vTR2)}
v_add_u32 {vr(vCS)}, {sr(sLA)}, {vr(vCS)}
v_lshl_add_u32 v31, {vr(vH)}, 8, {vr(vCS)}""")
        for i in range(4): P(f'v_mov_b32 {vr(ONES+i)}, 0x3f803f80')
        P(f'v_lshlrev_b32 v30, 10, {vr(vH)}\nv_add_u32 v30, {LDS_ONES}, v30\nds_write_b128 v30, {vr(ONES,4)}')
        self.csp_waddr(0)
        P(f'v_lshl_add_u32 v30, {vr(vH)}, 9, v28')
        for op in self.mask_ops(0) + self.mask_ops(1): P(op)
        if o['tlb']:
            lw = P.newlabel('Lx')
            P(f"""s_cmp_lg_u32 {sr(sMT)}, 1
s_cbranch_scc1 {lw}
v_and_b32 v68, 15, {vr(vLANE)}
v_bfe_u32 v69, {vr(vLANE)}, 4, 1
s_lshl_b32 {sr(sT0)}, {sr(sR)}, 2
s_sub_u32 {sr(sT0)}, {sr(sT0)}, 8
v_min_u32 v70, 11, v68
v_add_u32 v70, {sr(sT0)}, v70
v_max_i32 v70, 0, v70
v_lshl_add_u32 v70, v70, 4, {sr(sC)}
v_lshl_add_u32 v70, v69, 10, v70
v_mul_u32_u24 v70, {KV_REC}, v70
v_add_u32 v70, {OFF_KV + KV_REC - 128}, v70
s_lshl_b32 {sr(sT0)}, {sr(sC)}, 4
v_add_u32 v68, {sr(sT0)}, v68
v_lshl_add_u32 v68, v69, 8, v68
v_mul_u32_u24 v68, {KP_REC}, v68
v_add_u32 v68, {OFF_KP + KP_REC - 128}, v68
v_cndmask_b32 v68, v68, v70, {sr(sH0,2)}
buffer_load_dword v26, v68, {sr(sWS,4)}, 0 offen""")
            P.label(lw)
        if o['wgo']: self.lds_wait(C_WGO, o['wgon'])
        self.stamp(2, 'x g0 / W go')
        PRE = o['pre']; MCS = o['mcs']; CA = {1: 32, 2: 64, 0: 32}
        for st in range(o['wearly'], PRE): self.dma_w(0, (1, 2), (st,)); avm.issue(st, 4)
        qs = [[0, 1], [2, 3]] if PRE == 2 else ([[0, 1], [2, 3], []] if PRE == 3 else [[], [0, 1], [2, 3], []])
        first_q = True
        if not MCS:
            for i in range(4): P(f'v_mov_b32 {vr(64+i)}, 0')
        if o['il']: qs = [[]]*4
        for st in range(4):
            if st + PRE < 4: self.dma_w(0, (1, 2), (st + PRE,)); avm.issue(st + PRE, 4)
            else:
                q = qs.pop(0)
                if q:
                    if first_q:
                        self.lds_wait(C_XDONE, 4); first_q = False
                        if o['apr']: P('s_setprio 3')
                    self.dma_w(0, (0,), q); avm.issue('q', 4)
            P(waitstr(vm=avm.need(st)))
            self.stamp((15, 23, 29, 1)[st], ('x g3 / W st0', 'x g5 / W st1', 'S0 / W st2', 'x0 / W st3')[st])
            self.lds_signal(C_ST + st)
            ch = [(nt, 2*st + e) for nt in (1, 2) for e in range(2)]
            for nt, u in ch:
                r_ = PARK[nt] + 4*u; of = NT_LDS[nt] + cho(u)
                P(f'ds_read_b64_tr_b16 {vr(r_,2)}, v31 offset:{of}\nds_read_b64_tr_b16 {vr(r_+2,2)}, v31 offset:{of+256}')
            for k, (nt, u) in enumerate(ch):
                P(f's_waitcnt lgkmcnt({6-2*k})')
                if MCS: self.mfma(CA[nt], ONES, PARK[nt] + 4*u, None if u == 0 else CA[nt])
                else: self.valu_sum(PARK[nt] + 4*u, 64 + 2*(nt - 1))
        if MCS: P(f'ds_write_b32 v28, {vr(CA[1])} offset:512\nds_write_b32 v28, {vr(CA[2])} offset:1024')
        else: P('v_add_f32 v64, v64, v65\nv_add_f32 v66, v66, v67\nv_permlane32_swap_b32 v64, v66\nv_add_f32 v64, v64, v66\nds_write_b32 v30, v64 offset:512')
        self.lds_signal(C_CS, wait=False)
        if o['apr'] == 1: P('s_setprio 0')
        self.stamp(14, 'S3 / W done')
        if o['il']:
            self.lds_wait(C_CSQ, 4, 1); self.dma_w(0, (0,))
            self.lds_wait(C_XDONE, 4, 1)
        if o['wo_at'] == 0: self.dma_w(0, ('o',))
        P(f'v_add_u32 v31, {LDS_WQ}, v31\ns_waitcnt vmcnt({8 if o["wo_at"] == 0 else 0})')
        self.lds_signal(C_Q)
        self.stamp(4, 'Q done')
        if o['wo_at'] == 1: self.dma_w(0, ('o',))
        for u0 in (0, 4):
            for u in range(u0, u0 + 4):
                r_ = PARK[0] + 4*u
                P(f'ds_read_b64_tr_b16 {vr(r_,2)}, v31 offset:{cho(u)}\nds_read_b64_tr_b16 {vr(r_+2,2)}, v31 offset:{cho(u)+256}')
            for k, u in enumerate(range(u0, u0 + 4)):
                P(f's_waitcnt lgkmcnt({6-2*k})')
                self.mfma(CA[0], ONES, PARK[0] + 4*u, None if u == 0 else CA[0])
        P(f'ds_write_b32 v28, {vr(CA[0])}')
        self.lds_signal(C_CSQ, wait=False)
        P(f"""s_cmp_lg_u32 {sr(sMT)}, 2
s_cbranch_scc1 {lt}
v_lshlrev_b32 v6, 7, {vr(vLANE)}
s_mul_i32 {sr(sT0)}, s2, {48*128}
buffer_load_dword v26, v6, {sr(sWB,4)}, {sr(sT0)} offen
v_and_b32 v6, 0x780, v6
s_lshl_b32 {sr(sT0)}, s2, 11
buffer_load_dword v26, v6, {sr(sWoB,4)}, {sr(sT0)} offen""")
        P.label(lt)
        if o['pfb'] == 1: self.coop_prefetch(1, 1)
        P('s_branch L_aux_0')

    def coop_prefetch(self, typ, mode):
        P = self.P; l1 = P.newlabel('Lx'); l2 = P.newlabel('Lx')
        if mode == 1: P(f's_cmp_lg_u32 {sr(sMT)}, 1\ns_cbranch_scc1 {l2}')
        offs = (128,) if mode == 1 else (128, 0)
        P(f"""v_lshlrev_b32 v5, 10, {vr(vLANE)}
s_lshr_b32 {sr(sT0)}, s2, 3
s_lshl_b32 {sr(sT0)}, {sr(sT0)}, 16
s_lshl_b32 {sr(sT1)}, {sr(sMT)}, 8
s_add_u32 {sr(sT0)}, {sr(sT0)}, {sr(sT1)}
s_cmp_ge_u32 s2, 192
s_cbranch_scc1 {l1}""")
        for of in offs: P(f'buffer_load_dword v26, v5, {sr((sWA, sWB)[typ],4)}, {sr(sT0)} offen offset:{of}')
        P(f's_branch {l2}'); P.label(l1)
        P(f's_sub_u32 {sr(sT0)}, {sr(sT0)}, {24 << 16}')
        for of in offs: P(f'buffer_load_dword v26, v5, {sr((sWoA, sWoB)[typ],4)}, {sr(sT0)} offen offset:{of}')
        P.label(l2)

    def valu_sum(self, frag, acc):
        for i in range(4):
            self.P(f'v_lshlrev_b32 v68, 16, {vr(frag+i)}\nv_and_b32 v69, 0xffff0000, {vr(frag+i)}\nv_add_f32 {vr(acc)}, {vr(acc)}, v68\nv_add_f32 {vr(acc+1)}, {vr(acc+1)}, v69')

    def x0_load(self, g):
        P = self.P
        P(f's_add_u32 m0, {sr(sLA)}, {(g % (3 if self.o["il"] else 4))*4096}\ns_add_u32 {sr(sT3)}, {sr(sLB)}, {sr(sLR)}')
        for j in range(4): P(f'buffer_load_dwordx4 {vr(28+j)}, {sr(sX0,4)}, {sr(sT3)} offen offset:{j*1024} lds')
        P(f's_add_u32 {sr(sLR)}, {sr(sLR)}, 128\ns_and_b32 {sr(sLR)}, {sr(sLR)}, 0x3ff')
        self.vm.issue(('x', g), 4)

    def code_prefetch(self, label):
        P = self.P; lc = P.newlabel('Lx')
        P(f"""s_cmp_lg_u32 {sr(sMT)}, 3
s_cbranch_scc1 {lc}
s_lshl_b32 {sr(sT0)}, {sr(sC)}, 10
s_add_u32 {sr(sT0)}, {sr(sT0)}, ({label} - {NAME}_kernel)
s_cmp_ge_u32 {sr(sT0)}, CODE_BYTES
s_cbranch_scc1 {lc}
v_add_u32 v26, {sr(sT0)}, {vr(vL16)}
global_load_dword v26, v26, s[84:85]""")
        P.label(lc)

    def wphi_load(self, B=96):
        P = self.P; a, t = vr(B + 8), vr(B + 9)
        P(f"""s_lshl_b32 {sr(sT0)}, {sr(sC)}, 1
s_add_u32 {sr(sT0)}, {sr(sT0)}, {sr(sHS)}
s_lshl_b32 {sr(sT0)}, {sr(sT0)}, 9
v_bfe_u32 {a}, {vr(vLANE)}, 3, 2
v_and_b32 {t}, 3, {vr(vLANE)}
v_lshl_add_u32 {a}, {a}, 2, {t}
v_lshlrev_b32 {a}, 1, {a}
v_lshrrev_b32 {t}, 5, {vr(vLANE)}
v_lshl_add_u32 {a}, {t}, 7, {a}""")
        for j in range(8):
            d = (j if j < 4 else 8 + j - 4)
            P(f'buffer_load_ushort {vr(B+j)}, {a}, {sr(sPhi,4)}, {sr(sT0)} offen offset:{d*32}')

    def wphi_pack(self, B=96):
        ops = [f'v_lshl_or_b32 {vr(WPHI+p)}, {vr(B+2*p+1)}, 16, {vr(B+2*p)}' for p in range(4)]
        ops += [f'v_bfe_i32 {vr(B)}, {vr(vLANE)}, 2, 1', f'v_and_b32 {vr(B)}, 0x80008000, {vr(B)}']
        return ops + [f'v_xor_b32 {vr(WPHI+p)}, {vr(B)}, {vr(WPHI+p)}' for p in range(4)]

    def dma_w(self, typ, nts, stages=range(4)):
        P = self.P; wo = nts == ('o',)
        srd = (sWoA, sWoB)[typ] if wo else (sWA, sWB)[typ]
        for st in stages:
            P(f's_add_u32 {sr(sT0)}, {sr(sG0)}, {st*0x20000}\ns_and_b32 {sr(sT0)}, {sr(sT0)}, 0x7ffff')
            if not wo: P(f's_mul_i32 {sr(sT0)}, {sr(sT0)}, 3')
            for e in range(2):
                for nt in nts:
                    P(f's_add_u32 m0, {sr(sLA)}, {NT_LDS[nt] + cho(2*st + e)}')
                    P(f's_add_u32 {sr(sT1)}, {sr(sT0)}, {e*16384 if wo else e*49152 + nt*1024}')
                    P(f'buffer_load_dwordx4 {vr(vDO if wo else vDW)}, {sr(srd,4)}, {sr(sT1)} offen lds')

    def csp_waddr(self, typ):
        self.P(f"""s_lshl_b32 {sr(sT0)}, {sr(sMT)}, 2
s_add_u32 {sr(sT0)}, {sr(sT0)}, {LDS_CSP + typ*1536}
v_and_b32 v28, 31, {vr(vLANE)}
v_lshl_add_u32 v28, v28, 4, {sr(sT0)}""")

    def chunk_addr(self, region):
        if region < 65536: return vCH, region
        self.P(f'v_add_u32 {vr(vT0)}, {region}, {vr(vCH)}'); return vT0, 0

    def lds_to_regs(self, region, dst, tr=False):
        if tr:
            self.P(f'v_add_u32 v29, {region}, {vr(vCS)}')
            for u in range(8): self.P(f'ds_read_b64_tr_b16 {vr(dst+4*u,2)}, v29 offset:{cho(u)}\nds_read_b64_tr_b16 {vr(dst+4*u+2,2)}, v29 offset:{cho(u)+512}')
            return
        a, o = self.chunk_addr(region)
        for u in range(8): self.P(f'ds_read_b128 {vr(dst+4*u,4)}, {vr(a)} offset:{o+cho(u)}')

    def regs_to_lds(self, region, src):
        a, o = self.chunk_addr(region)
        for u in range(8): self.P(f'ds_write_b128 {vr(a)}, {vr(src+4*u,4)} offset:{o+cho(u)}')

    def relayout(self, typ, nts, tmp=64, ntmp=8):
        P = self.P
        if nts != ('o',): self.csp_waddr(typ)
        for k, nt in enumerate(nts):
            region = NT_LDS[nt]
            P(f'v_add_u32 v29, {region}, {vr(vCS)}')
            acc = ACC0 if k % 2 == 0 else ACC1
            lg = Tracker(15)
            reg = lambda u: tmp + 4*(u % ntmp)
            for u0 in range(0, 8, 4):
                for u in range(u0, u0 + 4):
                    P(f'ds_read_b64_tr_b16 {vr(reg(u),2)}, v29 offset:{cho(u)}\nds_read_b64_tr_b16 {vr(reg(u)+2,2)}, v29 offset:{cho(u)+512}'); lg.issue(u, 2)
                for u in range(u0, u0 + 4):
                    P(waitstr(lg=lg.need(u)))
                    if nt != 'o': self.mfma(acc, ONES, reg(u), None if u == 0 else acc)
        for k, nt in enumerate(nts):
            if nt != 'o': P(f'ds_write_b32 v28, {vr(ACC0 if k % 2 == 0 else ACC1)} offset:{nt*512}')
        P('s_waitcnt lgkmcnt(0)')

    def swap_region(self, nt, save, tr=False):
        P = self.P
        if save:
            self.lds_to_regs(NT_LDS[nt], 32, tr); P('s_waitcnt lgkmcnt(0)')
        self.regs_to_lds(NT_LDS[nt], PARK[nt]); P('s_waitcnt lgkmcnt(0)')
        if save:
            for i in range(32): P(f'v_mov_b32 {vr(PARK[nt]+i)}, {vr(32+i)}')

    def unpack_res(self):
        for p in range(8):
            self.P(f'v_lshlrev_b32 {vr(ACC0+2*p)}, 16, {vr(XRES+p)}\nv_and_b32 {vr(ACC0+2*p+1)}, 0xffff0000, {vr(XRES+p)}')

    def rowmajor_addr(self, dst, tmp, sdst):
        self.P(f"""v_and_b32 {vr(dst)}, 31, {vr(vLANE)}
v_lshlrev_b32 {vr(dst)}, 10, {vr(dst)}
v_lshrrev_b32 {vr(tmp)}, 5, {vr(vLANE)}
v_lshl_add_u32 {vr(dst)}, {vr(tmp)}, 4, {vr(dst)}
s_lshl_b32 {sr(sdst)}, {sr(sC)}, 6
s_add_u32 {sr(sdst)}, {sr(sdst)}, {sr(sRB)}""")

    def publish_x_addr(self, L):
        if L == self.nl: return self.rowmajor_addr(vKA, vVA, sK0)
        self.P(f's_add_u32 {sr(sK1)}, {sr(sSW)}, {OFF_ST}')
        if L == 1 or self.o['hx']: self.P(f's_lshl_b32 {sr(sK2)}, {sr(sC)}, 2\ns_add_u32 {sr(sK2)}, {sr(sK2)}, {sr(sXF)}\ns_add_u32 {sr(sK2)}, {sr(sK2)}, {OFF_XFLAG + 0x2000}')

    def set_par(self, reg, par):
        return f'v_or_b32 {vr(reg)}, 1, {vr(reg)}' if par else f'v_and_b32 {vr(reg)}, -2, {vr(reg)}'

    def acc_par(self, a, b, par):
        return f'v_bitop3_b32 {vr(vPD)}, {vr(vPD)}, {vr(a)}, {vr(b)} bitop3:0x80' if par else f'v_or3_b32 {vr(vPD)}, {vr(vPD)}, {vr(a)}, {vr(b)}'

    def test_par(self, par):
        return f'v_and_b32 {vr(vCK)}, 1, {vr(vPD)}\nv_cmp_ne_u32 vcc, {par}, {vr(vCK)}'

    def hint_prep(self, r, add):
        return [f'v_cmp_gt_u32 vcc, {sr(sFAST)}, {vr(vLANE)}', f'v_add_u32 {vr(r)}, {sr(sTAG)}, {add}', f'v_cndmask_b32 {vr(r+1)}, {OOB:#x}, {vr(vLANE)}, vcc']

    def hint(self, r, soff):
        self.P(f'buffer_store_dword {vr(r)}, {vr(r+1)}, {sr(sWS,4)}, {sr(soff)} offen')

    def first_hop(self, base_off, foff, mask, par=None, add=0):
        self.P(f'v_and_b32 v110, {mask}, {vr(vL4)}\ns_add_u32 {sr(sT2)}, {sr(sXF)}, {foff}')
        self.frag_setup(base_off)
        if add: self.P(f's_add_u32 {sr(sT0)}, {sr(sTAG)}, {add}')
        NP = self.o['hp']
        if NP:
            P = self.P; lp = P.newlabel('Lpoll'); dn = P.newlabel('Lpolld'); val = sT0 if add else sTAG
            ld = lambda i: P(f'buffer_load_dword {vr(104 + i)}, v110, {sr(sWS,4)}, {sr(sT2)} offen sc1')
            for i in range(NP):
                ld(i); P(f's_sleep {self.o["hs"]}')
            P.label(lp)
            for i in range(NP + 1):
                ld((i + NP) % (NP + 1))
                P(f's_waitcnt vmcnt({NP})\nv_cmp_ne_u32 vcc, {sr(val)}, {vr(104 + i)}\ns_cbranch_vccz {dn}')
            P(f's_sub_u32 {sr(sBUD)}, {sr(sBUD)}, 1\ns_cbranch_scc0 {lp}\ns_mov_b32 {sr(sBUD)}, 0')
            P.label(dn)
        else: self.poll(sT2, areg=110, val=sT0 if add else sTAG)
        if par is not None: self.P(f'v_mov_b32 {vr(vPD)}, {par}')
        return 0

    def probe(self, srd, base_off, par, nwin):
        P = self.P; lp = P.newlabel('Lprobe'); dn = P.newlabel('Lprobed'); S = min(self.o['specx' if srd == sOut else 'spec'], nwin)
        self.frag_setup(base_off)
        if self.o['pp']:
            A_, B_, AD_ = 108, 109, vPA
            if srd == sOut:
                AD_ = 110; P(f'v_or_b32 v110, 1024, {vr(vPA)}')
            ld = lambda r: P(f'buffer_load_dword {vr(r)}, {vr(AD_)}, {sr(srd,4)}, {sr(sLB)} offen sc1')
            ld(A_); P(f's_sleep {self.o["pp"]}')
            P.label(lp)
            for cur, nxt in ((A_, B_), (B_, A_)):
                ld(nxt)
                P(f's_waitcnt vmcnt(1)\nv_and_b32 {vr(vPD)}, 1, {vr(cur)}\nv_cmp_ne_u32 vcc, {par}, {vr(vPD)}\ns_cbranch_vccz {dn}')
            P(f's_sub_u32 {sr(sBUD)}, {sr(sBUD)}, 1\ns_cbranch_scc0 {lp}\ns_mov_b32 {sr(sBUD)}, 0')
            P.label(dn)
            return 0
        if self.o['pst'] and srd == sOut: P(f'v_lshrrev_b32 {vr(STAT+15)}, 2, {vr(vLANE)}\nv_lshlrev_b32 {vr(STAT+15)}, 8, {vr(STAT+15)}')
        P.label(lp)
        if self.o['pst'] and srd == sOut:
            P(f'buffer_load_dword {vr(vPD)}, {vr(STAT+15)}, {sr(sWS,4)}, {sr(sT1)} offen offset:252 sc1')
        elif self.o['pw'] == 16 and srd == sOut:
            P(f'v_or_b32 {vr(vPD)}, 1024, {vr(vPA)}\nbuffer_load_dword {vr(vPD)}, {vr(vPD)}, {sr(srd,4)}, {sr(sLB)} offen sc1')
        else: P(f'buffer_load_dword {vr(vPD)}, {vr(vPA)}, {sr(srd,4)}, {sr(sLB)} offen sc1')
        for ks in range(S): self.frag_load(srd, ks)
        P(f's_waitcnt vmcnt({S})')
        P(self.test_par(par))
        P(f's_cbranch_vccz {dn}')
        if self.o['em']: P('s_mov_b64 exec, vcc')
        if self.o['psleep']: P(f's_sleep {self.o["psleep"]}')
        if S: self.frag_setup(None)
        P(f's_sub_u32 {sr(sBUD)}, {sr(sBUD)}, 1\ns_cbranch_scc0 {lp}\ns_mov_b32 {sr(sBUD)}, 0')
        P.label(dn)
        if self.o['em']: P('s_mov_b64 exec, -1')
        return S

    def verify(self, par, redo):
        P = self.P; st = P.newlabel('Lver'); ct = P.newlabel('Lverc')
        P(self.test_par(par)); P(f's_cbranch_vccnz {st}')
        P.label(ct)
        self.stubs.append((st, redo, ct))

    def emit_stubs(self):
        P = self.P
        for ls, emit, le in self.ool:
            P.label(ls); emit(True); P(f's_branch {le}')
        for k, (st, redo, ct) in enumerate(self.stubs):
            P.label(st)
            if self.stamps: P(f's_add_u32 s101, s101, {1 << (3*k)}')
            P(f's_waitcnt vmcnt(0) lgkmcnt(0)\ns_sub_u32 {sr(sBUD)}, {sr(sBUD)}, 1\ns_cbranch_scc0 {redo}\ns_mov_b32 {sr(sBUD)}, 0\ns_branch {ct}')

    def probe_addr(self):
        if self.o['pw'] == 64:
            return f"""v_lshrrev_b32 {vr(vPA)}, 1, {vr(vLANE)}
v_lshlrev_b32 {vr(vPA)}, 10, {vr(vPA)}
v_and_b32 {vr(vCK)}, 1, {vr(vLANE)}
v_mad_u32_u24 {vr(vPA)}, {vr(vCK)}, {sr(sC1008)}, {vr(vPA)}"""
        if self.o['psp']:
            return f"""v_lshrrev_b32 {vr(vPA)}, 2, {vr(vLANE)}
v_add_u32 {vr(vPA)}, {sr(sC)}, {vr(vPA)}
v_and_b32 {vr(vPA)}, 7, {vr(vPA)}
v_lshlrev_b32 {vr(vPA)}, 7, {vr(vPA)}
v_lshrrev_b32 {vr(vCK)}, 1, {vr(vLANE)}
v_lshl_add_u32 {vr(vPA)}, {vr(vCK)}, 10, {vr(vPA)}"""
        return f'v_lshrrev_b32 {vr(vPA)}, 1, {vr(vLANE)}\nv_lshl_add_u32 {vr(vPA)}, {vr(vPA)}, 10, {sr(sC1008)}'

    def publish_x(self, L):
        P = self.P
        natural = (L % 2 == 0); T = 76; par = L & 1
        for p in range(8): P(f'v_cvt_pk_bf16_f32 {vr(T+p)}, {vr(ACC0+2*p)}, {vr(ACC0+2*p+1)}')
        if natural:
            for a, b in SW4: P(f'v_permlane32_swap_b32 {vr(T+a)}, {vr(T+b)}')
        if L == self.nl:
            m = ['', ' nt', ' sc1'][self.o.get('outm', 0)]
            P(f'buffer_store_dwordx4 {vr(T,4)}, {vr(vKA)}, {sr(sOut,4)}, {sr(sK0)} offen{m}\nbuffer_store_dwordx4 {vr(T+4,4)}, {vr(vKA)}, {sr(sOut,4)}, {sr(sK0)} offen offset:32{m}')
            return
        P(self.set_par(T, par)); P(self.set_par(T + 4, par))
        def emit(sc1):
            m = ' sc1' if sc1 else (' nt' if self.o.get('nta') else '')
            P(f'buffer_store_dwordx4 {vr(T,4)}, {vr(vL16)}, {sr(sOut,4)}, {sr(sXW)} offen{m}')
            P(f'buffer_store_dwordx4 {vr(T+4,4)}, {vr(vL16)}, {sr(sOut,4)}, {sr(sXW)} offen offset:1024{m}')
            if L > 1 and self.o['hx'] == 1 and (sc1 or not self.o['ex']): self.flag(sK2, sTAG, sc1, add=L - 1)
            for k in range(4):
                P(f'v_pk_add_f32 {vr(64+2*k,2)}, {vr(ACC0+4*k,2)}, {vr(ACC0+4*k+2,2)}')
            P(f'v_pk_mul_f32 v[72:73], {vr(ACC0,2)}, {vr(ACC0,2)}\nv_pk_mul_f32 v[74:75], {vr(ACC0+2,2)}, {vr(ACC0+2,2)}')
            P('v_pk_add_f32 v[64:65], v[64:65], v[66:67]\nv_pk_add_f32 v[68:69], v[68:69], v[70:71]')
            for k in range(2, 8): P(f'v_pk_fma_f32 {vr(72+2*(k&1),2)}, {vr(ACC0+2*k,2)}, {vr(ACC0+2*k,2)}, {vr(72+2*(k&1),2)}')
            P('v_pk_add_f32 v[64:65], v[64:65], v[68:69]\nv_pk_add_f32 v[72:73], v[72:73], v[74:75]')
            P('v_add_f32 v64, v64, v65\nv_add_f32 v66, v72, v73\nv_permlane32_swap_b32 v64, v66\nv_add_f32 v64, v64, v66')
            P(self.set_par(64, par))
            P(f'buffer_store_dword v64, {vr(vL4)}, {sr(sWS,4)}, {sr(sK1)} offen{m}')
            if L == 1: self.flag(sK2, sTAG, sc1, wait='s_waitcnt vmcnt(0)')
            elif self.o['hx'] == 2: self.flag(sK2, sTAG, sc1, add=L - 1)
        self.two_way(emit)
        for p in range(8): P(f'v_cvt_pk_bf16_f32 {vr(XRES+p)}, {vr(ACC0+2*p)}, {vr(ACC0+2*p+1)}')

    def frag_setup(self, base_off):
        if base_off is not None: self.P(f's_add_u32 {sr(sLB)}, {sr(sRB)}, {base_off}')
        self.P(f's_lshl_b32 {sr(sLR)}, {sr(sROT)}, 12\ns_add_u32 {sr(sT3)}, {sr(sLB)}, {sr(sLR)}')

    def frag_load(self, srd, ks, ring=32):
        P = self.P
        P(f'buffer_load_dwordx4 {vr(XF+4*(ks % ring),4)}, {vr(vL16)}, {sr(srd,4)}, {sr(sT3)} offen offset:{(ks&3)*1024} sc1')
        if ks < 28:
            if ks & 3 == 0: P(f's_add_u32 {sr(sLR)}, {sr(sLR)}, 4096')
            if ks & 3 == 1: P(f's_and_b32 {sr(sLR)}, {sr(sLR)}, 0x7fff')
            if ks & 3 == 3: P(f's_add_u32 {sr(sT3)}, {sr(sLB)}, {sr(sLR)}')
        self.vm.issue(('x', ks))

    def mask_ops(self, part, lean=False):
        ops = []; C = CDIAG if part == 0 else CFIRST; sg = -1.0 if part == 0 else 1.0
        if part == 0 and not lean:
            ops.append(f'v_mov_b32 {vr(VV)}, 0x3f803f80')
            for i in range(1, 8): ops.append(f'v_mov_b32 {vr(VV+i)}, {vr(VV)}')
        for i in range(16):
            ci = 8*(i//4) + i % 4
            if part == 0: ops.append(f'v_subrev_f32 {vr(C+i)}, {f2u(ci*2.0**100):#x}, {vr(vFD)}')
            else: ops.append(f'v_sub_f32 {vr(C+i)}, {f2u((ci-1)*2.0**100):#x}, {vr(vFD)}')
        for i in range(16): ops.append(f'v_min_f32 {vr(C+i)}, 0, {vr(C+i)}')
        if part == 0 and not lean:
            for i in range(16): ops.append(f'v_mov_b32 {vr(aO+i)}, 0')
        return ops

    def stats_final(self, typ):
        a, b = STAT, STAT + 1
        it = f"""v_mov_b32 {vr(b)}, {vr(a)}
v_mov_b32 {vr(XEXT+2)}, 0
v_mov_b32 {vr(XEXT+3)}, 0
v_permlane32_swap_b32 {vr(a)}, {vr(b)}
v_mul_f32 {vr(a)}, {f2u(1/512):#x}, {vr(a)}
v_mul_f32 {vr(b)}, {f2u(1/512):#x}, {vr(b)}
v_fma_f32 {vr(b)}, -{vr(a)}, {vr(a)}, {vr(b)}
v_max_f32 {vr(b)}, 0, {vr(b)}
v_add_f32 {vr(b)}, {f2u(1e-5):#x}, {vr(b)}
v_rsq_f32 {vr(vRSTD)}, {vr(b)}
v_cndmask_b32 {vr(a)}, 0, {vr(a)}, {sr(sH0,2)}
v_and_b32 {vr(a+2)}, 0xffff0000, {vr(a)}
v_sub_f32 {vr(a+3)}, {vr(a)}, {vr(a+2)}
v_cvt_pk_bf16_f32 {vr(XEXT)}, -{vr(a+2)}, -{vr(a+2)}
v_cvt_pk_bf16_f32 {vr(XEXT+1)}, -{vr(a+3)}, 0""".split('\n')
        it.append(('ds', 'rw', f'ds_write_b32 {vr(vRA)}, {vr(vRSTD)}'))
        for q in range(4): it.append(('ds', 'rt', f'ds_read_b128 {vr(STAT+4*q,4)}, {vr(vRB)} offset:{q*32}'))
        if typ == 1: it.append(f'v_mul_f32 {vr(vRSTD)}, {sr(sLOG2E)}, {vr(vRSTD)}')
        return it

    def wext_items(self, w, tag):
        return [('wlg', tag)] + f"""v_add_f32 {vr(w)}, {vr(w)}, {vr(w+1)}
v_add_f32 {vr(w+2)}, {vr(w+2)}, {vr(w+3)}
v_add_f32 {vr(w)}, {vr(w)}, {vr(w+2)}
v_and_b32 {vr(w+2)}, 0xffff0000, {vr(w)}
v_sub_f32 {vr(w+3)}, {vr(w)}, {vr(w+2)}
v_cvt_pk_bf16_f32 {vr(w)}, {vr(w+2)}, {vr(w+3)}
v_cvt_pk_bf16_f32 {vr(w+1)}, {vr(w+2)}, 0
v_mov_b32 {vr(w+2)}, 0
v_mov_b32 {vr(w+3)}, 0""".split('\n')

    def csp_addr(self, typ):
        self.P(f'v_and_b32 {vr(vT0)}, 0x1f0, {vr(vL16)}\nv_add_u32 {vr(vT0)}, {LDS_CSP + typ*1536}, {vr(vT0)}')

    def phi_addr(self):
        return f"""v_sub_u32 {vr(vVA)}, {vr(vKA)}, {vr(vL16)}
v_and_b32 {vr(vPD)}, 31, {vr(vLANE)}
v_lshl_add_u32 {vr(vVA)}, {vr(vPD)}, 5, {vr(vVA)}
v_lshrrev_b32 {vr(vPD)}, 5, {vr(vLANE)}
v_lshl_add_u32 {vr(vVA)}, {vr(vPD)}, 4, {vr(vVA)}""".split('\n')

    def main_kv(self, L):
        P = self.P; typ = L % 2; o = self.o; XD = o['xd']
        vm, lg = self.vm, self.lg
        NR = 3; KVB = vL16 if L > 1 else PKV + 15
        if L == 1: P(f'v_subrev_u32 {vr(vTR1)}, {LDS_WO - LDS_WQ}, {vr(vTR2)}')
        if L == 2: P(f'v_add_u32 {vr(vTR1)}, {LDS_WQ}, {vr(vL16)}\nv_add_u32 {vr(vTR2)}, {LDS_WO}, {vr(vL16)}')
        if L < 2: P(f'v_subrev_u32 {vr(KVB)}, {LDS_WQ}, {vr(vTR1)}')
        def rdk(ks):
            self.w_read(RING + 8*(ks % NR), KVB, LDS_WK + ks*1024, L, ('k', ks))
        def rdv(ks):
            self.w_read(RING + 8*(ks % NR) + 4, KVB, LDS_WV + ks*1024, L, ('v', ks))
        csrd = [('ds', 'cs', f'ds_read_b128 {vr(WEXTK,4)}, {vr(vT0)} offset:512'), ('ds', 'cs', f'ds_read_b128 {vr(WEXTV,4)}, {vr(vT0)} offset:1024')]
        wext = self.wext_items(WEXTK, 'cs') + self.wext_items(WEXTV, 'cs')
        addr = [f'v_add_u32 {vr(vKA)}, {sr(sOWN)}, {vr(vL16)}']
        if typ == 0:
            La = L // 2
            addr += [f's_add_u32 {sr(sK0)}, {sr(sKVW)}, {OFF_KV + La*KV_L}', f's_add_u32 {sr(sK2)}, {sr(sK0)}, 4096']
        else:
            addr += self.phi_addr()
            if o['pw1']: addr += [f's_lshl_b32 {sr(sT0)}, {sr(sMT)}, 2', f'v_add_u32 {vr(PKV+8)}, {sr(sT0)}, {vr(vCNT)}', f'v_mov_b32 {vr(PKV+9)}, {5 + L//2}']
        extras = []
        def pop(n):
            for _ in range(n):
                if extras: self.item(extras.pop(0))
        def kstep(ks, pre=None):
            b = RING + 8*(ks % NR)
            P(waitstr(vm=vm.need(('x', ks)) if L > 0 else None, lg=lg.need(('k', ks))))
            self.mfma(ACC0, b, XF + 4*ks, None if ks == 0 else ACC0)
            if pre: pre()
            if ks + NR < 32: rdk(ks + NR)
            if L > 1 and ks & 1: P(self.acc_par(XF + 4*ks - 4, XF + 4*ks, L & 1))
            if L > 0 and ks + XD < 32: self.frag_load(sOut, ks + XD); pop(1)
            else: pop(3)
            P(waitstr(lg=lg.need(('v', ks))))
            self.mfma(ACC1, XF + 4*ks, b + 4, None if ks == 0 else ACC1)
            if ks + NR < 32: rdv(ks + NR)
            if L > 0 and o['st0'] <= ks < o['st0'] + 8:
                for i in range(2*(ks-o['st0']), 2*(ks-o['st0']) + 2):
                    P(f'buffer_load_dword {vr(STAT+i)}, {vr(vL4)}, {sr(sWS,4)}, {sr(sT1)} offen offset:{i*256} sc1'); vm.issue('st')
            pop(3)
        if L > 0 and not o['b0']:
            ok = P.newlabel('Lwr')
            P(f'v_cmp_gt_u32 vcc, {4*L}, {vr(vT0)}\ns_cbranch_vccz {ok}')
            self.lds_wait(C_WR, 4*L)
            P.label(ok)
            if L == 1 and o['bq']:
                P(f's_lshl_b32 {sr(sT0)}, {sr(sMT)}, 11\ns_add_u32 {sr(sT0)}, {sr(sT0)}, {LDS_WQ}\nv_add_u32 {vr(PKV)}, {sr(sT0)}, {vr(vL16)}')
                bqw = [('ds', 'bq', f'ds_write_b128 {vr(PKV)}, {vr(224+4*u,4)} offset:{cho(u)}') for u in range(8)]
                bqw.append(('ds', 'bq', f'v_mov_b32 {vr(vPD)}, 1\ns_mov_b64 exec, 1\nds_add_u32 {vr(vCNT)}, {vr(vPD)} offset:{4*C_Q}\ns_mov_b64 exec, -1'))
        self.csp_addr(typ)
        if L == 0:
            AD = PKV + 2; X0D = o['x0d']
            P(f"""v_bfe_u32 {vr(AD)}, {vr(vLANE)}, 1, 3
v_xor_b32 {vr(AD)}, {vr(AD)}, v64
v_lshlrev_b32 {vr(AD)}, 4, {vr(AD)}
v_lshl_add_u32 {vr(AD)}, v65, 7, {vr(AD)}
v_add_u32 {vr(AD)}, {sr(sLA)}, {vr(AD)}
v_xor_b32 {vr(AD+1)}, 32, {vr(AD)}
v_xor_b32 {vr(AD+2)}, 64, {vr(AD)}
v_xor_b32 {vr(AD+3)}, 96, {vr(AD)}
s_mov_b32 {sr(sSEL0)}, 0x3f803f80""")
            for i in range(4): P(f'v_mov_b32 {vr(STAT+i)}, 0')
            for it in addr: self.item(it)
            for g in range(2, X0D): self.x0_load(g)
            if o['xst']:
                P(f"""s_and_b32 {sr(sT0)}, {sr(sC)}, 1
s_lshl_b32 {sr(sT0)}, {sr(sT0)}, 6
v_xor_b32 {vr(PKV)}, {sr(sT0)}, {vr(AD)}
v_xor_b32 {vr(PKV+1)}, 32, {vr(PKV)}
s_lshr_b32 {sr(sT2)}, {sr(sC)}, 1
s_sub_u32 {sr(sT2)}, {sr(sT2)}, {sr(sROT)}
s_and_b32 {sr(sT2)}, {sr(sT2)}, 7""")
            def dots(g):
                for i in range(16):
                    r_ = XF + 16*g + i
                    P(f'v_dot2_f32_bf16 {vr(STAT+(i&1))}, {vr(r_)}, {sr(sSEL0)}, {vr(STAT+(i&1))}\nv_dot2_f32_bf16 {vr(STAT+2+(i&1))}, {vr(r_)}, {vr(r_)}, {vr(STAT+2+(i&1))}')
            stat_fold = [f'v_add_f32 {vr(STAT)}, {vr(STAT)}, {vr(STAT+1)}', f'v_add_f32 {vr(STAT+2)}, {vr(STAT+2)}, {vr(STAT+3)}',
                         f'v_permlane32_swap_b32 {vr(STAT)}, {vr(STAT+2)}', f'v_add_f32 {vr(STAT)}, {vr(STAT)}, {vr(STAT+2)}']
            LAG = o['il']
            if LAG:
                P(f'v_mov_b32 {vr(PKV+6)}, 1')
                sig = lambda idx: self.item(('ds', 'sig', f's_mov_b64 exec, 1\nds_add_u32 {vr(vCNT)}, {vr(PKV+6)} offset:{4*idx}\ns_mov_b64 exec, -1'))
                lg.reset()
                def ks0(ks):
                    nonlocal extras
                    if ks == 0:
                        self.lds_check(C_ST, 4)
                        self.stamp(29, 'S0 / W st2')
                        for k in range(NR): rdk(k); rdv(k)
                    pre = None; st = ks // 8 + 1
                    if ks % 8 == 2 and st < 4: extras[0:0] = self.lds_peek(C_ST + st)
                    if ks % 8 == 5 and st < 4: pre = lambda: self.lds_check(C_ST + st, 4)
                    if ks == o['csk']: extras[0:0] = self.lds_peek(C_CS)
                    if ks == o['csk'] + 2:
                        pre = lambda: self.lds_check(C_CS, 4)
                        extras += csrd + ['s_nop 0']*4 + wext
                    if ks == 30: extras[0:0] = self.lds_peek(C_Q)
                    kstep(ks, pre)
                for g in range(8 + LAG):
                    kk = list(range(4*(g - LAG), 4*(g - LAG) + 4)) if g >= LAG else []
                    if g < 8:
                        if g == LAG - 1 or (LAG > 8 and g == 7):
                            for it in self.lds_peek(C_ST): self.item(it)
                        lx = P.newlabel('Lx')
                        P(f's_cmp_lg_u32 {sr(sT2)}, {g}')
                        P(waitstr(vm=vm.need(('x', g))))
                        P(f's_cbranch_scc1 {lx}\nds_read_b128 {vr(XRES,4)}, {vr(PKV)} offset:{(g%3)*4096}\nds_read_b128 {vr(XRES+4,4)}, {vr(PKV+1)} offset:{(g%3)*4096}')
                        P.label(lx)
                        for s_ in range(4): P(f'ds_read_b128 {vr(XF+16*g+4*s_,4)}, {vr(AD+s_)} offset:{(g%3)*4096}')
                        lg.issue(('xg', g), 4)
                        if kk and kk[0] > 0: ks0(kk.pop(0))
                        P(waitstr(lg=lg.need(('xg', g))))
                        if g + 3 < 8: self.x0_load(g + 3)
                        if g == o['wgo'] - 1: sig(C_WGO)
                        if g == o['qgo']: sig(C_CSQ)
                        if g == 7: sig(C_XDONE)
                        if g in (0, 3, 5, 7): self.stamp({0: 2, 3: 15, 5: 23, 7: 1}[g], {0: 'x g0 / W go', 3: 'x g3 / W st0', 5: 'x g5 / W st1', 7: 'x0 / W st3'}[g])
                        if g == 7 or not kk or kk[0] == 0:
                            dots(g)
                            if g == 7: extras += stat_fold + self.stats_final(typ)
                            for k in kk: ks0(k)
                        else:
                            for k in kk: ks0(k)
                            dots(g)
                    else:
                        for k in kk: ks0(k)
                pop(100)
            for g in range(0 if LAG else 8):
                if o['xst']: P(f's_cmp_lg_u32 {sr(sT2)}, {g}')
                P(waitstr(vm=vm.need(('x', g))))
                if o['xst']:
                    lx = P.newlabel('Lx')
                    P(f's_cbranch_scc1 {lx}\nds_read_b128 {vr(XRES,4)}, {vr(PKV)} offset:{(g%4)*4096}\nds_read_b128 {vr(XRES+4,4)}, {vr(PKV+1)} offset:{(g%4)*4096}')
                    P.label(lx)
                for s_ in range(4): P(f'ds_read_b128 {vr(XF+16*g+4*s_,4)}, {vr(AD+s_)} offset:{(g%4)*4096}')
                if g: P('s_waitcnt lgkmcnt(4)')
                if g + X0D < 8: self.x0_load(g + X0D)
                if g: dots(g - 1)
                if g == o['wgo'] - 1: self.lds_signal(C_WGO)
                if g in (0, 3, 5): self.stamp({0: 2, 3: 15, 5: 23}[g], {0: 'x g0 / W go', 3: 'x g3 / W st0', 5: 'x g5 / W st1'}[g])
            if not LAG:
                self.lds_signal(C_XDONE)
                lg.reset()
                for it in self.lds_peek(C_ST): self.item(it)
                dots(7)
                self.stamp(1, 'x0 / W st3')
                self.lds_check(C_ST, 4)
                self.stamp(29, 'S0 / W st2')
                for ks in range(NR): rdk(ks); rdv(ks)
                P(f'v_add_f32 {vr(STAT)}, {vr(STAT)}, {vr(STAT+1)}\nv_add_f32 {vr(STAT+2)}, {vr(STAT+2)}, {vr(STAT+3)}')
                P(f'v_permlane32_swap_b32 {vr(STAT)}, {vr(STAT+2)}\nv_add_f32 {vr(STAT)}, {vr(STAT)}, {vr(STAT+2)}')
                extras += self.stats_final(typ)
                pop(10)
                for ks in range(32):
                    pre = None
                    st = ks // 8 + 1
                    if ks % 8 == 2: extras[0:0] = self.lds_peek(C_ST + st if st < 4 else C_CS)
                    if ks % 8 == 5 and st < 4: pre = lambda: self.lds_check(C_ST + st, 4)
                    if ks == 28:
                        pre = lambda: self.lds_check(C_CS, 4)
                        extras += csrd + self.lds_peek(C_Q) + ['s_nop 0']*3 + wext
                    kstep(ks, pre)
                pop(100)
        else:
            vm.reset(); lg.reset()
            redo = P.newlabel('Lkvredo')
            P(f's_lshr_b32 {sr(sT1)}, {sr(sRB)}, 3\ns_add_u32 {sr(sT1)}, {sr(sT1)}, {OFF_ST}')
            for it in addr: self.item(it)
            if o['b0']: P('s_barrier')
            self.stamp(14 + L*14 if L < 3 else 57, f'L{L} B0')
            P.label(redo)
            for it in csrd: self.item(it)
            for ks in range(NR): rdk(ks); rdv(ks)
            extras += wext
            S = self.probe(sOut, 0, L & 1, XD) if L > 1 and not o['hx'] else self.first_hop(0, OFF_XFLAG + 0x2000, 60, L & 1 if L > 1 else None, L - 1)
            if L == 1: extras += self.probe_addr().split('\n')
            self.stamp(2 + L*14, f'L{L} xflags')
            for ks in range(S, XD): self.frag_load(sOut, ks)
            if L == 1 and o['bq']:
                for it in bqw: self.item(it)
            late = [('wvm', 'st')] + [self.acc_par(STAT + 2*i, STAT + 2*i + 1, L & 1) for i in range(8) if L > 1]
            for step in (8, 4, 2, 1):
                for i in range(step): late.append(f'v_add_f32 {vr(STAT+i)}, {vr(STAT+i)}, {vr(STAT+i+step)}')
            late += self.stats_final(typ)
            for ks in range(32):
                if ks == 8 + o['st0'] + XD: extras += late
                kstep(ks)
                if L > 1 and ks == o['ev']: self.verify(L & 1, redo)
            pop(100)
            if L > 1: self.verify(L & 1, redo)
        self.mfma(ACC0, WEXTK, XEXT, ACC0)
        self.mfma(ACC1, XEXT, WEXTV, ACC1)

    def w_read(self, dst, base, off, L, tag, qkv=True):
        if L > 1:
            self.P(f'ds_read_b128 {vr(dst,4)}, {vr(base)} offset:{off}'); self.lg.issue(tag)
        else:
            d = 256 if (L == 0 and qkv) else 512
            self.P(f'ds_read_b64_tr_b16 {vr(dst,2)}, {vr(base)} offset:{off}\nds_read_b64_tr_b16 {vr(dst+2,2)}, {vr(base)} offset:{off+d}'); self.lg.issue(tag, 2)

    def q_prefetch(self, L, NS=5):
        for ks in range(NS): self.q_rd(L, ks)

    def q_rd(self, L, ks, NS=5):
        self.w_read(RING + 4*(ks % NS), vTR1, ks*1024, L, ('w', ks))

    def main_qpass(self, L, acc, fill, at=None, pre_write=None, rate=4):
        P = self.P; typ = L % 2; lg = self.lg; NS = 5
        fill = list(fill)
        for ks in range(32):
            P(waitstr(lg=lg.need(('w', ks))))
            self.mfma(acc, RING + 4*(ks % NS), XF + 4*ks, None if ks == 0 else acc)
            if ks + NS < 32: self.q_rd(L, ks + NS)
            n = 0
            while fill and n < rate:
                it = fill.pop(0); self.item(it)
                if isinstance(it, str) or it[0] == 'ds': n += 1
            if at and ks in at: at[ks]()
        for it in fill: self.item(it)
        self.mfma(acc, WEXTQ, XEXT, acc)
        if at and 32 in at: at[32]()
        order = (4, 5, 6, 7, 0, 1, 2, 3)
        for p in order:
            if typ == 0 and p % 4 == 0:
                for q in range(p, p + 4): P(f'v_pk_mul_f32 {vr(acc+2*q,2)}, {vr(acc+2*q,2)}, {vr(vRSTD,2)} op_sel_hi:[1,0]')
            P(f'v_cvt_pk_bf16_f32 {vr(aQ+p)}, {vr(acc+2*p)}, {vr(acc+2*p+1)}')
            if p == 7:
                if pre_write: pre_write()
                P(f'ds_write_b128 {vr(vKA)}, {vr(aQ+4,4)} offset:5120')

    def tile_addr(self, sbase):
        return f"""s_lshl_b32 {sr(sT1)}, {sr(sHS)}, 10
s_add_u32 {sr(sT1)}, {sr(sT1)}, {sr(sbase)}
v_add_u32 {vr(vKA)}, {sr(sT1)}, {vr(vL16)}
s_lshl_b32 {sr(sT1)}, {sr(sHS)}, 8
v_xor_b32 {vr(vVA)}, {sr(sT1)}, {vr(vL16)}
v_add_u32 {vr(vVA)}, {sr(sbase)}, {vr(vVA)}"""

    def trickle_setup(self):
        self.P(f's_mov_b32 {sr(sDM)}, 4\ns_mov_b32 {sr(sDG)}, {sr(sG0)}\ns_mov_b32 {sr(sDL)}, {sr(sLA)}')

    def trickle(self, keep=0):
        P = self.P; sk = P.newlabel('Lsk')
        P(f's_cmp_le_u32 {sr(sDM)}, {keep}\ns_cbranch_scc1 {sk}\ns_mul_i32 {sr(sT0)}, {sr(sDG)}, 3')
        for e in range(2):
            for nt in (1, 2):
                P(f's_add_u32 m0, {sr(sDL)}, {NT_LDS[nt] + e*1024}\ns_add_u32 {sr(sT1)}, {sr(sT0)}, {e*49152 + nt*1024}')
                P(f'buffer_load_dwordx4 {vr(vDW)}, {sr(sWB,4)}, {sr(sT1)} offen lds')
        P(f"""s_add_u32 {sr(sDL)}, {sr(sDL)}, 8192
s_add_u32 {sr(sDG)}, {sr(sDG)}, 0x20000
s_and_b32 {sr(sDG)}, {sr(sDG)}, 0x7ffff
s_sub_u32 {sr(sDM)}, {sr(sDM)}, 1""")
        P.label(sk)

    def attn_loop(self, cfirst, trickle=False):
        P = self.P; lp = P.newlabel('Latt')
        if self.o['trunc']: pk = lambda d, e: f'v_perm_b32 {vr(d)}, {vr(e+1)}, {vr(e)}, {sr(sPERM)}'
        else: pk = lambda d, e: f'v_cvt_pk_bf16_f32 {vr(d)}, {vr(e)}, {vr(e+1)}'
        rdv = f's_mov_b64 exec, {sr(sLO,2)}\nds_read_b128 {vr(VV,4)}, {vr(vVA)} offset:2048\nds_read_b128 {vr(VV+4,4)}, {vr(vVA)} offset:3072\ns_mov_b64 exec, -1'
        P(f'ds_read_b128 {vr(aK,4)}, {vr(vKA)}'); P(rdv)
        P(f'v_add_u32 {vr(vKA)}, {sr(sSTEP)}, {vr(vKA)}\nv_add_u32 {vr(vVA)}, {sr(sSTEP)}, {vr(vVA)}\ns_waitcnt lgkmcnt(2)')
        cfirst()
        P(f'ds_read_b128 {vr(aK,4)}, {vr(vKA)}\nv_add_u32 {vr(vKA)}, {sr(sSTEP)}, {vr(vKA)}\ns_nop 9')
        P.label(lp)
        for i in range(8): P(f'v_exp_f32 {vr(aE+i)}, {vr(aS+i)}')
        for p in range(4): P(pk(aP + p, aE + 2*p))
        for i in range(8, 10): P(f'v_exp_f32 {vr(aE+i-8)}, {vr(aS+i)}')
        P('s_waitcnt lgkmcnt(0)')
        self.mfma(aO, VV, aP, aO)
        for i in range(10, 16): P(f'v_exp_f32 {vr(aE+i-8)}, {vr(aS+i)}')
        self.mfma(aS, aK, aQ, None)
        P(f'ds_read_b128 {vr(aK,4)}, {vr(vKA)}')
        for p in range(4): P(pk(aP + 4 + p, aE + 2*p))
        P(f'v_add_u32 {vr(vKA)}, {sr(sSTEP)}, {vr(vKA)}\ns_sub_u32 {sr(sCNT)}, {sr(sCNT)}, 1')
        self.mfma(aO, VV + 4, aP + 4, aO)
        P(rdv)
        if trickle and self.o['trk']: self.trickle(4 - self.o['trk'])
        P(f'v_add_u32 {vr(vVA)}, {sr(sSTEP)}, {vr(vVA)}\ns_cmp_lg_u32 {sr(sCNT)}, 0\ns_cbranch_scc1 {lp}')

    def v_lanes(self):
        return [f'v_mov_b32 {vr(vSTV)}, {LDS_ONES - 2048}', f'v_cndmask_b32 {vr(vVA)}, {vr(vSTV)}, {vr(vVA)}, {sr(sLO,2)}',
                f'v_mov_b32 {vr(vSTV)}, {sr(sSTEP)}', f'v_cndmask_b32 {vr(vSTV)}, 0, {vr(vSTV)}, {sr(sLO,2)}']

    def attn2(self, M, first, trickle=False):
        P = self.P; lp = P.newlabel('Latt'); dn = P.newlabel('Lattd')
        pk = lambda d, e: f'v_perm_b32 {vr(d)}, {vr(e+1)}, {vr(e)}, {sr(sPERM)}'
        ex = lambda S, a, b: P('\n'.join(f'v_exp_f32 {vr(S+i)}, {vr(S+i)}' for i in range(a, b)))
        rdk = f'ds_read_b128 {vr(aK,4)}, {vr(vKA)}\nv_add_u32 {vr(vKA)}, {sr(sSTEP)}, {vr(vKA)}'
        P(rdk.replace(vr(aK,4), vr(aP,4))); P(rdk); P(f'ds_read_b128 {vr(VV,4)}, {vr(vVA)} offset:2048\ns_waitcnt lgkmcnt(2)')
        first()
        P('s_waitcnt lgkmcnt(1)\ns_nop 6')
        P.label(lp)
        for half, (S, N) in enumerate(((M, aS), (aS, M))):
            P('s_waitcnt lgkmcnt(2)')
            self.mfma(N, aK, aQ, None)
            P(rdk)
            ex(S, 0, 4)
            P('s_waitcnt lgkmcnt(2)')
            self.mfma(aO, VV + 4, aP + 4, aO)
            P(f'ds_read_b128 {vr(VV+4,4)}, {vr(vVA)} offset:3072\nv_add_u32 {vr(vVA)}, {vr(vSTV)}, {vr(vVA)}')
            ex(S, 4, 10)
            for p in range(4): P(pk(aP + p, S + 2*p))
            ex(S, 10, 12)
            P('s_waitcnt lgkmcnt(2)')
            self.mfma(aO, VV, aP, aO)
            P(f'ds_read_b128 {vr(VV,4)}, {vr(vVA)} offset:2048')
            if trickle and self.o['trk']: self.trickle(4 - self.o['trk'])
            ex(S, 12, 16)
            P(f's_sub_u32 {sr(sCNT)}, {sr(sCNT)}, 1')
            for p in range(4): P(pk(aP + 4 + p, S + 8 + 2*p))
            P(f's_cbranch_scc1 {dn}' if half == 0 else f's_cbranch_scc0 {lp}')
        P.label(dn)

    def publish_o_addr(self, L):
        return [f's_add_u32 {sr(sK0)}, {sr(sOW)}, {OFF_O}'] + ([f's_add_u32 {sr(sK1)}, {sr(sOF)}, {OFF_OFLAG}'] if L == 0 or self.o['ho'] else [])

    def publish_o(self, L, O, eps):
        P = self.P
        if eps: P(f'v_add_f32 {vr(O+8)}, {f2u(eps):#x}, {vr(O+8)}')
        P(f'v_rcp_f32 {vr(O+8)}, {vr(O+8)}')
        if L % 2 == 0 and self.o['omul']:
            for i in range(8): P(f'v_mul_f32 {vr(O+i)}, {vr(O+8)}, {vr(O+i)}')
        else:
            for p in range(4): P(f'v_pk_mul_f32 {vr(O+2*p,2)}, {vr(O+2*p,2)}, {vr(O+8,2)} op_sel_hi:[1,0]')
        for p in range(4): P(f'v_cvt_pk_bf16_f32 {vr(aP+p)}, {vr(O+2*p)}, {vr(O+2*p+1)}')
        P(self.set_par(aP, 1 - (L & 1)))
        def emit(sc1):
            P(f'buffer_store_dwordx4 {vr(aP,4)}, {vr(vL16)}, {sr(sWS,4)}, {sr(sK0)} offen' + (' sc1' if sc1 else (['', ' nt', ' sc1', ' sc0'][self.o.get('o3', 0)] if L == 3 or self.o.get('nta') else '')))
            if L == 0: self.flag(sK1, sTAG, sc1, wait='s_waitcnt vmcnt(0)')
            elif self.o['ho'] and (sc1 or not self.o['eb' if L & 1 else 'ea']): self.flag(sK1, sTAG, sc1, add=L)
        self.two_way(emit)

    def main_outproj(self, L):
        P = self.P; vm, lg = self.vm, self.lg; OD = self.o['od'] if L != 1 else self.o['od1']; par = 1 - (L & 1)
        vm.reset(); lg.reset()
        redo = P.newlabel('Lopredo')
        if L == 0:
            for op in ['s_waitcnt vmcnt(1)'] + [f'v_permlane32_swap_b32 {vr(XRES+a)}, {vr(XRES+b)}' for a, b in SW4] + self.wphi_pack(170): P(op)
        NS = 6; RG = 24 if L == 0 else 32
        def rd(ks):
            self.w_read(RING + 4*(ks % NS), vTR2, ks*1024, L, ('w', ks), qkv=False)
        self.publish_x_addr(L + 1)
        P.label(redo)
        for ks in range(NS): rd(ks)
        self.unpack_res()
        S = self.probe(sWS, OFF_O, par, OD) if L > 0 and not self.o['ho'] else self.first_hop(OFF_O, OFF_OFLAG, 124, par if L else None, L)
        SG = self.o['sg'] if L == 1 else 0
        EX = self.o['ex'] if L in (1, 2) else 0
        if SG:
            l = P.newlabel('Lx'); lw = P.newlabel('Lx')
            P(f's_cmp_lt_u32 {sr(sMT)}, 2\ns_cbranch_scc1 {l}'); P.label(lw)
            P(f'ds_read_b32 {vr(vT0)}, {vr(vCNT)} offset:{4*C_WGO}\ns_waitcnt lgkmcnt(0)\nv_cmp_gt_u32 vcc, 6, {vr(vT0)}\ns_cbranch_vccnz {lw}')
            P.label(l)
        self.stamp(11 + L*14, f'L{L} oflags')
        for ks in range(S, OD): self.frag_load(sWS, ks)
        for ks in range(32):
            P(waitstr(vm=vm.need(('x', ks)), lg=lg.need(('w', ks))))
            self.mfma(ACC0, RING + 4*(ks % NS), XF + 4*(ks % RG), ACC0)
            if ks + OD < 32: self.frag_load(sWS, ks + OD, RG)
            if ks + NS < 32: rd(ks + NS)
            if SG and ks == SG - 1: self.item(('ds', 'sg', f's_mov_b64 exec, 2\nds_add_u32 {vr(vCNT)}, {vr(vLANE)} offset:{4*C_WGO}\ns_mov_b64 exec, -1'))
            if L and ks & 1: P(self.acc_par(XF + 4*ks - 4, XF + 4*ks, par))
            if L and ks == self.o['ev']: self.verify(par, redo)
            if EX and ks == 24:
                for op in self.hint_prep(106, L): P(op)
            if EX and ks == EX: self.hint(106, sK2); vm.issue('h')
        if L: self.verify(par, redo)
        if EX == 32: self.hint(106, sK2)
        self.stamp(12 + L*14, f'L{L} outproj')
        nxt = L + 1 < self.nl and not self.o['b0']
        if nxt: P(f'ds_read_b32 {vr(vT0)}, {vr(vCNT)} offset:{4*C_WR}')
        self.publish_x(L + 1)
        if nxt: self.lds_signal(C_XDONE)
        self.stamp(13 + L*14, f'L{L} xpub')

    def aux_head(self, L):
        P = self.P
        if self.o['b0']: P('s_barrier')
        else: self.lds_signal(C_WR)
        if L + 1 < self.nl: self.code_prefetch(f'L_main_{L+1}')
        if L > 1 and not self.o['b0']: self.lds_wait(C_XDONE, 4 + 4*L, self.o['lsleep'])
        if L == 1:
            self.lds_to_regs(LDS_WO, PARK['o'], True); P('s_waitcnt vmcnt(0) lgkmcnt(0)')
            if self.o['bq']: self.lds_wait(C_Q, 8, self.o['lsleep'])
            self.relayout(1, (0,))
        else: self.swap_region('o', L + 1 < self.nl, L == 2)

    def aux_tail(self, L):
        P = self.P
        if L + 1 >= self.nl:
            if self.o.get('wb'):
                lw = P.newlabel('Lx')
                P(f's_lshr_b32 {sr(sT0)}, s2, {3 if self.o["wb"] == 1 else 8}\ns_or_b32 {sr(sT0)}, {sr(sT0)}, {sr(sMT)}\ns_cmp_lg_u32 {sr(sT0)}, 0\ns_cbranch_scc1 {lw}')
                P('s_waitcnt vmcnt(0)\ns_sleep 8\nbuffer_wbl2 sc1\ns_waitcnt vmcnt(0)')
                P.label(lw)
            return
        if L % 2 == 0: wait_att = lambda: self.lds_wait(C_ATT, 8*(L//2 + 1), self.o['lsleep'])
        else: wait_att = lambda: None
        if L == 0:
            lp = P.newlabel('Lx'); P.label(lp)
            self.trickle()
            P(f's_cmp_lg_u32 {sr(sDM)}, 0\ns_cbranch_scc1 {lp}')
            self.wphi_load()
            if self.o['bq']: P('s_waitcnt vmcnt(0)')
            else:
                wait_att()
                self.dma_w(1, (0,))
                P('s_waitcnt vmcnt(8)')
            for op in self.wphi_pack(): P(op)
            self.relayout(1, (1, 2))
            if self.o['bq']: wait_att()
            return
        save = L + 2 < self.nl
        self.swap_region(1, save, L == 1); self.swap_region(2, save, L == 1)
        wait_att()
        self.swap_region(0, save, L == 1)

    def layerA(self, L):
        P = self.P; sb = L * 14; o = self.o; lg = self.lg
        j1 = f'L_j1_{L}'; j2 = f'L_j2_{L}'; ax2 = f'L_ax2_{L}'; ax3 = f'L_ax3_{L}'
        P.label(f'L_main_{L}')
        self.main_kv(L)
        self.stamp(3 + sb, f'L{L} kvpass')
        if L == 0: self.lds_check(C_Q, 4)
        self.q_prefetch(L)
        P(waitstr(lg=lg.need('rt')))
        for p in range(8):
            P(f'v_pk_mul_f32 {vr(ACC0+2*p,2)}, {vr(ACC0+2*p,2)}, {vr(vRSTD,2)} op_sel_hi:[1,0]')
        for p in range(8): P(f'v_cvt_pk_bf16_f32 {vr(PKV+p)}, {vr(ACC0+2*p)}, {vr(ACC0+2*p+1)}')
        st = lambda f: f'buffer_store_dwordx4 {vr(PKV+4*f,4)}, {vr(vL16)}, {sr(sWS,4)}, {sr(sK0)} offen offset:{f*1024}{MODS[o["sm"]]}'
        fill = [st(0), st(1)]
        for hf in range(2):
            fill += [f'v_mul_f32 {vr(ACC1+i)}, {vr(STAT+i)}, {vr(ACC1+i)}' for i in range(8*hf, 8*hf + 8)]
            fill += [f'v_cvt_pk_bf16_f32 {vr(PKV+8+p)}, {vr(ACC1+2*p)}, {vr(ACC1+2*p+1)}' for p in range(4*hf, 4*hf + 4)]
            fill.append(st(2 + hf))
        fill += self.checksum(vPD, PKV, 16) + [f'buffer_store_dword {vr(vPD)}, {vr(vL4)}, {sr(sWS,4)}, {sr(sK2)} offen{MODS[o["sm"]]}']
        fill += [('ds', 'own', f'ds_write_b128 {vr(vKA)}, {vr(PKV+4*f,4)} offset:{f*1024}') for f in range(4)]
        if L == 0 and o['early']:
            fill.append(('ds', 'kd', f'v_mov_b32 {vr(vPD)}, 1\ns_mov_b64 exec, 1\nds_add_u32 {vr(vCNT)}, {vr(vPD)} offset:{4*C_CS}\ns_mov_b64 exec, -1'))
        m0 = self.mask_ops(0, lean=True)
        if L == 0: fill += m0[:4] + self.lds_peek(C_CSQ) + m0[4:16] + [('fn', lambda: self.lds_check(C_CSQ, 8 if o['il'] else 4))]
        else: fill += m0[:16]
        fill += [('ds', 'cs', f'ds_read_b128 {vr(WEXTQ,4)}, {vr(vT0)}')] + m0[16:]
        fill += [f'v_mul_f32 {vr(vRSTD)}, {f2u(0.25*LOG2E):#x}, {vr(vRSTD)}'] + self.wext_items(WEXTQ, 'cs')
        def halo_loads(m=' sc1'):
            for t_, sh in ((0, sH1), (1, sH2)):
                P(f's_add_u32 m0, {sr(sHL)}, {t_*4096}')
                for f in range(4): P(f'buffer_load_dwordx4 {vr(vL16)}, {sr(sWS,4)}, {sr(sh)} offen offset:{f*1024}{m} lds')
                P(f'buffer_load_dword {vr(65+t_)}, v67, {sr(sWS,4)}, {sr(sh)} offen{m}')
        La = L // 2; sHL = sM + 6
        fill += self.mask_ops(1)
        AT2 = o['at2']
        common = self.publish_o_addr(L) + [f's_add_u32 {sr(sCNT)}, {sr(sQT)}, {1 - AT2}', f's_mov_b32 {sr(sSTEP)}, {-OWN_ST}']
        common += [f's_add_u32 {sr(sH1)}, {sr(sHB)}, {OFF_KV + La*KV_L}', f's_add_u32 {sr(sH2)}, {sr(sH1)}, {16*KV_REC}',
                   f's_lshl_b32 {sr(sHL)}, {sr(sMT)}, 13', f's_add_u32 {sr(sHL)}, {sr(sHL)}, {LDS_T}', f'v_add_u32 v67, 4096, {vr(vL4)}']
        p1 = f's_cmp_lt_u32 {sr(sQT)}, 2' if o['p1'] else f's_cmp_ge_u32 {sr(sQT)}, 2'
        pre2 = (self.v_lanes() + [f'v_mov_b32 {vr(aP+4+i)}, 0' for i in range(4)]) if AT2 else []
        def gap32():
            for it in common + [f'v_mov_b32 {vr(vVA)}, {vr(vKA)}'] + pre2: P(it)
            self.mfma(aO, aP + 4, aP + 4, None)
        at = {32: gap32}
        if L == 2 and o.get('fine'):
            self.stamp(32, 'L2 Kepi'); lg.reset()
            at[12] = lambda: (self.stamp(43, 'L2 q12'), lg.reset()); at[31] = lambda: (self.stamp(51, 'L2 q31'), lg.reset())
        self.main_qpass(L, ACC0, fill, at=at, rate=o['qrate'])
        if o['prio']: self.prio_if(p1)
        self.stamp(5 + sb, f'L{L} preB1')
        P(f's_waitcnt lgkmcnt(0)\ns_barrier')
        P(f's_branch {j1}')
        P.label(f'L_aux_{L}')
        if L > 0:
            self.aux_head(L)
            for op in self.mask_ops(0) + self.mask_ops(1): P(op)
        else:
            self.trickle_setup()
            if o['early']:
                self.lds_wait(C_CS, 8, 1)
                for _ in range(o['early']): self.trickle()
            P(f'v_and_b32 {vr(vPA)}, 60, {vr(vL4)}\ns_lshl_b32 {sr(sK2)}, {sr(sR)}, 7\ns_add_u32 {sr(sK2)}, {sr(sK2)}, {OFF_XFLAG}\nbuffer_load_dword v25, {vr(vPA)}, {sr(sWS,4)}, {sr(sK2)} offen sc1')
        P(self.tile_addr(sOWN))
        for it in common + pre2: P(it)
        if o['prio']: self.prio_if(p1)
        self.stamp(5 + sb, f'L{L} preB1')
        P('s_barrier')
        P(f'ds_read_b128 {vr(aQ,4)}, {vr(vKA)} offset:4096')
        P.label(j1)
        l = P.newlabel('Lx')
        P(f's_cmp_eq_u32 {sr(sHAS)}, 0\ns_cbranch_scc1 {l}')
        halo_loads(MODS[o['hm']])
        P.label(l)
        if AT2: self.attn2(CDIAG, lambda: self.mfma(CDIAG, aP, aQ, CDIAG))
        else: self.attn_loop(lambda: self.mfma(aS, aK, aQ, CDIAG))
        P(self.tile_addr(sP2))
        P(f's_sub_u32 {sr(sCNT)}, {sr(sC2)}, {AT2}\ns_mov_b32 {sr(sSTEP)}, 4096')
        if AT2:
            for it in self.v_lanes(): P(it)
        if o['prio'] and not o['p1']: self.prio_if(f's_cmp_lt_u32 {sr(sQT)}, 2')
        self.stamp(6 + sb, f'L{L} own attn')
        lp = P.newlabel('Lhalo'); ck = P.newlabel('Lhchk'); dn = P.newlabel('Lhdone')
        nh = P.newlabel('Lnh')
        P(f's_cmp_eq_u32 {sr(sHAS)}, 0\ns_cbranch_scc1 {nh}\nv_add_u32 {vr(vT0)}, {sr(sHL)}, {vr(vL16)}\ns_branch {ck}')
        P.label(lp)
        halo_loads()
        P.label(ck)
        for t_, R in ((0, aS), (1, CDIAG)):
            P(f's_waitcnt vmcnt({5-5*t_})')
            for f in range(4): P(f'ds_read_b128 {vr(R+4*f,4)}, {vr(vT0)} offset:{(4*t_+f)*1024}')
        for t_, R in ((0, aS), (1, CDIAG)):
            cs = self.checksum(68 + t_, R, 16)
            for f in range(4):
                P(f's_waitcnt lgkmcnt({7-4*t_-f})'); P(cs[2*f]); P(cs[2*f + 1])
            P(f'v_cmp_ne_u32 {sr(sM+2*t_,2)}, {vr(65+t_)}, {vr(68+t_)}')
        P(f's_or_b64 {sr(sM,2)}, {sr(sM,2)}, {sr(sM+2,2)}\ns_cbranch_scc0 {dn}')
        self.retry_tail(lp, dn)
        self.stamp(7 + sb, f'L{L} halo ok')
        P.label(nh)
        if L == 0: P(f's_cmp_lg_u32 {sr(sHS)}, 0\ns_cbranch_scc1 {ax2}')
        if L == 0:
            if not o['xst']:
                self.rowmajor_addr(182, 183, sT0)
                P(f'buffer_load_dwordx4 {vr(XRES,4)}, v182, {sr(sX0,4)}, {sr(sT0)} offen\nbuffer_load_dwordx4 {vr(XRES+4,4)}, v182, {sr(sX0,4)}, {sr(sT0)} offen offset:32')
            self.wphi_load(170)
            P(f's_branch {j2}'); P.label(ax2)
            okl = P.newlabel('Lx')
            P(f's_waitcnt vmcnt(0) lgkmcnt(0)\nv_mov_b32 {vr(vPD)}, v25\nv_and_b32 {vr(vT0)}, -16, v25\nv_cmp_ne_u32 vcc, {sr(sTAG)}, {vr(vT0)}\ns_cbranch_vccz {okl}')
            self.poll(sK2, masked=True)
            P.label(okl)
            if not self.force_safe:
                P(f"""v_cmp_ne_u32 vcc, {sr(sOWNF)}, {vr(vPD)}
s_cmp_eq_u64 vcc, 0
s_cselect_b32 {sr(sFAST)}, 1, 0
v_mov_b32 {vr(vT0)}, {sr(sFAST)}
ds_write_b32 {vr(vCNT)}, {vr(vT0)} offset:44""")
            if o['pfb'] == 2: self.coop_prefetch(1, 1)
            if o['touch']:
                P(f"""v_lshlrev_b32 v5, 3, {vr(vL16)}
v_and_b32 v5, 0x780, v5
s_add_u32 {sr(sT0)}, {sr(sXW)}, {OFF_O}
s_add_u32 {sr(sT1)}, {sr(sSW)}, {OFF_ST}
s_mov_b64 exec, 0xffff
buffer_load_dword v26, v5, {sr(sWS,4)}, {sr(sT0)} offen sc1
buffer_load_dword v26, v5, {sr(sOut,4)}, {sr(sXW)} offen sc1
s_mov_b64 exec, 3
buffer_load_dword v26, v5, {sr(sWS,4)}, {sr(sT1)} offen sc1
v_mul_u32_u24 v5, {OFF_OFLAG - OFF_XFLAG - 0x2000}, {vr(vLANE)}
s_add_u32 {sr(sT1)}, {sr(sXF)}, {OFF_XFLAG + 0x2000}
buffer_load_dword v26, v5, {sr(sWS,4)}, {sr(sT1)} offen sc1
s_mov_b64 exec, -1""")
        P.label(j2)
        lskip = P.newlabel('Lnohalo'); l1 = P.newlabel('Lr1'); l2 = P.newlabel('Lr2')
        EA = o['ea'] if L else 0
        if EA:
            for op in self.hint_prep(70, L): P(op)
        P('s_waitcnt lgkmcnt(0)\ns_barrier')
        if L == 0 and not self.force_safe: P(f'ds_read_b32 {vr(vPD)}, {vr(vCNT)} offset:44')
        self.stamp(8 + sb, f'L{L} B2')
        if L == 0 and o['bq']:
            lb = P.newlabel('Lx')
            P(f's_cmp_lg_u32 {sr(sHS)}, 0\ns_cbranch_scc1 {lb}')
            if 1:
                P(f"""v_lshrrev_b32 v184, 2, {vr(vLANE)}
v_mul_u32_u24 v184, 3072, v184
v_and_b32 v185, 48, {vr(vL16)}
s_lshl_b32 {sr(sT0)}, {sr(sC)}, 6
v_add3_u32 v184, v184, v185, {sr(sT0)}
s_lshl_b32 {sr(sT2)}, {sr(sROT)}, 1
s_add_u32 {sr(sT2)}, {sr(sT2)}, {sr(sMT)}
s_lshl_b32 {sr(sT2)}, {sr(sT2)}, 15""")
                for st in range(4):
                    P(f's_and_b32 {sr(sT2)}, {sr(sT2)}, 0x7ffff\ns_mul_i32 {sr(sT0)}, {sr(sT2)}, 3\ns_add_u32 {sr(sT3)}, {sr(sT0)}, 49152')
                    P(f'buffer_load_dwordx4 {vr(224+8*st,4)}, v184, {sr(sWB,4)}, {sr(sT0)} offen\nbuffer_load_dwordx4 {vr(228+8*st,4)}, v184, {sr(sWB,4)}, {sr(sT3)} offen')
                    if st < 3: P(f's_add_u32 {sr(sT2)}, {sr(sT2)}, 0x20000')
            P.label(lb)
        P(f's_cmp_eq_u32 {sr(sR)}, 0\ns_cbranch_scc1 {lskip}')
        def first():
            P(f's_cmp_eq_u32 {sr(sR)}, 1\ns_cbranch_scc1 {l1}')
            self.mfma(CFIRST if AT2 else aS, aP if AT2 else aK, aQ, CFIRST)
            P(f's_branch {l2}'); P.label(l1)
            self.mfma(CFIRST if AT2 else aS, aP if AT2 else aK, aQ, None)
            P.label(l2)
        if AT2: self.attn2(CFIRST, first, trickle=(L == 0))
        else: self.attn_loop(first, trickle=(L == 0))
        P.label(lskip)
        if AT2:
            P('s_waitcnt lgkmcnt(1)'); self.mfma(aO, VV + 4, aP + 4, aO)
        if EA == 1: self.hint(70, sK1)
        if L == 0 and not self.force_safe: P(f's_waitcnt lgkmcnt(0)\nv_readfirstlane_b32 {sr(sFAST)}, {vr(vPD)}')
        self.stamp(9 + sb, f'L{L} attn')
        P(f'v_subrev_u32 {vr(vT0)}, {f2u(2.0**-SAFE_EXP):#x}, {vr(aO+8)}\nv_cmp_le_u32 vcc, {f2u(2.0**SAFE_EXP) - f2u(2.0**-SAFE_EXP):#x}, {vr(vT0)}\ns_cbranch_vccnz L_fb_{L}')
        P.label(f'L_fbr_{L}')
        if EA == 2: self.hint(70, sK1)
        self.publish_o(L, aO, 0)
        if o['prio']: P('s_setprio 0')
        self.lds_signal(C_ATT)
        self.stamp(10 + sb, f'L{L} opub')
        P(f's_cmp_lg_u32 {sr(sHS)}, 0\ns_cbranch_scc1 {ax3}')
        if o['fpr']:
            l = P.newlabel('Lx')
            P(f's_cmp_lt_u32 {sr(sMT)}, 2\ns_cbranch_scc1 {l}\ns_setprio {o["fpr"]}'); P.label(l)
        self.main_outproj(L)
        P(f's_branch L_main_{L+1}')
        P.label(ax3)
        self.aux_tail(L)
        self.stamp(13 + sb, f'L{L} xpub')
        P(f's_branch L_aux_{L+1}')

    def attn_fallback(self, L):
        P = self.P; M = vT0
        pk = lambda d, e: f'v_cvt_pk_bf16_f32 {vr(d)}, {vr(e)}, {vr(e+1)}'
        P.label(f'L_fb_{L}')
        P(f's_waitcnt lgkmcnt(0)\nv_mov_b32 {vr(M)}, 0xff800000')
        for op in self.mask_ops(0) + self.mask_ops(1): P(op)
        for ps in range(2):
            for seg in range(2):
                lp = P.newlabel('Lfb'); nx = P.newlabel('Lfbn'); nm = P.newlabel('Lfbm')
                if seg == 0:
                    P(self.tile_addr(sOWN))
                    P(f's_add_u32 {sr(sCNT)}, {sr(sQT)}, 1\ns_mov_b32 {sr(sSTEP)}, {-OWN_ST}')
                    for i in range(16): P(f'v_mov_b32 {vr(aS+i)}, {vr(CDIAG+i)}')
                else:
                    P(f's_cmp_eq_u32 {sr(sR)}, 0\ns_cbranch_scc1 {nx}')
                    P(self.tile_addr(sP2))
                    P(f's_mov_b32 {sr(sCNT)}, {sr(sC2)}\ns_mov_b32 {sr(sSTEP)}, 4096\ns_cmp_eq_u32 {sr(sR)}, 1\ns_cbranch_scc1 {lp}')
                    for i in range(16): P(f'v_mov_b32 {vr(aS+i)}, {vr(CFIRST+i)}')
                P.label(lp)
                P(f'ds_read_b128 {vr(aK,4)}, {vr(vKA)}')
                if ps:
                    P(f's_mov_b64 exec, {sr(sLO,2)}\nds_read_b128 {vr(VV,4)}, {vr(vVA)} offset:2048\nds_read_b128 {vr(VV+4,4)}, {vr(vVA)} offset:3072\ns_mov_b64 exec, -1')
                P('s_waitcnt lgkmcnt(0)')
                self.mfma(aS, aK, aQ, aS)
                if ps == 0:
                    for i in range(0, 16, 2): P(f'v_max3_f32 {vr(M)}, {vr(M)}, {vr(aS+i)}, {vr(aS+i+1)}')
                else:
                    for i in range(16): P(f'v_sub_f32 {vr(aS+i)}, {vr(aS+i)}, {vr(M)}')
                    for i in range(16): P(f'v_exp_f32 {vr(aS+i)}, {vr(aS+i)}')
                    for p in range(8): P(pk(aP + p, aS + 2*p))
                    self.mfma(aO, VV, aP, aO)
                    self.mfma(aO, VV + 4, aP + 4, aO)
                for i in range(16): P(f'v_mov_b32 {vr(aS+i)}, 0')
                P(f'v_add_u32 {vr(vKA)}, {sr(sSTEP)}, {vr(vKA)}\nv_add_u32 {vr(vVA)}, {sr(sSTEP)}, {vr(vVA)}')
                P(f's_sub_u32 {sr(sCNT)}, {sr(sCNT)}, 1\ns_cmp_lg_u32 {sr(sCNT)}, 0\ns_cbranch_scc1 {lp}')
                P.label(nx)
            if ps == 0:
                P(f'v_mov_b32 {vr(vPD)}, {vr(M)}\nv_permlane32_swap_b32 {vr(vPD)}, {vr(M)}\nv_max_f32 {vr(M)}, {vr(M)}, {vr(vPD)}')
        P(f's_branch L_fbr_{L}')

    def softmax16(self, dst, t, inject=None, start=0, step=1, pk=True):
        if inject is None: return self.softmax16_(dst, t, self.P, pk)
        ops = []
        self.softmax16_(dst, t, lambda x: ops.extend(x.split('\n')))
        inject = list(inject)
        for i, op in enumerate(ops):
            if i >= start and (i - start) % step == 0 and inject: self.P(inject.pop(0))
            self.P(op)
        for x in inject: self.P(x)

    def softmax16_(self, dst, t, P, pk=True):
        A = ACC0
        P(f'v_max3_f32 {vr(t)}, {vr(A)}, {vr(A+1)}, {vr(A+2)}\nv_max3_f32 {vr(t+1)}, {vr(A+3)}, {vr(A+4)}, {vr(A+5)}')
        P(f'v_max3_f32 {vr(t+2)}, {vr(A+6)}, {vr(A+7)}, {vr(A+8)}\nv_max3_f32 {vr(t+3)}, {vr(A+9)}, {vr(A+10)}, {vr(A+11)}')
        P(f'v_max3_f32 {vr(t)}, {vr(t)}, {vr(A+12)}, {vr(A+13)}\nv_max3_f32 {vr(t+1)}, {vr(t+1)}, {vr(A+14)}, {vr(A+15)}')
        P(f'v_max3_f32 {vr(t)}, {vr(t)}, {vr(t+2)}, {vr(t+3)}\nv_max_f32 {vr(t)}, {vr(t)}, {vr(t+1)}')
        P(f'v_mul_f32 {vr(t)}, {vr(vRSTD)}, {vr(t)}')
        if not pk:
            for i in range(4): P(f'v_fma_f32 {vr(A+i)}, {vr(A+i)}, {vr(vRSTD)}, -{vr(t)}')
            for i in range(16):
                P(f'v_exp_f32 {vr(A+i)}, {vr(A+i)}')
                if i + 4 < 16: P(f'v_fma_f32 {vr(A+i+4)}, {vr(A+i+4)}, {vr(vRSTD)}, -{vr(t)}')
                if i in (3, 4): P(f'v_add_f32 {vr(t+i-1)}, {vr(A+i-3)}, {vr(A+i-1)}')
                if i >= 5: P(f'v_add_f32 {vr(t+2+(i+1)%2)}, {vr(t+2+(i+1)%2)}, {vr(A+i-1)}')
            P(f'v_add_f32 {vr(t+3)}, {vr(t+3)}, {vr(A+15)}\nv_add_f32 {vr(t+2)}, {vr(t+2)}, {vr(t+3)}\nv_rcp_f32 {vr(t)}, {vr(t+2)}')
            for i in range(16): P(f'v_mul_f32 {vr(A+i)}, {vr(t)}, {vr(A+i)}')
            for p in range(8): P(f'v_cvt_pk_bf16_f32 {vr(dst+p)}, {vr(A+2*p)}, {vr(A+2*p+1)}')
            return
        fm = lambda p: f'v_pk_fma_f32 {vr(A+2*p,2)}, {vr(A+2*p,2)}, {vr(vRSTD,2)}, {vr(t,2)} op_sel_hi:[1,0,0] neg_lo:[0,0,1] neg_hi:[0,0,1]'
        P(fm(0)); P(fm(1))
        for p in range(8):
            P(f'v_exp_f32 {vr(A+2*p)}, {vr(A+2*p)}')
            if p + 2 < 8: P(fm(p + 2))
            P(f'v_exp_f32 {vr(A+2*p+1)}, {vr(A+2*p+1)}')
            if p == 2: P(f'v_pk_add_f32 {vr(t+2,2)}, {vr(A,2)}, {vr(A+2,2)}')
            if p >= 3: P(f'v_pk_add_f32 {vr(t+2,2)}, {vr(t+2,2)}, {vr(A+2*p-2,2)}')
        P(f'v_pk_add_f32 {vr(t+2,2)}, {vr(t+2,2)}, {vr(A+14,2)}\nv_add_f32 {vr(t+2)}, {vr(t+2)}, {vr(t+3)}\nv_rcp_f32 {vr(t)}, {vr(t+2)}')
        for p in range(8): P(f'v_pk_mul_f32 {vr(A+2*p,2)}, {vr(A+2*p,2)}, {vr(t,2)} op_sel_hi:[1,0]')
        for p in range(8): P(f'v_cvt_pk_bf16_f32 {vr(dst+p)}, {vr(A+2*p)}, {vr(A+2*p+1)}')

    def layerB(self, L):
        P = self.P; Lb = L // 2; sb = L * 14; o = self.o; lg = self.lg
        j0 = f'L_j0_{L}'; j1 = f'L_j1_{L}'; j2 = f'L_j2_{L}'; ax1 = f'L_ax1_{L}'; ax1b = f'L_ax1b_{L}'; ax3 = f'L_ax3_{L}'; axz = f'L_axz_{L}'
        KA, KV_ = 48, 96
        vA16, vA4, vAW, vAO = 96, 97, 98, 99
        P.label(f'L_main_{L}')
        self.main_kv(L)
        if o['fpr']: P('s_setprio 0')
        self.stamp(3 + sb, f'L{L} kvpass')
        P(waitstr(lg=lg.need('rt')))
        for p in (4, 5, 6, 7): P(f'v_cvt_pk_bf16_f32 {vr(PKV+p)}, {vr(ACC0+2*p)}, {vr(ACC0+2*p+1)}')
        P(f'ds_write_b128 {vr(vKA)}, {vr(PKV+4,4)} offset:1024')
        PW = o['pw1']
        if PW:
            o['vpre'] = 2
            P(f'ds_write_b32 {vr(PKV+8)}, {vr(PKV+9)} offset:{4*C_ST}')
        for p in (0, 1, 2, 3): P(f'v_cvt_pk_bf16_f32 {vr(PKV+p)}, {vr(ACC0+2*p)}, {vr(ACC0+2*p+1)}')
        vmul = lambda p: f'v_pk_mul_f32 {vr(ACC1+2*p,2)}, {vr(ACC1+2*p,2)}, {vr(STAT+2*p,2)}'
        P(vmul(0)); P(vmul(1))
        self.mfma(ACC0, WPHI, PKV, None)
        for p in range(2, 8): P(vmul(p))
        if o['vpre'] != 1 and not PW: P('s_waitcnt lgkmcnt(0)\ns_barrier')
        for f in range(2, 4):
            for p in range(4*f - 8, 4*f - 4): P(f'v_cvt_pk_bf16_f32 {vr(PKV+8+p)}, {vr(ACC1+2*p)}, {vr(ACC1+2*p+1)}')
            P(f'ds_write_b128 {vr(vKA)}, {vr(PKV+4*f,4)} offset:{f*1024}')
        if o['vpre'] == 1: P('s_waitcnt lgkmcnt(0)\ns_barrier')
        P(f's_branch {j0}')
        P.label(f'L_aux_{L}')
        self.aux_head(L)
        for i in range(32): P(f'v_mov_b32 {vr(KV_+i)}, {vr(ONES)}')
        P(f"""v_lshrrev_b32 v91, 5, {vr(vLANE)}
v_bfe_u32 v88, {vr(vLANE)}, 2, 2
v_lshl_add_u32 v88, v91, 2, v88
v_lshlrev_b32 v88, 5, v88
v_and_b32 v89, 1, {vr(vLANE)}
v_lshl_add_u32 v88, v89, 4, v88
v_bfe_u32 v89, {vr(vLANE)}, 4, 1
v_lshl_add_u32 v88, v89, 12, v88
v_bfe_u32 v89, {vr(vLANE)}, 1, 1
v_lshl_add_u32 v88, v89, 3, v88
s_lshl_b32 {sr(sT0)}, {sr(sMT)}, 10
s_add_u32 {sr(sT0)}, {sr(sT0)}, {LDS_OWN}
v_add_u32 v88, {sr(sT0)}, v88
s_lshl_b32 {sr(sT1)}, {sr(sMT)}, 8
v_xor_b32 v90, {sr(sT1)}, {vr(vL16)}
v_add_u32 v89, {LDS_OWN}, v90
s_lshl_b32 {sr(sT0)}, {sr(sMT)}, 1
v_add_u32 v91, {sr(sT0)}, v91
v_and_b32 v92, 31, {vr(vLANE)}
v_mov_b32 v93, {OOB >> 4:#x}
v_cmp_eq_u32 vcc, 16, v92
v_cndmask_b32 v91, v93, v91, vcc
v_lshrrev_b32 v92, 8, v90
v_mul_u32_u24 v92, {KP_Q}, v92
v_and_b32 v93, 15, {vr(vLANE)}
v_lshl_add_u32 v90, v93, 4, v92
v_lshl_add_u32 v92, v93, 2, v92
v_lshlrev_b32 v93, 4, v91
v_add_u32 v93, {KP_Z}, v93
v_lshlrev_b32 v91, 4, v91
v_add_u32 v91, 64, v91
v_cndmask_b32 v91, v91, v92, {sr(sLO,2)}
v_cndmask_b32 v90, v93, v90, {sr(sLO,2)}
v_add_u32 v93, 64, v93
v_add_u32 v92, 256, v90
v_cndmask_b32 v93, v93, v92, {sr(sLO,2)}
s_lshl_b32 {sr(sK2)}, {sr(sC)}, 4
s_add_u32 {sr(sK2)}, {sr(sK2)}, {sr(sR)}
s_mul_i32 {sr(sK2)}, {sr(sK2)}, {KP_REC}
s_add_u32 {sr(sK2)}, {sr(sK2)}, {OFF_KP + Lb*KP_L}""")
        P(self.tile_addr(sOWN))
        for op in self.phi_addr(): P(op)
        P(f's_lshl_b32 {sr(sT0)}, {sr(sQT)}, 7\ns_add_u32 {sr(sT0)}, {sr(sT0)}, {LDS_RSTD}\nv_and_b32 v25, 124, {vr(vL4)}\nv_add_u32 v25, {sr(sT0)}, v25')
        self.stamp(3 + sb, f'L{L} kvpass')
        if PW:
            lw = P.newlabel('Lpw')
            P(f's_lshl_b32 {sr(sT0)}, {sr(sQT)}, 2\nv_add_u32 v26, {sr(sT0)}, {vr(vCNT)}')
            P.label(lw)
            if o['pws']: P(f's_sleep {o["pws"]}')
            P(f'ds_read_b32 {vr(vPD)}, v26 offset:{4*C_ST}\nds_read_b128 {vr(RING+8,4)}, {vr(vKA)}\nds_read_b32 {vr(vRSTD)}, v25\ns_waitcnt lgkmcnt(1)')
            P(f'v_cmp_gt_u32 vcc, {5 + Lb}, {vr(vPD)}\ns_cbranch_vccnz {lw}')
        else:
            P('s_barrier')
            P(f'ds_read_b128 {vr(RING+8,4)}, {vr(vKA)}\nds_read_b32 {vr(vRSTD)}, v25\ns_waitcnt lgkmcnt(1)')
        self.mfma(ACC0, WPHI, RING + 8, None)
        P(f's_waitcnt lgkmcnt(0)\nv_mul_f32 {vr(vRSTD)}, {sr(sLOG2E)}, {vr(vRSTD)}')
        vrd = [f'ds_read_b128 {vr(KV_+4*st,4)}, v89 offset:{(st>>1)*OWN_ST + 2048 + (st&1)*1024}' for st in range(8)]
        if o['vpre'] == 1:
            P(f's_mov_b64 exec, {sr(sLO,2)}')
            for x in vrd: P(x)
            P('s_mov_b64 exec, -1')
        else: P('s_nop 7')
        jw = P.newlabel('Lpw')
        if PW == 1:
            P(f's_cmp_ge_u32 {sr(sQT)}, 2\ns_cbranch_scc1 {j0}')
            self.stamp(4 + sb, f'L{L} B1a')
            self.softmax16(RING, RING + 12, pk=False)
            P(f's_branch {jw}')
        P.label(j0)
        self.stamp(4 + sb, f'L{L} B1a')
        self.softmax16(RING, RING + 12)
        P.label(jw)
        P(f'ds_write_b128 {vr(vVA)}, {vr(RING,4)}\nds_write_b128 {vr(vVA)}, {vr(RING+4,4)} offset:4096\ns_waitcnt lgkmcnt(0)\ns_barrier')
        self.stamp(5 + sb, f'L{L} B1b')
        common = self.publish_o_addr(L) + f"""s_mul_i32 {sr(sH1)}, {sr(sC)}, {16*KP_REC}
s_add_u32 {sr(sH1)}, {sr(sH1)}, {OFF_KP + Lb*KP_L}
s_mov_b32 {sr(sSEL0)}, 0x3f80
s_mov_b32 {sr(sSEL1)}, 0x3f800000
s_lshl_b32 {sr(sT0)}, {sr(sHS)}, 4
v_xor_b32 {vr(vAO)}, {sr(sT0)}, {vr(vLANE)}
v_lshlrev_b32 {vr(vAO)}, 5, {vr(vAO)}
v_add_u32 {vr(vAO)}, {LDS_KVT}, {vr(vAO)}
v_and_b32 v100, 32, {vr(vLANE)}
s_lshl_b32 {sr(sT0)}, {sr(sHS)}, 6
s_add_u32 {sr(sT0)}, {sr(sT0)}, {LDS_ZT}
v_add_u32 v100, {sr(sT0)}, v100
v_cndmask_b32 {vr(vAO)}, v100, {vr(vAO)}, {sr(sLO,2)}""".split('\n')
        SEL = 104
        addr_main = f"""s_mul_i32 {sr(sH2)}, {sr(sMT)}, {KP_Q}
s_add_u32 {sr(sH2)}, {sr(sH2)}, {sr(sH1)}
v_lshrrev_b32 v100, 4, {vr(vLANE)}
v_and_b32 v101, 15, {vr(vLANE)}
v_mul_u32_u24 {vr(vA16)}, {KP_REC}, v100
v_lshl_add_u32 {vr(vA4)}, v101, 2, {vr(vA16)}
v_lshl_add_u32 {vr(vA16)}, v101, 4, {vr(vA16)}
s_lshl_b32 {sr(sT0)}, {sr(sMT)}, 9
s_add_u32 {sr(sT0)}, {sr(sT0)}, {LDS_KVT}
v_lshl_add_u32 {vr(vAW)}, v101, 5, {sr(sT0)}
v_lshl_add_u32 {vr(vAW)}, v100, 3, {vr(vAW)}
v_lshlrev_b32 v100, 4, {vr(vLANE)}
v_lshlrev_b32 v100, v100, {sr(sSEL0)}
v_lshrrev_b32 v101, 1, v101""".split('\n')
        for r_ in range(8): addr_main += [f'v_cmp_eq_u32 vcc, {r_}, v101\nv_cndmask_b32 {vr(SEL+r_)}, 0, v100, vcc']
        addr_z = f"""v_lshrrev_b32 v102, 4, {vr(vLANE)}
v_mul_u32_u24 {vr(vA16)}, {KP_REC}, v102
v_bfe_u32 v100, {vr(vLANE)}, 3, 1
v_and_b32 v101, 1, {vr(vLANE)}
v_lshl_add_u32 v100, v100, 1, v101
v_bfe_u32 v101, {vr(vLANE)}, 1, 2
v_mul_u32_u24 {vr(vA4)}, {4*KP_REC}, v100
v_add_u32 {vr(vA4)}, {vr(vA4)}, {vr(vA16)}
v_lshl_add_u32 {vr(vA4)}, v101, 4, {vr(vA4)}
v_lshlrev_b32 {vr(vAW)}, 5, v101
v_lshl_add_u32 {vr(vAW)}, v100, 3, {vr(vAW)}
v_lshl_add_u32 {vr(vAW)}, v102, 1, {vr(vAW)}
v_add_u32 {vr(vAW)}, {LDS_ZT}, {vr(vAW)}
v_and_b32 v100, 15, {vr(vLANE)}
v_lshl_add_u32 {vr(vA16)}, v100, 3, {vr(vA16)}""".split('\n')
        A = ACC1; KD = 128; T = A + 4
        def loads_main(P=P, m=' sc1'):
            P(f's_mov_b32 {sr(sT0)}, {sr(sH2)}')
            for it in range(4):
                D = KD + 12*it
                P(f'buffer_load_dwordx4 {vr(D,4)}, {vr(vA16)}, {sr(sWS,4)}, {sr(sT0)} offen{m}\nbuffer_load_dwordx4 {vr(D+4,4)}, {vr(vA16)}, {sr(sWS,4)}, {sr(sT0)} offen offset:256{m}')
                P(f'buffer_load_dword {vr(D+8)}, {vr(vA4)}, {sr(sWS,4)}, {sr(sT0)} offen offset:512{m}')
                if it < 3: P(f's_add_u32 {sr(sT0)}, {sr(sT0)}, {4*KP_REC}')
        def accum(D, first, t0):
            P(f'v_add3_u32 {vr(T)}, {t0 if first else vr(T)}, {vr(D)}, {vr(D+1)}')
            for k in range(2):
                if first: P(f'v_lshlrev_b32 {vr(A+2*k)}, 16, {vr(D+k)}\nv_and_b32 {vr(A+2*k+1)}, 0xffff0000, {vr(D+k)}')
                else: P(f'v_dot2_f32_bf16 {vr(A+2*k)}, {vr(D+k)}, {sr(sSEL0)}, {vr(A+2*k)}\nv_dot2_f32_bf16 {vr(A+2*k+1)}, {vr(D+k)}, {sr(sSEL1)}, {vr(A+2*k+1)}')
        dpp = lambda c: f'v_add_u32_dpp {vr(T)}, {vr(T)}, {vr(T)} {c} row_mask:0xf bank_mask:0xf'
        P(f's_cmp_lg_u32 {sr(sHS)}, 0\ns_cbranch_scc1 {ax1}')
        lg.reset()
        self.q_prefetch(L)
        fill = [('ds', 'cs', f'ds_read_b128 {vr(WEXTQ,4)}, {vr(vT0)}')] + common
        fill += addr_main
        fill += self.wext_items(WEXTQ, 'cs')
        self.main_qpass(L, ACC1, fill, pre_write=lambda: P('s_barrier'), rate=2)
        self.mfma(ACC0, WPHI, aQ, None)
        P('s_waitcnt lgkmcnt(0)\ns_barrier')
        if o['kp_at'] == 1: loads_main()
        if o['kp_at'] >= 2:
            inj = []; loads_main(lambda x: inj.extend(x.split('\n')))
            self.softmax16(PHQ, RING + 12, inj, o['kp_at'], o['kp_step'])
            self.stamp(6 + sb, f'L{L} phiq / kp stored')
            P(f's_branch L_kpc_{L}')
        else: P(f's_branch {j1}')
        P.label(ax1)
        P(f's_cmp_ge_u32 {sr(sMT)}, 2\ns_cbranch_scc1 {ax1b}\ns_setprio 3')
        if o['vpre'] == 2:
            P(f's_mov_b64 exec, {sr(sLO,2)}')
            for x in vrd: P(x)
            P('s_mov_b64 exec, -1')
        n_ = 2 if o['vpre'] else 3
        for st in range(8):
            of = (st >> 1)*OWN_ST + (st & 1)*512
            P(f'ds_read_b64_tr_b16 {vr(KA+4*st,2)}, v88 offset:{of}\nds_read_b64_tr_b16 {vr(KA+2+4*st,2)}, v88 offset:{of+256}')
            if not o['vpre']: P(f's_mov_b64 exec, {sr(sLO,2)}\n{vrd[st]}\ns_mov_b64 exec, -1')
            if st >= 3:
                P(f's_waitcnt lgkmcnt({3*n_})'); self.mfma(ACC0, KA + 4*(st-3), KV_ + 4*(st-3), None if st == 3 else ACC0)
        for st in range(5, 8):
            P(f's_waitcnt lgkmcnt({n_*(7-st)})'); self.mfma(ACC0, KA + 4*st, KV_ + 4*st, ACC0)
        for p in range(8): P(f'v_cvt_pk_bf16_f32 {vr(80+p)}, {vr(ACC0+2*p)}, {vr(ACC0+2*p+1)}')
        P(f'buffer_store_dwordx4 v[80:83], v90, {sr(sWS,4)}, {sr(sK2)} offen{MODS[o["sm"]]}\nbuffer_store_dwordx4 v[84:87], v93, {sr(sWS,4)}, {sr(sK2)} offen{MODS[o["sm"]]}')
        for op in self.checksum(92, 80, 8): P(op)
        P(f'buffer_store_dword v92, v91, {sr(sWS,4)}, {sr(sK2)} offen offset:512{MODS[o["sm"]]}')
        self.stamp(6 + sb, f'L{L} phiq / kp stored')
        P('s_setprio 0')
        P.label(ax1b)
        if L == 1: self.dma_w(1, ('o',))
        for it in common + addr_z: P(it)
        P('s_barrier\ns_barrier')
        P(f'ds_read_b128 {vr(aQ,4)}, {vr(vKA)} offset:4096\ns_waitcnt lgkmcnt(0)')
        self.mfma(ACC0, WPHI, aQ, None)
        P('s_nop 11')
        P.label(j1)
        self.softmax16(PHQ, RING + 12)
        if o['kp_at'] >= 2: P(f's_branch {axz}')
        else:
            P(f's_cmp_lg_u32 {sr(sHS)}, 0\ns_cbranch_scc1 {axz}')
            self.stamp(6 + sb, f'L{L} phiq / kp stored')
        lp = P.newlabel('Lkp'); ck = f'L_kpc_{L}'; dn = P.newlabel('Lkpd')
        if o['kp_at'] == 0 and o['km'] != 1: loads_main(m=MODS[o['km']])
        if o['kp_at'] == 1 or (o['kp_at'] == 0 and o['km'] != 1): P(f's_branch {ck}')
        P.label(lp)
        loads_main()
        P.label(ck)
        for it in range(4):
            D = KD + 12*it; cs = self.checksum(D + 9, D, 8)
            P(f's_waitcnt vmcnt({10 - 3*it})')
            for hf in range(2):
                P(f'v_mfma_f32_16x16x32_bf16 {vr(A,4)}, {vr(SEL+4*hf,4)}, {vr(D+4*hf,4)}, {"0" if it + hf == 0 else vr(A,4)}')
            for op in cs: P(op)
            P(f's_waitcnt vmcnt({9 - 3*it})\nv_cmp_ne_u32 {sr(sM+2*it,2)}, {vr(D+8)}, {vr(D+9)}')
            if it == 2: P(f's_or_b64 {sr(sM,2)}, {sr(sM,2)}, {sr(sM+2,2)}')
            if it == 3: P(f's_or_b64 {sr(sM,2)}, {sr(sM,2)}, {sr(sM+4,2)}')
        P(f'v_cvt_pk_bf16_f32 v68, {vr(A)}, {vr(A+1)}\nv_cvt_pk_bf16_f32 v69, {vr(A+2)}, {vr(A+3)}\nds_write_b64 {vr(vAW)}, v[68:69]')
        P(f's_or_b64 {sr(sM,2)}, {sr(sM,2)}, {sr(sM+6,2)}\ns_cbranch_scc0 {dn}')
        self.retry_tail(lp, dn)
        self.stamp(7 + sb, f'L{L} kp ok')
        P(f's_branch {j2}')
        P.label(axz)
        if L == 1:
            P('s_waitcnt vmcnt(0)')
        P(f's_cmp_lg_u32 {sr(sMT)}, 2\ns_cbranch_scc1 {j2}')
        lp = P.newlabel('Lkz'); dn = P.newlabel('Lkzd'); D = 32
        P.label(lp)
        P(f's_mov_b32 {sr(sT0)}, {sr(sH1)}\nbuffer_load_dword {vr(D+8)}, {vr(vA4)}, {sr(sWS,4)}, {sr(sT0)} offen offset:576 sc1')
        for it in range(4):
            P(f'buffer_load_dwordx2 {vr(D+2*it,2)}, {vr(vA16)}, {sr(sWS,4)}, {sr(sT0)} offen offset:{KP_Z} sc1')
            if it < 3: P(f's_add_u32 {sr(sT0)}, {sr(sT0)}, {4*KP_REC}')
        for it in range(4):
            P(f's_waitcnt vmcnt({3 - it})')
            accum(D + 2*it, it == 0, sr(sTAG))
            if it == 0: P(f'v_sub_u32 {vr(T)}, {vr(T)}, {vr(D+8)}')
        P(dpp('quad_perm:[1,0,3,2]'))
        P(f'v_permlane32_swap_b32 {vr(A)}, {vr(A+2)}\nv_permlane32_swap_b32 {vr(A+1)}, {vr(A+3)}')
        P(dpp('row_ror:8'))
        P(f'v_add_f32 {vr(A)}, {vr(A)}, {vr(A+2)}\nv_add_f32 {vr(A+1)}, {vr(A+1)}, {vr(A+3)}\nv_cmp_ne_u32 vcc, 0, {vr(T)}')
        P(f'v_permlane16_swap_b32 {vr(A)}, {vr(A+1)}\nv_add_f32 {vr(A)}, {vr(A)}, {vr(A+1)}\nv_cvt_pk_bf16_f32 v68, {vr(A)}, {vr(A)}\nds_write_b16 {vr(vAW)}, v68')
        P(f's_cbranch_vccz {dn}')
        self.retry_tail(lp, dn)
        P.label(j2)
        P('s_waitcnt lgkmcnt(0)\ns_barrier')
        self.stamp(8 + sb, f'L{L} B2')
        P(f'ds_read_b128 v[68:71], {vr(vAO)}\nds_read_b128 v[72:75], {vr(vAO)} offset:16')
        if o['eb']:
            for op in self.hint_prep(78, L): P(op)
        if o['eb'] == 1: self.hint(78, sK1)
        P('s_waitcnt lgkmcnt(1)')
        self.mfma(ACC0, 68, PHQ, None)
        if o['eb'] == 2: self.hint(78, sK1)
        P('s_waitcnt lgkmcnt(0)')
        self.mfma(ACC0, 72, PHQ + 4, ACC0)
        if o['eb'] == 3: self.hint(78, sK1)
        self.publish_o(L, ACC0, 1e-6)
        self.stamp(10 + sb, f'L{L} opub')
        P(f's_cmp_lg_u32 {sr(sHS)}, 0\ns_cbranch_scc1 {ax3}')
        if o['epr'] and L == 1: self.prio_if(f's_cmp_lt_u32 {sr(sMT)}, 2')
        elif o['mpr']: P(f's_setprio {o["mpr"]}')
        self.main_outproj(L)
        if o['epr'] == 1 and L == 1: self.prio_if(f's_cmp_ge_u32 {sr(sMT)}, 2')
        P(f's_branch L_main_{L+1}')
        P.label(ax3)
        self.aux_tail(L)
        self.stamp(13 + sb, f'L{L} xpub')
        P(f's_branch L_aux_{L+1}')

    def epilogue(self):
        P = self.P; nl = self.nl
        P.label(f'L_main_{nl}')
        P(f's_or_b32 {sr(sT0)}, s2, {sr(sW)}\ns_cmp_lg_u32 {sr(sT0)}, 0\ns_cbranch_scc1 L_aux_{nl}\ns_mov_b32 {sr(sT2)}, 0')
        self.flag(sT2, sTAG, False)
        P.label(f'L_aux_{nl}')
        if self.stamps:
            P('s_waitcnt vmcnt(0)')
            self.stamp(62, 'end')
            P(f's_memtime {sr(sST,2)}\ns_waitcnt lgkmcnt(0)\ns_sub_u32 {sr(sST)}, {sr(sST)}, s100\nv_writelane_b32 {vr(vSTAMP)}, {sr(sST)}, 59')
            P(f'''v_writelane_b32 {vr(vSTAMP)}, {sr(sBUD)}, 63
v_writelane_b32 {vr(vSTAMP)}, {sr(sFAST)}, 61
v_writelane_b32 {vr(vSTAMP)}, s99, 58
v_writelane_b32 {vr(vSTAMP)}, s101, 56
s_lshl_b32 {sr(sT0)}, s2, 3
s_add_u32 {sr(sT0)}, {sr(sT0)}, {sr(sW)}
s_lshl_b32 {sr(sT0)}, {sr(sT0)}, 8
s_add_u32 {sr(sT0)}, {sr(sT0)}, {OFF_STAMP}
buffer_store_dword {vr(vSTAMP)}, {vr(vL4)}, {sr(sWS,4)}, {sr(sT0)} offen''')
            if self.o.get('dbgst'):
                P(f's_cmp_lg_u32 {sr(sHS)}, 0\ns_cbranch_scc1 L_end\ns_load_dwordx2 s[64:65], s[0:1], 64\nv_mov_b32 v30, 0')
                for j, (idx, neg) in enumerate([(60, 1), (60, 0), (0, 0), (2, 0), (1, 0), (3, 0), (8, 0), (10, 0), (13, 0), (27, 0), (41, 0), (62, 0), (59, 0), (3, 1), (13, 1), (62, 1)]):
                    P(f'v_readlane_b32 s66, {vr(vSTAMP)}, {idx}')
                    if neg: P('s_not_b32 s66, s66')
                    P(f'v_writelane_b32 v30, s66, {j}')
                P('s_waitcnt lgkmcnt(0)')
                self.srd(68, 64, 256)
                P(f's_mov_b64 exec, 0xffff\nbuffer_atomic_umax v30, {vr(vL4)}, s[68:71], 0 offen\ns_waitcnt vmcnt(0)')
        if self.o.get('spin'):
            lp = P.newlabel('Lspin'); P.label(lp)
            P(f's_memrealtime s[66:67]\ns_waitcnt lgkmcnt(0)\ns_sub_u32 s66, s66, s98\ns_cmp_lt_u32 s66, {self.o["spin"]}\ns_cbranch_scc1 {lp}')
        P.label('L_end')
        P('s_endpgm')

    def build(self):
        self.prologue()
        for L in range(self.nl):
            (self.layerA if L % 2 == 0 else self.layerB)(L)
        self.epilogue()
        self.emit_stubs()
        for L in range(0, self.nl, 2): self.attn_fallback(L)
        n = self.P.fix_hazards()
        errs = self.P.check_waits()
        head = open(f'cdna_kernels/{NAME}.s.ref').read().split('; @launch')[0]
        s = head + f'; @launch grid=(256,1,1) block=(512,1,1) lds={LDS_TOTAL}\n'
        s += f'.amdgcn_target "amdgcn-amd-amdhsa--gfx950"\n.text\n.globl {NAME}_kernel\n.p2align 8\n.type {NAME}_kernel,@function\n{NAME}_kernel:\n'
        s += self.P.text().replace('CODE_BYTES', '(L_end - %s_kernel - 1088)' % NAME)
        s += f'''.section .rodata,"a"
.p2align 6
.amdhsa_kernel {NAME}_kernel
  .amdhsa_next_free_vgpr 256
  .amdhsa_next_free_sgpr 102
  .amdhsa_accum_offset 256
  .amdhsa_group_segment_fixed_size 0
  .amdhsa_kernarg_size 80
  .amdhsa_user_sgpr_count 2
  .amdhsa_user_sgpr_kernarg_segment_ptr 1
  .amdhsa_system_sgpr_workgroup_id_x 1
.end_amdhsa_kernel
'''
        return s, n, errs


if __name__ == '__main__':
    import argparse, json
    ap = argparse.ArgumentParser()
    ap.add_argument('-o', default=f'cdna_kernels/{NAME}.s')
    ap.add_argument('--stamps', action='store_true')
    ap.add_argument('--safe', action='store_true')
    ap.add_argument('--cyc', action='store_true')
    ap.add_argument('--opt', nargs='*', default=[])
    ap.add_argument('--noalias', action='store_true')
    ap.add_argument('--nl', type=int, default=4)
    a = ap.parse_args()
    g = Gen(stamps=a.stamps, nlayers=a.nl, force_safe=a.safe, cyc=a.cyc, alias=not a.noalias, opt={k: int(v) for k, v in (x.split('=') for x in a.opt)})
    s, n, errs = g.build()
    open(a.o, 'w').write(s)
    if a.stamps: json.dump(g.stamp_names, open(a.o + '.stamps.json', 'w'))
    print('instructions', sum(1 for x in g.P.L if x.op), 'nops inserted', n, 'lds', LDS_TOTAL)
    for e in errs[:8]: print('WAITCHECK', e)
```

```python
import sys, struct
sys.path.insert(0, 'dev')
from asmlib import *

NAME = 'interleave_layers__sliding_block__linear_kernel_hedgehog__prompt'
def f2u(x): return struct.unpack('<I', struct.pack('<f', x))[0]
LOG2E = 1.4426950408889634

OFF_XFLAG = 0x1000
OFF_OFLAG = 0x9000
OFF_STAMP = 0x30000
OFF_ST = 0x100000
OFF_X = 0x200000
OFF_O = 0xA00000
OFF_KV = 0x1200000
KV_REC = 4480; KV_L = 1024*KV_REC
OFF_KP = 0x1B00000
KP_REC = 2688; KP_Q = 640; KP_Z = 2560; KP_L = 256*KP_REC
WS_USED = 0x2000000
OOB = 0x40000000
TAGC = 0x9E3779B0
SAFE_EXP = 30

LDS_WK = 0; LDS_WV = 32768; LDS_WQ = 65536; LDS_T = 65536; LDS_WO = 98304
LDS_OWN = 131072; OWN_ST = 6144
LDS_CSP = LDS_OWN + 4*OWN_ST
LDS_RSTD = LDS_CSP + 3072; LDS_KVT = LDS_RSTD + 512; LDS_ZT = LDS_KVT + 2048
LDS_FAST = LDS_ZT + 128; LDS_CNT = LDS_FAST + 16; LDS_ONES = LDS_FAST + 64; LDS_TOTAL = LDS_ONES + 1040
NT_LDS = {0: LDS_WQ, 1: LDS_WK, 2: LDS_WV, 'o': LDS_WO}
C_ST, C_XDONE, C_WGO, C_CS, C_Q, C_ATT, C_CSQ, C_WR = 0, 4, 5, 6, 7, 8, 9, 10

sWS, sX0, sWA, sWoA, sWB, sWoB, sPhi, sOut = 4, 8, 12, 16, 20, 24, 28, 32
sR, sC, sW, sMT, sHS, sRT, sQT, sTAG, sFAST, sBUD = 36, 37, 38, 39, 40, 41, 42, 43, 44, 45
sT0, sT1, sT2, sT3 = 46, 47, 48, 49
sLO = 50
sOWNF = 52; sCNT = 53; sSTEP = 54; sLOG2E = 55; sST = 56
sROT = 58; sDM = 59; sH0 = 60
sG0 = 62; sPERM = 63
sM = 64
sOW, sOF, sHB, sHAS, sP2, sC2, sOWN, sKVW, sXW, sSW, sXF, sRB = 72, 73, 74, 75, 76, 77, 78, 79, 80, 81, 82, 83
sLA = 86; sDG = 87; sDL = 88; sLB = 89; sLR = 90; sK0 = 91; sK1 = 92; sK2 = 93; sSEL0 = 94; sSEL1 = 95; sH1 = 96; sH2 = 97; sC1008 = 3
vT0, vLANE, vL16, vL4, vCNT, vTR1, vTR2, vSTAMP = 0, 1, 2, 3, 4, 5, 6, 7
XRES, WPHI = 8, 16
vDW, vDO, vCH, vCS, ONES = 8, 9, 10, 11, 12
vRSTD, vKA, vVA, vPD, vPA, vRA, vRB, vFD = 20, 21, 22, 23, 24, 25, 26, 27
vCK = vPD; XEXT = 28; ACC0 = 32; ACC1 = 48; RING = 64; WEXTQ = 84; WEXTK = 88; WEXTV = 92; VV = 88
STAT = 96; CDIAG = 96; PKV = 112; CFIRST = 112; XF = 128
aS, aO, aE, aQ, aK, aP, aH = 32, 48, 64, 72, 76, 80, 128
vSTV = 64
PHQ = 112
PARK = {1: 128, 2: 160, 0: 192, 'o': 224}
MFMA = 'v_mfma_f32_32x32x16_bf16'
MODS = ['', ' sc1', ' sc0', ' nt', ' sc0 sc1', ' sc1 nt', ' sc0 sc1 nt']
def cho(u): return (u >> 1)*8192 + (u & 1)*1024
SW4 = ((0, 2), (1, 3), (4, 6), (5, 7))


class Gen:
    def __init__(self, stamps=False, nlayers=4, force_safe=False, cyc=False, alias=True, opt=None):
        self.cyc = cyc; self.alias = alias
        self.o = dict(halo_at=35, prio=2, trunc=1, wgo=2, wgon=2, xd=8, od=10, x0d=3, psleep=1, kp_at=0, spec=0, pw=16, tlb=0, touch=1, b0=0, mcs=1, pre=2, pst=0, trk=3, ool=1, at2=1, qrate=4, omul=1, specx=0, lsleep=2, ev=7, st0=3, wo_at=0, pf=1, pfb=0, psp=0, xst=1, bq=0, early=0, p1=0, o3=1, outm=1, kp_step=2, vpre=1, hm=1, km=1, sm=1, pw1=2, pws=2, il=0, qgo=5, csk=22, wearly=0, apr=1, fpr=0, epr=0, mpr=0, sg=0, od1=10, pp=0, em=0, hx=1, ho=1, hp=1, hs=2, ex=0, ea=0, eb=0, clr=0, vlag=0, vlaga=0, prex=1, preo=1, ev2=99)
        self.o.update(opt or {})
        self.P = Prog(); self.stamps = stamps; self.nl = nlayers; self.force_safe = force_safe
        self.stamp_names = {}
        self.vm = Tracker(63); self.lg = Tracker(15); self.stubs = []; self.ool = []

    def stamp(self, idx, name=''):
        if not self.stamps: return
        self.stamp_names[idx] = name
        self.P(f'{"s_memtime" if self.cyc else "s_memrealtime"} {sr(sST,2)}\ns_waitcnt lgkmcnt(0)\nv_writelane_b32 {vr(vSTAMP)}, {sr(sST)}, {idx}')

    def al(self, L): return 0 if self.alias else L

    def mfma(self, d, a, b, c):
        cs = '0' if c is None else vr(c, 16)
        self.P(f'{MFMA} {vr(d,16)}, {vr(a,4)}, {vr(b,4)}, {cs}')

    def srd(self, s, ptr, nbytes):
        self.P(f's_mov_b32 {sr(s)}, {sr(ptr)}\ns_and_b32 {sr(s+1)}, {sr(ptr+1)}, 0xffff\ns_mov_b32 {sr(s+2)}, {nbytes}\ns_mov_b32 {sr(s+3)}, 0x20000')

    def poll(self, soff, masked=False, areg=vPA, val=sTAG):
        P = self.P; lp = P.newlabel('Lpoll'); dn = P.newlabel('Lpolld')
        P.label(lp)
        P(f'buffer_load_dword {vr(vPD)}, {vr(areg)}, {sr(sWS,4)}, {sr(soff)} offen sc1\ns_waitcnt vmcnt(0)')
        if masked:
            P(f'v_and_b32 {vr(vT0)}, -16, {vr(vPD)}\nv_cmp_ne_u32 vcc, {sr(sTAG)}, {vr(vT0)}')
        else:
            P(f'v_cmp_ne_u32 vcc, {sr(val)}, {vr(vPD)}')
        P(f's_cbranch_vccz {dn}')
        if self.o['psleep']: P(f's_sleep {self.o["psleep"]}')
        P(f's_sub_u32 {sr(sBUD)}, {sr(sBUD)}, 1\ns_cbranch_scc0 {lp}\ns_mov_b32 {sr(sBUD)}, 0')
        P.label(dn)

    def flag(self, soff, sval, sc1, wait=None, add=0):
        P = self.P
        P((f'v_add_u32 {vr(vPD)}, {sr(sval)}, {add}' if add else f'v_mov_b32 {vr(vPD)}, {sr(sval)}') + '\ns_mov_b64 exec, 1')
        if wait: P(wait)
        P(f'buffer_store_dword {vr(vPD)}, off, {sr(sWS,4)}, {sr(soff)}' + (' sc1' if sc1 else ''))
        P('s_mov_b64 exec, -1')

    def prio_if(self, cmp):
        P = self.P; l = P.newlabel('Lpr')
        b = self.o['prio'] - 1
        P(f's_setprio {b}\n{cmp}\ns_cbranch_scc0 {l}\ns_setprio {b+1}'); P.label(l)

    def lds_signal(self, idx, wait=True):
        w = 's_waitcnt lgkmcnt(0)\n' if wait else ''
        self.P(f'v_mov_b32 {vr(vPD)}, 1\ns_mov_b64 exec, 1\n{w}ds_add_u32 {vr(vCNT)}, {vr(vPD)} offset:{4*idx}\ns_mov_b64 exec, -1')

    def lds_wait(self, idx, val, sleep=0):
        P = self.P; lp = P.newlabel('Llw')
        P.label(lp)
        if sleep: P(f's_sleep {sleep}')
        P(f'ds_read_b32 {vr(vPD)}, {vr(vCNT)} offset:{4*idx}\ns_waitcnt lgkmcnt(0)\nv_cmp_gt_u32 vcc, {val}, {vr(vPD)}\ns_cbranch_vccnz {lp}')

    def lds_peek(self, idx):
        return [('ds', ('cnt', idx), f'ds_read_b32 {vr(vPD)}, {vr(vCNT)} offset:{4*idx}')]

    def lds_check(self, idx, val):
        P = self.P; ok = P.newlabel('Llc')
        P(waitstr(lg=self.lg.need(('cnt', idx))))
        P(f'v_cmp_gt_u32 vcc, {val}, {vr(vPD)}\ns_cbranch_vccz {ok}')
        self.lds_wait(idx, val)
        P.label(ok)

    def two_way(self, emit):
        P = self.P
        if self.force_safe:
            emit(True); return
        ls = P.newlabel('Lsafe'); le = P.newlabel('Lpub')
        P(f's_cmp_eq_u32 {sr(sFAST)}, 0\ns_cbranch_scc1 {ls}')
        emit(False)
        if self.o['ool']:
            self.ool.append((ls, emit, le))
        else:
            P(f's_branch {le}'); P.label(ls)
            emit(True)
        P.label(le)

    def item(self, it):
        P = self.P
        if isinstance(it, str): P(it)
        elif it[0] == 'wvm': P(waitstr(vm=self.vm.need(it[1])))
        elif it[0] == 'wlg': P(waitstr(lg=self.lg.need(it[1])))
        elif it[0] == 'ds': P(it[2]); self.lg.issue(it[1])
        elif it[0] == 'fn': it[1]()

    def checksum(self, dst, src, n):
        ops = [f'v_add3_u32 {vr(dst)}, {sr(sTAG)}, {vr(src)}, {vr(src+1)}']
        for i in range(2, n, 2): ops.append(f'v_add3_u32 {vr(dst)}, {vr(dst)}, {vr(src+i)}, {vr(src+i+1)}')
        return ops

    def retry_tail(self, lp, dn):
        if self.stamps: self.P('s_add_u32 s99, s99, 1')
        self.P(f's_sub_u32 {sr(sBUD)}, {sr(sBUD)}, 1\ns_cbranch_scc0 {lp}\ns_mov_b32 {sr(sBUD)}, 0')
        self.P.label(dn)
        if self.stamps: self.P('s_lshl_b32 s99, s99, 6')

    def prologue(self):
        P = self.P; o = self.o
        vH, vT = 64, 65
        if self.stamps: P('s_memrealtime s[98:99]\ns_memtime s[100:101]')
        elif o.get('spin'): P('s_memrealtime s[98:99]')
        P(f"""s_cmp_ge_u32 s2, 256
s_cbranch_scc1 L_end
s_load_dwordx16 s[64:79], s[0:1], 0
s_load_dwordx4 s[80:83], s[0:1], 64
s_getpc_b64 s[84:85]
v_lshrrev_b32 v1, 6, v0
s_lshr_b32 {sr(sT1)}, s2, 3
v_readfirstlane_b32 {sr(sW)}, v1
v_and_b32 {vr(vLANE)}, 63, v0
v_lshlrev_b32 {vr(vL16)}, 4, {vr(vLANE)}""")
        lc = P.newlabel('Lx')
        P(f"""s_cmp_lt_u32 {sr(sW)}, 6
s_cbranch_scc1 {lc}
s_and_b32 {sr(sT0)}, {sr(sW)}, 1
s_lshl_b32 {sr(sT0)}, {sr(sT0)}, 5
s_add_u32 {sr(sT0)}, {sr(sT0)}, {sr(sT1)}
s_lshl_b32 {sr(sT0)}, {sr(sT0)}, 10
s_cmp_ge_u32 {sr(sT0)}, CODE_BYTES
s_cbranch_scc1 {lc}
v_add_u32 v255, {sr(sT0)}, {vr(vL16)}
global_load_dword v255, v255, s[84:85]""")
        P.label(lc)
        P(f"""s_and_b32 {sr(sT0)}, s2, 7
s_add_u32 {sr(sC)}, {sr(sT1)}, {o.get('cadd', 0)}
s_and_b32 {sr(sC)}, {sr(sC)}, 15
s_lshr_b32 {sr(sT1)}, {sr(sT1)}, 4
s_lshl_b32 {sr(sR)}, {sr(sT0)}, 1
s_add_u32 {sr(sR)}, {sr(sR)}, {sr(sT1)}
s_and_b32 {sr(sMT)}, {sr(sW)}, 3
s_lshr_b32 {sr(sHS)}, {sr(sW)}, 2
s_lshl_b32 {sr(sRT)}, {sr(sR)}, 2
s_add_u32 {sr(sRT)}, {sr(sRT)}, {sr(sMT)}
s_lshr_b32 {sr(sROT)}, {sr(sC)}, 1
s_add_u32 {sr(sROT)}, {sr(sROT)}, {sr(sT0)}
s_lshl_b32 {sr(sT1)}, {sr(sT1)}, 1
s_add_u32 {sr(sROT)}, {sr(sROT)}, {sr(sT1)}
s_lshl_b32 {sr(sT1)}, {sr(sC)}, 2
s_add_u32 {sr(sROT)}, {sr(sROT)}, {sr(sT1)}
s_and_b32 {sr(sROT)}, {sr(sROT)}, 7
v_mov_b32 v8, 0
v_mov_b32 v9, 0
v_mov_b32 v10, 0
v_mov_b32 v11, 0
v_mov_b32 v90, 0
v_mov_b32 {vr(vPA)}, 0
v_mov_b32 v91, 0
v_mov_b32 v93, 0
v_mov_b32 {vr(vCNT)}, {LDS_CNT}
ds_write_b128 {vr(vCNT)}, v[8:11]
ds_write_b128 {vr(vCNT)}, v[8:11] offset:16
ds_write_b128 {vr(vCNT)}, v[8:11] offset:32
v_lshrrev_b32 v28, 3, {vr(vLANE)}
v_lshlrev_b32 v28, 10, v28
v_lshrrev_b32 v29, 4, {vr(vLANE)}
v_xor_b32 v29, v29, {vr(vLANE)}
v_and_b32 v29, 7, v29
v_lshl_add_u32 v28, v29, 4, v28
v_xor_b32 v29, 64, v28
v_add_u32 v30, {2*7168}, v28
v_add_u32 v31, {3*7168}, v29
v_add_u32 v29, 7168, v29
s_lshl_b32 {sr(sLB)}, {sr(sRT)}, 15
s_lshl_b32 {sr(sLR)}, {sr(sROT)}, 7
s_mul_i32 {sr(sLA)}, {sr(sMT)}, {12288 if o['il'] else 16384}
s_add_u32 {sr(sLA)}, {sr(sLA)}, {LDS_WO if o['il'] else LDS_WQ}
{'s_memrealtime s[92:93]' if self.stamps else ''}
s_waitcnt lgkmcnt(0)
{'s_memrealtime s[94:95]' if self.stamps else ''}
s_load_dword {sr(sTAG)}, s[82:83], 0""")
        self.srd(sX0, 64, 2097152)
        if o['pf'] >= 3:
            lq = P.newlabel('Lx')
            P(f"""s_cmp_lg_u32 {sr(sW)}, {o['pf'] + 1}
s_cbranch_scc1 {lq}
s_lshr_b32 {sr(sT0)}, s2, 3
s_sub_u32 {sr(sT1)}, {sr(sT0)}, 24
s_cselect_b32 {sr(sT0)}, {sr(sT0)}, {sr(sT1)}
s_cselect_b64 {sr(sT2,2)}, s[66:67], s[68:69]
s_lshl_b32 {sr(sT0)}, {sr(sT0)}, 16
v_lshl_add_u32 v26, {vr(vLANE)}, 10, {sr(sT0)}
global_load_dword v25, v26, {sr(sT2,2)} offset:384""")
            P.label(lq)
        def dma_addr():
            P(f"""v_lshrrev_b32 v28, 2, {vr(vLANE)}
v_and_b32 v29, 3, {vr(vLANE)}
v_lshlrev_b32 v29, 4, v29
s_lshl_b32 {sr(sT0)}, {sr(sC)}, 6
v_add_u32 v29, {sr(sT0)}, v29
v_mul_u32_u24 {vr(vDW)}, 3072, v28
v_add_u32 {vr(vDW)}, {vr(vDW)}, v29
v_lshl_add_u32 {vr(vDO)}, v28, 10, v29
s_lshl_b32 {sr(sLA)}, {sr(sMT)}, 11
s_lshr_b32 {sr(sT0)}, {sr(sMT)}, 1
s_add_u32 {sr(sT0)}, {sr(sT0)}, {sr(sROT)}
s_and_b32 {sr(sT0)}, {sr(sT0)}, 7
s_lshl_b32 {sr(sG0)}, {sr(sT0)}, 16
s_and_b32 {sr(sT0)}, {sr(sMT)}, 1
s_lshl_b32 {sr(sT0)}, {sr(sT0)}, 15
s_add_u32 {sr(sG0)}, {sr(sG0)}, {sr(sT0)}""")
        avm = Tracker(63)
        P(f's_cmp_lg_u32 {sr(sHS)}, 0\ns_cbranch_scc1 L_pro1')
        for g in range(2): self.x0_load(g)
        if o['wearly']: P('s_branch L_pro2')
        P.label('L_pro1')
        if o['wearly']:
            self.srd(sWA, 66, 1572864)
            dma_addr()
            for st in range(o['wearly']): self.dma_w(0, (1, 2), (st,)); avm.issue(st, 4)
        P.label('L_pro2')
        if self.stamps: P('s_memrealtime s[96:97]')
        P('s_barrier')
        self.srd(sWS, 82, WS_USED); self.srd(sWA, 66, 1572864); self.srd(sWoA, 68, 524288)
        self.srd(sWB, 72, 1572864); self.srd(sPhi, 74, 16384); self.srd(sWoB, 76, 524288); self.srd(sOut, 78, 2097152)
        P(f"""s_mul_i32 {sr(sT0)}, {sr(sHS)}, 3
s_xor_b32 {sr(sQT)}, {sr(sMT)}, {sr(sT0)}
s_mov_b32 {sr(sBUD)}, 0x100000
s_mov_b32 {sr(sLO)}, 0xffff
s_mov_b32 {sr(sLO+1)}, 0xffff
s_mov_b32 {sr(sH0)}, -1
s_mov_b32 {sr(sH0+1)}, 0
s_mov_b32 {sr(sFAST)}, 0
s_mov_b32 {sr(sDM)}, 0
s_mov_b32 {sr(sLOG2E)}, {f2u(LOG2E):#x}
s_mov_b32 {sr(sPERM)}, 0x07060302
s_mov_b32 {sr(sC1008)}, 1008
s_getreg_b32 {sr(sOWNF)}, hwreg(HW_REG_XCC_ID, 0, 4)
v_lshrrev_b32 {vr(vH)}, 5, {vr(vLANE)}
v_and_b32 {vr(vT)}, 31, {vr(vLANE)}
v_lshlrev_b32 {vr(vL4)}, 2, {vr(vLANE)}
v_mov_b32 {vr(vSTAMP)}, 0
v_bfe_u32 {vr(vTR1)}, {vr(vLANE)}, 2, 2
v_lshl_add_u32 {vr(vTR1)}, {vr(vH)}, 2, {vr(vTR1)}
v_lshlrev_b32 {vr(vTR2)}, 6, {vr(vTR1)}
v_bfe_u32 {vr(vTR1)}, {vr(vLANE)}, 4, 1
v_lshl_add_u32 {vr(vTR2)}, {vr(vTR1)}, 5, {vr(vTR2)}
v_and_b32 {vr(vTR1)}, 3, {vr(vLANE)}
v_lshl_add_u32 {vr(vTR2)}, {vr(vTR1)}, 3, {vr(vTR2)}
v_lshl_add_u32 {vr(vTR1)}, {vr(vH)}, 8, {vr(vTR2)}
v_add_u32 {vr(vTR1)}, {LDS_WQ}, {vr(vTR1)}
v_add_u32 {vr(vTR2)}, {LDS_WO}, {vr(vTR2)}
s_lshl_b32 {sr(sT0)}, {sr(sMT)}, 7
s_add_u32 {sr(sT0)}, {sr(sT0)}, {LDS_RSTD}
v_lshl_add_u32 {vr(vRA)}, {vr(vT)}, 2, {sr(sT0)}
v_lshl_add_u32 {vr(vRB)}, {vr(vH)}, 4, {sr(sT0)}
v_lshlrev_b32 {vr(vFD)}, 2, {vr(vH)}
v_sub_u32 {vr(vFD)}, {vr(vT)}, {vr(vFD)}
v_cvt_f32_i32 {vr(vFD)}, {vr(vFD)}
v_mul_f32 {vr(vFD)}, {f2u(2.0**100):#x}, {vr(vFD)}
s_waitcnt lgkmcnt(0)
s_and_b32 {sr(sTAG)}, {sr(sTAG)}, -16
s_add_u32 {sr(sTAG)}, {sr(sTAG)}, {TAGC:#x}
s_or_b32 {sr(sOWNF)}, {sr(sOWNF)}, {sr(sTAG)}
s_lshl_b32 {sr(sT0)}, {sr(sR)}, 2
s_add_u32 {sr(sT0)}, {sr(sT0)}, {sr(sQT)}
s_lshl_b32 {sr(sT0)}, {sr(sT0)}, 5
s_lshl_b32 {sr(sT1)}, {sr(sC)}, 1
s_add_u32 {sr(sT0)}, {sr(sT0)}, {sr(sT1)}
s_add_u32 {sr(sT0)}, {sr(sT0)}, {sr(sHS)}
s_lshl_b32 {sr(sOW)}, {sr(sT0)}, 10
s_lshl_b32 {sr(sOF)}, {sr(sT0)}, 2
s_lshr_b32 {sr(sT0)}, {sr(sMT)}, 1
s_add_u32 {sr(sT0)}, {sr(sT0)}, {sr(sR)}
s_sub_u32 {sr(sT0)}, {sr(sT0)}, 2
s_cselect_b32 {sr(sHAS)}, 0, 1
s_lshl_b32 {sr(sT0)}, {sr(sT0)}, 1
s_and_b32 {sr(sT1)}, {sr(sMT)}, 1
s_add_u32 {sr(sT0)}, {sr(sT0)}, {sr(sT1)}
s_lshl_b32 {sr(sT0)}, {sr(sT0)}, 5
s_add_u32 {sr(sT0)}, {sr(sT0)}, {sr(sC)}
s_mul_i32 {sr(sHB)}, {sr(sT0)}, {KV_REC}
s_cmp_lt_u32 {sr(sQT)}, 2
s_cselect_b32 {sr(sHAS)}, {sr(sHAS)}, 0
s_cmp_eq_u32 {sr(sR)}, 1
s_cselect_b32 {sr(sT0)}, 4, {sr(sQT)}
s_sub_u32 {sr(sC2)}, 8, {sr(sT0)}
s_lshl_b32 {sr(sP2)}, {sr(sT0)}, 12
s_add_u32 {sr(sP2)}, {sr(sP2)}, {LDS_T}
s_mul_i32 {sr(sOWN)}, {sr(sQT)}, {OWN_ST}
s_add_u32 {sr(sOWN)}, {sr(sOWN)}, {LDS_OWN}
s_lshl_b32 {sr(sT0)}, {sr(sRT)}, 4
s_add_u32 {sr(sT0)}, {sr(sT0)}, {sr(sC)}
s_mul_i32 {sr(sKVW)}, {sr(sT0)}, {KV_REC}
s_lshl_b32 {sr(sXW)}, {sr(sT0)}, 11
s_lshl_b32 {sr(sSW)}, {sr(sT0)}, 8
s_lshl_b32 {sr(sXF)}, {sr(sRT)}, 7
s_lshl_b32 {sr(sRB)}, {sr(sRT)}, 15""")
        self.stamp(0, 'start')
        if self.stamps:
            self.stamp_names.update({32: 'pre karg', 43: 'karg', 51: 'x issued'})
            P(f'v_writelane_b32 {vr(vSTAMP)}, s92, 32\nv_writelane_b32 {vr(vSTAMP)}, s94, 43\nv_writelane_b32 {vr(vSTAMP)}, s96, 51')
            self.stamp_names[60] = 'entry'; P(f'v_writelane_b32 {vr(vSTAMP)}, s98, 60\ns_mov_b32 s99, 0\ns_mov_b32 s101, 0')
        P(f's_cmp_eq_u32 {sr(sHS)}, 0\ns_cbranch_scc1 L_main_0')
        lh = P.newlabel('Lx'); lt = P.newlabel('Lx')
        P(f"""s_lshl_b32 {sr(sT2)}, {sr(sR)}, 7
s_lshl_b32 {sr(sT3)}, {sr(sC)}, 2
s_add_u32 {sr(sT2)}, {sr(sT2)}, {sr(sT3)}
s_add_u32 {sr(sT2)}, {sr(sT2)}, {OFF_XFLAG}
s_cmp_lg_u32 {sr(sMT)}, 0
s_cbranch_scc1 {lh}""")
        self.flag(sT2, sOWNF, True)
        P.label(lh)
        if o['pf'] in (1, 2): self.coop_prefetch(0, o['pf'])
        if not o['wearly']: dma_addr()
        P(f"""v_add_u32 {vr(vCH)}, {sr(sLA)}, {vr(vL16)}
v_subrev_u32 {vr(vCS)}, {LDS_WO}, {vr(vTR2)}
v_add_u32 {vr(vCS)}, {sr(sLA)}, {vr(vCS)}
v_lshl_add_u32 v31, {vr(vH)}, 8, {vr(vCS)}""")
        for i in range(4): P(f'v_mov_b32 {vr(ONES+i)}, 0x3f803f80')
        P(f'v_lshlrev_b32 v30, 10, {vr(vH)}\nv_add_u32 v30, {LDS_ONES}, v30\nds_write_b128 v30, {vr(ONES,4)}')
        self.csp_waddr(0)
        P(f'v_lshl_add_u32 v30, {vr(vH)}, 9, v28')
        for op in self.mask_ops(0) + self.mask_ops(1): P(op)
        if o['tlb']:
            lw = P.newlabel('Lx')
            P(f"""s_cmp_lg_u32 {sr(sMT)}, 1
s_cbranch_scc1 {lw}
v_and_b32 v68, 15, {vr(vLANE)}
v_bfe_u32 v69, {vr(vLANE)}, 4, 1
s_lshl_b32 {sr(sT0)}, {sr(sR)}, 2
s_sub_u32 {sr(sT0)}, {sr(sT0)}, 8
v_min_u32 v70, 11, v68
v_add_u32 v70, {sr(sT0)}, v70
v_max_i32 v70, 0, v70
v_lshl_add_u32 v70, v70, 4, {sr(sC)}
v_lshl_add_u32 v70, v69, 10, v70
v_mul_u32_u24 v70, {KV_REC}, v70
v_add_u32 v70, {OFF_KV + KV_REC - 128}, v70
s_lshl_b32 {sr(sT0)}, {sr(sC)}, 4
v_add_u32 v68, {sr(sT0)}, v68
v_lshl_add_u32 v68, v69, 8, v68
v_mul_u32_u24 v68, {KP_REC}, v68
v_add_u32 v68, {OFF_KP + KP_REC - 128}, v68
v_cndmask_b32 v68, v68, v70, {sr(sH0,2)}
buffer_load_dword v26, v68, {sr(sWS,4)}, 0 offen""")
            P.label(lw)
        if o['wgo']: self.lds_wait(C_WGO, o['wgon'])
        self.stamp(2, 'x g0 / W go')
        PRE = o['pre']; MCS = o['mcs']; CA = {1: 32, 2: 64, 0: 32}
        for st in range(o['wearly'], PRE): self.dma_w(0, (1, 2), (st,)); avm.issue(st, 4)
        qs = [[0, 1], [2, 3]] if PRE == 2 else ([[0, 1], [2, 3], []] if PRE == 3 else [[], [0, 1], [2, 3], []])
        first_q = True
        if not MCS:
            for i in range(4): P(f'v_mov_b32 {vr(64+i)}, 0')
        if o['il']: qs = [[]]*4
        for st in range(4):
            if st + PRE < 4: self.dma_w(0, (1, 2), (st + PRE,)); avm.issue(st + PRE, 4)
            else:
                q = qs.pop(0)
                if q:
                    if first_q:
                        self.lds_wait(C_XDONE, 4); first_q = False
                        if o['apr']: P('s_setprio 3')
                    self.dma_w(0, (0,), q); avm.issue('q', 4)
            P(waitstr(vm=avm.need(st)))
            self.stamp((15, 23, 29, 1)[st], ('x g3 / W st0', 'x g5 / W st1', 'S0 / W st2', 'x0 / W st3')[st])
            self.lds_signal(C_ST + st)
            ch = [(nt, 2*st + e) for nt in (1, 2) for e in range(2)]
            for nt, u in ch:
                r_ = PARK[nt] + 4*u; of = NT_LDS[nt] + cho(u)
                P(f'ds_read_b64_tr_b16 {vr(r_,2)}, v31 offset:{of}\nds_read_b64_tr_b16 {vr(r_+2,2)}, v31 offset:{of+256}')
            for k, (nt, u) in enumerate(ch):
                P(f's_waitcnt lgkmcnt({6-2*k})')
                if MCS: self.mfma(CA[nt], ONES, PARK[nt] + 4*u, None if u == 0 else CA[nt])
                else: self.valu_sum(PARK[nt] + 4*u, 64 + 2*(nt - 1))
        if MCS: P(f'ds_write_b32 v28, {vr(CA[1])} offset:512\nds_write_b32 v28, {vr(CA[2])} offset:1024')
        else: P('v_add_f32 v64, v64, v65\nv_add_f32 v66, v66, v67\nv_permlane32_swap_b32 v64, v66\nv_add_f32 v64, v64, v66\nds_write_b32 v30, v64 offset:512')
        self.lds_signal(C_CS, wait=False)
        if o['apr'] == 1: P('s_setprio 0')
        self.stamp(14, 'S3 / W done')
        if o['il']:
            self.lds_wait(C_CSQ, 4, 1); self.dma_w(0, (0,))
            self.lds_wait(C_XDONE, 4, 1)
        if o['clr']: self.hello_load()
        if o['wo_at'] == 0: self.dma_w(0, ('o',))
        P(f'v_add_u32 v31, {LDS_WQ}, v31\ns_waitcnt vmcnt({8 if o["wo_at"] == 0 else 0})')
        self.lds_signal(C_Q)
        self.stamp(4, 'Q done')
        if o['wo_at'] == 1: self.dma_w(0, ('o',))
        for u0 in (0, 4):
            for u in range(u0, u0 + 4):
                r_ = PARK[0] + 4*u
                P(f'ds_read_b64_tr_b16 {vr(r_,2)}, v31 offset:{cho(u)}\nds_read_b64_tr_b16 {vr(r_+2,2)}, v31 offset:{cho(u)+256}')
            for k, u in enumerate(range(u0, u0 + 4)):
                P(f's_waitcnt lgkmcnt({6-2*k})')
                self.mfma(CA[0], ONES, PARK[0] + 4*u, None if u == 0 else CA[0])
        P(f'ds_write_b32 v28, {vr(CA[0])}')
        self.lds_signal(C_CSQ, wait=False)
        P(f"""s_cmp_lg_u32 {sr(sMT)}, 2
s_cbranch_scc1 {lt}
v_lshlrev_b32 v6, 7, {vr(vLANE)}
s_mul_i32 {sr(sT0)}, s2, {48*128}
buffer_load_dword v26, v6, {sr(sWB,4)}, {sr(sT0)} offen
v_and_b32 v6, 0x780, v6
s_lshl_b32 {sr(sT0)}, s2, 11
buffer_load_dword v26, v6, {sr(sWoB,4)}, {sr(sT0)} offen""")
        P.label(lt)
        if o['pfb'] == 1: self.coop_prefetch(1, 1)
        P('s_branch L_aux_0')

    def coop_prefetch(self, typ, mode):
        P = self.P; l1 = P.newlabel('Lx'); l2 = P.newlabel('Lx')
        if mode == 1: P(f's_cmp_lg_u32 {sr(sMT)}, 1\ns_cbranch_scc1 {l2}')
        offs = (128,) if mode == 1 else (128, 0)
        P(f"""v_lshlrev_b32 v5, 10, {vr(vLANE)}
s_lshr_b32 {sr(sT0)}, s2, 3
s_lshl_b32 {sr(sT0)}, {sr(sT0)}, 16
s_lshl_b32 {sr(sT1)}, {sr(sMT)}, 8
s_add_u32 {sr(sT0)}, {sr(sT0)}, {sr(sT1)}
s_cmp_ge_u32 s2, 192
s_cbranch_scc1 {l1}""")
        for of in offs: P(f'buffer_load_dword v26, v5, {sr((sWA, sWB)[typ],4)}, {sr(sT0)} offen offset:{of}')
        P(f's_branch {l2}'); P.label(l1)
        P(f's_sub_u32 {sr(sT0)}, {sr(sT0)}, {24 << 16}')
        for of in offs: P(f'buffer_load_dword v26, v5, {sr((sWoA, sWoB)[typ],4)}, {sr(sT0)} offen offset:{of}')
        P.label(l2)

    def valu_sum(self, frag, acc):
        for i in range(4):
            self.P(f'v_lshlrev_b32 v68, 16, {vr(frag+i)}\nv_and_b32 v69, 0xffff0000, {vr(frag+i)}\nv_add_f32 {vr(acc)}, {vr(acc)}, v68\nv_add_f32 {vr(acc+1)}, {vr(acc+1)}, v69')

    def x0_load(self, g):
        P = self.P
        P(f's_add_u32 m0, {sr(sLA)}, {(g % (3 if self.o["il"] else 4))*4096}\ns_add_u32 {sr(sT3)}, {sr(sLB)}, {sr(sLR)}')
        for j in range(4): P(f'buffer_load_dwordx4 {vr(28+j)}, {sr(sX0,4)}, {sr(sT3)} offen offset:{j*1024} lds')
        P(f's_add_u32 {sr(sLR)}, {sr(sLR)}, 128\ns_and_b32 {sr(sLR)}, {sr(sLR)}, 0x3ff')
        self.vm.issue(('x', g), 4)

    def code_prefetch(self, label):
        P = self.P; lc = P.newlabel('Lx')
        P(f"""s_cmp_lg_u32 {sr(sMT)}, 3
s_cbranch_scc1 {lc}
s_lshl_b32 {sr(sT0)}, {sr(sC)}, 10
s_add_u32 {sr(sT0)}, {sr(sT0)}, ({label} - {NAME}_kernel)
s_cmp_ge_u32 {sr(sT0)}, CODE_BYTES
s_cbranch_scc1 {lc}
v_add_u32 v26, {sr(sT0)}, {vr(vL16)}
global_load_dword v26, v26, s[84:85]""")
        P.label(lc)

    def wphi_load(self, B=96):
        P = self.P; a, t = vr(B + 8), vr(B + 9)
        P(f"""s_lshl_b32 {sr(sT0)}, {sr(sC)}, 1
s_add_u32 {sr(sT0)}, {sr(sT0)}, {sr(sHS)}
s_lshl_b32 {sr(sT0)}, {sr(sT0)}, 9
v_bfe_u32 {a}, {vr(vLANE)}, 3, 2
v_and_b32 {t}, 3, {vr(vLANE)}
v_lshl_add_u32 {a}, {a}, 2, {t}
v_lshlrev_b32 {a}, 1, {a}
v_lshrrev_b32 {t}, 5, {vr(vLANE)}
v_lshl_add_u32 {a}, {t}, 7, {a}""")
        for j in range(8):
            d = (j if j < 4 else 8 + j - 4)
            P(f'buffer_load_ushort {vr(B+j)}, {a}, {sr(sPhi,4)}, {sr(sT0)} offen offset:{d*32}')

    def wphi_pack(self, B=96):
        ops = [f'v_lshl_or_b32 {vr(WPHI+p)}, {vr(B+2*p+1)}, 16, {vr(B+2*p)}' for p in range(4)]
        ops += [f'v_bfe_i32 {vr(B)}, {vr(vLANE)}, 2, 1', f'v_and_b32 {vr(B)}, 0x80008000, {vr(B)}']
        return ops + [f'v_xor_b32 {vr(WPHI+p)}, {vr(B)}, {vr(WPHI+p)}' for p in range(4)]

    def dma_w(self, typ, nts, stages=range(4)):
        P = self.P; wo = nts == ('o',)
        srd = (sWoA, sWoB)[typ] if wo else (sWA, sWB)[typ]
        for st in stages:
            P(f's_add_u32 {sr(sT0)}, {sr(sG0)}, {st*0x20000}\ns_and_b32 {sr(sT0)}, {sr(sT0)}, 0x7ffff')
            if not wo: P(f's_mul_i32 {sr(sT0)}, {sr(sT0)}, 3')
            for e in range(2):
                for nt in nts:
                    P(f's_add_u32 m0, {sr(sLA)}, {NT_LDS[nt] + cho(2*st + e)}')
                    P(f's_add_u32 {sr(sT1)}, {sr(sT0)}, {e*16384 if wo else e*49152 + nt*1024}')
                    P(f'buffer_load_dwordx4 {vr(vDO if wo else vDW)}, {sr(srd,4)}, {sr(sT1)} offen lds')

    def csp_waddr(self, typ):
        self.P(f"""s_lshl_b32 {sr(sT0)}, {sr(sMT)}, 2
s_add_u32 {sr(sT0)}, {sr(sT0)}, {LDS_CSP + typ*1536}
v_and_b32 v28, 31, {vr(vLANE)}
v_lshl_add_u32 v28, v28, 4, {sr(sT0)}""")

    def chunk_addr(self, region):
        if region < 65536: return vCH, region
        self.P(f'v_add_u32 {vr(vT0)}, {region}, {vr(vCH)}'); return vT0, 0

    def lds_to_regs(self, region, dst, tr=False):
        if tr:
            self.P(f'v_add_u32 v29, {region}, {vr(vCS)}')
            for u in range(8): self.P(f'ds_read_b64_tr_b16 {vr(dst+4*u,2)}, v29 offset:{cho(u)}\nds_read_b64_tr_b16 {vr(dst+4*u+2,2)}, v29 offset:{cho(u)+512}')
            return
        a, o = self.chunk_addr(region)
        for u in range(8): self.P(f'ds_read_b128 {vr(dst+4*u,4)}, {vr(a)} offset:{o+cho(u)}')

    def regs_to_lds(self, region, src):
        a, o = self.chunk_addr(region)
        for u in range(8): self.P(f'ds_write_b128 {vr(a)}, {vr(src+4*u,4)} offset:{o+cho(u)}')

    def relayout(self, typ, nts, tmp=64, ntmp=8):
        P = self.P
        if nts != ('o',): self.csp_waddr(typ)
        for k, nt in enumerate(nts):
            region = NT_LDS[nt]
            P(f'v_add_u32 v29, {region}, {vr(vCS)}')
            acc = ACC0 if k % 2 == 0 else ACC1
            lg = Tracker(15)
            reg = lambda u: tmp + 4*(u % ntmp)
            for u0 in range(0, 8, 4):
                for u in range(u0, u0 + 4):
                    P(f'ds_read_b64_tr_b16 {vr(reg(u),2)}, v29 offset:{cho(u)}\nds_read_b64_tr_b16 {vr(reg(u)+2,2)}, v29 offset:{cho(u)+512}'); lg.issue(u, 2)
                for u in range(u0, u0 + 4):
                    P(waitstr(lg=lg.need(u)))
                    if nt != 'o': self.mfma(acc, ONES, reg(u), None if u == 0 else acc)
        for k, nt in enumerate(nts):
            if nt != 'o': P(f'ds_write_b32 v28, {vr(ACC0 if k % 2 == 0 else ACC1)} offset:{nt*512}')
        P('s_waitcnt lgkmcnt(0)')

    def swap_region(self, nt, save, tr=False):
        P = self.P
        if save:
            self.lds_to_regs(NT_LDS[nt], 32, tr); P('s_waitcnt lgkmcnt(0)')
        self.regs_to_lds(NT_LDS[nt], PARK[nt]); P('s_waitcnt lgkmcnt(0)')
        if save:
            for i in range(32): P(f'v_mov_b32 {vr(PARK[nt]+i)}, {vr(32+i)}')

    def unpack_res(self):
        for p in range(8):
            self.P(f'v_lshlrev_b32 {vr(ACC0+2*p)}, 16, {vr(XRES+p)}\nv_and_b32 {vr(ACC0+2*p+1)}, 0xffff0000, {vr(XRES+p)}')

    def rowmajor_addr(self, dst, tmp, sdst):
        self.P(f"""v_and_b32 {vr(dst)}, 31, {vr(vLANE)}
v_lshlrev_b32 {vr(dst)}, 10, {vr(dst)}
v_lshrrev_b32 {vr(tmp)}, 5, {vr(vLANE)}
v_lshl_add_u32 {vr(dst)}, {vr(tmp)}, 4, {vr(dst)}
s_lshl_b32 {sr(sdst)}, {sr(sC)}, 6
s_add_u32 {sr(sdst)}, {sr(sdst)}, {sr(sRB)}""")

    def publish_x_addr(self, L):
        if L == self.nl: return self.rowmajor_addr(vKA, vVA, sK0)
        self.P(f's_add_u32 {sr(sK1)}, {sr(sSW)}, {OFF_ST}')
        if L == 1 or self.o['hx']: self.P(f's_lshl_b32 {sr(sK2)}, {sr(sC)}, 2\ns_add_u32 {sr(sK2)}, {sr(sK2)}, {sr(sXF)}\ns_add_u32 {sr(sK2)}, {sr(sK2)}, {OFF_XFLAG + 0x2000}')

    def set_par(self, reg, par):
        return f'v_or_b32 {vr(reg)}, 1, {vr(reg)}' if par else f'v_and_b32 {vr(reg)}, -2, {vr(reg)}'

    def acc_par(self, a, b, par):
        return f'v_bitop3_b32 {vr(vPD)}, {vr(vPD)}, {vr(a)}, {vr(b)} bitop3:0x80' if par else f'v_or3_b32 {vr(vPD)}, {vr(vPD)}, {vr(a)}, {vr(b)}'

    def test_par(self, par):
        return f'v_and_b32 {vr(vCK)}, 1, {vr(vPD)}\nv_cmp_ne_u32 vcc, {par}, {vr(vCK)}'

    def hello_load(self):
        self.P(f'v_and_b32 {vr(vPA)}, 60, {vr(vL4)}\ns_lshl_b32 {sr(sK2)}, {sr(sR)}, 7\ns_add_u32 {sr(sK2)}, {sr(sK2)}, {OFF_XFLAG}\nbuffer_load_dword v25, {vr(vPA)}, {sr(sWS,4)}, {sr(sK2)} offen sc1')

    def hello_check(self):
        P = self.P; okl = P.newlabel('Lx')
        P(f'v_mov_b32 {vr(vPD)}, v25\nv_and_b32 {vr(vT0)}, -16, v25\nv_cmp_ne_u32 vcc, {sr(sTAG)}, {vr(vT0)}\ns_cbranch_vccz {okl}')
        self.poll(sK2, masked=True)
        P.label(okl)
        if not self.force_safe:
            P(f"""v_cmp_ne_u32 vcc, {sr(sOWNF)}, {vr(vPD)}
s_cmp_eq_u64 vcc, 0
s_cselect_b32 {sr(sFAST)}, 1, 0
v_mov_b32 {vr(vT0)}, {sr(sFAST)}
ds_write_b32 {vr(vCNT)}, {vr(vT0)} offset:44""")

    def clear_lines(self, Z):
        P = self.P
        P(f's_add_u32 {sr(sT0)}, {sr(sXW)}, {OFF_O}\ns_add_u32 {sr(sT1)}, {sr(sSW)}, {OFF_ST}')
        def clear(sc1):
            m = ' sc1' if sc1 else ''
            for of in (0, 1024): P(f'buffer_store_dwordx4 {vr(Z,4)}, {vr(vL16)}, {sr(sWS,4)}, {sr(sT0)} offen offset:{of}{m}')
            for of in (0, 1024): P(f'buffer_store_dwordx4 {vr(Z,4)}, {vr(vL16)}, {sr(sOut,4)}, {sr(sXW)} offen offset:{of}{m}')
            P(f'buffer_store_dword {vr(Z)}, {vr(vL4)}, {sr(sWS,4)}, {sr(sT1)} offen{m}')
        self.two_way(clear)

    def hint_prep(self, r, add):
        return [f'v_cmp_gt_u32 vcc, {sr(sFAST)}, {vr(vLANE)}', f'v_add_u32 {vr(r)}, {sr(sTAG)}, {add}', f'v_cndmask_b32 {vr(r+1)}, {OOB:#x}, {vr(vLANE)}, vcc']

    def hint(self, r, soff):
        self.P(f'buffer_store_dword {vr(r)}, {vr(r+1)}, {sr(sWS,4)}, {sr(soff)} offen')

    def first_hop(self, base_off, foff, mask, par=None, add=0, pre=None):
        self.P(f'v_and_b32 v110, {mask}, {vr(vL4)}\ns_add_u32 {sr(sT2)}, {sr(sXF)}, {foff}')
        self.frag_setup(base_off)
        if add: self.P(f's_add_u32 {sr(sT0)}, {sr(sTAG)}, {add}')
        NP = self.o['hp']
        if NP:
            P = self.P; lp = P.newlabel('Lpoll'); dn = P.newlabel('Lpolld'); val = sT0 if add else sTAG
            if pre is not None:
                P(f's_waitcnt vmcnt({pre})\nv_cmp_ne_u32 vcc, {sr(val)}, v103\ns_cbranch_vccz {dn}')
            ld = lambda i: P(f'buffer_load_dword {vr(104 + i)}, v110, {sr(sWS,4)}, {sr(sT2)} offen sc1')
            for i in range(NP):
                ld(i); P(f's_sleep {self.o["hs"]}')
            P.label(lp)
            for i in range(NP + 1):
                ld((i + NP) % (NP + 1))
                P(f's_waitcnt vmcnt({NP})\nv_cmp_ne_u32 vcc, {sr(val)}, {vr(104 + i)}\ns_cbranch_vccz {dn}')
            P(f's_sub_u32 {sr(sBUD)}, {sr(sBUD)}, 1\ns_cbranch_scc0 {lp}\ns_mov_b32 {sr(sBUD)}, 0')
            P.label(dn)
        else: self.poll(sT2, areg=110, val=sT0 if add else sTAG)
        if par is not None: self.P(f'v_mov_b32 {vr(vPD)}, {par}')
        return 0

    def probe(self, srd, base_off, par, nwin):
        P = self.P; lp = P.newlabel('Lprobe'); dn = P.newlabel('Lprobed'); S = min(self.o['specx' if srd == sOut else 'spec'], nwin)
        self.frag_setup(base_off)
        if self.o['pp']:
            A_, B_, AD_ = 108, 109, vPA
            if srd == sOut:
                AD_ = 110; P(f'v_or_b32 v110, 1024, {vr(vPA)}')
            ld = lambda r: P(f'buffer_load_dword {vr(r)}, {vr(AD_)}, {sr(srd,4)}, {sr(sLB)} offen sc1')
            ld(A_); P(f's_sleep {self.o["pp"]}')
            P.label(lp)
            for cur, nxt in ((A_, B_), (B_, A_)):
                ld(nxt)
                P(f's_waitcnt vmcnt(1)\nv_and_b32 {vr(vPD)}, 1, {vr(cur)}\nv_cmp_ne_u32 vcc, {par}, {vr(vPD)}\ns_cbranch_vccz {dn}')
            P(f's_sub_u32 {sr(sBUD)}, {sr(sBUD)}, 1\ns_cbranch_scc0 {lp}\ns_mov_b32 {sr(sBUD)}, 0')
            P.label(dn)
            return 0
        if self.o['pst'] and srd == sOut: P(f'v_lshrrev_b32 {vr(STAT+15)}, 2, {vr(vLANE)}\nv_lshlrev_b32 {vr(STAT+15)}, 8, {vr(STAT+15)}')
        P.label(lp)
        if self.o['pst'] and srd == sOut:
            P(f'buffer_load_dword {vr(vPD)}, {vr(STAT+15)}, {sr(sWS,4)}, {sr(sT1)} offen offset:252 sc1')
        elif self.o['pw'] == 16 and srd == sOut:
            P(f'v_or_b32 {vr(vPD)}, 1024, {vr(vPA)}\nbuffer_load_dword {vr(vPD)}, {vr(vPD)}, {sr(srd,4)}, {sr(sLB)} offen sc1')
        else: P(f'buffer_load_dword {vr(vPD)}, {vr(vPA)}, {sr(srd,4)}, {sr(sLB)} offen sc1')
        for ks in range(S): self.frag_load(srd, ks)
        P(f's_waitcnt vmcnt({S})')
        P(self.test_par(par))
        P(f's_cbranch_vccz {dn}')
        if self.o['em']: P('s_mov_b64 exec, vcc')
        if self.o['psleep']: P(f's_sleep {self.o["psleep"]}')
        if S: self.frag_setup(None)
        P(f's_sub_u32 {sr(sBUD)}, {sr(sBUD)}, 1\ns_cbranch_scc0 {lp}\ns_mov_b32 {sr(sBUD)}, 0')
        P.label(dn)
        if self.o['em']: P('s_mov_b64 exec, -1')
        return S

    def verify(self, par, redo):
        P = self.P; st = P.newlabel('Lver'); ct = P.newlabel('Lverc')
        P(self.test_par(par)); P(f's_cbranch_vccnz {st}')
        P.label(ct)
        self.stubs.append((st, redo, ct))

    def emit_stubs(self):
        P = self.P
        for ls, emit, le in self.ool:
            P.label(ls); emit(True); P(f's_branch {le}')
        for k, (st, redo, ct) in enumerate(self.stubs):
            P.label(st)
            if self.stamps: P(f's_add_u32 s101, s101, {1 << (2*k)}')
            P(f's_waitcnt vmcnt(0) lgkmcnt(0)\ns_sub_u32 {sr(sBUD)}, {sr(sBUD)}, 1\ns_cbranch_scc0 {redo}\ns_mov_b32 {sr(sBUD)}, 0\ns_branch {ct}')

    def probe_addr(self):
        if self.o['pw'] == 64:
            return f"""v_lshrrev_b32 {vr(vPA)}, 1, {vr(vLANE)}
v_lshlrev_b32 {vr(vPA)}, 10, {vr(vPA)}
v_and_b32 {vr(vCK)}, 1, {vr(vLANE)}
v_mad_u32_u24 {vr(vPA)}, {vr(vCK)}, {sr(sC1008)}, {vr(vPA)}"""
        if self.o['psp']:
            return f"""v_lshrrev_b32 {vr(vPA)}, 2, {vr(vLANE)}
v_add_u32 {vr(vPA)}, {sr(sC)}, {vr(vPA)}
v_and_b32 {vr(vPA)}, 7, {vr(vPA)}
v_lshlrev_b32 {vr(vPA)}, 7, {vr(vPA)}
v_lshrrev_b32 {vr(vCK)}, 1, {vr(vLANE)}
v_lshl_add_u32 {vr(vPA)}, {vr(vCK)}, 10, {vr(vPA)}"""
        return f'v_lshrrev_b32 {vr(vPA)}, 1, {vr(vLANE)}\nv_lshl_add_u32 {vr(vPA)}, {vr(vPA)}, 10, {sr(sC1008)}'

    def publish_x(self, L):
        P = self.P
        natural = (L % 2 == 0); T = 76; par = L & 1
        for p in range(8): P(f'v_cvt_pk_bf16_f32 {vr(T+p)}, {vr(ACC0+2*p)}, {vr(ACC0+2*p+1)}')
        if natural:
            for a, b in SW4: P(f'v_permlane32_swap_b32 {vr(T+a)}, {vr(T+b)}')
        if L == self.nl:
            m = ['', ' nt', ' sc1'][self.o.get('outm', 0)]
            P(f'buffer_store_dwordx4 {vr(T,4)}, {vr(vKA)}, {sr(sOut,4)}, {sr(sK0)} offen{m}\nbuffer_store_dwordx4 {vr(T+4,4)}, {vr(vKA)}, {sr(sOut,4)}, {sr(sK0)} offen offset:32{m}')
            return
        P(self.set_par(T, par)); P(self.set_par(T + 4, par))
        def emit(sc1):
            m = ' sc1' if sc1 else (' nt' if self.o.get('nta') else '')
            P(f'buffer_store_dwordx4 {vr(T,4)}, {vr(vL16)}, {sr(sOut,4)}, {sr(sXW)} offen{m}')
            P(f'buffer_store_dwordx4 {vr(T+4,4)}, {vr(vL16)}, {sr(sOut,4)}, {sr(sXW)} offen offset:1024{m}')
            if (L > 1 or self.o['clr']) and self.o['hx'] == 1 and (sc1 or not self.o['ex'] or L == 1): self.flag(sK2, sTAG, sc1, add=L - 1)
            if L > 1 and self.o['prex']: P(f'buffer_load_dword v103, v111, {sr(sWS,4)}, {sr(sXF)} offen sc1')
            for k in range(4):
                P(f'v_pk_add_f32 {vr(64+2*k,2)}, {vr(ACC0+4*k,2)}, {vr(ACC0+4*k+2,2)}')
            P(f'v_pk_mul_f32 v[72:73], {vr(ACC0,2)}, {vr(ACC0,2)}\nv_pk_mul_f32 v[74:75], {vr(ACC0+2,2)}, {vr(ACC0+2,2)}')
            P('v_pk_add_f32 v[64:65], v[64:65], v[66:67]\nv_pk_add_f32 v[68:69], v[68:69], v[70:71]')
            for k in range(2, 8): P(f'v_pk_fma_f32 {vr(72+2*(k&1),2)}, {vr(ACC0+2*k,2)}, {vr(ACC0+2*k,2)}, {vr(72+2*(k&1),2)}')
            P('v_pk_add_f32 v[64:65], v[64:65], v[68:69]\nv_pk_add_f32 v[72:73], v[72:73], v[74:75]')
            P('v_add_f32 v64, v64, v65\nv_add_f32 v66, v72, v73\nv_permlane32_swap_b32 v64, v66\nv_add_f32 v64, v64, v66')
            P(self.set_par(64, par))
            P(f'buffer_store_dword v64, {vr(vL4)}, {sr(sWS,4)}, {sr(sK1)} offen{m}')
            if L == 1 and not self.o['clr']: self.flag(sK2, sTAG, sc1, wait='s_waitcnt vmcnt(0)')
            elif self.o['hx'] == 2: self.flag(sK2, sTAG, sc1, add=L - 1)
        self.two_way(emit)
        for p in range(8): P(f'v_cvt_pk_bf16_f32 {vr(XRES+p)}, {vr(ACC0+2*p)}, {vr(ACC0+2*p+1)}')

    def frag_setup(self, base_off):
        if base_off is not None: self.P(f's_add_u32 {sr(sLB)}, {sr(sRB)}, {base_off}')
        self.P(f's_lshl_b32 {sr(sLR)}, {sr(sROT)}, 12\ns_add_u32 {sr(sT3)}, {sr(sLB)}, {sr(sLR)}')

    def frag_load(self, srd, ks, ring=32):
        P = self.P
        P(f'buffer_load_dwordx4 {vr(XF+4*(ks % ring),4)}, {vr(vL16)}, {sr(srd,4)}, {sr(sT3)} offen offset:{(ks&3)*1024} sc1')
        if ks < 28:
            if ks & 3 == 0: P(f's_add_u32 {sr(sLR)}, {sr(sLR)}, 4096')
            if ks & 3 == 1: P(f's_and_b32 {sr(sLR)}, {sr(sLR)}, 0x7fff')
            if ks & 3 == 3: P(f's_add_u32 {sr(sT3)}, {sr(sLB)}, {sr(sLR)}')
        self.vm.issue(('x', ks))

    def mask_ops(self, part, lean=False):
        ops = []; C = CDIAG if part == 0 else CFIRST; sg = -1.0 if part == 0 else 1.0
        if part == 0 and not lean:
            ops.append(f'v_mov_b32 {vr(VV)}, 0x3f803f80')
            for i in range(1, 8): ops.append(f'v_mov_b32 {vr(VV+i)}, {vr(VV)}')
        for i in range(16):
            ci = 8*(i//4) + i % 4
            if part == 0: ops.append(f'v_subrev_f32 {vr(C+i)}, {f2u(ci*2.0**100):#x}, {vr(vFD)}')
            else: ops.append(f'v_sub_f32 {vr(C+i)}, {f2u((ci-1)*2.0**100):#x}, {vr(vFD)}')
        for i in range(16): ops.append(f'v_min_f32 {vr(C+i)}, 0, {vr(C+i)}')
        if part == 0 and not lean:
            for i in range(16): ops.append(f'v_mov_b32 {vr(aO+i)}, 0')
        return ops

    def stats_final(self, typ):
        a, b = STAT, STAT + 1
        it = f"""v_mov_b32 {vr(b)}, {vr(a)}
v_mov_b32 {vr(XEXT+2)}, 0
v_mov_b32 {vr(XEXT+3)}, 0
v_permlane32_swap_b32 {vr(a)}, {vr(b)}
v_mul_f32 {vr(a)}, {f2u(1/512):#x}, {vr(a)}
v_mul_f32 {vr(b)}, {f2u(1/512):#x}, {vr(b)}
v_fma_f32 {vr(b)}, -{vr(a)}, {vr(a)}, {vr(b)}
v_max_f32 {vr(b)}, 0, {vr(b)}
v_add_f32 {vr(b)}, {f2u(1e-5):#x}, {vr(b)}
v_rsq_f32 {vr(vRSTD)}, {vr(b)}
v_cndmask_b32 {vr(a)}, 0, {vr(a)}, {sr(sH0,2)}
v_and_b32 {vr(a+2)}, 0xffff0000, {vr(a)}
v_sub_f32 {vr(a+3)}, {vr(a)}, {vr(a+2)}
v_cvt_pk_bf16_f32 {vr(XEXT)}, -{vr(a+2)}, -{vr(a+2)}
v_cvt_pk_bf16_f32 {vr(XEXT+1)}, -{vr(a+3)}, 0""".split('\n')
        it.append(('ds', 'rw', f'ds_write_b32 {vr(vRA)}, {vr(vRSTD)}'))
        for q in range(4): it.append(('ds', 'rt', f'ds_read_b128 {vr(STAT+4*q,4)}, {vr(vRB)} offset:{q*32}'))
        if typ == 1: it.append(f'v_mul_f32 {vr(vRSTD)}, {sr(sLOG2E)}, {vr(vRSTD)}')
        return it

    def wext_items(self, w, tag):
        return [('wlg', tag)] + f"""v_add_f32 {vr(w)}, {vr(w)}, {vr(w+1)}
v_add_f32 {vr(w+2)}, {vr(w+2)}, {vr(w+3)}
v_add_f32 {vr(w)}, {vr(w)}, {vr(w+2)}
v_and_b32 {vr(w+2)}, 0xffff0000, {vr(w)}
v_sub_f32 {vr(w+3)}, {vr(w)}, {vr(w+2)}
v_cvt_pk_bf16_f32 {vr(w)}, {vr(w+2)}, {vr(w+3)}
v_cvt_pk_bf16_f32 {vr(w+1)}, {vr(w+2)}, 0
v_mov_b32 {vr(w+2)}, 0
v_mov_b32 {vr(w+3)}, 0""".split('\n')

    def csp_addr(self, typ):
        self.P(f'v_and_b32 {vr(vT0)}, 0x1f0, {vr(vL16)}\nv_add_u32 {vr(vT0)}, {LDS_CSP + typ*1536}, {vr(vT0)}')

    def phi_addr(self):
        return f"""v_sub_u32 {vr(vVA)}, {vr(vKA)}, {vr(vL16)}
v_and_b32 {vr(vPD)}, 31, {vr(vLANE)}
v_lshl_add_u32 {vr(vVA)}, {vr(vPD)}, 5, {vr(vVA)}
v_lshrrev_b32 {vr(vPD)}, 5, {vr(vLANE)}
v_lshl_add_u32 {vr(vVA)}, {vr(vPD)}, 4, {vr(vVA)}""".split('\n')

    def main_kv(self, L):
        P = self.P; typ = L % 2; o = self.o; XD = o['xd']
        vm, lg = self.vm, self.lg
        V = L > 1 or (L == 1 and o['clr'])
        NR = 3; KVB = vL16 if L > 1 else PKV + 15
        if L == 1: P(f'v_subrev_u32 {vr(vTR1)}, {LDS_WO - LDS_WQ}, {vr(vTR2)}')
        if L == 2: P(f'v_add_u32 {vr(vTR1)}, {LDS_WQ}, {vr(vL16)}\nv_add_u32 {vr(vTR2)}, {LDS_WO}, {vr(vL16)}')
        if L < 2: P(f'v_subrev_u32 {vr(KVB)}, {LDS_WQ}, {vr(vTR1)}')
        def rdk(ks):
            self.w_read(RING + 8*(ks % NR), KVB, LDS_WK + ks*1024, L, ('k', ks))
        def rdv(ks):
            self.w_read(RING + 8*(ks % NR) + 4, KVB, LDS_WV + ks*1024, L, ('v', ks))
        csrd = [('ds', 'cs', f'ds_read_b128 {vr(WEXTK,4)}, {vr(vT0)} offset:512'), ('ds', 'cs', f'ds_read_b128 {vr(WEXTV,4)}, {vr(vT0)} offset:1024')]
        wext = self.wext_items(WEXTK, 'cs') + self.wext_items(WEXTV, 'cs')
        addr = [f'v_add_u32 {vr(vKA)}, {sr(sOWN)}, {vr(vL16)}']
        if typ == 0:
            La = L // 2
            addr += [f's_add_u32 {sr(sK0)}, {sr(sKVW)}, {OFF_KV + La*KV_L}', f's_add_u32 {sr(sK2)}, {sr(sK0)}, 4096']
        else:
            addr += self.phi_addr()
            if o['pw1']: addr += [f's_lshl_b32 {sr(sT0)}, {sr(sMT)}, 2', f'v_add_u32 {vr(PKV+8)}, {sr(sT0)}, {vr(vCNT)}', f'v_mov_b32 {vr(PKV+9)}, {5 + L//2}']
        extras = []
        def pop(n):
            for _ in range(n):
                if extras: self.item(extras.pop(0))
        D = (o['vlag'] if typ else o['vlaga']) if L else 0
        def vstep(kv):
            if kv == 32: return self.mfma(ACC1, XEXT, WEXTV, ACC1)
            P(waitstr(lg=lg.need(('v', kv))))
            self.mfma(ACC1, XF + 4*kv, RING + 8*(kv % NR) + 4, None if kv == 0 else ACC1)
            if kv + NR < 32: rdv(kv + NR)
        def kstep(ks, pre=None):
            b = RING + 8*(ks % NR)
            P(waitstr(vm=vm.need(('x', ks)) if L > 0 else None, lg=lg.need(('k', ks))))
            self.mfma(ACC0, b, XF + 4*ks, None if ks == 0 else ACC0)
            if pre: pre()
            if ks + NR < 32: rdk(ks + NR)
            if V and ks & 1: P(self.acc_par(XF + 4*ks - 4, XF + 4*ks, L & 1))
            if L > 0 and ks + XD < 32: self.frag_load(sOut, ks + XD); pop(1)
            else: pop(3)
            if ks >= D: vstep(ks - D)
            if L > 0 and o['st0'] <= ks < o['st0'] + 8:
                for i in range(2*(ks-o['st0']), 2*(ks-o['st0']) + 2):
                    P(f'buffer_load_dword {vr(STAT+i)}, {vr(vL4)}, {sr(sWS,4)}, {sr(sT1)} offen offset:{i*256} sc1'); vm.issue('st')
            pop(3)
        if L > 0 and not o['b0']:
            ok = P.newlabel('Lwr')
            P(f'v_cmp_gt_u32 vcc, {4*L}, {vr(vT0)}\ns_cbranch_vccz {ok}')
            self.lds_wait(C_WR, 4*L)
            P.label(ok)
            if L == 1 and o['bq']:
                P(f's_lshl_b32 {sr(sT0)}, {sr(sMT)}, 11\ns_add_u32 {sr(sT0)}, {sr(sT0)}, {LDS_WQ}\nv_add_u32 {vr(PKV)}, {sr(sT0)}, {vr(vL16)}')
                bqw = [('ds', 'bq', f'ds_write_b128 {vr(PKV)}, {vr(224+4*u,4)} offset:{cho(u)}') for u in range(8)]
                bqw.append(('ds', 'bq', f'v_mov_b32 {vr(vPD)}, 1\ns_mov_b64 exec, 1\nds_add_u32 {vr(vCNT)}, {vr(vPD)} offset:{4*C_Q}\ns_mov_b64 exec, -1'))
        self.csp_addr(typ)
        if L == 0:
            AD = PKV + 2; X0D = o['x0d']
            P(f"""v_bfe_u32 {vr(AD)}, {vr(vLANE)}, 1, 3
v_xor_b32 {vr(AD)}, {vr(AD)}, v64
v_lshlrev_b32 {vr(AD)}, 4, {vr(AD)}
v_lshl_add_u32 {vr(AD)}, v65, 7, {vr(AD)}
v_add_u32 {vr(AD)}, {sr(sLA)}, {vr(AD)}
v_xor_b32 {vr(AD+1)}, 32, {vr(AD)}
v_xor_b32 {vr(AD+2)}, 64, {vr(AD)}
v_xor_b32 {vr(AD+3)}, 96, {vr(AD)}
s_mov_b32 {sr(sSEL0)}, 0x3f803f80""")
            for i in range(4): P(f'v_mov_b32 {vr(STAT+i)}, 0')
            for it in addr: self.item(it)
            for g in range(2, X0D): self.x0_load(g)
            if o['xst']:
                P(f"""s_and_b32 {sr(sT0)}, {sr(sC)}, 1
s_lshl_b32 {sr(sT0)}, {sr(sT0)}, 6
v_xor_b32 {vr(PKV)}, {sr(sT0)}, {vr(AD)}
v_xor_b32 {vr(PKV+1)}, 32, {vr(PKV)}
s_lshr_b32 {sr(sT2)}, {sr(sC)}, 1
s_sub_u32 {sr(sT2)}, {sr(sT2)}, {sr(sROT)}
s_and_b32 {sr(sT2)}, {sr(sT2)}, 7""")
            def dots(g):
                for i in range(16):
                    r_ = XF + 16*g + i
                    P(f'v_dot2_f32_bf16 {vr(STAT+(i&1))}, {vr(r_)}, {sr(sSEL0)}, {vr(STAT+(i&1))}\nv_dot2_f32_bf16 {vr(STAT+2+(i&1))}, {vr(r_)}, {vr(r_)}, {vr(STAT+2+(i&1))}')
            stat_fold = [f'v_add_f32 {vr(STAT)}, {vr(STAT)}, {vr(STAT+1)}', f'v_add_f32 {vr(STAT+2)}, {vr(STAT+2)}, {vr(STAT+3)}',
                         f'v_permlane32_swap_b32 {vr(STAT)}, {vr(STAT+2)}', f'v_add_f32 {vr(STAT)}, {vr(STAT)}, {vr(STAT+2)}']
            LAG = o['il']
            if LAG:
                P(f'v_mov_b32 {vr(PKV+6)}, 1')
                sig = lambda idx: self.item(('ds', 'sig', f's_mov_b64 exec, 1\nds_add_u32 {vr(vCNT)}, {vr(PKV+6)} offset:{4*idx}\ns_mov_b64 exec, -1'))
                lg.reset()
                def ks0(ks):
                    nonlocal extras
                    if ks == 0:
                        self.lds_check(C_ST, 4)
                        self.stamp(29, 'S0 / W st2')
                        for k in range(NR): rdk(k); rdv(k)
                    pre = None; st = ks // 8 + 1
                    if ks % 8 == 2 and st < 4: extras[0:0] = self.lds_peek(C_ST + st)
                    if ks % 8 == 5 and st < 4: pre = lambda: self.lds_check(C_ST + st, 4)
                    if ks == o['csk']: extras[0:0] = self.lds_peek(C_CS)
                    if ks == o['csk'] + 2:
                        pre = lambda: self.lds_check(C_CS, 4)
                        extras += csrd + ['s_nop 0']*4 + wext
                    if ks == 30: extras[0:0] = self.lds_peek(C_Q)
                    kstep(ks, pre)
                for g in range(8 + LAG):
                    kk = list(range(4*(g - LAG), 4*(g - LAG) + 4)) if g >= LAG else []
                    if g < 8:
                        if g == LAG - 1 or (LAG > 8 and g == 7):
                            for it in self.lds_peek(C_ST): self.item(it)
                        lx = P.newlabel('Lx')
                        P(f's_cmp_lg_u32 {sr(sT2)}, {g}')
                        P(waitstr(vm=vm.need(('x', g))))
                        P(f's_cbranch_scc1 {lx}\nds_read_b128 {vr(XRES,4)}, {vr(PKV)} offset:{(g%3)*4096}\nds_read_b128 {vr(XRES+4,4)}, {vr(PKV+1)} offset:{(g%3)*4096}')
                        P.label(lx)
                        for s_ in range(4): P(f'ds_read_b128 {vr(XF+16*g+4*s_,4)}, {vr(AD+s_)} offset:{(g%3)*4096}')
                        lg.issue(('xg', g), 4)
                        if kk and kk[0] > 0: ks0(kk.pop(0))
                        P(waitstr(lg=lg.need(('xg', g))))
                        if g + 3 < 8: self.x0_load(g + 3)
                        if g == o['wgo'] - 1: sig(C_WGO)
                        if g == o['qgo']: sig(C_CSQ)
                        if g == 7: sig(C_XDONE)
                        if g in (0, 3, 5, 7): self.stamp({0: 2, 3: 15, 5: 23, 7: 1}[g], {0: 'x g0 / W go', 3: 'x g3 / W st0', 5: 'x g5 / W st1', 7: 'x0 / W st3'}[g])
                        if g == 7 or not kk or kk[0] == 0:
                            dots(g)
                            if g == 7: extras += stat_fold + self.stats_final(typ)
                            for k in kk: ks0(k)
                        else:
                            for k in kk: ks0(k)
                            dots(g)
                    else:
                        for k in kk: ks0(k)
                pop(100)
            for g in range(0 if LAG else 8):
                if o['xst']: P(f's_cmp_lg_u32 {sr(sT2)}, {g}')
                P(waitstr(vm=vm.need(('x', g))))
                if o['xst']:
                    lx = P.newlabel('Lx')
                    P(f's_cbranch_scc1 {lx}\nds_read_b128 {vr(XRES,4)}, {vr(PKV)} offset:{(g%4)*4096}\nds_read_b128 {vr(XRES+4,4)}, {vr(PKV+1)} offset:{(g%4)*4096}')
                    P.label(lx)
                for s_ in range(4): P(f'ds_read_b128 {vr(XF+16*g+4*s_,4)}, {vr(AD+s_)} offset:{(g%4)*4096}')
                if g: P('s_waitcnt lgkmcnt(4)')
                if g + X0D < 8: self.x0_load(g + X0D)
                if g: dots(g - 1)
                if g == o['wgo'] - 1: self.lds_signal(C_WGO)
                if g in (0, 3, 5): self.stamp({0: 2, 3: 15, 5: 23}[g], {0: 'x g0 / W go', 3: 'x g3 / W st0', 5: 'x g5 / W st1'}[g])
            if not LAG:
                self.lds_signal(C_XDONE)
                lg.reset()
                for it in self.lds_peek(C_ST): self.item(it)
                dots(7)
                self.stamp(1, 'x0 / W st3')
                self.lds_check(C_ST, 4)
                self.stamp(29, 'S0 / W st2')
                for ks in range(NR): rdk(ks); rdv(ks)
                P(f'v_add_f32 {vr(STAT)}, {vr(STAT)}, {vr(STAT+1)}\nv_add_f32 {vr(STAT+2)}, {vr(STAT+2)}, {vr(STAT+3)}')
                P(f'v_permlane32_swap_b32 {vr(STAT)}, {vr(STAT+2)}\nv_add_f32 {vr(STAT)}, {vr(STAT)}, {vr(STAT+2)}')
                extras += self.stats_final(typ)
                pop(10)
                for ks in range(32):
                    pre = None
                    st = ks // 8 + 1
                    if ks % 8 == 2: extras[0:0] = self.lds_peek(C_ST + st if st < 4 else C_CS)
                    if ks % 8 == 5 and st < 4: pre = lambda: self.lds_check(C_ST + st, 4)
                    if ks == 28:
                        pre = lambda: self.lds_check(C_CS, 4)
                        extras += csrd + self.lds_peek(C_Q) + ['s_nop 0']*3 + wext
                    kstep(ks, pre)
                pop(100)
        else:
            vm.reset(); lg.reset()
            redo = P.newlabel('Lkvredo')
            P(f's_lshr_b32 {sr(sT1)}, {sr(sRB)}, 3\ns_add_u32 {sr(sT1)}, {sr(sT1)}, {OFF_ST}')
            for it in addr: self.item(it)
            if o['b0']: P('s_barrier')
            self.stamp(14 + L*14 if L < 3 else 57, f'L{L} B0')
            P.label(redo)
            for it in csrd: self.item(it)
            for ks in range(NR): rdk(ks); rdv(ks)
            extras += wext
            S = self.probe(sOut, 0, L & 1, XD) if L > 1 and not o['hx'] else self.first_hop(0, OFF_XFLAG + 0x2000, 60, L & 1 if V else None, L - 1, 1 if (L > 1 and o['prex']) else None)
            if L == 1: extras += self.probe_addr().split('\n')
            self.stamp(2 + L*14, f'L{L} xflags')
            for ks in range(S, XD): self.frag_load(sOut, ks)
            if L == 1 and o['bq']:
                for it in bqw: self.item(it)
            late = [('wvm', 'st')] + [self.acc_par(STAT + 2*i, STAT + 2*i + 1, L & 1) for i in range(8) if V]
            for step in (8, 4, 2, 1):
                for i in range(step): late.append(f'v_add_f32 {vr(STAT+i)}, {vr(STAT+i)}, {vr(STAT+i+step)}')
            late += self.stats_final(typ)
            for ks in range(32):
                if ks == 8 + o['st0'] + XD: extras += late
                kstep(ks)
                if V and ks in (o['ev'], o['ev2']): self.verify(L & 1, redo)
            pop(100)
            if V: self.verify(L & 1, redo)
        self.mfma(ACC0, WEXTK, XEXT, ACC0)
        rest = list(range(32 - D, 33))
        def vt(n=1):
            for _ in range(n):
                if rest: vstep(rest.pop(0))
        vt()
        return vt

    def w_read(self, dst, base, off, L, tag, qkv=True):
        if L > 1:
            self.P(f'ds_read_b128 {vr(dst,4)}, {vr(base)} offset:{off}'); self.lg.issue(tag)
        else:
            d = 256 if (L == 0 and qkv) else 512
            self.P(f'ds_read_b64_tr_b16 {vr(dst,2)}, {vr(base)} offset:{off}\nds_read_b64_tr_b16 {vr(dst+2,2)}, {vr(base)} offset:{off+d}'); self.lg.issue(tag, 2)

    def q_prefetch(self, L, NS=5):
        for ks in range(NS): self.q_rd(L, ks)

    def q_rd(self, L, ks, NS=5):
        self.w_read(RING + 4*(ks % NS), vTR1, ks*1024, L, ('w', ks))

    def main_qpass(self, L, acc, fill, at=None, pre_write=None, rate=4):
        P = self.P; typ = L % 2; lg = self.lg; NS = 5
        fill = list(fill)
        for ks in range(32):
            P(waitstr(lg=lg.need(('w', ks))))
            self.mfma(acc, RING + 4*(ks % NS), XF + 4*ks, None if ks == 0 else acc)
            if ks + NS < 32: self.q_rd(L, ks + NS)
            n = 0
            while fill and n < rate:
                it = fill.pop(0); self.item(it)
                if isinstance(it, str) or it[0] == 'ds': n += 1
            if at and ks in at: at[ks]()
        for it in fill: self.item(it)
        self.mfma(acc, WEXTQ, XEXT, acc)
        if at and 32 in at: at[32]()
        order = (4, 5, 6, 7, 0, 1, 2, 3)
        for p in order:
            if typ == 0 and p % 4 == 0:
                for q in range(p, p + 4): P(f'v_pk_mul_f32 {vr(acc+2*q,2)}, {vr(acc+2*q,2)}, {vr(vRSTD,2)} op_sel_hi:[1,0]')
            P(f'v_cvt_pk_bf16_f32 {vr(aQ+p)}, {vr(acc+2*p)}, {vr(acc+2*p+1)}')
            if p == 7:
                if pre_write: pre_write()
                P(f'ds_write_b128 {vr(vKA)}, {vr(aQ+4,4)} offset:5120')

    def tile_addr(self, sbase):
        return f"""s_lshl_b32 {sr(sT1)}, {sr(sHS)}, 10
s_add_u32 {sr(sT1)}, {sr(sT1)}, {sr(sbase)}
v_add_u32 {vr(vKA)}, {sr(sT1)}, {vr(vL16)}
s_lshl_b32 {sr(sT1)}, {sr(sHS)}, 8
v_xor_b32 {vr(vVA)}, {sr(sT1)}, {vr(vL16)}
v_add_u32 {vr(vVA)}, {sr(sbase)}, {vr(vVA)}"""

    def trickle_setup(self):
        self.P(f's_mov_b32 {sr(sDM)}, 4\ns_mov_b32 {sr(sDG)}, {sr(sG0)}\ns_mov_b32 {sr(sDL)}, {sr(sLA)}')

    def trickle(self, keep=0):
        P = self.P; sk = P.newlabel('Lsk')
        P(f's_cmp_le_u32 {sr(sDM)}, {keep}\ns_cbranch_scc1 {sk}\ns_mul_i32 {sr(sT0)}, {sr(sDG)}, 3')
        for e in range(2):
            for nt in (1, 2):
                P(f's_add_u32 m0, {sr(sDL)}, {NT_LDS[nt] + e*1024}\ns_add_u32 {sr(sT1)}, {sr(sT0)}, {e*49152 + nt*1024}')
                P(f'buffer_load_dwordx4 {vr(vDW)}, {sr(sWB,4)}, {sr(sT1)} offen lds')
        P(f"""s_add_u32 {sr(sDL)}, {sr(sDL)}, 8192
s_add_u32 {sr(sDG)}, {sr(sDG)}, 0x20000
s_and_b32 {sr(sDG)}, {sr(sDG)}, 0x7ffff
s_sub_u32 {sr(sDM)}, {sr(sDM)}, 1""")
        P.label(sk)

    def attn_loop(self, cfirst, trickle=False):
        P = self.P; lp = P.newlabel('Latt')
        if self.o['trunc']: pk = lambda d, e: f'v_perm_b32 {vr(d)}, {vr(e+1)}, {vr(e)}, {sr(sPERM)}'
        else: pk = lambda d, e: f'v_cvt_pk_bf16_f32 {vr(d)}, {vr(e)}, {vr(e+1)}'
        rdv = f's_mov_b64 exec, {sr(sLO,2)}\nds_read_b128 {vr(VV,4)}, {vr(vVA)} offset:2048\nds_read_b128 {vr(VV+4,4)}, {vr(vVA)} offset:3072\ns_mov_b64 exec, -1'
        P(f'ds_read_b128 {vr(aK,4)}, {vr(vKA)}'); P(rdv)
        P(f'v_add_u32 {vr(vKA)}, {sr(sSTEP)}, {vr(vKA)}\nv_add_u32 {vr(vVA)}, {sr(sSTEP)}, {vr(vVA)}\ns_waitcnt lgkmcnt(2)')
        cfirst()
        P(f'ds_read_b128 {vr(aK,4)}, {vr(vKA)}\nv_add_u32 {vr(vKA)}, {sr(sSTEP)}, {vr(vKA)}\ns_nop 9')
        P.label(lp)
        for i in range(8): P(f'v_exp_f32 {vr(aE+i)}, {vr(aS+i)}')
        for p in range(4): P(pk(aP + p, aE + 2*p))
        for i in range(8, 10): P(f'v_exp_f32 {vr(aE+i-8)}, {vr(aS+i)}')
        P('s_waitcnt lgkmcnt(0)')
        self.mfma(aO, VV, aP, aO)
        for i in range(10, 16): P(f'v_exp_f32 {vr(aE+i-8)}, {vr(aS+i)}')
        self.mfma(aS, aK, aQ, None)
        P(f'ds_read_b128 {vr(aK,4)}, {vr(vKA)}')
        for p in range(4): P(pk(aP + 4 + p, aE + 2*p))
        P(f'v_add_u32 {vr(vKA)}, {sr(sSTEP)}, {vr(vKA)}\ns_sub_u32 {sr(sCNT)}, {sr(sCNT)}, 1')
        self.mfma(aO, VV + 4, aP + 4, aO)
        P(rdv)
        if trickle and self.o['trk']: self.trickle(4 - self.o['trk'])
        P(f'v_add_u32 {vr(vVA)}, {sr(sSTEP)}, {vr(vVA)}\ns_cmp_lg_u32 {sr(sCNT)}, 0\ns_cbranch_scc1 {lp}')

    def v_lanes(self):
        return [f'v_mov_b32 {vr(vSTV)}, {LDS_ONES - 2048}', f'v_cndmask_b32 {vr(vVA)}, {vr(vSTV)}, {vr(vVA)}, {sr(sLO,2)}',
                f'v_mov_b32 {vr(vSTV)}, {sr(sSTEP)}', f'v_cndmask_b32 {vr(vSTV)}, 0, {vr(vSTV)}, {sr(sLO,2)}']

    def attn2(self, M, first, trickle=False):
        P = self.P; lp = P.newlabel('Latt'); dn = P.newlabel('Lattd')
        pk = lambda d, e: f'v_perm_b32 {vr(d)}, {vr(e+1)}, {vr(e)}, {sr(sPERM)}'
        ex = lambda S, a, b: P('\n'.join(f'v_exp_f32 {vr(S+i)}, {vr(S+i)}' for i in range(a, b)))
        rdk = f'ds_read_b128 {vr(aK,4)}, {vr(vKA)}\nv_add_u32 {vr(vKA)}, {sr(sSTEP)}, {vr(vKA)}'
        P(rdk.replace(vr(aK,4), vr(aP,4))); P(rdk); P(f'ds_read_b128 {vr(VV,4)}, {vr(vVA)} offset:2048\ns_waitcnt lgkmcnt(2)')
        first()
        P('s_waitcnt lgkmcnt(1)\ns_nop 6')
        P.label(lp)
        for half, (S, N) in enumerate(((M, aS), (aS, M))):
            P('s_waitcnt lgkmcnt(2)')
            self.mfma(N, aK, aQ, None)
            P(rdk)
            ex(S, 0, 4)
            P('s_waitcnt lgkmcnt(2)')
            self.mfma(aO, VV + 4, aP + 4, aO)
            P(f'ds_read_b128 {vr(VV+4,4)}, {vr(vVA)} offset:3072\nv_add_u32 {vr(vVA)}, {vr(vSTV)}, {vr(vVA)}')
            ex(S, 4, 10)
            for p in range(4): P(pk(aP + p, S + 2*p))
            ex(S, 10, 12)
            P('s_waitcnt lgkmcnt(2)')
            self.mfma(aO, VV, aP, aO)
            P(f'ds_read_b128 {vr(VV,4)}, {vr(vVA)} offset:2048')
            if trickle and self.o['trk']: self.trickle(4 - self.o['trk'])
            ex(S, 12, 16)
            P(f's_sub_u32 {sr(sCNT)}, {sr(sCNT)}, 1')
            for p in range(4): P(pk(aP + 4 + p, S + 8 + 2*p))
            P(f's_cbranch_scc1 {dn}' if half == 0 else f's_cbranch_scc0 {lp}')
        P.label(dn)

    def publish_o_addr(self, L):
        return [f's_add_u32 {sr(sK0)}, {sr(sOW)}, {OFF_O}'] + ([f's_add_u32 {sr(sK1)}, {sr(sOF)}, {OFF_OFLAG}'] if L == 0 or self.o['ho'] else [])

    def publish_o(self, L, O, eps):
        P = self.P
        if eps: P(f'v_add_f32 {vr(O+8)}, {f2u(eps):#x}, {vr(O+8)}')
        P(f'v_rcp_f32 {vr(O+8)}, {vr(O+8)}')
        if L % 2 == 0 and self.o['omul']:
            for i in range(8): P(f'v_mul_f32 {vr(O+i)}, {vr(O+8)}, {vr(O+i)}')
        else:
            for p in range(4): P(f'v_pk_mul_f32 {vr(O+2*p,2)}, {vr(O+2*p,2)}, {vr(O+8,2)} op_sel_hi:[1,0]')
        for p in range(4): P(f'v_cvt_pk_bf16_f32 {vr(aP+p)}, {vr(O+2*p)}, {vr(O+2*p+1)}')
        P(self.set_par(aP, 1 - (L & 1)))
        def emit(sc1):
            P(f'buffer_store_dwordx4 {vr(aP,4)}, {vr(vL16)}, {sr(sWS,4)}, {sr(sK0)} offen' + (' sc1' if sc1 else (['', ' nt', ' sc1', ' sc0'][self.o.get('o3', 0)] if L == 3 or self.o.get('nta') else '')))
            if L == 0: self.flag(sK1, sTAG, sc1, wait=None if self.o['clr'] else 's_waitcnt vmcnt(0)')
            elif self.o['ho'] and (sc1 or not self.o['eb' if L & 1 else 'ea']): self.flag(sK1, sTAG, sc1, add=L)
        self.two_way(emit)

    def main_outproj(self, L):
        P = self.P; vm, lg = self.vm, self.lg; OD = self.o['od'] if L != 1 else self.o['od1']; par = 1 - (L & 1)
        vm.reset(); lg.reset()
        redo = P.newlabel('Lopredo')
        PO = self.o['preo'] and L > 0
        if PO: P(f'v_and_b32 v111, 124, {vr(vL4)}\nv_add_u32 v111, {OFF_OFLAG}, v111\nbuffer_load_dword v103, v111, {sr(sWS,4)}, {sr(sXF)} offen sc1')
        if L == 0:
            for op in ['s_waitcnt vmcnt(2)' if self.o['clr'] else 's_waitcnt vmcnt(1)'] + [f'v_permlane32_swap_b32 {vr(XRES+a)}, {vr(XRES+b)}' for a, b in SW4] + self.wphi_pack(170): P(op)
        NS = 6; RG = 24 if L == 0 and self.o['bq'] else 32; V = L or self.o['clr']
        def rd(ks):
            self.w_read(RING + 4*(ks % NS), vTR2, ks*1024, L, ('w', ks), qkv=False)
        self.publish_x_addr(L + 1)
        P.label(redo)
        for ks in range(NS): rd(ks)
        self.unpack_res()
        S = self.probe(sWS, OFF_O, par, OD) if L > 0 and not self.o['ho'] else self.first_hop(OFF_O, OFF_OFLAG, 124, par if V else None, L, 0 if PO else None)
        SG = self.o['sg'] if L == 1 else 0
        EX = self.o['ex'] if L in (1, 2) else 0
        if SG:
            l = P.newlabel('Lx'); lw = P.newlabel('Lx')
            P(f's_cmp_lt_u32 {sr(sMT)}, 2\ns_cbranch_scc1 {l}'); P.label(lw)
            P(f'ds_read_b32 {vr(vT0)}, {vr(vCNT)} offset:{4*C_WGO}\ns_waitcnt lgkmcnt(0)\nv_cmp_gt_u32 vcc, 6, {vr(vT0)}\ns_cbranch_vccnz {lw}')
            P.label(l)
        self.stamp(11 + L*14, f'L{L} oflags')
        for ks in range(S, OD): self.frag_load(sWS, ks)
        for ks in range(32):
            P(waitstr(vm=vm.need(('x', ks)), lg=lg.need(('w', ks))))
            self.mfma(ACC0, RING + 4*(ks % NS), XF + 4*(ks % RG), ACC0)
            if ks + OD < 32: self.frag_load(sWS, ks + OD, RG)
            if ks + NS < 32: rd(ks + NS)
            if SG and ks == SG - 1: self.item(('ds', 'sg', f's_mov_b64 exec, 2\nds_add_u32 {vr(vCNT)}, {vr(vLANE)} offset:{4*C_WGO}\ns_mov_b64 exec, -1'))
            if V and ks & 1: P(self.acc_par(XF + 4*ks - 4, XF + 4*ks, par))
            if V and ks in (self.o['ev'], self.o['ev2']): self.verify(par, redo)
            if self.o['prex'] and L in (1, 2) and ks == 25: P(f'v_and_b32 v111, 60, {vr(vL4)}\nv_add_u32 v111, {OFF_XFLAG + 0x2000}, v111')
            if EX and ks == 24:
                for op in self.hint_prep(106, L): P(op)
            if EX and ks == EX: self.hint(106, sK2); vm.issue('h')
        if V: self.verify(par, redo)
        if EX == 32: self.hint(106, sK2)
        self.stamp(12 + L*14, f'L{L} outproj')
        nxt = L + 1 < self.nl and not self.o['b0']
        if nxt: P(f'ds_read_b32 {vr(vT0)}, {vr(vCNT)} offset:{4*C_WR}')
        self.publish_x(L + 1)
        if nxt: self.lds_signal(C_XDONE)
        self.stamp(13 + L*14, f'L{L} xpub')

    def aux_head(self, L):
        P = self.P
        if self.o['b0']: P('s_barrier')
        else: self.lds_signal(C_WR)
        if L + 1 < self.nl: self.code_prefetch(f'L_main_{L+1}')
        if L > 1 and not self.o['b0']: self.lds_wait(C_XDONE, 4 + 4*L, self.o['lsleep'])
        if L == 1:
            self.lds_to_regs(LDS_WO, PARK['o'], True); P('s_waitcnt vmcnt(0) lgkmcnt(0)')
            if self.o['bq']: self.lds_wait(C_Q, 8, self.o['lsleep'])
            self.relayout(1, (0,))
        else: self.swap_region('o', L + 1 < self.nl, L == 2)

    def aux_tail(self, L):
        P = self.P
        if L + 1 >= self.nl:
            if self.o.get('wb'):
                lw = P.newlabel('Lx')
                P(f's_lshr_b32 {sr(sT0)}, s2, {3 if self.o["wb"] == 1 else 8}\ns_or_b32 {sr(sT0)}, {sr(sT0)}, {sr(sMT)}\ns_cmp_lg_u32 {sr(sT0)}, 0\ns_cbranch_scc1 {lw}')
                P('s_waitcnt vmcnt(0)\ns_sleep 8\nbuffer_wbl2 sc1\ns_waitcnt vmcnt(0)')
                P.label(lw)
            return
        if L % 2 == 0: wait_att = lambda: self.lds_wait(C_ATT, 8*(L//2 + 1), self.o['lsleep'])
        else: wait_att = lambda: None
        if L == 0:
            lp = P.newlabel('Lx'); P.label(lp)
            self.trickle()
            P(f's_cmp_lg_u32 {sr(sDM)}, 0\ns_cbranch_scc1 {lp}')
            self.wphi_load()
            if self.o['bq']: P('s_waitcnt vmcnt(0)')
            else:
                wait_att()
                self.dma_w(1, (0,))
                P('s_waitcnt vmcnt(8)')
            for op in self.wphi_pack(): P(op)
            self.relayout(1, (1, 2))
            if self.o['bq']: wait_att()
            return
        save = L + 2 < self.nl
        self.swap_region(1, save, L == 1); self.swap_region(2, save, L == 1)
        wait_att()
        self.swap_region(0, save, L == 1)

    def layerA(self, L):
        P = self.P; sb = L * 14; o = self.o; lg = self.lg
        j1 = f'L_j1_{L}'; j2 = f'L_j2_{L}'; ax2 = f'L_ax2_{L}'; ax3 = f'L_ax3_{L}'
        P.label(f'L_main_{L}')
        vt = self.main_kv(L)
        self.stamp(3 + sb, f'L{L} kvpass')
        if L == 0: self.lds_check(C_Q, 4)
        if L and o['vlaga']:
            vt()
            for p in range(8):
                P(f'v_mul_f32 {vr(ACC0+2*p)}, {vr(vRSTD)}, {vr(ACC0+2*p)}\nv_mul_f32 {vr(ACC0+2*p+1)}, {vr(vRSTD)}, {vr(ACC0+2*p+1)}')
                P(f'v_cvt_pk_bf16_f32 {vr(PKV+p)}, {vr(ACC0+2*p)}, {vr(ACC0+2*p+1)}')
                if p & 1: vt()
            vt(99)
            self.q_prefetch(L)
            P(waitstr(lg=lg.need('rt')))
        else:
            self.q_prefetch(L)
            P(waitstr(lg=lg.need('rt')))
            for p in range(8):
                P(f'v_pk_mul_f32 {vr(ACC0+2*p,2)}, {vr(ACC0+2*p,2)}, {vr(vRSTD,2)} op_sel_hi:[1,0]')
            for p in range(8): P(f'v_cvt_pk_bf16_f32 {vr(PKV+p)}, {vr(ACC0+2*p)}, {vr(ACC0+2*p+1)}')
        st = lambda f: f'buffer_store_dwordx4 {vr(PKV+4*f,4)}, {vr(vL16)}, {sr(sWS,4)}, {sr(sK0)} offen offset:{f*1024}{MODS[o["sm"]]}'
        fill = [st(0), st(1)]
        for hf in range(2):
            fill += [f'v_mul_f32 {vr(ACC1+i)}, {vr(STAT+i)}, {vr(ACC1+i)}' for i in range(8*hf, 8*hf + 8)]
            fill += [f'v_cvt_pk_bf16_f32 {vr(PKV+8+p)}, {vr(ACC1+2*p)}, {vr(ACC1+2*p+1)}' for p in range(4*hf, 4*hf + 4)]
            fill.append(st(2 + hf))
        fill += self.checksum(vPD, PKV, 16) + [f'buffer_store_dword {vr(vPD)}, {vr(vL4)}, {sr(sWS,4)}, {sr(sK2)} offen{MODS[o["sm"]]}']
        fill += [('ds', 'own', f'ds_write_b128 {vr(vKA)}, {vr(PKV+4*f,4)} offset:{f*1024}') for f in range(4)]
        if L == 0 and o['early']:
            fill.append(('ds', 'kd', f'v_mov_b32 {vr(vPD)}, 1\ns_mov_b64 exec, 1\nds_add_u32 {vr(vCNT)}, {vr(vPD)} offset:{4*C_CS}\ns_mov_b64 exec, -1'))
        m0 = self.mask_ops(0, lean=True)
        if L == 0: fill += m0[:4] + self.lds_peek(C_CSQ) + m0[4:16] + [('fn', lambda: self.lds_check(C_CSQ, 8 if o['il'] else 4))]
        else: fill += m0[:16]
        fill += [('ds', 'cs', f'ds_read_b128 {vr(WEXTQ,4)}, {vr(vT0)}')] + m0[16:]
        fill += [f'v_mul_f32 {vr(vRSTD)}, {f2u(0.25*LOG2E):#x}, {vr(vRSTD)}'] + self.wext_items(WEXTQ, 'cs')
        def halo_loads(m=' sc1'):
            for t_, sh in ((0, sH1), (1, sH2)):
                P(f's_add_u32 m0, {sr(sHL)}, {t_*4096}')
                for f in range(4): P(f'buffer_load_dwordx4 {vr(vL16)}, {sr(sWS,4)}, {sr(sh)} offen offset:{f*1024}{m} lds')
                P(f'buffer_load_dword {vr(65+t_)}, v67, {sr(sWS,4)}, {sr(sh)} offen{m}')
        La = L // 2; sHL = sM + 6
        fill += self.mask_ops(1)
        AT2 = o['at2']
        common = self.publish_o_addr(L) + [f's_add_u32 {sr(sCNT)}, {sr(sQT)}, {1 - AT2}', f's_mov_b32 {sr(sSTEP)}, {-OWN_ST}']
        common += [f's_add_u32 {sr(sH1)}, {sr(sHB)}, {OFF_KV + La*KV_L}', f's_add_u32 {sr(sH2)}, {sr(sH1)}, {16*KV_REC}',
                   f's_lshl_b32 {sr(sHL)}, {sr(sMT)}, 13', f's_add_u32 {sr(sHL)}, {sr(sHL)}, {LDS_T}', f'v_add_u32 v67, 4096, {vr(vL4)}']
        p1 = f's_cmp_lt_u32 {sr(sQT)}, 2' if o['p1'] else f's_cmp_ge_u32 {sr(sQT)}, 2'
        pre2 = (self.v_lanes() + [f'v_mov_b32 {vr(aP+4+i)}, 0' for i in range(4)]) if AT2 else []
        def gap32():
            for it in common + [f'v_mov_b32 {vr(vVA)}, {vr(vKA)}'] + pre2: P(it)
            self.mfma(aO, aP + 4, aP + 4, None)
        at = {32: gap32}
        if L == 2 and o.get('fine'):
            self.stamp(32, 'L2 Kepi'); lg.reset()
            at[12] = lambda: (self.stamp(43, 'L2 q12'), lg.reset()); at[31] = lambda: (self.stamp(51, 'L2 q31'), lg.reset())
        self.main_qpass(L, ACC0, fill, at=at, rate=o['qrate'])
        if o['prio']: self.prio_if(p1)
        self.stamp(5 + sb, f'L{L} preB1')
        P(f's_waitcnt lgkmcnt(0)\ns_barrier')
        P(f's_branch {j1}')
        P.label(f'L_aux_{L}')
        if L > 0:
            self.aux_head(L)
            for op in self.mask_ops(0) + self.mask_ops(1): P(op)
        else:
            self.trickle_setup()
            if o['early']:
                self.lds_wait(C_CS, 8, 1)
                for _ in range(o['early']): self.trickle()
            if o['clr']:
                self.hello_check()
                if o['clr'] == 1: self.clear_lines(aO)
            else: self.hello_load()
        P(self.tile_addr(sOWN))
        for it in common + pre2: P(it)
        if o['prio']: self.prio_if(p1)
        self.stamp(5 + sb, f'L{L} preB1')
        P('s_barrier')
        P(f'ds_read_b128 {vr(aQ,4)}, {vr(vKA)} offset:4096')
        P.label(j1)
        l = P.newlabel('Lx')
        P(f's_cmp_eq_u32 {sr(sHAS)}, 0\ns_cbranch_scc1 {l}')
        halo_loads(MODS[o['hm']])
        P.label(l)
        if AT2: self.attn2(CDIAG, lambda: self.mfma(CDIAG, aP, aQ, CDIAG))
        else: self.attn_loop(lambda: self.mfma(aS, aK, aQ, CDIAG))
        P(self.tile_addr(sP2))
        P(f's_sub_u32 {sr(sCNT)}, {sr(sC2)}, {AT2}\ns_mov_b32 {sr(sSTEP)}, 4096')
        if AT2:
            for it in self.v_lanes(): P(it)
        if o['prio'] and not o['p1']: self.prio_if(f's_cmp_lt_u32 {sr(sQT)}, 2')
        self.stamp(6 + sb, f'L{L} own attn')
        lp = P.newlabel('Lhalo'); ck = P.newlabel('Lhchk'); dn = P.newlabel('Lhdone')
        nh = P.newlabel('Lnh')
        P(f's_cmp_eq_u32 {sr(sHAS)}, 0\ns_cbranch_scc1 {nh}\nv_add_u32 {vr(vT0)}, {sr(sHL)}, {vr(vL16)}\ns_branch {ck}')
        P.label(lp)
        halo_loads()
        P.label(ck)
        for t_, R in ((0, aS), (1, CDIAG)):
            P(f's_waitcnt vmcnt({5-5*t_})')
            for f in range(4): P(f'ds_read_b128 {vr(R+4*f,4)}, {vr(vT0)} offset:{(4*t_+f)*1024}')
        for t_, R in ((0, aS), (1, CDIAG)):
            cs = self.checksum(68 + t_, R, 16)
            for f in range(4):
                P(f's_waitcnt lgkmcnt({7-4*t_-f})'); P(cs[2*f]); P(cs[2*f + 1])
            P(f'v_cmp_ne_u32 {sr(sM+2*t_,2)}, {vr(65+t_)}, {vr(68+t_)}')
        P(f's_or_b64 {sr(sM,2)}, {sr(sM,2)}, {sr(sM+2,2)}\ns_cbranch_scc0 {dn}')
        self.retry_tail(lp, dn)
        self.stamp(7 + sb, f'L{L} halo ok')
        P.label(nh)
        if L == 0: P(f's_cmp_lg_u32 {sr(sHS)}, 0\ns_cbranch_scc1 {ax2}')
        if L == 0:
            if not o['xst']:
                self.rowmajor_addr(182, 183, sT0)
                P(f'buffer_load_dwordx4 {vr(XRES,4)}, v182, {sr(sX0,4)}, {sr(sT0)} offen\nbuffer_load_dwordx4 {vr(XRES+4,4)}, v182, {sr(sX0,4)}, {sr(sT0)} offen offset:32')
            self.wphi_load(170)
            P(f's_branch {j2}'); P.label(ax2)
            P('s_waitcnt vmcnt(0) lgkmcnt(0)')
            if not o['clr']: self.hello_check()
            if o['pfb'] == 2: self.coop_prefetch(1, 1)
            if o['clr']:
                P(f"""s_mov_b64 exec, 3
v_mul_u32_u24 v5, {OFF_OFLAG - OFF_XFLAG - 0x2000}, {vr(vLANE)}
s_add_u32 {sr(sT1)}, {sr(sXF)}, {OFF_XFLAG + 0x2000}
buffer_load_dword v26, v5, {sr(sWS,4)}, {sr(sT1)} offen sc1
s_mov_b64 exec, -1""")
            elif o['touch']:
                P(f"""v_lshlrev_b32 v5, 3, {vr(vL16)}
v_and_b32 v5, 0x780, v5
s_add_u32 {sr(sT0)}, {sr(sXW)}, {OFF_O}
s_add_u32 {sr(sT1)}, {sr(sSW)}, {OFF_ST}
s_mov_b64 exec, 0xffff
buffer_load_dword v26, v5, {sr(sWS,4)}, {sr(sT0)} offen sc1
buffer_load_dword v26, v5, {sr(sOut,4)}, {sr(sXW)} offen sc1
s_mov_b64 exec, 3
buffer_load_dword v26, v5, {sr(sWS,4)}, {sr(sT1)} offen sc1
v_mul_u32_u24 v5, {OFF_OFLAG - OFF_XFLAG - 0x2000}, {vr(vLANE)}
s_add_u32 {sr(sT1)}, {sr(sXF)}, {OFF_XFLAG + 0x2000}
buffer_load_dword v26, v5, {sr(sWS,4)}, {sr(sT1)} offen sc1
s_mov_b64 exec, -1""")
        P.label(j2)
        lskip = P.newlabel('Lnohalo'); l1 = P.newlabel('Lr1'); l2 = P.newlabel('Lr2')
        EA = o['ea'] if L else 0
        if EA:
            for op in self.hint_prep(70, L): P(op)
        P('s_waitcnt lgkmcnt(0)\ns_barrier')
        if L == 0 and not self.force_safe: P(f'ds_read_b32 {vr(vPD)}, {vr(vCNT)} offset:44')
        self.stamp(8 + sb, f'L{L} B2')
        if L == 0 and o['bq']:
            lb = P.newlabel('Lx')
            P(f's_cmp_lg_u32 {sr(sHS)}, 0\ns_cbranch_scc1 {lb}')
            if 1:
                P(f"""v_lshrrev_b32 v184, 2, {vr(vLANE)}
v_mul_u32_u24 v184, 3072, v184
v_and_b32 v185, 48, {vr(vL16)}
s_lshl_b32 {sr(sT0)}, {sr(sC)}, 6
v_add3_u32 v184, v184, v185, {sr(sT0)}
s_lshl_b32 {sr(sT2)}, {sr(sROT)}, 1
s_add_u32 {sr(sT2)}, {sr(sT2)}, {sr(sMT)}
s_lshl_b32 {sr(sT2)}, {sr(sT2)}, 15""")
                for st in range(4):
                    P(f's_and_b32 {sr(sT2)}, {sr(sT2)}, 0x7ffff\ns_mul_i32 {sr(sT0)}, {sr(sT2)}, 3\ns_add_u32 {sr(sT3)}, {sr(sT0)}, 49152')
                    P(f'buffer_load_dwordx4 {vr(224+8*st,4)}, v184, {sr(sWB,4)}, {sr(sT0)} offen\nbuffer_load_dwordx4 {vr(228+8*st,4)}, v184, {sr(sWB,4)}, {sr(sT3)} offen')
                    if st < 3: P(f's_add_u32 {sr(sT2)}, {sr(sT2)}, 0x20000')
            P.label(lb)
        P(f's_cmp_eq_u32 {sr(sR)}, 0\ns_cbranch_scc1 {lskip}')
        def first():
            P(f's_cmp_eq_u32 {sr(sR)}, 1\ns_cbranch_scc1 {l1}')
            self.mfma(CFIRST if AT2 else aS, aP if AT2 else aK, aQ, CFIRST)
            P(f's_branch {l2}'); P.label(l1)
            self.mfma(CFIRST if AT2 else aS, aP if AT2 else aK, aQ, None)
            P.label(l2)
        if AT2: self.attn2(CFIRST, first, trickle=(L == 0))
        else: self.attn_loop(first, trickle=(L == 0))
        P.label(lskip)
        if AT2:
            P('s_waitcnt lgkmcnt(1)'); self.mfma(aO, VV + 4, aP + 4, aO)
        if EA == 1: self.hint(70, sK1)
        if L == 0 and not self.force_safe: P(f's_waitcnt lgkmcnt(0)\nv_readfirstlane_b32 {sr(sFAST)}, {vr(vPD)}')
        self.stamp(9 + sb, f'L{L} attn')
        P(f'v_subrev_u32 {vr(vT0)}, {f2u(2.0**-SAFE_EXP):#x}, {vr(aO+8)}\nv_cmp_le_u32 vcc, {f2u(2.0**SAFE_EXP) - f2u(2.0**-SAFE_EXP):#x}, {vr(vT0)}\ns_cbranch_vccnz L_fb_{L}')
        P.label(f'L_fbr_{L}')
        if EA == 2: self.hint(70, sK1)
        self.publish_o(L, aO, 0)
        if o['prio']: P('s_setprio 0')
        self.lds_signal(C_ATT)
        self.stamp(10 + sb, f'L{L} opub')
        P(f's_cmp_lg_u32 {sr(sHS)}, 0\ns_cbranch_scc1 {ax3}')
        if o['fpr']:
            l = P.newlabel('Lx')
            P(f's_cmp_lt_u32 {sr(sMT)}, 2\ns_cbranch_scc1 {l}\ns_setprio {o["fpr"]}'); P.label(l)
        self.main_outproj(L)
        P(f's_branch L_main_{L+1}')
        P.label(ax3)
        self.aux_tail(L)
        self.stamp(13 + sb, f'L{L} xpub')
        P(f's_branch L_aux_{L+1}')

    def attn_fallback(self, L):
        P = self.P; M = vT0
        pk = lambda d, e: f'v_cvt_pk_bf16_f32 {vr(d)}, {vr(e)}, {vr(e+1)}'
        P.label(f'L_fb_{L}')
        P(f's_waitcnt lgkmcnt(0)\nv_mov_b32 {vr(M)}, 0xff800000')
        for op in self.mask_ops(0) + self.mask_ops(1): P(op)
        for ps in range(2):
            for seg in range(2):
                lp = P.newlabel('Lfb'); nx = P.newlabel('Lfbn'); nm = P.newlabel('Lfbm')
                if seg == 0:
                    P(self.tile_addr(sOWN))
                    P(f's_add_u32 {sr(sCNT)}, {sr(sQT)}, 1\ns_mov_b32 {sr(sSTEP)}, {-OWN_ST}')
                    for i in range(16): P(f'v_mov_b32 {vr(aS+i)}, {vr(CDIAG+i)}')
                else:
                    P(f's_cmp_eq_u32 {sr(sR)}, 0\ns_cbranch_scc1 {nx}')
                    P(self.tile_addr(sP2))
                    P(f's_mov_b32 {sr(sCNT)}, {sr(sC2)}\ns_mov_b32 {sr(sSTEP)}, 4096\ns_cmp_eq_u32 {sr(sR)}, 1\ns_cbranch_scc1 {lp}')
                    for i in range(16): P(f'v_mov_b32 {vr(aS+i)}, {vr(CFIRST+i)}')
                P.label(lp)
                P(f'ds_read_b128 {vr(aK,4)}, {vr(vKA)}')
                if ps:
                    P(f's_mov_b64 exec, {sr(sLO,2)}\nds_read_b128 {vr(VV,4)}, {vr(vVA)} offset:2048\nds_read_b128 {vr(VV+4,4)}, {vr(vVA)} offset:3072\ns_mov_b64 exec, -1')
                P('s_waitcnt lgkmcnt(0)')
                self.mfma(aS, aK, aQ, aS)
                if ps == 0:
                    for i in range(0, 16, 2): P(f'v_max3_f32 {vr(M)}, {vr(M)}, {vr(aS+i)}, {vr(aS+i+1)}')
                else:
                    for i in range(16): P(f'v_sub_f32 {vr(aS+i)}, {vr(aS+i)}, {vr(M)}')
                    for i in range(16): P(f'v_exp_f32 {vr(aS+i)}, {vr(aS+i)}')
                    for p in range(8): P(pk(aP + p, aS + 2*p))
                    self.mfma(aO, VV, aP, aO)
                    self.mfma(aO, VV + 4, aP + 4, aO)
                for i in range(16): P(f'v_mov_b32 {vr(aS+i)}, 0')
                P(f'v_add_u32 {vr(vKA)}, {sr(sSTEP)}, {vr(vKA)}\nv_add_u32 {vr(vVA)}, {sr(sSTEP)}, {vr(vVA)}')
                P(f's_sub_u32 {sr(sCNT)}, {sr(sCNT)}, 1\ns_cmp_lg_u32 {sr(sCNT)}, 0\ns_cbranch_scc1 {lp}')
                P.label(nx)
            if ps == 0:
                P(f'v_mov_b32 {vr(vPD)}, {vr(M)}\nv_permlane32_swap_b32 {vr(vPD)}, {vr(M)}\nv_max_f32 {vr(M)}, {vr(M)}, {vr(vPD)}')
        P(f's_branch L_fbr_{L}')

    def softmax16(self, dst, t, inject=None, start=0, step=1, pk=True):
        if inject is None: return self.softmax16_(dst, t, self.P, pk)
        ops = []
        self.softmax16_(dst, t, lambda x: ops.extend(x.split('\n')))
        inject = list(inject)
        for i, op in enumerate(ops):
            if i >= start and (i - start) % step == 0 and inject: self.P(inject.pop(0))
            self.P(op)
        for x in inject: self.P(x)

    def softmax16_(self, dst, t, P, pk=True):
        A = ACC0
        P(f'v_max3_f32 {vr(t)}, {vr(A)}, {vr(A+1)}, {vr(A+2)}\nv_max3_f32 {vr(t+1)}, {vr(A+3)}, {vr(A+4)}, {vr(A+5)}')
        P(f'v_max3_f32 {vr(t+2)}, {vr(A+6)}, {vr(A+7)}, {vr(A+8)}\nv_max3_f32 {vr(t+3)}, {vr(A+9)}, {vr(A+10)}, {vr(A+11)}')
        P(f'v_max3_f32 {vr(t)}, {vr(t)}, {vr(A+12)}, {vr(A+13)}\nv_max3_f32 {vr(t+1)}, {vr(t+1)}, {vr(A+14)}, {vr(A+15)}')
        P(f'v_max3_f32 {vr(t)}, {vr(t)}, {vr(t+2)}, {vr(t+3)}\nv_max_f32 {vr(t)}, {vr(t)}, {vr(t+1)}')
        P(f'v_mul_f32 {vr(t)}, {vr(vRSTD)}, {vr(t)}')
        if not pk:
            for i in range(4): P(f'v_fma_f32 {vr(A+i)}, {vr(A+i)}, {vr(vRSTD)}, -{vr(t)}')
            for i in range(16):
                P(f'v_exp_f32 {vr(A+i)}, {vr(A+i)}')
                if i + 4 < 16: P(f'v_fma_f32 {vr(A+i+4)}, {vr(A+i+4)}, {vr(vRSTD)}, -{vr(t)}')
                if i in (3, 4): P(f'v_add_f32 {vr(t+i-1)}, {vr(A+i-3)}, {vr(A+i-1)}')
                if i >= 5: P(f'v_add_f32 {vr(t+2+(i+1)%2)}, {vr(t+2+(i+1)%2)}, {vr(A+i-1)}')
            P(f'v_add_f32 {vr(t+3)}, {vr(t+3)}, {vr(A+15)}\nv_add_f32 {vr(t+2)}, {vr(t+2)}, {vr(t+3)}\nv_rcp_f32 {vr(t)}, {vr(t+2)}')
            for i in range(16): P(f'v_mul_f32 {vr(A+i)}, {vr(t)}, {vr(A+i)}')
            for p in range(8): P(f'v_cvt_pk_bf16_f32 {vr(dst+p)}, {vr(A+2*p)}, {vr(A+2*p+1)}')
            return
        fm = lambda p: f'v_pk_fma_f32 {vr(A+2*p,2)}, {vr(A+2*p,2)}, {vr(vRSTD,2)}, {vr(t,2)} op_sel_hi:[1,0,0] neg_lo:[0,0,1] neg_hi:[0,0,1]'
        P(fm(0)); P(fm(1))
        for p in range(8):
            P(f'v_exp_f32 {vr(A+2*p)}, {vr(A+2*p)}')
            if p + 2 < 8: P(fm(p + 2))
            P(f'v_exp_f32 {vr(A+2*p+1)}, {vr(A+2*p+1)}')
            if p == 2: P(f'v_pk_add_f32 {vr(t+2,2)}, {vr(A,2)}, {vr(A+2,2)}')
            if p >= 3: P(f'v_pk_add_f32 {vr(t+2,2)}, {vr(t+2,2)}, {vr(A+2*p-2,2)}')
        P(f'v_pk_add_f32 {vr(t+2,2)}, {vr(t+2,2)}, {vr(A+14,2)}\nv_add_f32 {vr(t+2)}, {vr(t+2)}, {vr(t+3)}\nv_rcp_f32 {vr(t)}, {vr(t+2)}')
        for p in range(8): P(f'v_pk_mul_f32 {vr(A+2*p,2)}, {vr(A+2*p,2)}, {vr(t,2)} op_sel_hi:[1,0]')
        for p in range(8): P(f'v_cvt_pk_bf16_f32 {vr(dst+p)}, {vr(A+2*p)}, {vr(A+2*p+1)}')

    def layerB(self, L):
        P = self.P; Lb = L // 2; sb = L * 14; o = self.o; lg = self.lg
        j0 = f'L_j0_{L}'; j1 = f'L_j1_{L}'; j2 = f'L_j2_{L}'; ax1 = f'L_ax1_{L}'; ax1b = f'L_ax1b_{L}'; ax3 = f'L_ax3_{L}'; axz = f'L_axz_{L}'
        KA, KV_ = 48, 96
        vA16, vA4, vAW, vAO = 96, 97, 98, 99
        P.label(f'L_main_{L}')
        vt = self.main_kv(L)
        if o['fpr']: P('s_setprio 0')
        self.stamp(3 + sb, f'L{L} kvpass')
        P(waitstr(lg=lg.need('rt')))
        vt()
        for p in (4, 5, 6, 7): P(f'v_cvt_pk_bf16_f32 {vr(PKV+p)}, {vr(ACC0+2*p)}, {vr(ACC0+2*p+1)}')
        P(f'ds_write_b128 {vr(vKA)}, {vr(PKV+4,4)} offset:1024'); lg.issue('kb', 2 if o['pw1'] else 1)
        PW = o['pw1']
        if PW:
            o['vpre'] = 2
            P(f'ds_write_b32 {vr(PKV+8)}, {vr(PKV+9)} offset:{4*C_ST}')
        vt()
        for p in (0, 1, 2, 3): P(f'v_cvt_pk_bf16_f32 {vr(PKV+p)}, {vr(ACC0+2*p)}, {vr(ACC0+2*p+1)}')
        vmul = lambda p: f'v_pk_mul_f32 {vr(ACC1+2*p,2)}, {vr(ACC1+2*p,2)}, {vr(STAT+2*p,2)}'
        if o['vlag']:
            vt(99)
            self.mfma(ACC0, WPHI, PKV, None)
            for i in range(16): P(f'v_mul_f32 {vr(ACC1+i)}, {vr(STAT+i)}, {vr(ACC1+i)}')
        else:
            P(vmul(0)); P(vmul(1))
            self.mfma(ACC0, WPHI, PKV, None)
            for p in range(2, 8): P(vmul(p))
        if o['vpre'] != 1 and not PW: P('s_waitcnt lgkmcnt(0)\ns_barrier')
        for f in range(2, 4):
            for p in range(4*f - 8, 4*f - 4): P(f'v_cvt_pk_bf16_f32 {vr(PKV+8+p)}, {vr(ACC1+2*p)}, {vr(ACC1+2*p+1)}')
            P(f'ds_write_b128 {vr(vKA)}, {vr(PKV+4*f,4)} offset:{f*1024}')
        if o['vpre'] == 1: P('s_waitcnt lgkmcnt(0)\ns_barrier')
        P(f's_branch {j0}')
        P.label(f'L_aux_{L}')
        self.aux_head(L)
        for i in range(32): P(f'v_mov_b32 {vr(KV_+i)}, {vr(ONES)}')
        P(f"""v_lshrrev_b32 v91, 5, {vr(vLANE)}
v_bfe_u32 v88, {vr(vLANE)}, 2, 2
v_lshl_add_u32 v88, v91, 2, v88
v_lshlrev_b32 v88, 5, v88
v_and_b32 v89, 1, {vr(vLANE)}
v_lshl_add_u32 v88, v89, 4, v88
v_bfe_u32 v89, {vr(vLANE)}, 4, 1
v_lshl_add_u32 v88, v89, 12, v88
v_bfe_u32 v89, {vr(vLANE)}, 1, 1
v_lshl_add_u32 v88, v89, 3, v88
s_lshl_b32 {sr(sT0)}, {sr(sMT)}, 10
s_add_u32 {sr(sT0)}, {sr(sT0)}, {LDS_OWN}
v_add_u32 v88, {sr(sT0)}, v88
s_lshl_b32 {sr(sT1)}, {sr(sMT)}, 8
v_xor_b32 v90, {sr(sT1)}, {vr(vL16)}
v_add_u32 v89, {LDS_OWN}, v90
s_lshl_b32 {sr(sT0)}, {sr(sMT)}, 1
v_add_u32 v91, {sr(sT0)}, v91
v_and_b32 v92, 31, {vr(vLANE)}
v_mov_b32 v93, {OOB >> 4:#x}
v_cmp_eq_u32 vcc, 16, v92
v_cndmask_b32 v91, v93, v91, vcc
v_lshrrev_b32 v92, 8, v90
v_mul_u32_u24 v92, {KP_Q}, v92
v_and_b32 v93, 15, {vr(vLANE)}
v_lshl_add_u32 v90, v93, 4, v92
v_lshl_add_u32 v92, v93, 2, v92
v_lshlrev_b32 v93, 4, v91
v_add_u32 v93, {KP_Z}, v93
v_lshlrev_b32 v91, 4, v91
v_add_u32 v91, 64, v91
v_cndmask_b32 v91, v91, v92, {sr(sLO,2)}
v_cndmask_b32 v90, v93, v90, {sr(sLO,2)}
v_add_u32 v93, 64, v93
v_add_u32 v92, 256, v90
v_cndmask_b32 v93, v93, v92, {sr(sLO,2)}
s_lshl_b32 {sr(sK2)}, {sr(sC)}, 4
s_add_u32 {sr(sK2)}, {sr(sK2)}, {sr(sR)}
s_mul_i32 {sr(sK2)}, {sr(sK2)}, {KP_REC}
s_add_u32 {sr(sK2)}, {sr(sK2)}, {OFF_KP + Lb*KP_L}""")
        P(self.tile_addr(sOWN))
        for op in self.phi_addr(): P(op)
        P(f's_lshl_b32 {sr(sT0)}, {sr(sQT)}, 7\ns_add_u32 {sr(sT0)}, {sr(sT0)}, {LDS_RSTD}\nv_and_b32 v25, 124, {vr(vL4)}\nv_add_u32 v25, {sr(sT0)}, v25')
        self.stamp(3 + sb, f'L{L} kvpass')
        if PW:
            lw = P.newlabel('Lpw')
            P(f's_lshl_b32 {sr(sT0)}, {sr(sQT)}, 2\nv_add_u32 v26, {sr(sT0)}, {vr(vCNT)}')
            P.label(lw)
            if o['pws']: P(f's_sleep {o["pws"]}')
            P(f'ds_read_b32 {vr(vPD)}, v26 offset:{4*C_ST}\nds_read_b128 {vr(RING+8,4)}, {vr(vKA)}\nds_read_b32 {vr(vRSTD)}, v25\ns_waitcnt lgkmcnt(1)')
            P(f'v_cmp_gt_u32 vcc, {5 + Lb}, {vr(vPD)}\ns_cbranch_vccnz {lw}')
        else:
            P('s_barrier')
            P(f'ds_read_b128 {vr(RING+8,4)}, {vr(vKA)}\nds_read_b32 {vr(vRSTD)}, v25\ns_waitcnt lgkmcnt(1)')
        self.mfma(ACC0, WPHI, RING + 8, None)
        P(f's_waitcnt lgkmcnt(0)\nv_mul_f32 {vr(vRSTD)}, {sr(sLOG2E)}, {vr(vRSTD)}')
        vrd = [f'ds_read_b128 {vr(KV_+4*st,4)}, v89 offset:{(st>>1)*OWN_ST + 2048 + (st&1)*1024}' for st in range(8)]
        if o['vpre'] == 1:
            P(f's_mov_b64 exec, {sr(sLO,2)}')
            for x in vrd: P(x)
            P('s_mov_b64 exec, -1')
        else: P('s_nop 7')
        jw = P.newlabel('Lpw')
        if PW == 1:
            P(f's_cmp_ge_u32 {sr(sQT)}, 2\ns_cbranch_scc1 {j0}')
            self.stamp(4 + sb, f'L{L} B1a')
            self.softmax16(RING, RING + 12, pk=False)
            P(f's_branch {jw}')
        P.label(j0)
        self.stamp(4 + sb, f'L{L} B1a')
        self.softmax16(RING, RING + 12)
        P.label(jw)
        P(f'ds_write_b128 {vr(vVA)}, {vr(RING,4)}\nds_write_b128 {vr(vVA)}, {vr(RING+4,4)} offset:4096\ns_waitcnt lgkmcnt(0)\ns_barrier')
        self.stamp(5 + sb, f'L{L} B1b')
        common = self.publish_o_addr(L) + f"""s_mul_i32 {sr(sH1)}, {sr(sC)}, {16*KP_REC}
s_add_u32 {sr(sH1)}, {sr(sH1)}, {OFF_KP + Lb*KP_L}
s_mov_b32 {sr(sSEL0)}, 0x3f80
s_mov_b32 {sr(sSEL1)}, 0x3f800000
s_lshl_b32 {sr(sT0)}, {sr(sHS)}, 4
v_xor_b32 {vr(vAO)}, {sr(sT0)}, {vr(vLANE)}
v_lshlrev_b32 {vr(vAO)}, 5, {vr(vAO)}
v_add_u32 {vr(vAO)}, {LDS_KVT}, {vr(vAO)}
v_and_b32 v100, 32, {vr(vLANE)}
s_lshl_b32 {sr(sT0)}, {sr(sHS)}, 6
s_add_u32 {sr(sT0)}, {sr(sT0)}, {LDS_ZT}
v_add_u32 v100, {sr(sT0)}, v100
v_cndmask_b32 {vr(vAO)}, v100, {vr(vAO)}, {sr(sLO,2)}""".split('\n')
        SEL = 104
        addr_main = f"""s_mul_i32 {sr(sH2)}, {sr(sMT)}, {KP_Q}
s_add_u32 {sr(sH2)}, {sr(sH2)}, {sr(sH1)}
v_lshrrev_b32 v100, 4, {vr(vLANE)}
v_and_b32 v101, 15, {vr(vLANE)}
v_mul_u32_u24 {vr(vA16)}, {KP_REC}, v100
v_lshl_add_u32 {vr(vA4)}, v101, 2, {vr(vA16)}
v_lshl_add_u32 {vr(vA16)}, v101, 4, {vr(vA16)}
s_lshl_b32 {sr(sT0)}, {sr(sMT)}, 9
s_add_u32 {sr(sT0)}, {sr(sT0)}, {LDS_KVT}
v_lshl_add_u32 {vr(vAW)}, v101, 5, {sr(sT0)}
v_lshl_add_u32 {vr(vAW)}, v100, 3, {vr(vAW)}
v_lshlrev_b32 v100, 4, {vr(vLANE)}
v_lshlrev_b32 v100, v100, {sr(sSEL0)}
v_lshrrev_b32 v101, 1, v101""".split('\n')
        for r_ in range(8): addr_main += [f'v_cmp_eq_u32 vcc, {r_}, v101\nv_cndmask_b32 {vr(SEL+r_)}, 0, v100, vcc']
        addr_z = f"""v_lshrrev_b32 v102, 4, {vr(vLANE)}
v_mul_u32_u24 {vr(vA16)}, {KP_REC}, v102
v_bfe_u32 v100, {vr(vLANE)}, 3, 1
v_and_b32 v101, 1, {vr(vLANE)}
v_lshl_add_u32 v100, v100, 1, v101
v_bfe_u32 v101, {vr(vLANE)}, 1, 2
v_mul_u32_u24 {vr(vA4)}, {4*KP_REC}, v100
v_add_u32 {vr(vA4)}, {vr(vA4)}, {vr(vA16)}
v_lshl_add_u32 {vr(vA4)}, v101, 4, {vr(vA4)}
v_lshlrev_b32 {vr(vAW)}, 5, v101
v_lshl_add_u32 {vr(vAW)}, v100, 3, {vr(vAW)}
v_lshl_add_u32 {vr(vAW)}, v102, 1, {vr(vAW)}
v_add_u32 {vr(vAW)}, {LDS_ZT}, {vr(vAW)}
v_and_b32 v100, 15, {vr(vLANE)}
v_lshl_add_u32 {vr(vA16)}, v100, 3, {vr(vA16)}""".split('\n')
        A = ACC1; KD = 128; T = A + 4
        def loads_main(P=P, m=' sc1'):
            P(f's_mov_b32 {sr(sT0)}, {sr(sH2)}')
            for it in range(4):
                D = KD + 12*it
                P(f'buffer_load_dwordx4 {vr(D,4)}, {vr(vA16)}, {sr(sWS,4)}, {sr(sT0)} offen{m}\nbuffer_load_dwordx4 {vr(D+4,4)}, {vr(vA16)}, {sr(sWS,4)}, {sr(sT0)} offen offset:256{m}')
                P(f'buffer_load_dword {vr(D+8)}, {vr(vA4)}, {sr(sWS,4)}, {sr(sT0)} offen offset:512{m}')
                if it < 3: P(f's_add_u32 {sr(sT0)}, {sr(sT0)}, {4*KP_REC}')
        def accum(D, first, t0):
            P(f'v_add3_u32 {vr(T)}, {t0 if first else vr(T)}, {vr(D)}, {vr(D+1)}')
            for k in range(2):
                if first: P(f'v_lshlrev_b32 {vr(A+2*k)}, 16, {vr(D+k)}\nv_and_b32 {vr(A+2*k+1)}, 0xffff0000, {vr(D+k)}')
                else: P(f'v_dot2_f32_bf16 {vr(A+2*k)}, {vr(D+k)}, {sr(sSEL0)}, {vr(A+2*k)}\nv_dot2_f32_bf16 {vr(A+2*k+1)}, {vr(D+k)}, {sr(sSEL1)}, {vr(A+2*k+1)}')
        dpp = lambda c: f'v_add_u32_dpp {vr(T)}, {vr(T)}, {vr(T)} {c} row_mask:0xf bank_mask:0xf'
        P(f's_cmp_lg_u32 {sr(sHS)}, 0\ns_cbranch_scc1 {ax1}')
        lg.reset()
        self.q_prefetch(L)
        fill = [('ds', 'cs', f'ds_read_b128 {vr(WEXTQ,4)}, {vr(vT0)}')] + common
        fill += addr_main
        fill += self.wext_items(WEXTQ, 'cs')
        self.main_qpass(L, ACC1, fill, pre_write=lambda: P('s_barrier'), rate=2)
        self.mfma(ACC0, WPHI, aQ, None)
        P('s_waitcnt lgkmcnt(0)\ns_barrier')
        if o['kp_at'] == 1: loads_main()
        if o['kp_at'] >= 2:
            inj = []; loads_main(lambda x: inj.extend(x.split('\n')))
            self.softmax16(PHQ, RING + 12, inj, o['kp_at'], o['kp_step'])
            self.stamp(6 + sb, f'L{L} phiq / kp stored')
            P(f's_branch L_kpc_{L}')
        else: P(f's_branch {j1}')
        P.label(ax1)
        P(f's_cmp_ge_u32 {sr(sMT)}, 2\ns_cbranch_scc1 {ax1b}\ns_setprio 3')
        if o['vpre'] == 2:
            P(f's_mov_b64 exec, {sr(sLO,2)}')
            for x in vrd: P(x)
            P('s_mov_b64 exec, -1')
        n_ = 2 if o['vpre'] else 3
        for st in range(8):
            of = (st >> 1)*OWN_ST + (st & 1)*512
            P(f'ds_read_b64_tr_b16 {vr(KA+4*st,2)}, v88 offset:{of}\nds_read_b64_tr_b16 {vr(KA+2+4*st,2)}, v88 offset:{of+256}')
            if not o['vpre']: P(f's_mov_b64 exec, {sr(sLO,2)}\n{vrd[st]}\ns_mov_b64 exec, -1')
            if st >= 3:
                P(f's_waitcnt lgkmcnt({3*n_})'); self.mfma(ACC0, KA + 4*(st-3), KV_ + 4*(st-3), None if st == 3 else ACC0)
        for st in range(5, 8):
            P(f's_waitcnt lgkmcnt({n_*(7-st)})'); self.mfma(ACC0, KA + 4*st, KV_ + 4*st, ACC0)
        for p in range(8): P(f'v_cvt_pk_bf16_f32 {vr(80+p)}, {vr(ACC0+2*p)}, {vr(ACC0+2*p+1)}')
        P(f'buffer_store_dwordx4 v[80:83], v90, {sr(sWS,4)}, {sr(sK2)} offen{MODS[o["sm"]]}\nbuffer_store_dwordx4 v[84:87], v93, {sr(sWS,4)}, {sr(sK2)} offen{MODS[o["sm"]]}')
        for op in self.checksum(92, 80, 8): P(op)
        P(f'buffer_store_dword v92, v91, {sr(sWS,4)}, {sr(sK2)} offen offset:512{MODS[o["sm"]]}')
        self.stamp(6 + sb, f'L{L} phiq / kp stored')
        P('s_setprio 0')
        P.label(ax1b)
        if L == 1: self.dma_w(1, ('o',))
        for it in common + addr_z: P(it)
        P('s_barrier\ns_barrier')
        P(f'ds_read_b128 {vr(aQ,4)}, {vr(vKA)} offset:4096\ns_waitcnt lgkmcnt(0)')
        self.mfma(ACC0, WPHI, aQ, None)
        P('s_nop 11')
        P.label(j1)
        self.softmax16(PHQ, RING + 12)
        if o['kp_at'] >= 2: P(f's_branch {axz}')
        else:
            P(f's_cmp_lg_u32 {sr(sHS)}, 0\ns_cbranch_scc1 {axz}')
            self.stamp(6 + sb, f'L{L} phiq / kp stored')
        lp = P.newlabel('Lkp'); ck = f'L_kpc_{L}'; dn = P.newlabel('Lkpd')
        if o['kp_at'] == 0 and o['km'] != 1: loads_main(m=MODS[o['km']])
        if o['kp_at'] == 1 or (o['kp_at'] == 0 and o['km'] != 1): P(f's_branch {ck}')
        P.label(lp)
        loads_main()
        P.label(ck)
        for it in range(4):
            D = KD + 12*it; cs = self.checksum(D + 9, D, 8)
            P(f's_waitcnt vmcnt({10 - 3*it})')
            for hf in range(2):
                P(f'v_mfma_f32_16x16x32_bf16 {vr(A,4)}, {vr(SEL+4*hf,4)}, {vr(D+4*hf,4)}, {"0" if it + hf == 0 else vr(A,4)}')
            for op in cs: P(op)
            P(f's_waitcnt vmcnt({9 - 3*it})\nv_cmp_ne_u32 {sr(sM+2*it,2)}, {vr(D+8)}, {vr(D+9)}')
            if it == 2: P(f's_or_b64 {sr(sM,2)}, {sr(sM,2)}, {sr(sM+2,2)}')
            if it == 3: P(f's_or_b64 {sr(sM,2)}, {sr(sM,2)}, {sr(sM+4,2)}')
        P(f'v_cvt_pk_bf16_f32 v68, {vr(A)}, {vr(A+1)}\nv_cvt_pk_bf16_f32 v69, {vr(A+2)}, {vr(A+3)}\nds_write_b64 {vr(vAW)}, v[68:69]')
        P(f's_or_b64 {sr(sM,2)}, {sr(sM,2)}, {sr(sM+6,2)}\ns_cbranch_scc0 {dn}')
        self.retry_tail(lp, dn)
        self.stamp(7 + sb, f'L{L} kp ok')
        P(f's_branch {j2}')
        P.label(axz)
        if L == 1:
            P('s_waitcnt vmcnt(0)')
        P(f's_cmp_lg_u32 {sr(sMT)}, 2\ns_cbranch_scc1 {j2}')
        lp = P.newlabel('Lkz'); dn = P.newlabel('Lkzd'); D = 32
        P.label(lp)
        P(f's_mov_b32 {sr(sT0)}, {sr(sH1)}\nbuffer_load_dword {vr(D+8)}, {vr(vA4)}, {sr(sWS,4)}, {sr(sT0)} offen offset:576 sc1')
        for it in range(4):
            P(f'buffer_load_dwordx2 {vr(D+2*it,2)}, {vr(vA16)}, {sr(sWS,4)}, {sr(sT0)} offen offset:{KP_Z} sc1')
            if it < 3: P(f's_add_u32 {sr(sT0)}, {sr(sT0)}, {4*KP_REC}')
        for it in range(4):
            P(f's_waitcnt vmcnt({3 - it})')
            accum(D + 2*it, it == 0, sr(sTAG))
            if it == 0: P(f'v_sub_u32 {vr(T)}, {vr(T)}, {vr(D+8)}')
        P(dpp('quad_perm:[1,0,3,2]'))
        P(f'v_permlane32_swap_b32 {vr(A)}, {vr(A+2)}\nv_permlane32_swap_b32 {vr(A+1)}, {vr(A+3)}')
        P(dpp('row_ror:8'))
        P(f'v_add_f32 {vr(A)}, {vr(A)}, {vr(A+2)}\nv_add_f32 {vr(A+1)}, {vr(A+1)}, {vr(A+3)}\nv_cmp_ne_u32 vcc, 0, {vr(T)}')
        P(f'v_permlane16_swap_b32 {vr(A)}, {vr(A+1)}\nv_add_f32 {vr(A)}, {vr(A)}, {vr(A+1)}\nv_cvt_pk_bf16_f32 v68, {vr(A)}, {vr(A)}\nds_write_b16 {vr(vAW)}, v68')
        P(f's_cbranch_vccz {dn}')
        self.retry_tail(lp, dn)
        P.label(j2)
        P('s_waitcnt lgkmcnt(0)\ns_barrier')
        self.stamp(8 + sb, f'L{L} B2')
        P(f'ds_read_b128 v[68:71], {vr(vAO)}\nds_read_b128 v[72:75], {vr(vAO)} offset:16')
        if o['eb']:
            for op in self.hint_prep(78, L): P(op)
        if o['eb'] == 1: self.hint(78, sK1)
        P('s_waitcnt lgkmcnt(1)')
        self.mfma(ACC0, 68, PHQ, None)
        if o['eb'] == 2: self.hint(78, sK1)
        P('s_waitcnt lgkmcnt(0)')
        self.mfma(ACC0, 72, PHQ + 4, ACC0)
        if o['eb'] == 3: self.hint(78, sK1)
        self.publish_o(L, ACC0, 1e-6)
        self.stamp(10 + sb, f'L{L} opub')
        P(f's_cmp_lg_u32 {sr(sHS)}, 0\ns_cbranch_scc1 {ax3}')
        if o['epr'] and L == 1: self.prio_if(f's_cmp_lt_u32 {sr(sMT)}, 2')
        elif o['mpr']: P(f's_setprio {o["mpr"]}')
        self.main_outproj(L)
        if o['epr'] == 1 and L == 1: self.prio_if(f's_cmp_ge_u32 {sr(sMT)}, 2')
        P(f's_branch L_main_{L+1}')
        P.label(ax3)
        self.aux_tail(L)
        self.stamp(13 + sb, f'L{L} xpub')
        P(f's_branch L_aux_{L+1}')

    def epilogue(self):
        P = self.P; nl = self.nl
        P.label(f'L_main_{nl}')
        P(f's_or_b32 {sr(sT0)}, s2, {sr(sW)}\ns_cmp_lg_u32 {sr(sT0)}, 0\ns_cbranch_scc1 L_aux_{nl}\ns_mov_b32 {sr(sT2)}, 0')
        self.flag(sT2, sTAG, False)
        P.label(f'L_aux_{nl}')
        if self.stamps:
            P('s_waitcnt vmcnt(0)')
            self.stamp(62, 'end')
            P(f's_memtime {sr(sST,2)}\ns_waitcnt lgkmcnt(0)\ns_sub_u32 {sr(sST)}, {sr(sST)}, s100\nv_writelane_b32 {vr(vSTAMP)}, {sr(sST)}, 59')
            P(f'''v_writelane_b32 {vr(vSTAMP)}, {sr(sBUD)}, 63
v_writelane_b32 {vr(vSTAMP)}, {sr(sFAST)}, 61
v_writelane_b32 {vr(vSTAMP)}, s99, 58
v_writelane_b32 {vr(vSTAMP)}, s101, 56
s_lshl_b32 {sr(sT0)}, s2, 3
s_add_u32 {sr(sT0)}, {sr(sT0)}, {sr(sW)}
s_lshl_b32 {sr(sT0)}, {sr(sT0)}, 8
s_add_u32 {sr(sT0)}, {sr(sT0)}, {OFF_STAMP}
buffer_store_dword {vr(vSTAMP)}, {vr(vL4)}, {sr(sWS,4)}, {sr(sT0)} offen''')
            if self.o.get('dbgst'):
                P(f's_cmp_lg_u32 {sr(sHS)}, 0\ns_cbranch_scc1 L_end\ns_load_dwordx2 s[64:65], s[0:1], 64\nv_mov_b32 v30, 0')
                for j, (idx, neg) in enumerate([(60, 1), (60, 0), (0, 0), (2, 0), (1, 0), (3, 0), (8, 0), (10, 0), (13, 0), (27, 0), (41, 0), (62, 0), (59, 0), (3, 1), (13, 1), (62, 1)]):
                    P(f'v_readlane_b32 s66, {vr(vSTAMP)}, {idx}')
                    if neg: P('s_not_b32 s66, s66')
                    P(f'v_writelane_b32 v30, s66, {j}')
                P('s_waitcnt lgkmcnt(0)')
                self.srd(68, 64, 256)
                P(f's_mov_b64 exec, 0xffff\nbuffer_atomic_umax v30, {vr(vL4)}, s[68:71], 0 offen\ns_waitcnt vmcnt(0)')
        if self.o.get('spin'):
            lp = P.newlabel('Lspin'); P.label(lp)
            P(f's_memrealtime s[66:67]\ns_waitcnt lgkmcnt(0)\ns_sub_u32 s66, s66, s98\ns_cmp_lt_u32 s66, {self.o["spin"]}\ns_cbranch_scc1 {lp}')
        P.label('L_end')
        P('s_endpgm')

    def build(self):
        self.prologue()
        for L in range(self.nl):
            (self.layerA if L % 2 == 0 else self.layerB)(L)
        self.epilogue()
        self.emit_stubs()
        for L in range(0, self.nl, 2): self.attn_fallback(L)
        n = self.P.fix_hazards()
        errs = self.P.check_waits()
        head = open(f'cdna_kernels/{NAME}.s.ref').read().split('; @launch')[0]
        s = head + f'; @launch grid=(256,1,1) block=(512,1,1) lds={LDS_TOTAL}\n'
        s += f'.amdgcn_target "amdgcn-amd-amdhsa--gfx950"\n.text\n.globl {NAME}_kernel\n.p2align 8\n.type {NAME}_kernel,@function\n{NAME}_kernel:\n'
        s += self.P.text().replace('CODE_BYTES', '(L_end - %s_kernel - 1088)' % NAME)
        s += f'''.section .rodata,"a"
.p2align 6
.amdhsa_kernel {NAME}_kernel
  .amdhsa_next_free_vgpr 256
  .amdhsa_next_free_sgpr 102
  .amdhsa_accum_offset 256
  .amdhsa_group_segment_fixed_size 0
  .amdhsa_kernarg_size 80
  .amdhsa_user_sgpr_count 2
  .amdhsa_user_sgpr_kernarg_segment_ptr 1
  .amdhsa_system_sgpr_workgroup_id_x 1
.end_amdhsa_kernel
'''
        return s, n, errs


if __name__ == '__main__':
    import argparse, json
    ap = argparse.ArgumentParser()
    ap.add_argument('-o', default=f'cdna_kernels/{NAME}.s')
    ap.add_argument('--stamps', action='store_true')
    ap.add_argument('--safe', action='store_true')
    ap.add_argument('--cyc', action='store_true')
    ap.add_argument('--opt', nargs='*', default=[])
    ap.add_argument('--noalias', action='store_true')
    ap.add_argument('--nl', type=int, default=4)
    a = ap.parse_args()
    g = Gen(stamps=a.stamps, nlayers=a.nl, force_safe=a.safe, cyc=a.cyc, alias=not a.noalias, opt={k: int(v) for k, v in (x.split('=') for x in a.opt)})
    s, n, errs = g.build()
    open(a.o, 'w').write(s)
    if a.stamps: json.dump(g.stamp_names, open(a.o + '.stamps.json', 'w'))
    print('instructions', sum(1 for x in g.P.L if x.op), 'nops inserted', n, 'lds', LDS_TOTAL)
    for e in errs[:8]: print('WAITCHECK', e)
```

```python
import sys, struct
sys.path.insert(0, 'dev')
from asmlib import *

NAME = 'interleave_layers__sliding_block__linear_kernel_hedgehog__prompt'
def f2u(x): return struct.unpack('<I', struct.pack('<f', x))[0]
LOG2E = 1.4426950408889634

OFF_XFLAG = 0x1000
OFF_OFLAG = 0x9000
OFF_FIN = 0x12000
OFF_STAMP = 0x30000
OFF_ST = 0x100000
OFF_X = 0x200000
OFF_O = 0xA00000
OFF_KV = 0x1200000
KV_REC = 4480; KV_L = 1024*KV_REC
OFF_KP = 0x1B00000
KP_REC = 2688; KP_Q = 640; KP_Z = 2560; KP_L = 256*KP_REC
WS_USED = 0x2000000
OOB = 0x40000000
TAGC = 0x9E3779B0
SAFE_EXP = 30

LDS_WK = 0; LDS_WV = 32768; LDS_WQ = 65536; LDS_T = 65536; LDS_WO = 98304
LDS_OWN = 131072; OWN_ST = 6144
LDS_CSP = LDS_OWN + 4*OWN_ST
LDS_RSTD = LDS_CSP + 3072; LDS_KVT = LDS_RSTD + 512; LDS_ZT = LDS_KVT + 2048
LDS_FAST = LDS_ZT + 128; LDS_CNT = LDS_FAST + 16; LDS_ONES = LDS_FAST + 64; LDS_TOTAL = LDS_ONES + 1040
NT_LDS = {0: LDS_WQ, 1: LDS_WK, 2: LDS_WV, 'o': LDS_WO}
C_ST, C_XDONE, C_WGO, C_CS, C_Q, C_ATT, C_CSQ, C_WR = 0, 4, 5, 6, 7, 8, 9, 10

sWS, sX0, sWA, sWoA, sWB, sWoB, sPhi, sOut = 4, 8, 12, 16, 20, 24, 28, 32
sR, sC, sW, sMT, sHS, sRT, sQT, sTAG, sFAST, sBUD = 36, 37, 38, 39, 40, 41, 42, 43, 44, 45
sT0, sT1, sT2, sT3 = 46, 47, 48, 49
sLO = 50
sOWNF = 52; sCNT = 53; sSTEP = 54; sLOG2E = 55; sST = 56
sROT = 58; sDM = 59; sH0 = 60
sG0 = 62; sPERM = 63
sM = 64
sOW, sOF, sHB, sHAS, sP2, sC2, sOWN, sKVW, sXW, sSW, sXF, sRB = 72, 73, 74, 75, 76, 77, 78, 79, 80, 81, 82, 83
sLA = 86; sDG = 87; sDL = 88; sLB = 89; sLR = 90; sK0 = 91; sK1 = 92; sK2 = 93; sSEL0 = 94; sSEL1 = 95; sH1 = 96; sH2 = 97; sC1008 = 3; sS0 = 3
vT0, vLANE, vL16, vL4, vCNT, vTR1, vTR2, vSTAMP = 0, 1, 2, 3, 4, 5, 6, 7
XRES, WPHI = 8, 16
vDW, vDO, vCH, vCS, ONES = 8, 9, 10, 11, 12
vRSTD, vKA, vVA, vPD, vPA, vRA, vRB, vFD = 20, 21, 22, 23, 24, 25, 26, 27
vCK = vPD; XEXT = 28; ACC0 = 32; ACC1 = 48; RING = 64; WEXTQ = 84; WEXTK = 88; WEXTV = 92; VV = 88
STAT = 96; CDIAG = 96; PKV = 112; CFIRST = 112; XF = 128
aS, aO, aE, aQ, aK, aP, aH = 32, 48, 64, 72, 76, 80, 128
vSTV = 64
PHQ = 112
PARK = {1: 128, 2: 160, 0: 192, 'o': 224}
MFMA = 'v_mfma_f32_32x32x16_bf16'
MODS = ['', ' sc1', ' sc0', ' nt', ' sc0 sc1', ' sc1 nt', ' sc0 sc1 nt']
def cho(u): return (u >> 1)*8192 + (u & 1)*1024
SW4 = ((0, 2), (1, 3), (4, 6), (5, 7))


class Gen:
    def __init__(self, stamps=False, nlayers=4, force_safe=False, cyc=False, alias=True, opt=None):
        self.cyc = cyc; self.alias = alias
        self.o = dict(halo_at=35, prio=2, trunc=1, wgo=2, wgon=2, xd=8, od=10, x0d=3, psleep=1, kp_at=0, spec=0, pw=16, tlb=0, touch=1, b0=0, mcs=1, pre=2, pst=0, trk=3, ool=1, at2=1, qrate=4, omul=1, specx=0, lsleep=2, ev=5, st0=3, wo_at=0, pf=1, pfb=0, psp=0, xst=1, bq=0, early=0, p1=0, o3=1, outm=1, kp_step=2, vpre=1, hm=1, km=1, sm=1, pw1=2, pws=2, il=0, qgo=5, csk=22, wearly=0, apr=1, fpr=0, epr=0, mpr=0, sg=0, od1=10, pp=0, em=0, hx=1, ho=1, hp=1, hs=2, ex=32, ea=2, eb=3, clr=0, vlag=0, vlaga=0, prex=1, preo=1, ev2=11, red=1, rk0=22, rk1=28, own=0, chain=1, rsl=0)
        self.o.update(opt or {})
        self.P = Prog(); self.stamps = stamps; self.nl = nlayers; self.force_safe = force_safe
        self.stamp_names = {}
        self.vm = Tracker(63); self.lg = Tracker(15); self.stubs = []; self.ool = []

    def stamp(self, idx, name=''):
        if not self.stamps: return
        self.stamp_names[idx] = name
        self.P(f'{"s_memtime" if self.cyc else "s_memrealtime"} {sr(sST,2)}\ns_waitcnt lgkmcnt(0)\nv_writelane_b32 {vr(vSTAMP)}, {sr(sST)}, {idx}')

    def al(self, L): return 0 if self.alias else L

    def mfma(self, d, a, b, c):
        cs = '0' if c is None else vr(c, 16)
        self.P(f'{MFMA} {vr(d,16)}, {vr(a,4)}, {vr(b,4)}, {cs}')

    def srd(self, s, ptr, nbytes):
        self.P(f's_mov_b32 {sr(s)}, {sr(ptr)}\ns_and_b32 {sr(s+1)}, {sr(ptr+1)}, 0xffff\ns_mov_b32 {sr(s+2)}, {nbytes}\ns_mov_b32 {sr(s+3)}, 0x20000')

    def poll(self, soff, masked=False, areg=vPA, val=sTAG):
        P = self.P; lp = P.newlabel('Lpoll'); dn = P.newlabel('Lpolld')
        P.label(lp)
        P(f'buffer_load_dword {vr(vPD)}, {vr(areg)}, {sr(sWS,4)}, {sr(soff)} offen sc1\ns_waitcnt vmcnt(0)')
        if masked:
            P(f'v_and_b32 {vr(vT0)}, -16, {vr(vPD)}\nv_cmp_ne_u32 vcc, {sr(sTAG)}, {vr(vT0)}')
        else:
            P(f'v_cmp_ne_u32 vcc, {sr(val)}, {vr(vPD)}')
        P(f's_cbranch_vccz {dn}')
        if self.o['psleep']: P(f's_sleep {self.o["psleep"]}')
        P(f's_sub_u32 {sr(sBUD)}, {sr(sBUD)}, 1\ns_cbranch_scc0 {lp}\ns_mov_b32 {sr(sBUD)}, 0')
        P.label(dn)

    def flag(self, soff, sval, sc1, wait=None, add=0):
        P = self.P
        P((f'v_add_u32 {vr(vPD)}, {sr(sval)}, {add}' if add else f'v_mov_b32 {vr(vPD)}, {sr(sval)}') + '\ns_mov_b64 exec, 1')
        if wait: P(wait)
        P(f'buffer_store_dword {vr(vPD)}, off, {sr(sWS,4)}, {sr(soff)}' + (' sc1' if sc1 else ''))
        P('s_mov_b64 exec, -1')

    def prio_if(self, cmp):
        P = self.P; l = P.newlabel('Lpr')
        b = self.o['prio'] - 1
        P(f's_setprio {b}\n{cmp}\ns_cbranch_scc0 {l}\ns_setprio {b+1}'); P.label(l)

    def lds_signal(self, idx, wait=True):
        w = 's_waitcnt lgkmcnt(0)\n' if wait else ''
        self.P(f'v_mov_b32 {vr(vPD)}, 1\ns_mov_b64 exec, 1\n{w}ds_add_u32 {vr(vCNT)}, {vr(vPD)} offset:{4*idx}\ns_mov_b64 exec, -1')

    def lds_wait(self, idx, val, sleep=0):
        P = self.P; lp = P.newlabel('Llw')
        P.label(lp)
        if sleep: P(f's_sleep {sleep}')
        P(f'ds_read_b32 {vr(vPD)}, {vr(vCNT)} offset:{4*idx}\ns_waitcnt lgkmcnt(0)\nv_cmp_gt_u32 vcc, {val}, {vr(vPD)}\ns_cbranch_vccnz {lp}')

    def lds_peek(self, idx):
        return [('ds', ('cnt', idx), f'ds_read_b32 {vr(vPD)}, {vr(vCNT)} offset:{4*idx}')]

    def lds_check(self, idx, val):
        P = self.P; ok = P.newlabel('Llc')
        P(waitstr(lg=self.lg.need(('cnt', idx))))
        P(f'v_cmp_gt_u32 vcc, {val}, {vr(vPD)}\ns_cbranch_vccz {ok}')
        self.lds_wait(idx, val)
        P.label(ok)

    def two_way(self, emit):
        P = self.P
        if self.force_safe:
            emit(True); return
        ls = P.newlabel('Lsafe'); le = P.newlabel('Lpub')
        P(f's_cmp_eq_u32 {sr(sFAST)}, 0\ns_cbranch_scc1 {ls}')
        emit(False)
        if self.o['ool']:
            self.ool.append((ls, emit, le))
        else:
            P(f's_branch {le}'); P.label(ls)
            emit(True)
        P.label(le)

    def item(self, it):
        P = self.P
        if isinstance(it, str): P(it)
        elif it[0] == 'wvm': P(waitstr(vm=self.vm.need(it[1])))
        elif it[0] == 'wlg': P(waitstr(lg=self.lg.need(it[1])))
        elif it[0] == 'ds': P(it[2]); self.lg.issue(it[1])
        elif it[0] == 'fn': it[1]()

    def checksum(self, dst, src, n):
        ops = [f'v_add3_u32 {vr(dst)}, {sr(sTAG)}, {vr(src)}, {vr(src+1)}']
        for i in range(2, n, 2): ops.append(f'v_add3_u32 {vr(dst)}, {vr(dst)}, {vr(src+i)}, {vr(src+i+1)}')
        return ops

    def retry_tail(self, lp, dn):
        if self.stamps: self.P('s_add_u32 s99, s99, 1')
        self.P(f's_sub_u32 {sr(sBUD)}, {sr(sBUD)}, 1\ns_cbranch_scc0 {lp}\ns_mov_b32 {sr(sBUD)}, 0')
        self.P.label(dn)
        if self.stamps: self.P('s_lshl_b32 s99, s99, 6')

    def prologue(self):
        P = self.P; o = self.o
        vH, vT = 64, 65
        if self.stamps: P('s_memrealtime s[98:99]\ns_memtime s[100:101]')
        elif o.get('spin'): P('s_memrealtime s[98:99]')
        P(f"""s_cmp_ge_u32 s2, 256
s_cbranch_scc1 L_end
s_load_dwordx16 s[64:79], s[0:1], 0
s_load_dwordx4 s[80:83], s[0:1], 64
s_getpc_b64 s[84:85]
v_lshrrev_b32 v1, 6, v0
s_lshr_b32 {sr(sT1)}, s2, 3
v_readfirstlane_b32 {sr(sW)}, v1
v_and_b32 {vr(vLANE)}, 63, v0
v_lshlrev_b32 {vr(vL16)}, 4, {vr(vLANE)}""")
        lc = P.newlabel('Lx')
        P(f"""s_cmp_lt_u32 {sr(sW)}, 6
s_cbranch_scc1 {lc}
s_and_b32 {sr(sT0)}, {sr(sW)}, 1
s_lshl_b32 {sr(sT0)}, {sr(sT0)}, 5
s_add_u32 {sr(sT0)}, {sr(sT0)}, {sr(sT1)}
s_lshl_b32 {sr(sT0)}, {sr(sT0)}, 10
s_cmp_ge_u32 {sr(sT0)}, CODE_BYTES
s_cbranch_scc1 {lc}
v_add_u32 v255, {sr(sT0)}, {vr(vL16)}
global_load_dword v255, v255, s[84:85]""")
        P.label(lc)
        P(f"""s_and_b32 {sr(sT0)}, s2, 7
s_add_u32 {sr(sC)}, {sr(sT1)}, {o.get('cadd', 0)}
s_and_b32 {sr(sC)}, {sr(sC)}, 15
s_lshr_b32 {sr(sT1)}, {sr(sT1)}, 4
s_lshl_b32 {sr(sR)}, {sr(sT0)}, 1
s_add_u32 {sr(sR)}, {sr(sR)}, {sr(sT1)}
s_and_b32 {sr(sMT)}, {sr(sW)}, 3
s_lshr_b32 {sr(sHS)}, {sr(sW)}, 2
s_lshl_b32 {sr(sRT)}, {sr(sR)}, 2
s_add_u32 {sr(sRT)}, {sr(sRT)}, {sr(sMT)}
s_add_u32 {sr(sS0)}, {sr(sT0)}, {sr(sT1)}
s_lshl_b32 {sr(sT1)}, {sr(sC)}, 1
s_add_u32 {sr(sS0)}, {sr(sS0)}, {sr(sT1)}
s_and_b32 {sr(sS0)}, {sr(sS0)}, 3
s_lshr_b32 {sr(sROT)}, {sr(sC)}, 1
s_lshl1_add_u32 {sr(sROT)}, {sr(sS0)}, {sr(sROT)}
s_and_b32 {sr(sROT)}, {sr(sROT)}, 7
v_mov_b32 v8, 0
v_mov_b32 v9, 0
v_mov_b32 v10, 0
v_mov_b32 v11, 0
v_mov_b32 v90, 0
v_mov_b32 {vr(vPA)}, 0
v_mov_b32 v91, 0
v_mov_b32 v93, 0
v_mov_b32 {vr(vCNT)}, {LDS_CNT}
ds_write_b128 {vr(vCNT)}, v[8:11]
ds_write_b128 {vr(vCNT)}, v[8:11] offset:16
ds_write_b128 {vr(vCNT)}, v[8:11] offset:32
v_lshrrev_b32 v28, 3, {vr(vLANE)}
v_lshlrev_b32 v28, 10, v28
v_lshrrev_b32 v29, 4, {vr(vLANE)}
v_xor_b32 v29, v29, {vr(vLANE)}
v_and_b32 v29, 7, v29
v_lshl_add_u32 v28, v29, 4, v28
v_xor_b32 v29, 64, v28
v_add_u32 v30, {2*7168}, v28
v_add_u32 v31, {3*7168}, v29
v_add_u32 v29, 7168, v29
s_lshl_b32 {sr(sLB)}, {sr(sRT)}, 15
s_lshl_b32 {sr(sLR)}, {sr(sROT)}, 7
s_mul_i32 {sr(sLA)}, {sr(sMT)}, {12288 if o['il'] else 16384}
s_add_u32 {sr(sLA)}, {sr(sLA)}, {LDS_WO if o['il'] else LDS_WQ}
{'s_memrealtime s[92:93]' if self.stamps else ''}
s_waitcnt lgkmcnt(0)
{'s_memrealtime s[94:95]' if self.stamps else ''}
s_load_dword {sr(sTAG)}, s[82:83], 0""")
        self.srd(sX0, 64, 2097152)
        if o['pf'] >= 3:
            lq = P.newlabel('Lx')
            P(f"""s_cmp_lg_u32 {sr(sW)}, {o['pf'] + 1}
s_cbranch_scc1 {lq}
s_lshr_b32 {sr(sT0)}, s2, 3
s_sub_u32 {sr(sT1)}, {sr(sT0)}, 24
s_cselect_b32 {sr(sT0)}, {sr(sT0)}, {sr(sT1)}
s_cselect_b64 {sr(sT2,2)}, s[66:67], s[68:69]
s_lshl_b32 {sr(sT0)}, {sr(sT0)}, 16
v_lshl_add_u32 v26, {vr(vLANE)}, 10, {sr(sT0)}
global_load_dword v25, v26, {sr(sT2,2)} offset:384""")
            P.label(lq)
        def dma_addr():
            P(f"""v_lshrrev_b32 v28, 2, {vr(vLANE)}
v_and_b32 v29, 3, {vr(vLANE)}
v_lshlrev_b32 v29, 4, v29
s_lshl_b32 {sr(sT0)}, {sr(sC)}, 6
v_add_u32 v29, {sr(sT0)}, v29
v_mul_u32_u24 {vr(vDW)}, 3072, v28
v_add_u32 {vr(vDW)}, {vr(vDW)}, v29
v_lshl_add_u32 {vr(vDO)}, v28, 10, v29
s_lshl_b32 {sr(sLA)}, {sr(sMT)}, 11
s_lshr_b32 {sr(sT0)}, {sr(sMT)}, 1
s_add_u32 {sr(sT0)}, {sr(sT0)}, {sr(sROT)}
s_and_b32 {sr(sT0)}, {sr(sT0)}, 7
s_lshl_b32 {sr(sG0)}, {sr(sT0)}, 16
s_xor_b32 {sr(sT0)}, {sr(sMT)}, {sr(sC)}
s_and_b32 {sr(sT0)}, {sr(sT0)}, 1
s_lshl_b32 {sr(sT0)}, {sr(sT0)}, 15
s_add_u32 {sr(sG0)}, {sr(sG0)}, {sr(sT0)}""")
        avm = Tracker(63)
        P(f's_cmp_lg_u32 {sr(sHS)}, 0\ns_cbranch_scc1 L_pro1')
        for g in range(2): self.x0_load(g)
        if o['wearly']: P('s_branch L_pro2')
        P.label('L_pro1')
        if o['wearly']:
            self.srd(sWA, 66, 1572864)
            dma_addr()
            for st in range(o['wearly']): self.dma_w(0, (1, 2), (st,)); avm.issue(st, 4)
        P.label('L_pro2')
        if self.stamps: P('s_memrealtime s[96:97]')
        P('s_barrier')
        self.srd(sWS, 82, WS_USED); self.srd(sWA, 66, 1572864); self.srd(sWoA, 68, 524288)
        self.srd(sWB, 72, 1572864); self.srd(sPhi, 74, 16384); self.srd(sWoB, 76, 524288); self.srd(sOut, 78, 2097152)
        P(f"""s_mul_i32 {sr(sT0)}, {sr(sHS)}, 3
s_xor_b32 {sr(sQT)}, {sr(sMT)}, {sr(sT0)}
s_mov_b32 {sr(sBUD)}, 0x100000
s_mov_b32 {sr(sLO)}, 0xffff
s_mov_b32 {sr(sLO+1)}, 0xffff
s_mov_b32 {sr(sH0)}, -1
s_mov_b32 {sr(sH0+1)}, 0
s_mov_b32 {sr(sFAST)}, 0
s_mov_b32 {sr(sDM)}, 0
s_mov_b32 {sr(sLOG2E)}, {f2u(LOG2E):#x}
s_mov_b32 {sr(sPERM)}, 0x07060302
s_lshl_b32 {sr(sS0)}, {sr(sS0)}, 13
s_getreg_b32 {sr(sOWNF)}, hwreg(HW_REG_XCC_ID, 0, 4)
v_lshrrev_b32 {vr(vH)}, 5, {vr(vLANE)}
v_and_b32 {vr(vT)}, 31, {vr(vLANE)}
v_lshlrev_b32 {vr(vL4)}, 2, {vr(vLANE)}
v_mov_b32 {vr(vSTAMP)}, 0
v_bfe_u32 {vr(vTR1)}, {vr(vLANE)}, 2, 2
v_lshl_add_u32 {vr(vTR1)}, {vr(vH)}, 2, {vr(vTR1)}
v_lshlrev_b32 {vr(vTR2)}, 6, {vr(vTR1)}
v_bfe_u32 {vr(vTR1)}, {vr(vLANE)}, 4, 1
v_lshl_add_u32 {vr(vTR2)}, {vr(vTR1)}, 5, {vr(vTR2)}
v_and_b32 {vr(vTR1)}, 3, {vr(vLANE)}
v_lshl_add_u32 {vr(vTR2)}, {vr(vTR1)}, 3, {vr(vTR2)}
v_lshl_add_u32 {vr(vTR1)}, {vr(vH)}, 8, {vr(vTR2)}
v_add_u32 {vr(vTR1)}, {LDS_WQ}, {vr(vTR1)}
v_add_u32 {vr(vTR2)}, {LDS_WO}, {vr(vTR2)}
s_lshl_b32 {sr(sT0)}, {sr(sMT)}, 7
s_add_u32 {sr(sT0)}, {sr(sT0)}, {LDS_RSTD}
v_lshl_add_u32 {vr(vRA)}, {vr(vT)}, 2, {sr(sT0)}
v_lshl_add_u32 {vr(vRB)}, {vr(vH)}, 4, {sr(sT0)}
v_lshlrev_b32 {vr(vFD)}, 2, {vr(vH)}
v_sub_u32 {vr(vFD)}, {vr(vT)}, {vr(vFD)}
v_cvt_f32_i32 {vr(vFD)}, {vr(vFD)}
v_mul_f32 {vr(vFD)}, {f2u(2.0**100):#x}, {vr(vFD)}
s_waitcnt lgkmcnt(0)
s_and_b32 {sr(sTAG)}, {sr(sTAG)}, -16
s_add_u32 {sr(sTAG)}, {sr(sTAG)}, {TAGC:#x}
s_or_b32 {sr(sOWNF)}, {sr(sOWNF)}, {sr(sTAG)}
s_lshl_b32 {sr(sT0)}, {sr(sR)}, 2
s_add_u32 {sr(sT0)}, {sr(sT0)}, {sr(sQT)}
s_lshl_b32 {sr(sT0)}, {sr(sT0)}, 5
s_lshl_b32 {sr(sT1)}, {sr(sC)}, 1
s_add_u32 {sr(sT0)}, {sr(sT0)}, {sr(sT1)}
s_add_u32 {sr(sT0)}, {sr(sT0)}, {sr(sHS)}
s_lshl_b32 {sr(sOW)}, {sr(sT0)}, 10
s_lshl_b32 {sr(sOF)}, {sr(sT0)}, 2
s_lshr_b32 {sr(sT0)}, {sr(sMT)}, 1
s_add_u32 {sr(sT0)}, {sr(sT0)}, {sr(sR)}
s_sub_u32 {sr(sT0)}, {sr(sT0)}, 2
s_cselect_b32 {sr(sHAS)}, 0, 1
s_lshl_b32 {sr(sT0)}, {sr(sT0)}, 1
s_and_b32 {sr(sT1)}, {sr(sMT)}, 1
s_add_u32 {sr(sT0)}, {sr(sT0)}, {sr(sT1)}
s_lshl_b32 {sr(sT0)}, {sr(sT0)}, 5
s_add_u32 {sr(sT0)}, {sr(sT0)}, {sr(sC)}
s_mul_i32 {sr(sHB)}, {sr(sT0)}, {KV_REC}
s_cmp_lt_u32 {sr(sQT)}, 2
s_cselect_b32 {sr(sHAS)}, {sr(sHAS)}, 0
s_cmp_eq_u32 {sr(sR)}, 1
s_cselect_b32 {sr(sT0)}, 4, {sr(sQT)}
s_sub_u32 {sr(sC2)}, 8, {sr(sT0)}
s_lshl_b32 {sr(sP2)}, {sr(sT0)}, 12
s_add_u32 {sr(sP2)}, {sr(sP2)}, {LDS_T}
s_mul_i32 {sr(sOWN)}, {sr(sQT)}, {OWN_ST}
s_add_u32 {sr(sOWN)}, {sr(sOWN)}, {LDS_OWN}
s_lshl_b32 {sr(sT0)}, {sr(sRT)}, 4
s_add_u32 {sr(sT0)}, {sr(sT0)}, {sr(sC)}
s_mul_i32 {sr(sKVW)}, {sr(sT0)}, {KV_REC}
s_lshl_b32 {sr(sXW)}, {sr(sT0)}, 11
s_lshl_b32 {sr(sSW)}, {sr(sT0)}, 8
s_lshl_b32 {sr(sXF)}, {sr(sRT)}, 7
s_lshl_b32 {sr(sRB)}, {sr(sRT)}, 15""")
        self.stamp(0, 'start')
        if self.stamps:
            self.stamp_names.update({32: 'pre karg', 43: 'karg', 51: 'x issued'})
            P(f'v_writelane_b32 {vr(vSTAMP)}, s92, 32\nv_writelane_b32 {vr(vSTAMP)}, s94, 43\nv_writelane_b32 {vr(vSTAMP)}, s96, 51')
            self.stamp_names[60] = 'entry'; P(f'v_writelane_b32 {vr(vSTAMP)}, s98, 60\ns_mov_b32 s99, 0\ns_mov_b32 s101, 0')
        P(f's_cmp_eq_u32 {sr(sHS)}, 0\ns_cbranch_scc1 L_main_0')
        lh = P.newlabel('Lx'); lt = P.newlabel('Lx')
        P(f"""s_lshl_b32 {sr(sT2)}, {sr(sR)}, 7
s_lshl_b32 {sr(sT3)}, {sr(sC)}, 2
s_add_u32 {sr(sT2)}, {sr(sT2)}, {sr(sT3)}
s_add_u32 {sr(sT2)}, {sr(sT2)}, {OFF_XFLAG}
s_cmp_lg_u32 {sr(sMT)}, 0
s_cbranch_scc1 {lh}""")
        self.flag(sT2, sOWNF, True)
        P.label(lh)
        if o['pf'] in (1, 2): self.coop_prefetch(0, o['pf'])
        if not o['wearly']: dma_addr()
        P(f"""v_add_u32 {vr(vCH)}, {sr(sLA)}, {vr(vL16)}
v_subrev_u32 {vr(vCS)}, {LDS_WO}, {vr(vTR2)}
v_add_u32 {vr(vCS)}, {sr(sLA)}, {vr(vCS)}
v_lshl_add_u32 v31, {vr(vH)}, 8, {vr(vCS)}""")
        for i in range(4): P(f'v_mov_b32 {vr(ONES+i)}, 0x3f803f80')
        P(f'v_lshlrev_b32 v30, 10, {vr(vH)}\nv_add_u32 v30, {LDS_ONES}, v30\nds_write_b128 v30, {vr(ONES,4)}')
        self.csp_waddr(0)
        P(f'v_lshl_add_u32 v30, {vr(vH)}, 9, v28')
        for op in self.mask_ops(0) + self.mask_ops(1): P(op)
        if o['tlb']:
            lw = P.newlabel('Lx')
            P(f"""s_cmp_lg_u32 {sr(sMT)}, 1
s_cbranch_scc1 {lw}
v_and_b32 v68, 15, {vr(vLANE)}
v_bfe_u32 v69, {vr(vLANE)}, 4, 1
s_lshl_b32 {sr(sT0)}, {sr(sR)}, 2
s_sub_u32 {sr(sT0)}, {sr(sT0)}, 8
v_min_u32 v70, 11, v68
v_add_u32 v70, {sr(sT0)}, v70
v_max_i32 v70, 0, v70
v_lshl_add_u32 v70, v70, 4, {sr(sC)}
v_lshl_add_u32 v70, v69, 10, v70
v_mul_u32_u24 v70, {KV_REC}, v70
v_add_u32 v70, {OFF_KV + KV_REC - 128}, v70
s_lshl_b32 {sr(sT0)}, {sr(sC)}, 4
v_add_u32 v68, {sr(sT0)}, v68
v_lshl_add_u32 v68, v69, 8, v68
v_mul_u32_u24 v68, {KP_REC}, v68
v_add_u32 v68, {OFF_KP + KP_REC - 128}, v68
v_cndmask_b32 v68, v68, v70, {sr(sH0,2)}
buffer_load_dword v26, v68, {sr(sWS,4)}, 0 offen""")
            P.label(lw)
        if o['wgo']: self.lds_wait(C_WGO, o['wgon'])
        self.stamp(2, 'x g0 / W go')
        PRE = o['pre']; MCS = o['mcs']; CA = {1: 32, 2: 64, 0: 32}
        for st in range(o['wearly'], PRE): self.dma_w(0, (1, 2), (st,)); avm.issue(st, 4)
        qs = [[0, 1], [2, 3]] if PRE == 2 else ([[0, 1], [2, 3], []] if PRE == 3 else [[], [0, 1], [2, 3], []])
        first_q = True
        if not MCS:
            for i in range(4): P(f'v_mov_b32 {vr(64+i)}, 0')
        if o['il']: qs = [[]]*4
        for st in range(4):
            if st + PRE < 4: self.dma_w(0, (1, 2), (st + PRE,)); avm.issue(st + PRE, 4)
            else:
                q = qs.pop(0)
                if q:
                    if first_q:
                        self.lds_wait(C_XDONE, 4); first_q = False
                        if o['apr']: P('s_setprio 3')
                    self.dma_w(0, (0,), q); avm.issue('q', 4)
            P(waitstr(vm=avm.need(st)))
            self.stamp((15, 23, 29, 1)[st], ('x g3 / W st0', 'x g5 / W st1', 'S0 / W st2', 'x0 / W st3')[st])
            self.lds_signal(C_ST + st)
            ch = [(nt, 2*st + e) for nt in (1, 2) for e in range(2)]
            for nt, u in ch:
                r_ = PARK[nt] + 4*u; of = NT_LDS[nt] + cho(u)
                P(f'ds_read_b64_tr_b16 {vr(r_,2)}, v31 offset:{of}\nds_read_b64_tr_b16 {vr(r_+2,2)}, v31 offset:{of+256}')
            for k, (nt, u) in enumerate(ch):
                P(f's_waitcnt lgkmcnt({6-2*k})')
                if MCS: self.mfma(CA[nt], ONES, PARK[nt] + 4*u, None if u == 0 else CA[nt])
                else: self.valu_sum(PARK[nt] + 4*u, 64 + 2*(nt - 1))
        if MCS: P(f'ds_write_b32 v28, {vr(CA[1])} offset:512\nds_write_b32 v28, {vr(CA[2])} offset:1024')
        else: P('v_add_f32 v64, v64, v65\nv_add_f32 v66, v66, v67\nv_permlane32_swap_b32 v64, v66\nv_add_f32 v64, v64, v66\nds_write_b32 v30, v64 offset:512')
        self.lds_signal(C_CS, wait=False)
        if o['apr'] == 1: P('s_setprio 0')
        self.stamp(14, 'S3 / W done')
        if o['il']:
            self.lds_wait(C_CSQ, 4, 1); self.dma_w(0, (0,))
            self.lds_wait(C_XDONE, 4, 1)
        if o['clr']: self.hello_load()
        if o['wo_at'] == 0: self.dma_w(0, ('o',))
        P(f'v_add_u32 v31, {LDS_WQ}, v31\ns_waitcnt vmcnt({8 if o["wo_at"] == 0 else 0})')
        self.lds_signal(C_Q)
        self.stamp(4, 'Q done')
        if o['wo_at'] == 1: self.dma_w(0, ('o',))
        for u0 in (0, 4):
            for u in range(u0, u0 + 4):
                r_ = PARK[0] + 4*u
                P(f'ds_read_b64_tr_b16 {vr(r_,2)}, v31 offset:{cho(u)}\nds_read_b64_tr_b16 {vr(r_+2,2)}, v31 offset:{cho(u)+256}')
            for k, u in enumerate(range(u0, u0 + 4)):
                P(f's_waitcnt lgkmcnt({6-2*k})')
                self.mfma(CA[0], ONES, PARK[0] + 4*u, None if u == 0 else CA[0])
        P(f'ds_write_b32 v28, {vr(CA[0])}')
        self.lds_signal(C_CSQ, wait=False)
        P(f"""s_cmp_lg_u32 {sr(sMT)}, 2
s_cbranch_scc1 {lt}
v_lshlrev_b32 v6, 7, {vr(vLANE)}
s_mul_i32 {sr(sT0)}, s2, {48*128}
buffer_load_dword v26, v6, {sr(sWB,4)}, {sr(sT0)} offen
v_and_b32 v6, 0x780, v6
s_lshl_b32 {sr(sT0)}, s2, 11
buffer_load_dword v26, v6, {sr(sWoB,4)}, {sr(sT0)} offen""")
        P.label(lt)
        if o['pfb'] == 1: self.coop_prefetch(1, 1)
        P('s_branch L_aux_0')

    def coop_prefetch(self, typ, mode):
        P = self.P; l1 = P.newlabel('Lx'); l2 = P.newlabel('Lx')
        if mode == 1: P(f's_cmp_lg_u32 {sr(sMT)}, 1\ns_cbranch_scc1 {l2}')
        offs = (128,) if mode == 1 else (128, 0)
        P(f"""v_lshlrev_b32 v5, 10, {vr(vLANE)}
s_lshr_b32 {sr(sT0)}, s2, 3
s_lshl_b32 {sr(sT0)}, {sr(sT0)}, 16
s_lshl_b32 {sr(sT1)}, {sr(sMT)}, 8
s_add_u32 {sr(sT0)}, {sr(sT0)}, {sr(sT1)}
s_cmp_ge_u32 s2, 192
s_cbranch_scc1 {l1}""")
        for of in offs: P(f'buffer_load_dword v26, v5, {sr((sWA, sWB)[typ],4)}, {sr(sT0)} offen offset:{of}')
        P(f's_branch {l2}'); P.label(l1)
        P(f's_sub_u32 {sr(sT0)}, {sr(sT0)}, {24 << 16}')
        for of in offs: P(f'buffer_load_dword v26, v5, {sr((sWoA, sWoB)[typ],4)}, {sr(sT0)} offen offset:{of}')
        P.label(l2)

    def valu_sum(self, frag, acc):
        for i in range(4):
            self.P(f'v_lshlrev_b32 v68, 16, {vr(frag+i)}\nv_and_b32 v69, 0xffff0000, {vr(frag+i)}\nv_add_f32 {vr(acc)}, {vr(acc)}, v68\nv_add_f32 {vr(acc+1)}, {vr(acc+1)}, v69')

    def x0_load(self, g):
        P = self.P
        P(f's_add_u32 m0, {sr(sLA)}, {(g % (3 if self.o["il"] else 4))*4096}\ns_add_u32 {sr(sT3)}, {sr(sLB)}, {sr(sLR)}')
        for j in range(4): P(f'buffer_load_dwordx4 {vr(28+j)}, {sr(sX0,4)}, {sr(sT3)} offen offset:{j*1024} lds')
        P(f's_add_u32 {sr(sLR)}, {sr(sLR)}, 128\ns_and_b32 {sr(sLR)}, {sr(sLR)}, 0x3ff')
        self.vm.issue(('x', g), 4)

    def code_prefetch(self, label):
        P = self.P; lc = P.newlabel('Lx')
        P(f"""s_cmp_lg_u32 {sr(sMT)}, 3
s_cbranch_scc1 {lc}
s_lshl_b32 {sr(sT0)}, {sr(sC)}, 10
s_add_u32 {sr(sT0)}, {sr(sT0)}, ({label} - {NAME}_kernel)
s_cmp_ge_u32 {sr(sT0)}, CODE_BYTES
s_cbranch_scc1 {lc}
v_add_u32 v26, {sr(sT0)}, {vr(vL16)}
global_load_dword v26, v26, s[84:85]""")
        P.label(lc)

    def wphi_load(self, B=96):
        P = self.P; a, t = vr(B + 8), vr(B + 9)
        P(f"""s_lshl_b32 {sr(sT0)}, {sr(sC)}, 1
s_add_u32 {sr(sT0)}, {sr(sT0)}, {sr(sHS)}
s_lshl_b32 {sr(sT0)}, {sr(sT0)}, 9
v_bfe_u32 {a}, {vr(vLANE)}, 3, 2
v_and_b32 {t}, 3, {vr(vLANE)}
v_lshl_add_u32 {a}, {a}, 2, {t}
v_lshlrev_b32 {a}, 1, {a}
v_lshrrev_b32 {t}, 5, {vr(vLANE)}
v_lshl_add_u32 {a}, {t}, 7, {a}""")
        for j in range(8):
            d = (j if j < 4 else 8 + j - 4)
            P(f'buffer_load_ushort {vr(B+j)}, {a}, {sr(sPhi,4)}, {sr(sT0)} offen offset:{d*32}')

    def wphi_pack(self, B=96):
        ops = [f'v_lshl_or_b32 {vr(WPHI+p)}, {vr(B+2*p+1)}, 16, {vr(B+2*p)}' for p in range(4)]
        ops += [f'v_bfe_i32 {vr(B)}, {vr(vLANE)}, 2, 1', f'v_and_b32 {vr(B)}, 0x80008000, {vr(B)}']
        return ops + [f'v_xor_b32 {vr(WPHI+p)}, {vr(B)}, {vr(WPHI+p)}' for p in range(4)]

    def dma_w(self, typ, nts, stages=range(4)):
        P = self.P; wo = nts == ('o',)
        srd = (sWoA, sWoB)[typ] if wo else (sWA, sWB)[typ]
        for st in stages:
            P(f's_add_u32 {sr(sT0)}, {sr(sG0)}, {st*0x20000}\ns_and_b32 {sr(sT0)}, {sr(sT0)}, 0x7ffff')
            if not wo: P(f's_mul_i32 {sr(sT0)}, {sr(sT0)}, 3')
            late = wo or typ == 1
            if late: P(f's_add_u32 {sr(sT3)}, {sr(sS0)}, {st*8192}\ns_and_b32 {sr(sT3)}, {sr(sT3)}, 0x7fff\ns_add_u32 {sr(sT3)}, {sr(sT3)}, {sr(sLA)}')
            for e in range(2):
                for nt in nts:
                    P(f's_add_u32 m0, {sr(sT3)}, {NT_LDS[nt] + e*1024}' if late else f's_add_u32 m0, {sr(sLA)}, {NT_LDS[nt] + cho(2*st + e)}')
                    P(f's_add_u32 {sr(sT1)}, {sr(sT0)}, {e*16384 if wo else e*49152 + nt*1024}')
                    P(f'buffer_load_dwordx4 {vr(vDO if wo else vDW)}, {sr(srd,4)}, {sr(sT1)} offen lds')

    def csp_waddr(self, typ):
        self.P(f"""s_lshl_b32 {sr(sT0)}, {sr(sMT)}, 2
s_add_u32 {sr(sT0)}, {sr(sT0)}, {LDS_CSP + typ*1536}
v_and_b32 v28, 31, {vr(vLANE)}
v_lshl_add_u32 v28, v28, 4, {sr(sT0)}""")

    def chunk_addr(self, region):
        if region < 65536: return vCH, region
        self.P(f'v_add_u32 {vr(vT0)}, {region}, {vr(vCH)}'); return vT0, 0

    def lds_to_regs(self, region, dst, tr=False):
        if tr:
            self.P(f'v_add_u32 v29, {region}, {vr(vCS)}')
            for u in range(8): self.P(f'ds_read_b64_tr_b16 {vr(dst+4*u,2)}, v29 offset:{cho(u)}\nds_read_b64_tr_b16 {vr(dst+4*u+2,2)}, v29 offset:{cho(u)+512}')
            return
        a, o = self.chunk_addr(region)
        for u in range(8): self.P(f'ds_read_b128 {vr(dst+4*u,4)}, {vr(a)} offset:{o+cho(u)}')

    def regs_to_lds(self, region, src, rot=False):
        if rot:
            if region >= 65536:
                for st in range(4): self.P(f'v_add_u32 {vr(64+st)}, {region}, {vr(64+st)}')
            for u in range(8): self.P(f'ds_write_b128 {vr(64 + (u >> 1))}, {vr(src+4*u,4)} offset:{(region if region < 65536 else 0) + (u & 1)*1024}')
            return
        a, o = self.chunk_addr(region)
        for u in range(8): self.P(f'ds_write_b128 {vr(a)}, {vr(src+4*u,4)} offset:{o+cho(u)}')

    def relayout(self, typ, nts, tmp=64, ntmp=8):
        P = self.P
        if nts != ('o',): self.csp_waddr(typ)
        for k, nt in enumerate(nts):
            region = NT_LDS[nt]
            P(f'v_add_u32 v29, {region}, {vr(vCS)}')
            acc = ACC0 if k % 2 == 0 else ACC1
            lg = Tracker(15)
            reg = lambda u: tmp + 4*(u % ntmp)
            for u0 in range(0, 8, 4):
                for u in range(u0, u0 + 4):
                    P(f'ds_read_b64_tr_b16 {vr(reg(u),2)}, v29 offset:{cho(u)}\nds_read_b64_tr_b16 {vr(reg(u)+2,2)}, v29 offset:{cho(u)+512}'); lg.issue(u, 2)
                for u in range(u0, u0 + 4):
                    P(waitstr(lg=lg.need(u)))
                    if nt != 'o': self.mfma(acc, ONES, reg(u), None if u == 0 else acc)
        for k, nt in enumerate(nts):
            if nt != 'o': P(f'ds_write_b32 v28, {vr(ACC0 if k % 2 == 0 else ACC1)} offset:{nt*512}')
        P('s_waitcnt lgkmcnt(0)')

    def swap_region(self, nt, save, tr=False):
        P = self.P
        if save:
            self.lds_to_regs(NT_LDS[nt], 32, tr); P('s_waitcnt lgkmcnt(0)')
        self.regs_to_lds(NT_LDS[nt], PARK[nt], tr and nt != 'o'); P('s_waitcnt lgkmcnt(0)')
        if save:
            for i in range(32): P(f'v_mov_b32 {vr(PARK[nt]+i)}, {vr(32+i)}')

    def unpack_res(self):
        for p in range(8):
            self.P(f'v_lshlrev_b32 {vr(ACC0+2*p)}, 16, {vr(XRES+p)}\nv_and_b32 {vr(ACC0+2*p+1)}, 0xffff0000, {vr(XRES+p)}')

    def rowmajor_addr(self, dst, tmp, sdst):
        self.P(f"""v_and_b32 {vr(dst)}, 31, {vr(vLANE)}
v_lshlrev_b32 {vr(dst)}, 10, {vr(dst)}
v_lshrrev_b32 {vr(tmp)}, 5, {vr(vLANE)}
v_lshl_add_u32 {vr(dst)}, {vr(tmp)}, 4, {vr(dst)}
s_lshl_b32 {sr(sdst)}, {sr(sC)}, 6
s_add_u32 {sr(sdst)}, {sr(sdst)}, {sr(sRB)}""")

    def publish_x_addr(self, L):
        if L == self.nl: return self.rowmajor_addr(vKA, vVA, sK0)
        self.P(f's_add_u32 {sr(sK1)}, {sr(sSW)}, {OFF_ST}')
        if L == 1 or self.o['hx']: self.P(f's_lshl_b32 {sr(sK2)}, {sr(sC)}, 2\ns_add_u32 {sr(sK2)}, {sr(sK2)}, {sr(sXF)}\ns_add_u32 {sr(sK2)}, {sr(sK2)}, {OFF_XFLAG + 0x2000}')

    def set_par(self, reg, par):
        return f'v_or_b32 {vr(reg)}, 1, {vr(reg)}' if par else f'v_and_b32 {vr(reg)}, -2, {vr(reg)}'

    def acc_par(self, a, b, par):
        return f'v_bitop3_b32 {vr(vPD)}, {vr(vPD)}, {vr(a)}, {vr(b)} bitop3:0x80' if par else f'v_or3_b32 {vr(vPD)}, {vr(vPD)}, {vr(a)}, {vr(b)}'

    def test_par(self, par):
        return f'v_and_b32 {vr(vCK)}, 1, {vr(vPD)}\nv_cmp_ne_u32 vcc, {par}, {vr(vCK)}'

    def hello_load(self):
        self.P(f'v_and_b32 {vr(vPA)}, 60, {vr(vL4)}\ns_lshl_b32 {sr(sK2)}, {sr(sR)}, 7\ns_add_u32 {sr(sK2)}, {sr(sK2)}, {OFF_XFLAG}\nbuffer_load_dword v25, {vr(vPA)}, {sr(sWS,4)}, {sr(sK2)} offen sc1')

    def hello_check(self):
        P = self.P; okl = P.newlabel('Lx')
        P(f'v_mov_b32 {vr(vPD)}, v25\nv_and_b32 {vr(vT0)}, -16, v25\nv_cmp_ne_u32 vcc, {sr(sTAG)}, {vr(vT0)}\ns_cbranch_vccz {okl}')
        self.poll(sK2, masked=True)
        P.label(okl)
        if not self.force_safe:
            P(f"""v_cmp_ne_u32 vcc, {sr(sOWNF)}, {vr(vPD)}
s_cmp_eq_u64 vcc, 0
s_cselect_b32 {sr(sFAST)}, 1, 0
v_mov_b32 {vr(vT0)}, {sr(sFAST)}
ds_write_b32 {vr(vCNT)}, {vr(vT0)} offset:44""")

    def clear_lines(self, Z):
        P = self.P
        P(f's_add_u32 {sr(sT0)}, {sr(sXW)}, {OFF_O}\ns_add_u32 {sr(sT1)}, {sr(sSW)}, {OFF_ST}')
        def clear(sc1):
            m = ' sc1' if sc1 else ''
            for of in (0, 1024): P(f'buffer_store_dwordx4 {vr(Z,4)}, {vr(vL16)}, {sr(sWS,4)}, {sr(sT0)} offen offset:{of}{m}')
            for of in (0, 1024): P(f'buffer_store_dwordx4 {vr(Z,4)}, {vr(vL16)}, {sr(sOut,4)}, {sr(sXW)} offen offset:{of}{m}')
            P(f'buffer_store_dword {vr(Z)}, {vr(vL4)}, {sr(sWS,4)}, {sr(sT1)} offen{m}')
        self.two_way(clear)

    def hint_prep(self, r, add):
        return [f'v_cmp_gt_u32 vcc, {sr(sFAST)}, {vr(vLANE)}', f'v_add_u32 {vr(r)}, {sr(sTAG)}, {add}', f'v_cndmask_b32 {vr(r+1)}, {OOB:#x}, {vr(vLANE)}, vcc']

    def hint(self, r, soff):
        self.P(f'buffer_store_dword {vr(r)}, {vr(r+1)}, {sr(sWS,4)}, {sr(soff)} offen')

    def first_hop(self, base_off, foff, mask, par=None, add=0, pre=None):
        self.P(f'v_and_b32 v110, {mask}, {vr(vL4)}\ns_add_u32 {sr(sT2)}, {sr(sXF)}, {foff}')
        self.frag_setup(base_off)
        if add: self.P(f's_add_u32 {sr(sT0)}, {sr(sTAG)}, {add}')
        NP = self.o['hp']
        if NP:
            P = self.P; lp = P.newlabel('Lpoll'); dn = P.newlabel('Lpolld'); val = sT0 if add else sTAG
            if pre is not None:
                P(f's_waitcnt vmcnt({pre})\nv_cmp_ne_u32 vcc, {sr(val)}, v103\ns_cbranch_vccz {dn}')
            ld = lambda i: P(f'buffer_load_dword {vr(104 + i)}, v110, {sr(sWS,4)}, {sr(sT2)} offen sc1')
            for i in range(NP):
                ld(i); P(f's_sleep {self.o["hs"]}')
            P.label(lp)
            for i in range(NP + 1):
                ld((i + NP) % (NP + 1))
                P(f's_waitcnt vmcnt({NP})\nv_cmp_ne_u32 vcc, {sr(val)}, {vr(104 + i)}\ns_cbranch_vccz {dn}')
            P(f's_sub_u32 {sr(sBUD)}, {sr(sBUD)}, 1\ns_cbranch_scc0 {lp}\ns_mov_b32 {sr(sBUD)}, 0')
            P.label(dn)
        else: self.poll(sT2, areg=110, val=sT0 if add else sTAG)
        if par is not None: self.P(f'v_mov_b32 {vr(vPD)}, {par}')
        return 0

    def probe(self, srd, base_off, par, nwin):
        P = self.P; lp = P.newlabel('Lprobe'); dn = P.newlabel('Lprobed'); S = min(self.o['specx' if srd == sOut else 'spec'], nwin)
        self.frag_setup(base_off)
        if self.o['pp']:
            A_, B_, AD_ = 108, 109, vPA
            if srd == sOut:
                AD_ = 110; P(f'v_or_b32 v110, 1024, {vr(vPA)}')
            ld = lambda r: P(f'buffer_load_dword {vr(r)}, {vr(AD_)}, {sr(srd,4)}, {sr(sLB)} offen sc1')
            ld(A_); P(f's_sleep {self.o["pp"]}')
            P.label(lp)
            for cur, nxt in ((A_, B_), (B_, A_)):
                ld(nxt)
                P(f's_waitcnt vmcnt(1)\nv_and_b32 {vr(vPD)}, 1, {vr(cur)}\nv_cmp_ne_u32 vcc, {par}, {vr(vPD)}\ns_cbranch_vccz {dn}')
            P(f's_sub_u32 {sr(sBUD)}, {sr(sBUD)}, 1\ns_cbranch_scc0 {lp}\ns_mov_b32 {sr(sBUD)}, 0')
            P.label(dn)
            return 0
        if self.o['pst'] and srd == sOut: P(f'v_lshrrev_b32 {vr(STAT+15)}, 2, {vr(vLANE)}\nv_lshlrev_b32 {vr(STAT+15)}, 8, {vr(STAT+15)}')
        P.label(lp)
        if self.o['pst'] and srd == sOut:
            P(f'buffer_load_dword {vr(vPD)}, {vr(STAT+15)}, {sr(sWS,4)}, {sr(sT1)} offen offset:252 sc1')
        elif self.o['pw'] == 16 and srd == sOut:
            P(f'v_or_b32 {vr(vPD)}, 1024, {vr(vPA)}\nbuffer_load_dword {vr(vPD)}, {vr(vPD)}, {sr(srd,4)}, {sr(sLB)} offen sc1')
        else: P(f'buffer_load_dword {vr(vPD)}, {vr(vPA)}, {sr(srd,4)}, {sr(sLB)} offen sc1')
        for ks in range(S): self.frag_load(srd, ks)
        P(f's_waitcnt vmcnt({S})')
        P(self.test_par(par))
        P(f's_cbranch_vccz {dn}')
        if self.o['em']: P('s_mov_b64 exec, vcc')
        if self.o['psleep']: P(f's_sleep {self.o["psleep"]}')
        if S: self.frag_setup(None)
        P(f's_sub_u32 {sr(sBUD)}, {sr(sBUD)}, 1\ns_cbranch_scc0 {lp}\ns_mov_b32 {sr(sBUD)}, 0')
        P.label(dn)
        if self.o['em']: P('s_mov_b64 exec, -1')
        return S

    def verify(self, par, redo):
        P = self.P; st = P.newlabel('Lver'); ct = P.newlabel('Lverc')
        P(self.test_par(par)); P(f's_cbranch_vccnz {st}')
        P.label(ct)
        self.stubs.append((st, redo, ct))

    def emit_stubs(self):
        P = self.P
        for ls, emit, le in self.ool:
            P.label(ls); emit(True); P(f's_branch {le}')
        for k, (st, redo, ct) in enumerate(self.stubs):
            P.label(st)
            if self.stamps: P(f's_add_u32 s101, s101, {1 << (2*k)}')
            P(f's_waitcnt vmcnt(0) lgkmcnt(0)\ns_sub_u32 {sr(sBUD)}, {sr(sBUD)}, 1\ns_cbranch_scc0 {redo}\ns_mov_b32 {sr(sBUD)}, 0\ns_branch {ct}')

    def probe_addr(self):
        if self.o['pw'] == 64:
            return f"""v_lshrrev_b32 {vr(vPA)}, 1, {vr(vLANE)}
v_lshlrev_b32 {vr(vPA)}, 10, {vr(vPA)}
v_and_b32 {vr(vCK)}, 1, {vr(vLANE)}
v_mad_u32_u24 {vr(vPA)}, {vr(vCK)}, {sr(sC1008)}, {vr(vPA)}"""
        if self.o['psp']:
            return f"""v_lshrrev_b32 {vr(vPA)}, 2, {vr(vLANE)}
v_add_u32 {vr(vPA)}, {sr(sC)}, {vr(vPA)}
v_and_b32 {vr(vPA)}, 7, {vr(vPA)}
v_lshlrev_b32 {vr(vPA)}, 7, {vr(vPA)}
v_lshrrev_b32 {vr(vCK)}, 1, {vr(vLANE)}
v_lshl_add_u32 {vr(vPA)}, {vr(vCK)}, 10, {vr(vPA)}"""
        return f'v_lshrrev_b32 {vr(vPA)}, 1, {vr(vLANE)}\nv_lshl_add_u32 {vr(vPA)}, {vr(vPA)}, 10, {sr(sC1008)}'

    def publish_x(self, L):
        P = self.P
        natural = (L % 2 == 0); T = XF; par = L & 1
        for p in range(8): P(f'v_cvt_pk_bf16_f32 {vr(T+p)}, {vr(ACC0+2*p)}, {vr(ACC0+2*p+1)}')
        if natural:
            for a, b in SW4: P(f'v_permlane32_swap_b32 {vr(T+a)}, {vr(T+b)}')
        if L == self.nl:
            m = ['', ' nt', ' sc1'][self.o.get('outm', 0)]
            P(f'buffer_store_dwordx4 {vr(T,4)}, {vr(vKA)}, {sr(sOut,4)}, {sr(sK0)} offen{m}\nbuffer_store_dwordx4 {vr(T+4,4)}, {vr(vKA)}, {sr(sOut,4)}, {sr(sK0)} offen offset:32{m}')
            return
        P(self.set_par(T, par)); P(self.set_par(T + 4, par))
        def emit(sc1):
            m = ' sc1' if sc1 else (' nt' if self.o.get('nta') else '')
            P(f'buffer_store_dwordx4 {vr(T,4)}, {vr(vL16)}, {sr(sOut,4)}, {sr(sXW)} offen{m}')
            P(f'buffer_store_dwordx4 {vr(T+4,4)}, {vr(vL16)}, {sr(sOut,4)}, {sr(sXW)} offen offset:1024{m}')
            if (L > 1 or self.o['clr']) and self.o['hx'] == 1 and (sc1 or not self.o['ex'] or L == 1): self.flag(sK2, sTAG, sc1, add=L - 1)
            if L > 1 and self.o['prex']: P(f'buffer_load_dword v103, v111, {sr(sWS,4)}, {sr(sXF)} offen sc1')
            for k in range(4):
                P(f'v_pk_add_f32 {vr(64+2*k,2)}, {vr(ACC0+4*k,2)}, {vr(ACC0+4*k+2,2)}')
            P(f'v_pk_mul_f32 v[72:73], {vr(ACC0,2)}, {vr(ACC0,2)}\nv_pk_mul_f32 v[74:75], {vr(ACC0+2,2)}, {vr(ACC0+2,2)}')
            P('v_pk_add_f32 v[64:65], v[64:65], v[66:67]\nv_pk_add_f32 v[68:69], v[68:69], v[70:71]')
            for k in range(2, 8): P(f'v_pk_fma_f32 {vr(72+2*(k&1),2)}, {vr(ACC0+2*k,2)}, {vr(ACC0+2*k,2)}, {vr(72+2*(k&1),2)}')
            P('v_pk_add_f32 v[64:65], v[64:65], v[68:69]\nv_pk_add_f32 v[72:73], v[72:73], v[74:75]')
            P('v_add_f32 v64, v64, v65\nv_add_f32 v66, v72, v73\nv_permlane32_swap_b32 v64, v66\nv_add_f32 v64, v64, v66')
            P(self.set_par(64, par))
            P(f'buffer_store_dword v64, {vr(vL4)}, {sr(sWS,4)}, {sr(sK1)} offen{m}')
            if L == 1 and not self.o['clr']: self.flag(sK2, sTAG, sc1, wait='s_waitcnt vmcnt(0)')
            elif self.o['hx'] == 2: self.flag(sK2, sTAG, sc1, add=L - 1)
        self.two_way(emit)
        for p in range(8): P(f'v_cvt_pk_bf16_f32 {vr(XRES+p)}, {vr(ACC0+2*p)}, {vr(ACC0+2*p+1)}')

    def frag_setup(self, base_off):
        self.P(f"""s_and_b32 {sr(sT3)}, {sr(sC)}, 1
s_lshl_b32 {sr(sT3)}, {sr(sT3)}, 11
s_add_u32 {sr(sLB)}, {sr(sRB)}, {base_off}
v_add3_u32 v108, {sr(sT3)}, {vr(vL16)}, 0
s_lshr_b32 {sr(sLR)}, {sr(sC)}, 1
v_add_u32 v108, {sr(sLB)}, v108
s_lshl_b32 {sr(sLR)}, {sr(sLR)}, 12
v_xor_b32 v109, 2048, v108""")

    def frag_load(self, srd, ks, ring=32):
        P = self.P
        P(f'buffer_load_dwordx4 {vr(XF+4*(ks % ring),4)}, {vr(108 + ((ks >> 1) & 1))}, {sr(srd,4)}, {sr(sLR)} offen offset:{(ks&1)*1024} sc1')
        if ks < 28 and ks & 3 == 3: P(f's_add_u32 {sr(sLR)}, {sr(sLR)}, 4096\ns_and_b32 {sr(sLR)}, {sr(sLR)}, 0x7fff')
        self.vm.issue(('x', ks))

    def mask_ops(self, part, lean=False):
        ops = []; C = CDIAG if part == 0 else CFIRST; sg = -1.0 if part == 0 else 1.0
        if part == 0 and not lean:
            ops.append(f'v_mov_b32 {vr(VV)}, 0x3f803f80')
            for i in range(1, 8): ops.append(f'v_mov_b32 {vr(VV+i)}, {vr(VV)}')
        for i in range(16):
            ci = 8*(i//4) + i % 4
            if part == 0: ops.append(f'v_subrev_f32 {vr(C+i)}, {f2u(ci*2.0**100):#x}, {vr(vFD)}')
            else: ops.append(f'v_sub_f32 {vr(C+i)}, {f2u((ci-1)*2.0**100):#x}, {vr(vFD)}')
        for i in range(16): ops.append(f'v_min_f32 {vr(C+i)}, 0, {vr(C+i)}')
        if part == 0 and not lean:
            for i in range(16): ops.append(f'v_mov_b32 {vr(aO+i)}, 0')
        return ops

    def stats_final(self, typ):
        a, b = STAT, STAT + 1
        it = f"""v_mov_b32 {vr(b)}, {vr(a)}
v_mov_b32 {vr(XEXT+2)}, 0
v_mov_b32 {vr(XEXT+3)}, 0
v_permlane32_swap_b32 {vr(a)}, {vr(b)}
v_mul_f32 {vr(a)}, {f2u(1/512):#x}, {vr(a)}
v_mul_f32 {vr(b)}, {f2u(1/512):#x}, {vr(b)}
v_fma_f32 {vr(b)}, -{vr(a)}, {vr(a)}, {vr(b)}
v_max_f32 {vr(b)}, 0, {vr(b)}
v_add_f32 {vr(b)}, {f2u(1e-5):#x}, {vr(b)}
v_rsq_f32 {vr(vRSTD)}, {vr(b)}
v_cndmask_b32 {vr(a)}, 0, {vr(a)}, {sr(sH0,2)}
v_and_b32 {vr(a+2)}, 0xffff0000, {vr(a)}
v_sub_f32 {vr(a+3)}, {vr(a)}, {vr(a+2)}
v_cvt_pk_bf16_f32 {vr(XEXT)}, -{vr(a+2)}, -{vr(a+2)}
v_cvt_pk_bf16_f32 {vr(XEXT+1)}, -{vr(a+3)}, 0""".split('\n')
        it.append(('ds', 'rw', f'ds_write_b32 {vr(vRA)}, {vr(vRSTD)}'))
        for q in range(4): it.append(('ds', 'rt', f'ds_read_b128 {vr(STAT+4*q,4)}, {vr(vRB)} offset:{q*32}'))
        if typ == 1: it.append(f'v_mul_f32 {vr(vRSTD)}, {sr(sLOG2E)}, {vr(vRSTD)}')
        return it

    def wext_items(self, w, tag):
        return [('wlg', tag)] + f"""v_add_f32 {vr(w)}, {vr(w)}, {vr(w+1)}
v_add_f32 {vr(w+2)}, {vr(w+2)}, {vr(w+3)}
v_add_f32 {vr(w)}, {vr(w)}, {vr(w+2)}
v_and_b32 {vr(w+2)}, 0xffff0000, {vr(w)}
v_sub_f32 {vr(w+3)}, {vr(w)}, {vr(w+2)}
v_cvt_pk_bf16_f32 {vr(w)}, {vr(w+2)}, {vr(w+3)}
v_cvt_pk_bf16_f32 {vr(w+1)}, {vr(w+2)}, 0
v_mov_b32 {vr(w+2)}, 0
v_mov_b32 {vr(w+3)}, 0""".split('\n')

    def csp_addr(self, typ):
        self.P(f'v_and_b32 {vr(vT0)}, 0x1f0, {vr(vL16)}\nv_add_u32 {vr(vT0)}, {LDS_CSP + typ*1536}, {vr(vT0)}')

    def phi_addr(self):
        return f"""v_sub_u32 {vr(vVA)}, {vr(vKA)}, {vr(vL16)}
v_and_b32 {vr(vPD)}, 31, {vr(vLANE)}
v_lshl_add_u32 {vr(vVA)}, {vr(vPD)}, 5, {vr(vVA)}
v_lshrrev_b32 {vr(vPD)}, 5, {vr(vLANE)}
v_lshl_add_u32 {vr(vVA)}, {vr(vPD)}, 4, {vr(vVA)}""".split('\n')

    def main_kv(self, L):
        P = self.P; typ = L % 2; o = self.o; XD = o['xd']
        vm, lg = self.vm, self.lg
        V = L > 1 or (L == 1 and o['clr'])
        NR = 3; KVB = vL16 if L > 1 else PKV + 15
        if L == 1: P(f'v_subrev_u32 {vr(vTR1)}, {LDS_WO - LDS_WQ}, {vr(vTR2)}')
        if L == 2: P(f'v_add_u32 {vr(vTR1)}, {LDS_WQ}, {vr(vL16)}\nv_add_u32 {vr(vTR2)}, {LDS_WO}, {vr(vL16)}')
        if L < 2: P(f'v_subrev_u32 {vr(KVB)}, {LDS_WQ}, {vr(vTR1)}')
        def rdk(ks):
            self.w_read(RING + 8*(ks % NR), KVB, LDS_WK + ks*1024, L, ('k', ks))
        def rdv(ks):
            self.w_read(RING + 8*(ks % NR) + 4, KVB, LDS_WV + ks*1024, L, ('v', ks))
        csrd = [('ds', 'cs', f'ds_read_b128 {vr(WEXTK,4)}, {vr(vT0)} offset:512'), ('ds', 'cs', f'ds_read_b128 {vr(WEXTV,4)}, {vr(vT0)} offset:1024')]
        wext = self.wext_items(WEXTK, 'cs') + self.wext_items(WEXTV, 'cs')
        addr = [f'v_add_u32 {vr(vKA)}, {sr(sOWN)}, {vr(vL16)}']
        if typ == 0:
            La = L // 2
            addr += [f's_add_u32 {sr(sK0)}, {sr(sKVW)}, {OFF_KV + La*KV_L}', f's_add_u32 {sr(sK2)}, {sr(sK0)}, 4096']
        else:
            addr += self.phi_addr()
            if o['pw1']: addr += [f's_lshl_b32 {sr(sT0)}, {sr(sMT)}, 2', f'v_add_u32 {vr(PKV+8)}, {sr(sT0)}, {vr(vCNT)}', f'v_mov_b32 {vr(PKV+9)}, {5 + L//2}']
        extras = []
        def pop(n):
            for _ in range(n):
                if extras: self.item(extras.pop(0))
        finld = f'buffer_load_dwordx2 {vr(STAT,2)}, {vr(STAT+2)}, {sr(sWS,4)}, {sr(sT1)} offen sc1'
        def fincheck():
            lp = P.newlabel('Lfin'); ct = P.newlabel('Lfinc')
            P(waitstr(vm=vm.need('st')))
            P(f'v_cmp_ne_u32 vcc, {sr(sM)}, {vr(STAT+1)}\ns_cbranch_vccnz {lp}')
            P.label(ct)
            def again(_):
                if self.stamps: P(f's_or_b32 s101, s101, {1 << (4 + 6*(L - 1))}')
                P(f'{finld}\ns_waitcnt vmcnt(0)\nv_cmp_ne_u32 vcc, {sr(sM)}, {vr(STAT+1)}\ns_cbranch_vccz {ct}')
                P(f's_sub_u32 {sr(sBUD)}, {sr(sBUD)}, 1\ns_cbranch_scc0 {lp}\ns_mov_b32 {sr(sBUD)}, 0')
            self.ool.append((lp, again, ct))
        D = (o['vlag'] if typ else o['vlaga']) if L else 0
        def vstep(kv):
            if kv == 32: return self.mfma(ACC1, XEXT, WEXTV, ACC1)
            P(waitstr(lg=lg.need(('v', kv))))
            self.mfma(ACC1, XF + 4*kv, RING + 8*(kv % NR) + 4, None if kv == 0 else ACC1)
            if kv + NR < 32: rdv(kv + NR)
        def kstep(ks, pre=None):
            b = RING + 8*(ks % NR)
            P(waitstr(vm=vm.need(('x', ks)) if L > 0 else None, lg=lg.need(('k', ks))))
            self.mfma(ACC0, b, XF + 4*ks, None if ks == 0 else ACC0)
            if pre: pre()
            if ks + NR < 32: rdk(ks + NR)
            if V and ks & 1 and ks > 1: P(self.acc_par(XF + 4*ks - 4, XF + 4*ks, L & 1))
            if L > 0 and ks + XD < 32 and ks >= 2: self.frag_load(sOut, ks + XD); pop(1)
            else: pop(3)
            if ks >= D: vstep(ks - D)
            if L > 0 and o['red'] and ks == o['rk0']:
                P(finld); vm.issue('st')
            if L > 0 and o['st0'] <= ks < o['st0'] + 8 and not o['red']:
                for i in range(2*(ks-o['st0']), 2*(ks-o['st0']) + 2):
                    P(f'buffer_load_dword {vr(STAT+i)}, {vr(vL4)}, {sr(sWS,4)}, {sr(sT1)} offen offset:{i*256} sc1'); vm.issue('st')
            pop(3)
        if L > 0 and not o['b0']:
            ok = P.newlabel('Lwr')
            P(f'v_cmp_gt_u32 vcc, {4*L}, {vr(vT0)}\ns_cbranch_vccz {ok}')
            self.lds_wait(C_WR, 4*L)
            P.label(ok)
            if L == 1 and o['bq']:
                P(f's_lshl_b32 {sr(sT0)}, {sr(sMT)}, 11\ns_add_u32 {sr(sT0)}, {sr(sT0)}, {LDS_WQ}\nv_add_u32 {vr(PKV)}, {sr(sT0)}, {vr(vL16)}')
                bqw = [('ds', 'bq', f'ds_write_b128 {vr(PKV)}, {vr(224+4*u,4)} offset:{cho(u)}') for u in range(8)]
                bqw.append(('ds', 'bq', f'v_mov_b32 {vr(vPD)}, 1\ns_mov_b64 exec, 1\nds_add_u32 {vr(vCNT)}, {vr(vPD)} offset:{4*C_Q}\ns_mov_b64 exec, -1'))
        self.csp_addr(typ)
        if L == 0:
            AD = PKV + 2; X0D = o['x0d']
            P(f"""v_bfe_u32 {vr(AD)}, {vr(vLANE)}, 1, 3
v_xor_b32 {vr(AD)}, {vr(AD)}, v64
v_lshlrev_b32 {vr(AD)}, 4, {vr(AD)}
v_lshl_add_u32 {vr(AD)}, v65, 7, {vr(AD)}
s_and_b32 {sr(sT0)}, {sr(sC)}, 1
s_lshl_b32 {sr(sT0)}, {sr(sT0)}, 6
v_xor_b32 {vr(AD)}, {sr(sT0)}, {vr(AD)}
v_add_u32 {vr(AD)}, {sr(sLA)}, {vr(AD)}
v_xor_b32 {vr(AD+1)}, 32, {vr(AD)}
v_xor_b32 {vr(AD+2)}, 64, {vr(AD)}
v_xor_b32 {vr(AD+3)}, 96, {vr(AD)}
s_mov_b32 {sr(sSEL0)}, 0x3f803f80""")
            for i in range(4): P(f'v_mov_b32 {vr(STAT+i)}, 0')
            for it in addr: self.item(it)
            for g in range(2, X0D): self.x0_load(g)
            if o['xst']:
                P(f"""v_mov_b32 {vr(PKV)}, {vr(AD)}
v_mov_b32 {vr(PKV+1)}, {vr(AD+1)}
s_lshr_b32 {sr(sT2)}, {sr(sC)}, 1
s_sub_u32 {sr(sT2)}, {sr(sT2)}, {sr(sROT)}
s_and_b32 {sr(sT2)}, {sr(sT2)}, 7""")
            def dots(g):
                for i in range(16):
                    r_ = XF + 16*g + i
                    P(f'v_dot2_f32_bf16 {vr(STAT+(i&1))}, {vr(r_)}, {sr(sSEL0)}, {vr(STAT+(i&1))}\nv_dot2_f32_bf16 {vr(STAT+2+(i&1))}, {vr(r_)}, {vr(r_)}, {vr(STAT+2+(i&1))}')
            stat_fold = [f'v_add_f32 {vr(STAT)}, {vr(STAT)}, {vr(STAT+1)}', f'v_add_f32 {vr(STAT+2)}, {vr(STAT+2)}, {vr(STAT+3)}',
                         f'v_permlane32_swap_b32 {vr(STAT)}, {vr(STAT+2)}', f'v_add_f32 {vr(STAT)}, {vr(STAT)}, {vr(STAT+2)}']
            LAG = o['il']
            if LAG:
                P(f'v_mov_b32 {vr(PKV+6)}, 1')
                sig = lambda idx: self.item(('ds', 'sig', f's_mov_b64 exec, 1\nds_add_u32 {vr(vCNT)}, {vr(PKV+6)} offset:{4*idx}\ns_mov_b64 exec, -1'))
                lg.reset()
                def ks0(ks):
                    nonlocal extras
                    if ks == 0:
                        self.lds_check(C_ST, 4)
                        self.stamp(29, 'S0 / W st2')
                        for k in range(NR): rdk(k); rdv(k)
                    pre = None; st = ks // 8 + 1
                    if ks % 8 == 2 and st < 4: extras[0:0] = self.lds_peek(C_ST + st)
                    if ks % 8 == 5 and st < 4: pre = lambda: self.lds_check(C_ST + st, 4)
                    if ks == o['csk']: extras[0:0] = self.lds_peek(C_CS)
                    if ks == o['csk'] + 2:
                        pre = lambda: self.lds_check(C_CS, 4)
                        extras += csrd + ['s_nop 0']*4 + wext
                    if ks == 30: extras[0:0] = self.lds_peek(C_Q)
                    kstep(ks, pre)
                for g in range(8 + LAG):
                    kk = list(range(4*(g - LAG), 4*(g - LAG) + 4)) if g >= LAG else []
                    if g < 8:
                        if g == LAG - 1 or (LAG > 8 and g == 7):
                            for it in self.lds_peek(C_ST): self.item(it)
                        lx = P.newlabel('Lx')
                        P(f's_cmp_lg_u32 {sr(sT2)}, {g}')
                        P(waitstr(vm=vm.need(('x', g))))
                        P(f's_cbranch_scc1 {lx}\nds_read_b128 {vr(XRES,4)}, {vr(PKV)} offset:{(g%3)*4096}\nds_read_b128 {vr(XRES+4,4)}, {vr(PKV+1)} offset:{(g%3)*4096}')
                        P.label(lx)
                        for s_ in range(4): P(f'ds_read_b128 {vr(XF+16*g+4*s_,4)}, {vr(AD+s_)} offset:{(g%3)*4096}')
                        lg.issue(('xg', g), 4)
                        if kk and kk[0] > 0: ks0(kk.pop(0))
                        P(waitstr(lg=lg.need(('xg', g))))
                        if g + 3 < 8: self.x0_load(g + 3)
                        if g == o['wgo'] - 1: sig(C_WGO)
                        if g == o['qgo']: sig(C_CSQ)
                        if g == 7: sig(C_XDONE)
                        if g in (0, 3, 5, 7): self.stamp({0: 2, 3: 15, 5: 23, 7: 1}[g], {0: 'x g0 / W go', 3: 'x g3 / W st0', 5: 'x g5 / W st1', 7: 'x0 / W st3'}[g])
                        if g == 7 or not kk or kk[0] == 0:
                            dots(g)
                            if g == 7: extras += stat_fold + self.stats_final(typ)
                            for k in kk: ks0(k)
                        else:
                            for k in kk: ks0(k)
                            dots(g)
                    else:
                        for k in kk: ks0(k)
                pop(100)
            for g in range(0 if LAG else 8):
                if o['xst']: P(f's_cmp_lg_u32 {sr(sT2)}, {g}')
                P(waitstr(vm=vm.need(('x', g))))
                if o['xst']:
                    lx = P.newlabel('Lx')
                    P(f's_cbranch_scc1 {lx}\nds_read_b128 {vr(XRES,4)}, {vr(PKV)} offset:{(g%4)*4096}\nds_read_b128 {vr(XRES+4,4)}, {vr(PKV+1)} offset:{(g%4)*4096}')
                    P.label(lx)
                for s_ in range(4): P(f'ds_read_b128 {vr(XF+16*g+4*s_,4)}, {vr(AD+s_)} offset:{(g%4)*4096}')
                if g: P('s_waitcnt lgkmcnt(4)')
                if g + X0D < 8: self.x0_load(g + X0D)
                if g: dots(g - 1)
                if g == o['wgo'] - 1: self.lds_signal(C_WGO)
                if g in (0, 3, 5): self.stamp({0: 2, 3: 15, 5: 23}[g], {0: 'x g0 / W go', 3: 'x g3 / W st0', 5: 'x g5 / W st1'}[g])
            if not LAG:
                self.lds_signal(C_XDONE)
                lg.reset()
                for it in self.lds_peek(C_ST): self.item(it)
                dots(7)
                self.stamp(1, 'x0 / W st3')
                self.lds_check(C_ST, 4)
                self.stamp(29, 'S0 / W st2')
                for ks in range(NR): rdk(ks); rdv(ks)
                P(f'v_add_f32 {vr(STAT)}, {vr(STAT)}, {vr(STAT+1)}\nv_add_f32 {vr(STAT+2)}, {vr(STAT+2)}, {vr(STAT+3)}')
                P(f'v_permlane32_swap_b32 {vr(STAT)}, {vr(STAT+2)}\nv_add_f32 {vr(STAT)}, {vr(STAT)}, {vr(STAT+2)}')
                extras += self.stats_final(typ)
                pop(10)
                for ks in range(32):
                    pre = None
                    st = ks // 8 + 1
                    if ks % 8 == 2: extras[0:0] = self.lds_peek(C_ST + st if st < 4 else C_CS)
                    if ks % 8 == 5 and st < 4: pre = lambda: self.lds_check(C_ST + st, 4)
                    if ks == 28:
                        pre = lambda: self.lds_check(C_CS, 4)
                        extras += csrd + self.lds_peek(C_Q) + ['s_nop 0']*3 + wext
                    kstep(ks, pre)
                pop(100)
        else:
            vm.reset(); lg.reset()
            redo = P.newlabel('Lkvredo')
            if o['red']: P(f's_lshr_b32 {sr(sT1)}, {sr(sRB)}, 6\ns_add_u32 {sr(sT1)}, {sr(sT1)}, {OFF_FIN}')
            else: P(f's_lshr_b32 {sr(sT1)}, {sr(sRB)}, 3\ns_add_u32 {sr(sT1)}, {sr(sT1)}, {OFF_ST}')
            for it in addr: self.item(it)
            if o['b0']: P('s_barrier')
            self.stamp(14 + L*14 if L < 3 else 57, f'L{L} B0')
            P.label(redo)
            for it in csrd: self.item(it)
            for ks in range(NR): rdk(ks); rdv(ks)
            extras += wext
            if o['red']: extras += [f'v_lshlrev_b32 {vr(STAT+2)}, 3, {vr(vLANE)}', f's_add_u32 {sr(sM)}, {sr(sTAG)}, {L}']
            if o['own']: kstep(0); kstep(1)
            S = self.probe(sOut, 0, L & 1, XD) if L > 1 and not o['hx'] else self.first_hop(0, OFF_XFLAG + 0x2000, 60, L & 1 if V else None, L - 1, 1 if (L > 1 and o['prex']) else None)
            self.stamp(2 + L*14, f'L{L} xflags')
            for ks in range(2, XD + 2): self.frag_load(sOut, ks)
            if L == 1 and o['bq']:
                for it in bqw: self.item(it)
            late = [('wvm', 'st')] + [self.acc_par(STAT + 2*i, STAT + 2*i + 1, L & 1) for i in range(8) if V]
            for step in (8, 4, 2, 1):
                for i in range(step): late.append(f'v_add_f32 {vr(STAT+i)}, {vr(STAT+i)}, {vr(STAT+i+step)}')
            if o['red']: late = [('fn', fincheck)]
            late += self.stats_final(typ)
            for ks in range(2 if o['own'] else 0, 32):
                if ks == (o['rk1'] if o['red'] else 8 + o['st0'] + XD): extras += late
                kstep(ks)
                if V and ks in (o['ev'], o['ev2']): self.verify(L & 1, redo)
            pop(100)
            if V: self.verify(L & 1, redo)
        self.mfma(ACC0, WEXTK, XEXT, ACC0)
        rest = list(range(32 - D, 33))
        def vt(n=1):
            for _ in range(n):
                if rest: vstep(rest.pop(0))
        vt()
        return vt

    def w_read(self, dst, base, off, L, tag, qkv=True):
        if L > 1:
            self.P(f'ds_read_b128 {vr(dst,4)}, {vr(base)} offset:{off}'); self.lg.issue(tag)
        else:
            d = 256 if (L == 0 and qkv) else 512
            self.P(f'ds_read_b64_tr_b16 {vr(dst,2)}, {vr(base)} offset:{off}\nds_read_b64_tr_b16 {vr(dst+2,2)}, {vr(base)} offset:{off+d}'); self.lg.issue(tag, 2)

    def q_prefetch(self, L, NS=5):
        for ks in range(NS): self.q_rd(L, ks)

    def q_rd(self, L, ks, NS=5):
        self.w_read(RING + 4*(ks % NS), vTR1, ks*1024, L, ('w', ks))

    def main_qpass(self, L, acc, fill, at=None, pre_write=None, rate=4):
        P = self.P; typ = L % 2; lg = self.lg; NS = 5
        fill = list(fill)
        for ks in range(32):
            P(waitstr(lg=lg.need(('w', ks))))
            self.mfma(acc, RING + 4*(ks % NS), XF + 4*ks, None if ks == 0 else acc)
            if ks + NS < 32: self.q_rd(L, ks + NS)
            n = 0
            while fill and n < rate:
                it = fill.pop(0); self.item(it)
                if isinstance(it, str) or it[0] == 'ds': n += 1
            if at and ks in at: at[ks]()
        for it in fill: self.item(it)
        self.mfma(acc, WEXTQ, XEXT, acc)
        if at and 32 in at: at[32]()
        order = (4, 5, 6, 7, 0, 1, 2, 3)
        for p in order:
            if typ == 0 and p % 4 == 0:
                for q in range(p, p + 4): P(f'v_pk_mul_f32 {vr(acc+2*q,2)}, {vr(acc+2*q,2)}, {vr(vRSTD,2)} op_sel_hi:[1,0]')
            P(f'v_cvt_pk_bf16_f32 {vr(aQ+p)}, {vr(acc+2*p)}, {vr(acc+2*p+1)}')
            if p == 7:
                if pre_write: pre_write()
                P(f'ds_write_b128 {vr(vKA)}, {vr(aQ+4,4)} offset:5120')

    def tile_addr(self, sbase):
        return f"""s_lshl_b32 {sr(sT1)}, {sr(sHS)}, 10
s_add_u32 {sr(sT1)}, {sr(sT1)}, {sr(sbase)}
v_add_u32 {vr(vKA)}, {sr(sT1)}, {vr(vL16)}
s_lshl_b32 {sr(sT1)}, {sr(sHS)}, 8
v_xor_b32 {vr(vVA)}, {sr(sT1)}, {vr(vL16)}
v_add_u32 {vr(vVA)}, {sr(sbase)}, {vr(vVA)}"""

    def trickle_setup(self):
        self.P(f's_mov_b32 {sr(sDM)}, 4\ns_mov_b32 {sr(sDG)}, {sr(sG0)}\ns_add_u32 {sr(sDL)}, {sr(sLA)}, {sr(sS0)}')

    def trickle(self, keep=0):
        P = self.P; sk = P.newlabel('Lsk')
        P(f's_cmp_le_u32 {sr(sDM)}, {keep}\ns_cbranch_scc1 {sk}\ns_mul_i32 {sr(sT0)}, {sr(sDG)}, 3')
        for e in range(2):
            for nt in (1, 2):
                P(f's_add_u32 m0, {sr(sDL)}, {NT_LDS[nt] + e*1024}\ns_add_u32 {sr(sT1)}, {sr(sT0)}, {e*49152 + nt*1024}')
                P(f'buffer_load_dwordx4 {vr(vDW)}, {sr(sWB,4)}, {sr(sT1)} offen lds')
        P(f"""s_add_u32 {sr(sDL)}, {sr(sDL)}, 8192
s_and_b32 {sr(sDL)}, {sr(sDL)}, 0x7fff
s_add_u32 {sr(sDG)}, {sr(sDG)}, 0x20000
s_and_b32 {sr(sDG)}, {sr(sDG)}, 0x7ffff
s_sub_u32 {sr(sDM)}, {sr(sDM)}, 1""")
        P.label(sk)

    def attn_loop(self, cfirst, trickle=False):
        P = self.P; lp = P.newlabel('Latt')
        if self.o['trunc']: pk = lambda d, e: f'v_perm_b32 {vr(d)}, {vr(e+1)}, {vr(e)}, {sr(sPERM)}'
        else: pk = lambda d, e: f'v_cvt_pk_bf16_f32 {vr(d)}, {vr(e)}, {vr(e+1)}'
        rdv = f's_mov_b64 exec, {sr(sLO,2)}\nds_read_b128 {vr(VV,4)}, {vr(vVA)} offset:2048\nds_read_b128 {vr(VV+4,4)}, {vr(vVA)} offset:3072\ns_mov_b64 exec, -1'
        P(f'ds_read_b128 {vr(aK,4)}, {vr(vKA)}'); P(rdv)
        P(f'v_add_u32 {vr(vKA)}, {sr(sSTEP)}, {vr(vKA)}\nv_add_u32 {vr(vVA)}, {sr(sSTEP)}, {vr(vVA)}\ns_waitcnt lgkmcnt(2)')
        cfirst()
        P(f'ds_read_b128 {vr(aK,4)}, {vr(vKA)}\nv_add_u32 {vr(vKA)}, {sr(sSTEP)}, {vr(vKA)}\ns_nop 9')
        P.label(lp)
        for i in range(8): P(f'v_exp_f32 {vr(aE+i)}, {vr(aS+i)}')
        for p in range(4): P(pk(aP + p, aE + 2*p))
        for i in range(8, 10): P(f'v_exp_f32 {vr(aE+i-8)}, {vr(aS+i)}')
        P('s_waitcnt lgkmcnt(0)')
        self.mfma(aO, VV, aP, aO)
        for i in range(10, 16): P(f'v_exp_f32 {vr(aE+i-8)}, {vr(aS+i)}')
        self.mfma(aS, aK, aQ, None)
        P(f'ds_read_b128 {vr(aK,4)}, {vr(vKA)}')
        for p in range(4): P(pk(aP + 4 + p, aE + 2*p))
        P(f'v_add_u32 {vr(vKA)}, {sr(sSTEP)}, {vr(vKA)}\ns_sub_u32 {sr(sCNT)}, {sr(sCNT)}, 1')
        self.mfma(aO, VV + 4, aP + 4, aO)
        P(rdv)
        if trickle and self.o['trk']: self.trickle(4 - self.o['trk'])
        P(f'v_add_u32 {vr(vVA)}, {sr(sSTEP)}, {vr(vVA)}\ns_cmp_lg_u32 {sr(sCNT)}, 0\ns_cbranch_scc1 {lp}')

    def v_lanes(self):
        return [f'v_mov_b32 {vr(vSTV)}, {LDS_ONES - 2048}', f'v_cndmask_b32 {vr(vVA)}, {vr(vSTV)}, {vr(vVA)}, {sr(sLO,2)}',
                f'v_mov_b32 {vr(vSTV)}, {sr(sSTEP)}', f'v_cndmask_b32 {vr(vSTV)}, 0, {vr(vSTV)}, {sr(sLO,2)}']

    def attn2(self, M, first, trickle=False):
        P = self.P; lp = P.newlabel('Latt'); dn = P.newlabel('Lattd')
        pk = lambda d, e: f'v_perm_b32 {vr(d)}, {vr(e+1)}, {vr(e)}, {sr(sPERM)}'
        ex = lambda S, a, b: P('\n'.join(f'v_exp_f32 {vr(S+i)}, {vr(S+i)}' for i in range(a, b)))
        rdk = f'ds_read_b128 {vr(aK,4)}, {vr(vKA)}\nv_add_u32 {vr(vKA)}, {sr(sSTEP)}, {vr(vKA)}'
        P(rdk.replace(vr(aK,4), vr(aP,4))); P(rdk); P(f'ds_read_b128 {vr(VV,4)}, {vr(vVA)} offset:2048\ns_waitcnt lgkmcnt(2)')
        first()
        P('s_waitcnt lgkmcnt(1)\ns_nop 6')
        P.label(lp)
        for half, (S, N) in enumerate(((M, aS), (aS, M))):
            P('s_waitcnt lgkmcnt(2)')
            self.mfma(N, aK, aQ, None)
            P(rdk)
            ex(S, 0, 4)
            P('s_waitcnt lgkmcnt(2)')
            self.mfma(aO, VV + 4, aP + 4, aO)
            P(f'ds_read_b128 {vr(VV+4,4)}, {vr(vVA)} offset:3072\nv_add_u32 {vr(vVA)}, {vr(vSTV)}, {vr(vVA)}')
            ex(S, 4, 10)
            for p in range(4): P(pk(aP + p, S + 2*p))
            ex(S, 10, 12)
            P('s_waitcnt lgkmcnt(2)')
            self.mfma(aO, VV, aP, aO)
            P(f'ds_read_b128 {vr(VV,4)}, {vr(vVA)} offset:2048')
            if trickle and self.o['trk']: self.trickle(4 - self.o['trk'])
            ex(S, 12, 16)
            P(f's_sub_u32 {sr(sCNT)}, {sr(sCNT)}, 1')
            for p in range(4): P(pk(aP + 4 + p, S + 8 + 2*p))
            P(f's_cbranch_scc1 {dn}' if half == 0 else f's_cbranch_scc0 {lp}')
        P.label(dn)

    def publish_o_addr(self, L):
        return [f's_add_u32 {sr(sK0)}, {sr(sOW)}, {OFF_O}'] + ([f's_add_u32 {sr(sK1)}, {sr(sOF)}, {OFF_OFLAG}'] if L == 0 or self.o['ho'] else [])

    def publish_o(self, L, O, eps):
        P = self.P
        if eps: P(f'v_add_f32 {vr(O+8)}, {f2u(eps):#x}, {vr(O+8)}')
        P(f'v_rcp_f32 {vr(O+8)}, {vr(O+8)}')
        if L % 2 == 0 and self.o['omul']:
            for i in range(8): P(f'v_mul_f32 {vr(O+i)}, {vr(O+8)}, {vr(O+i)}')
        else:
            for p in range(4): P(f'v_pk_mul_f32 {vr(O+2*p,2)}, {vr(O+2*p,2)}, {vr(O+8,2)} op_sel_hi:[1,0]')
        for p in range(4): P(f'v_cvt_pk_bf16_f32 {vr(aP+p)}, {vr(O+2*p)}, {vr(O+2*p+1)}')
        P(self.set_par(aP, 1 - (L & 1)))
        def emit(sc1):
            P(f'buffer_store_dwordx4 {vr(aP,4)}, {vr(vL16)}, {sr(sWS,4)}, {sr(sK0)} offen' + (' sc1' if sc1 else (['', ' nt', ' sc1', ' sc0'][self.o.get('o3', 0)] if L == 3 or self.o.get('nta') else '')))
            if L == 0: self.flag(sK1, sTAG, sc1, wait=None if self.o['clr'] else 's_waitcnt vmcnt(0)')
            elif self.o['ho'] and (sc1 or not self.o['eb' if L & 1 else 'ea']): self.flag(sK1, sTAG, sc1, add=L)
        self.two_way(emit)

    def main_outproj(self, L):
        P = self.P; vm, lg = self.vm, self.lg; OD = self.o['od'] if L != 1 else self.o['od1']; par = 1 - (L & 1)
        vm.reset(); lg.reset()
        redo = P.newlabel('Lopredo')
        PO = self.o['preo'] and L > 0
        if PO: P(f'v_and_b32 v111, 124, {vr(vL4)}\nv_add_u32 v111, {OFF_OFLAG}, v111\nbuffer_load_dword v103, v111, {sr(sWS,4)}, {sr(sXF)} offen sc1')
        if L == 0:
            for op in ['s_waitcnt vmcnt(2)' if self.o['clr'] else 's_waitcnt vmcnt(1)'] + [f'v_permlane32_swap_b32 {vr(XRES+a)}, {vr(XRES+b)}' for a, b in SW4] + self.wphi_pack(170): P(op)
        for i in range(4): P(f'v_mov_b32 {vr(XF+i)}, {vr(aP+i)}')
        NS = 6; RG = 24 if L == 0 and self.o['bq'] else 32; V = L or self.o['clr']
        def rd(ks):
            self.w_read(RING + 4*(ks % NS), vTR2, ks*1024, L, ('w', ks), qkv=False)
        self.publish_x_addr(L + 1)
        P.label(redo)
        for ks in range(NS): rd(ks)
        self.unpack_res()
        S = self.probe(sWS, OFF_O, par, OD) if L > 0 and not self.o['ho'] else self.first_hop(OFF_O, OFF_OFLAG, 124, par if V else None, L, 0 if PO else None)
        SG = self.o['sg'] if L == 1 else 0
        EX = self.o['ex'] if L in (1, 2) else 0
        if SG:
            l = P.newlabel('Lx'); lw = P.newlabel('Lx')
            P(f's_cmp_lt_u32 {sr(sMT)}, 2\ns_cbranch_scc1 {l}'); P.label(lw)
            P(f'ds_read_b32 {vr(vT0)}, {vr(vCNT)} offset:{4*C_WGO}\ns_waitcnt lgkmcnt(0)\nv_cmp_gt_u32 vcc, 6, {vr(vT0)}\ns_cbranch_vccnz {lw}')
            P.label(l)
        self.stamp(11 + L*14, f'L{L} oflags')
        for ks in range(1, OD + 1): self.frag_load(sWS, ks)
        for ks in range(32):
            P(waitstr(vm=vm.need(('x', ks)), lg=lg.need(('w', ks))))
            self.mfma(ACC0, RING + 4*(ks % NS), XF + 4*(ks % RG), ACC0)
            if ks + OD < 32 and ks: self.frag_load(sWS, ks + OD, RG)
            if ks + NS < 32: rd(ks + NS)
            if SG and ks == SG - 1: self.item(('ds', 'sg', f's_mov_b64 exec, 2\nds_add_u32 {vr(vCNT)}, {vr(vLANE)} offset:{4*C_WGO}\ns_mov_b64 exec, -1'))
            if V and ks & 1: P(self.acc_par(XF + 4*ks - 4, XF + 4*ks, par))
            if V and ks in (self.o['ev'], self.o['ev2']): self.verify(par, redo)
            if self.o['prex'] and L in (1, 2) and ks == 25: P(f'v_and_b32 v111, 60, {vr(vL4)}\nv_add_u32 v111, {OFF_XFLAG + 0x2000}, v111')
            if EX and ks == 24:
                for op in self.hint_prep(106, L): P(op)
            if EX and ks == EX: self.hint(106, sK2); vm.issue('h')
        if V: self.verify(par, redo)
        if EX == 32: self.hint(106, sK2)
        self.stamp(12 + L*14, f'L{L} outproj')
        nxt = L + 1 < self.nl and not self.o['b0']
        if nxt: P(f'ds_read_b32 {vr(vT0)}, {vr(vCNT)} offset:{4*C_WR}')
        self.publish_x(L + 1)
        if nxt: self.lds_signal(C_XDONE)
        self.stamp(13 + L*14, f'L{L} xpub')

    def aux_head(self, L):
        P = self.P
        if self.o['b0']: P('s_barrier')
        else: self.lds_signal(C_WR)
        if L + 1 < self.nl: self.code_prefetch(f'L_main_{L+1}')
        if L == 3: return
        if L == 2: return self.aux_head2(L)
        if L > 1 and not self.o['b0']: self.lds_wait(C_XDONE, 4 + 4*L, self.o['lsleep'])
        if L == 1:
            self.lds_to_regs(LDS_WO, PARK['o'], True); P('s_waitcnt vmcnt(0) lgkmcnt(0)')
            if self.o['bq']: self.lds_wait(C_Q, 8, self.o['lsleep'])
            self.relayout(1, (0,))
        else: self.swap_region('o', L + 1 < self.nl, L == 2)

    def aux_head2(self, L):
        if self.o['red']: self.stats_reduce(L)
        if self.o['chain'] and L == 2:
            for i in range(32): self.P(f'v_mov_b32 {vr(PARK[0]+i)}, {vr(32+i)}')
        if L > 1:
            if not self.o['b0']: self.lds_wait(C_XDONE, 4 + 4*L, self.o['lsleep'])
            self.swap_region('o', L + 1 < self.nl, L == 2)

    def stats_reduce(self, L):
        P = self.P; sk = P.newlabel('Lx'); lp = P.newlabel('Lred'); dn = P.newlabel('Lredd'); R = 64; par = L & 1
        P(f"""s_lshl_b32 {sr(sT0)}, {sr(sMT)}, 2
s_cmp_lg_u32 {sr(sT0)}, {sr(sC)}
s_cbranch_scc1 {sk}
s_setprio 3
v_and_b32 {vr(vPA)}, 60, {vr(vL4)}
s_add_u32 {sr(sT2)}, {sr(sXF)}, {OFF_XFLAG + 0x2000}
s_add_u32 {sr(sT0)}, {sr(sTAG)}, {L - 1}
s_lshr_b32 {sr(sT1)}, {sr(sRB)}, 3
s_add_u32 {sr(sT1)}, {sr(sT1)}, {OFF_ST}
s_lshr_b32 {sr(sT3)}, {sr(sRB)}, 6
s_add_u32 {sr(sT3)}, {sr(sT3)}, {OFF_FIN}
v_and_b32 {vr(R+18)}, 15, {vr(vLANE)}
v_lshrrev_b32 {vr(R+17)}, 4, {vr(vLANE)}
v_lshl_add_u32 {vr(R+18)}, {vr(R+18)}, 2, {vr(R+17)}
v_lshlrev_b32 {vr(R+18)}, 3, {vr(R+18)}
v_add_u32 {vr(R+17)}, {sr(sTAG)}, {L}""")
        self.poll(sT2, val=sT0)
        if self.o['rsl'] and L > 1: P(f's_sleep {self.o["rsl"]}')
        P.label(lp)
        for i in range(4): P(f'buffer_load_dwordx4 {vr(R+4*i,4)}, {vr(vL16)}, {sr(sWS,4)}, {sr(sT1)} offen offset:{i*1024} sc1')
        P(f'v_mov_b32 {vr(vPD)}, {par}')
        for i in range(4):
            P(f's_waitcnt vmcnt({3 - i})'); P(self.acc_par(R + 4*i, R + 4*i + 1, par)); P(self.acc_par(R + 4*i + 2, R + 4*i + 3, par))
            if i:
                for k in range(4): P(f'v_add_f32 {vr(R+k)}, {vr(R+k)}, {vr(R+4*i+k)}')
        P(self.test_par(par))
        P(f'v_permlane32_swap_b32 {vr(R)}, {vr(R+2)}\nv_permlane32_swap_b32 {vr(R+1)}, {vr(R+3)}\nv_add_f32 {vr(R)}, {vr(R)}, {vr(R+2)}\nv_add_f32 {vr(R+1)}, {vr(R+1)}, {vr(R+3)}')
        P(f'v_permlane16_swap_b32 {vr(R)}, {vr(R+1)}\nv_add_f32 {vr(R+16)}, {vr(R)}, {vr(R+1)}\ns_cbranch_vccz {dn}')
        P(f's_sub_u32 {sr(sBUD)}, {sr(sBUD)}, 1\ns_cbranch_scc0 {lp}\ns_mov_b32 {sr(sBUD)}, 0')
        P.label(dn)
        self.two_way(lambda sc1: P(f'buffer_store_dwordx2 {vr(R+16,2)}, {vr(R+18)}, {sr(sWS,4)}, {sr(sT3)} offen' + (' sc1' if sc1 else '')))
        P('s_setprio 0')
        P.label(sk)

    def aux_tail(self, L):
        P = self.P
        if L + 1 >= self.nl:
            if self.o.get('wb'):
                lw = P.newlabel('Lx')
                P(f's_lshr_b32 {sr(sT0)}, s2, {3 if self.o["wb"] == 1 else 8}\ns_or_b32 {sr(sT0)}, {sr(sT0)}, {sr(sMT)}\ns_cmp_lg_u32 {sr(sT0)}, 0\ns_cbranch_scc1 {lw}')
                P('s_waitcnt vmcnt(0)\ns_sleep 8\nbuffer_wbl2 sc1\ns_waitcnt vmcnt(0)')
                P.label(lw)
            return
        if L % 2 == 0: wait_att = lambda: self.lds_wait(C_ATT, 8*(L//2 + 1), self.o['lsleep'])
        else: wait_att = lambda: None
        if L == 0:
            lp = P.newlabel('Lx'); P.label(lp)
            self.trickle()
            P(f's_cmp_lg_u32 {sr(sDM)}, 0\ns_cbranch_scc1 {lp}')
            self.wphi_load()
            if self.o['bq']: P('s_waitcnt vmcnt(0)')
            else:
                wait_att()
                self.dma_w(1, (0,))
                P('s_waitcnt vmcnt(8)')
            for op in self.wphi_pack(): P(op)
            self.relayout(1, (1, 2))
            if self.o['bq']: wait_att()
            return
        save = L + 2 < self.nl
        if L == 1:
            for st in range(4): P(f's_add_u32 {sr(sT0)}, {sr(sS0)}, {st*8192}\ns_and_b32 {sr(sT0)}, {sr(sT0)}, 0x7fff\nv_add_u32 {vr(64+st)}, {sr(sT0)}, {vr(vCH)}')
        if self.o['chain'] and L == 1:
            dst = 32
            for nt in (1, 2, 0):
                self.lds_to_regs(NT_LDS[nt], dst, True)
                self.regs_to_lds(NT_LDS[nt], PARK[nt], True)
                dst = PARK[nt]
            return
        if self.o['chain'] and L == 2:
            self.regs_to_lds(LDS_WK, PARK[0]); self.regs_to_lds(LDS_WV, PARK[1])
            wait_att()
            self.regs_to_lds(LDS_WQ, PARK[2])
            return
        self.swap_region(1, save, L == 1); self.swap_region(2, save, L == 1)
        wait_att()
        self.swap_region(0, save, L == 1)

    def layerA(self, L):
        P = self.P; sb = L * 14; o = self.o; lg = self.lg
        j1 = f'L_j1_{L}'; j2 = f'L_j2_{L}'; ax2 = f'L_ax2_{L}'; ax3 = f'L_ax3_{L}'
        P.label(f'L_main_{L}')
        vt = self.main_kv(L)
        self.stamp(3 + sb, f'L{L} kvpass')
        if L == 0: self.lds_check(C_Q, 4)
        if L and o['vlaga']:
            vt()
            for p in range(8):
                P(f'v_mul_f32 {vr(ACC0+2*p)}, {vr(vRSTD)}, {vr(ACC0+2*p)}\nv_mul_f32 {vr(ACC0+2*p+1)}, {vr(vRSTD)}, {vr(ACC0+2*p+1)}')
                P(f'v_cvt_pk_bf16_f32 {vr(PKV+p)}, {vr(ACC0+2*p)}, {vr(ACC0+2*p+1)}')
                if p & 1: vt()
            vt(99)
            self.q_prefetch(L)
            P(waitstr(lg=lg.need('rt')))
        else:
            self.q_prefetch(L)
            P(waitstr(lg=lg.need('rt')))
            for p in range(8):
                P(f'v_pk_mul_f32 {vr(ACC0+2*p,2)}, {vr(ACC0+2*p,2)}, {vr(vRSTD,2)} op_sel_hi:[1,0]')
            for p in range(8): P(f'v_cvt_pk_bf16_f32 {vr(PKV+p)}, {vr(ACC0+2*p)}, {vr(ACC0+2*p+1)}')
        st = lambda f: f'buffer_store_dwordx4 {vr(PKV+4*f,4)}, {vr(vL16)}, {sr(sWS,4)}, {sr(sK0)} offen offset:{f*1024}{MODS[o["sm"]]}'
        fill = [st(0), st(1)]
        for hf in range(2):
            fill += [f'v_mul_f32 {vr(ACC1+i)}, {vr(STAT+i)}, {vr(ACC1+i)}' for i in range(8*hf, 8*hf + 8)]
            fill += [f'v_cvt_pk_bf16_f32 {vr(PKV+8+p)}, {vr(ACC1+2*p)}, {vr(ACC1+2*p+1)}' for p in range(4*hf, 4*hf + 4)]
            fill.append(st(2 + hf))
        fill += self.checksum(vPD, PKV, 16) + [f'buffer_store_dword {vr(vPD)}, {vr(vL4)}, {sr(sWS,4)}, {sr(sK2)} offen{MODS[o["sm"]]}']
        fill += [('ds', 'own', f'ds_write_b128 {vr(vKA)}, {vr(PKV+4*f,4)} offset:{f*1024}') for f in range(4)]
        if L == 0 and o['early']:
            fill.append(('ds', 'kd', f'v_mov_b32 {vr(vPD)}, 1\ns_mov_b64 exec, 1\nds_add_u32 {vr(vCNT)}, {vr(vPD)} offset:{4*C_CS}\ns_mov_b64 exec, -1'))
        m0 = self.mask_ops(0, lean=True)
        if L == 0: fill += m0[:4] + self.lds_peek(C_CSQ) + m0[4:16] + [('fn', lambda: self.lds_check(C_CSQ, 8 if o['il'] else 4))]
        else: fill += m0[:16]
        fill += [('ds', 'cs', f'ds_read_b128 {vr(WEXTQ,4)}, {vr(vT0)}')] + m0[16:]
        fill += [f'v_mul_f32 {vr(vRSTD)}, {f2u(0.25*LOG2E):#x}, {vr(vRSTD)}'] + self.wext_items(WEXTQ, 'cs')
        def halo_loads(m=' sc1'):
            for t_, sh in ((0, sH1), (1, sH2)):
                P(f's_add_u32 m0, {sr(sHL)}, {t_*4096}')
                for f in range(4): P(f'buffer_load_dwordx4 {vr(vL16)}, {sr(sWS,4)}, {sr(sh)} offen offset:{f*1024}{m} lds')
                P(f'buffer_load_dword {vr(65+t_)}, v67, {sr(sWS,4)}, {sr(sh)} offen{m}')
        La = L // 2; sHL = sM + 6
        fill += self.mask_ops(1)
        AT2 = o['at2']
        common = self.publish_o_addr(L) + [f's_add_u32 {sr(sCNT)}, {sr(sQT)}, {1 - AT2}', f's_mov_b32 {sr(sSTEP)}, {-OWN_ST}']
        common += [f's_add_u32 {sr(sH1)}, {sr(sHB)}, {OFF_KV + La*KV_L}', f's_add_u32 {sr(sH2)}, {sr(sH1)}, {16*KV_REC}',
                   f's_lshl_b32 {sr(sHL)}, {sr(sMT)}, 13', f's_add_u32 {sr(sHL)}, {sr(sHL)}, {LDS_T}', f'v_add_u32 v67, 4096, {vr(vL4)}']
        p1 = f's_cmp_lt_u32 {sr(sQT)}, 2' if o['p1'] else f's_cmp_ge_u32 {sr(sQT)}, 2'
        pre2 = (self.v_lanes() + [f'v_mov_b32 {vr(aP+4+i)}, 0' for i in range(4)]) if AT2 else []
        def gap32():
            for it in common + [f'v_mov_b32 {vr(vVA)}, {vr(vKA)}'] + pre2: P(it)
            self.mfma(aO, aP + 4, aP + 4, None)
        at = {32: gap32}
        if L == 2 and o.get('fine'):
            self.stamp(32, 'L2 Kepi'); lg.reset()
            at[12] = lambda: (self.stamp(43, 'L2 q12'), lg.reset()); at[31] = lambda: (self.stamp(51, 'L2 q31'), lg.reset())
        self.main_qpass(L, ACC0, fill, at=at, rate=o['qrate'])
        if o['prio']: self.prio_if(p1)
        self.stamp(5 + sb, f'L{L} preB1')
        P(f's_waitcnt lgkmcnt(0)\ns_barrier')
        P(f's_branch {j1}')
        P.label(f'L_aux_{L}')
        if L > 0:
            self.aux_head(L)
            for op in self.mask_ops(0) + self.mask_ops(1): P(op)
        else:
            self.trickle_setup()
            if o['early']:
                self.lds_wait(C_CS, 8, 1)
                for _ in range(o['early']): self.trickle()
            if o['clr']:
                self.hello_check()
                if o['clr'] == 1: self.clear_lines(aO)
            else: self.hello_load()
        P(self.tile_addr(sOWN))
        for it in common + pre2: P(it)
        if o['prio']: self.prio_if(p1)
        self.stamp(5 + sb, f'L{L} preB1')
        P('s_barrier')
        P(f'ds_read_b128 {vr(aQ,4)}, {vr(vKA)} offset:4096')
        P.label(j1)
        l = P.newlabel('Lx')
        P(f's_cmp_eq_u32 {sr(sHAS)}, 0\ns_cbranch_scc1 {l}')
        halo_loads(MODS[o['hm']])
        P.label(l)
        if AT2: self.attn2(CDIAG, lambda: self.mfma(CDIAG, aP, aQ, CDIAG))
        else: self.attn_loop(lambda: self.mfma(aS, aK, aQ, CDIAG))
        P(self.tile_addr(sP2))
        P(f's_sub_u32 {sr(sCNT)}, {sr(sC2)}, {AT2}\ns_mov_b32 {sr(sSTEP)}, 4096')
        if AT2:
            for it in self.v_lanes(): P(it)
        if o['prio'] and not o['p1']: self.prio_if(f's_cmp_lt_u32 {sr(sQT)}, 2')
        self.stamp(6 + sb, f'L{L} own attn')
        lp = P.newlabel('Lhalo'); ck = P.newlabel('Lhchk'); dn = P.newlabel('Lhdone')
        nh = P.newlabel('Lnh')
        P(f's_cmp_eq_u32 {sr(sHAS)}, 0\ns_cbranch_scc1 {nh}\nv_add_u32 {vr(vT0)}, {sr(sHL)}, {vr(vL16)}\ns_branch {ck}')
        P.label(lp)
        halo_loads()
        P.label(ck)
        for t_, R in ((0, aS), (1, CDIAG)):
            P(f's_waitcnt vmcnt({5-5*t_})')
            for f in range(4): P(f'ds_read_b128 {vr(R+4*f,4)}, {vr(vT0)} offset:{(4*t_+f)*1024}')
        for t_, R in ((0, aS), (1, CDIAG)):
            cs = self.checksum(68 + t_, R, 16)
            for f in range(4):
                P(f's_waitcnt lgkmcnt({7-4*t_-f})'); P(cs[2*f]); P(cs[2*f + 1])
            P(f'v_cmp_ne_u32 {sr(sM+2*t_,2)}, {vr(65+t_)}, {vr(68+t_)}')
        P(f's_or_b64 {sr(sM,2)}, {sr(sM,2)}, {sr(sM+2,2)}\ns_cbranch_scc0 {dn}')
        self.retry_tail(lp, dn)
        self.stamp(7 + sb, f'L{L} halo ok')
        P.label(nh)
        if L == 0: P(f's_cmp_lg_u32 {sr(sHS)}, 0\ns_cbranch_scc1 {ax2}')
        if L == 0:
            if not o['xst']:
                self.rowmajor_addr(182, 183, sT0)
                P(f'buffer_load_dwordx4 {vr(XRES,4)}, v182, {sr(sX0,4)}, {sr(sT0)} offen\nbuffer_load_dwordx4 {vr(XRES+4,4)}, v182, {sr(sX0,4)}, {sr(sT0)} offen offset:32')
            self.wphi_load(170)
            P(f's_branch {j2}'); P.label(ax2)
            P('s_waitcnt vmcnt(0) lgkmcnt(0)')
            if not o['clr']: self.hello_check()
            if o['pfb'] == 2: self.coop_prefetch(1, 1)
            if o['clr']:
                P(f"""s_mov_b64 exec, 3
v_mul_u32_u24 v5, {OFF_OFLAG - OFF_XFLAG - 0x2000}, {vr(vLANE)}
s_add_u32 {sr(sT1)}, {sr(sXF)}, {OFF_XFLAG + 0x2000}
buffer_load_dword v26, v5, {sr(sWS,4)}, {sr(sT1)} offen sc1
s_mov_b64 exec, -1""")
            elif o['touch']:
                P(f"""v_lshlrev_b32 v5, 3, {vr(vL16)}
v_and_b32 v5, 0x780, v5
s_add_u32 {sr(sT0)}, {sr(sXW)}, {OFF_O}
s_add_u32 {sr(sT1)}, {sr(sSW)}, {OFF_ST}
s_mov_b64 exec, 0xffff
buffer_load_dword v26, v5, {sr(sWS,4)}, {sr(sT0)} offen sc1
buffer_load_dword v26, v5, {sr(sOut,4)}, {sr(sXW)} offen sc1
s_mov_b64 exec, 3
buffer_load_dword v26, v5, {sr(sWS,4)}, {sr(sT1)} offen sc1
v_mul_u32_u24 v5, {OFF_OFLAG - OFF_XFLAG - 0x2000}, {vr(vLANE)}
s_add_u32 {sr(sT1)}, {sr(sXF)}, {OFF_XFLAG + 0x2000}
buffer_load_dword v26, v5, {sr(sWS,4)}, {sr(sT1)} offen sc1
s_mov_b64 exec, 15
v_lshlrev_b32 v5, 7, {vr(vLANE)}
s_lshr_b32 {sr(sT1)}, {sr(sRB)}, 6
s_add_u32 {sr(sT1)}, {sr(sT1)}, {OFF_FIN}
buffer_load_dword v26, v5, {sr(sWS,4)}, {sr(sT1)} offen sc1
s_mov_b64 exec, -1""")
        P.label(j2)
        lskip = P.newlabel('Lnohalo'); l1 = P.newlabel('Lr1'); l2 = P.newlabel('Lr2')
        EA = o['ea'] if L else 0
        if EA:
            for op in self.hint_prep(70, L): P(op)
        P('s_waitcnt lgkmcnt(0)\ns_barrier')
        if L == 0 and not self.force_safe: P(f'ds_read_b32 {vr(vPD)}, {vr(vCNT)} offset:44')
        self.stamp(8 + sb, f'L{L} B2')
        if L == 0 and o['bq']:
            lb = P.newlabel('Lx')
            P(f's_cmp_lg_u32 {sr(sHS)}, 0\ns_cbranch_scc1 {lb}')
            if 1:
                P(f"""v_lshrrev_b32 v184, 2, {vr(vLANE)}
v_mul_u32_u24 v184, 3072, v184
v_and_b32 v185, 48, {vr(vL16)}
s_lshl_b32 {sr(sT0)}, {sr(sC)}, 6
v_add3_u32 v184, v184, v185, {sr(sT0)}
s_lshl_b32 {sr(sT2)}, {sr(sROT)}, 1
s_add_u32 {sr(sT2)}, {sr(sT2)}, {sr(sMT)}
s_lshl_b32 {sr(sT2)}, {sr(sT2)}, 15""")
                for st in range(4):
                    P(f's_and_b32 {sr(sT2)}, {sr(sT2)}, 0x7ffff\ns_mul_i32 {sr(sT0)}, {sr(sT2)}, 3\ns_add_u32 {sr(sT3)}, {sr(sT0)}, 49152')
                    P(f'buffer_load_dwordx4 {vr(224+8*st,4)}, v184, {sr(sWB,4)}, {sr(sT0)} offen\nbuffer_load_dwordx4 {vr(228+8*st,4)}, v184, {sr(sWB,4)}, {sr(sT3)} offen')
                    if st < 3: P(f's_add_u32 {sr(sT2)}, {sr(sT2)}, 0x20000')
            P.label(lb)
        P(f's_cmp_eq_u32 {sr(sR)}, 0\ns_cbranch_scc1 {lskip}')
        def first():
            P(f's_cmp_eq_u32 {sr(sR)}, 1\ns_cbranch_scc1 {l1}')
            self.mfma(CFIRST if AT2 else aS, aP if AT2 else aK, aQ, CFIRST)
            P(f's_branch {l2}'); P.label(l1)
            self.mfma(CFIRST if AT2 else aS, aP if AT2 else aK, aQ, None)
            P.label(l2)
        if AT2: self.attn2(CFIRST, first, trickle=(L == 0))
        else: self.attn_loop(first, trickle=(L == 0))
        P.label(lskip)
        if AT2:
            P('s_waitcnt lgkmcnt(1)'); self.mfma(aO, VV + 4, aP + 4, aO)
        if EA == 1: self.hint(70, sK1)
        if L == 0 and not self.force_safe: P(f's_waitcnt lgkmcnt(0)\nv_readfirstlane_b32 {sr(sFAST)}, {vr(vPD)}')
        self.stamp(9 + sb, f'L{L} attn')
        P(f'v_subrev_u32 {vr(vT0)}, {f2u(2.0**-SAFE_EXP):#x}, {vr(aO+8)}\nv_cmp_le_u32 vcc, {f2u(2.0**SAFE_EXP) - f2u(2.0**-SAFE_EXP):#x}, {vr(vT0)}\ns_cbranch_vccnz L_fb_{L}')
        P.label(f'L_fbr_{L}')
        if EA == 2: self.hint(70, sK1)
        self.publish_o(L, aO, 0)
        if o['prio']: P('s_setprio 0')
        self.lds_signal(C_ATT)
        self.stamp(10 + sb, f'L{L} opub')
        P(f's_cmp_lg_u32 {sr(sHS)}, 0\ns_cbranch_scc1 {ax3}')
        if o['fpr']:
            l = P.newlabel('Lx')
            P(f's_cmp_lt_u32 {sr(sMT)}, 2\ns_cbranch_scc1 {l}\ns_setprio {o["fpr"]}'); P.label(l)
        self.main_outproj(L)
        P(f's_branch L_main_{L+1}')
        P.label(ax3)
        self.aux_tail(L)
        self.stamp(13 + sb, f'L{L} xpub')
        P(f's_branch L_aux_{L+1}')

    def attn_fallback(self, L):
        P = self.P; M = vT0
        pk = lambda d, e: f'v_cvt_pk_bf16_f32 {vr(d)}, {vr(e)}, {vr(e+1)}'
        P.label(f'L_fb_{L}')
        P(f's_waitcnt lgkmcnt(0)\nv_mov_b32 {vr(M)}, 0xff800000')
        for op in self.mask_ops(0) + self.mask_ops(1): P(op)
        for ps in range(2):
            for seg in range(2):
                lp = P.newlabel('Lfb'); nx = P.newlabel('Lfbn'); nm = P.newlabel('Lfbm')
                if seg == 0:
                    P(self.tile_addr(sOWN))
                    P(f's_add_u32 {sr(sCNT)}, {sr(sQT)}, 1\ns_mov_b32 {sr(sSTEP)}, {-OWN_ST}')
                    for i in range(16): P(f'v_mov_b32 {vr(aS+i)}, {vr(CDIAG+i)}')
                else:
                    P(f's_cmp_eq_u32 {sr(sR)}, 0\ns_cbranch_scc1 {nx}')
                    P(self.tile_addr(sP2))
                    P(f's_mov_b32 {sr(sCNT)}, {sr(sC2)}\ns_mov_b32 {sr(sSTEP)}, 4096\ns_cmp_eq_u32 {sr(sR)}, 1\ns_cbranch_scc1 {lp}')
                    for i in range(16): P(f'v_mov_b32 {vr(aS+i)}, {vr(CFIRST+i)}')
                P.label(lp)
                P(f'ds_read_b128 {vr(aK,4)}, {vr(vKA)}')
                if ps:
                    P(f's_mov_b64 exec, {sr(sLO,2)}\nds_read_b128 {vr(VV,4)}, {vr(vVA)} offset:2048\nds_read_b128 {vr(VV+4,4)}, {vr(vVA)} offset:3072\ns_mov_b64 exec, -1')
                P('s_waitcnt lgkmcnt(0)')
                self.mfma(aS, aK, aQ, aS)
                if ps == 0:
                    for i in range(0, 16, 2): P(f'v_max3_f32 {vr(M)}, {vr(M)}, {vr(aS+i)}, {vr(aS+i+1)}')
                else:
                    for i in range(16): P(f'v_sub_f32 {vr(aS+i)}, {vr(aS+i)}, {vr(M)}')
                    for i in range(16): P(f'v_exp_f32 {vr(aS+i)}, {vr(aS+i)}')
                    for p in range(8): P(pk(aP + p, aS + 2*p))
                    self.mfma(aO, VV, aP, aO)
                    self.mfma(aO, VV + 4, aP + 4, aO)
                for i in range(16): P(f'v_mov_b32 {vr(aS+i)}, 0')
                P(f'v_add_u32 {vr(vKA)}, {sr(sSTEP)}, {vr(vKA)}\nv_add_u32 {vr(vVA)}, {sr(sSTEP)}, {vr(vVA)}')
                P(f's_sub_u32 {sr(sCNT)}, {sr(sCNT)}, 1\ns_cmp_lg_u32 {sr(sCNT)}, 0\ns_cbranch_scc1 {lp}')
                P.label(nx)
            if ps == 0:
                P(f'v_mov_b32 {vr(vPD)}, {vr(M)}\nv_permlane32_swap_b32 {vr(vPD)}, {vr(M)}\nv_max_f32 {vr(M)}, {vr(M)}, {vr(vPD)}')
        P(f's_branch L_fbr_{L}')

    def softmax16(self, dst, t, inject=None, start=0, step=1, pk=True):
        if inject is None: return self.softmax16_(dst, t, self.P, pk)
        ops = []
        self.softmax16_(dst, t, lambda x: ops.extend(x.split('\n')))
        inject = list(inject)
        for i, op in enumerate(ops):
            if i >= start and (i - start) % step == 0 and inject: self.P(inject.pop(0))
            self.P(op)
        for x in inject: self.P(x)

    def softmax16_(self, dst, t, P, pk=True):
        A = ACC0
        P(f'v_max3_f32 {vr(t)}, {vr(A)}, {vr(A+1)}, {vr(A+2)}\nv_max3_f32 {vr(t+1)}, {vr(A+3)}, {vr(A+4)}, {vr(A+5)}')
        P(f'v_max3_f32 {vr(t+2)}, {vr(A+6)}, {vr(A+7)}, {vr(A+8)}\nv_max3_f32 {vr(t+3)}, {vr(A+9)}, {vr(A+10)}, {vr(A+11)}')
        P(f'v_max3_f32 {vr(t)}, {vr(t)}, {vr(A+12)}, {vr(A+13)}\nv_max3_f32 {vr(t+1)}, {vr(t+1)}, {vr(A+14)}, {vr(A+15)}')
        P(f'v_max3_f32 {vr(t)}, {vr(t)}, {vr(t+2)}, {vr(t+3)}\nv_max_f32 {vr(t)}, {vr(t)}, {vr(t+1)}')
        P(f'v_mul_f32 {vr(t)}, {vr(vRSTD)}, {vr(t)}')
        if not pk:
            for i in range(4): P(f'v_fma_f32 {vr(A+i)}, {vr(A+i)}, {vr(vRSTD)}, -{vr(t)}')
            for i in range(16):
                P(f'v_exp_f32 {vr(A+i)}, {vr(A+i)}')
                if i + 4 < 16: P(f'v_fma_f32 {vr(A+i+4)}, {vr(A+i+4)}, {vr(vRSTD)}, -{vr(t)}')
                if i in (3, 4): P(f'v_add_f32 {vr(t+i-1)}, {vr(A+i-3)}, {vr(A+i-1)}')
                if i >= 5: P(f'v_add_f32 {vr(t+2+(i+1)%2)}, {vr(t+2+(i+1)%2)}, {vr(A+i-1)}')
            P(f'v_add_f32 {vr(t+3)}, {vr(t+3)}, {vr(A+15)}\nv_add_f32 {vr(t+2)}, {vr(t+2)}, {vr(t+3)}\nv_rcp_f32 {vr(t)}, {vr(t+2)}')
            for i in range(16): P(f'v_mul_f32 {vr(A+i)}, {vr(t)}, {vr(A+i)}')
            for p in range(8): P(f'v_cvt_pk_bf16_f32 {vr(dst+p)}, {vr(A+2*p)}, {vr(A+2*p+1)}')
            return
        fm = lambda p: f'v_pk_fma_f32 {vr(A+2*p,2)}, {vr(A+2*p,2)}, {vr(vRSTD,2)}, {vr(t,2)} op_sel_hi:[1,0,0] neg_lo:[0,0,1] neg_hi:[0,0,1]'
        P(fm(0)); P(fm(1))
        for p in range(8):
            P(f'v_exp_f32 {vr(A+2*p)}, {vr(A+2*p)}')
            if p + 2 < 8: P(fm(p + 2))
            P(f'v_exp_f32 {vr(A+2*p+1)}, {vr(A+2*p+1)}')
            if p == 2: P(f'v_pk_add_f32 {vr(t+2,2)}, {vr(A,2)}, {vr(A+2,2)}')
            if p >= 3: P(f'v_pk_add_f32 {vr(t+2,2)}, {vr(t+2,2)}, {vr(A+2*p-2,2)}')
        P(f'v_pk_add_f32 {vr(t+2,2)}, {vr(t+2,2)}, {vr(A+14,2)}\nv_add_f32 {vr(t+2)}, {vr(t+2)}, {vr(t+3)}\nv_rcp_f32 {vr(t)}, {vr(t+2)}')
        for p in range(8): P(f'v_pk_mul_f32 {vr(A+2*p,2)}, {vr(A+2*p,2)}, {vr(t,2)} op_sel_hi:[1,0]')
        for p in range(8): P(f'v_cvt_pk_bf16_f32 {vr(dst+p)}, {vr(A+2*p)}, {vr(A+2*p+1)}')

    def layerB(self, L):
        P = self.P; Lb = L // 2; sb = L * 14; o = self.o; lg = self.lg
        j0 = f'L_j0_{L}'; j1 = f'L_j1_{L}'; j2 = f'L_j2_{L}'; ax1 = f'L_ax1_{L}'; ax1b = f'L_ax1b_{L}'; ax3 = f'L_ax3_{L}'; axz = f'L_axz_{L}'
        KA, KV_ = 48, 96
        vA16, vA4, vAW, vAO = 96, 97, 98, 99
        P.label(f'L_main_{L}')
        vt = self.main_kv(L)
        if o['fpr']: P('s_setprio 0')
        self.stamp(3 + sb, f'L{L} kvpass')
        P(waitstr(lg=lg.need('rt')))
        vt()
        for p in (4, 5, 6, 7): P(f'v_cvt_pk_bf16_f32 {vr(PKV+p)}, {vr(ACC0+2*p)}, {vr(ACC0+2*p+1)}')
        P(f'ds_write_b128 {vr(vKA)}, {vr(PKV+4,4)} offset:1024'); lg.issue('kb', 2 if o['pw1'] else 1)
        PW = o['pw1']
        if PW:
            o['vpre'] = 2
            P(f'ds_write_b32 {vr(PKV+8)}, {vr(PKV+9)} offset:{4*C_ST}')
        vt()
        for p in (0, 1, 2, 3): P(f'v_cvt_pk_bf16_f32 {vr(PKV+p)}, {vr(ACC0+2*p)}, {vr(ACC0+2*p+1)}')
        vmul = lambda p: f'v_pk_mul_f32 {vr(ACC1+2*p,2)}, {vr(ACC1+2*p,2)}, {vr(STAT+2*p,2)}'
        if o['vlag']:
            vt(99)
            self.mfma(ACC0, WPHI, PKV, None)
            for i in range(16): P(f'v_mul_f32 {vr(ACC1+i)}, {vr(STAT+i)}, {vr(ACC1+i)}')
        else:
            P(vmul(0)); P(vmul(1))
            self.mfma(ACC0, WPHI, PKV, None)
            for p in range(2, 8): P(vmul(p))
        if o['vpre'] != 1 and not PW: P('s_waitcnt lgkmcnt(0)\ns_barrier')
        for f in range(2, 4):
            for p in range(4*f - 8, 4*f - 4): P(f'v_cvt_pk_bf16_f32 {vr(PKV+8+p)}, {vr(ACC1+2*p)}, {vr(ACC1+2*p+1)}')
            P(f'ds_write_b128 {vr(vKA)}, {vr(PKV+4*f,4)} offset:{f*1024}')
        if o['vpre'] == 1: P('s_waitcnt lgkmcnt(0)\ns_barrier')
        P(f's_branch {j0}')
        P.label(f'L_aux_{L}')
        self.aux_head(L)
        for i in range(32): P(f'v_mov_b32 {vr(KV_+i)}, {vr(ONES)}')
        P(f"""v_lshrrev_b32 v91, 5, {vr(vLANE)}
v_bfe_u32 v88, {vr(vLANE)}, 2, 2
v_lshl_add_u32 v88, v91, 2, v88
v_lshlrev_b32 v88, 5, v88
v_and_b32 v89, 1, {vr(vLANE)}
v_lshl_add_u32 v88, v89, 4, v88
v_bfe_u32 v89, {vr(vLANE)}, 4, 1
v_lshl_add_u32 v88, v89, 12, v88
v_bfe_u32 v89, {vr(vLANE)}, 1, 1
v_lshl_add_u32 v88, v89, 3, v88
s_lshl_b32 {sr(sT0)}, {sr(sMT)}, 10
s_add_u32 {sr(sT0)}, {sr(sT0)}, {LDS_OWN}
v_add_u32 v88, {sr(sT0)}, v88
s_lshl_b32 {sr(sT1)}, {sr(sMT)}, 8
v_xor_b32 v90, {sr(sT1)}, {vr(vL16)}
v_add_u32 v89, {LDS_OWN}, v90
s_lshl_b32 {sr(sT0)}, {sr(sMT)}, 1
v_add_u32 v91, {sr(sT0)}, v91
v_and_b32 v92, 31, {vr(vLANE)}
v_mov_b32 v93, {OOB >> 4:#x}
v_cmp_eq_u32 vcc, 16, v92
v_cndmask_b32 v91, v93, v91, vcc
v_lshrrev_b32 v92, 8, v90
v_mul_u32_u24 v92, {KP_Q}, v92
v_and_b32 v93, 15, {vr(vLANE)}
v_lshl_add_u32 v90, v93, 4, v92
v_lshl_add_u32 v92, v93, 2, v92
v_lshlrev_b32 v93, 4, v91
v_add_u32 v93, {KP_Z}, v93
v_lshlrev_b32 v91, 4, v91
v_add_u32 v91, 64, v91
v_cndmask_b32 v91, v91, v92, {sr(sLO,2)}
v_cndmask_b32 v90, v93, v90, {sr(sLO,2)}
v_add_u32 v93, 64, v93
v_add_u32 v92, 256, v90
v_cndmask_b32 v93, v93, v92, {sr(sLO,2)}
s_lshl_b32 {sr(sK2)}, {sr(sC)}, 4
s_add_u32 {sr(sK2)}, {sr(sK2)}, {sr(sR)}
s_mul_i32 {sr(sK2)}, {sr(sK2)}, {KP_REC}
s_add_u32 {sr(sK2)}, {sr(sK2)}, {OFF_KP + Lb*KP_L}""")
        P(self.tile_addr(sOWN))
        for op in self.phi_addr(): P(op)
        P(f's_lshl_b32 {sr(sT0)}, {sr(sQT)}, 7\ns_add_u32 {sr(sT0)}, {sr(sT0)}, {LDS_RSTD}\nv_and_b32 v25, 124, {vr(vL4)}\nv_add_u32 v25, {sr(sT0)}, v25')
        self.aux_head2(L)
        self.stamp(3 + sb, f'L{L} kvpass')
        if PW:
            lw = P.newlabel('Lpw')
            P(f's_lshl_b32 {sr(sT0)}, {sr(sQT)}, 2\nv_add_u32 v26, {sr(sT0)}, {vr(vCNT)}')
            P.label(lw)
            if o['pws']: P(f's_sleep {o["pws"]}')
            P(f'ds_read_b32 {vr(vPD)}, v26 offset:{4*C_ST}\nds_read_b128 {vr(RING+8,4)}, {vr(vKA)}\nds_read_b32 {vr(vRSTD)}, v25\ns_waitcnt lgkmcnt(1)')
            P(f'v_cmp_gt_u32 vcc, {5 + Lb}, {vr(vPD)}\ns_cbranch_vccnz {lw}')
        else:
            P('s_barrier')
            P(f'ds_read_b128 {vr(RING+8,4)}, {vr(vKA)}\nds_read_b32 {vr(vRSTD)}, v25\ns_waitcnt lgkmcnt(1)')
        self.mfma(ACC0, WPHI, RING + 8, None)
        P(f's_waitcnt lgkmcnt(0)\nv_mul_f32 {vr(vRSTD)}, {sr(sLOG2E)}, {vr(vRSTD)}')
        vrd = [f'ds_read_b128 {vr(KV_+4*st,4)}, v89 offset:{(st>>1)*OWN_ST + 2048 + (st&1)*1024}' for st in range(8)]
        if o['vpre'] == 1:
            P(f's_mov_b64 exec, {sr(sLO,2)}')
            for x in vrd: P(x)
            P('s_mov_b64 exec, -1')
        else: P('s_nop 7')
        jw = P.newlabel('Lpw')
        if PW == 1:
            P(f's_cmp_ge_u32 {sr(sQT)}, 2\ns_cbranch_scc1 {j0}')
            self.stamp(4 + sb, f'L{L} B1a')
            self.softmax16(RING, RING + 12, pk=False)
            P(f's_branch {jw}')
        P.label(j0)
        self.stamp(4 + sb, f'L{L} B1a')
        self.softmax16(RING, RING + 12)
        P.label(jw)
        P(f'ds_write_b128 {vr(vVA)}, {vr(RING,4)}\nds_write_b128 {vr(vVA)}, {vr(RING+4,4)} offset:4096\ns_waitcnt lgkmcnt(0)\ns_barrier')
        self.stamp(5 + sb, f'L{L} B1b')
        common = self.publish_o_addr(L) + f"""s_mul_i32 {sr(sH1)}, {sr(sC)}, {16*KP_REC}
s_add_u32 {sr(sH1)}, {sr(sH1)}, {OFF_KP + Lb*KP_L}
s_mov_b32 {sr(sSEL0)}, 0x3f80
s_mov_b32 {sr(sSEL1)}, 0x3f800000
s_lshl_b32 {sr(sT0)}, {sr(sHS)}, 4
v_xor_b32 {vr(vAO)}, {sr(sT0)}, {vr(vLANE)}
v_lshlrev_b32 {vr(vAO)}, 5, {vr(vAO)}
v_add_u32 {vr(vAO)}, {LDS_KVT}, {vr(vAO)}
v_and_b32 v100, 32, {vr(vLANE)}
s_lshl_b32 {sr(sT0)}, {sr(sHS)}, 6
s_add_u32 {sr(sT0)}, {sr(sT0)}, {LDS_ZT}
v_add_u32 v100, {sr(sT0)}, v100
v_cndmask_b32 {vr(vAO)}, v100, {vr(vAO)}, {sr(sLO,2)}""".split('\n')
        SEL = 104
        addr_main = f"""s_mul_i32 {sr(sH2)}, {sr(sMT)}, {KP_Q}
s_add_u32 {sr(sH2)}, {sr(sH2)}, {sr(sH1)}
v_lshrrev_b32 v100, 4, {vr(vLANE)}
v_and_b32 v101, 15, {vr(vLANE)}
v_mul_u32_u24 {vr(vA16)}, {KP_REC}, v100
v_lshl_add_u32 {vr(vA4)}, v101, 2, {vr(vA16)}
v_lshl_add_u32 {vr(vA16)}, v101, 4, {vr(vA16)}
s_lshl_b32 {sr(sT0)}, {sr(sMT)}, 9
s_add_u32 {sr(sT0)}, {sr(sT0)}, {LDS_KVT}
v_lshl_add_u32 {vr(vAW)}, v101, 5, {sr(sT0)}
v_lshl_add_u32 {vr(vAW)}, v100, 3, {vr(vAW)}
v_lshlrev_b32 v100, 4, {vr(vLANE)}
v_lshlrev_b32 v100, v100, {sr(sSEL0)}
v_lshrrev_b32 v101, 1, v101""".split('\n')
        for r_ in range(8): addr_main += [f'v_cmp_eq_u32 vcc, {r_}, v101\nv_cndmask_b32 {vr(SEL+r_)}, 0, v100, vcc']
        addr_z = f"""v_lshrrev_b32 v102, 4, {vr(vLANE)}
v_mul_u32_u24 {vr(vA16)}, {KP_REC}, v102
v_bfe_u32 v100, {vr(vLANE)}, 3, 1
v_and_b32 v101, 1, {vr(vLANE)}
v_lshl_add_u32 v100, v100, 1, v101
v_bfe_u32 v101, {vr(vLANE)}, 1, 2
v_mul_u32_u24 {vr(vA4)}, {4*KP_REC}, v100
v_add_u32 {vr(vA4)}, {vr(vA4)}, {vr(vA16)}
v_lshl_add_u32 {vr(vA4)}, v101, 4, {vr(vA4)}
v_lshlrev_b32 {vr(vAW)}, 5, v101
v_lshl_add_u32 {vr(vAW)}, v100, 3, {vr(vAW)}
v_lshl_add_u32 {vr(vAW)}, v102, 1, {vr(vAW)}
v_add_u32 {vr(vAW)}, {LDS_ZT}, {vr(vAW)}
v_and_b32 v100, 15, {vr(vLANE)}
v_lshl_add_u32 {vr(vA16)}, v100, 3, {vr(vA16)}""".split('\n')
        A = ACC1; KD = 128; T = A + 4
        def loads_main(P=P, m=' sc1'):
            P(f's_mov_b32 {sr(sT0)}, {sr(sH2)}')
            for it in range(4):
                D = KD + 12*it
                P(f'buffer_load_dwordx4 {vr(D,4)}, {vr(vA16)}, {sr(sWS,4)}, {sr(sT0)} offen{m}\nbuffer_load_dwordx4 {vr(D+4,4)}, {vr(vA16)}, {sr(sWS,4)}, {sr(sT0)} offen offset:256{m}')
                P(f'buffer_load_dword {vr(D+8)}, {vr(vA4)}, {sr(sWS,4)}, {sr(sT0)} offen offset:512{m}')
                if it < 3: P(f's_add_u32 {sr(sT0)}, {sr(sT0)}, {4*KP_REC}')
        def accum(D, first, t0):
            P(f'v_add3_u32 {vr(T)}, {t0 if first else vr(T)}, {vr(D)}, {vr(D+1)}')
            for k in range(2):
                if first: P(f'v_lshlrev_b32 {vr(A+2*k)}, 16, {vr(D+k)}\nv_and_b32 {vr(A+2*k+1)}, 0xffff0000, {vr(D+k)}')
                else: P(f'v_dot2_f32_bf16 {vr(A+2*k)}, {vr(D+k)}, {sr(sSEL0)}, {vr(A+2*k)}\nv_dot2_f32_bf16 {vr(A+2*k+1)}, {vr(D+k)}, {sr(sSEL1)}, {vr(A+2*k+1)}')
        dpp = lambda c: f'v_add_u32_dpp {vr(T)}, {vr(T)}, {vr(T)} {c} row_mask:0xf bank_mask:0xf'
        P(f's_cmp_lg_u32 {sr(sHS)}, 0\ns_cbranch_scc1 {ax1}')
        lg.reset()
        self.q_prefetch(L)
        fill = [('ds', 'cs', f'ds_read_b128 {vr(WEXTQ,4)}, {vr(vT0)}')] + common
        fill += addr_main
        fill += self.wext_items(WEXTQ, 'cs')
        self.main_qpass(L, ACC1, fill, pre_write=lambda: P('s_barrier'), rate=2)
        self.mfma(ACC0, WPHI, aQ, None)
        P('s_waitcnt lgkmcnt(0)\ns_barrier')
        if o['kp_at'] == 1: loads_main()
        if o['kp_at'] >= 2:
            inj = []; loads_main(lambda x: inj.extend(x.split('\n')))
            self.softmax16(PHQ, RING + 12, inj, o['kp_at'], o['kp_step'])
            self.stamp(6 + sb, f'L{L} phiq / kp stored')
            P(f's_branch L_kpc_{L}')
        else: P(f's_branch {j1}')
        P.label(ax1)
        P(f's_cmp_ge_u32 {sr(sMT)}, 2\ns_cbranch_scc1 {ax1b}\ns_setprio 3')
        if o['vpre'] == 2:
            P(f's_mov_b64 exec, {sr(sLO,2)}')
            for x in vrd: P(x)
            P('s_mov_b64 exec, -1')
        n_ = 2 if o['vpre'] else 3
        for st in range(8):
            of = (st >> 1)*OWN_ST + (st & 1)*512
            P(f'ds_read_b64_tr_b16 {vr(KA+4*st,2)}, v88 offset:{of}\nds_read_b64_tr_b16 {vr(KA+2+4*st,2)}, v88 offset:{of+256}')
            if not o['vpre']: P(f's_mov_b64 exec, {sr(sLO,2)}\n{vrd[st]}\ns_mov_b64 exec, -1')
            if st >= 3:
                P(f's_waitcnt lgkmcnt({3*n_})'); self.mfma(ACC0, KA + 4*(st-3), KV_ + 4*(st-3), None if st == 3 else ACC0)
        for st in range(5, 8):
            P(f's_waitcnt lgkmcnt({n_*(7-st)})'); self.mfma(ACC0, KA + 4*st, KV_ + 4*st, ACC0)
        for p in range(8): P(f'v_cvt_pk_bf16_f32 {vr(80+p)}, {vr(ACC0+2*p)}, {vr(ACC0+2*p+1)}')
        P(f'buffer_store_dwordx4 v[80:83], v90, {sr(sWS,4)}, {sr(sK2)} offen{MODS[o["sm"]]}\nbuffer_store_dwordx4 v[84:87], v93, {sr(sWS,4)}, {sr(sK2)} offen{MODS[o["sm"]]}')
        for op in self.checksum(92, 80, 8): P(op)
        P(f'buffer_store_dword v92, v91, {sr(sWS,4)}, {sr(sK2)} offen offset:512{MODS[o["sm"]]}')
        self.stamp(6 + sb, f'L{L} phiq / kp stored')
        P('s_setprio 0')
        P.label(ax1b)
        if L == 1: self.dma_w(1, ('o',))
        for it in common + addr_z: P(it)
        P('s_barrier\ns_barrier')
        P(f'ds_read_b128 {vr(aQ,4)}, {vr(vKA)} offset:4096\ns_waitcnt lgkmcnt(0)')
        self.mfma(ACC0, WPHI, aQ, None)
        P('s_nop 11')
        P.label(j1)
        self.softmax16(PHQ, RING + 12)
        if o['kp_at'] >= 2: P(f's_branch {axz}')
        else:
            P(f's_cmp_lg_u32 {sr(sHS)}, 0\ns_cbranch_scc1 {axz}')
            self.stamp(6 + sb, f'L{L} phiq / kp stored')
        lp = P.newlabel('Lkp'); ck = f'L_kpc_{L}'; dn = P.newlabel('Lkpd')
        if o['kp_at'] == 0 and o['km'] != 1: loads_main(m=MODS[o['km']])
        if o['kp_at'] == 1 or (o['kp_at'] == 0 and o['km'] != 1): P(f's_branch {ck}')
        P.label(lp)
        loads_main()
        P.label(ck)
        for it in range(4):
            D = KD + 12*it; cs = self.checksum(D + 9, D, 8)
            P(f's_waitcnt vmcnt({10 - 3*it})')
            for hf in range(2):
                P(f'v_mfma_f32_16x16x32_bf16 {vr(A,4)}, {vr(SEL+4*hf,4)}, {vr(D+4*hf,4)}, {"0" if it + hf == 0 else vr(A,4)}')
            for op in cs: P(op)
            P(f's_waitcnt vmcnt({9 - 3*it})\nv_cmp_ne_u32 {sr(sM+2*it,2)}, {vr(D+8)}, {vr(D+9)}')
            if it == 2: P(f's_or_b64 {sr(sM,2)}, {sr(sM,2)}, {sr(sM+2,2)}')
            if it == 3: P(f's_or_b64 {sr(sM,2)}, {sr(sM,2)}, {sr(sM+4,2)}')
        P(f'v_cvt_pk_bf16_f32 v68, {vr(A)}, {vr(A+1)}\nv_cvt_pk_bf16_f32 v69, {vr(A+2)}, {vr(A+3)}\nds_write_b64 {vr(vAW)}, v[68:69]')
        P(f's_or_b64 {sr(sM,2)}, {sr(sM,2)}, {sr(sM+6,2)}\ns_cbranch_scc0 {dn}')
        self.retry_tail(lp, dn)
        self.stamp(7 + sb, f'L{L} kp ok')
        P(f's_branch {j2}')
        P.label(axz)
        if L == 1:
            P('s_waitcnt vmcnt(0)')
        P(f's_cmp_lg_u32 {sr(sMT)}, 2\ns_cbranch_scc1 {j2}')
        lp = P.newlabel('Lkz'); dn = P.newlabel('Lkzd'); D = 32
        P.label(lp)
        P(f's_mov_b32 {sr(sT0)}, {sr(sH1)}\nbuffer_load_dword {vr(D+8)}, {vr(vA4)}, {sr(sWS,4)}, {sr(sT0)} offen offset:576 sc1')
        for it in range(4):
            P(f'buffer_load_dwordx2 {vr(D+2*it,2)}, {vr(vA16)}, {sr(sWS,4)}, {sr(sT0)} offen offset:{KP_Z} sc1')
            if it < 3: P(f's_add_u32 {sr(sT0)}, {sr(sT0)}, {4*KP_REC}')
        for it in range(4):
            P(f's_waitcnt vmcnt({3 - it})')
            accum(D + 2*it, it == 0, sr(sTAG))
            if it == 0: P(f'v_sub_u32 {vr(T)}, {vr(T)}, {vr(D+8)}')
        P(dpp('quad_perm:[1,0,3,2]'))
        P(f'v_permlane32_swap_b32 {vr(A)}, {vr(A+2)}\nv_permlane32_swap_b32 {vr(A+1)}, {vr(A+3)}')
        P(dpp('row_ror:8'))
        P(f'v_add_f32 {vr(A)}, {vr(A)}, {vr(A+2)}\nv_add_f32 {vr(A+1)}, {vr(A+1)}, {vr(A+3)}\nv_cmp_ne_u32 vcc, 0, {vr(T)}')
        P(f'v_permlane16_swap_b32 {vr(A)}, {vr(A+1)}\nv_add_f32 {vr(A)}, {vr(A)}, {vr(A+1)}\nv_cvt_pk_bf16_f32 v68, {vr(A)}, {vr(A)}\nds_write_b16 {vr(vAW)}, v68')
        P(f's_cbranch_vccz {dn}')
        self.retry_tail(lp, dn)
        P.label(j2)
        P('s_waitcnt lgkmcnt(0)\ns_barrier')
        self.stamp(8 + sb, f'L{L} B2')
        P(f'ds_read_b128 v[68:71], {vr(vAO)}\nds_read_b128 v[72:75], {vr(vAO)} offset:16')
        if o['eb']:
            for op in self.hint_prep(78, L): P(op)
        if o['eb'] == 1: self.hint(78, sK1)
        P('s_waitcnt lgkmcnt(1)')
        self.mfma(ACC0, 68, PHQ, None)
        if o['eb'] == 2: self.hint(78, sK1)
        P('s_waitcnt lgkmcnt(0)')
        self.mfma(ACC0, 72, PHQ + 4, ACC0)
        if o['eb'] == 3: self.hint(78, sK1)
        self.publish_o(L, ACC0, 1e-6)
        self.stamp(10 + sb, f'L{L} opub')
        P(f's_cmp_lg_u32 {sr(sHS)}, 0\ns_cbranch_scc1 {ax3}')
        if o['epr'] and L == 1: self.prio_if(f's_cmp_lt_u32 {sr(sMT)}, 2')
        elif o['mpr']: P(f's_setprio {o["mpr"]}')
        self.main_outproj(L)
        if o['epr'] == 1 and L == 1: self.prio_if(f's_cmp_ge_u32 {sr(sMT)}, 2')
        P(f's_branch L_main_{L+1}')
        P.label(ax3)
        self.aux_tail(L)
        self.stamp(13 + sb, f'L{L} xpub')
        P(f's_branch L_aux_{L+1}')

    def epilogue(self):
        P = self.P; nl = self.nl
        P.label(f'L_main_{nl}')
        P(f's_or_b32 {sr(sT0)}, s2, {sr(sW)}\ns_cmp_lg_u32 {sr(sT0)}, 0\ns_cbranch_scc1 L_aux_{nl}\ns_mov_b32 {sr(sT2)}, 0')
        self.flag(sT2, sTAG, False)
        P.label(f'L_aux_{nl}')
        if self.stamps:
            P('s_waitcnt vmcnt(0)')
            self.stamp(62, 'end')
            P(f's_memtime {sr(sST,2)}\ns_waitcnt lgkmcnt(0)\ns_sub_u32 {sr(sST)}, {sr(sST)}, s100\nv_writelane_b32 {vr(vSTAMP)}, {sr(sST)}, 59')
            P(f'''v_writelane_b32 {vr(vSTAMP)}, {sr(sBUD)}, 63
v_writelane_b32 {vr(vSTAMP)}, {sr(sFAST)}, 61
v_writelane_b32 {vr(vSTAMP)}, s99, 58
v_writelane_b32 {vr(vSTAMP)}, s101, 56
s_lshl_b32 {sr(sT0)}, s2, 3
s_add_u32 {sr(sT0)}, {sr(sT0)}, {sr(sW)}
s_lshl_b32 {sr(sT0)}, {sr(sT0)}, 8
s_add_u32 {sr(sT0)}, {sr(sT0)}, {OFF_STAMP}
buffer_store_dword {vr(vSTAMP)}, {vr(vL4)}, {sr(sWS,4)}, {sr(sT0)} offen''')
            if self.o.get('dbgst'):
                P(f's_cmp_lg_u32 {sr(sHS)}, 0\ns_cbranch_scc1 L_end\ns_load_dwordx2 s[64:65], s[0:1], 64\nv_mov_b32 v30, 0')
                for j, (idx, neg) in enumerate([(60, 1), (60, 0), (0, 0), (2, 0), (1, 0), (3, 0), (8, 0), (10, 0), (13, 0), (27, 0), (41, 0), (62, 0), (59, 0), (3, 1), (13, 1), (62, 1)]):
                    P(f'v_readlane_b32 s66, {vr(vSTAMP)}, {idx}')
                    if neg: P('s_not_b32 s66, s66')
                    P(f'v_writelane_b32 v30, s66, {j}')
                P('s_waitcnt lgkmcnt(0)')
                self.srd(68, 64, 256)
                P(f's_mov_b64 exec, 0xffff\nbuffer_atomic_umax v30, {vr(vL4)}, s[68:71], 0 offen\ns_waitcnt vmcnt(0)')
        if self.o.get('spin'):
            lp = P.newlabel('Lspin'); P.label(lp)
            P(f's_memrealtime s[66:67]\ns_waitcnt lgkmcnt(0)\ns_sub_u32 s66, s66, s98\ns_cmp_lt_u32 s66, {self.o["spin"]}\ns_cbranch_scc1 {lp}')
        P.label('L_end')
        P('s_endpgm')

    def build(self):
        self.prologue()
        for L in range(self.nl):
            (self.layerA if L % 2 == 0 else self.layerB)(L)
        self.epilogue()
        self.emit_stubs()
        for L in range(0, self.nl, 2): self.attn_fallback(L)
        n = self.P.fix_hazards()
        errs = self.P.check_waits()
        head = open(f'cdna_kernels/{NAME}.s.ref').read().split('; @launch')[0]
        s = head + f'; @launch grid=(256,1,1) block=(512,1,1) lds={LDS_TOTAL}\n'
        s += f'.amdgcn_target "amdgcn-amd-amdhsa--gfx950"\n.text\n.globl {NAME}_kernel\n.p2align 8\n.type {NAME}_kernel,@function\n{NAME}_kernel:\n'
        s += self.P.text().replace('CODE_BYTES', '(L_end - %s_kernel - 1088)' % NAME)
        s += f'''.section .rodata,"a"
.p2align 6
.amdhsa_kernel {NAME}_kernel
  .amdhsa_next_free_vgpr 256
  .amdhsa_next_free_sgpr 102
  .amdhsa_accum_offset 256
  .amdhsa_group_segment_fixed_size 0
  .amdhsa_kernarg_size 80
  .amdhsa_user_sgpr_count 2
  .amdhsa_user_sgpr_kernarg_segment_ptr 1
  .amdhsa_system_sgpr_workgroup_id_x 1
.end_amdhsa_kernel
'''
        return s, n, errs


if __name__ == '__main__':
    import argparse, json
    ap = argparse.ArgumentParser()
    ap.add_argument('-o', default=f'cdna_kernels/{NAME}.s')
    ap.add_argument('--stamps', action='store_true')
    ap.add_argument('--safe', action='store_true')
    ap.add_argument('--cyc', action='store_true')
    ap.add_argument('--opt', nargs='*', default=[])
    ap.add_argument('--noalias', action='store_true')
    ap.add_argument('--nl', type=int, default=4)
    a = ap.parse_args()
    g = Gen(stamps=a.stamps, nlayers=a.nl, force_safe=a.safe, cyc=a.cyc, alias=not a.noalias, opt={k: int(v) for k, v in (x.split('=') for x in a.opt)})
    s, n, errs = g.build()
    open(a.o, 'w').write(s)
    if a.stamps: json.dump(g.stamp_names, open(a.o + '.stamps.json', 'w'))
    print('instructions', sum(1 for x in g.P.L if x.op), 'nops inserted', n, 'lds', LDS_TOTAL)
    for e in errs[:8]: print('WAITCHECK', e)
```

```python
import sys, struct
sys.path.insert(0, 'dev')
from asmlib import *

NAME = 'interleave_layers__sliding_block__linear_kernel_hedgehog__prompt'
def f2u(x): return struct.unpack('<I', struct.pack('<f', x))[0]
LOG2E = 1.4426950408889634

OFF_XFLAG = 0x1000
OFF_OFLAG = 0x9000
OFF_FIN = 0x12000
OFF_STAMP = 0x30000
OFF_ST = 0x100000
OFF_X = 0x200000
OFF_O = 0xA00000
OFF_KV = 0x1200000
KV_REC = 4480; KV_L = 1024*KV_REC
OFF_KP = 0x1B00000
KP_REC = 2688; KP_Q = 640; KP_Z = 2560; KP_L = 256*KP_REC
WS_USED = 0x2000000
OOB = 0x40000000
TAGC = 0x9E3779B0
SAFE_EXP = 30

LDS_WK = 0; LDS_WV = 32768; LDS_WQ = 65536; LDS_T = 65536; LDS_WO = 98304
LDS_OWN = 131072; OWN_ST = 6144
LDS_CSP = LDS_OWN + 4*OWN_ST
LDS_RSTD = LDS_CSP + 3072; LDS_KVT = LDS_RSTD + 512; LDS_ZT = LDS_KVT + 2048
LDS_FAST = LDS_ZT + 128; LDS_CNT = LDS_FAST + 16; LDS_ONES = LDS_FAST + 64; LDS_PHI = LDS_ONES + 1040; LDS_TOTAL = LDS_PHI + 1024
NT_LDS = {0: LDS_WQ, 1: LDS_WK, 2: LDS_WV, 'o': LDS_WO}
C_ST, C_XDONE, C_WGO, C_CS, C_Q, C_ATT, C_CSQ, C_WR = 0, 4, 5, 6, 7, 8, 9, 10

sWS, sX0, sWA, sWoA, sWB, sWoB, sPhi, sOut = 4, 8, 12, 16, 20, 24, 28, 32
sR, sC, sW, sMT, sHS, sRT, sQT, sTAG, sFAST, sBUD = 36, 37, 38, 39, 40, 41, 42, 43, 44, 45
sT0, sT1, sT2, sT3 = 46, 47, 48, 49
sLO = 50
sOWNF = 52; sCNT = 53; sSTEP = 54; sLOG2E = 55; sST = 56
sROT = 58; sDM = 59; sH0 = 60
sG0 = 62; sPERM = 63
sM = 64
sOW, sOF, sHB, sHAS, sP2, sC2, sOWN, sKVW, sXW, sSW, sXF, sRB = 72, 73, 74, 75, 76, 77, 78, 79, 80, 81, 82, 83
sLA = 86; sDG = 87; sDL = 88; sLB = 89; sLR = 90; sK0 = 91; sK1 = 92; sK2 = 93; sSEL0 = 94; sSEL1 = 95; sH1 = 96; sH2 = 97; sC1008 = 3; sS0 = 3
vT0, vLANE, vL16, vL4, vCNT, vTR1, vTR2, vSTAMP = 0, 1, 2, 3, 4, 5, 6, 7
XRES, WPHI = 8, 16
vDW, vDO, vCH, vCS, ONES = 8, 9, 10, 11, 12
vRSTD, vKA, vVA, vPD, vPA, vRA, vRB, vFD = 20, 21, 22, 23, 24, 25, 26, 27
vCK = vPD; XEXT = 28; ACC0 = 32; ACC1 = 48; RING = 64; WEXTQ = 84; WEXTK = 88; WEXTV = 92; VV = 88
STAT = 96; CDIAG = 96; PKV = 112; CFIRST = 112; XF = 128
aS, aO, aE, aQ, aK, aP, aH = 32, 48, 64, 72, 76, 80, 128
vSTV = 64
PHQ = 112
PARK = {1: 128, 2: 160, 0: 192, 'o': 224}
MFMA = 'v_mfma_f32_32x32x16_bf16'
MODS = ['', ' sc1', ' sc0', ' nt', ' sc0 sc1', ' sc1 nt', ' sc0 sc1 nt']
def cho(u): return (u >> 1)*8192 + (u & 1)*1024
TV_O = (5, 7, 8, 10); TV_K = (0, 6, 0, 9)
SW4 = ((0, 2), (1, 3), (4, 6), (5, 7))


class Gen:
    def __init__(self, stamps=False, nlayers=4, force_safe=False, cyc=False, alias=True, opt=None):
        self.cyc = cyc; self.alias = alias
        self.o = dict(halo_at=35, prio=2, trunc=1, wgo=2, wgon=2, xd=8, od=10, x0d=3, psleep=1, kp_at=0, spec=0, pw=16, tlb=0, touch=1, b0=0, mcs=1, pre=2, pst=0, trk=3, ool=1, at2=1, qrate=4, omul=1, specx=0, lsleep=2, ev=5, st0=3, wo_at=0, pf=1, pfb=0, psp=0, xst=1, bq=0, early=0, p1=0, o3=1, outm=1, kp_step=2, vpre=1, hm=1, km=1, sm=1, pw1=2, pws=2, il=0, qgo=5, csk=22, wearly=0, apr=1, fpr=0, epr=0, mpr=0, sg=0, od1=10, pp=0, em=0, hx=1, ho=1, hp=1, hs=2, ex=32, ea=2, eb=3, clr=0, vlag=0, vlaga=0, prex=1, preo=1, ev2=11, red=1, rk0=22, rk1=28, own=0, chain=1, rsl=0, plds=1, pfw=1, hpr=0, vfirst=0, bql=0, pq=0, tpos=0, hb=1)
        self.o.update(opt or {})
        self.P = Prog(); self.stamps = stamps; self.nl = nlayers; self.force_safe = force_safe
        self.stamp_names = {}
        self.vm = Tracker(63); self.lg = Tracker(15); self.stubs = []; self.ool = []

    def stamp(self, idx, name=''):
        if not self.stamps: return
        self.stamp_names[idx] = name
        self.P(f'{"s_memtime" if self.cyc else "s_memrealtime"} {sr(sST,2)}\ns_waitcnt lgkmcnt(0)\nv_writelane_b32 {vr(vSTAMP)}, {sr(sST)}, {idx}')

    def al(self, L): return 0 if self.alias else L

    def mfma(self, d, a, b, c):
        cs = '0' if c is None else vr(c, 16)
        self.P(f'{MFMA} {vr(d,16)}, {vr(a,4)}, {vr(b,4)}, {cs}')

    def srd(self, s, ptr, nbytes):
        self.P(f's_mov_b32 {sr(s)}, {sr(ptr)}\ns_and_b32 {sr(s+1)}, {sr(ptr+1)}, 0xffff\ns_mov_b32 {sr(s+2)}, {nbytes}\ns_mov_b32 {sr(s+3)}, 0x20000')

    def poll(self, soff, masked=False, areg=vPA, val=sTAG):
        P = self.P; lp = P.newlabel('Lpoll'); dn = P.newlabel('Lpolld')
        P.label(lp)
        P(f'buffer_load_dword {vr(vPD)}, {vr(areg)}, {sr(sWS,4)}, {sr(soff)} offen sc1\ns_waitcnt vmcnt(0)')
        if masked:
            P(f'v_and_b32 {vr(vT0)}, -16, {vr(vPD)}\nv_cmp_ne_u32 vcc, {sr(sTAG)}, {vr(vT0)}')
        else:
            P(f'v_cmp_ne_u32 vcc, {sr(val)}, {vr(vPD)}')
        P(f's_cbranch_vccz {dn}')
        if self.o['psleep']: P(f's_sleep {self.o["psleep"]}')
        P(f's_sub_u32 {sr(sBUD)}, {sr(sBUD)}, 1\ns_cbranch_scc0 {lp}\ns_mov_b32 {sr(sBUD)}, 0')
        P.label(dn)

    def flag(self, soff, sval, sc1, wait=None, add=0):
        P = self.P
        P((f'v_add_u32 {vr(vPD)}, {sr(sval)}, {add}' if add else f'v_mov_b32 {vr(vPD)}, {sr(sval)}') + '\ns_mov_b64 exec, 1')
        if wait: P(wait)
        P(f'buffer_store_dword {vr(vPD)}, off, {sr(sWS,4)}, {sr(soff)}' + (' sc1' if sc1 else ''))
        P('s_mov_b64 exec, -1')

    def prio_if(self, cmp):
        P = self.P; l = P.newlabel('Lpr')
        b = self.o['prio'] - 1
        P(f's_setprio {b}\n{cmp}\ns_cbranch_scc0 {l}\ns_setprio {b+1}'); P.label(l)

    def lds_signal(self, idx, wait=True):
        w = 's_waitcnt lgkmcnt(0)\n' if wait else ''
        self.P(f'v_mov_b32 {vr(vPD)}, 1\ns_mov_b64 exec, 1\n{w}ds_add_u32 {vr(vCNT)}, {vr(vPD)} offset:{4*idx}\ns_mov_b64 exec, -1')

    def lds_wait(self, idx, val, sleep=0):
        P = self.P; lp = P.newlabel('Llw')
        P.label(lp)
        if sleep: P(f's_sleep {sleep}')
        P(f'ds_read_b32 {vr(vPD)}, {vr(vCNT)} offset:{4*idx}\ns_waitcnt lgkmcnt(0)\nv_cmp_gt_u32 vcc, {val}, {vr(vPD)}\ns_cbranch_vccnz {lp}')

    def lds_peek(self, idx):
        return [('ds', ('cnt', idx), f'ds_read_b32 {vr(vPD)}, {vr(vCNT)} offset:{4*idx}')]

    def lds_check(self, idx, val):
        P = self.P; ok = P.newlabel('Llc')
        P(waitstr(lg=self.lg.need(('cnt', idx))))
        P(f'v_cmp_gt_u32 vcc, {val}, {vr(vPD)}\ns_cbranch_vccz {ok}')
        self.lds_wait(idx, val)
        P.label(ok)

    def two_way(self, emit):
        P = self.P
        if self.force_safe:
            emit(True); return
        ls = P.newlabel('Lsafe'); le = P.newlabel('Lpub')
        P(f's_cmp_eq_u32 {sr(sFAST)}, 0\ns_cbranch_scc1 {ls}')
        emit(False)
        if self.o['ool']:
            self.ool.append((ls, emit, le))
        else:
            P(f's_branch {le}'); P.label(ls)
            emit(True)
        P.label(le)

    def item(self, it):
        P = self.P
        if isinstance(it, str): P(it)
        elif it[0] == 'wvm': P(waitstr(vm=self.vm.need(it[1])))
        elif it[0] == 'wlg': P(waitstr(lg=self.lg.need(it[1])))
        elif it[0] == 'ds': P(it[2]); self.lg.issue(it[1])
        elif it[0] == 'fn': it[1]()

    def checksum(self, dst, src, n):
        ops = [f'v_add3_u32 {vr(dst)}, {sr(sTAG)}, {vr(src)}, {vr(src+1)}']
        for i in range(2, n, 2): ops.append(f'v_add3_u32 {vr(dst)}, {vr(dst)}, {vr(src+i)}, {vr(src+i+1)}')
        return ops

    def retry_tail(self, lp, dn):
        if self.stamps: self.P('s_add_u32 s99, s99, 1')
        self.P(f's_sub_u32 {sr(sBUD)}, {sr(sBUD)}, 1\ns_cbranch_scc0 {lp}\ns_mov_b32 {sr(sBUD)}, 0')
        self.P.label(dn)
        if self.stamps: self.P('s_lshl_b32 s99, s99, 6')

    def prologue(self):
        P = self.P; o = self.o
        vH, vT = 64, 65
        if self.stamps: P('s_memrealtime s[98:99]\ns_memtime s[100:101]')
        elif o.get('spin'): P('s_memrealtime s[98:99]')
        P(f"""s_cmp_ge_u32 s2, 256
s_cbranch_scc1 L_end
s_load_dwordx16 s[64:79], s[0:1], 0
s_load_dwordx4 s[80:83], s[0:1], 64
s_getpc_b64 s[84:85]
v_lshrrev_b32 v1, 6, v0
s_lshr_b32 {sr(sT1)}, s2, 3
v_readfirstlane_b32 {sr(sW)}, v1
v_and_b32 {vr(vLANE)}, 63, v0
v_lshlrev_b32 {vr(vL16)}, 4, {vr(vLANE)}""")
        lc = P.newlabel('Lx')
        P(f"""s_cmp_lt_u32 {sr(sW)}, 6
s_cbranch_scc1 {lc}
s_and_b32 {sr(sT0)}, {sr(sW)}, 1
s_lshl_b32 {sr(sT0)}, {sr(sT0)}, 5
s_add_u32 {sr(sT0)}, {sr(sT0)}, {sr(sT1)}
s_lshl_b32 {sr(sT0)}, {sr(sT0)}, 10
s_cmp_ge_u32 {sr(sT0)}, CODE_BYTES
s_cbranch_scc1 {lc}
v_add_u32 v255, {sr(sT0)}, {vr(vL16)}
global_load_dword v255, v255, s[84:85]""")
        P.label(lc)
        P(f"""s_and_b32 {sr(sT0)}, s2, 7
s_add_u32 {sr(sC)}, {sr(sT1)}, {o.get('cadd', 0)}
s_and_b32 {sr(sC)}, {sr(sC)}, 15
s_lshr_b32 {sr(sT1)}, {sr(sT1)}, 4
s_lshl_b32 {sr(sR)}, {sr(sT0)}, 1
s_add_u32 {sr(sR)}, {sr(sR)}, {sr(sT1)}
s_and_b32 {sr(sMT)}, {sr(sW)}, 3
s_lshr_b32 {sr(sHS)}, {sr(sW)}, 2
s_lshl_b32 {sr(sRT)}, {sr(sR)}, 2
s_add_u32 {sr(sRT)}, {sr(sRT)}, {sr(sMT)}
s_add_u32 {sr(sS0)}, {sr(sT0)}, {sr(sT1)}
s_lshl_b32 {sr(sT1)}, {sr(sC)}, 1
s_add_u32 {sr(sS0)}, {sr(sS0)}, {sr(sT1)}
s_and_b32 {sr(sS0)}, {sr(sS0)}, 3
s_lshr_b32 {sr(sROT)}, {sr(sC)}, 1
s_lshl1_add_u32 {sr(sROT)}, {sr(sS0)}, {sr(sROT)}
s_and_b32 {sr(sROT)}, {sr(sROT)}, 7
v_mov_b32 v8, 0
v_mov_b32 v9, 0
v_mov_b32 v10, 0
v_mov_b32 v11, 0
v_mov_b32 v90, 0
v_mov_b32 {vr(vPA)}, 0
v_mov_b32 v91, 0
v_mov_b32 v93, 0
v_mov_b32 {vr(vCNT)}, {LDS_CNT}
ds_write_b128 {vr(vCNT)}, v[8:11]
ds_write_b128 {vr(vCNT)}, v[8:11] offset:16
ds_write_b128 {vr(vCNT)}, v[8:11] offset:32
v_lshrrev_b32 v28, 3, {vr(vLANE)}
v_lshlrev_b32 v28, 10, v28
v_lshrrev_b32 v29, 4, {vr(vLANE)}
v_xor_b32 v29, v29, {vr(vLANE)}
v_and_b32 v29, 7, v29
v_lshl_add_u32 v28, v29, 4, v28
v_xor_b32 v29, 64, v28
v_add_u32 v30, {2*7168}, v28
v_add_u32 v31, {3*7168}, v29
v_add_u32 v29, 7168, v29
s_lshl_b32 {sr(sLB)}, {sr(sRT)}, 15
s_lshl_b32 {sr(sLR)}, {sr(sROT)}, 7
s_mul_i32 {sr(sLA)}, {sr(sMT)}, {12288 if o['il'] else 16384}
s_add_u32 {sr(sLA)}, {sr(sLA)}, {LDS_WO if o['il'] else LDS_WQ}
{'s_memrealtime s[92:93]' if self.stamps else ''}
s_waitcnt lgkmcnt(0)
{'s_memrealtime s[94:95]' if self.stamps else ''}
s_load_dword {sr(sTAG)}, s[82:83], 0""")
        self.srd(sX0, 64, 2097152)
        if o['pf'] >= 3:
            lq = P.newlabel('Lx')
            P(f"""s_cmp_lg_u32 {sr(sW)}, {o['pf'] + 1}
s_cbranch_scc1 {lq}
s_lshr_b32 {sr(sT0)}, s2, 3
s_sub_u32 {sr(sT1)}, {sr(sT0)}, 24
s_cselect_b32 {sr(sT0)}, {sr(sT0)}, {sr(sT1)}
s_cselect_b64 {sr(sT2,2)}, s[66:67], s[68:69]
s_lshl_b32 {sr(sT0)}, {sr(sT0)}, 16
v_lshl_add_u32 v26, {vr(vLANE)}, 10, {sr(sT0)}
global_load_dword v25, v26, {sr(sT2,2)} offset:384""")
            P.label(lq)
        def dma_addr():
            P(f"""v_lshrrev_b32 v28, 2, {vr(vLANE)}
v_and_b32 v29, 3, {vr(vLANE)}
v_lshlrev_b32 v29, 4, v29
s_lshl_b32 {sr(sT0)}, {sr(sC)}, 6
v_add_u32 v29, {sr(sT0)}, v29
v_mul_u32_u24 {vr(vDW)}, 3072, v28
v_add_u32 {vr(vDW)}, {vr(vDW)}, v29
v_lshl_add_u32 {vr(vDO)}, v28, 10, v29
s_lshl_b32 {sr(sLA)}, {sr(sMT)}, 11
s_lshr_b32 {sr(sT0)}, {sr(sMT)}, 1
s_add_u32 {sr(sT0)}, {sr(sT0)}, {sr(sROT)}
s_and_b32 {sr(sT0)}, {sr(sT0)}, 7
s_lshl_b32 {sr(sG0)}, {sr(sT0)}, 16
s_xor_b32 {sr(sT0)}, {sr(sMT)}, {sr(sC)}
s_and_b32 {sr(sT0)}, {sr(sT0)}, 1
s_lshl_b32 {sr(sT0)}, {sr(sT0)}, 15
s_add_u32 {sr(sG0)}, {sr(sG0)}, {sr(sT0)}""")
        avm = Tracker(63)
        P(f's_cmp_lg_u32 {sr(sHS)}, 0\ns_cbranch_scc1 L_pro1')
        for g in range(2): self.x0_load(g)
        if o['wearly']: P('s_branch L_pro2')
        P.label('L_pro1')
        if o['wearly']:
            self.srd(sWA, 66, 1572864)
            dma_addr()
            for st in range(o['wearly']): self.dma_w(0, (1, 2), (st,)); avm.issue(st, 4)
        P.label('L_pro2')
        if self.stamps: P('s_memrealtime s[96:97]')
        P('s_barrier')
        self.srd(sWS, 82, WS_USED); self.srd(sWA, 66, 1572864); self.srd(sWoA, 68, 524288)
        self.srd(sWB, 72, 1572864); self.srd(sPhi, 74, 16384); self.srd(sWoB, 76, 524288); self.srd(sOut, 78, 2097152)
        P(f"""s_mul_i32 {sr(sT0)}, {sr(sHS)}, 3
s_xor_b32 {sr(sQT)}, {sr(sMT)}, {sr(sT0)}
s_mov_b32 {sr(sBUD)}, 0x100000
s_mov_b32 {sr(sLO)}, 0xffff
s_mov_b32 {sr(sLO+1)}, 0xffff
s_mov_b32 {sr(sH0)}, -1
s_mov_b32 {sr(sH0+1)}, 0
s_mov_b32 {sr(sFAST)}, 0
s_mov_b32 {sr(sDM)}, 0
s_mov_b32 {sr(sLOG2E)}, {f2u(LOG2E):#x}
s_mov_b32 {sr(sPERM)}, 0x07060302
s_lshl_b32 {sr(sS0)}, {sr(sS0)}, 13
s_getreg_b32 {sr(sOWNF)}, hwreg(HW_REG_XCC_ID, 0, 4)
v_lshrrev_b32 {vr(vH)}, 5, {vr(vLANE)}
v_and_b32 {vr(vT)}, 31, {vr(vLANE)}
v_lshlrev_b32 {vr(vL4)}, 2, {vr(vLANE)}
v_mov_b32 {vr(vSTAMP)}, 0
v_bfe_u32 {vr(vTR1)}, {vr(vLANE)}, 2, 2
v_lshl_add_u32 {vr(vTR1)}, {vr(vH)}, 2, {vr(vTR1)}
v_lshlrev_b32 {vr(vTR2)}, 6, {vr(vTR1)}
v_bfe_u32 {vr(vTR1)}, {vr(vLANE)}, 4, 1
v_lshl_add_u32 {vr(vTR2)}, {vr(vTR1)}, 5, {vr(vTR2)}
v_and_b32 {vr(vTR1)}, 3, {vr(vLANE)}
v_lshl_add_u32 {vr(vTR2)}, {vr(vTR1)}, 3, {vr(vTR2)}
v_lshl_add_u32 {vr(vTR1)}, {vr(vH)}, 8, {vr(vTR2)}
v_add_u32 {vr(vTR1)}, {LDS_WQ}, {vr(vTR1)}
v_add_u32 {vr(vTR2)}, {LDS_WO}, {vr(vTR2)}
s_lshl_b32 {sr(sT0)}, {sr(sMT)}, 7
s_add_u32 {sr(sT0)}, {sr(sT0)}, {LDS_RSTD}
v_lshl_add_u32 {vr(vRA)}, {vr(vT)}, 2, {sr(sT0)}
v_lshl_add_u32 {vr(vRB)}, {vr(vH)}, 4, {sr(sT0)}
v_lshlrev_b32 {vr(vFD)}, 2, {vr(vH)}
v_sub_u32 {vr(vFD)}, {vr(vT)}, {vr(vFD)}
v_cvt_f32_i32 {vr(vFD)}, {vr(vFD)}
v_mul_f32 {vr(vFD)}, {f2u(2.0**100):#x}, {vr(vFD)}
s_waitcnt lgkmcnt(0)
s_and_b32 {sr(sTAG)}, {sr(sTAG)}, -16
s_add_u32 {sr(sTAG)}, {sr(sTAG)}, {TAGC:#x}
s_or_b32 {sr(sOWNF)}, {sr(sOWNF)}, {sr(sTAG)}
s_lshl_b32 {sr(sT0)}, {sr(sR)}, 2
s_add_u32 {sr(sT0)}, {sr(sT0)}, {sr(sQT)}
s_lshl_b32 {sr(sT0)}, {sr(sT0)}, 5
s_lshl_b32 {sr(sT1)}, {sr(sC)}, 1
s_add_u32 {sr(sT0)}, {sr(sT0)}, {sr(sT1)}
s_add_u32 {sr(sT0)}, {sr(sT0)}, {sr(sHS)}
s_lshl_b32 {sr(sOW)}, {sr(sT0)}, 10
s_lshl_b32 {sr(sOF)}, {sr(sT0)}, 2
s_lshr_b32 {sr(sT0)}, {sr(sMT)}, 1
s_add_u32 {sr(sT0)}, {sr(sT0)}, {sr(sR)}
s_sub_u32 {sr(sT0)}, {sr(sT0)}, 2
s_cselect_b32 {sr(sHAS)}, 0, 1
s_lshl_b32 {sr(sT0)}, {sr(sT0)}, 1
s_and_b32 {sr(sT1)}, {sr(sMT)}, 1
s_add_u32 {sr(sT0)}, {sr(sT0)}, {sr(sT1)}
s_lshl_b32 {sr(sT0)}, {sr(sT0)}, 5
s_add_u32 {sr(sT0)}, {sr(sT0)}, {sr(sC)}
s_mul_i32 {sr(sHB)}, {sr(sT0)}, {KV_REC}
s_cmp_lt_u32 {sr(sQT)}, 2
s_cselect_b32 {sr(sHAS)}, {sr(sHAS)}, 0
s_cmp_eq_u32 {sr(sR)}, 1
s_cselect_b32 {sr(sT0)}, 4, {sr(sQT)}
s_sub_u32 {sr(sC2)}, 8, {sr(sT0)}
s_lshl_b32 {sr(sP2)}, {sr(sT0)}, 12
s_add_u32 {sr(sP2)}, {sr(sP2)}, {LDS_T}
s_mul_i32 {sr(sOWN)}, {sr(sQT)}, {OWN_ST}
s_add_u32 {sr(sOWN)}, {sr(sOWN)}, {LDS_OWN}
s_lshl_b32 {sr(sT0)}, {sr(sRT)}, 4
s_add_u32 {sr(sT0)}, {sr(sT0)}, {sr(sC)}
s_mul_i32 {sr(sKVW)}, {sr(sT0)}, {KV_REC}
s_lshl_b32 {sr(sXW)}, {sr(sT0)}, 11
s_lshl_b32 {sr(sSW)}, {sr(sT0)}, 8
s_lshl_b32 {sr(sXF)}, {sr(sRT)}, 7
s_lshl_b32 {sr(sRB)}, {sr(sRT)}, 15""")
        self.stamp(0, 'start')
        if self.stamps:
            self.stamp_names.update({32: 'pre karg', 43: 'karg', 51: 'x issued'})
            P(f'v_writelane_b32 {vr(vSTAMP)}, s92, 32\nv_writelane_b32 {vr(vSTAMP)}, s94, 43\nv_writelane_b32 {vr(vSTAMP)}, s96, 51')
            self.stamp_names[60] = 'entry'; P(f'v_writelane_b32 {vr(vSTAMP)}, s98, 60\ns_mov_b32 s99, 0\ns_mov_b32 s101, 0')
        P(f's_cmp_eq_u32 {sr(sHS)}, 0\ns_cbranch_scc1 L_main_0')
        lh = P.newlabel('Lx'); lt = P.newlabel('Lx')
        P(f"""s_lshl_b32 {sr(sT2)}, {sr(sR)}, 7
s_lshl_b32 {sr(sT3)}, {sr(sC)}, 2
s_add_u32 {sr(sT2)}, {sr(sT2)}, {sr(sT3)}
s_add_u32 {sr(sT2)}, {sr(sT2)}, {OFF_XFLAG}
s_cmp_lg_u32 {sr(sMT)}, 0
s_cbranch_scc1 {lh}""")
        self.flag(sT2, sOWNF, True)
        P.label(lh)
        if o['pf'] in (1, 2): self.coop_prefetch(0, o['pf'])
        if not o['wearly']: dma_addr()
        P(f"""v_add_u32 {vr(vCH)}, {sr(sLA)}, {vr(vL16)}
v_subrev_u32 {vr(vCS)}, {LDS_WO}, {vr(vTR2)}
v_add_u32 {vr(vCS)}, {sr(sLA)}, {vr(vCS)}
v_lshl_add_u32 v31, {vr(vH)}, 8, {vr(vCS)}""")
        for i in range(4): P(f'v_mov_b32 {vr(ONES+i)}, 0x3f803f80')
        P(f'v_lshlrev_b32 v30, 10, {vr(vH)}\nv_add_u32 v30, {LDS_ONES}, v30\nds_write_b128 v30, {vr(ONES,4)}')
        self.csp_waddr(0)
        P(f'v_lshl_add_u32 v30, {vr(vH)}, 9, v28')
        for op in self.mask_ops(0) + self.mask_ops(1): P(op)
        if o['tlb']:
            lw = P.newlabel('Lx')
            P(f"""s_cmp_lg_u32 {sr(sMT)}, 1
s_cbranch_scc1 {lw}
v_and_b32 v68, 15, {vr(vLANE)}
v_bfe_u32 v69, {vr(vLANE)}, 4, 1
s_lshl_b32 {sr(sT0)}, {sr(sR)}, 2
s_sub_u32 {sr(sT0)}, {sr(sT0)}, 8
v_min_u32 v70, 11, v68
v_add_u32 v70, {sr(sT0)}, v70
v_max_i32 v70, 0, v70
v_lshl_add_u32 v70, v70, 4, {sr(sC)}
v_lshl_add_u32 v70, v69, 10, v70
v_mul_u32_u24 v70, {KV_REC}, v70
v_add_u32 v70, {OFF_KV + KV_REC - 128}, v70
s_lshl_b32 {sr(sT0)}, {sr(sC)}, 4
v_add_u32 v68, {sr(sT0)}, v68
v_lshl_add_u32 v68, v69, 8, v68
v_mul_u32_u24 v68, {KP_REC}, v68
v_add_u32 v68, {OFF_KP + KP_REC - 128}, v68
v_cndmask_b32 v68, v68, v70, {sr(sH0,2)}
buffer_load_dword v26, v68, {sr(sWS,4)}, 0 offen""")
            P.label(lw)
        if o['wgo']: self.lds_wait(C_WGO, o['wgon'])
        self.stamp(2, 'x g0 / W go')
        PRE = o['pre']; MCS = o['mcs']; CA = {1: 32, 2: 64, 0: 32}
        for st in range(o['wearly'], PRE): self.dma_w(0, (1, 2), (st,)); avm.issue(st, 4)
        qs = [[0, 1], [2, 3]] if PRE == 2 else ([[0, 1], [2, 3], []] if PRE == 3 else [[], [0, 1], [2, 3], []])
        first_q = True
        if not MCS:
            for i in range(4): P(f'v_mov_b32 {vr(64+i)}, 0')
        if o['il']: qs = [[]]*4
        for st in range(4):
            if st + PRE < 4: self.dma_w(0, (1, 2), (st + PRE,)); avm.issue(st + PRE, 4)
            else:
                q = qs.pop(0)
                if q:
                    if first_q:
                        self.lds_wait(C_XDONE, 4); first_q = False
                        if o['apr']: P('s_setprio 3')
                    self.dma_w(0, (0,), q); avm.issue('q', 4)
            P(waitstr(vm=avm.need(st)))
            self.stamp((15, 23, 29, 1)[st], ('x g3 / W st0', 'x g5 / W st1', 'S0 / W st2', 'x0 / W st3')[st])
            self.lds_signal(C_ST + st)
            ch = [(nt, 2*st + e) for nt in (1, 2) for e in range(2)]
            for nt, u in ch:
                r_ = PARK[nt] + 4*u; of = NT_LDS[nt] + cho(u)
                P(f'ds_read_b64_tr_b16 {vr(r_,2)}, v31 offset:{of}\nds_read_b64_tr_b16 {vr(r_+2,2)}, v31 offset:{of+256}')
            for k, (nt, u) in enumerate(ch):
                P(f's_waitcnt lgkmcnt({6-2*k})')
                if MCS: self.mfma(CA[nt], ONES, PARK[nt] + 4*u, None if u == 0 else CA[nt])
                else: self.valu_sum(PARK[nt] + 4*u, 64 + 2*(nt - 1))
        if MCS: P(f'ds_write_b32 v28, {vr(CA[1])} offset:512\nds_write_b32 v28, {vr(CA[2])} offset:1024')
        else: P('v_add_f32 v64, v64, v65\nv_add_f32 v66, v66, v67\nv_permlane32_swap_b32 v64, v66\nv_add_f32 v64, v64, v66\nds_write_b32 v30, v64 offset:512')
        self.lds_signal(C_CS, wait=False)
        if o['apr'] == 1: P('s_setprio 0')
        self.stamp(14, 'S3 / W done')
        if o['il']:
            self.lds_wait(C_CSQ, 4, 1); self.dma_w(0, (0,))
            self.lds_wait(C_XDONE, 4, 1)
        if o['clr']: self.hello_load()
        if o['wo_at'] == 0: self.dma_w(0, ('o',))
        P(f'v_add_u32 v31, {LDS_WQ}, v31\ns_waitcnt vmcnt({8 if o["wo_at"] == 0 else 0})')
        self.lds_signal(C_Q)
        self.stamp(4, 'Q done')
        if o['wo_at'] == 1: self.dma_w(0, ('o',))
        for u0 in (0, 4):
            for u in range(u0, u0 + 4):
                r_ = PARK[0] + 4*u
                P(f'ds_read_b64_tr_b16 {vr(r_,2)}, v31 offset:{cho(u)}\nds_read_b64_tr_b16 {vr(r_+2,2)}, v31 offset:{cho(u)+256}')
            for k, u in enumerate(range(u0, u0 + 4)):
                P(f's_waitcnt lgkmcnt({6-2*k})')
                self.mfma(CA[0], ONES, PARK[0] + 4*u, None if u == 0 else CA[0])
        P(f'ds_write_b32 v28, {vr(CA[0])}')
        self.lds_signal(C_CSQ, wait=False)
        if o['plds']:
            lf = P.newlabel('Lx')
            P(f's_cmp_lg_u32 {sr(sMT)}, 0\ns_cbranch_scc1 {lf}\ns_mov_b32 m0, {LDS_PHI}\ns_lshl_b32 {sr(sT0)}, {sr(sC)}, 10\nbuffer_load_dwordx4 {vr(vL16)}, {sr(sPhi,4)}, {sr(sT0)} offen lds')
            P.label(lf)
        P(f"""s_cmp_lg_u32 {sr(sMT)}, {2 if o['pfw'] else 9}
s_cbranch_scc1 {lt}
v_lshlrev_b32 v6, 7, {vr(vLANE)}
s_mul_i32 {sr(sT0)}, s2, {48*128}
buffer_load_dword v26, v6, {sr(sWB,4)}, {sr(sT0)} offen
v_and_b32 v6, 0x780, v6
s_lshl_b32 {sr(sT0)}, s2, 11
buffer_load_dword v26, v6, {sr(sWoB,4)}, {sr(sT0)} offen""")
        P.label(lt)
        if o['pfb'] == 1: self.coop_prefetch(1, 1)
        P('s_branch L_aux_0')

    def coop_prefetch(self, typ, mode):
        P = self.P; l1 = P.newlabel('Lx'); l2 = P.newlabel('Lx')
        if mode == 1: P(f's_cmp_lg_u32 {sr(sMT)}, 1\ns_cbranch_scc1 {l2}')
        offs = (128,) if mode == 1 else (128, 0)
        P(f"""v_lshlrev_b32 v5, 10, {vr(vLANE)}
s_lshr_b32 {sr(sT0)}, s2, 3
s_lshl_b32 {sr(sT0)}, {sr(sT0)}, 16
s_lshl_b32 {sr(sT1)}, {sr(sMT)}, 8
s_add_u32 {sr(sT0)}, {sr(sT0)}, {sr(sT1)}
s_cmp_ge_u32 s2, 192
s_cbranch_scc1 {l1}""")
        for of in offs: P(f'buffer_load_dword v26, v5, {sr((sWA, sWB)[typ],4)}, {sr(sT0)} offen offset:{of}')
        P(f's_branch {l2}'); P.label(l1)
        P(f's_sub_u32 {sr(sT0)}, {sr(sT0)}, {24 << 16}')
        for of in offs: P(f'buffer_load_dword v26, v5, {sr((sWoA, sWoB)[typ],4)}, {sr(sT0)} offen offset:{of}')
        P.label(l2)

    def valu_sum(self, frag, acc):
        for i in range(4):
            self.P(f'v_lshlrev_b32 v68, 16, {vr(frag+i)}\nv_and_b32 v69, 0xffff0000, {vr(frag+i)}\nv_add_f32 {vr(acc)}, {vr(acc)}, v68\nv_add_f32 {vr(acc+1)}, {vr(acc+1)}, v69')

    def x0_load(self, g):
        P = self.P
        P(f's_add_u32 m0, {sr(sLA)}, {(g % (3 if self.o["il"] else 4))*4096}\ns_add_u32 {sr(sT3)}, {sr(sLB)}, {sr(sLR)}')
        for j in range(4): P(f'buffer_load_dwordx4 {vr(28+j)}, {sr(sX0,4)}, {sr(sT3)} offen offset:{j*1024} lds')
        P(f's_add_u32 {sr(sLR)}, {sr(sLR)}, 128\ns_and_b32 {sr(sLR)}, {sr(sLR)}, 0x3ff')
        self.vm.issue(('x', g), 4)

    def code_prefetch(self, label):
        P = self.P; lc = P.newlabel('Lx')
        P(f"""s_cmp_lg_u32 {sr(sMT)}, 3
s_cbranch_scc1 {lc}
s_lshl_b32 {sr(sT0)}, {sr(sC)}, 10
s_add_u32 {sr(sT0)}, {sr(sT0)}, ({label} - {NAME}_kernel)
s_cmp_ge_u32 {sr(sT0)}, CODE_BYTES
s_cbranch_scc1 {lc}
v_add_u32 v26, {sr(sT0)}, {vr(vL16)}
global_load_dword v26, v26, s[84:85]""")
        P.label(lc)

    def wphi_load(self, B=96):
        P = self.P; a, t = vr(B + 8), vr(B + 9)
        P(f"""s_lshl_b32 {sr(sT0)}, {sr(sC)}, 1
s_add_u32 {sr(sT0)}, {sr(sT0)}, {sr(sHS)}
s_lshl_b32 {sr(sT0)}, {sr(sT0)}, 9
v_bfe_u32 {a}, {vr(vLANE)}, 3, 2
v_and_b32 {t}, 3, {vr(vLANE)}
v_lshl_add_u32 {a}, {a}, 2, {t}
v_lshlrev_b32 {a}, 1, {a}
v_lshrrev_b32 {t}, 5, {vr(vLANE)}
v_lshl_add_u32 {a}, {t}, 7, {a}""")
        if self.o['plds']:
            P(f's_and_b32 {sr(sT0)}, {sr(sT0)}, 512\ns_add_u32 {sr(sT0)}, {sr(sT0)}, {LDS_PHI}\nv_add_u32 {a}, {sr(sT0)}, {a}')
        for j in range(8):
            d = (j if j < 4 else 8 + j - 4)
            if self.o['plds']: P(f'ds_read_u16 {vr(B+j)}, {a} offset:{d*32}'); continue
            P(f'buffer_load_ushort {vr(B+j)}, {a}, {sr(sPhi,4)}, {sr(sT0)} offen offset:{d*32}')

    def wphi_pack(self, B=96):
        ops = [f'v_lshl_or_b32 {vr(WPHI+p)}, {vr(B+2*p+1)}, 16, {vr(B+2*p)}' for p in range(4)]
        ops += [f'v_bfe_i32 {vr(B)}, {vr(vLANE)}, 2, 1', f'v_and_b32 {vr(B)}, 0x80008000, {vr(B)}']
        return ops + [f'v_xor_b32 {vr(WPHI+p)}, {vr(B)}, {vr(WPHI+p)}' for p in range(4)]

    def dma_w(self, typ, nts, stages=range(4)):
        P = self.P; wo = nts == ('o',)
        srd = (sWoA, sWoB)[typ] if wo else (sWA, sWB)[typ]
        for st in stages:
            P(f's_add_u32 {sr(sT0)}, {sr(sG0)}, {st*0x20000}\ns_and_b32 {sr(sT0)}, {sr(sT0)}, 0x7ffff')
            if not wo: P(f's_mul_i32 {sr(sT0)}, {sr(sT0)}, 3')
            late = wo or typ == 1
            if late: P(f's_add_u32 {sr(sT3)}, {sr(sS0)}, {st*8192}\ns_and_b32 {sr(sT3)}, {sr(sT3)}, 0x7fff\ns_add_u32 {sr(sT3)}, {sr(sT3)}, {sr(sLA)}')
            for e in range(2):
                for nt in nts:
                    P(f's_add_u32 m0, {sr(sT3)}, {NT_LDS[nt] + e*1024}' if late else f's_add_u32 m0, {sr(sLA)}, {NT_LDS[nt] + cho(2*st + e)}')
                    P(f's_add_u32 {sr(sT1)}, {sr(sT0)}, {e*16384 if wo else e*49152 + nt*1024}')
                    P(f'buffer_load_dwordx4 {vr(vDO if wo else vDW)}, {sr(srd,4)}, {sr(sT1)} offen lds')

    def csp_waddr(self, typ):
        self.P(f"""s_lshl_b32 {sr(sT0)}, {sr(sMT)}, 2
s_add_u32 {sr(sT0)}, {sr(sT0)}, {LDS_CSP + typ*1536}
v_and_b32 v28, 31, {vr(vLANE)}
v_lshl_add_u32 v28, v28, 4, {sr(sT0)}""")

    def chunk_addr(self, region):
        if region < 65536: return vCH, region
        self.P(f'v_add_u32 {vr(vT0)}, {region}, {vr(vCH)}'); return vT0, 0

    def lds_to_regs(self, region, dst, tr=False):
        if tr:
            self.P(f'v_add_u32 v29, {region}, {vr(vCS)}')
            for u in range(8): self.P(f'ds_read_b64_tr_b16 {vr(dst+4*u,2)}, v29 offset:{cho(u)}\nds_read_b64_tr_b16 {vr(dst+4*u+2,2)}, v29 offset:{cho(u)+512}')
            return
        a, o = self.chunk_addr(region)
        for u in range(8): self.P(f'ds_read_b128 {vr(dst+4*u,4)}, {vr(a)} offset:{o+cho(u)}')

    def regs_to_lds(self, region, src, rot=False):
        if rot:
            if region >= 65536:
                for st in range(4): self.P(f'v_add_u32 {vr(64+st)}, {region}, {vr(64+st)}')
            for u in range(8): self.P(f'ds_write_b128 {vr(64 + (u >> 1))}, {vr(src+4*u,4)} offset:{(region if region < 65536 else 0) + (u & 1)*1024}')
            return
        a, o = self.chunk_addr(region)
        for u in range(8): self.P(f'ds_write_b128 {vr(a)}, {vr(src+4*u,4)} offset:{o+cho(u)}')

    def relayout(self, typ, nts, tmp=64, ntmp=8):
        P = self.P
        if nts != ('o',): self.csp_waddr(typ)
        for k, nt in enumerate(nts):
            region = NT_LDS[nt]
            P(f'v_add_u32 v29, {region}, {vr(vCS)}')
            acc = ACC0 if k % 2 == 0 else ACC1
            lg = Tracker(15)
            reg = lambda u: tmp + 4*(u % ntmp)
            for u0 in range(0, 8, 4):
                for u in range(u0, u0 + 4):
                    P(f'ds_read_b64_tr_b16 {vr(reg(u),2)}, v29 offset:{cho(u)}\nds_read_b64_tr_b16 {vr(reg(u)+2,2)}, v29 offset:{cho(u)+512}'); lg.issue(u, 2)
                for u in range(u0, u0 + 4):
                    P(waitstr(lg=lg.need(u)))
                    if nt != 'o': self.mfma(acc, ONES, reg(u), None if u == 0 else acc)
        for k, nt in enumerate(nts):
            if nt != 'o': P(f'ds_write_b32 v28, {vr(ACC0 if k % 2 == 0 else ACC1)} offset:{nt*512}')
        P('s_waitcnt lgkmcnt(0)')

    def swap_region(self, nt, save, tr=False):
        P = self.P
        if save:
            self.lds_to_regs(NT_LDS[nt], 32, tr); P('s_waitcnt lgkmcnt(0)')
        self.regs_to_lds(NT_LDS[nt], PARK[nt], tr and nt != 'o'); P('s_waitcnt lgkmcnt(0)')
        if save:
            for i in range(32): P(f'v_mov_b32 {vr(PARK[nt]+i)}, {vr(32+i)}')

    def unpack_res(self):
        for p in range(8):
            self.P(f'v_lshlrev_b32 {vr(ACC0+2*p)}, 16, {vr(XRES+p)}\nv_and_b32 {vr(ACC0+2*p+1)}, 0xffff0000, {vr(XRES+p)}')

    def rowmajor_addr(self, dst, tmp, sdst):
        self.P(f"""v_and_b32 {vr(dst)}, 31, {vr(vLANE)}
v_lshlrev_b32 {vr(dst)}, 10, {vr(dst)}
v_lshrrev_b32 {vr(tmp)}, 5, {vr(vLANE)}
v_lshl_add_u32 {vr(dst)}, {vr(tmp)}, 4, {vr(dst)}
s_lshl_b32 {sr(sdst)}, {sr(sC)}, 6
s_add_u32 {sr(sdst)}, {sr(sdst)}, {sr(sRB)}""")

    def publish_x_addr(self, L):
        if L == self.nl: return self.rowmajor_addr(vKA, vVA, sK0)
        self.P(f's_add_u32 {sr(sK1)}, {sr(sSW)}, {OFF_ST}')
        if L == 1 or self.o['hx']: self.P(f's_lshl_b32 {sr(sK2)}, {sr(sC)}, 2\ns_add_u32 {sr(sK2)}, {sr(sK2)}, {sr(sXF)}\ns_add_u32 {sr(sK2)}, {sr(sK2)}, {OFF_XFLAG + 0x2000}')

    def set_par(self, reg, par):
        return f'v_or_b32 {vr(reg)}, 1, {vr(reg)}' if par else f'v_and_b32 {vr(reg)}, -2, {vr(reg)}'

    def acc_par(self, a, b, par):
        return f'v_bitop3_b32 {vr(vPD)}, {vr(vPD)}, {vr(a)}, {vr(b)} bitop3:0x80' if par else f'v_or3_b32 {vr(vPD)}, {vr(vPD)}, {vr(a)}, {vr(b)}'

    def test_par(self, par):
        return f'v_and_b32 {vr(vCK)}, 1, {vr(vPD)}\nv_cmp_ne_u32 vcc, {par}, {vr(vCK)}'

    def hello_load(self):
        self.P(f'v_and_b32 {vr(vPA)}, 60, {vr(vL4)}\ns_lshl_b32 {sr(sK2)}, {sr(sR)}, 7\ns_add_u32 {sr(sK2)}, {sr(sK2)}, {OFF_XFLAG}\nbuffer_load_dword v25, {vr(vPA)}, {sr(sWS,4)}, {sr(sK2)} offen sc1')

    def hello_check(self):
        P = self.P; okl = P.newlabel('Lx')
        P(f'v_mov_b32 {vr(vPD)}, v25\nv_and_b32 {vr(vT0)}, -16, v25\nv_cmp_ne_u32 vcc, {sr(sTAG)}, {vr(vT0)}\ns_cbranch_vccz {okl}')
        self.poll(sK2, masked=True)
        P.label(okl)
        if not self.force_safe:
            P(f"""v_cmp_ne_u32 vcc, {sr(sOWNF)}, {vr(vPD)}
s_cmp_eq_u64 vcc, 0
s_cselect_b32 {sr(sFAST)}, 1, 0
v_mov_b32 {vr(vT0)}, {sr(sFAST)}
ds_write_b32 {vr(vCNT)}, {vr(vT0)} offset:44""")

    def clear_lines(self, Z):
        P = self.P
        P(f's_add_u32 {sr(sT0)}, {sr(sXW)}, {OFF_O}\ns_add_u32 {sr(sT1)}, {sr(sSW)}, {OFF_ST}')
        def clear(sc1):
            m = ' sc1' if sc1 else ''
            for of in (0, 1024): P(f'buffer_store_dwordx4 {vr(Z,4)}, {vr(vL16)}, {sr(sWS,4)}, {sr(sT0)} offen offset:{of}{m}')
            for of in (0, 1024): P(f'buffer_store_dwordx4 {vr(Z,4)}, {vr(vL16)}, {sr(sOut,4)}, {sr(sXW)} offen offset:{of}{m}')
            P(f'buffer_store_dword {vr(Z)}, {vr(vL4)}, {sr(sWS,4)}, {sr(sT1)} offen{m}')
        self.two_way(clear)

    def hint_prep(self, r, add):
        return [f'v_cmp_gt_u32 vcc, {sr(sFAST)}, {vr(vLANE)}', f'v_add_u32 {vr(r)}, {sr(sTAG)}, {add}', f'v_cndmask_b32 {vr(r+1)}, {OOB:#x}, {vr(vLANE)}, vcc']

    def hint(self, r, soff):
        self.P(f'buffer_store_dword {vr(r)}, {vr(r+1)}, {sr(sWS,4)}, {sr(soff)} offen')

    def first_hop(self, base_off, foff, mask, par=None, add=0, pre=None):
        self.P(f'v_and_b32 v110, {mask}, {vr(vL4)}\ns_add_u32 {sr(sT2)}, {sr(sXF)}, {foff}')
        self.frag_setup(base_off)
        if add: self.P(f's_add_u32 {sr(sT0)}, {sr(sTAG)}, {add}')
        NP = self.o['hp']
        if NP:
            P = self.P; lp = P.newlabel('Lpoll'); dn = P.newlabel('Lpolld'); val = sT0 if add else sTAG
            if pre is not None:
                P(f's_waitcnt vmcnt({pre})\nv_cmp_ne_u32 vcc, {sr(val)}, v103\ns_cbranch_vccz {dn}')
            ld = lambda i: P(f'buffer_load_dword {vr(104 + i)}, v110, {sr(sWS,4)}, {sr(sT2)} offen sc1')
            for i in range(NP):
                ld(i); P(f's_sleep {self.o["hs"]}')
            P.label(lp)
            for i in range(NP + 1):
                ld((i + NP) % (NP + 1))
                P(f's_waitcnt vmcnt({NP})\nv_cmp_ne_u32 vcc, {sr(val)}, {vr(104 + i)}\ns_cbranch_vccz {dn}')
            P(f's_sub_u32 {sr(sBUD)}, {sr(sBUD)}, 1\ns_cbranch_scc0 {lp}\ns_mov_b32 {sr(sBUD)}, 0')
            P.label(dn)
        else: self.poll(sT2, areg=110, val=sT0 if add else sTAG)
        if par is not None: self.P(f'v_mov_b32 {vr(vPD)}, {par}')
        return 0

    def probe(self, srd, base_off, par, nwin):
        P = self.P; lp = P.newlabel('Lprobe'); dn = P.newlabel('Lprobed'); S = min(self.o['specx' if srd == sOut else 'spec'], nwin)
        self.frag_setup(base_off)
        if self.o['pp']:
            A_, B_, AD_ = 108, 109, vPA
            if srd == sOut:
                AD_ = 110; P(f'v_or_b32 v110, 1024, {vr(vPA)}')
            ld = lambda r: P(f'buffer_load_dword {vr(r)}, {vr(AD_)}, {sr(srd,4)}, {sr(sLB)} offen sc1')
            ld(A_); P(f's_sleep {self.o["pp"]}')
            P.label(lp)
            for cur, nxt in ((A_, B_), (B_, A_)):
                ld(nxt)
                P(f's_waitcnt vmcnt(1)\nv_and_b32 {vr(vPD)}, 1, {vr(cur)}\nv_cmp_ne_u32 vcc, {par}, {vr(vPD)}\ns_cbranch_vccz {dn}')
            P(f's_sub_u32 {sr(sBUD)}, {sr(sBUD)}, 1\ns_cbranch_scc0 {lp}\ns_mov_b32 {sr(sBUD)}, 0')
            P.label(dn)
            return 0
        if self.o['pst'] and srd == sOut: P(f'v_lshrrev_b32 {vr(STAT+15)}, 2, {vr(vLANE)}\nv_lshlrev_b32 {vr(STAT+15)}, 8, {vr(STAT+15)}')
        P.label(lp)
        if self.o['pst'] and srd == sOut:
            P(f'buffer_load_dword {vr(vPD)}, {vr(STAT+15)}, {sr(sWS,4)}, {sr(sT1)} offen offset:252 sc1')
        elif self.o['pw'] == 16 and srd == sOut:
            P(f'v_or_b32 {vr(vPD)}, 1024, {vr(vPA)}\nbuffer_load_dword {vr(vPD)}, {vr(vPD)}, {sr(srd,4)}, {sr(sLB)} offen sc1')
        else: P(f'buffer_load_dword {vr(vPD)}, {vr(vPA)}, {sr(srd,4)}, {sr(sLB)} offen sc1')
        for ks in range(S): self.frag_load(srd, ks)
        P(f's_waitcnt vmcnt({S})')
        P(self.test_par(par))
        P(f's_cbranch_vccz {dn}')
        if self.o['em']: P('s_mov_b64 exec, vcc')
        if self.o['psleep']: P(f's_sleep {self.o["psleep"]}')
        if S: self.frag_setup(None)
        P(f's_sub_u32 {sr(sBUD)}, {sr(sBUD)}, 1\ns_cbranch_scc0 {lp}\ns_mov_b32 {sr(sBUD)}, 0')
        P.label(dn)
        if self.o['em']: P('s_mov_b64 exec, -1')
        return S

    def verify(self, par, redo):
        P = self.P; st = P.newlabel('Lver'); ct = P.newlabel('Lverc')
        P(self.test_par(par)); P(f's_cbranch_vccnz {st}')
        P.label(ct)
        self.stubs.append((st, redo, ct))

    def emit_stubs(self):
        P = self.P
        for ls, emit, le in self.ool:
            P.label(ls); emit(True); P(f's_branch {le}')
        for k, (st, redo, ct) in enumerate(self.stubs):
            P.label(st)
            if self.stamps: P(f's_add_u32 s101, s101, {1 << (2*k)}')
            P(f's_waitcnt vmcnt(0) lgkmcnt(0)\ns_sub_u32 {sr(sBUD)}, {sr(sBUD)}, 1\ns_cbranch_scc0 {redo}\ns_mov_b32 {sr(sBUD)}, 0\ns_branch {ct}')

    def probe_addr(self):
        if self.o['pw'] == 64:
            return f"""v_lshrrev_b32 {vr(vPA)}, 1, {vr(vLANE)}
v_lshlrev_b32 {vr(vPA)}, 10, {vr(vPA)}
v_and_b32 {vr(vCK)}, 1, {vr(vLANE)}
v_mad_u32_u24 {vr(vPA)}, {vr(vCK)}, {sr(sC1008)}, {vr(vPA)}"""
        if self.o['psp']:
            return f"""v_lshrrev_b32 {vr(vPA)}, 2, {vr(vLANE)}
v_add_u32 {vr(vPA)}, {sr(sC)}, {vr(vPA)}
v_and_b32 {vr(vPA)}, 7, {vr(vPA)}
v_lshlrev_b32 {vr(vPA)}, 7, {vr(vPA)}
v_lshrrev_b32 {vr(vCK)}, 1, {vr(vLANE)}
v_lshl_add_u32 {vr(vPA)}, {vr(vCK)}, 10, {vr(vPA)}"""
        return f'v_lshrrev_b32 {vr(vPA)}, 1, {vr(vLANE)}\nv_lshl_add_u32 {vr(vPA)}, {vr(vPA)}, 10, {sr(sC1008)}'

    def publish_x(self, L):
        P = self.P
        natural = (L % 2 == 0); T = XF; par = L & 1
        for p in range(8): P(f'v_cvt_pk_bf16_f32 {vr(T+p)}, {vr(ACC0+2*p)}, {vr(ACC0+2*p+1)}')
        if natural:
            for a, b in SW4: P(f'v_permlane32_swap_b32 {vr(T+a)}, {vr(T+b)}')
        if L == self.nl:
            m = ['', ' nt', ' sc1'][self.o.get('outm', 0)]
            P(f'buffer_store_dwordx4 {vr(T,4)}, {vr(vKA)}, {sr(sOut,4)}, {sr(sK0)} offen{m}\nbuffer_store_dwordx4 {vr(T+4,4)}, {vr(vKA)}, {sr(sOut,4)}, {sr(sK0)} offen offset:32{m}')
            return
        P(self.set_par(T, par)); P(self.set_par(T + 4, par))
        def emit(sc1):
            m = ' sc1' if sc1 else (' nt' if self.o.get('nta') else '')
            P(f'buffer_store_dwordx4 {vr(T,4)}, {vr(vL16)}, {sr(sOut,4)}, {sr(sXW)} offen{m}')
            P(f'buffer_store_dwordx4 {vr(T+4,4)}, {vr(vL16)}, {sr(sOut,4)}, {sr(sXW)} offen offset:1024{m}')
            if (L > 1 or self.o['clr']) and self.o['hx'] == 1 and (sc1 or not self.o['ex'] or L == 1): self.flag(sK2, sTAG, sc1, add=L - 1)
            if L > 1 and self.o['prex']: P(f'buffer_load_dword v103, v111, {sr(sWS,4)}, {sr(sXF)} offen sc1')
            for k in range(4):
                P(f'v_pk_add_f32 {vr(64+2*k,2)}, {vr(ACC0+4*k,2)}, {vr(ACC0+4*k+2,2)}')
            P(f'v_pk_mul_f32 v[72:73], {vr(ACC0,2)}, {vr(ACC0,2)}\nv_pk_mul_f32 v[74:75], {vr(ACC0+2,2)}, {vr(ACC0+2,2)}')
            P('v_pk_add_f32 v[64:65], v[64:65], v[66:67]\nv_pk_add_f32 v[68:69], v[68:69], v[70:71]')
            for k in range(2, 8): P(f'v_pk_fma_f32 {vr(72+2*(k&1),2)}, {vr(ACC0+2*k,2)}, {vr(ACC0+2*k,2)}, {vr(72+2*(k&1),2)}')
            P('v_pk_add_f32 v[64:65], v[64:65], v[68:69]\nv_pk_add_f32 v[72:73], v[72:73], v[74:75]')
            P('v_add_f32 v64, v64, v65\nv_add_f32 v66, v72, v73\nv_permlane32_swap_b32 v64, v66\nv_add_f32 v64, v64, v66')
            P(self.set_par(64, par))
            P(f'buffer_store_dword v64, {vr(vL4)}, {sr(sWS,4)}, {sr(sK1)} offen{m}')
            if L == 1 and not self.o['clr']: self.flag(sK2, sTAG, sc1, wait='s_waitcnt vmcnt(0)')
            elif self.o['hx'] == 2: self.flag(sK2, sTAG, sc1, add=L - 1)
        self.two_way(emit)
        for p in range(8): P(f'v_cvt_pk_bf16_f32 {vr(XRES+p)}, {vr(ACC0+2*p)}, {vr(ACC0+2*p+1)}')

    def frag_setup(self, base_off):
        self.P(f"""s_and_b32 {sr(sT3)}, {sr(sC)}, 1
s_lshl_b32 {sr(sT3)}, {sr(sT3)}, 11
s_add_u32 {sr(sLB)}, {sr(sRB)}, {base_off}
v_add3_u32 v108, {sr(sT3)}, {vr(vL16)}, 0
s_lshr_b32 {sr(sLR)}, {sr(sC)}, 1
v_add_u32 v108, {sr(sLB)}, v108
s_lshl_b32 {sr(sLR)}, {sr(sLR)}, 12
v_xor_b32 v109, 2048, v108""")

    def frag_load(self, srd, ks, ring=32):
        P = self.P
        P(f'buffer_load_dwordx4 {vr(XF+4*(ks % ring),4)}, {vr(108 + ((ks >> 1) & 1))}, {sr(srd,4)}, {sr(sLR)} offen offset:{(ks&1)*1024} sc1')
        if ks < 28 and ks & 3 == 3: P(f's_add_u32 {sr(sLR)}, {sr(sLR)}, 4096\ns_and_b32 {sr(sLR)}, {sr(sLR)}, 0x7fff')
        self.vm.issue(('x', ks))

    def mask_ops(self, part, lean=False):
        ops = []; C = CDIAG if part == 0 else CFIRST; sg = -1.0 if part == 0 else 1.0
        if part == 0 and not lean:
            ops.append(f'v_mov_b32 {vr(VV)}, 0x3f803f80')
            for i in range(1, 8): ops.append(f'v_mov_b32 {vr(VV+i)}, {vr(VV)}')
        for i in range(16):
            ci = 8*(i//4) + i % 4
            if part == 0: ops.append(f'v_subrev_f32 {vr(C+i)}, {f2u(ci*2.0**100):#x}, {vr(vFD)}')
            else: ops.append(f'v_sub_f32 {vr(C+i)}, {f2u((ci-1)*2.0**100):#x}, {vr(vFD)}')
        for i in range(16): ops.append(f'v_min_f32 {vr(C+i)}, 0, {vr(C+i)}')
        if part == 0 and not lean:
            for i in range(16): ops.append(f'v_mov_b32 {vr(aO+i)}, 0')
        return ops

    def stats_final(self, typ):
        a, b = STAT, STAT + 1
        it = f"""v_mov_b32 {vr(b)}, {vr(a)}
v_mov_b32 {vr(XEXT+2)}, 0
v_mov_b32 {vr(XEXT+3)}, 0
v_permlane32_swap_b32 {vr(a)}, {vr(b)}
v_mul_f32 {vr(a)}, {f2u(1/512):#x}, {vr(a)}
v_mul_f32 {vr(b)}, {f2u(1/512):#x}, {vr(b)}
v_fma_f32 {vr(b)}, -{vr(a)}, {vr(a)}, {vr(b)}
v_max_f32 {vr(b)}, 0, {vr(b)}
v_add_f32 {vr(b)}, {f2u(1e-5):#x}, {vr(b)}
v_rsq_f32 {vr(vRSTD)}, {vr(b)}
v_cndmask_b32 {vr(a)}, 0, {vr(a)}, {sr(sH0,2)}
v_and_b32 {vr(a+2)}, 0xffff0000, {vr(a)}
v_sub_f32 {vr(a+3)}, {vr(a)}, {vr(a+2)}
v_cvt_pk_bf16_f32 {vr(XEXT)}, -{vr(a+2)}, -{vr(a+2)}
v_cvt_pk_bf16_f32 {vr(XEXT+1)}, -{vr(a+3)}, 0""".split('\n')
        it.append(('ds', 'rw', f'ds_write_b32 {vr(vRA)}, {vr(vRSTD)}'))
        for q in range(4): it.append(('ds', 'rt', f'ds_read_b128 {vr(STAT+4*q,4)}, {vr(vRB)} offset:{q*32}'))
        if typ == 1: it.append(f'v_mul_f32 {vr(vRSTD)}, {sr(sLOG2E)}, {vr(vRSTD)}')
        return it

    def wext_items(self, w, tag):
        return [('wlg', tag)] + f"""v_add_f32 {vr(w)}, {vr(w)}, {vr(w+1)}
v_add_f32 {vr(w+2)}, {vr(w+2)}, {vr(w+3)}
v_add_f32 {vr(w)}, {vr(w)}, {vr(w+2)}
v_and_b32 {vr(w+2)}, 0xffff0000, {vr(w)}
v_sub_f32 {vr(w+3)}, {vr(w)}, {vr(w+2)}
v_cvt_pk_bf16_f32 {vr(w)}, {vr(w+2)}, {vr(w+3)}
v_cvt_pk_bf16_f32 {vr(w+1)}, {vr(w+2)}, 0
v_mov_b32 {vr(w+2)}, 0
v_mov_b32 {vr(w+3)}, 0""".split('\n')

    def csp_addr(self, typ):
        self.P(f'v_and_b32 {vr(vT0)}, 0x1f0, {vr(vL16)}\nv_add_u32 {vr(vT0)}, {LDS_CSP + typ*1536}, {vr(vT0)}')

    def phi_addr(self):
        return f"""v_sub_u32 {vr(vVA)}, {vr(vKA)}, {vr(vL16)}
v_and_b32 {vr(vPD)}, 31, {vr(vLANE)}
v_lshl_add_u32 {vr(vVA)}, {vr(vPD)}, 5, {vr(vVA)}
v_lshrrev_b32 {vr(vPD)}, 5, {vr(vLANE)}
v_lshl_add_u32 {vr(vVA)}, {vr(vPD)}, 4, {vr(vVA)}""".split('\n')

    def main_kv(self, L):
        P = self.P; typ = L % 2; o = self.o; XD = o['xd']
        vm, lg = self.vm, self.lg
        V = L > 1 or (L == 1 and o['clr'])
        NR = 3; KVB = vL16 if L > 1 else PKV + 15
        if L == 1: P(f'v_subrev_u32 {vr(vTR1)}, {LDS_WO - LDS_WQ}, {vr(vTR2)}')
        if L == 2: P(f'v_add_u32 {vr(vTR1)}, {LDS_WQ}, {vr(vL16)}\nv_add_u32 {vr(vTR2)}, {LDS_WO}, {vr(vL16)}')
        if L < 2: P(f'v_subrev_u32 {vr(KVB)}, {LDS_WQ}, {vr(vTR1)}')
        def rdk(ks):
            self.w_read(RING + 8*(ks % NR), KVB, LDS_WK + ks*1024, L, ('k', ks))
        def rdv(ks):
            self.w_read(RING + 8*(ks % NR) + 4, KVB, LDS_WV + ks*1024, L, ('v', ks))
        csrd = [('ds', 'cs', f'ds_read_b128 {vr(WEXTK,4)}, {vr(vT0)} offset:512'), ('ds', 'cs', f'ds_read_b128 {vr(WEXTV,4)}, {vr(vT0)} offset:1024')]
        wext = self.wext_items(WEXTK, 'cs') + self.wext_items(WEXTV, 'cs')
        addr = [f'v_add_u32 {vr(vKA)}, {sr(sOWN)}, {vr(vL16)}']
        if typ == 0:
            La = L // 2
            addr += [f's_add_u32 {sr(sK0)}, {sr(sKVW)}, {OFF_KV + La*KV_L}', f's_add_u32 {sr(sK2)}, {sr(sK0)}, 4096']
        else:
            addr += self.phi_addr()
            if o['pw1']: addr += [f's_lshl_b32 {sr(sT0)}, {sr(sMT)}, 2', f'v_add_u32 {vr(PKV+8)}, {sr(sT0)}, {vr(vCNT)}', f'v_mov_b32 {vr(PKV+9)}, {TV_K[L]}']
        extras = []
        def pop(n):
            for _ in range(n):
                if extras: self.item(extras.pop(0))
        finld = f'buffer_load_dwordx2 {vr(STAT,2)}, {vr(STAT+2)}, {sr(sWS,4)}, {sr(sT1)} offen sc1'
        def fincheck():
            lp = P.newlabel('Lfin'); ct = P.newlabel('Lfinc')
            P(waitstr(vm=vm.need('st')))
            P(f'v_cmp_ne_u32 vcc, {sr(sM)}, {vr(STAT+1)}\ns_cbranch_vccnz {lp}')
            P.label(ct)
            def again(_):
                if self.stamps: P(f's_or_b32 s101, s101, {1 << (4 + 6*(L - 1))}')
                P(f'{finld}\ns_waitcnt vmcnt(0)\nv_cmp_ne_u32 vcc, {sr(sM)}, {vr(STAT+1)}\ns_cbranch_vccz {ct}')
                P(f's_sub_u32 {sr(sBUD)}, {sr(sBUD)}, 1\ns_cbranch_scc0 {lp}\ns_mov_b32 {sr(sBUD)}, 0')
            self.ool.append((lp, again, ct))
        D = (o['vlag'] if typ else o['vlaga']) if L else 0
        def vstep(kv):
            if kv == 32: return self.mfma(ACC1, XEXT, WEXTV, ACC1)
            P(waitstr(lg=lg.need(('v', kv))))
            self.mfma(ACC1, XF + 4*kv, RING + 8*(kv % NR) + 4, None if kv == 0 else ACC1)
            if kv + NR < 32: rdv(kv + NR)
        def kstep(ks, pre=None):
            b = RING + 8*(ks % NR)
            P(waitstr(vm=vm.need(('x', ks)) if L > 0 else None, lg=lg.need(('k', ks))))
            self.mfma(ACC0, b, XF + 4*ks, None if ks == 0 else ACC0)
            if pre: pre()
            if ks + NR < 32: rdk(ks + NR)
            if V and ks & 1 and ks > 1: P(self.acc_par(XF + 4*ks - 4, XF + 4*ks, L & 1))
            if L > 0 and ks + XD < 32 and ks >= 2: self.frag_load(sOut, ks + XD); pop(1)
            else: pop(3)
            if ks >= D: vstep(ks - D)
            if L > 0 and o['red'] and ks == o['rk0']:
                P(finld); vm.issue('st')
            if L > 0 and o['st0'] <= ks < o['st0'] + 8 and not o['red']:
                for i in range(2*(ks-o['st0']), 2*(ks-o['st0']) + 2):
                    P(f'buffer_load_dword {vr(STAT+i)}, {vr(vL4)}, {sr(sWS,4)}, {sr(sT1)} offen offset:{i*256} sc1'); vm.issue('st')
            pop(3)
        if L > 0 and not o['b0']:
            ok = P.newlabel('Lwr')
            P(f'v_cmp_gt_u32 vcc, {4*L}, {vr(vT0)}\ns_cbranch_vccz {ok}')
            self.lds_wait(C_WR, 4*L)
            P.label(ok)
            if L == 1 and o['bq']:
                P(f's_lshl_b32 {sr(sT0)}, {sr(sMT)}, 11\ns_add_u32 {sr(sT0)}, {sr(sT0)}, {LDS_WQ}\nv_add_u32 {vr(PKV)}, {sr(sT0)}, {vr(vL16)}')
                bqw = [('ds', 'bq', f'ds_write_b128 {vr(PKV)}, {vr(224+4*u,4)} offset:{cho(u)}') for u in range(8)]
                bqw.append(('ds', 'bq', f'v_mov_b32 {vr(vPD)}, 1\ns_mov_b64 exec, 1\nds_add_u32 {vr(vCNT)}, {vr(vPD)} offset:{4*C_Q}\ns_mov_b64 exec, -1'))
        self.csp_addr(typ)
        if L == 0:
            AD = PKV + 2; X0D = o['x0d']
            P(f"""v_bfe_u32 {vr(AD)}, {vr(vLANE)}, 1, 3
v_xor_b32 {vr(AD)}, {vr(AD)}, v64
v_lshlrev_b32 {vr(AD)}, 4, {vr(AD)}
v_lshl_add_u32 {vr(AD)}, v65, 7, {vr(AD)}
s_and_b32 {sr(sT0)}, {sr(sC)}, 1
s_lshl_b32 {sr(sT0)}, {sr(sT0)}, 6
v_xor_b32 {vr(AD)}, {sr(sT0)}, {vr(AD)}
v_add_u32 {vr(AD)}, {sr(sLA)}, {vr(AD)}
v_xor_b32 {vr(AD+1)}, 32, {vr(AD)}
v_xor_b32 {vr(AD+2)}, 64, {vr(AD)}
v_xor_b32 {vr(AD+3)}, 96, {vr(AD)}
s_mov_b32 {sr(sSEL0)}, 0x3f803f80""")
            for i in range(4): P(f'v_mov_b32 {vr(STAT+i)}, 0')
            for it in addr: self.item(it)
            for g in range(2, X0D): self.x0_load(g)
            if o['xst']:
                P(f"""v_mov_b32 {vr(PKV)}, {vr(AD)}
v_mov_b32 {vr(PKV+1)}, {vr(AD+1)}
s_lshr_b32 {sr(sT2)}, {sr(sC)}, 1
s_sub_u32 {sr(sT2)}, {sr(sT2)}, {sr(sROT)}
s_and_b32 {sr(sT2)}, {sr(sT2)}, 7""")
            def dots(g):
                for i in range(16):
                    r_ = XF + 16*g + i
                    P(f'v_dot2_f32_bf16 {vr(STAT+(i&1))}, {vr(r_)}, {sr(sSEL0)}, {vr(STAT+(i&1))}\nv_dot2_f32_bf16 {vr(STAT+2+(i&1))}, {vr(r_)}, {vr(r_)}, {vr(STAT+2+(i&1))}')
            stat_fold = [f'v_add_f32 {vr(STAT)}, {vr(STAT)}, {vr(STAT+1)}', f'v_add_f32 {vr(STAT+2)}, {vr(STAT+2)}, {vr(STAT+3)}',
                         f'v_permlane32_swap_b32 {vr(STAT)}, {vr(STAT+2)}', f'v_add_f32 {vr(STAT)}, {vr(STAT)}, {vr(STAT+2)}']
            LAG = o['il']
            if LAG:
                P(f'v_mov_b32 {vr(PKV+6)}, 1')
                sig = lambda idx: self.item(('ds', 'sig', f's_mov_b64 exec, 1\nds_add_u32 {vr(vCNT)}, {vr(PKV+6)} offset:{4*idx}\ns_mov_b64 exec, -1'))
                lg.reset()
                def ks0(ks):
                    nonlocal extras
                    if ks == 0:
                        self.lds_check(C_ST, 4)
                        self.stamp(29, 'S0 / W st2')
                        for k in range(NR): rdk(k); rdv(k)
                    pre = None; st = ks // 8 + 1
                    if ks % 8 == 2 and st < 4: extras[0:0] = self.lds_peek(C_ST + st)
                    if ks % 8 == 5 and st < 4: pre = lambda: self.lds_check(C_ST + st, 4)
                    if ks == o['csk']: extras[0:0] = self.lds_peek(C_CS)
                    if ks == o['csk'] + 2:
                        pre = lambda: self.lds_check(C_CS, 4)
                        extras += csrd + ['s_nop 0']*4 + wext
                    if ks == 30: extras[0:0] = self.lds_peek(C_Q)
                    kstep(ks, pre)
                for g in range(8 + LAG):
                    kk = list(range(4*(g - LAG), 4*(g - LAG) + 4)) if g >= LAG else []
                    if g < 8:
                        if g == LAG - 1 or (LAG > 8 and g == 7):
                            for it in self.lds_peek(C_ST): self.item(it)
                        lx = P.newlabel('Lx')
                        P(f's_cmp_lg_u32 {sr(sT2)}, {g}')
                        P(waitstr(vm=vm.need(('x', g))))
                        P(f's_cbranch_scc1 {lx}\nds_read_b128 {vr(XRES,4)}, {vr(PKV)} offset:{(g%3)*4096}\nds_read_b128 {vr(XRES+4,4)}, {vr(PKV+1)} offset:{(g%3)*4096}')
                        P.label(lx)
                        for s_ in range(4): P(f'ds_read_b128 {vr(XF+16*g+4*s_,4)}, {vr(AD+s_)} offset:{(g%3)*4096}')
                        lg.issue(('xg', g), 4)
                        if kk and kk[0] > 0: ks0(kk.pop(0))
                        P(waitstr(lg=lg.need(('xg', g))))
                        if g + 3 < 8: self.x0_load(g + 3)
                        if g == o['wgo'] - 1: sig(C_WGO)
                        if g == o['qgo']: sig(C_CSQ)
                        if g == 7: sig(C_XDONE)
                        if g in (0, 3, 5, 7): self.stamp({0: 2, 3: 15, 5: 23, 7: 1}[g], {0: 'x g0 / W go', 3: 'x g3 / W st0', 5: 'x g5 / W st1', 7: 'x0 / W st3'}[g])
                        if g == 7 or not kk or kk[0] == 0:
                            dots(g)
                            if g == 7: extras += stat_fold + self.stats_final(typ)
                            for k in kk: ks0(k)
                        else:
                            for k in kk: ks0(k)
                            dots(g)
                    else:
                        for k in kk: ks0(k)
                pop(100)
            for g in range(0 if LAG else 8):
                if o['xst']: P(f's_cmp_lg_u32 {sr(sT2)}, {g}')
                P(waitstr(vm=vm.need(('x', g))))
                if o['xst']:
                    lx = P.newlabel('Lx')
                    P(f's_cbranch_scc1 {lx}\nds_read_b128 {vr(XRES,4)}, {vr(PKV)} offset:{(g%4)*4096}\nds_read_b128 {vr(XRES+4,4)}, {vr(PKV+1)} offset:{(g%4)*4096}')
                    P.label(lx)
                for s_ in range(4): P(f'ds_read_b128 {vr(XF+16*g+4*s_,4)}, {vr(AD+s_)} offset:{(g%4)*4096}')
                if g: P('s_waitcnt lgkmcnt(4)')
                if g + X0D < 8: self.x0_load(g + X0D)
                if g: dots(g - 1)
                if g == o['wgo'] - 1: self.lds_signal(C_WGO)
                if g in (0, 3, 5): self.stamp({0: 2, 3: 15, 5: 23}[g], {0: 'x g0 / W go', 3: 'x g3 / W st0', 5: 'x g5 / W st1'}[g])
            if not LAG:
                self.lds_signal(C_XDONE)
                lg.reset()
                for it in self.lds_peek(C_ST): self.item(it)
                dots(7)
                self.stamp(1, 'x0 / W st3')
                self.lds_check(C_ST, 4)
                self.stamp(29, 'S0 / W st2')
                for ks in range(NR): rdk(ks); rdv(ks)
                P(f'v_add_f32 {vr(STAT)}, {vr(STAT)}, {vr(STAT+1)}\nv_add_f32 {vr(STAT+2)}, {vr(STAT+2)}, {vr(STAT+3)}')
                P(f'v_permlane32_swap_b32 {vr(STAT)}, {vr(STAT+2)}\nv_add_f32 {vr(STAT)}, {vr(STAT)}, {vr(STAT+2)}')
                extras += self.stats_final(typ)
                pop(10)
                for ks in range(32):
                    pre = None
                    st = ks // 8 + 1
                    if ks % 8 == 2: extras[0:0] = self.lds_peek(C_ST + st if st < 4 else C_CS)
                    if ks % 8 == 5 and st < 4: pre = lambda: self.lds_check(C_ST + st, 4)
                    if ks == 28:
                        pre = lambda: self.lds_check(C_CS, 4)
                        extras += csrd + self.lds_peek(C_Q) + ['s_nop 0']*3 + wext
                    kstep(ks, pre)
                pop(100)
        else:
            vm.reset(); lg.reset()
            redo = P.newlabel('Lkvredo')
            if o['red']: P(f's_lshr_b32 {sr(sT1)}, {sr(sRB)}, 6\ns_add_u32 {sr(sT1)}, {sr(sT1)}, {OFF_FIN}')
            else: P(f's_lshr_b32 {sr(sT1)}, {sr(sRB)}, 3\ns_add_u32 {sr(sT1)}, {sr(sT1)}, {OFF_ST}')
            for it in addr: self.item(it)
            if o['b0']: P('s_barrier')
            self.stamp(14 + L*14 if L < 3 else 57, f'L{L} B0')
            P.label(redo)
            for it in csrd: self.item(it)
            for ks in range(NR): rdk(ks); rdv(ks)
            extras += wext
            if o['red']: extras += [f'v_lshlrev_b32 {vr(STAT+2)}, 3, {vr(vLANE)}', f's_add_u32 {sr(sM)}, {sr(sTAG)}, {L}']
            if o['own']: kstep(0); kstep(1)
            S = self.probe(sOut, 0, L & 1, XD) if L > 1 and not o['hx'] else self.first_hop(0, OFF_XFLAG + 0x2000, 60, L & 1 if V else None, L - 1, 1 if (L > 1 and o['prex']) else None)
            self.stamp(2 + L*14, f'L{L} xflags')
            for ks in range(2, XD + 2): self.frag_load(sOut, ks)
            if L == 1 and o['bq']:
                for it in bqw: self.item(it)
            late = [('wvm', 'st')] + [self.acc_par(STAT + 2*i, STAT + 2*i + 1, L & 1) for i in range(8) if V]
            for step in (8, 4, 2, 1):
                for i in range(step): late.append(f'v_add_f32 {vr(STAT+i)}, {vr(STAT+i)}, {vr(STAT+i+step)}')
            if o['red']: late = [('fn', fincheck)]
            late += self.stats_final(typ)
            for ks in range(2 if o['own'] else 0, 32):
                if ks == (o['rk1'] if o['red'] else 8 + o['st0'] + XD): extras += late
                kstep(ks)
                if V and ks in (o['ev'], o['ev2']): self.verify(L & 1, redo)
            pop(100)
            if V: self.verify(L & 1, redo)
        self.mfma(ACC0, WEXTK, XEXT, ACC0)
        rest = list(range(32 - D, 33))
        def vt(n=1):
            for _ in range(n):
                if rest: vstep(rest.pop(0))
        vt()
        return vt

    def w_read(self, dst, base, off, L, tag, qkv=True):
        if L > 1:
            self.P(f'ds_read_b128 {vr(dst,4)}, {vr(base)} offset:{off}'); self.lg.issue(tag)
        else:
            d = 256 if (L == 0 and qkv) else 512
            self.P(f'ds_read_b64_tr_b16 {vr(dst,2)}, {vr(base)} offset:{off}\nds_read_b64_tr_b16 {vr(dst+2,2)}, {vr(base)} offset:{off+d}'); self.lg.issue(tag, 2)

    def q_prefetch(self, L, NS=5):
        for ks in range(NS): self.q_rd(L, ks)

    def q_rd(self, L, ks, NS=5):
        self.w_read(RING + 4*(ks % NS), vTR1, ks*1024, L, ('w', ks))

    def main_qpass(self, L, acc, fill, at=None, pre_write=None, rate=4):
        P = self.P; typ = L % 2; lg = self.lg; NS = 5
        fill = list(fill)
        for ks in range(32):
            P(waitstr(lg=lg.need(('w', ks))))
            self.mfma(acc, RING + 4*(ks % NS), XF + 4*ks, None if ks == 0 else acc)
            if ks + NS < 32: self.q_rd(L, ks + NS)
            n = 0
            while fill and n < rate:
                it = fill.pop(0); self.item(it)
                if isinstance(it, str) or it[0] == 'ds': n += 1
            if at and ks in at: at[ks]()
        for it in fill: self.item(it)
        self.mfma(acc, WEXTQ, XEXT, acc)
        if at and 32 in at: at[32]()
        order = (4, 5, 6, 7, 0, 1, 2, 3)
        for p in order:
            if typ == 0 and p % 4 == 0:
                for q in range(p, p + 4): P(f'v_pk_mul_f32 {vr(acc+2*q,2)}, {vr(acc+2*q,2)}, {vr(vRSTD,2)} op_sel_hi:[1,0]')
            P(f'v_cvt_pk_bf16_f32 {vr(aQ+p)}, {vr(acc+2*p)}, {vr(acc+2*p+1)}')
            if p == 7:
                if pre_write: pre_write()
                P(f'ds_write_b128 {vr(vKA)}, {vr(aQ+4,4)} offset:5120')

    def tile_addr(self, sbase):
        return f"""s_lshl_b32 {sr(sT1)}, {sr(sHS)}, 10
s_add_u32 {sr(sT1)}, {sr(sT1)}, {sr(sbase)}
v_add_u32 {vr(vKA)}, {sr(sT1)}, {vr(vL16)}
s_lshl_b32 {sr(sT1)}, {sr(sHS)}, 8
v_xor_b32 {vr(vVA)}, {sr(sT1)}, {vr(vL16)}
v_add_u32 {vr(vVA)}, {sr(sbase)}, {vr(vVA)}"""

    def trickle_setup(self):
        self.P(f's_mov_b32 {sr(sDM)}, 4\ns_mov_b32 {sr(sDG)}, {sr(sG0)}\ns_add_u32 {sr(sDL)}, {sr(sLA)}, {sr(sS0)}')

    def trickle(self, keep=0):
        P = self.P; sk = P.newlabel('Lsk')
        P(f's_cmp_le_u32 {sr(sDM)}, {keep}\ns_cbranch_scc1 {sk}\ns_mul_i32 {sr(sT0)}, {sr(sDG)}, 3')
        for e in range(2):
            for nt in (1, 2):
                P(f's_add_u32 m0, {sr(sDL)}, {NT_LDS[nt] + e*1024}\ns_add_u32 {sr(sT1)}, {sr(sT0)}, {e*49152 + nt*1024}')
                P(f'buffer_load_dwordx4 {vr(vDW)}, {sr(sWB,4)}, {sr(sT1)} offen lds')
        P(f"""s_add_u32 {sr(sDL)}, {sr(sDL)}, 8192
s_and_b32 {sr(sDL)}, {sr(sDL)}, 0x7fff
s_add_u32 {sr(sDG)}, {sr(sDG)}, 0x20000
s_and_b32 {sr(sDG)}, {sr(sDG)}, 0x7ffff
s_sub_u32 {sr(sDM)}, {sr(sDM)}, 1""")
        P.label(sk)

    def attn_loop(self, cfirst, trickle=False):
        P = self.P; lp = P.newlabel('Latt')
        if self.o['trunc']: pk = lambda d, e: f'v_perm_b32 {vr(d)}, {vr(e+1)}, {vr(e)}, {sr(sPERM)}'
        else: pk = lambda d, e: f'v_cvt_pk_bf16_f32 {vr(d)}, {vr(e)}, {vr(e+1)}'
        rdv = f's_mov_b64 exec, {sr(sLO,2)}\nds_read_b128 {vr(VV,4)}, {vr(vVA)} offset:2048\nds_read_b128 {vr(VV+4,4)}, {vr(vVA)} offset:3072\ns_mov_b64 exec, -1'
        P(f'ds_read_b128 {vr(aK,4)}, {vr(vKA)}'); P(rdv)
        P(f'v_add_u32 {vr(vKA)}, {sr(sSTEP)}, {vr(vKA)}\nv_add_u32 {vr(vVA)}, {sr(sSTEP)}, {vr(vVA)}\ns_waitcnt lgkmcnt(2)')
        cfirst()
        P(f'ds_read_b128 {vr(aK,4)}, {vr(vKA)}\nv_add_u32 {vr(vKA)}, {sr(sSTEP)}, {vr(vKA)}\ns_nop 9')
        P.label(lp)
        for i in range(8): P(f'v_exp_f32 {vr(aE+i)}, {vr(aS+i)}')
        for p in range(4): P(pk(aP + p, aE + 2*p))
        for i in range(8, 10): P(f'v_exp_f32 {vr(aE+i-8)}, {vr(aS+i)}')
        P('s_waitcnt lgkmcnt(0)')
        self.mfma(aO, VV, aP, aO)
        for i in range(10, 16): P(f'v_exp_f32 {vr(aE+i-8)}, {vr(aS+i)}')
        self.mfma(aS, aK, aQ, None)
        P(f'ds_read_b128 {vr(aK,4)}, {vr(vKA)}')
        for p in range(4): P(pk(aP + 4 + p, aE + 2*p))
        P(f'v_add_u32 {vr(vKA)}, {sr(sSTEP)}, {vr(vKA)}\ns_sub_u32 {sr(sCNT)}, {sr(sCNT)}, 1')
        self.mfma(aO, VV + 4, aP + 4, aO)
        P(rdv)
        if trickle and self.o['trk']: self.trickle(4 - self.o['trk'])
        P(f'v_add_u32 {vr(vVA)}, {sr(sSTEP)}, {vr(vVA)}\ns_cmp_lg_u32 {sr(sCNT)}, 0\ns_cbranch_scc1 {lp}')

    def v_lanes(self):
        return [f'v_mov_b32 {vr(vSTV)}, {LDS_ONES - 2048}', f'v_cndmask_b32 {vr(vVA)}, {vr(vSTV)}, {vr(vVA)}, {sr(sLO,2)}',
                f'v_mov_b32 {vr(vSTV)}, {sr(sSTEP)}', f'v_cndmask_b32 {vr(vSTV)}, 0, {vr(vSTV)}, {sr(sLO,2)}']

    def attn2(self, M, first, trickle=False):
        P = self.P; lp = P.newlabel('Latt'); dn = P.newlabel('Lattd')
        pk = lambda d, e: f'v_perm_b32 {vr(d)}, {vr(e+1)}, {vr(e)}, {sr(sPERM)}'
        ex = lambda S, a, b: P('\n'.join(f'v_exp_f32 {vr(S+i)}, {vr(S+i)}' for i in range(a, b)))
        rdk = f'ds_read_b128 {vr(aK,4)}, {vr(vKA)}\nv_add_u32 {vr(vKA)}, {sr(sSTEP)}, {vr(vKA)}'
        P(rdk.replace(vr(aK,4), vr(aP,4))); P(rdk); P(f'ds_read_b128 {vr(VV,4)}, {vr(vVA)} offset:2048\ns_waitcnt lgkmcnt(2)')
        first()
        P('s_waitcnt lgkmcnt(1)\ns_nop 6')
        P.label(lp)
        for half, (S, N) in enumerate(((M, aS), (aS, M))):
            P('s_waitcnt lgkmcnt(2)')
            self.mfma(N, aK, aQ, None)
            P(rdk)
            ex(S, 0, 4)
            P('s_waitcnt lgkmcnt(2)')
            self.mfma(aO, VV + 4, aP + 4, aO)
            P(f'ds_read_b128 {vr(VV+4,4)}, {vr(vVA)} offset:3072\nv_add_u32 {vr(vVA)}, {vr(vSTV)}, {vr(vVA)}')
            ex(S, 4, 10)
            for p in range(4): P(pk(aP + p, S + 2*p))
            ex(S, 10, 12)
            P('s_waitcnt lgkmcnt(2)')
            self.mfma(aO, VV, aP, aO)
            P(f'ds_read_b128 {vr(VV,4)}, {vr(vVA)} offset:2048')
            if trickle and self.o['trk']: self.trickle(4 - self.o['trk'])
            ex(S, 12, 16)
            P(f's_sub_u32 {sr(sCNT)}, {sr(sCNT)}, 1')
            for p in range(4): P(pk(aP + 4 + p, S + 8 + 2*p))
            P(f's_cbranch_scc1 {dn}' if half == 0 else f's_cbranch_scc0 {lp}')
        P.label(dn)

    def publish_o_addr(self, L):
        return [f's_add_u32 {sr(sK0)}, {sr(sOW)}, {OFF_O}'] + ([f's_add_u32 {sr(sK1)}, {sr(sOF)}, {OFF_OFLAG}'] if L == 0 or self.o['ho'] else [])

    def publish_o(self, L, O, eps):
        P = self.P
        if eps: P(f'v_add_f32 {vr(O+8)}, {f2u(eps):#x}, {vr(O+8)}')
        P(f'v_rcp_f32 {vr(O+8)}, {vr(O+8)}')
        if L % 2 == 0 and self.o['omul']:
            for i in range(8): P(f'v_mul_f32 {vr(O+i)}, {vr(O+8)}, {vr(O+i)}')
        else:
            for p in range(4): P(f'v_pk_mul_f32 {vr(O+2*p,2)}, {vr(O+2*p,2)}, {vr(O+8,2)} op_sel_hi:[1,0]')
        for p in range(4): P(f'v_cvt_pk_bf16_f32 {vr(aP+p)}, {vr(O+2*p)}, {vr(O+2*p+1)}')
        P(self.set_par(aP, 1 - (L & 1)))
        def emit(sc1):
            P(f'buffer_store_dwordx4 {vr(aP,4)}, {vr(vL16)}, {sr(sWS,4)}, {sr(sK0)} offen' + (' sc1' if sc1 else (['', ' nt', ' sc1', ' sc0'][self.o.get('o3', 0)] if L == 3 or self.o.get('nta') else '')))
            if L == 0: self.flag(sK1, sTAG, sc1, wait=None if self.o['clr'] else 's_waitcnt vmcnt(0)')
            elif self.o['ho'] and (sc1 or not self.o['eb' if L & 1 else 'ea']): self.flag(sK1, sTAG, sc1, add=L)
        self.two_way(emit)

    def main_outproj(self, L):
        P = self.P; vm, lg = self.vm, self.lg; OD = self.o['od'] if L != 1 else self.o['od1']; par = 1 - (L & 1)
        vm.reset(); lg.reset()
        redo = P.newlabel('Lopredo')
        PO = self.o['preo'] and L > 0
        if PO: P(f'v_and_b32 v111, 124, {vr(vL4)}\nv_add_u32 v111, {OFF_OFLAG}, v111\nbuffer_load_dword v103, v111, {sr(sWS,4)}, {sr(sXF)} offen sc1')
        if L == 0:
            if self.o['plds']: self.wphi_load(170); P('s_waitcnt lgkmcnt(0)')
            for op in ['s_waitcnt vmcnt(2)' if self.o['clr'] else 's_waitcnt vmcnt(1)'] + [f'v_permlane32_swap_b32 {vr(XRES+a)}, {vr(XRES+b)}' for a, b in SW4] + self.wphi_pack(170): P(op)
        for i in range(4): P(f'v_mov_b32 {vr(XF+i)}, {vr(aP+i)}')
        NS = 6; RG = 24 if L == 0 and self.o['bq'] else 32; V = L or self.o['clr']
        def rd(ks):
            self.w_read(RING + 4*(ks % NS), vTR2, ks*1024, L, ('w', ks), qkv=False)
        self.publish_x_addr(L + 1)
        HB = self.o['hb']
        if HB: P(f's_lshl_b32 {sr(sT0)}, {sr(sMT)}, 2\nv_add_u32 v100, {sr(sOWN)}, {vr(vL16)}\nv_add_u32 v101, {sr(sT0)}, {vr(vCNT)}')
        P.label(redo)
        for ks in range(NS): rd(ks)
        self.unpack_res()
        S = self.probe(sWS, OFF_O, par, OD) if L > 0 and not self.o['ho'] else self.first_hop(OFF_O, OFF_OFLAG, 124, par if V else None, L, 0 if PO else None)
        SG = self.o['sg'] if L == 1 else 0
        EX = self.o['ex'] if L in (1, 2) else 0
        if SG:
            l = P.newlabel('Lx'); lw = P.newlabel('Lx')
            P(f's_cmp_lt_u32 {sr(sMT)}, 2\ns_cbranch_scc1 {l}'); P.label(lw)
            P(f'ds_read_b32 {vr(vT0)}, {vr(vCNT)} offset:{4*C_WGO}\ns_waitcnt lgkmcnt(0)\nv_cmp_gt_u32 vcc, 6, {vr(vT0)}\ns_cbranch_vccnz {lw}')
            P.label(l)
        self.stamp(11 + L*14, f'L{L} oflags')
        for ks in range(1 + HB, OD + 1 + HB): self.frag_load(sWS, ks)
        if HB:
            lw = P.newlabel('Lhb'); P.label(lw)
            P(f'ds_read_b32 v102, v101 offset:{4*C_ST}\nds_read_b128 {vr(XF+4,4)}, v100 offset:5120\ns_waitcnt lgkmcnt(0)\nv_cmp_gt_u32 vcc, {TV_O[L]}, v102\ns_cbranch_vccnz {lw}')
            lg.reset()
        for ks in range(32):
            P(waitstr(vm=vm.need(('x', ks)), lg=lg.need(('w', ks))))
            self.mfma(ACC0, RING + 4*(ks % NS), XF + 4*(ks % RG), ACC0)
            if ks + OD < 32 and ks > HB: self.frag_load(sWS, ks + OD, RG)
            if ks + NS < 32: rd(ks + NS)
            if SG and ks == SG - 1: self.item(('ds', 'sg', f's_mov_b64 exec, 2\nds_add_u32 {vr(vCNT)}, {vr(vLANE)} offset:{4*C_WGO}\ns_mov_b64 exec, -1'))
            if V and ks & 1: P(self.acc_par(XF + 4*ks - 4, XF + 4*ks, par))
            if V and ks in (self.o['ev'], self.o['ev2']): self.verify(par, redo)
            if self.o['prex'] and L in (1, 2) and ks == 25: P(f'v_and_b32 v111, 60, {vr(vL4)}\nv_add_u32 v111, {OFF_XFLAG + 0x2000}, v111')
            if EX and ks == 24:
                for op in self.hint_prep(106, L): P(op)
            if EX and ks == EX: self.hint(106, sK2); vm.issue('h')
        if V: self.verify(par, redo)
        if EX == 32: self.hint(106, sK2)
        self.stamp(12 + L*14, f'L{L} outproj')
        nxt = L + 1 < self.nl and not self.o['b0']
        if nxt: P(f'ds_read_b32 {vr(vT0)}, {vr(vCNT)} offset:{4*C_WR}')
        self.publish_x(L + 1)
        if nxt: self.lds_signal(C_XDONE)
        self.stamp(13 + L*14, f'L{L} xpub')

    def aux_head(self, L):
        P = self.P
        if self.o['b0']: P('s_barrier')
        else: self.lds_signal(C_WR)
        if L + 1 < self.nl: self.code_prefetch(f'L_main_{L+1}')
        if L == 3: return
        if L == 2: return self.aux_head2(L)
        if L > 1 and not self.o['b0']: self.lds_wait(C_XDONE, 4 + 4*L, self.o['lsleep'])
        if L == 1:
            self.lds_to_regs(LDS_WO, PARK['o'], True); P('s_waitcnt vmcnt(0) lgkmcnt(0)')
            if self.o['bq']: self.lds_wait(C_Q, 8, self.o['lsleep'])
            if not self.o['bql']: self.relayout(1, (0,))
        else: self.swap_region('o', L + 1 < self.nl, L == 2)

    def aux_head2(self, L):
        if L == 1 and self.o['bql']: self.lds_wait(C_XDONE, 4 + self.o['bql']*2 + 2 if self.o['bql'] == 1 else 6, self.o['lsleep'])
        if self.o['red']: self.stats_reduce(L)
        if L == 1 and self.o['bql']:
            self.dma_w(1, (0,)); self.P('s_waitcnt vmcnt(0)')
            self.relayout(1, (0,), tmp=48, ntmp=4)
        if self.o['chain'] and L == 2:
            for i in range(32): self.P(f'v_mov_b32 {vr(PARK[0]+i)}, {vr(32+i)}')
        if L > 1:
            if not self.o['b0']: self.lds_wait(C_XDONE, 4 + 4*L, self.o['lsleep'])
            self.swap_region('o', L + 1 < self.nl, L == 2)

    def stats_reduce(self, L):
        P = self.P; sk = P.newlabel('Lx'); lp = P.newlabel('Lred'); dn = P.newlabel('Lredd'); R = 64; par = L & 1
        P(f"""s_lshl_b32 {sr(sT0)}, {sr(sMT)}, 2
s_cmp_lg_u32 {sr(sT0)}, {sr(sC)}
s_cbranch_scc1 {sk}
s_setprio 3
v_and_b32 {vr(vPA)}, 60, {vr(vL4)}
s_add_u32 {sr(sT2)}, {sr(sXF)}, {OFF_XFLAG + 0x2000}
s_add_u32 {sr(sT0)}, {sr(sTAG)}, {L - 1}
s_lshr_b32 {sr(sT1)}, {sr(sRB)}, 3
s_add_u32 {sr(sT1)}, {sr(sT1)}, {OFF_ST}
s_lshr_b32 {sr(sT3)}, {sr(sRB)}, 6
s_add_u32 {sr(sT3)}, {sr(sT3)}, {OFF_FIN}
v_and_b32 {vr(R+18)}, 15, {vr(vLANE)}
v_lshrrev_b32 {vr(R+17)}, 4, {vr(vLANE)}
v_lshl_add_u32 {vr(R+18)}, {vr(R+18)}, 2, {vr(R+17)}
v_lshlrev_b32 {vr(R+18)}, 3, {vr(R+18)}
v_add_u32 {vr(R+17)}, {sr(sTAG)}, {L}""")
        self.poll(sT2, val=sT0)
        if self.o['rsl'] and L > 1: P(f's_sleep {self.o["rsl"]}')
        P.label(lp)
        for i in range(4): P(f'buffer_load_dwordx4 {vr(R+4*i,4)}, {vr(vL16)}, {sr(sWS,4)}, {sr(sT1)} offen offset:{i*1024} sc1')
        P(f'v_mov_b32 {vr(vPD)}, {par}')
        for i in range(4):
            P(f's_waitcnt vmcnt({3 - i})'); P(self.acc_par(R + 4*i, R + 4*i + 1, par)); P(self.acc_par(R + 4*i + 2, R + 4*i + 3, par))
            if i:
                for k in range(4): P(f'v_add_f32 {vr(R+k)}, {vr(R+k)}, {vr(R+4*i+k)}')
        P(self.test_par(par))
        P(f'v_permlane32_swap_b32 {vr(R)}, {vr(R+2)}\nv_permlane32_swap_b32 {vr(R+1)}, {vr(R+3)}\nv_add_f32 {vr(R)}, {vr(R)}, {vr(R+2)}\nv_add_f32 {vr(R+1)}, {vr(R+1)}, {vr(R+3)}')
        P(f'v_permlane16_swap_b32 {vr(R)}, {vr(R+1)}\nv_add_f32 {vr(R+16)}, {vr(R)}, {vr(R+1)}\ns_cbranch_vccz {dn}')
        P(f's_sub_u32 {sr(sBUD)}, {sr(sBUD)}, 1\ns_cbranch_scc0 {lp}\ns_mov_b32 {sr(sBUD)}, 0')
        P.label(dn)
        self.two_way(lambda sc1: P(f'buffer_store_dwordx2 {vr(R+16,2)}, {vr(R+18)}, {sr(sWS,4)}, {sr(sT3)} offen' + (' sc1' if sc1 else '')))
        P('s_setprio 0')
        P.label(sk)

    def aux_tail(self, L):
        P = self.P
        if self.o['hb']:
            P(f"""v_add_u32 v64, {sr(sOWN)}, {vr(vL16)}
s_lshl_b32 {sr(sT0)}, {sr(sQT)}, 2
ds_write_b128 v64, {vr(aP,4)} offset:5120
v_add_u32 v65, {sr(sT0)}, {vr(vCNT)}
v_mov_b32 v66, {TV_O[L]}
ds_write_b32 v65, v66 offset:{4*C_ST}""")
        if L + 1 >= self.nl:
            if self.o['hb']: P('s_waitcnt lgkmcnt(0)')
            if self.o.get('wb'):
                lw = P.newlabel('Lx')
                P(f's_lshr_b32 {sr(sT0)}, s2, {3 if self.o["wb"] == 1 else 8}\ns_or_b32 {sr(sT0)}, {sr(sT0)}, {sr(sMT)}\ns_cmp_lg_u32 {sr(sT0)}, 0\ns_cbranch_scc1 {lw}')
                P('s_waitcnt vmcnt(0)\ns_sleep 8\nbuffer_wbl2 sc1\ns_waitcnt vmcnt(0)')
                P.label(lw)
            return
        if L % 2 == 0: wait_att = lambda: self.lds_wait(C_ATT, 8*(L//2 + 1), self.o['lsleep'])
        else: wait_att = lambda: None
        if L == 0:
            lp = P.newlabel('Lx'); P.label(lp)
            self.trickle()
            P(f's_cmp_lg_u32 {sr(sDM)}, 0\ns_cbranch_scc1 {lp}')
            self.wphi_load()
            if self.o['bq'] or self.o['bql']: P('s_waitcnt vmcnt(0) lgkmcnt(0)')
            else:
                wait_att()
                self.dma_w(1, (0,))
                P('s_waitcnt vmcnt(8) lgkmcnt(0)')
            for op in self.wphi_pack(): P(op)
            self.relayout(1, (1, 2))
            if self.o['bq'] or self.o['bql']: wait_att()
            return
        save = L + 2 < self.nl
        if L == 1:
            for st in range(4): P(f's_add_u32 {sr(sT0)}, {sr(sS0)}, {st*8192}\ns_and_b32 {sr(sT0)}, {sr(sT0)}, 0x7fff\nv_add_u32 {vr(64+st)}, {sr(sT0)}, {vr(vCH)}')
        if self.o['chain'] and L == 1:
            dst = 32
            for nt in (1, 2, 0):
                self.lds_to_regs(NT_LDS[nt], dst, True)
                self.regs_to_lds(NT_LDS[nt], PARK[nt], True)
                dst = PARK[nt]
            return
        if self.o['chain'] and L == 2:
            self.regs_to_lds(LDS_WK, PARK[0]); self.regs_to_lds(LDS_WV, PARK[1])
            wait_att()
            self.regs_to_lds(LDS_WQ, PARK[2])
            return
        self.swap_region(1, save, L == 1); self.swap_region(2, save, L == 1)
        wait_att()
        self.swap_region(0, save, L == 1)

    def layerA(self, L):
        P = self.P; sb = L * 14; o = self.o; lg = self.lg
        j1 = f'L_j1_{L}'; j2 = f'L_j2_{L}'; ax2 = f'L_ax2_{L}'; ax3 = f'L_ax3_{L}'
        P.label(f'L_main_{L}')
        vt = self.main_kv(L)
        self.stamp(3 + sb, f'L{L} kvpass')
        if L == 0: self.lds_check(C_Q, 4)
        if L and o['vlaga']:
            vt()
            for p in range(8):
                P(f'v_mul_f32 {vr(ACC0+2*p)}, {vr(vRSTD)}, {vr(ACC0+2*p)}\nv_mul_f32 {vr(ACC0+2*p+1)}, {vr(vRSTD)}, {vr(ACC0+2*p+1)}')
                P(f'v_cvt_pk_bf16_f32 {vr(PKV+p)}, {vr(ACC0+2*p)}, {vr(ACC0+2*p+1)}')
                if p & 1: vt()
            vt(99)
            self.q_prefetch(L)
            P(waitstr(lg=lg.need('rt')))
        else:
            self.q_prefetch(L)
            P(waitstr(lg=lg.need('rt')))
            for p in range(8):
                P(f'v_pk_mul_f32 {vr(ACC0+2*p,2)}, {vr(ACC0+2*p,2)}, {vr(vRSTD,2)} op_sel_hi:[1,0]')
            for p in range(8): P(f'v_cvt_pk_bf16_f32 {vr(PKV+p)}, {vr(ACC0+2*p)}, {vr(ACC0+2*p+1)}')
        st = lambda f: f'buffer_store_dwordx4 {vr(PKV+4*f,4)}, {vr(vL16)}, {sr(sWS,4)}, {sr(sK0)} offen offset:{f*1024}{MODS[o["sm"]]}'
        fill = [st(0), st(1)]
        for hf in range(2):
            fill += [f'v_mul_f32 {vr(ACC1+i)}, {vr(STAT+i)}, {vr(ACC1+i)}' for i in range(8*hf, 8*hf + 8)]
            fill += [f'v_cvt_pk_bf16_f32 {vr(PKV+8+p)}, {vr(ACC1+2*p)}, {vr(ACC1+2*p+1)}' for p in range(4*hf, 4*hf + 4)]
            fill.append(st(2 + hf))
        fill += self.checksum(vPD, PKV, 16) + [f'buffer_store_dword {vr(vPD)}, {vr(vL4)}, {sr(sWS,4)}, {sr(sK2)} offen{MODS[o["sm"]]}']
        if o['vfirst']:
            P(st(0)); P(st(1))
            for hf in range(2):
                for i in range(8*hf, 8*hf + 8, 2): P(f'v_pk_mul_f32 {vr(ACC1+i,2)}, {vr(STAT+i,2)}, {vr(ACC1+i,2)}')
                for p in range(4*hf, 4*hf + 4): P(f'v_cvt_pk_bf16_f32 {vr(PKV+8+p)}, {vr(ACC1+2*p)}, {vr(ACC1+2*p+1)}')
                P(st(2 + hf))
            fill = fill[-9:]
        fill += [('ds', 'own', f'ds_write_b128 {vr(vKA)}, {vr(PKV+4*f,4)} offset:{f*1024}') for f in range(4)]
        if L == 0 and o['early']:
            fill.append(('ds', 'kd', f'v_mov_b32 {vr(vPD)}, 1\ns_mov_b64 exec, 1\nds_add_u32 {vr(vCNT)}, {vr(vPD)} offset:{4*C_CS}\ns_mov_b64 exec, -1'))
        m0 = self.mask_ops(0, lean=True)
        if L == 0: fill += m0[:4] + self.lds_peek(C_CSQ) + m0[4:16] + [('fn', lambda: self.lds_check(C_CSQ, 8 if o['il'] else 4))]
        else: fill += m0[:16]
        fill += [('ds', 'cs', f'ds_read_b128 {vr(WEXTQ,4)}, {vr(vT0)}')] + m0[16:]
        fill += [f'v_mul_f32 {vr(vRSTD)}, {f2u(0.25*LOG2E):#x}, {vr(vRSTD)}'] + self.wext_items(WEXTQ, 'cs')
        def halo_loads(m=' sc1'):
            for t_, sh in ((0, sH1), (1, sH2)):
                P(f's_add_u32 m0, {sr(sHL)}, {t_*4096}')
                for f in range(4): P(f'buffer_load_dwordx4 {vr(vL16)}, {sr(sWS,4)}, {sr(sh)} offen offset:{f*1024}{m} lds')
                P(f'buffer_load_dword {vr(65+t_)}, v67, {sr(sWS,4)}, {sr(sh)} offen{m}')
        La = L // 2; sHL = sM + 6
        fill += self.mask_ops(1)
        AT2 = o['at2']
        common = self.publish_o_addr(L) + [f's_add_u32 {sr(sCNT)}, {sr(sQT)}, {1 - AT2}', f's_mov_b32 {sr(sSTEP)}, {-OWN_ST}']
        common += [f's_add_u32 {sr(sH1)}, {sr(sHB)}, {OFF_KV + La*KV_L}', f's_add_u32 {sr(sH2)}, {sr(sH1)}, {16*KV_REC}',
                   f's_lshl_b32 {sr(sHL)}, {sr(sMT)}, 13', f's_add_u32 {sr(sHL)}, {sr(sHL)}, {LDS_T}', f'v_add_u32 v67, 4096, {vr(vL4)}']
        p1 = f's_cmp_lt_u32 {sr(sQT)}, 2' if o['p1'] else f's_cmp_ge_u32 {sr(sQT)}, 2'
        pre2 = (self.v_lanes() + [f'v_mov_b32 {vr(aP+4+i)}, 0' for i in range(4)]) if AT2 else []
        def gap32():
            for it in common + [f'v_mov_b32 {vr(vVA)}, {vr(vKA)}'] + pre2: P(it)
            self.mfma(aO, aP + 4, aP + 4, None)
        at = {32: gap32}
        if L == 2 and o.get('fine'):
            self.stamp(32, 'L2 Kepi'); lg.reset()
            at[12] = lambda: (self.stamp(43, 'L2 q12'), lg.reset()); at[31] = lambda: (self.stamp(51, 'L2 q31'), lg.reset())
        self.main_qpass(L, ACC0, fill, at=at, rate=o['qrate'])
        if o['prio']: self.prio_if(p1)
        self.stamp(5 + sb, f'L{L} preB1')
        P(f's_waitcnt lgkmcnt(0)\ns_barrier')
        P(f's_branch {j1}')
        P.label(f'L_aux_{L}')
        if L > 0:
            self.aux_head(L)
            for op in self.mask_ops(0) + self.mask_ops(1): P(op)
        else:
            self.trickle_setup()
            if o['early']:
                self.lds_wait(C_CS, 8, 1)
                for _ in range(o['early']): self.trickle()
            if o['clr']:
                self.hello_check()
                if o['clr'] == 1: self.clear_lines(aO)
            else: self.hello_load()
        P(self.tile_addr(sOWN))
        for it in common + pre2: P(it)
        if o['prio']: self.prio_if(p1)
        self.stamp(5 + sb, f'L{L} preB1')
        P('s_barrier')
        P(f'ds_read_b128 {vr(aQ,4)}, {vr(vKA)} offset:4096')
        P.label(j1)
        l = P.newlabel('Lx')
        P(f's_cmp_eq_u32 {sr(sHAS)}, 0\ns_cbranch_scc1 {l}')
        if o['hpr']: P('s_setprio 3')
        halo_loads(MODS[o['hm']])
        if o['hpr']: P(f's_setprio {o["prio"] - 1 + o["p1"]}')
        P.label(l)
        if AT2: self.attn2(CDIAG, lambda: self.mfma(CDIAG, aP, aQ, CDIAG))
        else: self.attn_loop(lambda: self.mfma(aS, aK, aQ, CDIAG))
        P(self.tile_addr(sP2))
        P(f's_sub_u32 {sr(sCNT)}, {sr(sC2)}, {AT2}\ns_mov_b32 {sr(sSTEP)}, 4096')
        if AT2:
            for it in self.v_lanes(): P(it)
        if o['prio'] and not o['p1']: self.prio_if(f's_cmp_lt_u32 {sr(sQT)}, 2')
        self.stamp(6 + sb, f'L{L} own attn')
        lp = P.newlabel('Lhalo'); ck = P.newlabel('Lhchk'); dn = P.newlabel('Lhdone')
        def warm():
            if o['pfb'] == 2: self.coop_prefetch(1, 1)
            if o['pq']:
                P(f's_mov_b64 exec, {sr(sH0,2)}\ns_lshl_b32 {sr(sT1)}, {sr(sC)}, 6')
                if o['pq'] & 1: P(f'v_mul_u32_u24 v5, 3072, {vr(vLANE)}\ns_mul_i32 {sr(sT0)}, {sr(sG0)}, 3\ns_add_u32 {sr(sT0)}, {sr(sT0)}, {sr(sT1)}\nbuffer_load_dword v26, v5, {sr(sWB,4)}, {sr(sT0)} offen')
                if o['pq'] & 2: P(f'v_lshlrev_b32 v5, 10, {vr(vLANE)}\ns_add_u32 {sr(sT0)}, {sr(sG0)}, {sr(sT1)}\nbuffer_load_dword v26, v5, {sr(sWoB,4)}, {sr(sT0)} offen')
                P('s_mov_b64 exec, -1')
            if o['clr']:
                P(f"""s_mov_b64 exec, 3
v_mul_u32_u24 v5, {OFF_OFLAG - OFF_XFLAG - 0x2000}, {vr(vLANE)}
s_add_u32 {sr(sT1)}, {sr(sXF)}, {OFF_XFLAG + 0x2000}
buffer_load_dword v26, v5, {sr(sWS,4)}, {sr(sT1)} offen sc1
s_mov_b64 exec, -1""")
            elif o['touch']:
                P(f"""v_lshlrev_b32 v5, 3, {vr(vL16)}
v_and_b32 v5, 0x780, v5
s_add_u32 {sr(sT0)}, {sr(sXW)}, {OFF_O}
s_add_u32 {sr(sT1)}, {sr(sSW)}, {OFF_ST}
s_mov_b64 exec, 0xffff
buffer_load_dword v26, v5, {sr(sWS,4)}, {sr(sT0)} offen sc1
buffer_load_dword v26, v5, {sr(sOut,4)}, {sr(sXW)} offen sc1
s_mov_b64 exec, 3
buffer_load_dword v26, v5, {sr(sWS,4)}, {sr(sT1)} offen sc1
v_mul_u32_u24 v5, {OFF_OFLAG - OFF_XFLAG - 0x2000}, {vr(vLANE)}
s_add_u32 {sr(sT1)}, {sr(sXF)}, {OFF_XFLAG + 0x2000}
buffer_load_dword v26, v5, {sr(sWS,4)}, {sr(sT1)} offen sc1
s_mov_b64 exec, 15
v_lshlrev_b32 v5, 7, {vr(vLANE)}
s_lshr_b32 {sr(sT1)}, {sr(sRB)}, 6
s_add_u32 {sr(sT1)}, {sr(sT1)}, {OFF_FIN}
buffer_load_dword v26, v5, {sr(sWS,4)}, {sr(sT1)} offen sc1
s_mov_b64 exec, -1""")
        nh = P.newlabel('Lnh')
        P(f's_cmp_eq_u32 {sr(sHAS)}, 0\ns_cbranch_scc1 {nh}\nv_add_u32 {vr(vT0)}, {sr(sHL)}, {vr(vL16)}\ns_branch {ck}')
        P.label(lp)
        halo_loads()
        P.label(ck)
        for t_, R in ((0, aS), (1, CDIAG)):
            P(f's_waitcnt vmcnt({5-5*t_})')
            for f in range(4): P(f'ds_read_b128 {vr(R+4*f,4)}, {vr(vT0)} offset:{(4*t_+f)*1024}')
        for t_, R in ((0, aS), (1, CDIAG)):
            cs = self.checksum(68 + t_, R, 16)
            for f in range(4):
                P(f's_waitcnt lgkmcnt({7-4*t_-f})'); P(cs[2*f]); P(cs[2*f + 1])
            P(f'v_cmp_ne_u32 {sr(sM+2*t_,2)}, {vr(65+t_)}, {vr(68+t_)}')
        P(f's_or_b64 {sr(sM,2)}, {sr(sM,2)}, {sr(sM+2,2)}\ns_cbranch_scc0 {dn}')
        self.retry_tail(lp, dn)
        self.stamp(7 + sb, f'L{L} halo ok')
        P.label(nh)
        if L == 0: P(f's_cmp_lg_u32 {sr(sHS)}, 0\ns_cbranch_scc1 {ax2}')
        if L == 0:
            if not o['xst']:
                self.rowmajor_addr(182, 183, sT0)
                P(f'buffer_load_dwordx4 {vr(XRES,4)}, v182, {sr(sX0,4)}, {sr(sT0)} offen\nbuffer_load_dwordx4 {vr(XRES+4,4)}, v182, {sr(sX0,4)}, {sr(sT0)} offen offset:32')
            if not o['plds']: self.wphi_load(170)
            P(f's_branch {j2}'); P.label(ax2)
            P('s_waitcnt vmcnt(0) lgkmcnt(0)')
            if not o['clr']: self.hello_check()
            if not o['tpos']: warm()
        P.label(j2)
        lskip = P.newlabel('Lnohalo'); l1 = P.newlabel('Lr1'); l2 = P.newlabel('Lr2')
        EA = o['ea'] if L else 0
        if EA:
            for op in self.hint_prep(70, L): P(op)
        P('s_waitcnt lgkmcnt(0)\ns_barrier')
        if L == 0 and not self.force_safe: P(f'ds_read_b32 {vr(vPD)}, {vr(vCNT)} offset:44')
        self.stamp(8 + sb, f'L{L} B2')
        if L == 0 and o['tpos']:
            lw = P.newlabel('Lx')
            P(f's_cmp_eq_u32 {sr(sHS)}, 0\ns_cbranch_scc1 {lw}')
            warm()
            P.label(lw)
        if L == 0 and o['bq']:
            lb = P.newlabel('Lx')
            P(f's_cmp_lg_u32 {sr(sHS)}, 0\ns_cbranch_scc1 {lb}')
            if 1:
                P(f"""v_lshrrev_b32 v184, 2, {vr(vLANE)}
v_mul_u32_u24 v184, 3072, v184
v_and_b32 v185, 48, {vr(vL16)}
s_lshl_b32 {sr(sT0)}, {sr(sC)}, 6
v_add3_u32 v184, v184, v185, {sr(sT0)}
s_lshl_b32 {sr(sT2)}, {sr(sROT)}, 1
s_add_u32 {sr(sT2)}, {sr(sT2)}, {sr(sMT)}
s_lshl_b32 {sr(sT2)}, {sr(sT2)}, 15""")
                for st in range(4):
                    P(f's_and_b32 {sr(sT2)}, {sr(sT2)}, 0x7ffff\ns_mul_i32 {sr(sT0)}, {sr(sT2)}, 3\ns_add_u32 {sr(sT3)}, {sr(sT0)}, 49152')
                    P(f'buffer_load_dwordx4 {vr(224+8*st,4)}, v184, {sr(sWB,4)}, {sr(sT0)} offen\nbuffer_load_dwordx4 {vr(228+8*st,4)}, v184, {sr(sWB,4)}, {sr(sT3)} offen')
                    if st < 3: P(f's_add_u32 {sr(sT2)}, {sr(sT2)}, 0x20000')
            P.label(lb)
        P(f's_cmp_eq_u32 {sr(sR)}, 0\ns_cbranch_scc1 {lskip}')
        def first():
            P(f's_cmp_eq_u32 {sr(sR)}, 1\ns_cbranch_scc1 {l1}')
            self.mfma(CFIRST if AT2 else aS, aP if AT2 else aK, aQ, CFIRST)
            P(f's_branch {l2}'); P.label(l1)
            self.mfma(CFIRST if AT2 else aS, aP if AT2 else aK, aQ, None)
            P.label(l2)
        if AT2: self.attn2(CFIRST, first, trickle=(L == 0))
        else: self.attn_loop(first, trickle=(L == 0))
        P.label(lskip)
        if AT2:
            P('s_waitcnt lgkmcnt(1)'); self.mfma(aO, VV + 4, aP + 4, aO)
        if EA == 1: self.hint(70, sK1)
        if L == 0 and not self.force_safe: P(f's_waitcnt lgkmcnt(0)\nv_readfirstlane_b32 {sr(sFAST)}, {vr(vPD)}')
        self.stamp(9 + sb, f'L{L} attn')
        P(f'v_subrev_u32 {vr(vT0)}, {f2u(2.0**-SAFE_EXP):#x}, {vr(aO+8)}\nv_cmp_le_u32 vcc, {f2u(2.0**SAFE_EXP) - f2u(2.0**-SAFE_EXP):#x}, {vr(vT0)}\ns_cbranch_vccnz L_fb_{L}')
        P.label(f'L_fbr_{L}')
        if EA == 2: self.hint(70, sK1)
        self.publish_o(L, aO, 0)
        if o['prio']: P('s_setprio 0')
        self.lds_signal(C_ATT)
        self.stamp(10 + sb, f'L{L} opub')
        P(f's_cmp_lg_u32 {sr(sHS)}, 0\ns_cbranch_scc1 {ax3}')
        if o['fpr']:
            l = P.newlabel('Lx')
            P(f's_cmp_lt_u32 {sr(sMT)}, 2\ns_cbranch_scc1 {l}\ns_setprio {o["fpr"]}'); P.label(l)
        self.main_outproj(L)
        P(f's_branch L_main_{L+1}')
        P.label(ax3)
        self.aux_tail(L)
        self.stamp(13 + sb, f'L{L} xpub')
        P(f's_branch L_aux_{L+1}')

    def attn_fallback(self, L):
        P = self.P; M = vT0
        pk = lambda d, e: f'v_cvt_pk_bf16_f32 {vr(d)}, {vr(e)}, {vr(e+1)}'
        P.label(f'L_fb_{L}')
        P(f's_waitcnt lgkmcnt(0)\nv_mov_b32 {vr(M)}, 0xff800000')
        for op in self.mask_ops(0) + self.mask_ops(1): P(op)
        for ps in range(2):
            for seg in range(2):
                lp = P.newlabel('Lfb'); nx = P.newlabel('Lfbn'); nm = P.newlabel('Lfbm')
                if seg == 0:
                    P(self.tile_addr(sOWN))
                    P(f's_add_u32 {sr(sCNT)}, {sr(sQT)}, 1\ns_mov_b32 {sr(sSTEP)}, {-OWN_ST}')
                    for i in range(16): P(f'v_mov_b32 {vr(aS+i)}, {vr(CDIAG+i)}')
                else:
                    P(f's_cmp_eq_u32 {sr(sR)}, 0\ns_cbranch_scc1 {nx}')
                    P(self.tile_addr(sP2))
                    P(f's_mov_b32 {sr(sCNT)}, {sr(sC2)}\ns_mov_b32 {sr(sSTEP)}, 4096\ns_cmp_eq_u32 {sr(sR)}, 1\ns_cbranch_scc1 {lp}')
                    for i in range(16): P(f'v_mov_b32 {vr(aS+i)}, {vr(CFIRST+i)}')
                P.label(lp)
                P(f'ds_read_b128 {vr(aK,4)}, {vr(vKA)}')
                if ps:
                    P(f's_mov_b64 exec, {sr(sLO,2)}\nds_read_b128 {vr(VV,4)}, {vr(vVA)} offset:2048\nds_read_b128 {vr(VV+4,4)}, {vr(vVA)} offset:3072\ns_mov_b64 exec, -1')
                P('s_waitcnt lgkmcnt(0)')
                self.mfma(aS, aK, aQ, aS)
                if ps == 0:
                    for i in range(0, 16, 2): P(f'v_max3_f32 {vr(M)}, {vr(M)}, {vr(aS+i)}, {vr(aS+i+1)}')
                else:
                    for i in range(16): P(f'v_sub_f32 {vr(aS+i)}, {vr(aS+i)}, {vr(M)}')
                    for i in range(16): P(f'v_exp_f32 {vr(aS+i)}, {vr(aS+i)}')
                    for p in range(8): P(pk(aP + p, aS + 2*p))
                    self.mfma(aO, VV, aP, aO)
                    self.mfma(aO, VV + 4, aP + 4, aO)
                for i in range(16): P(f'v_mov_b32 {vr(aS+i)}, 0')
                P(f'v_add_u32 {vr(vKA)}, {sr(sSTEP)}, {vr(vKA)}\nv_add_u32 {vr(vVA)}, {sr(sSTEP)}, {vr(vVA)}')
                P(f's_sub_u32 {sr(sCNT)}, {sr(sCNT)}, 1\ns_cmp_lg_u32 {sr(sCNT)}, 0\ns_cbranch_scc1 {lp}')
                P.label(nx)
            if ps == 0:
                P(f'v_mov_b32 {vr(vPD)}, {vr(M)}\nv_permlane32_swap_b32 {vr(vPD)}, {vr(M)}\nv_max_f32 {vr(M)}, {vr(M)}, {vr(vPD)}')
        P(f's_branch L_fbr_{L}')

    def softmax16(self, dst, t, inject=None, start=0, step=1, pk=True):
        if inject is None: return self.softmax16_(dst, t, self.P, pk)
        ops = []
        self.softmax16_(dst, t, lambda x: ops.extend(x.split('\n')))
        inject = list(inject)
        for i, op in enumerate(ops):
            if i >= start and (i - start) % step == 0 and inject: self.P(inject.pop(0))
            self.P(op)
        for x in inject: self.P(x)

    def softmax16_(self, dst, t, P, pk=True):
        A = ACC0
        P(f'v_max3_f32 {vr(t)}, {vr(A)}, {vr(A+1)}, {vr(A+2)}\nv_max3_f32 {vr(t+1)}, {vr(A+3)}, {vr(A+4)}, {vr(A+5)}')
        P(f'v_max3_f32 {vr(t+2)}, {vr(A+6)}, {vr(A+7)}, {vr(A+8)}\nv_max3_f32 {vr(t+3)}, {vr(A+9)}, {vr(A+10)}, {vr(A+11)}')
        P(f'v_max3_f32 {vr(t)}, {vr(t)}, {vr(A+12)}, {vr(A+13)}\nv_max3_f32 {vr(t+1)}, {vr(t+1)}, {vr(A+14)}, {vr(A+15)}')
        P(f'v_max3_f32 {vr(t)}, {vr(t)}, {vr(t+2)}, {vr(t+3)}\nv_max_f32 {vr(t)}, {vr(t)}, {vr(t+1)}')
        P(f'v_mul_f32 {vr(t)}, {vr(vRSTD)}, {vr(t)}')
        if not pk:
            for i in range(4): P(f'v_fma_f32 {vr(A+i)}, {vr(A+i)}, {vr(vRSTD)}, -{vr(t)}')
            for i in range(16):
                P(f'v_exp_f32 {vr(A+i)}, {vr(A+i)}')
                if i + 4 < 16: P(f'v_fma_f32 {vr(A+i+4)}, {vr(A+i+4)}, {vr(vRSTD)}, -{vr(t)}')
                if i in (3, 4): P(f'v_add_f32 {vr(t+i-1)}, {vr(A+i-3)}, {vr(A+i-1)}')
                if i >= 5: P(f'v_add_f32 {vr(t+2+(i+1)%2)}, {vr(t+2+(i+1)%2)}, {vr(A+i-1)}')
            P(f'v_add_f32 {vr(t+3)}, {vr(t+3)}, {vr(A+15)}\nv_add_f32 {vr(t+2)}, {vr(t+2)}, {vr(t+3)}\nv_rcp_f32 {vr(t)}, {vr(t+2)}')
            for i in range(16): P(f'v_mul_f32 {vr(A+i)}, {vr(t)}, {vr(A+i)}')
            for p in range(8): P(f'v_cvt_pk_bf16_f32 {vr(dst+p)}, {vr(A+2*p)}, {vr(A+2*p+1)}')
            return
        fm = lambda p: f'v_pk_fma_f32 {vr(A+2*p,2)}, {vr(A+2*p,2)}, {vr(vRSTD,2)}, {vr(t,2)} op_sel_hi:[1,0,0] neg_lo:[0,0,1] neg_hi:[0,0,1]'
        P(fm(0)); P(fm(1))
        for p in range(8):
            P(f'v_exp_f32 {vr(A+2*p)}, {vr(A+2*p)}')
            if p + 2 < 8: P(fm(p + 2))
            P(f'v_exp_f32 {vr(A+2*p+1)}, {vr(A+2*p+1)}')
            if p == 2: P(f'v_pk_add_f32 {vr(t+2,2)}, {vr(A,2)}, {vr(A+2,2)}')
            if p >= 3: P(f'v_pk_add_f32 {vr(t+2,2)}, {vr(t+2,2)}, {vr(A+2*p-2,2)}')
        P(f'v_pk_add_f32 {vr(t+2,2)}, {vr(t+2,2)}, {vr(A+14,2)}\nv_add_f32 {vr(t+2)}, {vr(t+2)}, {vr(t+3)}\nv_rcp_f32 {vr(t)}, {vr(t+2)}')
        for p in range(8): P(f'v_pk_mul_f32 {vr(A+2*p,2)}, {vr(A+2*p,2)}, {vr(t,2)} op_sel_hi:[1,0]')
        for p in range(8): P(f'v_cvt_pk_bf16_f32 {vr(dst+p)}, {vr(A+2*p)}, {vr(A+2*p+1)}')

    def layerB(self, L):
        P = self.P; Lb = L // 2; sb = L * 14; o = self.o; lg = self.lg
        j0 = f'L_j0_{L}'; j1 = f'L_j1_{L}'; j2 = f'L_j2_{L}'; ax1 = f'L_ax1_{L}'; ax1b = f'L_ax1b_{L}'; ax3 = f'L_ax3_{L}'; axz = f'L_axz_{L}'
        KA, KV_ = 48, 96
        vA16, vA4, vAW, vAO = 96, 97, 98, 99
        P.label(f'L_main_{L}')
        vt = self.main_kv(L)
        if o['fpr']: P('s_setprio 0')
        self.stamp(3 + sb, f'L{L} kvpass')
        P(waitstr(lg=lg.need('rt')))
        vt()
        for p in (4, 5, 6, 7): P(f'v_cvt_pk_bf16_f32 {vr(PKV+p)}, {vr(ACC0+2*p)}, {vr(ACC0+2*p+1)}')
        P(f'ds_write_b128 {vr(vKA)}, {vr(PKV+4,4)} offset:1024'); lg.issue('kb', 2 if o['pw1'] else 1)
        PW = o['pw1']
        if PW:
            o['vpre'] = 2
            P(f'ds_write_b32 {vr(PKV+8)}, {vr(PKV+9)} offset:{4*C_ST}')
        vt()
        for p in (0, 1, 2, 3): P(f'v_cvt_pk_bf16_f32 {vr(PKV+p)}, {vr(ACC0+2*p)}, {vr(ACC0+2*p+1)}')
        vmul = lambda p: f'v_pk_mul_f32 {vr(ACC1+2*p,2)}, {vr(ACC1+2*p,2)}, {vr(STAT+2*p,2)}'
        if o['vlag']:
            vt(99)
            self.mfma(ACC0, WPHI, PKV, None)
            for i in range(16): P(f'v_mul_f32 {vr(ACC1+i)}, {vr(STAT+i)}, {vr(ACC1+i)}')
        else:
            P(vmul(0)); P(vmul(1))
            self.mfma(ACC0, WPHI, PKV, None)
            for p in range(2, 8): P(vmul(p))
        if o['vpre'] != 1 and not PW: P('s_waitcnt lgkmcnt(0)\ns_barrier')
        for f in range(2, 4):
            for p in range(4*f - 8, 4*f - 4): P(f'v_cvt_pk_bf16_f32 {vr(PKV+8+p)}, {vr(ACC1+2*p)}, {vr(ACC1+2*p+1)}')
            P(f'ds_write_b128 {vr(vKA)}, {vr(PKV+4*f,4)} offset:{f*1024}')
        if o['vpre'] == 1: P('s_waitcnt lgkmcnt(0)\ns_barrier')
        P(f's_branch {j0}')
        P.label(f'L_aux_{L}')
        self.aux_head(L)
        for i in range(32): P(f'v_mov_b32 {vr(KV_+i)}, {vr(ONES)}')
        P(f"""v_lshrrev_b32 v91, 5, {vr(vLANE)}
v_bfe_u32 v88, {vr(vLANE)}, 2, 2
v_lshl_add_u32 v88, v91, 2, v88
v_lshlrev_b32 v88, 5, v88
v_and_b32 v89, 1, {vr(vLANE)}
v_lshl_add_u32 v88, v89, 4, v88
v_bfe_u32 v89, {vr(vLANE)}, 4, 1
v_lshl_add_u32 v88, v89, 12, v88
v_bfe_u32 v89, {vr(vLANE)}, 1, 1
v_lshl_add_u32 v88, v89, 3, v88
s_lshl_b32 {sr(sT0)}, {sr(sMT)}, 10
s_add_u32 {sr(sT0)}, {sr(sT0)}, {LDS_OWN}
v_add_u32 v88, {sr(sT0)}, v88
s_lshl_b32 {sr(sT1)}, {sr(sMT)}, 8
v_xor_b32 v90, {sr(sT1)}, {vr(vL16)}
v_add_u32 v89, {LDS_OWN}, v90
s_lshl_b32 {sr(sT0)}, {sr(sMT)}, 1
v_add_u32 v91, {sr(sT0)}, v91
v_and_b32 v92, 31, {vr(vLANE)}
v_mov_b32 v93, {OOB >> 4:#x}
v_cmp_eq_u32 vcc, 16, v92
v_cndmask_b32 v91, v93, v91, vcc
v_lshrrev_b32 v92, 8, v90
v_mul_u32_u24 v92, {KP_Q}, v92
v_and_b32 v93, 15, {vr(vLANE)}
v_lshl_add_u32 v90, v93, 4, v92
v_lshl_add_u32 v92, v93, 2, v92
v_lshlrev_b32 v93, 4, v91
v_add_u32 v93, {KP_Z}, v93
v_lshlrev_b32 v91, 4, v91
v_add_u32 v91, 64, v91
v_cndmask_b32 v91, v91, v92, {sr(sLO,2)}
v_cndmask_b32 v90, v93, v90, {sr(sLO,2)}
v_add_u32 v93, 64, v93
v_add_u32 v92, 256, v90
v_cndmask_b32 v93, v93, v92, {sr(sLO,2)}
s_lshl_b32 {sr(sK2)}, {sr(sC)}, 4
s_add_u32 {sr(sK2)}, {sr(sK2)}, {sr(sR)}
s_mul_i32 {sr(sK2)}, {sr(sK2)}, {KP_REC}
s_add_u32 {sr(sK2)}, {sr(sK2)}, {OFF_KP + Lb*KP_L}""")
        P(self.tile_addr(sOWN))
        for op in self.phi_addr(): P(op)
        P(f's_lshl_b32 {sr(sT0)}, {sr(sQT)}, 7\ns_add_u32 {sr(sT0)}, {sr(sT0)}, {LDS_RSTD}\nv_and_b32 v25, 124, {vr(vL4)}\nv_add_u32 v25, {sr(sT0)}, v25')
        self.aux_head2(L)
        self.stamp(3 + sb, f'L{L} kvpass')
        if PW:
            lw = P.newlabel('Lpw')
            P(f's_lshl_b32 {sr(sT0)}, {sr(sQT)}, 2\nv_add_u32 v26, {sr(sT0)}, {vr(vCNT)}')
            P.label(lw)
            if o['pws']: P(f's_sleep {o["pws"]}')
            P(f'ds_read_b32 {vr(vPD)}, v26 offset:{4*C_ST}\nds_read_b128 {vr(RING+8,4)}, {vr(vKA)}\nds_read_b32 {vr(vRSTD)}, v25\ns_waitcnt lgkmcnt(1)')
            P(f'v_cmp_gt_u32 vcc, {TV_K[L]}, {vr(vPD)}\ns_cbranch_vccnz {lw}')
        else:
            P('s_barrier')
            P(f'ds_read_b128 {vr(RING+8,4)}, {vr(vKA)}\nds_read_b32 {vr(vRSTD)}, v25\ns_waitcnt lgkmcnt(1)')
        self.mfma(ACC0, WPHI, RING + 8, None)
        P(f's_waitcnt lgkmcnt(0)\nv_mul_f32 {vr(vRSTD)}, {sr(sLOG2E)}, {vr(vRSTD)}')
        vrd = [f'ds_read_b128 {vr(KV_+4*st,4)}, v89 offset:{(st>>1)*OWN_ST + 2048 + (st&1)*1024}' for st in range(8)]
        if o['vpre'] == 1:
            P(f's_mov_b64 exec, {sr(sLO,2)}')
            for x in vrd: P(x)
            P('s_mov_b64 exec, -1')
        else: P('s_nop 7')
        jw = P.newlabel('Lpw')
        if PW == 1:
            P(f's_cmp_ge_u32 {sr(sQT)}, 2\ns_cbranch_scc1 {j0}')
            self.stamp(4 + sb, f'L{L} B1a')
            self.softmax16(RING, RING + 12, pk=False)
            P(f's_branch {jw}')
        P.label(j0)
        self.stamp(4 + sb, f'L{L} B1a')
        self.softmax16(RING, RING + 12)
        P.label(jw)
        P(f'ds_write_b128 {vr(vVA)}, {vr(RING,4)}\nds_write_b128 {vr(vVA)}, {vr(RING+4,4)} offset:4096\ns_waitcnt lgkmcnt(0)\ns_barrier')
        self.stamp(5 + sb, f'L{L} B1b')
        common = self.publish_o_addr(L) + f"""s_mul_i32 {sr(sH1)}, {sr(sC)}, {16*KP_REC}
s_add_u32 {sr(sH1)}, {sr(sH1)}, {OFF_KP + Lb*KP_L}
s_mov_b32 {sr(sSEL0)}, 0x3f80
s_mov_b32 {sr(sSEL1)}, 0x3f800000
s_lshl_b32 {sr(sT0)}, {sr(sHS)}, 4
v_xor_b32 {vr(vAO)}, {sr(sT0)}, {vr(vLANE)}
v_lshlrev_b32 {vr(vAO)}, 5, {vr(vAO)}
v_add_u32 {vr(vAO)}, {LDS_KVT}, {vr(vAO)}
v_and_b32 v100, 32, {vr(vLANE)}
s_lshl_b32 {sr(sT0)}, {sr(sHS)}, 6
s_add_u32 {sr(sT0)}, {sr(sT0)}, {LDS_ZT}
v_add_u32 v100, {sr(sT0)}, v100
v_cndmask_b32 {vr(vAO)}, v100, {vr(vAO)}, {sr(sLO,2)}""".split('\n')
        SEL = 104
        addr_main = f"""s_mul_i32 {sr(sH2)}, {sr(sMT)}, {KP_Q}
s_add_u32 {sr(sH2)}, {sr(sH2)}, {sr(sH1)}
v_lshrrev_b32 v100, 4, {vr(vLANE)}
v_and_b32 v101, 15, {vr(vLANE)}
v_mul_u32_u24 {vr(vA16)}, {KP_REC}, v100
v_lshl_add_u32 {vr(vA4)}, v101, 2, {vr(vA16)}
v_lshl_add_u32 {vr(vA16)}, v101, 4, {vr(vA16)}
s_lshl_b32 {sr(sT0)}, {sr(sMT)}, 9
s_add_u32 {sr(sT0)}, {sr(sT0)}, {LDS_KVT}
v_lshl_add_u32 {vr(vAW)}, v101, 5, {sr(sT0)}
v_lshl_add_u32 {vr(vAW)}, v100, 3, {vr(vAW)}
v_lshlrev_b32 v100, 4, {vr(vLANE)}
v_lshlrev_b32 v100, v100, {sr(sSEL0)}
v_lshrrev_b32 v101, 1, v101""".split('\n')
        for r_ in range(8): addr_main += [f'v_cmp_eq_u32 vcc, {r_}, v101\nv_cndmask_b32 {vr(SEL+r_)}, 0, v100, vcc']
        addr_z = f"""v_lshrrev_b32 v102, 4, {vr(vLANE)}
v_mul_u32_u24 {vr(vA16)}, {KP_REC}, v102
v_bfe_u32 v100, {vr(vLANE)}, 3, 1
v_and_b32 v101, 1, {vr(vLANE)}
v_lshl_add_u32 v100, v100, 1, v101
v_bfe_u32 v101, {vr(vLANE)}, 1, 2
v_mul_u32_u24 {vr(vA4)}, {4*KP_REC}, v100
v_add_u32 {vr(vA4)}, {vr(vA4)}, {vr(vA16)}
v_lshl_add_u32 {vr(vA4)}, v101, 4, {vr(vA4)}
v_lshlrev_b32 {vr(vAW)}, 5, v101
v_lshl_add_u32 {vr(vAW)}, v100, 3, {vr(vAW)}
v_lshl_add_u32 {vr(vAW)}, v102, 1, {vr(vAW)}
v_add_u32 {vr(vAW)}, {LDS_ZT}, {vr(vAW)}
v_and_b32 v100, 15, {vr(vLANE)}
v_lshl_add_u32 {vr(vA16)}, v100, 3, {vr(vA16)}""".split('\n')
        A = ACC1; KD = 128; T = A + 4
        def loads_main(P=P, m=' sc1'):
            P(f's_mov_b32 {sr(sT0)}, {sr(sH2)}')
            for it in range(4):
                D = KD + 12*it
                P(f'buffer_load_dwordx4 {vr(D,4)}, {vr(vA16)}, {sr(sWS,4)}, {sr(sT0)} offen{m}\nbuffer_load_dwordx4 {vr(D+4,4)}, {vr(vA16)}, {sr(sWS,4)}, {sr(sT0)} offen offset:256{m}')
                P(f'buffer_load_dword {vr(D+8)}, {vr(vA4)}, {sr(sWS,4)}, {sr(sT0)} offen offset:512{m}')
                if it < 3: P(f's_add_u32 {sr(sT0)}, {sr(sT0)}, {4*KP_REC}')
        def accum(D, first, t0):
            P(f'v_add3_u32 {vr(T)}, {t0 if first else vr(T)}, {vr(D)}, {vr(D+1)}')
            for k in range(2):
                if first: P(f'v_lshlrev_b32 {vr(A+2*k)}, 16, {vr(D+k)}\nv_and_b32 {vr(A+2*k+1)}, 0xffff0000, {vr(D+k)}')
                else: P(f'v_dot2_f32_bf16 {vr(A+2*k)}, {vr(D+k)}, {sr(sSEL0)}, {vr(A+2*k)}\nv_dot2_f32_bf16 {vr(A+2*k+1)}, {vr(D+k)}, {sr(sSEL1)}, {vr(A+2*k+1)}')
        dpp = lambda c: f'v_add_u32_dpp {vr(T)}, {vr(T)}, {vr(T)} {c} row_mask:0xf bank_mask:0xf'
        P(f's_cmp_lg_u32 {sr(sHS)}, 0\ns_cbranch_scc1 {ax1}')
        lg.reset()
        self.q_prefetch(L)
        fill = [('ds', 'cs', f'ds_read_b128 {vr(WEXTQ,4)}, {vr(vT0)}')] + common
        fill += addr_main
        fill += self.wext_items(WEXTQ, 'cs')
        self.main_qpass(L, ACC1, fill, pre_write=lambda: P('s_barrier'), rate=2)
        self.mfma(ACC0, WPHI, aQ, None)
        P('s_waitcnt lgkmcnt(0)\ns_barrier')
        if o['kp_at'] == 1: loads_main()
        if o['kp_at'] >= 2:
            inj = []; loads_main(lambda x: inj.extend(x.split('\n')))
            self.softmax16(PHQ, RING + 12, inj, o['kp_at'], o['kp_step'])
            self.stamp(6 + sb, f'L{L} phiq / kp stored')
            P(f's_branch L_kpc_{L}')
        else: P(f's_branch {j1}')
        P.label(ax1)
        P(f's_cmp_ge_u32 {sr(sMT)}, 2\ns_cbranch_scc1 {ax1b}\ns_setprio 3')
        if o['vpre'] == 2:
            P(f's_mov_b64 exec, {sr(sLO,2)}')
            for x in vrd: P(x)
            P('s_mov_b64 exec, -1')
        n_ = 2 if o['vpre'] else 3
        for st in range(8):
            of = (st >> 1)*OWN_ST + (st & 1)*512
            P(f'ds_read_b64_tr_b16 {vr(KA+4*st,2)}, v88 offset:{of}\nds_read_b64_tr_b16 {vr(KA+2+4*st,2)}, v88 offset:{of+256}')
            if not o['vpre']: P(f's_mov_b64 exec, {sr(sLO,2)}\n{vrd[st]}\ns_mov_b64 exec, -1')
            if st >= 3:
                P(f's_waitcnt lgkmcnt({3*n_})'); self.mfma(ACC0, KA + 4*(st-3), KV_ + 4*(st-3), None if st == 3 else ACC0)
        for st in range(5, 8):
            P(f's_waitcnt lgkmcnt({n_*(7-st)})'); self.mfma(ACC0, KA + 4*st, KV_ + 4*st, ACC0)
        for p in range(8): P(f'v_cvt_pk_bf16_f32 {vr(80+p)}, {vr(ACC0+2*p)}, {vr(ACC0+2*p+1)}')
        P(f'buffer_store_dwordx4 v[80:83], v90, {sr(sWS,4)}, {sr(sK2)} offen{MODS[o["sm"]]}\nbuffer_store_dwordx4 v[84:87], v93, {sr(sWS,4)}, {sr(sK2)} offen{MODS[o["sm"]]}')
        for op in self.checksum(92, 80, 8): P(op)
        P(f'buffer_store_dword v92, v91, {sr(sWS,4)}, {sr(sK2)} offen offset:512{MODS[o["sm"]]}')
        self.stamp(6 + sb, f'L{L} phiq / kp stored')
        P('s_setprio 0')
        P.label(ax1b)
        if L == 1: self.dma_w(1, ('o',))
        for it in common + addr_z: P(it)
        P('s_barrier\ns_barrier')
        P(f'ds_read_b128 {vr(aQ,4)}, {vr(vKA)} offset:4096\ns_waitcnt lgkmcnt(0)')
        self.mfma(ACC0, WPHI, aQ, None)
        P('s_nop 11')
        P.label(j1)
        self.softmax16(PHQ, RING + 12)
        if o['kp_at'] >= 2: P(f's_branch {axz}')
        else:
            P(f's_cmp_lg_u32 {sr(sHS)}, 0\ns_cbranch_scc1 {axz}')
            self.stamp(6 + sb, f'L{L} phiq / kp stored')
        lp = P.newlabel('Lkp'); ck = f'L_kpc_{L}'; dn = P.newlabel('Lkpd')
        if o['kp_at'] == 0 and o['km'] != 1: loads_main(m=MODS[o['km']])
        if o['kp_at'] == 1 or (o['kp_at'] == 0 and o['km'] != 1): P(f's_branch {ck}')
        P.label(lp)
        loads_main()
        P.label(ck)
        for it in range(4):
            D = KD + 12*it; cs = self.checksum(D + 9, D, 8)
            P(f's_waitcnt vmcnt({10 - 3*it})')
            for hf in range(2):
                P(f'v_mfma_f32_16x16x32_bf16 {vr(A,4)}, {vr(SEL+4*hf,4)}, {vr(D+4*hf,4)}, {"0" if it + hf == 0 else vr(A,4)}')
            for op in cs: P(op)
            P(f's_waitcnt vmcnt({9 - 3*it})\nv_cmp_ne_u32 {sr(sM+2*it,2)}, {vr(D+8)}, {vr(D+9)}')
            if it == 2: P(f's_or_b64 {sr(sM,2)}, {sr(sM,2)}, {sr(sM+2,2)}')
            if it == 3: P(f's_or_b64 {sr(sM,2)}, {sr(sM,2)}, {sr(sM+4,2)}')
        P(f'v_cvt_pk_bf16_f32 v68, {vr(A)}, {vr(A+1)}\nv_cvt_pk_bf16_f32 v69, {vr(A+2)}, {vr(A+3)}\nds_write_b64 {vr(vAW)}, v[68:69]')
        P(f's_or_b64 {sr(sM,2)}, {sr(sM,2)}, {sr(sM+6,2)}\ns_cbranch_scc0 {dn}')
        self.retry_tail(lp, dn)
        self.stamp(7 + sb, f'L{L} kp ok')
        P(f's_branch {j2}')
        P.label(axz)
        if L == 1:
            P('s_waitcnt vmcnt(0)')
        P(f's_cmp_lg_u32 {sr(sMT)}, 2\ns_cbranch_scc1 {j2}')
        lp = P.newlabel('Lkz'); dn = P.newlabel('Lkzd'); D = 32
        P.label(lp)
        P(f's_mov_b32 {sr(sT0)}, {sr(sH1)}\nbuffer_load_dword {vr(D+8)}, {vr(vA4)}, {sr(sWS,4)}, {sr(sT0)} offen offset:576 sc1')
        for it in range(4):
            P(f'buffer_load_dwordx2 {vr(D+2*it,2)}, {vr(vA16)}, {sr(sWS,4)}, {sr(sT0)} offen offset:{KP_Z} sc1')
            if it < 3: P(f's_add_u32 {sr(sT0)}, {sr(sT0)}, {4*KP_REC}')
        for it in range(4):
            P(f's_waitcnt vmcnt({3 - it})')
            accum(D + 2*it, it == 0, sr(sTAG))
            if it == 0: P(f'v_sub_u32 {vr(T)}, {vr(T)}, {vr(D+8)}')
        P(dpp('quad_perm:[1,0,3,2]'))
        P(f'v_permlane32_swap_b32 {vr(A)}, {vr(A+2)}\nv_permlane32_swap_b32 {vr(A+1)}, {vr(A+3)}')
        P(dpp('row_ror:8'))
        P(f'v_add_f32 {vr(A)}, {vr(A)}, {vr(A+2)}\nv_add_f32 {vr(A+1)}, {vr(A+1)}, {vr(A+3)}\nv_cmp_ne_u32 vcc, 0, {vr(T)}')
        P(f'v_permlane16_swap_b32 {vr(A)}, {vr(A+1)}\nv_add_f32 {vr(A)}, {vr(A)}, {vr(A+1)}\nv_cvt_pk_bf16_f32 v68, {vr(A)}, {vr(A)}\nds_write_b16 {vr(vAW)}, v68')
        P(f's_cbranch_vccz {dn}')
        self.retry_tail(lp, dn)
        P.label(j2)
        P('s_waitcnt lgkmcnt(0)\ns_barrier')
        self.stamp(8 + sb, f'L{L} B2')
        P(f'ds_read_b128 v[68:71], {vr(vAO)}\nds_read_b128 v[72:75], {vr(vAO)} offset:16')
        if o['eb']:
            for op in self.hint_prep(78, L): P(op)
        if o['eb'] == 1: self.hint(78, sK1)
        P('s_waitcnt lgkmcnt(1)')
        self.mfma(ACC0, 68, PHQ, None)
        if o['eb'] == 2: self.hint(78, sK1)
        P('s_waitcnt lgkmcnt(0)')
        self.mfma(ACC0, 72, PHQ + 4, ACC0)
        if o['eb'] == 3: self.hint(78, sK1)
        self.publish_o(L, ACC0, 1e-6)
        self.stamp(10 + sb, f'L{L} opub')
        P(f's_cmp_lg_u32 {sr(sHS)}, 0\ns_cbranch_scc1 {ax3}')
        if o['epr'] and L == 1: self.prio_if(f's_cmp_lt_u32 {sr(sMT)}, 2')
        elif o['mpr']: P(f's_setprio {o["mpr"]}')
        self.main_outproj(L)
        if o['epr'] == 1 and L == 1: self.prio_if(f's_cmp_ge_u32 {sr(sMT)}, 2')
        P(f's_branch L_main_{L+1}')
        P.label(ax3)
        self.aux_tail(L)
        self.stamp(13 + sb, f'L{L} xpub')
        P(f's_branch L_aux_{L+1}')

    def epilogue(self):
        P = self.P; nl = self.nl
        P.label(f'L_main_{nl}')
        P(f's_or_b32 {sr(sT0)}, s2, {sr(sW)}\ns_cmp_lg_u32 {sr(sT0)}, 0\ns_cbranch_scc1 L_aux_{nl}\ns_mov_b32 {sr(sT2)}, 0')
        self.flag(sT2, sTAG, False)
        P.label(f'L_aux_{nl}')
        if self.stamps:
            P('s_waitcnt vmcnt(0)')
            self.stamp(62, 'end')
            P(f's_memtime {sr(sST,2)}\ns_waitcnt lgkmcnt(0)\ns_sub_u32 {sr(sST)}, {sr(sST)}, s100\nv_writelane_b32 {vr(vSTAMP)}, {sr(sST)}, 59')
            P(f'''v_writelane_b32 {vr(vSTAMP)}, {sr(sBUD)}, 63
v_writelane_b32 {vr(vSTAMP)}, {sr(sFAST)}, 61
v_writelane_b32 {vr(vSTAMP)}, s99, 58
v_writelane_b32 {vr(vSTAMP)}, s101, 56
s_lshl_b32 {sr(sT0)}, s2, 3
s_add_u32 {sr(sT0)}, {sr(sT0)}, {sr(sW)}
s_lshl_b32 {sr(sT0)}, {sr(sT0)}, 8
s_add_u32 {sr(sT0)}, {sr(sT0)}, {OFF_STAMP}
buffer_store_dword {vr(vSTAMP)}, {vr(vL4)}, {sr(sWS,4)}, {sr(sT0)} offen''')
            if self.o.get('dbgst'):
                P(f's_cmp_lg_u32 {sr(sHS)}, 0\ns_cbranch_scc1 L_end\ns_load_dwordx2 s[64:65], s[0:1], 64\nv_mov_b32 v30, 0')
                for j, (idx, neg) in enumerate([(60, 1), (60, 0), (0, 0), (2, 0), (1, 0), (3, 0), (8, 0), (10, 0), (13, 0), (27, 0), (41, 0), (62, 0), (59, 0), (3, 1), (13, 1), (62, 1)]):
                    P(f'v_readlane_b32 s66, {vr(vSTAMP)}, {idx}')
                    if neg: P('s_not_b32 s66, s66')
                    P(f'v_writelane_b32 v30, s66, {j}')
                P('s_waitcnt lgkmcnt(0)')
                self.srd(68, 64, 256)
                P(f's_mov_b64 exec, 0xffff\nbuffer_atomic_umax v30, {vr(vL4)}, s[68:71], 0 offen\ns_waitcnt vmcnt(0)')
        if self.o.get('spin'):
            lp = P.newlabel('Lspin'); P.label(lp)
            P(f's_memrealtime s[66:67]\ns_waitcnt lgkmcnt(0)\ns_sub_u32 s66, s66, s98\ns_cmp_lt_u32 s66, {self.o["spin"]}\ns_cbranch_scc1 {lp}')
        P.label('L_end')
        P('s_endpgm')

    def build(self):
        self.prologue()
        for L in range(self.nl):
            (self.layerA if L % 2 == 0 else self.layerB)(L)
        self.epilogue()
        self.emit_stubs()
        for L in range(0, self.nl, 2): self.attn_fallback(L)
        n = self.P.fix_hazards()
        errs = self.P.check_waits()
        head = open(f'cdna_kernels/{NAME}.s.ref').read().split('; @launch')[0]
        s = head + f'; @launch grid=(256,1,1) block=(512,1,1) lds={LDS_TOTAL}\n'
        s += f'.amdgcn_target "amdgcn-amd-amdhsa--gfx950"\n.text\n.globl {NAME}_kernel\n.p2align 8\n.type {NAME}_kernel,@function\n{NAME}_kernel:\n'
        s += self.P.text().replace('CODE_BYTES', '(L_end - %s_kernel - 1088)' % NAME)
        s += f'''.section .rodata,"a"
.p2align 6
.amdhsa_kernel {NAME}_kernel
  .amdhsa_next_free_vgpr 256
  .amdhsa_next_free_sgpr 102
  .amdhsa_accum_offset 256
  .amdhsa_group_segment_fixed_size 0
  .amdhsa_kernarg_size 80
  .amdhsa_user_sgpr_count 2
  .amdhsa_user_sgpr_kernarg_segment_ptr 1
  .amdhsa_system_sgpr_workgroup_id_x 1
.end_amdhsa_kernel
'''
        return s, n, errs


if __name__ == '__main__':
    import argparse, json
    ap = argparse.ArgumentParser()
    ap.add_argument('-o', default=f'cdna_kernels/{NAME}.s')
    ap.add_argument('--stamps', action='store_true')
    ap.add_argument('--safe', action='store_true')
    ap.add_argument('--cyc', action='store_true')
    ap.add_argument('--opt', nargs='*', default=[])
    ap.add_argument('--noalias', action='store_true')
    ap.add_argument('--nl', type=int, default=4)
    a = ap.parse_args()
    g = Gen(stamps=a.stamps, nlayers=a.nl, force_safe=a.safe, cyc=a.cyc, alias=not a.noalias, opt={k: int(v) for k, v in (x.split('=') for x in a.opt)})
    s, n, errs = g.build()
    open(a.o, 'w').write(s)
    if a.stamps: json.dump(g.stamp_names, open(a.o + '.stamps.json', 'w'))
    print('instructions', sum(1 for x in g.P.L if x.op), 'nops inserted', n, 'lds', LDS_TOTAL)
    for e in errs[:8]: print('WAITCHECK', e)
```

```python
import sys, struct
sys.path.insert(0, 'dev')
from asmlib import *

NAME = 'interleave_layers__sliding_block__linear_kernel_hedgehog__prompt'
def f2u(x): return struct.unpack('<I', struct.pack('<f', x))[0]
LOG2E = 1.4426950408889634

OFF_XFLAG = 0x1000
OFF_OFLAG = 0x9000
OFF_FIN = 0x12000
OFF_STAMP = 0x30000
OFF_ST = 0x100000
OFF_X = 0x200000
OFF_O = 0xA00000
OFF_KV = 0x1200000
KV_REC = 4480; KV_L = 1024*KV_REC
OFF_KP = 0x1B00000
KP_REC = 2688; KP_Q = 640; KP_Z = 2560; KP_L = 256*KP_REC
WS_USED = 0x2000000
OOB = 0x40000000
TAGC = 0x9E3779B0
SAFE_EXP = 30

LDS_WK = 0; LDS_WV = 32768; LDS_WQ = 65536; LDS_T = 65536; LDS_WO = 98304
LDS_OWN = 131072; OWN_ST = 6144
LDS_CSP = LDS_OWN + 4*OWN_ST
LDS_RSTD = LDS_CSP + 3072; LDS_KVT = LDS_RSTD + 512; LDS_ZT = LDS_KVT + 2048
LDS_FAST = LDS_ZT + 128; LDS_CNT = LDS_FAST + 16; LDS_ONES = LDS_FAST + 64; LDS_PHI = LDS_ONES + 1040; LDS_TOTAL = LDS_PHI + 1024
NT_LDS = {0: LDS_WQ, 1: LDS_WK, 2: LDS_WV, 'o': LDS_WO}
C_ST, C_XDONE, C_WGO, C_CS, C_Q, C_ATT, C_CSQ, C_WR = 0, 4, 5, 6, 7, 8, 9, 10

sWS, sX0, sWA, sWoA, sWB, sWoB, sPhi, sOut = 4, 8, 12, 16, 20, 24, 28, 32
sR, sC, sW, sMT, sHS, sRT, sQT, sTAG, sFAST, sBUD = 36, 37, 38, 39, 40, 41, 42, 43, 44, 45
sT0, sT1, sT2, sT3 = 46, 47, 48, 49
sLO = 50
sOWNF = 52; sCNT = 53; sSTEP = 54; sLOG2E = 55; sST = 56
sROT = 58; sDM = 59; sH0 = 60
sG0 = 62; sPERM = 63
sM = 64
sOW, sOF, sHB, sHAS, sP2, sC2, sOWN, sKVW, sXW, sSW, sXF, sRB = 72, 73, 74, 75, 76, 77, 78, 79, 80, 81, 82, 83
sLA = 86; sDG = 87; sDL = 88; sLB = 89; sLR = 90; sK0 = 91; sK1 = 92; sK2 = 93; sSEL0 = 94; sSEL1 = 95; sH1 = 96; sH2 = 97; sC1008 = 3; sS0 = 3
vT0, vLANE, vL16, vL4, vCNT, vTR1, vTR2, vSTAMP = 0, 1, 2, 3, 4, 5, 6, 7
XRES, WPHI = 8, 16
vDW, vDO, vCH, vCS, ONES = 8, 9, 10, 11, 12
vRSTD, vKA, vVA, vPD, vPA, vRA, vRB, vFD = 20, 21, 22, 23, 24, 25, 26, 27
vCK = vPD; XEXT = 28; ACC0 = 32; ACC1 = 48; RING = 64; WEXTQ = 84; WEXTK = 88; WEXTV = 92; VV = 88
STAT = 96; CDIAG = 96; PKV = 112; CFIRST = 112; XF = 128
aS, aO, aE, aQ, aK, aP, aH = 32, 48, 64, 72, 76, 80, 128
vSTV = 64
PHQ = 112
PARK = {1: 128, 2: 160, 0: 192, 'o': 224}
MFMA = 'v_mfma_f32_32x32x16_bf16'
MODS = ['', ' sc1', ' sc0', ' nt', ' sc0 sc1', ' sc1 nt', ' sc0 sc1 nt']
def cho(u): return (u >> 1)*8192 + (u & 1)*1024
TV_O = (5, 7, 8, 10); TV_K = (0, 6, 0, 9)
SW4 = ((0, 2), (1, 3), (4, 6), (5, 7))


class Gen:
    def __init__(self, stamps=False, nlayers=4, force_safe=False, cyc=False, alias=True, opt=None):
        self.cyc = cyc; self.alias = alias
        self.o = dict(halo_at=35, prio=2, trunc=1, wgo=2, wgon=2, xd=8, od=10, x0d=3, psleep=1, kp_at=0, spec=0, pw=16, tlb=0, touch=1, b0=0, mcs=1, pre=2, pst=0, trk=3, ool=1, at2=1, qrate=4, omul=1, specx=0, lsleep=2, ev=5, st0=3, wo_at=0, pf=1, pfb=0, psp=0, xst=1, bq=0, early=0, p1=0, o3=1, outm=1, kp_step=2, vpre=1, hm=1, km=1, sm=1, pw1=2, pws=2, il=0, qgo=5, csk=22, wearly=0, apr=1, fpr=0, epr=0, mpr=0, sg=0, od1=10, pp=0, em=0, hx=1, ho=1, hp=1, hs=2, ex=32, ea=2, eb=3, clr=0, vlag=0, vlaga=0, prex=1, preo=1, ev2=11, red=1, rk0=22, rk1=28, own=0, chain=1, rsl=0, plds=1, pfw=1, hpr=0, vfirst=0, bql=0, pq=0, tpos=0, hb=1, m1l=0, qr0=4, qcv=0)
        self.o.update(opt or {})
        self.P = Prog(); self.stamps = stamps; self.nl = nlayers; self.force_safe = force_safe
        self.stamp_names = {}
        self.vm = Tracker(63); self.lg = Tracker(15); self.stubs = []; self.ool = []

    def stamp(self, idx, name=''):
        if not self.stamps: return
        self.stamp_names[idx] = name
        self.P(f'{"s_memtime" if self.cyc else "s_memrealtime"} {sr(sST,2)}\ns_waitcnt lgkmcnt(0)\nv_writelane_b32 {vr(vSTAMP)}, {sr(sST)}, {idx}')

    def al(self, L): return 0 if self.alias else L

    def mfma(self, d, a, b, c):
        cs = '0' if c is None else vr(c, 16)
        self.P(f'{MFMA} {vr(d,16)}, {vr(a,4)}, {vr(b,4)}, {cs}')

    def srd(self, s, ptr, nbytes):
        self.P(f's_mov_b32 {sr(s)}, {sr(ptr)}\ns_and_b32 {sr(s+1)}, {sr(ptr+1)}, 0xffff\ns_mov_b32 {sr(s+2)}, {nbytes}\ns_mov_b32 {sr(s+3)}, 0x20000')

    def poll(self, soff, masked=False, areg=vPA, val=sTAG):
        P = self.P; lp = P.newlabel('Lpoll'); dn = P.newlabel('Lpolld')
        P.label(lp)
        P(f'buffer_load_dword {vr(vPD)}, {vr(areg)}, {sr(sWS,4)}, {sr(soff)} offen sc1\ns_waitcnt vmcnt(0)')
        if masked:
            P(f'v_and_b32 {vr(vT0)}, -16, {vr(vPD)}\nv_cmp_ne_u32 vcc, {sr(sTAG)}, {vr(vT0)}')
        else:
            P(f'v_cmp_ne_u32 vcc, {sr(val)}, {vr(vPD)}')
        P(f's_cbranch_vccz {dn}')
        if self.o['psleep']: P(f's_sleep {self.o["psleep"]}')
        P(f's_sub_u32 {sr(sBUD)}, {sr(sBUD)}, 1\ns_cbranch_scc0 {lp}\ns_mov_b32 {sr(sBUD)}, 0')
        P.label(dn)

    def flag(self, soff, sval, sc1, wait=None, add=0):
        P = self.P
        P((f'v_add_u32 {vr(vPD)}, {sr(sval)}, {add}' if add else f'v_mov_b32 {vr(vPD)}, {sr(sval)}') + '\ns_mov_b64 exec, 1')
        if wait: P(wait)
        P(f'buffer_store_dword {vr(vPD)}, off, {sr(sWS,4)}, {sr(soff)}' + (' sc1' if sc1 else ''))
        P('s_mov_b64 exec, -1')

    def prio_if(self, cmp):
        P = self.P; l = P.newlabel('Lpr')
        b = self.o['prio'] - 1
        P(f's_setprio {b}\n{cmp}\ns_cbranch_scc0 {l}\ns_setprio {b+1}'); P.label(l)

    def lds_signal(self, idx, wait=True):
        w = 's_waitcnt lgkmcnt(0)\n' if wait else ''
        self.P(f'v_mov_b32 {vr(vPD)}, 1\ns_mov_b64 exec, 1\n{w}ds_add_u32 {vr(vCNT)}, {vr(vPD)} offset:{4*idx}\ns_mov_b64 exec, -1')

    def lds_wait(self, idx, val, sleep=0):
        P = self.P; lp = P.newlabel('Llw')
        P.label(lp)
        if sleep: P(f's_sleep {sleep}')
        P(f'ds_read_b32 {vr(vPD)}, {vr(vCNT)} offset:{4*idx}\ns_waitcnt lgkmcnt(0)\nv_cmp_gt_u32 vcc, {val}, {vr(vPD)}\ns_cbranch_vccnz {lp}')

    def lds_peek(self, idx):
        return [('ds', ('cnt', idx), f'ds_read_b32 {vr(vPD)}, {vr(vCNT)} offset:{4*idx}')]

    def lds_check(self, idx, val):
        P = self.P; ok = P.newlabel('Llc')
        P(waitstr(lg=self.lg.need(('cnt', idx))))
        P(f'v_cmp_gt_u32 vcc, {val}, {vr(vPD)}\ns_cbranch_vccz {ok}')
        self.lds_wait(idx, val)
        P.label(ok)

    def two_way(self, emit):
        P = self.P
        if self.force_safe:
            emit(True); return
        ls = P.newlabel('Lsafe'); le = P.newlabel('Lpub')
        P(f's_cmp_eq_u32 {sr(sFAST)}, 0\ns_cbranch_scc1 {ls}')
        emit(False)
        if self.o['ool']:
            self.ool.append((ls, emit, le))
        else:
            P(f's_branch {le}'); P.label(ls)
            emit(True)
        P.label(le)

    def item(self, it):
        P = self.P
        if isinstance(it, str): P(it)
        elif it[0] == 'wvm': P(waitstr(vm=self.vm.need(it[1])))
        elif it[0] == 'wlg': P(waitstr(lg=self.lg.need(it[1])))
        elif it[0] == 'ds': P(it[2]); self.lg.issue(it[1])
        elif it[0] == 'fn': it[1]()

    def checksum(self, dst, src, n):
        ops = [f'v_add3_u32 {vr(dst)}, {sr(sTAG)}, {vr(src)}, {vr(src+1)}']
        for i in range(2, n, 2): ops.append(f'v_add3_u32 {vr(dst)}, {vr(dst)}, {vr(src+i)}, {vr(src+i+1)}')
        return ops

    def retry_tail(self, lp, dn):
        if self.stamps: self.P('s_add_u32 s99, s99, 1')
        self.P(f's_sub_u32 {sr(sBUD)}, {sr(sBUD)}, 1\ns_cbranch_scc0 {lp}\ns_mov_b32 {sr(sBUD)}, 0')
        self.P.label(dn)
        if self.stamps: self.P('s_lshl_b32 s99, s99, 6')

    def prologue(self):
        P = self.P; o = self.o
        vH, vT = 64, 65
        if self.stamps: P('s_memrealtime s[98:99]\ns_memtime s[100:101]')
        elif o.get('spin'): P('s_memrealtime s[98:99]')
        P(f"""s_cmp_ge_u32 s2, 256
s_cbranch_scc1 L_end
s_load_dwordx16 s[64:79], s[0:1], 0
s_load_dwordx4 s[80:83], s[0:1], 64
s_getpc_b64 s[84:85]
v_lshrrev_b32 v1, 6, v0
s_lshr_b32 {sr(sT1)}, s2, 3
v_readfirstlane_b32 {sr(sW)}, v1
v_and_b32 {vr(vLANE)}, 63, v0
v_lshlrev_b32 {vr(vL16)}, 4, {vr(vLANE)}""")
        lc = P.newlabel('Lx')
        P(f"""s_cmp_lt_u32 {sr(sW)}, 6
s_cbranch_scc1 {lc}
s_and_b32 {sr(sT0)}, {sr(sW)}, 1
s_lshl_b32 {sr(sT0)}, {sr(sT0)}, 5
s_add_u32 {sr(sT0)}, {sr(sT0)}, {sr(sT1)}
s_lshl_b32 {sr(sT0)}, {sr(sT0)}, 10
s_cmp_ge_u32 {sr(sT0)}, CODE_BYTES
s_cbranch_scc1 {lc}
v_add_u32 v255, {sr(sT0)}, {vr(vL16)}
global_load_dword v255, v255, s[84:85]""")
        P.label(lc)
        P(f"""s_and_b32 {sr(sT0)}, s2, 7
s_add_u32 {sr(sC)}, {sr(sT1)}, {o.get('cadd', 0)}
s_and_b32 {sr(sC)}, {sr(sC)}, 15
s_lshr_b32 {sr(sT1)}, {sr(sT1)}, 4
s_lshl_b32 {sr(sR)}, {sr(sT0)}, 1
s_add_u32 {sr(sR)}, {sr(sR)}, {sr(sT1)}
s_and_b32 {sr(sMT)}, {sr(sW)}, 3
s_lshr_b32 {sr(sHS)}, {sr(sW)}, 2
s_lshl_b32 {sr(sRT)}, {sr(sR)}, 2
s_add_u32 {sr(sRT)}, {sr(sRT)}, {sr(sMT)}
s_add_u32 {sr(sS0)}, {sr(sT0)}, {sr(sT1)}
s_lshl_b32 {sr(sT1)}, {sr(sC)}, 1
s_add_u32 {sr(sS0)}, {sr(sS0)}, {sr(sT1)}
s_and_b32 {sr(sS0)}, {sr(sS0)}, 3
s_lshr_b32 {sr(sROT)}, {sr(sC)}, 1
s_lshl1_add_u32 {sr(sROT)}, {sr(sS0)}, {sr(sROT)}
s_and_b32 {sr(sROT)}, {sr(sROT)}, 7
v_mov_b32 v8, 0
v_mov_b32 v9, 0
v_mov_b32 v10, 0
v_mov_b32 v11, 0
v_mov_b32 v90, 0
v_mov_b32 {vr(vPA)}, 0
v_mov_b32 v91, 0
v_mov_b32 v93, 0
v_mov_b32 {vr(vCNT)}, {LDS_CNT}
ds_write_b128 {vr(vCNT)}, v[8:11]
ds_write_b128 {vr(vCNT)}, v[8:11] offset:16
ds_write_b128 {vr(vCNT)}, v[8:11] offset:32
v_lshrrev_b32 v28, 3, {vr(vLANE)}
v_lshlrev_b32 v28, 10, v28
v_lshrrev_b32 v29, 4, {vr(vLANE)}
v_xor_b32 v29, v29, {vr(vLANE)}
v_and_b32 v29, 7, v29
v_lshl_add_u32 v28, v29, 4, v28
v_xor_b32 v29, 64, v28
v_add_u32 v30, {2*7168}, v28
v_add_u32 v31, {3*7168}, v29
v_add_u32 v29, 7168, v29
s_lshl_b32 {sr(sLB)}, {sr(sRT)}, 15
s_lshl_b32 {sr(sLR)}, {sr(sROT)}, 7
s_mul_i32 {sr(sLA)}, {sr(sMT)}, {12288 if o['il'] else 16384}
s_add_u32 {sr(sLA)}, {sr(sLA)}, {LDS_WO if o['il'] else LDS_WQ}
{'s_memrealtime s[92:93]' if self.stamps else ''}
s_waitcnt lgkmcnt(0)
{'s_memrealtime s[94:95]' if self.stamps else ''}
s_load_dword {sr(sTAG)}, s[82:83], 0""")
        self.srd(sX0, 64, 2097152)
        if o['pf'] >= 3:
            lq = P.newlabel('Lx')
            P(f"""s_cmp_lg_u32 {sr(sW)}, {o['pf'] + 1}
s_cbranch_scc1 {lq}
s_lshr_b32 {sr(sT0)}, s2, 3
s_sub_u32 {sr(sT1)}, {sr(sT0)}, 24
s_cselect_b32 {sr(sT0)}, {sr(sT0)}, {sr(sT1)}
s_cselect_b64 {sr(sT2,2)}, s[66:67], s[68:69]
s_lshl_b32 {sr(sT0)}, {sr(sT0)}, 16
v_lshl_add_u32 v26, {vr(vLANE)}, 10, {sr(sT0)}
global_load_dword v25, v26, {sr(sT2,2)} offset:384""")
            P.label(lq)
        def dma_addr():
            P(f"""v_lshrrev_b32 v28, 2, {vr(vLANE)}
v_and_b32 v29, 3, {vr(vLANE)}
v_lshlrev_b32 v29, 4, v29
s_lshl_b32 {sr(sT0)}, {sr(sC)}, 6
v_add_u32 v29, {sr(sT0)}, v29
v_mul_u32_u24 {vr(vDW)}, 3072, v28
v_add_u32 {vr(vDW)}, {vr(vDW)}, v29
v_lshl_add_u32 {vr(vDO)}, v28, 10, v29
s_lshl_b32 {sr(sLA)}, {sr(sMT)}, 11
s_lshr_b32 {sr(sT0)}, {sr(sMT)}, 1
s_add_u32 {sr(sT0)}, {sr(sT0)}, {sr(sROT)}
s_and_b32 {sr(sT0)}, {sr(sT0)}, 7
s_lshl_b32 {sr(sG0)}, {sr(sT0)}, 16
s_xor_b32 {sr(sT0)}, {sr(sMT)}, {sr(sC)}
s_and_b32 {sr(sT0)}, {sr(sT0)}, 1
s_lshl_b32 {sr(sT0)}, {sr(sT0)}, 15
s_add_u32 {sr(sG0)}, {sr(sG0)}, {sr(sT0)}""")
        avm = Tracker(63)
        P(f's_cmp_lg_u32 {sr(sHS)}, 0\ns_cbranch_scc1 L_pro1')
        for g in range(2): self.x0_load(g)
        if o['wearly']: P('s_branch L_pro2')
        P.label('L_pro1')
        if o['wearly']:
            self.srd(sWA, 66, 1572864)
            dma_addr()
            for st in range(o['wearly']): self.dma_w(0, (1, 2), (st,)); avm.issue(st, 4)
        P.label('L_pro2')
        if self.stamps: P('s_memrealtime s[96:97]')
        P('s_barrier')
        self.srd(sWS, 82, WS_USED); self.srd(sWA, 66, 1572864); self.srd(sWoA, 68, 524288)
        self.srd(sWB, 72, 1572864); self.srd(sPhi, 74, 16384); self.srd(sWoB, 76, 524288); self.srd(sOut, 78, 2097152)
        P(f"""s_mul_i32 {sr(sT0)}, {sr(sHS)}, 3
s_xor_b32 {sr(sQT)}, {sr(sMT)}, {sr(sT0)}
s_mov_b32 {sr(sBUD)}, 0x100000
s_mov_b32 {sr(sLO)}, 0xffff
s_mov_b32 {sr(sLO+1)}, 0xffff
s_mov_b32 {sr(sH0)}, -1
s_mov_b32 {sr(sH0+1)}, 0
s_mov_b32 {sr(sFAST)}, 0
s_mov_b32 {sr(sDM)}, 0
s_mov_b32 {sr(sLOG2E)}, {f2u(LOG2E):#x}
s_mov_b32 {sr(sPERM)}, 0x07060302
s_lshl_b32 {sr(sS0)}, {sr(sS0)}, 13
s_getreg_b32 {sr(sOWNF)}, hwreg(HW_REG_XCC_ID, 0, 4)
v_lshrrev_b32 {vr(vH)}, 5, {vr(vLANE)}
v_and_b32 {vr(vT)}, 31, {vr(vLANE)}
v_lshlrev_b32 {vr(vL4)}, 2, {vr(vLANE)}
v_mov_b32 {vr(vSTAMP)}, 0
v_bfe_u32 {vr(vTR1)}, {vr(vLANE)}, 2, 2
v_lshl_add_u32 {vr(vTR1)}, {vr(vH)}, 2, {vr(vTR1)}
v_lshlrev_b32 {vr(vTR2)}, 6, {vr(vTR1)}
v_bfe_u32 {vr(vTR1)}, {vr(vLANE)}, 4, 1
v_lshl_add_u32 {vr(vTR2)}, {vr(vTR1)}, 5, {vr(vTR2)}
v_and_b32 {vr(vTR1)}, 3, {vr(vLANE)}
v_lshl_add_u32 {vr(vTR2)}, {vr(vTR1)}, 3, {vr(vTR2)}
v_lshl_add_u32 {vr(vTR1)}, {vr(vH)}, 8, {vr(vTR2)}
v_add_u32 {vr(vTR1)}, {LDS_WQ}, {vr(vTR1)}
v_add_u32 {vr(vTR2)}, {LDS_WO}, {vr(vTR2)}
s_lshl_b32 {sr(sT0)}, {sr(sMT)}, 7
s_add_u32 {sr(sT0)}, {sr(sT0)}, {LDS_RSTD}
v_lshl_add_u32 {vr(vRA)}, {vr(vT)}, 2, {sr(sT0)}
v_lshl_add_u32 {vr(vRB)}, {vr(vH)}, 4, {sr(sT0)}
v_lshlrev_b32 {vr(vFD)}, 2, {vr(vH)}
v_sub_u32 {vr(vFD)}, {vr(vT)}, {vr(vFD)}
v_cvt_f32_i32 {vr(vFD)}, {vr(vFD)}
v_mul_f32 {vr(vFD)}, {f2u(2.0**100):#x}, {vr(vFD)}
s_waitcnt lgkmcnt(0)
s_and_b32 {sr(sTAG)}, {sr(sTAG)}, -16
s_add_u32 {sr(sTAG)}, {sr(sTAG)}, {TAGC:#x}
s_or_b32 {sr(sOWNF)}, {sr(sOWNF)}, {sr(sTAG)}
s_lshl_b32 {sr(sT0)}, {sr(sR)}, 2
s_add_u32 {sr(sT0)}, {sr(sT0)}, {sr(sQT)}
s_lshl_b32 {sr(sT0)}, {sr(sT0)}, 5
s_lshl_b32 {sr(sT1)}, {sr(sC)}, 1
s_add_u32 {sr(sT0)}, {sr(sT0)}, {sr(sT1)}
s_add_u32 {sr(sT0)}, {sr(sT0)}, {sr(sHS)}
s_lshl_b32 {sr(sOW)}, {sr(sT0)}, 10
s_lshl_b32 {sr(sOF)}, {sr(sT0)}, 2
s_lshr_b32 {sr(sT0)}, {sr(sMT)}, 1
s_add_u32 {sr(sT0)}, {sr(sT0)}, {sr(sR)}
s_sub_u32 {sr(sT0)}, {sr(sT0)}, 2
s_cselect_b32 {sr(sHAS)}, 0, 1
s_lshl_b32 {sr(sT0)}, {sr(sT0)}, 1
s_and_b32 {sr(sT1)}, {sr(sMT)}, 1
s_add_u32 {sr(sT0)}, {sr(sT0)}, {sr(sT1)}
s_lshl_b32 {sr(sT0)}, {sr(sT0)}, 5
s_add_u32 {sr(sT0)}, {sr(sT0)}, {sr(sC)}
s_mul_i32 {sr(sHB)}, {sr(sT0)}, {KV_REC}
s_cmp_lt_u32 {sr(sQT)}, 2
s_cselect_b32 {sr(sHAS)}, {sr(sHAS)}, 0
s_cmp_eq_u32 {sr(sR)}, 1
s_cselect_b32 {sr(sT0)}, 4, {sr(sQT)}
s_sub_u32 {sr(sC2)}, 8, {sr(sT0)}
s_lshl_b32 {sr(sP2)}, {sr(sT0)}, 12
s_add_u32 {sr(sP2)}, {sr(sP2)}, {LDS_T}
s_mul_i32 {sr(sOWN)}, {sr(sQT)}, {OWN_ST}
s_add_u32 {sr(sOWN)}, {sr(sOWN)}, {LDS_OWN}
s_lshl_b32 {sr(sT0)}, {sr(sRT)}, 4
s_add_u32 {sr(sT0)}, {sr(sT0)}, {sr(sC)}
s_mul_i32 {sr(sKVW)}, {sr(sT0)}, {KV_REC}
s_lshl_b32 {sr(sXW)}, {sr(sT0)}, 11
s_lshl_b32 {sr(sSW)}, {sr(sT0)}, 8
s_lshl_b32 {sr(sXF)}, {sr(sRT)}, 7
s_lshl_b32 {sr(sRB)}, {sr(sRT)}, 15""")
        self.stamp(0, 'start')
        if self.stamps:
            self.stamp_names.update({32: 'pre karg', 43: 'karg', 51: 'x issued'})
            P(f'v_writelane_b32 {vr(vSTAMP)}, s92, 32\nv_writelane_b32 {vr(vSTAMP)}, s94, 43\nv_writelane_b32 {vr(vSTAMP)}, s96, 51')
            self.stamp_names[60] = 'entry'; P(f'v_writelane_b32 {vr(vSTAMP)}, s98, 60\ns_mov_b32 s99, 0\ns_mov_b32 s101, 0')
        P(f's_cmp_eq_u32 {sr(sHS)}, 0\ns_cbranch_scc1 L_main_0')
        lh = P.newlabel('Lx'); lt = P.newlabel('Lx')
        P(f"""s_lshl_b32 {sr(sT2)}, {sr(sR)}, 7
s_lshl_b32 {sr(sT3)}, {sr(sC)}, 2
s_add_u32 {sr(sT2)}, {sr(sT2)}, {sr(sT3)}
s_add_u32 {sr(sT2)}, {sr(sT2)}, {OFF_XFLAG}
s_cmp_lg_u32 {sr(sMT)}, 0
s_cbranch_scc1 {lh}""")
        self.flag(sT2, sOWNF, True)
        P.label(lh)
        if o['pf'] in (1, 2): self.coop_prefetch(0, o['pf'])
        if not o['wearly']: dma_addr()
        P(f"""v_add_u32 {vr(vCH)}, {sr(sLA)}, {vr(vL16)}
v_subrev_u32 {vr(vCS)}, {LDS_WO}, {vr(vTR2)}
v_add_u32 {vr(vCS)}, {sr(sLA)}, {vr(vCS)}
v_lshl_add_u32 v31, {vr(vH)}, 8, {vr(vCS)}""")
        for i in range(4): P(f'v_mov_b32 {vr(ONES+i)}, 0x3f803f80')
        P(f'v_lshlrev_b32 v30, 10, {vr(vH)}\nv_add_u32 v30, {LDS_ONES}, v30\nds_write_b128 v30, {vr(ONES,4)}')
        self.csp_waddr(0)
        P(f'v_lshl_add_u32 v30, {vr(vH)}, 9, v28')
        for op in self.mask_ops(0) + self.mask_ops(1): P(op)
        if o['tlb']:
            lw = P.newlabel('Lx')
            P(f"""s_cmp_lg_u32 {sr(sMT)}, 1
s_cbranch_scc1 {lw}
v_and_b32 v68, 15, {vr(vLANE)}
v_bfe_u32 v69, {vr(vLANE)}, 4, 1
s_lshl_b32 {sr(sT0)}, {sr(sR)}, 2
s_sub_u32 {sr(sT0)}, {sr(sT0)}, 8
v_min_u32 v70, 11, v68
v_add_u32 v70, {sr(sT0)}, v70
v_max_i32 v70, 0, v70
v_lshl_add_u32 v70, v70, 4, {sr(sC)}
v_lshl_add_u32 v70, v69, 10, v70
v_mul_u32_u24 v70, {KV_REC}, v70
v_add_u32 v70, {OFF_KV + KV_REC - 128}, v70
s_lshl_b32 {sr(sT0)}, {sr(sC)}, 4
v_add_u32 v68, {sr(sT0)}, v68
v_lshl_add_u32 v68, v69, 8, v68
v_mul_u32_u24 v68, {KP_REC}, v68
v_add_u32 v68, {OFF_KP + KP_REC - 128}, v68
v_cndmask_b32 v68, v68, v70, {sr(sH0,2)}
buffer_load_dword v26, v68, {sr(sWS,4)}, 0 offen""")
            P.label(lw)
        if o['wgo']: self.lds_wait(C_WGO, o['wgon'])
        self.stamp(2, 'x g0 / W go')
        PRE = o['pre']; MCS = o['mcs']; CA = {1: 32, 2: 64, 0: 32}
        for st in range(o['wearly'], PRE): self.dma_w(0, (1, 2), (st,)); avm.issue(st, 4)
        qs = [[0, 1], [2, 3]] if PRE == 2 else ([[0, 1], [2, 3], []] if PRE == 3 else [[], [0, 1], [2, 3], []])
        first_q = True
        if not MCS:
            for i in range(4): P(f'v_mov_b32 {vr(64+i)}, 0')
        if o['il']: qs = [[]]*4
        for st in range(4):
            if st + PRE < 4: self.dma_w(0, (1, 2), (st + PRE,)); avm.issue(st + PRE, 4)
            else:
                q = qs.pop(0)
                if q:
                    if first_q:
                        self.lds_wait(C_XDONE, 4); first_q = False
                        if o['apr']: P('s_setprio 3')
                    self.dma_w(0, (0,), q); avm.issue('q', 4)
            P(waitstr(vm=avm.need(st)))
            self.stamp((15, 23, 29, 1)[st], ('x g3 / W st0', 'x g5 / W st1', 'S0 / W st2', 'x0 / W st3')[st])
            self.lds_signal(C_ST + st)
            ch = [(nt, 2*st + e) for nt in (1, 2) for e in range(2)]
            for nt, u in ch:
                r_ = PARK[nt] + 4*u; of = NT_LDS[nt] + cho(u)
                P(f'ds_read_b64_tr_b16 {vr(r_,2)}, v31 offset:{of}\nds_read_b64_tr_b16 {vr(r_+2,2)}, v31 offset:{of+256}')
            for k, (nt, u) in enumerate(ch):
                P(f's_waitcnt lgkmcnt({6-2*k})')
                if MCS: self.mfma(CA[nt], ONES, PARK[nt] + 4*u, None if u == 0 else CA[nt])
                else: self.valu_sum(PARK[nt] + 4*u, 64 + 2*(nt - 1))
        if MCS: P(f'ds_write_b32 v28, {vr(CA[1])} offset:512\nds_write_b32 v28, {vr(CA[2])} offset:1024')
        else: P('v_add_f32 v64, v64, v65\nv_add_f32 v66, v66, v67\nv_permlane32_swap_b32 v64, v66\nv_add_f32 v64, v64, v66\nds_write_b32 v30, v64 offset:512')
        self.lds_signal(C_CS, wait=False)
        if o['apr'] == 1: P('s_setprio 0')
        self.stamp(14, 'S3 / W done')
        if o['il']:
            self.lds_wait(C_CSQ, 4, 1); self.dma_w(0, (0,))
            self.lds_wait(C_XDONE, 4, 1)
        if o['clr']: self.hello_load()
        if o['wo_at'] == 0: self.dma_w(0, ('o',))
        P(f'v_add_u32 v31, {LDS_WQ}, v31\ns_waitcnt vmcnt({8 if o["wo_at"] == 0 else 0})')
        self.lds_signal(C_Q)
        self.stamp(4, 'Q done')
        if o['wo_at'] == 1: self.dma_w(0, ('o',))
        for u0 in (0, 4):
            for u in range(u0, u0 + 4):
                r_ = PARK[0] + 4*u
                P(f'ds_read_b64_tr_b16 {vr(r_,2)}, v31 offset:{cho(u)}\nds_read_b64_tr_b16 {vr(r_+2,2)}, v31 offset:{cho(u)+256}')
            for k, u in enumerate(range(u0, u0 + 4)):
                P(f's_waitcnt lgkmcnt({6-2*k})')
                if o['qcv']:
                    if u == 0: P('v_mov_b32 v64, 0\nv_mov_b32 v65, 0')
                    self.valu_sum(PARK[0] + 4*u, 64)
                else: self.mfma(CA[0], ONES, PARK[0] + 4*u, None if u == 0 else CA[0])
        if o['qcv']: P('v_add_f32 v64, v64, v65\nv_mov_b32 v66, v64\nv_permlane32_swap_b32 v64, v66\nv_add_f32 v64, v64, v66\nds_write_b32 v28, v64')
        else: P(f'ds_write_b32 v28, {vr(CA[0])}')
        self.lds_signal(C_CSQ, wait=False)
        if o['plds']:
            lf = P.newlabel('Lx')
            P(f's_cmp_lg_u32 {sr(sMT)}, 0\ns_cbranch_scc1 {lf}\ns_mov_b32 m0, {LDS_PHI}\ns_lshl_b32 {sr(sT0)}, {sr(sC)}, 10\nbuffer_load_dwordx4 {vr(vL16)}, {sr(sPhi,4)}, {sr(sT0)} offen lds')
            P.label(lf)
        P(f"""s_cmp_lg_u32 {sr(sMT)}, {2 if o['pfw'] else 9}
s_cbranch_scc1 {lt}
v_lshlrev_b32 v6, 7, {vr(vLANE)}
s_mul_i32 {sr(sT0)}, s2, {48*128}
buffer_load_dword v26, v6, {sr(sWB,4)}, {sr(sT0)} offen
v_and_b32 v6, 0x780, v6
s_lshl_b32 {sr(sT0)}, s2, 11
buffer_load_dword v26, v6, {sr(sWoB,4)}, {sr(sT0)} offen""")
        P.label(lt)
        if o['pfb'] == 1: self.coop_prefetch(1, 1)
        P('s_branch L_aux_0')

    def coop_prefetch(self, typ, mode):
        P = self.P; l1 = P.newlabel('Lx'); l2 = P.newlabel('Lx')
        if mode == 1: P(f's_cmp_lg_u32 {sr(sMT)}, 1\ns_cbranch_scc1 {l2}')
        offs = (128,) if mode == 1 else (128, 0)
        P(f"""v_lshlrev_b32 v5, 10, {vr(vLANE)}
s_lshr_b32 {sr(sT0)}, s2, 3
s_lshl_b32 {sr(sT0)}, {sr(sT0)}, 16
s_lshl_b32 {sr(sT1)}, {sr(sMT)}, 8
s_add_u32 {sr(sT0)}, {sr(sT0)}, {sr(sT1)}
s_cmp_ge_u32 s2, 192
s_cbranch_scc1 {l1}""")
        for of in offs: P(f'buffer_load_dword v26, v5, {sr((sWA, sWB)[typ],4)}, {sr(sT0)} offen offset:{of}')
        P(f's_branch {l2}'); P.label(l1)
        P(f's_sub_u32 {sr(sT0)}, {sr(sT0)}, {24 << 16}')
        for of in offs: P(f'buffer_load_dword v26, v5, {sr((sWoA, sWoB)[typ],4)}, {sr(sT0)} offen offset:{of}')
        P.label(l2)

    def valu_sum(self, frag, acc):
        for i in range(4):
            self.P(f'v_lshlrev_b32 v68, 16, {vr(frag+i)}\nv_and_b32 v69, 0xffff0000, {vr(frag+i)}\nv_add_f32 {vr(acc)}, {vr(acc)}, v68\nv_add_f32 {vr(acc+1)}, {vr(acc+1)}, v69')

    def x0_load(self, g):
        P = self.P
        P(f's_add_u32 m0, {sr(sLA)}, {(g % (3 if self.o["il"] else 4))*4096}\ns_add_u32 {sr(sT3)}, {sr(sLB)}, {sr(sLR)}')
        for j in range(4): P(f'buffer_load_dwordx4 {vr(28+j)}, {sr(sX0,4)}, {sr(sT3)} offen offset:{j*1024} lds')
        P(f's_add_u32 {sr(sLR)}, {sr(sLR)}, 128\ns_and_b32 {sr(sLR)}, {sr(sLR)}, 0x3ff')
        self.vm.issue(('x', g), 4)

    def code_prefetch(self, label):
        P = self.P; lc = P.newlabel('Lx')
        P(f"""s_cmp_lg_u32 {sr(sMT)}, 3
s_cbranch_scc1 {lc}
s_lshl_b32 {sr(sT0)}, {sr(sC)}, 10
s_add_u32 {sr(sT0)}, {sr(sT0)}, ({label} - {NAME}_kernel)
s_cmp_ge_u32 {sr(sT0)}, CODE_BYTES
s_cbranch_scc1 {lc}
v_add_u32 v26, {sr(sT0)}, {vr(vL16)}
global_load_dword v26, v26, s[84:85]""")
        P.label(lc)

    def wphi_load(self, B=96):
        P = self.P; a, t = vr(B + 8), vr(B + 9)
        P(f"""s_lshl_b32 {sr(sT0)}, {sr(sC)}, 1
s_add_u32 {sr(sT0)}, {sr(sT0)}, {sr(sHS)}
s_lshl_b32 {sr(sT0)}, {sr(sT0)}, 9
v_bfe_u32 {a}, {vr(vLANE)}, 3, 2
v_and_b32 {t}, 3, {vr(vLANE)}
v_lshl_add_u32 {a}, {a}, 2, {t}
v_lshlrev_b32 {a}, 1, {a}
v_lshrrev_b32 {t}, 5, {vr(vLANE)}
v_lshl_add_u32 {a}, {t}, 7, {a}""")
        if self.o['plds']:
            P(f's_and_b32 {sr(sT0)}, {sr(sT0)}, 512\ns_add_u32 {sr(sT0)}, {sr(sT0)}, {LDS_PHI}\nv_add_u32 {a}, {sr(sT0)}, {a}')
        for j in range(8):
            d = (j if j < 4 else 8 + j - 4)
            if self.o['plds']: P(f'ds_read_u16 {vr(B+j)}, {a} offset:{d*32}'); continue
            P(f'buffer_load_ushort {vr(B+j)}, {a}, {sr(sPhi,4)}, {sr(sT0)} offen offset:{d*32}')

    def wphi_pack(self, B=96):
        ops = [f'v_lshl_or_b32 {vr(WPHI+p)}, {vr(B+2*p+1)}, 16, {vr(B+2*p)}' for p in range(4)]
        ops += [f'v_bfe_i32 {vr(B)}, {vr(vLANE)}, 2, 1', f'v_and_b32 {vr(B)}, 0x80008000, {vr(B)}']
        return ops + [f'v_xor_b32 {vr(WPHI+p)}, {vr(B)}, {vr(WPHI+p)}' for p in range(4)]

    def dma_w(self, typ, nts, stages=range(4)):
        P = self.P; wo = nts == ('o',)
        srd = (sWoA, sWoB)[typ] if wo else (sWA, sWB)[typ]
        for st in stages:
            P(f's_add_u32 {sr(sT0)}, {sr(sG0)}, {st*0x20000}\ns_and_b32 {sr(sT0)}, {sr(sT0)}, 0x7ffff')
            if not wo: P(f's_mul_i32 {sr(sT0)}, {sr(sT0)}, 3')
            late = wo or typ == 1
            if late: P(f's_add_u32 {sr(sT3)}, {sr(sS0)}, {st*8192}\ns_and_b32 {sr(sT3)}, {sr(sT3)}, 0x7fff\ns_add_u32 {sr(sT3)}, {sr(sT3)}, {sr(sLA)}')
            for e in range(2):
                for nt in nts:
                    P(f's_add_u32 m0, {sr(sT3)}, {NT_LDS[nt] + e*1024}' if late else f's_add_u32 m0, {sr(sLA)}, {NT_LDS[nt] + cho(2*st + e)}')
                    P(f's_add_u32 {sr(sT1)}, {sr(sT0)}, {e*16384 if wo else e*49152 + nt*1024}')
                    P(f'buffer_load_dwordx4 {vr(vDO if wo else vDW)}, {sr(srd,4)}, {sr(sT1)} offen lds')

    def csp_waddr(self, typ):
        self.P(f"""s_lshl_b32 {sr(sT0)}, {sr(sMT)}, 2
s_add_u32 {sr(sT0)}, {sr(sT0)}, {LDS_CSP + typ*1536}
v_and_b32 v28, 31, {vr(vLANE)}
v_lshl_add_u32 v28, v28, 4, {sr(sT0)}""")

    def chunk_addr(self, region):
        if region < 65536: return vCH, region
        self.P(f'v_add_u32 {vr(vT0)}, {region}, {vr(vCH)}'); return vT0, 0

    def lds_to_regs(self, region, dst, tr=False):
        if tr:
            self.P(f'v_add_u32 v29, {region}, {vr(vCS)}')
            for u in range(8): self.P(f'ds_read_b64_tr_b16 {vr(dst+4*u,2)}, v29 offset:{cho(u)}\nds_read_b64_tr_b16 {vr(dst+4*u+2,2)}, v29 offset:{cho(u)+512}')
            return
        a, o = self.chunk_addr(region)
        for u in range(8): self.P(f'ds_read_b128 {vr(dst+4*u,4)}, {vr(a)} offset:{o+cho(u)}')

    def regs_to_lds(self, region, src, rot=False):
        if rot:
            if region >= 65536:
                for st in range(4): self.P(f'v_add_u32 {vr(64+st)}, {region}, {vr(64+st)}')
            for u in range(8): self.P(f'ds_write_b128 {vr(64 + (u >> 1))}, {vr(src+4*u,4)} offset:{(region if region < 65536 else 0) + (u & 1)*1024}')
            return
        a, o = self.chunk_addr(region)
        for u in range(8): self.P(f'ds_write_b128 {vr(a)}, {vr(src+4*u,4)} offset:{o+cho(u)}')

    def relayout(self, typ, nts, tmp=64, ntmp=8):
        P = self.P
        if nts != ('o',): self.csp_waddr(typ)
        for k, nt in enumerate(nts):
            region = NT_LDS[nt]
            P(f'v_add_u32 v29, {region}, {vr(vCS)}')
            acc = ACC0 if k % 2 == 0 else ACC1
            lg = Tracker(15)
            reg = lambda u: tmp + 4*(u % ntmp)
            for u0 in range(0, 8, 4):
                for u in range(u0, u0 + 4):
                    P(f'ds_read_b64_tr_b16 {vr(reg(u),2)}, v29 offset:{cho(u)}\nds_read_b64_tr_b16 {vr(reg(u)+2,2)}, v29 offset:{cho(u)+512}'); lg.issue(u, 2)
                for u in range(u0, u0 + 4):
                    P(waitstr(lg=lg.need(u)))
                    if nt != 'o': self.mfma(acc, ONES, reg(u), None if u == 0 else acc)
        for k, nt in enumerate(nts):
            if nt != 'o': P(f'ds_write_b32 v28, {vr(ACC0 if k % 2 == 0 else ACC1)} offset:{nt*512}')
        P('s_waitcnt lgkmcnt(0)')

    def swap_region(self, nt, save, tr=False):
        P = self.P
        if save:
            self.lds_to_regs(NT_LDS[nt], 32, tr); P('s_waitcnt lgkmcnt(0)')
        self.regs_to_lds(NT_LDS[nt], PARK[nt], tr and nt != 'o'); P('s_waitcnt lgkmcnt(0)')
        if save:
            for i in range(32): P(f'v_mov_b32 {vr(PARK[nt]+i)}, {vr(32+i)}')

    def unpack_res(self):
        for p in range(8):
            self.P(f'v_lshlrev_b32 {vr(ACC0+2*p)}, 16, {vr(XRES+p)}\nv_and_b32 {vr(ACC0+2*p+1)}, 0xffff0000, {vr(XRES+p)}')

    def rowmajor_addr(self, dst, tmp, sdst):
        self.P(f"""v_and_b32 {vr(dst)}, 31, {vr(vLANE)}
v_lshlrev_b32 {vr(dst)}, 10, {vr(dst)}
v_lshrrev_b32 {vr(tmp)}, 5, {vr(vLANE)}
v_lshl_add_u32 {vr(dst)}, {vr(tmp)}, 4, {vr(dst)}
s_lshl_b32 {sr(sdst)}, {sr(sC)}, 6
s_add_u32 {sr(sdst)}, {sr(sdst)}, {sr(sRB)}""")

    def publish_x_addr(self, L):
        if L == self.nl: return self.rowmajor_addr(vKA, vVA, sK0)
        self.P(f's_add_u32 {sr(sK1)}, {sr(sSW)}, {OFF_ST}')
        if L == 1 or self.o['hx']: self.P(f's_lshl_b32 {sr(sK2)}, {sr(sC)}, 2\ns_add_u32 {sr(sK2)}, {sr(sK2)}, {sr(sXF)}\ns_add_u32 {sr(sK2)}, {sr(sK2)}, {OFF_XFLAG + 0x2000}')

    def set_par(self, reg, par):
        return f'v_or_b32 {vr(reg)}, 1, {vr(reg)}' if par else f'v_and_b32 {vr(reg)}, -2, {vr(reg)}'

    def acc_par(self, a, b, par):
        return f'v_bitop3_b32 {vr(vPD)}, {vr(vPD)}, {vr(a)}, {vr(b)} bitop3:0x80' if par else f'v_or3_b32 {vr(vPD)}, {vr(vPD)}, {vr(a)}, {vr(b)}'

    def test_par(self, par):
        return f'v_and_b32 {vr(vCK)}, 1, {vr(vPD)}\nv_cmp_ne_u32 vcc, {par}, {vr(vCK)}'

    def hello_load(self):
        self.P(f'v_and_b32 {vr(vPA)}, 60, {vr(vL4)}\ns_lshl_b32 {sr(sK2)}, {sr(sR)}, 7\ns_add_u32 {sr(sK2)}, {sr(sK2)}, {OFF_XFLAG}\nbuffer_load_dword v25, {vr(vPA)}, {sr(sWS,4)}, {sr(sK2)} offen sc1')

    def hello_check(self):
        P = self.P; okl = P.newlabel('Lx')
        P(f'v_mov_b32 {vr(vPD)}, v25\nv_and_b32 {vr(vT0)}, -16, v25\nv_cmp_ne_u32 vcc, {sr(sTAG)}, {vr(vT0)}\ns_cbranch_vccz {okl}')
        self.poll(sK2, masked=True)
        P.label(okl)
        if not self.force_safe:
            P(f"""v_cmp_ne_u32 vcc, {sr(sOWNF)}, {vr(vPD)}
s_cmp_eq_u64 vcc, 0
s_cselect_b32 {sr(sFAST)}, 1, 0
v_mov_b32 {vr(vT0)}, {sr(sFAST)}
ds_write_b32 {vr(vCNT)}, {vr(vT0)} offset:44""")

    def clear_lines(self, Z):
        P = self.P
        P(f's_add_u32 {sr(sT0)}, {sr(sXW)}, {OFF_O}\ns_add_u32 {sr(sT1)}, {sr(sSW)}, {OFF_ST}')
        def clear(sc1):
            m = ' sc1' if sc1 else ''
            for of in (0, 1024): P(f'buffer_store_dwordx4 {vr(Z,4)}, {vr(vL16)}, {sr(sWS,4)}, {sr(sT0)} offen offset:{of}{m}')
            for of in (0, 1024): P(f'buffer_store_dwordx4 {vr(Z,4)}, {vr(vL16)}, {sr(sOut,4)}, {sr(sXW)} offen offset:{of}{m}')
            P(f'buffer_store_dword {vr(Z)}, {vr(vL4)}, {sr(sWS,4)}, {sr(sT1)} offen{m}')
        self.two_way(clear)

    def hint_prep(self, r, add):
        return [f'v_cmp_gt_u32 vcc, {sr(sFAST)}, {vr(vLANE)}', f'v_add_u32 {vr(r)}, {sr(sTAG)}, {add}', f'v_cndmask_b32 {vr(r+1)}, {OOB:#x}, {vr(vLANE)}, vcc']

    def hint(self, r, soff):
        self.P(f'buffer_store_dword {vr(r)}, {vr(r+1)}, {sr(sWS,4)}, {sr(soff)} offen')

    def first_hop(self, base_off, foff, mask, par=None, add=0, pre=None):
        self.P(f'v_and_b32 v110, {mask}, {vr(vL4)}\ns_add_u32 {sr(sT2)}, {sr(sXF)}, {foff}')
        self.frag_setup(base_off)
        if add: self.P(f's_add_u32 {sr(sT0)}, {sr(sTAG)}, {add}')
        NP = self.o['hp']
        if NP:
            P = self.P; lp = P.newlabel('Lpoll'); dn = P.newlabel('Lpolld'); val = sT0 if add else sTAG
            if pre is not None:
                P(f's_waitcnt vmcnt({pre})\nv_cmp_ne_u32 vcc, {sr(val)}, v103\ns_cbranch_vccz {dn}')
            ld = lambda i: P(f'buffer_load_dword {vr(104 + i)}, v110, {sr(sWS,4)}, {sr(sT2)} offen sc1')
            for i in range(NP):
                ld(i); P(f's_sleep {self.o["hs"]}')
            P.label(lp)
            for i in range(NP + 1):
                ld((i + NP) % (NP + 1))
                P(f's_waitcnt vmcnt({NP})\nv_cmp_ne_u32 vcc, {sr(val)}, {vr(104 + i)}\ns_cbranch_vccz {dn}')
            P(f's_sub_u32 {sr(sBUD)}, {sr(sBUD)}, 1\ns_cbranch_scc0 {lp}\ns_mov_b32 {sr(sBUD)}, 0')
            P.label(dn)
        else: self.poll(sT2, areg=110, val=sT0 if add else sTAG)
        if par is not None: self.P(f'v_mov_b32 {vr(vPD)}, {par}')
        return 0

    def probe(self, srd, base_off, par, nwin):
        P = self.P; lp = P.newlabel('Lprobe'); dn = P.newlabel('Lprobed'); S = min(self.o['specx' if srd == sOut else 'spec'], nwin)
        self.frag_setup(base_off)
        if self.o['pp']:
            A_, B_, AD_ = 108, 109, vPA
            if srd == sOut:
                AD_ = 110; P(f'v_or_b32 v110, 1024, {vr(vPA)}')
            ld = lambda r: P(f'buffer_load_dword {vr(r)}, {vr(AD_)}, {sr(srd,4)}, {sr(sLB)} offen sc1')
            ld(A_); P(f's_sleep {self.o["pp"]}')
            P.label(lp)
            for cur, nxt in ((A_, B_), (B_, A_)):
                ld(nxt)
                P(f's_waitcnt vmcnt(1)\nv_and_b32 {vr(vPD)}, 1, {vr(cur)}\nv_cmp_ne_u32 vcc, {par}, {vr(vPD)}\ns_cbranch_vccz {dn}')
            P(f's_sub_u32 {sr(sBUD)}, {sr(sBUD)}, 1\ns_cbranch_scc0 {lp}\ns_mov_b32 {sr(sBUD)}, 0')
            P.label(dn)
            return 0
        if self.o['pst'] and srd == sOut: P(f'v_lshrrev_b32 {vr(STAT+15)}, 2, {vr(vLANE)}\nv_lshlrev_b32 {vr(STAT+15)}, 8, {vr(STAT+15)}')
        P.label(lp)
        if self.o['pst'] and srd == sOut:
            P(f'buffer_load_dword {vr(vPD)}, {vr(STAT+15)}, {sr(sWS,4)}, {sr(sT1)} offen offset:252 sc1')
        elif self.o['pw'] == 16 and srd == sOut:
            P(f'v_or_b32 {vr(vPD)}, 1024, {vr(vPA)}\nbuffer_load_dword {vr(vPD)}, {vr(vPD)}, {sr(srd,4)}, {sr(sLB)} offen sc1')
        else: P(f'buffer_load_dword {vr(vPD)}, {vr(vPA)}, {sr(srd,4)}, {sr(sLB)} offen sc1')
        for ks in range(S): self.frag_load(srd, ks)
        P(f's_waitcnt vmcnt({S})')
        P(self.test_par(par))
        P(f's_cbranch_vccz {dn}')
        if self.o['em']: P('s_mov_b64 exec, vcc')
        if self.o['psleep']: P(f's_sleep {self.o["psleep"]}')
        if S: self.frag_setup(None)
        P(f's_sub_u32 {sr(sBUD)}, {sr(sBUD)}, 1\ns_cbranch_scc0 {lp}\ns_mov_b32 {sr(sBUD)}, 0')
        P.label(dn)
        if self.o['em']: P('s_mov_b64 exec, -1')
        return S

    def verify(self, par, redo):
        P = self.P; st = P.newlabel('Lver'); ct = P.newlabel('Lverc')
        P(self.test_par(par)); P(f's_cbranch_vccnz {st}')
        P.label(ct)
        self.stubs.append((st, redo, ct))

    def emit_stubs(self):
        P = self.P
        for ls, emit, le in self.ool:
            P.label(ls); emit(True); P(f's_branch {le}')
        for k, (st, redo, ct) in enumerate(self.stubs):
            P.label(st)
            if self.stamps: P(f's_add_u32 s101, s101, {1 << (2*k)}')
            P(f's_waitcnt vmcnt(0) lgkmcnt(0)\ns_sub_u32 {sr(sBUD)}, {sr(sBUD)}, 1\ns_cbranch_scc0 {redo}\ns_mov_b32 {sr(sBUD)}, 0\ns_branch {ct}')

    def probe_addr(self):
        if self.o['pw'] == 64:
            return f"""v_lshrrev_b32 {vr(vPA)}, 1, {vr(vLANE)}
v_lshlrev_b32 {vr(vPA)}, 10, {vr(vPA)}
v_and_b32 {vr(vCK)}, 1, {vr(vLANE)}
v_mad_u32_u24 {vr(vPA)}, {vr(vCK)}, {sr(sC1008)}, {vr(vPA)}"""
        if self.o['psp']:
            return f"""v_lshrrev_b32 {vr(vPA)}, 2, {vr(vLANE)}
v_add_u32 {vr(vPA)}, {sr(sC)}, {vr(vPA)}
v_and_b32 {vr(vPA)}, 7, {vr(vPA)}
v_lshlrev_b32 {vr(vPA)}, 7, {vr(vPA)}
v_lshrrev_b32 {vr(vCK)}, 1, {vr(vLANE)}
v_lshl_add_u32 {vr(vPA)}, {vr(vCK)}, 10, {vr(vPA)}"""
        return f'v_lshrrev_b32 {vr(vPA)}, 1, {vr(vLANE)}\nv_lshl_add_u32 {vr(vPA)}, {vr(vPA)}, 10, {sr(sC1008)}'

    def publish_x(self, L):
        P = self.P
        natural = (L % 2 == 0); T = XF; par = L & 1
        for p in range(8): P(f'v_cvt_pk_bf16_f32 {vr(T+p)}, {vr(ACC0+2*p)}, {vr(ACC0+2*p+1)}')
        if natural:
            for a, b in SW4: P(f'v_permlane32_swap_b32 {vr(T+a)}, {vr(T+b)}')
        if L == self.nl:
            m = ['', ' nt', ' sc1'][self.o.get('outm', 0)]
            P(f'buffer_store_dwordx4 {vr(T,4)}, {vr(vKA)}, {sr(sOut,4)}, {sr(sK0)} offen{m}\nbuffer_store_dwordx4 {vr(T+4,4)}, {vr(vKA)}, {sr(sOut,4)}, {sr(sK0)} offen offset:32{m}')
            return
        P(self.set_par(T, par)); P(self.set_par(T + 4, par))
        def emit(sc1):
            m = ' sc1' if sc1 else (' nt' if self.o.get('nta') else '')
            P(f'buffer_store_dwordx4 {vr(T,4)}, {vr(vL16)}, {sr(sOut,4)}, {sr(sXW)} offen{m}')
            P(f'buffer_store_dwordx4 {vr(T+4,4)}, {vr(vL16)}, {sr(sOut,4)}, {sr(sXW)} offen offset:1024{m}')
            if (L > 1 or self.o['clr']) and self.o['hx'] == 1 and (sc1 or not self.o['ex'] or L == 1): self.flag(sK2, sTAG, sc1, add=L - 1)
            if L > 1 and self.o['prex']: P(f'buffer_load_dword v103, v111, {sr(sWS,4)}, {sr(sXF)} offen sc1')
            for k in range(4):
                P(f'v_pk_add_f32 {vr(64+2*k,2)}, {vr(ACC0+4*k,2)}, {vr(ACC0+4*k+2,2)}')
            P(f'v_pk_mul_f32 v[72:73], {vr(ACC0,2)}, {vr(ACC0,2)}\nv_pk_mul_f32 v[74:75], {vr(ACC0+2,2)}, {vr(ACC0+2,2)}')
            P('v_pk_add_f32 v[64:65], v[64:65], v[66:67]\nv_pk_add_f32 v[68:69], v[68:69], v[70:71]')
            for k in range(2, 8): P(f'v_pk_fma_f32 {vr(72+2*(k&1),2)}, {vr(ACC0+2*k,2)}, {vr(ACC0+2*k,2)}, {vr(72+2*(k&1),2)}')
            P('v_pk_add_f32 v[64:65], v[64:65], v[68:69]\nv_pk_add_f32 v[72:73], v[72:73], v[74:75]')
            P('v_add_f32 v64, v64, v65\nv_add_f32 v66, v72, v73\nv_permlane32_swap_b32 v64, v66\nv_add_f32 v64, v64, v66')
            P(self.set_par(64, par))
            P(f'buffer_store_dword v64, {vr(vL4)}, {sr(sWS,4)}, {sr(sK1)} offen{m}')
            if L == 1 and not self.o['clr']: self.flag(sK2, sTAG, sc1, wait='s_waitcnt vmcnt(0)')
            elif self.o['hx'] == 2: self.flag(sK2, sTAG, sc1, add=L - 1)
        self.two_way(emit)
        for p in range(8): P(f'v_cvt_pk_bf16_f32 {vr(XRES+p)}, {vr(ACC0+2*p)}, {vr(ACC0+2*p+1)}')

    def frag_setup(self, base_off):
        self.P(f"""s_and_b32 {sr(sT3)}, {sr(sC)}, 1
s_lshl_b32 {sr(sT3)}, {sr(sT3)}, 11
s_add_u32 {sr(sLB)}, {sr(sRB)}, {base_off}
v_add3_u32 v108, {sr(sT3)}, {vr(vL16)}, 0
s_lshr_b32 {sr(sLR)}, {sr(sC)}, 1
v_add_u32 v108, {sr(sLB)}, v108
s_lshl_b32 {sr(sLR)}, {sr(sLR)}, 12
v_xor_b32 v109, 2048, v108""")

    def frag_load(self, srd, ks, ring=32):
        P = self.P
        P(f'buffer_load_dwordx4 {vr(XF+4*(ks % ring),4)}, {vr(108 + ((ks >> 1) & 1))}, {sr(srd,4)}, {sr(sLR)} offen offset:{(ks&1)*1024} sc1')
        if ks < 28 and ks & 3 == 3: P(f's_add_u32 {sr(sLR)}, {sr(sLR)}, 4096\ns_and_b32 {sr(sLR)}, {sr(sLR)}, 0x7fff')
        self.vm.issue(('x', ks))

    def mask_ops(self, part, lean=False):
        ops = []; C = CDIAG if part == 0 else CFIRST; sg = -1.0 if part == 0 else 1.0
        if part == 0 and not lean:
            ops.append(f'v_mov_b32 {vr(VV)}, 0x3f803f80')
            for i in range(1, 8): ops.append(f'v_mov_b32 {vr(VV+i)}, {vr(VV)}')
        for i in range(16):
            ci = 8*(i//4) + i % 4
            if part == 0: ops.append(f'v_subrev_f32 {vr(C+i)}, {f2u(ci*2.0**100):#x}, {vr(vFD)}')
            else: ops.append(f'v_sub_f32 {vr(C+i)}, {f2u((ci-1)*2.0**100):#x}, {vr(vFD)}')
        for i in range(16): ops.append(f'v_min_f32 {vr(C+i)}, 0, {vr(C+i)}')
        if part == 0 and not lean:
            for i in range(16): ops.append(f'v_mov_b32 {vr(aO+i)}, 0')
        return ops

    def stats_final(self, typ):
        a, b = STAT, STAT + 1
        it = f"""v_mov_b32 {vr(b)}, {vr(a)}
v_mov_b32 {vr(XEXT+2)}, 0
v_mov_b32 {vr(XEXT+3)}, 0
v_permlane32_swap_b32 {vr(a)}, {vr(b)}
v_mul_f32 {vr(a)}, {f2u(1/512):#x}, {vr(a)}
v_mul_f32 {vr(b)}, {f2u(1/512):#x}, {vr(b)}
v_fma_f32 {vr(b)}, -{vr(a)}, {vr(a)}, {vr(b)}
v_max_f32 {vr(b)}, 0, {vr(b)}
v_add_f32 {vr(b)}, {f2u(1e-5):#x}, {vr(b)}
v_rsq_f32 {vr(vRSTD)}, {vr(b)}
v_cndmask_b32 {vr(a)}, 0, {vr(a)}, {sr(sH0,2)}
v_and_b32 {vr(a+2)}, 0xffff0000, {vr(a)}
v_sub_f32 {vr(a+3)}, {vr(a)}, {vr(a+2)}
v_cvt_pk_bf16_f32 {vr(XEXT)}, -{vr(a+2)}, -{vr(a+2)}
v_cvt_pk_bf16_f32 {vr(XEXT+1)}, -{vr(a+3)}, 0""".split('\n')
        it.append(('ds', 'rw', f'ds_write_b32 {vr(vRA)}, {vr(vRSTD)}'))
        for q in range(4): it.append(('ds', 'rt', f'ds_read_b128 {vr(STAT+4*q,4)}, {vr(vRB)} offset:{q*32}'))
        if typ == 1: it.append(f'v_mul_f32 {vr(vRSTD)}, {sr(sLOG2E)}, {vr(vRSTD)}')
        return it

    def wext_items(self, w, tag):
        return [('wlg', tag)] + f"""v_add_f32 {vr(w)}, {vr(w)}, {vr(w+1)}
v_add_f32 {vr(w+2)}, {vr(w+2)}, {vr(w+3)}
v_add_f32 {vr(w)}, {vr(w)}, {vr(w+2)}
v_and_b32 {vr(w+2)}, 0xffff0000, {vr(w)}
v_sub_f32 {vr(w+3)}, {vr(w)}, {vr(w+2)}
v_cvt_pk_bf16_f32 {vr(w)}, {vr(w+2)}, {vr(w+3)}
v_cvt_pk_bf16_f32 {vr(w+1)}, {vr(w+2)}, 0
v_mov_b32 {vr(w+2)}, 0
v_mov_b32 {vr(w+3)}, 0""".split('\n')

    def csp_addr(self, typ):
        self.P(f'v_and_b32 {vr(vT0)}, 0x1f0, {vr(vL16)}\nv_add_u32 {vr(vT0)}, {LDS_CSP + typ*1536}, {vr(vT0)}')

    def phi_addr(self):
        return f"""v_sub_u32 {vr(vVA)}, {vr(vKA)}, {vr(vL16)}
v_and_b32 {vr(vPD)}, 31, {vr(vLANE)}
v_lshl_add_u32 {vr(vVA)}, {vr(vPD)}, 5, {vr(vVA)}
v_lshrrev_b32 {vr(vPD)}, 5, {vr(vLANE)}
v_lshl_add_u32 {vr(vVA)}, {vr(vPD)}, 4, {vr(vVA)}""".split('\n')

    def main_kv(self, L):
        P = self.P; typ = L % 2; o = self.o; XD = o['xd']
        vm, lg = self.vm, self.lg
        V = L > 1 or (L == 1 and o['clr'])
        NR = 3; KVB = vL16 if L > 1 else PKV + 15
        if L == 1: P(f'v_subrev_u32 {vr(vTR1)}, {LDS_WO - LDS_WQ}, {vr(vTR2)}')
        if L == 2: P(f'v_add_u32 {vr(vTR1)}, {LDS_WQ}, {vr(vL16)}\nv_add_u32 {vr(vTR2)}, {LDS_WO}, {vr(vL16)}')
        if L < 2: P(f'v_subrev_u32 {vr(KVB)}, {LDS_WQ}, {vr(vTR1)}')
        def rdk(ks):
            self.w_read(RING + 8*(ks % NR), KVB, LDS_WK + ks*1024, L, ('k', ks))
        def rdv(ks):
            self.w_read(RING + 8*(ks % NR) + 4, KVB, LDS_WV + ks*1024, L, ('v', ks))
        csrd = [('ds', 'cs', f'ds_read_b128 {vr(WEXTK,4)}, {vr(vT0)} offset:512'), ('ds', 'cs', f'ds_read_b128 {vr(WEXTV,4)}, {vr(vT0)} offset:1024')]
        wext = self.wext_items(WEXTK, 'cs') + self.wext_items(WEXTV, 'cs')
        addr = [f'v_add_u32 {vr(vKA)}, {sr(sOWN)}, {vr(vL16)}']
        if typ == 0:
            La = L // 2
            addr += [f's_add_u32 {sr(sK0)}, {sr(sKVW)}, {OFF_KV + La*KV_L}', f's_add_u32 {sr(sK2)}, {sr(sK0)}, 4096']
        else:
            addr += self.phi_addr()
            if o['pw1']: addr += [f's_lshl_b32 {sr(sT0)}, {sr(sMT)}, 2', f'v_add_u32 {vr(PKV+8)}, {sr(sT0)}, {vr(vCNT)}', f'v_mov_b32 {vr(PKV+9)}, {TV_K[L]}']
        extras = []
        def pop(n):
            for _ in range(n):
                if extras: self.item(extras.pop(0))
        finld = f'buffer_load_dwordx2 {vr(STAT,2)}, {vr(STAT+2)}, {sr(sWS,4)}, {sr(sT1)} offen sc1'
        def fincheck():
            lp = P.newlabel('Lfin'); ct = P.newlabel('Lfinc')
            P(waitstr(vm=vm.need('st')))
            P(f'v_cmp_ne_u32 vcc, {sr(sM)}, {vr(STAT+1)}\ns_cbranch_vccnz {lp}')
            P.label(ct)
            def again(_):
                if self.stamps: P(f's_or_b32 s101, s101, {1 << (4 + 6*(L - 1))}')
                P(f'{finld}\ns_waitcnt vmcnt(0)\nv_cmp_ne_u32 vcc, {sr(sM)}, {vr(STAT+1)}\ns_cbranch_vccz {ct}')
                P(f's_sub_u32 {sr(sBUD)}, {sr(sBUD)}, 1\ns_cbranch_scc0 {lp}\ns_mov_b32 {sr(sBUD)}, 0')
            self.ool.append((lp, again, ct))
        D = (o['vlag'] if typ else o['vlaga']) if L else 0
        def vstep(kv):
            if kv == 32: return self.mfma(ACC1, XEXT, WEXTV, ACC1)
            P(waitstr(lg=lg.need(('v', kv))))
            self.mfma(ACC1, XF + 4*kv, RING + 8*(kv % NR) + 4, None if kv == 0 else ACC1)
            if kv + NR < 32: rdv(kv + NR)
        def kstep(ks, pre=None):
            b = RING + 8*(ks % NR)
            P(waitstr(vm=vm.need(('x', ks)) if L > 0 else None, lg=lg.need(('k', ks))))
            self.mfma(ACC0, b, XF + 4*ks, None if ks == 0 else ACC0)
            if pre: pre()
            if ks + NR < 32: rdk(ks + NR)
            if V and ks & 1 and ks > 1: P(self.acc_par(XF + 4*ks - 4, XF + 4*ks, L & 1))
            if L > 0 and ks + XD < 32 and ks >= 2: self.frag_load(sOut, ks + XD); pop(1)
            else: pop(3)
            if ks >= D: vstep(ks - D)
            if L > 0 and o['red'] and ks == o['rk0']:
                P(finld); vm.issue('st')
            if L > 0 and o['st0'] <= ks < o['st0'] + 8 and not o['red']:
                for i in range(2*(ks-o['st0']), 2*(ks-o['st0']) + 2):
                    P(f'buffer_load_dword {vr(STAT+i)}, {vr(vL4)}, {sr(sWS,4)}, {sr(sT1)} offen offset:{i*256} sc1'); vm.issue('st')
            pop(3)
        if L > 0 and not o['b0']:
            ok = P.newlabel('Lwr')
            P(f'v_cmp_gt_u32 vcc, {4*L}, {vr(vT0)}\ns_cbranch_vccz {ok}')
            self.lds_wait(C_WR, 4*L)
            P.label(ok)
            if L == 1 and o['bq']:
                P(f's_lshl_b32 {sr(sT0)}, {sr(sMT)}, 11\ns_add_u32 {sr(sT0)}, {sr(sT0)}, {LDS_WQ}\nv_add_u32 {vr(PKV)}, {sr(sT0)}, {vr(vL16)}')
                bqw = [('ds', 'bq', f'ds_write_b128 {vr(PKV)}, {vr(224+4*u,4)} offset:{cho(u)}') for u in range(8)]
                bqw.append(('ds', 'bq', f'v_mov_b32 {vr(vPD)}, 1\ns_mov_b64 exec, 1\nds_add_u32 {vr(vCNT)}, {vr(vPD)} offset:{4*C_Q}\ns_mov_b64 exec, -1'))
        self.csp_addr(typ)
        if L == 0:
            AD = PKV + 2; X0D = o['x0d']
            P(f"""v_bfe_u32 {vr(AD)}, {vr(vLANE)}, 1, 3
v_xor_b32 {vr(AD)}, {vr(AD)}, v64
v_lshlrev_b32 {vr(AD)}, 4, {vr(AD)}
v_lshl_add_u32 {vr(AD)}, v65, 7, {vr(AD)}
s_and_b32 {sr(sT0)}, {sr(sC)}, 1
s_lshl_b32 {sr(sT0)}, {sr(sT0)}, 6
v_xor_b32 {vr(AD)}, {sr(sT0)}, {vr(AD)}
v_add_u32 {vr(AD)}, {sr(sLA)}, {vr(AD)}
v_xor_b32 {vr(AD+1)}, 32, {vr(AD)}
v_xor_b32 {vr(AD+2)}, 64, {vr(AD)}
v_xor_b32 {vr(AD+3)}, 96, {vr(AD)}
s_mov_b32 {sr(sSEL0)}, 0x3f803f80""")
            for i in range(4): P(f'v_mov_b32 {vr(STAT+i)}, 0')
            for it in addr: self.item(it)
            for g in range(2, X0D): self.x0_load(g)
            if o['xst']:
                P(f"""v_mov_b32 {vr(PKV)}, {vr(AD)}
v_mov_b32 {vr(PKV+1)}, {vr(AD+1)}
s_lshr_b32 {sr(sT2)}, {sr(sC)}, 1
s_sub_u32 {sr(sT2)}, {sr(sT2)}, {sr(sROT)}
s_and_b32 {sr(sT2)}, {sr(sT2)}, 7""")
            def dots(g):
                for i in range(16):
                    r_ = XF + 16*g + i
                    P(f'v_dot2_f32_bf16 {vr(STAT+(i&1))}, {vr(r_)}, {sr(sSEL0)}, {vr(STAT+(i&1))}\nv_dot2_f32_bf16 {vr(STAT+2+(i&1))}, {vr(r_)}, {vr(r_)}, {vr(STAT+2+(i&1))}')
            stat_fold = [f'v_add_f32 {vr(STAT)}, {vr(STAT)}, {vr(STAT+1)}', f'v_add_f32 {vr(STAT+2)}, {vr(STAT+2)}, {vr(STAT+3)}',
                         f'v_permlane32_swap_b32 {vr(STAT)}, {vr(STAT+2)}', f'v_add_f32 {vr(STAT)}, {vr(STAT)}, {vr(STAT+2)}']
            LAG = o['il']
            if LAG:
                P(f'v_mov_b32 {vr(PKV+6)}, 1')
                sig = lambda idx: self.item(('ds', 'sig', f's_mov_b64 exec, 1\nds_add_u32 {vr(vCNT)}, {vr(PKV+6)} offset:{4*idx}\ns_mov_b64 exec, -1'))
                lg.reset()
                def ks0(ks):
                    nonlocal extras
                    if ks == 0:
                        self.lds_check(C_ST, 4)
                        self.stamp(29, 'S0 / W st2')
                        for k in range(NR): rdk(k); rdv(k)
                    pre = None; st = ks // 8 + 1
                    if ks % 8 == 2 and st < 4: extras[0:0] = self.lds_peek(C_ST + st)
                    if ks % 8 == 5 and st < 4: pre = lambda: self.lds_check(C_ST + st, 4)
                    if ks == o['csk']: extras[0:0] = self.lds_peek(C_CS)
                    if ks == o['csk'] + 2:
                        pre = lambda: self.lds_check(C_CS, 4)
                        extras += csrd + ['s_nop 0']*4 + wext
                    if ks == 30: extras[0:0] = self.lds_peek(C_Q)
                    kstep(ks, pre)
                for g in range(8 + LAG):
                    kk = list(range(4*(g - LAG), 4*(g - LAG) + 4)) if g >= LAG else []
                    if g < 8:
                        if g == LAG - 1 or (LAG > 8 and g == 7):
                            for it in self.lds_peek(C_ST): self.item(it)
                        lx = P.newlabel('Lx')
                        P(f's_cmp_lg_u32 {sr(sT2)}, {g}')
                        P(waitstr(vm=vm.need(('x', g))))
                        P(f's_cbranch_scc1 {lx}\nds_read_b128 {vr(XRES,4)}, {vr(PKV)} offset:{(g%3)*4096}\nds_read_b128 {vr(XRES+4,4)}, {vr(PKV+1)} offset:{(g%3)*4096}')
                        P.label(lx)
                        for s_ in range(4): P(f'ds_read_b128 {vr(XF+16*g+4*s_,4)}, {vr(AD+s_)} offset:{(g%3)*4096}')
                        lg.issue(('xg', g), 4)
                        if kk and kk[0] > 0: ks0(kk.pop(0))
                        P(waitstr(lg=lg.need(('xg', g))))
                        if g + 3 < 8: self.x0_load(g + 3)
                        if g == o['wgo'] - 1: sig(C_WGO)
                        if g == o['qgo']: sig(C_CSQ)
                        if g == 7: sig(C_XDONE)
                        if g in (0, 3, 5, 7): self.stamp({0: 2, 3: 15, 5: 23, 7: 1}[g], {0: 'x g0 / W go', 3: 'x g3 / W st0', 5: 'x g5 / W st1', 7: 'x0 / W st3'}[g])
                        if g == 7 or not kk or kk[0] == 0:
                            dots(g)
                            if g == 7: extras += stat_fold + self.stats_final(typ)
                            for k in kk: ks0(k)
                        else:
                            for k in kk: ks0(k)
                            dots(g)
                    else:
                        for k in kk: ks0(k)
                pop(100)
            for g in range(0 if LAG else 8):
                if o['xst']: P(f's_cmp_lg_u32 {sr(sT2)}, {g}')
                P(waitstr(vm=vm.need(('x', g))))
                if o['xst']:
                    lx = P.newlabel('Lx')
                    P(f's_cbranch_scc1 {lx}\nds_read_b128 {vr(XRES,4)}, {vr(PKV)} offset:{(g%4)*4096}\nds_read_b128 {vr(XRES+4,4)}, {vr(PKV+1)} offset:{(g%4)*4096}')
                    P.label(lx)
                for s_ in range(4): P(f'ds_read_b128 {vr(XF+16*g+4*s_,4)}, {vr(AD+s_)} offset:{(g%4)*4096}')
                if g: P('s_waitcnt lgkmcnt(4)')
                if g + X0D < 8: self.x0_load(g + X0D)
                if g: dots(g - 1)
                if g == o['wgo'] - 1: self.lds_signal(C_WGO)
                if g in (0, 3, 5): self.stamp({0: 2, 3: 15, 5: 23}[g], {0: 'x g0 / W go', 3: 'x g3 / W st0', 5: 'x g5 / W st1'}[g])
            if not LAG:
                self.lds_signal(C_XDONE)
                lg.reset()
                for it in self.lds_peek(C_ST): self.item(it)
                dots(7)
                self.stamp(1, 'x0 / W st3')
                self.lds_check(C_ST, 4)
                self.stamp(29, 'S0 / W st2')
                for ks in range(NR): rdk(ks); rdv(ks)
                P(f'v_add_f32 {vr(STAT)}, {vr(STAT)}, {vr(STAT+1)}\nv_add_f32 {vr(STAT+2)}, {vr(STAT+2)}, {vr(STAT+3)}')
                P(f'v_permlane32_swap_b32 {vr(STAT)}, {vr(STAT+2)}\nv_add_f32 {vr(STAT)}, {vr(STAT)}, {vr(STAT+2)}')
                extras += self.stats_final(typ)
                pop(10)
                for ks in range(32):
                    pre = None
                    st = ks // 8 + 1
                    if ks % 8 == 2: extras[0:0] = self.lds_peek(C_ST + st if st < 4 else C_CS)
                    if ks % 8 == 5 and st < 4: pre = lambda: self.lds_check(C_ST + st, 4)
                    if ks == 28:
                        pre = lambda: self.lds_check(C_CS, 4)
                        extras += csrd + self.lds_peek(C_Q) + ['s_nop 0']*3 + wext
                    kstep(ks, pre)
                pop(100)
        else:
            vm.reset(); lg.reset()
            redo = P.newlabel('Lkvredo')
            if o['red']: P(f's_lshr_b32 {sr(sT1)}, {sr(sRB)}, 6\ns_add_u32 {sr(sT1)}, {sr(sT1)}, {OFF_FIN}')
            else: P(f's_lshr_b32 {sr(sT1)}, {sr(sRB)}, 3\ns_add_u32 {sr(sT1)}, {sr(sT1)}, {OFF_ST}')
            for it in addr: self.item(it)
            if o['b0']: P('s_barrier')
            self.stamp(14 + L*14 if L < 3 else 57, f'L{L} B0')
            P.label(redo)
            for it in csrd: self.item(it)
            for ks in range(NR): rdk(ks); rdv(ks)
            extras += wext
            if o['red']: extras += [f'v_lshlrev_b32 {vr(STAT+2)}, 3, {vr(vLANE)}', f's_add_u32 {sr(sM)}, {sr(sTAG)}, {L}']
            if o['own']: kstep(0); kstep(1)
            S = self.probe(sOut, 0, L & 1, XD) if L > 1 and not o['hx'] else self.first_hop(0, OFF_XFLAG + 0x2000, 60, L & 1 if V else None, L - 1, 1 if (L > 1 and o['prex']) else None)
            self.stamp(2 + L*14, f'L{L} xflags')
            for ks in range(2, XD + 2): self.frag_load(sOut, ks)
            if L == 1 and o['bq']:
                for it in bqw: self.item(it)
            late = [('wvm', 'st')] + [self.acc_par(STAT + 2*i, STAT + 2*i + 1, L & 1) for i in range(8) if V]
            for step in (8, 4, 2, 1):
                for i in range(step): late.append(f'v_add_f32 {vr(STAT+i)}, {vr(STAT+i)}, {vr(STAT+i+step)}')
            if o['red']: late = [('fn', fincheck)]
            late += self.stats_final(typ)
            for ks in range(2 if o['own'] else 0, 32):
                if ks == (o['rk1'] if o['red'] else 8 + o['st0'] + XD): extras += late
                kstep(ks)
                if V and ks in (o['ev'], o['ev2']): self.verify(L & 1, redo)
            pop(100)
            if V: self.verify(L & 1, redo)
        self.mfma(ACC0, WEXTK, XEXT, ACC0)
        rest = list(range(32 - D, 33))
        def vt(n=1):
            for _ in range(n):
                if rest: vstep(rest.pop(0))
        vt()
        return vt

    def w_read(self, dst, base, off, L, tag, qkv=True):
        if L > 1:
            self.P(f'ds_read_b128 {vr(dst,4)}, {vr(base)} offset:{off}'); self.lg.issue(tag)
        else:
            d = 256 if (L == 0 and qkv) else 512
            self.P(f'ds_read_b64_tr_b16 {vr(dst,2)}, {vr(base)} offset:{off}\nds_read_b64_tr_b16 {vr(dst+2,2)}, {vr(base)} offset:{off+d}'); self.lg.issue(tag, 2)

    def q_prefetch(self, L, NS=5):
        for ks in range(NS): self.q_rd(L, ks)

    def q_rd(self, L, ks, NS=5):
        self.w_read(RING + 4*(ks % NS), vTR1, ks*1024, L, ('w', ks))

    def main_qpass(self, L, acc, fill, at=None, pre_write=None, rate=4):
        P = self.P; typ = L % 2; lg = self.lg; NS = 5
        fill = list(fill)
        for ks in range(32):
            P(waitstr(lg=lg.need(('w', ks))))
            self.mfma(acc, RING + 4*(ks % NS), XF + 4*ks, None if ks == 0 else acc)
            if ks + NS < 32: self.q_rd(L, ks + NS)
            n = 0
            while fill and n < rate:
                it = fill.pop(0); self.item(it)
                if isinstance(it, str) or it[0] == 'ds': n += 1
            if at and ks in at: at[ks]()
        for it in fill: self.item(it)
        self.mfma(acc, WEXTQ, XEXT, acc)
        if at and 32 in at: at[32]()
        order = (4, 5, 6, 7, 0, 1, 2, 3)
        for p in order:
            if typ == 0 and p % 4 == 0:
                for q in range(p, p + 4): P(f'v_pk_mul_f32 {vr(acc+2*q,2)}, {vr(acc+2*q,2)}, {vr(vRSTD,2)} op_sel_hi:[1,0]')
            P(f'v_cvt_pk_bf16_f32 {vr(aQ+p)}, {vr(acc+2*p)}, {vr(acc+2*p+1)}')
            if p == 7:
                if pre_write: pre_write()
                P(f'ds_write_b128 {vr(vKA)}, {vr(aQ+4,4)} offset:5120')

    def tile_addr(self, sbase):
        return f"""s_lshl_b32 {sr(sT1)}, {sr(sHS)}, 10
s_add_u32 {sr(sT1)}, {sr(sT1)}, {sr(sbase)}
v_add_u32 {vr(vKA)}, {sr(sT1)}, {vr(vL16)}
s_lshl_b32 {sr(sT1)}, {sr(sHS)}, 8
v_xor_b32 {vr(vVA)}, {sr(sT1)}, {vr(vL16)}
v_add_u32 {vr(vVA)}, {sr(sbase)}, {vr(vVA)}"""

    def trickle_setup(self):
        self.P(f's_mov_b32 {sr(sDM)}, 4\ns_mov_b32 {sr(sDG)}, {sr(sG0)}\ns_add_u32 {sr(sDL)}, {sr(sLA)}, {sr(sS0)}')

    def trickle(self, keep=0):
        P = self.P; sk = P.newlabel('Lsk')
        P(f's_cmp_le_u32 {sr(sDM)}, {keep}\ns_cbranch_scc1 {sk}\ns_mul_i32 {sr(sT0)}, {sr(sDG)}, 3')
        for e in range(2):
            for nt in (1, 2):
                P(f's_add_u32 m0, {sr(sDL)}, {NT_LDS[nt] + e*1024}\ns_add_u32 {sr(sT1)}, {sr(sT0)}, {e*49152 + nt*1024}')
                P(f'buffer_load_dwordx4 {vr(vDW)}, {sr(sWB,4)}, {sr(sT1)} offen lds')
        P(f"""s_add_u32 {sr(sDL)}, {sr(sDL)}, 8192
s_and_b32 {sr(sDL)}, {sr(sDL)}, 0x7fff
s_add_u32 {sr(sDG)}, {sr(sDG)}, 0x20000
s_and_b32 {sr(sDG)}, {sr(sDG)}, 0x7ffff
s_sub_u32 {sr(sDM)}, {sr(sDM)}, 1""")
        P.label(sk)

    def attn_loop(self, cfirst, trickle=False):
        P = self.P; lp = P.newlabel('Latt')
        if self.o['trunc']: pk = lambda d, e: f'v_perm_b32 {vr(d)}, {vr(e+1)}, {vr(e)}, {sr(sPERM)}'
        else: pk = lambda d, e: f'v_cvt_pk_bf16_f32 {vr(d)}, {vr(e)}, {vr(e+1)}'
        rdv = f's_mov_b64 exec, {sr(sLO,2)}\nds_read_b128 {vr(VV,4)}, {vr(vVA)} offset:2048\nds_read_b128 {vr(VV+4,4)}, {vr(vVA)} offset:3072\ns_mov_b64 exec, -1'
        P(f'ds_read_b128 {vr(aK,4)}, {vr(vKA)}'); P(rdv)
        P(f'v_add_u32 {vr(vKA)}, {sr(sSTEP)}, {vr(vKA)}\nv_add_u32 {vr(vVA)}, {sr(sSTEP)}, {vr(vVA)}\ns_waitcnt lgkmcnt(2)')
        cfirst()
        P(f'ds_read_b128 {vr(aK,4)}, {vr(vKA)}\nv_add_u32 {vr(vKA)}, {sr(sSTEP)}, {vr(vKA)}\ns_nop 9')
        P.label(lp)
        for i in range(8): P(f'v_exp_f32 {vr(aE+i)}, {vr(aS+i)}')
        for p in range(4): P(pk(aP + p, aE + 2*p))
        for i in range(8, 10): P(f'v_exp_f32 {vr(aE+i-8)}, {vr(aS+i)}')
        P('s_waitcnt lgkmcnt(0)')
        self.mfma(aO, VV, aP, aO)
        for i in range(10, 16): P(f'v_exp_f32 {vr(aE+i-8)}, {vr(aS+i)}')
        self.mfma(aS, aK, aQ, None)
        P(f'ds_read_b128 {vr(aK,4)}, {vr(vKA)}')
        for p in range(4): P(pk(aP + 4 + p, aE + 2*p))
        P(f'v_add_u32 {vr(vKA)}, {sr(sSTEP)}, {vr(vKA)}\ns_sub_u32 {sr(sCNT)}, {sr(sCNT)}, 1')
        self.mfma(aO, VV + 4, aP + 4, aO)
        P(rdv)
        if trickle and self.o['trk']: self.trickle(4 - self.o['trk'])
        P(f'v_add_u32 {vr(vVA)}, {sr(sSTEP)}, {vr(vVA)}\ns_cmp_lg_u32 {sr(sCNT)}, 0\ns_cbranch_scc1 {lp}')

    def v_lanes(self):
        return [f'v_mov_b32 {vr(vSTV)}, {LDS_ONES - 2048}', f'v_cndmask_b32 {vr(vVA)}, {vr(vSTV)}, {vr(vVA)}, {sr(sLO,2)}',
                f'v_mov_b32 {vr(vSTV)}, {sr(sSTEP)}', f'v_cndmask_b32 {vr(vSTV)}, 0, {vr(vSTV)}, {sr(sLO,2)}']

    def attn2(self, M, first, trickle=False):
        P = self.P; lp = P.newlabel('Latt'); dn = P.newlabel('Lattd')
        pk = lambda d, e: f'v_perm_b32 {vr(d)}, {vr(e+1)}, {vr(e)}, {sr(sPERM)}'
        ex = lambda S, a, b: P('\n'.join(f'v_exp_f32 {vr(S+i)}, {vr(S+i)}' for i in range(a, b)))
        rdk = f'ds_read_b128 {vr(aK,4)}, {vr(vKA)}\nv_add_u32 {vr(vKA)}, {sr(sSTEP)}, {vr(vKA)}'
        P(rdk.replace(vr(aK,4), vr(aP,4))); P(rdk); P(f'ds_read_b128 {vr(VV,4)}, {vr(vVA)} offset:2048\ns_waitcnt lgkmcnt(2)')
        first()
        P('s_waitcnt lgkmcnt(1)\ns_nop 6')
        P.label(lp)
        for half, (S, N) in enumerate(((M, aS), (aS, M))):
            P('s_waitcnt lgkmcnt(2)')
            self.mfma(N, aK, aQ, None)
            P(rdk)
            ex(S, 0, 4)
            P('s_waitcnt lgkmcnt(2)')
            self.mfma(aO, VV + 4, aP + 4, aO)
            P(f'ds_read_b128 {vr(VV+4,4)}, {vr(vVA)} offset:3072\nv_add_u32 {vr(vVA)}, {vr(vSTV)}, {vr(vVA)}')
            ex(S, 4, 10)
            for p in range(4): P(pk(aP + p, S + 2*p))
            ex(S, 10, 12)
            P('s_waitcnt lgkmcnt(2)')
            self.mfma(aO, VV, aP, aO)
            P(f'ds_read_b128 {vr(VV,4)}, {vr(vVA)} offset:2048')
            if trickle and self.o['trk']: self.trickle(4 - self.o['trk'])
            ex(S, 12, 16)
            P(f's_sub_u32 {sr(sCNT)}, {sr(sCNT)}, 1')
            for p in range(4): P(pk(aP + 4 + p, S + 8 + 2*p))
            P(f's_cbranch_scc1 {dn}' if half == 0 else f's_cbranch_scc0 {lp}')
        P.label(dn)

    def publish_o_addr(self, L):
        return [f's_add_u32 {sr(sK0)}, {sr(sOW)}, {OFF_O}'] + ([f's_add_u32 {sr(sK1)}, {sr(sOF)}, {OFF_OFLAG}'] if L == 0 or self.o['ho'] else [])

    def publish_o(self, L, O, eps):
        P = self.P
        if eps: P(f'v_add_f32 {vr(O+8)}, {f2u(eps):#x}, {vr(O+8)}')
        P(f'v_rcp_f32 {vr(O+8)}, {vr(O+8)}')
        if L % 2 == 0 and self.o['omul']:
            for i in range(8): P(f'v_mul_f32 {vr(O+i)}, {vr(O+8)}, {vr(O+i)}')
        else:
            for p in range(4): P(f'v_pk_mul_f32 {vr(O+2*p,2)}, {vr(O+2*p,2)}, {vr(O+8,2)} op_sel_hi:[1,0]')
        for p in range(4): P(f'v_cvt_pk_bf16_f32 {vr(aP+p)}, {vr(O+2*p)}, {vr(O+2*p+1)}')
        P(self.set_par(aP, 1 - (L & 1)))
        def emit(sc1):
            P(f'buffer_store_dwordx4 {vr(aP,4)}, {vr(vL16)}, {sr(sWS,4)}, {sr(sK0)} offen' + (' sc1' if sc1 else (['', ' nt', ' sc1', ' sc0'][self.o.get('o3', 0)] if L == 3 or self.o.get('nta') else '')))
            if L == 0: self.flag(sK1, sTAG, sc1, wait=None if self.o['clr'] else 's_waitcnt vmcnt(0)')
            elif self.o['ho'] and (sc1 or not self.o['eb' if L & 1 else 'ea']): self.flag(sK1, sTAG, sc1, add=L)
        self.two_way(emit)

    def main_outproj(self, L):
        P = self.P; vm, lg = self.vm, self.lg; OD = self.o['od'] if L != 1 else self.o['od1']; par = 1 - (L & 1)
        vm.reset(); lg.reset()
        redo = P.newlabel('Lopredo')
        PO = self.o['preo'] and L > 0
        if PO: P(f'v_and_b32 v111, 124, {vr(vL4)}\nv_add_u32 v111, {OFF_OFLAG}, v111\nbuffer_load_dword v103, v111, {sr(sWS,4)}, {sr(sXF)} offen sc1')
        if L == 0:
            if self.o['plds']: self.wphi_load(170); P('s_waitcnt lgkmcnt(0)')
            for op in ['s_waitcnt vmcnt(2)' if self.o['clr'] else 's_waitcnt vmcnt(1)'] + [f'v_permlane32_swap_b32 {vr(XRES+a)}, {vr(XRES+b)}' for a, b in SW4] + self.wphi_pack(170): P(op)
        for i in range(4): P(f'v_mov_b32 {vr(XF+i)}, {vr(aP+i)}')
        NS = 6; RG = 24 if L == 0 and self.o['bq'] else 32; V = L or self.o['clr']
        def rd(ks):
            self.w_read(RING + 4*(ks % NS), vTR2, ks*1024, L, ('w', ks), qkv=False)
        self.publish_x_addr(L + 1)
        HB = self.o['hb']
        if HB: P(f's_lshl_b32 {sr(sT0)}, {sr(sMT)}, 2\nv_add_u32 v100, {sr(sOWN)}, {vr(vL16)}\nv_add_u32 v101, {sr(sT0)}, {vr(vCNT)}')
        P.label(redo)
        for ks in range(NS): rd(ks)
        self.unpack_res()
        S = self.probe(sWS, OFF_O, par, OD) if L > 0 and not self.o['ho'] else self.first_hop(OFF_O, OFF_OFLAG, 124, par if V else None, L, 0 if PO else None)
        SG = self.o['sg'] if L == 1 else 0
        EX = self.o['ex'] if L in (1, 2) else 0
        if SG:
            l = P.newlabel('Lx'); lw = P.newlabel('Lx')
            P(f's_cmp_lt_u32 {sr(sMT)}, 2\ns_cbranch_scc1 {l}'); P.label(lw)
            P(f'ds_read_b32 {vr(vT0)}, {vr(vCNT)} offset:{4*C_WGO}\ns_waitcnt lgkmcnt(0)\nv_cmp_gt_u32 vcc, 6, {vr(vT0)}\ns_cbranch_vccnz {lw}')
            P.label(l)
        self.stamp(11 + L*14, f'L{L} oflags')
        for ks in range(1 + HB, OD + 1 + HB): self.frag_load(sWS, ks)
        if HB:
            lw = P.newlabel('Lhb'); P.label(lw)
            P(f'ds_read_b32 v102, v101 offset:{4*C_ST}\nds_read_b128 {vr(XF+4,4)}, v100 offset:5120\ns_waitcnt lgkmcnt(0)\nv_cmp_gt_u32 vcc, {TV_O[L]}, v102\ns_cbranch_vccnz {lw}')
            lg.reset()
        for ks in range(32):
            P(waitstr(vm=vm.need(('x', ks)), lg=lg.need(('w', ks))))
            self.mfma(ACC0, RING + 4*(ks % NS), XF + 4*(ks % RG), ACC0)
            if ks + OD < 32 and ks > HB: self.frag_load(sWS, ks + OD, RG)
            if ks + NS < 32: rd(ks + NS)
            if SG and ks == SG - 1: self.item(('ds', 'sg', f's_mov_b64 exec, 2\nds_add_u32 {vr(vCNT)}, {vr(vLANE)} offset:{4*C_WGO}\ns_mov_b64 exec, -1'))
            if V and ks & 1: P(self.acc_par(XF + 4*ks - 4, XF + 4*ks, par))
            if V and ks in (self.o['ev'], self.o['ev2']): self.verify(par, redo)
            if self.o['prex'] and L in (1, 2) and ks == 25: P(f'v_and_b32 v111, 60, {vr(vL4)}\nv_add_u32 v111, {OFF_XFLAG + 0x2000}, v111')
            if EX and ks == 24:
                for op in self.hint_prep(106, L): P(op)
            if EX and ks == EX: self.hint(106, sK2); vm.issue('h')
        if V: self.verify(par, redo)
        if EX == 32: self.hint(106, sK2)
        self.stamp(12 + L*14, f'L{L} outproj')
        nxt = L + 1 < self.nl and not self.o['b0']
        if nxt: P(f'ds_read_b32 {vr(vT0)}, {vr(vCNT)} offset:{4*C_WR}')
        self.publish_x(L + 1)
        if nxt: self.lds_signal(C_XDONE)
        self.stamp(13 + L*14, f'L{L} xpub')

    def aux_head(self, L):
        P = self.P
        if self.o['b0']: P('s_barrier')
        else: self.lds_signal(C_WR)
        if L + 1 < self.nl: self.code_prefetch(f'L_main_{L+1}')
        if L == 3: return
        if L == 2: return self.aux_head2(L)
        if L > 1 and not self.o['b0']: self.lds_wait(C_XDONE, 4 + 4*L, self.o['lsleep'])
        if L == 1:
            self.lds_to_regs(LDS_WO, PARK['o'], True); P('s_waitcnt vmcnt(0) lgkmcnt(0)')
            if self.o['bq']: self.lds_wait(C_Q, 8, self.o['lsleep'])
            if not self.o['bql']: self.relayout(1, (0,))
        else: self.swap_region('o', L + 1 < self.nl, L == 2)

    def aux_head2(self, L):
        if L == 1 and self.o['bql']: self.lds_wait(C_XDONE, 4 + self.o['bql']*2 + 2 if self.o['bql'] == 1 else 6, self.o['lsleep'])
        if self.o['red']: self.stats_reduce(L)
        if L == 1 and self.o['bql']:
            self.dma_w(1, (0,)); self.P('s_waitcnt vmcnt(0)')
            self.relayout(1, (0,), tmp=48, ntmp=4)
        if self.o['chain'] and L == 2:
            for i in range(32): self.P(f'v_mov_b32 {vr(PARK[0]+i)}, {vr(32+i)}')
        if L > 1:
            if not self.o['b0']: self.lds_wait(C_XDONE, 4 + 4*L, self.o['lsleep'])
            self.swap_region('o', L + 1 < self.nl, L == 2)

    def stats_reduce(self, L):
        P = self.P; sk = P.newlabel('Lx'); lp = P.newlabel('Lred'); dn = P.newlabel('Lredd'); R = 64; par = L & 1
        P(f"""s_lshl_b32 {sr(sT0)}, {sr(sMT)}, 2
s_cmp_lg_u32 {sr(sT0)}, {sr(sC)}
s_cbranch_scc1 {sk}
s_setprio 3
v_and_b32 {vr(vPA)}, 60, {vr(vL4)}
s_add_u32 {sr(sT2)}, {sr(sXF)}, {OFF_XFLAG + 0x2000}
s_add_u32 {sr(sT0)}, {sr(sTAG)}, {L - 1}
s_lshr_b32 {sr(sT1)}, {sr(sRB)}, 3
s_add_u32 {sr(sT1)}, {sr(sT1)}, {OFF_ST}
s_lshr_b32 {sr(sT3)}, {sr(sRB)}, 6
s_add_u32 {sr(sT3)}, {sr(sT3)}, {OFF_FIN}
v_and_b32 {vr(R+18)}, 15, {vr(vLANE)}
v_lshrrev_b32 {vr(R+17)}, 4, {vr(vLANE)}
v_lshl_add_u32 {vr(R+18)}, {vr(R+18)}, 2, {vr(R+17)}
v_lshlrev_b32 {vr(R+18)}, 3, {vr(R+18)}
v_add_u32 {vr(R+17)}, {sr(sTAG)}, {L}""")
        self.poll(sT2, val=sT0)
        if self.o['rsl'] and L > 1: P(f's_sleep {self.o["rsl"]}')
        P.label(lp)
        for i in range(4): P(f'buffer_load_dwordx4 {vr(R+4*i,4)}, {vr(vL16)}, {sr(sWS,4)}, {sr(sT1)} offen offset:{i*1024} sc1')
        P(f'v_mov_b32 {vr(vPD)}, {par}')
        for i in range(4):
            P(f's_waitcnt vmcnt({3 - i})'); P(self.acc_par(R + 4*i, R + 4*i + 1, par)); P(self.acc_par(R + 4*i + 2, R + 4*i + 3, par))
            if i:
                for k in range(4): P(f'v_add_f32 {vr(R+k)}, {vr(R+k)}, {vr(R+4*i+k)}')
        P(self.test_par(par))
        P(f'v_permlane32_swap_b32 {vr(R)}, {vr(R+2)}\nv_permlane32_swap_b32 {vr(R+1)}, {vr(R+3)}\nv_add_f32 {vr(R)}, {vr(R)}, {vr(R+2)}\nv_add_f32 {vr(R+1)}, {vr(R+1)}, {vr(R+3)}')
        P(f'v_permlane16_swap_b32 {vr(R)}, {vr(R+1)}\nv_add_f32 {vr(R+16)}, {vr(R)}, {vr(R+1)}\ns_cbranch_vccz {dn}')
        P(f's_sub_u32 {sr(sBUD)}, {sr(sBUD)}, 1\ns_cbranch_scc0 {lp}\ns_mov_b32 {sr(sBUD)}, 0')
        P.label(dn)
        self.two_way(lambda sc1: P(f'buffer_store_dwordx2 {vr(R+16,2)}, {vr(R+18)}, {sr(sWS,4)}, {sr(sT3)} offen' + (' sc1' if sc1 else '')))
        P('s_setprio 0')
        P.label(sk)

    def aux_tail(self, L):
        P = self.P
        if self.o['hb']:
            P(f"""v_add_u32 v64, {sr(sOWN)}, {vr(vL16)}
s_lshl_b32 {sr(sT0)}, {sr(sQT)}, 2
ds_write_b128 v64, {vr(aP,4)} offset:5120
v_add_u32 v65, {sr(sT0)}, {vr(vCNT)}
v_mov_b32 v66, {TV_O[L]}
ds_write_b32 v65, v66 offset:{4*C_ST}""")
        if L + 1 >= self.nl:
            if self.o['hb']: P('s_waitcnt lgkmcnt(0)')
            if self.o.get('wb'):
                lw = P.newlabel('Lx')
                P(f's_lshr_b32 {sr(sT0)}, s2, {3 if self.o["wb"] == 1 else 8}\ns_or_b32 {sr(sT0)}, {sr(sT0)}, {sr(sMT)}\ns_cmp_lg_u32 {sr(sT0)}, 0\ns_cbranch_scc1 {lw}')
                P('s_waitcnt vmcnt(0)\ns_sleep 8\nbuffer_wbl2 sc1\ns_waitcnt vmcnt(0)')
                P.label(lw)
            return
        if L % 2 == 0: wait_att = lambda: self.lds_wait(C_ATT, 8*(L//2 + 1), self.o['lsleep'])
        else: wait_att = lambda: None
        if L == 0:
            lp = P.newlabel('Lx'); P.label(lp)
            self.trickle()
            P(f's_cmp_lg_u32 {sr(sDM)}, 0\ns_cbranch_scc1 {lp}')
            self.wphi_load()
            if self.o['bq'] or self.o['bql']: P('s_waitcnt vmcnt(0) lgkmcnt(0)')
            else:
                wait_att()
                self.dma_w(1, (0,))
                P('s_waitcnt vmcnt(8) lgkmcnt(0)')
            for op in self.wphi_pack(): P(op)
            self.relayout(1, (1, 2))
            if self.o['bq'] or self.o['bql']: wait_att()
            return
        save = L + 2 < self.nl
        if L == 1:
            for st in range(4): P(f's_add_u32 {sr(sT0)}, {sr(sS0)}, {st*8192}\ns_and_b32 {sr(sT0)}, {sr(sT0)}, 0x7fff\nv_add_u32 {vr(64+st)}, {sr(sT0)}, {vr(vCH)}')
        if self.o['chain'] and L == 1:
            dst = 32
            for nt in (1, 2, 0):
                self.lds_to_regs(NT_LDS[nt], dst, True)
                self.regs_to_lds(NT_LDS[nt], PARK[nt], True)
                dst = PARK[nt]
            return
        if self.o['chain'] and L == 2:
            self.regs_to_lds(LDS_WK, PARK[0]); self.regs_to_lds(LDS_WV, PARK[1])
            wait_att()
            self.regs_to_lds(LDS_WQ, PARK[2])
            return
        self.swap_region(1, save, L == 1); self.swap_region(2, save, L == 1)
        wait_att()
        self.swap_region(0, save, L == 1)

    def layerA(self, L):
        P = self.P; sb = L * 14; o = self.o; lg = self.lg
        j1 = f'L_j1_{L}'; j2 = f'L_j2_{L}'; ax2 = f'L_ax2_{L}'; ax3 = f'L_ax3_{L}'
        P.label(f'L_main_{L}')
        vt = self.main_kv(L)
        self.stamp(3 + sb, f'L{L} kvpass')
        if L == 0: self.lds_check(C_Q, 4)
        if L and o['vlaga']:
            vt()
            for p in range(8):
                P(f'v_mul_f32 {vr(ACC0+2*p)}, {vr(vRSTD)}, {vr(ACC0+2*p)}\nv_mul_f32 {vr(ACC0+2*p+1)}, {vr(vRSTD)}, {vr(ACC0+2*p+1)}')
                P(f'v_cvt_pk_bf16_f32 {vr(PKV+p)}, {vr(ACC0+2*p)}, {vr(ACC0+2*p+1)}')
                if p & 1: vt()
            vt(99)
            self.q_prefetch(L)
            P(waitstr(lg=lg.need('rt')))
        else:
            self.q_prefetch(L)
            P(waitstr(lg=lg.need('rt')))
            for p in range(8):
                P(f'v_pk_mul_f32 {vr(ACC0+2*p,2)}, {vr(ACC0+2*p,2)}, {vr(vRSTD,2)} op_sel_hi:[1,0]')
            for p in range(8): P(f'v_cvt_pk_bf16_f32 {vr(PKV+p)}, {vr(ACC0+2*p)}, {vr(ACC0+2*p+1)}')
        st = lambda f: f'buffer_store_dwordx4 {vr(PKV+4*f,4)}, {vr(vL16)}, {sr(sWS,4)}, {sr(sK0)} offen offset:{f*1024}{MODS[o["sm"]]}'
        fill = [st(0), st(1)]
        for hf in range(2):
            fill += [f'v_mul_f32 {vr(ACC1+i)}, {vr(STAT+i)}, {vr(ACC1+i)}' for i in range(8*hf, 8*hf + 8)]
            fill += [f'v_cvt_pk_bf16_f32 {vr(PKV+8+p)}, {vr(ACC1+2*p)}, {vr(ACC1+2*p+1)}' for p in range(4*hf, 4*hf + 4)]
            fill.append(st(2 + hf))
        fill += self.checksum(vPD, PKV, 16) + [f'buffer_store_dword {vr(vPD)}, {vr(vL4)}, {sr(sWS,4)}, {sr(sK2)} offen{MODS[o["sm"]]}']
        if o['vfirst']:
            P(st(0)); P(st(1))
            for hf in range(2):
                for i in range(8*hf, 8*hf + 8, 2): P(f'v_pk_mul_f32 {vr(ACC1+i,2)}, {vr(STAT+i,2)}, {vr(ACC1+i,2)}')
                for p in range(4*hf, 4*hf + 4): P(f'v_cvt_pk_bf16_f32 {vr(PKV+8+p)}, {vr(ACC1+2*p)}, {vr(ACC1+2*p+1)}')
                P(st(2 + hf))
            fill = fill[-9:]
        fill += [('ds', 'own', f'ds_write_b128 {vr(vKA)}, {vr(PKV+4*f,4)} offset:{f*1024}') for f in range(4)]
        if L == 0 and o['early']:
            fill.append(('ds', 'kd', f'v_mov_b32 {vr(vPD)}, 1\ns_mov_b64 exec, 1\nds_add_u32 {vr(vCNT)}, {vr(vPD)} offset:{4*C_CS}\ns_mov_b64 exec, -1'))
        m0 = self.mask_ops(0, lean=True)
        if L == 0: fill += m0[:4] + self.lds_peek(C_CSQ) + m0[4:16] + [('fn', lambda: self.lds_check(C_CSQ, 8 if o['il'] else 4))]
        else: fill += m0[:16]
        fill += [('ds', 'cs', f'ds_read_b128 {vr(WEXTQ,4)}, {vr(vT0)}')] + m0[16:]
        fill += [f'v_mul_f32 {vr(vRSTD)}, {f2u(0.25*LOG2E):#x}, {vr(vRSTD)}'] + self.wext_items(WEXTQ, 'cs')
        def halo_loads(m=' sc1'):
            for t_, sh in ((0, sH1), (1, sH2)):
                P(f's_add_u32 m0, {sr(sHL)}, {t_*4096}')
                for f in range(4): P(f'buffer_load_dwordx4 {vr(vL16)}, {sr(sWS,4)}, {sr(sh)} offen offset:{f*1024}{m} lds')
                P(f'buffer_load_dword {vr(65+t_)}, v67, {sr(sWS,4)}, {sr(sh)} offen{m}')
        La = L // 2; sHL = sM + 6
        M1L = L == 0 and o['m1l']
        if not M1L: fill += self.mask_ops(1)
        AT2 = o['at2']
        common = self.publish_o_addr(L) + [f's_add_u32 {sr(sCNT)}, {sr(sQT)}, {1 - AT2}', f's_mov_b32 {sr(sSTEP)}, {-OWN_ST}']
        common += [f's_add_u32 {sr(sH1)}, {sr(sHB)}, {OFF_KV + La*KV_L}', f's_add_u32 {sr(sH2)}, {sr(sH1)}, {16*KV_REC}',
                   f's_lshl_b32 {sr(sHL)}, {sr(sMT)}, 13', f's_add_u32 {sr(sHL)}, {sr(sHL)}, {LDS_T}', f'v_add_u32 v67, 4096, {vr(vL4)}']
        p1 = f's_cmp_lt_u32 {sr(sQT)}, 2' if o['p1'] else f's_cmp_ge_u32 {sr(sQT)}, 2'
        pre2 = (self.v_lanes() + [f'v_mov_b32 {vr(aP+4+i)}, 0' for i in range(4)]) if AT2 else []
        def gap32():
            for it in common + [f'v_mov_b32 {vr(vVA)}, {vr(vKA)}'] + pre2: P(it)
            self.mfma(aO, aP + 4, aP + 4, None)
        at = {32: gap32}
        if L == 2 and o.get('fine'):
            self.stamp(32, 'L2 Kepi'); lg.reset()
            at[12] = lambda: (self.stamp(43, 'L2 q12'), lg.reset()); at[31] = lambda: (self.stamp(51, 'L2 q31'), lg.reset())
        self.main_qpass(L, ACC0, fill, at=at, rate=o['qrate'] if L else o['qr0'])
        if o['prio']: self.prio_if(p1)
        self.stamp(5 + sb, f'L{L} preB1')
        P(f's_waitcnt lgkmcnt(0)\ns_barrier')
        P(f's_branch {j1}')
        P.label(f'L_aux_{L}')
        if L > 0:
            self.aux_head(L)
            for op in self.mask_ops(0) + self.mask_ops(1): P(op)
        else:
            self.trickle_setup()
            if o['early']:
                self.lds_wait(C_CS, 8, 1)
                for _ in range(o['early']): self.trickle()
            if o['clr']:
                self.hello_check()
                if o['clr'] == 1: self.clear_lines(aO)
            else: self.hello_load()
        P(self.tile_addr(sOWN))
        for it in common + pre2: P(it)
        if o['prio']: self.prio_if(p1)
        self.stamp(5 + sb, f'L{L} preB1')
        P('s_barrier')
        P(f'ds_read_b128 {vr(aQ,4)}, {vr(vKA)} offset:4096')
        P.label(j1)
        l = P.newlabel('Lx')
        P(f's_cmp_eq_u32 {sr(sHAS)}, 0\ns_cbranch_scc1 {l}')
        if o['hpr']: P('s_setprio 3')
        halo_loads(MODS[o['hm']])
        if o['hpr']: P(f's_setprio {o["prio"] - 1 + o["p1"]}')
        P.label(l)
        if AT2: self.attn2(CDIAG, lambda: self.mfma(CDIAG, aP, aQ, CDIAG))
        else: self.attn_loop(lambda: self.mfma(aS, aK, aQ, CDIAG))
        P(self.tile_addr(sP2))
        P(f's_sub_u32 {sr(sCNT)}, {sr(sC2)}, {AT2}\ns_mov_b32 {sr(sSTEP)}, 4096')
        if AT2:
            for it in self.v_lanes(): P(it)
        if o['prio'] and not o['p1']: self.prio_if(f's_cmp_lt_u32 {sr(sQT)}, 2')
        self.stamp(6 + sb, f'L{L} own attn')
        lp = P.newlabel('Lhalo'); ck = P.newlabel('Lhchk'); dn = P.newlabel('Lhdone')
        def warm():
            if o['pfb'] == 2: self.coop_prefetch(1, 1)
            if o['pq']:
                P(f's_mov_b64 exec, {sr(sH0,2)}\ns_lshl_b32 {sr(sT1)}, {sr(sC)}, 6')
                if o['pq'] & 1: P(f'v_mul_u32_u24 v5, 3072, {vr(vLANE)}\ns_mul_i32 {sr(sT0)}, {sr(sG0)}, 3\ns_add_u32 {sr(sT0)}, {sr(sT0)}, {sr(sT1)}\nbuffer_load_dword v26, v5, {sr(sWB,4)}, {sr(sT0)} offen')
                if o['pq'] & 2: P(f'v_lshlrev_b32 v5, 10, {vr(vLANE)}\ns_add_u32 {sr(sT0)}, {sr(sG0)}, {sr(sT1)}\nbuffer_load_dword v26, v5, {sr(sWoB,4)}, {sr(sT0)} offen')
                P('s_mov_b64 exec, -1')
            if o['clr']:
                P(f"""s_mov_b64 exec, 3
v_mul_u32_u24 v5, {OFF_OFLAG - OFF_XFLAG - 0x2000}, {vr(vLANE)}
s_add_u32 {sr(sT1)}, {sr(sXF)}, {OFF_XFLAG + 0x2000}
buffer_load_dword v26, v5, {sr(sWS,4)}, {sr(sT1)} offen sc1
s_mov_b64 exec, -1""")
            elif o['touch']:
                P(f"""v_lshlrev_b32 v5, 3, {vr(vL16)}
v_and_b32 v5, 0x780, v5
s_add_u32 {sr(sT0)}, {sr(sXW)}, {OFF_O}
s_add_u32 {sr(sT1)}, {sr(sSW)}, {OFF_ST}
s_mov_b64 exec, 0xffff
buffer_load_dword v26, v5, {sr(sWS,4)}, {sr(sT0)} offen sc1
buffer_load_dword v26, v5, {sr(sOut,4)}, {sr(sXW)} offen sc1
s_mov_b64 exec, 3
buffer_load_dword v26, v5, {sr(sWS,4)}, {sr(sT1)} offen sc1
v_mul_u32_u24 v5, {OFF_OFLAG - OFF_XFLAG - 0x2000}, {vr(vLANE)}
s_add_u32 {sr(sT1)}, {sr(sXF)}, {OFF_XFLAG + 0x2000}
buffer_load_dword v26, v5, {sr(sWS,4)}, {sr(sT1)} offen sc1
s_mov_b64 exec, 15
v_lshlrev_b32 v5, 7, {vr(vLANE)}
s_lshr_b32 {sr(sT1)}, {sr(sRB)}, 6
s_add_u32 {sr(sT1)}, {sr(sT1)}, {OFF_FIN}
buffer_load_dword v26, v5, {sr(sWS,4)}, {sr(sT1)} offen sc1
s_mov_b64 exec, -1""")
        if M1L:
            lm = P.newlabel('Lx')
            P(f's_cmp_lg_u32 {sr(sHS)}, 0\ns_cbranch_scc1 {lm}')
            for op in self.mask_ops(1): P(op)
            P.label(lm)
        nh = P.newlabel('Lnh')
        P(f's_cmp_eq_u32 {sr(sHAS)}, 0\ns_cbranch_scc1 {nh}\nv_add_u32 {vr(vT0)}, {sr(sHL)}, {vr(vL16)}\ns_branch {ck}')
        P.label(lp)
        halo_loads()
        P.label(ck)
        for t_, R in ((0, aS), (1, CDIAG)):
            P(f's_waitcnt vmcnt({5-5*t_})')
            for f in range(4): P(f'ds_read_b128 {vr(R+4*f,4)}, {vr(vT0)} offset:{(4*t_+f)*1024}')
        for t_, R in ((0, aS), (1, CDIAG)):
            cs = self.checksum(68 + t_, R, 16)
            for f in range(4):
                P(f's_waitcnt lgkmcnt({7-4*t_-f})'); P(cs[2*f]); P(cs[2*f + 1])
            P(f'v_cmp_ne_u32 {sr(sM+2*t_,2)}, {vr(65+t_)}, {vr(68+t_)}')
        P(f's_or_b64 {sr(sM,2)}, {sr(sM,2)}, {sr(sM+2,2)}\ns_cbranch_scc0 {dn}')
        self.retry_tail(lp, dn)
        self.stamp(7 + sb, f'L{L} halo ok')
        P.label(nh)
        if L == 0: P(f's_cmp_lg_u32 {sr(sHS)}, 0\ns_cbranch_scc1 {ax2}')
        if L == 0:
            if not o['xst']:
                self.rowmajor_addr(182, 183, sT0)
                P(f'buffer_load_dwordx4 {vr(XRES,4)}, v182, {sr(sX0,4)}, {sr(sT0)} offen\nbuffer_load_dwordx4 {vr(XRES+4,4)}, v182, {sr(sX0,4)}, {sr(sT0)} offen offset:32')
            if not o['plds']: self.wphi_load(170)
            P(f's_branch {j2}'); P.label(ax2)
            P('s_waitcnt vmcnt(0) lgkmcnt(0)')
            if not o['clr']: self.hello_check()
            if not o['tpos']: warm()
        P.label(j2)
        lskip = P.newlabel('Lnohalo'); l1 = P.newlabel('Lr1'); l2 = P.newlabel('Lr2')
        EA = o['ea'] if L else 0
        if EA:
            for op in self.hint_prep(70, L): P(op)
        P('s_waitcnt lgkmcnt(0)\ns_barrier')
        if L == 0 and not self.force_safe: P(f'ds_read_b32 {vr(vPD)}, {vr(vCNT)} offset:44')
        self.stamp(8 + sb, f'L{L} B2')
        if L == 0 and o['tpos']:
            lw = P.newlabel('Lx')
            P(f's_cmp_eq_u32 {sr(sHS)}, 0\ns_cbranch_scc1 {lw}')
            warm()
            P.label(lw)
        if L == 0 and o['bq']:
            lb = P.newlabel('Lx')
            P(f's_cmp_lg_u32 {sr(sHS)}, 0\ns_cbranch_scc1 {lb}')
            if 1:
                P(f"""v_lshrrev_b32 v184, 2, {vr(vLANE)}
v_mul_u32_u24 v184, 3072, v184
v_and_b32 v185, 48, {vr(vL16)}
s_lshl_b32 {sr(sT0)}, {sr(sC)}, 6
v_add3_u32 v184, v184, v185, {sr(sT0)}
s_lshl_b32 {sr(sT2)}, {sr(sROT)}, 1
s_add_u32 {sr(sT2)}, {sr(sT2)}, {sr(sMT)}
s_lshl_b32 {sr(sT2)}, {sr(sT2)}, 15""")
                for st in range(4):
                    P(f's_and_b32 {sr(sT2)}, {sr(sT2)}, 0x7ffff\ns_mul_i32 {sr(sT0)}, {sr(sT2)}, 3\ns_add_u32 {sr(sT3)}, {sr(sT0)}, 49152')
                    P(f'buffer_load_dwordx4 {vr(224+8*st,4)}, v184, {sr(sWB,4)}, {sr(sT0)} offen\nbuffer_load_dwordx4 {vr(228+8*st,4)}, v184, {sr(sWB,4)}, {sr(sT3)} offen')
                    if st < 3: P(f's_add_u32 {sr(sT2)}, {sr(sT2)}, 0x20000')
            P.label(lb)
        P(f's_cmp_eq_u32 {sr(sR)}, 0\ns_cbranch_scc1 {lskip}')
        def first():
            P(f's_cmp_eq_u32 {sr(sR)}, 1\ns_cbranch_scc1 {l1}')
            self.mfma(CFIRST if AT2 else aS, aP if AT2 else aK, aQ, CFIRST)
            P(f's_branch {l2}'); P.label(l1)
            self.mfma(CFIRST if AT2 else aS, aP if AT2 else aK, aQ, None)
            P.label(l2)
        if AT2: self.attn2(CFIRST, first, trickle=(L == 0))
        else: self.attn_loop(first, trickle=(L == 0))
        P.label(lskip)
        if AT2:
            P('s_waitcnt lgkmcnt(1)'); self.mfma(aO, VV + 4, aP + 4, aO)
        if EA == 1: self.hint(70, sK1)
        if L == 0 and not self.force_safe: P(f's_waitcnt lgkmcnt(0)\nv_readfirstlane_b32 {sr(sFAST)}, {vr(vPD)}')
        self.stamp(9 + sb, f'L{L} attn')
        P(f'v_subrev_u32 {vr(vT0)}, {f2u(2.0**-SAFE_EXP):#x}, {vr(aO+8)}\nv_cmp_le_u32 vcc, {f2u(2.0**SAFE_EXP) - f2u(2.0**-SAFE_EXP):#x}, {vr(vT0)}\ns_cbranch_vccnz L_fb_{L}')
        P.label(f'L_fbr_{L}')
        if EA == 2: self.hint(70, sK1)
        self.publish_o(L, aO, 0)
        if o['prio']: P('s_setprio 0')
        self.lds_signal(C_ATT)
        self.stamp(10 + sb, f'L{L} opub')
        P(f's_cmp_lg_u32 {sr(sHS)}, 0\ns_cbranch_scc1 {ax3}')
        if o['fpr']:
            l = P.newlabel('Lx')
            P(f's_cmp_lt_u32 {sr(sMT)}, 2\ns_cbranch_scc1 {l}\ns_setprio {o["fpr"]}'); P.label(l)
        self.main_outproj(L)
        P(f's_branch L_main_{L+1}')
        P.label(ax3)
        self.aux_tail(L)
        self.stamp(13 + sb, f'L{L} xpub')
        P(f's_branch L_aux_{L+1}')

    def attn_fallback(self, L):
        P = self.P; M = vT0
        pk = lambda d, e: f'v_cvt_pk_bf16_f32 {vr(d)}, {vr(e)}, {vr(e+1)}'
        P.label(f'L_fb_{L}')
        P(f's_waitcnt lgkmcnt(0)\nv_mov_b32 {vr(M)}, 0xff800000')
        for op in self.mask_ops(0) + self.mask_ops(1): P(op)
        for ps in range(2):
            for seg in range(2):
                lp = P.newlabel('Lfb'); nx = P.newlabel('Lfbn'); nm = P.newlabel('Lfbm')
                if seg == 0:
                    P(self.tile_addr(sOWN))
                    P(f's_add_u32 {sr(sCNT)}, {sr(sQT)}, 1\ns_mov_b32 {sr(sSTEP)}, {-OWN_ST}')
                    for i in range(16): P(f'v_mov_b32 {vr(aS+i)}, {vr(CDIAG+i)}')
                else:
                    P(f's_cmp_eq_u32 {sr(sR)}, 0\ns_cbranch_scc1 {nx}')
                    P(self.tile_addr(sP2))
                    P(f's_mov_b32 {sr(sCNT)}, {sr(sC2)}\ns_mov_b32 {sr(sSTEP)}, 4096\ns_cmp_eq_u32 {sr(sR)}, 1\ns_cbranch_scc1 {lp}')
                    for i in range(16): P(f'v_mov_b32 {vr(aS+i)}, {vr(CFIRST+i)}')
                P.label(lp)
                P(f'ds_read_b128 {vr(aK,4)}, {vr(vKA)}')
                if ps:
                    P(f's_mov_b64 exec, {sr(sLO,2)}\nds_read_b128 {vr(VV,4)}, {vr(vVA)} offset:2048\nds_read_b128 {vr(VV+4,4)}, {vr(vVA)} offset:3072\ns_mov_b64 exec, -1')
                P('s_waitcnt lgkmcnt(0)')
                self.mfma(aS, aK, aQ, aS)
                if ps == 0:
                    for i in range(0, 16, 2): P(f'v_max3_f32 {vr(M)}, {vr(M)}, {vr(aS+i)}, {vr(aS+i+1)}')
                else:
                    for i in range(16): P(f'v_sub_f32 {vr(aS+i)}, {vr(aS+i)}, {vr(M)}')
                    for i in range(16): P(f'v_exp_f32 {vr(aS+i)}, {vr(aS+i)}')
                    for p in range(8): P(pk(aP + p, aS + 2*p))
                    self.mfma(aO, VV, aP, aO)
                    self.mfma(aO, VV + 4, aP + 4, aO)
                for i in range(16): P(f'v_mov_b32 {vr(aS+i)}, 0')
                P(f'v_add_u32 {vr(vKA)}, {sr(sSTEP)}, {vr(vKA)}\nv_add_u32 {vr(vVA)}, {sr(sSTEP)}, {vr(vVA)}')
                P(f's_sub_u32 {sr(sCNT)}, {sr(sCNT)}, 1\ns_cmp_lg_u32 {sr(sCNT)}, 0\ns_cbranch_scc1 {lp}')
                P.label(nx)
            if ps == 0:
                P(f'v_mov_b32 {vr(vPD)}, {vr(M)}\nv_permlane32_swap_b32 {vr(vPD)}, {vr(M)}\nv_max_f32 {vr(M)}, {vr(M)}, {vr(vPD)}')
        P(f's_branch L_fbr_{L}')

    def softmax16(self, dst, t, inject=None, start=0, step=1, pk=True):
        if inject is None: return self.softmax16_(dst, t, self.P, pk)
        ops = []
        self.softmax16_(dst, t, lambda x: ops.extend(x.split('\n')))
        inject = list(inject)
        for i, op in enumerate(ops):
            if i >= start and (i - start) % step == 0 and inject: self.P(inject.pop(0))
            self.P(op)
        for x in inject: self.P(x)

    def softmax16_(self, dst, t, P, pk=True):
        A = ACC0
        P(f'v_max3_f32 {vr(t)}, {vr(A)}, {vr(A+1)}, {vr(A+2)}\nv_max3_f32 {vr(t+1)}, {vr(A+3)}, {vr(A+4)}, {vr(A+5)}')
        P(f'v_max3_f32 {vr(t+2)}, {vr(A+6)}, {vr(A+7)}, {vr(A+8)}\nv_max3_f32 {vr(t+3)}, {vr(A+9)}, {vr(A+10)}, {vr(A+11)}')
        P(f'v_max3_f32 {vr(t)}, {vr(t)}, {vr(A+12)}, {vr(A+13)}\nv_max3_f32 {vr(t+1)}, {vr(t+1)}, {vr(A+14)}, {vr(A+15)}')
        P(f'v_max3_f32 {vr(t)}, {vr(t)}, {vr(t+2)}, {vr(t+3)}\nv_max_f32 {vr(t)}, {vr(t)}, {vr(t+1)}')
        P(f'v_mul_f32 {vr(t)}, {vr(vRSTD)}, {vr(t)}')
        if not pk:
            for i in range(4): P(f'v_fma_f32 {vr(A+i)}, {vr(A+i)}, {vr(vRSTD)}, -{vr(t)}')
            for i in range(16):
                P(f'v_exp_f32 {vr(A+i)}, {vr(A+i)}')
                if i + 4 < 16: P(f'v_fma_f32 {vr(A+i+4)}, {vr(A+i+4)}, {vr(vRSTD)}, -{vr(t)}')
                if i in (3, 4): P(f'v_add_f32 {vr(t+i-1)}, {vr(A+i-3)}, {vr(A+i-1)}')
                if i >= 5: P(f'v_add_f32 {vr(t+2+(i+1)%2)}, {vr(t+2+(i+1)%2)}, {vr(A+i-1)}')
            P(f'v_add_f32 {vr(t+3)}, {vr(t+3)}, {vr(A+15)}\nv_add_f32 {vr(t+2)}, {vr(t+2)}, {vr(t+3)}\nv_rcp_f32 {vr(t)}, {vr(t+2)}')
            for i in range(16): P(f'v_mul_f32 {vr(A+i)}, {vr(t)}, {vr(A+i)}')
            for p in range(8): P(f'v_cvt_pk_bf16_f32 {vr(dst+p)}, {vr(A+2*p)}, {vr(A+2*p+1)}')
            return
        fm = lambda p: f'v_pk_fma_f32 {vr(A+2*p,2)}, {vr(A+2*p,2)}, {vr(vRSTD,2)}, {vr(t,2)} op_sel_hi:[1,0,0] neg_lo:[0,0,1] neg_hi:[0,0,1]'
        P(fm(0)); P(fm(1))
        for p in range(8):
            P(f'v_exp_f32 {vr(A+2*p)}, {vr(A+2*p)}')
            if p + 2 < 8: P(fm(p + 2))
            P(f'v_exp_f32 {vr(A+2*p+1)}, {vr(A+2*p+1)}')
            if p == 2: P(f'v_pk_add_f32 {vr(t+2,2)}, {vr(A,2)}, {vr(A+2,2)}')
            if p >= 3: P(f'v_pk_add_f32 {vr(t+2,2)}, {vr(t+2,2)}, {vr(A+2*p-2,2)}')
        P(f'v_pk_add_f32 {vr(t+2,2)}, {vr(t+2,2)}, {vr(A+14,2)}\nv_add_f32 {vr(t+2)}, {vr(t+2)}, {vr(t+3)}\nv_rcp_f32 {vr(t)}, {vr(t+2)}')
        for p in range(8): P(f'v_pk_mul_f32 {vr(A+2*p,2)}, {vr(A+2*p,2)}, {vr(t,2)} op_sel_hi:[1,0]')
        for p in range(8): P(f'v_cvt_pk_bf16_f32 {vr(dst+p)}, {vr(A+2*p)}, {vr(A+2*p+1)}')

    def layerB(self, L):
        P = self.P; Lb = L // 2; sb = L * 14; o = self.o; lg = self.lg
        j0 = f'L_j0_{L}'; j1 = f'L_j1_{L}'; j2 = f'L_j2_{L}'; ax1 = f'L_ax1_{L}'; ax1b = f'L_ax1b_{L}'; ax3 = f'L_ax3_{L}'; axz = f'L_axz_{L}'
        KA, KV_ = 48, 96
        vA16, vA4, vAW, vAO = 96, 97, 98, 99
        P.label(f'L_main_{L}')
        vt = self.main_kv(L)
        if o['fpr']: P('s_setprio 0')
        self.stamp(3 + sb, f'L{L} kvpass')
        P(waitstr(lg=lg.need('rt')))
        vt()
        for p in (4, 5, 6, 7): P(f'v_cvt_pk_bf16_f32 {vr(PKV+p)}, {vr(ACC0+2*p)}, {vr(ACC0+2*p+1)}')
        P(f'ds_write_b128 {vr(vKA)}, {vr(PKV+4,4)} offset:1024'); lg.issue('kb', 2 if o['pw1'] else 1)
        PW = o['pw1']
        if PW:
            o['vpre'] = 2
            P(f'ds_write_b32 {vr(PKV+8)}, {vr(PKV+9)} offset:{4*C_ST}')
        vt()
        for p in (0, 1, 2, 3): P(f'v_cvt_pk_bf16_f32 {vr(PKV+p)}, {vr(ACC0+2*p)}, {vr(ACC0+2*p+1)}')
        vmul = lambda p: f'v_pk_mul_f32 {vr(ACC1+2*p,2)}, {vr(ACC1+2*p,2)}, {vr(STAT+2*p,2)}'
        if o['vlag']:
            vt(99)
            self.mfma(ACC0, WPHI, PKV, None)
            for i in range(16): P(f'v_mul_f32 {vr(ACC1+i)}, {vr(STAT+i)}, {vr(ACC1+i)}')
        else:
            P(vmul(0)); P(vmul(1))
            self.mfma(ACC0, WPHI, PKV, None)
            for p in range(2, 8): P(vmul(p))
        if o['vpre'] != 1 and not PW: P('s_waitcnt lgkmcnt(0)\ns_barrier')
        for f in range(2, 4):
            for p in range(4*f - 8, 4*f - 4): P(f'v_cvt_pk_bf16_f32 {vr(PKV+8+p)}, {vr(ACC1+2*p)}, {vr(ACC1+2*p+1)}')
            P(f'ds_write_b128 {vr(vKA)}, {vr(PKV+4*f,4)} offset:{f*1024}')
        if o['vpre'] == 1: P('s_waitcnt lgkmcnt(0)\ns_barrier')
        P(f's_branch {j0}')
        P.label(f'L_aux_{L}')
        self.aux_head(L)
        for i in range(32): P(f'v_mov_b32 {vr(KV_+i)}, {vr(ONES)}')
        P(f"""v_lshrrev_b32 v91, 5, {vr(vLANE)}
v_bfe_u32 v88, {vr(vLANE)}, 2, 2
v_lshl_add_u32 v88, v91, 2, v88
v_lshlrev_b32 v88, 5, v88
v_and_b32 v89, 1, {vr(vLANE)}
v_lshl_add_u32 v88, v89, 4, v88
v_bfe_u32 v89, {vr(vLANE)}, 4, 1
v_lshl_add_u32 v88, v89, 12, v88
v_bfe_u32 v89, {vr(vLANE)}, 1, 1
v_lshl_add_u32 v88, v89, 3, v88
s_lshl_b32 {sr(sT0)}, {sr(sMT)}, 10
s_add_u32 {sr(sT0)}, {sr(sT0)}, {LDS_OWN}
v_add_u32 v88, {sr(sT0)}, v88
s_lshl_b32 {sr(sT1)}, {sr(sMT)}, 8
v_xor_b32 v90, {sr(sT1)}, {vr(vL16)}
v_add_u32 v89, {LDS_OWN}, v90
s_lshl_b32 {sr(sT0)}, {sr(sMT)}, 1
v_add_u32 v91, {sr(sT0)}, v91
v_and_b32 v92, 31, {vr(vLANE)}
v_mov_b32 v93, {OOB >> 4:#x}
v_cmp_eq_u32 vcc, 16, v92
v_cndmask_b32 v91, v93, v91, vcc
v_lshrrev_b32 v92, 8, v90
v_mul_u32_u24 v92, {KP_Q}, v92
v_and_b32 v93, 15, {vr(vLANE)}
v_lshl_add_u32 v90, v93, 4, v92
v_lshl_add_u32 v92, v93, 2, v92
v_lshlrev_b32 v93, 4, v91
v_add_u32 v93, {KP_Z}, v93
v_lshlrev_b32 v91, 4, v91
v_add_u32 v91, 64, v91
v_cndmask_b32 v91, v91, v92, {sr(sLO,2)}
v_cndmask_b32 v90, v93, v90, {sr(sLO,2)}
v_add_u32 v93, 64, v93
v_add_u32 v92, 256, v90
v_cndmask_b32 v93, v93, v92, {sr(sLO,2)}
s_lshl_b32 {sr(sK2)}, {sr(sC)}, 4
s_add_u32 {sr(sK2)}, {sr(sK2)}, {sr(sR)}
s_mul_i32 {sr(sK2)}, {sr(sK2)}, {KP_REC}
s_add_u32 {sr(sK2)}, {sr(sK2)}, {OFF_KP + Lb*KP_L}""")
        P(self.tile_addr(sOWN))
        for op in self.phi_addr(): P(op)
        P(f's_lshl_b32 {sr(sT0)}, {sr(sQT)}, 7\ns_add_u32 {sr(sT0)}, {sr(sT0)}, {LDS_RSTD}\nv_and_b32 v25, 124, {vr(vL4)}\nv_add_u32 v25, {sr(sT0)}, v25')
        self.aux_head2(L)
        self.stamp(3 + sb, f'L{L} kvpass')
        if PW:
            lw = P.newlabel('Lpw')
            P(f's_lshl_b32 {sr(sT0)}, {sr(sQT)}, 2\nv_add_u32 v26, {sr(sT0)}, {vr(vCNT)}')
            P.label(lw)
            if o['pws']: P(f's_sleep {o["pws"]}')
            P(f'ds_read_b32 {vr(vPD)}, v26 offset:{4*C_ST}\nds_read_b128 {vr(RING+8,4)}, {vr(vKA)}\nds_read_b32 {vr(vRSTD)}, v25\ns_waitcnt lgkmcnt(1)')
            P(f'v_cmp_gt_u32 vcc, {TV_K[L]}, {vr(vPD)}\ns_cbranch_vccnz {lw}')
        else:
            P('s_barrier')
            P(f'ds_read_b128 {vr(RING+8,4)}, {vr(vKA)}\nds_read_b32 {vr(vRSTD)}, v25\ns_waitcnt lgkmcnt(1)')
        self.mfma(ACC0, WPHI, RING + 8, None)
        P(f's_waitcnt lgkmcnt(0)\nv_mul_f32 {vr(vRSTD)}, {sr(sLOG2E)}, {vr(vRSTD)}')
        vrd = [f'ds_read_b128 {vr(KV_+4*st,4)}, v89 offset:{(st>>1)*OWN_ST + 2048 + (st&1)*1024}' for st in range(8)]
        if o['vpre'] == 1:
            P(f's_mov_b64 exec, {sr(sLO,2)}')
            for x in vrd: P(x)
            P('s_mov_b64 exec, -1')
        else: P('s_nop 7')
        jw = P.newlabel('Lpw')
        if PW == 1:
            P(f's_cmp_ge_u32 {sr(sQT)}, 2\ns_cbranch_scc1 {j0}')
            self.stamp(4 + sb, f'L{L} B1a')
            self.softmax16(RING, RING + 12, pk=False)
            P(f's_branch {jw}')
        P.label(j0)
        self.stamp(4 + sb, f'L{L} B1a')
        self.softmax16(RING, RING + 12)
        P.label(jw)
        P(f'ds_write_b128 {vr(vVA)}, {vr(RING,4)}\nds_write_b128 {vr(vVA)}, {vr(RING+4,4)} offset:4096\ns_waitcnt lgkmcnt(0)\ns_barrier')
        self.stamp(5 + sb, f'L{L} B1b')
        common = self.publish_o_addr(L) + f"""s_mul_i32 {sr(sH1)}, {sr(sC)}, {16*KP_REC}
s_add_u32 {sr(sH1)}, {sr(sH1)}, {OFF_KP + Lb*KP_L}
s_mov_b32 {sr(sSEL0)}, 0x3f80
s_mov_b32 {sr(sSEL1)}, 0x3f800000
s_lshl_b32 {sr(sT0)}, {sr(sHS)}, 4
v_xor_b32 {vr(vAO)}, {sr(sT0)}, {vr(vLANE)}
v_lshlrev_b32 {vr(vAO)}, 5, {vr(vAO)}
v_add_u32 {vr(vAO)}, {LDS_KVT}, {vr(vAO)}
v_and_b32 v100, 32, {vr(vLANE)}
s_lshl_b32 {sr(sT0)}, {sr(sHS)}, 6
s_add_u32 {sr(sT0)}, {sr(sT0)}, {LDS_ZT}
v_add_u32 v100, {sr(sT0)}, v100
v_cndmask_b32 {vr(vAO)}, v100, {vr(vAO)}, {sr(sLO,2)}""".split('\n')
        SEL = 104
        addr_main = f"""s_mul_i32 {sr(sH2)}, {sr(sMT)}, {KP_Q}
s_add_u32 {sr(sH2)}, {sr(sH2)}, {sr(sH1)}
v_lshrrev_b32 v100, 4, {vr(vLANE)}
v_and_b32 v101, 15, {vr(vLANE)}
v_mul_u32_u24 {vr(vA16)}, {KP_REC}, v100
v_lshl_add_u32 {vr(vA4)}, v101, 2, {vr(vA16)}
v_lshl_add_u32 {vr(vA16)}, v101, 4, {vr(vA16)}
s_lshl_b32 {sr(sT0)}, {sr(sMT)}, 9
s_add_u32 {sr(sT0)}, {sr(sT0)}, {LDS_KVT}
v_lshl_add_u32 {vr(vAW)}, v101, 5, {sr(sT0)}
v_lshl_add_u32 {vr(vAW)}, v100, 3, {vr(vAW)}
v_lshlrev_b32 v100, 4, {vr(vLANE)}
v_lshlrev_b32 v100, v100, {sr(sSEL0)}
v_lshrrev_b32 v101, 1, v101""".split('\n')
        for r_ in range(8): addr_main += [f'v_cmp_eq_u32 vcc, {r_}, v101\nv_cndmask_b32 {vr(SEL+r_)}, 0, v100, vcc']
        addr_z = f"""v_lshrrev_b32 v102, 4, {vr(vLANE)}
v_mul_u32_u24 {vr(vA16)}, {KP_REC}, v102
v_bfe_u32 v100, {vr(vLANE)}, 3, 1
v_and_b32 v101, 1, {vr(vLANE)}
v_lshl_add_u32 v100, v100, 1, v101
v_bfe_u32 v101, {vr(vLANE)}, 1, 2
v_mul_u32_u24 {vr(vA4)}, {4*KP_REC}, v100
v_add_u32 {vr(vA4)}, {vr(vA4)}, {vr(vA16)}
v_lshl_add_u32 {vr(vA4)}, v101, 4, {vr(vA4)}
v_lshlrev_b32 {vr(vAW)}, 5, v101
v_lshl_add_u32 {vr(vAW)}, v100, 3, {vr(vAW)}
v_lshl_add_u32 {vr(vAW)}, v102, 1, {vr(vAW)}
v_add_u32 {vr(vAW)}, {LDS_ZT}, {vr(vAW)}
v_and_b32 v100, 15, {vr(vLANE)}
v_lshl_add_u32 {vr(vA16)}, v100, 3, {vr(vA16)}""".split('\n')
        A = ACC1; KD = 128; T = A + 4
        def loads_main(P=P, m=' sc1'):
            P(f's_mov_b32 {sr(sT0)}, {sr(sH2)}')
            for it in range(4):
                D = KD + 12*it
                P(f'buffer_load_dwordx4 {vr(D,4)}, {vr(vA16)}, {sr(sWS,4)}, {sr(sT0)} offen{m}\nbuffer_load_dwordx4 {vr(D+4,4)}, {vr(vA16)}, {sr(sWS,4)}, {sr(sT0)} offen offset:256{m}')
                P(f'buffer_load_dword {vr(D+8)}, {vr(vA4)}, {sr(sWS,4)}, {sr(sT0)} offen offset:512{m}')
                if it < 3: P(f's_add_u32 {sr(sT0)}, {sr(sT0)}, {4*KP_REC}')
        def accum(D, first, t0):
            P(f'v_add3_u32 {vr(T)}, {t0 if first else vr(T)}, {vr(D)}, {vr(D+1)}')
            for k in range(2):
                if first: P(f'v_lshlrev_b32 {vr(A+2*k)}, 16, {vr(D+k)}\nv_and_b32 {vr(A+2*k+1)}, 0xffff0000, {vr(D+k)}')
                else: P(f'v_dot2_f32_bf16 {vr(A+2*k)}, {vr(D+k)}, {sr(sSEL0)}, {vr(A+2*k)}\nv_dot2_f32_bf16 {vr(A+2*k+1)}, {vr(D+k)}, {sr(sSEL1)}, {vr(A+2*k+1)}')
        dpp = lambda c: f'v_add_u32_dpp {vr(T)}, {vr(T)}, {vr(T)} {c} row_mask:0xf bank_mask:0xf'
        P(f's_cmp_lg_u32 {sr(sHS)}, 0\ns_cbranch_scc1 {ax1}')
        lg.reset()
        self.q_prefetch(L)
        fill = [('ds', 'cs', f'ds_read_b128 {vr(WEXTQ,4)}, {vr(vT0)}')] + common
        fill += addr_main
        fill += self.wext_items(WEXTQ, 'cs')
        self.main_qpass(L, ACC1, fill, pre_write=lambda: P('s_barrier'), rate=2)
        self.mfma(ACC0, WPHI, aQ, None)
        P('s_waitcnt lgkmcnt(0)\ns_barrier')
        if o['kp_at'] == 1: loads_main()
        if o['kp_at'] >= 2:
            inj = []; loads_main(lambda x: inj.extend(x.split('\n')))
            self.softmax16(PHQ, RING + 12, inj, o['kp_at'], o['kp_step'])
            self.stamp(6 + sb, f'L{L} phiq / kp stored')
            P(f's_branch L_kpc_{L}')
        else: P(f's_branch {j1}')
        P.label(ax1)
        P(f's_cmp_ge_u32 {sr(sMT)}, 2\ns_cbranch_scc1 {ax1b}\ns_setprio 3')
        if o['vpre'] == 2:
            P(f's_mov_b64 exec, {sr(sLO,2)}')
            for x in vrd: P(x)
            P('s_mov_b64 exec, -1')
        n_ = 2 if o['vpre'] else 3
        for st in range(8):
            of = (st >> 1)*OWN_ST + (st & 1)*512
            P(f'ds_read_b64_tr_b16 {vr(KA+4*st,2)}, v88 offset:{of}\nds_read_b64_tr_b16 {vr(KA+2+4*st,2)}, v88 offset:{of+256}')
            if not o['vpre']: P(f's_mov_b64 exec, {sr(sLO,2)}\n{vrd[st]}\ns_mov_b64 exec, -1')
            if st >= 3:
                P(f's_waitcnt lgkmcnt({3*n_})'); self.mfma(ACC0, KA + 4*(st-3), KV_ + 4*(st-3), None if st == 3 else ACC0)
        for st in range(5, 8):
            P(f's_waitcnt lgkmcnt({n_*(7-st)})'); self.mfma(ACC0, KA + 4*st, KV_ + 4*st, ACC0)
        for p in range(8): P(f'v_cvt_pk_bf16_f32 {vr(80+p)}, {vr(ACC0+2*p)}, {vr(ACC0+2*p+1)}')
        P(f'buffer_store_dwordx4 v[80:83], v90, {sr(sWS,4)}, {sr(sK2)} offen{MODS[o["sm"]]}\nbuffer_store_dwordx4 v[84:87], v93, {sr(sWS,4)}, {sr(sK2)} offen{MODS[o["sm"]]}')
        for op in self.checksum(92, 80, 8): P(op)
        P(f'buffer_store_dword v92, v91, {sr(sWS,4)}, {sr(sK2)} offen offset:512{MODS[o["sm"]]}')
        self.stamp(6 + sb, f'L{L} phiq / kp stored')
        P('s_setprio 0')
        P.label(ax1b)
        if L == 1: self.dma_w(1, ('o',))
        for it in common + addr_z: P(it)
        P('s_barrier\ns_barrier')
        P(f'ds_read_b128 {vr(aQ,4)}, {vr(vKA)} offset:4096\ns_waitcnt lgkmcnt(0)')
        self.mfma(ACC0, WPHI, aQ, None)
        P('s_nop 11')
        P.label(j1)
        self.softmax16(PHQ, RING + 12)
        if o['kp_at'] >= 2: P(f's_branch {axz}')
        else:
            P(f's_cmp_lg_u32 {sr(sHS)}, 0\ns_cbranch_scc1 {axz}')
            self.stamp(6 + sb, f'L{L} phiq / kp stored')
        lp = P.newlabel('Lkp'); ck = f'L_kpc_{L}'; dn = P.newlabel('Lkpd')
        if o['kp_at'] == 0 and o['km'] != 1: loads_main(m=MODS[o['km']])
        if o['kp_at'] == 1 or (o['kp_at'] == 0 and o['km'] != 1): P(f's_branch {ck}')
        P.label(lp)
        loads_main()
        P.label(ck)
        for it in range(4):
            D = KD + 12*it; cs = self.checksum(D + 9, D, 8)
            P(f's_waitcnt vmcnt({10 - 3*it})')
            for hf in range(2):
                P(f'v_mfma_f32_16x16x32_bf16 {vr(A,4)}, {vr(SEL+4*hf,4)}, {vr(D+4*hf,4)}, {"0" if it + hf == 0 else vr(A,4)}')
            for op in cs: P(op)
            P(f's_waitcnt vmcnt({9 - 3*it})\nv_cmp_ne_u32 {sr(sM+2*it,2)}, {vr(D+8)}, {vr(D+9)}')
            if it == 2: P(f's_or_b64 {sr(sM,2)}, {sr(sM,2)}, {sr(sM+2,2)}')
            if it == 3: P(f's_or_b64 {sr(sM,2)}, {sr(sM,2)}, {sr(sM+4,2)}')
        P(f'v_cvt_pk_bf16_f32 v68, {vr(A)}, {vr(A+1)}\nv_cvt_pk_bf16_f32 v69, {vr(A+2)}, {vr(A+3)}\nds_write_b64 {vr(vAW)}, v[68:69]')
        P(f's_or_b64 {sr(sM,2)}, {sr(sM,2)}, {sr(sM+6,2)}\ns_cbranch_scc0 {dn}')
        self.retry_tail(lp, dn)
        self.stamp(7 + sb, f'L{L} kp ok')
        P(f's_branch {j2}')
        P.label(axz)
        if L == 1:
            P('s_waitcnt vmcnt(0)')
        P(f's_cmp_lg_u32 {sr(sMT)}, 2\ns_cbranch_scc1 {j2}')
        lp = P.newlabel('Lkz'); dn = P.newlabel('Lkzd'); D = 32
        P.label(lp)
        P(f's_mov_b32 {sr(sT0)}, {sr(sH1)}\nbuffer_load_dword {vr(D+8)}, {vr(vA4)}, {sr(sWS,4)}, {sr(sT0)} offen offset:576 sc1')
        for it in range(4):
            P(f'buffer_load_dwordx2 {vr(D+2*it,2)}, {vr(vA16)}, {sr(sWS,4)}, {sr(sT0)} offen offset:{KP_Z} sc1')
            if it < 3: P(f's_add_u32 {sr(sT0)}, {sr(sT0)}, {4*KP_REC}')
        for it in range(4):
            P(f's_waitcnt vmcnt({3 - it})')
            accum(D + 2*it, it == 0, sr(sTAG))
            if it == 0: P(f'v_sub_u32 {vr(T)}, {vr(T)}, {vr(D+8)}')
        P(dpp('quad_perm:[1,0,3,2]'))
        P(f'v_permlane32_swap_b32 {vr(A)}, {vr(A+2)}\nv_permlane32_swap_b32 {vr(A+1)}, {vr(A+3)}')
        P(dpp('row_ror:8'))
        P(f'v_add_f32 {vr(A)}, {vr(A)}, {vr(A+2)}\nv_add_f32 {vr(A+1)}, {vr(A+1)}, {vr(A+3)}\nv_cmp_ne_u32 vcc, 0, {vr(T)}')
        P(f'v_permlane16_swap_b32 {vr(A)}, {vr(A+1)}\nv_add_f32 {vr(A)}, {vr(A)}, {vr(A+1)}\nv_cvt_pk_bf16_f32 v68, {vr(A)}, {vr(A)}\nds_write_b16 {vr(vAW)}, v68')
        P(f's_cbranch_vccz {dn}')
        self.retry_tail(lp, dn)
        P.label(j2)
        P('s_waitcnt lgkmcnt(0)\ns_barrier')
        self.stamp(8 + sb, f'L{L} B2')
        P(f'ds_read_b128 v[68:71], {vr(vAO)}\nds_read_b128 v[72:75], {vr(vAO)} offset:16')
        if o['eb']:
            for op in self.hint_prep(78, L): P(op)
        if o['eb'] == 1: self.hint(78, sK1)
        P('s_waitcnt lgkmcnt(1)')
        self.mfma(ACC0, 68, PHQ, None)
        if o['eb'] == 2: self.hint(78, sK1)
        P('s_waitcnt lgkmcnt(0)')
        self.mfma(ACC0, 72, PHQ + 4, ACC0)
        if o['eb'] == 3: self.hint(78, sK1)
        self.publish_o(L, ACC0, 1e-6)
        self.stamp(10 + sb, f'L{L} opub')
        P(f's_cmp_lg_u32 {sr(sHS)}, 0\ns_cbranch_scc1 {ax3}')
        if o['epr'] and L == 1: self.prio_if(f's_cmp_lt_u32 {sr(sMT)}, 2')
        elif o['mpr']: P(f's_setprio {o["mpr"]}')
        self.main_outproj(L)
        if o['epr'] == 1 and L == 1: self.prio_if(f's_cmp_ge_u32 {sr(sMT)}, 2')
        P(f's_branch L_main_{L+1}')
        P.label(ax3)
        self.aux_tail(L)
        self.stamp(13 + sb, f'L{L} xpub')
        P(f's_branch L_aux_{L+1}')

    def epilogue(self):
        P = self.P; nl = self.nl
        P.label(f'L_main_{nl}')
        P(f's_or_b32 {sr(sT0)}, s2, {sr(sW)}\ns_cmp_lg_u32 {sr(sT0)}, 0\ns_cbranch_scc1 L_aux_{nl}\ns_mov_b32 {sr(sT2)}, 0')
        self.flag(sT2, sTAG, False)
        P.label(f'L_aux_{nl}')
        if self.stamps:
            P('s_waitcnt vmcnt(0)')
            self.stamp(62, 'end')
            P(f's_memtime {sr(sST,2)}\ns_waitcnt lgkmcnt(0)\ns_sub_u32 {sr(sST)}, {sr(sST)}, s100\nv_writelane_b32 {vr(vSTAMP)}, {sr(sST)}, 59')
            P(f'''v_writelane_b32 {vr(vSTAMP)}, {sr(sBUD)}, 63
v_writelane_b32 {vr(vSTAMP)}, {sr(sFAST)}, 61
v_writelane_b32 {vr(vSTAMP)}, s99, 58
v_writelane_b32 {vr(vSTAMP)}, s101, 56
s_lshl_b32 {sr(sT0)}, s2, 3
s_add_u32 {sr(sT0)}, {sr(sT0)}, {sr(sW)}
s_lshl_b32 {sr(sT0)}, {sr(sT0)}, 8
s_add_u32 {sr(sT0)}, {sr(sT0)}, {OFF_STAMP}
buffer_store_dword {vr(vSTAMP)}, {vr(vL4)}, {sr(sWS,4)}, {sr(sT0)} offen''')
            if self.o.get('dbgst'):
                P(f's_cmp_lg_u32 {sr(sHS)}, 0\ns_cbranch_scc1 L_end\ns_load_dwordx2 s[64:65], s[0:1], 64\nv_mov_b32 v30, 0')
                for j, (idx, neg) in enumerate([(60, 1), (60, 0), (0, 0), (2, 0), (1, 0), (3, 0), (8, 0), (10, 0), (13, 0), (27, 0), (41, 0), (62, 0), (59, 0), (3, 1), (13, 1), (62, 1)]):
                    P(f'v_readlane_b32 s66, {vr(vSTAMP)}, {idx}')
                    if neg: P('s_not_b32 s66, s66')
                    P(f'v_writelane_b32 v30, s66, {j}')
                P('s_waitcnt lgkmcnt(0)')
                self.srd(68, 64, 256)
                P(f's_mov_b64 exec, 0xffff\nbuffer_atomic_umax v30, {vr(vL4)}, s[68:71], 0 offen\ns_waitcnt vmcnt(0)')
        if self.o.get('spin'):
            lp = P.newlabel('Lspin'); P.label(lp)
            P(f's_memrealtime s[66:67]\ns_waitcnt lgkmcnt(0)\ns_sub_u32 s66, s66, s98\ns_cmp_lt_u32 s66, {self.o["spin"]}\ns_cbranch_scc1 {lp}')
        P.label('L_end')
        P('s_endpgm')

    def build(self):
        self.prologue()
        for L in range(self.nl):
            (self.layerA if L % 2 == 0 else self.layerB)(L)
        self.epilogue()
        self.emit_stubs()
        for L in range(0, self.nl, 2): self.attn_fallback(L)
        n = self.P.fix_hazards()
        errs = self.P.check_waits()
        head = open(f'cdna_kernels/{NAME}.s.ref').read().split('; @launch')[0]
        s = head + f'; @launch grid=(256,1,1) block=(512,1,1) lds={LDS_TOTAL}\n'
        s += f'.amdgcn_target "amdgcn-amd-amdhsa--gfx950"\n.text\n.globl {NAME}_kernel\n.p2align 8\n.type {NAME}_kernel,@function\n{NAME}_kernel:\n'
        s += self.P.text().replace('CODE_BYTES', '(L_end - %s_kernel - 1088)' % NAME)
        s += f'''.section .rodata,"a"
.p2align 6
.amdhsa_kernel {NAME}_kernel
  .amdhsa_next_free_vgpr 256
  .amdhsa_next_free_sgpr 102
  .amdhsa_accum_offset 256
  .amdhsa_group_segment_fixed_size 0
  .amdhsa_kernarg_size 80
  .amdhsa_user_sgpr_count 2
  .amdhsa_user_sgpr_kernarg_segment_ptr 1
  .amdhsa_system_sgpr_workgroup_id_x 1
.end_amdhsa_kernel
'''
        return s, n, errs


if __name__ == '__main__':
    import argparse, json
    ap = argparse.ArgumentParser()
    ap.add_argument('-o', default=f'cdna_kernels/{NAME}.s')
    ap.add_argument('--stamps', action='store_true')
    ap.add_argument('--safe', action='store_true')
    ap.add_argument('--cyc', action='store_true')
    ap.add_argument('--opt', nargs='*', default=[])
    ap.add_argument('--noalias', action='store_true')
    ap.add_argument('--nl', type=int, default=4)
    a = ap.parse_args()
    g = Gen(stamps=a.stamps, nlayers=a.nl, force_safe=a.safe, cyc=a.cyc, alias=not a.noalias, opt={k: int(v) for k, v in (x.split('=') for x in a.opt)})
    s, n, errs = g.build()
    open(a.o, 'w').write(s)
    if a.stamps: json.dump(g.stamp_names, open(a.o + '.stamps.json', 'w'))
    print('instructions', sum(1 for x in g.P.L if x.op), 'nops inserted', n, 'lds', LDS_TOTAL)
    for e in errs[:8]: print('WAITCHECK', e)
```

```python
import sys, struct
sys.path.insert(0, 'dev')
from asmlib import *

NAME = 'interleave_layers__sliding_block__linear_kernel_hedgehog__prompt'
def f2u(x): return struct.unpack('<I', struct.pack('<f', x))[0]
LOG2E = 1.4426950408889634

OFF_XFLAG = 0x1000
OFF_OFLAG = 0x9000
OFF_FIN = 0x12000
OFF_STAMP = 0x30000
OFF_ST = 0x100000
OFF_X = 0x200000
OFF_O = 0xA00000
OFF_KV = 0x1200000
KV_REC = 4480; KV_L = 1024*KV_REC
OFF_KP = 0x1B00000
KP_REC = 2688; KP_Q = 640; KP_Z = 2560; KP_L = 256*KP_REC
WS_USED = 0x2000000
OOB = 0x40000000
TAGC = 0x9E3779B0
SAFE_EXP = 30

LDS_WK = 0; LDS_WV = 32768; LDS_WQ = 65536; LDS_T = 65536; LDS_WO = 98304
LDS_OWN = 131072; OWN_ST = 6144
LDS_CSP = LDS_OWN + 4*OWN_ST
LDS_RSTD = LDS_CSP + 3072; LDS_KVT = LDS_RSTD + 512; LDS_ZT = LDS_KVT + 2048
LDS_FAST = LDS_ZT + 128; LDS_CNT = LDS_FAST + 16; LDS_ONES = LDS_FAST + 64; LDS_PHI = LDS_ONES + 1040; LDS_TOTAL = LDS_PHI + 1024
NT_LDS = {0: LDS_WQ, 1: LDS_WK, 2: LDS_WV, 'o': LDS_WO}
C_ST, C_XDONE, C_WGO, C_CS, C_Q, C_ATT, C_CSQ, C_WR = 0, 4, 5, 6, 7, 8, 9, 10

sWS, sX0, sWA, sWoA, sWB, sWoB, sPhi, sOut = 4, 8, 12, 16, 20, 24, 28, 32
sR, sC, sW, sMT, sHS, sRT, sQT, sTAG, sFAST, sBUD = 36, 37, 38, 39, 40, 41, 42, 43, 44, 45
sT0, sT1, sT2, sT3 = 46, 47, 48, 49
sLO = 50
sOWNF = 52; sCNT = 53; sSTEP = 54; sLOG2E = 55; sST = 56
sROT = 58; sDM = 59; sH0 = 60
sG0 = 62; sPERM = 63
sM = 64
sOW, sOF, sHB, sHAS, sP2, sC2, sOWN, sKVW, sXW, sSW, sXF, sRB = 72, 73, 74, 75, 76, 77, 78, 79, 80, 81, 82, 83
sLA = 86; sDG = 87; sDL = 88; sLB = 89; sLR = 90; sK0 = 91; sK1 = 92; sK2 = 93; sSEL0 = 94; sSEL1 = 95; sH1 = 96; sH2 = 97; sC1008 = 3; sS0 = 3
vT0, vLANE, vL16, vL4, vCNT, vTR1, vTR2, vSTAMP = 0, 1, 2, 3, 4, 5, 6, 7
XRES, WPHI = 8, 16
vDW, vDO, vCH, vCS, ONES = 8, 9, 10, 11, 12
vRSTD, vKA, vVA, vPD, vPA, vRA, vRB, vFD = 20, 21, 22, 23, 24, 25, 26, 27
vCK = vPD; XEXT = 28; ACC0 = 32; ACC1 = 48; RING = 64; WEXTQ = 84; WEXTK = 88; WEXTV = 92; VV = 88
STAT = 96; CDIAG = 96; PKV = 112; CFIRST = 112; XF = 128
aS, aO, aE, aQ, aK, aP, aH = 32, 48, 64, 72, 76, 80, 128
vSTV = 64
PHQ = 112
PARK = {1: 128, 2: 160, 0: 192, 'o': 224}
MFMA = 'v_mfma_f32_32x32x16_bf16'
MODS = ['', ' sc1', ' sc0', ' nt', ' sc0 sc1', ' sc1 nt', ' sc0 sc1 nt']
def cho(u): return (u >> 1)*8192 + (u & 1)*1024
TV_O = (5, 7, 8, 10); TV_K = (0, 6, 0, 9)
SW4 = ((0, 2), (1, 3), (4, 6), (5, 7))


DOC = '''; One persistent launch, 256 workgroups x 8 waves. Workgroup = (128-row block r, head pair c); waves 0-3 run the projections of one
; (first use: drained, launch-tagged flags; tagged words otherwise only say when to look), K/V halo tiles and kv partial sums carry
'''

class Gen:
    def __init__(self, stamps=False, nlayers=4, force_safe=False, cyc=False, alias=True, opt=None):
        self.cyc = cyc; self.alias = alias
        self.o = dict(halo_at=35, prio=2, trunc=1, wgo=2, wgon=2, xd=8, od=10, x0d=3, psleep=1, kp_at=0, spec=0, pw=16, tlb=0, touch=1, b0=0, mcs=1, pre=2, pst=0, trk=3, ool=1, at2=1, qrate=4, omul=1, specx=0, lsleep=2, ev=5, st0=3, wo_at=0, pf=1, pfb=0, psp=0, xst=1, bq=0, early=0, p1=0, o3=1, outm=1, kp_step=2, vpre=1, hm=1, km=1, sm=1, pw1=2, pws=2, il=0, qgo=5, csk=22, wearly=0, apr=1, fpr=0, epr=0, mpr=0, sg=0, od1=10, pp=0, em=0, hx=1, ho=1, hp=1, hs=2, ex=32, ea=2, eb=3, clr=0, vlag=0, vlaga=0, prex=1, preo=1, ev2=11, red=1, rk0=22, rk1=28, own=0, chain=1, rsl=0, plds=1, pfw=1, hpr=0, vfirst=0, bql=0, pq=0, tpos=0, hb=1, m1l=0, qr0=4, qcv=0, cp0=6, cpl=1)
        self.o.update(opt or {})
        self.P = Prog(); self.stamps = stamps; self.nl = nlayers; self.force_safe = force_safe
        self.stamp_names = {}
        self.vm = Tracker(63); self.lg = Tracker(15); self.stubs = []; self.ool = []

    def stamp(self, idx, name=''):
        if not self.stamps: return
        self.stamp_names[idx] = name
        self.P(f'{"s_memtime" if self.cyc else "s_memrealtime"} {sr(sST,2)}\ns_waitcnt lgkmcnt(0)\nv_writelane_b32 {vr(vSTAMP)}, {sr(sST)}, {idx}')

    def al(self, L): return 0 if self.alias else L

    def mfma(self, d, a, b, c):
        cs = '0' if c is None else vr(c, 16)
        self.P(f'{MFMA} {vr(d,16)}, {vr(a,4)}, {vr(b,4)}, {cs}')

    def srd(self, s, ptr, nbytes):
        self.P(f's_mov_b32 {sr(s)}, {sr(ptr)}\ns_and_b32 {sr(s+1)}, {sr(ptr+1)}, 0xffff\ns_mov_b32 {sr(s+2)}, {nbytes}\ns_mov_b32 {sr(s+3)}, 0x20000')

    def poll(self, soff, masked=False, areg=vPA, val=sTAG):
        P = self.P; lp = P.newlabel('Lpoll'); dn = P.newlabel('Lpolld')
        P.label(lp)
        P(f'buffer_load_dword {vr(vPD)}, {vr(areg)}, {sr(sWS,4)}, {sr(soff)} offen sc1\ns_waitcnt vmcnt(0)')
        if masked:
            P(f'v_and_b32 {vr(vT0)}, -16, {vr(vPD)}\nv_cmp_ne_u32 vcc, {sr(sTAG)}, {vr(vT0)}')
        else:
            P(f'v_cmp_ne_u32 vcc, {sr(val)}, {vr(vPD)}')
        P(f's_cbranch_vccz {dn}')
        if self.o['psleep']: P(f's_sleep {self.o["psleep"]}')
        P(f's_sub_u32 {sr(sBUD)}, {sr(sBUD)}, 1\ns_cbranch_scc0 {lp}\ns_mov_b32 {sr(sBUD)}, 0')
        P.label(dn)

    def flag(self, soff, sval, sc1, wait=None, add=0):
        P = self.P
        P((f'v_add_u32 {vr(vPD)}, {sr(sval)}, {add}' if add else f'v_mov_b32 {vr(vPD)}, {sr(sval)}') + '\ns_mov_b64 exec, 1')
        if wait: P(wait)
        P(f'buffer_store_dword {vr(vPD)}, off, {sr(sWS,4)}, {sr(soff)}' + (' sc1' if sc1 else ''))
        P('s_mov_b64 exec, -1')

    def prio_if(self, cmp):
        P = self.P; l = P.newlabel('Lpr')
        b = self.o['prio'] - 1
        P(f's_setprio {b}\n{cmp}\ns_cbranch_scc0 {l}\ns_setprio {b+1}'); P.label(l)

    def lds_signal(self, idx, wait=True):
        w = 's_waitcnt lgkmcnt(0)\n' if wait else ''
        self.P(f'v_mov_b32 {vr(vPD)}, 1\ns_mov_b64 exec, 1\n{w}ds_add_u32 {vr(vCNT)}, {vr(vPD)} offset:{4*idx}\ns_mov_b64 exec, -1')

    def lds_wait(self, idx, val, sleep=0):
        P = self.P; lp = P.newlabel('Llw')
        P.label(lp)
        if sleep: P(f's_sleep {sleep}')
        P(f'ds_read_b32 {vr(vPD)}, {vr(vCNT)} offset:{4*idx}\ns_waitcnt lgkmcnt(0)\nv_cmp_gt_u32 vcc, {val}, {vr(vPD)}\ns_cbranch_vccnz {lp}')

    def lds_peek(self, idx):
        return [('ds', ('cnt', idx), f'ds_read_b32 {vr(vPD)}, {vr(vCNT)} offset:{4*idx}')]

    def lds_check(self, idx, val):
        P = self.P; ok = P.newlabel('Llc')
        P(waitstr(lg=self.lg.need(('cnt', idx))))
        P(f'v_cmp_gt_u32 vcc, {val}, {vr(vPD)}\ns_cbranch_vccz {ok}')
        self.lds_wait(idx, val)
        P.label(ok)

    def two_way(self, emit):
        P = self.P
        if self.force_safe:
            emit(True); return
        ls = P.newlabel('Lsafe'); le = P.newlabel('Lpub')
        P(f's_cmp_eq_u32 {sr(sFAST)}, 0\ns_cbranch_scc1 {ls}')
        emit(False)
        if self.o['ool']:
            self.ool.append((ls, emit, le))
        else:
            P(f's_branch {le}'); P.label(ls)
            emit(True)
        P.label(le)

    def item(self, it):
        P = self.P
        if isinstance(it, str): P(it)
        elif it[0] == 'wvm': P(waitstr(vm=self.vm.need(it[1])))
        elif it[0] == 'wlg': P(waitstr(lg=self.lg.need(it[1])))
        elif it[0] == 'ds': P(it[2]); self.lg.issue(it[1])
        elif it[0] == 'fn': it[1]()

    def checksum(self, dst, src, n):
        ops = [f'v_add3_u32 {vr(dst)}, {sr(sTAG)}, {vr(src)}, {vr(src+1)}']
        for i in range(2, n, 2): ops.append(f'v_add3_u32 {vr(dst)}, {vr(dst)}, {vr(src+i)}, {vr(src+i+1)}')
        return ops

    def retry_tail(self, lp, dn):
        if self.stamps: self.P('s_add_u32 s99, s99, 1')
        self.P(f's_sub_u32 {sr(sBUD)}, {sr(sBUD)}, 1\ns_cbranch_scc0 {lp}\ns_mov_b32 {sr(sBUD)}, 0')
        self.P.label(dn)
        if self.stamps: self.P('s_lshl_b32 s99, s99, 6')

    def prologue(self):
        P = self.P; o = self.o
        vH, vT = 64, 65
        if self.stamps: P('s_memrealtime s[98:99]\ns_memtime s[100:101]')
        elif o.get('spin'): P('s_memrealtime s[98:99]')
        P(f"""s_cmp_ge_u32 s2, 256
s_cbranch_scc1 L_end
s_load_dwordx16 s[64:79], s[0:1], 0
s_load_dwordx4 s[80:83], s[0:1], 64
s_getpc_b64 s[84:85]
v_lshrrev_b32 v1, 6, v0
s_lshr_b32 {sr(sT1)}, s2, 3
v_readfirstlane_b32 {sr(sW)}, v1
v_and_b32 {vr(vLANE)}, 63, v0
v_lshlrev_b32 {vr(vL16)}, 4, {vr(vLANE)}""")
        lc = P.newlabel('Lx')
        P(f"""s_cmp_lt_u32 {sr(sW)}, {o['cp0']}
s_cbranch_scc1 {lc}
s_and_b32 {sr(sT0)}, {sr(sW)}, 1
s_lshl_b32 {sr(sT0)}, {sr(sT0)}, 5
s_add_u32 {sr(sT0)}, {sr(sT0)}, {sr(sT1)}
s_lshl_b32 {sr(sT0)}, {sr(sT0)}, 10
s_cmp_ge_u32 {sr(sT0)}, CODE_BYTES
s_cbranch_scc1 {lc}
v_add_u32 v255, {sr(sT0)}, {vr(vL16)}
global_load_dword v255, v255, s[84:85]""")
        P.label(lc)
        P(f"""s_and_b32 {sr(sT0)}, s2, 7
s_add_u32 {sr(sC)}, {sr(sT1)}, {o.get('cadd', 0)}
s_and_b32 {sr(sC)}, {sr(sC)}, 15
s_lshr_b32 {sr(sT1)}, {sr(sT1)}, 4
s_lshl_b32 {sr(sR)}, {sr(sT0)}, 1
s_add_u32 {sr(sR)}, {sr(sR)}, {sr(sT1)}
s_and_b32 {sr(sMT)}, {sr(sW)}, 3
s_lshr_b32 {sr(sHS)}, {sr(sW)}, 2
s_lshl_b32 {sr(sRT)}, {sr(sR)}, 2
s_add_u32 {sr(sRT)}, {sr(sRT)}, {sr(sMT)}
s_add_u32 {sr(sS0)}, {sr(sT0)}, {sr(sT1)}
s_lshl_b32 {sr(sT1)}, {sr(sC)}, 1
s_add_u32 {sr(sS0)}, {sr(sS0)}, {sr(sT1)}
s_and_b32 {sr(sS0)}, {sr(sS0)}, 3
s_lshr_b32 {sr(sROT)}, {sr(sC)}, 1
s_lshl1_add_u32 {sr(sROT)}, {sr(sS0)}, {sr(sROT)}
s_and_b32 {sr(sROT)}, {sr(sROT)}, 7
v_mov_b32 v8, 0
v_mov_b32 v9, 0
v_mov_b32 v10, 0
v_mov_b32 v11, 0
v_mov_b32 v90, 0
v_mov_b32 {vr(vPA)}, 0
v_mov_b32 v91, 0
v_mov_b32 v93, 0
v_mov_b32 {vr(vCNT)}, {LDS_CNT}
ds_write_b128 {vr(vCNT)}, v[8:11]
ds_write_b128 {vr(vCNT)}, v[8:11] offset:16
ds_write_b128 {vr(vCNT)}, v[8:11] offset:32
v_lshrrev_b32 v28, 3, {vr(vLANE)}
v_lshlrev_b32 v28, 10, v28
v_lshrrev_b32 v29, 4, {vr(vLANE)}
v_xor_b32 v29, v29, {vr(vLANE)}
v_and_b32 v29, 7, v29
v_lshl_add_u32 v28, v29, 4, v28
v_xor_b32 v29, 64, v28
v_add_u32 v30, {2*7168}, v28
v_add_u32 v31, {3*7168}, v29
v_add_u32 v29, 7168, v29
s_lshl_b32 {sr(sLB)}, {sr(sRT)}, 15
s_lshl_b32 {sr(sLR)}, {sr(sROT)}, 7
s_mul_i32 {sr(sLA)}, {sr(sMT)}, {12288 if o['il'] else 16384}
s_add_u32 {sr(sLA)}, {sr(sLA)}, {LDS_WO if o['il'] else LDS_WQ}
{'s_memrealtime s[92:93]' if self.stamps else ''}
s_waitcnt lgkmcnt(0)
{'s_memrealtime s[94:95]' if self.stamps else ''}
s_load_dword {sr(sTAG)}, s[82:83], 0""")
        self.srd(sX0, 64, 2097152)
        if o['pf'] >= 3:
            lq = P.newlabel('Lx')
            P(f"""s_cmp_lg_u32 {sr(sW)}, {o['pf'] + 1}
s_cbranch_scc1 {lq}
s_lshr_b32 {sr(sT0)}, s2, 3
s_sub_u32 {sr(sT1)}, {sr(sT0)}, 24
s_cselect_b32 {sr(sT0)}, {sr(sT0)}, {sr(sT1)}
s_cselect_b64 {sr(sT2,2)}, s[66:67], s[68:69]
s_lshl_b32 {sr(sT0)}, {sr(sT0)}, 16
v_lshl_add_u32 v26, {vr(vLANE)}, 10, {sr(sT0)}
global_load_dword v25, v26, {sr(sT2,2)} offset:384""")
            P.label(lq)
        def dma_addr():
            P(f"""v_lshrrev_b32 v28, 2, {vr(vLANE)}
v_and_b32 v29, 3, {vr(vLANE)}
v_lshlrev_b32 v29, 4, v29
s_lshl_b32 {sr(sT0)}, {sr(sC)}, 6
v_add_u32 v29, {sr(sT0)}, v29
v_mul_u32_u24 {vr(vDW)}, 3072, v28
v_add_u32 {vr(vDW)}, {vr(vDW)}, v29
v_lshl_add_u32 {vr(vDO)}, v28, 10, v29
s_lshl_b32 {sr(sLA)}, {sr(sMT)}, 11
s_lshr_b32 {sr(sT0)}, {sr(sMT)}, 1
s_add_u32 {sr(sT0)}, {sr(sT0)}, {sr(sROT)}
s_and_b32 {sr(sT0)}, {sr(sT0)}, 7
s_lshl_b32 {sr(sG0)}, {sr(sT0)}, 16
s_xor_b32 {sr(sT0)}, {sr(sMT)}, {sr(sC)}
s_and_b32 {sr(sT0)}, {sr(sT0)}, 1
s_lshl_b32 {sr(sT0)}, {sr(sT0)}, 15
s_add_u32 {sr(sG0)}, {sr(sG0)}, {sr(sT0)}""")
        avm = Tracker(63)
        P(f's_cmp_lg_u32 {sr(sHS)}, 0\ns_cbranch_scc1 L_pro1')
        for g in range(2): self.x0_load(g)
        if o['wearly']: P('s_branch L_pro2')
        P.label('L_pro1')
        if o['wearly']:
            self.srd(sWA, 66, 1572864)
            dma_addr()
            for st in range(o['wearly']): self.dma_w(0, (1, 2), (st,)); avm.issue(st, 4)
        P.label('L_pro2')
        if self.stamps: P('s_memrealtime s[96:97]')
        P('s_barrier')
        self.srd(sWS, 82, WS_USED); self.srd(sWA, 66, 1572864); self.srd(sWoA, 68, 524288)
        self.srd(sWB, 72, 1572864); self.srd(sPhi, 74, 16384); self.srd(sWoB, 76, 524288); self.srd(sOut, 78, 2097152)
        P(f"""s_mul_i32 {sr(sT0)}, {sr(sHS)}, 3
s_xor_b32 {sr(sQT)}, {sr(sMT)}, {sr(sT0)}
s_mov_b32 {sr(sBUD)}, 0x100000
s_mov_b32 {sr(sLO)}, 0xffff
s_mov_b32 {sr(sLO+1)}, 0xffff
s_mov_b32 {sr(sH0)}, -1
s_mov_b32 {sr(sH0+1)}, 0
s_mov_b32 {sr(sFAST)}, 0
s_mov_b32 {sr(sDM)}, 0
s_mov_b32 {sr(sLOG2E)}, {f2u(LOG2E):#x}
s_mov_b32 {sr(sPERM)}, 0x07060302
s_lshl_b32 {sr(sS0)}, {sr(sS0)}, 13
s_getreg_b32 {sr(sOWNF)}, hwreg(HW_REG_XCC_ID, 0, 4)
v_lshrrev_b32 {vr(vH)}, 5, {vr(vLANE)}
v_and_b32 {vr(vT)}, 31, {vr(vLANE)}
v_lshlrev_b32 {vr(vL4)}, 2, {vr(vLANE)}
v_mov_b32 {vr(vSTAMP)}, 0
v_bfe_u32 {vr(vTR1)}, {vr(vLANE)}, 2, 2
v_lshl_add_u32 {vr(vTR1)}, {vr(vH)}, 2, {vr(vTR1)}
v_lshlrev_b32 {vr(vTR2)}, 6, {vr(vTR1)}
v_bfe_u32 {vr(vTR1)}, {vr(vLANE)}, 4, 1
v_lshl_add_u32 {vr(vTR2)}, {vr(vTR1)}, 5, {vr(vTR2)}
v_and_b32 {vr(vTR1)}, 3, {vr(vLANE)}
v_lshl_add_u32 {vr(vTR2)}, {vr(vTR1)}, 3, {vr(vTR2)}
v_lshl_add_u32 {vr(vTR1)}, {vr(vH)}, 8, {vr(vTR2)}
v_add_u32 {vr(vTR1)}, {LDS_WQ}, {vr(vTR1)}
v_add_u32 {vr(vTR2)}, {LDS_WO}, {vr(vTR2)}
s_lshl_b32 {sr(sT0)}, {sr(sMT)}, 7
s_add_u32 {sr(sT0)}, {sr(sT0)}, {LDS_RSTD}
v_lshl_add_u32 {vr(vRA)}, {vr(vT)}, 2, {sr(sT0)}
v_lshl_add_u32 {vr(vRB)}, {vr(vH)}, 4, {sr(sT0)}
v_lshlrev_b32 {vr(vFD)}, 2, {vr(vH)}
v_sub_u32 {vr(vFD)}, {vr(vT)}, {vr(vFD)}
v_cvt_f32_i32 {vr(vFD)}, {vr(vFD)}
v_mul_f32 {vr(vFD)}, {f2u(2.0**100):#x}, {vr(vFD)}
s_waitcnt lgkmcnt(0)
s_and_b32 {sr(sTAG)}, {sr(sTAG)}, -16
s_add_u32 {sr(sTAG)}, {sr(sTAG)}, {TAGC:#x}
s_or_b32 {sr(sOWNF)}, {sr(sOWNF)}, {sr(sTAG)}
s_lshl_b32 {sr(sT0)}, {sr(sR)}, 2
s_add_u32 {sr(sT0)}, {sr(sT0)}, {sr(sQT)}
s_lshl_b32 {sr(sT0)}, {sr(sT0)}, 5
s_lshl_b32 {sr(sT1)}, {sr(sC)}, 1
s_add_u32 {sr(sT0)}, {sr(sT0)}, {sr(sT1)}
s_add_u32 {sr(sT0)}, {sr(sT0)}, {sr(sHS)}
s_lshl_b32 {sr(sOW)}, {sr(sT0)}, 10
s_lshl_b32 {sr(sOF)}, {sr(sT0)}, 2
s_lshr_b32 {sr(sT0)}, {sr(sMT)}, 1
s_add_u32 {sr(sT0)}, {sr(sT0)}, {sr(sR)}
s_sub_u32 {sr(sT0)}, {sr(sT0)}, 2
s_cselect_b32 {sr(sHAS)}, 0, 1
s_lshl_b32 {sr(sT0)}, {sr(sT0)}, 1
s_and_b32 {sr(sT1)}, {sr(sMT)}, 1
s_add_u32 {sr(sT0)}, {sr(sT0)}, {sr(sT1)}
s_lshl_b32 {sr(sT0)}, {sr(sT0)}, 5
s_add_u32 {sr(sT0)}, {sr(sT0)}, {sr(sC)}
s_mul_i32 {sr(sHB)}, {sr(sT0)}, {KV_REC}
s_cmp_lt_u32 {sr(sQT)}, 2
s_cselect_b32 {sr(sHAS)}, {sr(sHAS)}, 0
s_cmp_eq_u32 {sr(sR)}, 1
s_cselect_b32 {sr(sT0)}, 4, {sr(sQT)}
s_sub_u32 {sr(sC2)}, 8, {sr(sT0)}
s_lshl_b32 {sr(sP2)}, {sr(sT0)}, 12
s_add_u32 {sr(sP2)}, {sr(sP2)}, {LDS_T}
s_mul_i32 {sr(sOWN)}, {sr(sQT)}, {OWN_ST}
s_add_u32 {sr(sOWN)}, {sr(sOWN)}, {LDS_OWN}
s_lshl_b32 {sr(sT0)}, {sr(sRT)}, 4
s_add_u32 {sr(sT0)}, {sr(sT0)}, {sr(sC)}
s_mul_i32 {sr(sKVW)}, {sr(sT0)}, {KV_REC}
s_lshl_b32 {sr(sXW)}, {sr(sT0)}, 11
s_lshl_b32 {sr(sSW)}, {sr(sT0)}, 8
s_lshl_b32 {sr(sXF)}, {sr(sRT)}, 7
s_lshl_b32 {sr(sRB)}, {sr(sRT)}, 15""")
        self.stamp(0, 'start')
        if self.stamps:
            self.stamp_names.update({32: 'pre karg', 43: 'karg', 51: 'x issued'})
            P(f'v_writelane_b32 {vr(vSTAMP)}, s92, 32\nv_writelane_b32 {vr(vSTAMP)}, s94, 43\nv_writelane_b32 {vr(vSTAMP)}, s96, 51')
            self.stamp_names[60] = 'entry'; P(f'v_writelane_b32 {vr(vSTAMP)}, s98, 60\ns_mov_b32 s99, 0\ns_mov_b32 s101, 0')
        P(f's_cmp_eq_u32 {sr(sHS)}, 0\ns_cbranch_scc1 L_main_0')
        lh = P.newlabel('Lx'); lt = P.newlabel('Lx')
        P(f"""s_lshl_b32 {sr(sT2)}, {sr(sR)}, 7
s_lshl_b32 {sr(sT3)}, {sr(sC)}, 2
s_add_u32 {sr(sT2)}, {sr(sT2)}, {sr(sT3)}
s_add_u32 {sr(sT2)}, {sr(sT2)}, {OFF_XFLAG}
s_cmp_lg_u32 {sr(sMT)}, 0
s_cbranch_scc1 {lh}""")
        self.flag(sT2, sOWNF, True)
        P.label(lh)
        if o['pf'] in (1, 2): self.coop_prefetch(0, o['pf'])
        if not o['wearly']: dma_addr()
        P(f"""v_add_u32 {vr(vCH)}, {sr(sLA)}, {vr(vL16)}
v_subrev_u32 {vr(vCS)}, {LDS_WO}, {vr(vTR2)}
v_add_u32 {vr(vCS)}, {sr(sLA)}, {vr(vCS)}
v_lshl_add_u32 v31, {vr(vH)}, 8, {vr(vCS)}""")
        for i in range(4): P(f'v_mov_b32 {vr(ONES+i)}, 0x3f803f80')
        P(f'v_lshlrev_b32 v30, 10, {vr(vH)}\nv_add_u32 v30, {LDS_ONES}, v30\nds_write_b128 v30, {vr(ONES,4)}')
        self.csp_waddr(0)
        P(f'v_lshl_add_u32 v30, {vr(vH)}, 9, v28')
        for op in self.mask_ops(0) + self.mask_ops(1): P(op)
        if o['tlb']:
            lw = P.newlabel('Lx')
            P(f"""s_cmp_lg_u32 {sr(sMT)}, 1
s_cbranch_scc1 {lw}
v_and_b32 v68, 15, {vr(vLANE)}
v_bfe_u32 v69, {vr(vLANE)}, 4, 1
s_lshl_b32 {sr(sT0)}, {sr(sR)}, 2
s_sub_u32 {sr(sT0)}, {sr(sT0)}, 8
v_min_u32 v70, 11, v68
v_add_u32 v70, {sr(sT0)}, v70
v_max_i32 v70, 0, v70
v_lshl_add_u32 v70, v70, 4, {sr(sC)}
v_lshl_add_u32 v70, v69, 10, v70
v_mul_u32_u24 v70, {KV_REC}, v70
v_add_u32 v70, {OFF_KV + KV_REC - 128}, v70
s_lshl_b32 {sr(sT0)}, {sr(sC)}, 4
v_add_u32 v68, {sr(sT0)}, v68
v_lshl_add_u32 v68, v69, 8, v68
v_mul_u32_u24 v68, {KP_REC}, v68
v_add_u32 v68, {OFF_KP + KP_REC - 128}, v68
v_cndmask_b32 v68, v68, v70, {sr(sH0,2)}
buffer_load_dword v26, v68, {sr(sWS,4)}, 0 offen""")
            P.label(lw)
        if o['wgo']: self.lds_wait(C_WGO, o['wgon'])
        self.stamp(2, 'x g0 / W go')
        PRE = o['pre']; MCS = o['mcs']; CA = {1: 32, 2: 64, 0: 32}
        for st in range(o['wearly'], PRE): self.dma_w(0, (1, 2), (st,)); avm.issue(st, 4)
        qs = [[0, 1], [2, 3]] if PRE == 2 else ([[0, 1], [2, 3], []] if PRE == 3 else [[], [0, 1], [2, 3], []])
        first_q = True
        if not MCS:
            for i in range(4): P(f'v_mov_b32 {vr(64+i)}, 0')
        if o['il']: qs = [[]]*4
        for st in range(4):
            if st + PRE < 4: self.dma_w(0, (1, 2), (st + PRE,)); avm.issue(st + PRE, 4)
            else:
                q = qs.pop(0)
                if q:
                    if first_q:
                        self.lds_wait(C_XDONE, 4); first_q = False
                        if o['apr']: P('s_setprio 3')
                    self.dma_w(0, (0,), q); avm.issue('q', 4)
            P(waitstr(vm=avm.need(st)))
            self.stamp((15, 23, 29, 1)[st], ('x g3 / W st0', 'x g5 / W st1', 'S0 / W st2', 'x0 / W st3')[st])
            self.lds_signal(C_ST + st)
            ch = [(nt, 2*st + e) for nt in (1, 2) for e in range(2)]
            for nt, u in ch:
                r_ = PARK[nt] + 4*u; of = NT_LDS[nt] + cho(u)
                P(f'ds_read_b64_tr_b16 {vr(r_,2)}, v31 offset:{of}\nds_read_b64_tr_b16 {vr(r_+2,2)}, v31 offset:{of+256}')
            for k, (nt, u) in enumerate(ch):
                P(f's_waitcnt lgkmcnt({6-2*k})')
                if MCS: self.mfma(CA[nt], ONES, PARK[nt] + 4*u, None if u == 0 else CA[nt])
                else: self.valu_sum(PARK[nt] + 4*u, 64 + 2*(nt - 1))
        if MCS: P(f'ds_write_b32 v28, {vr(CA[1])} offset:512\nds_write_b32 v28, {vr(CA[2])} offset:1024')
        else: P('v_add_f32 v64, v64, v65\nv_add_f32 v66, v66, v67\nv_permlane32_swap_b32 v64, v66\nv_add_f32 v64, v64, v66\nds_write_b32 v30, v64 offset:512')
        self.lds_signal(C_CS, wait=False)
        if o['apr'] == 1: P('s_setprio 0')
        self.stamp(14, 'S3 / W done')
        if o['il']:
            self.lds_wait(C_CSQ, 4, 1); self.dma_w(0, (0,))
            self.lds_wait(C_XDONE, 4, 1)
        if o['clr']: self.hello_load()
        if o['wo_at'] == 0: self.dma_w(0, ('o',))
        P(f'v_add_u32 v31, {LDS_WQ}, v31\ns_waitcnt vmcnt({8 if o["wo_at"] == 0 else 0})')
        self.lds_signal(C_Q)
        self.stamp(4, 'Q done')
        if o['wo_at'] == 1: self.dma_w(0, ('o',))
        for u0 in (0, 4):
            for u in range(u0, u0 + 4):
                r_ = PARK[0] + 4*u
                P(f'ds_read_b64_tr_b16 {vr(r_,2)}, v31 offset:{cho(u)}\nds_read_b64_tr_b16 {vr(r_+2,2)}, v31 offset:{cho(u)+256}')
            for k, u in enumerate(range(u0, u0 + 4)):
                P(f's_waitcnt lgkmcnt({6-2*k})')
                if o['qcv']:
                    if u == 0: P('v_mov_b32 v64, 0\nv_mov_b32 v65, 0')
                    self.valu_sum(PARK[0] + 4*u, 64)
                else: self.mfma(CA[0], ONES, PARK[0] + 4*u, None if u == 0 else CA[0])
        if o['qcv']: P('v_add_f32 v64, v64, v65\nv_mov_b32 v66, v64\nv_permlane32_swap_b32 v64, v66\nv_add_f32 v64, v64, v66\nds_write_b32 v28, v64')
        else: P(f'ds_write_b32 v28, {vr(CA[0])}')
        self.lds_signal(C_CSQ, wait=False)
        if o['plds']:
            lf = P.newlabel('Lx')
            P(f's_cmp_lg_u32 {sr(sMT)}, 0\ns_cbranch_scc1 {lf}\ns_mov_b32 m0, {LDS_PHI}\ns_lshl_b32 {sr(sT0)}, {sr(sC)}, 10\nbuffer_load_dwordx4 {vr(vL16)}, {sr(sPhi,4)}, {sr(sT0)} offen lds')
            P.label(lf)
        P(f"""s_cmp_lg_u32 {sr(sMT)}, {2 if o['pfw'] else 9}
s_cbranch_scc1 {lt}
v_lshlrev_b32 v6, 7, {vr(vLANE)}
s_mul_i32 {sr(sT0)}, s2, {48*128}
buffer_load_dword v26, v6, {sr(sWB,4)}, {sr(sT0)} offen
v_and_b32 v6, 0x780, v6
s_lshl_b32 {sr(sT0)}, s2, 11
buffer_load_dword v26, v6, {sr(sWoB,4)}, {sr(sT0)} offen""")
        P.label(lt)
        if o['pfb'] == 1: self.coop_prefetch(1, 1)
        P('s_branch L_aux_0')

    def coop_prefetch(self, typ, mode):
        P = self.P; l1 = P.newlabel('Lx'); l2 = P.newlabel('Lx')
        if mode == 1: P(f's_cmp_lg_u32 {sr(sMT)}, 1\ns_cbranch_scc1 {l2}')
        offs = (128,) if mode == 1 else (128, 0)
        P(f"""v_lshlrev_b32 v5, 10, {vr(vLANE)}
s_lshr_b32 {sr(sT0)}, s2, 3
s_lshl_b32 {sr(sT0)}, {sr(sT0)}, 16
s_lshl_b32 {sr(sT1)}, {sr(sMT)}, 8
s_add_u32 {sr(sT0)}, {sr(sT0)}, {sr(sT1)}
s_cmp_ge_u32 s2, 192
s_cbranch_scc1 {l1}""")
        for of in offs: P(f'buffer_load_dword v26, v5, {sr((sWA, sWB)[typ],4)}, {sr(sT0)} offen offset:{of}')
        P(f's_branch {l2}'); P.label(l1)
        P(f's_sub_u32 {sr(sT0)}, {sr(sT0)}, {24 << 16}')
        for of in offs: P(f'buffer_load_dword v26, v5, {sr((sWoA, sWoB)[typ],4)}, {sr(sT0)} offen offset:{of}')
        P.label(l2)

    def valu_sum(self, frag, acc):
        for i in range(4):
            self.P(f'v_lshlrev_b32 v68, 16, {vr(frag+i)}\nv_and_b32 v69, 0xffff0000, {vr(frag+i)}\nv_add_f32 {vr(acc)}, {vr(acc)}, v68\nv_add_f32 {vr(acc+1)}, {vr(acc+1)}, v69')

    def x0_load(self, g):
        P = self.P
        P(f's_add_u32 m0, {sr(sLA)}, {(g % (3 if self.o["il"] else 4))*4096}\ns_add_u32 {sr(sT3)}, {sr(sLB)}, {sr(sLR)}')
        for j in range(4): P(f'buffer_load_dwordx4 {vr(28+j)}, {sr(sX0,4)}, {sr(sT3)} offen offset:{j*1024} lds')
        P(f's_add_u32 {sr(sLR)}, {sr(sLR)}, 128\ns_and_b32 {sr(sLR)}, {sr(sLR)}, 0x3ff')
        self.vm.issue(('x', g), 4)

    def code_prefetch(self, label):
        P = self.P; lc = P.newlabel('Lx')
        if not self.o['cpl']: return
        P(f"""s_cmp_lg_u32 {sr(sMT)}, 3
s_cbranch_scc1 {lc}
s_lshl_b32 {sr(sT0)}, {sr(sC)}, 10
s_add_u32 {sr(sT0)}, {sr(sT0)}, ({label} - {NAME}_kernel)
s_cmp_ge_u32 {sr(sT0)}, CODE_BYTES
s_cbranch_scc1 {lc}
v_add_u32 v26, {sr(sT0)}, {vr(vL16)}
global_load_dword v26, v26, s[84:85]""")
        P.label(lc)

    def wphi_load(self, B=96):
        P = self.P; a, t = vr(B + 8), vr(B + 9)
        P(f"""s_lshl_b32 {sr(sT0)}, {sr(sC)}, 1
s_add_u32 {sr(sT0)}, {sr(sT0)}, {sr(sHS)}
s_lshl_b32 {sr(sT0)}, {sr(sT0)}, 9
v_bfe_u32 {a}, {vr(vLANE)}, 3, 2
v_and_b32 {t}, 3, {vr(vLANE)}
v_lshl_add_u32 {a}, {a}, 2, {t}
v_lshlrev_b32 {a}, 1, {a}
v_lshrrev_b32 {t}, 5, {vr(vLANE)}
v_lshl_add_u32 {a}, {t}, 7, {a}""")
        if self.o['plds']:
            P(f's_and_b32 {sr(sT0)}, {sr(sT0)}, 512\ns_add_u32 {sr(sT0)}, {sr(sT0)}, {LDS_PHI}\nv_add_u32 {a}, {sr(sT0)}, {a}')
        for j in range(8):
            d = (j if j < 4 else 8 + j - 4)
            if self.o['plds']: P(f'ds_read_u16 {vr(B+j)}, {a} offset:{d*32}'); continue
            P(f'buffer_load_ushort {vr(B+j)}, {a}, {sr(sPhi,4)}, {sr(sT0)} offen offset:{d*32}')

    def wphi_pack(self, B=96):
        ops = [f'v_lshl_or_b32 {vr(WPHI+p)}, {vr(B+2*p+1)}, 16, {vr(B+2*p)}' for p in range(4)]
        ops += [f'v_bfe_i32 {vr(B)}, {vr(vLANE)}, 2, 1', f'v_and_b32 {vr(B)}, 0x80008000, {vr(B)}']
        return ops + [f'v_xor_b32 {vr(WPHI+p)}, {vr(B)}, {vr(WPHI+p)}' for p in range(4)]

    def dma_w(self, typ, nts, stages=range(4)):
        P = self.P; wo = nts == ('o',)
        srd = (sWoA, sWoB)[typ] if wo else (sWA, sWB)[typ]
        for st in stages:
            P(f's_add_u32 {sr(sT0)}, {sr(sG0)}, {st*0x20000}\ns_and_b32 {sr(sT0)}, {sr(sT0)}, 0x7ffff')
            if not wo: P(f's_mul_i32 {sr(sT0)}, {sr(sT0)}, 3')
            late = wo or typ == 1
            if late: P(f's_add_u32 {sr(sT3)}, {sr(sS0)}, {st*8192}\ns_and_b32 {sr(sT3)}, {sr(sT3)}, 0x7fff\ns_add_u32 {sr(sT3)}, {sr(sT3)}, {sr(sLA)}')
            for e in range(2):
                for nt in nts:
                    P(f's_add_u32 m0, {sr(sT3)}, {NT_LDS[nt] + e*1024}' if late else f's_add_u32 m0, {sr(sLA)}, {NT_LDS[nt] + cho(2*st + e)}')
                    P(f's_add_u32 {sr(sT1)}, {sr(sT0)}, {e*16384 if wo else e*49152 + nt*1024}')
                    P(f'buffer_load_dwordx4 {vr(vDO if wo else vDW)}, {sr(srd,4)}, {sr(sT1)} offen lds')

    def csp_waddr(self, typ):
        self.P(f"""s_lshl_b32 {sr(sT0)}, {sr(sMT)}, 2
s_add_u32 {sr(sT0)}, {sr(sT0)}, {LDS_CSP + typ*1536}
v_and_b32 v28, 31, {vr(vLANE)}
v_lshl_add_u32 v28, v28, 4, {sr(sT0)}""")

    def chunk_addr(self, region):
        if region < 65536: return vCH, region
        self.P(f'v_add_u32 {vr(vT0)}, {region}, {vr(vCH)}'); return vT0, 0

    def lds_to_regs(self, region, dst, tr=False):
        if tr:
            self.P(f'v_add_u32 v29, {region}, {vr(vCS)}')
            for u in range(8): self.P(f'ds_read_b64_tr_b16 {vr(dst+4*u,2)}, v29 offset:{cho(u)}\nds_read_b64_tr_b16 {vr(dst+4*u+2,2)}, v29 offset:{cho(u)+512}')
            return
        a, o = self.chunk_addr(region)
        for u in range(8): self.P(f'ds_read_b128 {vr(dst+4*u,4)}, {vr(a)} offset:{o+cho(u)}')

    def regs_to_lds(self, region, src, rot=False):
        if rot:
            if region >= 65536:
                for st in range(4): self.P(f'v_add_u32 {vr(64+st)}, {region}, {vr(64+st)}')
            for u in range(8): self.P(f'ds_write_b128 {vr(64 + (u >> 1))}, {vr(src+4*u,4)} offset:{(region if region < 65536 else 0) + (u & 1)*1024}')
            return
        a, o = self.chunk_addr(region)
        for u in range(8): self.P(f'ds_write_b128 {vr(a)}, {vr(src+4*u,4)} offset:{o+cho(u)}')

    def relayout(self, typ, nts, tmp=64, ntmp=8):
        P = self.P
        if nts != ('o',): self.csp_waddr(typ)
        for k, nt in enumerate(nts):
            region = NT_LDS[nt]
            P(f'v_add_u32 v29, {region}, {vr(vCS)}')
            acc = ACC0 if k % 2 == 0 else ACC1
            lg = Tracker(15)
            reg = lambda u: tmp + 4*(u % ntmp)
            for u0 in range(0, 8, 4):
                for u in range(u0, u0 + 4):
                    P(f'ds_read_b64_tr_b16 {vr(reg(u),2)}, v29 offset:{cho(u)}\nds_read_b64_tr_b16 {vr(reg(u)+2,2)}, v29 offset:{cho(u)+512}'); lg.issue(u, 2)
                for u in range(u0, u0 + 4):
                    P(waitstr(lg=lg.need(u)))
                    if nt != 'o': self.mfma(acc, ONES, reg(u), None if u == 0 else acc)
        for k, nt in enumerate(nts):
            if nt != 'o': P(f'ds_write_b32 v28, {vr(ACC0 if k % 2 == 0 else ACC1)} offset:{nt*512}')
        P('s_waitcnt lgkmcnt(0)')

    def swap_region(self, nt, save, tr=False):
        P = self.P
        if save:
            self.lds_to_regs(NT_LDS[nt], 32, tr); P('s_waitcnt lgkmcnt(0)')
        self.regs_to_lds(NT_LDS[nt], PARK[nt], tr and nt != 'o'); P('s_waitcnt lgkmcnt(0)')
        if save:
            for i in range(32): P(f'v_mov_b32 {vr(PARK[nt]+i)}, {vr(32+i)}')

    def unpack_res(self):
        for p in range(8):
            self.P(f'v_lshlrev_b32 {vr(ACC0+2*p)}, 16, {vr(XRES+p)}\nv_and_b32 {vr(ACC0+2*p+1)}, 0xffff0000, {vr(XRES+p)}')

    def rowmajor_addr(self, dst, tmp, sdst):
        self.P(f"""v_and_b32 {vr(dst)}, 31, {vr(vLANE)}
v_lshlrev_b32 {vr(dst)}, 10, {vr(dst)}
v_lshrrev_b32 {vr(tmp)}, 5, {vr(vLANE)}
v_lshl_add_u32 {vr(dst)}, {vr(tmp)}, 4, {vr(dst)}
s_lshl_b32 {sr(sdst)}, {sr(sC)}, 6
s_add_u32 {sr(sdst)}, {sr(sdst)}, {sr(sRB)}""")

    def publish_x_addr(self, L):
        if L == self.nl: return self.rowmajor_addr(vKA, vVA, sK0)
        self.P(f's_add_u32 {sr(sK1)}, {sr(sSW)}, {OFF_ST}')
        if L == 1 or self.o['hx']: self.P(f's_lshl_b32 {sr(sK2)}, {sr(sC)}, 2\ns_add_u32 {sr(sK2)}, {sr(sK2)}, {sr(sXF)}\ns_add_u32 {sr(sK2)}, {sr(sK2)}, {OFF_XFLAG + 0x2000}')

    def set_par(self, reg, par):
        return f'v_or_b32 {vr(reg)}, 1, {vr(reg)}' if par else f'v_and_b32 {vr(reg)}, -2, {vr(reg)}'

    def acc_par(self, a, b, par):
        return f'v_bitop3_b32 {vr(vPD)}, {vr(vPD)}, {vr(a)}, {vr(b)} bitop3:0x80' if par else f'v_or3_b32 {vr(vPD)}, {vr(vPD)}, {vr(a)}, {vr(b)}'

    def test_par(self, par):
        return f'v_and_b32 {vr(vCK)}, 1, {vr(vPD)}\nv_cmp_ne_u32 vcc, {par}, {vr(vCK)}'

    def hello_load(self):
        self.P(f'v_and_b32 {vr(vPA)}, 60, {vr(vL4)}\ns_lshl_b32 {sr(sK2)}, {sr(sR)}, 7\ns_add_u32 {sr(sK2)}, {sr(sK2)}, {OFF_XFLAG}\nbuffer_load_dword v25, {vr(vPA)}, {sr(sWS,4)}, {sr(sK2)} offen sc1')

    def hello_check(self):
        P = self.P; okl = P.newlabel('Lx')
        P(f'v_mov_b32 {vr(vPD)}, v25\nv_and_b32 {vr(vT0)}, -16, v25\nv_cmp_ne_u32 vcc, {sr(sTAG)}, {vr(vT0)}\ns_cbranch_vccz {okl}')
        self.poll(sK2, masked=True)
        P.label(okl)
        if not self.force_safe:
            P(f"""v_cmp_ne_u32 vcc, {sr(sOWNF)}, {vr(vPD)}
s_cmp_eq_u64 vcc, 0
s_cselect_b32 {sr(sFAST)}, 1, 0
v_mov_b32 {vr(vT0)}, {sr(sFAST)}
ds_write_b32 {vr(vCNT)}, {vr(vT0)} offset:44""")

    def clear_lines(self, Z):
        P = self.P
        P(f's_add_u32 {sr(sT0)}, {sr(sXW)}, {OFF_O}\ns_add_u32 {sr(sT1)}, {sr(sSW)}, {OFF_ST}')
        def clear(sc1):
            m = ' sc1' if sc1 else ''
            for of in (0, 1024): P(f'buffer_store_dwordx4 {vr(Z,4)}, {vr(vL16)}, {sr(sWS,4)}, {sr(sT0)} offen offset:{of}{m}')
            for of in (0, 1024): P(f'buffer_store_dwordx4 {vr(Z,4)}, {vr(vL16)}, {sr(sOut,4)}, {sr(sXW)} offen offset:{of}{m}')
            P(f'buffer_store_dword {vr(Z)}, {vr(vL4)}, {sr(sWS,4)}, {sr(sT1)} offen{m}')
        self.two_way(clear)

    def hint_prep(self, r, add):
        return [f'v_cmp_gt_u32 vcc, {sr(sFAST)}, {vr(vLANE)}', f'v_add_u32 {vr(r)}, {sr(sTAG)}, {add}', f'v_cndmask_b32 {vr(r+1)}, {OOB:#x}, {vr(vLANE)}, vcc']

    def hint(self, r, soff):
        self.P(f'buffer_store_dword {vr(r)}, {vr(r+1)}, {sr(sWS,4)}, {sr(soff)} offen')

    def first_hop(self, base_off, foff, mask, par=None, add=0, pre=None):
        self.P(f'v_and_b32 v110, {mask}, {vr(vL4)}\ns_add_u32 {sr(sT2)}, {sr(sXF)}, {foff}')
        self.frag_setup(base_off)
        if add: self.P(f's_add_u32 {sr(sT0)}, {sr(sTAG)}, {add}')
        NP = self.o['hp']
        if NP:
            P = self.P; lp = P.newlabel('Lpoll'); dn = P.newlabel('Lpolld'); val = sT0 if add else sTAG
            if pre is not None:
                P(f's_waitcnt vmcnt({pre})\nv_cmp_ne_u32 vcc, {sr(val)}, v103\ns_cbranch_vccz {dn}')
            ld = lambda i: P(f'buffer_load_dword {vr(104 + i)}, v110, {sr(sWS,4)}, {sr(sT2)} offen sc1')
            for i in range(NP):
                ld(i); P(f's_sleep {self.o["hs"]}')
            P.label(lp)
            for i in range(NP + 1):
                ld((i + NP) % (NP + 1))
                P(f's_waitcnt vmcnt({NP})\nv_cmp_ne_u32 vcc, {sr(val)}, {vr(104 + i)}\ns_cbranch_vccz {dn}')
            P(f's_sub_u32 {sr(sBUD)}, {sr(sBUD)}, 1\ns_cbranch_scc0 {lp}\ns_mov_b32 {sr(sBUD)}, 0')
            P.label(dn)
        else: self.poll(sT2, areg=110, val=sT0 if add else sTAG)
        if par is not None: self.P(f'v_mov_b32 {vr(vPD)}, {par}')
        return 0

    def probe(self, srd, base_off, par, nwin):
        P = self.P; lp = P.newlabel('Lprobe'); dn = P.newlabel('Lprobed'); S = min(self.o['specx' if srd == sOut else 'spec'], nwin)
        self.frag_setup(base_off)
        if self.o['pp']:
            A_, B_, AD_ = 108, 109, vPA
            if srd == sOut:
                AD_ = 110; P(f'v_or_b32 v110, 1024, {vr(vPA)}')
            ld = lambda r: P(f'buffer_load_dword {vr(r)}, {vr(AD_)}, {sr(srd,4)}, {sr(sLB)} offen sc1')
            ld(A_); P(f's_sleep {self.o["pp"]}')
            P.label(lp)
            for cur, nxt in ((A_, B_), (B_, A_)):
                ld(nxt)
                P(f's_waitcnt vmcnt(1)\nv_and_b32 {vr(vPD)}, 1, {vr(cur)}\nv_cmp_ne_u32 vcc, {par}, {vr(vPD)}\ns_cbranch_vccz {dn}')
            P(f's_sub_u32 {sr(sBUD)}, {sr(sBUD)}, 1\ns_cbranch_scc0 {lp}\ns_mov_b32 {sr(sBUD)}, 0')
            P.label(dn)
            return 0
        if self.o['pst'] and srd == sOut: P(f'v_lshrrev_b32 {vr(STAT+15)}, 2, {vr(vLANE)}\nv_lshlrev_b32 {vr(STAT+15)}, 8, {vr(STAT+15)}')
        P.label(lp)
        if self.o['pst'] and srd == sOut:
            P(f'buffer_load_dword {vr(vPD)}, {vr(STAT+15)}, {sr(sWS,4)}, {sr(sT1)} offen offset:252 sc1')
        elif self.o['pw'] == 16 and srd == sOut:
            P(f'v_or_b32 {vr(vPD)}, 1024, {vr(vPA)}\nbuffer_load_dword {vr(vPD)}, {vr(vPD)}, {sr(srd,4)}, {sr(sLB)} offen sc1')
        else: P(f'buffer_load_dword {vr(vPD)}, {vr(vPA)}, {sr(srd,4)}, {sr(sLB)} offen sc1')
        for ks in range(S): self.frag_load(srd, ks)
        P(f's_waitcnt vmcnt({S})')
        P(self.test_par(par))
        P(f's_cbranch_vccz {dn}')
        if self.o['em']: P('s_mov_b64 exec, vcc')
        if self.o['psleep']: P(f's_sleep {self.o["psleep"]}')
        if S: self.frag_setup(None)
        P(f's_sub_u32 {sr(sBUD)}, {sr(sBUD)}, 1\ns_cbranch_scc0 {lp}\ns_mov_b32 {sr(sBUD)}, 0')
        P.label(dn)
        if self.o['em']: P('s_mov_b64 exec, -1')
        return S

    def verify(self, par, redo):
        P = self.P; st = P.newlabel('Lver'); ct = P.newlabel('Lverc')
        P(self.test_par(par)); P(f's_cbranch_vccnz {st}')
        P.label(ct)
        self.stubs.append((st, redo, ct))

    def emit_stubs(self):
        P = self.P
        for ls, emit, le in self.ool:
            P.label(ls); emit(True); P(f's_branch {le}')
        for k, (st, redo, ct) in enumerate(self.stubs):
            P.label(st)
            if self.stamps: P(f's_add_u32 s101, s101, {1 << (2*k)}')
            P(f's_waitcnt vmcnt(0) lgkmcnt(0)\ns_sub_u32 {sr(sBUD)}, {sr(sBUD)}, 1\ns_cbranch_scc0 {redo}\ns_mov_b32 {sr(sBUD)}, 0\ns_branch {ct}')

    def probe_addr(self):
        if self.o['pw'] == 64:
            return f"""v_lshrrev_b32 {vr(vPA)}, 1, {vr(vLANE)}
v_lshlrev_b32 {vr(vPA)}, 10, {vr(vPA)}
v_and_b32 {vr(vCK)}, 1, {vr(vLANE)}
v_mad_u32_u24 {vr(vPA)}, {vr(vCK)}, {sr(sC1008)}, {vr(vPA)}"""
        if self.o['psp']:
            return f"""v_lshrrev_b32 {vr(vPA)}, 2, {vr(vLANE)}
v_add_u32 {vr(vPA)}, {sr(sC)}, {vr(vPA)}
v_and_b32 {vr(vPA)}, 7, {vr(vPA)}
v_lshlrev_b32 {vr(vPA)}, 7, {vr(vPA)}
v_lshrrev_b32 {vr(vCK)}, 1, {vr(vLANE)}
v_lshl_add_u32 {vr(vPA)}, {vr(vCK)}, 10, {vr(vPA)}"""
        return f'v_lshrrev_b32 {vr(vPA)}, 1, {vr(vLANE)}\nv_lshl_add_u32 {vr(vPA)}, {vr(vPA)}, 10, {sr(sC1008)}'

    def publish_x(self, L):
        P = self.P
        natural = (L % 2 == 0); T = XF; par = L & 1
        for p in range(8): P(f'v_cvt_pk_bf16_f32 {vr(T+p)}, {vr(ACC0+2*p)}, {vr(ACC0+2*p+1)}')
        if natural:
            for a, b in SW4: P(f'v_permlane32_swap_b32 {vr(T+a)}, {vr(T+b)}')
        if L == self.nl:
            m = ['', ' nt', ' sc1'][self.o.get('outm', 0)]
            P(f'buffer_store_dwordx4 {vr(T,4)}, {vr(vKA)}, {sr(sOut,4)}, {sr(sK0)} offen{m}\nbuffer_store_dwordx4 {vr(T+4,4)}, {vr(vKA)}, {sr(sOut,4)}, {sr(sK0)} offen offset:32{m}')
            return
        P(self.set_par(T, par)); P(self.set_par(T + 4, par))
        def emit(sc1):
            m = ' sc1' if sc1 else (' nt' if self.o.get('nta') else '')
            P(f'buffer_store_dwordx4 {vr(T,4)}, {vr(vL16)}, {sr(sOut,4)}, {sr(sXW)} offen{m}')
            P(f'buffer_store_dwordx4 {vr(T+4,4)}, {vr(vL16)}, {sr(sOut,4)}, {sr(sXW)} offen offset:1024{m}')
            if (L > 1 or self.o['clr']) and self.o['hx'] == 1 and (sc1 or not self.o['ex'] or L == 1): self.flag(sK2, sTAG, sc1, add=L - 1)
            if L > 1 and self.o['prex']: P(f'buffer_load_dword v103, v111, {sr(sWS,4)}, {sr(sXF)} offen sc1')
            for k in range(4):
                P(f'v_pk_add_f32 {vr(64+2*k,2)}, {vr(ACC0+4*k,2)}, {vr(ACC0+4*k+2,2)}')
            P(f'v_pk_mul_f32 v[72:73], {vr(ACC0,2)}, {vr(ACC0,2)}\nv_pk_mul_f32 v[74:75], {vr(ACC0+2,2)}, {vr(ACC0+2,2)}')
            P('v_pk_add_f32 v[64:65], v[64:65], v[66:67]\nv_pk_add_f32 v[68:69], v[68:69], v[70:71]')
            for k in range(2, 8): P(f'v_pk_fma_f32 {vr(72+2*(k&1),2)}, {vr(ACC0+2*k,2)}, {vr(ACC0+2*k,2)}, {vr(72+2*(k&1),2)}')
            P('v_pk_add_f32 v[64:65], v[64:65], v[68:69]\nv_pk_add_f32 v[72:73], v[72:73], v[74:75]')
            P('v_add_f32 v64, v64, v65\nv_add_f32 v66, v72, v73\nv_permlane32_swap_b32 v64, v66\nv_add_f32 v64, v64, v66')
            P(self.set_par(64, par))
            P(f'buffer_store_dword v64, {vr(vL4)}, {sr(sWS,4)}, {sr(sK1)} offen{m}')
            if L == 1 and not self.o['clr']: self.flag(sK2, sTAG, sc1, wait='s_waitcnt vmcnt(0)')
            elif self.o['hx'] == 2: self.flag(sK2, sTAG, sc1, add=L - 1)
        self.two_way(emit)
        for p in range(8): P(f'v_cvt_pk_bf16_f32 {vr(XRES+p)}, {vr(ACC0+2*p)}, {vr(ACC0+2*p+1)}')

    def frag_setup(self, base_off):
        self.P(f"""s_and_b32 {sr(sT3)}, {sr(sC)}, 1
s_lshl_b32 {sr(sT3)}, {sr(sT3)}, 11
s_add_u32 {sr(sLB)}, {sr(sRB)}, {base_off}
v_add3_u32 v108, {sr(sT3)}, {vr(vL16)}, 0
s_lshr_b32 {sr(sLR)}, {sr(sC)}, 1
v_add_u32 v108, {sr(sLB)}, v108
s_lshl_b32 {sr(sLR)}, {sr(sLR)}, 12
v_xor_b32 v109, 2048, v108""")

    def frag_load(self, srd, ks, ring=32):
        P = self.P
        P(f'buffer_load_dwordx4 {vr(XF+4*(ks % ring),4)}, {vr(108 + ((ks >> 1) & 1))}, {sr(srd,4)}, {sr(sLR)} offen offset:{(ks&1)*1024} sc1')
        if ks < 28 and ks & 3 == 3: P(f's_add_u32 {sr(sLR)}, {sr(sLR)}, 4096\ns_and_b32 {sr(sLR)}, {sr(sLR)}, 0x7fff')
        self.vm.issue(('x', ks))

    def mask_ops(self, part, lean=False):
        ops = []; C = CDIAG if part == 0 else CFIRST; sg = -1.0 if part == 0 else 1.0
        if part == 0 and not lean:
            ops.append(f'v_mov_b32 {vr(VV)}, 0x3f803f80')
            for i in range(1, 8): ops.append(f'v_mov_b32 {vr(VV+i)}, {vr(VV)}')
        for i in range(16):
            ci = 8*(i//4) + i % 4
            if part == 0: ops.append(f'v_subrev_f32 {vr(C+i)}, {f2u(ci*2.0**100):#x}, {vr(vFD)}')
            else: ops.append(f'v_sub_f32 {vr(C+i)}, {f2u((ci-1)*2.0**100):#x}, {vr(vFD)}')
        for i in range(16): ops.append(f'v_min_f32 {vr(C+i)}, 0, {vr(C+i)}')
        if part == 0 and not lean:
            for i in range(16): ops.append(f'v_mov_b32 {vr(aO+i)}, 0')
        return ops

    def stats_final(self, typ):
        a, b = STAT, STAT + 1
        it = f"""v_mov_b32 {vr(b)}, {vr(a)}
v_mov_b32 {vr(XEXT+2)}, 0
v_mov_b32 {vr(XEXT+3)}, 0
v_permlane32_swap_b32 {vr(a)}, {vr(b)}
v_mul_f32 {vr(a)}, {f2u(1/512):#x}, {vr(a)}
v_mul_f32 {vr(b)}, {f2u(1/512):#x}, {vr(b)}
v_fma_f32 {vr(b)}, -{vr(a)}, {vr(a)}, {vr(b)}
v_max_f32 {vr(b)}, 0, {vr(b)}
v_add_f32 {vr(b)}, {f2u(1e-5):#x}, {vr(b)}
v_rsq_f32 {vr(vRSTD)}, {vr(b)}
v_cndmask_b32 {vr(a)}, 0, {vr(a)}, {sr(sH0,2)}
v_and_b32 {vr(a+2)}, 0xffff0000, {vr(a)}
v_sub_f32 {vr(a+3)}, {vr(a)}, {vr(a+2)}
v_cvt_pk_bf16_f32 {vr(XEXT)}, -{vr(a+2)}, -{vr(a+2)}
v_cvt_pk_bf16_f32 {vr(XEXT+1)}, -{vr(a+3)}, 0""".split('\n')
        it.append(('ds', 'rw', f'ds_write_b32 {vr(vRA)}, {vr(vRSTD)}'))
        for q in range(4): it.append(('ds', 'rt', f'ds_read_b128 {vr(STAT+4*q,4)}, {vr(vRB)} offset:{q*32}'))
        if typ == 1: it.append(f'v_mul_f32 {vr(vRSTD)}, {sr(sLOG2E)}, {vr(vRSTD)}')
        return it

    def wext_items(self, w, tag):
        return [('wlg', tag)] + f"""v_add_f32 {vr(w)}, {vr(w)}, {vr(w+1)}
v_add_f32 {vr(w+2)}, {vr(w+2)}, {vr(w+3)}
v_add_f32 {vr(w)}, {vr(w)}, {vr(w+2)}
v_and_b32 {vr(w+2)}, 0xffff0000, {vr(w)}
v_sub_f32 {vr(w+3)}, {vr(w)}, {vr(w+2)}
v_cvt_pk_bf16_f32 {vr(w)}, {vr(w+2)}, {vr(w+3)}
v_cvt_pk_bf16_f32 {vr(w+1)}, {vr(w+2)}, 0
v_mov_b32 {vr(w+2)}, 0
v_mov_b32 {vr(w+3)}, 0""".split('\n')

    def csp_addr(self, typ):
        self.P(f'v_and_b32 {vr(vT0)}, 0x1f0, {vr(vL16)}\nv_add_u32 {vr(vT0)}, {LDS_CSP + typ*1536}, {vr(vT0)}')

    def phi_addr(self):
        return f"""v_sub_u32 {vr(vVA)}, {vr(vKA)}, {vr(vL16)}
v_and_b32 {vr(vPD)}, 31, {vr(vLANE)}
v_lshl_add_u32 {vr(vVA)}, {vr(vPD)}, 5, {vr(vVA)}
v_lshrrev_b32 {vr(vPD)}, 5, {vr(vLANE)}
v_lshl_add_u32 {vr(vVA)}, {vr(vPD)}, 4, {vr(vVA)}""".split('\n')

    def main_kv(self, L):
        P = self.P; typ = L % 2; o = self.o; XD = o['xd']
        vm, lg = self.vm, self.lg
        V = L > 1 or (L == 1 and o['clr'])
        NR = 3; KVB = vL16 if L > 1 else PKV + 15
        if L == 1: P(f'v_subrev_u32 {vr(vTR1)}, {LDS_WO - LDS_WQ}, {vr(vTR2)}')
        if L == 2: P(f'v_add_u32 {vr(vTR1)}, {LDS_WQ}, {vr(vL16)}\nv_add_u32 {vr(vTR2)}, {LDS_WO}, {vr(vL16)}')
        if L < 2: P(f'v_subrev_u32 {vr(KVB)}, {LDS_WQ}, {vr(vTR1)}')
        def rdk(ks):
            self.w_read(RING + 8*(ks % NR), KVB, LDS_WK + ks*1024, L, ('k', ks))
        def rdv(ks):
            self.w_read(RING + 8*(ks % NR) + 4, KVB, LDS_WV + ks*1024, L, ('v', ks))
        csrd = [('ds', 'cs', f'ds_read_b128 {vr(WEXTK,4)}, {vr(vT0)} offset:512'), ('ds', 'cs', f'ds_read_b128 {vr(WEXTV,4)}, {vr(vT0)} offset:1024')]
        wext = self.wext_items(WEXTK, 'cs') + self.wext_items(WEXTV, 'cs')
        addr = [f'v_add_u32 {vr(vKA)}, {sr(sOWN)}, {vr(vL16)}']
        if typ == 0:
            La = L // 2
            addr += [f's_add_u32 {sr(sK0)}, {sr(sKVW)}, {OFF_KV + La*KV_L}', f's_add_u32 {sr(sK2)}, {sr(sK0)}, 4096']
        else:
            addr += self.phi_addr()
            if o['pw1']: addr += [f's_lshl_b32 {sr(sT0)}, {sr(sMT)}, 2', f'v_add_u32 {vr(PKV+8)}, {sr(sT0)}, {vr(vCNT)}', f'v_mov_b32 {vr(PKV+9)}, {TV_K[L]}']
        extras = []
        def pop(n):
            for _ in range(n):
                if extras: self.item(extras.pop(0))
        finld = f'buffer_load_dwordx2 {vr(STAT,2)}, {vr(STAT+2)}, {sr(sWS,4)}, {sr(sT1)} offen sc1'
        def fincheck():
            lp = P.newlabel('Lfin'); ct = P.newlabel('Lfinc')
            P(waitstr(vm=vm.need('st')))
            P(f'v_cmp_ne_u32 vcc, {sr(sM)}, {vr(STAT+1)}\ns_cbranch_vccnz {lp}')
            P.label(ct)
            def again(_):
                if self.stamps: P(f's_or_b32 s101, s101, {1 << (4 + 6*(L - 1))}')
                P(f'{finld}\ns_waitcnt vmcnt(0)\nv_cmp_ne_u32 vcc, {sr(sM)}, {vr(STAT+1)}\ns_cbranch_vccz {ct}')
                P(f's_sub_u32 {sr(sBUD)}, {sr(sBUD)}, 1\ns_cbranch_scc0 {lp}\ns_mov_b32 {sr(sBUD)}, 0')
            self.ool.append((lp, again, ct))
        D = (o['vlag'] if typ else o['vlaga']) if L else 0
        def vstep(kv):
            if kv == 32: return self.mfma(ACC1, XEXT, WEXTV, ACC1)
            P(waitstr(lg=lg.need(('v', kv))))
            self.mfma(ACC1, XF + 4*kv, RING + 8*(kv % NR) + 4, None if kv == 0 else ACC1)
            if kv + NR < 32: rdv(kv + NR)
        def kstep(ks, pre=None):
            b = RING + 8*(ks % NR)
            P(waitstr(vm=vm.need(('x', ks)) if L > 0 else None, lg=lg.need(('k', ks))))
            self.mfma(ACC0, b, XF + 4*ks, None if ks == 0 else ACC0)
            if pre: pre()
            if ks + NR < 32: rdk(ks + NR)
            if V and ks & 1 and ks > 1: P(self.acc_par(XF + 4*ks - 4, XF + 4*ks, L & 1))
            if L > 0 and ks + XD < 32 and ks >= 2: self.frag_load(sOut, ks + XD); pop(1)
            else: pop(3)
            if ks >= D: vstep(ks - D)
            if L > 0 and o['red'] and ks == o['rk0']:
                P(finld); vm.issue('st')
            if L > 0 and o['st0'] <= ks < o['st0'] + 8 and not o['red']:
                for i in range(2*(ks-o['st0']), 2*(ks-o['st0']) + 2):
                    P(f'buffer_load_dword {vr(STAT+i)}, {vr(vL4)}, {sr(sWS,4)}, {sr(sT1)} offen offset:{i*256} sc1'); vm.issue('st')
            pop(3)
        if L > 0 and not o['b0']:
            ok = P.newlabel('Lwr')
            P(f'v_cmp_gt_u32 vcc, {4*L}, {vr(vT0)}\ns_cbranch_vccz {ok}')
            self.lds_wait(C_WR, 4*L)
            P.label(ok)
            if L == 1 and o['bq']:
                P(f's_lshl_b32 {sr(sT0)}, {sr(sMT)}, 11\ns_add_u32 {sr(sT0)}, {sr(sT0)}, {LDS_WQ}\nv_add_u32 {vr(PKV)}, {sr(sT0)}, {vr(vL16)}')
                bqw = [('ds', 'bq', f'ds_write_b128 {vr(PKV)}, {vr(224+4*u,4)} offset:{cho(u)}') for u in range(8)]
                bqw.append(('ds', 'bq', f'v_mov_b32 {vr(vPD)}, 1\ns_mov_b64 exec, 1\nds_add_u32 {vr(vCNT)}, {vr(vPD)} offset:{4*C_Q}\ns_mov_b64 exec, -1'))
        self.csp_addr(typ)
        if L == 0:
            AD = PKV + 2; X0D = o['x0d']
            P(f"""v_bfe_u32 {vr(AD)}, {vr(vLANE)}, 1, 3
v_xor_b32 {vr(AD)}, {vr(AD)}, v64
v_lshlrev_b32 {vr(AD)}, 4, {vr(AD)}
v_lshl_add_u32 {vr(AD)}, v65, 7, {vr(AD)}
s_and_b32 {sr(sT0)}, {sr(sC)}, 1
s_lshl_b32 {sr(sT0)}, {sr(sT0)}, 6
v_xor_b32 {vr(AD)}, {sr(sT0)}, {vr(AD)}
v_add_u32 {vr(AD)}, {sr(sLA)}, {vr(AD)}
v_xor_b32 {vr(AD+1)}, 32, {vr(AD)}
v_xor_b32 {vr(AD+2)}, 64, {vr(AD)}
v_xor_b32 {vr(AD+3)}, 96, {vr(AD)}
s_mov_b32 {sr(sSEL0)}, 0x3f803f80""")
            for i in range(4): P(f'v_mov_b32 {vr(STAT+i)}, 0')
            for it in addr: self.item(it)
            for g in range(2, X0D): self.x0_load(g)
            if o['xst']:
                P(f"""v_mov_b32 {vr(PKV)}, {vr(AD)}
v_mov_b32 {vr(PKV+1)}, {vr(AD+1)}
s_lshr_b32 {sr(sT2)}, {sr(sC)}, 1
s_sub_u32 {sr(sT2)}, {sr(sT2)}, {sr(sROT)}
s_and_b32 {sr(sT2)}, {sr(sT2)}, 7""")
            def dots(g):
                for i in range(16):
                    r_ = XF + 16*g + i
                    P(f'v_dot2_f32_bf16 {vr(STAT+(i&1))}, {vr(r_)}, {sr(sSEL0)}, {vr(STAT+(i&1))}\nv_dot2_f32_bf16 {vr(STAT+2+(i&1))}, {vr(r_)}, {vr(r_)}, {vr(STAT+2+(i&1))}')
            stat_fold = [f'v_add_f32 {vr(STAT)}, {vr(STAT)}, {vr(STAT+1)}', f'v_add_f32 {vr(STAT+2)}, {vr(STAT+2)}, {vr(STAT+3)}',
                         f'v_permlane32_swap_b32 {vr(STAT)}, {vr(STAT+2)}', f'v_add_f32 {vr(STAT)}, {vr(STAT)}, {vr(STAT+2)}']
            LAG = o['il']
            if LAG:
                P(f'v_mov_b32 {vr(PKV+6)}, 1')
                sig = lambda idx: self.item(('ds', 'sig', f's_mov_b64 exec, 1\nds_add_u32 {vr(vCNT)}, {vr(PKV+6)} offset:{4*idx}\ns_mov_b64 exec, -1'))
                lg.reset()
                def ks0(ks):
                    nonlocal extras
                    if ks == 0:
                        self.lds_check(C_ST, 4)
                        self.stamp(29, 'S0 / W st2')
                        for k in range(NR): rdk(k); rdv(k)
                    pre = None; st = ks // 8 + 1
                    if ks % 8 == 2 and st < 4: extras[0:0] = self.lds_peek(C_ST + st)
                    if ks % 8 == 5 and st < 4: pre = lambda: self.lds_check(C_ST + st, 4)
                    if ks == o['csk']: extras[0:0] = self.lds_peek(C_CS)
                    if ks == o['csk'] + 2:
                        pre = lambda: self.lds_check(C_CS, 4)
                        extras += csrd + ['s_nop 0']*4 + wext
                    if ks == 30: extras[0:0] = self.lds_peek(C_Q)
                    kstep(ks, pre)
                for g in range(8 + LAG):
                    kk = list(range(4*(g - LAG), 4*(g - LAG) + 4)) if g >= LAG else []
                    if g < 8:
                        if g == LAG - 1 or (LAG > 8 and g == 7):
                            for it in self.lds_peek(C_ST): self.item(it)
                        lx = P.newlabel('Lx')
                        P(f's_cmp_lg_u32 {sr(sT2)}, {g}')
                        P(waitstr(vm=vm.need(('x', g))))
                        P(f's_cbranch_scc1 {lx}\nds_read_b128 {vr(XRES,4)}, {vr(PKV)} offset:{(g%3)*4096}\nds_read_b128 {vr(XRES+4,4)}, {vr(PKV+1)} offset:{(g%3)*4096}')
                        P.label(lx)
                        for s_ in range(4): P(f'ds_read_b128 {vr(XF+16*g+4*s_,4)}, {vr(AD+s_)} offset:{(g%3)*4096}')
                        lg.issue(('xg', g), 4)
                        if kk and kk[0] > 0: ks0(kk.pop(0))
                        P(waitstr(lg=lg.need(('xg', g))))
                        if g + 3 < 8: self.x0_load(g + 3)
                        if g == o['wgo'] - 1: sig(C_WGO)
                        if g == o['qgo']: sig(C_CSQ)
                        if g == 7: sig(C_XDONE)
                        if g in (0, 3, 5, 7): self.stamp({0: 2, 3: 15, 5: 23, 7: 1}[g], {0: 'x g0 / W go', 3: 'x g3 / W st0', 5: 'x g5 / W st1', 7: 'x0 / W st3'}[g])
                        if g == 7 or not kk or kk[0] == 0:
                            dots(g)
                            if g == 7: extras += stat_fold + self.stats_final(typ)
                            for k in kk: ks0(k)
                        else:
                            for k in kk: ks0(k)
                            dots(g)
                    else:
                        for k in kk: ks0(k)
                pop(100)
            for g in range(0 if LAG else 8):
                if o['xst']: P(f's_cmp_lg_u32 {sr(sT2)}, {g}')
                P(waitstr(vm=vm.need(('x', g))))
                if o['xst']:
                    lx = P.newlabel('Lx')
                    P(f's_cbranch_scc1 {lx}\nds_read_b128 {vr(XRES,4)}, {vr(PKV)} offset:{(g%4)*4096}\nds_read_b128 {vr(XRES+4,4)}, {vr(PKV+1)} offset:{(g%4)*4096}')
                    P.label(lx)
                for s_ in range(4): P(f'ds_read_b128 {vr(XF+16*g+4*s_,4)}, {vr(AD+s_)} offset:{(g%4)*4096}')
                if g: P('s_waitcnt lgkmcnt(4)')
                if g + X0D < 8: self.x0_load(g + X0D)
                if g: dots(g - 1)
                if g == o['wgo'] - 1: self.lds_signal(C_WGO)
                if g in (0, 3, 5): self.stamp({0: 2, 3: 15, 5: 23}[g], {0: 'x g0 / W go', 3: 'x g3 / W st0', 5: 'x g5 / W st1'}[g])
            if not LAG:
                self.lds_signal(C_XDONE)
                lg.reset()
                for it in self.lds_peek(C_ST): self.item(it)
                dots(7)
                self.stamp(1, 'x0 / W st3')
                self.lds_check(C_ST, 4)
                self.stamp(29, 'S0 / W st2')
                for ks in range(NR): rdk(ks); rdv(ks)
                P(f'v_add_f32 {vr(STAT)}, {vr(STAT)}, {vr(STAT+1)}\nv_add_f32 {vr(STAT+2)}, {vr(STAT+2)}, {vr(STAT+3)}')
                P(f'v_permlane32_swap_b32 {vr(STAT)}, {vr(STAT+2)}\nv_add_f32 {vr(STAT)}, {vr(STAT)}, {vr(STAT+2)}')
                extras += self.stats_final(typ)
                pop(10)
                for ks in range(32):
                    pre = None
                    st = ks // 8 + 1
                    if ks % 8 == 2: extras[0:0] = self.lds_peek(C_ST + st if st < 4 else C_CS)
                    if ks % 8 == 5 and st < 4: pre = lambda: self.lds_check(C_ST + st, 4)
                    if ks == 28:
                        pre = lambda: self.lds_check(C_CS, 4)
                        extras += csrd + self.lds_peek(C_Q) + ['s_nop 0']*3 + wext
                    kstep(ks, pre)
                pop(100)
        else:
            vm.reset(); lg.reset()
            redo = P.newlabel('Lkvredo')
            if o['red']: P(f's_lshr_b32 {sr(sT1)}, {sr(sRB)}, 6\ns_add_u32 {sr(sT1)}, {sr(sT1)}, {OFF_FIN}')
            else: P(f's_lshr_b32 {sr(sT1)}, {sr(sRB)}, 3\ns_add_u32 {sr(sT1)}, {sr(sT1)}, {OFF_ST}')
            for it in addr: self.item(it)
            if o['b0']: P('s_barrier')
            self.stamp(14 + L*14 if L < 3 else 57, f'L{L} B0')
            P.label(redo)
            for it in csrd: self.item(it)
            for ks in range(NR): rdk(ks); rdv(ks)
            extras += wext
            if o['red']: extras += [f'v_lshlrev_b32 {vr(STAT+2)}, 3, {vr(vLANE)}', f's_add_u32 {sr(sM)}, {sr(sTAG)}, {L}']
            if o['own']: kstep(0); kstep(1)
            S = self.probe(sOut, 0, L & 1, XD) if L > 1 and not o['hx'] else self.first_hop(0, OFF_XFLAG + 0x2000, 60, L & 1 if V else None, L - 1, 1 if (L > 1 and o['prex']) else None)
            self.stamp(2 + L*14, f'L{L} xflags')
            for ks in range(2, XD + 2): self.frag_load(sOut, ks)
            if L == 1 and o['bq']:
                for it in bqw: self.item(it)
            late = [('wvm', 'st')] + [self.acc_par(STAT + 2*i, STAT + 2*i + 1, L & 1) for i in range(8) if V]
            for step in (8, 4, 2, 1):
                for i in range(step): late.append(f'v_add_f32 {vr(STAT+i)}, {vr(STAT+i)}, {vr(STAT+i+step)}')
            if o['red']: late = [('fn', fincheck)]
            late += self.stats_final(typ)
            for ks in range(2 if o['own'] else 0, 32):
                if ks == (o['rk1'] if o['red'] else 8 + o['st0'] + XD): extras += late
                kstep(ks)
                if V and ks in (o['ev'], o['ev2']): self.verify(L & 1, redo)
            pop(100)
            if V: self.verify(L & 1, redo)
        self.mfma(ACC0, WEXTK, XEXT, ACC0)
        rest = list(range(32 - D, 33))
        def vt(n=1):
            for _ in range(n):
                if rest: vstep(rest.pop(0))
        vt()
        return vt

    def w_read(self, dst, base, off, L, tag, qkv=True):
        if L > 1:
            self.P(f'ds_read_b128 {vr(dst,4)}, {vr(base)} offset:{off}'); self.lg.issue(tag)
        else:
            d = 256 if (L == 0 and qkv) else 512
            self.P(f'ds_read_b64_tr_b16 {vr(dst,2)}, {vr(base)} offset:{off}\nds_read_b64_tr_b16 {vr(dst+2,2)}, {vr(base)} offset:{off+d}'); self.lg.issue(tag, 2)

    def q_prefetch(self, L, NS=5):
        for ks in range(NS): self.q_rd(L, ks)

    def q_rd(self, L, ks, NS=5):
        self.w_read(RING + 4*(ks % NS), vTR1, ks*1024, L, ('w', ks))

    def main_qpass(self, L, acc, fill, at=None, pre_write=None, rate=4):
        P = self.P; typ = L % 2; lg = self.lg; NS = 5
        fill = list(fill)
        for ks in range(32):
            P(waitstr(lg=lg.need(('w', ks))))
            self.mfma(acc, RING + 4*(ks % NS), XF + 4*ks, None if ks == 0 else acc)
            if ks + NS < 32: self.q_rd(L, ks + NS)
            n = 0
            while fill and n < rate:
                it = fill.pop(0); self.item(it)
                if isinstance(it, str) or it[0] == 'ds': n += 1
            if at and ks in at: at[ks]()
        for it in fill: self.item(it)
        self.mfma(acc, WEXTQ, XEXT, acc)
        if at and 32 in at: at[32]()
        order = (4, 5, 6, 7, 0, 1, 2, 3)
        for p in order:
            if typ == 0 and p % 4 == 0:
                for q in range(p, p + 4): P(f'v_pk_mul_f32 {vr(acc+2*q,2)}, {vr(acc+2*q,2)}, {vr(vRSTD,2)} op_sel_hi:[1,0]')
            P(f'v_cvt_pk_bf16_f32 {vr(aQ+p)}, {vr(acc+2*p)}, {vr(acc+2*p+1)}')
            if p == 7:
                if pre_write: pre_write()
                P(f'ds_write_b128 {vr(vKA)}, {vr(aQ+4,4)} offset:5120')

    def tile_addr(self, sbase):
        return f"""s_lshl_b32 {sr(sT1)}, {sr(sHS)}, 10
s_add_u32 {sr(sT1)}, {sr(sT1)}, {sr(sbase)}
v_add_u32 {vr(vKA)}, {sr(sT1)}, {vr(vL16)}
s_lshl_b32 {sr(sT1)}, {sr(sHS)}, 8
v_xor_b32 {vr(vVA)}, {sr(sT1)}, {vr(vL16)}
v_add_u32 {vr(vVA)}, {sr(sbase)}, {vr(vVA)}"""

    def trickle_setup(self):
        self.P(f's_mov_b32 {sr(sDM)}, 4\ns_mov_b32 {sr(sDG)}, {sr(sG0)}\ns_add_u32 {sr(sDL)}, {sr(sLA)}, {sr(sS0)}')

    def trickle(self, keep=0):
        P = self.P; sk = P.newlabel('Lsk')
        P(f's_cmp_le_u32 {sr(sDM)}, {keep}\ns_cbranch_scc1 {sk}\ns_mul_i32 {sr(sT0)}, {sr(sDG)}, 3')
        for e in range(2):
            for nt in (1, 2):
                P(f's_add_u32 m0, {sr(sDL)}, {NT_LDS[nt] + e*1024}\ns_add_u32 {sr(sT1)}, {sr(sT0)}, {e*49152 + nt*1024}')
                P(f'buffer_load_dwordx4 {vr(vDW)}, {sr(sWB,4)}, {sr(sT1)} offen lds')
        P(f"""s_add_u32 {sr(sDL)}, {sr(sDL)}, 8192
s_and_b32 {sr(sDL)}, {sr(sDL)}, 0x7fff
s_add_u32 {sr(sDG)}, {sr(sDG)}, 0x20000
s_and_b32 {sr(sDG)}, {sr(sDG)}, 0x7ffff
s_sub_u32 {sr(sDM)}, {sr(sDM)}, 1""")
        P.label(sk)

    def attn_loop(self, cfirst, trickle=False):
        P = self.P; lp = P.newlabel('Latt')
        if self.o['trunc']: pk = lambda d, e: f'v_perm_b32 {vr(d)}, {vr(e+1)}, {vr(e)}, {sr(sPERM)}'
        else: pk = lambda d, e: f'v_cvt_pk_bf16_f32 {vr(d)}, {vr(e)}, {vr(e+1)}'
        rdv = f's_mov_b64 exec, {sr(sLO,2)}\nds_read_b128 {vr(VV,4)}, {vr(vVA)} offset:2048\nds_read_b128 {vr(VV+4,4)}, {vr(vVA)} offset:3072\ns_mov_b64 exec, -1'
        P(f'ds_read_b128 {vr(aK,4)}, {vr(vKA)}'); P(rdv)
        P(f'v_add_u32 {vr(vKA)}, {sr(sSTEP)}, {vr(vKA)}\nv_add_u32 {vr(vVA)}, {sr(sSTEP)}, {vr(vVA)}\ns_waitcnt lgkmcnt(2)')
        cfirst()
        P(f'ds_read_b128 {vr(aK,4)}, {vr(vKA)}\nv_add_u32 {vr(vKA)}, {sr(sSTEP)}, {vr(vKA)}\ns_nop 9')
        P.label(lp)
        for i in range(8): P(f'v_exp_f32 {vr(aE+i)}, {vr(aS+i)}')
        for p in range(4): P(pk(aP + p, aE + 2*p))
        for i in range(8, 10): P(f'v_exp_f32 {vr(aE+i-8)}, {vr(aS+i)}')
        P('s_waitcnt lgkmcnt(0)')
        self.mfma(aO, VV, aP, aO)
        for i in range(10, 16): P(f'v_exp_f32 {vr(aE+i-8)}, {vr(aS+i)}')
        self.mfma(aS, aK, aQ, None)
        P(f'ds_read_b128 {vr(aK,4)}, {vr(vKA)}')
        for p in range(4): P(pk(aP + 4 + p, aE + 2*p))
        P(f'v_add_u32 {vr(vKA)}, {sr(sSTEP)}, {vr(vKA)}\ns_sub_u32 {sr(sCNT)}, {sr(sCNT)}, 1')
        self.mfma(aO, VV + 4, aP + 4, aO)
        P(rdv)
        if trickle and self.o['trk']: self.trickle(4 - self.o['trk'])
        P(f'v_add_u32 {vr(vVA)}, {sr(sSTEP)}, {vr(vVA)}\ns_cmp_lg_u32 {sr(sCNT)}, 0\ns_cbranch_scc1 {lp}')

    def v_lanes(self):
        return [f'v_mov_b32 {vr(vSTV)}, {LDS_ONES - 2048}', f'v_cndmask_b32 {vr(vVA)}, {vr(vSTV)}, {vr(vVA)}, {sr(sLO,2)}',
                f'v_mov_b32 {vr(vSTV)}, {sr(sSTEP)}', f'v_cndmask_b32 {vr(vSTV)}, 0, {vr(vSTV)}, {sr(sLO,2)}']

    def attn2(self, M, first, trickle=False):
        P = self.P; lp = P.newlabel('Latt'); dn = P.newlabel('Lattd')
        pk = lambda d, e: f'v_perm_b32 {vr(d)}, {vr(e+1)}, {vr(e)}, {sr(sPERM)}'
        ex = lambda S, a, b: P('\n'.join(f'v_exp_f32 {vr(S+i)}, {vr(S+i)}' for i in range(a, b)))
        rdk = f'ds_read_b128 {vr(aK,4)}, {vr(vKA)}\nv_add_u32 {vr(vKA)}, {sr(sSTEP)}, {vr(vKA)}'
        P(rdk.replace(vr(aK,4), vr(aP,4))); P(rdk); P(f'ds_read_b128 {vr(VV,4)}, {vr(vVA)} offset:2048\ns_waitcnt lgkmcnt(2)')
        first()
        P('s_waitcnt lgkmcnt(1)\ns_nop 6')
        P.label(lp)
        for half, (S, N) in enumerate(((M, aS), (aS, M))):
            P('s_waitcnt lgkmcnt(2)')
            self.mfma(N, aK, aQ, None)
            P(rdk)
            ex(S, 0, 4)
            P('s_waitcnt lgkmcnt(2)')
            self.mfma(aO, VV + 4, aP + 4, aO)
            P(f'ds_read_b128 {vr(VV+4,4)}, {vr(vVA)} offset:3072\nv_add_u32 {vr(vVA)}, {vr(vSTV)}, {vr(vVA)}')
            ex(S, 4, 10)
            for p in range(4): P(pk(aP + p, S + 2*p))
            ex(S, 10, 12)
            P('s_waitcnt lgkmcnt(2)')
            self.mfma(aO, VV, aP, aO)
            P(f'ds_read_b128 {vr(VV,4)}, {vr(vVA)} offset:2048')
            if trickle and self.o['trk']: self.trickle(4 - self.o['trk'])
            ex(S, 12, 16)
            P(f's_sub_u32 {sr(sCNT)}, {sr(sCNT)}, 1')
            for p in range(4): P(pk(aP + 4 + p, S + 8 + 2*p))
            P(f's_cbranch_scc1 {dn}' if half == 0 else f's_cbranch_scc0 {lp}')
        P.label(dn)

    def publish_o_addr(self, L):
        return [f's_add_u32 {sr(sK0)}, {sr(sOW)}, {OFF_O}'] + ([f's_add_u32 {sr(sK1)}, {sr(sOF)}, {OFF_OFLAG}'] if L == 0 or self.o['ho'] else [])

    def publish_o(self, L, O, eps):
        P = self.P
        if eps: P(f'v_add_f32 {vr(O+8)}, {f2u(eps):#x}, {vr(O+8)}')
        P(f'v_rcp_f32 {vr(O+8)}, {vr(O+8)}')
        if L % 2 == 0 and self.o['omul']:
            for i in range(8): P(f'v_mul_f32 {vr(O+i)}, {vr(O+8)}, {vr(O+i)}')
        else:
            for p in range(4): P(f'v_pk_mul_f32 {vr(O+2*p,2)}, {vr(O+2*p,2)}, {vr(O+8,2)} op_sel_hi:[1,0]')
        for p in range(4): P(f'v_cvt_pk_bf16_f32 {vr(aP+p)}, {vr(O+2*p)}, {vr(O+2*p+1)}')
        P(self.set_par(aP, 1 - (L & 1)))
        def emit(sc1):
            P(f'buffer_store_dwordx4 {vr(aP,4)}, {vr(vL16)}, {sr(sWS,4)}, {sr(sK0)} offen' + (' sc1' if sc1 else (['', ' nt', ' sc1', ' sc0'][self.o.get('o3', 0)] if L == 3 or self.o.get('nta') else '')))
            if L == 0: self.flag(sK1, sTAG, sc1, wait=None if self.o['clr'] else 's_waitcnt vmcnt(0)')
            elif self.o['ho'] and (sc1 or not self.o['eb' if L & 1 else 'ea']): self.flag(sK1, sTAG, sc1, add=L)
        self.two_way(emit)

    def main_outproj(self, L):
        P = self.P; vm, lg = self.vm, self.lg; OD = self.o['od'] if L != 1 else self.o['od1']; par = 1 - (L & 1)
        vm.reset(); lg.reset()
        redo = P.newlabel('Lopredo')
        PO = self.o['preo'] and L > 0
        if PO: P(f'v_and_b32 v111, 124, {vr(vL4)}\nv_add_u32 v111, {OFF_OFLAG}, v111\nbuffer_load_dword v103, v111, {sr(sWS,4)}, {sr(sXF)} offen sc1')
        if L == 0:
            if self.o['plds']: self.wphi_load(170); P('s_waitcnt lgkmcnt(0)')
            for op in ['s_waitcnt vmcnt(2)' if self.o['clr'] else 's_waitcnt vmcnt(1)'] + [f'v_permlane32_swap_b32 {vr(XRES+a)}, {vr(XRES+b)}' for a, b in SW4] + self.wphi_pack(170): P(op)
        for i in range(4): P(f'v_mov_b32 {vr(XF+i)}, {vr(aP+i)}')
        NS = 6; RG = 24 if L == 0 and self.o['bq'] else 32; V = L or self.o['clr']
        def rd(ks):
            self.w_read(RING + 4*(ks % NS), vTR2, ks*1024, L, ('w', ks), qkv=False)
        self.publish_x_addr(L + 1)
        HB = self.o['hb']
        if HB: P(f's_lshl_b32 {sr(sT0)}, {sr(sMT)}, 2\nv_add_u32 v100, {sr(sOWN)}, {vr(vL16)}\nv_add_u32 v101, {sr(sT0)}, {vr(vCNT)}')
        P.label(redo)
        for ks in range(NS): rd(ks)
        self.unpack_res()
        S = self.probe(sWS, OFF_O, par, OD) if L > 0 and not self.o['ho'] else self.first_hop(OFF_O, OFF_OFLAG, 124, par if V else None, L, 0 if PO else None)
        SG = self.o['sg'] if L == 1 else 0
        EX = self.o['ex'] if L in (1, 2) else 0
        if SG:
            l = P.newlabel('Lx'); lw = P.newlabel('Lx')
            P(f's_cmp_lt_u32 {sr(sMT)}, 2\ns_cbranch_scc1 {l}'); P.label(lw)
            P(f'ds_read_b32 {vr(vT0)}, {vr(vCNT)} offset:{4*C_WGO}\ns_waitcnt lgkmcnt(0)\nv_cmp_gt_u32 vcc, 6, {vr(vT0)}\ns_cbranch_vccnz {lw}')
            P.label(l)
        self.stamp(11 + L*14, f'L{L} oflags')
        for ks in range(1 + HB, OD + 1 + HB): self.frag_load(sWS, ks)
        if HB:
            lw = P.newlabel('Lhb'); P.label(lw)
            P(f'ds_read_b32 v102, v101 offset:{4*C_ST}\nds_read_b128 {vr(XF+4,4)}, v100 offset:5120\ns_waitcnt lgkmcnt(0)\nv_cmp_gt_u32 vcc, {TV_O[L]}, v102\ns_cbranch_vccnz {lw}')
            lg.reset()
        for ks in range(32):
            P(waitstr(vm=vm.need(('x', ks)), lg=lg.need(('w', ks))))
            self.mfma(ACC0, RING + 4*(ks % NS), XF + 4*(ks % RG), ACC0)
            if ks + OD < 32 and ks > HB: self.frag_load(sWS, ks + OD, RG)
            if ks + NS < 32: rd(ks + NS)
            if SG and ks == SG - 1: self.item(('ds', 'sg', f's_mov_b64 exec, 2\nds_add_u32 {vr(vCNT)}, {vr(vLANE)} offset:{4*C_WGO}\ns_mov_b64 exec, -1'))
            if V and ks & 1: P(self.acc_par(XF + 4*ks - 4, XF + 4*ks, par))
            if V and ks in (self.o['ev'], self.o['ev2']): self.verify(par, redo)
            if self.o['prex'] and L in (1, 2) and ks == 25: P(f'v_and_b32 v111, 60, {vr(vL4)}\nv_add_u32 v111, {OFF_XFLAG + 0x2000}, v111')
            if EX and ks == 24:
                for op in self.hint_prep(106, L): P(op)
            if EX and ks == EX: self.hint(106, sK2); vm.issue('h')
        if V: self.verify(par, redo)
        if EX == 32: self.hint(106, sK2)
        self.stamp(12 + L*14, f'L{L} outproj')
        nxt = L + 1 < self.nl and not self.o['b0']
        if nxt: P(f'ds_read_b32 {vr(vT0)}, {vr(vCNT)} offset:{4*C_WR}')
        self.publish_x(L + 1)
        if nxt: self.lds_signal(C_XDONE)
        self.stamp(13 + L*14, f'L{L} xpub')

    def aux_head(self, L):
        P = self.P
        if self.o['b0']: P('s_barrier')
        else: self.lds_signal(C_WR)
        if L + 1 < self.nl: self.code_prefetch(f'L_main_{L+1}')
        if L == 3: return
        if L == 2: return self.aux_head2(L)
        if L > 1 and not self.o['b0']: self.lds_wait(C_XDONE, 4 + 4*L, self.o['lsleep'])
        if L == 1:
            self.lds_to_regs(LDS_WO, PARK['o'], True); P('s_waitcnt vmcnt(0) lgkmcnt(0)')
            if self.o['bq']: self.lds_wait(C_Q, 8, self.o['lsleep'])
            if not self.o['bql']: self.relayout(1, (0,))
        else: self.swap_region('o', L + 1 < self.nl, L == 2)

    def aux_head2(self, L):
        if L == 1 and self.o['bql']: self.lds_wait(C_XDONE, 4 + self.o['bql']*2 + 2 if self.o['bql'] == 1 else 6, self.o['lsleep'])
        if self.o['red']: self.stats_reduce(L)
        if L == 1 and self.o['bql']:
            self.dma_w(1, (0,)); self.P('s_waitcnt vmcnt(0)')
            self.relayout(1, (0,), tmp=48, ntmp=4)
        if self.o['chain'] and L == 2:
            for i in range(32): self.P(f'v_mov_b32 {vr(PARK[0]+i)}, {vr(32+i)}')
        if L > 1:
            if not self.o['b0']: self.lds_wait(C_XDONE, 4 + 4*L, self.o['lsleep'])
            self.swap_region('o', L + 1 < self.nl, L == 2)

    def stats_reduce(self, L):
        P = self.P; sk = P.newlabel('Lx'); lp = P.newlabel('Lred'); dn = P.newlabel('Lredd'); R = 64; par = L & 1
        P(f"""s_lshl_b32 {sr(sT0)}, {sr(sMT)}, 2
s_cmp_lg_u32 {sr(sT0)}, {sr(sC)}
s_cbranch_scc1 {sk}
s_setprio 3
v_and_b32 {vr(vPA)}, 60, {vr(vL4)}
s_add_u32 {sr(sT2)}, {sr(sXF)}, {OFF_XFLAG + 0x2000}
s_add_u32 {sr(sT0)}, {sr(sTAG)}, {L - 1}
s_lshr_b32 {sr(sT1)}, {sr(sRB)}, 3
s_add_u32 {sr(sT1)}, {sr(sT1)}, {OFF_ST}
s_lshr_b32 {sr(sT3)}, {sr(sRB)}, 6
s_add_u32 {sr(sT3)}, {sr(sT3)}, {OFF_FIN}
v_and_b32 {vr(R+18)}, 15, {vr(vLANE)}
v_lshrrev_b32 {vr(R+17)}, 4, {vr(vLANE)}
v_lshl_add_u32 {vr(R+18)}, {vr(R+18)}, 2, {vr(R+17)}
v_lshlrev_b32 {vr(R+18)}, 3, {vr(R+18)}
v_add_u32 {vr(R+17)}, {sr(sTAG)}, {L}""")
        self.poll(sT2, val=sT0)
        if self.o['rsl'] and L > 1: P(f's_sleep {self.o["rsl"]}')
        P.label(lp)
        for i in range(4): P(f'buffer_load_dwordx4 {vr(R+4*i,4)}, {vr(vL16)}, {sr(sWS,4)}, {sr(sT1)} offen offset:{i*1024} sc1')
        P(f'v_mov_b32 {vr(vPD)}, {par}')
        for i in range(4):
            P(f's_waitcnt vmcnt({3 - i})'); P(self.acc_par(R + 4*i, R + 4*i + 1, par)); P(self.acc_par(R + 4*i + 2, R + 4*i + 3, par))
            if i:
                for k in range(4): P(f'v_add_f32 {vr(R+k)}, {vr(R+k)}, {vr(R+4*i+k)}')
        P(self.test_par(par))
        P(f'v_permlane32_swap_b32 {vr(R)}, {vr(R+2)}\nv_permlane32_swap_b32 {vr(R+1)}, {vr(R+3)}\nv_add_f32 {vr(R)}, {vr(R)}, {vr(R+2)}\nv_add_f32 {vr(R+1)}, {vr(R+1)}, {vr(R+3)}')
        P(f'v_permlane16_swap_b32 {vr(R)}, {vr(R+1)}\nv_add_f32 {vr(R+16)}, {vr(R)}, {vr(R+1)}\ns_cbranch_vccz {dn}')
        P(f's_sub_u32 {sr(sBUD)}, {sr(sBUD)}, 1\ns_cbranch_scc0 {lp}\ns_mov_b32 {sr(sBUD)}, 0')
        P.label(dn)
        self.two_way(lambda sc1: P(f'buffer_store_dwordx2 {vr(R+16,2)}, {vr(R+18)}, {sr(sWS,4)}, {sr(sT3)} offen' + (' sc1' if sc1 else '')))
        P('s_setprio 0')
        P.label(sk)

    def aux_tail(self, L):
        P = self.P
        if self.o['hb']:
            P(f"""v_add_u32 v64, {sr(sOWN)}, {vr(vL16)}
s_lshl_b32 {sr(sT0)}, {sr(sQT)}, 2
ds_write_b128 v64, {vr(aP,4)} offset:5120
v_add_u32 v65, {sr(sT0)}, {vr(vCNT)}
v_mov_b32 v66, {TV_O[L]}
ds_write_b32 v65, v66 offset:{4*C_ST}""")
        if L + 1 >= self.nl:
            if self.o['hb']: P('s_waitcnt lgkmcnt(0)')
            if self.o.get('wb'):
                lw = P.newlabel('Lx')
                P(f's_lshr_b32 {sr(sT0)}, s2, {3 if self.o["wb"] == 1 else 8}\ns_or_b32 {sr(sT0)}, {sr(sT0)}, {sr(sMT)}\ns_cmp_lg_u32 {sr(sT0)}, 0\ns_cbranch_scc1 {lw}')
                P('s_waitcnt vmcnt(0)\ns_sleep 8\nbuffer_wbl2 sc1\ns_waitcnt vmcnt(0)')
                P.label(lw)
            return
        if L % 2 == 0: wait_att = lambda: self.lds_wait(C_ATT, 8*(L//2 + 1), self.o['lsleep'])
        else: wait_att = lambda: None
        if L == 0:
            lp = P.newlabel('Lx'); P.label(lp)
            self.trickle()
            P(f's_cmp_lg_u32 {sr(sDM)}, 0\ns_cbranch_scc1 {lp}')
            self.wphi_load()
            if self.o['bq'] or self.o['bql']: P('s_waitcnt vmcnt(0) lgkmcnt(0)')
            else:
                wait_att()
                self.dma_w(1, (0,))
                P('s_waitcnt vmcnt(8) lgkmcnt(0)')
            for op in self.wphi_pack(): P(op)
            self.relayout(1, (1, 2))
            if self.o['bq'] or self.o['bql']: wait_att()
            return
        save = L + 2 < self.nl
        if L == 1:
            for st in range(4): P(f's_add_u32 {sr(sT0)}, {sr(sS0)}, {st*8192}\ns_and_b32 {sr(sT0)}, {sr(sT0)}, 0x7fff\nv_add_u32 {vr(64+st)}, {sr(sT0)}, {vr(vCH)}')
        if self.o['chain'] and L == 1:
            dst = 32
            for nt in (1, 2, 0):
                self.lds_to_regs(NT_LDS[nt], dst, True)
                self.regs_to_lds(NT_LDS[nt], PARK[nt], True)
                dst = PARK[nt]
            return
        if self.o['chain'] and L == 2:
            self.regs_to_lds(LDS_WK, PARK[0]); self.regs_to_lds(LDS_WV, PARK[1])
            wait_att()
            self.regs_to_lds(LDS_WQ, PARK[2])
            return
        self.swap_region(1, save, L == 1); self.swap_region(2, save, L == 1)
        wait_att()
        self.swap_region(0, save, L == 1)

    def layerA(self, L):
        P = self.P; sb = L * 14; o = self.o; lg = self.lg
        j1 = f'L_j1_{L}'; j2 = f'L_j2_{L}'; ax2 = f'L_ax2_{L}'; ax3 = f'L_ax3_{L}'
        P.label(f'L_main_{L}')
        vt = self.main_kv(L)
        self.stamp(3 + sb, f'L{L} kvpass')
        if L == 0: self.lds_check(C_Q, 4)
        if L and o['vlaga']:
            vt()
            for p in range(8):
                P(f'v_mul_f32 {vr(ACC0+2*p)}, {vr(vRSTD)}, {vr(ACC0+2*p)}\nv_mul_f32 {vr(ACC0+2*p+1)}, {vr(vRSTD)}, {vr(ACC0+2*p+1)}')
                P(f'v_cvt_pk_bf16_f32 {vr(PKV+p)}, {vr(ACC0+2*p)}, {vr(ACC0+2*p+1)}')
                if p & 1: vt()
            vt(99)
            self.q_prefetch(L)
            P(waitstr(lg=lg.need('rt')))
        else:
            self.q_prefetch(L)
            P(waitstr(lg=lg.need('rt')))
            for p in range(8):
                P(f'v_pk_mul_f32 {vr(ACC0+2*p,2)}, {vr(ACC0+2*p,2)}, {vr(vRSTD,2)} op_sel_hi:[1,0]')
            for p in range(8): P(f'v_cvt_pk_bf16_f32 {vr(PKV+p)}, {vr(ACC0+2*p)}, {vr(ACC0+2*p+1)}')
        st = lambda f: f'buffer_store_dwordx4 {vr(PKV+4*f,4)}, {vr(vL16)}, {sr(sWS,4)}, {sr(sK0)} offen offset:{f*1024}{MODS[o["sm"]]}'
        fill = [st(0), st(1)]
        for hf in range(2):
            fill += [f'v_mul_f32 {vr(ACC1+i)}, {vr(STAT+i)}, {vr(ACC1+i)}' for i in range(8*hf, 8*hf + 8)]
            fill += [f'v_cvt_pk_bf16_f32 {vr(PKV+8+p)}, {vr(ACC1+2*p)}, {vr(ACC1+2*p+1)}' for p in range(4*hf, 4*hf + 4)]
            fill.append(st(2 + hf))
        fill += self.checksum(vPD, PKV, 16) + [f'buffer_store_dword {vr(vPD)}, {vr(vL4)}, {sr(sWS,4)}, {sr(sK2)} offen{MODS[o["sm"]]}']
        if o['vfirst']:
            P(st(0)); P(st(1))
            for hf in range(2):
                for i in range(8*hf, 8*hf + 8, 2): P(f'v_pk_mul_f32 {vr(ACC1+i,2)}, {vr(STAT+i,2)}, {vr(ACC1+i,2)}')
                for p in range(4*hf, 4*hf + 4): P(f'v_cvt_pk_bf16_f32 {vr(PKV+8+p)}, {vr(ACC1+2*p)}, {vr(ACC1+2*p+1)}')
                P(st(2 + hf))
            fill = fill[-9:]
        fill += [('ds', 'own', f'ds_write_b128 {vr(vKA)}, {vr(PKV+4*f,4)} offset:{f*1024}') for f in range(4)]
        if L == 0 and o['early']:
            fill.append(('ds', 'kd', f'v_mov_b32 {vr(vPD)}, 1\ns_mov_b64 exec, 1\nds_add_u32 {vr(vCNT)}, {vr(vPD)} offset:{4*C_CS}\ns_mov_b64 exec, -1'))
        m0 = self.mask_ops(0, lean=True)
        if L == 0: fill += m0[:4] + self.lds_peek(C_CSQ) + m0[4:16] + [('fn', lambda: self.lds_check(C_CSQ, 8 if o['il'] else 4))]
        else: fill += m0[:16]
        fill += [('ds', 'cs', f'ds_read_b128 {vr(WEXTQ,4)}, {vr(vT0)}')] + m0[16:]
        fill += [f'v_mul_f32 {vr(vRSTD)}, {f2u(0.25*LOG2E):#x}, {vr(vRSTD)}'] + self.wext_items(WEXTQ, 'cs')
        def halo_loads(m=' sc1'):
            for t_, sh in ((0, sH1), (1, sH2)):
                P(f's_add_u32 m0, {sr(sHL)}, {t_*4096}')
                for f in range(4): P(f'buffer_load_dwordx4 {vr(vL16)}, {sr(sWS,4)}, {sr(sh)} offen offset:{f*1024}{m} lds')
                P(f'buffer_load_dword {vr(65+t_)}, v67, {sr(sWS,4)}, {sr(sh)} offen{m}')
        La = L // 2; sHL = sM + 6
        M1L = L == 0 and o['m1l']
        if not M1L: fill += self.mask_ops(1)
        AT2 = o['at2']
        common = self.publish_o_addr(L) + [f's_add_u32 {sr(sCNT)}, {sr(sQT)}, {1 - AT2}', f's_mov_b32 {sr(sSTEP)}, {-OWN_ST}']
        common += [f's_add_u32 {sr(sH1)}, {sr(sHB)}, {OFF_KV + La*KV_L}', f's_add_u32 {sr(sH2)}, {sr(sH1)}, {16*KV_REC}',
                   f's_lshl_b32 {sr(sHL)}, {sr(sMT)}, 13', f's_add_u32 {sr(sHL)}, {sr(sHL)}, {LDS_T}', f'v_add_u32 v67, 4096, {vr(vL4)}']
        p1 = f's_cmp_lt_u32 {sr(sQT)}, 2' if o['p1'] else f's_cmp_ge_u32 {sr(sQT)}, 2'
        pre2 = (self.v_lanes() + [f'v_mov_b32 {vr(aP+4+i)}, 0' for i in range(4)]) if AT2 else []
        def gap32():
            for it in common + [f'v_mov_b32 {vr(vVA)}, {vr(vKA)}'] + pre2: P(it)
            self.mfma(aO, aP + 4, aP + 4, None)
        at = {32: gap32}
        if L == 2 and o.get('fine'):
            self.stamp(32, 'L2 Kepi'); lg.reset()
            at[12] = lambda: (self.stamp(43, 'L2 q12'), lg.reset()); at[31] = lambda: (self.stamp(51, 'L2 q31'), lg.reset())
        self.main_qpass(L, ACC0, fill, at=at, rate=o['qrate'] if L else o['qr0'])
        if o['prio']: self.prio_if(p1)
        self.stamp(5 + sb, f'L{L} preB1')
        P(f's_waitcnt lgkmcnt(0)\ns_barrier')
        P(f's_branch {j1}')
        P.label(f'L_aux_{L}')
        if L > 0:
            self.aux_head(L)
            for op in self.mask_ops(0) + self.mask_ops(1): P(op)
        else:
            self.trickle_setup()
            if o['early']:
                self.lds_wait(C_CS, 8, 1)
                for _ in range(o['early']): self.trickle()
            if o['clr']:
                self.hello_check()
                if o['clr'] == 1: self.clear_lines(aO)
            else: self.hello_load()
        P(self.tile_addr(sOWN))
        for it in common + pre2: P(it)
        if o['prio']: self.prio_if(p1)
        self.stamp(5 + sb, f'L{L} preB1')
        P('s_barrier')
        P(f'ds_read_b128 {vr(aQ,4)}, {vr(vKA)} offset:4096')
        P.label(j1)
        l = P.newlabel('Lx')
        P(f's_cmp_eq_u32 {sr(sHAS)}, 0\ns_cbranch_scc1 {l}')
        if o['hpr']: P('s_setprio 3')
        halo_loads(MODS[o['hm']])
        if o['hpr']: P(f's_setprio {o["prio"] - 1 + o["p1"]}')
        P.label(l)
        if AT2: self.attn2(CDIAG, lambda: self.mfma(CDIAG, aP, aQ, CDIAG))
        else: self.attn_loop(lambda: self.mfma(aS, aK, aQ, CDIAG))
        P(self.tile_addr(sP2))
        P(f's_sub_u32 {sr(sCNT)}, {sr(sC2)}, {AT2}\ns_mov_b32 {sr(sSTEP)}, 4096')
        if AT2:
            for it in self.v_lanes(): P(it)
        if o['prio'] and not o['p1']: self.prio_if(f's_cmp_lt_u32 {sr(sQT)}, 2')
        self.stamp(6 + sb, f'L{L} own attn')
        lp = P.newlabel('Lhalo'); ck = P.newlabel('Lhchk'); dn = P.newlabel('Lhdone')
        def warm():
            if o['pfb'] == 2: self.coop_prefetch(1, 1)
            if o['pq']:
                P(f's_mov_b64 exec, {sr(sH0,2)}\ns_lshl_b32 {sr(sT1)}, {sr(sC)}, 6')
                if o['pq'] & 1: P(f'v_mul_u32_u24 v5, 3072, {vr(vLANE)}\ns_mul_i32 {sr(sT0)}, {sr(sG0)}, 3\ns_add_u32 {sr(sT0)}, {sr(sT0)}, {sr(sT1)}\nbuffer_load_dword v26, v5, {sr(sWB,4)}, {sr(sT0)} offen')
                if o['pq'] & 2: P(f'v_lshlrev_b32 v5, 10, {vr(vLANE)}\ns_add_u32 {sr(sT0)}, {sr(sG0)}, {sr(sT1)}\nbuffer_load_dword v26, v5, {sr(sWoB,4)}, {sr(sT0)} offen')
                P('s_mov_b64 exec, -1')
            if o['clr']:
                P(f"""s_mov_b64 exec, 3
v_mul_u32_u24 v5, {OFF_OFLAG - OFF_XFLAG - 0x2000}, {vr(vLANE)}
s_add_u32 {sr(sT1)}, {sr(sXF)}, {OFF_XFLAG + 0x2000}
buffer_load_dword v26, v5, {sr(sWS,4)}, {sr(sT1)} offen sc1
s_mov_b64 exec, -1""")
            elif o['touch']:
                P(f"""v_lshlrev_b32 v5, 3, {vr(vL16)}
v_and_b32 v5, 0x780, v5
s_add_u32 {sr(sT0)}, {sr(sXW)}, {OFF_O}
s_add_u32 {sr(sT1)}, {sr(sSW)}, {OFF_ST}
s_mov_b64 exec, 0xffff
buffer_load_dword v26, v5, {sr(sWS,4)}, {sr(sT0)} offen sc1
buffer_load_dword v26, v5, {sr(sOut,4)}, {sr(sXW)} offen sc1
s_mov_b64 exec, 3
buffer_load_dword v26, v5, {sr(sWS,4)}, {sr(sT1)} offen sc1
v_mul_u32_u24 v5, {OFF_OFLAG - OFF_XFLAG - 0x2000}, {vr(vLANE)}
s_add_u32 {sr(sT1)}, {sr(sXF)}, {OFF_XFLAG + 0x2000}
buffer_load_dword v26, v5, {sr(sWS,4)}, {sr(sT1)} offen sc1
s_mov_b64 exec, 15
v_lshlrev_b32 v5, 7, {vr(vLANE)}
s_lshr_b32 {sr(sT1)}, {sr(sRB)}, 6
s_add_u32 {sr(sT1)}, {sr(sT1)}, {OFF_FIN}
buffer_load_dword v26, v5, {sr(sWS,4)}, {sr(sT1)} offen sc1
s_mov_b64 exec, -1""")
        if M1L:
            lm = P.newlabel('Lx')
            P(f's_cmp_lg_u32 {sr(sHS)}, 0\ns_cbranch_scc1 {lm}')
            for op in self.mask_ops(1): P(op)
            P.label(lm)
        nh = P.newlabel('Lnh')
        P(f's_cmp_eq_u32 {sr(sHAS)}, 0\ns_cbranch_scc1 {nh}\nv_add_u32 {vr(vT0)}, {sr(sHL)}, {vr(vL16)}\ns_branch {ck}')
        P.label(lp)
        halo_loads()
        P.label(ck)
        for t_, R in ((0, aS), (1, CDIAG)):
            P(f's_waitcnt vmcnt({5-5*t_})')
            for f in range(4): P(f'ds_read_b128 {vr(R+4*f,4)}, {vr(vT0)} offset:{(4*t_+f)*1024}')
        for t_, R in ((0, aS), (1, CDIAG)):
            cs = self.checksum(68 + t_, R, 16)
            for f in range(4):
                P(f's_waitcnt lgkmcnt({7-4*t_-f})'); P(cs[2*f]); P(cs[2*f + 1])
            P(f'v_cmp_ne_u32 {sr(sM+2*t_,2)}, {vr(65+t_)}, {vr(68+t_)}')
        P(f's_or_b64 {sr(sM,2)}, {sr(sM,2)}, {sr(sM+2,2)}\ns_cbranch_scc0 {dn}')
        self.retry_tail(lp, dn)
        self.stamp(7 + sb, f'L{L} halo ok')
        P.label(nh)
        if L == 0: P(f's_cmp_lg_u32 {sr(sHS)}, 0\ns_cbranch_scc1 {ax2}')
        if L == 0:
            if not o['xst']:
                self.rowmajor_addr(182, 183, sT0)
                P(f'buffer_load_dwordx4 {vr(XRES,4)}, v182, {sr(sX0,4)}, {sr(sT0)} offen\nbuffer_load_dwordx4 {vr(XRES+4,4)}, v182, {sr(sX0,4)}, {sr(sT0)} offen offset:32')
            if not o['plds']: self.wphi_load(170)
            P(f's_branch {j2}'); P.label(ax2)
            P('s_waitcnt vmcnt(0) lgkmcnt(0)')
            if not o['clr']: self.hello_check()
            if not o['tpos']: warm()
        P.label(j2)
        lskip = P.newlabel('Lnohalo'); l1 = P.newlabel('Lr1'); l2 = P.newlabel('Lr2')
        EA = o['ea'] if L else 0
        if EA:
            for op in self.hint_prep(70, L): P(op)
        P('s_waitcnt lgkmcnt(0)\ns_barrier')
        if L == 0 and not self.force_safe: P(f'ds_read_b32 {vr(vPD)}, {vr(vCNT)} offset:44')
        self.stamp(8 + sb, f'L{L} B2')
        if L == 0 and o['tpos']:
            lw = P.newlabel('Lx')
            P(f's_cmp_eq_u32 {sr(sHS)}, 0\ns_cbranch_scc1 {lw}')
            warm()
            P.label(lw)
        if L == 0 and o['bq']:
            lb = P.newlabel('Lx')
            P(f's_cmp_lg_u32 {sr(sHS)}, 0\ns_cbranch_scc1 {lb}')
            if 1:
                P(f"""v_lshrrev_b32 v184, 2, {vr(vLANE)}
v_mul_u32_u24 v184, 3072, v184
v_and_b32 v185, 48, {vr(vL16)}
s_lshl_b32 {sr(sT0)}, {sr(sC)}, 6
v_add3_u32 v184, v184, v185, {sr(sT0)}
s_lshl_b32 {sr(sT2)}, {sr(sROT)}, 1
s_add_u32 {sr(sT2)}, {sr(sT2)}, {sr(sMT)}
s_lshl_b32 {sr(sT2)}, {sr(sT2)}, 15""")
                for st in range(4):
                    P(f's_and_b32 {sr(sT2)}, {sr(sT2)}, 0x7ffff\ns_mul_i32 {sr(sT0)}, {sr(sT2)}, 3\ns_add_u32 {sr(sT3)}, {sr(sT0)}, 49152')
                    P(f'buffer_load_dwordx4 {vr(224+8*st,4)}, v184, {sr(sWB,4)}, {sr(sT0)} offen\nbuffer_load_dwordx4 {vr(228+8*st,4)}, v184, {sr(sWB,4)}, {sr(sT3)} offen')
                    if st < 3: P(f's_add_u32 {sr(sT2)}, {sr(sT2)}, 0x20000')
            P.label(lb)
        P(f's_cmp_eq_u32 {sr(sR)}, 0\ns_cbranch_scc1 {lskip}')
        def first():
            P(f's_cmp_eq_u32 {sr(sR)}, 1\ns_cbranch_scc1 {l1}')
            self.mfma(CFIRST if AT2 else aS, aP if AT2 else aK, aQ, CFIRST)
            P(f's_branch {l2}'); P.label(l1)
            self.mfma(CFIRST if AT2 else aS, aP if AT2 else aK, aQ, None)
            P.label(l2)
        if AT2: self.attn2(CFIRST, first, trickle=(L == 0))
        else: self.attn_loop(first, trickle=(L == 0))
        P.label(lskip)
        if AT2:
            P('s_waitcnt lgkmcnt(1)'); self.mfma(aO, VV + 4, aP + 4, aO)
        if EA == 1: self.hint(70, sK1)
        if L == 0 and not self.force_safe: P(f's_waitcnt lgkmcnt(0)\nv_readfirstlane_b32 {sr(sFAST)}, {vr(vPD)}')
        self.stamp(9 + sb, f'L{L} attn')
        P(f'v_subrev_u32 {vr(vT0)}, {f2u(2.0**-SAFE_EXP):#x}, {vr(aO+8)}\nv_cmp_le_u32 vcc, {f2u(2.0**SAFE_EXP) - f2u(2.0**-SAFE_EXP):#x}, {vr(vT0)}\ns_cbranch_vccnz L_fb_{L}')
        P.label(f'L_fbr_{L}')
        if EA == 2: self.hint(70, sK1)
        self.publish_o(L, aO, 0)
        if o['prio']: P('s_setprio 0')
        self.lds_signal(C_ATT)
        self.stamp(10 + sb, f'L{L} opub')
        P(f's_cmp_lg_u32 {sr(sHS)}, 0\ns_cbranch_scc1 {ax3}')
        if o['fpr']:
            l = P.newlabel('Lx')
            P(f's_cmp_lt_u32 {sr(sMT)}, 2\ns_cbranch_scc1 {l}\ns_setprio {o["fpr"]}'); P.label(l)
        self.main_outproj(L)
        P(f's_branch L_main_{L+1}')
        P.label(ax3)
        self.aux_tail(L)
        self.stamp(13 + sb, f'L{L} xpub')
        P(f's_branch L_aux_{L+1}')

    def attn_fallback(self, L):
        P = self.P; M = vT0
        pk = lambda d, e: f'v_cvt_pk_bf16_f32 {vr(d)}, {vr(e)}, {vr(e+1)}'
        P.label(f'L_fb_{L}')
        P(f's_waitcnt lgkmcnt(0)\nv_mov_b32 {vr(M)}, 0xff800000')
        for op in self.mask_ops(0) + self.mask_ops(1): P(op)
        for ps in range(2):
            for seg in range(2):
                lp = P.newlabel('Lfb'); nx = P.newlabel('Lfbn'); nm = P.newlabel('Lfbm')
                if seg == 0:
                    P(self.tile_addr(sOWN))
                    P(f's_add_u32 {sr(sCNT)}, {sr(sQT)}, 1\ns_mov_b32 {sr(sSTEP)}, {-OWN_ST}')
                    for i in range(16): P(f'v_mov_b32 {vr(aS+i)}, {vr(CDIAG+i)}')
                else:
                    P(f's_cmp_eq_u32 {sr(sR)}, 0\ns_cbranch_scc1 {nx}')
                    P(self.tile_addr(sP2))
                    P(f's_mov_b32 {sr(sCNT)}, {sr(sC2)}\ns_mov_b32 {sr(sSTEP)}, 4096\ns_cmp_eq_u32 {sr(sR)}, 1\ns_cbranch_scc1 {lp}')
                    for i in range(16): P(f'v_mov_b32 {vr(aS+i)}, {vr(CFIRST+i)}')
                P.label(lp)
                P(f'ds_read_b128 {vr(aK,4)}, {vr(vKA)}')
                if ps:
                    P(f's_mov_b64 exec, {sr(sLO,2)}\nds_read_b128 {vr(VV,4)}, {vr(vVA)} offset:2048\nds_read_b128 {vr(VV+4,4)}, {vr(vVA)} offset:3072\ns_mov_b64 exec, -1')
                P('s_waitcnt lgkmcnt(0)')
                self.mfma(aS, aK, aQ, aS)
                if ps == 0:
                    for i in range(0, 16, 2): P(f'v_max3_f32 {vr(M)}, {vr(M)}, {vr(aS+i)}, {vr(aS+i+1)}')
                else:
                    for i in range(16): P(f'v_sub_f32 {vr(aS+i)}, {vr(aS+i)}, {vr(M)}')
                    for i in range(16): P(f'v_exp_f32 {vr(aS+i)}, {vr(aS+i)}')
                    for p in range(8): P(pk(aP + p, aS + 2*p))
                    self.mfma(aO, VV, aP, aO)
                    self.mfma(aO, VV + 4, aP + 4, aO)
                for i in range(16): P(f'v_mov_b32 {vr(aS+i)}, 0')
                P(f'v_add_u32 {vr(vKA)}, {sr(sSTEP)}, {vr(vKA)}\nv_add_u32 {vr(vVA)}, {sr(sSTEP)}, {vr(vVA)}')
                P(f's_sub_u32 {sr(sCNT)}, {sr(sCNT)}, 1\ns_cmp_lg_u32 {sr(sCNT)}, 0\ns_cbranch_scc1 {lp}')
                P.label(nx)
            if ps == 0:
                P(f'v_mov_b32 {vr(vPD)}, {vr(M)}\nv_permlane32_swap_b32 {vr(vPD)}, {vr(M)}\nv_max_f32 {vr(M)}, {vr(M)}, {vr(vPD)}')
        P(f's_branch L_fbr_{L}')

    def softmax16(self, dst, t, inject=None, start=0, step=1, pk=True):
        if inject is None: return self.softmax16_(dst, t, self.P, pk)
        ops = []
        self.softmax16_(dst, t, lambda x: ops.extend(x.split('\n')))
        inject = list(inject)
        for i, op in enumerate(ops):
            if i >= start and (i - start) % step == 0 and inject: self.P(inject.pop(0))
            self.P(op)
        for x in inject: self.P(x)

    def softmax16_(self, dst, t, P, pk=True):
        A = ACC0
        P(f'v_max3_f32 {vr(t)}, {vr(A)}, {vr(A+1)}, {vr(A+2)}\nv_max3_f32 {vr(t+1)}, {vr(A+3)}, {vr(A+4)}, {vr(A+5)}')
        P(f'v_max3_f32 {vr(t+2)}, {vr(A+6)}, {vr(A+7)}, {vr(A+8)}\nv_max3_f32 {vr(t+3)}, {vr(A+9)}, {vr(A+10)}, {vr(A+11)}')
        P(f'v_max3_f32 {vr(t)}, {vr(t)}, {vr(A+12)}, {vr(A+13)}\nv_max3_f32 {vr(t+1)}, {vr(t+1)}, {vr(A+14)}, {vr(A+15)}')
        P(f'v_max3_f32 {vr(t)}, {vr(t)}, {vr(t+2)}, {vr(t+3)}\nv_max_f32 {vr(t)}, {vr(t)}, {vr(t+1)}')
        P(f'v_mul_f32 {vr(t)}, {vr(vRSTD)}, {vr(t)}')
        if not pk:
            for i in range(4): P(f'v_fma_f32 {vr(A+i)}, {vr(A+i)}, {vr(vRSTD)}, -{vr(t)}')
            for i in range(16):
                P(f'v_exp_f32 {vr(A+i)}, {vr(A+i)}')
                if i + 4 < 16: P(f'v_fma_f32 {vr(A+i+4)}, {vr(A+i+4)}, {vr(vRSTD)}, -{vr(t)}')
                if i in (3, 4): P(f'v_add_f32 {vr(t+i-1)}, {vr(A+i-3)}, {vr(A+i-1)}')
                if i >= 5: P(f'v_add_f32 {vr(t+2+(i+1)%2)}, {vr(t+2+(i+1)%2)}, {vr(A+i-1)}')
            P(f'v_add_f32 {vr(t+3)}, {vr(t+3)}, {vr(A+15)}\nv_add_f32 {vr(t+2)}, {vr(t+2)}, {vr(t+3)}\nv_rcp_f32 {vr(t)}, {vr(t+2)}')
            for i in range(16): P(f'v_mul_f32 {vr(A+i)}, {vr(t)}, {vr(A+i)}')
            for p in range(8): P(f'v_cvt_pk_bf16_f32 {vr(dst+p)}, {vr(A+2*p)}, {vr(A+2*p+1)}')
            return
        fm = lambda p: f'v_pk_fma_f32 {vr(A+2*p,2)}, {vr(A+2*p,2)}, {vr(vRSTD,2)}, {vr(t,2)} op_sel_hi:[1,0,0] neg_lo:[0,0,1] neg_hi:[0,0,1]'
        P(fm(0)); P(fm(1))
        for p in range(8):
            P(f'v_exp_f32 {vr(A+2*p)}, {vr(A+2*p)}')
            if p + 2 < 8: P(fm(p + 2))
            P(f'v_exp_f32 {vr(A+2*p+1)}, {vr(A+2*p+1)}')
            if p == 2: P(f'v_pk_add_f32 {vr(t+2,2)}, {vr(A,2)}, {vr(A+2,2)}')
            if p >= 3: P(f'v_pk_add_f32 {vr(t+2,2)}, {vr(t+2,2)}, {vr(A+2*p-2,2)}')
        P(f'v_pk_add_f32 {vr(t+2,2)}, {vr(t+2,2)}, {vr(A+14,2)}\nv_add_f32 {vr(t+2)}, {vr(t+2)}, {vr(t+3)}\nv_rcp_f32 {vr(t)}, {vr(t+2)}')
        for p in range(8): P(f'v_pk_mul_f32 {vr(A+2*p,2)}, {vr(A+2*p,2)}, {vr(t,2)} op_sel_hi:[1,0]')
        for p in range(8): P(f'v_cvt_pk_bf16_f32 {vr(dst+p)}, {vr(A+2*p)}, {vr(A+2*p+1)}')

    def layerB(self, L):
        P = self.P; Lb = L // 2; sb = L * 14; o = self.o; lg = self.lg
        j0 = f'L_j0_{L}'; j1 = f'L_j1_{L}'; j2 = f'L_j2_{L}'; ax1 = f'L_ax1_{L}'; ax1b = f'L_ax1b_{L}'; ax3 = f'L_ax3_{L}'; axz = f'L_axz_{L}'
        KA, KV_ = 48, 96
        vA16, vA4, vAW, vAO = 96, 97, 98, 99
        P.label(f'L_main_{L}')
        vt = self.main_kv(L)
        if o['fpr']: P('s_setprio 0')
        self.stamp(3 + sb, f'L{L} kvpass')
        P(waitstr(lg=lg.need('rt')))
        vt()
        for p in (4, 5, 6, 7): P(f'v_cvt_pk_bf16_f32 {vr(PKV+p)}, {vr(ACC0+2*p)}, {vr(ACC0+2*p+1)}')
        P(f'ds_write_b128 {vr(vKA)}, {vr(PKV+4,4)} offset:1024'); lg.issue('kb', 2 if o['pw1'] else 1)
        PW = o['pw1']
        if PW:
            o['vpre'] = 2
            P(f'ds_write_b32 {vr(PKV+8)}, {vr(PKV+9)} offset:{4*C_ST}')
        vt()
        for p in (0, 1, 2, 3): P(f'v_cvt_pk_bf16_f32 {vr(PKV+p)}, {vr(ACC0+2*p)}, {vr(ACC0+2*p+1)}')
        vmul = lambda p: f'v_pk_mul_f32 {vr(ACC1+2*p,2)}, {vr(ACC1+2*p,2)}, {vr(STAT+2*p,2)}'
        if o['vlag']:
            vt(99)
            self.mfma(ACC0, WPHI, PKV, None)
            for i in range(16): P(f'v_mul_f32 {vr(ACC1+i)}, {vr(STAT+i)}, {vr(ACC1+i)}')
        else:
            P(vmul(0)); P(vmul(1))
            self.mfma(ACC0, WPHI, PKV, None)
            for p in range(2, 8): P(vmul(p))
        if o['vpre'] != 1 and not PW: P('s_waitcnt lgkmcnt(0)\ns_barrier')
        for f in range(2, 4):
            for p in range(4*f - 8, 4*f - 4): P(f'v_cvt_pk_bf16_f32 {vr(PKV+8+p)}, {vr(ACC1+2*p)}, {vr(ACC1+2*p+1)}')
            P(f'ds_write_b128 {vr(vKA)}, {vr(PKV+4*f,4)} offset:{f*1024}')
        if o['vpre'] == 1: P('s_waitcnt lgkmcnt(0)\ns_barrier')
        P(f's_branch {j0}')
        P.label(f'L_aux_{L}')
        self.aux_head(L)
        for i in range(32): P(f'v_mov_b32 {vr(KV_+i)}, {vr(ONES)}')
        P(f"""v_lshrrev_b32 v91, 5, {vr(vLANE)}
v_bfe_u32 v88, {vr(vLANE)}, 2, 2
v_lshl_add_u32 v88, v91, 2, v88
v_lshlrev_b32 v88, 5, v88
v_and_b32 v89, 1, {vr(vLANE)}
v_lshl_add_u32 v88, v89, 4, v88
v_bfe_u32 v89, {vr(vLANE)}, 4, 1
v_lshl_add_u32 v88, v89, 12, v88
v_bfe_u32 v89, {vr(vLANE)}, 1, 1
v_lshl_add_u32 v88, v89, 3, v88
s_lshl_b32 {sr(sT0)}, {sr(sMT)}, 10
s_add_u32 {sr(sT0)}, {sr(sT0)}, {LDS_OWN}
v_add_u32 v88, {sr(sT0)}, v88
s_lshl_b32 {sr(sT1)}, {sr(sMT)}, 8
v_xor_b32 v90, {sr(sT1)}, {vr(vL16)}
v_add_u32 v89, {LDS_OWN}, v90
s_lshl_b32 {sr(sT0)}, {sr(sMT)}, 1
v_add_u32 v91, {sr(sT0)}, v91
v_and_b32 v92, 31, {vr(vLANE)}
v_mov_b32 v93, {OOB >> 4:#x}
v_cmp_eq_u32 vcc, 16, v92
v_cndmask_b32 v91, v93, v91, vcc
v_lshrrev_b32 v92, 8, v90
v_mul_u32_u24 v92, {KP_Q}, v92
v_and_b32 v93, 15, {vr(vLANE)}
v_lshl_add_u32 v90, v93, 4, v92
v_lshl_add_u32 v92, v93, 2, v92
v_lshlrev_b32 v93, 4, v91
v_add_u32 v93, {KP_Z}, v93
v_lshlrev_b32 v91, 4, v91
v_add_u32 v91, 64, v91
v_cndmask_b32 v91, v91, v92, {sr(sLO,2)}
v_cndmask_b32 v90, v93, v90, {sr(sLO,2)}
v_add_u32 v93, 64, v93
v_add_u32 v92, 256, v90
v_cndmask_b32 v93, v93, v92, {sr(sLO,2)}
s_lshl_b32 {sr(sK2)}, {sr(sC)}, 4
s_add_u32 {sr(sK2)}, {sr(sK2)}, {sr(sR)}
s_mul_i32 {sr(sK2)}, {sr(sK2)}, {KP_REC}
s_add_u32 {sr(sK2)}, {sr(sK2)}, {OFF_KP + Lb*KP_L}""")
        P(self.tile_addr(sOWN))
        for op in self.phi_addr(): P(op)
        P(f's_lshl_b32 {sr(sT0)}, {sr(sQT)}, 7\ns_add_u32 {sr(sT0)}, {sr(sT0)}, {LDS_RSTD}\nv_and_b32 v25, 124, {vr(vL4)}\nv_add_u32 v25, {sr(sT0)}, v25')
        self.aux_head2(L)
        self.stamp(3 + sb, f'L{L} kvpass')
        if PW:
            lw = P.newlabel('Lpw')
            P(f's_lshl_b32 {sr(sT0)}, {sr(sQT)}, 2\nv_add_u32 v26, {sr(sT0)}, {vr(vCNT)}')
            P.label(lw)
            if o['pws']: P(f's_sleep {o["pws"]}')
            P(f'ds_read_b32 {vr(vPD)}, v26 offset:{4*C_ST}\nds_read_b128 {vr(RING+8,4)}, {vr(vKA)}\nds_read_b32 {vr(vRSTD)}, v25\ns_waitcnt lgkmcnt(1)')
            P(f'v_cmp_gt_u32 vcc, {TV_K[L]}, {vr(vPD)}\ns_cbranch_vccnz {lw}')
        else:
            P('s_barrier')
            P(f'ds_read_b128 {vr(RING+8,4)}, {vr(vKA)}\nds_read_b32 {vr(vRSTD)}, v25\ns_waitcnt lgkmcnt(1)')
        self.mfma(ACC0, WPHI, RING + 8, None)
        P(f's_waitcnt lgkmcnt(0)\nv_mul_f32 {vr(vRSTD)}, {sr(sLOG2E)}, {vr(vRSTD)}')
        vrd = [f'ds_read_b128 {vr(KV_+4*st,4)}, v89 offset:{(st>>1)*OWN_ST + 2048 + (st&1)*1024}' for st in range(8)]
        if o['vpre'] == 1:
            P(f's_mov_b64 exec, {sr(sLO,2)}')
            for x in vrd: P(x)
            P('s_mov_b64 exec, -1')
        else: P('s_nop 7')
        jw = P.newlabel('Lpw')
        if PW == 1:
            P(f's_cmp_ge_u32 {sr(sQT)}, 2\ns_cbranch_scc1 {j0}')
            self.stamp(4 + sb, f'L{L} B1a')
            self.softmax16(RING, RING + 12, pk=False)
            P(f's_branch {jw}')
        P.label(j0)
        self.stamp(4 + sb, f'L{L} B1a')
        self.softmax16(RING, RING + 12)
        P.label(jw)
        P(f'ds_write_b128 {vr(vVA)}, {vr(RING,4)}\nds_write_b128 {vr(vVA)}, {vr(RING+4,4)} offset:4096\ns_waitcnt lgkmcnt(0)\ns_barrier')
        self.stamp(5 + sb, f'L{L} B1b')
        common = self.publish_o_addr(L) + f"""s_mul_i32 {sr(sH1)}, {sr(sC)}, {16*KP_REC}
s_add_u32 {sr(sH1)}, {sr(sH1)}, {OFF_KP + Lb*KP_L}
s_mov_b32 {sr(sSEL0)}, 0x3f80
s_mov_b32 {sr(sSEL1)}, 0x3f800000
s_lshl_b32 {sr(sT0)}, {sr(sHS)}, 4
v_xor_b32 {vr(vAO)}, {sr(sT0)}, {vr(vLANE)}
v_lshlrev_b32 {vr(vAO)}, 5, {vr(vAO)}
v_add_u32 {vr(vAO)}, {LDS_KVT}, {vr(vAO)}
v_and_b32 v100, 32, {vr(vLANE)}
s_lshl_b32 {sr(sT0)}, {sr(sHS)}, 6
s_add_u32 {sr(sT0)}, {sr(sT0)}, {LDS_ZT}
v_add_u32 v100, {sr(sT0)}, v100
v_cndmask_b32 {vr(vAO)}, v100, {vr(vAO)}, {sr(sLO,2)}""".split('\n')
        SEL = 104
        addr_main = f"""s_mul_i32 {sr(sH2)}, {sr(sMT)}, {KP_Q}
s_add_u32 {sr(sH2)}, {sr(sH2)}, {sr(sH1)}
v_lshrrev_b32 v100, 4, {vr(vLANE)}
v_and_b32 v101, 15, {vr(vLANE)}
v_mul_u32_u24 {vr(vA16)}, {KP_REC}, v100
v_lshl_add_u32 {vr(vA4)}, v101, 2, {vr(vA16)}
v_lshl_add_u32 {vr(vA16)}, v101, 4, {vr(vA16)}
s_lshl_b32 {sr(sT0)}, {sr(sMT)}, 9
s_add_u32 {sr(sT0)}, {sr(sT0)}, {LDS_KVT}
v_lshl_add_u32 {vr(vAW)}, v101, 5, {sr(sT0)}
v_lshl_add_u32 {vr(vAW)}, v100, 3, {vr(vAW)}
v_lshlrev_b32 v100, 4, {vr(vLANE)}
v_lshlrev_b32 v100, v100, {sr(sSEL0)}
v_lshrrev_b32 v101, 1, v101""".split('\n')
        for r_ in range(8): addr_main += [f'v_cmp_eq_u32 vcc, {r_}, v101\nv_cndmask_b32 {vr(SEL+r_)}, 0, v100, vcc']
        addr_z = f"""v_lshrrev_b32 v102, 4, {vr(vLANE)}
v_mul_u32_u24 {vr(vA16)}, {KP_REC}, v102
v_bfe_u32 v100, {vr(vLANE)}, 3, 1
v_and_b32 v101, 1, {vr(vLANE)}
v_lshl_add_u32 v100, v100, 1, v101
v_bfe_u32 v101, {vr(vLANE)}, 1, 2
v_mul_u32_u24 {vr(vA4)}, {4*KP_REC}, v100
v_add_u32 {vr(vA4)}, {vr(vA4)}, {vr(vA16)}
v_lshl_add_u32 {vr(vA4)}, v101, 4, {vr(vA4)}
v_lshlrev_b32 {vr(vAW)}, 5, v101
v_lshl_add_u32 {vr(vAW)}, v100, 3, {vr(vAW)}
v_lshl_add_u32 {vr(vAW)}, v102, 1, {vr(vAW)}
v_add_u32 {vr(vAW)}, {LDS_ZT}, {vr(vAW)}
v_and_b32 v100, 15, {vr(vLANE)}
v_lshl_add_u32 {vr(vA16)}, v100, 3, {vr(vA16)}""".split('\n')
        A = ACC1; KD = 128; T = A + 4
        def loads_main(P=P, m=' sc1'):
            P(f's_mov_b32 {sr(sT0)}, {sr(sH2)}')
            for it in range(4):
                D = KD + 12*it
                P(f'buffer_load_dwordx4 {vr(D,4)}, {vr(vA16)}, {sr(sWS,4)}, {sr(sT0)} offen{m}\nbuffer_load_dwordx4 {vr(D+4,4)}, {vr(vA16)}, {sr(sWS,4)}, {sr(sT0)} offen offset:256{m}')
                P(f'buffer_load_dword {vr(D+8)}, {vr(vA4)}, {sr(sWS,4)}, {sr(sT0)} offen offset:512{m}')
                if it < 3: P(f's_add_u32 {sr(sT0)}, {sr(sT0)}, {4*KP_REC}')
        def accum(D, first, t0):
            P(f'v_add3_u32 {vr(T)}, {t0 if first else vr(T)}, {vr(D)}, {vr(D+1)}')
            for k in range(2):
                if first: P(f'v_lshlrev_b32 {vr(A+2*k)}, 16, {vr(D+k)}\nv_and_b32 {vr(A+2*k+1)}, 0xffff0000, {vr(D+k)}')
                else: P(f'v_dot2_f32_bf16 {vr(A+2*k)}, {vr(D+k)}, {sr(sSEL0)}, {vr(A+2*k)}\nv_dot2_f32_bf16 {vr(A+2*k+1)}, {vr(D+k)}, {sr(sSEL1)}, {vr(A+2*k+1)}')
        dpp = lambda c: f'v_add_u32_dpp {vr(T)}, {vr(T)}, {vr(T)} {c} row_mask:0xf bank_mask:0xf'
        P(f's_cmp_lg_u32 {sr(sHS)}, 0\ns_cbranch_scc1 {ax1}')
        lg.reset()
        self.q_prefetch(L)
        fill = [('ds', 'cs', f'ds_read_b128 {vr(WEXTQ,4)}, {vr(vT0)}')] + common
        fill += addr_main
        fill += self.wext_items(WEXTQ, 'cs')
        self.main_qpass(L, ACC1, fill, pre_write=lambda: P('s_barrier'), rate=2)
        self.mfma(ACC0, WPHI, aQ, None)
        P('s_waitcnt lgkmcnt(0)\ns_barrier')
        if o['kp_at'] == 1: loads_main()
        if o['kp_at'] >= 2:
            inj = []; loads_main(lambda x: inj.extend(x.split('\n')))
            self.softmax16(PHQ, RING + 12, inj, o['kp_at'], o['kp_step'])
            self.stamp(6 + sb, f'L{L} phiq / kp stored')
            P(f's_branch L_kpc_{L}')
        else: P(f's_branch {j1}')
        P.label(ax1)
        P(f's_cmp_ge_u32 {sr(sMT)}, 2\ns_cbranch_scc1 {ax1b}\ns_setprio 3')
        if o['vpre'] == 2:
            P(f's_mov_b64 exec, {sr(sLO,2)}')
            for x in vrd: P(x)
            P('s_mov_b64 exec, -1')
        n_ = 2 if o['vpre'] else 3
        for st in range(8):
            of = (st >> 1)*OWN_ST + (st & 1)*512
            P(f'ds_read_b64_tr_b16 {vr(KA+4*st,2)}, v88 offset:{of}\nds_read_b64_tr_b16 {vr(KA+2+4*st,2)}, v88 offset:{of+256}')
            if not o['vpre']: P(f's_mov_b64 exec, {sr(sLO,2)}\n{vrd[st]}\ns_mov_b64 exec, -1')
            if st >= 3:
                P(f's_waitcnt lgkmcnt({3*n_})'); self.mfma(ACC0, KA + 4*(st-3), KV_ + 4*(st-3), None if st == 3 else ACC0)
        for st in range(5, 8):
            P(f's_waitcnt lgkmcnt({n_*(7-st)})'); self.mfma(ACC0, KA + 4*st, KV_ + 4*st, ACC0)
        for p in range(8): P(f'v_cvt_pk_bf16_f32 {vr(80+p)}, {vr(ACC0+2*p)}, {vr(ACC0+2*p+1)}')
        P(f'buffer_store_dwordx4 v[80:83], v90, {sr(sWS,4)}, {sr(sK2)} offen{MODS[o["sm"]]}\nbuffer_store_dwordx4 v[84:87], v93, {sr(sWS,4)}, {sr(sK2)} offen{MODS[o["sm"]]}')
        for op in self.checksum(92, 80, 8): P(op)
        P(f'buffer_store_dword v92, v91, {sr(sWS,4)}, {sr(sK2)} offen offset:512{MODS[o["sm"]]}')
        self.stamp(6 + sb, f'L{L} phiq / kp stored')
        P('s_setprio 0')
        P.label(ax1b)
        if L == 1: self.dma_w(1, ('o',))
        for it in common + addr_z: P(it)
        P('s_barrier\ns_barrier')
        P(f'ds_read_b128 {vr(aQ,4)}, {vr(vKA)} offset:4096\ns_waitcnt lgkmcnt(0)')
        self.mfma(ACC0, WPHI, aQ, None)
        P('s_nop 11')
        P.label(j1)
        self.softmax16(PHQ, RING + 12)
        if o['kp_at'] >= 2: P(f's_branch {axz}')
        else:
            P(f's_cmp_lg_u32 {sr(sHS)}, 0\ns_cbranch_scc1 {axz}')
            self.stamp(6 + sb, f'L{L} phiq / kp stored')
        lp = P.newlabel('Lkp'); ck = f'L_kpc_{L}'; dn = P.newlabel('Lkpd')
        if o['kp_at'] == 0 and o['km'] != 1: loads_main(m=MODS[o['km']])
        if o['kp_at'] == 1 or (o['kp_at'] == 0 and o['km'] != 1): P(f's_branch {ck}')
        P.label(lp)
        loads_main()
        P.label(ck)
        for it in range(4):
            D = KD + 12*it; cs = self.checksum(D + 9, D, 8)
            P(f's_waitcnt vmcnt({10 - 3*it})')
            for hf in range(2):
                P(f'v_mfma_f32_16x16x32_bf16 {vr(A,4)}, {vr(SEL+4*hf,4)}, {vr(D+4*hf,4)}, {"0" if it + hf == 0 else vr(A,4)}')
            for op in cs: P(op)
            P(f's_waitcnt vmcnt({9 - 3*it})\nv_cmp_ne_u32 {sr(sM+2*it,2)}, {vr(D+8)}, {vr(D+9)}')
            if it == 2: P(f's_or_b64 {sr(sM,2)}, {sr(sM,2)}, {sr(sM+2,2)}')
            if it == 3: P(f's_or_b64 {sr(sM,2)}, {sr(sM,2)}, {sr(sM+4,2)}')
        P(f'v_cvt_pk_bf16_f32 v68, {vr(A)}, {vr(A+1)}\nv_cvt_pk_bf16_f32 v69, {vr(A+2)}, {vr(A+3)}\nds_write_b64 {vr(vAW)}, v[68:69]')
        P(f's_or_b64 {sr(sM,2)}, {sr(sM,2)}, {sr(sM+6,2)}\ns_cbranch_scc0 {dn}')
        self.retry_tail(lp, dn)
        self.stamp(7 + sb, f'L{L} kp ok')
        P(f's_branch {j2}')
        P.label(axz)
        if L == 1:
            P('s_waitcnt vmcnt(0)')
        P(f's_cmp_lg_u32 {sr(sMT)}, 2\ns_cbranch_scc1 {j2}')
        lp = P.newlabel('Lkz'); dn = P.newlabel('Lkzd'); D = 32
        P.label(lp)
        P(f's_mov_b32 {sr(sT0)}, {sr(sH1)}\nbuffer_load_dword {vr(D+8)}, {vr(vA4)}, {sr(sWS,4)}, {sr(sT0)} offen offset:576 sc1')
        for it in range(4):
            P(f'buffer_load_dwordx2 {vr(D+2*it,2)}, {vr(vA16)}, {sr(sWS,4)}, {sr(sT0)} offen offset:{KP_Z} sc1')
            if it < 3: P(f's_add_u32 {sr(sT0)}, {sr(sT0)}, {4*KP_REC}')
        for it in range(4):
            P(f's_waitcnt vmcnt({3 - it})')
            accum(D + 2*it, it == 0, sr(sTAG))
            if it == 0: P(f'v_sub_u32 {vr(T)}, {vr(T)}, {vr(D+8)}')
        P(dpp('quad_perm:[1,0,3,2]'))
        P(f'v_permlane32_swap_b32 {vr(A)}, {vr(A+2)}\nv_permlane32_swap_b32 {vr(A+1)}, {vr(A+3)}')
        P(dpp('row_ror:8'))
        P(f'v_add_f32 {vr(A)}, {vr(A)}, {vr(A+2)}\nv_add_f32 {vr(A+1)}, {vr(A+1)}, {vr(A+3)}\nv_cmp_ne_u32 vcc, 0, {vr(T)}')
        P(f'v_permlane16_swap_b32 {vr(A)}, {vr(A+1)}\nv_add_f32 {vr(A)}, {vr(A)}, {vr(A+1)}\nv_cvt_pk_bf16_f32 v68, {vr(A)}, {vr(A)}\nds_write_b16 {vr(vAW)}, v68')
        P(f's_cbranch_vccz {dn}')
        self.retry_tail(lp, dn)
        P.label(j2)
        P('s_waitcnt lgkmcnt(0)\ns_barrier')
        self.stamp(8 + sb, f'L{L} B2')
        P(f'ds_read_b128 v[68:71], {vr(vAO)}\nds_read_b128 v[72:75], {vr(vAO)} offset:16')
        if o['eb']:
            for op in self.hint_prep(78, L): P(op)
        if o['eb'] == 1: self.hint(78, sK1)
        P('s_waitcnt lgkmcnt(1)')
        self.mfma(ACC0, 68, PHQ, None)
        if o['eb'] == 2: self.hint(78, sK1)
        P('s_waitcnt lgkmcnt(0)')
        self.mfma(ACC0, 72, PHQ + 4, ACC0)
        if o['eb'] == 3: self.hint(78, sK1)
        self.publish_o(L, ACC0, 1e-6)
        self.stamp(10 + sb, f'L{L} opub')
        P(f's_cmp_lg_u32 {sr(sHS)}, 0\ns_cbranch_scc1 {ax3}')
        if o['epr'] and L == 1: self.prio_if(f's_cmp_lt_u32 {sr(sMT)}, 2')
        elif o['mpr']: P(f's_setprio {o["mpr"]}')
        self.main_outproj(L)
        if o['epr'] == 1 and L == 1: self.prio_if(f's_cmp_ge_u32 {sr(sMT)}, 2')
        P(f's_branch L_main_{L+1}')
        P.label(ax3)
        self.aux_tail(L)
        self.stamp(13 + sb, f'L{L} xpub')
        P(f's_branch L_aux_{L+1}')

    def epilogue(self):
        P = self.P; nl = self.nl
        P.label(f'L_main_{nl}')
        P(f's_or_b32 {sr(sT0)}, s2, {sr(sW)}\ns_cmp_lg_u32 {sr(sT0)}, 0\ns_cbranch_scc1 L_aux_{nl}\ns_mov_b32 {sr(sT2)}, 0')
        self.flag(sT2, sTAG, False)
        P.label(f'L_aux_{nl}')
        if self.stamps:
            P('s_waitcnt vmcnt(0)')
            self.stamp(62, 'end')
            P(f's_memtime {sr(sST,2)}\ns_waitcnt lgkmcnt(0)\ns_sub_u32 {sr(sST)}, {sr(sST)}, s100\nv_writelane_b32 {vr(vSTAMP)}, {sr(sST)}, 59')
            P(f'''v_writelane_b32 {vr(vSTAMP)}, {sr(sBUD)}, 63
v_writelane_b32 {vr(vSTAMP)}, {sr(sFAST)}, 61
v_writelane_b32 {vr(vSTAMP)}, s99, 58
v_writelane_b32 {vr(vSTAMP)}, s101, 56
s_lshl_b32 {sr(sT0)}, s2, 3
s_add_u32 {sr(sT0)}, {sr(sT0)}, {sr(sW)}
s_lshl_b32 {sr(sT0)}, {sr(sT0)}, 8
s_add_u32 {sr(sT0)}, {sr(sT0)}, {OFF_STAMP}
buffer_store_dword {vr(vSTAMP)}, {vr(vL4)}, {sr(sWS,4)}, {sr(sT0)} offen''')
            if self.o.get('dbgst'):
                P(f's_cmp_lg_u32 {sr(sHS)}, 0\ns_cbranch_scc1 L_end\ns_load_dwordx2 s[64:65], s[0:1], 64\nv_mov_b32 v30, 0')
                for j, (idx, neg) in enumerate([(60, 1), (60, 0), (0, 0), (2, 0), (1, 0), (3, 0), (8, 0), (10, 0), (13, 0), (27, 0), (41, 0), (62, 0), (59, 0), (3, 1), (13, 1), (62, 1)]):
                    P(f'v_readlane_b32 s66, {vr(vSTAMP)}, {idx}')
                    if neg: P('s_not_b32 s66, s66')
                    P(f'v_writelane_b32 v30, s66, {j}')
                P('s_waitcnt lgkmcnt(0)')
                self.srd(68, 64, 256)
                P(f's_mov_b64 exec, 0xffff\nbuffer_atomic_umax v30, {vr(vL4)}, s[68:71], 0 offen\ns_waitcnt vmcnt(0)')
        if self.o.get('spin'):
            lp = P.newlabel('Lspin'); P.label(lp)
            P(f's_memrealtime s[66:67]\ns_waitcnt lgkmcnt(0)\ns_sub_u32 s66, s66, s98\ns_cmp_lt_u32 s66, {self.o["spin"]}\ns_cbranch_scc1 {lp}')
        P.label('L_end')
        P('s_endpgm')

    def build(self):
        self.prologue()
        for L in range(self.nl):
            (self.layerA if L % 2 == 0 else self.layerB)(L)
        self.epilogue()
        self.emit_stubs()
        for L in range(0, self.nl, 2): self.attn_fallback(L)
        n = self.P.fix_hazards()
        errs = self.P.check_waits()
        head = open(f'cdna_kernels/{NAME}.s.ref').read().split('; @launch')[0]
        s = head + f'; @launch grid=(256,1,1) block=(512,1,1) lds={LDS_TOTAL}\n'
        s += f'.amdgcn_target "amdgcn-amd-amdhsa--gfx950"\n.text\n{DOC}.globl {NAME}_kernel\n.p2align 8\n.type {NAME}_kernel,@function\n{NAME}_kernel:\n'
        s += self.P.text().replace('CODE_BYTES', '(L_end - %s_kernel - 1088)' % NAME)
        s += f'''.section .rodata,"a"
.p2align 6
.amdhsa_kernel {NAME}_kernel
  .amdhsa_next_free_vgpr 256
  .amdhsa_next_free_sgpr 102
  .amdhsa_accum_offset 256
  .amdhsa_group_segment_fixed_size 0
  .amdhsa_kernarg_size 80
  .amdhsa_user_sgpr_count 2
  .amdhsa_user_sgpr_kernarg_segment_ptr 1
  .amdhsa_system_sgpr_workgroup_id_x 1
.end_amdhsa_kernel
'''
        return s, n, errs


if __name__ == '__main__':
    import argparse, json
    ap = argparse.ArgumentParser()
    ap.add_argument('-o', default=f'cdna_kernels/{NAME}.s')
    ap.add_argument('--stamps', action='store_true')
    ap.add_argument('--safe', action='store_true')
    ap.add_argument('--cyc', action='store_true')
    ap.add_argument('--opt', nargs='*', default=[])
    ap.add_argument('--noalias', action='store_true')
    ap.add_argument('--nl', type=int, default=4)
    a = ap.parse_args()
    g = Gen(stamps=a.stamps, nlayers=a.nl, force_safe=a.safe, cyc=a.cyc, alias=not a.noalias, opt={k: int(v) for k, v in (x.split('=') for x in a.opt)})
    s, n, errs = g.build()
    open(a.o, 'w').write(s)
    if a.stamps: json.dump(g.stamp_names, open(a.o + '.stamps.json', 'w'))
    print('instructions', sum(1 for x in g.P.L if x.op), 'nops inserted', n, 'lds', LDS_TOTAL)
    for e in errs[:8]: print('WAITCHECK', e)
```

```python
import sys, struct
sys.path.insert(0, 'dev')
from asmlib import *

NAME = 'interleave_layers__sliding_block__linear_kernel_hedgehog__prompt'
def f2u(x): return struct.unpack('<I', struct.pack('<f', x))[0]
LOG2E = 1.4426950408889634

OFF_XFLAG = 0x1000
OFF_OFLAG = 0x9000
OFF_FIN = 0x12000
OFF_STAMP = 0x30000
OFF_ST = 0x100000
OFF_X = 0x200000
OFF_O = 0xA00000
OFF_KV = 0x1200000
KV_REC = 4480; KV_L = 1024*KV_REC
OFF_KP = 0x1B00000
KP_REC = 2688; KP_Q = 640; KP_Z = 2560; KP_L = 256*KP_REC
WS_USED = 0x2000000
OOB = 0x40000000
TAGC = 0x9E3779B0
SAFE_EXP = 30

LDS_WK = 0; LDS_WV = 32768; LDS_WQ = 65536; LDS_T = 65536; LDS_WO = 98304
LDS_OWN = 131072; OWN_ST = 6144
LDS_CSP = LDS_OWN + 4*OWN_ST
LDS_RSTD = LDS_CSP + 3072; LDS_KVT = LDS_RSTD + 512; LDS_ZT = LDS_KVT + 2048
LDS_FAST = LDS_ZT + 128; LDS_CNT = LDS_FAST + 16; LDS_ONES = LDS_FAST + 64; LDS_PHI = LDS_ONES + 1040; LDS_TOTAL = LDS_PHI + 1024
NT_LDS = {0: LDS_WQ, 1: LDS_WK, 2: LDS_WV, 'o': LDS_WO}
C_ST, C_XDONE, C_WGO, C_CS, C_Q, C_ATT, C_CSQ, C_WR = 0, 4, 5, 6, 7, 8, 9, 10

sWS, sX0, sWA, sWoA, sWB, sWoB, sPhi, sOut = 4, 8, 12, 16, 20, 24, 28, 32
sR, sC, sW, sMT, sHS, sRT, sQT, sTAG, sFAST, sBUD = 36, 37, 38, 39, 40, 41, 42, 43, 44, 45
sT0, sT1, sT2, sT3 = 46, 47, 48, 49
sLO = 50
sOWNF = 52; sCNT = 53; sSTEP = 54; sLOG2E = 55; sST = 56
sROT = 58; sDM = 59; sH0 = 60
sG0 = 62; sPERM = 63
sM = 64
sOW, sOF, sHB, sHAS, sP2, sC2, sOWN, sKVW, sXW, sSW, sXF, sRB = 72, 73, 74, 75, 76, 77, 78, 79, 80, 81, 82, 83
sLA = 86; sDG = 87; sDL = 88; sLB = 89; sLR = 90; sK0 = 91; sK1 = 92; sK2 = 93; sSEL0 = 94; sSEL1 = 95; sH1 = 96; sH2 = 97; sC1008 = 3; sS0 = 3
vT0, vLANE, vL16, vL4, vCNT, vTR1, vTR2, vSTAMP = 0, 1, 2, 3, 4, 5, 6, 7
XRES, WPHI = 8, 16
vDW, vDO, vCH, vCS, ONES = 8, 9, 10, 11, 12
vRSTD, vKA, vVA, vPD, vPA, vRA, vRB, vFD = 20, 21, 22, 23, 24, 25, 26, 27
vCK = vPD; XEXT = 28; ACC0 = 32; ACC1 = 48; RING = 64; WEXTQ = 84; WEXTK = 88; WEXTV = 92; VV = 88
STAT = 96; CDIAG = 96; PKV = 112; CFIRST = 112; XF = 128
aS, aO, aE, aQ, aK, aP, aH = 32, 48, 64, 72, 76, 80, 128
vSTV = 64
PHQ = 112
PARK = {1: 128, 2: 160, 0: 192, 'o': 224}
MFMA = 'v_mfma_f32_32x32x16_bf16'
MODS = ['', ' sc1', ' sc0', ' nt', ' sc0 sc1', ' sc1 nt', ' sc0 sc1 nt']
def cho(u): return (u >> 1)*8192 + (u & 1)*1024
TV_O = (5, 7, 8, 10); TV_K = (0, 6, 0, 9)
SW4 = ((0, 2), (1, 3), (4, 6), (5, 7))


DOC = '''; One persistent launch, 256 workgroups x 8 waves. Workgroup = (128-row block r, head pair c); waves 0-3 run the projections of one
; (first use: drained, launch-tagged flags; tagged words otherwise only say when to look), K/V halo tiles and kv partial sums carry
'''

class Gen:
    def __init__(self, stamps=False, nlayers=4, force_safe=False, cyc=False, alias=True, opt=None):
        self.cyc = cyc; self.alias = alias
        self.o = dict(halo_at=35, prio=2, trunc=1, wgo=2, wgon=2, xd=8, od=10, x0d=3, psleep=1, kp_at=0, spec=0, pw=16, tlb=0, touch=1, b0=0, mcs=1, pre=2, pst=0, trk=3, ool=1, at2=1, qrate=4, omul=1, specx=0, lsleep=2, ev=5, st0=3, wo_at=0, pf=1, pfb=0, psp=0, xst=1, bq=0, early=0, p1=0, o3=1, outm=1, kp_step=2, vpre=1, hm=1, km=1, sm=1, pw1=2, pws=2, il=0, qgo=5, csk=22, wearly=0, apr=1, fpr=0, epr=0, mpr=0, sg=0, od1=10, pp=0, em=0, hx=1, ho=1, hp=1, hs=2, ex=32, ea=2, eb=3, clr=0, vlag=0, vlaga=0, prex=1, preo=1, ev2=11, red=1, rk0=22, rk1=28, own=0, chain=1, rsl=0, plds=1, pfw=1, hpr=0, vfirst=0, bql=0, pq=0, tpos=0, hb=1, m1l=0, qr0=4, qcv=0, cpl=1)
        self.o.update(opt or {})
        self.P = Prog(); self.stamps = stamps; self.nl = nlayers; self.force_safe = force_safe
        self.stamp_names = {}
        self.vm = Tracker(63); self.lg = Tracker(15); self.stubs = []; self.ool = []

    def stamp(self, idx, name=''):
        if not self.stamps: return
        self.stamp_names[idx] = name
        self.P(f'{"s_memtime" if self.cyc else "s_memrealtime"} {sr(sST,2)}\ns_waitcnt lgkmcnt(0)\nv_writelane_b32 {vr(vSTAMP)}, {sr(sST)}, {idx}')

    def al(self, L): return 0 if self.alias else L

    def mfma(self, d, a, b, c):
        cs = '0' if c is None else vr(c, 16)
        self.P(f'{MFMA} {vr(d,16)}, {vr(a,4)}, {vr(b,4)}, {cs}')

    def srd(self, s, ptr, nbytes):
        self.P(f's_mov_b32 {sr(s)}, {sr(ptr)}\ns_and_b32 {sr(s+1)}, {sr(ptr+1)}, 0xffff\ns_mov_b32 {sr(s+2)}, {nbytes}\ns_mov_b32 {sr(s+3)}, 0x20000')

    def poll(self, soff, masked=False, areg=vPA, val=sTAG):
        P = self.P; lp = P.newlabel('Lpoll'); dn = P.newlabel('Lpolld')
        P.label(lp)
        P(f'buffer_load_dword {vr(vPD)}, {vr(areg)}, {sr(sWS,4)}, {sr(soff)} offen sc1\ns_waitcnt vmcnt(0)')
        if masked:
            P(f'v_and_b32 {vr(vT0)}, -16, {vr(vPD)}\nv_cmp_ne_u32 vcc, {sr(sTAG)}, {vr(vT0)}')
        else:
            P(f'v_cmp_ne_u32 vcc, {sr(val)}, {vr(vPD)}')
        P(f's_cbranch_vccz {dn}')
        if self.o['psleep']: P(f's_sleep {self.o["psleep"]}')
        P(f's_sub_u32 {sr(sBUD)}, {sr(sBUD)}, 1\ns_cbranch_scc0 {lp}\ns_mov_b32 {sr(sBUD)}, 0')
        P.label(dn)

    def flag(self, soff, sval, sc1, wait=None, add=0):
        P = self.P
        P((f'v_add_u32 {vr(vPD)}, {sr(sval)}, {add}' if add else f'v_mov_b32 {vr(vPD)}, {sr(sval)}') + '\ns_mov_b64 exec, 1')
        if wait: P(wait)
        P(f'buffer_store_dword {vr(vPD)}, off, {sr(sWS,4)}, {sr(soff)}' + (' sc1' if sc1 else ''))
        P('s_mov_b64 exec, -1')

    def prio_if(self, cmp):
        P = self.P; l = P.newlabel('Lpr')
        b = self.o['prio'] - 1
        P(f's_setprio {b}\n{cmp}\ns_cbranch_scc0 {l}\ns_setprio {b+1}'); P.label(l)

    def lds_signal(self, idx, wait=True):
        w = 's_waitcnt lgkmcnt(0)\n' if wait else ''
        self.P(f'v_mov_b32 {vr(vPD)}, 1\ns_mov_b64 exec, 1\n{w}ds_add_u32 {vr(vCNT)}, {vr(vPD)} offset:{4*idx}\ns_mov_b64 exec, -1')

    def lds_wait(self, idx, val, sleep=0):
        P = self.P; lp = P.newlabel('Llw')
        P.label(lp)
        if sleep: P(f's_sleep {sleep}')
        P(f'ds_read_b32 {vr(vPD)}, {vr(vCNT)} offset:{4*idx}\ns_waitcnt lgkmcnt(0)\nv_cmp_gt_u32 vcc, {val}, {vr(vPD)}\ns_cbranch_vccnz {lp}')

    def lds_peek(self, idx):
        return [('ds', ('cnt', idx), f'ds_read_b32 {vr(vPD)}, {vr(vCNT)} offset:{4*idx}')]

    def lds_check(self, idx, val):
        P = self.P; ok = P.newlabel('Llc')
        P(waitstr(lg=self.lg.need(('cnt', idx))))
        P(f'v_cmp_gt_u32 vcc, {val}, {vr(vPD)}\ns_cbranch_vccz {ok}')
        self.lds_wait(idx, val)
        P.label(ok)

    def two_way(self, emit):
        P = self.P
        if self.force_safe:
            emit(True); return
        ls = P.newlabel('Lsafe'); le = P.newlabel('Lpub')
        P(f's_cmp_eq_u32 {sr(sFAST)}, 0\ns_cbranch_scc1 {ls}')
        emit(False)
        if self.o['ool']:
            self.ool.append((ls, emit, le))
        else:
            P(f's_branch {le}'); P.label(ls)
            emit(True)
        P.label(le)

    def item(self, it):
        P = self.P
        if isinstance(it, str): P(it)
        elif it[0] == 'wvm': P(waitstr(vm=self.vm.need(it[1])))
        elif it[0] == 'wlg': P(waitstr(lg=self.lg.need(it[1])))
        elif it[0] == 'ds': P(it[2]); self.lg.issue(it[1])
        elif it[0] == 'fn': it[1]()

    def checksum(self, dst, src, n):
        ops = [f'v_add3_u32 {vr(dst)}, {sr(sTAG)}, {vr(src)}, {vr(src+1)}']
        for i in range(2, n, 2): ops.append(f'v_add3_u32 {vr(dst)}, {vr(dst)}, {vr(src+i)}, {vr(src+i+1)}')
        return ops

    def retry_tail(self, lp, dn):
        if self.stamps: self.P('s_add_u32 s99, s99, 1')
        self.P(f's_sub_u32 {sr(sBUD)}, {sr(sBUD)}, 1\ns_cbranch_scc0 {lp}\ns_mov_b32 {sr(sBUD)}, 0')
        self.P.label(dn)
        if self.stamps: self.P('s_lshl_b32 s99, s99, 6')

    def prologue(self):
        P = self.P; o = self.o
        vH, vT = 64, 65
        if self.stamps: P('s_memrealtime s[98:99]\ns_memtime s[100:101]')
        elif o.get('spin'): P('s_memrealtime s[98:99]')
        P(f"""s_cmp_ge_u32 s2, 256
s_cbranch_scc1 L_end
s_load_dwordx16 s[64:79], s[0:1], 0
s_load_dwordx4 s[80:83], s[0:1], 64
s_getpc_b64 s[84:85]
v_lshrrev_b32 v1, 6, v0
s_lshr_b32 {sr(sT1)}, s2, 3
v_readfirstlane_b32 {sr(sW)}, v1
v_and_b32 {vr(vLANE)}, 63, v0
v_lshlrev_b32 {vr(vL16)}, 4, {vr(vLANE)}""")
        lc = P.newlabel('Lx')
        P(f"""s_cmp_lt_u32 {sr(sW)}, 6
s_cbranch_scc1 {lc}
s_and_b32 {sr(sT0)}, {sr(sW)}, 1
s_lshl_b32 {sr(sT0)}, {sr(sT0)}, 5
s_add_u32 {sr(sT0)}, {sr(sT0)}, {sr(sT1)}
s_lshl_b32 {sr(sT0)}, {sr(sT0)}, 10
s_cmp_ge_u32 {sr(sT0)}, CODE_BYTES
s_cbranch_scc1 {lc}
v_add_u32 v254, {sr(sT0)}, {vr(vL16)}
v_mov_b32 v255, s85
v_add_co_u32 v254, vcc, s84, v254
v_addc_co_u32 v255, vcc, 0, v255, vcc
global_load_dword v253, v[254:255], off""")
        P.label(lc)
        P(f"""s_and_b32 {sr(sT0)}, s2, 7
s_add_u32 {sr(sC)}, {sr(sT1)}, {o.get('cadd', 0)}
s_and_b32 {sr(sC)}, {sr(sC)}, 15
s_lshr_b32 {sr(sT1)}, {sr(sT1)}, 4
s_lshl_b32 {sr(sR)}, {sr(sT0)}, 1
s_add_u32 {sr(sR)}, {sr(sR)}, {sr(sT1)}
s_and_b32 {sr(sMT)}, {sr(sW)}, 3
s_lshr_b32 {sr(sHS)}, {sr(sW)}, 2
s_lshl_b32 {sr(sRT)}, {sr(sR)}, 2
s_add_u32 {sr(sRT)}, {sr(sRT)}, {sr(sMT)}
s_add_u32 {sr(sS0)}, {sr(sT0)}, {sr(sT1)}
s_lshl_b32 {sr(sT1)}, {sr(sC)}, 1
s_add_u32 {sr(sS0)}, {sr(sS0)}, {sr(sT1)}
s_and_b32 {sr(sS0)}, {sr(sS0)}, 3
s_lshr_b32 {sr(sROT)}, {sr(sC)}, 1
s_lshl1_add_u32 {sr(sROT)}, {sr(sS0)}, {sr(sROT)}
s_and_b32 {sr(sROT)}, {sr(sROT)}, 7
v_mov_b32 v8, 0
v_mov_b32 v9, 0
v_mov_b32 v10, 0
v_mov_b32 v11, 0
v_mov_b32 v90, 0
v_mov_b32 {vr(vPA)}, 0
v_mov_b32 v91, 0
v_mov_b32 v93, 0
v_mov_b32 {vr(vCNT)}, {LDS_CNT}
ds_write_b128 {vr(vCNT)}, v[8:11]
ds_write_b128 {vr(vCNT)}, v[8:11] offset:16
ds_write_b128 {vr(vCNT)}, v[8:11] offset:32
v_lshrrev_b32 v28, 3, {vr(vLANE)}
v_lshlrev_b32 v28, 10, v28
v_lshrrev_b32 v29, 4, {vr(vLANE)}
v_xor_b32 v29, v29, {vr(vLANE)}
v_and_b32 v29, 7, v29
v_lshl_add_u32 v28, v29, 4, v28
v_xor_b32 v29, 64, v28
v_add_u32 v30, {2*7168}, v28
v_add_u32 v31, {3*7168}, v29
v_add_u32 v29, 7168, v29
s_lshl_b32 {sr(sLB)}, {sr(sRT)}, 15
s_lshl_b32 {sr(sLR)}, {sr(sROT)}, 7
s_mul_i32 {sr(sLA)}, {sr(sMT)}, {12288 if o['il'] else 16384}
s_add_u32 {sr(sLA)}, {sr(sLA)}, {LDS_WO if o['il'] else LDS_WQ}
{'s_memrealtime s[92:93]' if self.stamps else ''}
s_waitcnt lgkmcnt(0)
{'s_memrealtime s[94:95]' if self.stamps else ''}
s_load_dword {sr(sTAG)}, s[82:83], 0""")
        self.srd(sX0, 64, 2097152)
        if o['pf'] >= 3:
            lq = P.newlabel('Lx')
            P(f"""s_cmp_lg_u32 {sr(sW)}, {o['pf'] + 1}
s_cbranch_scc1 {lq}
s_lshr_b32 {sr(sT0)}, s2, 3
s_sub_u32 {sr(sT1)}, {sr(sT0)}, 24
s_cselect_b32 {sr(sT0)}, {sr(sT0)}, {sr(sT1)}
s_cselect_b64 {sr(sT2,2)}, s[66:67], s[68:69]
s_lshl_b32 {sr(sT0)}, {sr(sT0)}, 16
v_lshl_add_u32 v26, {vr(vLANE)}, 10, {sr(sT0)}
global_load_dword v25, v26, {sr(sT2,2)} offset:384""")
            P.label(lq)
        def dma_addr():
            P(f"""v_lshrrev_b32 v28, 2, {vr(vLANE)}
v_and_b32 v29, 3, {vr(vLANE)}
v_lshlrev_b32 v29, 4, v29
s_lshl_b32 {sr(sT0)}, {sr(sC)}, 6
v_add_u32 v29, {sr(sT0)}, v29
v_mul_u32_u24 {vr(vDW)}, 3072, v28
v_add_u32 {vr(vDW)}, {vr(vDW)}, v29
v_lshl_add_u32 {vr(vDO)}, v28, 10, v29
s_lshl_b32 {sr(sLA)}, {sr(sMT)}, 11
s_lshr_b32 {sr(sT0)}, {sr(sMT)}, 1
s_add_u32 {sr(sT0)}, {sr(sT0)}, {sr(sROT)}
s_and_b32 {sr(sT0)}, {sr(sT0)}, 7
s_lshl_b32 {sr(sG0)}, {sr(sT0)}, 16
s_xor_b32 {sr(sT0)}, {sr(sMT)}, {sr(sC)}
s_and_b32 {sr(sT0)}, {sr(sT0)}, 1
s_lshl_b32 {sr(sT0)}, {sr(sT0)}, 15
s_add_u32 {sr(sG0)}, {sr(sG0)}, {sr(sT0)}""")
        avm = Tracker(63)
        P(f's_cmp_lg_u32 {sr(sHS)}, 0\ns_cbranch_scc1 L_pro1')
        for g in range(2): self.x0_load(g)
        if o['wearly']: P('s_branch L_pro2')
        P.label('L_pro1')
        if o['wearly']:
            self.srd(sWA, 66, 1572864)
            dma_addr()
            for st in range(o['wearly']): self.dma_w(0, (1, 2), (st,)); avm.issue(st, 4)
        P.label('L_pro2')
        if self.stamps: P('s_memrealtime s[96:97]')
        P('s_barrier')
        self.srd(sWS, 82, WS_USED); self.srd(sWA, 66, 1572864); self.srd(sWoA, 68, 524288)
        self.srd(sWB, 72, 1572864); self.srd(sPhi, 74, 16384); self.srd(sWoB, 76, 524288); self.srd(sOut, 78, 2097152)
        P(f"""s_mul_i32 {sr(sT0)}, {sr(sHS)}, 3
s_xor_b32 {sr(sQT)}, {sr(sMT)}, {sr(sT0)}
s_mov_b32 {sr(sBUD)}, 0x100000
s_mov_b32 {sr(sLO)}, 0xffff
s_mov_b32 {sr(sLO+1)}, 0xffff
s_mov_b32 {sr(sH0)}, -1
s_mov_b32 {sr(sH0+1)}, 0
s_mov_b32 {sr(sFAST)}, 0
s_mov_b32 {sr(sDM)}, 0
s_mov_b32 {sr(sLOG2E)}, {f2u(LOG2E):#x}
s_mov_b32 {sr(sPERM)}, 0x07060302
s_lshl_b32 {sr(sS0)}, {sr(sS0)}, 13
s_getreg_b32 {sr(sOWNF)}, hwreg(HW_REG_XCC_ID, 0, 4)
v_lshrrev_b32 {vr(vH)}, 5, {vr(vLANE)}
v_and_b32 {vr(vT)}, 31, {vr(vLANE)}
v_lshlrev_b32 {vr(vL4)}, 2, {vr(vLANE)}
v_mov_b32 {vr(vSTAMP)}, 0
v_bfe_u32 {vr(vTR1)}, {vr(vLANE)}, 2, 2
v_lshl_add_u32 {vr(vTR1)}, {vr(vH)}, 2, {vr(vTR1)}
v_lshlrev_b32 {vr(vTR2)}, 6, {vr(vTR1)}
v_bfe_u32 {vr(vTR1)}, {vr(vLANE)}, 4, 1
v_lshl_add_u32 {vr(vTR2)}, {vr(vTR1)}, 5, {vr(vTR2)}
v_and_b32 {vr(vTR1)}, 3, {vr(vLANE)}
v_lshl_add_u32 {vr(vTR2)}, {vr(vTR1)}, 3, {vr(vTR2)}
v_lshl_add_u32 {vr(vTR1)}, {vr(vH)}, 8, {vr(vTR2)}
v_add_u32 {vr(vTR1)}, {LDS_WQ}, {vr(vTR1)}
v_add_u32 {vr(vTR2)}, {LDS_WO}, {vr(vTR2)}
s_lshl_b32 {sr(sT0)}, {sr(sMT)}, 7
s_add_u32 {sr(sT0)}, {sr(sT0)}, {LDS_RSTD}
v_lshl_add_u32 {vr(vRA)}, {vr(vT)}, 2, {sr(sT0)}
v_lshl_add_u32 {vr(vRB)}, {vr(vH)}, 4, {sr(sT0)}
v_lshlrev_b32 {vr(vFD)}, 2, {vr(vH)}
v_sub_u32 {vr(vFD)}, {vr(vT)}, {vr(vFD)}
v_cvt_f32_i32 {vr(vFD)}, {vr(vFD)}
v_mul_f32 {vr(vFD)}, {f2u(2.0**100):#x}, {vr(vFD)}
s_waitcnt lgkmcnt(0)
s_and_b32 {sr(sTAG)}, {sr(sTAG)}, -16
s_add_u32 {sr(sTAG)}, {sr(sTAG)}, {TAGC:#x}
s_or_b32 {sr(sOWNF)}, {sr(sOWNF)}, {sr(sTAG)}
s_lshl_b32 {sr(sT0)}, {sr(sR)}, 2
s_add_u32 {sr(sT0)}, {sr(sT0)}, {sr(sQT)}
s_lshl_b32 {sr(sT0)}, {sr(sT0)}, 5
s_lshl_b32 {sr(sT1)}, {sr(sC)}, 1
s_add_u32 {sr(sT0)}, {sr(sT0)}, {sr(sT1)}
s_add_u32 {sr(sT0)}, {sr(sT0)}, {sr(sHS)}
s_lshl_b32 {sr(sOW)}, {sr(sT0)}, 10
s_lshl_b32 {sr(sOF)}, {sr(sT0)}, 2
s_lshr_b32 {sr(sT0)}, {sr(sMT)}, 1
s_add_u32 {sr(sT0)}, {sr(sT0)}, {sr(sR)}
s_sub_u32 {sr(sT0)}, {sr(sT0)}, 2
s_cselect_b32 {sr(sHAS)}, 0, 1
s_lshl_b32 {sr(sT0)}, {sr(sT0)}, 1
s_and_b32 {sr(sT1)}, {sr(sMT)}, 1
s_add_u32 {sr(sT0)}, {sr(sT0)}, {sr(sT1)}
s_lshl_b32 {sr(sT0)}, {sr(sT0)}, 5
s_add_u32 {sr(sT0)}, {sr(sT0)}, {sr(sC)}
s_mul_i32 {sr(sHB)}, {sr(sT0)}, {KV_REC}
s_cmp_lt_u32 {sr(sQT)}, 2
s_cselect_b32 {sr(sHAS)}, {sr(sHAS)}, 0
s_cmp_eq_u32 {sr(sR)}, 1
s_cselect_b32 {sr(sT0)}, 4, {sr(sQT)}
s_sub_u32 {sr(sC2)}, 8, {sr(sT0)}
s_lshl_b32 {sr(sP2)}, {sr(sT0)}, 12
s_add_u32 {sr(sP2)}, {sr(sP2)}, {LDS_T}
s_mul_i32 {sr(sOWN)}, {sr(sQT)}, {OWN_ST}
s_add_u32 {sr(sOWN)}, {sr(sOWN)}, {LDS_OWN}
s_lshl_b32 {sr(sT0)}, {sr(sRT)}, 4
s_add_u32 {sr(sT0)}, {sr(sT0)}, {sr(sC)}
s_mul_i32 {sr(sKVW)}, {sr(sT0)}, {KV_REC}
s_lshl_b32 {sr(sXW)}, {sr(sT0)}, 11
s_lshl_b32 {sr(sSW)}, {sr(sT0)}, 8
s_lshl_b32 {sr(sXF)}, {sr(sRT)}, 7
s_lshl_b32 {sr(sRB)}, {sr(sRT)}, 15""")
        self.stamp(0, 'start')
        if self.stamps:
            self.stamp_names.update({32: 'pre karg', 43: 'karg', 51: 'x issued'})
            P(f'v_writelane_b32 {vr(vSTAMP)}, s92, 32\nv_writelane_b32 {vr(vSTAMP)}, s94, 43\nv_writelane_b32 {vr(vSTAMP)}, s96, 51')
            self.stamp_names[60] = 'entry'; P(f'v_writelane_b32 {vr(vSTAMP)}, s98, 60\ns_mov_b32 s99, 0\ns_mov_b32 s101, 0')
        P(f's_cmp_eq_u32 {sr(sHS)}, 0\ns_cbranch_scc1 L_main_0')
        lh = P.newlabel('Lx'); lt = P.newlabel('Lx')
        P(f"""s_lshl_b32 {sr(sT2)}, {sr(sR)}, 7
s_lshl_b32 {sr(sT3)}, {sr(sC)}, 2
s_add_u32 {sr(sT2)}, {sr(sT2)}, {sr(sT3)}
s_add_u32 {sr(sT2)}, {sr(sT2)}, {OFF_XFLAG}
s_cmp_lg_u32 {sr(sMT)}, 0
s_cbranch_scc1 {lh}""")
        self.flag(sT2, sOWNF, True)
        P.label(lh)
        if o['pf'] in (1, 2): self.coop_prefetch(0, o['pf'])
        if not o['wearly']: dma_addr()
        P(f"""v_add_u32 {vr(vCH)}, {sr(sLA)}, {vr(vL16)}
v_subrev_u32 {vr(vCS)}, {LDS_WO}, {vr(vTR2)}
v_add_u32 {vr(vCS)}, {sr(sLA)}, {vr(vCS)}
v_lshl_add_u32 v31, {vr(vH)}, 8, {vr(vCS)}""")
        for i in range(4): P(f'v_mov_b32 {vr(ONES+i)}, 0x3f803f80')
        P(f'v_lshlrev_b32 v30, 10, {vr(vH)}\nv_add_u32 v30, {LDS_ONES}, v30\nds_write_b128 v30, {vr(ONES,4)}')
        self.csp_waddr(0)
        P(f'v_lshl_add_u32 v30, {vr(vH)}, 9, v28')
        for op in self.mask_ops(0) + self.mask_ops(1): P(op)
        if o['tlb']:
            lw = P.newlabel('Lx')
            P(f"""s_cmp_lg_u32 {sr(sMT)}, 1
s_cbranch_scc1 {lw}
v_and_b32 v68, 15, {vr(vLANE)}
v_bfe_u32 v69, {vr(vLANE)}, 4, 1
s_lshl_b32 {sr(sT0)}, {sr(sR)}, 2
s_sub_u32 {sr(sT0)}, {sr(sT0)}, 8
v_min_u32 v70, 11, v68
v_add_u32 v70, {sr(sT0)}, v70
v_max_i32 v70, 0, v70
v_lshl_add_u32 v70, v70, 4, {sr(sC)}
v_lshl_add_u32 v70, v69, 10, v70
v_mul_u32_u24 v70, {KV_REC}, v70
v_add_u32 v70, {OFF_KV + KV_REC - 128}, v70
s_lshl_b32 {sr(sT0)}, {sr(sC)}, 4
v_add_u32 v68, {sr(sT0)}, v68
v_lshl_add_u32 v68, v69, 8, v68
v_mul_u32_u24 v68, {KP_REC}, v68
v_add_u32 v68, {OFF_KP + KP_REC - 128}, v68
v_cndmask_b32 v68, v68, v70, {sr(sH0,2)}
buffer_load_dword v26, v68, {sr(sWS,4)}, 0 offen""")
            P.label(lw)
        if o['wgo']: self.lds_wait(C_WGO, o['wgon'])
        self.stamp(2, 'x g0 / W go')
        PRE = o['pre']; MCS = o['mcs']; CA = {1: 32, 2: 64, 0: 32}
        for st in range(o['wearly'], PRE): self.dma_w(0, (1, 2), (st,)); avm.issue(st, 4)
        qs = [[0, 1], [2, 3]] if PRE == 2 else ([[0, 1], [2, 3], []] if PRE == 3 else [[], [0, 1], [2, 3], []])
        first_q = True
        if not MCS:
            for i in range(4): P(f'v_mov_b32 {vr(64+i)}, 0')
        if o['il']: qs = [[]]*4
        for st in range(4):
            if st + PRE < 4: self.dma_w(0, (1, 2), (st + PRE,)); avm.issue(st + PRE, 4)
            else:
                q = qs.pop(0)
                if q:
                    if first_q:
                        self.lds_wait(C_XDONE, 4); first_q = False
                        if o['apr']: P('s_setprio 3')
                    self.dma_w(0, (0,), q); avm.issue('q', 4)
            P(waitstr(vm=avm.need(st)))
            self.stamp((15, 23, 29, 1)[st], ('x g3 / W st0', 'x g5 / W st1', 'S0 / W st2', 'x0 / W st3')[st])
            self.lds_signal(C_ST + st)
            ch = [(nt, 2*st + e) for nt in (1, 2) for e in range(2)]
            for nt, u in ch:
                r_ = PARK[nt] + 4*u; of = NT_LDS[nt] + cho(u)
                P(f'ds_read_b64_tr_b16 {vr(r_,2)}, v31 offset:{of}\nds_read_b64_tr_b16 {vr(r_+2,2)}, v31 offset:{of+256}')
            for k, (nt, u) in enumerate(ch):
                P(f's_waitcnt lgkmcnt({6-2*k})')
                if MCS: self.mfma(CA[nt], ONES, PARK[nt] + 4*u, None if u == 0 else CA[nt])
                else: self.valu_sum(PARK[nt] + 4*u, 64 + 2*(nt - 1))
        if MCS: P(f'ds_write_b32 v28, {vr(CA[1])} offset:512\nds_write_b32 v28, {vr(CA[2])} offset:1024')
        else: P('v_add_f32 v64, v64, v65\nv_add_f32 v66, v66, v67\nv_permlane32_swap_b32 v64, v66\nv_add_f32 v64, v64, v66\nds_write_b32 v30, v64 offset:512')
        self.lds_signal(C_CS, wait=False)
        if o['apr'] == 1: P('s_setprio 0')
        self.stamp(14, 'S3 / W done')
        if o['il']:
            self.lds_wait(C_CSQ, 4, 1); self.dma_w(0, (0,))
            self.lds_wait(C_XDONE, 4, 1)
        if o['clr']: self.hello_load()
        if o['wo_at'] == 0: self.dma_w(0, ('o',))
        P(f'v_add_u32 v31, {LDS_WQ}, v31\ns_waitcnt vmcnt({8 if o["wo_at"] == 0 else 0})')
        self.lds_signal(C_Q)
        self.stamp(4, 'Q done')
        if o['wo_at'] == 1: self.dma_w(0, ('o',))
        for u0 in (0, 4):
            for u in range(u0, u0 + 4):
                r_ = PARK[0] + 4*u
                P(f'ds_read_b64_tr_b16 {vr(r_,2)}, v31 offset:{cho(u)}\nds_read_b64_tr_b16 {vr(r_+2,2)}, v31 offset:{cho(u)+256}')
            for k, u in enumerate(range(u0, u0 + 4)):
                P(f's_waitcnt lgkmcnt({6-2*k})')
                if o['qcv']:
                    if u == 0: P('v_mov_b32 v64, 0\nv_mov_b32 v65, 0')
                    self.valu_sum(PARK[0] + 4*u, 64)
                else: self.mfma(CA[0], ONES, PARK[0] + 4*u, None if u == 0 else CA[0])
        if o['qcv']: P('v_add_f32 v64, v64, v65\nv_mov_b32 v66, v64\nv_permlane32_swap_b32 v64, v66\nv_add_f32 v64, v64, v66\nds_write_b32 v28, v64')
        else: P(f'ds_write_b32 v28, {vr(CA[0])}')
        self.lds_signal(C_CSQ, wait=False)
        if o['plds']:
            lf = P.newlabel('Lx')
            P(f's_cmp_lg_u32 {sr(sMT)}, 0\ns_cbranch_scc1 {lf}\ns_mov_b32 m0, {LDS_PHI}\ns_lshl_b32 {sr(sT0)}, {sr(sC)}, 10\nbuffer_load_dwordx4 {vr(vL16)}, {sr(sPhi,4)}, {sr(sT0)} offen lds')
            P.label(lf)
        P(f"""s_cmp_lg_u32 {sr(sMT)}, {2 if o['pfw'] else 9}
s_cbranch_scc1 {lt}
v_lshlrev_b32 v6, 7, {vr(vLANE)}
s_mul_i32 {sr(sT0)}, s2, {48*128}
buffer_load_dword v26, v6, {sr(sWB,4)}, {sr(sT0)} offen
v_and_b32 v6, 0x780, v6
s_lshl_b32 {sr(sT0)}, s2, 11
buffer_load_dword v26, v6, {sr(sWoB,4)}, {sr(sT0)} offen""")
        P.label(lt)
        if o['pfb'] == 1: self.coop_prefetch(1, 1)
        P('s_branch L_aux_0')

    def coop_prefetch(self, typ, mode):
        P = self.P; l1 = P.newlabel('Lx'); l2 = P.newlabel('Lx')
        if mode == 1: P(f's_cmp_lg_u32 {sr(sMT)}, 1\ns_cbranch_scc1 {l2}')
        offs = (128,) if mode == 1 else (128, 0)
        P(f"""v_lshlrev_b32 v5, 10, {vr(vLANE)}
s_lshr_b32 {sr(sT0)}, s2, 3
s_lshl_b32 {sr(sT0)}, {sr(sT0)}, 16
s_lshl_b32 {sr(sT1)}, {sr(sMT)}, 8
s_add_u32 {sr(sT0)}, {sr(sT0)}, {sr(sT1)}
s_cmp_ge_u32 s2, 192
s_cbranch_scc1 {l1}""")
        for of in offs: P(f'buffer_load_dword v26, v5, {sr((sWA, sWB)[typ],4)}, {sr(sT0)} offen offset:{of}')
        P(f's_branch {l2}'); P.label(l1)
        P(f's_sub_u32 {sr(sT0)}, {sr(sT0)}, {24 << 16}')
        for of in offs: P(f'buffer_load_dword v26, v5, {sr((sWoA, sWoB)[typ],4)}, {sr(sT0)} offen offset:{of}')
        P.label(l2)

    def valu_sum(self, frag, acc):
        for i in range(4):
            self.P(f'v_lshlrev_b32 v68, 16, {vr(frag+i)}\nv_and_b32 v69, 0xffff0000, {vr(frag+i)}\nv_add_f32 {vr(acc)}, {vr(acc)}, v68\nv_add_f32 {vr(acc+1)}, {vr(acc+1)}, v69')

    def x0_load(self, g):
        P = self.P
        P(f's_add_u32 m0, {sr(sLA)}, {(g % (3 if self.o["il"] else 4))*4096}\ns_add_u32 {sr(sT3)}, {sr(sLB)}, {sr(sLR)}')
        for j in range(4): P(f'buffer_load_dwordx4 {vr(28+j)}, {sr(sX0,4)}, {sr(sT3)} offen offset:{j*1024} lds')
        P(f's_add_u32 {sr(sLR)}, {sr(sLR)}, 128\ns_and_b32 {sr(sLR)}, {sr(sLR)}, 0x3ff')
        self.vm.issue(('x', g), 4)

    def code_prefetch(self, label):
        P = self.P; lc = P.newlabel('Lx')
        if not self.o['cpl']: return
        P(f"""s_cmp_lg_u32 {sr(sMT)}, 3
s_cbranch_scc1 {lc}
s_lshl_b32 {sr(sT0)}, {sr(sC)}, 10
s_add_u32 {sr(sT0)}, {sr(sT0)}, ({label} - {NAME}_kernel)
s_cmp_ge_u32 {sr(sT0)}, CODE_BYTES
s_cbranch_scc1 {lc}
v_add_u32 v28, {sr(sT0)}, {vr(vL16)}
v_mov_b32 v29, s85
v_add_co_u32 v28, vcc, s84, v28
v_addc_co_u32 v29, vcc, 0, v29, vcc
global_load_dword v26, v[28:29], off""")
        P.label(lc)

    def wphi_load(self, B=96):
        P = self.P; a, t = vr(B + 8), vr(B + 9)
        P(f"""s_lshl_b32 {sr(sT0)}, {sr(sC)}, 1
s_add_u32 {sr(sT0)}, {sr(sT0)}, {sr(sHS)}
s_lshl_b32 {sr(sT0)}, {sr(sT0)}, 9
v_bfe_u32 {a}, {vr(vLANE)}, 3, 2
v_and_b32 {t}, 3, {vr(vLANE)}
v_lshl_add_u32 {a}, {a}, 2, {t}
v_lshlrev_b32 {a}, 1, {a}
v_lshrrev_b32 {t}, 5, {vr(vLANE)}
v_lshl_add_u32 {a}, {t}, 7, {a}""")
        if self.o['plds']:
            P(f's_and_b32 {sr(sT0)}, {sr(sT0)}, 512\ns_add_u32 {sr(sT0)}, {sr(sT0)}, {LDS_PHI}\nv_add_u32 {a}, {sr(sT0)}, {a}')
        for j in range(8):
            d = (j if j < 4 else 8 + j - 4)
            if self.o['plds']: P(f'ds_read_u16 {vr(B+j)}, {a} offset:{d*32}'); continue
            P(f'buffer_load_ushort {vr(B+j)}, {a}, {sr(sPhi,4)}, {sr(sT0)} offen offset:{d*32}')

    def wphi_pack(self, B=96):
        ops = [f'v_lshl_or_b32 {vr(WPHI+p)}, {vr(B+2*p+1)}, 16, {vr(B+2*p)}' for p in range(4)]
        ops += [f'v_bfe_i32 {vr(B)}, {vr(vLANE)}, 2, 1', f'v_and_b32 {vr(B)}, 0x80008000, {vr(B)}']
        return ops + [f'v_xor_b32 {vr(WPHI+p)}, {vr(B)}, {vr(WPHI+p)}' for p in range(4)]

    def dma_w(self, typ, nts, stages=range(4)):
        P = self.P; wo = nts == ('o',)
        srd = (sWoA, sWoB)[typ] if wo else (sWA, sWB)[typ]
        for st in stages:
            P(f's_add_u32 {sr(sT0)}, {sr(sG0)}, {st*0x20000}\ns_and_b32 {sr(sT0)}, {sr(sT0)}, 0x7ffff')
            if not wo: P(f's_mul_i32 {sr(sT0)}, {sr(sT0)}, 3')
            late = wo or typ == 1
            if late: P(f's_add_u32 {sr(sT3)}, {sr(sS0)}, {st*8192}\ns_and_b32 {sr(sT3)}, {sr(sT3)}, 0x7fff\ns_add_u32 {sr(sT3)}, {sr(sT3)}, {sr(sLA)}')
            for e in range(2):
                for nt in nts:
                    P(f's_add_u32 m0, {sr(sT3)}, {NT_LDS[nt] + e*1024}' if late else f's_add_u32 m0, {sr(sLA)}, {NT_LDS[nt] + cho(2*st + e)}')
                    P(f's_add_u32 {sr(sT1)}, {sr(sT0)}, {e*16384 if wo else e*49152 + nt*1024}')
                    P(f'buffer_load_dwordx4 {vr(vDO if wo else vDW)}, {sr(srd,4)}, {sr(sT1)} offen lds')

    def csp_waddr(self, typ):
        self.P(f"""s_lshl_b32 {sr(sT0)}, {sr(sMT)}, 2
s_add_u32 {sr(sT0)}, {sr(sT0)}, {LDS_CSP + typ*1536}
v_and_b32 v28, 31, {vr(vLANE)}
v_lshl_add_u32 v28, v28, 4, {sr(sT0)}""")

    def chunk_addr(self, region):
        if region < 65536: return vCH, region
        self.P(f'v_add_u32 {vr(vT0)}, {region}, {vr(vCH)}'); return vT0, 0

    def lds_to_regs(self, region, dst, tr=False):
        if tr:
            self.P(f'v_add_u32 v29, {region}, {vr(vCS)}')
            for u in range(8): self.P(f'ds_read_b64_tr_b16 {vr(dst+4*u,2)}, v29 offset:{cho(u)}\nds_read_b64_tr_b16 {vr(dst+4*u+2,2)}, v29 offset:{cho(u)+512}')
            return
        a, o = self.chunk_addr(region)
        for u in range(8): self.P(f'ds_read_b128 {vr(dst+4*u,4)}, {vr(a)} offset:{o+cho(u)}')

    def regs_to_lds(self, region, src, rot=False):
        if rot:
            if region >= 65536:
                for st in range(4): self.P(f'v_add_u32 {vr(64+st)}, {region}, {vr(64+st)}')
            for u in range(8): self.P(f'ds_write_b128 {vr(64 + (u >> 1))}, {vr(src+4*u,4)} offset:{(region if region < 65536 else 0) + (u & 1)*1024}')
            return
        a, o = self.chunk_addr(region)
        for u in range(8): self.P(f'ds_write_b128 {vr(a)}, {vr(src+4*u,4)} offset:{o+cho(u)}')

    def relayout(self, typ, nts, tmp=64, ntmp=8):
        P = self.P
        if nts != ('o',): self.csp_waddr(typ)
        for k, nt in enumerate(nts):
            region = NT_LDS[nt]
            P(f'v_add_u32 v29, {region}, {vr(vCS)}')
            acc = ACC0 if k % 2 == 0 else ACC1
            lg = Tracker(15)
            reg = lambda u: tmp + 4*(u % ntmp)
            for u0 in range(0, 8, 4):
                for u in range(u0, u0 + 4):
                    P(f'ds_read_b64_tr_b16 {vr(reg(u),2)}, v29 offset:{cho(u)}\nds_read_b64_tr_b16 {vr(reg(u)+2,2)}, v29 offset:{cho(u)+512}'); lg.issue(u, 2)
                for u in range(u0, u0 + 4):
                    P(waitstr(lg=lg.need(u)))
                    if nt != 'o': self.mfma(acc, ONES, reg(u), None if u == 0 else acc)
        for k, nt in enumerate(nts):
            if nt != 'o': P(f'ds_write_b32 v28, {vr(ACC0 if k % 2 == 0 else ACC1)} offset:{nt*512}')
        P('s_waitcnt lgkmcnt(0)')

    def swap_region(self, nt, save, tr=False):
        P = self.P
        if save:
            self.lds_to_regs(NT_LDS[nt], 32, tr); P('s_waitcnt lgkmcnt(0)')
        self.regs_to_lds(NT_LDS[nt], PARK[nt], tr and nt != 'o'); P('s_waitcnt lgkmcnt(0)')
        if save:
            for i in range(32): P(f'v_mov_b32 {vr(PARK[nt]+i)}, {vr(32+i)}')

    def unpack_res(self):
        for p in range(8):
            self.P(f'v_lshlrev_b32 {vr(ACC0+2*p)}, 16, {vr(XRES+p)}\nv_and_b32 {vr(ACC0+2*p+1)}, 0xffff0000, {vr(XRES+p)}')

    def rowmajor_addr(self, dst, tmp, sdst):
        self.P(f"""v_and_b32 {vr(dst)}, 31, {vr(vLANE)}
v_lshlrev_b32 {vr(dst)}, 10, {vr(dst)}
v_lshrrev_b32 {vr(tmp)}, 5, {vr(vLANE)}
v_lshl_add_u32 {vr(dst)}, {vr(tmp)}, 4, {vr(dst)}
s_lshl_b32 {sr(sdst)}, {sr(sC)}, 6
s_add_u32 {sr(sdst)}, {sr(sdst)}, {sr(sRB)}""")

    def publish_x_addr(self, L):
        if L == self.nl: return self.rowmajor_addr(vKA, vVA, sK0)
        self.P(f's_add_u32 {sr(sK1)}, {sr(sSW)}, {OFF_ST}')
        if L == 1 or self.o['hx']: self.P(f's_lshl_b32 {sr(sK2)}, {sr(sC)}, 2\ns_add_u32 {sr(sK2)}, {sr(sK2)}, {sr(sXF)}\ns_add_u32 {sr(sK2)}, {sr(sK2)}, {OFF_XFLAG + 0x2000}')

    def set_par(self, reg, par):
        return f'v_or_b32 {vr(reg)}, 1, {vr(reg)}' if par else f'v_and_b32 {vr(reg)}, -2, {vr(reg)}'

    def acc_par(self, a, b, par):
        return f'v_bitop3_b32 {vr(vPD)}, {vr(vPD)}, {vr(a)}, {vr(b)} bitop3:0x80' if par else f'v_or3_b32 {vr(vPD)}, {vr(vPD)}, {vr(a)}, {vr(b)}'

    def test_par(self, par):
        return f'v_and_b32 {vr(vCK)}, 1, {vr(vPD)}\nv_cmp_ne_u32 vcc, {par}, {vr(vCK)}'

    def hello_load(self):
        self.P(f'v_and_b32 {vr(vPA)}, 60, {vr(vL4)}\ns_lshl_b32 {sr(sK2)}, {sr(sR)}, 7\ns_add_u32 {sr(sK2)}, {sr(sK2)}, {OFF_XFLAG}\nbuffer_load_dword v25, {vr(vPA)}, {sr(sWS,4)}, {sr(sK2)} offen sc1')

    def hello_check(self):
        P = self.P; okl = P.newlabel('Lx')
        P(f'v_mov_b32 {vr(vPD)}, v25\nv_and_b32 {vr(vT0)}, -16, v25\nv_cmp_ne_u32 vcc, {sr(sTAG)}, {vr(vT0)}\ns_cbranch_vccz {okl}')
        self.poll(sK2, masked=True)
        P.label(okl)
        if not self.force_safe:
            P(f"""v_cmp_ne_u32 vcc, {sr(sOWNF)}, {vr(vPD)}
s_cmp_eq_u64 vcc, 0
s_cselect_b32 {sr(sFAST)}, 1, 0
v_mov_b32 {vr(vT0)}, {sr(sFAST)}
ds_write_b32 {vr(vCNT)}, {vr(vT0)} offset:44""")

    def clear_lines(self, Z):
        P = self.P
        P(f's_add_u32 {sr(sT0)}, {sr(sXW)}, {OFF_O}\ns_add_u32 {sr(sT1)}, {sr(sSW)}, {OFF_ST}')
        def clear(sc1):
            m = ' sc1' if sc1 else ''
            for of in (0, 1024): P(f'buffer_store_dwordx4 {vr(Z,4)}, {vr(vL16)}, {sr(sWS,4)}, {sr(sT0)} offen offset:{of}{m}')
            for of in (0, 1024): P(f'buffer_store_dwordx4 {vr(Z,4)}, {vr(vL16)}, {sr(sOut,4)}, {sr(sXW)} offen offset:{of}{m}')
            P(f'buffer_store_dword {vr(Z)}, {vr(vL4)}, {sr(sWS,4)}, {sr(sT1)} offen{m}')
        self.two_way(clear)

    def hint_prep(self, r, add):
        return [f'v_cmp_gt_u32 vcc, {sr(sFAST)}, {vr(vLANE)}', f'v_add_u32 {vr(r)}, {sr(sTAG)}, {add}', f'v_cndmask_b32 {vr(r+1)}, {OOB:#x}, {vr(vLANE)}, vcc']

    def hint(self, r, soff):
        self.P(f'buffer_store_dword {vr(r)}, {vr(r+1)}, {sr(sWS,4)}, {sr(soff)} offen')

    def first_hop(self, base_off, foff, mask, par=None, add=0, pre=None):
        self.P(f'v_and_b32 v110, {mask}, {vr(vL4)}\ns_add_u32 {sr(sT2)}, {sr(sXF)}, {foff}')
        self.frag_setup(base_off)
        if add: self.P(f's_add_u32 {sr(sT0)}, {sr(sTAG)}, {add}')
        NP = self.o['hp']
        if NP:
            P = self.P; lp = P.newlabel('Lpoll'); dn = P.newlabel('Lpolld'); val = sT0 if add else sTAG
            if pre is not None:
                P(f's_waitcnt vmcnt({pre})\nv_cmp_ne_u32 vcc, {sr(val)}, v103\ns_cbranch_vccz {dn}')
            ld = lambda i: P(f'buffer_load_dword {vr(104 + i)}, v110, {sr(sWS,4)}, {sr(sT2)} offen sc1')
            for i in range(NP):
                ld(i); P(f's_sleep {self.o["hs"]}')
            P.label(lp)
            for i in range(NP + 1):
                ld((i + NP) % (NP + 1))
                P(f's_waitcnt vmcnt({NP})\nv_cmp_ne_u32 vcc, {sr(val)}, {vr(104 + i)}\ns_cbranch_vccz {dn}')
            P(f's_sub_u32 {sr(sBUD)}, {sr(sBUD)}, 1\ns_cbranch_scc0 {lp}\ns_mov_b32 {sr(sBUD)}, 0')
            P.label(dn)
        else: self.poll(sT2, areg=110, val=sT0 if add else sTAG)
        if par is not None: self.P(f'v_mov_b32 {vr(vPD)}, {par}')
        return 0

    def probe(self, srd, base_off, par, nwin):
        P = self.P; lp = P.newlabel('Lprobe'); dn = P.newlabel('Lprobed'); S = min(self.o['specx' if srd == sOut else 'spec'], nwin)
        self.frag_setup(base_off)
        if self.o['pp']:
            A_, B_, AD_ = 108, 109, vPA
            if srd == sOut:
                AD_ = 110; P(f'v_or_b32 v110, 1024, {vr(vPA)}')
            ld = lambda r: P(f'buffer_load_dword {vr(r)}, {vr(AD_)}, {sr(srd,4)}, {sr(sLB)} offen sc1')
            ld(A_); P(f's_sleep {self.o["pp"]}')
            P.label(lp)
            for cur, nxt in ((A_, B_), (B_, A_)):
                ld(nxt)
                P(f's_waitcnt vmcnt(1)\nv_and_b32 {vr(vPD)}, 1, {vr(cur)}\nv_cmp_ne_u32 vcc, {par}, {vr(vPD)}\ns_cbranch_vccz {dn}')
            P(f's_sub_u32 {sr(sBUD)}, {sr(sBUD)}, 1\ns_cbranch_scc0 {lp}\ns_mov_b32 {sr(sBUD)}, 0')
            P.label(dn)
            return 0
        if self.o['pst'] and srd == sOut: P(f'v_lshrrev_b32 {vr(STAT+15)}, 2, {vr(vLANE)}\nv_lshlrev_b32 {vr(STAT+15)}, 8, {vr(STAT+15)}')
        P.label(lp)
        if self.o['pst'] and srd == sOut:
            P(f'buffer_load_dword {vr(vPD)}, {vr(STAT+15)}, {sr(sWS,4)}, {sr(sT1)} offen offset:252 sc1')
        elif self.o['pw'] == 16 and srd == sOut:
            P(f'v_or_b32 {vr(vPD)}, 1024, {vr(vPA)}\nbuffer_load_dword {vr(vPD)}, {vr(vPD)}, {sr(srd,4)}, {sr(sLB)} offen sc1')
        else: P(f'buffer_load_dword {vr(vPD)}, {vr(vPA)}, {sr(srd,4)}, {sr(sLB)} offen sc1')
        for ks in range(S): self.frag_load(srd, ks)
        P(f's_waitcnt vmcnt({S})')
        P(self.test_par(par))
        P(f's_cbranch_vccz {dn}')
        if self.o['em']: P('s_mov_b64 exec, vcc')
        if self.o['psleep']: P(f's_sleep {self.o["psleep"]}')
        if S: self.frag_setup(None)
        P(f's_sub_u32 {sr(sBUD)}, {sr(sBUD)}, 1\ns_cbranch_scc0 {lp}\ns_mov_b32 {sr(sBUD)}, 0')
        P.label(dn)
        if self.o['em']: P('s_mov_b64 exec, -1')
        return S

    def verify(self, par, redo):
        P = self.P; st = P.newlabel('Lver'); ct = P.newlabel('Lverc')
        P(self.test_par(par)); P(f's_cbranch_vccnz {st}')
        P.label(ct)
        self.stubs.append((st, redo, ct))

    def emit_stubs(self):
        P = self.P
        for ls, emit, le in self.ool:
            P.label(ls); emit(True); P(f's_branch {le}')
        for k, (st, redo, ct) in enumerate(self.stubs):
            P.label(st)
            if self.stamps: P(f's_add_u32 s101, s101, {1 << (2*k)}')
            P(f's_waitcnt vmcnt(0) lgkmcnt(0)\ns_sub_u32 {sr(sBUD)}, {sr(sBUD)}, 1\ns_cbranch_scc0 {redo}\ns_mov_b32 {sr(sBUD)}, 0\ns_branch {ct}')

    def probe_addr(self):
        if self.o['pw'] == 64:
            return f"""v_lshrrev_b32 {vr(vPA)}, 1, {vr(vLANE)}
v_lshlrev_b32 {vr(vPA)}, 10, {vr(vPA)}
v_and_b32 {vr(vCK)}, 1, {vr(vLANE)}
v_mad_u32_u24 {vr(vPA)}, {vr(vCK)}, {sr(sC1008)}, {vr(vPA)}"""
        if self.o['psp']:
            return f"""v_lshrrev_b32 {vr(vPA)}, 2, {vr(vLANE)}
v_add_u32 {vr(vPA)}, {sr(sC)}, {vr(vPA)}
v_and_b32 {vr(vPA)}, 7, {vr(vPA)}
v_lshlrev_b32 {vr(vPA)}, 7, {vr(vPA)}
v_lshrrev_b32 {vr(vCK)}, 1, {vr(vLANE)}
v_lshl_add_u32 {vr(vPA)}, {vr(vCK)}, 10, {vr(vPA)}"""
        return f'v_lshrrev_b32 {vr(vPA)}, 1, {vr(vLANE)}\nv_lshl_add_u32 {vr(vPA)}, {vr(vPA)}, 10, {sr(sC1008)}'

    def publish_x(self, L):
        P = self.P
        natural = (L % 2 == 0); T = XF; par = L & 1
        for p in range(8): P(f'v_cvt_pk_bf16_f32 {vr(T+p)}, {vr(ACC0+2*p)}, {vr(ACC0+2*p+1)}')
        if natural:
            for a, b in SW4: P(f'v_permlane32_swap_b32 {vr(T+a)}, {vr(T+b)}')
        if L == self.nl:
            m = ['', ' nt', ' sc1'][self.o.get('outm', 0)]
            P(f'buffer_store_dwordx4 {vr(T,4)}, {vr(vKA)}, {sr(sOut,4)}, {sr(sK0)} offen{m}\nbuffer_store_dwordx4 {vr(T+4,4)}, {vr(vKA)}, {sr(sOut,4)}, {sr(sK0)} offen offset:32{m}')
            return
        P(self.set_par(T, par)); P(self.set_par(T + 4, par))
        def emit(sc1):
            m = ' sc1' if sc1 else (' nt' if self.o.get('nta') else '')
            P(f'buffer_store_dwordx4 {vr(T,4)}, {vr(vL16)}, {sr(sOut,4)}, {sr(sXW)} offen{m}')
            P(f'buffer_store_dwordx4 {vr(T+4,4)}, {vr(vL16)}, {sr(sOut,4)}, {sr(sXW)} offen offset:1024{m}')
            if (L > 1 or self.o['clr']) and self.o['hx'] == 1 and (sc1 or not self.o['ex'] or L == 1): self.flag(sK2, sTAG, sc1, add=L - 1)
            if L > 1 and self.o['prex']: P(f'buffer_load_dword v103, v111, {sr(sWS,4)}, {sr(sXF)} offen sc1')
            for k in range(4):
                P(f'v_pk_add_f32 {vr(64+2*k,2)}, {vr(ACC0+4*k,2)}, {vr(ACC0+4*k+2,2)}')
            P(f'v_pk_mul_f32 v[72:73], {vr(ACC0,2)}, {vr(ACC0,2)}\nv_pk_mul_f32 v[74:75], {vr(ACC0+2,2)}, {vr(ACC0+2,2)}')
            P('v_pk_add_f32 v[64:65], v[64:65], v[66:67]\nv_pk_add_f32 v[68:69], v[68:69], v[70:71]')
            for k in range(2, 8): P(f'v_pk_fma_f32 {vr(72+2*(k&1),2)}, {vr(ACC0+2*k,2)}, {vr(ACC0+2*k,2)}, {vr(72+2*(k&1),2)}')
            P('v_pk_add_f32 v[64:65], v[64:65], v[68:69]\nv_pk_add_f32 v[72:73], v[72:73], v[74:75]')
            P('v_add_f32 v64, v64, v65\nv_add_f32 v66, v72, v73\nv_permlane32_swap_b32 v64, v66\nv_add_f32 v64, v64, v66')
            P(self.set_par(64, par))
            P(f'buffer_store_dword v64, {vr(vL4)}, {sr(sWS,4)}, {sr(sK1)} offen{m}')
            if L == 1 and not self.o['clr']: self.flag(sK2, sTAG, sc1, wait='s_waitcnt vmcnt(0)')
            elif self.o['hx'] == 2: self.flag(sK2, sTAG, sc1, add=L - 1)
        self.two_way(emit)
        for p in range(8): P(f'v_cvt_pk_bf16_f32 {vr(XRES+p)}, {vr(ACC0+2*p)}, {vr(ACC0+2*p+1)}')

    def frag_setup(self, base_off):
        self.P(f"""s_and_b32 {sr(sT3)}, {sr(sC)}, 1
s_lshl_b32 {sr(sT3)}, {sr(sT3)}, 11
s_add_u32 {sr(sLB)}, {sr(sRB)}, {base_off}
v_add3_u32 v108, {sr(sT3)}, {vr(vL16)}, 0
s_lshr_b32 {sr(sLR)}, {sr(sC)}, 1
v_add_u32 v108, {sr(sLB)}, v108
s_lshl_b32 {sr(sLR)}, {sr(sLR)}, 12
v_xor_b32 v109, 2048, v108""")

    def frag_load(self, srd, ks, ring=32):
        P = self.P
        P(f'buffer_load_dwordx4 {vr(XF+4*(ks % ring),4)}, {vr(108 + ((ks >> 1) & 1))}, {sr(srd,4)}, {sr(sLR)} offen offset:{(ks&1)*1024} sc1')
        if ks < 28 and ks & 3 == 3: P(f's_add_u32 {sr(sLR)}, {sr(sLR)}, 4096\ns_and_b32 {sr(sLR)}, {sr(sLR)}, 0x7fff')
        self.vm.issue(('x', ks))

    def mask_ops(self, part, lean=False):
        ops = []; C = CDIAG if part == 0 else CFIRST; sg = -1.0 if part == 0 else 1.0
        if part == 0 and not lean:
            ops.append(f'v_mov_b32 {vr(VV)}, 0x3f803f80')
            for i in range(1, 8): ops.append(f'v_mov_b32 {vr(VV+i)}, {vr(VV)}')
        for i in range(16):
            ci = 8*(i//4) + i % 4
            if part == 0: ops.append(f'v_subrev_f32 {vr(C+i)}, {f2u(ci*2.0**100):#x}, {vr(vFD)}')
            else: ops.append(f'v_sub_f32 {vr(C+i)}, {f2u((ci-1)*2.0**100):#x}, {vr(vFD)}')
        for i in range(16): ops.append(f'v_min_f32 {vr(C+i)}, 0, {vr(C+i)}')
        if part == 0 and not lean:
            for i in range(16): ops.append(f'v_mov_b32 {vr(aO+i)}, 0')
        return ops

    def stats_final(self, typ):
        a, b = STAT, STAT + 1
        it = f"""v_mov_b32 {vr(b)}, {vr(a)}
v_mov_b32 {vr(XEXT+2)}, 0
v_mov_b32 {vr(XEXT+3)}, 0
v_permlane32_swap_b32 {vr(a)}, {vr(b)}
v_mul_f32 {vr(a)}, {f2u(1/512):#x}, {vr(a)}
v_mul_f32 {vr(b)}, {f2u(1/512):#x}, {vr(b)}
v_fma_f32 {vr(b)}, -{vr(a)}, {vr(a)}, {vr(b)}
v_max_f32 {vr(b)}, 0, {vr(b)}
v_add_f32 {vr(b)}, {f2u(1e-5):#x}, {vr(b)}
v_rsq_f32 {vr(vRSTD)}, {vr(b)}
v_cndmask_b32 {vr(a)}, 0, {vr(a)}, {sr(sH0,2)}
v_and_b32 {vr(a+2)}, 0xffff0000, {vr(a)}
v_sub_f32 {vr(a+3)}, {vr(a)}, {vr(a+2)}
v_cvt_pk_bf16_f32 {vr(XEXT)}, -{vr(a+2)}, -{vr(a+2)}
v_cvt_pk_bf16_f32 {vr(XEXT+1)}, -{vr(a+3)}, 0""".split('\n')
        it.append(('ds', 'rw', f'ds_write_b32 {vr(vRA)}, {vr(vRSTD)}'))
        for q in range(4): it.append(('ds', 'rt', f'ds_read_b128 {vr(STAT+4*q,4)}, {vr(vRB)} offset:{q*32}'))
        if typ == 1: it.append(f'v_mul_f32 {vr(vRSTD)}, {sr(sLOG2E)}, {vr(vRSTD)}')
        return it

    def wext_items(self, w, tag):
        return [('wlg', tag)] + f"""v_add_f32 {vr(w)}, {vr(w)}, {vr(w+1)}
v_add_f32 {vr(w+2)}, {vr(w+2)}, {vr(w+3)}
v_add_f32 {vr(w)}, {vr(w)}, {vr(w+2)}
v_and_b32 {vr(w+2)}, 0xffff0000, {vr(w)}
v_sub_f32 {vr(w+3)}, {vr(w)}, {vr(w+2)}
v_cvt_pk_bf16_f32 {vr(w)}, {vr(w+2)}, {vr(w+3)}
v_cvt_pk_bf16_f32 {vr(w+1)}, {vr(w+2)}, 0
v_mov_b32 {vr(w+2)}, 0
v_mov_b32 {vr(w+3)}, 0""".split('\n')

    def csp_addr(self, typ):
        self.P(f'v_and_b32 {vr(vT0)}, 0x1f0, {vr(vL16)}\nv_add_u32 {vr(vT0)}, {LDS_CSP + typ*1536}, {vr(vT0)}')

    def phi_addr(self):
        return f"""v_sub_u32 {vr(vVA)}, {vr(vKA)}, {vr(vL16)}
v_and_b32 {vr(vPD)}, 31, {vr(vLANE)}
v_lshl_add_u32 {vr(vVA)}, {vr(vPD)}, 5, {vr(vVA)}
v_lshrrev_b32 {vr(vPD)}, 5, {vr(vLANE)}
v_lshl_add_u32 {vr(vVA)}, {vr(vPD)}, 4, {vr(vVA)}""".split('\n')

    def main_kv(self, L):
        P = self.P; typ = L % 2; o = self.o; XD = o['xd']
        vm, lg = self.vm, self.lg
        V = L > 1 or (L == 1 and o['clr'])
        NR = 3; KVB = vL16 if L > 1 else PKV + 15
        if L == 1: P(f'v_subrev_u32 {vr(vTR1)}, {LDS_WO - LDS_WQ}, {vr(vTR2)}')
        if L == 2: P(f'v_add_u32 {vr(vTR1)}, {LDS_WQ}, {vr(vL16)}\nv_add_u32 {vr(vTR2)}, {LDS_WO}, {vr(vL16)}')
        if L < 2: P(f'v_subrev_u32 {vr(KVB)}, {LDS_WQ}, {vr(vTR1)}')
        def rdk(ks):
            self.w_read(RING + 8*(ks % NR), KVB, LDS_WK + ks*1024, L, ('k', ks))
        def rdv(ks):
            self.w_read(RING + 8*(ks % NR) + 4, KVB, LDS_WV + ks*1024, L, ('v', ks))
        csrd = [('ds', 'cs', f'ds_read_b128 {vr(WEXTK,4)}, {vr(vT0)} offset:512'), ('ds', 'cs', f'ds_read_b128 {vr(WEXTV,4)}, {vr(vT0)} offset:1024')]
        wext = self.wext_items(WEXTK, 'cs') + self.wext_items(WEXTV, 'cs')
        addr = [f'v_add_u32 {vr(vKA)}, {sr(sOWN)}, {vr(vL16)}']
        if typ == 0:
            La = L // 2
            addr += [f's_add_u32 {sr(sK0)}, {sr(sKVW)}, {OFF_KV + La*KV_L}', f's_add_u32 {sr(sK2)}, {sr(sK0)}, 4096']
        else:
            addr += self.phi_addr()
            if o['pw1']: addr += [f's_lshl_b32 {sr(sT0)}, {sr(sMT)}, 2', f'v_add_u32 {vr(PKV+8)}, {sr(sT0)}, {vr(vCNT)}', f'v_mov_b32 {vr(PKV+9)}, {TV_K[L]}']
        extras = []
        def pop(n):
            for _ in range(n):
                if extras: self.item(extras.pop(0))
        finld = f'buffer_load_dwordx2 {vr(STAT,2)}, {vr(STAT+2)}, {sr(sWS,4)}, {sr(sT1)} offen sc1'
        def fincheck():
            lp = P.newlabel('Lfin'); ct = P.newlabel('Lfinc')
            P(waitstr(vm=vm.need('st')))
            P(f'v_cmp_ne_u32 vcc, {sr(sM)}, {vr(STAT+1)}\ns_cbranch_vccnz {lp}')
            P.label(ct)
            def again(_):
                if self.stamps: P(f's_or_b32 s101, s101, {1 << (4 + 6*(L - 1))}')
                P(f'{finld}\ns_waitcnt vmcnt(0)\nv_cmp_ne_u32 vcc, {sr(sM)}, {vr(STAT+1)}\ns_cbranch_vccz {ct}')
                P(f's_sub_u32 {sr(sBUD)}, {sr(sBUD)}, 1\ns_cbranch_scc0 {lp}\ns_mov_b32 {sr(sBUD)}, 0')
            self.ool.append((lp, again, ct))
        D = (o['vlag'] if typ else o['vlaga']) if L else 0
        def vstep(kv):
            if kv == 32: return self.mfma(ACC1, XEXT, WEXTV, ACC1)
            P(waitstr(lg=lg.need(('v', kv))))
            self.mfma(ACC1, XF + 4*kv, RING + 8*(kv % NR) + 4, None if kv == 0 else ACC1)
            if kv + NR < 32: rdv(kv + NR)
        def kstep(ks, pre=None):
            b = RING + 8*(ks % NR)
            P(waitstr(vm=vm.need(('x', ks)) if L > 0 else None, lg=lg.need(('k', ks))))
            self.mfma(ACC0, b, XF + 4*ks, None if ks == 0 else ACC0)
            if pre: pre()
            if ks + NR < 32: rdk(ks + NR)
            if V and ks & 1 and ks > 1: P(self.acc_par(XF + 4*ks - 4, XF + 4*ks, L & 1))
            if L > 0 and ks + XD < 32 and ks >= 2: self.frag_load(sOut, ks + XD); pop(1)
            else: pop(3)
            if ks >= D: vstep(ks - D)
            if L > 0 and o['red'] and ks == o['rk0']:
                P(finld); vm.issue('st')
            if L > 0 and o['st0'] <= ks < o['st0'] + 8 and not o['red']:
                for i in range(2*(ks-o['st0']), 2*(ks-o['st0']) + 2):
                    P(f'buffer_load_dword {vr(STAT+i)}, {vr(vL4)}, {sr(sWS,4)}, {sr(sT1)} offen offset:{i*256} sc1'); vm.issue('st')
            pop(3)
        if L > 0 and not o['b0']:
            ok = P.newlabel('Lwr')
            P(f'v_cmp_gt_u32 vcc, {4*L}, {vr(vT0)}\ns_cbranch_vccz {ok}')
            self.lds_wait(C_WR, 4*L)
            P.label(ok)
            if L == 1 and o['bq']:
                P(f's_lshl_b32 {sr(sT0)}, {sr(sMT)}, 11\ns_add_u32 {sr(sT0)}, {sr(sT0)}, {LDS_WQ}\nv_add_u32 {vr(PKV)}, {sr(sT0)}, {vr(vL16)}')
                bqw = [('ds', 'bq', f'ds_write_b128 {vr(PKV)}, {vr(224+4*u,4)} offset:{cho(u)}') for u in range(8)]
                bqw.append(('ds', 'bq', f'v_mov_b32 {vr(vPD)}, 1\ns_mov_b64 exec, 1\nds_add_u32 {vr(vCNT)}, {vr(vPD)} offset:{4*C_Q}\ns_mov_b64 exec, -1'))
        self.csp_addr(typ)
        if L == 0:
            AD = PKV + 2; X0D = o['x0d']
            P(f"""v_bfe_u32 {vr(AD)}, {vr(vLANE)}, 1, 3
v_xor_b32 {vr(AD)}, {vr(AD)}, v64
v_lshlrev_b32 {vr(AD)}, 4, {vr(AD)}
v_lshl_add_u32 {vr(AD)}, v65, 7, {vr(AD)}
s_and_b32 {sr(sT0)}, {sr(sC)}, 1
s_lshl_b32 {sr(sT0)}, {sr(sT0)}, 6
v_xor_b32 {vr(AD)}, {sr(sT0)}, {vr(AD)}
v_add_u32 {vr(AD)}, {sr(sLA)}, {vr(AD)}
v_xor_b32 {vr(AD+1)}, 32, {vr(AD)}
v_xor_b32 {vr(AD+2)}, 64, {vr(AD)}
v_xor_b32 {vr(AD+3)}, 96, {vr(AD)}
s_mov_b32 {sr(sSEL0)}, 0x3f803f80""")
            for i in range(4): P(f'v_mov_b32 {vr(STAT+i)}, 0')
            for it in addr: self.item(it)
            for g in range(2, X0D): self.x0_load(g)
            if o['xst']:
                P(f"""v_mov_b32 {vr(PKV)}, {vr(AD)}
v_mov_b32 {vr(PKV+1)}, {vr(AD+1)}
s_lshr_b32 {sr(sT2)}, {sr(sC)}, 1
s_sub_u32 {sr(sT2)}, {sr(sT2)}, {sr(sROT)}
s_and_b32 {sr(sT2)}, {sr(sT2)}, 7""")
            def dots(g):
                for i in range(16):
                    r_ = XF + 16*g + i
                    P(f'v_dot2_f32_bf16 {vr(STAT+(i&1))}, {vr(r_)}, {sr(sSEL0)}, {vr(STAT+(i&1))}\nv_dot2_f32_bf16 {vr(STAT+2+(i&1))}, {vr(r_)}, {vr(r_)}, {vr(STAT+2+(i&1))}')
            stat_fold = [f'v_add_f32 {vr(STAT)}, {vr(STAT)}, {vr(STAT+1)}', f'v_add_f32 {vr(STAT+2)}, {vr(STAT+2)}, {vr(STAT+3)}',
                         f'v_permlane32_swap_b32 {vr(STAT)}, {vr(STAT+2)}', f'v_add_f32 {vr(STAT)}, {vr(STAT)}, {vr(STAT+2)}']
            LAG = o['il']
            if LAG:
                P(f'v_mov_b32 {vr(PKV+6)}, 1')
                sig = lambda idx: self.item(('ds', 'sig', f's_mov_b64 exec, 1\nds_add_u32 {vr(vCNT)}, {vr(PKV+6)} offset:{4*idx}\ns_mov_b64 exec, -1'))
                lg.reset()
                def ks0(ks):
                    nonlocal extras
                    if ks == 0:
                        self.lds_check(C_ST, 4)
                        self.stamp(29, 'S0 / W st2')
                        for k in range(NR): rdk(k); rdv(k)
                    pre = None; st = ks // 8 + 1
                    if ks % 8 == 2 and st < 4: extras[0:0] = self.lds_peek(C_ST + st)
                    if ks % 8 == 5 and st < 4: pre = lambda: self.lds_check(C_ST + st, 4)
                    if ks == o['csk']: extras[0:0] = self.lds_peek(C_CS)
                    if ks == o['csk'] + 2:
                        pre = lambda: self.lds_check(C_CS, 4)
                        extras += csrd + ['s_nop 0']*4 + wext
                    if ks == 30: extras[0:0] = self.lds_peek(C_Q)
                    kstep(ks, pre)
                for g in range(8 + LAG):
                    kk = list(range(4*(g - LAG), 4*(g - LAG) + 4)) if g >= LAG else []
                    if g < 8:
                        if g == LAG - 1 or (LAG > 8 and g == 7):
                            for it in self.lds_peek(C_ST): self.item(it)
                        lx = P.newlabel('Lx')
                        P(f's_cmp_lg_u32 {sr(sT2)}, {g}')
                        P(waitstr(vm=vm.need(('x', g))))
                        P(f's_cbranch_scc1 {lx}\nds_read_b128 {vr(XRES,4)}, {vr(PKV)} offset:{(g%3)*4096}\nds_read_b128 {vr(XRES+4,4)}, {vr(PKV+1)} offset:{(g%3)*4096}')
                        P.label(lx)
                        for s_ in range(4): P(f'ds_read_b128 {vr(XF+16*g+4*s_,4)}, {vr(AD+s_)} offset:{(g%3)*4096}')
                        lg.issue(('xg', g), 4)
                        if kk and kk[0] > 0: ks0(kk.pop(0))
                        P(waitstr(lg=lg.need(('xg', g))))
                        if g + 3 < 8: self.x0_load(g + 3)
                        if g == o['wgo'] - 1: sig(C_WGO)
                        if g == o['qgo']: sig(C_CSQ)
                        if g == 7: sig(C_XDONE)
                        if g in (0, 3, 5, 7): self.stamp({0: 2, 3: 15, 5: 23, 7: 1}[g], {0: 'x g0 / W go', 3: 'x g3 / W st0', 5: 'x g5 / W st1', 7: 'x0 / W st3'}[g])
                        if g == 7 or not kk or kk[0] == 0:
                            dots(g)
                            if g == 7: extras += stat_fold + self.stats_final(typ)
                            for k in kk: ks0(k)
                        else:
                            for k in kk: ks0(k)
                            dots(g)
                    else:
                        for k in kk: ks0(k)
                pop(100)
            for g in range(0 if LAG else 8):
                if o['xst']: P(f's_cmp_lg_u32 {sr(sT2)}, {g}')
                P(waitstr(vm=vm.need(('x', g))))
                if o['xst']:
                    lx = P.newlabel('Lx')
                    P(f's_cbranch_scc1 {lx}\nds_read_b128 {vr(XRES,4)}, {vr(PKV)} offset:{(g%4)*4096}\nds_read_b128 {vr(XRES+4,4)}, {vr(PKV+1)} offset:{(g%4)*4096}')
                    P.label(lx)
                for s_ in range(4): P(f'ds_read_b128 {vr(XF+16*g+4*s_,4)}, {vr(AD+s_)} offset:{(g%4)*4096}')
                if g: P('s_waitcnt lgkmcnt(4)')
                if g + X0D < 8: self.x0_load(g + X0D)
                if g: dots(g - 1)
                if g == o['wgo'] - 1: self.lds_signal(C_WGO)
                if g in (0, 3, 5): self.stamp({0: 2, 3: 15, 5: 23}[g], {0: 'x g0 / W go', 3: 'x g3 / W st0', 5: 'x g5 / W st1'}[g])
            if not LAG:
                self.lds_signal(C_XDONE)
                lg.reset()
                for it in self.lds_peek(C_ST): self.item(it)
                dots(7)
                self.stamp(1, 'x0 / W st3')
                self.lds_check(C_ST, 4)
                self.stamp(29, 'S0 / W st2')
                for ks in range(NR): rdk(ks); rdv(ks)
                P(f'v_add_f32 {vr(STAT)}, {vr(STAT)}, {vr(STAT+1)}\nv_add_f32 {vr(STAT+2)}, {vr(STAT+2)}, {vr(STAT+3)}')
                P(f'v_permlane32_swap_b32 {vr(STAT)}, {vr(STAT+2)}\nv_add_f32 {vr(STAT)}, {vr(STAT)}, {vr(STAT+2)}')
                extras += self.stats_final(typ)
                pop(10)
                for ks in range(32):
                    pre = None
                    st = ks // 8 + 1
                    if ks % 8 == 2: extras[0:0] = self.lds_peek(C_ST + st if st < 4 else C_CS)
                    if ks % 8 == 5 and st < 4: pre = lambda: self.lds_check(C_ST + st, 4)
                    if ks == 28:
                        pre = lambda: self.lds_check(C_CS, 4)
                        extras += csrd + self.lds_peek(C_Q) + ['s_nop 0']*3 + wext
                    kstep(ks, pre)
                pop(100)
        else:
            vm.reset(); lg.reset()
            redo = P.newlabel('Lkvredo')
            if o['red']: P(f's_lshr_b32 {sr(sT1)}, {sr(sRB)}, 6\ns_add_u32 {sr(sT1)}, {sr(sT1)}, {OFF_FIN}')
            else: P(f's_lshr_b32 {sr(sT1)}, {sr(sRB)}, 3\ns_add_u32 {sr(sT1)}, {sr(sT1)}, {OFF_ST}')
            for it in addr: self.item(it)
            if o['b0']: P('s_barrier')
            self.stamp(14 + L*14 if L < 3 else 57, f'L{L} B0')
            P.label(redo)
            for it in csrd: self.item(it)
            for ks in range(NR): rdk(ks); rdv(ks)
            extras += wext
            if o['red']: extras += [f'v_lshlrev_b32 {vr(STAT+2)}, 3, {vr(vLANE)}', f's_add_u32 {sr(sM)}, {sr(sTAG)}, {L}']
            if o['own']: kstep(0); kstep(1)
            S = self.probe(sOut, 0, L & 1, XD) if L > 1 and not o['hx'] else self.first_hop(0, OFF_XFLAG + 0x2000, 60, L & 1 if V else None, L - 1, 1 if (L > 1 and o['prex']) else None)
            self.stamp(2 + L*14, f'L{L} xflags')
            for ks in range(2, XD + 2): self.frag_load(sOut, ks)
            if L == 1 and o['bq']:
                for it in bqw: self.item(it)
            late = [('wvm', 'st')] + [self.acc_par(STAT + 2*i, STAT + 2*i + 1, L & 1) for i in range(8) if V]
            for step in (8, 4, 2, 1):
                for i in range(step): late.append(f'v_add_f32 {vr(STAT+i)}, {vr(STAT+i)}, {vr(STAT+i+step)}')
            if o['red']: late = [('fn', fincheck)]
            late += self.stats_final(typ)
            for ks in range(2 if o['own'] else 0, 32):
                if ks == (o['rk1'] if o['red'] else 8 + o['st0'] + XD): extras += late
                kstep(ks)
                if V and ks in (o['ev'], o['ev2']): self.verify(L & 1, redo)
            pop(100)
            if V: self.verify(L & 1, redo)
        self.mfma(ACC0, WEXTK, XEXT, ACC0)
        rest = list(range(32 - D, 33))
        def vt(n=1):
            for _ in range(n):
                if rest: vstep(rest.pop(0))
        vt()
        return vt

    def w_read(self, dst, base, off, L, tag, qkv=True):
        if L > 1:
            self.P(f'ds_read_b128 {vr(dst,4)}, {vr(base)} offset:{off}'); self.lg.issue(tag)
        else:
            d = 256 if (L == 0 and qkv) else 512
            self.P(f'ds_read_b64_tr_b16 {vr(dst,2)}, {vr(base)} offset:{off}\nds_read_b64_tr_b16 {vr(dst+2,2)}, {vr(base)} offset:{off+d}'); self.lg.issue(tag, 2)

    def q_prefetch(self, L, NS=5):
        for ks in range(NS): self.q_rd(L, ks)

    def q_rd(self, L, ks, NS=5):
        self.w_read(RING + 4*(ks % NS), vTR1, ks*1024, L, ('w', ks))

    def main_qpass(self, L, acc, fill, at=None, pre_write=None, rate=4):
        P = self.P; typ = L % 2; lg = self.lg; NS = 5
        fill = list(fill)
        for ks in range(32):
            P(waitstr(lg=lg.need(('w', ks))))
            self.mfma(acc, RING + 4*(ks % NS), XF + 4*ks, None if ks == 0 else acc)
            if ks + NS < 32: self.q_rd(L, ks + NS)
            n = 0
            while fill and n < rate:
                it = fill.pop(0); self.item(it)
                if isinstance(it, str) or it[0] == 'ds': n += 1
            if at and ks in at: at[ks]()
        for it in fill: self.item(it)
        self.mfma(acc, WEXTQ, XEXT, acc)
        if at and 32 in at: at[32]()
        order = (4, 5, 6, 7, 0, 1, 2, 3)
        for p in order:
            if typ == 0 and p % 4 == 0:
                for q in range(p, p + 4): P(f'v_pk_mul_f32 {vr(acc+2*q,2)}, {vr(acc+2*q,2)}, {vr(vRSTD,2)} op_sel_hi:[1,0]')
            P(f'v_cvt_pk_bf16_f32 {vr(aQ+p)}, {vr(acc+2*p)}, {vr(acc+2*p+1)}')
            if p == 7:
                if pre_write: pre_write()
                P(f'ds_write_b128 {vr(vKA)}, {vr(aQ+4,4)} offset:5120')

    def tile_addr(self, sbase):
        return f"""s_lshl_b32 {sr(sT1)}, {sr(sHS)}, 10
s_add_u32 {sr(sT1)}, {sr(sT1)}, {sr(sbase)}
v_add_u32 {vr(vKA)}, {sr(sT1)}, {vr(vL16)}
s_lshl_b32 {sr(sT1)}, {sr(sHS)}, 8
v_xor_b32 {vr(vVA)}, {sr(sT1)}, {vr(vL16)}
v_add_u32 {vr(vVA)}, {sr(sbase)}, {vr(vVA)}"""

    def trickle_setup(self):
        self.P(f's_mov_b32 {sr(sDM)}, 4\ns_mov_b32 {sr(sDG)}, {sr(sG0)}\ns_add_u32 {sr(sDL)}, {sr(sLA)}, {sr(sS0)}')

    def trickle(self, keep=0):
        P = self.P; sk = P.newlabel('Lsk')
        P(f's_cmp_le_u32 {sr(sDM)}, {keep}\ns_cbranch_scc1 {sk}\ns_mul_i32 {sr(sT0)}, {sr(sDG)}, 3')
        for e in range(2):
            for nt in (1, 2):
                P(f's_add_u32 m0, {sr(sDL)}, {NT_LDS[nt] + e*1024}\ns_add_u32 {sr(sT1)}, {sr(sT0)}, {e*49152 + nt*1024}')
                P(f'buffer_load_dwordx4 {vr(vDW)}, {sr(sWB,4)}, {sr(sT1)} offen lds')
        P(f"""s_add_u32 {sr(sDL)}, {sr(sDL)}, 8192
s_and_b32 {sr(sDL)}, {sr(sDL)}, 0x7fff
s_add_u32 {sr(sDG)}, {sr(sDG)}, 0x20000
s_and_b32 {sr(sDG)}, {sr(sDG)}, 0x7ffff
s_sub_u32 {sr(sDM)}, {sr(sDM)}, 1""")
        P.label(sk)

    def attn_loop(self, cfirst, trickle=False):
        P = self.P; lp = P.newlabel('Latt')
        if self.o['trunc']: pk = lambda d, e: f'v_perm_b32 {vr(d)}, {vr(e+1)}, {vr(e)}, {sr(sPERM)}'
        else: pk = lambda d, e: f'v_cvt_pk_bf16_f32 {vr(d)}, {vr(e)}, {vr(e+1)}'
        rdv = f's_mov_b64 exec, {sr(sLO,2)}\nds_read_b128 {vr(VV,4)}, {vr(vVA)} offset:2048\nds_read_b128 {vr(VV+4,4)}, {vr(vVA)} offset:3072\ns_mov_b64 exec, -1'
        P(f'ds_read_b128 {vr(aK,4)}, {vr(vKA)}'); P(rdv)
        P(f'v_add_u32 {vr(vKA)}, {sr(sSTEP)}, {vr(vKA)}\nv_add_u32 {vr(vVA)}, {sr(sSTEP)}, {vr(vVA)}\ns_waitcnt lgkmcnt(2)')
        cfirst()
        P(f'ds_read_b128 {vr(aK,4)}, {vr(vKA)}\nv_add_u32 {vr(vKA)}, {sr(sSTEP)}, {vr(vKA)}\ns_nop 9')
        P.label(lp)
        for i in range(8): P(f'v_exp_f32 {vr(aE+i)}, {vr(aS+i)}')
        for p in range(4): P(pk(aP + p, aE + 2*p))
        for i in range(8, 10): P(f'v_exp_f32 {vr(aE+i-8)}, {vr(aS+i)}')
        P('s_waitcnt lgkmcnt(0)')
        self.mfma(aO, VV, aP, aO)
        for i in range(10, 16): P(f'v_exp_f32 {vr(aE+i-8)}, {vr(aS+i)}')
        self.mfma(aS, aK, aQ, None)
        P(f'ds_read_b128 {vr(aK,4)}, {vr(vKA)}')
        for p in range(4): P(pk(aP + 4 + p, aE + 2*p))
        P(f'v_add_u32 {vr(vKA)}, {sr(sSTEP)}, {vr(vKA)}\ns_sub_u32 {sr(sCNT)}, {sr(sCNT)}, 1')
        self.mfma(aO, VV + 4, aP + 4, aO)
        P(rdv)
        if trickle and self.o['trk']: self.trickle(4 - self.o['trk'])
        P(f'v_add_u32 {vr(vVA)}, {sr(sSTEP)}, {vr(vVA)}\ns_cmp_lg_u32 {sr(sCNT)}, 0\ns_cbranch_scc1 {lp}')

    def v_lanes(self):
        return [f'v_mov_b32 {vr(vSTV)}, {LDS_ONES - 2048}', f'v_cndmask_b32 {vr(vVA)}, {vr(vSTV)}, {vr(vVA)}, {sr(sLO,2)}',
                f'v_mov_b32 {vr(vSTV)}, {sr(sSTEP)}', f'v_cndmask_b32 {vr(vSTV)}, 0, {vr(vSTV)}, {sr(sLO,2)}']

    def attn2(self, M, first, trickle=False):
        P = self.P; lp = P.newlabel('Latt'); dn = P.newlabel('Lattd')
        pk = lambda d, e: f'v_perm_b32 {vr(d)}, {vr(e+1)}, {vr(e)}, {sr(sPERM)}'
        ex = lambda S, a, b: P('\n'.join(f'v_exp_f32 {vr(S+i)}, {vr(S+i)}' for i in range(a, b)))
        rdk = f'ds_read_b128 {vr(aK,4)}, {vr(vKA)}\nv_add_u32 {vr(vKA)}, {sr(sSTEP)}, {vr(vKA)}'
        P(rdk.replace(vr(aK,4), vr(aP,4))); P(rdk); P(f'ds_read_b128 {vr(VV,4)}, {vr(vVA)} offset:2048\ns_waitcnt lgkmcnt(2)')
        first()
        P('s_waitcnt lgkmcnt(1)\ns_nop 6')
        P.label(lp)
        for half, (S, N) in enumerate(((M, aS), (aS, M))):
            P('s_waitcnt lgkmcnt(2)')
            self.mfma(N, aK, aQ, None)
            P(rdk)
            ex(S, 0, 4)
            P('s_waitcnt lgkmcnt(2)')
            self.mfma(aO, VV + 4, aP + 4, aO)
            P(f'ds_read_b128 {vr(VV+4,4)}, {vr(vVA)} offset:3072\nv_add_u32 {vr(vVA)}, {vr(vSTV)}, {vr(vVA)}')
            ex(S, 4, 10)
            for p in range(4): P(pk(aP + p, S + 2*p))
            ex(S, 10, 12)
            P('s_waitcnt lgkmcnt(2)')
            self.mfma(aO, VV, aP, aO)
            P(f'ds_read_b128 {vr(VV,4)}, {vr(vVA)} offset:2048')
            if trickle and self.o['trk']: self.trickle(4 - self.o['trk'])
            ex(S, 12, 16)
            P(f's_sub_u32 {sr(sCNT)}, {sr(sCNT)}, 1')
            for p in range(4): P(pk(aP + 4 + p, S + 8 + 2*p))
            P(f's_cbranch_scc1 {dn}' if half == 0 else f's_cbranch_scc0 {lp}')
        P.label(dn)

    def publish_o_addr(self, L):
        return [f's_add_u32 {sr(sK0)}, {sr(sOW)}, {OFF_O}'] + ([f's_add_u32 {sr(sK1)}, {sr(sOF)}, {OFF_OFLAG}'] if L == 0 or self.o['ho'] else [])

    def publish_o(self, L, O, eps):
        P = self.P
        if eps: P(f'v_add_f32 {vr(O+8)}, {f2u(eps):#x}, {vr(O+8)}')
        P(f'v_rcp_f32 {vr(O+8)}, {vr(O+8)}')
        if L % 2 == 0 and self.o['omul']:
            for i in range(8): P(f'v_mul_f32 {vr(O+i)}, {vr(O+8)}, {vr(O+i)}')
        else:
            for p in range(4): P(f'v_pk_mul_f32 {vr(O+2*p,2)}, {vr(O+2*p,2)}, {vr(O+8,2)} op_sel_hi:[1,0]')
        for p in range(4): P(f'v_cvt_pk_bf16_f32 {vr(aP+p)}, {vr(O+2*p)}, {vr(O+2*p+1)}')
        P(self.set_par(aP, 1 - (L & 1)))
        def emit(sc1):
            P(f'buffer_store_dwordx4 {vr(aP,4)}, {vr(vL16)}, {sr(sWS,4)}, {sr(sK0)} offen' + (' sc1' if sc1 else (['', ' nt', ' sc1', ' sc0'][self.o.get('o3', 0)] if L == 3 or self.o.get('nta') else '')))
            if L == 0: self.flag(sK1, sTAG, sc1, wait=None if self.o['clr'] else 's_waitcnt vmcnt(0)')
            elif self.o['ho'] and (sc1 or not self.o['eb' if L & 1 else 'ea']): self.flag(sK1, sTAG, sc1, add=L)
        self.two_way(emit)

    def main_outproj(self, L):
        P = self.P; vm, lg = self.vm, self.lg; OD = self.o['od'] if L != 1 else self.o['od1']; par = 1 - (L & 1)
        vm.reset(); lg.reset()
        redo = P.newlabel('Lopredo')
        PO = self.o['preo'] and L > 0
        if PO: P(f'v_and_b32 v111, 124, {vr(vL4)}\nv_add_u32 v111, {OFF_OFLAG}, v111\nbuffer_load_dword v103, v111, {sr(sWS,4)}, {sr(sXF)} offen sc1')
        if L == 0:
            if self.o['plds']: self.wphi_load(170); P('s_waitcnt lgkmcnt(0)')
            for op in ['s_waitcnt vmcnt(2)' if self.o['clr'] else 's_waitcnt vmcnt(1)'] + [f'v_permlane32_swap_b32 {vr(XRES+a)}, {vr(XRES+b)}' for a, b in SW4] + self.wphi_pack(170): P(op)
        for i in range(4): P(f'v_mov_b32 {vr(XF+i)}, {vr(aP+i)}')
        NS = 6; RG = 24 if L == 0 and self.o['bq'] else 32; V = L or self.o['clr']
        def rd(ks):
            self.w_read(RING + 4*(ks % NS), vTR2, ks*1024, L, ('w', ks), qkv=False)
        self.publish_x_addr(L + 1)
        HB = self.o['hb']
        if HB: P(f's_lshl_b32 {sr(sT0)}, {sr(sMT)}, 2\nv_add_u32 v100, {sr(sOWN)}, {vr(vL16)}\nv_add_u32 v101, {sr(sT0)}, {vr(vCNT)}')
        P.label(redo)
        for ks in range(NS): rd(ks)
        self.unpack_res()
        S = self.probe(sWS, OFF_O, par, OD) if L > 0 and not self.o['ho'] else self.first_hop(OFF_O, OFF_OFLAG, 124, par if V else None, L, 0 if PO else None)
        SG = self.o['sg'] if L == 1 else 0
        EX = self.o['ex'] if L in (1, 2) else 0
        if SG:
            l = P.newlabel('Lx'); lw = P.newlabel('Lx')
            P(f's_cmp_lt_u32 {sr(sMT)}, 2\ns_cbranch_scc1 {l}'); P.label(lw)
            P(f'ds_read_b32 {vr(vT0)}, {vr(vCNT)} offset:{4*C_WGO}\ns_waitcnt lgkmcnt(0)\nv_cmp_gt_u32 vcc, 6, {vr(vT0)}\ns_cbranch_vccnz {lw}')
            P.label(l)
        self.stamp(11 + L*14, f'L{L} oflags')
        for ks in range(1 + HB, OD + 1 + HB): self.frag_load(sWS, ks)
        if HB:
            lw = P.newlabel('Lhb'); P.label(lw)
            P(f'ds_read_b32 v102, v101 offset:{4*C_ST}\nds_read_b128 {vr(XF+4,4)}, v100 offset:5120\ns_waitcnt lgkmcnt(0)\nv_cmp_gt_u32 vcc, {TV_O[L]}, v102\ns_cbranch_vccnz {lw}')
            lg.reset()
        for ks in range(32):
            P(waitstr(vm=vm.need(('x', ks)), lg=lg.need(('w', ks))))
            self.mfma(ACC0, RING + 4*(ks % NS), XF + 4*(ks % RG), ACC0)
            if ks + OD < 32 and ks > HB: self.frag_load(sWS, ks + OD, RG)
            if ks + NS < 32: rd(ks + NS)
            if SG and ks == SG - 1: self.item(('ds', 'sg', f's_mov_b64 exec, 2\nds_add_u32 {vr(vCNT)}, {vr(vLANE)} offset:{4*C_WGO}\ns_mov_b64 exec, -1'))
            if V and ks & 1: P(self.acc_par(XF + 4*ks - 4, XF + 4*ks, par))
            if V and ks in (self.o['ev'], self.o['ev2']): self.verify(par, redo)
            if self.o['prex'] and L in (1, 2) and ks == 25: P(f'v_and_b32 v111, 60, {vr(vL4)}\nv_add_u32 v111, {OFF_XFLAG + 0x2000}, v111')
            if EX and ks == 24:
                for op in self.hint_prep(106, L): P(op)
            if EX and ks == EX: self.hint(106, sK2); vm.issue('h')
        if V: self.verify(par, redo)
        if EX == 32: self.hint(106, sK2)
        self.stamp(12 + L*14, f'L{L} outproj')
        nxt = L + 1 < self.nl and not self.o['b0']
        if nxt: P(f'ds_read_b32 {vr(vT0)}, {vr(vCNT)} offset:{4*C_WR}')
        self.publish_x(L + 1)
        if nxt: self.lds_signal(C_XDONE)
        self.stamp(13 + L*14, f'L{L} xpub')

    def aux_head(self, L):
        P = self.P
        if self.o['b0']: P('s_barrier')
        else: self.lds_signal(C_WR)
        if L + 1 < self.nl: self.code_prefetch(f'L_main_{L+1}')
        if L == 3: return
        if L == 2: return self.aux_head2(L)
        if L > 1 and not self.o['b0']: self.lds_wait(C_XDONE, 4 + 4*L, self.o['lsleep'])
        if L == 1:
            self.lds_to_regs(LDS_WO, PARK['o'], True); P('s_waitcnt vmcnt(0) lgkmcnt(0)')
            if self.o['bq']: self.lds_wait(C_Q, 8, self.o['lsleep'])
            if not self.o['bql']: self.relayout(1, (0,))
        else: self.swap_region('o', L + 1 < self.nl, L == 2)

    def aux_head2(self, L):
        if L == 1 and self.o['bql']: self.lds_wait(C_XDONE, 4 + self.o['bql']*2 + 2 if self.o['bql'] == 1 else 6, self.o['lsleep'])
        if self.o['red']: self.stats_reduce(L)
        if L == 1 and self.o['bql']:
            self.dma_w(1, (0,)); self.P('s_waitcnt vmcnt(0)')
            self.relayout(1, (0,), tmp=48, ntmp=4)
        if self.o['chain'] and L == 2:
            for i in range(32): self.P(f'v_mov_b32 {vr(PARK[0]+i)}, {vr(32+i)}')
        if L > 1:
            if not self.o['b0']: self.lds_wait(C_XDONE, 4 + 4*L, self.o['lsleep'])
            self.swap_region('o', L + 1 < self.nl, L == 2)

    def stats_reduce(self, L):
        P = self.P; sk = P.newlabel('Lx'); lp = P.newlabel('Lred'); dn = P.newlabel('Lredd'); R = 64; par = L & 1
        P(f"""s_lshl_b32 {sr(sT0)}, {sr(sMT)}, 2
s_cmp_lg_u32 {sr(sT0)}, {sr(sC)}
s_cbranch_scc1 {sk}
s_setprio 3
v_and_b32 {vr(vPA)}, 60, {vr(vL4)}
s_add_u32 {sr(sT2)}, {sr(sXF)}, {OFF_XFLAG + 0x2000}
s_add_u32 {sr(sT0)}, {sr(sTAG)}, {L - 1}
s_lshr_b32 {sr(sT1)}, {sr(sRB)}, 3
s_add_u32 {sr(sT1)}, {sr(sT1)}, {OFF_ST}
s_lshr_b32 {sr(sT3)}, {sr(sRB)}, 6
s_add_u32 {sr(sT3)}, {sr(sT3)}, {OFF_FIN}
v_and_b32 {vr(R+18)}, 15, {vr(vLANE)}
v_lshrrev_b32 {vr(R+17)}, 4, {vr(vLANE)}
v_lshl_add_u32 {vr(R+18)}, {vr(R+18)}, 2, {vr(R+17)}
v_lshlrev_b32 {vr(R+18)}, 3, {vr(R+18)}
v_add_u32 {vr(R+17)}, {sr(sTAG)}, {L}""")
        self.poll(sT2, val=sT0)
        if self.o['rsl'] and L > 1: P(f's_sleep {self.o["rsl"]}')
        P.label(lp)
        for i in range(4): P(f'buffer_load_dwordx4 {vr(R+4*i,4)}, {vr(vL16)}, {sr(sWS,4)}, {sr(sT1)} offen offset:{i*1024} sc1')
        P(f'v_mov_b32 {vr(vPD)}, {par}')
        for i in range(4):
            P(f's_waitcnt vmcnt({3 - i})'); P(self.acc_par(R + 4*i, R + 4*i + 1, par)); P(self.acc_par(R + 4*i + 2, R + 4*i + 3, par))
            if i:
                for k in range(4): P(f'v_add_f32 {vr(R+k)}, {vr(R+k)}, {vr(R+4*i+k)}')
        P(self.test_par(par))
        P(f'v_permlane32_swap_b32 {vr(R)}, {vr(R+2)}\nv_permlane32_swap_b32 {vr(R+1)}, {vr(R+3)}\nv_add_f32 {vr(R)}, {vr(R)}, {vr(R+2)}\nv_add_f32 {vr(R+1)}, {vr(R+1)}, {vr(R+3)}')
        P(f'v_permlane16_swap_b32 {vr(R)}, {vr(R+1)}\nv_add_f32 {vr(R+16)}, {vr(R)}, {vr(R+1)}\ns_cbranch_vccz {dn}')
        P(f's_sub_u32 {sr(sBUD)}, {sr(sBUD)}, 1\ns_cbranch_scc0 {lp}\ns_mov_b32 {sr(sBUD)}, 0')
        P.label(dn)
        self.two_way(lambda sc1: P(f'buffer_store_dwordx2 {vr(R+16,2)}, {vr(R+18)}, {sr(sWS,4)}, {sr(sT3)} offen' + (' sc1' if sc1 else '')))
        P('s_setprio 0')
        P.label(sk)

    def aux_tail(self, L):
        P = self.P
        if self.o['hb']:
            P(f"""v_add_u32 v64, {sr(sOWN)}, {vr(vL16)}
s_lshl_b32 {sr(sT0)}, {sr(sQT)}, 2
ds_write_b128 v64, {vr(aP,4)} offset:5120
v_add_u32 v65, {sr(sT0)}, {vr(vCNT)}
v_mov_b32 v66, {TV_O[L]}
ds_write_b32 v65, v66 offset:{4*C_ST}""")
        if L + 1 >= self.nl:
            if self.o['hb']: P('s_waitcnt lgkmcnt(0)')
            if self.o.get('wb'):
                lw = P.newlabel('Lx')
                P(f's_lshr_b32 {sr(sT0)}, s2, {3 if self.o["wb"] == 1 else 8}\ns_or_b32 {sr(sT0)}, {sr(sT0)}, {sr(sMT)}\ns_cmp_lg_u32 {sr(sT0)}, 0\ns_cbranch_scc1 {lw}')
                P('s_waitcnt vmcnt(0)\ns_sleep 8\nbuffer_wbl2 sc1\ns_waitcnt vmcnt(0)')
                P.label(lw)
            return
        if L % 2 == 0: wait_att = lambda: self.lds_wait(C_ATT, 8*(L//2 + 1), self.o['lsleep'])
        else: wait_att = lambda: None
        if L == 0:
            lp = P.newlabel('Lx'); P.label(lp)
            self.trickle()
            P(f's_cmp_lg_u32 {sr(sDM)}, 0\ns_cbranch_scc1 {lp}')
            self.wphi_load()
            if self.o['bq'] or self.o['bql']: P('s_waitcnt vmcnt(0) lgkmcnt(0)')
            else:
                wait_att()
                self.dma_w(1, (0,))
                P('s_waitcnt vmcnt(8) lgkmcnt(0)')
            for op in self.wphi_pack(): P(op)
            self.relayout(1, (1, 2))
            if self.o['bq'] or self.o['bql']: wait_att()
            return
        save = L + 2 < self.nl
        if L == 1:
            for st in range(4): P(f's_add_u32 {sr(sT0)}, {sr(sS0)}, {st*8192}\ns_and_b32 {sr(sT0)}, {sr(sT0)}, 0x7fff\nv_add_u32 {vr(64+st)}, {sr(sT0)}, {vr(vCH)}')
        if self.o['chain'] and L == 1:
            dst = 32
            for nt in (1, 2, 0):
                self.lds_to_regs(NT_LDS[nt], dst, True)
                self.regs_to_lds(NT_LDS[nt], PARK[nt], True)
                dst = PARK[nt]
            return
        if self.o['chain'] and L == 2:
            self.regs_to_lds(LDS_WK, PARK[0]); self.regs_to_lds(LDS_WV, PARK[1])
            wait_att()
            self.regs_to_lds(LDS_WQ, PARK[2])
            return
        self.swap_region(1, save, L == 1); self.swap_region(2, save, L == 1)
        wait_att()
        self.swap_region(0, save, L == 1)

    def layerA(self, L):
        P = self.P; sb = L * 14; o = self.o; lg = self.lg
        j1 = f'L_j1_{L}'; j2 = f'L_j2_{L}'; ax2 = f'L_ax2_{L}'; ax3 = f'L_ax3_{L}'
        P.label(f'L_main_{L}')
        vt = self.main_kv(L)
        self.stamp(3 + sb, f'L{L} kvpass')
        if L == 0: self.lds_check(C_Q, 4)
        if L and o['vlaga']:
            vt()
            for p in range(8):
                P(f'v_mul_f32 {vr(ACC0+2*p)}, {vr(vRSTD)}, {vr(ACC0+2*p)}\nv_mul_f32 {vr(ACC0+2*p+1)}, {vr(vRSTD)}, {vr(ACC0+2*p+1)}')
                P(f'v_cvt_pk_bf16_f32 {vr(PKV+p)}, {vr(ACC0+2*p)}, {vr(ACC0+2*p+1)}')
                if p & 1: vt()
            vt(99)
            self.q_prefetch(L)
            P(waitstr(lg=lg.need('rt')))
        else:
            self.q_prefetch(L)
            P(waitstr(lg=lg.need('rt')))
            for p in range(8):
                P(f'v_pk_mul_f32 {vr(ACC0+2*p,2)}, {vr(ACC0+2*p,2)}, {vr(vRSTD,2)} op_sel_hi:[1,0]')
            for p in range(8): P(f'v_cvt_pk_bf16_f32 {vr(PKV+p)}, {vr(ACC0+2*p)}, {vr(ACC0+2*p+1)}')
        st = lambda f: f'buffer_store_dwordx4 {vr(PKV+4*f,4)}, {vr(vL16)}, {sr(sWS,4)}, {sr(sK0)} offen offset:{f*1024}{MODS[o["sm"]]}'
        fill = [st(0), st(1)]
        for hf in range(2):
            fill += [f'v_mul_f32 {vr(ACC1+i)}, {vr(STAT+i)}, {vr(ACC1+i)}' for i in range(8*hf, 8*hf + 8)]
            fill += [f'v_cvt_pk_bf16_f32 {vr(PKV+8+p)}, {vr(ACC1+2*p)}, {vr(ACC1+2*p+1)}' for p in range(4*hf, 4*hf + 4)]
            fill.append(st(2 + hf))
        fill += self.checksum(vPD, PKV, 16) + [f'buffer_store_dword {vr(vPD)}, {vr(vL4)}, {sr(sWS,4)}, {sr(sK2)} offen{MODS[o["sm"]]}']
        if o['vfirst']:
            P(st(0)); P(st(1))
            for hf in range(2):
                for i in range(8*hf, 8*hf + 8, 2): P(f'v_pk_mul_f32 {vr(ACC1+i,2)}, {vr(STAT+i,2)}, {vr(ACC1+i,2)}')
                for p in range(4*hf, 4*hf + 4): P(f'v_cvt_pk_bf16_f32 {vr(PKV+8+p)}, {vr(ACC1+2*p)}, {vr(ACC1+2*p+1)}')
                P(st(2 + hf))
            fill = fill[-9:]
        fill += [('ds', 'own', f'ds_write_b128 {vr(vKA)}, {vr(PKV+4*f,4)} offset:{f*1024}') for f in range(4)]
        if L == 0 and o['early']:
            fill.append(('ds', 'kd', f'v_mov_b32 {vr(vPD)}, 1\ns_mov_b64 exec, 1\nds_add_u32 {vr(vCNT)}, {vr(vPD)} offset:{4*C_CS}\ns_mov_b64 exec, -1'))
        m0 = self.mask_ops(0, lean=True)
        if L == 0: fill += m0[:4] + self.lds_peek(C_CSQ) + m0[4:16] + [('fn', lambda: self.lds_check(C_CSQ, 8 if o['il'] else 4))]
        else: fill += m0[:16]
        fill += [('ds', 'cs', f'ds_read_b128 {vr(WEXTQ,4)}, {vr(vT0)}')] + m0[16:]
        fill += [f'v_mul_f32 {vr(vRSTD)}, {f2u(0.25*LOG2E):#x}, {vr(vRSTD)}'] + self.wext_items(WEXTQ, 'cs')
        def halo_loads(m=' sc1'):
            for t_, sh in ((0, sH1), (1, sH2)):
                P(f's_add_u32 m0, {sr(sHL)}, {t_*4096}')
                for f in range(4): P(f'buffer_load_dwordx4 {vr(vL16)}, {sr(sWS,4)}, {sr(sh)} offen offset:{f*1024}{m} lds')
                P(f'buffer_load_dword {vr(65+t_)}, v67, {sr(sWS,4)}, {sr(sh)} offen{m}')
        La = L // 2; sHL = sM + 6
        M1L = L == 0 and o['m1l']
        if not M1L: fill += self.mask_ops(1)
        AT2 = o['at2']
        common = self.publish_o_addr(L) + [f's_add_u32 {sr(sCNT)}, {sr(sQT)}, {1 - AT2}', f's_mov_b32 {sr(sSTEP)}, {-OWN_ST}']
        common += [f's_add_u32 {sr(sH1)}, {sr(sHB)}, {OFF_KV + La*KV_L}', f's_add_u32 {sr(sH2)}, {sr(sH1)}, {16*KV_REC}',
                   f's_lshl_b32 {sr(sHL)}, {sr(sMT)}, 13', f's_add_u32 {sr(sHL)}, {sr(sHL)}, {LDS_T}', f'v_add_u32 v67, 4096, {vr(vL4)}']
        p1 = f's_cmp_lt_u32 {sr(sQT)}, 2' if o['p1'] else f's_cmp_ge_u32 {sr(sQT)}, 2'
        pre2 = (self.v_lanes() + [f'v_mov_b32 {vr(aP+4+i)}, 0' for i in range(4)]) if AT2 else []
        def gap32():
            for it in common + [f'v_mov_b32 {vr(vVA)}, {vr(vKA)}'] + pre2: P(it)
            self.mfma(aO, aP + 4, aP + 4, None)
        at = {32: gap32}
        if L == 2 and o.get('fine'):
            self.stamp(32, 'L2 Kepi'); lg.reset()
            at[12] = lambda: (self.stamp(43, 'L2 q12'), lg.reset()); at[31] = lambda: (self.stamp(51, 'L2 q31'), lg.reset())
        self.main_qpass(L, ACC0, fill, at=at, rate=o['qrate'] if L else o['qr0'])
        if o['prio']: self.prio_if(p1)
        self.stamp(5 + sb, f'L{L} preB1')
        P(f's_waitcnt lgkmcnt(0)\ns_barrier')
        P(f's_branch {j1}')
        P.label(f'L_aux_{L}')
        if L > 0:
            self.aux_head(L)
            for op in self.mask_ops(0) + self.mask_ops(1): P(op)
        else:
            self.trickle_setup()
            if o['early']:
                self.lds_wait(C_CS, 8, 1)
                for _ in range(o['early']): self.trickle()
            if o['clr']:
                self.hello_check()
                if o['clr'] == 1: self.clear_lines(aO)
            else: self.hello_load()
        P(self.tile_addr(sOWN))
        for it in common + pre2: P(it)
        if o['prio']: self.prio_if(p1)
        self.stamp(5 + sb, f'L{L} preB1')
        P('s_barrier')
        P(f'ds_read_b128 {vr(aQ,4)}, {vr(vKA)} offset:4096')
        P.label(j1)
        l = P.newlabel('Lx')
        P(f's_cmp_eq_u32 {sr(sHAS)}, 0\ns_cbranch_scc1 {l}')
        if o['hpr']: P('s_setprio 3')
        halo_loads(MODS[o['hm']])
        if o['hpr']: P(f's_setprio {o["prio"] - 1 + o["p1"]}')
        P.label(l)
        if AT2: self.attn2(CDIAG, lambda: self.mfma(CDIAG, aP, aQ, CDIAG))
        else: self.attn_loop(lambda: self.mfma(aS, aK, aQ, CDIAG))
        P(self.tile_addr(sP2))
        P(f's_sub_u32 {sr(sCNT)}, {sr(sC2)}, {AT2}\ns_mov_b32 {sr(sSTEP)}, 4096')
        if AT2:
            for it in self.v_lanes(): P(it)
        if o['prio'] and not o['p1']: self.prio_if(f's_cmp_lt_u32 {sr(sQT)}, 2')
        self.stamp(6 + sb, f'L{L} own attn')
        lp = P.newlabel('Lhalo'); ck = P.newlabel('Lhchk'); dn = P.newlabel('Lhdone')
        def warm():
            if o['pfb'] == 2: self.coop_prefetch(1, 1)
            if o['pq']:
                P(f's_mov_b64 exec, {sr(sH0,2)}\ns_lshl_b32 {sr(sT1)}, {sr(sC)}, 6')
                if o['pq'] & 1: P(f'v_mul_u32_u24 v5, 3072, {vr(vLANE)}\ns_mul_i32 {sr(sT0)}, {sr(sG0)}, 3\ns_add_u32 {sr(sT0)}, {sr(sT0)}, {sr(sT1)}\nbuffer_load_dword v26, v5, {sr(sWB,4)}, {sr(sT0)} offen')
                if o['pq'] & 2: P(f'v_lshlrev_b32 v5, 10, {vr(vLANE)}\ns_add_u32 {sr(sT0)}, {sr(sG0)}, {sr(sT1)}\nbuffer_load_dword v26, v5, {sr(sWoB,4)}, {sr(sT0)} offen')
                P('s_mov_b64 exec, -1')
            if o['clr']:
                P(f"""s_mov_b64 exec, 3
v_mul_u32_u24 v5, {OFF_OFLAG - OFF_XFLAG - 0x2000}, {vr(vLANE)}
s_add_u32 {sr(sT1)}, {sr(sXF)}, {OFF_XFLAG + 0x2000}
buffer_load_dword v26, v5, {sr(sWS,4)}, {sr(sT1)} offen sc1
s_mov_b64 exec, -1""")
            elif o['touch']:
                P(f"""v_lshlrev_b32 v5, 3, {vr(vL16)}
v_and_b32 v5, 0x780, v5
s_add_u32 {sr(sT0)}, {sr(sXW)}, {OFF_O}
s_add_u32 {sr(sT1)}, {sr(sSW)}, {OFF_ST}
s_mov_b64 exec, 0xffff
buffer_load_dword v26, v5, {sr(sWS,4)}, {sr(sT0)} offen sc1
buffer_load_dword v26, v5, {sr(sOut,4)}, {sr(sXW)} offen sc1
s_mov_b64 exec, 3
buffer_load_dword v26, v5, {sr(sWS,4)}, {sr(sT1)} offen sc1
v_mul_u32_u24 v5, {OFF_OFLAG - OFF_XFLAG - 0x2000}, {vr(vLANE)}
s_add_u32 {sr(sT1)}, {sr(sXF)}, {OFF_XFLAG + 0x2000}
buffer_load_dword v26, v5, {sr(sWS,4)}, {sr(sT1)} offen sc1
s_mov_b64 exec, 15
v_lshlrev_b32 v5, 7, {vr(vLANE)}
s_lshr_b32 {sr(sT1)}, {sr(sRB)}, 6
s_add_u32 {sr(sT1)}, {sr(sT1)}, {OFF_FIN}
buffer_load_dword v26, v5, {sr(sWS,4)}, {sr(sT1)} offen sc1
s_mov_b64 exec, -1""")
        if M1L:
            lm = P.newlabel('Lx')
            P(f's_cmp_lg_u32 {sr(sHS)}, 0\ns_cbranch_scc1 {lm}')
            for op in self.mask_ops(1): P(op)
            P.label(lm)
        nh = P.newlabel('Lnh')
        P(f's_cmp_eq_u32 {sr(sHAS)}, 0\ns_cbranch_scc1 {nh}\nv_add_u32 {vr(vT0)}, {sr(sHL)}, {vr(vL16)}\ns_branch {ck}')
        P.label(lp)
        halo_loads()
        P.label(ck)
        for t_, R in ((0, aS), (1, CDIAG)):
            P(f's_waitcnt vmcnt({5-5*t_})')
            for f in range(4): P(f'ds_read_b128 {vr(R+4*f,4)}, {vr(vT0)} offset:{(4*t_+f)*1024}')
        for t_, R in ((0, aS), (1, CDIAG)):
            cs = self.checksum(68 + t_, R, 16)
            for f in range(4):
                P(f's_waitcnt lgkmcnt({7-4*t_-f})'); P(cs[2*f]); P(cs[2*f + 1])
            P(f'v_cmp_ne_u32 {sr(sM+2*t_,2)}, {vr(65+t_)}, {vr(68+t_)}')
        P(f's_or_b64 {sr(sM,2)}, {sr(sM,2)}, {sr(sM+2,2)}\ns_cbranch_scc0 {dn}')
        self.retry_tail(lp, dn)
        self.stamp(7 + sb, f'L{L} halo ok')
        P.label(nh)
        if L == 0: P(f's_cmp_lg_u32 {sr(sHS)}, 0\ns_cbranch_scc1 {ax2}')
        if L == 0:
            if not o['xst']:
                self.rowmajor_addr(182, 183, sT0)
                P(f'buffer_load_dwordx4 {vr(XRES,4)}, v182, {sr(sX0,4)}, {sr(sT0)} offen\nbuffer_load_dwordx4 {vr(XRES+4,4)}, v182, {sr(sX0,4)}, {sr(sT0)} offen offset:32')
            if not o['plds']: self.wphi_load(170)
            P(f's_branch {j2}'); P.label(ax2)
            P('s_waitcnt vmcnt(0) lgkmcnt(0)')
            if not o['clr']: self.hello_check()
            if not o['tpos']: warm()
        P.label(j2)
        lskip = P.newlabel('Lnohalo'); l1 = P.newlabel('Lr1'); l2 = P.newlabel('Lr2')
        EA = o['ea'] if L else 0
        if EA:
            for op in self.hint_prep(70, L): P(op)
        P('s_waitcnt lgkmcnt(0)\ns_barrier')
        if L == 0 and not self.force_safe: P(f'ds_read_b32 {vr(vPD)}, {vr(vCNT)} offset:44')
        self.stamp(8 + sb, f'L{L} B2')
        if L == 0 and o['tpos']:
            lw = P.newlabel('Lx')
            P(f's_cmp_eq_u32 {sr(sHS)}, 0\ns_cbranch_scc1 {lw}')
            warm()
            P.label(lw)
        if L == 0 and o['bq']:
            lb = P.newlabel('Lx')
            P(f's_cmp_lg_u32 {sr(sHS)}, 0\ns_cbranch_scc1 {lb}')
            if 1:
                P(f"""v_lshrrev_b32 v184, 2, {vr(vLANE)}
v_mul_u32_u24 v184, 3072, v184
v_and_b32 v185, 48, {vr(vL16)}
s_lshl_b32 {sr(sT0)}, {sr(sC)}, 6
v_add3_u32 v184, v184, v185, {sr(sT0)}
s_lshl_b32 {sr(sT2)}, {sr(sROT)}, 1
s_add_u32 {sr(sT2)}, {sr(sT2)}, {sr(sMT)}
s_lshl_b32 {sr(sT2)}, {sr(sT2)}, 15""")
                for st in range(4):
                    P(f's_and_b32 {sr(sT2)}, {sr(sT2)}, 0x7ffff\ns_mul_i32 {sr(sT0)}, {sr(sT2)}, 3\ns_add_u32 {sr(sT3)}, {sr(sT0)}, 49152')
                    P(f'buffer_load_dwordx4 {vr(224+8*st,4)}, v184, {sr(sWB,4)}, {sr(sT0)} offen\nbuffer_load_dwordx4 {vr(228+8*st,4)}, v184, {sr(sWB,4)}, {sr(sT3)} offen')
                    if st < 3: P(f's_add_u32 {sr(sT2)}, {sr(sT2)}, 0x20000')
            P.label(lb)
        P(f's_cmp_eq_u32 {sr(sR)}, 0\ns_cbranch_scc1 {lskip}')
        def first():
            P(f's_cmp_eq_u32 {sr(sR)}, 1\ns_cbranch_scc1 {l1}')
            self.mfma(CFIRST if AT2 else aS, aP if AT2 else aK, aQ, CFIRST)
            P(f's_branch {l2}'); P.label(l1)
            self.mfma(CFIRST if AT2 else aS, aP if AT2 else aK, aQ, None)
            P.label(l2)
        if AT2: self.attn2(CFIRST, first, trickle=(L == 0))
        else: self.attn_loop(first, trickle=(L == 0))
        P.label(lskip)
        if AT2:
            P('s_waitcnt lgkmcnt(1)'); self.mfma(aO, VV + 4, aP + 4, aO)
        if EA == 1: self.hint(70, sK1)
        if L == 0 and not self.force_safe: P(f's_waitcnt lgkmcnt(0)\nv_readfirstlane_b32 {sr(sFAST)}, {vr(vPD)}')
        self.stamp(9 + sb, f'L{L} attn')
        P(f'v_subrev_u32 {vr(vT0)}, {f2u(2.0**-SAFE_EXP):#x}, {vr(aO+8)}\nv_cmp_le_u32 vcc, {f2u(2.0**SAFE_EXP) - f2u(2.0**-SAFE_EXP):#x}, {vr(vT0)}\ns_cbranch_vccnz L_fb_{L}')
        P.label(f'L_fbr_{L}')
        if EA == 2: self.hint(70, sK1)
        self.publish_o(L, aO, 0)
        if o['prio']: P('s_setprio 0')
        self.lds_signal(C_ATT)
        self.stamp(10 + sb, f'L{L} opub')
        P(f's_cmp_lg_u32 {sr(sHS)}, 0\ns_cbranch_scc1 {ax3}')
        if o['fpr']:
            l = P.newlabel('Lx')
            P(f's_cmp_lt_u32 {sr(sMT)}, 2\ns_cbranch_scc1 {l}\ns_setprio {o["fpr"]}'); P.label(l)
        self.main_outproj(L)
        P(f's_branch L_main_{L+1}')
        P.label(ax3)
        self.aux_tail(L)
        self.stamp(13 + sb, f'L{L} xpub')
        P(f's_branch L_aux_{L+1}')

    def attn_fallback(self, L):
        P = self.P; M = vT0
        pk = lambda d, e: f'v_cvt_pk_bf16_f32 {vr(d)}, {vr(e)}, {vr(e+1)}'
        P.label(f'L_fb_{L}')
        P(f's_waitcnt lgkmcnt(0)\nv_mov_b32 {vr(M)}, 0xff800000')
        for op in self.mask_ops(0) + self.mask_ops(1): P(op)
        for ps in range(2):
            for seg in range(2):
                lp = P.newlabel('Lfb'); nx = P.newlabel('Lfbn'); nm = P.newlabel('Lfbm')
                if seg == 0:
                    P(self.tile_addr(sOWN))
                    P(f's_add_u32 {sr(sCNT)}, {sr(sQT)}, 1\ns_mov_b32 {sr(sSTEP)}, {-OWN_ST}')
                    for i in range(16): P(f'v_mov_b32 {vr(aS+i)}, {vr(CDIAG+i)}')
                else:
                    P(f's_cmp_eq_u32 {sr(sR)}, 0\ns_cbranch_scc1 {nx}')
                    P(self.tile_addr(sP2))
                    P(f's_mov_b32 {sr(sCNT)}, {sr(sC2)}\ns_mov_b32 {sr(sSTEP)}, 4096\ns_cmp_eq_u32 {sr(sR)}, 1\ns_cbranch_scc1 {lp}')
                    for i in range(16): P(f'v_mov_b32 {vr(aS+i)}, {vr(CFIRST+i)}')
                P.label(lp)
                P(f'ds_read_b128 {vr(aK,4)}, {vr(vKA)}')
                if ps:
                    P(f's_mov_b64 exec, {sr(sLO,2)}\nds_read_b128 {vr(VV,4)}, {vr(vVA)} offset:2048\nds_read_b128 {vr(VV+4,4)}, {vr(vVA)} offset:3072\ns_mov_b64 exec, -1')
                P('s_waitcnt lgkmcnt(0)')
                self.mfma(aS, aK, aQ, aS)
                if ps == 0:
                    for i in range(0, 16, 2): P(f'v_max3_f32 {vr(M)}, {vr(M)}, {vr(aS+i)}, {vr(aS+i+1)}')
                else:
                    for i in range(16): P(f'v_sub_f32 {vr(aS+i)}, {vr(aS+i)}, {vr(M)}')
                    for i in range(16): P(f'v_exp_f32 {vr(aS+i)}, {vr(aS+i)}')
                    for p in range(8): P(pk(aP + p, aS + 2*p))
                    self.mfma(aO, VV, aP, aO)
                    self.mfma(aO, VV + 4, aP + 4, aO)
                for i in range(16): P(f'v_mov_b32 {vr(aS+i)}, 0')
                P(f'v_add_u32 {vr(vKA)}, {sr(sSTEP)}, {vr(vKA)}\nv_add_u32 {vr(vVA)}, {sr(sSTEP)}, {vr(vVA)}')
                P(f's_sub_u32 {sr(sCNT)}, {sr(sCNT)}, 1\ns_cmp_lg_u32 {sr(sCNT)}, 0\ns_cbranch_scc1 {lp}')
                P.label(nx)
            if ps == 0:
                P(f'v_mov_b32 {vr(vPD)}, {vr(M)}\nv_permlane32_swap_b32 {vr(vPD)}, {vr(M)}\nv_max_f32 {vr(M)}, {vr(M)}, {vr(vPD)}')
        P(f's_branch L_fbr_{L}')

    def softmax16(self, dst, t, inject=None, start=0, step=1, pk=True):
        if inject is None: return self.softmax16_(dst, t, self.P, pk)
        ops = []
        self.softmax16_(dst, t, lambda x: ops.extend(x.split('\n')))
        inject = list(inject)
        for i, op in enumerate(ops):
            if i >= start and (i - start) % step == 0 and inject: self.P(inject.pop(0))
            self.P(op)
        for x in inject: self.P(x)

    def softmax16_(self, dst, t, P, pk=True):
        A = ACC0
        P(f'v_max3_f32 {vr(t)}, {vr(A)}, {vr(A+1)}, {vr(A+2)}\nv_max3_f32 {vr(t+1)}, {vr(A+3)}, {vr(A+4)}, {vr(A+5)}')
        P(f'v_max3_f32 {vr(t+2)}, {vr(A+6)}, {vr(A+7)}, {vr(A+8)}\nv_max3_f32 {vr(t+3)}, {vr(A+9)}, {vr(A+10)}, {vr(A+11)}')
        P(f'v_max3_f32 {vr(t)}, {vr(t)}, {vr(A+12)}, {vr(A+13)}\nv_max3_f32 {vr(t+1)}, {vr(t+1)}, {vr(A+14)}, {vr(A+15)}')
        P(f'v_max3_f32 {vr(t)}, {vr(t)}, {vr(t+2)}, {vr(t+3)}\nv_max_f32 {vr(t)}, {vr(t)}, {vr(t+1)}')
        P(f'v_mul_f32 {vr(t)}, {vr(vRSTD)}, {vr(t)}')
        if not pk:
            for i in range(4): P(f'v_fma_f32 {vr(A+i)}, {vr(A+i)}, {vr(vRSTD)}, -{vr(t)}')
            for i in range(16):
                P(f'v_exp_f32 {vr(A+i)}, {vr(A+i)}')
                if i + 4 < 16: P(f'v_fma_f32 {vr(A+i+4)}, {vr(A+i+4)}, {vr(vRSTD)}, -{vr(t)}')
                if i in (3, 4): P(f'v_add_f32 {vr(t+i-1)}, {vr(A+i-3)}, {vr(A+i-1)}')
                if i >= 5: P(f'v_add_f32 {vr(t+2+(i+1)%2)}, {vr(t+2+(i+1)%2)}, {vr(A+i-1)}')
            P(f'v_add_f32 {vr(t+3)}, {vr(t+3)}, {vr(A+15)}\nv_add_f32 {vr(t+2)}, {vr(t+2)}, {vr(t+3)}\nv_rcp_f32 {vr(t)}, {vr(t+2)}')
            for i in range(16): P(f'v_mul_f32 {vr(A+i)}, {vr(t)}, {vr(A+i)}')
            for p in range(8): P(f'v_cvt_pk_bf16_f32 {vr(dst+p)}, {vr(A+2*p)}, {vr(A+2*p+1)}')
            return
        fm = lambda p: f'v_pk_fma_f32 {vr(A+2*p,2)}, {vr(A+2*p,2)}, {vr(vRSTD,2)}, {vr(t,2)} op_sel_hi:[1,0,0] neg_lo:[0,0,1] neg_hi:[0,0,1]'
        P(fm(0)); P(fm(1))
        for p in range(8):
            P(f'v_exp_f32 {vr(A+2*p)}, {vr(A+2*p)}')
            if p + 2 < 8: P(fm(p + 2))
            P(f'v_exp_f32 {vr(A+2*p+1)}, {vr(A+2*p+1)}')
            if p == 2: P(f'v_pk_add_f32 {vr(t+2,2)}, {vr(A,2)}, {vr(A+2,2)}')
            if p >= 3: P(f'v_pk_add_f32 {vr(t+2,2)}, {vr(t+2,2)}, {vr(A+2*p-2,2)}')
        P(f'v_pk_add_f32 {vr(t+2,2)}, {vr(t+2,2)}, {vr(A+14,2)}\nv_add_f32 {vr(t+2)}, {vr(t+2)}, {vr(t+3)}\nv_rcp_f32 {vr(t)}, {vr(t+2)}')
        for p in range(8): P(f'v_pk_mul_f32 {vr(A+2*p,2)}, {vr(A+2*p,2)}, {vr(t,2)} op_sel_hi:[1,0]')
        for p in range(8): P(f'v_cvt_pk_bf16_f32 {vr(dst+p)}, {vr(A+2*p)}, {vr(A+2*p+1)}')

    def layerB(self, L):
        P = self.P; Lb = L // 2; sb = L * 14; o = self.o; lg = self.lg
        j0 = f'L_j0_{L}'; j1 = f'L_j1_{L}'; j2 = f'L_j2_{L}'; ax1 = f'L_ax1_{L}'; ax1b = f'L_ax1b_{L}'; ax3 = f'L_ax3_{L}'; axz = f'L_axz_{L}'
        KA, KV_ = 48, 96
        vA16, vA4, vAW, vAO = 96, 97, 98, 99
        P.label(f'L_main_{L}')
        vt = self.main_kv(L)
        if o['fpr']: P('s_setprio 0')
        self.stamp(3 + sb, f'L{L} kvpass')
        P(waitstr(lg=lg.need('rt')))
        vt()
        for p in (4, 5, 6, 7): P(f'v_cvt_pk_bf16_f32 {vr(PKV+p)}, {vr(ACC0+2*p)}, {vr(ACC0+2*p+1)}')
        P(f'ds_write_b128 {vr(vKA)}, {vr(PKV+4,4)} offset:1024'); lg.issue('kb', 2 if o['pw1'] else 1)
        PW = o['pw1']
        if PW:
            o['vpre'] = 2
            P(f'ds_write_b32 {vr(PKV+8)}, {vr(PKV+9)} offset:{4*C_ST}')
        vt()
        for p in (0, 1, 2, 3): P(f'v_cvt_pk_bf16_f32 {vr(PKV+p)}, {vr(ACC0+2*p)}, {vr(ACC0+2*p+1)}')
        vmul = lambda p: f'v_pk_mul_f32 {vr(ACC1+2*p,2)}, {vr(ACC1+2*p,2)}, {vr(STAT+2*p,2)}'
        if o['vlag']:
            vt(99)
            self.mfma(ACC0, WPHI, PKV, None)
            for i in range(16): P(f'v_mul_f32 {vr(ACC1+i)}, {vr(STAT+i)}, {vr(ACC1+i)}')
        else:
            P(vmul(0)); P(vmul(1))
            self.mfma(ACC0, WPHI, PKV, None)
            for p in range(2, 8): P(vmul(p))
        if o['vpre'] != 1 and not PW: P('s_waitcnt lgkmcnt(0)\ns_barrier')
        for f in range(2, 4):
            for p in range(4*f - 8, 4*f - 4): P(f'v_cvt_pk_bf16_f32 {vr(PKV+8+p)}, {vr(ACC1+2*p)}, {vr(ACC1+2*p+1)}')
            P(f'ds_write_b128 {vr(vKA)}, {vr(PKV+4*f,4)} offset:{f*1024}')
        if o['vpre'] == 1: P('s_waitcnt lgkmcnt(0)\ns_barrier')
        P(f's_branch {j0}')
        P.label(f'L_aux_{L}')
        self.aux_head(L)
        for i in range(32): P(f'v_mov_b32 {vr(KV_+i)}, {vr(ONES)}')
        P(f"""v_lshrrev_b32 v91, 5, {vr(vLANE)}
v_bfe_u32 v88, {vr(vLANE)}, 2, 2
v_lshl_add_u32 v88, v91, 2, v88
v_lshlrev_b32 v88, 5, v88
v_and_b32 v89, 1, {vr(vLANE)}
v_lshl_add_u32 v88, v89, 4, v88
v_bfe_u32 v89, {vr(vLANE)}, 4, 1
v_lshl_add_u32 v88, v89, 12, v88
v_bfe_u32 v89, {vr(vLANE)}, 1, 1
v_lshl_add_u32 v88, v89, 3, v88
s_lshl_b32 {sr(sT0)}, {sr(sMT)}, 10
s_add_u32 {sr(sT0)}, {sr(sT0)}, {LDS_OWN}
v_add_u32 v88, {sr(sT0)}, v88
s_lshl_b32 {sr(sT1)}, {sr(sMT)}, 8
v_xor_b32 v90, {sr(sT1)}, {vr(vL16)}
v_add_u32 v89, {LDS_OWN}, v90
s_lshl_b32 {sr(sT0)}, {sr(sMT)}, 1
v_add_u32 v91, {sr(sT0)}, v91
v_and_b32 v92, 31, {vr(vLANE)}
v_mov_b32 v93, {OOB >> 4:#x}
v_cmp_eq_u32 vcc, 16, v92
v_cndmask_b32 v91, v93, v91, vcc
v_lshrrev_b32 v92, 8, v90
v_mul_u32_u24 v92, {KP_Q}, v92
v_and_b32 v93, 15, {vr(vLANE)}
v_lshl_add_u32 v90, v93, 4, v92
v_lshl_add_u32 v92, v93, 2, v92
v_lshlrev_b32 v93, 4, v91
v_add_u32 v93, {KP_Z}, v93
v_lshlrev_b32 v91, 4, v91
v_add_u32 v91, 64, v91
v_cndmask_b32 v91, v91, v92, {sr(sLO,2)}
v_cndmask_b32 v90, v93, v90, {sr(sLO,2)}
v_add_u32 v93, 64, v93
v_add_u32 v92, 256, v90
v_cndmask_b32 v93, v93, v92, {sr(sLO,2)}
s_lshl_b32 {sr(sK2)}, {sr(sC)}, 4
s_add_u32 {sr(sK2)}, {sr(sK2)}, {sr(sR)}
s_mul_i32 {sr(sK2)}, {sr(sK2)}, {KP_REC}
s_add_u32 {sr(sK2)}, {sr(sK2)}, {OFF_KP + Lb*KP_L}""")
        P(self.tile_addr(sOWN))
        for op in self.phi_addr(): P(op)
        P(f's_lshl_b32 {sr(sT0)}, {sr(sQT)}, 7\ns_add_u32 {sr(sT0)}, {sr(sT0)}, {LDS_RSTD}\nv_and_b32 v25, 124, {vr(vL4)}\nv_add_u32 v25, {sr(sT0)}, v25')
        self.aux_head2(L)
        self.stamp(3 + sb, f'L{L} kvpass')
        if PW:
            lw = P.newlabel('Lpw')
            P(f's_lshl_b32 {sr(sT0)}, {sr(sQT)}, 2\nv_add_u32 v26, {sr(sT0)}, {vr(vCNT)}')
            P.label(lw)
            if o['pws']: P(f's_sleep {o["pws"]}')
            P(f'ds_read_b32 {vr(vPD)}, v26 offset:{4*C_ST}\nds_read_b128 {vr(RING+8,4)}, {vr(vKA)}\nds_read_b32 {vr(vRSTD)}, v25\ns_waitcnt lgkmcnt(1)')
            P(f'v_cmp_gt_u32 vcc, {TV_K[L]}, {vr(vPD)}\ns_cbranch_vccnz {lw}')
        else:
            P('s_barrier')
            P(f'ds_read_b128 {vr(RING+8,4)}, {vr(vKA)}\nds_read_b32 {vr(vRSTD)}, v25\ns_waitcnt lgkmcnt(1)')
        self.mfma(ACC0, WPHI, RING + 8, None)
        P(f's_waitcnt lgkmcnt(0)\nv_mul_f32 {vr(vRSTD)}, {sr(sLOG2E)}, {vr(vRSTD)}')
        vrd = [f'ds_read_b128 {vr(KV_+4*st,4)}, v89 offset:{(st>>1)*OWN_ST + 2048 + (st&1)*1024}' for st in range(8)]
        if o['vpre'] == 1:
            P(f's_mov_b64 exec, {sr(sLO,2)}')
            for x in vrd: P(x)
            P('s_mov_b64 exec, -1')
        else: P('s_nop 7')
        jw = P.newlabel('Lpw')
        if PW == 1:
            P(f's_cmp_ge_u32 {sr(sQT)}, 2\ns_cbranch_scc1 {j0}')
            self.stamp(4 + sb, f'L{L} B1a')
            self.softmax16(RING, RING + 12, pk=False)
            P(f's_branch {jw}')
        P.label(j0)
        self.stamp(4 + sb, f'L{L} B1a')
        self.softmax16(RING, RING + 12)
        P.label(jw)
        P(f'ds_write_b128 {vr(vVA)}, {vr(RING,4)}\nds_write_b128 {vr(vVA)}, {vr(RING+4,4)} offset:4096\ns_waitcnt lgkmcnt(0)\ns_barrier')
        self.stamp(5 + sb, f'L{L} B1b')
        common = self.publish_o_addr(L) + f"""s_mul_i32 {sr(sH1)}, {sr(sC)}, {16*KP_REC}
s_add_u32 {sr(sH1)}, {sr(sH1)}, {OFF_KP + Lb*KP_L}
s_mov_b32 {sr(sSEL0)}, 0x3f80
s_mov_b32 {sr(sSEL1)}, 0x3f800000
s_lshl_b32 {sr(sT0)}, {sr(sHS)}, 4
v_xor_b32 {vr(vAO)}, {sr(sT0)}, {vr(vLANE)}
v_lshlrev_b32 {vr(vAO)}, 5, {vr(vAO)}
v_add_u32 {vr(vAO)}, {LDS_KVT}, {vr(vAO)}
v_and_b32 v100, 32, {vr(vLANE)}
s_lshl_b32 {sr(sT0)}, {sr(sHS)}, 6
s_add_u32 {sr(sT0)}, {sr(sT0)}, {LDS_ZT}
v_add_u32 v100, {sr(sT0)}, v100
v_cndmask_b32 {vr(vAO)}, v100, {vr(vAO)}, {sr(sLO,2)}""".split('\n')
        SEL = 104
        addr_main = f"""s_mul_i32 {sr(sH2)}, {sr(sMT)}, {KP_Q}
s_add_u32 {sr(sH2)}, {sr(sH2)}, {sr(sH1)}
v_lshrrev_b32 v100, 4, {vr(vLANE)}
v_and_b32 v101, 15, {vr(vLANE)}
v_mul_u32_u24 {vr(vA16)}, {KP_REC}, v100
v_lshl_add_u32 {vr(vA4)}, v101, 2, {vr(vA16)}
v_lshl_add_u32 {vr(vA16)}, v101, 4, {vr(vA16)}
s_lshl_b32 {sr(sT0)}, {sr(sMT)}, 9
s_add_u32 {sr(sT0)}, {sr(sT0)}, {LDS_KVT}
v_lshl_add_u32 {vr(vAW)}, v101, 5, {sr(sT0)}
v_lshl_add_u32 {vr(vAW)}, v100, 3, {vr(vAW)}
v_lshlrev_b32 v100, 4, {vr(vLANE)}
v_lshlrev_b32 v100, v100, {sr(sSEL0)}
v_lshrrev_b32 v101, 1, v101""".split('\n')
        for r_ in range(8): addr_main += [f'v_cmp_eq_u32 vcc, {r_}, v101\nv_cndmask_b32 {vr(SEL+r_)}, 0, v100, vcc']
        addr_z = f"""v_lshrrev_b32 v102, 4, {vr(vLANE)}
v_mul_u32_u24 {vr(vA16)}, {KP_REC}, v102
v_bfe_u32 v100, {vr(vLANE)}, 3, 1
v_and_b32 v101, 1, {vr(vLANE)}
v_lshl_add_u32 v100, v100, 1, v101
v_bfe_u32 v101, {vr(vLANE)}, 1, 2
v_mul_u32_u24 {vr(vA4)}, {4*KP_REC}, v100
v_add_u32 {vr(vA4)}, {vr(vA4)}, {vr(vA16)}
v_lshl_add_u32 {vr(vA4)}, v101, 4, {vr(vA4)}
v_lshlrev_b32 {vr(vAW)}, 5, v101
v_lshl_add_u32 {vr(vAW)}, v100, 3, {vr(vAW)}
v_lshl_add_u32 {vr(vAW)}, v102, 1, {vr(vAW)}
v_add_u32 {vr(vAW)}, {LDS_ZT}, {vr(vAW)}
v_and_b32 v100, 15, {vr(vLANE)}
v_lshl_add_u32 {vr(vA16)}, v100, 3, {vr(vA16)}""".split('\n')
        A = ACC1; KD = 128; T = A + 4
        def loads_main(P=P, m=' sc1'):
            P(f's_mov_b32 {sr(sT0)}, {sr(sH2)}')
            for it in range(4):
                D = KD + 12*it
                P(f'buffer_load_dwordx4 {vr(D,4)}, {vr(vA16)}, {sr(sWS,4)}, {sr(sT0)} offen{m}\nbuffer_load_dwordx4 {vr(D+4,4)}, {vr(vA16)}, {sr(sWS,4)}, {sr(sT0)} offen offset:256{m}')
                P(f'buffer_load_dword {vr(D+8)}, {vr(vA4)}, {sr(sWS,4)}, {sr(sT0)} offen offset:512{m}')
                if it < 3: P(f's_add_u32 {sr(sT0)}, {sr(sT0)}, {4*KP_REC}')
        def accum(D, first, t0):
            P(f'v_add3_u32 {vr(T)}, {t0 if first else vr(T)}, {vr(D)}, {vr(D+1)}')
            for k in range(2):
                if first: P(f'v_lshlrev_b32 {vr(A+2*k)}, 16, {vr(D+k)}\nv_and_b32 {vr(A+2*k+1)}, 0xffff0000, {vr(D+k)}')
                else: P(f'v_dot2_f32_bf16 {vr(A+2*k)}, {vr(D+k)}, {sr(sSEL0)}, {vr(A+2*k)}\nv_dot2_f32_bf16 {vr(A+2*k+1)}, {vr(D+k)}, {sr(sSEL1)}, {vr(A+2*k+1)}')
        dpp = lambda c: f'v_add_u32_dpp {vr(T)}, {vr(T)}, {vr(T)} {c} row_mask:0xf bank_mask:0xf'
        P(f's_cmp_lg_u32 {sr(sHS)}, 0\ns_cbranch_scc1 {ax1}')
        lg.reset()
        self.q_prefetch(L)
        fill = [('ds', 'cs', f'ds_read_b128 {vr(WEXTQ,4)}, {vr(vT0)}')] + common
        fill += addr_main
        fill += self.wext_items(WEXTQ, 'cs')
        self.main_qpass(L, ACC1, fill, pre_write=lambda: P('s_barrier'), rate=2)
        self.mfma(ACC0, WPHI, aQ, None)
        P('s_waitcnt lgkmcnt(0)\ns_barrier')
        if o['kp_at'] == 1: loads_main()
        if o['kp_at'] >= 2:
            inj = []; loads_main(lambda x: inj.extend(x.split('\n')))
            self.softmax16(PHQ, RING + 12, inj, o['kp_at'], o['kp_step'])
            self.stamp(6 + sb, f'L{L} phiq / kp stored')
            P(f's_branch L_kpc_{L}')
        else: P(f's_branch {j1}')
        P.label(ax1)
        P(f's_cmp_ge_u32 {sr(sMT)}, 2\ns_cbranch_scc1 {ax1b}\ns_setprio 3')
        if o['vpre'] == 2:
            P(f's_mov_b64 exec, {sr(sLO,2)}')
            for x in vrd: P(x)
            P('s_mov_b64 exec, -1')
        n_ = 2 if o['vpre'] else 3
        for st in range(8):
            of = (st >> 1)*OWN_ST + (st & 1)*512
            P(f'ds_read_b64_tr_b16 {vr(KA+4*st,2)}, v88 offset:{of}\nds_read_b64_tr_b16 {vr(KA+2+4*st,2)}, v88 offset:{of+256}')
            if not o['vpre']: P(f's_mov_b64 exec, {sr(sLO,2)}\n{vrd[st]}\ns_mov_b64 exec, -1')
            if st >= 3:
                P(f's_waitcnt lgkmcnt({3*n_})'); self.mfma(ACC0, KA + 4*(st-3), KV_ + 4*(st-3), None if st == 3 else ACC0)
        for st in range(5, 8):
            P(f's_waitcnt lgkmcnt({n_*(7-st)})'); self.mfma(ACC0, KA + 4*st, KV_ + 4*st, ACC0)
        for p in range(8): P(f'v_cvt_pk_bf16_f32 {vr(80+p)}, {vr(ACC0+2*p)}, {vr(ACC0+2*p+1)}')
        P(f'buffer_store_dwordx4 v[80:83], v90, {sr(sWS,4)}, {sr(sK2)} offen{MODS[o["sm"]]}\nbuffer_store_dwordx4 v[84:87], v93, {sr(sWS,4)}, {sr(sK2)} offen{MODS[o["sm"]]}')
        for op in self.checksum(92, 80, 8): P(op)
        P(f'buffer_store_dword v92, v91, {sr(sWS,4)}, {sr(sK2)} offen offset:512{MODS[o["sm"]]}')
        self.stamp(6 + sb, f'L{L} phiq / kp stored')
        P('s_setprio 0')
        P.label(ax1b)
        if L == 1: self.dma_w(1, ('o',))
        for it in common + addr_z: P(it)
        P('s_barrier\ns_barrier')
        P(f'ds_read_b128 {vr(aQ,4)}, {vr(vKA)} offset:4096\ns_waitcnt lgkmcnt(0)')
        self.mfma(ACC0, WPHI, aQ, None)
        P('s_nop 11')
        P.label(j1)
        self.softmax16(PHQ, RING + 12)
        if o['kp_at'] >= 2: P(f's_branch {axz}')
        else:
            P(f's_cmp_lg_u32 {sr(sHS)}, 0\ns_cbranch_scc1 {axz}')
            self.stamp(6 + sb, f'L{L} phiq / kp stored')
        lp = P.newlabel('Lkp'); ck = f'L_kpc_{L}'; dn = P.newlabel('Lkpd')
        if o['kp_at'] == 0 and o['km'] != 1: loads_main(m=MODS[o['km']])
        if o['kp_at'] == 1 or (o['kp_at'] == 0 and o['km'] != 1): P(f's_branch {ck}')
        P.label(lp)
        loads_main()
        P.label(ck)
        for it in range(4):
            D = KD + 12*it; cs = self.checksum(D + 9, D, 8)
            P(f's_waitcnt vmcnt({10 - 3*it})')
            for hf in range(2):
                P(f'v_mfma_f32_16x16x32_bf16 {vr(A,4)}, {vr(SEL+4*hf,4)}, {vr(D+4*hf,4)}, {"0" if it + hf == 0 else vr(A,4)}')
            for op in cs: P(op)
            P(f's_waitcnt vmcnt({9 - 3*it})\nv_cmp_ne_u32 {sr(sM+2*it,2)}, {vr(D+8)}, {vr(D+9)}')
            if it == 2: P(f's_or_b64 {sr(sM,2)}, {sr(sM,2)}, {sr(sM+2,2)}')
            if it == 3: P(f's_or_b64 {sr(sM,2)}, {sr(sM,2)}, {sr(sM+4,2)}')
        P(f'v_cvt_pk_bf16_f32 v68, {vr(A)}, {vr(A+1)}\nv_cvt_pk_bf16_f32 v69, {vr(A+2)}, {vr(A+3)}\nds_write_b64 {vr(vAW)}, v[68:69]')
        P(f's_or_b64 {sr(sM,2)}, {sr(sM,2)}, {sr(sM+6,2)}\ns_cbranch_scc0 {dn}')
        self.retry_tail(lp, dn)
        self.stamp(7 + sb, f'L{L} kp ok')
        P(f's_branch {j2}')
        P.label(axz)
        if L == 1:
            P('s_waitcnt vmcnt(0)')
        P(f's_cmp_lg_u32 {sr(sMT)}, 2\ns_cbranch_scc1 {j2}')
        lp = P.newlabel('Lkz'); dn = P.newlabel('Lkzd'); D = 32
        P.label(lp)
        P(f's_mov_b32 {sr(sT0)}, {sr(sH1)}\nbuffer_load_dword {vr(D+8)}, {vr(vA4)}, {sr(sWS,4)}, {sr(sT0)} offen offset:576 sc1')
        for it in range(4):
            P(f'buffer_load_dwordx2 {vr(D+2*it,2)}, {vr(vA16)}, {sr(sWS,4)}, {sr(sT0)} offen offset:{KP_Z} sc1')
            if it < 3: P(f's_add_u32 {sr(sT0)}, {sr(sT0)}, {4*KP_REC}')
        for it in range(4):
            P(f's_waitcnt vmcnt({3 - it})')
            accum(D + 2*it, it == 0, sr(sTAG))
            if it == 0: P(f'v_sub_u32 {vr(T)}, {vr(T)}, {vr(D+8)}')
        P(dpp('quad_perm:[1,0,3,2]'))
        P(f'v_permlane32_swap_b32 {vr(A)}, {vr(A+2)}\nv_permlane32_swap_b32 {vr(A+1)}, {vr(A+3)}')
        P(dpp('row_ror:8'))
        P(f'v_add_f32 {vr(A)}, {vr(A)}, {vr(A+2)}\nv_add_f32 {vr(A+1)}, {vr(A+1)}, {vr(A+3)}\nv_cmp_ne_u32 vcc, 0, {vr(T)}')
        P(f'v_permlane16_swap_b32 {vr(A)}, {vr(A+1)}\nv_add_f32 {vr(A)}, {vr(A)}, {vr(A+1)}\nv_cvt_pk_bf16_f32 v68, {vr(A)}, {vr(A)}\nds_write_b16 {vr(vAW)}, v68')
        P(f's_cbranch_vccz {dn}')
        self.retry_tail(lp, dn)
        P.label(j2)
        P('s_waitcnt lgkmcnt(0)\ns_barrier')
        self.stamp(8 + sb, f'L{L} B2')
        P(f'ds_read_b128 v[68:71], {vr(vAO)}\nds_read_b128 v[72:75], {vr(vAO)} offset:16')
        if o['eb']:
            for op in self.hint_prep(78, L): P(op)
        if o['eb'] == 1: self.hint(78, sK1)
        P('s_waitcnt lgkmcnt(1)')
        self.mfma(ACC0, 68, PHQ, None)
        if o['eb'] == 2: self.hint(78, sK1)
        P('s_waitcnt lgkmcnt(0)')
        self.mfma(ACC0, 72, PHQ + 4, ACC0)
        if o['eb'] == 3: self.hint(78, sK1)
        self.publish_o(L, ACC0, 1e-6)
        self.stamp(10 + sb, f'L{L} opub')
        P(f's_cmp_lg_u32 {sr(sHS)}, 0\ns_cbranch_scc1 {ax3}')
        if o['epr'] and L == 1: self.prio_if(f's_cmp_lt_u32 {sr(sMT)}, 2')
        elif o['mpr']: P(f's_setprio {o["mpr"]}')
        self.main_outproj(L)
        if o['epr'] == 1 and L == 1: self.prio_if(f's_cmp_ge_u32 {sr(sMT)}, 2')
        P(f's_branch L_main_{L+1}')
        P.label(ax3)
        self.aux_tail(L)
        self.stamp(13 + sb, f'L{L} xpub')
        P(f's_branch L_aux_{L+1}')

    def epilogue(self):
        P = self.P; nl = self.nl
        P.label(f'L_main_{nl}')
        P(f's_or_b32 {sr(sT0)}, s2, {sr(sW)}\ns_cmp_lg_u32 {sr(sT0)}, 0\ns_cbranch_scc1 L_aux_{nl}\ns_mov_b32 {sr(sT2)}, 0')
        self.flag(sT2, sTAG, False)
        P.label(f'L_aux_{nl}')
        if self.stamps:
            P('s_waitcnt vmcnt(0)')
            self.stamp(62, 'end')
            P(f's_memtime {sr(sST,2)}\ns_waitcnt lgkmcnt(0)\ns_sub_u32 {sr(sST)}, {sr(sST)}, s100\nv_writelane_b32 {vr(vSTAMP)}, {sr(sST)}, 59')
            P(f'''v_writelane_b32 {vr(vSTAMP)}, {sr(sBUD)}, 63
v_writelane_b32 {vr(vSTAMP)}, {sr(sFAST)}, 61
v_writelane_b32 {vr(vSTAMP)}, s99, 58
v_writelane_b32 {vr(vSTAMP)}, s101, 56
s_lshl_b32 {sr(sT0)}, s2, 3
s_add_u32 {sr(sT0)}, {sr(sT0)}, {sr(sW)}
s_lshl_b32 {sr(sT0)}, {sr(sT0)}, 8
s_add_u32 {sr(sT0)}, {sr(sT0)}, {OFF_STAMP}
buffer_store_dword {vr(vSTAMP)}, {vr(vL4)}, {sr(sWS,4)}, {sr(sT0)} offen''')
            if self.o.get('dbgst'):
                P(f's_cmp_lg_u32 {sr(sHS)}, 0\ns_cbranch_scc1 L_end\ns_load_dwordx2 s[64:65], s[0:1], 64\nv_mov_b32 v30, 0')
                for j, (idx, neg) in enumerate([(60, 1), (60, 0), (0, 0), (2, 0), (1, 0), (3, 0), (8, 0), (10, 0), (13, 0), (27, 0), (41, 0), (62, 0), (59, 0), (3, 1), (13, 1), (62, 1)]):
                    P(f'v_readlane_b32 s66, {vr(vSTAMP)}, {idx}')
                    if neg: P('s_not_b32 s66, s66')
                    P(f'v_writelane_b32 v30, s66, {j}')
                P('s_waitcnt lgkmcnt(0)')
                self.srd(68, 64, 256)
                P(f's_mov_b64 exec, 0xffff\nbuffer_atomic_umax v30, {vr(vL4)}, s[68:71], 0 offen\ns_waitcnt vmcnt(0)')
        if self.o.get('spin'):
            lp = P.newlabel('Lspin'); P.label(lp)
            P(f's_memrealtime s[66:67]\ns_waitcnt lgkmcnt(0)\ns_sub_u32 s66, s66, s98\ns_cmp_lt_u32 s66, {self.o["spin"]}\ns_cbranch_scc1 {lp}')
        P.label('L_end')
        P('s_endpgm')

    def build(self):
        self.prologue()
        for L in range(self.nl):
            (self.layerA if L % 2 == 0 else self.layerB)(L)
        self.epilogue()
        self.emit_stubs()
        for L in range(0, self.nl, 2): self.attn_fallback(L)
        n = self.P.fix_hazards()
        errs = self.P.check_waits()
        head = open(f'cdna_kernels/{NAME}.s.ref').read().split('; @launch')[0]
        s = head + f'; @launch grid=(256,1,1) block=(512,1,1) lds={LDS_TOTAL}\n'
        s += f'.amdgcn_target "amdgcn-amd-amdhsa--gfx950"\n.text\n{DOC}.globl {NAME}_kernel\n.p2align 8\n.type {NAME}_kernel,@function\n{NAME}_kernel:\n'
        s += self.P.text().replace('CODE_BYTES', '(L_end - %s_kernel - 1088)' % NAME)
        s += f'''.section .rodata,"a"
.p2align 6
.amdhsa_kernel {NAME}_kernel
  .amdhsa_next_free_vgpr 256
  .amdhsa_next_free_sgpr 102
  .amdhsa_accum_offset 256
  .amdhsa_group_segment_fixed_size 0
  .amdhsa_kernarg_size 80
  .amdhsa_user_sgpr_count 2
  .amdhsa_user_sgpr_kernarg_segment_ptr 1
  .amdhsa_system_sgpr_workgroup_id_x 1
.end_amdhsa_kernel
'''
        return s, n, errs


if __name__ == '__main__':
    import argparse, json
    ap = argparse.ArgumentParser()
    ap.add_argument('-o', default=f'cdna_kernels/{NAME}.s')
    ap.add_argument('--stamps', action='store_true')
    ap.add_argument('--safe', action='store_true')
    ap.add_argument('--cyc', action='store_true')
    ap.add_argument('--opt', nargs='*', default=[])
    ap.add_argument('--noalias', action='store_true')
    ap.add_argument('--nl', type=int, default=4)
    a = ap.parse_args()
    g = Gen(stamps=a.stamps, nlayers=a.nl, force_safe=a.safe, cyc=a.cyc, alias=not a.noalias, opt={k: int(v) for k, v in (x.split('=') for x in a.opt)})
    s, n, errs = g.build()
    open(a.o, 'w').write(s)
    if a.stamps: json.dump(g.stamp_names, open(a.o + '.stamps.json', 'w'))
    print('instructions', sum(1 for x in g.P.L if x.op), 'nops inserted', n, 'lds', LDS_TOTAL)
    for e in errs[:8]: print('WAITCHECK', e)
```

```python
import sys, struct
sys.path.insert(0, 'dev')
from asmlib import *

NAME = 'interleave_layers__sliding_block__linear_kernel_hedgehog__prompt'
def f2u(x): return struct.unpack('<I', struct.pack('<f', x))[0]
LOG2E = 1.4426950408889634

OFF_XFLAG = 0x1000
OFF_OFLAG = 0x9000
OFF_FIN = 0x12000
OFF_STAMP = 0x30000
OFF_ST = 0x100000
OFF_X = 0x200000
OFF_O = 0xA00000
OFF_KV = 0x1200000
KV_REC = 4480; KV_L = 1024*KV_REC
OFF_KP = 0x1B00000
KP_REC = 2688; KP_Q = 640; KP_Z = 2560; KP_L = 256*KP_REC
WS_USED = 0x2000000
OOB = 0x40000000
TAGC = 0x9E3779B0
SAFE_EXP = 30

LDS_WK = 0; LDS_WV = 32768; LDS_WQ = 65536; LDS_T = 65536; LDS_WO = 98304
LDS_OWN = 131072; OWN_ST = 6144
LDS_CSP = LDS_OWN + 4*OWN_ST
LDS_RSTD = LDS_CSP + 3072; LDS_KVT = LDS_RSTD + 512; LDS_ZT = LDS_KVT + 2048
LDS_FAST = LDS_ZT + 128; LDS_CNT = LDS_FAST + 16; LDS_ONES = LDS_FAST + 64; LDS_PHI = LDS_ONES + 1040; LDS_TOTAL = LDS_PHI + 1024
NT_LDS = {0: LDS_WQ, 1: LDS_WK, 2: LDS_WV, 'o': LDS_WO}
C_ST, C_XDONE, C_WGO, C_CS, C_Q, C_ATT, C_CSQ, C_WR = 0, 4, 5, 6, 7, 8, 9, 10

sWS, sX0, sWA, sWoA, sWB, sWoB, sPhi, sOut = 4, 8, 12, 16, 20, 24, 28, 32
sR, sC, sW, sMT, sHS, sRT, sQT, sTAG, sFAST, sBUD = 36, 37, 38, 39, 40, 41, 42, 43, 44, 45
sT0, sT1, sT2, sT3 = 46, 47, 48, 49
sLO = 50
sOWNF = 52; sCNT = 53; sSTEP = 54; sLOG2E = 55; sST = 56
sROT = 58; sDM = 59; sH0 = 60
sG0 = 62; sPERM = 63
sM = 64
sOW, sOF, sHB, sHAS, sP2, sC2, sOWN, sKVW, sXW, sSW, sXF, sRB = 72, 73, 74, 75, 76, 77, 78, 79, 80, 81, 82, 83
sLA = 86; sDG = 87; sDL = 88; sLB = 89; sLR = 90; sK0 = 91; sK1 = 92; sK2 = 93; sSEL0 = 94; sSEL1 = 95; sH1 = 96; sH2 = 97; sC1008 = 3; sS0 = 3
vT0, vLANE, vL16, vL4, vCNT, vTR1, vTR2, vSTAMP = 0, 1, 2, 3, 4, 5, 6, 7
XRES, WPHI = 8, 16
vDW, vDO, vCH, vCS, ONES = 8, 9, 10, 11, 12
vRSTD, vKA, vVA, vPD, vPA, vRA, vRB, vFD = 20, 21, 22, 23, 24, 25, 26, 27
vCK = vPD; XEXT = 28; ACC0 = 32; ACC1 = 48; RING = 64; WEXTQ = 84; WEXTK = 88; WEXTV = 92; VV = 88
STAT = 96; CDIAG = 96; PKV = 112; CFIRST = 112; XF = 128
aS, aO, aE, aQ, aK, aP, aH = 32, 48, 64, 72, 76, 80, 128
vSTV = 64
PHQ = 112
PARK = {1: 128, 2: 160, 0: 192, 'o': 224}
MFMA = 'v_mfma_f32_32x32x16_bf16'
MODS = ['', ' sc1', ' sc0', ' nt', ' sc0 sc1', ' sc1 nt', ' sc0 sc1 nt']
def cho(u): return (u >> 1)*8192 + (u & 1)*1024
TV_O = (5, 7, 8, 10); TV_K = (0, 6, 0, 9)
SW4 = ((0, 2), (1, 3), (4, 6), (5, 7))


DOC = '''; One persistent launch, 256 workgroups x 8 waves. Workgroup = (128-row block r, head pair c); waves 0-3 run the projections of one
; (first use: drained, launch-tagged flags; tagged words otherwise only say when to look), K/V halo tiles and kv partial sums carry
'''

class Gen:
    def __init__(self, stamps=False, nlayers=4, force_safe=False, cyc=False, alias=True, opt=None):
        self.cyc = cyc; self.alias = alias
        self.o = dict(halo_at=35, prio=2, trunc=1, wgo=2, wgon=2, xd=8, od=10, x0d=3, psleep=1, kp_at=0, spec=0, pw=16, tlb=0, touch=1, b0=0, mcs=1, pre=2, pst=0, trk=3, ool=1, at2=1, qrate=4, omul=1, specx=0, lsleep=2, ev=5, st0=3, wo_at=0, pf=1, pfb=0, psp=0, xst=1, bq=0, early=0, p1=0, o3=1, outm=1, kp_step=2, vpre=1, hm=1, km=1, sm=1, pw1=2, pws=2, il=0, qgo=5, csk=22, wearly=0, apr=1, fpr=0, epr=0, mpr=0, sg=0, od1=10, pp=0, em=0, hx=1, ho=1, hp=1, hs=2, ex=32, ea=2, eb=3, clr=0, vlag=0, vlaga=0, prex=1, preo=1, ev2=11, red=1, rk0=22, rk1=28, own=0, chain=1, rsl=0, plds=1, pfw=1, hpr=0, vfirst=0, bql=0, pq=0, tpos=0, hb=1, m1l=0, qr0=4, qcv=0, cpl=1)
        self.o.update(opt or {})
        self.P = Prog(); self.stamps = stamps; self.nl = nlayers; self.force_safe = force_safe
        self.stamp_names = {}
        self.vm = Tracker(63); self.lg = Tracker(15); self.stubs = []; self.ool = []

    def stamp(self, idx, name=''):
        if not self.stamps: return
        self.stamp_names[idx] = name
        self.P(f'{"s_memtime" if self.cyc else "s_memrealtime"} {sr(sST,2)}\ns_waitcnt lgkmcnt(0)\nv_writelane_b32 {vr(vSTAMP)}, {sr(sST)}, {idx}')

    def al(self, L): return 0 if self.alias else L

    def mfma(self, d, a, b, c):
        cs = '0' if c is None else vr(c, 16)
        self.P(f'{MFMA} {vr(d,16)}, {vr(a,4)}, {vr(b,4)}, {cs}')

    def srd(self, s, ptr, nbytes):
        self.P(f's_mov_b32 {sr(s)}, {sr(ptr)}\ns_and_b32 {sr(s+1)}, {sr(ptr+1)}, 0xffff\ns_mov_b32 {sr(s+2)}, {nbytes}\ns_mov_b32 {sr(s+3)}, 0x20000')

    def poll(self, soff, masked=False, areg=vPA, val=sTAG):
        P = self.P; lp = P.newlabel('Lpoll'); dn = P.newlabel('Lpolld')
        P.label(lp)
        P(f'buffer_load_dword {vr(vPD)}, {vr(areg)}, {sr(sWS,4)}, {sr(soff)} offen sc1\ns_waitcnt vmcnt(0)')
        if masked:
            P(f'v_and_b32 {vr(vT0)}, -16, {vr(vPD)}\nv_cmp_ne_u32 vcc, {sr(sTAG)}, {vr(vT0)}')
        else:
            P(f'v_cmp_ne_u32 vcc, {sr(val)}, {vr(vPD)}')
        P(f's_cbranch_vccz {dn}')
        if self.o['psleep']: P(f's_sleep {self.o["psleep"]}')
        P(f's_sub_u32 {sr(sBUD)}, {sr(sBUD)}, 1\ns_cbranch_scc0 {lp}\ns_mov_b32 {sr(sBUD)}, 0')
        P.label(dn)

    def flag(self, soff, sval, sc1, wait=None, add=0):
        P = self.P
        P((f'v_add_u32 {vr(vPD)}, {sr(sval)}, {add}' if add else f'v_mov_b32 {vr(vPD)}, {sr(sval)}') + '\ns_mov_b64 exec, 1')
        if wait: P(wait)
        P(f'buffer_store_dword {vr(vPD)}, off, {sr(sWS,4)}, {sr(soff)}' + (' sc1' if sc1 else ''))
        P('s_mov_b64 exec, -1')

    def prio_if(self, cmp):
        P = self.P; l = P.newlabel('Lpr')
        b = self.o['prio'] - 1
        P(f's_setprio {b}\n{cmp}\ns_cbranch_scc0 {l}\ns_setprio {b+1}'); P.label(l)

    def lds_signal(self, idx, wait=True):
        w = 's_waitcnt lgkmcnt(0)\n' if wait else ''
        self.P(f'v_mov_b32 {vr(vPD)}, 1\ns_mov_b64 exec, 1\n{w}ds_add_u32 {vr(vCNT)}, {vr(vPD)} offset:{4*idx}\ns_mov_b64 exec, -1')

    def lds_wait(self, idx, val, sleep=0):
        P = self.P; lp = P.newlabel('Llw')
        P.label(lp)
        if sleep: P(f's_sleep {sleep}')
        P(f'ds_read_b32 {vr(vPD)}, {vr(vCNT)} offset:{4*idx}\ns_waitcnt lgkmcnt(0)\nv_cmp_gt_u32 vcc, {val}, {vr(vPD)}\ns_cbranch_vccnz {lp}')

    def lds_peek(self, idx):
        return [('ds', ('cnt', idx), f'ds_read_b32 {vr(vPD)}, {vr(vCNT)} offset:{4*idx}')]

    def lds_check(self, idx, val):
        P = self.P; ok = P.newlabel('Llc')
        P(waitstr(lg=self.lg.need(('cnt', idx))))
        P(f'v_cmp_gt_u32 vcc, {val}, {vr(vPD)}\ns_cbranch_vccz {ok}')
        self.lds_wait(idx, val)
        P.label(ok)

    def two_way(self, emit):
        P = self.P
        if self.force_safe:
            emit(True); return
        ls = P.newlabel('Lsafe'); le = P.newlabel('Lpub')
        P(f's_cmp_eq_u32 {sr(sFAST)}, 0\ns_cbranch_scc1 {ls}')
        emit(False)
        if self.o['ool']:
            self.ool.append((ls, emit, le))
        else:
            P(f's_branch {le}'); P.label(ls)
            emit(True)
        P.label(le)

    def item(self, it):
        P = self.P
        if isinstance(it, str): P(it)
        elif it[0] == 'wvm': P(waitstr(vm=self.vm.need(it[1])))
        elif it[0] == 'wlg': P(waitstr(lg=self.lg.need(it[1])))
        elif it[0] == 'ds': P(it[2]); self.lg.issue(it[1])
        elif it[0] == 'fn': it[1]()

    def checksum(self, dst, src, n):
        ops = [f'v_add3_u32 {vr(dst)}, {sr(sTAG)}, {vr(src)}, {vr(src+1)}']
        for i in range(2, n, 2): ops.append(f'v_add3_u32 {vr(dst)}, {vr(dst)}, {vr(src+i)}, {vr(src+i+1)}')
        return ops

    def retry_tail(self, lp, dn):
        if self.stamps: self.P('s_add_u32 s99, s99, 1')
        self.P(f's_sub_u32 {sr(sBUD)}, {sr(sBUD)}, 1\ns_cbranch_scc0 {lp}\ns_mov_b32 {sr(sBUD)}, 0')
        self.P.label(dn)
        if self.stamps: self.P('s_lshl_b32 s99, s99, 6')

    def prologue(self):
        P = self.P; o = self.o
        vH, vT = 64, 65
        if self.stamps: P('s_memrealtime s[98:99]\ns_memtime s[100:101]')
        elif o.get('spin'): P('s_memrealtime s[98:99]')
        P(f"""s_cmp_ge_u32 s2, 256
s_cbranch_scc1 L_end
s_load_dwordx16 s[64:79], s[0:1], 0
s_load_dwordx4 s[80:83], s[0:1], 64
s_getpc_b64 s[84:85]
v_lshrrev_b32 v1, 6, v0
s_lshr_b32 {sr(sT1)}, s2, 3
v_readfirstlane_b32 {sr(sW)}, v1
v_and_b32 {vr(vLANE)}, 63, v0
v_lshlrev_b32 {vr(vL16)}, 4, {vr(vLANE)}""")
        lc = P.newlabel('Lx')
        P(f"""s_cmp_lt_u32 {sr(sW)}, 6
s_cbranch_scc1 {lc}
s_and_b32 {sr(sT0)}, {sr(sW)}, 1
s_lshl_b32 {sr(sT0)}, {sr(sT0)}, 5
s_add_u32 {sr(sT0)}, {sr(sT0)}, {sr(sT1)}
s_lshl_b32 {sr(sT0)}, {sr(sT0)}, 10
s_cmp_ge_u32 {sr(sT0)}, CODE_BYTES
s_cbranch_scc1 {lc}
v_add_u32 v254, {sr(sT0)}, {vr(vL16)}
v_mov_b32 v255, s85
v_add_co_u32 v254, vcc, s84, v254
v_addc_co_u32 v255, vcc, 0, v255, vcc
global_load_dword v253, v[254:255], off""")
        P.label(lc)
        P(f"""s_and_b32 {sr(sT0)}, s2, 7
s_add_u32 {sr(sC)}, {sr(sT1)}, {o.get('cadd', 0)}
s_and_b32 {sr(sC)}, {sr(sC)}, 15
s_lshr_b32 {sr(sT1)}, {sr(sT1)}, 4
s_lshl_b32 {sr(sR)}, {sr(sT0)}, 1
s_add_u32 {sr(sR)}, {sr(sR)}, {sr(sT1)}
s_and_b32 {sr(sMT)}, {sr(sW)}, 3
s_lshr_b32 {sr(sHS)}, {sr(sW)}, 2
s_lshl_b32 {sr(sRT)}, {sr(sR)}, 2
s_add_u32 {sr(sRT)}, {sr(sRT)}, {sr(sMT)}
s_add_u32 {sr(sS0)}, {sr(sT0)}, {sr(sT1)}
s_lshl_b32 {sr(sT1)}, {sr(sC)}, 1
s_add_u32 {sr(sS0)}, {sr(sS0)}, {sr(sT1)}
s_and_b32 {sr(sS0)}, {sr(sS0)}, 3
s_lshr_b32 {sr(sROT)}, {sr(sC)}, 1
s_lshl1_add_u32 {sr(sROT)}, {sr(sS0)}, {sr(sROT)}
s_and_b32 {sr(sROT)}, {sr(sROT)}, 7
v_mov_b32 v8, 0
v_mov_b32 v9, 0
v_mov_b32 v10, 0
v_mov_b32 v11, 0
v_mov_b32 v90, 0
v_mov_b32 {vr(vPA)}, 0
v_mov_b32 v91, 0
v_mov_b32 v93, 0
v_mov_b32 {vr(vCNT)}, {LDS_CNT}
ds_write_b128 {vr(vCNT)}, v[8:11]
ds_write_b128 {vr(vCNT)}, v[8:11] offset:16
ds_write_b128 {vr(vCNT)}, v[8:11] offset:32
v_lshrrev_b32 v28, 3, {vr(vLANE)}
v_lshlrev_b32 v28, 10, v28
v_lshrrev_b32 v29, 4, {vr(vLANE)}
v_xor_b32 v29, v29, {vr(vLANE)}
v_and_b32 v29, 7, v29
v_lshl_add_u32 v28, v29, 4, v28
v_xor_b32 v29, 64, v28
v_add_u32 v30, {2*7168}, v28
v_add_u32 v31, {3*7168}, v29
v_add_u32 v29, 7168, v29
s_lshl_b32 {sr(sLB)}, {sr(sRT)}, 15
s_lshl_b32 {sr(sLR)}, {sr(sROT)}, 7
s_mul_i32 {sr(sLA)}, {sr(sMT)}, {12288 if o['il'] else 16384}
s_add_u32 {sr(sLA)}, {sr(sLA)}, {LDS_WO if o['il'] else LDS_WQ}
{'s_memrealtime s[92:93]' if self.stamps else ''}
s_waitcnt lgkmcnt(0)
{'s_memrealtime s[94:95]' if self.stamps else ''}
s_load_dword {sr(sTAG)}, s[82:83], 0""")
        self.srd(sX0, 64, 2097152)
        if o['pf'] >= 3:
            lq = P.newlabel('Lx')
            P(f"""s_cmp_lg_u32 {sr(sW)}, {o['pf'] + 1}
s_cbranch_scc1 {lq}
s_lshr_b32 {sr(sT0)}, s2, 3
s_sub_u32 {sr(sT1)}, {sr(sT0)}, 24
s_cselect_b32 {sr(sT0)}, {sr(sT0)}, {sr(sT1)}
s_cselect_b64 {sr(sT2,2)}, s[66:67], s[68:69]
s_lshl_b32 {sr(sT0)}, {sr(sT0)}, 16
v_lshl_add_u32 v26, {vr(vLANE)}, 10, {sr(sT0)}
global_load_dword v25, v26, {sr(sT2,2)} offset:384""")
            P.label(lq)
        def dma_addr():
            P(f"""v_lshrrev_b32 v28, 2, {vr(vLANE)}
v_and_b32 v29, 3, {vr(vLANE)}
v_lshlrev_b32 v29, 4, v29
s_lshl_b32 {sr(sT0)}, {sr(sC)}, 6
v_add_u32 v29, {sr(sT0)}, v29
v_mul_u32_u24 {vr(vDW)}, 3072, v28
v_add_u32 {vr(vDW)}, {vr(vDW)}, v29
v_lshl_add_u32 {vr(vDO)}, v28, 10, v29
s_lshl_b32 {sr(sLA)}, {sr(sMT)}, 11
s_lshr_b32 {sr(sT0)}, {sr(sMT)}, 1
s_add_u32 {sr(sT0)}, {sr(sT0)}, {sr(sROT)}
s_and_b32 {sr(sT0)}, {sr(sT0)}, 7
s_lshl_b32 {sr(sG0)}, {sr(sT0)}, 16
s_xor_b32 {sr(sT0)}, {sr(sMT)}, {sr(sC)}
s_and_b32 {sr(sT0)}, {sr(sT0)}, 1
s_lshl_b32 {sr(sT0)}, {sr(sT0)}, 15
s_add_u32 {sr(sG0)}, {sr(sG0)}, {sr(sT0)}""")
        avm = Tracker(63)
        P(f's_cmp_lg_u32 {sr(sHS)}, 0\ns_cbranch_scc1 L_pro1')
        for g in range(2): self.x0_load(g)
        if o['wearly']: P('s_branch L_pro2')
        P.label('L_pro1')
        if o['wearly']:
            self.srd(sWA, 66, 1572864)
            dma_addr()
            for st in range(o['wearly']): self.dma_w(0, (1, 2), (st,)); avm.issue(st, 4)
        P.label('L_pro2')
        if self.stamps: P('s_memrealtime s[96:97]')
        P('s_barrier')
        self.srd(sWS, 82, WS_USED); self.srd(sWA, 66, 1572864); self.srd(sWoA, 68, 524288)
        self.srd(sWB, 72, 1572864); self.srd(sPhi, 74, 16384); self.srd(sWoB, 76, 524288); self.srd(sOut, 78, 2097152)
        P(f"""s_mul_i32 {sr(sT0)}, {sr(sHS)}, 3
s_xor_b32 {sr(sQT)}, {sr(sMT)}, {sr(sT0)}
s_mov_b32 {sr(sBUD)}, 0x100000
s_mov_b32 {sr(sLO)}, 0xffff
s_mov_b32 {sr(sLO+1)}, 0xffff
s_mov_b32 {sr(sH0)}, -1
s_mov_b32 {sr(sH0+1)}, 0
s_mov_b32 {sr(sFAST)}, 0
s_mov_b32 {sr(sDM)}, 0
s_mov_b32 {sr(sLOG2E)}, {f2u(LOG2E):#x}
s_mov_b32 {sr(sPERM)}, 0x07060302
s_lshl_b32 {sr(sS0)}, {sr(sS0)}, 13
s_getreg_b32 {sr(sOWNF)}, hwreg(HW_REG_XCC_ID, 0, 4)
v_lshrrev_b32 {vr(vH)}, 5, {vr(vLANE)}
v_and_b32 {vr(vT)}, 31, {vr(vLANE)}
v_lshlrev_b32 {vr(vL4)}, 2, {vr(vLANE)}
v_mov_b32 {vr(vSTAMP)}, 0
v_bfe_u32 {vr(vTR1)}, {vr(vLANE)}, 2, 2
v_lshl_add_u32 {vr(vTR1)}, {vr(vH)}, 2, {vr(vTR1)}
v_lshlrev_b32 {vr(vTR2)}, 6, {vr(vTR1)}
v_bfe_u32 {vr(vTR1)}, {vr(vLANE)}, 4, 1
v_lshl_add_u32 {vr(vTR2)}, {vr(vTR1)}, 5, {vr(vTR2)}
v_and_b32 {vr(vTR1)}, 3, {vr(vLANE)}
v_lshl_add_u32 {vr(vTR2)}, {vr(vTR1)}, 3, {vr(vTR2)}
v_lshl_add_u32 {vr(vTR1)}, {vr(vH)}, 8, {vr(vTR2)}
v_add_u32 {vr(vTR1)}, {LDS_WQ}, {vr(vTR1)}
v_add_u32 {vr(vTR2)}, {LDS_WO}, {vr(vTR2)}
s_lshl_b32 {sr(sT0)}, {sr(sMT)}, 7
s_add_u32 {sr(sT0)}, {sr(sT0)}, {LDS_RSTD}
v_lshl_add_u32 {vr(vRA)}, {vr(vT)}, 2, {sr(sT0)}
v_lshl_add_u32 {vr(vRB)}, {vr(vH)}, 4, {sr(sT0)}
v_lshlrev_b32 {vr(vFD)}, 2, {vr(vH)}
v_sub_u32 {vr(vFD)}, {vr(vT)}, {vr(vFD)}
v_cvt_f32_i32 {vr(vFD)}, {vr(vFD)}
v_mul_f32 {vr(vFD)}, {f2u(2.0**100):#x}, {vr(vFD)}
s_waitcnt lgkmcnt(0)
s_and_b32 {sr(sTAG)}, {sr(sTAG)}, -16
s_add_u32 {sr(sTAG)}, {sr(sTAG)}, {TAGC:#x}
s_or_b32 {sr(sOWNF)}, {sr(sOWNF)}, {sr(sTAG)}
s_lshl_b32 {sr(sT0)}, {sr(sR)}, 2
s_add_u32 {sr(sT0)}, {sr(sT0)}, {sr(sQT)}
s_lshl_b32 {sr(sT0)}, {sr(sT0)}, 5
s_lshl_b32 {sr(sT1)}, {sr(sC)}, 1
s_add_u32 {sr(sT0)}, {sr(sT0)}, {sr(sT1)}
s_add_u32 {sr(sT0)}, {sr(sT0)}, {sr(sHS)}
s_lshl_b32 {sr(sOW)}, {sr(sT0)}, 10
s_lshl_b32 {sr(sOF)}, {sr(sT0)}, 2
s_lshr_b32 {sr(sT0)}, {sr(sMT)}, 1
s_add_u32 {sr(sT0)}, {sr(sT0)}, {sr(sR)}
s_sub_u32 {sr(sT0)}, {sr(sT0)}, 2
s_cselect_b32 {sr(sHAS)}, 0, 1
s_lshl_b32 {sr(sT0)}, {sr(sT0)}, 1
s_and_b32 {sr(sT1)}, {sr(sMT)}, 1
s_add_u32 {sr(sT0)}, {sr(sT0)}, {sr(sT1)}
s_lshl_b32 {sr(sT0)}, {sr(sT0)}, 5
s_add_u32 {sr(sT0)}, {sr(sT0)}, {sr(sC)}
s_mul_i32 {sr(sHB)}, {sr(sT0)}, {KV_REC}
s_cmp_lt_u32 {sr(sQT)}, 2
s_cselect_b32 {sr(sHAS)}, {sr(sHAS)}, 0
s_cmp_eq_u32 {sr(sR)}, 1
s_cselect_b32 {sr(sT0)}, 4, {sr(sQT)}
s_sub_u32 {sr(sC2)}, 8, {sr(sT0)}
s_lshl_b32 {sr(sP2)}, {sr(sT0)}, 12
s_add_u32 {sr(sP2)}, {sr(sP2)}, {LDS_T}
s_mul_i32 {sr(sOWN)}, {sr(sQT)}, {OWN_ST}
s_add_u32 {sr(sOWN)}, {sr(sOWN)}, {LDS_OWN}
s_lshl_b32 {sr(sT0)}, {sr(sRT)}, 4
s_add_u32 {sr(sT0)}, {sr(sT0)}, {sr(sC)}
s_mul_i32 {sr(sKVW)}, {sr(sT0)}, {KV_REC}
s_lshl_b32 {sr(sXW)}, {sr(sT0)}, 11
s_lshl_b32 {sr(sSW)}, {sr(sT0)}, 8
s_lshl_b32 {sr(sXF)}, {sr(sRT)}, 7
s_lshl_b32 {sr(sRB)}, {sr(sRT)}, 15""")
        self.stamp(0, 'start')
        if self.stamps:
            self.stamp_names.update({32: 'pre karg', 43: 'karg', 51: 'x issued'})
            P(f'v_writelane_b32 {vr(vSTAMP)}, s92, 32\nv_writelane_b32 {vr(vSTAMP)}, s94, 43\nv_writelane_b32 {vr(vSTAMP)}, s96, 51')
            self.stamp_names[60] = 'entry'; P(f'v_writelane_b32 {vr(vSTAMP)}, s98, 60\ns_mov_b32 s99, 0\ns_mov_b32 s101, 0')
        P(f's_cmp_eq_u32 {sr(sHS)}, 0\ns_cbranch_scc1 L_main_0')
        lh = P.newlabel('Lx'); lt = P.newlabel('Lx')
        P(f"""s_lshl_b32 {sr(sT2)}, {sr(sR)}, 7
s_lshl_b32 {sr(sT3)}, {sr(sC)}, 2
s_add_u32 {sr(sT2)}, {sr(sT2)}, {sr(sT3)}
s_add_u32 {sr(sT2)}, {sr(sT2)}, {OFF_XFLAG}
s_cmp_lg_u32 {sr(sMT)}, 0
s_cbranch_scc1 {lh}""")
        self.flag(sT2, sOWNF, True)
        P.label(lh)
        if o['pf'] in (1, 2): self.coop_prefetch(0, o['pf'])
        if not o['wearly']: dma_addr()
        P(f"""v_add_u32 {vr(vCH)}, {sr(sLA)}, {vr(vL16)}
v_subrev_u32 {vr(vCS)}, {LDS_WO}, {vr(vTR2)}
v_add_u32 {vr(vCS)}, {sr(sLA)}, {vr(vCS)}
v_lshl_add_u32 v31, {vr(vH)}, 8, {vr(vCS)}""")
        for i in range(4): P(f'v_mov_b32 {vr(ONES+i)}, 0x3f803f80')
        P(f'v_lshlrev_b32 v30, 10, {vr(vH)}\nv_add_u32 v30, {LDS_ONES}, v30\nds_write_b128 v30, {vr(ONES,4)}')
        self.csp_waddr(0)
        P(f'v_lshl_add_u32 v30, {vr(vH)}, 9, v28')
        for op in self.mask_ops(0) + self.mask_ops(1): P(op)
        if o['tlb']:
            lw = P.newlabel('Lx')
            P(f"""s_cmp_lg_u32 {sr(sMT)}, 1
s_cbranch_scc1 {lw}
v_and_b32 v68, 15, {vr(vLANE)}
v_bfe_u32 v69, {vr(vLANE)}, 4, 1
s_lshl_b32 {sr(sT0)}, {sr(sR)}, 2
s_sub_u32 {sr(sT0)}, {sr(sT0)}, 8
v_min_u32 v70, 11, v68
v_add_u32 v70, {sr(sT0)}, v70
v_max_i32 v70, 0, v70
v_lshl_add_u32 v70, v70, 4, {sr(sC)}
v_lshl_add_u32 v70, v69, 10, v70
v_mul_u32_u24 v70, {KV_REC}, v70
v_add_u32 v70, {OFF_KV + KV_REC - 128}, v70
s_lshl_b32 {sr(sT0)}, {sr(sC)}, 4
v_add_u32 v68, {sr(sT0)}, v68
v_lshl_add_u32 v68, v69, 8, v68
v_mul_u32_u24 v68, {KP_REC}, v68
v_add_u32 v68, {OFF_KP + KP_REC - 128}, v68
v_cndmask_b32 v68, v68, v70, {sr(sH0,2)}
buffer_load_dword v26, v68, {sr(sWS,4)}, 0 offen""")
            P.label(lw)
        if o['wgo']: self.lds_wait(C_WGO, o['wgon'])
        self.stamp(2, 'x g0 / W go')
        PRE = o['pre']; MCS = o['mcs']; CA = {1: 32, 2: 64, 0: 32}
        for st in range(o['wearly'], PRE): self.dma_w(0, (1, 2), (st,)); avm.issue(st, 4)
        qs = [[0, 1], [2, 3]] if PRE == 2 else ([[0, 1], [2, 3], []] if PRE == 3 else [[], [0, 1], [2, 3], []])
        first_q = True
        if not MCS:
            for i in range(4): P(f'v_mov_b32 {vr(64+i)}, 0')
        if o['il']: qs = [[]]*4
        for st in range(4):
            if st + PRE < 4: self.dma_w(0, (1, 2), (st + PRE,)); avm.issue(st + PRE, 4)
            else:
                q = qs.pop(0)
                if q:
                    if first_q:
                        self.lds_wait(C_XDONE, 4); first_q = False
                        if o['apr']: P('s_setprio 3')
                    self.dma_w(0, (0,), q); avm.issue('q', 4)
            P(waitstr(vm=avm.need(st)))
            self.stamp((15, 23, 29, 1)[st], ('x g3 / W st0', 'x g5 / W st1', 'S0 / W st2', 'x0 / W st3')[st])
            self.lds_signal(C_ST + st)
            ch = [(nt, 2*st + e) for nt in (1, 2) for e in range(2)]
            for nt, u in ch:
                r_ = PARK[nt] + 4*u; of = NT_LDS[nt] + cho(u)
                P(f'ds_read_b64_tr_b16 {vr(r_,2)}, v31 offset:{of}\nds_read_b64_tr_b16 {vr(r_+2,2)}, v31 offset:{of+256}')
            for k, (nt, u) in enumerate(ch):
                P(f's_waitcnt lgkmcnt({6-2*k})')
                if MCS: self.mfma(CA[nt], ONES, PARK[nt] + 4*u, None if u == 0 else CA[nt])
                else: self.valu_sum(PARK[nt] + 4*u, 64 + 2*(nt - 1))
        if MCS: P(f'ds_write_b32 v28, {vr(CA[1])} offset:512\nds_write_b32 v28, {vr(CA[2])} offset:1024')
        else: P('v_add_f32 v64, v64, v65\nv_add_f32 v66, v66, v67\nv_permlane32_swap_b32 v64, v66\nv_add_f32 v64, v64, v66\nds_write_b32 v30, v64 offset:512')
        self.lds_signal(C_CS, wait=False)
        if o['apr'] == 1: P('s_setprio 0')
        self.stamp(14, 'S3 / W done')
        if o['il']:
            self.lds_wait(C_CSQ, 4, 1); self.dma_w(0, (0,))
            self.lds_wait(C_XDONE, 4, 1)
        if o['clr']: self.hello_load()
        if o['wo_at'] == 0: self.dma_w(0, ('o',))
        P(f'v_add_u32 v31, {LDS_WQ}, v31\ns_waitcnt vmcnt({8 if o["wo_at"] == 0 else 0})')
        self.lds_signal(C_Q)
        self.stamp(4, 'Q done')
        if o['wo_at'] == 1: self.dma_w(0, ('o',))
        for u0 in (0, 4):
            for u in range(u0, u0 + 4):
                r_ = PARK[0] + 4*u
                P(f'ds_read_b64_tr_b16 {vr(r_,2)}, v31 offset:{cho(u)}\nds_read_b64_tr_b16 {vr(r_+2,2)}, v31 offset:{cho(u)+256}')
            for k, u in enumerate(range(u0, u0 + 4)):
                P(f's_waitcnt lgkmcnt({6-2*k})')
                if o['qcv']:
                    if u == 0: P('v_mov_b32 v64, 0\nv_mov_b32 v65, 0')
                    self.valu_sum(PARK[0] + 4*u, 64)
                else: self.mfma(CA[0], ONES, PARK[0] + 4*u, None if u == 0 else CA[0])
        if o['qcv']: P('v_add_f32 v64, v64, v65\nv_mov_b32 v66, v64\nv_permlane32_swap_b32 v64, v66\nv_add_f32 v64, v64, v66\nds_write_b32 v28, v64')
        else: P(f'ds_write_b32 v28, {vr(CA[0])}')
        self.lds_signal(C_CSQ, wait=False)
        if o['plds']:
            lf = P.newlabel('Lx')
            P(f's_cmp_lg_u32 {sr(sMT)}, 0\ns_cbranch_scc1 {lf}\ns_mov_b32 m0, {LDS_PHI}\ns_lshl_b32 {sr(sT0)}, {sr(sC)}, 10\nbuffer_load_dwordx4 {vr(vL16)}, {sr(sPhi,4)}, {sr(sT0)} offen lds')
            P.label(lf)
        P(f"""s_cmp_lg_u32 {sr(sMT)}, {2 if o['pfw'] else 9}
s_cbranch_scc1 {lt}
v_lshlrev_b32 v6, 7, {vr(vLANE)}
s_mul_i32 {sr(sT0)}, s2, {48*128}
buffer_load_dword v26, v6, {sr(sWB,4)}, {sr(sT0)} offen
v_and_b32 v6, 0x780, v6
s_lshl_b32 {sr(sT0)}, s2, 11
buffer_load_dword v26, v6, {sr(sWoB,4)}, {sr(sT0)} offen""")
        P.label(lt)
        if o['pfb'] == 1: self.coop_prefetch(1, 1)
        P('s_branch L_aux_0')

    def coop_prefetch(self, typ, mode):
        P = self.P; l1 = P.newlabel('Lx'); l2 = P.newlabel('Lx')
        if mode == 1: P(f's_cmp_lg_u32 {sr(sMT)}, 1\ns_cbranch_scc1 {l2}')
        offs = (128,) if mode == 1 else (128, 0)
        P(f"""v_lshlrev_b32 v5, 10, {vr(vLANE)}
s_lshr_b32 {sr(sT0)}, s2, 3
s_lshl_b32 {sr(sT0)}, {sr(sT0)}, 16
s_lshl_b32 {sr(sT1)}, {sr(sMT)}, 8
s_add_u32 {sr(sT0)}, {sr(sT0)}, {sr(sT1)}
s_cmp_ge_u32 s2, 192
s_cbranch_scc1 {l1}""")
        for of in offs: P(f'buffer_load_dword v26, v5, {sr((sWA, sWB)[typ],4)}, {sr(sT0)} offen offset:{of}')
        P(f's_branch {l2}'); P.label(l1)
        P(f's_sub_u32 {sr(sT0)}, {sr(sT0)}, {24 << 16}')
        for of in offs: P(f'buffer_load_dword v26, v5, {sr((sWoA, sWoB)[typ],4)}, {sr(sT0)} offen offset:{of}')
        P.label(l2)

    def valu_sum(self, frag, acc):
        for i in range(4):
            self.P(f'v_lshlrev_b32 v68, 16, {vr(frag+i)}\nv_and_b32 v69, 0xffff0000, {vr(frag+i)}\nv_add_f32 {vr(acc)}, {vr(acc)}, v68\nv_add_f32 {vr(acc+1)}, {vr(acc+1)}, v69')

    def x0_load(self, g):
        P = self.P
        P(f's_add_u32 m0, {sr(sLA)}, {(g % (3 if self.o["il"] else 4))*4096}\ns_add_u32 {sr(sT3)}, {sr(sLB)}, {sr(sLR)}')
        for j in range(4): P(f'buffer_load_dwordx4 {vr(28+j)}, {sr(sX0,4)}, {sr(sT3)} offen offset:{j*1024} lds')
        P(f's_add_u32 {sr(sLR)}, {sr(sLR)}, 128\ns_and_b32 {sr(sLR)}, {sr(sLR)}, 0x3ff')
        self.vm.issue(('x', g), 4)

    def code_prefetch(self, label):
        P = self.P; lc = P.newlabel('Lx')
        if not self.o['cpl']: return
        P(f"""s_cmp_lg_u32 {sr(sMT)}, 3
s_cbranch_scc1 {lc}
s_lshl_b32 {sr(sT0)}, {sr(sC)}, 10
s_add_u32 {sr(sT0)}, {sr(sT0)}, ({label} - {NAME}_kernel)
s_cmp_ge_u32 {sr(sT0)}, CODE_BYTES
s_cbranch_scc1 {lc}
v_add_u32 v28, {sr(sT0)}, {vr(vL16)}
v_mov_b32 v29, s85
v_add_co_u32 v28, vcc, s84, v28
v_addc_co_u32 v29, vcc, 0, v29, vcc
global_load_dword v26, v[28:29], off""")
        P.label(lc)

    def wphi_load(self, B=96):
        P = self.P; a, t = vr(B + 8), vr(B + 9)
        P(f"""s_lshl_b32 {sr(sT0)}, {sr(sC)}, 1
s_add_u32 {sr(sT0)}, {sr(sT0)}, {sr(sHS)}
s_lshl_b32 {sr(sT0)}, {sr(sT0)}, 9
v_bfe_u32 {a}, {vr(vLANE)}, 3, 2
v_and_b32 {t}, 3, {vr(vLANE)}
v_lshl_add_u32 {a}, {a}, 2, {t}
v_lshlrev_b32 {a}, 1, {a}
v_lshrrev_b32 {t}, 5, {vr(vLANE)}
v_lshl_add_u32 {a}, {t}, 7, {a}""")
        if self.o['plds']:
            P(f's_and_b32 {sr(sT0)}, {sr(sT0)}, 512\ns_add_u32 {sr(sT0)}, {sr(sT0)}, {LDS_PHI}\nv_add_u32 {a}, {sr(sT0)}, {a}')
        for j in range(8):
            d = (j if j < 4 else 8 + j - 4)
            if self.o['plds']: P(f'ds_read_u16 {vr(B+j)}, {a} offset:{d*32}'); continue
            P(f'buffer_load_ushort {vr(B+j)}, {a}, {sr(sPhi,4)}, {sr(sT0)} offen offset:{d*32}')

    def wphi_pack(self, B=96):
        ops = [f'v_lshl_or_b32 {vr(WPHI+p)}, {vr(B+2*p+1)}, 16, {vr(B+2*p)}' for p in range(4)]
        ops += [f'v_bfe_i32 {vr(B)}, {vr(vLANE)}, 2, 1', f'v_and_b32 {vr(B)}, 0x80008000, {vr(B)}']
        return ops + [f'v_xor_b32 {vr(WPHI+p)}, {vr(B)}, {vr(WPHI+p)}' for p in range(4)]

    def dma_w(self, typ, nts, stages=range(4)):
        P = self.P; wo = nts == ('o',)
        srd = (sWoA, sWoB)[typ] if wo else (sWA, sWB)[typ]
        for st in stages:
            P(f's_add_u32 {sr(sT0)}, {sr(sG0)}, {st*0x20000}\ns_and_b32 {sr(sT0)}, {sr(sT0)}, 0x7ffff')
            if not wo: P(f's_mul_i32 {sr(sT0)}, {sr(sT0)}, 3')
            late = wo or typ == 1
            if late: P(f's_add_u32 {sr(sT3)}, {sr(sS0)}, {st*8192}\ns_and_b32 {sr(sT3)}, {sr(sT3)}, 0x7fff\ns_add_u32 {sr(sT3)}, {sr(sT3)}, {sr(sLA)}')
            for e in range(2):
                for nt in nts:
                    P(f's_add_u32 m0, {sr(sT3)}, {NT_LDS[nt] + e*1024}' if late else f's_add_u32 m0, {sr(sLA)}, {NT_LDS[nt] + cho(2*st + e)}')
                    P(f's_add_u32 {sr(sT1)}, {sr(sT0)}, {e*16384 if wo else e*49152 + nt*1024}')
                    P(f'buffer_load_dwordx4 {vr(vDO if wo else vDW)}, {sr(srd,4)}, {sr(sT1)} offen lds')

    def csp_waddr(self, typ):
        self.P(f"""s_lshl_b32 {sr(sT0)}, {sr(sMT)}, 2
s_add_u32 {sr(sT0)}, {sr(sT0)}, {LDS_CSP + typ*1536}
v_and_b32 v28, 31, {vr(vLANE)}
v_lshl_add_u32 v28, v28, 4, {sr(sT0)}""")

    def chunk_addr(self, region):
        if region < 65536: return vCH, region
        self.P(f'v_add_u32 {vr(vT0)}, {region}, {vr(vCH)}'); return vT0, 0

    def lds_to_regs(self, region, dst, tr=False):
        if tr:
            self.P(f'v_add_u32 v29, {region}, {vr(vCS)}')
            for u in range(8): self.P(f'ds_read_b64_tr_b16 {vr(dst+4*u,2)}, v29 offset:{cho(u)}\nds_read_b64_tr_b16 {vr(dst+4*u+2,2)}, v29 offset:{cho(u)+512}')
            return
        a, o = self.chunk_addr(region)
        for u in range(8): self.P(f'ds_read_b128 {vr(dst+4*u,4)}, {vr(a)} offset:{o+cho(u)}')

    def regs_to_lds(self, region, src, rot=False):
        if rot:
            if region >= 65536:
                for st in range(4): self.P(f'v_add_u32 {vr(64+st)}, {region}, {vr(64+st)}')
            for u in range(8): self.P(f'ds_write_b128 {vr(64 + (u >> 1))}, {vr(src+4*u,4)} offset:{(region if region < 65536 else 0) + (u & 1)*1024}')
            return
        a, o = self.chunk_addr(region)
        for u in range(8): self.P(f'ds_write_b128 {vr(a)}, {vr(src+4*u,4)} offset:{o+cho(u)}')

    def relayout(self, typ, nts, tmp=64, ntmp=8):
        P = self.P
        if nts != ('o',): self.csp_waddr(typ)
        for k, nt in enumerate(nts):
            region = NT_LDS[nt]
            P(f'v_add_u32 v29, {region}, {vr(vCS)}')
            acc = ACC0 if k % 2 == 0 else ACC1
            lg = Tracker(15)
            reg = lambda u: tmp + 4*(u % ntmp)
            for u0 in range(0, 8, 4):
                for u in range(u0, u0 + 4):
                    P(f'ds_read_b64_tr_b16 {vr(reg(u),2)}, v29 offset:{cho(u)}\nds_read_b64_tr_b16 {vr(reg(u)+2,2)}, v29 offset:{cho(u)+512}'); lg.issue(u, 2)
                for u in range(u0, u0 + 4):
                    P(waitstr(lg=lg.need(u)))
                    if nt != 'o': self.mfma(acc, ONES, reg(u), None if u == 0 else acc)
        for k, nt in enumerate(nts):
            if nt != 'o': P(f'ds_write_b32 v28, {vr(ACC0 if k % 2 == 0 else ACC1)} offset:{nt*512}')
        P('s_waitcnt lgkmcnt(0)')

    def swap_region(self, nt, save, tr=False):
        P = self.P
        if save:
            self.lds_to_regs(NT_LDS[nt], 32, tr); P('s_waitcnt lgkmcnt(0)')
        self.regs_to_lds(NT_LDS[nt], PARK[nt], tr and nt != 'o'); P('s_waitcnt lgkmcnt(0)')
        if save:
            for i in range(32): P(f'v_mov_b32 {vr(PARK[nt]+i)}, {vr(32+i)}')

    def unpack_res(self):
        for p in range(8):
            self.P(f'v_lshlrev_b32 {vr(ACC0+2*p)}, 16, {vr(XRES+p)}\nv_and_b32 {vr(ACC0+2*p+1)}, 0xffff0000, {vr(XRES+p)}')

    def rowmajor_addr(self, dst, tmp, sdst):
        self.P(f"""v_and_b32 {vr(dst)}, 31, {vr(vLANE)}
v_lshlrev_b32 {vr(dst)}, 10, {vr(dst)}
v_lshrrev_b32 {vr(tmp)}, 5, {vr(vLANE)}
v_lshl_add_u32 {vr(dst)}, {vr(tmp)}, 4, {vr(dst)}
s_lshl_b32 {sr(sdst)}, {sr(sC)}, 6
s_add_u32 {sr(sdst)}, {sr(sdst)}, {sr(sRB)}""")

    def publish_x_addr(self, L):
        if L == self.nl: return self.rowmajor_addr(vKA, vVA, sK0)
        self.P(f's_add_u32 {sr(sK1)}, {sr(sSW)}, {OFF_ST}')
        if L == 1 or self.o['hx']: self.P(f's_lshl_b32 {sr(sK2)}, {sr(sC)}, 2\ns_add_u32 {sr(sK2)}, {sr(sK2)}, {sr(sXF)}\ns_add_u32 {sr(sK2)}, {sr(sK2)}, {OFF_XFLAG + 0x2000}')

    def set_par(self, reg, par):
        return f'v_or_b32 {vr(reg)}, 1, {vr(reg)}' if par else f'v_and_b32 {vr(reg)}, -2, {vr(reg)}'

    def round_par(self, dst, src, par):
        if par: return f'v_and_b32 {vr(dst)}, 0xfffe0000, {vr(src)}\nv_or_b32 {vr(dst)}, 0x10000, {vr(dst)}'
        return f'v_add_u32 {vr(dst)}, 0x10000, {vr(src)}\nv_and_b32 {vr(dst)}, 0xfffe0000, {vr(dst)}'

    def acc_par(self, a, b, par):
        return f'v_bitop3_b32 {vr(vPD)}, {vr(vPD)}, {vr(a)}, {vr(b)} bitop3:0x80' if par else f'v_or3_b32 {vr(vPD)}, {vr(vPD)}, {vr(a)}, {vr(b)}'

    def test_par(self, par):
        return f'v_and_b32 {vr(vCK)}, 1, {vr(vPD)}\nv_cmp_ne_u32 vcc, {par}, {vr(vCK)}'

    def hello_load(self):
        self.P(f'v_and_b32 {vr(vPA)}, 60, {vr(vL4)}\ns_lshl_b32 {sr(sK2)}, {sr(sR)}, 7\ns_add_u32 {sr(sK2)}, {sr(sK2)}, {OFF_XFLAG}\nbuffer_load_dword v25, {vr(vPA)}, {sr(sWS,4)}, {sr(sK2)} offen sc1')

    def hello_check(self):
        P = self.P; okl = P.newlabel('Lx')
        P(f'v_mov_b32 {vr(vPD)}, v25\nv_and_b32 {vr(vT0)}, -16, v25\nv_cmp_ne_u32 vcc, {sr(sTAG)}, {vr(vT0)}\ns_cbranch_vccz {okl}')
        self.poll(sK2, masked=True)
        P.label(okl)
        if not self.force_safe:
            P(f"""v_cmp_ne_u32 vcc, {sr(sOWNF)}, {vr(vPD)}
s_cmp_eq_u64 vcc, 0
s_cselect_b32 {sr(sFAST)}, 1, 0
v_mov_b32 {vr(vT0)}, {sr(sFAST)}
ds_write_b32 {vr(vCNT)}, {vr(vT0)} offset:44""")

    def clear_lines(self, Z):
        P = self.P
        P(f's_add_u32 {sr(sT0)}, {sr(sXW)}, {OFF_O}\ns_add_u32 {sr(sT1)}, {sr(sSW)}, {OFF_ST}')
        def clear(sc1):
            m = ' sc1' if sc1 else ''
            for of in (0, 1024): P(f'buffer_store_dwordx4 {vr(Z,4)}, {vr(vL16)}, {sr(sWS,4)}, {sr(sT0)} offen offset:{of}{m}')
            for of in (0, 1024): P(f'buffer_store_dwordx4 {vr(Z,4)}, {vr(vL16)}, {sr(sOut,4)}, {sr(sXW)} offen offset:{of}{m}')
            P(f'buffer_store_dword {vr(Z)}, {vr(vL4)}, {sr(sWS,4)}, {sr(sT1)} offen{m}')
        self.two_way(clear)

    def hint_prep(self, r, add):
        return [f'v_cmp_gt_u32 vcc, {sr(sFAST)}, {vr(vLANE)}', f'v_add_u32 {vr(r)}, {sr(sTAG)}, {add}', f'v_cndmask_b32 {vr(r+1)}, {OOB:#x}, {vr(vLANE)}, vcc']

    def hint(self, r, soff):
        self.P(f'buffer_store_dword {vr(r)}, {vr(r+1)}, {sr(sWS,4)}, {sr(soff)} offen')

    def first_hop(self, base_off, foff, mask, par=None, add=0, pre=None):
        self.P(f'v_and_b32 v110, {mask}, {vr(vL4)}\ns_add_u32 {sr(sT2)}, {sr(sXF)}, {foff}')
        self.frag_setup(base_off)
        if add: self.P(f's_add_u32 {sr(sT0)}, {sr(sTAG)}, {add}')
        NP = self.o['hp']
        if NP:
            P = self.P; lp = P.newlabel('Lpoll'); dn = P.newlabel('Lpolld'); val = sT0 if add else sTAG
            if pre is not None:
                P(f's_waitcnt vmcnt({pre})\nv_cmp_ne_u32 vcc, {sr(val)}, v103\ns_cbranch_vccz {dn}')
            ld = lambda i: P(f'buffer_load_dword {vr(104 + i)}, v110, {sr(sWS,4)}, {sr(sT2)} offen sc1')
            for i in range(NP):
                ld(i); P(f's_sleep {self.o["hs"]}')
            P.label(lp)
            for i in range(NP + 1):
                ld((i + NP) % (NP + 1))
                P(f's_waitcnt vmcnt({NP})\nv_cmp_ne_u32 vcc, {sr(val)}, {vr(104 + i)}\ns_cbranch_vccz {dn}')
            P(f's_sub_u32 {sr(sBUD)}, {sr(sBUD)}, 1\ns_cbranch_scc0 {lp}\ns_mov_b32 {sr(sBUD)}, 0')
            P.label(dn)
        else: self.poll(sT2, areg=110, val=sT0 if add else sTAG)
        if par is not None: self.P(f'v_mov_b32 {vr(vPD)}, {par}')
        return 0

    def probe(self, srd, base_off, par, nwin):
        P = self.P; lp = P.newlabel('Lprobe'); dn = P.newlabel('Lprobed'); S = min(self.o['specx' if srd == sOut else 'spec'], nwin)
        self.frag_setup(base_off)
        if self.o['pp']:
            A_, B_, AD_ = 108, 109, vPA
            if srd == sOut:
                AD_ = 110; P(f'v_or_b32 v110, 1024, {vr(vPA)}')
            ld = lambda r: P(f'buffer_load_dword {vr(r)}, {vr(AD_)}, {sr(srd,4)}, {sr(sLB)} offen sc1')
            ld(A_); P(f's_sleep {self.o["pp"]}')
            P.label(lp)
            for cur, nxt in ((A_, B_), (B_, A_)):
                ld(nxt)
                P(f's_waitcnt vmcnt(1)\nv_and_b32 {vr(vPD)}, 1, {vr(cur)}\nv_cmp_ne_u32 vcc, {par}, {vr(vPD)}\ns_cbranch_vccz {dn}')
            P(f's_sub_u32 {sr(sBUD)}, {sr(sBUD)}, 1\ns_cbranch_scc0 {lp}\ns_mov_b32 {sr(sBUD)}, 0')
            P.label(dn)
            return 0
        if self.o['pst'] and srd == sOut: P(f'v_lshrrev_b32 {vr(STAT+15)}, 2, {vr(vLANE)}\nv_lshlrev_b32 {vr(STAT+15)}, 8, {vr(STAT+15)}')
        P.label(lp)
        if self.o['pst'] and srd == sOut:
            P(f'buffer_load_dword {vr(vPD)}, {vr(STAT+15)}, {sr(sWS,4)}, {sr(sT1)} offen offset:252 sc1')
        elif self.o['pw'] == 16 and srd == sOut:
            P(f'v_or_b32 {vr(vPD)}, 1024, {vr(vPA)}\nbuffer_load_dword {vr(vPD)}, {vr(vPD)}, {sr(srd,4)}, {sr(sLB)} offen sc1')
        else: P(f'buffer_load_dword {vr(vPD)}, {vr(vPA)}, {sr(srd,4)}, {sr(sLB)} offen sc1')
        for ks in range(S): self.frag_load(srd, ks)
        P(f's_waitcnt vmcnt({S})')
        P(self.test_par(par))
        P(f's_cbranch_vccz {dn}')
        if self.o['em']: P('s_mov_b64 exec, vcc')
        if self.o['psleep']: P(f's_sleep {self.o["psleep"]}')
        if S: self.frag_setup(None)
        P(f's_sub_u32 {sr(sBUD)}, {sr(sBUD)}, 1\ns_cbranch_scc0 {lp}\ns_mov_b32 {sr(sBUD)}, 0')
        P.label(dn)
        if self.o['em']: P('s_mov_b64 exec, -1')
        return S

    def verify(self, par, redo):
        P = self.P; st = P.newlabel('Lver'); ct = P.newlabel('Lverc')
        P(self.test_par(par)); P(f's_cbranch_vccnz {st}')
        P.label(ct)
        self.stubs.append((st, redo, ct))

    def emit_stubs(self):
        P = self.P
        for ls, emit, le in self.ool:
            P.label(ls); emit(True); P(f's_branch {le}')
        for k, (st, redo, ct) in enumerate(self.stubs):
            P.label(st)
            if self.stamps: P(f's_add_u32 s101, s101, {1 << (2*k)}')
            P(f's_waitcnt vmcnt(0) lgkmcnt(0)\ns_sub_u32 {sr(sBUD)}, {sr(sBUD)}, 1\ns_cbranch_scc0 {redo}\ns_mov_b32 {sr(sBUD)}, 0\ns_branch {ct}')

    def probe_addr(self):
        if self.o['pw'] == 64:
            return f"""v_lshrrev_b32 {vr(vPA)}, 1, {vr(vLANE)}
v_lshlrev_b32 {vr(vPA)}, 10, {vr(vPA)}
v_and_b32 {vr(vCK)}, 1, {vr(vLANE)}
v_mad_u32_u24 {vr(vPA)}, {vr(vCK)}, {sr(sC1008)}, {vr(vPA)}"""
        if self.o['psp']:
            return f"""v_lshrrev_b32 {vr(vPA)}, 2, {vr(vLANE)}
v_add_u32 {vr(vPA)}, {sr(sC)}, {vr(vPA)}
v_and_b32 {vr(vPA)}, 7, {vr(vPA)}
v_lshlrev_b32 {vr(vPA)}, 7, {vr(vPA)}
v_lshrrev_b32 {vr(vCK)}, 1, {vr(vLANE)}
v_lshl_add_u32 {vr(vPA)}, {vr(vCK)}, 10, {vr(vPA)}"""
        return f'v_lshrrev_b32 {vr(vPA)}, 1, {vr(vLANE)}\nv_lshl_add_u32 {vr(vPA)}, {vr(vPA)}, 10, {sr(sC1008)}'

    def publish_x(self, L):
        P = self.P
        natural = (L % 2 == 0); T = XF; par = L & 1
        for p in range(8):
            src = ACC0 + 2*p
            if L < self.nl and not natural and p % 4 == 0:
                P(self.round_par(T + p, src, par)); src = T + p
            if L < self.nl and natural and p % 2 == 0:
                P(f'v_add_u32 {vr(T+p)}, v98, {vr(src)}\nv_and_b32 {vr(T+p)}, v99, {vr(T+p)}'); src = T + p
            P(f'v_cvt_pk_bf16_f32 {vr(T+p)}, {vr(src)}, {vr(ACC0+2*p+1)}')
        if natural:
            for a, b in SW4: P(f'v_permlane32_swap_b32 {vr(T+a)}, {vr(T+b)}')
        if L == self.nl:
            m = ['', ' nt', ' sc1'][self.o.get('outm', 0)]
            P(f'buffer_store_dwordx4 {vr(T,4)}, {vr(vKA)}, {sr(sOut,4)}, {sr(sK0)} offen{m}\nbuffer_store_dwordx4 {vr(T+4,4)}, {vr(vKA)}, {sr(sOut,4)}, {sr(sK0)} offen offset:32{m}')
            return
        P(self.set_par(T, par)); P(self.set_par(T + 4, par))
        def emit(sc1):
            m = ' sc1' if sc1 else (' nt' if self.o.get('nta') else '')
            P(f'buffer_store_dwordx4 {vr(T,4)}, {vr(vL16)}, {sr(sOut,4)}, {sr(sXW)} offen{m}')
            P(f'buffer_store_dwordx4 {vr(T+4,4)}, {vr(vL16)}, {sr(sOut,4)}, {sr(sXW)} offen offset:1024{m}')
            if (L > 1 or self.o['clr']) and self.o['hx'] == 1 and (sc1 or not self.o['ex'] or L == 1): self.flag(sK2, sTAG, sc1, add=L - 1)
            if L > 1 and self.o['prex']: P(f'buffer_load_dword v103, v111, {sr(sWS,4)}, {sr(sXF)} offen sc1')
            for k in range(4):
                P(f'v_pk_add_f32 {vr(64+2*k,2)}, {vr(ACC0+4*k,2)}, {vr(ACC0+4*k+2,2)}')
            P(f'v_pk_mul_f32 v[72:73], {vr(ACC0,2)}, {vr(ACC0,2)}\nv_pk_mul_f32 v[74:75], {vr(ACC0+2,2)}, {vr(ACC0+2,2)}')
            P('v_pk_add_f32 v[64:65], v[64:65], v[66:67]\nv_pk_add_f32 v[68:69], v[68:69], v[70:71]')
            for k in range(2, 8): P(f'v_pk_fma_f32 {vr(72+2*(k&1),2)}, {vr(ACC0+2*k,2)}, {vr(ACC0+2*k,2)}, {vr(72+2*(k&1),2)}')
            P('v_pk_add_f32 v[64:65], v[64:65], v[68:69]\nv_pk_add_f32 v[72:73], v[72:73], v[74:75]')
            P('v_add_f32 v64, v64, v65\nv_add_f32 v66, v72, v73\nv_permlane32_swap_b32 v64, v66\nv_add_f32 v64, v64, v66')
            P(self.set_par(64, par))
            P(f'buffer_store_dword v64, {vr(vL4)}, {sr(sWS,4)}, {sr(sK1)} offen{m}')
            if L == 1 and not self.o['clr']: self.flag(sK2, sTAG, sc1, wait='s_waitcnt vmcnt(0)')
            elif self.o['hx'] == 2: self.flag(sK2, sTAG, sc1, add=L - 1)
        self.two_way(emit)
        for p in range(8): P(f'v_cvt_pk_bf16_f32 {vr(XRES+p)}, {vr(ACC0+2*p)}, {vr(ACC0+2*p+1)}')

    def frag_setup(self, base_off):
        self.P(f"""s_and_b32 {sr(sT3)}, {sr(sC)}, 1
s_lshl_b32 {sr(sT3)}, {sr(sT3)}, 11
s_add_u32 {sr(sLB)}, {sr(sRB)}, {base_off}
v_add3_u32 v108, {sr(sT3)}, {vr(vL16)}, 0
s_lshr_b32 {sr(sLR)}, {sr(sC)}, 1
v_add_u32 v108, {sr(sLB)}, v108
s_lshl_b32 {sr(sLR)}, {sr(sLR)}, 12
v_xor_b32 v109, 2048, v108""")

    def frag_load(self, srd, ks, ring=32):
        P = self.P
        P(f'buffer_load_dwordx4 {vr(XF+4*(ks % ring),4)}, {vr(108 + ((ks >> 1) & 1))}, {sr(srd,4)}, {sr(sLR)} offen offset:{(ks&1)*1024} sc1')
        if ks < 28 and ks & 3 == 3: P(f's_add_u32 {sr(sLR)}, {sr(sLR)}, 4096\ns_and_b32 {sr(sLR)}, {sr(sLR)}, 0x7fff')
        self.vm.issue(('x', ks))

    def mask_ops(self, part, lean=False):
        ops = []; C = CDIAG if part == 0 else CFIRST; sg = -1.0 if part == 0 else 1.0
        if part == 0 and not lean:
            ops.append(f'v_mov_b32 {vr(VV)}, 0x3f803f80')
            for i in range(1, 8): ops.append(f'v_mov_b32 {vr(VV+i)}, {vr(VV)}')
        for i in range(16):
            ci = 8*(i//4) + i % 4
            if part == 0: ops.append(f'v_subrev_f32 {vr(C+i)}, {f2u(ci*2.0**100):#x}, {vr(vFD)}')
            else: ops.append(f'v_sub_f32 {vr(C+i)}, {f2u((ci-1)*2.0**100):#x}, {vr(vFD)}')
        for i in range(16): ops.append(f'v_min_f32 {vr(C+i)}, 0, {vr(C+i)}')
        if part == 0 and not lean:
            for i in range(16): ops.append(f'v_mov_b32 {vr(aO+i)}, 0')
        return ops

    def stats_final(self, typ):
        a, b = STAT, STAT + 1
        it = f"""v_mov_b32 {vr(b)}, {vr(a)}
v_mov_b32 {vr(XEXT+2)}, 0
v_mov_b32 {vr(XEXT+3)}, 0
v_permlane32_swap_b32 {vr(a)}, {vr(b)}
v_mul_f32 {vr(a)}, {f2u(1/512):#x}, {vr(a)}
v_mul_f32 {vr(b)}, {f2u(1/512):#x}, {vr(b)}
v_fma_f32 {vr(b)}, -{vr(a)}, {vr(a)}, {vr(b)}
v_max_f32 {vr(b)}, 0, {vr(b)}
v_add_f32 {vr(b)}, {f2u(1e-5):#x}, {vr(b)}
v_rsq_f32 {vr(vRSTD)}, {vr(b)}
v_cndmask_b32 {vr(a)}, 0, {vr(a)}, {sr(sH0,2)}
v_and_b32 {vr(a+2)}, 0xffff0000, {vr(a)}
v_sub_f32 {vr(a+3)}, {vr(a)}, {vr(a+2)}
v_cvt_pk_bf16_f32 {vr(XEXT)}, -{vr(a+2)}, -{vr(a+2)}
v_cvt_pk_bf16_f32 {vr(XEXT+1)}, -{vr(a+3)}, 0""".split('\n')
        it.append(('ds', 'rw', f'ds_write_b32 {vr(vRA)}, {vr(vRSTD)}'))
        for q in range(4): it.append(('ds', 'rt', f'ds_read_b128 {vr(STAT+4*q,4)}, {vr(vRB)} offset:{q*32}'))
        if typ == 1: it.append(f'v_mul_f32 {vr(vRSTD)}, {sr(sLOG2E)}, {vr(vRSTD)}')
        return it

    def wext_items(self, w, tag):
        return [('wlg', tag)] + f"""v_add_f32 {vr(w)}, {vr(w)}, {vr(w+1)}
v_add_f32 {vr(w+2)}, {vr(w+2)}, {vr(w+3)}
v_add_f32 {vr(w)}, {vr(w)}, {vr(w+2)}
v_and_b32 {vr(w+2)}, 0xffff0000, {vr(w)}
v_sub_f32 {vr(w+3)}, {vr(w)}, {vr(w+2)}
v_cvt_pk_bf16_f32 {vr(w)}, {vr(w+2)}, {vr(w+3)}
v_cvt_pk_bf16_f32 {vr(w+1)}, {vr(w+2)}, 0
v_mov_b32 {vr(w+2)}, 0
v_mov_b32 {vr(w+3)}, 0""".split('\n')

    def csp_addr(self, typ):
        self.P(f'v_and_b32 {vr(vT0)}, 0x1f0, {vr(vL16)}\nv_add_u32 {vr(vT0)}, {LDS_CSP + typ*1536}, {vr(vT0)}')

    def phi_addr(self):
        return f"""v_sub_u32 {vr(vVA)}, {vr(vKA)}, {vr(vL16)}
v_and_b32 {vr(vPD)}, 31, {vr(vLANE)}
v_lshl_add_u32 {vr(vVA)}, {vr(vPD)}, 5, {vr(vVA)}
v_lshrrev_b32 {vr(vPD)}, 5, {vr(vLANE)}
v_lshl_add_u32 {vr(vVA)}, {vr(vPD)}, 4, {vr(vVA)}""".split('\n')

    def main_kv(self, L):
        P = self.P; typ = L % 2; o = self.o; XD = o['xd']
        vm, lg = self.vm, self.lg
        V = L > 1 or (L == 1 and o['clr'])
        NR = 3; KVB = vL16 if L > 1 else PKV + 15
        if L == 1: P(f'v_subrev_u32 {vr(vTR1)}, {LDS_WO - LDS_WQ}, {vr(vTR2)}')
        if L == 2: P(f'v_add_u32 {vr(vTR1)}, {LDS_WQ}, {vr(vL16)}\nv_add_u32 {vr(vTR2)}, {LDS_WO}, {vr(vL16)}')
        if L < 2: P(f'v_subrev_u32 {vr(KVB)}, {LDS_WQ}, {vr(vTR1)}')
        def rdk(ks):
            self.w_read(RING + 8*(ks % NR), KVB, LDS_WK + ks*1024, L, ('k', ks))
        def rdv(ks):
            self.w_read(RING + 8*(ks % NR) + 4, KVB, LDS_WV + ks*1024, L, ('v', ks))
        csrd = [('ds', 'cs', f'ds_read_b128 {vr(WEXTK,4)}, {vr(vT0)} offset:512'), ('ds', 'cs', f'ds_read_b128 {vr(WEXTV,4)}, {vr(vT0)} offset:1024')]
        wext = self.wext_items(WEXTK, 'cs') + self.wext_items(WEXTV, 'cs')
        addr = [f'v_add_u32 {vr(vKA)}, {sr(sOWN)}, {vr(vL16)}']
        if typ == 0:
            La = L // 2
            addr += [f's_add_u32 {sr(sK0)}, {sr(sKVW)}, {OFF_KV + La*KV_L}', f's_add_u32 {sr(sK2)}, {sr(sK0)}, 4096']
        else:
            addr += self.phi_addr()
            if o['pw1']: addr += [f's_lshl_b32 {sr(sT0)}, {sr(sMT)}, 2', f'v_add_u32 {vr(PKV+8)}, {sr(sT0)}, {vr(vCNT)}', f'v_mov_b32 {vr(PKV+9)}, {TV_K[L]}']
        extras = []
        def pop(n):
            for _ in range(n):
                if extras: self.item(extras.pop(0))
        finld = f'buffer_load_dwordx2 {vr(STAT,2)}, {vr(STAT+2)}, {sr(sWS,4)}, {sr(sT1)} offen sc1'
        def fincheck():
            lp = P.newlabel('Lfin'); ct = P.newlabel('Lfinc')
            P(waitstr(vm=vm.need('st')))
            P(f'v_cmp_ne_u32 vcc, {sr(sM)}, {vr(STAT+1)}\ns_cbranch_vccnz {lp}')
            P.label(ct)
            def again(_):
                if self.stamps: P(f's_or_b32 s101, s101, {1 << (4 + 6*(L - 1))}')
                P(f'{finld}\ns_waitcnt vmcnt(0)\nv_cmp_ne_u32 vcc, {sr(sM)}, {vr(STAT+1)}\ns_cbranch_vccz {ct}')
                P(f's_sub_u32 {sr(sBUD)}, {sr(sBUD)}, 1\ns_cbranch_scc0 {lp}\ns_mov_b32 {sr(sBUD)}, 0')
            self.ool.append((lp, again, ct))
        D = (o['vlag'] if typ else o['vlaga']) if L else 0
        def vstep(kv):
            if kv == 32: return self.mfma(ACC1, XEXT, WEXTV, ACC1)
            P(waitstr(lg=lg.need(('v', kv))))
            self.mfma(ACC1, XF + 4*kv, RING + 8*(kv % NR) + 4, None if kv == 0 else ACC1)
            if kv + NR < 32: rdv(kv + NR)
        def kstep(ks, pre=None):
            b = RING + 8*(ks % NR)
            P(waitstr(vm=vm.need(('x', ks)) if L > 0 else None, lg=lg.need(('k', ks))))
            self.mfma(ACC0, b, XF + 4*ks, None if ks == 0 else ACC0)
            if pre: pre()
            if ks + NR < 32: rdk(ks + NR)
            if V and ks & 1 and ks > 1: P(self.acc_par(XF + 4*ks - 4, XF + 4*ks, L & 1))
            if L > 0 and ks + XD < 32 and ks >= 2: self.frag_load(sOut, ks + XD); pop(1)
            else: pop(3)
            if ks >= D: vstep(ks - D)
            if L > 0 and o['red'] and ks == o['rk0']:
                P(finld); vm.issue('st')
            if L > 0 and o['st0'] <= ks < o['st0'] + 8 and not o['red']:
                for i in range(2*(ks-o['st0']), 2*(ks-o['st0']) + 2):
                    P(f'buffer_load_dword {vr(STAT+i)}, {vr(vL4)}, {sr(sWS,4)}, {sr(sT1)} offen offset:{i*256} sc1'); vm.issue('st')
            pop(3)
        if L > 0 and not o['b0']:
            ok = P.newlabel('Lwr')
            P(f'v_cmp_gt_u32 vcc, {4*L}, {vr(vT0)}\ns_cbranch_vccz {ok}')
            self.lds_wait(C_WR, 4*L)
            P.label(ok)
            if L == 1 and o['bq']:
                P(f's_lshl_b32 {sr(sT0)}, {sr(sMT)}, 11\ns_add_u32 {sr(sT0)}, {sr(sT0)}, {LDS_WQ}\nv_add_u32 {vr(PKV)}, {sr(sT0)}, {vr(vL16)}')
                bqw = [('ds', 'bq', f'ds_write_b128 {vr(PKV)}, {vr(224+4*u,4)} offset:{cho(u)}') for u in range(8)]
                bqw.append(('ds', 'bq', f'v_mov_b32 {vr(vPD)}, 1\ns_mov_b64 exec, 1\nds_add_u32 {vr(vCNT)}, {vr(vPD)} offset:{4*C_Q}\ns_mov_b64 exec, -1'))
        self.csp_addr(typ)
        if L == 0:
            AD = PKV + 2; X0D = o['x0d']
            P(f"""v_bfe_u32 {vr(AD)}, {vr(vLANE)}, 1, 3
v_xor_b32 {vr(AD)}, {vr(AD)}, v64
v_lshlrev_b32 {vr(AD)}, 4, {vr(AD)}
v_lshl_add_u32 {vr(AD)}, v65, 7, {vr(AD)}
s_and_b32 {sr(sT0)}, {sr(sC)}, 1
s_lshl_b32 {sr(sT0)}, {sr(sT0)}, 6
v_xor_b32 {vr(AD)}, {sr(sT0)}, {vr(AD)}
v_add_u32 {vr(AD)}, {sr(sLA)}, {vr(AD)}
v_xor_b32 {vr(AD+1)}, 32, {vr(AD)}
v_xor_b32 {vr(AD+2)}, 64, {vr(AD)}
v_xor_b32 {vr(AD+3)}, 96, {vr(AD)}
s_mov_b32 {sr(sSEL0)}, 0x3f803f80""")
            for i in range(4): P(f'v_mov_b32 {vr(STAT+i)}, 0')
            for it in addr: self.item(it)
            for g in range(2, X0D): self.x0_load(g)
            if o['xst']:
                P(f"""v_mov_b32 {vr(PKV)}, {vr(AD)}
v_mov_b32 {vr(PKV+1)}, {vr(AD+1)}
s_lshr_b32 {sr(sT2)}, {sr(sC)}, 1
s_sub_u32 {sr(sT2)}, {sr(sT2)}, {sr(sROT)}
s_and_b32 {sr(sT2)}, {sr(sT2)}, 7""")
            def dots(g):
                for i in range(16):
                    r_ = XF + 16*g + i
                    P(f'v_dot2_f32_bf16 {vr(STAT+(i&1))}, {vr(r_)}, {sr(sSEL0)}, {vr(STAT+(i&1))}\nv_dot2_f32_bf16 {vr(STAT+2+(i&1))}, {vr(r_)}, {vr(r_)}, {vr(STAT+2+(i&1))}')
            stat_fold = [f'v_add_f32 {vr(STAT)}, {vr(STAT)}, {vr(STAT+1)}', f'v_add_f32 {vr(STAT+2)}, {vr(STAT+2)}, {vr(STAT+3)}',
                         f'v_permlane32_swap_b32 {vr(STAT)}, {vr(STAT+2)}', f'v_add_f32 {vr(STAT)}, {vr(STAT)}, {vr(STAT+2)}']
            LAG = o['il']
            if LAG:
                P(f'v_mov_b32 {vr(PKV+6)}, 1')
                sig = lambda idx: self.item(('ds', 'sig', f's_mov_b64 exec, 1\nds_add_u32 {vr(vCNT)}, {vr(PKV+6)} offset:{4*idx}\ns_mov_b64 exec, -1'))
                lg.reset()
                def ks0(ks):
                    nonlocal extras
                    if ks == 0:
                        self.lds_check(C_ST, 4)
                        self.stamp(29, 'S0 / W st2')
                        for k in range(NR): rdk(k); rdv(k)
                    pre = None; st = ks // 8 + 1
                    if ks % 8 == 2 and st < 4: extras[0:0] = self.lds_peek(C_ST + st)
                    if ks % 8 == 5 and st < 4: pre = lambda: self.lds_check(C_ST + st, 4)
                    if ks == o['csk']: extras[0:0] = self.lds_peek(C_CS)
                    if ks == o['csk'] + 2:
                        pre = lambda: self.lds_check(C_CS, 4)
                        extras += csrd + ['s_nop 0']*4 + wext
                    if ks == 30: extras[0:0] = self.lds_peek(C_Q)
                    kstep(ks, pre)
                for g in range(8 + LAG):
                    kk = list(range(4*(g - LAG), 4*(g - LAG) + 4)) if g >= LAG else []
                    if g < 8:
                        if g == LAG - 1 or (LAG > 8 and g == 7):
                            for it in self.lds_peek(C_ST): self.item(it)
                        lx = P.newlabel('Lx')
                        P(f's_cmp_lg_u32 {sr(sT2)}, {g}')
                        P(waitstr(vm=vm.need(('x', g))))
                        P(f's_cbranch_scc1 {lx}\nds_read_b128 {vr(XRES,4)}, {vr(PKV)} offset:{(g%3)*4096}\nds_read_b128 {vr(XRES+4,4)}, {vr(PKV+1)} offset:{(g%3)*4096}')
                        P.label(lx)
                        for s_ in range(4): P(f'ds_read_b128 {vr(XF+16*g+4*s_,4)}, {vr(AD+s_)} offset:{(g%3)*4096}')
                        lg.issue(('xg', g), 4)
                        if kk and kk[0] > 0: ks0(kk.pop(0))
                        P(waitstr(lg=lg.need(('xg', g))))
                        if g + 3 < 8: self.x0_load(g + 3)
                        if g == o['wgo'] - 1: sig(C_WGO)
                        if g == o['qgo']: sig(C_CSQ)
                        if g == 7: sig(C_XDONE)
                        if g in (0, 3, 5, 7): self.stamp({0: 2, 3: 15, 5: 23, 7: 1}[g], {0: 'x g0 / W go', 3: 'x g3 / W st0', 5: 'x g5 / W st1', 7: 'x0 / W st3'}[g])
                        if g == 7 or not kk or kk[0] == 0:
                            dots(g)
                            if g == 7: extras += stat_fold + self.stats_final(typ)
                            for k in kk: ks0(k)
                        else:
                            for k in kk: ks0(k)
                            dots(g)
                    else:
                        for k in kk: ks0(k)
                pop(100)
            for g in range(0 if LAG else 8):
                if o['xst']: P(f's_cmp_lg_u32 {sr(sT2)}, {g}')
                P(waitstr(vm=vm.need(('x', g))))
                if o['xst']:
                    lx = P.newlabel('Lx')
                    P(f's_cbranch_scc1 {lx}\nds_read_b128 {vr(XRES,4)}, {vr(PKV)} offset:{(g%4)*4096}\nds_read_b128 {vr(XRES+4,4)}, {vr(PKV+1)} offset:{(g%4)*4096}')
                    P.label(lx)
                for s_ in range(4): P(f'ds_read_b128 {vr(XF+16*g+4*s_,4)}, {vr(AD+s_)} offset:{(g%4)*4096}')
                if g: P('s_waitcnt lgkmcnt(4)')
                if g + X0D < 8: self.x0_load(g + X0D)
                if g: dots(g - 1)
                if g == o['wgo'] - 1: self.lds_signal(C_WGO)
                if g in (0, 3, 5): self.stamp({0: 2, 3: 15, 5: 23}[g], {0: 'x g0 / W go', 3: 'x g3 / W st0', 5: 'x g5 / W st1'}[g])
            if not LAG:
                self.lds_signal(C_XDONE)
                lg.reset()
                for it in self.lds_peek(C_ST): self.item(it)
                dots(7)
                self.stamp(1, 'x0 / W st3')
                self.lds_check(C_ST, 4)
                self.stamp(29, 'S0 / W st2')
                for ks in range(NR): rdk(ks); rdv(ks)
                P(f'v_add_f32 {vr(STAT)}, {vr(STAT)}, {vr(STAT+1)}\nv_add_f32 {vr(STAT+2)}, {vr(STAT+2)}, {vr(STAT+3)}')
                P(f'v_permlane32_swap_b32 {vr(STAT)}, {vr(STAT+2)}\nv_add_f32 {vr(STAT)}, {vr(STAT)}, {vr(STAT+2)}')
                extras += self.stats_final(typ)
                pop(10)
                for ks in range(32):
                    pre = None
                    st = ks // 8 + 1
                    if ks % 8 == 2: extras[0:0] = self.lds_peek(C_ST + st if st < 4 else C_CS)
                    if ks % 8 == 5 and st < 4: pre = lambda: self.lds_check(C_ST + st, 4)
                    if ks == 28:
                        pre = lambda: self.lds_check(C_CS, 4)
                        extras += csrd + self.lds_peek(C_Q) + ['s_nop 0']*3 + wext
                    kstep(ks, pre)
                pop(100)
        else:
            vm.reset(); lg.reset()
            redo = P.newlabel('Lkvredo')
            if o['red']: P(f's_lshr_b32 {sr(sT1)}, {sr(sRB)}, 6\ns_add_u32 {sr(sT1)}, {sr(sT1)}, {OFF_FIN}')
            else: P(f's_lshr_b32 {sr(sT1)}, {sr(sRB)}, 3\ns_add_u32 {sr(sT1)}, {sr(sT1)}, {OFF_ST}')
            for it in addr: self.item(it)
            if o['b0']: P('s_barrier')
            self.stamp(14 + L*14 if L < 3 else 57, f'L{L} B0')
            P.label(redo)
            for it in csrd: self.item(it)
            for ks in range(NR): rdk(ks); rdv(ks)
            extras += wext
            if o['red']: extras += [f'v_lshlrev_b32 {vr(STAT+2)}, 3, {vr(vLANE)}', f's_add_u32 {sr(sM)}, {sr(sTAG)}, {L}']
            if o['own']: kstep(0); kstep(1)
            S = self.probe(sOut, 0, L & 1, XD) if L > 1 and not o['hx'] else self.first_hop(0, OFF_XFLAG + 0x2000, 60, L & 1 if V else None, L - 1, 1 if (L > 1 and o['prex']) else None)
            self.stamp(2 + L*14, f'L{L} xflags')
            for ks in range(2, XD + 2): self.frag_load(sOut, ks)
            if L == 1 and o['bq']:
                for it in bqw: self.item(it)
            late = [('wvm', 'st')] + [self.acc_par(STAT + 2*i, STAT + 2*i + 1, L & 1) for i in range(8) if V]
            for step in (8, 4, 2, 1):
                for i in range(step): late.append(f'v_add_f32 {vr(STAT+i)}, {vr(STAT+i)}, {vr(STAT+i+step)}')
            if o['red']: late = [('fn', fincheck)]
            late += self.stats_final(typ)
            for ks in range(2 if o['own'] else 0, 32):
                if ks == (o['rk1'] if o['red'] else 8 + o['st0'] + XD): extras += late
                kstep(ks)
                if V and ks in (o['ev'], o['ev2']): self.verify(L & 1, redo)
            pop(100)
            if V: self.verify(L & 1, redo)
        self.mfma(ACC0, WEXTK, XEXT, ACC0)
        rest = list(range(32 - D, 33))
        def vt(n=1):
            for _ in range(n):
                if rest: vstep(rest.pop(0))
        vt()
        return vt

    def w_read(self, dst, base, off, L, tag, qkv=True):
        if L > 1:
            self.P(f'ds_read_b128 {vr(dst,4)}, {vr(base)} offset:{off}'); self.lg.issue(tag)
        else:
            d = 256 if (L == 0 and qkv) else 512
            self.P(f'ds_read_b64_tr_b16 {vr(dst,2)}, {vr(base)} offset:{off}\nds_read_b64_tr_b16 {vr(dst+2,2)}, {vr(base)} offset:{off+d}'); self.lg.issue(tag, 2)

    def q_prefetch(self, L, NS=5):
        for ks in range(NS): self.q_rd(L, ks)

    def q_rd(self, L, ks, NS=5):
        self.w_read(RING + 4*(ks % NS), vTR1, ks*1024, L, ('w', ks))

    def main_qpass(self, L, acc, fill, at=None, pre_write=None, rate=4):
        P = self.P; typ = L % 2; lg = self.lg; NS = 5
        fill = list(fill)
        for ks in range(32):
            P(waitstr(lg=lg.need(('w', ks))))
            self.mfma(acc, RING + 4*(ks % NS), XF + 4*ks, None if ks == 0 else acc)
            if ks + NS < 32: self.q_rd(L, ks + NS)
            n = 0
            while fill and n < rate:
                it = fill.pop(0); self.item(it)
                if isinstance(it, str) or it[0] == 'ds': n += 1
            if at and ks in at: at[ks]()
        for it in fill: self.item(it)
        self.mfma(acc, WEXTQ, XEXT, acc)
        if at and 32 in at: at[32]()
        order = (4, 5, 6, 7, 0, 1, 2, 3)
        for p in order:
            if typ == 0 and p % 4 == 0:
                for q in range(p, p + 4): P(f'v_pk_mul_f32 {vr(acc+2*q,2)}, {vr(acc+2*q,2)}, {vr(vRSTD,2)} op_sel_hi:[1,0]')
            P(f'v_cvt_pk_bf16_f32 {vr(aQ+p)}, {vr(acc+2*p)}, {vr(acc+2*p+1)}')
            if p == 7:
                if pre_write: pre_write()
                P(f'ds_write_b128 {vr(vKA)}, {vr(aQ+4,4)} offset:5120')

    def tile_addr(self, sbase):
        return f"""s_lshl_b32 {sr(sT1)}, {sr(sHS)}, 10
s_add_u32 {sr(sT1)}, {sr(sT1)}, {sr(sbase)}
v_add_u32 {vr(vKA)}, {sr(sT1)}, {vr(vL16)}
s_lshl_b32 {sr(sT1)}, {sr(sHS)}, 8
v_xor_b32 {vr(vVA)}, {sr(sT1)}, {vr(vL16)}
v_add_u32 {vr(vVA)}, {sr(sbase)}, {vr(vVA)}"""

    def trickle_setup(self):
        self.P(f's_mov_b32 {sr(sDM)}, 4\ns_mov_b32 {sr(sDG)}, {sr(sG0)}\ns_add_u32 {sr(sDL)}, {sr(sLA)}, {sr(sS0)}')

    def trickle(self, keep=0):
        P = self.P; sk = P.newlabel('Lsk')
        P(f's_cmp_le_u32 {sr(sDM)}, {keep}\ns_cbranch_scc1 {sk}\ns_mul_i32 {sr(sT0)}, {sr(sDG)}, 3')
        for e in range(2):
            for nt in (1, 2):
                P(f's_add_u32 m0, {sr(sDL)}, {NT_LDS[nt] + e*1024}\ns_add_u32 {sr(sT1)}, {sr(sT0)}, {e*49152 + nt*1024}')
                P(f'buffer_load_dwordx4 {vr(vDW)}, {sr(sWB,4)}, {sr(sT1)} offen lds')
        P(f"""s_add_u32 {sr(sDL)}, {sr(sDL)}, 8192
s_and_b32 {sr(sDL)}, {sr(sDL)}, 0x7fff
s_add_u32 {sr(sDG)}, {sr(sDG)}, 0x20000
s_and_b32 {sr(sDG)}, {sr(sDG)}, 0x7ffff
s_sub_u32 {sr(sDM)}, {sr(sDM)}, 1""")
        P.label(sk)

    def attn_loop(self, cfirst, trickle=False):
        P = self.P; lp = P.newlabel('Latt')
        if self.o['trunc']: pk = lambda d, e: f'v_perm_b32 {vr(d)}, {vr(e+1)}, {vr(e)}, {sr(sPERM)}'
        else: pk = lambda d, e: f'v_cvt_pk_bf16_f32 {vr(d)}, {vr(e)}, {vr(e+1)}'
        rdv = f's_mov_b64 exec, {sr(sLO,2)}\nds_read_b128 {vr(VV,4)}, {vr(vVA)} offset:2048\nds_read_b128 {vr(VV+4,4)}, {vr(vVA)} offset:3072\ns_mov_b64 exec, -1'
        P(f'ds_read_b128 {vr(aK,4)}, {vr(vKA)}'); P(rdv)
        P(f'v_add_u32 {vr(vKA)}, {sr(sSTEP)}, {vr(vKA)}\nv_add_u32 {vr(vVA)}, {sr(sSTEP)}, {vr(vVA)}\ns_waitcnt lgkmcnt(2)')
        cfirst()
        P(f'ds_read_b128 {vr(aK,4)}, {vr(vKA)}\nv_add_u32 {vr(vKA)}, {sr(sSTEP)}, {vr(vKA)}\ns_nop 9')
        P.label(lp)
        for i in range(8): P(f'v_exp_f32 {vr(aE+i)}, {vr(aS+i)}')
        for p in range(4): P(pk(aP + p, aE + 2*p))
        for i in range(8, 10): P(f'v_exp_f32 {vr(aE+i-8)}, {vr(aS+i)}')
        P('s_waitcnt lgkmcnt(0)')
        self.mfma(aO, VV, aP, aO)
        for i in range(10, 16): P(f'v_exp_f32 {vr(aE+i-8)}, {vr(aS+i)}')
        self.mfma(aS, aK, aQ, None)
        P(f'ds_read_b128 {vr(aK,4)}, {vr(vKA)}')
        for p in range(4): P(pk(aP + 4 + p, aE + 2*p))
        P(f'v_add_u32 {vr(vKA)}, {sr(sSTEP)}, {vr(vKA)}\ns_sub_u32 {sr(sCNT)}, {sr(sCNT)}, 1')
        self.mfma(aO, VV + 4, aP + 4, aO)
        P(rdv)
        if trickle and self.o['trk']: self.trickle(4 - self.o['trk'])
        P(f'v_add_u32 {vr(vVA)}, {sr(sSTEP)}, {vr(vVA)}\ns_cmp_lg_u32 {sr(sCNT)}, 0\ns_cbranch_scc1 {lp}')

    def v_lanes(self):
        return [f'v_mov_b32 {vr(vSTV)}, {LDS_ONES - 2048}', f'v_cndmask_b32 {vr(vVA)}, {vr(vSTV)}, {vr(vVA)}, {sr(sLO,2)}',
                f'v_mov_b32 {vr(vSTV)}, {sr(sSTEP)}', f'v_cndmask_b32 {vr(vSTV)}, 0, {vr(vSTV)}, {sr(sLO,2)}']

    def attn2(self, M, first, trickle=False):
        P = self.P; lp = P.newlabel('Latt'); dn = P.newlabel('Lattd')
        pk = lambda d, e: f'v_perm_b32 {vr(d)}, {vr(e+1)}, {vr(e)}, {sr(sPERM)}'
        ex = lambda S, a, b: P('\n'.join(f'v_exp_f32 {vr(S+i)}, {vr(S+i)}' for i in range(a, b)))
        rdk = f'ds_read_b128 {vr(aK,4)}, {vr(vKA)}\nv_add_u32 {vr(vKA)}, {sr(sSTEP)}, {vr(vKA)}'
        P(rdk.replace(vr(aK,4), vr(aP,4))); P(rdk); P(f'ds_read_b128 {vr(VV,4)}, {vr(vVA)} offset:2048\ns_waitcnt lgkmcnt(2)')
        first()
        P('s_waitcnt lgkmcnt(1)\ns_nop 6')
        P.label(lp)
        for half, (S, N) in enumerate(((M, aS), (aS, M))):
            P('s_waitcnt lgkmcnt(2)')
            self.mfma(N, aK, aQ, None)
            P(rdk)
            ex(S, 0, 4)
            P('s_waitcnt lgkmcnt(2)')
            self.mfma(aO, VV + 4, aP + 4, aO)
            P(f'ds_read_b128 {vr(VV+4,4)}, {vr(vVA)} offset:3072\nv_add_u32 {vr(vVA)}, {vr(vSTV)}, {vr(vVA)}')
            ex(S, 4, 10)
            for p in range(4): P(pk(aP + p, S + 2*p))
            ex(S, 10, 12)
            P('s_waitcnt lgkmcnt(2)')
            self.mfma(aO, VV, aP, aO)
            P(f'ds_read_b128 {vr(VV,4)}, {vr(vVA)} offset:2048')
            if trickle and self.o['trk']: self.trickle(4 - self.o['trk'])
            ex(S, 12, 16)
            P(f's_sub_u32 {sr(sCNT)}, {sr(sCNT)}, 1')
            for p in range(4): P(pk(aP + 4 + p, S + 8 + 2*p))
            P(f's_cbranch_scc1 {dn}' if half == 0 else f's_cbranch_scc0 {lp}')
        P.label(dn)

    def publish_o_addr(self, L):
        return [f's_add_u32 {sr(sK0)}, {sr(sOW)}, {OFF_O}'] + ([f's_add_u32 {sr(sK1)}, {sr(sOF)}, {OFF_OFLAG}'] if L == 0 or self.o['ho'] else [])

    def publish_o(self, L, O, eps):
        P = self.P
        if eps: P(f'v_add_f32 {vr(O+8)}, {f2u(eps):#x}, {vr(O+8)}')
        P(f'v_rcp_f32 {vr(O+8)}, {vr(O+8)}')
        if L % 2 == 0 and self.o['omul']:
            for i in range(8): P(f'v_mul_f32 {vr(O+i)}, {vr(O+8)}, {vr(O+i)}')
        else:
            for p in range(4): P(f'v_pk_mul_f32 {vr(O+2*p,2)}, {vr(O+2*p,2)}, {vr(O+8,2)} op_sel_hi:[1,0]')
        P(self.round_par(O, O, 1 - (L & 1)))
        for p in (1, 2, 3, 0): P(f'v_cvt_pk_bf16_f32 {vr(aP+p)}, {vr(O+2*p)}, {vr(O+2*p+1)}')
        P(self.set_par(aP, 1 - (L & 1)))
        def emit(sc1):
            P(f'buffer_store_dwordx4 {vr(aP,4)}, {vr(vL16)}, {sr(sWS,4)}, {sr(sK0)} offen' + (' sc1' if sc1 else (['', ' nt', ' sc1', ' sc0'][self.o.get('o3', 0)] if L == 3 or self.o.get('nta') else '')))
            if L == 0: self.flag(sK1, sTAG, sc1, wait=None if self.o['clr'] else 's_waitcnt vmcnt(0)')
            elif self.o['ho'] and (sc1 or not self.o['eb' if L & 1 else 'ea']): self.flag(sK1, sTAG, sc1, add=L)
        self.two_way(emit)

    def main_outproj(self, L):
        P = self.P; vm, lg = self.vm, self.lg; OD = self.o['od'] if L != 1 else self.o['od1']; par = 1 - (L & 1)
        vm.reset(); lg.reset()
        redo = P.newlabel('Lopredo')
        PO = self.o['preo'] and L > 0
        if PO: P(f'v_and_b32 v111, 124, {vr(vL4)}\nv_add_u32 v111, {OFF_OFLAG}, v111\nbuffer_load_dword v103, v111, {sr(sWS,4)}, {sr(sXF)} offen sc1')
        if L == 0:
            if self.o['plds']: self.wphi_load(170); P('s_waitcnt lgkmcnt(0)')
            for op in ['s_waitcnt vmcnt(2)' if self.o['clr'] else 's_waitcnt vmcnt(1)'] + [f'v_permlane32_swap_b32 {vr(XRES+a)}, {vr(XRES+b)}' for a, b in SW4] + self.wphi_pack(170): P(op)
        for i in range(4): P(f'v_mov_b32 {vr(XF+i)}, {vr(aP+i)}')
        NS = 6; RG = 24 if L == 0 and self.o['bq'] else 32; V = L or self.o['clr']
        def rd(ks):
            self.w_read(RING + 4*(ks % NS), vTR2, ks*1024, L, ('w', ks), qkv=False)
        self.publish_x_addr(L + 1)
        HB = self.o['hb']
        if HB: P(f's_lshl_b32 {sr(sT0)}, {sr(sMT)}, 2\nv_add_u32 v100, {sr(sOWN)}, {vr(vL16)}\nv_add_u32 v101, {sr(sT0)}, {vr(vCNT)}')
        P.label(redo)
        for ks in range(NS): rd(ks)
        self.unpack_res()
        S = self.probe(sWS, OFF_O, par, OD) if L > 0 and not self.o['ho'] else self.first_hop(OFF_O, OFF_OFLAG, 124, par if V else None, L, 0 if PO else None)
        SG = self.o['sg'] if L == 1 else 0
        EX = self.o['ex'] if L in (1, 2) else 0
        if SG:
            l = P.newlabel('Lx'); lw = P.newlabel('Lx')
            P(f's_cmp_lt_u32 {sr(sMT)}, 2\ns_cbranch_scc1 {l}'); P.label(lw)
            P(f'ds_read_b32 {vr(vT0)}, {vr(vCNT)} offset:{4*C_WGO}\ns_waitcnt lgkmcnt(0)\nv_cmp_gt_u32 vcc, 6, {vr(vT0)}\ns_cbranch_vccnz {lw}')
            P.label(l)
        self.stamp(11 + L*14, f'L{L} oflags')
        for ks in range(1 + HB, OD + 1 + HB): self.frag_load(sWS, ks)
        if HB:
            lw = P.newlabel('Lhb'); P.label(lw)
            P(f'ds_read_b32 v102, v101 offset:{4*C_ST}\nds_read_b128 {vr(XF+4,4)}, v100 offset:5120\ns_waitcnt lgkmcnt(0)\nv_cmp_gt_u32 vcc, {TV_O[L]}, v102\ns_cbranch_vccnz {lw}')
            lg.reset()
        for ks in range(32):
            P(waitstr(vm=vm.need(('x', ks)), lg=lg.need(('w', ks))))
            self.mfma(ACC0, RING + 4*(ks % NS), XF + 4*(ks % RG), ACC0)
            if ks + OD < 32 and ks > HB: self.frag_load(sWS, ks + OD, RG)
            if ks + NS < 32: rd(ks + NS)
            if SG and ks == SG - 1: self.item(('ds', 'sg', f's_mov_b64 exec, 2\nds_add_u32 {vr(vCNT)}, {vr(vLANE)} offset:{4*C_WGO}\ns_mov_b64 exec, -1'))
            if V and ks & 1: P(self.acc_par(XF + 4*ks - 4, XF + 4*ks, par))
            if V and ks in (self.o['ev'], self.o['ev2']): self.verify(par, redo)
            if self.o['prex'] and L in (1, 2) and ks == 25: P(f'v_and_b32 v111, 60, {vr(vL4)}\nv_add_u32 v111, {OFF_XFLAG + 0x2000}, v111')
            if L == 1 and ks == 26: P(f'v_mov_b32 v98, 0x10000\nv_mov_b32 v99, 0xfffe0000\nv_cndmask_b32 v98, 0, v98, {sr(sH0,2)}\nv_cndmask_b32 v99, -1, v99, {sr(sH0,2)}')
            if EX and ks == 24:
                for op in self.hint_prep(106, L): P(op)
            if EX and ks == EX: self.hint(106, sK2); vm.issue('h')
        if V: self.verify(par, redo)
        if EX == 32: self.hint(106, sK2)
        self.stamp(12 + L*14, f'L{L} outproj')
        nxt = L + 1 < self.nl and not self.o['b0']
        if nxt: P(f'ds_read_b32 {vr(vT0)}, {vr(vCNT)} offset:{4*C_WR}')
        self.publish_x(L + 1)
        if nxt: self.lds_signal(C_XDONE)
        self.stamp(13 + L*14, f'L{L} xpub')

    def aux_head(self, L):
        P = self.P
        if self.o['b0']: P('s_barrier')
        else: self.lds_signal(C_WR)
        if L + 1 < self.nl: self.code_prefetch(f'L_main_{L+1}')
        if L == 3: return
        if L == 2: return self.aux_head2(L)
        if L > 1 and not self.o['b0']: self.lds_wait(C_XDONE, 4 + 4*L, self.o['lsleep'])
        if L == 1:
            self.lds_to_regs(LDS_WO, PARK['o'], True); P('s_waitcnt vmcnt(0) lgkmcnt(0)')
            if self.o['bq']: self.lds_wait(C_Q, 8, self.o['lsleep'])
            if not self.o['bql']: self.relayout(1, (0,))
        else: self.swap_region('o', L + 1 < self.nl, L == 2)

    def aux_head2(self, L):
        if L == 1 and self.o['bql']: self.lds_wait(C_XDONE, 4 + self.o['bql']*2 + 2 if self.o['bql'] == 1 else 6, self.o['lsleep'])
        if self.o['red']: self.stats_reduce(L)
        if L == 1 and self.o['bql']:
            self.dma_w(1, (0,)); self.P('s_waitcnt vmcnt(0)')
            self.relayout(1, (0,), tmp=48, ntmp=4)
        if self.o['chain'] and L == 2:
            for i in range(32): self.P(f'v_mov_b32 {vr(PARK[0]+i)}, {vr(32+i)}')
        if L > 1:
            if not self.o['b0']: self.lds_wait(C_XDONE, 4 + 4*L, self.o['lsleep'])
            self.swap_region('o', L + 1 < self.nl, L == 2)

    def stats_reduce(self, L):
        P = self.P; sk = P.newlabel('Lx'); lp = P.newlabel('Lred'); dn = P.newlabel('Lredd'); R = 64; par = L & 1
        P(f"""s_lshl_b32 {sr(sT0)}, {sr(sMT)}, 2
s_cmp_lg_u32 {sr(sT0)}, {sr(sC)}
s_cbranch_scc1 {sk}
s_setprio 3
v_and_b32 {vr(vPA)}, 60, {vr(vL4)}
s_add_u32 {sr(sT2)}, {sr(sXF)}, {OFF_XFLAG + 0x2000}
s_add_u32 {sr(sT0)}, {sr(sTAG)}, {L - 1}
s_lshr_b32 {sr(sT1)}, {sr(sRB)}, 3
s_add_u32 {sr(sT1)}, {sr(sT1)}, {OFF_ST}
s_lshr_b32 {sr(sT3)}, {sr(sRB)}, 6
s_add_u32 {sr(sT3)}, {sr(sT3)}, {OFF_FIN}
v_and_b32 {vr(R+18)}, 15, {vr(vLANE)}
v_lshrrev_b32 {vr(R+17)}, 4, {vr(vLANE)}
v_lshl_add_u32 {vr(R+18)}, {vr(R+18)}, 2, {vr(R+17)}
v_lshlrev_b32 {vr(R+18)}, 3, {vr(R+18)}
v_add_u32 {vr(R+17)}, {sr(sTAG)}, {L}""")
        self.poll(sT2, val=sT0)
        if self.o['rsl'] and L > 1: P(f's_sleep {self.o["rsl"]}')
        P.label(lp)
        for i in range(4): P(f'buffer_load_dwordx4 {vr(R+4*i,4)}, {vr(vL16)}, {sr(sWS,4)}, {sr(sT1)} offen offset:{i*1024} sc1')
        P(f'v_mov_b32 {vr(vPD)}, {par}')
        for i in range(4):
            P(f's_waitcnt vmcnt({3 - i})'); P(self.acc_par(R + 4*i, R + 4*i + 1, par)); P(self.acc_par(R + 4*i + 2, R + 4*i + 3, par))
            if i:
                for k in range(4): P(f'v_add_f32 {vr(R+k)}, {vr(R+k)}, {vr(R+4*i+k)}')
        P(self.test_par(par))
        P(f'v_permlane32_swap_b32 {vr(R)}, {vr(R+2)}\nv_permlane32_swap_b32 {vr(R+1)}, {vr(R+3)}\nv_add_f32 {vr(R)}, {vr(R)}, {vr(R+2)}\nv_add_f32 {vr(R+1)}, {vr(R+1)}, {vr(R+3)}')
        P(f'v_permlane16_swap_b32 {vr(R)}, {vr(R+1)}\nv_add_f32 {vr(R+16)}, {vr(R)}, {vr(R+1)}\ns_cbranch_vccz {dn}')
        P(f's_sub_u32 {sr(sBUD)}, {sr(sBUD)}, 1\ns_cbranch_scc0 {lp}\ns_mov_b32 {sr(sBUD)}, 0')
        P.label(dn)
        self.two_way(lambda sc1: P(f'buffer_store_dwordx2 {vr(R+16,2)}, {vr(R+18)}, {sr(sWS,4)}, {sr(sT3)} offen' + (' sc1' if sc1 else '')))
        P('s_setprio 0')
        P.label(sk)

    def aux_tail(self, L):
        P = self.P
        if self.o['hb']:
            P(f"""v_add_u32 v64, {sr(sOWN)}, {vr(vL16)}
s_lshl_b32 {sr(sT0)}, {sr(sQT)}, 2
ds_write_b128 v64, {vr(aP,4)} offset:5120
v_add_u32 v65, {sr(sT0)}, {vr(vCNT)}
v_mov_b32 v66, {TV_O[L]}
ds_write_b32 v65, v66 offset:{4*C_ST}""")
        if L + 1 >= self.nl:
            if self.o['hb']: P('s_waitcnt lgkmcnt(0)')
            if self.o.get('wb'):
                lw = P.newlabel('Lx')
                P(f's_lshr_b32 {sr(sT0)}, s2, {3 if self.o["wb"] == 1 else 8}\ns_or_b32 {sr(sT0)}, {sr(sT0)}, {sr(sMT)}\ns_cmp_lg_u32 {sr(sT0)}, 0\ns_cbranch_scc1 {lw}')
                P('s_waitcnt vmcnt(0)\ns_sleep 8\nbuffer_wbl2 sc1\ns_waitcnt vmcnt(0)')
                P.label(lw)
            return
        if L % 2 == 0: wait_att = lambda: self.lds_wait(C_ATT, 8*(L//2 + 1), self.o['lsleep'])
        else: wait_att = lambda: None
        if L == 0:
            lp = P.newlabel('Lx'); P.label(lp)
            self.trickle()
            P(f's_cmp_lg_u32 {sr(sDM)}, 0\ns_cbranch_scc1 {lp}')
            self.wphi_load()
            if self.o['bq'] or self.o['bql']: P('s_waitcnt vmcnt(0) lgkmcnt(0)')
            else:
                wait_att()
                self.dma_w(1, (0,))
                P('s_waitcnt vmcnt(8) lgkmcnt(0)')
            for op in self.wphi_pack(): P(op)
            self.relayout(1, (1, 2))
            if self.o['bq'] or self.o['bql']: wait_att()
            return
        save = L + 2 < self.nl
        if L == 1:
            for st in range(4): P(f's_add_u32 {sr(sT0)}, {sr(sS0)}, {st*8192}\ns_and_b32 {sr(sT0)}, {sr(sT0)}, 0x7fff\nv_add_u32 {vr(64+st)}, {sr(sT0)}, {vr(vCH)}')
        if self.o['chain'] and L == 1:
            dst = 32
            for nt in (1, 2, 0):
                self.lds_to_regs(NT_LDS[nt], dst, True)
                self.regs_to_lds(NT_LDS[nt], PARK[nt], True)
                dst = PARK[nt]
            return
        if self.o['chain'] and L == 2:
            self.regs_to_lds(LDS_WK, PARK[0]); self.regs_to_lds(LDS_WV, PARK[1])
            wait_att()
            self.regs_to_lds(LDS_WQ, PARK[2])
            return
        self.swap_region(1, save, L == 1); self.swap_region(2, save, L == 1)
        wait_att()
        self.swap_region(0, save, L == 1)

    def layerA(self, L):
        P = self.P; sb = L * 14; o = self.o; lg = self.lg
        j1 = f'L_j1_{L}'; j2 = f'L_j2_{L}'; ax2 = f'L_ax2_{L}'; ax3 = f'L_ax3_{L}'
        P.label(f'L_main_{L}')
        vt = self.main_kv(L)
        self.stamp(3 + sb, f'L{L} kvpass')
        if L == 0: self.lds_check(C_Q, 4)
        if L and o['vlaga']:
            vt()
            for p in range(8):
                P(f'v_mul_f32 {vr(ACC0+2*p)}, {vr(vRSTD)}, {vr(ACC0+2*p)}\nv_mul_f32 {vr(ACC0+2*p+1)}, {vr(vRSTD)}, {vr(ACC0+2*p+1)}')
                P(f'v_cvt_pk_bf16_f32 {vr(PKV+p)}, {vr(ACC0+2*p)}, {vr(ACC0+2*p+1)}')
                if p & 1: vt()
            vt(99)
            self.q_prefetch(L)
            P(waitstr(lg=lg.need('rt')))
        else:
            self.q_prefetch(L)
            P(waitstr(lg=lg.need('rt')))
            for p in range(8):
                P(f'v_pk_mul_f32 {vr(ACC0+2*p,2)}, {vr(ACC0+2*p,2)}, {vr(vRSTD,2)} op_sel_hi:[1,0]')
            for p in range(8): P(f'v_cvt_pk_bf16_f32 {vr(PKV+p)}, {vr(ACC0+2*p)}, {vr(ACC0+2*p+1)}')
        st = lambda f: f'buffer_store_dwordx4 {vr(PKV+4*f,4)}, {vr(vL16)}, {sr(sWS,4)}, {sr(sK0)} offen offset:{f*1024}{MODS[o["sm"]]}'
        fill = [st(0), st(1)]
        for hf in range(2):
            fill += [f'v_mul_f32 {vr(ACC1+i)}, {vr(STAT+i)}, {vr(ACC1+i)}' for i in range(8*hf, 8*hf + 8)]
            fill += [f'v_cvt_pk_bf16_f32 {vr(PKV+8+p)}, {vr(ACC1+2*p)}, {vr(ACC1+2*p+1)}' for p in range(4*hf, 4*hf + 4)]
            fill.append(st(2 + hf))
        fill += self.checksum(vPD, PKV, 16) + [f'buffer_store_dword {vr(vPD)}, {vr(vL4)}, {sr(sWS,4)}, {sr(sK2)} offen{MODS[o["sm"]]}']
        if o['vfirst']:
            P(st(0)); P(st(1))
            for hf in range(2):
                for i in range(8*hf, 8*hf + 8, 2): P(f'v_pk_mul_f32 {vr(ACC1+i,2)}, {vr(STAT+i,2)}, {vr(ACC1+i,2)}')
                for p in range(4*hf, 4*hf + 4): P(f'v_cvt_pk_bf16_f32 {vr(PKV+8+p)}, {vr(ACC1+2*p)}, {vr(ACC1+2*p+1)}')
                P(st(2 + hf))
            fill = fill[-9:]
        fill += [('ds', 'own', f'ds_write_b128 {vr(vKA)}, {vr(PKV+4*f,4)} offset:{f*1024}') for f in range(4)]
        if L == 0 and o['early']:
            fill.append(('ds', 'kd', f'v_mov_b32 {vr(vPD)}, 1\ns_mov_b64 exec, 1\nds_add_u32 {vr(vCNT)}, {vr(vPD)} offset:{4*C_CS}\ns_mov_b64 exec, -1'))
        m0 = self.mask_ops(0, lean=True)
        if L == 0: fill += m0[:4] + self.lds_peek(C_CSQ) + m0[4:16] + [('fn', lambda: self.lds_check(C_CSQ, 8 if o['il'] else 4))]
        else: fill += m0[:16]
        fill += [('ds', 'cs', f'ds_read_b128 {vr(WEXTQ,4)}, {vr(vT0)}')] + m0[16:]
        fill += [f'v_mul_f32 {vr(vRSTD)}, {f2u(0.25*LOG2E):#x}, {vr(vRSTD)}'] + self.wext_items(WEXTQ, 'cs')
        def halo_loads(m=' sc1'):
            for t_, sh in ((0, sH1), (1, sH2)):
                P(f's_add_u32 m0, {sr(sHL)}, {t_*4096}')
                for f in range(4): P(f'buffer_load_dwordx4 {vr(vL16)}, {sr(sWS,4)}, {sr(sh)} offen offset:{f*1024}{m} lds')
                P(f'buffer_load_dword {vr(65+t_)}, v67, {sr(sWS,4)}, {sr(sh)} offen{m}')
        La = L // 2; sHL = sM + 6
        M1L = L == 0 and o['m1l']
        if not M1L: fill += self.mask_ops(1)
        AT2 = o['at2']
        common = self.publish_o_addr(L) + [f's_add_u32 {sr(sCNT)}, {sr(sQT)}, {1 - AT2}', f's_mov_b32 {sr(sSTEP)}, {-OWN_ST}']
        common += [f's_add_u32 {sr(sH1)}, {sr(sHB)}, {OFF_KV + La*KV_L}', f's_add_u32 {sr(sH2)}, {sr(sH1)}, {16*KV_REC}',
                   f's_lshl_b32 {sr(sHL)}, {sr(sMT)}, 13', f's_add_u32 {sr(sHL)}, {sr(sHL)}, {LDS_T}', f'v_add_u32 v67, 4096, {vr(vL4)}']
        p1 = f's_cmp_lt_u32 {sr(sQT)}, 2' if o['p1'] else f's_cmp_ge_u32 {sr(sQT)}, 2'
        pre2 = (self.v_lanes() + [f'v_mov_b32 {vr(aP+4+i)}, 0' for i in range(4)]) if AT2 else []
        def gap32():
            for it in common + [f'v_mov_b32 {vr(vVA)}, {vr(vKA)}'] + pre2: P(it)
            self.mfma(aO, aP + 4, aP + 4, None)
        at = {32: gap32}
        if L == 2 and o.get('fine'):
            self.stamp(32, 'L2 Kepi'); lg.reset()
            at[12] = lambda: (self.stamp(43, 'L2 q12'), lg.reset()); at[31] = lambda: (self.stamp(51, 'L2 q31'), lg.reset())
        self.main_qpass(L, ACC0, fill, at=at, rate=o['qrate'] if L else o['qr0'])
        if o['prio']: self.prio_if(p1)
        self.stamp(5 + sb, f'L{L} preB1')
        P(f's_waitcnt lgkmcnt(0)\ns_barrier')
        P(f's_branch {j1}')
        P.label(f'L_aux_{L}')
        if L > 0:
            self.aux_head(L)
            for op in self.mask_ops(0) + self.mask_ops(1): P(op)
        else:
            self.trickle_setup()
            if o['early']:
                self.lds_wait(C_CS, 8, 1)
                for _ in range(o['early']): self.trickle()
            if o['clr']:
                self.hello_check()
                if o['clr'] == 1: self.clear_lines(aO)
            else: self.hello_load()
        P(self.tile_addr(sOWN))
        for it in common + pre2: P(it)
        if o['prio']: self.prio_if(p1)
        self.stamp(5 + sb, f'L{L} preB1')
        P('s_barrier')
        P(f'ds_read_b128 {vr(aQ,4)}, {vr(vKA)} offset:4096')
        P.label(j1)
        l = P.newlabel('Lx')
        P(f's_cmp_eq_u32 {sr(sHAS)}, 0\ns_cbranch_scc1 {l}')
        if o['hpr']: P('s_setprio 3')
        halo_loads(MODS[o['hm']])
        if o['hpr']: P(f's_setprio {o["prio"] - 1 + o["p1"]}')
        P.label(l)
        if AT2: self.attn2(CDIAG, lambda: self.mfma(CDIAG, aP, aQ, CDIAG))
        else: self.attn_loop(lambda: self.mfma(aS, aK, aQ, CDIAG))
        P(self.tile_addr(sP2))
        P(f's_sub_u32 {sr(sCNT)}, {sr(sC2)}, {AT2}\ns_mov_b32 {sr(sSTEP)}, 4096')
        if AT2:
            for it in self.v_lanes(): P(it)
        if o['prio'] and not o['p1']: self.prio_if(f's_cmp_lt_u32 {sr(sQT)}, 2')
        self.stamp(6 + sb, f'L{L} own attn')
        lp = P.newlabel('Lhalo'); ck = P.newlabel('Lhchk'); dn = P.newlabel('Lhdone')
        def warm():
            if o['pfb'] == 2: self.coop_prefetch(1, 1)
            if o['pq']:
                P(f's_mov_b64 exec, {sr(sH0,2)}\ns_lshl_b32 {sr(sT1)}, {sr(sC)}, 6')
                if o['pq'] & 1: P(f'v_mul_u32_u24 v5, 3072, {vr(vLANE)}\ns_mul_i32 {sr(sT0)}, {sr(sG0)}, 3\ns_add_u32 {sr(sT0)}, {sr(sT0)}, {sr(sT1)}\nbuffer_load_dword v26, v5, {sr(sWB,4)}, {sr(sT0)} offen')
                if o['pq'] & 2: P(f'v_lshlrev_b32 v5, 10, {vr(vLANE)}\ns_add_u32 {sr(sT0)}, {sr(sG0)}, {sr(sT1)}\nbuffer_load_dword v26, v5, {sr(sWoB,4)}, {sr(sT0)} offen')
                P('s_mov_b64 exec, -1')
            if o['clr']:
                P(f"""s_mov_b64 exec, 3
v_mul_u32_u24 v5, {OFF_OFLAG - OFF_XFLAG - 0x2000}, {vr(vLANE)}
s_add_u32 {sr(sT1)}, {sr(sXF)}, {OFF_XFLAG + 0x2000}
buffer_load_dword v26, v5, {sr(sWS,4)}, {sr(sT1)} offen sc1
s_mov_b64 exec, -1""")
            elif o['touch']:
                P(f"""v_lshlrev_b32 v5, 3, {vr(vL16)}
v_and_b32 v5, 0x780, v5
s_add_u32 {sr(sT0)}, {sr(sXW)}, {OFF_O}
s_add_u32 {sr(sT1)}, {sr(sSW)}, {OFF_ST}
s_mov_b64 exec, 0xffff
buffer_load_dword v26, v5, {sr(sWS,4)}, {sr(sT0)} offen sc1
buffer_load_dword v26, v5, {sr(sOut,4)}, {sr(sXW)} offen sc1
s_mov_b64 exec, 3
buffer_load_dword v26, v5, {sr(sWS,4)}, {sr(sT1)} offen sc1
v_mul_u32_u24 v5, {OFF_OFLAG - OFF_XFLAG - 0x2000}, {vr(vLANE)}
s_add_u32 {sr(sT1)}, {sr(sXF)}, {OFF_XFLAG + 0x2000}
buffer_load_dword v26, v5, {sr(sWS,4)}, {sr(sT1)} offen sc1
s_mov_b64 exec, 15
v_lshlrev_b32 v5, 7, {vr(vLANE)}
s_lshr_b32 {sr(sT1)}, {sr(sRB)}, 6
s_add_u32 {sr(sT1)}, {sr(sT1)}, {OFF_FIN}
buffer_load_dword v26, v5, {sr(sWS,4)}, {sr(sT1)} offen sc1
s_mov_b64 exec, -1""")
        if M1L:
            lm = P.newlabel('Lx')
            P(f's_cmp_lg_u32 {sr(sHS)}, 0\ns_cbranch_scc1 {lm}')
            for op in self.mask_ops(1): P(op)
            P.label(lm)
        nh = P.newlabel('Lnh')
        P(f's_cmp_eq_u32 {sr(sHAS)}, 0\ns_cbranch_scc1 {nh}\nv_add_u32 {vr(vT0)}, {sr(sHL)}, {vr(vL16)}\ns_branch {ck}')
        P.label(lp)
        halo_loads()
        P.label(ck)
        for t_, R in ((0, aS), (1, CDIAG)):
            P(f's_waitcnt vmcnt({5-5*t_})')
            for f in range(4): P(f'ds_read_b128 {vr(R+4*f,4)}, {vr(vT0)} offset:{(4*t_+f)*1024}')
        for t_, R in ((0, aS), (1, CDIAG)):
            cs = self.checksum(68 + t_, R, 16)
            for f in range(4):
                P(f's_waitcnt lgkmcnt({7-4*t_-f})'); P(cs[2*f]); P(cs[2*f + 1])
            P(f'v_cmp_ne_u32 {sr(sM+2*t_,2)}, {vr(65+t_)}, {vr(68+t_)}')
        P(f's_or_b64 {sr(sM,2)}, {sr(sM,2)}, {sr(sM+2,2)}\ns_cbranch_scc0 {dn}')
        self.retry_tail(lp, dn)
        self.stamp(7 + sb, f'L{L} halo ok')
        P.label(nh)
        if L == 0: P(f's_cmp_lg_u32 {sr(sHS)}, 0\ns_cbranch_scc1 {ax2}')
        if L == 0:
            if not o['xst']:
                self.rowmajor_addr(182, 183, sT0)
                P(f'buffer_load_dwordx4 {vr(XRES,4)}, v182, {sr(sX0,4)}, {sr(sT0)} offen\nbuffer_load_dwordx4 {vr(XRES+4,4)}, v182, {sr(sX0,4)}, {sr(sT0)} offen offset:32')
            if not o['plds']: self.wphi_load(170)
            P(f's_branch {j2}'); P.label(ax2)
            P('s_waitcnt vmcnt(0) lgkmcnt(0)')
            if not o['clr']: self.hello_check()
            if not o['tpos']: warm()
        P.label(j2)
        lskip = P.newlabel('Lnohalo'); l1 = P.newlabel('Lr1'); l2 = P.newlabel('Lr2')
        EA = o['ea'] if L else 0
        if EA:
            for op in self.hint_prep(70, L): P(op)
        P('s_waitcnt lgkmcnt(0)\ns_barrier')
        if L == 0 and not self.force_safe: P(f'ds_read_b32 {vr(vPD)}, {vr(vCNT)} offset:44')
        self.stamp(8 + sb, f'L{L} B2')
        if L == 0 and o['tpos']:
            lw = P.newlabel('Lx')
            P(f's_cmp_eq_u32 {sr(sHS)}, 0\ns_cbranch_scc1 {lw}')
            warm()
            P.label(lw)
        if L == 0 and o['bq']:
            lb = P.newlabel('Lx')
            P(f's_cmp_lg_u32 {sr(sHS)}, 0\ns_cbranch_scc1 {lb}')
            if 1:
                P(f"""v_lshrrev_b32 v184, 2, {vr(vLANE)}
v_mul_u32_u24 v184, 3072, v184
v_and_b32 v185, 48, {vr(vL16)}
s_lshl_b32 {sr(sT0)}, {sr(sC)}, 6
v_add3_u32 v184, v184, v185, {sr(sT0)}
s_lshl_b32 {sr(sT2)}, {sr(sROT)}, 1
s_add_u32 {sr(sT2)}, {sr(sT2)}, {sr(sMT)}
s_lshl_b32 {sr(sT2)}, {sr(sT2)}, 15""")
                for st in range(4):
                    P(f's_and_b32 {sr(sT2)}, {sr(sT2)}, 0x7ffff\ns_mul_i32 {sr(sT0)}, {sr(sT2)}, 3\ns_add_u32 {sr(sT3)}, {sr(sT0)}, 49152')
                    P(f'buffer_load_dwordx4 {vr(224+8*st,4)}, v184, {sr(sWB,4)}, {sr(sT0)} offen\nbuffer_load_dwordx4 {vr(228+8*st,4)}, v184, {sr(sWB,4)}, {sr(sT3)} offen')
                    if st < 3: P(f's_add_u32 {sr(sT2)}, {sr(sT2)}, 0x20000')
            P.label(lb)
        P(f's_cmp_eq_u32 {sr(sR)}, 0\ns_cbranch_scc1 {lskip}')
        def first():
            P(f's_cmp_eq_u32 {sr(sR)}, 1\ns_cbranch_scc1 {l1}')
            self.mfma(CFIRST if AT2 else aS, aP if AT2 else aK, aQ, CFIRST)
            P(f's_branch {l2}'); P.label(l1)
            self.mfma(CFIRST if AT2 else aS, aP if AT2 else aK, aQ, None)
            P.label(l2)
        if AT2: self.attn2(CFIRST, first, trickle=(L == 0))
        else: self.attn_loop(first, trickle=(L == 0))
        P.label(lskip)
        if AT2:
            P('s_waitcnt lgkmcnt(1)'); self.mfma(aO, VV + 4, aP + 4, aO)
        if EA == 1: self.hint(70, sK1)
        if L == 0 and not self.force_safe: P(f's_waitcnt lgkmcnt(0)\nv_readfirstlane_b32 {sr(sFAST)}, {vr(vPD)}')
        self.stamp(9 + sb, f'L{L} attn')
        P(f'v_subrev_u32 {vr(vT0)}, {f2u(2.0**-SAFE_EXP):#x}, {vr(aO+8)}\nv_cmp_le_u32 vcc, {f2u(2.0**SAFE_EXP) - f2u(2.0**-SAFE_EXP):#x}, {vr(vT0)}\ns_cbranch_vccnz L_fb_{L}')
        P.label(f'L_fbr_{L}')
        if EA == 2: self.hint(70, sK1)
        self.publish_o(L, aO, 0)
        if o['prio']: P('s_setprio 0')
        self.lds_signal(C_ATT)
        self.stamp(10 + sb, f'L{L} opub')
        P(f's_cmp_lg_u32 {sr(sHS)}, 0\ns_cbranch_scc1 {ax3}')
        if o['fpr']:
            l = P.newlabel('Lx')
            P(f's_cmp_lt_u32 {sr(sMT)}, 2\ns_cbranch_scc1 {l}\ns_setprio {o["fpr"]}'); P.label(l)
        self.main_outproj(L)
        P(f's_branch L_main_{L+1}')
        P.label(ax3)
        self.aux_tail(L)
        self.stamp(13 + sb, f'L{L} xpub')
        P(f's_branch L_aux_{L+1}')

    def attn_fallback(self, L):
        P = self.P; M = vT0
        pk = lambda d, e: f'v_cvt_pk_bf16_f32 {vr(d)}, {vr(e)}, {vr(e+1)}'
        P.label(f'L_fb_{L}')
        P(f's_waitcnt lgkmcnt(0)\nv_mov_b32 {vr(M)}, 0xff800000')
        for op in self.mask_ops(0) + self.mask_ops(1): P(op)
        for ps in range(2):
            for seg in range(2):
                lp = P.newlabel('Lfb'); nx = P.newlabel('Lfbn'); nm = P.newlabel('Lfbm')
                if seg == 0:
                    P(self.tile_addr(sOWN))
                    P(f's_add_u32 {sr(sCNT)}, {sr(sQT)}, 1\ns_mov_b32 {sr(sSTEP)}, {-OWN_ST}')
                    for i in range(16): P(f'v_mov_b32 {vr(aS+i)}, {vr(CDIAG+i)}')
                else:
                    P(f's_cmp_eq_u32 {sr(sR)}, 0\ns_cbranch_scc1 {nx}')
                    P(self.tile_addr(sP2))
                    P(f's_mov_b32 {sr(sCNT)}, {sr(sC2)}\ns_mov_b32 {sr(sSTEP)}, 4096\ns_cmp_eq_u32 {sr(sR)}, 1\ns_cbranch_scc1 {lp}')
                    for i in range(16): P(f'v_mov_b32 {vr(aS+i)}, {vr(CFIRST+i)}')
                P.label(lp)
                P(f'ds_read_b128 {vr(aK,4)}, {vr(vKA)}')
                if ps:
                    P(f's_mov_b64 exec, {sr(sLO,2)}\nds_read_b128 {vr(VV,4)}, {vr(vVA)} offset:2048\nds_read_b128 {vr(VV+4,4)}, {vr(vVA)} offset:3072\ns_mov_b64 exec, -1')
                P('s_waitcnt lgkmcnt(0)')
                self.mfma(aS, aK, aQ, aS)
                if ps == 0:
                    for i in range(0, 16, 2): P(f'v_max3_f32 {vr(M)}, {vr(M)}, {vr(aS+i)}, {vr(aS+i+1)}')
                else:
                    for i in range(16): P(f'v_sub_f32 {vr(aS+i)}, {vr(aS+i)}, {vr(M)}')
                    for i in range(16): P(f'v_exp_f32 {vr(aS+i)}, {vr(aS+i)}')
                    for p in range(8): P(pk(aP + p, aS + 2*p))
                    self.mfma(aO, VV, aP, aO)
                    self.mfma(aO, VV + 4, aP + 4, aO)
                for i in range(16): P(f'v_mov_b32 {vr(aS+i)}, 0')
                P(f'v_add_u32 {vr(vKA)}, {sr(sSTEP)}, {vr(vKA)}\nv_add_u32 {vr(vVA)}, {sr(sSTEP)}, {vr(vVA)}')
                P(f's_sub_u32 {sr(sCNT)}, {sr(sCNT)}, 1\ns_cmp_lg_u32 {sr(sCNT)}, 0\ns_cbranch_scc1 {lp}')
                P.label(nx)
            if ps == 0:
                P(f'v_mov_b32 {vr(vPD)}, {vr(M)}\nv_permlane32_swap_b32 {vr(vPD)}, {vr(M)}\nv_max_f32 {vr(M)}, {vr(M)}, {vr(vPD)}')
        P(f's_branch L_fbr_{L}')

    def softmax16(self, dst, t, inject=None, start=0, step=1, pk=True):
        if inject is None: return self.softmax16_(dst, t, self.P, pk)
        ops = []
        self.softmax16_(dst, t, lambda x: ops.extend(x.split('\n')))
        inject = list(inject)
        for i, op in enumerate(ops):
            if i >= start and (i - start) % step == 0 and inject: self.P(inject.pop(0))
            self.P(op)
        for x in inject: self.P(x)

    def softmax16_(self, dst, t, P, pk=True):
        A = ACC0
        P(f'v_max3_f32 {vr(t)}, {vr(A)}, {vr(A+1)}, {vr(A+2)}\nv_max3_f32 {vr(t+1)}, {vr(A+3)}, {vr(A+4)}, {vr(A+5)}')
        P(f'v_max3_f32 {vr(t+2)}, {vr(A+6)}, {vr(A+7)}, {vr(A+8)}\nv_max3_f32 {vr(t+3)}, {vr(A+9)}, {vr(A+10)}, {vr(A+11)}')
        P(f'v_max3_f32 {vr(t)}, {vr(t)}, {vr(A+12)}, {vr(A+13)}\nv_max3_f32 {vr(t+1)}, {vr(t+1)}, {vr(A+14)}, {vr(A+15)}')
        P(f'v_max3_f32 {vr(t)}, {vr(t)}, {vr(t+2)}, {vr(t+3)}\nv_max_f32 {vr(t)}, {vr(t)}, {vr(t+1)}')
        P(f'v_mul_f32 {vr(t)}, {vr(vRSTD)}, {vr(t)}')
        if not pk:
            for i in range(4): P(f'v_fma_f32 {vr(A+i)}, {vr(A+i)}, {vr(vRSTD)}, -{vr(t)}')
            for i in range(16):
                P(f'v_exp_f32 {vr(A+i)}, {vr(A+i)}')
                if i + 4 < 16: P(f'v_fma_f32 {vr(A+i+4)}, {vr(A+i+4)}, {vr(vRSTD)}, -{vr(t)}')
                if i in (3, 4): P(f'v_add_f32 {vr(t+i-1)}, {vr(A+i-3)}, {vr(A+i-1)}')
                if i >= 5: P(f'v_add_f32 {vr(t+2+(i+1)%2)}, {vr(t+2+(i+1)%2)}, {vr(A+i-1)}')
            P(f'v_add_f32 {vr(t+3)}, {vr(t+3)}, {vr(A+15)}\nv_add_f32 {vr(t+2)}, {vr(t+2)}, {vr(t+3)}\nv_rcp_f32 {vr(t)}, {vr(t+2)}')
            for i in range(16): P(f'v_mul_f32 {vr(A+i)}, {vr(t)}, {vr(A+i)}')
            for p in range(8): P(f'v_cvt_pk_bf16_f32 {vr(dst+p)}, {vr(A+2*p)}, {vr(A+2*p+1)}')
            return
        fm = lambda p: f'v_pk_fma_f32 {vr(A+2*p,2)}, {vr(A+2*p,2)}, {vr(vRSTD,2)}, {vr(t,2)} op_sel_hi:[1,0,0] neg_lo:[0,0,1] neg_hi:[0,0,1]'
        P(fm(0)); P(fm(1))
        for p in range(8):
            P(f'v_exp_f32 {vr(A+2*p)}, {vr(A+2*p)}')
            if p + 2 < 8: P(fm(p + 2))
            P(f'v_exp_f32 {vr(A+2*p+1)}, {vr(A+2*p+1)}')
            if p == 2: P(f'v_pk_add_f32 {vr(t+2,2)}, {vr(A,2)}, {vr(A+2,2)}')
            if p >= 3: P(f'v_pk_add_f32 {vr(t+2,2)}, {vr(t+2,2)}, {vr(A+2*p-2,2)}')
        P(f'v_pk_add_f32 {vr(t+2,2)}, {vr(t+2,2)}, {vr(A+14,2)}\nv_add_f32 {vr(t+2)}, {vr(t+2)}, {vr(t+3)}\nv_rcp_f32 {vr(t)}, {vr(t+2)}')
        for p in range(8): P(f'v_pk_mul_f32 {vr(A+2*p,2)}, {vr(A+2*p,2)}, {vr(t,2)} op_sel_hi:[1,0]')
        for p in range(8): P(f'v_cvt_pk_bf16_f32 {vr(dst+p)}, {vr(A+2*p)}, {vr(A+2*p+1)}')

    def layerB(self, L):
        P = self.P; Lb = L // 2; sb = L * 14; o = self.o; lg = self.lg
        j0 = f'L_j0_{L}'; j1 = f'L_j1_{L}'; j2 = f'L_j2_{L}'; ax1 = f'L_ax1_{L}'; ax1b = f'L_ax1b_{L}'; ax3 = f'L_ax3_{L}'; axz = f'L_axz_{L}'
        KA, KV_ = 48, 96
        vA16, vA4, vAW, vAO = 96, 97, 98, 99
        P.label(f'L_main_{L}')
        vt = self.main_kv(L)
        if o['fpr']: P('s_setprio 0')
        self.stamp(3 + sb, f'L{L} kvpass')
        P(waitstr(lg=lg.need('rt')))
        vt()
        for p in (4, 5, 6, 7): P(f'v_cvt_pk_bf16_f32 {vr(PKV+p)}, {vr(ACC0+2*p)}, {vr(ACC0+2*p+1)}')
        P(f'ds_write_b128 {vr(vKA)}, {vr(PKV+4,4)} offset:1024'); lg.issue('kb', 2 if o['pw1'] else 1)
        PW = o['pw1']
        if PW:
            o['vpre'] = 2
            P(f'ds_write_b32 {vr(PKV+8)}, {vr(PKV+9)} offset:{4*C_ST}')
        vt()
        for p in (0, 1, 2, 3): P(f'v_cvt_pk_bf16_f32 {vr(PKV+p)}, {vr(ACC0+2*p)}, {vr(ACC0+2*p+1)}')
        vmul = lambda p: f'v_pk_mul_f32 {vr(ACC1+2*p,2)}, {vr(ACC1+2*p,2)}, {vr(STAT+2*p,2)}'
        if o['vlag']:
            vt(99)
            self.mfma(ACC0, WPHI, PKV, None)
            for i in range(16): P(f'v_mul_f32 {vr(ACC1+i)}, {vr(STAT+i)}, {vr(ACC1+i)}')
        else:
            P(vmul(0)); P(vmul(1))
            self.mfma(ACC0, WPHI, PKV, None)
            for p in range(2, 8): P(vmul(p))
        if o['vpre'] != 1 and not PW: P('s_waitcnt lgkmcnt(0)\ns_barrier')
        for f in range(2, 4):
            for p in range(4*f - 8, 4*f - 4): P(f'v_cvt_pk_bf16_f32 {vr(PKV+8+p)}, {vr(ACC1+2*p)}, {vr(ACC1+2*p+1)}')
            P(f'ds_write_b128 {vr(vKA)}, {vr(PKV+4*f,4)} offset:{f*1024}')
        if o['vpre'] == 1: P('s_waitcnt lgkmcnt(0)\ns_barrier')
        P(f's_branch {j0}')
        P.label(f'L_aux_{L}')
        self.aux_head(L)
        for i in range(32): P(f'v_mov_b32 {vr(KV_+i)}, {vr(ONES)}')
        P(f"""v_lshrrev_b32 v91, 5, {vr(vLANE)}
v_bfe_u32 v88, {vr(vLANE)}, 2, 2
v_lshl_add_u32 v88, v91, 2, v88
v_lshlrev_b32 v88, 5, v88
v_and_b32 v89, 1, {vr(vLANE)}
v_lshl_add_u32 v88, v89, 4, v88
v_bfe_u32 v89, {vr(vLANE)}, 4, 1
v_lshl_add_u32 v88, v89, 12, v88
v_bfe_u32 v89, {vr(vLANE)}, 1, 1
v_lshl_add_u32 v88, v89, 3, v88
s_lshl_b32 {sr(sT0)}, {sr(sMT)}, 10
s_add_u32 {sr(sT0)}, {sr(sT0)}, {LDS_OWN}
v_add_u32 v88, {sr(sT0)}, v88
s_lshl_b32 {sr(sT1)}, {sr(sMT)}, 8
v_xor_b32 v90, {sr(sT1)}, {vr(vL16)}
v_add_u32 v89, {LDS_OWN}, v90
s_lshl_b32 {sr(sT0)}, {sr(sMT)}, 1
v_add_u32 v91, {sr(sT0)}, v91
v_and_b32 v92, 31, {vr(vLANE)}
v_mov_b32 v93, {OOB >> 4:#x}
v_cmp_eq_u32 vcc, 16, v92
v_cndmask_b32 v91, v93, v91, vcc
v_lshrrev_b32 v92, 8, v90
v_mul_u32_u24 v92, {KP_Q}, v92
v_and_b32 v93, 15, {vr(vLANE)}
v_lshl_add_u32 v90, v93, 4, v92
v_lshl_add_u32 v92, v93, 2, v92
v_lshlrev_b32 v93, 4, v91
v_add_u32 v93, {KP_Z}, v93
v_lshlrev_b32 v91, 4, v91
v_add_u32 v91, 64, v91
v_cndmask_b32 v91, v91, v92, {sr(sLO,2)}
v_cndmask_b32 v90, v93, v90, {sr(sLO,2)}
v_add_u32 v93, 64, v93
v_add_u32 v92, 256, v90
v_cndmask_b32 v93, v93, v92, {sr(sLO,2)}
s_lshl_b32 {sr(sK2)}, {sr(sC)}, 4
s_add_u32 {sr(sK2)}, {sr(sK2)}, {sr(sR)}
s_mul_i32 {sr(sK2)}, {sr(sK2)}, {KP_REC}
s_add_u32 {sr(sK2)}, {sr(sK2)}, {OFF_KP + Lb*KP_L}""")
        P(self.tile_addr(sOWN))
        for op in self.phi_addr(): P(op)
        P(f's_lshl_b32 {sr(sT0)}, {sr(sQT)}, 7\ns_add_u32 {sr(sT0)}, {sr(sT0)}, {LDS_RSTD}\nv_and_b32 v25, 124, {vr(vL4)}\nv_add_u32 v25, {sr(sT0)}, v25')
        self.aux_head2(L)
        self.stamp(3 + sb, f'L{L} kvpass')
        if PW:
            lw = P.newlabel('Lpw')
            P(f's_lshl_b32 {sr(sT0)}, {sr(sQT)}, 2\nv_add_u32 v26, {sr(sT0)}, {vr(vCNT)}')
            P.label(lw)
            if o['pws']: P(f's_sleep {o["pws"]}')
            P(f'ds_read_b32 {vr(vPD)}, v26 offset:{4*C_ST}\nds_read_b128 {vr(RING+8,4)}, {vr(vKA)}\nds_read_b32 {vr(vRSTD)}, v25\ns_waitcnt lgkmcnt(1)')
            P(f'v_cmp_gt_u32 vcc, {TV_K[L]}, {vr(vPD)}\ns_cbranch_vccnz {lw}')
        else:
            P('s_barrier')
            P(f'ds_read_b128 {vr(RING+8,4)}, {vr(vKA)}\nds_read_b32 {vr(vRSTD)}, v25\ns_waitcnt lgkmcnt(1)')
        self.mfma(ACC0, WPHI, RING + 8, None)
        P(f's_waitcnt lgkmcnt(0)\nv_mul_f32 {vr(vRSTD)}, {sr(sLOG2E)}, {vr(vRSTD)}')
        vrd = [f'ds_read_b128 {vr(KV_+4*st,4)}, v89 offset:{(st>>1)*OWN_ST + 2048 + (st&1)*1024}' for st in range(8)]
        if o['vpre'] == 1:
            P(f's_mov_b64 exec, {sr(sLO,2)}')
            for x in vrd: P(x)
            P('s_mov_b64 exec, -1')
        else: P('s_nop 7')
        jw = P.newlabel('Lpw')
        if PW == 1:
            P(f's_cmp_ge_u32 {sr(sQT)}, 2\ns_cbranch_scc1 {j0}')
            self.stamp(4 + sb, f'L{L} B1a')
            self.softmax16(RING, RING + 12, pk=False)
            P(f's_branch {jw}')
        P.label(j0)
        self.stamp(4 + sb, f'L{L} B1a')
        self.softmax16(RING, RING + 12)
        P.label(jw)
        P(f'ds_write_b128 {vr(vVA)}, {vr(RING,4)}\nds_write_b128 {vr(vVA)}, {vr(RING+4,4)} offset:4096\ns_waitcnt lgkmcnt(0)\ns_barrier')
        self.stamp(5 + sb, f'L{L} B1b')
        common = self.publish_o_addr(L) + f"""s_mul_i32 {sr(sH1)}, {sr(sC)}, {16*KP_REC}
s_add_u32 {sr(sH1)}, {sr(sH1)}, {OFF_KP + Lb*KP_L}
s_mov_b32 {sr(sSEL0)}, 0x3f80
s_mov_b32 {sr(sSEL1)}, 0x3f800000
s_lshl_b32 {sr(sT0)}, {sr(sHS)}, 4
v_xor_b32 {vr(vAO)}, {sr(sT0)}, {vr(vLANE)}
v_lshlrev_b32 {vr(vAO)}, 5, {vr(vAO)}
v_add_u32 {vr(vAO)}, {LDS_KVT}, {vr(vAO)}
v_and_b32 v100, 32, {vr(vLANE)}
s_lshl_b32 {sr(sT0)}, {sr(sHS)}, 6
s_add_u32 {sr(sT0)}, {sr(sT0)}, {LDS_ZT}
v_add_u32 v100, {sr(sT0)}, v100
v_cndmask_b32 {vr(vAO)}, v100, {vr(vAO)}, {sr(sLO,2)}""".split('\n')
        SEL = 104
        addr_main = f"""s_mul_i32 {sr(sH2)}, {sr(sMT)}, {KP_Q}
s_add_u32 {sr(sH2)}, {sr(sH2)}, {sr(sH1)}
v_lshrrev_b32 v100, 4, {vr(vLANE)}
v_and_b32 v101, 15, {vr(vLANE)}
v_mul_u32_u24 {vr(vA16)}, {KP_REC}, v100
v_lshl_add_u32 {vr(vA4)}, v101, 2, {vr(vA16)}
v_lshl_add_u32 {vr(vA16)}, v101, 4, {vr(vA16)}
s_lshl_b32 {sr(sT0)}, {sr(sMT)}, 9
s_add_u32 {sr(sT0)}, {sr(sT0)}, {LDS_KVT}
v_lshl_add_u32 {vr(vAW)}, v101, 5, {sr(sT0)}
v_lshl_add_u32 {vr(vAW)}, v100, 3, {vr(vAW)}
v_lshlrev_b32 v100, 4, {vr(vLANE)}
v_lshlrev_b32 v100, v100, {sr(sSEL0)}
v_lshrrev_b32 v101, 1, v101""".split('\n')
        for r_ in range(8): addr_main += [f'v_cmp_eq_u32 vcc, {r_}, v101\nv_cndmask_b32 {vr(SEL+r_)}, 0, v100, vcc']
        addr_z = f"""v_lshrrev_b32 v102, 4, {vr(vLANE)}
v_mul_u32_u24 {vr(vA16)}, {KP_REC}, v102
v_bfe_u32 v100, {vr(vLANE)}, 3, 1
v_and_b32 v101, 1, {vr(vLANE)}
v_lshl_add_u32 v100, v100, 1, v101
v_bfe_u32 v101, {vr(vLANE)}, 1, 2
v_mul_u32_u24 {vr(vA4)}, {4*KP_REC}, v100
v_add_u32 {vr(vA4)}, {vr(vA4)}, {vr(vA16)}
v_lshl_add_u32 {vr(vA4)}, v101, 4, {vr(vA4)}
v_lshlrev_b32 {vr(vAW)}, 5, v101
v_lshl_add_u32 {vr(vAW)}, v100, 3, {vr(vAW)}
v_lshl_add_u32 {vr(vAW)}, v102, 1, {vr(vAW)}
v_add_u32 {vr(vAW)}, {LDS_ZT}, {vr(vAW)}
v_and_b32 v100, 15, {vr(vLANE)}
v_lshl_add_u32 {vr(vA16)}, v100, 3, {vr(vA16)}""".split('\n')
        A = ACC1; KD = 128; T = A + 4
        def loads_main(P=P, m=' sc1'):
            P(f's_mov_b32 {sr(sT0)}, {sr(sH2)}')
            for it in range(4):
                D = KD + 12*it
                P(f'buffer_load_dwordx4 {vr(D,4)}, {vr(vA16)}, {sr(sWS,4)}, {sr(sT0)} offen{m}\nbuffer_load_dwordx4 {vr(D+4,4)}, {vr(vA16)}, {sr(sWS,4)}, {sr(sT0)} offen offset:256{m}')
                P(f'buffer_load_dword {vr(D+8)}, {vr(vA4)}, {sr(sWS,4)}, {sr(sT0)} offen offset:512{m}')
                if it < 3: P(f's_add_u32 {sr(sT0)}, {sr(sT0)}, {4*KP_REC}')
        def accum(D, first, t0):
            P(f'v_add3_u32 {vr(T)}, {t0 if first else vr(T)}, {vr(D)}, {vr(D+1)}')
            for k in range(2):
                if first: P(f'v_lshlrev_b32 {vr(A+2*k)}, 16, {vr(D+k)}\nv_and_b32 {vr(A+2*k+1)}, 0xffff0000, {vr(D+k)}')
                else: P(f'v_dot2_f32_bf16 {vr(A+2*k)}, {vr(D+k)}, {sr(sSEL0)}, {vr(A+2*k)}\nv_dot2_f32_bf16 {vr(A+2*k+1)}, {vr(D+k)}, {sr(sSEL1)}, {vr(A+2*k+1)}')
        dpp = lambda c: f'v_add_u32_dpp {vr(T)}, {vr(T)}, {vr(T)} {c} row_mask:0xf bank_mask:0xf'
        P(f's_cmp_lg_u32 {sr(sHS)}, 0\ns_cbranch_scc1 {ax1}')
        lg.reset()
        self.q_prefetch(L)
        fill = [('ds', 'cs', f'ds_read_b128 {vr(WEXTQ,4)}, {vr(vT0)}')] + common
        fill += addr_main
        fill += self.wext_items(WEXTQ, 'cs')
        self.main_qpass(L, ACC1, fill, pre_write=lambda: P('s_barrier'), rate=2)
        self.mfma(ACC0, WPHI, aQ, None)
        P('s_waitcnt lgkmcnt(0)\ns_barrier')
        if o['kp_at'] == 1: loads_main()
        if o['kp_at'] >= 2:
            inj = []; loads_main(lambda x: inj.extend(x.split('\n')))
            self.softmax16(PHQ, RING + 12, inj, o['kp_at'], o['kp_step'])
            self.stamp(6 + sb, f'L{L} phiq / kp stored')
            P(f's_branch L_kpc_{L}')
        else: P(f's_branch {j1}')
        P.label(ax1)
        P(f's_cmp_ge_u32 {sr(sMT)}, 2\ns_cbranch_scc1 {ax1b}\ns_setprio 3')
        if o['vpre'] == 2:
            P(f's_mov_b64 exec, {sr(sLO,2)}')
            for x in vrd: P(x)
            P('s_mov_b64 exec, -1')
        n_ = 2 if o['vpre'] else 3
        for st in range(8):
            of = (st >> 1)*OWN_ST + (st & 1)*512
            P(f'ds_read_b64_tr_b16 {vr(KA+4*st,2)}, v88 offset:{of}\nds_read_b64_tr_b16 {vr(KA+2+4*st,2)}, v88 offset:{of+256}')
            if not o['vpre']: P(f's_mov_b64 exec, {sr(sLO,2)}\n{vrd[st]}\ns_mov_b64 exec, -1')
            if st >= 3:
                P(f's_waitcnt lgkmcnt({3*n_})'); self.mfma(ACC0, KA + 4*(st-3), KV_ + 4*(st-3), None if st == 3 else ACC0)
        for st in range(5, 8):
            P(f's_waitcnt lgkmcnt({n_*(7-st)})'); self.mfma(ACC0, KA + 4*st, KV_ + 4*st, ACC0)
        for p in range(8): P(f'v_cvt_pk_bf16_f32 {vr(80+p)}, {vr(ACC0+2*p)}, {vr(ACC0+2*p+1)}')
        P(f'buffer_store_dwordx4 v[80:83], v90, {sr(sWS,4)}, {sr(sK2)} offen{MODS[o["sm"]]}\nbuffer_store_dwordx4 v[84:87], v93, {sr(sWS,4)}, {sr(sK2)} offen{MODS[o["sm"]]}')
        for op in self.checksum(92, 80, 8): P(op)
        P(f'buffer_store_dword v92, v91, {sr(sWS,4)}, {sr(sK2)} offen offset:512{MODS[o["sm"]]}')
        self.stamp(6 + sb, f'L{L} phiq / kp stored')
        P('s_setprio 0')
        P.label(ax1b)
        if L == 1: self.dma_w(1, ('o',))
        for it in common + addr_z: P(it)
        P('s_barrier\ns_barrier')
        P(f'ds_read_b128 {vr(aQ,4)}, {vr(vKA)} offset:4096\ns_waitcnt lgkmcnt(0)')
        self.mfma(ACC0, WPHI, aQ, None)
        P('s_nop 11')
        P.label(j1)
        self.softmax16(PHQ, RING + 12)
        if o['kp_at'] >= 2: P(f's_branch {axz}')
        else:
            P(f's_cmp_lg_u32 {sr(sHS)}, 0\ns_cbranch_scc1 {axz}')
            self.stamp(6 + sb, f'L{L} phiq / kp stored')
        lp = P.newlabel('Lkp'); ck = f'L_kpc_{L}'; dn = P.newlabel('Lkpd')
        if o['kp_at'] == 0 and o['km'] != 1: loads_main(m=MODS[o['km']])
        if o['kp_at'] == 1 or (o['kp_at'] == 0 and o['km'] != 1): P(f's_branch {ck}')
        P.label(lp)
        loads_main()
        P.label(ck)
        for it in range(4):
            D = KD + 12*it; cs = self.checksum(D + 9, D, 8)
            P(f's_waitcnt vmcnt({10 - 3*it})')
            for hf in range(2):
                P(f'v_mfma_f32_16x16x32_bf16 {vr(A,4)}, {vr(SEL+4*hf,4)}, {vr(D+4*hf,4)}, {"0" if it + hf == 0 else vr(A,4)}')
            for op in cs: P(op)
            P(f's_waitcnt vmcnt({9 - 3*it})\nv_cmp_ne_u32 {sr(sM+2*it,2)}, {vr(D+8)}, {vr(D+9)}')
            if it == 2: P(f's_or_b64 {sr(sM,2)}, {sr(sM,2)}, {sr(sM+2,2)}')
            if it == 3: P(f's_or_b64 {sr(sM,2)}, {sr(sM,2)}, {sr(sM+4,2)}')
        P(f'v_cvt_pk_bf16_f32 v68, {vr(A)}, {vr(A+1)}\nv_cvt_pk_bf16_f32 v69, {vr(A+2)}, {vr(A+3)}\nds_write_b64 {vr(vAW)}, v[68:69]')
        P(f's_or_b64 {sr(sM,2)}, {sr(sM,2)}, {sr(sM+6,2)}\ns_cbranch_scc0 {dn}')
        self.retry_tail(lp, dn)
        self.stamp(7 + sb, f'L{L} kp ok')
        P(f's_branch {j2}')
        P.label(axz)
        if L == 1:
            P('s_waitcnt vmcnt(0)')
        P(f's_cmp_lg_u32 {sr(sMT)}, 2\ns_cbranch_scc1 {j2}')
        lp = P.newlabel('Lkz'); dn = P.newlabel('Lkzd'); D = 32
        P.label(lp)
        P(f's_mov_b32 {sr(sT0)}, {sr(sH1)}\nbuffer_load_dword {vr(D+8)}, {vr(vA4)}, {sr(sWS,4)}, {sr(sT0)} offen offset:576 sc1')
        for it in range(4):
            P(f'buffer_load_dwordx2 {vr(D+2*it,2)}, {vr(vA16)}, {sr(sWS,4)}, {sr(sT0)} offen offset:{KP_Z} sc1')
            if it < 3: P(f's_add_u32 {sr(sT0)}, {sr(sT0)}, {4*KP_REC}')
        for it in range(4):
            P(f's_waitcnt vmcnt({3 - it})')
            accum(D + 2*it, it == 0, sr(sTAG))
            if it == 0: P(f'v_sub_u32 {vr(T)}, {vr(T)}, {vr(D+8)}')
        P(dpp('quad_perm:[1,0,3,2]'))
        P(f'v_permlane32_swap_b32 {vr(A)}, {vr(A+2)}\nv_permlane32_swap_b32 {vr(A+1)}, {vr(A+3)}')
        P(dpp('row_ror:8'))
        P(f'v_add_f32 {vr(A)}, {vr(A)}, {vr(A+2)}\nv_add_f32 {vr(A+1)}, {vr(A+1)}, {vr(A+3)}\nv_cmp_ne_u32 vcc, 0, {vr(T)}')
        P(f'v_permlane16_swap_b32 {vr(A)}, {vr(A+1)}\nv_add_f32 {vr(A)}, {vr(A)}, {vr(A+1)}\nv_cvt_pk_bf16_f32 v68, {vr(A)}, {vr(A)}\nds_write_b16 {vr(vAW)}, v68')
        P(f's_cbranch_vccz {dn}')
        self.retry_tail(lp, dn)
        P.label(j2)
        P('s_waitcnt lgkmcnt(0)\ns_barrier')
        self.stamp(8 + sb, f'L{L} B2')
        P(f'ds_read_b128 v[68:71], {vr(vAO)}\nds_read_b128 v[72:75], {vr(vAO)} offset:16')
        if o['eb']:
            for op in self.hint_prep(78, L): P(op)
        if o['eb'] == 1: self.hint(78, sK1)
        P('s_waitcnt lgkmcnt(1)')
        self.mfma(ACC0, 68, PHQ, None)
        if o['eb'] == 2: self.hint(78, sK1)
        P('s_waitcnt lgkmcnt(0)')
        self.mfma(ACC0, 72, PHQ + 4, ACC0)
        if o['eb'] == 3: self.hint(78, sK1)
        self.publish_o(L, ACC0, 1e-6)
        self.stamp(10 + sb, f'L{L} opub')
        P(f's_cmp_lg_u32 {sr(sHS)}, 0\ns_cbranch_scc1 {ax3}')
        if o['epr'] and L == 1: self.prio_if(f's_cmp_lt_u32 {sr(sMT)}, 2')
        elif o['mpr']: P(f's_setprio {o["mpr"]}')
        self.main_outproj(L)
        if o['epr'] == 1 and L == 1: self.prio_if(f's_cmp_ge_u32 {sr(sMT)}, 2')
        P(f's_branch L_main_{L+1}')
        P.label(ax3)
        self.aux_tail(L)
        self.stamp(13 + sb, f'L{L} xpub')
        P(f's_branch L_aux_{L+1}')

    def epilogue(self):
        P = self.P; nl = self.nl
        P.label(f'L_main_{nl}')
        P(f's_or_b32 {sr(sT0)}, s2, {sr(sW)}\ns_cmp_lg_u32 {sr(sT0)}, 0\ns_cbranch_scc1 L_aux_{nl}\ns_mov_b32 {sr(sT2)}, 0')
        self.flag(sT2, sTAG, False)
        P.label(f'L_aux_{nl}')
        if self.stamps:
            P('s_waitcnt vmcnt(0)')
            self.stamp(62, 'end')
            P(f's_memtime {sr(sST,2)}\ns_waitcnt lgkmcnt(0)\ns_sub_u32 {sr(sST)}, {sr(sST)}, s100\nv_writelane_b32 {vr(vSTAMP)}, {sr(sST)}, 59')
            P(f'''v_writelane_b32 {vr(vSTAMP)}, {sr(sBUD)}, 63
v_writelane_b32 {vr(vSTAMP)}, {sr(sFAST)}, 61
v_writelane_b32 {vr(vSTAMP)}, s99, 58
v_writelane_b32 {vr(vSTAMP)}, s101, 56
s_lshl_b32 {sr(sT0)}, s2, 3
s_add_u32 {sr(sT0)}, {sr(sT0)}, {sr(sW)}
s_lshl_b32 {sr(sT0)}, {sr(sT0)}, 8
s_add_u32 {sr(sT0)}, {sr(sT0)}, {OFF_STAMP}
buffer_store_dword {vr(vSTAMP)}, {vr(vL4)}, {sr(sWS,4)}, {sr(sT0)} offen''')
            if self.o.get('dbgst'):
                P(f's_cmp_lg_u32 {sr(sHS)}, 0\ns_cbranch_scc1 L_end\ns_load_dwordx2 s[64:65], s[0:1], 64\nv_mov_b32 v30, 0')
                for j, (idx, neg) in enumerate([(60, 1), (60, 0), (0, 0), (2, 0), (1, 0), (3, 0), (8, 0), (10, 0), (13, 0), (27, 0), (41, 0), (62, 0), (59, 0), (3, 1), (13, 1), (62, 1)]):
                    P(f'v_readlane_b32 s66, {vr(vSTAMP)}, {idx}')
                    if neg: P('s_not_b32 s66, s66')
                    P(f'v_writelane_b32 v30, s66, {j}')
                P('s_waitcnt lgkmcnt(0)')
                self.srd(68, 64, 256)
                P(f's_mov_b64 exec, 0xffff\nbuffer_atomic_umax v30, {vr(vL4)}, s[68:71], 0 offen\ns_waitcnt vmcnt(0)')
        if self.o.get('spin'):
            lp = P.newlabel('Lspin'); P.label(lp)
            P(f's_memrealtime s[66:67]\ns_waitcnt lgkmcnt(0)\ns_sub_u32 s66, s66, s98\ns_cmp_lt_u32 s66, {self.o["spin"]}\ns_cbranch_scc1 {lp}')
        P.label('L_end')
        P('s_endpgm')

    def build(self):
        self.prologue()
        for L in range(self.nl):
            (self.layerA if L % 2 == 0 else self.layerB)(L)
        self.epilogue()
        self.emit_stubs()
        for L in range(0, self.nl, 2): self.attn_fallback(L)
        n = self.P.fix_hazards()
        errs = self.P.check_waits()
        head = open(f'cdna_kernels/{NAME}.s.ref').read().split('; @launch')[0]
        s = head + f'; @launch grid=(256,1,1) block=(512,1,1) lds={LDS_TOTAL}\n'
        s += f'.amdgcn_target "amdgcn-amd-amdhsa--gfx950"\n.text\n{DOC}.globl {NAME}_kernel\n.p2align 8\n.type {NAME}_kernel,@function\n{NAME}_kernel:\n'
        s += self.P.text().replace('CODE_BYTES', '(L_end - %s_kernel - 1088)' % NAME)
        s += f'''.section .rodata,"a"
.p2align 6
.amdhsa_kernel {NAME}_kernel
  .amdhsa_next_free_vgpr 256
  .amdhsa_next_free_sgpr 102
  .amdhsa_accum_offset 256
  .amdhsa_group_segment_fixed_size 0
  .amdhsa_kernarg_size 80
  .amdhsa_user_sgpr_count 2
  .amdhsa_user_sgpr_kernarg_segment_ptr 1
  .amdhsa_system_sgpr_workgroup_id_x 1
.end_amdhsa_kernel
'''
        return s, n, errs


if __name__ == '__main__':
    import argparse, json
    ap = argparse.ArgumentParser()
    ap.add_argument('-o', default=f'cdna_kernels/{NAME}.s')
    ap.add_argument('--stamps', action='store_true')
    ap.add_argument('--safe', action='store_true')
    ap.add_argument('--cyc', action='store_true')
    ap.add_argument('--opt', nargs='*', default=[])
    ap.add_argument('--noalias', action='store_true')
    ap.add_argument('--nl', type=int, default=4)
    a = ap.parse_args()
    g = Gen(stamps=a.stamps, nlayers=a.nl, force_safe=a.safe, cyc=a.cyc, alias=not a.noalias, opt={k: int(v) for k, v in (x.split('=') for x in a.opt)})
    s, n, errs = g.build()
    open(a.o, 'w').write(s)
    if a.stamps: json.dump(g.stamp_names, open(a.o + '.stamps.json', 'w'))
    print('instructions', sum(1 for x in g.P.L if x.op), 'nops inserted', n, 'lds', LDS_TOTAL)
    for e in errs[:8]: print('WAITCHECK', e)
```
